```python
import torch

def _softmax(x, axis=-1):
    return torch.softmax(x, dim=axis)
def _gelu(x):
    return torch.nn.functional.gelu(x, approximate="tanh")
def _silu(x):
    return torch.nn.functional.silu(x)
def _sigmoid(x):
    return torch.sigmoid(x)
def _layernorm(x, axis=-1, eps=1e-5):
    m = x.mean(dim=axis, keepdim=True)
    v = x.var(dim=axis, keepdim=True, unbiased=False)
    return (x - m) / torch.sqrt(v + eps)
def _scatter_add(tgt, idx, src, axis=0):
    return tgt.clone().index_add_(axis, idx, src)
def _segment_sum(src, seg, n):
    out = torch.zeros((n,) + src.shape[1:], dtype=src.dtype)
    return out.index_add_(0, seg, src)
def _pad(x, pw):
    flat = tuple(v for pair in reversed(pw) for v in pair)
    return torch.nn.functional.pad(x, flat)

kernel_name = 'gated_mix__sliding_local_dilated__mixer_token_mlp__prompt'

def setup_inputs():

    _w = (lambda a: (lambda t: t.to(torch.bfloat16) if t.is_floating_point() else t)(torch.as_tensor(a)))
    def _A_setup():
        B, S, D = 1, 2048, 640
        return {
            "x": _w((lambda *s: torch.randn(*s, dtype=torch.bfloat16) * 0.05)(B, S, D)),
            "wqkv": _w((lambda *s: torch.randn(*s, dtype=torch.bfloat16) * 0.8)(D, 3 * D)),
            "wo": _w((lambda *s: torch.randn(*s, dtype=torch.bfloat16) * 0.05)(D, D)),
        }
    _A_in = _A_setup()

    def _B_setup():
        B, S, D, F = 1, 2048, 640, 1536
        return {
            "x": _w((lambda *s: torch.randn(*s, dtype=torch.bfloat16) * 0.05)(B, S, D)),
            "w1": _w((lambda *s: torch.randn(*s, dtype=torch.bfloat16) * 0.8)(S, F) * (S ** -0.5)),
            "b1": _w((lambda *s: torch.randn(*s, dtype=torch.bfloat16) * 0.8)(F) * 0.02),
            "w2": _w((lambda *s: torch.randn(*s, dtype=torch.bfloat16) * 0.8)(F, S) * (F ** -0.5)),
            "b2": _w((lambda *s: torch.randn(*s, dtype=torch.bfloat16) * 0.8)(S) * 0.02),
        }
    _B_in = _B_setup()

    return {
        "A_x": _A_in["x"],
        "A_wqkv": _A_in["wqkv"],
        "A_wo": _A_in["wo"],
        "B_x": _B_in["x"],
        "B_w1": _B_in["w1"],
        "B_b1": _B_in["b1"],
        "B_w2": _B_in["w2"],
        "B_b2": _B_in["b2"],
        "gate_w": _w((lambda *s: torch.randn(*s, dtype=torch.bfloat16) * 0.05)(640) * 16.0),
    }

def reference(A_x, A_wqkv, A_wo, B_x, B_w1, B_b1, B_w2, B_b2, gate_w):
    def _A_ref(x, wqkv, wo):
        B, S, D = x.shape
        H = 32; Dh = D // H
        W, dil = 8, 2
        qkv = (lambda x, *d: x.permute(*d))((x @ wqkv).reshape(B, S, 3, H, Dh), 2, 0, 3, 1, 4)
        q, k, v = qkv[0], qkv[1], qkv[2]
        scale = Dh ** -0.5
        pos = torch.arange(S)
        off = torch.arange(W) * dil
        idx = pos[:, None] - off[None, :]
        mask = idx >= 0
        idx_c = torch.where(mask, idx, 0).reshape(-1)
        kg = k[:, :, idx_c, :].reshape(B, H, S, W, Dh)
        vg = v[:, :, idx_c, :].reshape(B, H, S, W, Dh)
        logits = torch.einsum("bhsd,bhswd->bhsw", q, kg) * scale
        logits = torch.where(mask[None, None, :, :], logits, -1e9)
        attn = _softmax(logits, axis=-1)
        o = torch.einsum("bhsw,bhswd->bhsd", attn, vg)
        return (lambda x, *d: x.permute(*d))(o, 0, 2, 1, 3).reshape(B, S, D) @ wo

    def _B_ref(x, w1, b1, w2, b2):
        B, S, D = x.shape
        h = _layernorm(x, axis=-1)
        u = torch.einsum("bsd,sf->bdf", h, w1) + b1
        u = _gelu(u)
        y = torch.einsum("bdf,fs->bds", u, w2) + b2
        return (lambda x, *d: x.permute(*d))(y, 0, 2, 1)

    x = A_x
    g = _sigmoid((x * gate_w).sum(-1, keepdims=True))
    a = _A_ref(x, A_wqkv, A_wo)
    b = _B_ref(x, B_w1, B_b1, B_w2, B_b2)
    return g * a + (1 - g) * b
```

```python
import re

def regs(op):
    op = op.strip()
    op = re.sub(r"^-|^abs\(|\)$|^\|", "", op).strip("|")
    m = re.fullmatch(r"([vsa])(\d+)", op)
    if m: return {(m.group(1), int(m.group(2)))}
    m = re.fullmatch(r"([vsa])\[(\d+):(\d+)\]", op)
    if m: return {(m.group(1), i) for i in range(int(m.group(2)), int(m.group(3)) + 1)}
    if op == "vcc": return {("s", "vcc")}
    if op == "exec": return {("s", "exec")}
    if op == "m0": return {("s", "m0")}
    return set()

TRANS = ("v_exp_f32", "v_log_f32", "v_rcp_f32", "v_rsq_f32", "v_sqrt_f32", "v_sin_f32", "v_cos_f32")

class Ins:
    def __init__(self, text):
        self.text = text
        t = text.split(";")[0].strip()
        p = t.split(None, 1)
        self.op = p[0]
        rest = p[1] if len(p) > 1 else ""
        ops = [o.strip() for o in re.split(r",(?![^\[]*\])", rest)] if rest else []
        if ops:
            last = ops[-1].split()
            self.mods = " ".join(last[1:]); ops[-1] = last[0] if last else ""
        else: self.mods = ""
        self.ops = ops
        op = self.op
        self.w = set(); self.r = set()
        self.kind = "other"
        R = lambda l: set().union(*[regs(o) for o in l]) if l else set()
        self.states = 1
        if op == "s_nop": self.states = int(ops[0]) + 1; self.kind = "nop"
        elif op.startswith("v_mfma"):
            self.kind = "mfma"; self.w = regs(ops[0]); self.A = regs(ops[1]); self.B = regs(ops[2]); self.C = regs(ops[3]); self.r = self.A | self.B | self.C
            self.passes = 8 if "32x32" in op else 4
        elif op.startswith("v_"):
            self.kind = "valu"
            if op.startswith("v_permlane") and "swap" in op: self.w = R(ops[:2]); self.r = R(ops[:2])
            elif op.startswith("v_cmp"): self.w = regs(ops[0]); self.r = R(ops[1:])
            elif "_co_" in op: self.w = R(ops[:2]); self.r = R(ops[2:])
            else:
                self.w = regs(ops[0]); self.r = R(ops[1:])
                if op.startswith(("v_fmac", "v_dot2c", "v_pk_fmac")) or "_dpp" in op or "row_" in self.mods or "quad_perm" in self.mods: self.r |= self.w
            if op.startswith("v_cndmask") and len(ops) == 3: self.r |= {("s", "vcc")}
            self.dpp = "_dpp" in op or "row_" in self.mods or "quad_perm" in self.mods
        elif op.startswith("ds_"):
            self.kind = "ds"
            if "read" in op or "permute" in op or "swizzle" in op: self.w = regs(ops[0]); self.r = R(ops[1:])
            else: self.r = R(ops)
        elif op.startswith(("buffer_", "global_")):
            self.kind = "vmem"
            self.lds = (" lds" in " " + self.mods) or "_lds_" in op
            if op.startswith(("buffer_inv", "buffer_wbl2")): pass
            elif "store" in op or "atomic" in op:
                self.r = R(ops)
                self.data = regs(ops[0]) if op.startswith("buffer_") else regs(ops[1])
                self.wide = "x4" in op or "x3" in op
                if "atomic" in op and "sc0" in self.mods: self.w = regs(ops[0])
            elif self.lds: self.r = R(ops) | {("s", "m0")}
            else: self.w = regs(ops[0]); self.r = R(ops[1:])
        elif op.startswith("s_"):
            self.kind = "salu"
            if op.startswith(("s_cmp", "s_cbranch", "s_branch", "s_waitcnt", "s_barrier", "s_endpgm", "s_setprio", "s_sleep")): self.r = R(ops)
            else:
                self.w = regs(ops[0]) if ops else set(); self.r = R(ops[1:])
                if "saveexec" in op: self.w |= {("s", "exec")}

def need(p, c):
    n = 0
    vw = {x for x in p.w if x[0] in "va"}; sw = {x for x in p.w if x[0] == "s"}
    if p.kind == "valu":
        if c.kind == "mfma" and vw & c.r: n = max(n, 2)
        if c.kind == "valu":
            if c.op.startswith(("v_readfirstlane", "v_readlane")) and vw & c.r: n = max(n, 1)
            if c.op.startswith("v_permlane") and vw & c.r: n = max(n, 2)
            if c.dpp and vw & c.r: n = max(n, 2)
            if sw & c.r: n = max(n, 2)
            if p.op.startswith(TRANS) and vw & c.r: n = max(n, 1)
            if p.op.startswith("v_dot") and vw & (c.r | c.w) and not (c.op == p.op): n = max(n, 3)
            if p.op.startswith("v_dot") and c.op == p.op and vw & set().union(*[regs(o) for o in c.ops[1:3]]): n = max(n, 3)
            if ("s", "exec") in sw and c.dpp: n = max(n, 5)
        if p.op.startswith("v_dot") and c.kind in ("vmem", "ds", "mfma") and vw & c.r: n = max(n, 3)
        if c.kind == "vmem" and sw & c.r: n = max(n, 5)
        if c.kind == "salu" and sw & c.r: n = max(n, 1)
        if ("s", "exec") in sw and c.kind == "mfma": n = max(n, 4)
    if p.kind == "salu":
        if ("s", "m0") in sw and c.kind == "vmem" and getattr(c, "lds", False): n = max(n, 1)
    if p.kind == "mfma":
        P = p.passes
        if c.kind == "mfma":
            if p.w & (c.A | c.B): n = max(n, {4: 8, 8: 12}[P])
            if p.w & c.C and not (p.w == c.C and c.passes == P): n = max(n, {4: 6, 8: 10}[P])
            if p.w & c.w and not (p.w == c.C and c.passes == P): n = max(n, {4: 6, 8: 10}[P])
        elif c.kind in ("valu", "ds", "vmem"):
            if p.w & (c.r | c.w): n = max(n, {4: 8, 8: 12}[P])
            if c.kind == "valu" and p.C & c.w: n = max(n, {4: 3, 8: 7}[P])
    if p.kind == "vmem" and getattr(p, "wide", False) and p.data & c.w and c.kind in ("valu", "mfma"): n = max(n, 2)
    return n

class Asm:
    def __init__(self):
        self.lines = []
        self.hist = []
        self.nops = 0
    def raw(self, text):
        for l in text.split("\n"): self.lines.append((l, None))
    def label(self, name, align=None):
        if align: self.lines.append((f".p2align {align}", None))
        self.lines.append((name + ":", None))
    def reset(self): self.hist = []
    def __call__(self, text):
        for l in text.split("\n"):
            l = l.strip()
            if not l: continue
            if l.startswith(";"): self.lines.append(("    " + l, None)); continue
            if l.endswith(":"): self.label(l[:-1]); continue
            if l.startswith("."): self.lines.append((l, None)); continue
            c = Ins(l)
            d = 0; pad = 0
            for p in reversed(self.hist):
                pad = max(pad, need(p, c) - d)
                d += p.states
                if d > 20: break
            if pad > 0:
                n = Ins(f"s_nop {pad-1}"); self.lines.append((f"    s_nop {pad-1}", n)); self.hist.append(n); self.nops += 1
            self.lines.append(("    " + l, c)); self.hist.append(c)
            if c.op in ("s_branch", "s_endpgm"): self.hist = []
    def check_branches(self):
        lab = {t[:-1]: i for i, (t, c) in enumerate(self.lines) if c is None and t.endswith(":")}
        bad = []
        for i, (t, c) in enumerate(self.lines):
            if c is not None and c.op.startswith(("s_cbranch", "s_branch")):
                tgt = lab[c.ops[0]]
                before = []
                k = i; d = 0
                while k >= 0 and d < 20:
                    x = self.lines[k][1]
                    if x is not None:
                        if k != i and x.op in ("s_branch", "s_endpgm"): break
                        before.append(x); d += x.states
                    k -= 1
                after = []; k = tgt; d = 0
                while k < len(self.lines) and d < 20:
                    x = self.lines[k][1]
                    if x is not None:
                        after.append(x); d += x.states
                        if x.op in ("s_branch", "s_endpgm"): break
                    k += 1
                da = 0
                for y in after:
                    db = 0
                    for x in before:
                        if need(x, y) > da + db: bad.append((x.text, y.text, c.text))
                        db += x.states
                    da += y.states
        return bad
    def text(self): return "\n".join(t for t, _ in self.lines) + "\n"

def kernel_head(a, name):
    a.raw(f".text\n.globl {name}\n.p2align 8\n.type {name},@function\n{name}:")
    a.reset()

def kernel_desc(name, vgpr, sgpr=102, accum=None):
    accum = accum or (vgpr + 3) // 4 * 4
    return f""".section .rodata,"a"
.p2align 6
.amdhsa_kernel {name}
  .amdhsa_next_free_vgpr {vgpr}
  .amdhsa_next_free_sgpr {sgpr}
  .amdhsa_accum_offset {accum}
  .amdhsa_group_segment_fixed_size 0
  .amdhsa_kernarg_size 96
  .amdhsa_user_sgpr_count 2
  .amdhsa_user_sgpr_kernarg_segment_ptr 1
  .amdhsa_system_sgpr_workgroup_id_x 1
  .amdhsa_float_denorm_mode_32 3
.end_amdhsa_kernel
"""
```

```python
import sys, math
from dsl import *

NAME = "gated_mix__sliding_local_dilated__mixer_token_mlp__prompt"
S_, D_, F_ = 2048, 640, 1536
KA = dict(x=0, wqkv=8, wo=16, w1=32, b1=40, w2=48, b2=56, gw=64, out=72, dbg=80, ws=88)
H_OFF, OT_OFF, UW_OFF, G_OFF = 0, 0x280000, 0x500000, 0x800000
H_SZ, OT_SZ, UW_SZ, G_SZ = 2621440, 2621440, 40 * 68 * 1024, 8192
LOG2E = 1.4426950408889634
def f2u(x):
    import struct
    return "0x%08x" % struct.unpack("<I", struct.pack("<f", x))[0]

def srd(a, d, base, size, off=0):
    if off:
        a(f"s_add_u32 s{d}, s{base}, {off}\ns_addc_u32 s{d+1}, s{base+1}, 0")
    elif d != base:
        a(f"s_mov_b32 s{d}, s{base}\ns_mov_b32 s{d+1}, s{base+1}")
    a(f"s_mov_b32 s{d+2}, {size}\ns_mov_b32 s{d+3}, 0x20000")

def v(n, k=1): return f"v{n}" if k == 1 else f"v[{n}:{n+k-1}]"

def lane_wave(a, vlane, swave):
    a(f"v_lshrrev_b32 v{vlane}, 6, v0\nv_readfirstlane_b32 s{swave}, v{vlane}\nv_and_b32 v{vlane}, 63, v0")

def tr_row(a, vd, vl, vt):
    a(f"v_lshrrev_b32 v{vd}, 2, v{vl}")

def k0_ln(a, L):
    a(f"""
    s_load_dwordx2 s[4:5], s[0:1], {KA['x']}
    s_load_dwordx2 s[8:9], s[0:1], {KA['gw']}
    s_load_dwordx2 s[20:21], s[0:1], {KA['ws']}
    s_lshl_b32 s16, s2, 3
    s_lshl_b32 s17, s3, 1
    s_add_u32 s16, s16, s17
    v_lshrrev_b32 v2, 5, v1
    v_add_u32 v2, s16, v2
    v_and_b32 v3, 31, v1
    v_lshlrev_b32 v4, 3, v3
    v_mul_u32_u24 v5, 1280, v2
    v_add_u32 v5, v5, v4
    s_waitcnt lgkmcnt(0)
    """)
    srd(a, 4, 4, H_SZ); srd(a, 8, 8, 1280)
    for i in range(5): a(f"buffer_load_dwordx2 {v(10+2*i,2)}, v5, s[4:7], 0 offen offset:{256*i}")
    for i in range(5): a(f"buffer_load_dwordx2 {v(20+2*i,2)}, v4, s[8:11], 0 offen offset:{256*i}")
    srd(a, 12, 20, H_SZ, H_OFF); srd(a, 24, 20, G_SZ, G_OFF)
    a("s_mov_b32 s30, 0x3f803f80\ns_mov_b32 s31, 0xffff0000")
    a("s_waitcnt vmcnt(5)")
    a("v_dot2_f32_bf16 v6, v10, s30, 0")
    for i in range(1, 10): a(f"v_dot2_f32_bf16 v6, v{10+i}, s30, v6")
    for i in range(10): a(f"v_lshlrev_b32 v{30+2*i}, 16, v{10+i}\nv_and_b32 v{31+2*i}, s31, v{10+i}")
    def red(r, t):
        for sh in (8, 4, 2, 1): a(f"v_add_f32_dpp v{r}, v{r}, v{r} row_ror:{sh} row_mask:0xf bank_mask:0xf")
        a(f"v_mov_b32 v{t}, v{r}\nv_permlane16_swap_b32 v{r}, v{t}\nv_add_f32 v{r}, v{r}, v{t}")
    red(6, 8)
    a(f"v_mul_f32 v6, {f2u(1/640)}, v6")
    a("s_waitcnt vmcnt(0)")
    a("v_dot2_f32_bf16 v9, v10, v20, 0")
    for i in range(1, 10): a(f"v_dot2_f32_bf16 v9, v{10+i}, v{20+i}, v9")
    for i in range(10): a(f"v_pk_add_f32 {v(30+2*i,2)}, {v(30+2*i,2)}, v[6:7] op_sel_hi:[1,0] neg_lo:[0,1] neg_hi:[0,1]")
    a("v_pk_mul_f32 v[50:51], v[30:31], v[30:31]")
    for i in range(1, 10): a(f"v_pk_fma_f32 v[50:51], {v(30+2*i,2)}, {v(30+2*i,2)}, v[50:51]")
    a("v_add_f32 v50, v50, v51")
    red(50, 8); red(9, 52)
    a(f"""
    v_mov_b32 v8, {f2u(1e-5)}
    v_fmac_f32 v8, {f2u(1/640)}, v50
    v_rsq_f32 v50, v8
    v_mul_f32 v9, {f2u(-LOG2E)}, v9
    v_exp_f32 v9, v9
    """)
    for i in range(10): a(f"v_pk_mul_f32 {v(30+2*i,2)}, {v(30+2*i,2)}, v[50:51] op_sel_hi:[1,0]")
    a("v_add_f32 v9, 1.0, v9\nv_rcp_f32 v9, v9")
    for i in range(10): a(f"v_cvt_pk_bf16_f32 v{10+i}, v{30+2*i}, v{31+2*i}")
    for i in range(5): a(f"buffer_store_dwordx2 {v(10+2*i,2)}, v5, s[12:15], 0 offen offset:{256*i}")
    a(f"""
    v_lshlrev_b32 v2, 2, v2
    v_cmp_eq_u32 vcc, 0, v3
    s_and_saveexec_b64 s[32:33], vcc
    s_cbranch_execz {L}_end
    buffer_store_dword v9, v2, s[24:27], 0 offen
    """)

def k0_wo(a, L, wg0):
    a(f"""
    s_load_dwordx2 s[4:5], s[0:1], {KA['wo']}
    s_load_dwordx2 s[20:21], s[0:1], {KA['ws']}
    s_sub_u32 s16, s2, {wg0}
    s_lshl_b32 s16, s16, 2
    s_add_u32 s16, s16, s3
    s_mul_i32 s17, s16, 6554
    s_lshr_b32 s17, s17, 16
    s_mul_i32 s18, s17, 10
    s_sub_u32 s18, s16, s18
    v_lshrrev_b32 v2, 3, v1
    v_and_b32 v3, 7, v1
    v_and_b32 v4, 6, v2
    v_xor_b32 v3, v3, v4
    v_lshlrev_b32 v3, 4, v3
    v_mul_u32_u24 v2, 1280, v2
    v_add_u32 v2, v2, v3
    s_mul_i32 s19, s17, {32*1280}
    s_lshl_b32 s22, s18, 7
    s_add_u32 s19, s19, s22
    s_lshl_b32 s23, s3, 12
    s_waitcnt lgkmcnt(0)
    """)
    srd(a, 4, 4, 640 * 1280)
    for i in range(4):
        a(f"s_add_u32 m0, s23, {1024*i}\ns_add_u32 s22, s19, {8*1280*i}\nbuffer_load_dwordx4 v2, s[4:7], s22 offen lds")
    srd(a, 12, 20, UW_SZ, UW_OFF)
    a("""
    v_lshrrev_b32 v5, 2, v1
    v_lshrrev_b32 v6, 1, v5
    v_and_b32 v6, 3, v6
    v_lshlrev_b32 v5, 7, v5
    v_and_b32 v7, 3, v1
    v_lshlrev_b32 v7, 3, v7
    v_add3_u32 v5, v5, v7, s23
    """)
    for t in range(4): a(f"v_xor_b32 v7, {t}, v6\nv_lshl_add_u32 v{8+t}, v7, 5, v5")
    a(f"""
    s_lshl_b32 s22, s18, 2
    s_mul_i32 s22, s22, 68
    s_add_u32 s22, s22, s17
    s_add_u32 s22, s22, 48
    s_lshl_b32 s22, s22, 10
    v_lshlrev_b32 v12, 4, v1
    s_waitcnt vmcnt(0)
    """)
    for t in range(4):
        a(f"ds_read_b64_tr_b16 {v(16+4*t,2)}, v{8+t}\nds_read_b64_tr_b16 {v(18+4*t,2)}, v{8+t} offset:2048")
    for t in range(4):
        a(f"s_waitcnt lgkmcnt({6-2*t})\nbuffer_store_dwordx4 {v(16+4*t,4)}, v12, s[12:15], s22 offen\ns_add_u32 s22, s22, {68*1024}")

def gen_k0(a, name):
    kernel_head(a, name)
    L = "Lk0"
    lane_wave(a, 1, 3)
    a(f"s_cmp_ge_u32 s2, 306\ns_cbranch_scc1 {L}_end\ns_cmp_ge_u32 s2, 256\ns_cbranch_scc1 {L}_wo")
    k0_ln(a, L)
    a(f"s_branch {L}_end")
    a.label(f"{L}_wo")
    k0_wo(a, L, 256)
    a.label(f"{L}_end")
    a("s_endpgm")
    return kernel_desc(name, 64, 48)

def loader_loop(a, L, J, S, n, issue, scnt):
    a(f"s_mov_b32 s{scnt}, 0")
    a.label(f"{L}_pro")
    issue("p")
    a(f"s_add_u32 s{scnt}, s{scnt}, 1\ns_cmp_lt_u32 s{scnt}, {S-1}\ns_cbranch_scc1 {L}_pro")
    a.label(f"{L}_main")
    a(f"s_waitcnt vmcnt({n*(S-2)})\ns_barrier")
    issue("m")
    a(f"s_add_u32 s{scnt}, s{scnt}, 1\ns_cmp_lt_u32 s{scnt}, {J}\ns_cbranch_scc1 {L}_main")
    for k in range(S - 2, -1, -1):
        a(f"s_waitcnt vmcnt({n*k})\ns_barrier")
    a("s_endpgm")

P2_S, P2_SLOT = 6, 18432
def gen_p2(a, name, stag=True):
    kernel_head(a, name)
    L = "Lp2"
    lane_wave(a, 1, 3)
    a(f"""
    s_cmp_ge_u32 s2, 256
    s_cbranch_scc1 {L}_end
    s_load_dwordx2 s[4:5], s[0:1], {KA['w2']}
    s_load_dwordx2 s[20:21], s[0:1], {KA['ws']}
    s_load_dwordx2 s[24:25], s[0:1], {KA['b2']}
    s_load_dwordx2 s[28:29], s[0:1], {KA['out']}
    s_and_b32 s16, s2, 7
    s_lshr_b32 s17, s2, 3
    s_lshr_b32 s18, s16, 1
    s_lshl_b32 s18, s18, 3
    s_and_b32 s19, s17, 7
    s_add_u32 s18, s18, s19
    s_and_b32 s16, s16, 1
    s_lshl_b32 s16, s16, 2
    s_lshr_b32 s22, s17, 3
    s_add_u32 s16, s16, s22
    s_cmp_ge_u32 s3, 2
    s_cbranch_scc1 {L}_cons
    """)
    a(f"""
    s_setprio 1
    v_lshrrev_b32 v2, 3, v1
    v_and_b32 v3, 7, v1
    v_and_b32 v4, 6, v2
    v_xor_b32 v3, v3, v4
    v_lshlrev_b32 v3, 4, v3
    v_lshl_add_u32 v2, v2, 12, v3
    s_lshl_b32 s23, s3, 5
    s_lshl_b32 s23, s23, 12
    s_lshl_b32 s26, s18, 7
    s_add_u32 s23, s23, s26
    """)
    for i in range(4): a(f"s_add_u32 s26, s23, {8*4096*i}\nv_add_u32 v{8+i}, s26, v2")
    a(f"s_mul_i32 s23, s16, {5*68}\ns_add_u32 s23, s23, s3\ns_lshl_b32 s23, s23, 10\nv_lshlrev_b32 v3, 4, v1")
    for i in range(5): a(f"s_add_u32 s26, s23, {68*1024*i}\nv_add_u32 v{12+i}, s26, v3")
    if stag:
        a("s_lshl_b32 s34, s22, 1\ns_add_u32 s34, s34, s19\ns_and_b32 s34, s34, 7\ns_mul_i32 s34, s34, 3")
    else:
        a("s_mov_b32 s34, 0")
    a(f"""
    s_mov_b32 s35, 24
    s_mov_b32 s36, 0
    s_mov_b32 s37, 0
    s_lshl_b32 s38, s3, 12
    s_mul_i32 s39, s3, 5120
    s_add_u32 s39, s39, 8192
    s_waitcnt lgkmcnt(0)
    """)
    srd(a, 4, 4, F_ * 4096); srd(a, 8, 20, UW_SZ, UW_OFF)
    def issue(tag):
        a(f"""
        s_lshl_b32 s40, s34, 18
        s_lshl_b32 s41, s34, 1
        s_add_u32 s41, s41, s36
        s_lshl_b32 s41, s41, 10
        s_add_u32 s42, s37, s38
        s_add_u32 s43, s37, s39
        """)
        for i in range(4): a(f"s_add_u32 m0, s42, {1024*i}\nbuffer_load_dwordx4 v{8+i}, s[4:7], s40 offen lds")
        for i in range(5): a(f"s_add_u32 m0, s43, {1024*i}\nbuffer_load_dwordx4 v{12+i}, s[8:11], s41 offen lds")
        a(f"""
        s_add_u32 s37, s37, {P2_SLOT}
        s_cmp_ge_u32 s37, {P2_SLOT*P2_S}
        s_cselect_b32 s37, 0, s37
        s_add_u32 s34, s34, 1
        s_cmp_ge_u32 s34, s35
        s_cselect_b32 s34, 0, s34
        s_cmp_lg_u32 s33, 23
        s_cbranch_scc1 {L}_nosw{tag}
        """)
        srd(a, 4, 20, OT_SZ, OT_OFF)
        a("s_mov_b32 s35, 10\ns_mov_b32 s36, 48")
        a("s_mov_b32 s34, s19" if stag else "s_mov_b32 s34, 0")
        a.label(f"{L}_nosw{tag}")
    loader_loop(a, L, 34, P2_S, 9, issue, 33)
    a.label(f"{L}_cons")
    ACB, ACA, PA, PB, QA_, QB = 16, 36, 56, 76, 80, 100
    a(f"""
    s_sub_u32 s3, s3, 2
    s_lshl_b32 s23, s18, 6
    s_lshl_b32 s26, s3, 4
    s_add_u32 s23, s23, s26
    v_and_b32 v2, 15, v1
    v_add_u32 v2, s23, v2
    v_lshlrev_b32 v3, 1, v2
    v_lshlrev_b32 v4, 2, v2
    s_waitcnt lgkmcnt(0)
    """)
    srd(a, 24, 24, 4096); srd(a, 8, 20, G_SZ, G_OFF); srd(a, 28, 28, S_ * 1280)
    a(f"""
    buffer_load_ushort v10, v3, s[24:27], 0 offen
    buffer_load_dword v11, v4, s[8:11], 0 offen
    v_lshrrev_b32 v5, 2, v1
    v_lshrrev_b32 v6, 1, v5
    v_and_b32 v6, 3, v6
    v_xor_b32 v6, s3, v6
    v_lshlrev_b32 v6, 5, v6
    v_lshl_add_u32 v5, v5, 7, v6
    v_and_b32 v6, 3, v1
    v_lshl_add_u32 v8, v6, 3, v5
    v_lshlrev_b32 v9, 4, v1
    v_add_u32 v9, 8192, v9
    v_mul_u32_u24 v12, 1280, v2
    v_lshrrev_b32 v6, 4, v1
    v_lshl_add_u32 v12, v6, 3, v12
    s_mul_i32 s26, s16, 160
    v_add_u32 v12, s26, v12
    """)
    for i in range(20): a(f"v_mov_b32 v{ACA+i}, 0")
    a("s_waitcnt vmcnt(1)\nv_lshlrev_b32 v10, 16, v10")
    for i in range(20): a(f"v_mov_b32 v{ACB+i}, v10")
    def reads(A, B, kk):
        a(f"ds_read_b64_tr_b16 {v(B,2)}, v8 offset:{kk*4096}\nds_read_b64_tr_b16 {v(B+2,2)}, v8 offset:{kk*4096+2048}")
        for dt in range(5): a(f"ds_read_b128 {v(A+4*dt,4)}, v9 offset:{(kk*5+dt)*1024}")
    def mf(acc, A, B):
        for dt in range(5): a(f"v_mfma_f32_16x16x32_bf16 {v(acc+4*dt,4)}, {v(A+4*dt,4)}, {v(B,4)}, {v(acc+4*dt,4)}")
    a("s_mov_b32 s33, 0\ns_mov_b32 s37, 0\ns_barrier")
    reads(PA, PB, 0)
    def loop(tag, acc, end, last):
        a.label(f"{L}_c{tag}", 3)
        reads(QA_, QB, 1)
        a(f"""
        s_add_u32 s40, s37, {P2_SLOT}
        s_cmp_ge_u32 s40, {P2_SLOT*P2_S}
        s_cselect_b32 s41, 0, s40
        s_sub_u32 s40, s41, s37
        s_mov_b32 s37, s41
        s_add_u32 s33, s33, 1
        s_waitcnt lgkmcnt(7)
        """)
        mf(acc, PA, PB)
        a("v_add_u32 v8, s40, v8\nv_add_u32 v9, s40, v9\ns_waitcnt lgkmcnt(0)")
        if last: a(f"s_cmp_ge_u32 s33, {end}\ns_cbranch_scc1 {L}_clast")
        a("s_barrier")
        reads(PA, PB, 0)
        mf(acc, QA_, QB)
        if last: a(f"s_branch {L}_c{tag}")
        else: a(f"s_cmp_lt_u32 s33, {end}\ns_cbranch_scc1 {L}_c{tag}")
    loop("b", ACB, 24, False)
    loop("a", ACA, 34, True)
    a.label(f"{L}_clast")
    mf(ACA, QA_, QB)
    a("s_waitcnt vmcnt(0)\ns_nop 4")
    for dt in range(5):
        for r in range(4): a(f"v_sub_f32 v{ACA+4*dt+r}, v{ACA+4*dt+r}, v{ACB+4*dt+r}")
        for r in range(4): a(f"v_fmac_f32 v{ACB+4*dt+r}, v11, v{ACA+4*dt+r}")
        a(f"v_cvt_pk_bf16_f32 v{PA+2*dt}, v{ACB+4*dt}, v{ACB+4*dt+1}\nv_cvt_pk_bf16_f32 v{PA+2*dt+1}, v{ACB+4*dt+2}, v{ACB+4*dt+3}")
        a(f"buffer_store_dwordx2 {v(PA+2*dt,2)}, v12, s[28:31], 0 offen offset:{32*dt}")
    a.label(f"{L}_end")
    a("s_endpgm")
    return kernel_desc(name, 104, 48)

G1_S, G1_SLOT = 6, 24576
def body_g1(a, L):
    a(f"""
    s_load_dwordx2 s[4:5], s[0:1], {KA['w1']}
    s_load_dwordx2 s[20:21], s[0:1], {KA['ws']}
    s_load_dwordx2 s[24:25], s[0:1], {KA['b1']}
    s_cmp_ge_u32 s3, 4
    s_cbranch_scc1 {L}_cons
    s_setprio 1
    v_lshrrev_b32 v2, 4, v1
    s_lshl_b32 s23, s3, 2
    v_add_u32 v2, s23, v2
    v_and_b32 v4, 7, v2
    v_lshlrev_b32 v4, 1, v4
    v_and_b32 v3, 15, v1
    v_xor_b32 v3, v3, v4
    v_lshlrev_b32 v3, 4, v3
    v_mul_u32_u24 v2, 3072, v2
    s_lshl_b32 s26, s16, 8
    v_add3_u32 v8, v2, v3, s26
    """)
    for i in range(1, 4): a(f"v_add_u32 v{8+i}, {16*3072*i}, v8")
    a(f"""
    v_lshrrev_b32 v2, 3, v1
    v_and_b32 v3, 7, v1
    v_and_b32 v4, 6, v2
    v_xor_b32 v3, v3, v4
    v_lshlrev_b32 v3, 4, v3
    s_lshl_b32 s23, s3, 3
    v_add_u32 v2, s23, v2
    v_mul_u32_u24 v2, 1280, v2
    s_lshl_b32 s26, s17, 7
    v_add3_u32 v12, v2, v3, s26
    v_add_u32 v13, {32*1280}, v12
    s_mov_b32 s34, s18
    s_lshl_b32 s37, s3, 10
    s_add_u32 s38, s37, {G1_SLOT*G1_S}
    s_waitcnt lgkmcnt(0)
    """)
    srd(a, 4, 4, S_ * 3072); srd(a, 8, 20, H_SZ, H_OFF)
    def issue(tag):
        a(f"s_mul_i32 s40, s34, {64*3072}\ns_mul_i32 s41, s34, {64*1280}")
        for i in range(4): a(f"s_add_u32 m0, s37, {4096*i}\nbuffer_load_dwordx4 v{8+i}, s[4:7], s40 offen lds")
        for i in range(2): a(f"s_add_u32 m0, s37, {16384+4096*i}\nbuffer_load_dwordx4 v{12+i}, s[8:11], s41 offen lds")
        a(f"""
        s_add_u32 s37, s37, {G1_SLOT}
        s_cmp_ge_u32 s37, s38
        s_cselect_b32 s42, {G1_SLOT*G1_S}, 0
        s_sub_u32 s37, s37, s42
        s_add_u32 s34, s34, 1
        s_and_b32 s34, s34, 31
        """)
    loader_loop(a, L, 32, G1_S, 6, issue, 33)
    a.label(f"{L}_cons")
    ACC, PA, PB, QA_, QB = 16, 48, 64, 72, 88
    a(f"""
    s_sub_u32 s3, s3, 4
    s_and_b32 s22, s3, 1
    s_lshr_b32 s23, s3, 1
    s_lshl_b32 s26, s16, 8
    s_lshl_b32 s27, s22, 7
    s_add_u32 s26, s26, s27
    v_lshrrev_b32 v2, 4, v1
    v_lshl_add_u32 v3, v2, 3, s26
    s_waitcnt lgkmcnt(0)
    """)
    srd(a, 24, 24, 3072); srd(a, 8, 20, UW_SZ, UW_OFF)
    for ft in range(4): a(f"buffer_load_dwordx2 {v(PA+2*ft,2)}, v3, s[24:27], 0 offen offset:{32*ft}")
    a(f"""
    v_lshrrev_b32 v5, 2, v1
    v_and_b32 v6, 3, v1
    v_lshlrev_b32 v6, 3, v6
    v_and_b32 v7, 7, v5
    v_lshl_add_u32 v4, v5, 8, v6
    s_lshl_b32 s27, s22, 2
    """)
    for ft in range(4): a(f"s_add_u32 s28, s27, {ft}\nv_xor_b32 v2, s28, v7\nv_lshl_add_u32 v{8+ft}, v2, 5, v4")
    a(f"""
    v_lshrrev_b32 v7, 1, v5
    v_and_b32 v7, 3, v7
    v_lshl_add_u32 v4, v5, 7, v6
    v_add_u32 v4, 16384, v4
    s_lshl_b32 s27, s23, 1
    """)
    for dt in range(2): a(f"s_add_u32 s28, s27, {dt}\nv_xor_b32 v2, s28, v7\nv_lshl_add_u32 v{12+dt}, v2, 5, v4")
    a(f"""
    s_lshl_b32 s28, s17, 2
    s_add_u32 s28, s28, s27
    s_mul_i32 s28, s28, 68
    s_lshl_b32 s29, s16, 2
    s_add_u32 s28, s28, s29
    s_lshl_b32 s29, s22, 1
    s_add_u32 s28, s28, s29
    s_lshl_b32 s28, s28, 10
    v_lshl_add_u32 v14, v1, 4, s28
    s_mov_b32 s31, 0xffff0000
    s_waitcnt vmcnt(0)
    """)
    for ft in range(4):
        for dt in range(2):
            b = ACC + 8 * ft + 4 * dt
            a(f"v_lshlrev_b32 v{b}, 16, v{PA+2*ft}\nv_and_b32 v{b+1}, s31, v{PA+2*ft}\nv_lshlrev_b32 v{b+2}, 16, v{PA+2*ft+1}\nv_and_b32 v{b+3}, s31, v{PA+2*ft+1}")
    def reads(A, B, kk):
        for dt in range(2): a(f"ds_read_b64_tr_b16 {v(B+4*dt,2)}, v{12+dt} offset:{kk*4096}\nds_read_b64_tr_b16 {v(B+4*dt+2,2)}, v{12+dt} offset:{kk*4096+2048}")
        for ft in range(4): a(f"ds_read_b64_tr_b16 {v(A+4*ft,2)}, v{8+ft} offset:{kk*8192}\nds_read_b64_tr_b16 {v(A+4*ft+2,2)}, v{8+ft} offset:{kk*8192+4096}")
    def mf(A, B):
        for ft in range(4):
            for dt in range(2):
                b = ACC + 8 * ft + 4 * dt
                a(f"v_mfma_f32_16x16x32_bf16 {v(b,4)}, {v(A+4*ft,4)}, {v(B+4*dt,4)}, {v(b,4)}")
    a("s_mov_b32 s33, 0\ns_mov_b32 s37, 0\ns_barrier")
    reads(PA, PB, 0)
    a.label(f"{L}_c", 3)
    reads(QA_, QB, 1)
    a(f"""
    s_add_u32 s40, s37, {G1_SLOT}
    s_cmp_ge_u32 s40, {G1_SLOT*G1_S}
    s_cselect_b32 s41, 0, s40
    s_sub_u32 s40, s41, s37
    s_mov_b32 s37, s41
    s_add_u32 s33, s33, 1
    s_waitcnt lgkmcnt(12)
    """)
    mf(PA, PB)
    for i in range(6): a(f"v_add_u32 v{8+i}, s40, v{8+i}")
    a(f"s_waitcnt lgkmcnt(0)\ns_cmp_ge_u32 s33, 32\ns_cbranch_scc1 {L}_clast\ns_barrier")
    reads(PA, PB, 0)
    mf(QA_, QB)
    a(f"s_branch {L}_c")
    a.label(f"{L}_clast")
    mf(QA_, QB)
    c0 = -2 * 0.7978845608028654 * LOG2E; c1 = c0 * 0.044715
    a(f"v_mov_b32 v2, {f2u(c0)}\nv_mov_b32 v4, {f2u(c1)}\nv_mov_b32 v6, 1.0\ns_nop 4")
    T = PA
    for p in range(2):
        for dt in range(2):
            o = QA_ + 4 * (2 * p + dt)
            prs = [ACC + 8 * (2 * p + h) + 4 * dt + 2 * q for h in range(2) for q in range(2)]
            for i, b in enumerate(prs): a(f"v_pk_mul_f32 {v(T+2*i,2)}, {v(b,2)}, {v(b,2)}")
            for i, b in enumerate(prs): a(f"v_pk_fma_f32 {v(T+2*i,2)}, {v(T+2*i,2)}, v[4:5], v[2:3] op_sel_hi:[1,0,0]")
            for i, b in enumerate(prs): a(f"v_pk_mul_f32 {v(T+2*i,2)}, {v(T+2*i,2)}, {v(b,2)}")
            for i in range(8): a(f"v_exp_f32 v{T+i}, v{T+i}")
            for i, b in enumerate(prs): a(f"v_pk_add_f32 {v(T+2*i,2)}, {v(T+2*i,2)}, v[6:7] op_sel_hi:[1,0]")
            for i in range(8): a(f"v_rcp_f32 v{T+i}, v{T+i}")
            for i, b in enumerate(prs): a(f"v_pk_mul_f32 {v(T+2*i,2)}, {v(T+2*i,2)}, {v(b,2)}")
            for i in range(4): a(f"v_cvt_pk_bf16_f32 v{o+i}, v{T+2*i}, v{T+2*i+1}")
            a(f"s_mov_b32 s29, {dt*68*1024}\nbuffer_store_dwordx4 {v(o,4)}, v14, s[8:11], s29 offen offset:{1024*p}")
    a("s_endpgm")

def map_g1(a, swg, stag=True):
    a(f"""
    s_and_b32 s16, s{swg}, 7
    s_lshr_b32 s18, s{swg}, 3
    s_mul_i32 s19, s18, 86
    s_lshr_b32 s19, s19, 8
    s_mul_i32 s22, s19, 3
    s_sub_u32 s22, s18, s22
    s_and_b32 s17, s16, 1
    s_mul_i32 s17, s17, 5
    s_add_u32 s17, s17, s19
    s_lshr_b32 s16, s16, 1
    s_mul_i32 s16, s16, 3
    s_add_u32 s16, s16, s22
    """)
    if stag: a("s_mul_i32 s18, s19, 6\ns_mul_i32 s22, s22, 10\ns_add_u32 s18, s18, s22\ns_and_b32 s18, s18, 31")
    else: a("s_mov_b32 s18, 0")

def gen_g1(a, name):
    kernel_head(a, name)
    lane_wave(a, 1, 3)
    a(f"s_cmp_ge_u32 s2, 120\ns_cbranch_scc1 Lg1_end")
    map_g1(a, 2)
    body_g1(a, "Lg1")
    a.label("Lg1_end")
    a("s_endpgm")
    return kernel_desc(name, 104, 48)

QA_S, QA_SLOT, QA_W = 3, 49152, 18432
def body_qa(a, L):
    a(f"""
    s_load_dwordx2 s[4:5], s[0:1], {KA['x']}
    s_load_dwordx2 s[8:9], s[0:1], {KA['wqkv']}
    s_load_dwordx2 s[20:21], s[0:1], {KA['ws']}
    s_cmp_ge_u32 s3, 4
    s_cbranch_scc1 {L}_cons
    s_cmp_eq_u32 s3, 3
    s_cbranch_scc1 {L}_idle
    s_setprio 1
    v_lshrrev_b32 v2, 3, v1
    s_lshl_b32 s23, s3, 3
    v_add_u32 v2, s23, v2
    s_lshl_b32 s26, s16, 7
    s_sub_u32 s26, s26, 16
    v_and_b32 v3, 7, v1
    """)
    for i in range(6):
        a(f"""
        v_add_u32 v4, {24*i}, v2
        v_lshrrev_b32 v5, 1, v4
        v_and_b32 v5, 7, v5
        v_xor_b32 v5, v5, v3
        v_add_u32 v4, s26, v4
        v_max_i32 v4, 0, v4
        v_mul_u32_u24 v4, 1280, v4
        v_lshl_add_u32 v{8+i}, v5, 4, v4
        """)
    a(f"s_mul_i32 s23, s3, 320\ns_mul_i32 s26, s17, 160\nv_add_u32 v2, s23, v1")
    for i in range(5):
        a(f"""
        v_add_u32 v3, {64*i}, v2
        v_mul_u32_u24 v4, 2185, v3
        v_lshrrev_b32 v4, 16, v4
        v_mul_u32_u24 v5, 30, v4
        v_sub_u32 v3, v3, v5
        v_mul_u32_u24 v5, 26, v3
        v_lshrrev_b32 v5, 8, v5
        v_mul_u32_u24 v5, {1280-160}, v5
        v_lshl_add_u32 v3, v3, 4, v5
        v_and_b32 v5, 12, v4
        v_lshlrev_b32 v5, 1, v5
        v_lshrrev_b32 v6, 4, v4
        v_lshl_add_u32 v5, v6, 2, v5
        v_and_b32 v4, 3, v4
        v_add_u32 v4, v4, v5
        v_mul_u32_u24 v4, 3840, v4
        v_add3_u32 v{16+i}, v4, v3, s26
        """)
    a(f"""
    s_mov_b32 s34, s18
    s_mov_b32 s37, 0
    s_lshl_b32 s38, s3, 10
    s_mul_i32 s39, s3, 5120
    s_add_u32 s39, s39, {QA_W}
    s_waitcnt lgkmcnt(0)
    """)
    srd(a, 4, 4, H_SZ); srd(a, 8, 8, 640 * 3840)
    def issue(tag):
        a(f"s_lshl_b32 s40, s34, 7\ns_mul_i32 s41, s34, {64*3840}\ns_add_u32 s42, s37, s38\ns_add_u32 s43, s37, s39\ns_add_u32 s44, s41, {32*3840}")
        for i in range(3): a(f"s_add_u32 m0, s42, {3072*i}\nbuffer_load_dwordx4 v{8+i}, s[4:7], s40 offen lds")
        for i in range(5): a(f"s_add_u32 m0, s43, {1024*i}\nbuffer_load_dwordx4 v{16+i}, s[8:11], s41 offen lds")
        for i in range(3, 6): a(f"s_add_u32 m0, s42, {3072*i}\nbuffer_load_dwordx4 v{8+i}, s[4:7], s40 offen lds")
        for i in range(5): a(f"s_add_u32 m0, s43, {15360+1024*i}\nbuffer_load_dwordx4 v{16+i}, s[8:11], s44 offen lds")
        a(f"""
        s_add_u32 s37, s37, {QA_SLOT}
        s_cmp_ge_u32 s37, {QA_SLOT*QA_S}
        s_cselect_b32 s37, 0, s37
        s_add_u32 s34, s34, 1
        s_cmp_ge_u32 s34, 10
        s_cselect_b32 s34, 0, s34
        """)
    loader_loop(a, L, 10, QA_S, 16, issue, 33)
    a.label(f"{L}_idle")
    a("s_endpgm")
    a.label(f"{L}_cons")
    AQ, AK, AV = 16, 56, 116
    XF, WB = 176, 200
    NB, DD = 5, 3
    a(f"""
    s_sub_u32 s3, s3, 4
    v_and_b32 v2, 15, v1
    v_lshrrev_b32 v3, 4, v1
    v_lshrrev_b32 v4, 1, v2
    v_xor_b32 v4, v4, v3
    v_lshlrev_b32 v4, 4, v4
    v_lshl_add_u32 v4, v2, 7, v4
    s_lshl_b32 s23, s3, 12
    v_add_u32 v8, s23, v4
    v_xor_b32 v9, 64, v8
    v_lshrrev_b32 v5, 2, v1
    v_mul_u32_u24 v5, 480, v5
    v_add_u32 v5, {QA_W}, v5
    v_and_b32 v6, 3, v1
    v_lshl_add_u32 v10, v6, 3, v5
    v_mul_u32_u24 v6, 40, v6
    v_add3_u32 v11, v6, v5, 32
    """)
    for i in range(160): a(f"v_mov_b32 v{16+i}, 0")
    def xread(kk):
        for rt in range(3): a(f"ds_read_b128 {v(XF+12*kk+4*rt,4)}, v{8+kk} offset:{2048*rt}")
        return 3
    def wread(u):
        kk, c = divmod(u, 15); p, tt = divmod(c, 5)
        b = WB + 4 * (u % NB)
        ad = 11 if tt == 4 else 10
        off = kk * 15360 + p * 160 + (0 if tt == 4 else 40 * tt)
        a(f"ds_read_b64_tr_b16 {v(b,2)}, v{ad} offset:{off}\nds_read_b64_tr_b16 {v(b+2,2)}, v{ad} offset:{off+7680}")
        return 2
    def mf(u):
        kk, c = divmod(u, 15); p, tt = divmod(c, 5)
        w = v(WB + 4 * (u % NB), 4)
        for rt in range(3):
            x = v(XF + 12 * kk + 4 * rt, 4)
            if p == 0:
                if rt == 0: continue
                d = v(AQ + 20 * (rt - 1) + 4 * tt, 4); a(f"v_mfma_f32_16x16x32_bf16 {d}, {w}, {x}, {d}")
            elif p == 1:
                d = v(AK + 20 * rt + 4 * tt, 4); a(f"v_mfma_f32_16x16x32_bf16 {d}, {w}, {x}, {d}")
            else:
                d = v(AV + 12 * tt + 4 * rt, 4); a(f"v_mfma_f32_16x16x32_bf16 {d}, {x}, {w}, {d}")
    a("s_mov_b32 s33, 0\ns_mov_b32 s37, 0\ns_waitcnt lgkmcnt(0)\ns_barrier")
    xread(0)
    for u in range(DD): wread(u)
    a.label(f"{L}_c", 3)
    a(f"""
    s_add_u32 s40, s37, {QA_SLOT}
    s_cmp_ge_u32 s40, {QA_SLOT*QA_S}
    s_cselect_b32 s41, 0, s40
    s_sub_u32 s40, s41, s37
    s_mov_b32 s37, s41
    s_add_u32 s33, s33, 1
    s_cmp_ge_u32 s33, 10
    """)
    q = []
    for u in range(DD): q += [u, u]
    for u in range(30):
        nx = u + DD
        if nx < 30:
            if nx == 15: q += [15] * xread(1)
            q += [nx] * wread(nx)
        elif nx == 30:
            for i in range(4): a(f"v_add_u32 v{8+i}, s40, v{8+i}")
            a(f"s_waitcnt lgkmcnt(0)\ns_cbranch_scc1 {L}_clast\ns_barrier"); q = []
            q += [30] * xread(0); q += [30] * wread(0)
        else:
            q += [nx] * wread(nx - 30)
        if any(t <= u for t in q):
            last = max(i for i, t in enumerate(q) if t <= u)
            q = q[last + 1:]
            a(f"s_waitcnt lgkmcnt({len(q)})")
        mf(u)
    a(f"s_branch {L}_c")
    a.label(f"{L}_clast")
    for u in range(30 - DD, 30): mf(u)
    M0, M1, MF, PM = 176, 180, 184, 188
    SR = 192
    TM = 224
    a(f"""
    s_waitcnt lgkmcnt(0)
    v_lshlrev_b32 v4, 2, v3
    v_sub_u32 v4, v2, v4
    v_mov_b32 v5, {f2u(-1e30)}
    """)
    for r in range(4):
        a(f"""
        v_subrev_u32 v6, {r}, v4
        v_and_b32 v6, 0x80000001, v6
        v_cmp_eq_u32 vcc, 0, v6
        v_cndmask_b32 v{M1+r}, v5, 0, vcc
        v_cndmask_b32 v{TM+4+r}, 0, -1, vcc
        v_cmp_eq_u32 vcc, 0x80000000, v6
        v_cndmask_b32 v{M0+r}, v5, 0, vcc
        v_cndmask_b32 v{TM+r}, 0, -1, vcc
        """.replace("v_cndmask_b32", "v_cndmask_b32_e64"))
    a("s_mov_b32 s30, 0xffff")
    for i in range(4): a(f"v_bfi_b32 v{PM+i}, s30, v{TM+2*i}, v{TM+2*i+1}")
    a(f"s_or_b32 s23, s16, s3\ns_cmp_eq_u32 s23, 0\ns_cselect_b64 vcc, -1, 0")
    for r in range(4): a(f"v_cndmask_b32 v{MF+r}, v{M0+r}, v5, vcc")
    for h in range(4): a(f"v_cmp_eq_u32 s[{44+2*h}:{45+2*h}], {h}, v3")
    a("v_lshrrev_b32 v6, 2, v2")
    for h in range(1, 4): a(f"v_cmp_eq_u32 s[{52+2*h}:{53+2*h}], {h}, v6")
    a(f"""
    s_mul_i32 s23, s17, 80
    s_lshl_b32 s26, s16, 8
    s_lshl_b32 s27, s3, 6
    s_add_u32 s26, s26, s27
    v_lshl_add_u32 v7, v3, 3, s26
    v_add_u32 v12, s23, v2
    v_lshl_add_u32 v12, v12, 12, v7
    v_mul_u32_u24 v6, 20, v6
    v_and_b32 v13, 3, v2
    v_add3_u32 v13, v13, v6, s23
    v_add_u32 v13, 16, v13
    v_lshl_add_u32 v13, v13, 12, v7
    """)
    srd(a, 4, 20, OT_SZ, OT_OFF)
    cv = lambda d, s0: a(f"v_cvt_pk_bf16_f32 v{d}, v{s0}, v{s0+1}")
    for rt in range(3):
        t4 = AK + 20 * rt + 16
        for h in range(4):
            b = AK + 20 * rt + 4 * h
            cv(b, b); cv(b + 1, b + 2); cv(b + 2, t4); cv(b + 3, t4 + 2)
    for rt in range(2):
        t4 = AQ + 20 * rt + 16
        cv(t4, t4); cv(t4 + 1, t4 + 2)
        for h in range(4):
            b = AQ + 20 * rt + 4 * h
            cv(b, b); cv(b + 1, b + 2)
            a(f"v_cndmask_b32 v{b+2}, 0, v{t4}, s[{44+2*h}:{45+2*h}]\nv_cndmask_b32 v{b+3}, 0, v{t4+1}, s[{44+2*h}:{45+2*h}]")
    cs = f2u(20 ** -0.5 * LOG2E)
    a(f"s_mov_b32 s31, {cs}")
    vdone = False
    for rt in (1, 2):
        for h in range(4):
            qf = v(AQ + 20 * (rt - 1) + 4 * h, 4)
            a(f"v_mfma_f32_16x16x32_bf16 {v(SR+8*h,4)}, {v(AK+20*(rt-1)+4*h,4)}, {qf}, {v(MF if rt == 1 else M0,4)}")
            a(f"v_mfma_f32_16x16x32_bf16 {v(SR+8*h+4,4)}, {v(AK+20*rt+4*h,4)}, {qf}, {v(M1,4)}")
        if not vdone:
            for tt in range(5):
                b = AV + 12 * tt
                for i in range(6): cv(b + i, b + 2 * i)
            vdone = True
        VA, VB, X = TM, TM + 4, TM + 8
        for h in range(4):
            s = SR + 8 * h
            a(f"v_max3_f32 v{VA+h}, v{s}, v{s+1}, v{s+4}\nv_max3_f32 v{VB+h}, v{s+2}, v{s+3}, v{s+6}")
        for h in range(4):
            s = SR + 8 * h
            a(f"v_max_f32 v{VA+h}, v{VA+h}, v{s+5}\nv_max_f32 v{VB+h}, v{VB+h}, v{s+7}")
        def xred(op):
            a(f"v_permlane32_swap_b32 v{X}, v{X+1}\nv_permlane32_swap_b32 v{X+2}, v{X+3}")
            a(f"{op} v{X}, v{X}, v{X+1}\n{op} v{X+2}, v{X+2}, v{X+3}")
            a(f"v_permlane16_swap_b32 v{X}, v{X+2}\n{op} v{X}, v{X}, v{X+2}")
        def xbc():
            a(f"v_mov_b32 v{X+2}, v{X}\nv_permlane16_swap_b32 v{X}, v{X+2}")
            a(f"v_mov_b32 v{X+1}, v{X}\nv_mov_b32 v{X+3}, v{X+2}")
            a(f"v_permlane32_swap_b32 v{X}, v{X+1}\nv_permlane32_swap_b32 v{X+2}, v{X+3}")
        for h in range(4): a(f"v_max_f32 v{X+h}, v{VA+h}, v{VB+h}")
        xred("v_max_f32")
        a(f"v_mul_f32 v{X}, s31, v{X}")
        xbc()
        for h in range(4): a(f"v_fma_f32 v{VA+h}, v{VA+h}, s31, -v{X+h}\nv_fma_f32 v{VB+h}, v{VB+h}, s31, -v{X+h}")
        for h in range(4): a(f"v_exp_f32 v{VA+h}, v{VA+h}\nv_exp_f32 v{VB+h}, v{VB+h}")
        for h in range(4): a(f"v_add_f32 v{X+h}, v{VA+h}, v{VB+h}")
        xred("v_add_f32")
        a(f"v_rcp_f32 v{X}, v{X}")
        xbc()
        for h in range(4): a(f"v_mul_f32 v{VA+h}, v{VA+h}, v{X+h}\nv_mul_f32 v{VB+h}, v{VB+h}, v{X+h}")
        for h in range(4): a(f"v_cvt_pk_bf16_f32 v{VA+h}, v{VA+h}, v{VA+h}\nv_cvt_pk_bf16_f32 v{VB+h}, v{VB+h}, v{VB+h}")
        P = TM + 12
        for h in range(4):
            a(f"v_and_b32 v{P+4*h}, v{VA+h}, v{PM}\nv_and_b32 v{P+4*h+1}, v{VB+h}, v{PM+1}\nv_and_b32 v{P+4*h+2}, v{VA+h}, v{PM+2}\nv_and_b32 v{P+4*h+3}, v{VB+h}, v{PM+3}")
        for h in range(4):
            a(f"v_mfma_f32_16x16x32_bf16 {v(SR+8*h,4)}, {v(P+4*h,4)}, {v(AV+12*h+2*(rt-1),4)}, 0")
            a(f"v_mfma_f32_16x16x32_bf16 {v(SR+8*h+4,4)}, {v(P+4*h,4)}, {v(AV+48+2*(rt-1),4)}, 0")
        O = TM
        for h in range(4):
            cv(O + 2 * h, SR + 8 * h); cv(O + 2 * h + 1, SR + 8 * h + 2)
            a(f"s_mov_b32 s29, {20*4096*h}\nbuffer_store_dwordx2 {v(O+2*h,2)}, v12, s[4:7], s29 offen offset:{32*(rt-1)}")
        for h in range(1, 4):
            for r in range(4): a(f"v_cndmask_b32 v{SR+4+r}, v{SR+4+r}, v{SR+8*h+4+r}, s[{52+2*h}:{53+2*h}]")
        cv(O + 8, SR + 4); cv(O + 9, SR + 6)
        a(f"buffer_store_dwordx2 {v(O+8,2)}, v13, s[4:7], 0 offen offset:{32*(rt-1)}")
    a("s_endpgm")

def map_qa(a, swg, stag=True):
    a(f"""
    s_and_b32 s17, s{swg}, 7
    s_lshr_b32 s18, s{swg}, 3
    s_lshr_b32 s16, s17, 1
    s_lshl_b32 s16, s16, 2
    s_and_b32 s19, s18, 3
    s_add_u32 s16, s16, s19
    s_and_b32 s17, s17, 1
    s_lshl_b32 s17, s17, 2
    s_lshr_b32 s18, s18, 2
    s_add_u32 s17, s17, s18
    """)
    if stag: a("s_add_u32 s18, s18, s19\ns_and_b32 s18, s18, 3\ns_mul_i32 s18, s18, 5\ns_lshr_b32 s18, s18, 1")
    else: a("s_mov_b32 s18, 0")

def gen_qa(a, name):
    kernel_head(a, name)
    lane_wave(a, 1, 3)
    a(f"s_cmp_ge_u32 s2, 128\ns_cbranch_scc1 Lqa_end")
    map_qa(a, 2)
    body_qa(a, "Lqa")
    a.label("Lqa_end")
    a("s_endpgm")
    return kernel_desc(name, 256, 64)

def gen_k1(a, name):
    kernel_head(a, name)
    lane_wave(a, 1, 3)
    a(f"s_cmp_ge_u32 s2, 248\ns_cbranch_scc1 Lk1_end\ns_cmp_lt_u32 s2, 120\ns_cbranch_scc1 Lk1_g1\ns_sub_u32 s2, s2, 120")
    map_qa(a, 2)
    body_qa(a, "Lqa")
    a.label("Lk1_g1")
    map_g1(a, 2)
    body_g1(a, "Lg1")
    a.label("Lk1_end")
    a("s_endpgm")
    return kernel_desc(name, 256, 64)

def build(variant="split"):
    ref = open(f"cdna_kernels/{NAME}.s.ref").read().split("\n")
    head = [l for l in ref[:ref.index(next(x for x in ref if x.startswith("; Override")))]]
    a = Asm()
    a.raw("\n".join(head))
    if variant == "split":
        launches = [("k0_kernel", 306, 256, 16384), ("qa_kernel", 128, 512, QA_S * QA_SLOT), ("g1_kernel", 120, 512, G1_S * G1_SLOT), ("p2_kernel", 256, 384, P2_S * P2_SLOT)]
        gens = [gen_k0, gen_qa, gen_g1, gen_p2]
    else:
        launches = [("k0_kernel", 306, 256, 16384), ("k1_kernel", 248, 512, 147456), ("p2_kernel", 256, 384, P2_S * P2_SLOT)]
        gens = [gen_k0, gen_k1, gen_p2]
    for n, g, b, l in launches: a.raw(f"; @launch kernel={n} grid=({g},1,1) block=({b},1,1) lds={l}")
    a.raw('.amdgcn_target "amdgcn-amd-amdhsa--gfx950"')
    descs = [g(a, n) for g, (n, *_) in zip(gens, launches)]
    bad = a.check_branches()
    for b in bad: print("HAZARD across branch:", b, file=sys.stderr)
    assert not bad
    for d in descs: a.raw(d)
    return a.text()

if __name__ == "__main__":
    variant = sys.argv[1] if len(sys.argv) > 1 else "split"
    out = sys.argv[2] if len(sys.argv) > 2 else f"cdna_kernels/{NAME}.s"
    open(out, "w").write(build(variant))
```

```python
import sys, math
from dsl import *

NAME = "gated_mix__sliding_local_dilated__mixer_token_mlp__prompt"
S_, D_, F_ = 2048, 640, 1536
KA = dict(x=0, wqkv=8, wo=16, w1=32, b1=40, w2=48, b2=56, gw=64, out=72, dbg=80, ws=88)
H_OFF, OT_OFF, UW_OFF, G_OFF = 0, 0x280000, 0x500000, 0x800000
H_SZ, OT_SZ, UW_SZ, G_SZ = 2621440, 2621440, 40 * 68 * 1024, 8192
LOG2E = 1.4426950408889634
def f2u(x):
    import struct
    return "0x%08x" % struct.unpack("<I", struct.pack("<f", x))[0]

def srd(a, d, base, size, off=0):
    if off:
        a(f"s_add_u32 s{d}, s{base}, {off}\ns_addc_u32 s{d+1}, s{base+1}, 0")
    elif d != base:
        a(f"s_mov_b32 s{d}, s{base}\ns_mov_b32 s{d+1}, s{base+1}")
    a(f"s_mov_b32 s{d+2}, {size}\ns_mov_b32 s{d+3}, 0x20000")

def v(n, k=1): return f"v{n}" if k == 1 else f"v[{n}:{n+k-1}]"

PROF = False
OPTS = []
PROF2 = False
TL_OFF = 0x1000000
KIDX = {"k0_kernel": 0, "k1_kernel": 1, "qa_kernel": 1, "g1_kernel": 2, "p2_kernel": 3}
CUR = [0]
def stamp(a, i):
    if PROF: a(f"s_memrealtime s[{70+2*i}:{71+2*i}]")
def bar(a, pre=""):
    if PROF2:
        a("s_memtime s[64:65]\ns_waitcnt lgkmcnt(0)")
        a(pre); a("s_memtime s[88:89]\ns_waitcnt lgkmcnt(0)\ns_barrier\ns_memtime s[66:67]\ns_waitcnt lgkmcnt(0)")
        a("s_cselect_b32 s87, 1, 0\ns_sub_u32 s66, s66, s88\ns_add_u32 s80, s80, s66\ns_sub_u32 s88, s88, s64\ns_add_u32 s82, s82, s88\ns_cmp_lg_u32 s87, 0")
    else:
        a(pre); a("s_barrier")
def endp(a):
    if PROF:
        a(f"""
        s_memrealtime s[84:85]
        s_load_dwordx2 s[60:61], s[0:1], {KA['ws']}
        s_getreg_b32 s86, hwreg(HW_REG_XCC_ID)
        s_waitcnt lgkmcnt(0)
        s_add_u32 s60, s60, {TL_OFF + CUR[0] * 0x40000}
        s_addc_u32 s61, s61, 0
        s_mov_b32 s62, 0x40000
        s_mov_b32 s63, 0x20000
        s_mov_b64 exec, 1
        s_lshl_b32 s64, s68, 3
        s_add_u32 s64, s64, s69
        s_lshl_b32 s64, s64, 6
        v_mov_b32 v0, s64
        """)
        for i in range(8): a(f"v_mov_b32 v{4+i}, s{70+2*i}")
        a("v_mov_b32 v12, s86")
        a("buffer_store_dwordx4 v[4:7], v0, s[60:63], 0 offen\nbuffer_store_dwordx4 v[8:11], v0, s[60:63], 0 offen offset:16\nbuffer_store_dword v12, v0, s[60:63], 0 offen offset:32")
    a("s_endpgm")

def lane_wave(a, vlane, swave):
    if PROF:
        for i in range(1, 8): a(f"s_mov_b64 s[{70+2*i}:{71+2*i}], 0")
        stamp(a, 0)
        a(f"v_lshrrev_b32 v{vlane}, 6, v0\nv_readfirstlane_b32 s69, v{vlane}\ns_mov_b32 s68, s2")
    a(f"v_lshrrev_b32 v{vlane}, 6, v0\nv_readfirstlane_b32 s{swave}, v{vlane}\nv_and_b32 v{vlane}, 63, v0")

def tr_row(a, vd, vl, vt):
    a(f"v_lshrrev_b32 v{vd}, 2, v{vl}")

def k0_ln(a, L):
    a(f"""
    s_load_dwordx2 s[4:5], s[0:1], {KA['x']}
    s_load_dwordx2 s[8:9], s[0:1], {KA['gw']}
    s_load_dwordx2 s[20:21], s[0:1], {KA['ws']}
    s_lshl_b32 s16, s2, 3
    s_lshl_b32 s17, s3, 1
    s_add_u32 s16, s16, s17
    v_lshrrev_b32 v2, 5, v1
    v_add_u32 v2, s16, v2
    v_and_b32 v3, 31, v1
    v_lshlrev_b32 v4, 3, v3
    v_mul_u32_u24 v5, 1280, v2
    v_add_u32 v5, v5, v4
    s_waitcnt lgkmcnt(0)
    """)
    srd(a, 4, 4, H_SZ); srd(a, 8, 8, 1280)
    for i in range(5): a(f"buffer_load_dwordx2 {v(10+2*i,2)}, v5, s[4:7], 0 offen offset:{256*i}")
    for i in range(5): a(f"buffer_load_dwordx2 {v(20+2*i,2)}, v4, s[8:11], 0 offen offset:{256*i}")
    srd(a, 12, 20, H_SZ, H_OFF); srd(a, 24, 20, G_SZ, G_OFF)
    a("s_mov_b32 s30, 0x3f803f80\ns_mov_b32 s31, 0xffff0000")
    a("s_waitcnt vmcnt(5)")
    a("v_dot2_f32_bf16 v6, v10, s30, 0")
    for i in range(1, 10): a(f"v_dot2_f32_bf16 v6, v{10+i}, s30, v6")
    for i in range(10): a(f"v_lshlrev_b32 v{30+2*i}, 16, v{10+i}\nv_and_b32 v{31+2*i}, s31, v{10+i}")
    def red(r, t):
        for sh in (8, 4, 2, 1): a(f"v_add_f32_dpp v{r}, v{r}, v{r} row_ror:{sh} row_mask:0xf bank_mask:0xf")
        a(f"v_mov_b32 v{t}, v{r}\nv_permlane16_swap_b32 v{r}, v{t}\nv_add_f32 v{r}, v{r}, v{t}")
    red(6, 8)
    a(f"v_mul_f32 v6, {f2u(1/640)}, v6")
    a("s_waitcnt vmcnt(0)")
    a("v_dot2_f32_bf16 v9, v10, v20, 0")
    for i in range(1, 10): a(f"v_dot2_f32_bf16 v9, v{10+i}, v{20+i}, v9")
    for i in range(10): a(f"v_pk_add_f32 {v(30+2*i,2)}, {v(30+2*i,2)}, v[6:7] op_sel_hi:[1,0] neg_lo:[0,1] neg_hi:[0,1]")
    a("v_pk_mul_f32 v[50:51], v[30:31], v[30:31]")
    for i in range(1, 10): a(f"v_pk_fma_f32 v[50:51], {v(30+2*i,2)}, {v(30+2*i,2)}, v[50:51]")
    a("v_add_f32 v50, v50, v51")
    red(50, 8); red(9, 52)
    a(f"""
    v_mov_b32 v8, {f2u(1e-5)}
    v_fmac_f32 v8, {f2u(1/640)}, v50
    v_rsq_f32 v50, v8
    v_mul_f32 v9, {f2u(-LOG2E)}, v9
    v_exp_f32 v9, v9
    """)
    for i in range(10): a(f"v_pk_mul_f32 {v(30+2*i,2)}, {v(30+2*i,2)}, v[50:51] op_sel_hi:[1,0]")
    a("v_add_f32 v9, 1.0, v9\nv_rcp_f32 v9, v9")
    for i in range(10): a(f"v_cvt_pk_bf16_f32 v{10+i}, v{30+2*i}, v{31+2*i}")
    for i in range(5): a(f"buffer_store_dwordx2 {v(10+2*i,2)}, v5, s[12:15], 0 offen offset:{256*i}")
    a(f"""
    v_lshlrev_b32 v2, 2, v2
    v_cmp_eq_u32 vcc, 0, v3
    s_and_saveexec_b64 s[32:33], vcc
    s_cbranch_execz {L}_end
    buffer_store_dword v9, v2, s[24:27], 0 offen
    """)

def k0_wo(a, L, wg0):
    a(f"""
    s_load_dwordx2 s[4:5], s[0:1], {KA['wo']}
    s_load_dwordx2 s[20:21], s[0:1], {KA['ws']}
    s_sub_u32 s16, s2, {wg0}
    s_lshl_b32 s16, s16, 2
    s_add_u32 s16, s16, s3
    s_mul_i32 s17, s16, 6554
    s_lshr_b32 s17, s17, 16
    s_mul_i32 s18, s17, 10
    s_sub_u32 s18, s16, s18
    v_lshrrev_b32 v2, 3, v1
    v_and_b32 v3, 7, v1
    v_and_b32 v4, 6, v2
    v_xor_b32 v3, v3, v4
    v_lshlrev_b32 v3, 4, v3
    v_mul_u32_u24 v2, 1280, v2
    v_add_u32 v2, v2, v3
    s_mul_i32 s19, s17, {32*1280}
    s_lshl_b32 s22, s18, 7
    s_add_u32 s19, s19, s22
    s_lshl_b32 s23, s3, 12
    s_waitcnt lgkmcnt(0)
    """)
    srd(a, 4, 4, 640 * 1280)
    for i in range(4):
        a(f"s_add_u32 m0, s23, {1024*i}\ns_add_u32 s22, s19, {8*1280*i}\nbuffer_load_dwordx4 v2, s[4:7], s22 offen lds")
    srd(a, 12, 20, UW_SZ, UW_OFF)
    a("""
    v_lshrrev_b32 v5, 2, v1
    v_lshrrev_b32 v6, 1, v5
    v_and_b32 v6, 3, v6
    v_lshlrev_b32 v5, 7, v5
    v_and_b32 v7, 3, v1
    v_lshlrev_b32 v7, 3, v7
    v_add3_u32 v5, v5, v7, s23
    """)
    for t in range(4): a(f"v_xor_b32 v7, {t}, v6\nv_lshl_add_u32 v{8+t}, v7, 5, v5")
    a(f"""
    s_lshl_b32 s22, s18, 2
    s_mul_i32 s22, s22, 68
    s_add_u32 s22, s22, s17
    s_add_u32 s22, s22, 48
    s_lshl_b32 s22, s22, 10
    v_lshlrev_b32 v12, 4, v1
    s_waitcnt vmcnt(0)
    """)
    for t in range(4):
        a(f"ds_read_b64_tr_b16 {v(16+4*t,2)}, v{8+t}\nds_read_b64_tr_b16 {v(18+4*t,2)}, v{8+t} offset:2048")
    for t in range(4):
        a(f"s_waitcnt lgkmcnt({6-2*t})\nbuffer_store_dwordx4 {v(16+4*t,4)}, v12, s[12:15], s22 offen\ns_add_u32 s22, s22, {68*1024}")

def gen_k0(a, name):
    kernel_head(a, name)
    L = "Lk0"
    lane_wave(a, 1, 3)
    a(f"s_cmp_ge_u32 s2, 306\ns_cbranch_scc1 {L}_end\ns_cmp_ge_u32 s2, 256\ns_cbranch_scc1 {L}_wo")
    k0_ln(a, L)
    a("s_waitcnt vmcnt(0)" if PROF else ""); endp(a)
    a.label(f"{L}_wo")
    k0_wo(a, L, 256)
    a("s_waitcnt vmcnt(0)" if PROF else ""); endp(a)
    a.label(f"{L}_end")
    a("s_endpgm")
    return kernel_desc(name, 64, 96)

def loader_loop(a, L, J, S, n, issue, scnt):
    a(f"s_mov_b32 s{scnt}, 0")
    a.label(f"{L}_pro")
    issue("p")
    a(f"s_add_u32 s{scnt}, s{scnt}, 1\ns_cmp_lt_u32 s{scnt}, {S-1}\ns_cbranch_scc1 {L}_pro")
    stamp(a, 1)
    a.label(f"{L}_main")
    bar(a, f"s_waitcnt vmcnt({n*(S-2)})")
    issue("m")
    a(f"s_add_u32 s{scnt}, s{scnt}, 1\ns_cmp_lt_u32 s{scnt}, {J}\ns_cbranch_scc1 {L}_main")
    stamp(a, 2)
    for k in range(S - 2, -1, -1):
        a(f"s_waitcnt vmcnt({n*k})\ns_barrier")
    endp(a)

P2_S, P2_SLOT = 6, 18432
def gen_p2(a, name):
    stag = "nsp" not in OPTS
    kernel_head(a, name)
    L = "Lp2"
    lane_wave(a, 1, 3)
    a(f"""
    s_cmp_ge_u32 s2, 256
    s_cbranch_scc1 {L}_end
    s_load_dwordx2 s[4:5], s[0:1], {KA['w2']}
    s_load_dwordx2 s[20:21], s[0:1], {KA['ws']}
    s_load_dwordx2 s[24:25], s[0:1], {KA['b2']}
    s_load_dwordx2 s[28:29], s[0:1], {KA['out']}
    s_and_b32 s16, s2, 7
    s_lshr_b32 s17, s2, 3
    s_lshr_b32 s18, s16, 1
    s_lshl_b32 s18, s18, 3
    s_and_b32 s19, s17, 7
    s_add_u32 s18, s18, s19
    s_and_b32 s16, s16, 1
    s_lshl_b32 s16, s16, 2
    s_lshr_b32 s22, s17, 3
    s_add_u32 s16, s16, s22
    s_cmp_ge_u32 s3, 2
    s_cbranch_scc1 {L}_cons
    """)
    a(f"""
    s_setprio 1
    v_lshrrev_b32 v2, 3, v1
    v_and_b32 v3, 7, v1
    v_and_b32 v4, 6, v2
    v_xor_b32 v3, v3, v4
    v_lshlrev_b32 v3, 4, v3
    v_lshl_add_u32 v2, v2, 12, v3
    s_lshl_b32 s23, s3, 5
    s_lshl_b32 s23, s23, 12
    s_lshl_b32 s26, s18, 7
    s_add_u32 s23, s23, s26
    """)
    for i in range(4): a(f"s_add_u32 s26, s23, {8*4096*i}\nv_add_u32 v{8+i}, s26, v2")
    a(f"s_mul_i32 s23, s16, {5*68}\ns_add_u32 s23, s23, s3\ns_lshl_b32 s23, s23, 10\nv_lshlrev_b32 v3, 4, v1")
    for i in range(5): a(f"s_add_u32 s26, s23, {68*1024*i}\nv_add_u32 v{12+i}, s26, v3")
    if stag:
        a("s_lshl_b32 s34, s22, 1\ns_add_u32 s34, s34, s19\ns_and_b32 s34, s34, 7\ns_mul_i32 s34, s34, 3")
    else:
        a("s_mov_b32 s34, 0")
    a(f"""
    s_mov_b32 s35, 24
    s_mov_b32 s36, 0
    s_mov_b32 s37, 0
    s_lshl_b32 s38, s3, 12
    s_mul_i32 s39, s3, 5120
    s_add_u32 s39, s39, 8192
    s_waitcnt lgkmcnt(0)
    """)
    srd(a, 4, 4, F_ * 4096); srd(a, 8, 20, UW_SZ, UW_OFF)
    def issue(tag):
        a(f"""
        s_lshl_b32 s40, s34, 18
        s_lshl_b32 s41, s34, 1
        s_add_u32 s41, s41, s36
        s_lshl_b32 s41, s41, 10
        s_add_u32 s42, s37, s38
        s_add_u32 s43, s37, s39
        """)
        for i in range(4): a(f"s_add_u32 m0, s42, {1024*i}\nbuffer_load_dwordx4 v{8+i}, s[4:7], s40 offen lds")
        for i in range(5): a(f"s_add_u32 m0, s43, {1024*i}\nbuffer_load_dwordx4 v{12+i}, s[8:11], s41 offen lds")
        a(f"""
        s_add_u32 s37, s37, {P2_SLOT}
        s_cmp_ge_u32 s37, {P2_SLOT*P2_S}
        s_cselect_b32 s37, 0, s37
        s_add_u32 s34, s34, 1
        s_cmp_ge_u32 s34, s35
        s_cselect_b32 s34, 0, s34
        s_cmp_lg_u32 s33, 23
        s_cbranch_scc1 {L}_nosw{tag}
        """)
        srd(a, 4, 20, OT_SZ, OT_OFF)
        a("s_mov_b32 s35, 10\ns_mov_b32 s36, 48")
        a("s_mov_b32 s34, s19" if stag else "s_mov_b32 s34, 0")
        a.label(f"{L}_nosw{tag}")
    loader_loop(a, L, 34, P2_S, 9, issue, 33)
    a.label(f"{L}_cons")
    ACB, ACA, PA, PB, QA_, QB = 16, 36, 56, 76, 80, 100
    a(f"""
    s_sub_u32 s3, s3, 2
    s_lshl_b32 s23, s18, 6
    s_lshl_b32 s26, s3, 4
    s_add_u32 s23, s23, s26
    v_and_b32 v2, 15, v1
    v_add_u32 v2, s23, v2
    v_lshlrev_b32 v3, 1, v2
    v_lshlrev_b32 v4, 2, v2
    s_waitcnt lgkmcnt(0)
    """)
    srd(a, 24, 24, 4096); srd(a, 8, 20, G_SZ, G_OFF); srd(a, 28, 28, S_ * 1280)
    a(f"""
    buffer_load_ushort v10, v3, s[24:27], 0 offen
    buffer_load_dword v11, v4, s[8:11], 0 offen
    v_lshrrev_b32 v5, 2, v1
    v_lshrrev_b32 v6, 1, v5
    v_and_b32 v6, 3, v6
    v_xor_b32 v6, s3, v6
    v_lshlrev_b32 v6, 5, v6
    v_lshl_add_u32 v5, v5, 7, v6
    v_and_b32 v6, 3, v1
    v_lshl_add_u32 v8, v6, 3, v5
    v_lshlrev_b32 v9, 4, v1
    v_add_u32 v9, 8192, v9
    v_mul_u32_u24 v12, 1280, v2
    v_lshrrev_b32 v6, 4, v1
    v_lshl_add_u32 v12, v6, 3, v12
    s_mul_i32 s26, s16, 160
    v_add_u32 v12, s26, v12
    """)
    for i in range(20): a(f"v_mov_b32 v{ACA+i}, 0")
    a("s_waitcnt vmcnt(1)\nv_lshlrev_b32 v10, 16, v10")
    for i in range(20): a(f"v_mov_b32 v{ACB+i}, v10")
    def reads(A, B, kk):
        a(f"ds_read_b64_tr_b16 {v(B,2)}, v8 offset:{kk*4096}\nds_read_b64_tr_b16 {v(B+2,2)}, v8 offset:{kk*4096+2048}")
        for dt in range(5): a(f"ds_read_b128 {v(A+4*dt,4)}, v9 offset:{(kk*5+dt)*1024}")
    def mf(acc, A, B):
        for dt in range(5): a(f"v_mfma_f32_16x16x32_bf16 {v(acc+4*dt,4)}, {v(A+4*dt,4)}, {v(B,4)}, {v(acc+4*dt,4)}")
    a("s_mov_b32 s33, 0\ns_mov_b32 s37, 0")
    stamp(a, 1); a("s_waitcnt lgkmcnt(0)\ns_barrier"); stamp(a, 2); a("s_waitcnt lgkmcnt(0)" if PROF else "")
    reads(PA, PB, 0)
    def loop(tag, acc, end, last):
        a.label(f"{L}_c{tag}", 3)
        reads(QA_, QB, 1)
        a(f"""
        s_add_u32 s40, s37, {P2_SLOT}
        s_cmp_ge_u32 s40, {P2_SLOT*P2_S}
        s_cselect_b32 s41, 0, s40
        s_sub_u32 s40, s41, s37
        s_mov_b32 s37, s41
        s_add_u32 s33, s33, 1
        s_waitcnt lgkmcnt(7)
        """)
        mf(acc, PA, PB)
        a("v_add_u32 v8, s40, v8\nv_add_u32 v9, s40, v9\ns_waitcnt lgkmcnt(0)")
        if last: a(f"s_cmp_ge_u32 s33, {end}\ns_cbranch_scc1 {L}_clast")
        bar(a)
        reads(PA, PB, 0)
        mf(acc, QA_, QB)
        if last: a(f"s_branch {L}_c{tag}")
        else: a(f"s_cmp_lt_u32 s33, {end}\ns_cbranch_scc1 {L}_c{tag}")
    loop("b", ACB, 24, False)
    loop("a", ACA, 34, True)
    a.label(f"{L}_clast"); stamp(a, 3)
    mf(ACA, QA_, QB)
    a("s_waitcnt vmcnt(0)\ns_nop 4")
    for dt in range(5):
        for r in range(4): a(f"v_sub_f32 v{ACA+4*dt+r}, v{ACA+4*dt+r}, v{ACB+4*dt+r}")
        for r in range(4): a(f"v_fmac_f32 v{ACB+4*dt+r}, v11, v{ACA+4*dt+r}")
        a(f"v_cvt_pk_bf16_f32 v{PA+2*dt}, v{ACB+4*dt}, v{ACB+4*dt+1}\nv_cvt_pk_bf16_f32 v{PA+2*dt+1}, v{ACB+4*dt+2}, v{ACB+4*dt+3}")
        a(f"buffer_store_dwordx2 {v(PA+2*dt,2)}, v12, s[28:31], 0 offen offset:{32*dt}")
    stamp(a, 4); a("s_waitcnt vmcnt(0)" if PROF else ""); endp(a)
    a.label(f"{L}_end")
    a("s_endpgm")
    return kernel_desc(name, 104, 96)

G1_S, G1_SLOT = 6, 24576
def body_g1(a, L):
    a(f"""
    s_load_dwordx2 s[4:5], s[0:1], {KA['w1']}
    s_load_dwordx2 s[20:21], s[0:1], {KA['ws']}
    s_load_dwordx2 s[24:25], s[0:1], {KA['b1']}
    s_cmp_ge_u32 s3, 4
    s_cbranch_scc1 {L}_cons
    s_setprio 1
    v_lshrrev_b32 v2, 4, v1
    s_lshl_b32 s23, s3, 2
    v_add_u32 v2, s23, v2
    v_and_b32 v4, 7, v2
    v_lshlrev_b32 v4, 1, v4
    v_and_b32 v3, 15, v1
    v_xor_b32 v3, v3, v4
    v_lshlrev_b32 v3, 4, v3
    v_mul_u32_u24 v2, 3072, v2
    s_lshl_b32 s26, s16, 8
    v_add3_u32 v8, v2, v3, s26
    """)
    for i in range(1, 4): a(f"v_add_u32 v{8+i}, {16*3072*i}, v8")
    a(f"""
    v_lshrrev_b32 v2, 3, v1
    v_and_b32 v3, 7, v1
    v_and_b32 v4, 6, v2
    v_xor_b32 v3, v3, v4
    v_lshlrev_b32 v3, 4, v3
    s_lshl_b32 s23, s3, 3
    v_add_u32 v2, s23, v2
    v_mul_u32_u24 v2, 1280, v2
    s_lshl_b32 s26, s17, 7
    v_add3_u32 v12, v2, v3, s26
    v_add_u32 v13, {32*1280}, v12
    s_mov_b32 s34, s18
    s_lshl_b32 s37, s3, 10
    s_add_u32 s38, s37, {G1_SLOT*G1_S}
    s_waitcnt lgkmcnt(0)
    """)
    srd(a, 4, 4, S_ * 3072); srd(a, 8, 20, H_SZ, H_OFF)
    def issue(tag):
        a(f"s_mul_i32 s40, s34, {64*3072}\ns_mul_i32 s41, s34, {64*1280}")
        for i in range(4): a(f"s_add_u32 m0, s37, {4096*i}\nbuffer_load_dwordx4 v{8+i}, s[4:7], s40 offen lds")
        for i in range(2): a(f"s_add_u32 m0, s37, {16384+4096*i}\nbuffer_load_dwordx4 v{12+i}, s[8:11], s41 offen lds")
        a(f"""
        s_add_u32 s37, s37, {G1_SLOT}
        s_cmp_ge_u32 s37, s38
        s_cselect_b32 s42, {G1_SLOT*G1_S}, 0
        s_sub_u32 s37, s37, s42
        s_add_u32 s34, s34, 1
        s_and_b32 s34, s34, 31
        """)
    loader_loop(a, L, 32, G1_S, 6, issue, 33)
    a.label(f"{L}_cons")
    ACC, PA, PB, QA_, QB = 16, 48, 64, 72, 88
    a(f"""
    s_sub_u32 s3, s3, 4
    s_and_b32 s22, s3, 1
    s_lshr_b32 s23, s3, 1
    s_lshl_b32 s26, s16, 8
    s_lshl_b32 s27, s22, 7
    s_add_u32 s26, s26, s27
    v_lshrrev_b32 v2, 4, v1
    v_lshl_add_u32 v3, v2, 3, s26
    s_waitcnt lgkmcnt(0)
    """)
    srd(a, 24, 24, 3072); srd(a, 8, 20, UW_SZ, UW_OFF)
    for ft in range(4): a(f"buffer_load_dwordx2 {v(PA+2*ft,2)}, v3, s[24:27], 0 offen offset:{32*ft}")
    a(f"""
    v_lshrrev_b32 v5, 2, v1
    v_and_b32 v6, 3, v1
    v_lshlrev_b32 v6, 3, v6
    v_and_b32 v7, 7, v5
    v_lshl_add_u32 v4, v5, 8, v6
    s_lshl_b32 s27, s22, 2
    """)
    for ft in range(4): a(f"s_add_u32 s28, s27, {ft}\nv_xor_b32 v2, s28, v7\nv_lshl_add_u32 v{8+ft}, v2, 5, v4")
    a(f"""
    v_lshrrev_b32 v7, 1, v5
    v_and_b32 v7, 3, v7
    v_lshl_add_u32 v4, v5, 7, v6
    v_add_u32 v4, 16384, v4
    s_lshl_b32 s27, s23, 1
    """)
    for dt in range(2): a(f"s_add_u32 s28, s27, {dt}\nv_xor_b32 v2, s28, v7\nv_lshl_add_u32 v{12+dt}, v2, 5, v4")
    a(f"""
    s_lshl_b32 s28, s17, 2
    s_add_u32 s28, s28, s27
    s_mul_i32 s28, s28, 68
    s_lshl_b32 s29, s16, 2
    s_add_u32 s28, s28, s29
    s_lshl_b32 s29, s22, 1
    s_add_u32 s28, s28, s29
    s_lshl_b32 s28, s28, 10
    v_lshl_add_u32 v14, v1, 4, s28
    s_mov_b32 s31, 0xffff0000
    s_waitcnt vmcnt(0)
    """)
    for ft in range(4):
        for dt in range(2):
            b = ACC + 8 * ft + 4 * dt
            a(f"v_lshlrev_b32 v{b}, 16, v{PA+2*ft}\nv_and_b32 v{b+1}, s31, v{PA+2*ft}\nv_lshlrev_b32 v{b+2}, 16, v{PA+2*ft+1}\nv_and_b32 v{b+3}, s31, v{PA+2*ft+1}")
    def reads(A, B, kk):
        for dt in range(2): a(f"ds_read_b64_tr_b16 {v(B+4*dt,2)}, v{12+dt} offset:{kk*4096}\nds_read_b64_tr_b16 {v(B+4*dt+2,2)}, v{12+dt} offset:{kk*4096+2048}")
        for ft in range(4): a(f"ds_read_b64_tr_b16 {v(A+4*ft,2)}, v{8+ft} offset:{kk*8192}\nds_read_b64_tr_b16 {v(A+4*ft+2,2)}, v{8+ft} offset:{kk*8192+4096}")
    def mf(A, B):
        for ft in range(4):
            for dt in range(2):
                b = ACC + 8 * ft + 4 * dt
                a(f"v_mfma_f32_16x16x32_bf16 {v(b,4)}, {v(A+4*ft,4)}, {v(B+4*dt,4)}, {v(b,4)}")
    a("s_mov_b32 s33, 0\ns_mov_b32 s37, 0")
    stamp(a, 1); a("s_waitcnt lgkmcnt(0)\ns_barrier"); stamp(a, 2); a("s_waitcnt lgkmcnt(0)" if PROF else "")
    reads(PA, PB, 0)
    a.label(f"{L}_c", 3)
    reads(QA_, QB, 1)
    a(f"""
    s_add_u32 s40, s37, {G1_SLOT}
    s_cmp_ge_u32 s40, {G1_SLOT*G1_S}
    s_cselect_b32 s41, 0, s40
    s_sub_u32 s40, s41, s37
    s_mov_b32 s37, s41
    s_add_u32 s33, s33, 1
    s_waitcnt lgkmcnt(12)
    """)
    mf(PA, PB)
    for i in range(6): a(f"v_add_u32 v{8+i}, s40, v{8+i}")
    a(f"s_waitcnt lgkmcnt(0)\ns_cmp_ge_u32 s33, 32\ns_cbranch_scc1 {L}_clast"); bar(a)
    reads(PA, PB, 0)
    mf(QA_, QB)
    a(f"s_branch {L}_c")
    a.label(f"{L}_clast"); stamp(a, 3)
    mf(QA_, QB)
    c0 = -2 * 0.7978845608028654 * LOG2E; c1 = c0 * 0.044715
    a(f"v_mov_b32 v2, {f2u(c0)}\nv_mov_b32 v4, {f2u(c1)}\nv_mov_b32 v6, 1.0\ns_nop 4")
    T = PA
    for p in range(2):
        for dt in range(2):
            o = QA_ + 4 * (2 * p + dt)
            prs = [ACC + 8 * (2 * p + h) + 4 * dt + 2 * q for h in range(2) for q in range(2)]
            for i, b in enumerate(prs): a(f"v_pk_mul_f32 {v(T+2*i,2)}, {v(b,2)}, {v(b,2)}")
            for i, b in enumerate(prs): a(f"v_pk_fma_f32 {v(T+2*i,2)}, {v(T+2*i,2)}, v[4:5], v[2:3] op_sel_hi:[1,0,0]")
            for i, b in enumerate(prs): a(f"v_pk_mul_f32 {v(T+2*i,2)}, {v(T+2*i,2)}, {v(b,2)}")
            for i in range(8): a(f"v_exp_f32 v{T+i}, v{T+i}")
            for i, b in enumerate(prs): a(f"v_pk_add_f32 {v(T+2*i,2)}, {v(T+2*i,2)}, v[6:7] op_sel_hi:[1,0]")
            for i in range(8): a(f"v_rcp_f32 v{T+i}, v{T+i}")
            for i, b in enumerate(prs): a(f"v_pk_mul_f32 {v(T+2*i,2)}, {v(T+2*i,2)}, {v(b,2)}")
            for i in range(4): a(f"v_cvt_pk_bf16_f32 v{o+i}, v{T+2*i}, v{T+2*i+1}")
            a(f"s_mov_b32 s29, {dt*68*1024}\nbuffer_store_dwordx4 {v(o,4)}, v14, s[8:11], s29 offen offset:{1024*p}")
    stamp(a, 4); a("s_waitcnt vmcnt(0)" if PROF else ""); endp(a)

def map_g1(a, swg):
    stag = "nsg" not in OPTS
    a(f"""
    s_and_b32 s16, s{swg}, 7
    s_lshr_b32 s18, s{swg}, 3
    s_mul_i32 s19, s18, 86
    s_lshr_b32 s19, s19, 8
    s_mul_i32 s22, s19, 3
    s_sub_u32 s22, s18, s22
    s_and_b32 s17, s16, 1
    s_mul_i32 s17, s17, 5
    s_add_u32 s17, s17, s19
    s_lshr_b32 s16, s16, 1
    s_mul_i32 s16, s16, 3
    s_add_u32 s16, s16, s22
    """)
    if stag: a("s_mul_i32 s18, s19, 6\ns_mul_i32 s22, s22, 10\ns_add_u32 s18, s18, s22\ns_and_b32 s18, s18, 31")
    else: a("s_mov_b32 s18, 0")

def gen_g1(a, name):
    kernel_head(a, name)
    lane_wave(a, 1, 3)
    a(f"s_cmp_ge_u32 s2, 120\ns_cbranch_scc1 Lg1_end")
    map_g1(a, 2)
    body_g1(a, "Lg1")
    a.label("Lg1_end")
    a("s_endpgm")
    return kernel_desc(name, 104, 96)

QA_S, QA_SLOT, QA_W = 3, 49152, 18432
def body_qa(a, L):
    a(f"""
    s_load_dwordx2 s[4:5], s[0:1], {KA['x']}
    s_load_dwordx2 s[8:9], s[0:1], {KA['wqkv']}
    s_load_dwordx2 s[20:21], s[0:1], {KA['ws']}
    s_cmp_ge_u32 s3, 4
    s_cbranch_scc1 {L}_cons
    s_cmp_eq_u32 s3, 3
    s_cbranch_scc1 {L}_idle
    s_setprio 1
    v_lshrrev_b32 v2, 3, v1
    s_lshl_b32 s23, s3, 3
    v_add_u32 v2, s23, v2
    s_lshl_b32 s26, s16, 7
    s_sub_u32 s26, s26, 16
    v_and_b32 v3, 7, v1
    """)
    for i in range(6):
        a(f"""
        v_add_u32 v4, {24*i}, v2
        v_lshrrev_b32 v5, 1, v4
        v_and_b32 v5, 7, v5
        v_xor_b32 v5, v5, v3
        v_add_u32 v4, s26, v4
        v_max_i32 v4, 0, v4
        v_mul_u32_u24 v4, 1280, v4
        v_lshl_add_u32 v{8+i}, v5, 4, v4
        """)
    a(f"s_mul_i32 s23, s3, 320\ns_mul_i32 s26, s17, 160\nv_add_u32 v2, s23, v1")
    for i in range(5):
        a(f"""
        v_add_u32 v3, {64*i}, v2
        v_mul_u32_u24 v4, 2185, v3
        v_lshrrev_b32 v4, 16, v4
        v_mul_u32_u24 v5, 30, v4
        v_sub_u32 v3, v3, v5
        v_mul_u32_u24 v5, 26, v3
        v_lshrrev_b32 v5, 8, v5
        v_mul_u32_u24 v5, {1280-160}, v5
        v_lshl_add_u32 v3, v3, 4, v5
        v_and_b32 v5, 12, v4
        v_lshlrev_b32 v5, 1, v5
        v_lshrrev_b32 v6, 4, v4
        v_lshl_add_u32 v5, v6, 2, v5
        v_and_b32 v4, 3, v4
        v_add_u32 v4, v4, v5
        v_mul_u32_u24 v4, 3840, v4
        v_add3_u32 v{16+i}, v4, v3, s26
        """)
    a(f"""
    s_mov_b32 s34, s18
    s_mov_b32 s37, 0
    s_lshl_b32 s38, s3, 10
    s_mul_i32 s39, s3, 5120
    s_add_u32 s39, s39, {QA_W}
    s_waitcnt lgkmcnt(0)
    """)
    srd(a, 4, 4, H_SZ); srd(a, 8, 8, 640 * 3840)
    def issue(tag):
        a(f"s_lshl_b32 s40, s34, 7\ns_mul_i32 s41, s34, {64*3840}\ns_add_u32 s42, s37, s38\ns_add_u32 s43, s37, s39\ns_add_u32 s44, s41, {32*3840}")
        for i in range(3): a(f"s_add_u32 m0, s42, {3072*i}\nbuffer_load_dwordx4 v{8+i}, s[4:7], s40 offen lds")
        for i in range(5): a(f"s_add_u32 m0, s43, {1024*i}\nbuffer_load_dwordx4 v{16+i}, s[8:11], s41 offen lds")
        for i in range(3, 6): a(f"s_add_u32 m0, s42, {3072*i}\nbuffer_load_dwordx4 v{8+i}, s[4:7], s40 offen lds")
        for i in range(5): a(f"s_add_u32 m0, s43, {15360+1024*i}\nbuffer_load_dwordx4 v{16+i}, s[8:11], s44 offen lds")
        a(f"""
        s_add_u32 s37, s37, {QA_SLOT}
        s_cmp_ge_u32 s37, {QA_SLOT*QA_S}
        s_cselect_b32 s37, 0, s37
        s_add_u32 s34, s34, 1
        s_cmp_ge_u32 s34, 10
        s_cselect_b32 s34, 0, s34
        """)
    loader_loop(a, L, 10, QA_S, 16, issue, 33)
    a.label(f"{L}_idle")
    a("s_endpgm")
    a.label(f"{L}_cons")
    AQ, AK, AV = 16, 56, 116
    XF, WB = 176, 200
    NB, DD = 5, 3
    a(f"""
    s_sub_u32 s3, s3, 4
    v_and_b32 v2, 15, v1
    v_lshrrev_b32 v3, 4, v1
    v_lshrrev_b32 v4, 1, v2
    v_xor_b32 v4, v4, v3
    v_lshlrev_b32 v4, 4, v4
    v_lshl_add_u32 v4, v2, 7, v4
    s_lshl_b32 s23, s3, 12
    v_add_u32 v8, s23, v4
    v_xor_b32 v9, 64, v8
    v_lshrrev_b32 v5, 2, v1
    v_mul_u32_u24 v5, 480, v5
    v_add_u32 v5, {QA_W}, v5
    v_and_b32 v6, 3, v1
    v_lshl_add_u32 v10, v6, 3, v5
    v_mul_u32_u24 v6, 40, v6
    v_add3_u32 v11, v6, v5, 32
    """)
    for i in range(160): a(f"v_mov_b32 v{16+i}, 0")
    def xread(kk):
        for rt in range(3): a(f"ds_read_b128 {v(XF+12*kk+4*rt,4)}, v{8+kk} offset:{2048*rt}")
        return 3
    def wread(u):
        kk, c = divmod(u, 15); p, tt = divmod(c, 5)
        b = WB + 4 * (u % NB)
        ad = 11 if tt == 4 else 10
        off = kk * 15360 + p * 160 + (0 if tt == 4 else 40 * tt)
        a(f"ds_read_b64_tr_b16 {v(b,2)}, v{ad} offset:{off}\nds_read_b64_tr_b16 {v(b+2,2)}, v{ad} offset:{off+7680}")
        return 2
    def mf(u):
        kk, c = divmod(u, 15); p, tt = divmod(c, 5)
        w = v(WB + 4 * (u % NB), 4)
        for rt in range(3):
            x = v(XF + 12 * kk + 4 * rt, 4)
            if p == 0:
                if rt == 0: continue
                d = v(AQ + 20 * (rt - 1) + 4 * tt, 4); a(f"v_mfma_f32_16x16x32_bf16 {d}, {w}, {x}, {d}")
            elif p == 1:
                d = v(AK + 20 * rt + 4 * tt, 4); a(f"v_mfma_f32_16x16x32_bf16 {d}, {w}, {x}, {d}")
            else:
                d = v(AV + 12 * tt + 4 * rt, 4); a(f"v_mfma_f32_16x16x32_bf16 {d}, {x}, {w}, {d}")
    a("s_mov_b32 s33, 0\ns_mov_b32 s37, 0")
    stamp(a, 1); a("s_waitcnt lgkmcnt(0)\ns_barrier"); stamp(a, 2); a("s_waitcnt lgkmcnt(0)" if PROF else "")
    xread(0)
    for u in range(DD): wread(u)
    a.label(f"{L}_c", 3)
    a(f"""
    s_add_u32 s40, s37, {QA_SLOT}
    s_cmp_ge_u32 s40, {QA_SLOT*QA_S}
    s_cselect_b32 s41, 0, s40
    s_sub_u32 s40, s41, s37
    s_mov_b32 s37, s41
    s_add_u32 s33, s33, 1
    s_cmp_ge_u32 s33, 10
    """)
    q = []
    for u in range(DD): q += [u, u]
    for u in range(30):
        nx = u + DD
        if nx < 30:
            if nx == 15: q += [15] * xread(1)
            q += [nx] * wread(nx)
        elif nx == 30:
            for i in range(4): a(f"v_add_u32 v{8+i}, s40, v{8+i}")
            a(f"s_waitcnt lgkmcnt(0)\ns_cbranch_scc1 {L}_clast"); bar(a); q = []
            q += [30] * xread(0); q += [30] * wread(0)
        else:
            q += [nx] * wread(nx - 30)
        if any(t <= u for t in q):
            last = max(i for i, t in enumerate(q) if t <= u)
            q = q[last + 1:]
            a(f"s_waitcnt lgkmcnt({len(q)})")
        mf(u)
    a(f"s_branch {L}_c")
    a.label(f"{L}_clast"); stamp(a, 3)
    for u in range(30 - DD, 30): mf(u)
    M0, M1, MF, PM = 176, 180, 184, 188
    SR = 192
    TM = 224
    a(f"""
    s_waitcnt lgkmcnt(0)
    v_lshlrev_b32 v4, 2, v3
    v_sub_u32 v4, v2, v4
    v_mov_b32 v5, {f2u(-1e30)}
    """)
    for r in range(4):
        a(f"""
        v_subrev_u32 v6, {r}, v4
        v_and_b32 v6, 0x80000001, v6
        v_cmp_eq_u32 vcc, 0, v6
        v_cndmask_b32 v{M1+r}, v5, 0, vcc
        v_cndmask_b32 v{TM+4+r}, 0, -1, vcc
        v_cmp_eq_u32 vcc, 0x80000000, v6
        v_cndmask_b32 v{M0+r}, v5, 0, vcc
        v_cndmask_b32 v{TM+r}, 0, -1, vcc
        """.replace("v_cndmask_b32", "v_cndmask_b32_e64"))
    a("s_mov_b32 s30, 0xffff")
    for i in range(4): a(f"v_bfi_b32 v{PM+i}, s30, v{TM+2*i}, v{TM+2*i+1}")
    a(f"s_or_b32 s23, s16, s3\ns_cmp_eq_u32 s23, 0\ns_cselect_b64 vcc, -1, 0")
    for r in range(4): a(f"v_cndmask_b32 v{MF+r}, v{M0+r}, v5, vcc")
    for h in range(4): a(f"v_cmp_eq_u32 s[{44+2*h}:{45+2*h}], {h}, v3")
    a("v_lshrrev_b32 v6, 2, v2")
    for h in range(1, 4): a(f"v_cmp_eq_u32 s[{52+2*h}:{53+2*h}], {h}, v6")
    a(f"""
    s_mul_i32 s23, s17, 80
    s_lshl_b32 s26, s16, 8
    s_lshl_b32 s27, s3, 6
    s_add_u32 s26, s26, s27
    v_lshl_add_u32 v7, v3, 3, s26
    v_add_u32 v12, s23, v2
    v_lshl_add_u32 v12, v12, 12, v7
    v_mul_u32_u24 v6, 20, v6
    v_and_b32 v13, 3, v2
    v_add3_u32 v13, v13, v6, s23
    v_add_u32 v13, 16, v13
    v_lshl_add_u32 v13, v13, 12, v7
    """)
    srd(a, 4, 20, OT_SZ, OT_OFF)
    cv = lambda d, s0: a(f"v_cvt_pk_bf16_f32 v{d}, v{s0}, v{s0+1}")
    for rt in range(3):
        t4 = AK + 20 * rt + 16
        for h in range(4):
            b = AK + 20 * rt + 4 * h
            cv(b, b); cv(b + 1, b + 2); cv(b + 2, t4); cv(b + 3, t4 + 2)
    for rt in range(2):
        t4 = AQ + 20 * rt + 16
        cv(t4, t4); cv(t4 + 1, t4 + 2)
        for h in range(4):
            b = AQ + 20 * rt + 4 * h
            cv(b, b); cv(b + 1, b + 2)
            a(f"v_cndmask_b32 v{b+2}, 0, v{t4}, s[{44+2*h}:{45+2*h}]\nv_cndmask_b32 v{b+3}, 0, v{t4+1}, s[{44+2*h}:{45+2*h}]")
    cs = f2u(20 ** -0.5 * LOG2E)
    a(f"s_mov_b32 s31, {cs}")
    vdone = False
    for rt in (1, 2):
        for h in range(4):
            qf = v(AQ + 20 * (rt - 1) + 4 * h, 4)
            a(f"v_mfma_f32_16x16x32_bf16 {v(SR+8*h,4)}, {v(AK+20*(rt-1)+4*h,4)}, {qf}, {v(MF if rt == 1 else M0,4)}")
            a(f"v_mfma_f32_16x16x32_bf16 {v(SR+8*h+4,4)}, {v(AK+20*rt+4*h,4)}, {qf}, {v(M1,4)}")
        if not vdone:
            for tt in range(5):
                b = AV + 12 * tt
                for i in range(6): cv(b + i, b + 2 * i)
            vdone = True
        VA, VB, X = TM, TM + 4, TM + 8
        for h in range(4):
            s = SR + 8 * h
            a(f"v_max3_f32 v{VA+h}, v{s}, v{s+1}, v{s+4}\nv_max3_f32 v{VB+h}, v{s+2}, v{s+3}, v{s+6}")
        for h in range(4):
            s = SR + 8 * h
            a(f"v_max_f32 v{VA+h}, v{VA+h}, v{s+5}\nv_max_f32 v{VB+h}, v{VB+h}, v{s+7}")
        def xred(op):
            a(f"v_permlane32_swap_b32 v{X}, v{X+1}\nv_permlane32_swap_b32 v{X+2}, v{X+3}")
            a(f"{op} v{X}, v{X}, v{X+1}\n{op} v{X+2}, v{X+2}, v{X+3}")
            a(f"v_permlane16_swap_b32 v{X}, v{X+2}\n{op} v{X}, v{X}, v{X+2}")
        def xbc():
            a(f"v_mov_b32 v{X+2}, v{X}\nv_permlane16_swap_b32 v{X}, v{X+2}")
            a(f"v_mov_b32 v{X+1}, v{X}\nv_mov_b32 v{X+3}, v{X+2}")
            a(f"v_permlane32_swap_b32 v{X}, v{X+1}\nv_permlane32_swap_b32 v{X+2}, v{X+3}")
        for h in range(4): a(f"v_max_f32 v{X+h}, v{VA+h}, v{VB+h}")
        xred("v_max_f32")
        a(f"v_mul_f32 v{X}, s31, v{X}")
        xbc()
        for h in range(4): a(f"v_fma_f32 v{VA+h}, v{VA+h}, s31, -v{X+h}\nv_fma_f32 v{VB+h}, v{VB+h}, s31, -v{X+h}")
        for h in range(4): a(f"v_exp_f32 v{VA+h}, v{VA+h}\nv_exp_f32 v{VB+h}, v{VB+h}")
        for h in range(4): a(f"v_add_f32 v{X+h}, v{VA+h}, v{VB+h}")
        xred("v_add_f32")
        a(f"v_rcp_f32 v{X}, v{X}")
        xbc()
        for h in range(4): a(f"v_mul_f32 v{VA+h}, v{VA+h}, v{X+h}\nv_mul_f32 v{VB+h}, v{VB+h}, v{X+h}")
        for h in range(4): a(f"v_cvt_pk_bf16_f32 v{VA+h}, v{VA+h}, v{VA+h}\nv_cvt_pk_bf16_f32 v{VB+h}, v{VB+h}, v{VB+h}")
        P = TM + 12
        for h in range(4):
            a(f"v_and_b32 v{P+4*h}, v{VA+h}, v{PM}\nv_and_b32 v{P+4*h+1}, v{VB+h}, v{PM+1}\nv_and_b32 v{P+4*h+2}, v{VA+h}, v{PM+2}\nv_and_b32 v{P+4*h+3}, v{VB+h}, v{PM+3}")
        for h in range(4):
            a(f"v_mfma_f32_16x16x32_bf16 {v(SR+8*h,4)}, {v(P+4*h,4)}, {v(AV+12*h+2*(rt-1),4)}, 0")
            a(f"v_mfma_f32_16x16x32_bf16 {v(SR+8*h+4,4)}, {v(P+4*h,4)}, {v(AV+48+2*(rt-1),4)}, 0")
        O = TM
        for h in range(4):
            cv(O + 2 * h, SR + 8 * h); cv(O + 2 * h + 1, SR + 8 * h + 2)
            a(f"s_mov_b32 s29, {20*4096*h}\nbuffer_store_dwordx2 {v(O+2*h,2)}, v12, s[4:7], s29 offen offset:{32*(rt-1)}")
        for h in range(1, 4):
            for r in range(4): a(f"v_cndmask_b32 v{SR+4+r}, v{SR+4+r}, v{SR+8*h+4+r}, s[{52+2*h}:{53+2*h}]")
        cv(O + 8, SR + 4); cv(O + 9, SR + 6)
        a(f"buffer_store_dwordx2 {v(O+8,2)}, v13, s[4:7], 0 offen offset:{32*(rt-1)}")
    stamp(a, 4); a("s_waitcnt vmcnt(0)" if PROF else ""); endp(a)

def map_qa(a, swg):
    stag = "nsq" not in OPTS
    a(f"""
    s_and_b32 s17, s{swg}, 7
    s_lshr_b32 s18, s{swg}, 3
    s_lshr_b32 s16, s17, 1
    s_lshl_b32 s16, s16, 2
    s_and_b32 s19, s18, 3
    s_add_u32 s16, s16, s19
    s_and_b32 s17, s17, 1
    s_lshl_b32 s17, s17, 2
    s_lshr_b32 s18, s18, 2
    s_add_u32 s17, s17, s18
    """)
    if stag: a("s_add_u32 s18, s18, s19\ns_and_b32 s18, s18, 3\ns_mul_i32 s18, s18, 5\ns_lshr_b32 s18, s18, 1")
    else: a("s_mov_b32 s18, 0")

def gen_qa(a, name):
    kernel_head(a, name)
    lane_wave(a, 1, 3)
    a(f"s_cmp_ge_u32 s2, 128\ns_cbranch_scc1 Lqa_end")
    map_qa(a, 2)
    body_qa(a, "Lqa")
    a.label("Lqa_end")
    a("s_endpgm")
    return kernel_desc(name, 256, 96)

def gen_k1(a, name):
    kernel_head(a, name)
    lane_wave(a, 1, 3)
    a(f"s_cmp_ge_u32 s2, 248\ns_cbranch_scc1 Lk1_end\ns_cmp_lt_u32 s2, 120\ns_cbranch_scc1 Lk1_g1\ns_sub_u32 s2, s2, 120")
    map_qa(a, 2)
    body_qa(a, "Lqa")
    a.label("Lk1_g1")
    map_g1(a, 2)
    body_g1(a, "Lg1")
    a.label("Lk1_end")
    a("s_endpgm")
    return kernel_desc(name, 256, 96)

def gen_empty(a, name):
    kernel_head(a, name)
    a("s_endpgm")
    return kernel_desc(name, 8, 16)

def build(variant="split"):
    global PROF, PROF2
    variant, *opts = variant.split("+")
    OPTS[:] = opts
    PROF2 = "prof2" in opts
    PROF = "prof" in opts or PROF2
    ref = open(f"cdna_kernels/{NAME}.s.ref").read().split("\n")
    head = [l for l in ref[:ref.index(next(x for x in ref if x.startswith("; Override")))]]
    a = Asm()
    a.raw("\n".join(head))
    if variant == "split":
        launches = [("k0_kernel", 306, 256, 16384), ("qa_kernel", 128, 512, QA_S * QA_SLOT), ("g1_kernel", 120, 512, G1_S * G1_SLOT), ("p2_kernel", 256, 384, P2_S * P2_SLOT)]
        gens = [gen_k0, gen_qa, gen_g1, gen_p2]
    else:
        launches = [("k0_kernel", 306, 256, 16384), ("k1_kernel", 248, 512, 147456), ("p2_kernel", 256, 384, P2_S * P2_SLOT)]
        gens = [gen_k0, gen_k1, gen_p2]
    for o in opts:
        if o[0] == "e" and o[1:].isdigit():
            n = int(o[1:])
            launches = launches + [("empty_kernel", 256, 256, 0)] * n
        if o[0] == "x" and o[1:].isdigit():
            launches = launches * int(o[1:])
        if o[0] == "d" and o[1:].isdigit():
            i = int(o[1:]); launches = launches[:i+1] + launches[i:]
        if o[0] == "f" and o[1:].isdigit():
            n = int(o[1:])
            launches = [("empty_kernel", 256, 256, 0)] * n + launches
    byname = dict(k0_kernel=gen_k0, qa_kernel=gen_qa, g1_kernel=gen_g1, p2_kernel=gen_p2, k1_kernel=gen_k1, empty_kernel=gen_empty)
    for n, g, b, l in launches: a.raw(f"; @launch kernel={n} grid=({g},1,1) block=({b},1,1) lds={l}")
    a.raw('.amdgcn_target "amdgcn-amd-amdhsa--gfx950"')
    descs = []
    for n in dict.fromkeys(l[0] for l in launches):
        CUR[0] = KIDX.get(n, 0); descs.append(byname[n](a, n))
    if "noload" in opts:
        a.lines = [(t, c) for t, c in a.lines if not (c is not None and c.kind == "vmem" and c.lds)]
    if "nocomp" in opts:
        a.lines = [(t, c) for t, c in a.lines if not (c is not None and (c.kind == "mfma" or c.op.startswith("ds_read")))]
    if "nomfma" in opts:
        a.lines = [(t, c) for t, c in a.lines if not (c is not None and c.kind == "mfma")]
    if "nods" in opts:
        a.lines = [(t, c) for t, c in a.lines if not (c is not None and c.op.startswith("ds_read"))]
    bad = a.check_branches()
    for b in bad: print("HAZARD across branch:", b, file=sys.stderr)
    assert not bad
    for d in descs: a.raw(d)
    return a.text()

if __name__ == "__main__":
    variant = sys.argv[1] if len(sys.argv) > 1 else "split"
    out = sys.argv[2] if len(sys.argv) > 2 else f"cdna_kernels/{NAME}.s"
    open(out, "w").write(build(variant))
```

```python
import sys, math
from dsl import *

NAME = "gated_mix__sliding_local_dilated__mixer_token_mlp__prompt"
S_, D_, F_ = 2048, 640, 1536
KA = dict(x=0, wqkv=8, wo=16, w1=32, b1=40, w2=48, b2=56, gw=64, out=72, dbg=80, ws=88)
H_OFF, OT_OFF, UW_OFF, G_OFF = 0, 0x280000, 0x500000, 0x800000
H_SZ, OT_SZ, UW_SZ, G_SZ = 2621440, 2621440, 40 * 68 * 1024, 8192
LOG2E = 1.4426950408889634
def f2u(x):
    import struct
    return "0x%08x" % struct.unpack("<I", struct.pack("<f", x))[0]

def srd(a, d, base, size, off=0):
    if off:
        a(f"s_add_u32 s{d}, s{base}, {off}\ns_addc_u32 s{d+1}, s{base+1}, 0")
    elif d != base:
        a(f"s_mov_b32 s{d}, s{base}\ns_mov_b32 s{d+1}, s{base+1}")
    a(f"s_mov_b32 s{d+2}, {size}\ns_mov_b32 s{d+3}, 0x20000")

def v(n, k=1): return f"v{n}" if k == 1 else f"v[{n}:{n+k-1}]"

PROF = False
OPTS = []
PROF2 = False
TL_OFF = 0x1000000
KIDX = {"k0_kernel": 0, "k1_kernel": 1, "qa_kernel": 1, "g1_kernel": 2, "p2_kernel": 3}
CUR = [0]
def stamp(a, i):
    if PROF: a(f"s_memrealtime s[{70+2*i}:{71+2*i}]")
def bar(a, pre=""):
    if PROF2:
        a("s_memtime s[64:65]\ns_waitcnt lgkmcnt(0)")
        a(pre); a("s_memtime s[88:89]\ns_waitcnt lgkmcnt(0)\ns_barrier\ns_memtime s[66:67]\ns_waitcnt lgkmcnt(0)")
        a("s_cselect_b32 s87, 1, 0\ns_sub_u32 s66, s66, s88\ns_add_u32 s80, s80, s66\ns_sub_u32 s88, s88, s64\ns_add_u32 s82, s82, s88\ns_cmp_lg_u32 s87, 0")
    else:
        a(pre); a("s_barrier")
def endp(a):
    if PROF:
        a(f"""
        s_memrealtime s[84:85]
        s_load_dwordx2 s[60:61], s[0:1], {KA['ws']}
        s_getreg_b32 s86, hwreg(HW_REG_XCC_ID)
        s_waitcnt lgkmcnt(0)
        s_add_u32 s60, s60, {TL_OFF + CUR[0] * 0x40000}
        s_addc_u32 s61, s61, 0
        s_mov_b32 s62, 0x40000
        s_mov_b32 s63, 0x20000
        s_mov_b64 exec, 1
        s_lshl_b32 s64, s68, 3
        s_add_u32 s64, s64, s69
        s_lshl_b32 s64, s64, 6
        v_mov_b32 v0, s64
        """)
        for i in range(8): a(f"v_mov_b32 v{4+i}, s{70+2*i}")
        a("v_mov_b32 v12, s86")
        a("buffer_store_dwordx4 v[4:7], v0, s[60:63], 0 offen\nbuffer_store_dwordx4 v[8:11], v0, s[60:63], 0 offen offset:16\nbuffer_store_dword v12, v0, s[60:63], 0 offen offset:32")
    a("s_endpgm")

def lane_wave(a, vlane, swave):
    if PROF:
        for i in range(1, 8): a(f"s_mov_b64 s[{70+2*i}:{71+2*i}], 0")
        stamp(a, 0)
        a(f"v_lshrrev_b32 v{vlane}, 6, v0\nv_readfirstlane_b32 s69, v{vlane}\ns_mov_b32 s68, s2")
    a(f"v_lshrrev_b32 v{vlane}, 6, v0\nv_readfirstlane_b32 s{swave}, v{vlane}\nv_and_b32 v{vlane}, 63, v0")

def tr_row(a, vd, vl, vt):
    a(f"v_lshrrev_b32 v{vd}, 2, v{vl}")

def k0_ln(a, L):
    a(f"""
    s_load_dwordx2 s[4:5], s[0:1], {KA['x']}
    s_load_dwordx2 s[8:9], s[0:1], {KA['gw']}
    s_load_dwordx2 s[20:21], s[0:1], {KA['ws']}
    s_lshl_b32 s16, s2, 3
    s_lshl_b32 s17, s3, 1
    s_add_u32 s16, s16, s17
    v_lshrrev_b32 v2, 5, v1
    v_add_u32 v2, s16, v2
    v_and_b32 v3, 31, v1
    v_lshlrev_b32 v4, 3, v3
    v_mul_u32_u24 v5, 1280, v2
    v_add_u32 v5, v5, v4
    s_waitcnt lgkmcnt(0)
    """)
    srd(a, 4, 4, H_SZ); srd(a, 8, 8, 1280)
    for i in range(5): a(f"buffer_load_dwordx2 {v(10+2*i,2)}, v5, s[4:7], 0 offen offset:{256*i}")
    for i in range(5): a(f"buffer_load_dwordx2 {v(20+2*i,2)}, v4, s[8:11], 0 offen offset:{256*i}")
    srd(a, 12, 20, H_SZ, H_OFF); srd(a, 24, 20, G_SZ, G_OFF)
    a("s_mov_b32 s30, 0x3f803f80\ns_mov_b32 s31, 0xffff0000")
    a("s_waitcnt vmcnt(5)")
    a("v_dot2_f32_bf16 v6, v10, s30, 0")
    for i in range(1, 10): a(f"v_dot2_f32_bf16 v6, v{10+i}, s30, v6")
    for i in range(10): a(f"v_lshlrev_b32 v{30+2*i}, 16, v{10+i}\nv_and_b32 v{31+2*i}, s31, v{10+i}")
    def red(r, t):
        for sh in (8, 4, 2, 1): a(f"v_add_f32_dpp v{r}, v{r}, v{r} row_ror:{sh} row_mask:0xf bank_mask:0xf")
        a(f"v_mov_b32 v{t}, v{r}\nv_permlane16_swap_b32 v{r}, v{t}\nv_add_f32 v{r}, v{r}, v{t}")
    red(6, 8)
    a(f"v_mul_f32 v6, {f2u(1/640)}, v6")
    a("s_waitcnt vmcnt(0)")
    a("v_dot2_f32_bf16 v9, v10, v20, 0")
    for i in range(1, 10): a(f"v_dot2_f32_bf16 v9, v{10+i}, v{20+i}, v9")
    for i in range(10): a(f"v_pk_add_f32 {v(30+2*i,2)}, {v(30+2*i,2)}, v[6:7] op_sel_hi:[1,0] neg_lo:[0,1] neg_hi:[0,1]")
    a("v_pk_mul_f32 v[50:51], v[30:31], v[30:31]")
    for i in range(1, 10): a(f"v_pk_fma_f32 v[50:51], {v(30+2*i,2)}, {v(30+2*i,2)}, v[50:51]")
    a("v_add_f32 v50, v50, v51")
    red(50, 8); red(9, 52)
    a(f"""
    v_mov_b32 v8, {f2u(1e-5)}
    v_fmac_f32 v8, {f2u(1/640)}, v50
    v_rsq_f32 v50, v8
    v_mul_f32 v9, {f2u(-LOG2E)}, v9
    v_exp_f32 v9, v9
    """)
    for i in range(10): a(f"v_pk_mul_f32 {v(30+2*i,2)}, {v(30+2*i,2)}, v[50:51] op_sel_hi:[1,0]")
    a("v_add_f32 v9, 1.0, v9\nv_rcp_f32 v9, v9")
    for i in range(10): a(f"v_cvt_pk_bf16_f32 v{10+i}, v{30+2*i}, v{31+2*i}")
    for i in range(5): a(f"buffer_store_dwordx2 {v(10+2*i,2)}, v5, s[12:15], 0 offen offset:{256*i}")
    a(f"""
    v_lshlrev_b32 v2, 2, v2
    v_cmp_eq_u32 vcc, 0, v3
    s_and_saveexec_b64 s[32:33], vcc
    s_cbranch_execz {L}_end
    buffer_store_dword v9, v2, s[24:27], 0 offen
    """)

def k0_wo(a, L, wg0):
    a(f"""
    s_load_dwordx2 s[4:5], s[0:1], {KA['wo']}
    s_load_dwordx2 s[20:21], s[0:1], {KA['ws']}
    s_sub_u32 s16, s2, {wg0}
    s_lshl_b32 s16, s16, 2
    s_add_u32 s16, s16, s3
    s_mul_i32 s17, s16, 6554
    s_lshr_b32 s17, s17, 16
    s_mul_i32 s18, s17, 10
    s_sub_u32 s18, s16, s18
    v_lshrrev_b32 v2, 3, v1
    v_and_b32 v3, 7, v1
    v_and_b32 v4, 6, v2
    v_xor_b32 v3, v3, v4
    v_lshlrev_b32 v3, 4, v3
    v_mul_u32_u24 v2, 1280, v2
    v_add_u32 v2, v2, v3
    s_mul_i32 s19, s17, {32*1280}
    s_lshl_b32 s22, s18, 7
    s_add_u32 s19, s19, s22
    s_lshl_b32 s23, s3, 12
    s_waitcnt lgkmcnt(0)
    """)
    srd(a, 4, 4, 640 * 1280)
    for i in range(4):
        a(f"s_add_u32 m0, s23, {1024*i}\ns_add_u32 s22, s19, {8*1280*i}\nbuffer_load_dwordx4 v2, s[4:7], s22 offen lds")
    srd(a, 12, 20, UW_SZ, UW_OFF)
    a("""
    v_lshrrev_b32 v5, 2, v1
    v_lshrrev_b32 v6, 1, v5
    v_and_b32 v6, 3, v6
    v_lshlrev_b32 v5, 7, v5
    v_and_b32 v7, 3, v1
    v_lshlrev_b32 v7, 3, v7
    v_add3_u32 v5, v5, v7, s23
    """)
    for t in range(4): a(f"v_xor_b32 v7, {t}, v6\nv_lshl_add_u32 v{8+t}, v7, 5, v5")
    a(f"""
    s_lshl_b32 s22, s18, 2
    s_mul_i32 s22, s22, 68
    s_add_u32 s22, s22, s17
    s_add_u32 s22, s22, 48
    s_lshl_b32 s22, s22, 10
    v_lshlrev_b32 v12, 4, v1
    s_waitcnt vmcnt(0)
    """)
    for t in range(4):
        a(f"ds_read_b64_tr_b16 {v(16+4*t,2)}, v{8+t}\nds_read_b64_tr_b16 {v(18+4*t,2)}, v{8+t} offset:2048")
    for t in range(4):
        a(f"s_waitcnt lgkmcnt({6-2*t})\nbuffer_store_dwordx4 {v(16+4*t,4)}, v12, s[12:15], s22 offen\ns_add_u32 s22, s22, {68*1024}")

def gen_k0(a, name):
    kernel_head(a, name)
    L = "Lk0"
    lane_wave(a, 1, 3)
    a(f"s_cmp_ge_u32 s2, 306\ns_cbranch_scc1 {L}_end\ns_cmp_ge_u32 s2, 256\ns_cbranch_scc1 {L}_wo")
    k0_ln(a, L)
    a("s_waitcnt vmcnt(0)" if PROF else ""); endp(a)
    a.label(f"{L}_wo")
    k0_wo(a, L, 256)
    a("s_waitcnt vmcnt(0)" if PROF else ""); endp(a)
    a.label(f"{L}_end")
    a("s_endpgm")
    return kernel_desc(name, 64, 96)

def loader_loop(a, L, J, S, n, issue, scnt):
    a(f"s_mov_b32 s{scnt}, 0")
    a.label(f"{L}_pro")
    issue("p")
    a(f"s_add_u32 s{scnt}, s{scnt}, 1\ns_cmp_lt_u32 s{scnt}, {S-1}\ns_cbranch_scc1 {L}_pro")
    stamp(a, 1)
    a.label(f"{L}_main")
    bar(a, f"s_waitcnt vmcnt({n*(S-2)})")
    issue("m")
    a(f"s_add_u32 s{scnt}, s{scnt}, 1\ns_cmp_lt_u32 s{scnt}, {J}\ns_cbranch_scc1 {L}_main")
    stamp(a, 2)
    for k in range(S - 2, -1, -1):
        a(f"s_waitcnt vmcnt({n*k})\ns_barrier")
    endp(a)

P2_S, P2_SLOT = 6, 18432
def gen_p2(a, name):
    stag = "nsp" not in OPTS
    kernel_head(a, name)
    L = "Lp2"
    lane_wave(a, 1, 3)
    a(f"""
    s_cmp_ge_u32 s2, 256
    s_cbranch_scc1 {L}_end
    s_load_dwordx2 s[4:5], s[0:1], {KA['w2']}
    s_load_dwordx2 s[20:21], s[0:1], {KA['ws']}
    s_load_dwordx2 s[24:25], s[0:1], {KA['b2']}
    s_load_dwordx2 s[28:29], s[0:1], {KA['out']}
    s_and_b32 s16, s2, 7
    s_lshr_b32 s17, s2, 3
    s_lshr_b32 s18, s16, 1
    s_lshl_b32 s18, s18, 3
    s_and_b32 s19, s17, 7
    s_add_u32 s18, s18, s19
    s_and_b32 s16, s16, 1
    s_lshl_b32 s16, s16, 2
    s_lshr_b32 s22, s17, 3
    s_add_u32 s16, s16, s22
    s_cmp_ge_u32 s3, 2
    s_cbranch_scc1 {L}_cons
    """)
    a(f"""
    s_setprio 1
    v_lshrrev_b32 v2, 3, v1
    v_and_b32 v3, 7, v1
    v_and_b32 v4, 6, v2
    v_xor_b32 v3, v3, v4
    v_lshlrev_b32 v3, 4, v3
    v_lshl_add_u32 v2, v2, 12, v3
    s_lshl_b32 s23, s3, 5
    s_lshl_b32 s23, s23, 12
    s_lshl_b32 s26, s18, 7
    s_add_u32 s23, s23, s26
    """)
    for i in range(4): a(f"s_add_u32 s26, s23, {8*4096*i}\nv_add_u32 v{8+i}, s26, v2")
    a(f"s_mul_i32 s23, s16, {5*68}\ns_add_u32 s23, s23, s3\ns_lshl_b32 s23, s23, 10\nv_lshlrev_b32 v3, 4, v1")
    for i in range(5): a(f"s_add_u32 s26, s23, {68*1024*i}\nv_add_u32 v{12+i}, s26, v3")
    if stag:
        a("s_lshl_b32 s34, s22, 1\ns_add_u32 s34, s34, s19\ns_and_b32 s34, s34, 7\ns_mul_i32 s34, s34, 3")
    else:
        a("s_mov_b32 s34, 0")
    a(f"""
    s_mov_b32 s35, 24
    s_mov_b32 s36, 0
    s_mov_b32 s37, 0
    s_lshl_b32 s38, s3, 12
    s_mul_i32 s39, s3, 5120
    s_add_u32 s39, s39, 8192
    s_waitcnt lgkmcnt(0)
    """)
    srd(a, 4, 4, F_ * 4096); srd(a, 8, 20, UW_SZ, UW_OFF)
    def issue(tag):
        a(f"""
        s_lshl_b32 s40, s34, 18
        s_lshl_b32 s41, s34, 1
        s_add_u32 s41, s41, s36
        s_lshl_b32 s41, s41, 10
        s_add_u32 s42, s37, s38
        s_add_u32 s43, s37, s39
        """)
        for i in range(4): a(f"s_add_u32 m0, s42, {1024*i}\nbuffer_load_dwordx4 v{8+i}, s[4:7], s40 offen lds")
        for i in range(5): a(f"s_add_u32 m0, s43, {1024*i}\nbuffer_load_dwordx4 v{12+i}, s[8:11], s41 offen lds")
        a(f"""
        s_add_u32 s37, s37, {P2_SLOT}
        s_cmp_ge_u32 s37, {P2_SLOT*P2_S}
        s_cselect_b32 s37, 0, s37
        s_add_u32 s34, s34, 1
        s_cmp_ge_u32 s34, s35
        s_cselect_b32 s34, 0, s34
        s_cmp_lg_u32 s33, 23
        s_cbranch_scc1 {L}_nosw{tag}
        """)
        srd(a, 4, 20, OT_SZ, OT_OFF)
        a("s_mov_b32 s35, 10\ns_mov_b32 s36, 48")
        a("s_mov_b32 s34, s19" if stag else "s_mov_b32 s34, 0")
        a.label(f"{L}_nosw{tag}")
    loader_loop(a, L, 34, P2_S, 9, issue, 33)
    a.label(f"{L}_cons")
    ACB, ACA, PA, PB, QA_, QB = 16, 36, 56, 76, 80, 100
    a(f"""
    s_sub_u32 s3, s3, 2
    s_lshl_b32 s23, s18, 6
    s_lshl_b32 s26, s3, 4
    s_add_u32 s23, s23, s26
    v_and_b32 v2, 15, v1
    v_add_u32 v2, s23, v2
    v_lshlrev_b32 v3, 1, v2
    v_lshlrev_b32 v4, 2, v2
    s_waitcnt lgkmcnt(0)
    """)
    srd(a, 24, 24, 4096); srd(a, 8, 20, G_SZ, G_OFF); srd(a, 28, 28, S_ * 1280)
    a(f"""
    buffer_load_ushort v10, v3, s[24:27], 0 offen
    buffer_load_dword v11, v4, s[8:11], 0 offen
    v_lshrrev_b32 v5, 2, v1
    v_lshrrev_b32 v6, 1, v5
    v_and_b32 v6, 3, v6
    v_xor_b32 v6, s3, v6
    v_lshlrev_b32 v6, 5, v6
    v_lshl_add_u32 v5, v5, 7, v6
    v_and_b32 v6, 3, v1
    v_lshl_add_u32 v8, v6, 3, v5
    v_lshlrev_b32 v9, 4, v1
    v_add_u32 v9, 8192, v9
    v_mul_u32_u24 v12, 1280, v2
    v_lshrrev_b32 v6, 4, v1
    v_lshl_add_u32 v12, v6, 3, v12
    s_mul_i32 s26, s16, 160
    v_add_u32 v12, s26, v12
    """)
    for i in range(20): a(f"v_mov_b32 v{ACA+i}, 0")
    a("s_waitcnt vmcnt(1)\nv_lshlrev_b32 v10, 16, v10")
    for i in range(20): a(f"v_mov_b32 v{ACB+i}, v10")
    def reads(A, B, kk):
        a(f"ds_read_b64_tr_b16 {v(B,2)}, v8 offset:{kk*4096}\nds_read_b64_tr_b16 {v(B+2,2)}, v8 offset:{kk*4096+2048}")
        for dt in range(5): a(f"ds_read_b128 {v(A+4*dt,4)}, v9 offset:{(kk*5+dt)*1024}")
    def mf(acc, A, B):
        for dt in range(5): a(f"v_mfma_f32_16x16x32_bf16 {v(acc+4*dt,4)}, {v(A+4*dt,4)}, {v(B,4)}, {v(acc+4*dt,4)}")
    a("s_mov_b32 s33, 0\ns_mov_b32 s37, 0")
    stamp(a, 1); a("s_waitcnt lgkmcnt(0)\ns_barrier"); stamp(a, 2); a("s_waitcnt lgkmcnt(0)" if PROF else "")
    reads(PA, PB, 0)
    def loop(tag, acc, end, last):
        a.label(f"{L}_c{tag}", 3)
        reads(QA_, QB, 1)
        a(f"""
        s_add_u32 s40, s37, {P2_SLOT}
        s_cmp_ge_u32 s40, {P2_SLOT*P2_S}
        s_cselect_b32 s41, 0, s40
        s_sub_u32 s40, s41, s37
        s_mov_b32 s37, s41
        s_add_u32 s33, s33, 1
        s_waitcnt lgkmcnt(7)
        """)
        mf(acc, PA, PB)
        a("v_add_u32 v8, s40, v8\nv_add_u32 v9, s40, v9\ns_waitcnt lgkmcnt(0)")
        if last: a(f"s_cmp_ge_u32 s33, {end}\ns_cbranch_scc1 {L}_clast")
        bar(a)
        reads(PA, PB, 0)
        mf(acc, QA_, QB)
        if last: a(f"s_branch {L}_c{tag}")
        else: a(f"s_cmp_lt_u32 s33, {end}\ns_cbranch_scc1 {L}_c{tag}")
    loop("b", ACB, 24, False)
    loop("a", ACA, 34, True)
    a.label(f"{L}_clast"); stamp(a, 3)
    mf(ACA, QA_, QB)
    a("s_waitcnt vmcnt(0)\ns_nop 4")
    for dt in range(5):
        for r in range(4): a(f"v_sub_f32 v{ACA+4*dt+r}, v{ACA+4*dt+r}, v{ACB+4*dt+r}")
        for r in range(4): a(f"v_fmac_f32 v{ACB+4*dt+r}, v11, v{ACA+4*dt+r}")
        a(f"v_cvt_pk_bf16_f32 v{PA+2*dt}, v{ACB+4*dt}, v{ACB+4*dt+1}\nv_cvt_pk_bf16_f32 v{PA+2*dt+1}, v{ACB+4*dt+2}, v{ACB+4*dt+3}")
        a(f"buffer_store_dwordx2 {v(PA+2*dt,2)}, v12, s[28:31], 0 offen offset:{32*dt}")
    stamp(a, 4); a("s_waitcnt vmcnt(0)" if PROF else ""); endp(a)
    a.label(f"{L}_end")
    a("s_endpgm")
    return kernel_desc(name, 104, 96)

G1_S, G1_SLOT = 6, 24576
def body_g1(a, L):
    a(f"""
    s_load_dwordx2 s[4:5], s[0:1], {KA['w1']}
    s_load_dwordx2 s[20:21], s[0:1], {KA['ws']}
    s_load_dwordx2 s[24:25], s[0:1], {KA['b1']}
    s_cmp_ge_u32 s3, 4
    s_cbranch_scc1 {L}_cons
    s_setprio 1
    v_lshrrev_b32 v2, 4, v1
    s_lshl_b32 s23, s3, 2
    v_add_u32 v2, s23, v2
    v_and_b32 v4, 7, v2
    v_lshlrev_b32 v4, 1, v4
    v_and_b32 v3, 15, v1
    v_xor_b32 v3, v3, v4
    v_lshlrev_b32 v3, 4, v3
    v_mul_u32_u24 v2, 3072, v2
    s_lshl_b32 s26, s16, 8
    v_add3_u32 v8, v2, v3, s26
    """)
    for i in range(1, 4): a(f"v_add_u32 v{8+i}, {16*3072*i}, v8")
    a(f"""
    v_lshrrev_b32 v2, 3, v1
    v_and_b32 v3, 7, v1
    v_and_b32 v4, 6, v2
    v_xor_b32 v3, v3, v4
    v_lshlrev_b32 v3, 4, v3
    s_lshl_b32 s23, s3, 3
    v_add_u32 v2, s23, v2
    v_mul_u32_u24 v2, 1280, v2
    s_lshl_b32 s26, s17, 7
    v_add3_u32 v12, v2, v3, s26
    v_add_u32 v13, {32*1280}, v12
    s_mov_b32 s34, s18
    s_lshl_b32 s37, s3, 10
    s_add_u32 s38, s37, {G1_SLOT*G1_S}
    s_waitcnt lgkmcnt(0)
    """)
    srd(a, 4, 4, S_ * 3072); srd(a, 8, 20, H_SZ, H_OFF)
    def issue(tag):
        a(f"s_mul_i32 s40, s34, {64*3072}\ns_mul_i32 s41, s34, {64*1280}")
        for i in range(4): a(f"s_add_u32 m0, s37, {4096*i}\nbuffer_load_dwordx4 v{8+i}, s[4:7], s40 offen lds")
        for i in range(2): a(f"s_add_u32 m0, s37, {16384+4096*i}\nbuffer_load_dwordx4 v{12+i}, s[8:11], s41 offen lds")
        a(f"""
        s_add_u32 s37, s37, {G1_SLOT}
        s_cmp_ge_u32 s37, s38
        s_cselect_b32 s42, {G1_SLOT*G1_S}, 0
        s_sub_u32 s37, s37, s42
        s_add_u32 s34, s34, 1
        s_and_b32 s34, s34, 31
        """)
    loader_loop(a, L, 32, G1_S, 6, issue, 33)
    a.label(f"{L}_cons")
    ACC, PA, PB, QA_, QB = 16, 48, 64, 72, 88
    a(f"""
    s_sub_u32 s3, s3, 4
    s_and_b32 s22, s3, 1
    s_lshr_b32 s23, s3, 1
    s_lshl_b32 s26, s16, 8
    s_lshl_b32 s27, s22, 7
    s_add_u32 s26, s26, s27
    v_lshrrev_b32 v2, 4, v1
    v_lshl_add_u32 v3, v2, 3, s26
    s_waitcnt lgkmcnt(0)
    """)
    srd(a, 24, 24, 3072); srd(a, 8, 20, UW_SZ, UW_OFF)
    for ft in range(4): a(f"buffer_load_dwordx2 {v(PA+2*ft,2)}, v3, s[24:27], 0 offen offset:{32*ft}")
    a(f"""
    v_lshrrev_b32 v5, 2, v1
    v_and_b32 v6, 3, v1
    v_lshlrev_b32 v6, 3, v6
    v_and_b32 v7, 7, v5
    v_lshl_add_u32 v4, v5, 8, v6
    s_lshl_b32 s27, s22, 2
    """)
    for ft in range(4): a(f"s_add_u32 s28, s27, {ft}\nv_xor_b32 v2, s28, v7\nv_lshl_add_u32 v{8+ft}, v2, 5, v4")
    a(f"""
    v_lshrrev_b32 v7, 1, v5
    v_and_b32 v7, 3, v7
    v_lshl_add_u32 v4, v5, 7, v6
    v_add_u32 v4, 16384, v4
    s_lshl_b32 s27, s23, 1
    """)
    for dt in range(2): a(f"s_add_u32 s28, s27, {dt}\nv_xor_b32 v2, s28, v7\nv_lshl_add_u32 v{12+dt}, v2, 5, v4")
    a(f"""
    s_lshl_b32 s28, s17, 2
    s_add_u32 s28, s28, s27
    s_mul_i32 s28, s28, 68
    s_lshl_b32 s29, s16, 2
    s_add_u32 s28, s28, s29
    s_lshl_b32 s29, s22, 1
    s_add_u32 s28, s28, s29
    s_lshl_b32 s28, s28, 10
    v_lshl_add_u32 v14, v1, 4, s28
    s_mov_b32 s31, 0xffff0000
    s_waitcnt vmcnt(0)
    """)
    for ft in range(4):
        for dt in range(2):
            b = ACC + 8 * ft + 4 * dt
            a(f"v_lshlrev_b32 v{b}, 16, v{PA+2*ft}\nv_and_b32 v{b+1}, s31, v{PA+2*ft}\nv_lshlrev_b32 v{b+2}, 16, v{PA+2*ft+1}\nv_and_b32 v{b+3}, s31, v{PA+2*ft+1}")
    def reads(A, B, kk):
        for dt in range(2): a(f"ds_read_b64_tr_b16 {v(B+4*dt,2)}, v{12+dt} offset:{kk*4096}\nds_read_b64_tr_b16 {v(B+4*dt+2,2)}, v{12+dt} offset:{kk*4096+2048}")
        for ft in range(4): a(f"ds_read_b64_tr_b16 {v(A+4*ft,2)}, v{8+ft} offset:{kk*8192}\nds_read_b64_tr_b16 {v(A+4*ft+2,2)}, v{8+ft} offset:{kk*8192+4096}")
    def mf(A, B):
        for ft in range(4):
            for dt in range(2):
                b = ACC + 8 * ft + 4 * dt
                a(f"v_mfma_f32_16x16x32_bf16 {v(b,4)}, {v(A+4*ft,4)}, {v(B+4*dt,4)}, {v(b,4)}")
    a("s_mov_b32 s33, 0\ns_mov_b32 s37, 0")
    stamp(a, 1); a("s_waitcnt lgkmcnt(0)\ns_barrier"); stamp(a, 2); a("s_waitcnt lgkmcnt(0)" if PROF else "")
    reads(PA, PB, 0)
    a.label(f"{L}_c", 3)
    reads(QA_, QB, 1)
    a(f"""
    s_add_u32 s40, s37, {G1_SLOT}
    s_cmp_ge_u32 s40, {G1_SLOT*G1_S}
    s_cselect_b32 s41, 0, s40
    s_sub_u32 s40, s41, s37
    s_mov_b32 s37, s41
    s_add_u32 s33, s33, 1
    s_waitcnt lgkmcnt(12)
    """)
    mf(PA, PB)
    for i in range(6): a(f"v_add_u32 v{8+i}, s40, v{8+i}")
    a(f"s_waitcnt lgkmcnt(0)\ns_cmp_ge_u32 s33, 32\ns_cbranch_scc1 {L}_clast"); bar(a)
    reads(PA, PB, 0)
    mf(QA_, QB)
    a(f"s_branch {L}_c")
    a.label(f"{L}_clast"); stamp(a, 3)
    mf(QA_, QB)
    c0 = -2 * 0.7978845608028654 * LOG2E; c1 = c0 * 0.044715
    a(f"v_mov_b32 v2, {f2u(c0)}\nv_mov_b32 v4, {f2u(c1)}\nv_mov_b32 v6, 1.0\ns_nop 4")
    T = PA
    for p in range(2):
        for dt in range(2):
            o = QA_ + 4 * (2 * p + dt)
            prs = [ACC + 8 * (2 * p + h) + 4 * dt + 2 * q for h in range(2) for q in range(2)]
            for i, b in enumerate(prs): a(f"v_pk_mul_f32 {v(T+2*i,2)}, {v(b,2)}, {v(b,2)}")
            for i, b in enumerate(prs): a(f"v_pk_fma_f32 {v(T+2*i,2)}, {v(T+2*i,2)}, v[4:5], v[2:3] op_sel_hi:[1,0,0]")
            for i, b in enumerate(prs): a(f"v_pk_mul_f32 {v(T+2*i,2)}, {v(T+2*i,2)}, {v(b,2)}")
            for i in range(8): a(f"v_exp_f32 v{T+i}, v{T+i}")
            for i, b in enumerate(prs): a(f"v_pk_add_f32 {v(T+2*i,2)}, {v(T+2*i,2)}, v[6:7] op_sel_hi:[1,0]")
            for i in range(8): a(f"v_rcp_f32 v{T+i}, v{T+i}")
            for i, b in enumerate(prs): a(f"v_pk_mul_f32 {v(T+2*i,2)}, {v(T+2*i,2)}, {v(b,2)}")
            for i in range(4): a(f"v_cvt_pk_bf16_f32 v{o+i}, v{T+2*i}, v{T+2*i+1}")
            a(f"s_mov_b32 s29, {dt*68*1024}\nbuffer_store_dwordx4 {v(o,4)}, v14, s[8:11], s29 offen offset:{1024*p}")
    stamp(a, 4); a("s_waitcnt vmcnt(0)" if PROF else ""); endp(a)

def map_g1(a, swg):
    stag = "nsg" not in OPTS
    a(f"""
    s_and_b32 s16, s{swg}, 7
    s_lshr_b32 s18, s{swg}, 3
    s_mul_i32 s19, s18, 86
    s_lshr_b32 s19, s19, 8
    s_mul_i32 s22, s19, 3
    s_sub_u32 s22, s18, s22
    s_and_b32 s17, s16, 1
    s_mul_i32 s17, s17, 5
    s_add_u32 s17, s17, s19
    s_lshr_b32 s16, s16, 1
    s_mul_i32 s16, s16, 3
    s_add_u32 s16, s16, s22
    """)
    if stag: a("s_mul_i32 s18, s19, 6\ns_mul_i32 s22, s22, 10\ns_add_u32 s18, s18, s22\ns_and_b32 s18, s18, 31")
    else: a("s_mov_b32 s18, 0")

def gen_g1(a, name):
    kernel_head(a, name)
    lane_wave(a, 1, 3)
    a(f"s_cmp_ge_u32 s2, 120\ns_cbranch_scc1 Lg1_end")
    map_g1(a, 2)
    body_g1(a, "Lg1")
    a.label("Lg1_end")
    a("s_endpgm")
    return kernel_desc(name, 104, 96)

QA_S, QA_SLOT, QA_W = 3, 49152, 18432
def body_qa(a, L):
    a(f"""
    s_load_dwordx2 s[4:5], s[0:1], {KA['x']}
    s_load_dwordx2 s[8:9], s[0:1], {KA['wqkv']}
    s_load_dwordx2 s[20:21], s[0:1], {KA['ws']}
    s_cmp_ge_u32 s3, 4
    s_cbranch_scc1 {L}_cons
    s_cmp_eq_u32 s3, 3
    s_cbranch_scc1 {L}_idle
    s_setprio 1
    v_lshrrev_b32 v2, 3, v1
    s_lshl_b32 s23, s3, 3
    v_add_u32 v2, s23, v2
    s_lshl_b32 s26, s16, 7
    s_sub_u32 s26, s26, 16
    v_and_b32 v3, 7, v1
    """)
    for i in range(6):
        a(f"""
        v_add_u32 v4, {24*i}, v2
        v_lshrrev_b32 v5, 1, v4
        v_and_b32 v5, 7, v5
        v_xor_b32 v5, v5, v3
        v_add_u32 v4, s26, v4
        v_max_i32 v4, 0, v4
        v_mul_u32_u24 v4, 1280, v4
        v_lshl_add_u32 v{8+i}, v5, 4, v4
        """)
    a(f"s_mul_i32 s23, s3, 320\ns_mul_i32 s26, s17, 160\nv_add_u32 v2, s23, v1")
    for i in range(5):
        a(f"""
        v_add_u32 v3, {64*i}, v2
        v_mul_u32_u24 v4, 2185, v3
        v_lshrrev_b32 v4, 16, v4
        v_mul_u32_u24 v5, 30, v4
        v_sub_u32 v3, v3, v5
        v_mul_u32_u24 v5, 26, v3
        v_lshrrev_b32 v5, 8, v5
        v_mul_u32_u24 v5, {1280-160}, v5
        v_lshl_add_u32 v3, v3, 4, v5
        v_and_b32 v5, 12, v4
        v_lshlrev_b32 v5, 1, v5
        v_lshrrev_b32 v6, 4, v4
        v_lshl_add_u32 v5, v6, 2, v5
        v_and_b32 v4, 3, v4
        v_add_u32 v4, v4, v5
        v_mul_u32_u24 v4, 3840, v4
        v_add3_u32 v{16+i}, v4, v3, s26
        """)
    a(f"""
    s_mov_b32 s34, s18
    s_mov_b32 s37, 0
    s_lshl_b32 s38, s3, 10
    s_mul_i32 s39, s3, 5120
    s_add_u32 s39, s39, {QA_W}
    s_waitcnt lgkmcnt(0)
    """)
    srd(a, 4, 4, H_SZ); srd(a, 8, 8, 640 * 3840)
    def issue(tag):
        a(f"s_lshl_b32 s40, s34, 7\ns_mul_i32 s41, s34, {64*3840}\ns_add_u32 s42, s37, s38\ns_add_u32 s43, s37, s39\ns_add_u32 s44, s41, {32*3840}")
        for i in range(3): a(f"s_add_u32 m0, s42, {3072*i}\nbuffer_load_dwordx4 v{8+i}, s[4:7], s40 offen lds")
        for i in range(5): a(f"s_add_u32 m0, s43, {1024*i}\nbuffer_load_dwordx4 v{16+i}, s[8:11], s41 offen lds")
        for i in range(3, 6): a(f"s_add_u32 m0, s42, {3072*i}\nbuffer_load_dwordx4 v{8+i}, s[4:7], s40 offen lds")
        for i in range(5): a(f"s_add_u32 m0, s43, {15360+1024*i}\nbuffer_load_dwordx4 v{16+i}, s[8:11], s44 offen lds")
        a(f"""
        s_add_u32 s37, s37, {QA_SLOT}
        s_cmp_ge_u32 s37, {QA_SLOT*QA_S}
        s_cselect_b32 s37, 0, s37
        s_add_u32 s34, s34, 1
        s_cmp_ge_u32 s34, 10
        s_cselect_b32 s34, 0, s34
        """)
    loader_loop(a, L, 10, QA_S, 16, issue, 33)
    a.label(f"{L}_idle")
    a("s_endpgm")
    a.label(f"{L}_cons")
    AQ, AK, AV = 16, 56, 116
    XF, WB = 176, 200
    NB, DD = 5, 3
    a(f"""
    s_sub_u32 s3, s3, 4
    v_and_b32 v2, 15, v1
    v_lshrrev_b32 v3, 4, v1
    v_lshrrev_b32 v4, 1, v2
    v_xor_b32 v4, v4, v3
    v_lshlrev_b32 v4, 4, v4
    v_lshl_add_u32 v4, v2, 7, v4
    s_lshl_b32 s23, s3, 12
    v_add_u32 v8, s23, v4
    v_xor_b32 v9, 64, v8
    v_lshrrev_b32 v5, 2, v1
    v_mul_u32_u24 v5, 480, v5
    v_add_u32 v5, {QA_W}, v5
    v_and_b32 v6, 3, v1
    v_lshl_add_u32 v10, v6, 3, v5
    v_mul_u32_u24 v6, 40, v6
    v_add3_u32 v11, v6, v5, 32
    """)
    for i in range(160): a(f"v_mov_b32 v{16+i}, 0")
    def xread(kk):
        for rt in range(3): a(f"ds_read_b128 {v(XF+12*kk+4*rt,4)}, v{8+kk} offset:{2048*rt}")
        return 3
    def wread(u):
        kk, c = divmod(u, 15); p, tt = divmod(c, 5)
        b = WB + 4 * (u % NB)
        ad = 11 if tt == 4 else 10
        off = kk * 15360 + p * 160 + (0 if tt == 4 else 40 * tt)
        a(f"ds_read_b64_tr_b16 {v(b,2)}, v{ad} offset:{off}\nds_read_b64_tr_b16 {v(b+2,2)}, v{ad} offset:{off+7680}")
        return 2
    def mf(u):
        kk, c = divmod(u, 15); p, tt = divmod(c, 5)
        w = v(WB + 4 * (u % NB), 4)
        for rt in range(3):
            x = v(XF + 12 * kk + 4 * rt, 4)
            if p == 0:
                if rt == 0: continue
                d = v(AQ + 20 * (rt - 1) + 4 * tt, 4); a(f"v_mfma_f32_16x16x32_bf16 {d}, {w}, {x}, {d}")
            elif p == 1:
                d = v(AK + 20 * rt + 4 * tt, 4); a(f"v_mfma_f32_16x16x32_bf16 {d}, {w}, {x}, {d}")
            else:
                d = v(AV + 12 * tt + 4 * rt, 4); a(f"v_mfma_f32_16x16x32_bf16 {d}, {x}, {w}, {d}")
    a("s_mov_b32 s33, 0\ns_mov_b32 s37, 0")
    stamp(a, 1); a("s_waitcnt lgkmcnt(0)\ns_barrier"); stamp(a, 2); a("s_waitcnt lgkmcnt(0)" if PROF else "")
    xread(0)
    for u in range(DD): wread(u)
    a.label(f"{L}_c", 3)
    a(f"""
    s_add_u32 s40, s37, {QA_SLOT}
    s_cmp_ge_u32 s40, {QA_SLOT*QA_S}
    s_cselect_b32 s41, 0, s40
    s_sub_u32 s40, s41, s37
    s_mov_b32 s37, s41
    s_add_u32 s33, s33, 1
    s_cmp_ge_u32 s33, 10
    """)
    q = []
    for u in range(DD): q += [u, u]
    for u in range(30):
        nx = u + DD
        if nx < 30:
            if nx == 15: q += [15] * xread(1)
            q += [nx] * wread(nx)
        elif nx == 30:
            for i in range(4): a(f"v_add_u32 v{8+i}, s40, v{8+i}")
            a(f"s_waitcnt lgkmcnt(0)\ns_cbranch_scc1 {L}_clast"); bar(a); q = []
            q += [30] * xread(0); q += [30] * wread(0)
        else:
            q += [nx] * wread(nx - 30)
        if any(t <= u for t in q):
            last = max(i for i, t in enumerate(q) if t <= u)
            q = q[last + 1:]
            a(f"s_waitcnt lgkmcnt({len(q)})")
        mf(u)
    a(f"s_branch {L}_c")
    a.label(f"{L}_clast"); stamp(a, 3)
    for u in range(30 - DD, 30): mf(u)
    M0, M1, MF, PM = 176, 180, 184, 188
    SR = 192
    TM = 224
    a(f"""
    s_waitcnt lgkmcnt(0)
    v_lshlrev_b32 v4, 2, v3
    v_sub_u32 v4, v2, v4
    v_mov_b32 v5, {f2u(-1e30)}
    """)
    for r in range(4):
        a(f"""
        v_subrev_u32 v6, {r}, v4
        v_and_b32 v6, 0x80000001, v6
        v_cmp_eq_u32 vcc, 0, v6
        v_cndmask_b32 v{M1+r}, v5, 0, vcc
        v_cndmask_b32 v{TM+4+r}, 0, -1, vcc
        v_cmp_eq_u32 vcc, 0x80000000, v6
        v_cndmask_b32 v{M0+r}, v5, 0, vcc
        v_cndmask_b32 v{TM+r}, 0, -1, vcc
        """.replace("v_cndmask_b32", "v_cndmask_b32_e64"))
    a("s_mov_b32 s30, 0xffff")
    for i in range(4): a(f"v_bfi_b32 v{PM+i}, s30, v{TM+2*i}, v{TM+2*i+1}")
    a(f"s_or_b32 s23, s16, s3\ns_cmp_eq_u32 s23, 0\ns_cselect_b64 vcc, -1, 0")
    for r in range(4): a(f"v_cndmask_b32 v{MF+r}, v{M0+r}, v5, vcc")
    for h in range(4): a(f"v_cmp_eq_u32 s[{44+2*h}:{45+2*h}], {h}, v3")
    a("v_lshrrev_b32 v6, 2, v2")
    for h in range(1, 4): a(f"v_cmp_eq_u32 s[{52+2*h}:{53+2*h}], {h}, v6")
    a(f"""
    s_mul_i32 s23, s17, 80
    s_lshl_b32 s26, s16, 8
    s_lshl_b32 s27, s3, 6
    s_add_u32 s26, s26, s27
    v_lshl_add_u32 v7, v3, 3, s26
    v_add_u32 v12, s23, v2
    v_lshl_add_u32 v12, v12, 12, v7
    v_mul_u32_u24 v6, 20, v6
    v_and_b32 v13, 3, v2
    v_add3_u32 v13, v13, v6, s23
    v_add_u32 v13, 16, v13
    v_lshl_add_u32 v13, v13, 12, v7
    """)
    srd(a, 4, 20, OT_SZ, OT_OFF)
    cv = lambda d, s0: a(f"v_cvt_pk_bf16_f32 v{d}, v{s0}, v{s0+1}")
    for rt in range(3):
        t4 = AK + 20 * rt + 16
        for h in range(4):
            b = AK + 20 * rt + 4 * h
            cv(b, b); cv(b + 1, b + 2); cv(b + 2, t4); cv(b + 3, t4 + 2)
    for rt in range(2):
        t4 = AQ + 20 * rt + 16
        cv(t4, t4); cv(t4 + 1, t4 + 2)
        for h in range(4):
            b = AQ + 20 * rt + 4 * h
            cv(b, b); cv(b + 1, b + 2)
            a(f"v_cndmask_b32 v{b+2}, 0, v{t4}, s[{44+2*h}:{45+2*h}]\nv_cndmask_b32 v{b+3}, 0, v{t4+1}, s[{44+2*h}:{45+2*h}]")
    cs = f2u(20 ** -0.5 * LOG2E)
    a(f"s_mov_b32 s31, {cs}")
    vdone = False
    for rt in (1, 2):
        for h in range(4):
            qf = v(AQ + 20 * (rt - 1) + 4 * h, 4)
            a(f"v_mfma_f32_16x16x32_bf16 {v(SR+8*h,4)}, {v(AK+20*(rt-1)+4*h,4)}, {qf}, {v(MF if rt == 1 else M0,4)}")
            a(f"v_mfma_f32_16x16x32_bf16 {v(SR+8*h+4,4)}, {v(AK+20*rt+4*h,4)}, {qf}, {v(M1,4)}")
        if not vdone:
            for tt in range(5):
                b = AV + 12 * tt
                for i in range(6): cv(b + i, b + 2 * i)
            vdone = True
        VA, VB, X = TM, TM + 4, TM + 8
        for h in range(4):
            s = SR + 8 * h
            a(f"v_max3_f32 v{VA+h}, v{s}, v{s+1}, v{s+4}\nv_max3_f32 v{VB+h}, v{s+2}, v{s+3}, v{s+6}")
        for h in range(4):
            s = SR + 8 * h
            a(f"v_max_f32 v{VA+h}, v{VA+h}, v{s+5}\nv_max_f32 v{VB+h}, v{VB+h}, v{s+7}")
        def xred(op):
            a(f"v_permlane32_swap_b32 v{X}, v{X+1}\nv_permlane32_swap_b32 v{X+2}, v{X+3}")
            a(f"{op} v{X}, v{X}, v{X+1}\n{op} v{X+2}, v{X+2}, v{X+3}")
            a(f"v_permlane16_swap_b32 v{X}, v{X+2}\n{op} v{X}, v{X}, v{X+2}")
        def xbc():
            a(f"v_mov_b32 v{X+2}, v{X}\nv_permlane16_swap_b32 v{X}, v{X+2}")
            a(f"v_mov_b32 v{X+1}, v{X}\nv_mov_b32 v{X+3}, v{X+2}")
            a(f"v_permlane32_swap_b32 v{X}, v{X+1}\nv_permlane32_swap_b32 v{X+2}, v{X+3}")
        for h in range(4): a(f"v_max_f32 v{X+h}, v{VA+h}, v{VB+h}")
        xred("v_max_f32")
        a(f"v_mul_f32 v{X}, s31, v{X}")
        xbc()
        for h in range(4): a(f"v_fma_f32 v{VA+h}, v{VA+h}, s31, -v{X+h}\nv_fma_f32 v{VB+h}, v{VB+h}, s31, -v{X+h}")
        for h in range(4): a(f"v_exp_f32 v{VA+h}, v{VA+h}\nv_exp_f32 v{VB+h}, v{VB+h}")
        for h in range(4): a(f"v_add_f32 v{X+h}, v{VA+h}, v{VB+h}")
        xred("v_add_f32")
        a(f"v_rcp_f32 v{X}, v{X}")
        xbc()
        for h in range(4): a(f"v_mul_f32 v{VA+h}, v{VA+h}, v{X+h}\nv_mul_f32 v{VB+h}, v{VB+h}, v{X+h}")
        for h in range(4): a(f"v_cvt_pk_bf16_f32 v{VA+h}, v{VA+h}, v{VA+h}\nv_cvt_pk_bf16_f32 v{VB+h}, v{VB+h}, v{VB+h}")
        P = TM + 12
        for h in range(4):
            a(f"v_and_b32 v{P+4*h}, v{VA+h}, v{PM}\nv_and_b32 v{P+4*h+1}, v{VB+h}, v{PM+1}\nv_and_b32 v{P+4*h+2}, v{VA+h}, v{PM+2}\nv_and_b32 v{P+4*h+3}, v{VB+h}, v{PM+3}")
        for h in range(4):
            a(f"v_mfma_f32_16x16x32_bf16 {v(SR+8*h,4)}, {v(P+4*h,4)}, {v(AV+12*h+2*(rt-1),4)}, 0")
            a(f"v_mfma_f32_16x16x32_bf16 {v(SR+8*h+4,4)}, {v(P+4*h,4)}, {v(AV+48+2*(rt-1),4)}, 0")
        O = TM
        for h in range(4):
            cv(O + 2 * h, SR + 8 * h); cv(O + 2 * h + 1, SR + 8 * h + 2)
            a(f"s_mov_b32 s29, {20*4096*h}\nbuffer_store_dwordx2 {v(O+2*h,2)}, v12, s[4:7], s29 offen offset:{32*(rt-1)}")
        for h in range(1, 4):
            for r in range(4): a(f"v_cndmask_b32 v{SR+4+r}, v{SR+4+r}, v{SR+8*h+4+r}, s[{52+2*h}:{53+2*h}]")
        cv(O + 8, SR + 4); cv(O + 9, SR + 6)
        a(f"buffer_store_dwordx2 {v(O+8,2)}, v13, s[4:7], 0 offen offset:{32*(rt-1)}")
    stamp(a, 4); a("s_waitcnt vmcnt(0)" if PROF else ""); endp(a)

def map_qa(a, swg):
    stag = "nsq" not in OPTS
    a(f"""
    s_and_b32 s17, s{swg}, 7
    s_lshr_b32 s18, s{swg}, 3
    s_lshr_b32 s16, s17, 1
    s_lshl_b32 s16, s16, 2
    s_and_b32 s19, s18, 3
    s_add_u32 s16, s16, s19
    s_and_b32 s17, s17, 1
    s_lshl_b32 s17, s17, 2
    s_lshr_b32 s18, s18, 2
    s_add_u32 s17, s17, s18
    """)
    if stag: a("s_add_u32 s18, s18, s19\ns_and_b32 s18, s18, 3\ns_mul_i32 s18, s18, 5\ns_lshr_b32 s18, s18, 1")
    else: a("s_mov_b32 s18, 0")

def gen_qa(a, name):
    kernel_head(a, name)
    lane_wave(a, 1, 3)
    a(f"s_cmp_ge_u32 s2, 128\ns_cbranch_scc1 Lqa_end")
    map_qa(a, 2)
    body_qa(a, "Lqa")
    a.label("Lqa_end")
    a("s_endpgm")
    return kernel_desc(name, 256, 96)

def gen_k1(a, name):
    kernel_head(a, name)
    lane_wave(a, 1, 3)
    a(f"s_cmp_ge_u32 s2, 248\ns_cbranch_scc1 Lk1_end\ns_cmp_lt_u32 s2, 120\ns_cbranch_scc1 Lk1_g1\ns_sub_u32 s2, s2, 120")
    map_qa(a, 2)
    body_qa(a, "Lqa")
    a.label("Lk1_g1")
    map_g1(a, 2)
    body_g1(a, "Lg1")
    a.label("Lk1_end")
    a("s_endpgm")
    return kernel_desc(name, 256, 96)

def gen_empty(a, name):
    kernel_head(a, name)
    a("s_endpgm")
    return kernel_desc(name, 8, 16)

def gen_pf(a, name):
    kernel_head(a, name)
    bufs = dict(X=(0, 2621440), Q=(8, 640*3840), O=(16, 640*1280), B=(24, 2621440), U=(32, 2048*3072), V=(48, 1536*4096))
    sel = next(o for o in OPTS if o.startswith("pf"))[2:]
    a("s_cmp_ge_u32 s2, 256\ns_cbranch_scc1 Lpf_end\ns_lshl_b32 s3, s2, 12\nv_lshl_add_u32 v1, v0, 4, s3")
    r = 4
    for ch in sel:
        if ch == "C":
            a("s_getpc_b64 s[12:13]\nLpf_pc:\ns_add_u32 s12, s12, k0_kernel-Lpf_pc\ns_addc_u32 s13, s13, 0\nv_lshlrev_b32 v2, 7, v0")
            a("v_cmp_gt_u32 vcc, Lcode_end-k0_kernel, v2\ns_and_saveexec_b64 s[14:15], vcc\ns_cbranch_execz Lpf_nc\nglobal_load_dword v3, v2, s[12:13]\nLpf_nc:\ns_mov_b64 exec, s[14:15]")
            continue
        off, size = bufs[ch]
        a(f"s_load_dwordx2 s[4:5], s[0:1], {off}\ns_waitcnt lgkmcnt(0)\ns_mov_b32 s6, {size}\ns_mov_b32 s7, 0x20000")
        for i in range((size + (1 << 20) - 1) >> 20):
            a(f"s_mov_b32 s8, {i << 20}\nbuffer_load_dwordx4 v[{r}:{r+3}], v1, s[4:7], s8 offen"); r += 4
    a("s_waitcnt vmcnt(0)")
    a.label("Lpf_end")
    a("s_endpgm")
    return kernel_desc(name, 128, 32)

def build(variant="split"):
    global PROF, PROF2
    variant, *opts = variant.split("+")
    OPTS[:] = opts
    PROF2 = "prof2" in opts
    PROF = "prof" in opts or PROF2
    ref = open(f"cdna_kernels/{NAME}.s.ref").read().split("\n")
    head = [l for l in ref[:ref.index(next(x for x in ref if x.startswith("; Override")))]]
    a = Asm()
    a.raw("\n".join(head))
    if variant == "split":
        launches = [("k0_kernel", 306, 256, 16384), ("qa_kernel", 128, 512, QA_S * QA_SLOT), ("g1_kernel", 120, 512, G1_S * G1_SLOT), ("p2_kernel", 256, 384, P2_S * P2_SLOT)]
        gens = [gen_k0, gen_qa, gen_g1, gen_p2]
    else:
        launches = [("k0_kernel", 306, 256, 16384), ("k1_kernel", 248, 512, 147456), ("p2_kernel", 256, 384, P2_S * P2_SLOT)]
        gens = [gen_k0, gen_k1, gen_p2]
    for o in opts:
        if o[0] == "e" and o[1:].isdigit():
            n = int(o[1:])
            launches = launches + [("empty_kernel", 256, 256, 0)] * n
        if o[0] == "x" and o[1:].isdigit():
            launches = launches * int(o[1:])
        if o[0] == "d" and o[1:].isdigit():
            i = int(o[1:]); launches = launches[:i+1] + launches[i:]
        if o[0] == "f" and o[1:].isdigit():
            n = int(o[1:])
            launches = [("empty_kernel", 256, 256, 0)] * n + launches
    if any(o.startswith("pf") for o in opts): launches = [("pf_kernel", 256, 256, 0)] + launches
    byname = dict(pf_kernel=gen_pf, k0_kernel=gen_k0, qa_kernel=gen_qa, g1_kernel=gen_g1, p2_kernel=gen_p2, k1_kernel=gen_k1, empty_kernel=gen_empty)
    for n, g, b, l in launches: a.raw(f"; @launch kernel={n} grid=({g},1,1) block=({b},1,1) lds={l}")
    a.raw('.amdgcn_target "amdgcn-amd-amdhsa--gfx950"')
    descs = []
    for n in dict.fromkeys(l[0] for l in launches):
        CUR[0] = KIDX.get(n, 0); descs.append(byname[n](a, n))
    a.raw("Lcode_end:")
    if "noload" in opts:
        a.lines = [(t, c) for t, c in a.lines if not (c is not None and c.kind == "vmem" and c.lds)]
    if "nocomp" in opts:
        a.lines = [(t, c) for t, c in a.lines if not (c is not None and (c.kind == "mfma" or c.op.startswith("ds_read")))]
    if "nomfma" in opts:
        a.lines = [(t, c) for t, c in a.lines if not (c is not None and c.kind == "mfma")]
    if "nods" in opts:
        a.lines = [(t, c) for t, c in a.lines if not (c is not None and c.op.startswith("ds_read"))]
    bad = a.check_branches()
    for b in bad: print("HAZARD across branch:", b, file=sys.stderr)
    assert not bad
    for d in descs: a.raw(d)
    return a.text()

if __name__ == "__main__":
    variant = sys.argv[1] if len(sys.argv) > 1 else "split"
    out = sys.argv[2] if len(sys.argv) > 2 else f"cdna_kernels/{NAME}.s"
    open(out, "w").write(build(variant))
```

```python
import sys, math
from dsl import *

NAME = "gated_mix__sliding_local_dilated__mixer_token_mlp__prompt"
S_, D_, F_ = 2048, 640, 1536
KA = dict(x=0, wqkv=8, wo=16, w1=32, b1=40, w2=48, b2=56, gw=64, out=72, dbg=80, ws=88)
H_OFF, OT_OFF, UW_OFF, G_OFF = 0, 0x280000, 0x500000, 0x800000
H_SZ, OT_SZ, UW_SZ, G_SZ = 2621440, 2621440, 40 * 68 * 1024, 8192
LOG2E = 1.4426950408889634
def f2u(x):
    import struct
    return "0x%08x" % struct.unpack("<I", struct.pack("<f", x))[0]

def srd(a, d, base, size, off=0):
    if off:
        a(f"s_add_u32 s{d}, s{base}, {off}\ns_addc_u32 s{d+1}, s{base+1}, 0")
    elif d != base:
        a(f"s_mov_b32 s{d}, s{base}\ns_mov_b32 s{d+1}, s{base+1}")
    a(f"s_mov_b32 s{d+2}, {size}\ns_mov_b32 s{d+3}, 0x20000")

def v(n, k=1): return f"v{n}" if k == 1 else f"v[{n}:{n+k-1}]"

PROF = False
OPTS = []
PROF2 = False
TL_OFF = 0x1000000
KIDX = {"k0_kernel": 0, "k1_kernel": 1, "qa_kernel": 1, "g1_kernel": 2, "p2_kernel": 3}
CUR = [0]
def stamp(a, i):
    if PROF: a(f"s_memrealtime s[{70+2*i}:{71+2*i}]")
def bar(a, pre=""):
    if PROF2:
        a("s_memtime s[64:65]\ns_waitcnt lgkmcnt(0)")
        a(pre); a("s_memtime s[88:89]\ns_waitcnt lgkmcnt(0)\ns_barrier\ns_memtime s[66:67]\ns_waitcnt lgkmcnt(0)")
        a("s_cselect_b32 s87, 1, 0\ns_sub_u32 s66, s66, s88\ns_add_u32 s80, s80, s66\ns_sub_u32 s88, s88, s64\ns_add_u32 s82, s82, s88\ns_cmp_lg_u32 s87, 0")
    else:
        a(pre); a("s_barrier")
def endp(a):
    if PROF:
        a(f"""
        s_memrealtime s[84:85]
        s_load_dwordx2 s[60:61], s[0:1], {KA['ws']}
        s_getreg_b32 s86, hwreg(HW_REG_XCC_ID)
        s_waitcnt lgkmcnt(0)
        s_add_u32 s60, s60, {TL_OFF + CUR[0] * 0x40000}
        s_addc_u32 s61, s61, 0
        s_mov_b32 s62, 0x40000
        s_mov_b32 s63, 0x20000
        s_mov_b64 exec, 1
        s_lshl_b32 s64, s68, 3
        s_add_u32 s64, s64, s69
        s_lshl_b32 s64, s64, 6
        v_mov_b32 v0, s64
        """)
        for i in range(8): a(f"v_mov_b32 v{4+i}, s{70+2*i}")
        a("v_mov_b32 v12, s86")
        a("buffer_store_dwordx4 v[4:7], v0, s[60:63], 0 offen\nbuffer_store_dwordx4 v[8:11], v0, s[60:63], 0 offen offset:16\nbuffer_store_dword v12, v0, s[60:63], 0 offen offset:32")
    a("s_endpgm")

def lane_wave(a, vlane, swave):
    if PROF:
        for i in range(1, 8): a(f"s_mov_b64 s[{70+2*i}:{71+2*i}], 0")
        stamp(a, 0)
        a(f"v_lshrrev_b32 v{vlane}, 6, v0\nv_readfirstlane_b32 s69, v{vlane}\ns_mov_b32 s68, s2")
    a(f"v_lshrrev_b32 v{vlane}, 6, v0\nv_readfirstlane_b32 s{swave}, v{vlane}\nv_and_b32 v{vlane}, 63, v0")

def tr_row(a, vd, vl, vt):
    a(f"v_lshrrev_b32 v{vd}, 2, v{vl}")

def k0_ln(a, L):
    a(f"""
    s_load_dwordx2 s[4:5], s[0:1], {KA['x']}
    s_load_dwordx2 s[8:9], s[0:1], {KA['gw']}
    s_load_dwordx2 s[20:21], s[0:1], {KA['ws']}
    s_lshl_b32 s16, s2, 3
    s_lshl_b32 s17, s3, 1
    s_add_u32 s16, s16, s17
    v_lshrrev_b32 v2, 5, v1
    v_add_u32 v2, s16, v2
    v_and_b32 v3, 31, v1
    v_lshlrev_b32 v4, 3, v3
    v_mul_u32_u24 v5, 1280, v2
    v_add_u32 v5, v5, v4
    s_waitcnt lgkmcnt(0)
    """)
    srd(a, 4, 4, H_SZ); srd(a, 8, 8, 1280)
    for i in range(5): a(f"buffer_load_dwordx2 {v(10+2*i,2)}, v5, s[4:7], 0 offen offset:{256*i}")
    for i in range(5): a(f"buffer_load_dwordx2 {v(20+2*i,2)}, v4, s[8:11], 0 offen offset:{256*i}")
    srd(a, 12, 20, H_SZ, H_OFF); srd(a, 24, 20, G_SZ, G_OFF)
    a("s_mov_b32 s30, 0x3f803f80\ns_mov_b32 s31, 0xffff0000")
    a("s_waitcnt vmcnt(5)")
    a("v_dot2_f32_bf16 v6, v10, s30, 0")
    for i in range(1, 10): a(f"v_dot2_f32_bf16 v6, v{10+i}, s30, v6")
    for i in range(10): a(f"v_lshlrev_b32 v{30+2*i}, 16, v{10+i}\nv_and_b32 v{31+2*i}, s31, v{10+i}")
    def red(r, t):
        for sh in (8, 4, 2, 1): a(f"v_add_f32_dpp v{r}, v{r}, v{r} row_ror:{sh} row_mask:0xf bank_mask:0xf")
        a(f"v_mov_b32 v{t}, v{r}\nv_permlane16_swap_b32 v{r}, v{t}\nv_add_f32 v{r}, v{r}, v{t}")
    red(6, 8)
    a(f"v_mul_f32 v6, {f2u(1/640)}, v6")
    a("s_waitcnt vmcnt(0)")
    a("v_dot2_f32_bf16 v9, v10, v20, 0")
    for i in range(1, 10): a(f"v_dot2_f32_bf16 v9, v{10+i}, v{20+i}, v9")
    for i in range(10): a(f"v_pk_add_f32 {v(30+2*i,2)}, {v(30+2*i,2)}, v[6:7] op_sel_hi:[1,0] neg_lo:[0,1] neg_hi:[0,1]")
    a("v_pk_mul_f32 v[50:51], v[30:31], v[30:31]")
    for i in range(1, 10): a(f"v_pk_fma_f32 v[50:51], {v(30+2*i,2)}, {v(30+2*i,2)}, v[50:51]")
    a("v_add_f32 v50, v50, v51")
    red(50, 8); red(9, 52)
    a(f"""
    v_mov_b32 v8, {f2u(1e-5)}
    v_fmac_f32 v8, {f2u(1/640)}, v50
    v_rsq_f32 v50, v8
    v_mul_f32 v9, {f2u(-LOG2E)}, v9
    v_exp_f32 v9, v9
    """)
    for i in range(10): a(f"v_pk_mul_f32 {v(30+2*i,2)}, {v(30+2*i,2)}, v[50:51] op_sel_hi:[1,0]")
    a("v_add_f32 v9, 1.0, v9\nv_rcp_f32 v9, v9")
    for i in range(10): a(f"v_cvt_pk_bf16_f32 v{10+i}, v{30+2*i}, v{31+2*i}")
    for i in range(5): a(f"buffer_store_dwordx2 {v(10+2*i,2)}, v5, s[12:15], 0 offen offset:{256*i}")
    a(f"""
    v_lshlrev_b32 v2, 2, v2
    v_cmp_eq_u32 vcc, 0, v3
    s_and_saveexec_b64 s[32:33], vcc
    s_cbranch_execz {L}_end
    buffer_store_dword v9, v2, s[24:27], 0 offen
    """)

def k0_wo(a, L, wg0):
    a(f"""
    s_load_dwordx2 s[4:5], s[0:1], {KA['wo']}
    s_load_dwordx2 s[20:21], s[0:1], {KA['ws']}
    s_sub_u32 s16, s2, {wg0}
    s_lshl_b32 s16, s16, 2
    s_add_u32 s16, s16, s3
    s_mul_i32 s17, s16, 6554
    s_lshr_b32 s17, s17, 16
    s_mul_i32 s18, s17, 10
    s_sub_u32 s18, s16, s18
    v_lshrrev_b32 v2, 3, v1
    v_and_b32 v3, 7, v1
    v_and_b32 v4, 6, v2
    v_xor_b32 v3, v3, v4
    v_lshlrev_b32 v3, 4, v3
    v_mul_u32_u24 v2, 1280, v2
    v_add_u32 v2, v2, v3
    s_mul_i32 s19, s17, {32*1280}
    s_lshl_b32 s22, s18, 7
    s_add_u32 s19, s19, s22
    s_lshl_b32 s23, s3, 12
    s_waitcnt lgkmcnt(0)
    """)
    srd(a, 4, 4, 640 * 1280)
    for i in range(4):
        a(f"s_add_u32 m0, s23, {1024*i}\ns_add_u32 s22, s19, {8*1280*i}\nbuffer_load_dwordx4 v2, s[4:7], s22 offen lds")
    srd(a, 12, 20, UW_SZ, UW_OFF)
    a("""
    v_lshrrev_b32 v5, 2, v1
    v_lshrrev_b32 v6, 1, v5
    v_and_b32 v6, 3, v6
    v_lshlrev_b32 v5, 7, v5
    v_and_b32 v7, 3, v1
    v_lshlrev_b32 v7, 3, v7
    v_add3_u32 v5, v5, v7, s23
    """)
    for t in range(4): a(f"v_xor_b32 v7, {t}, v6\nv_lshl_add_u32 v{8+t}, v7, 5, v5")
    a(f"""
    s_lshl_b32 s22, s18, 2
    s_mul_i32 s22, s22, 68
    s_add_u32 s22, s22, s17
    s_add_u32 s22, s22, 48
    s_lshl_b32 s22, s22, 10
    v_lshlrev_b32 v12, 4, v1
    s_waitcnt vmcnt(0)
    """)
    for t in range(4):
        a(f"ds_read_b64_tr_b16 {v(16+4*t,2)}, v{8+t}\nds_read_b64_tr_b16 {v(18+4*t,2)}, v{8+t} offset:2048")
    for t in range(4):
        a(f"s_waitcnt lgkmcnt({6-2*t})\nbuffer_store_dwordx4 {v(16+4*t,4)}, v12, s[12:15], s22 offen\ns_add_u32 s22, s22, {68*1024}")

def gen_k0(a, name):
    kernel_head(a, name)
    L = "Lk0"
    lane_wave(a, 1, 3)
    a(f"s_cmp_ge_u32 s2, 306\ns_cbranch_scc1 {L}_end\ns_cmp_ge_u32 s2, 256\ns_cbranch_scc1 {L}_wo")
    k0_ln(a, L)
    a("s_waitcnt vmcnt(0)" if PROF else ""); endp(a)
    a.label(f"{L}_wo")
    k0_wo(a, L, 256)
    a("s_waitcnt vmcnt(0)" if PROF else ""); endp(a)
    a.label(f"{L}_end")
    a("s_endpgm")
    return kernel_desc(name, 64, 96)

def loader_loop(a, L, J, S, n, issue, scnt):
    a(f"s_mov_b32 s{scnt}, 0")
    a.label(f"{L}_pro")
    issue("p")
    a(f"s_add_u32 s{scnt}, s{scnt}, 1\ns_cmp_lt_u32 s{scnt}, {S-1}\ns_cbranch_scc1 {L}_pro")
    stamp(a, 1)
    a.label(f"{L}_main")
    bar(a, f"s_waitcnt vmcnt({n*(S-2)})")
    issue("m")
    a(f"s_add_u32 s{scnt}, s{scnt}, 1\ns_cmp_lt_u32 s{scnt}, {J}\ns_cbranch_scc1 {L}_main")
    stamp(a, 2)
    for k in range(S - 2, -1, -1):
        a(f"s_waitcnt vmcnt({n*k})\ns_barrier")
    endp(a)

P2_S, P2_SLOT = 6, 18432
def gen_p2(a, name):
    stag = "nsp" not in OPTS
    kernel_head(a, name)
    L = "Lp2"
    lane_wave(a, 1, 3)
    a(f"""
    s_cmp_ge_u32 s2, 256
    s_cbranch_scc1 {L}_end
    s_load_dwordx2 s[4:5], s[0:1], {KA['w2']}
    s_load_dwordx2 s[20:21], s[0:1], {KA['ws']}
    s_load_dwordx2 s[24:25], s[0:1], {KA['b2']}
    s_load_dwordx2 s[28:29], s[0:1], {KA['out']}
    s_and_b32 s16, s2, 7
    s_lshr_b32 s17, s2, 3
    s_lshr_b32 s18, s16, 1
    s_lshl_b32 s18, s18, 3
    s_and_b32 s19, s17, 7
    s_add_u32 s18, s18, s19
    s_and_b32 s16, s16, 1
    s_lshl_b32 s16, s16, 2
    s_lshr_b32 s22, s17, 3
    s_add_u32 s16, s16, s22
    s_cmp_ge_u32 s3, 2
    s_cbranch_scc1 {L}_cons
    """)
    a(f"""
    s_setprio 1
    v_lshrrev_b32 v2, 3, v1
    v_and_b32 v3, 7, v1
    v_and_b32 v4, 6, v2
    v_xor_b32 v3, v3, v4
    v_lshlrev_b32 v3, 4, v3
    v_lshl_add_u32 v2, v2, 12, v3
    s_lshl_b32 s23, s3, 5
    s_lshl_b32 s23, s23, 12
    s_lshl_b32 s26, s18, 7
    s_add_u32 s23, s23, s26
    """)
    for i in range(4): a(f"s_add_u32 s26, s23, {8*4096*i}\nv_add_u32 v{8+i}, s26, v2")
    a(f"s_mul_i32 s23, s16, {5*68}\ns_add_u32 s23, s23, s3\ns_lshl_b32 s23, s23, 10\nv_lshlrev_b32 v3, 4, v1")
    for i in range(5): a(f"s_add_u32 s26, s23, {68*1024*i}\nv_add_u32 v{12+i}, s26, v3")
    if stag:
        a("s_lshl_b32 s34, s22, 1\ns_add_u32 s34, s34, s19\ns_and_b32 s34, s34, 7\ns_mul_i32 s34, s34, 3")
    else:
        a("s_mov_b32 s34, 0")
    a(f"""
    s_mov_b32 s35, 24
    s_mov_b32 s36, 0
    s_mov_b32 s37, 0
    s_lshl_b32 s38, s3, 12
    s_mul_i32 s39, s3, 5120
    s_add_u32 s39, s39, 8192
    s_waitcnt lgkmcnt(0)
    """)
    srd(a, 4, 4, F_ * 4096); srd(a, 8, 20, UW_SZ, UW_OFF)
    def issue(tag):
        a(f"""
        s_lshl_b32 s40, s34, 18
        s_lshl_b32 s41, s34, 1
        s_add_u32 s41, s41, s36
        s_lshl_b32 s41, s41, 10
        s_add_u32 s42, s37, s38
        s_add_u32 s43, s37, s39
        """)
        for i in range(4): a(f"s_add_u32 m0, s42, {1024*i}\nbuffer_load_dwordx4 v{8+i}, s[4:7], s40 offen lds")
        for i in range(5): a(f"s_add_u32 m0, s43, {1024*i}\nbuffer_load_dwordx4 v{12+i}, s[8:11], s41 offen lds")
        a(f"""
        s_add_u32 s37, s37, {P2_SLOT}
        s_cmp_ge_u32 s37, {P2_SLOT*P2_S}
        s_cselect_b32 s37, 0, s37
        s_add_u32 s34, s34, 1
        s_cmp_ge_u32 s34, s35
        s_cselect_b32 s34, 0, s34
        s_cmp_lg_u32 s33, 23
        s_cbranch_scc1 {L}_nosw{tag}
        """)
        srd(a, 4, 20, OT_SZ, OT_OFF)
        a("s_mov_b32 s35, 10\ns_mov_b32 s36, 48")
        a("s_mov_b32 s34, s19" if stag else "s_mov_b32 s34, 0")
        a.label(f"{L}_nosw{tag}")
    loader_loop(a, L, 34, P2_S, 9, issue, 33)
    a.label(f"{L}_cons")
    ACB, ACA, PA, PB, QA_, QB = 16, 36, 56, 76, 80, 100
    a(f"""
    s_sub_u32 s3, s3, 2
    s_lshl_b32 s23, s18, 6
    s_lshl_b32 s26, s3, 4
    s_add_u32 s23, s23, s26
    v_and_b32 v2, 15, v1
    v_add_u32 v2, s23, v2
    v_lshlrev_b32 v3, 1, v2
    v_lshlrev_b32 v4, 2, v2
    s_waitcnt lgkmcnt(0)
    """)
    srd(a, 24, 24, 4096); srd(a, 8, 20, G_SZ, G_OFF); srd(a, 28, 28, S_ * 1280)
    a(f"""
    buffer_load_ushort v10, v3, s[24:27], 0 offen
    buffer_load_dword v11, v4, s[8:11], 0 offen
    v_lshrrev_b32 v5, 2, v1
    v_lshrrev_b32 v6, 1, v5
    v_and_b32 v6, 3, v6
    v_xor_b32 v6, s3, v6
    v_lshlrev_b32 v6, 5, v6
    v_lshl_add_u32 v5, v5, 7, v6
    v_and_b32 v6, 3, v1
    v_lshl_add_u32 v8, v6, 3, v5
    v_lshlrev_b32 v9, 4, v1
    v_add_u32 v9, 8192, v9
    v_mul_u32_u24 v12, 1280, v2
    v_lshrrev_b32 v6, 4, v1
    v_lshl_add_u32 v12, v6, 3, v12
    s_mul_i32 s26, s16, 160
    v_add_u32 v12, s26, v12
    """)
    for i in range(20): a(f"v_mov_b32 v{ACA+i}, 0")
    a("s_waitcnt vmcnt(1)\nv_lshlrev_b32 v10, 16, v10")
    for i in range(20): a(f"v_mov_b32 v{ACB+i}, v10")
    def reads(A, B, kk):
        a(f"ds_read_b64_tr_b16 {v(B,2)}, v8 offset:{kk*4096}\nds_read_b64_tr_b16 {v(B+2,2)}, v8 offset:{kk*4096+2048}")
        for dt in range(5): a(f"ds_read_b128 {v(A+4*dt,4)}, v9 offset:{(kk*5+dt)*1024}")
    def mf(acc, A, B):
        for dt in range(5): a(f"v_mfma_f32_16x16x32_bf16 {v(acc+4*dt,4)}, {v(A+4*dt,4)}, {v(B,4)}, {v(acc+4*dt,4)}")
    a("s_mov_b32 s33, 0\ns_mov_b32 s37, 0")
    stamp(a, 1); a("s_waitcnt lgkmcnt(0)\ns_barrier"); stamp(a, 2); a("s_waitcnt lgkmcnt(0)" if PROF else "")
    reads(PA, PB, 0)
    def loop(tag, acc, end, last):
        a.label(f"{L}_c{tag}", 3)
        reads(QA_, QB, 1)
        a(f"""
        s_add_u32 s40, s37, {P2_SLOT}
        s_cmp_ge_u32 s40, {P2_SLOT*P2_S}
        s_cselect_b32 s41, 0, s40
        s_sub_u32 s40, s41, s37
        s_mov_b32 s37, s41
        s_add_u32 s33, s33, 1
        s_waitcnt lgkmcnt(7)
        """)
        mf(acc, PA, PB)
        a("v_add_u32 v8, s40, v8\nv_add_u32 v9, s40, v9\ns_waitcnt lgkmcnt(0)")
        if last: a(f"s_cmp_ge_u32 s33, {end}\ns_cbranch_scc1 {L}_clast")
        bar(a)
        reads(PA, PB, 0)
        mf(acc, QA_, QB)
        if last: a(f"s_branch {L}_c{tag}")
        else: a(f"s_cmp_lt_u32 s33, {end}\ns_cbranch_scc1 {L}_c{tag}")
    loop("b", ACB, 24, False)
    loop("a", ACA, 34, True)
    a.label(f"{L}_clast"); stamp(a, 3)
    mf(ACA, QA_, QB)
    a("s_waitcnt vmcnt(0)\ns_nop 4")
    for dt in range(5):
        for r in range(4): a(f"v_sub_f32 v{ACA+4*dt+r}, v{ACA+4*dt+r}, v{ACB+4*dt+r}")
        for r in range(4): a(f"v_fmac_f32 v{ACB+4*dt+r}, v11, v{ACA+4*dt+r}")
        a(f"v_cvt_pk_bf16_f32 v{PA+2*dt}, v{ACB+4*dt}, v{ACB+4*dt+1}\nv_cvt_pk_bf16_f32 v{PA+2*dt+1}, v{ACB+4*dt+2}, v{ACB+4*dt+3}")
        a(f"buffer_store_dwordx2 {v(PA+2*dt,2)}, v12, s[28:31], 0 offen offset:{32*dt}")
    stamp(a, 4); a("s_waitcnt vmcnt(0)" if PROF else ""); endp(a)
    a.label(f"{L}_end")
    a("s_endpgm")
    return kernel_desc(name, 104, 96)

G1_S, G1_SLOT = 6, 24576
def body_g1(a, L):
    a(f"""
    s_load_dwordx2 s[4:5], s[0:1], {KA['w1']}
    s_load_dwordx2 s[20:21], s[0:1], {KA['ws']}
    s_load_dwordx2 s[24:25], s[0:1], {KA['b1']}
    s_cmp_ge_u32 s3, 4
    s_cbranch_scc1 {L}_cons
    s_setprio 1
    v_lshrrev_b32 v2, 4, v1
    s_lshl_b32 s23, s3, 2
    v_add_u32 v2, s23, v2
    v_and_b32 v4, 7, v2
    v_lshlrev_b32 v4, 1, v4
    v_and_b32 v3, 15, v1
    v_xor_b32 v3, v3, v4
    v_lshlrev_b32 v3, 4, v3
    v_mul_u32_u24 v2, 3072, v2
    s_lshl_b32 s26, s16, 8
    v_add3_u32 v8, v2, v3, s26
    """)
    for i in range(1, 4): a(f"v_add_u32 v{8+i}, {16*3072*i}, v8")
    a(f"""
    v_lshrrev_b32 v2, 3, v1
    v_and_b32 v3, 7, v1
    v_and_b32 v4, 6, v2
    v_xor_b32 v3, v3, v4
    v_lshlrev_b32 v3, 4, v3
    s_lshl_b32 s23, s3, 3
    v_add_u32 v2, s23, v2
    v_mul_u32_u24 v2, 1280, v2
    s_lshl_b32 s26, s17, 7
    v_add3_u32 v12, v2, v3, s26
    v_add_u32 v13, {32*1280}, v12
    s_mov_b32 s34, s18
    s_lshl_b32 s37, s3, 10
    s_add_u32 s38, s37, {G1_SLOT*G1_S}
    s_waitcnt lgkmcnt(0)
    """)
    srd(a, 4, 4, S_ * 3072); srd(a, 8, 20, H_SZ, H_OFF)
    def issue(tag):
        a(f"s_mul_i32 s40, s34, {64*3072}\ns_mul_i32 s41, s34, {64*1280}")
        for i in range(4): a(f"s_add_u32 m0, s37, {4096*i}\nbuffer_load_dwordx4 v{8+i}, s[4:7], s40 offen lds")
        for i in range(2): a(f"s_add_u32 m0, s37, {16384+4096*i}\nbuffer_load_dwordx4 v{12+i}, s[8:11], s41 offen lds")
        a(f"""
        s_add_u32 s37, s37, {G1_SLOT}
        s_cmp_ge_u32 s37, s38
        s_cselect_b32 s42, {G1_SLOT*G1_S}, 0
        s_sub_u32 s37, s37, s42
        s_add_u32 s34, s34, 1
        s_and_b32 s34, s34, 31
        """)
    loader_loop(a, L, 32, G1_S, 6, issue, 33)
    a.label(f"{L}_cons")
    ACC, PA, PB, QA_, QB = 16, 48, 64, 72, 88
    a(f"""
    s_sub_u32 s3, s3, 4
    s_and_b32 s22, s3, 1
    s_lshr_b32 s23, s3, 1
    s_lshl_b32 s26, s16, 8
    s_lshl_b32 s27, s22, 7
    s_add_u32 s26, s26, s27
    v_lshrrev_b32 v2, 4, v1
    v_lshl_add_u32 v3, v2, 3, s26
    s_waitcnt lgkmcnt(0)
    """)
    srd(a, 24, 24, 3072); srd(a, 8, 20, UW_SZ, UW_OFF)
    for ft in range(4): a(f"buffer_load_dwordx2 {v(PA+2*ft,2)}, v3, s[24:27], 0 offen offset:{32*ft}")
    a(f"""
    v_lshrrev_b32 v5, 2, v1
    v_and_b32 v6, 3, v1
    v_lshlrev_b32 v6, 3, v6
    v_and_b32 v7, 7, v5
    v_lshl_add_u32 v4, v5, 8, v6
    s_lshl_b32 s27, s22, 2
    """)
    for ft in range(4): a(f"s_add_u32 s28, s27, {ft}\nv_xor_b32 v2, s28, v7\nv_lshl_add_u32 v{8+ft}, v2, 5, v4")
    a(f"""
    v_lshrrev_b32 v7, 1, v5
    v_and_b32 v7, 3, v7
    v_lshl_add_u32 v4, v5, 7, v6
    v_add_u32 v4, 16384, v4
    s_lshl_b32 s27, s23, 1
    """)
    for dt in range(2): a(f"s_add_u32 s28, s27, {dt}\nv_xor_b32 v2, s28, v7\nv_lshl_add_u32 v{12+dt}, v2, 5, v4")
    a(f"""
    s_lshl_b32 s28, s17, 2
    s_add_u32 s28, s28, s27
    s_mul_i32 s28, s28, 68
    s_lshl_b32 s29, s16, 2
    s_add_u32 s28, s28, s29
    s_lshl_b32 s29, s22, 1
    s_add_u32 s28, s28, s29
    s_lshl_b32 s28, s28, 10
    v_lshl_add_u32 v14, v1, 4, s28
    s_mov_b32 s31, 0xffff0000
    s_waitcnt vmcnt(0)
    """)
    for ft in range(4):
        for dt in range(2):
            b = ACC + 8 * ft + 4 * dt
            a(f"v_lshlrev_b32 v{b}, 16, v{PA+2*ft}\nv_and_b32 v{b+1}, s31, v{PA+2*ft}\nv_lshlrev_b32 v{b+2}, 16, v{PA+2*ft+1}\nv_and_b32 v{b+3}, s31, v{PA+2*ft+1}")
    def reads(A, B, kk):
        for dt in range(2): a(f"ds_read_b64_tr_b16 {v(B+4*dt,2)}, v{12+dt} offset:{kk*4096}\nds_read_b64_tr_b16 {v(B+4*dt+2,2)}, v{12+dt} offset:{kk*4096+2048}")
        for ft in range(4): a(f"ds_read_b64_tr_b16 {v(A+4*ft,2)}, v{8+ft} offset:{kk*8192}\nds_read_b64_tr_b16 {v(A+4*ft+2,2)}, v{8+ft} offset:{kk*8192+4096}")
    def mf(A, B):
        for ft in range(4):
            for dt in range(2):
                b = ACC + 8 * ft + 4 * dt
                a(f"v_mfma_f32_16x16x32_bf16 {v(b,4)}, {v(A+4*ft,4)}, {v(B+4*dt,4)}, {v(b,4)}")
    a("s_mov_b32 s33, 0\ns_mov_b32 s37, 0")
    stamp(a, 1); a("s_waitcnt lgkmcnt(0)\ns_barrier"); stamp(a, 2); a("s_waitcnt lgkmcnt(0)" if PROF else "")
    reads(PA, PB, 0)
    a.label(f"{L}_c", 3)
    reads(QA_, QB, 1)
    a(f"""
    s_add_u32 s40, s37, {G1_SLOT}
    s_cmp_ge_u32 s40, {G1_SLOT*G1_S}
    s_cselect_b32 s41, 0, s40
    s_sub_u32 s40, s41, s37
    s_mov_b32 s37, s41
    s_add_u32 s33, s33, 1
    s_waitcnt lgkmcnt(12)
    """)
    mf(PA, PB)
    for i in range(6): a(f"v_add_u32 v{8+i}, s40, v{8+i}")
    a(f"s_waitcnt lgkmcnt(0)\ns_cmp_ge_u32 s33, 32\ns_cbranch_scc1 {L}_clast"); bar(a)
    reads(PA, PB, 0)
    mf(QA_, QB)
    a(f"s_branch {L}_c")
    a.label(f"{L}_clast"); stamp(a, 3)
    mf(QA_, QB)
    c0 = -2 * 0.7978845608028654 * LOG2E; c1 = c0 * 0.044715
    a(f"v_mov_b32 v2, {f2u(c0)}\nv_mov_b32 v4, {f2u(c1)}\nv_mov_b32 v6, 1.0\ns_nop 4")
    T = PA
    for p in range(2):
        for dt in range(2):
            o = QA_ + 4 * (2 * p + dt)
            prs = [ACC + 8 * (2 * p + h) + 4 * dt + 2 * q for h in range(2) for q in range(2)]
            for i, b in enumerate(prs): a(f"v_pk_mul_f32 {v(T+2*i,2)}, {v(b,2)}, {v(b,2)}")
            for i, b in enumerate(prs): a(f"v_pk_fma_f32 {v(T+2*i,2)}, {v(T+2*i,2)}, v[4:5], v[2:3] op_sel_hi:[1,0,0]")
            for i, b in enumerate(prs): a(f"v_pk_mul_f32 {v(T+2*i,2)}, {v(T+2*i,2)}, {v(b,2)}")
            for i in range(8): a(f"v_exp_f32 v{T+i}, v{T+i}")
            for i, b in enumerate(prs): a(f"v_pk_add_f32 {v(T+2*i,2)}, {v(T+2*i,2)}, v[6:7] op_sel_hi:[1,0]")
            for i in range(8): a(f"v_rcp_f32 v{T+i}, v{T+i}")
            for i, b in enumerate(prs): a(f"v_pk_mul_f32 {v(T+2*i,2)}, {v(T+2*i,2)}, {v(b,2)}")
            for i in range(4): a(f"v_cvt_pk_bf16_f32 v{o+i}, v{T+2*i}, v{T+2*i+1}")
            a(f"s_mov_b32 s29, {dt*68*1024}\nbuffer_store_dwordx4 {v(o,4)}, v14, s[8:11], s29 offen offset:{1024*p}")
    stamp(a, 4); a("s_waitcnt vmcnt(0)" if PROF else ""); endp(a)

def map_g1(a, swg):
    stag = "nsg" not in OPTS
    a(f"""
    s_and_b32 s16, s{swg}, 7
    s_lshr_b32 s18, s{swg}, 3
    s_mul_i32 s19, s18, 86
    s_lshr_b32 s19, s19, 8
    s_mul_i32 s22, s19, 3
    s_sub_u32 s22, s18, s22
    s_and_b32 s17, s16, 1
    s_mul_i32 s17, s17, 5
    s_add_u32 s17, s17, s19
    s_lshr_b32 s16, s16, 1
    s_mul_i32 s16, s16, 3
    s_add_u32 s16, s16, s22
    """)
    if stag: a("s_mul_i32 s18, s19, 6\ns_mul_i32 s22, s22, 10\ns_add_u32 s18, s18, s22\ns_and_b32 s18, s18, 31")
    else: a("s_mov_b32 s18, 0")

def gen_g1(a, name):
    kernel_head(a, name)
    lane_wave(a, 1, 3)
    a(f"s_cmp_ge_u32 s2, 120\ns_cbranch_scc1 Lg1_end")
    map_g1(a, 2)
    body_g1(a, "Lg1")
    a.label("Lg1_end")
    a("s_endpgm")
    return kernel_desc(name, 104, 96)

QA_S, QA_SLOT, QA_W = 3, 49152, 18432
def body_qa(a, L):
    a(f"""
    s_load_dwordx2 s[4:5], s[0:1], {KA['x']}
    s_load_dwordx2 s[8:9], s[0:1], {KA['wqkv']}
    s_load_dwordx2 s[20:21], s[0:1], {KA['ws']}
    s_cmp_ge_u32 s3, 4
    s_cbranch_scc1 {L}_cons
    s_cmp_eq_u32 s3, 3
    s_cbranch_scc1 {L}_idle
    s_setprio 1
    v_lshrrev_b32 v2, 3, v1
    s_lshl_b32 s23, s3, 3
    v_add_u32 v2, s23, v2
    s_lshl_b32 s26, s16, 7
    s_sub_u32 s26, s26, 16
    v_and_b32 v3, 7, v1
    """)
    for i in range(6):
        a(f"""
        v_add_u32 v4, {24*i}, v2
        v_lshrrev_b32 v5, 1, v4
        v_and_b32 v5, 7, v5
        v_xor_b32 v5, v5, v3
        v_add_u32 v4, s26, v4
        v_max_i32 v4, 0, v4
        v_mul_u32_u24 v4, 1280, v4
        v_lshl_add_u32 v{8+i}, v5, 4, v4
        """)
    a(f"s_mul_i32 s23, s3, 320\ns_mul_i32 s26, s17, 160\nv_add_u32 v2, s23, v1")
    for i in range(5):
        a(f"""
        v_add_u32 v3, {64*i}, v2
        v_mul_u32_u24 v4, 2185, v3
        v_lshrrev_b32 v4, 16, v4
        v_mul_u32_u24 v5, 30, v4
        v_sub_u32 v3, v3, v5
        v_mul_u32_u24 v5, 26, v3
        v_lshrrev_b32 v5, 8, v5
        v_mul_u32_u24 v5, {1280-160}, v5
        v_lshl_add_u32 v3, v3, 4, v5
        v_and_b32 v5, 12, v4
        v_lshlrev_b32 v5, 1, v5
        v_lshrrev_b32 v6, 4, v4
        v_lshl_add_u32 v5, v6, 2, v5
        v_and_b32 v4, 3, v4
        v_add_u32 v4, v4, v5
        v_mul_u32_u24 v4, 3840, v4
        v_add3_u32 v{16+i}, v4, v3, s26
        """)
    a(f"""
    s_mov_b32 s34, s18
    s_mov_b32 s37, 0
    s_lshl_b32 s38, s3, 10
    s_mul_i32 s39, s3, 5120
    s_add_u32 s39, s39, {QA_W}
    s_waitcnt lgkmcnt(0)
    """)
    srd(a, 4, 4, H_SZ); srd(a, 8, 8, 640 * 3840)
    def issue(tag):
        a(f"s_lshl_b32 s40, s34, 7\ns_mul_i32 s41, s34, {64*3840}\ns_add_u32 s42, s37, s38\ns_add_u32 s43, s37, s39\ns_add_u32 s44, s41, {32*3840}")
        for i in range(3): a(f"s_add_u32 m0, s42, {3072*i}\nbuffer_load_dwordx4 v{8+i}, s[4:7], s40 offen lds")
        for i in range(5): a(f"s_add_u32 m0, s43, {1024*i}\nbuffer_load_dwordx4 v{16+i}, s[8:11], s41 offen lds")
        for i in range(3, 6): a(f"s_add_u32 m0, s42, {3072*i}\nbuffer_load_dwordx4 v{8+i}, s[4:7], s40 offen lds")
        for i in range(5): a(f"s_add_u32 m0, s43, {15360+1024*i}\nbuffer_load_dwordx4 v{16+i}, s[8:11], s44 offen lds")
        a(f"""
        s_add_u32 s37, s37, {QA_SLOT}
        s_cmp_ge_u32 s37, {QA_SLOT*QA_S}
        s_cselect_b32 s37, 0, s37
        s_add_u32 s34, s34, 1
        s_cmp_ge_u32 s34, 10
        s_cselect_b32 s34, 0, s34
        """)
    loader_loop(a, L, 10, QA_S, 16, issue, 33)
    a.label(f"{L}_idle")
    a("s_endpgm")
    a.label(f"{L}_cons")
    AQ, AK, AV = 16, 56, 116
    XF, WB = 176, 200
    NB, DD = 5, 3
    a(f"""
    s_sub_u32 s3, s3, 4
    v_and_b32 v2, 15, v1
    v_lshrrev_b32 v3, 4, v1
    v_lshrrev_b32 v4, 1, v2
    v_xor_b32 v4, v4, v3
    v_lshlrev_b32 v4, 4, v4
    v_lshl_add_u32 v4, v2, 7, v4
    s_lshl_b32 s23, s3, 12
    v_add_u32 v8, s23, v4
    v_xor_b32 v9, 64, v8
    v_lshrrev_b32 v5, 2, v1
    v_mul_u32_u24 v5, 480, v5
    v_add_u32 v5, {QA_W}, v5
    v_and_b32 v6, 3, v1
    v_lshl_add_u32 v10, v6, 3, v5
    v_mul_u32_u24 v6, 40, v6
    v_add3_u32 v11, v6, v5, 32
    """)
    for i in range(160): a(f"v_mov_b32 v{16+i}, 0")
    def xread(kk):
        for rt in range(3): a(f"ds_read_b128 {v(XF+12*kk+4*rt,4)}, v{8+kk} offset:{2048*rt}")
        return 3
    def wread(u):
        kk, c = divmod(u, 15); p, tt = divmod(c, 5)
        b = WB + 4 * (u % NB)
        ad = 11 if tt == 4 else 10
        off = kk * 15360 + p * 160 + (0 if tt == 4 else 40 * tt)
        a(f"ds_read_b64_tr_b16 {v(b,2)}, v{ad} offset:{off}\nds_read_b64_tr_b16 {v(b+2,2)}, v{ad} offset:{off+7680}")
        return 2
    def mf(u):
        kk, c = divmod(u, 15); p, tt = divmod(c, 5)
        w = v(WB + 4 * (u % NB), 4)
        for rt in range(3):
            x = v(XF + 12 * kk + 4 * rt, 4)
            if p == 0:
                if rt == 0: continue
                d = v(AQ + 20 * (rt - 1) + 4 * tt, 4); a(f"v_mfma_f32_16x16x32_bf16 {d}, {w}, {x}, {d}")
            elif p == 1:
                d = v(AK + 20 * rt + 4 * tt, 4); a(f"v_mfma_f32_16x16x32_bf16 {d}, {w}, {x}, {d}")
            else:
                d = v(AV + 12 * tt + 4 * rt, 4); a(f"v_mfma_f32_16x16x32_bf16 {d}, {x}, {w}, {d}")
    a("s_mov_b32 s33, 0\ns_mov_b32 s37, 0")
    stamp(a, 1); a("s_waitcnt lgkmcnt(0)\ns_barrier"); stamp(a, 2); a("s_waitcnt lgkmcnt(0)" if PROF else "")
    xread(0)
    for u in range(DD): wread(u)
    a.label(f"{L}_c", 3)
    a(f"""
    s_add_u32 s40, s37, {QA_SLOT}
    s_cmp_ge_u32 s40, {QA_SLOT*QA_S}
    s_cselect_b32 s41, 0, s40
    s_sub_u32 s40, s41, s37
    s_mov_b32 s37, s41
    s_add_u32 s33, s33, 1
    s_cmp_ge_u32 s33, 10
    """)
    q = []
    for u in range(DD): q += [u, u]
    for u in range(30):
        nx = u + DD
        if nx < 30:
            if nx == 15: q += [15] * xread(1)
            q += [nx] * wread(nx)
        elif nx == 30:
            for i in range(4): a(f"v_add_u32 v{8+i}, s40, v{8+i}")
            a(f"s_waitcnt lgkmcnt(0)\ns_cbranch_scc1 {L}_clast"); bar(a); q = []
            q += [30] * xread(0); q += [30] * wread(0)
        else:
            q += [nx] * wread(nx - 30)
        if any(t <= u for t in q):
            last = max(i for i, t in enumerate(q) if t <= u)
            q = q[last + 1:]
            a(f"s_waitcnt lgkmcnt({len(q)})")
        mf(u)
    a(f"s_branch {L}_c")
    a.label(f"{L}_clast"); stamp(a, 3)
    for u in range(30 - DD, 30): mf(u)
    M0, M1, MF, PM = 176, 180, 184, 188
    SR = 192
    TM = 224
    a(f"""
    s_waitcnt lgkmcnt(0)
    v_lshlrev_b32 v4, 2, v3
    v_sub_u32 v4, v2, v4
    v_mov_b32 v5, {f2u(-1e30)}
    """)
    for r in range(4):
        a(f"""
        v_subrev_u32 v6, {r}, v4
        v_and_b32 v6, 0x80000001, v6
        v_cmp_eq_u32 vcc, 0, v6
        v_cndmask_b32 v{M1+r}, v5, 0, vcc
        v_cndmask_b32 v{TM+4+r}, 0, -1, vcc
        v_cmp_eq_u32 vcc, 0x80000000, v6
        v_cndmask_b32 v{M0+r}, v5, 0, vcc
        v_cndmask_b32 v{TM+r}, 0, -1, vcc
        """.replace("v_cndmask_b32", "v_cndmask_b32_e64"))
    a("s_mov_b32 s30, 0xffff")
    for i in range(4): a(f"v_bfi_b32 v{PM+i}, s30, v{TM+2*i}, v{TM+2*i+1}")
    a(f"s_or_b32 s23, s16, s3\ns_cmp_eq_u32 s23, 0\ns_cselect_b64 vcc, -1, 0")
    for r in range(4): a(f"v_cndmask_b32 v{MF+r}, v{M0+r}, v5, vcc")
    for h in range(4): a(f"v_cmp_eq_u32 s[{44+2*h}:{45+2*h}], {h}, v3")
    a("v_lshrrev_b32 v6, 2, v2")
    for h in range(1, 4): a(f"v_cmp_eq_u32 s[{52+2*h}:{53+2*h}], {h}, v6")
    a(f"""
    s_mul_i32 s23, s17, 80
    s_lshl_b32 s26, s16, 8
    s_lshl_b32 s27, s3, 6
    s_add_u32 s26, s26, s27
    v_lshl_add_u32 v7, v3, 3, s26
    v_add_u32 v12, s23, v2
    v_lshl_add_u32 v12, v12, 12, v7
    v_mul_u32_u24 v6, 20, v6
    v_and_b32 v13, 3, v2
    v_add3_u32 v13, v13, v6, s23
    v_add_u32 v13, 16, v13
    v_lshl_add_u32 v13, v13, 12, v7
    """)
    srd(a, 4, 20, OT_SZ, OT_OFF)
    cv = lambda d, s0: a(f"v_cvt_pk_bf16_f32 v{d}, v{s0}, v{s0+1}")
    for rt in range(3):
        t4 = AK + 20 * rt + 16
        for h in range(4):
            b = AK + 20 * rt + 4 * h
            cv(b, b); cv(b + 1, b + 2); cv(b + 2, t4); cv(b + 3, t4 + 2)
    for rt in range(2):
        t4 = AQ + 20 * rt + 16
        cv(t4, t4); cv(t4 + 1, t4 + 2)
        for h in range(4):
            b = AQ + 20 * rt + 4 * h
            cv(b, b); cv(b + 1, b + 2)
            a(f"v_cndmask_b32 v{b+2}, 0, v{t4}, s[{44+2*h}:{45+2*h}]\nv_cndmask_b32 v{b+3}, 0, v{t4+1}, s[{44+2*h}:{45+2*h}]")
    cs = f2u(20 ** -0.5 * LOG2E)
    a(f"s_mov_b32 s31, {cs}")
    vdone = False
    for rt in (1, 2):
        for h in range(4):
            qf = v(AQ + 20 * (rt - 1) + 4 * h, 4)
            a(f"v_mfma_f32_16x16x32_bf16 {v(SR+8*h,4)}, {v(AK+20*(rt-1)+4*h,4)}, {qf}, {v(MF if rt == 1 else M0,4)}")
            a(f"v_mfma_f32_16x16x32_bf16 {v(SR+8*h+4,4)}, {v(AK+20*rt+4*h,4)}, {qf}, {v(M1,4)}")
        if not vdone:
            for tt in range(5):
                b = AV + 12 * tt
                for i in range(6): cv(b + i, b + 2 * i)
            vdone = True
        VA, VB, X = TM, TM + 4, TM + 8
        for h in range(4):
            s = SR + 8 * h
            a(f"v_max3_f32 v{VA+h}, v{s}, v{s+1}, v{s+4}\nv_max3_f32 v{VB+h}, v{s+2}, v{s+3}, v{s+6}")
        for h in range(4):
            s = SR + 8 * h
            a(f"v_max_f32 v{VA+h}, v{VA+h}, v{s+5}\nv_max_f32 v{VB+h}, v{VB+h}, v{s+7}")
        def xred(op):
            a(f"v_permlane32_swap_b32 v{X}, v{X+1}\nv_permlane32_swap_b32 v{X+2}, v{X+3}")
            a(f"{op} v{X}, v{X}, v{X+1}\n{op} v{X+2}, v{X+2}, v{X+3}")
            a(f"v_permlane16_swap_b32 v{X}, v{X+2}\n{op} v{X}, v{X}, v{X+2}")
        def xbc():
            a(f"v_mov_b32 v{X+2}, v{X}\nv_permlane16_swap_b32 v{X}, v{X+2}")
            a(f"v_mov_b32 v{X+1}, v{X}\nv_mov_b32 v{X+3}, v{X+2}")
            a(f"v_permlane32_swap_b32 v{X}, v{X+1}\nv_permlane32_swap_b32 v{X+2}, v{X+3}")
        for h in range(4): a(f"v_max_f32 v{X+h}, v{VA+h}, v{VB+h}")
        xred("v_max_f32")
        a(f"v_mul_f32 v{X}, s31, v{X}")
        xbc()
        for h in range(4): a(f"v_fma_f32 v{VA+h}, v{VA+h}, s31, -v{X+h}\nv_fma_f32 v{VB+h}, v{VB+h}, s31, -v{X+h}")
        for h in range(4): a(f"v_exp_f32 v{VA+h}, v{VA+h}\nv_exp_f32 v{VB+h}, v{VB+h}")
        for h in range(4): a(f"v_add_f32 v{X+h}, v{VA+h}, v{VB+h}")
        xred("v_add_f32")
        a(f"v_rcp_f32 v{X}, v{X}")
        xbc()
        for h in range(4): a(f"v_mul_f32 v{VA+h}, v{VA+h}, v{X+h}\nv_mul_f32 v{VB+h}, v{VB+h}, v{X+h}")
        for h in range(4): a(f"v_cvt_pk_bf16_f32 v{VA+h}, v{VA+h}, v{VA+h}\nv_cvt_pk_bf16_f32 v{VB+h}, v{VB+h}, v{VB+h}")
        P = TM + 12
        for h in range(4):
            a(f"v_and_b32 v{P+4*h}, v{VA+h}, v{PM}\nv_and_b32 v{P+4*h+1}, v{VB+h}, v{PM+1}\nv_and_b32 v{P+4*h+2}, v{VA+h}, v{PM+2}\nv_and_b32 v{P+4*h+3}, v{VB+h}, v{PM+3}")
        for h in range(4):
            a(f"v_mfma_f32_16x16x32_bf16 {v(SR+8*h,4)}, {v(P+4*h,4)}, {v(AV+12*h+2*(rt-1),4)}, 0")
            a(f"v_mfma_f32_16x16x32_bf16 {v(SR+8*h+4,4)}, {v(P+4*h,4)}, {v(AV+48+2*(rt-1),4)}, 0")
        O = TM
        for h in range(4):
            cv(O + 2 * h, SR + 8 * h); cv(O + 2 * h + 1, SR + 8 * h + 2)
            a(f"s_mov_b32 s29, {20*4096*h}\nbuffer_store_dwordx2 {v(O+2*h,2)}, v12, s[4:7], s29 offen offset:{32*(rt-1)}")
        for h in range(1, 4):
            for r in range(4): a(f"v_cndmask_b32 v{SR+4+r}, v{SR+4+r}, v{SR+8*h+4+r}, s[{52+2*h}:{53+2*h}]")
        cv(O + 8, SR + 4); cv(O + 9, SR + 6)
        a(f"buffer_store_dwordx2 {v(O+8,2)}, v13, s[4:7], 0 offen offset:{32*(rt-1)}")
    stamp(a, 4); a("s_waitcnt vmcnt(0)" if PROF else ""); endp(a)

def map_qa(a, swg):
    stag = "nsq" not in OPTS
    a(f"""
    s_and_b32 s17, s{swg}, 7
    s_lshr_b32 s18, s{swg}, 3
    s_lshr_b32 s16, s17, 1
    s_lshl_b32 s16, s16, 2
    s_and_b32 s19, s18, 3
    s_add_u32 s16, s16, s19
    s_and_b32 s17, s17, 1
    s_lshl_b32 s17, s17, 2
    s_lshr_b32 s18, s18, 2
    s_add_u32 s17, s17, s18
    """)
    if stag: a("s_add_u32 s18, s18, s19\ns_and_b32 s18, s18, 3\ns_mul_i32 s18, s18, 5\ns_lshr_b32 s18, s18, 1")
    else: a("s_mov_b32 s18, 0")

def gen_qa(a, name):
    kernel_head(a, name)
    lane_wave(a, 1, 3)
    a(f"s_cmp_ge_u32 s2, 128\ns_cbranch_scc1 Lqa_end")
    map_qa(a, 2)
    body_qa(a, "Lqa")
    a.label("Lqa_end")
    a("s_endpgm")
    return kernel_desc(name, 256, 96)

def gen_k1(a, name):
    kernel_head(a, name)
    lane_wave(a, 1, 3)
    a(f"s_cmp_ge_u32 s2, 248\ns_cbranch_scc1 Lk1_end\ns_cmp_lt_u32 s2, 120\ns_cbranch_scc1 Lk1_g1\ns_sub_u32 s2, s2, 120")
    map_qa(a, 2)
    body_qa(a, "Lqa")
    a.label("Lk1_g1")
    map_g1(a, 2)
    body_g1(a, "Lg1")
    a.label("Lk1_end")
    a("s_endpgm")
    return kernel_desc(name, 256, 96)

def gen_empty(a, name):
    kernel_head(a, name)
    a("s_endpgm")
    return kernel_desc(name, 8, 16)

def gen_pf(a, name):
    kernel_head(a, name)
    bufs = dict(X=(0, 2621440), Q=(8, 640*3840), O=(16, 640*1280), B=(24, 2621440), U=(32, 2048*3072), V=(48, 1536*4096))
    sel = next(o for o in OPTS if o.startswith("pf"))[2:]
    a("s_cmp_ge_u32 s2, 256\ns_cbranch_scc1 Lpf_end\ns_lshl_b32 s3, s2, 12\nv_lshl_add_u32 v1, v0, 4, s3")
    r = 4
    for ch in sel:
        if ch == "C":
            a("s_getpc_b64 s[12:13]\nLpf_pc:\ns_add_u32 s12, s12, k0_kernel-Lpf_pc\ns_addc_u32 s13, s13, 0\nv_lshlrev_b32 v2, 7, v0")
            a("v_cmp_gt_u32 vcc, Lcode_end-k0_kernel, v2\ns_and_saveexec_b64 s[14:15], vcc\ns_cbranch_execz Lpf_nc\nglobal_load_dword v3, v2, s[12:13]\nLpf_nc:\ns_mov_b64 exec, s[14:15]")
            continue
        off, size = bufs[ch]
        a(f"s_load_dwordx2 s[4:5], s[0:1], {off}\ns_waitcnt lgkmcnt(0)\ns_mov_b32 s6, {size}\ns_mov_b32 s7, 0x20000")
        for i in range((size + (1 << 20) - 1) >> 20):
            a(f"s_mov_b32 s8, {i << 20}\nbuffer_load_dwordx4 v[{r}:{r+3}], v1, s[4:7], s8 offen"); r += 4
    a("s_waitcnt vmcnt(0)")
    a.label("Lpf_end")
    a("s_endpgm")
    return kernel_desc(name, 128, 32)

def gen_osc(a, name):
    kernel_head(a, name)
    o = next(o for o in OPTS if o.startswith("osc"))[3:].split("_")
    first = next(o for o in OPTS if o.startswith("t0"))[2:].split("_")
    a(f"s_cmp_ge_u32 s2, 1\ns_cbranch_scc1 Losc_end\ns_load_dwordx2 s[4:5], s[0:1], {KA['ws']}\ns_waitcnt lgkmcnt(0)")
    srd(a, 4, 4, 0x100000, TL_OFF)
    def red(dst, k, wg0, wg1, wave, slot, op):
        a(f"v_min_u32 v1, {wg1-wg0-1}, v0\nv_add_u32 v1, {wg0}, v1\nv_lshlrev_b32 v1, 9, v1\ns_mov_b32 s8, {k*0x40000 + wave*64 + slot*4}")
        a(f"buffer_load_dword v2, v1, s[4:7], s8 offen\ns_waitcnt vmcnt(0)\nv_lshlrev_b32 v3, 2, v0\nds_write_b32 v3, v2\ns_waitcnt lgkmcnt(0)\ns_barrier")
        a("v_and_b32 v3, 63, v0\nv_lshlrev_b32 v3, 2, v3")
        for i in range(8): a(f"ds_read_b32 v{4+i}, v3 offset:{256*i}")
        a("s_waitcnt lgkmcnt(0)\ns_barrier")
        for i in range(1, 8): a(f"v_{op}_u32 v4, v4, v{4+i}")
        a(f"v_readlane_b32 s{dst}, v4, 0")
        for i in range(1, 64): a(f"v_readlane_b32 s9, v4, {i}\ns_nop 0\ns_{op}_u32 s{dst}, s{dst}, s9")
    red(20, int(first[0]), 0, int(first[1]), 0, 0, "min")
    if len(o) > 1:
        red(21, int(o[0]), int(o[1]), int(o[2]), int(o[3]), int(o[4]), "min" if o[5] == "n" else "max")
        a("s_sub_u32 s21, s21, s20\ns_min_u32 s21, s21, 20000\ns_lshl_b32 s21, s21, 2")
    else: a("s_mov_b32 s21, 0")
    a("s_add_u32 s21, s21, 10000\nLosc_spin:\ns_memrealtime s[10:11]\ns_waitcnt lgkmcnt(0)\ns_sub_u32 s10, s10, s20\ns_cmp_lt_u32 s10, s21\ns_cbranch_scc1 Losc_spin")
    a.label("Losc_end")
    a("s_endpgm")
    return kernel_desc(name, 16, 32)

def build(variant="split"):
    global PROF, PROF2
    variant, *opts = variant.split("+")
    OPTS[:] = opts
    PROF2 = "prof2" in opts
    PROF = "prof" in opts or PROF2
    ref = open(f"cdna_kernels/{NAME}.s.ref").read().split("\n")
    head = [l for l in ref[:ref.index(next(x for x in ref if x.startswith("; Override")))]]
    a = Asm()
    a.raw("\n".join(head))
    if variant == "split":
        launches = [("k0_kernel", 306, 256, 16384), ("qa_kernel", 128, 512, QA_S * QA_SLOT), ("g1_kernel", 120, 512, G1_S * G1_SLOT), ("p2_kernel", 256, 384, P2_S * P2_SLOT)]
        gens = [gen_k0, gen_qa, gen_g1, gen_p2]
    else:
        launches = [("k0_kernel", 306, 256, 16384), ("k1_kernel", 248, 512, 147456), ("p2_kernel", 256, 384, P2_S * P2_SLOT)]
        gens = [gen_k0, gen_k1, gen_p2]
    for o in opts:
        if o[0] == "e" and o[1:].isdigit():
            n = int(o[1:])
            launches = launches + [("empty_kernel", 256, 256, 0)] * n
        if o[0] == "x" and o[1:].isdigit():
            launches = launches * int(o[1:])
        if o[0] == "d" and o[1:].isdigit():
            i = int(o[1:]); launches = launches[:i+1] + launches[i:]
        if o[0] == "f" and o[1:].isdigit():
            n = int(o[1:])
            launches = [("empty_kernel", 256, 256, 0)] * n + launches
    if any(o.startswith("pf") for o in opts): launches = [("pf_kernel", 256, 256, 0)] + launches
    if any(o.startswith("osc") for o in opts): launches = launches + [("osc_kernel", 1, 512, 4096)]
    byname = dict(osc_kernel=gen_osc, pf_kernel=gen_pf, k0_kernel=gen_k0, qa_kernel=gen_qa, g1_kernel=gen_g1, p2_kernel=gen_p2, k1_kernel=gen_k1, empty_kernel=gen_empty)
    for n, g, b, l in launches: a.raw(f"; @launch kernel={n} grid=({g},1,1) block=({b},1,1) lds={l}")
    a.raw('.amdgcn_target "amdgcn-amd-amdhsa--gfx950"')
    descs = []
    for n in dict.fromkeys(l[0] for l in launches):
        CUR[0] = KIDX.get(n, 0); descs.append(byname[n](a, n))
    a.raw("Lcode_end:")
    if "noload" in opts:
        a.lines = [(t, c) for t, c in a.lines if not (c is not None and c.kind == "vmem" and c.lds)]
    if "nocomp" in opts:
        a.lines = [(t, c) for t, c in a.lines if not (c is not None and (c.kind == "mfma" or c.op.startswith("ds_read")))]
    if "nomfma" in opts:
        a.lines = [(t, c) for t, c in a.lines if not (c is not None and c.kind == "mfma")]
    if "nods" in opts:
        a.lines = [(t, c) for t, c in a.lines if not (c is not None and c.op.startswith("ds_read"))]
    bad = a.check_branches()
    for b in bad: print("HAZARD across branch:", b, file=sys.stderr)
    assert not bad
    for d in descs: a.raw(d)
    return a.text()

if __name__ == "__main__":
    variant = sys.argv[1] if len(sys.argv) > 1 else "split"
    out = sys.argv[2] if len(sys.argv) > 2 else f"cdna_kernels/{NAME}.s"
    open(out, "w").write(build(variant))
```

```python
import sys, struct
from dsl import *

NAME = "gated_mix__sliding_local_dilated__mixer_token_mlp__prompt"
S_, D_, F_ = 2048, 640, 1536
KA = dict(x=0, wqkv=8, wo=16, w1=32, b1=40, w2=48, b2=56, gw=64, out=72, dbg=80, ws=88)
H_OFF, OT_OFF, UW_OFF, G_OFF, FL_OFF = 0, 0x280000, 0x500000, 0x800000, 0x810000
H_SZ, OT_SZ, UW_SZ, G_SZ, FL_SZ = 2621440, 2621440, 40 * 68 * 1024, 8192, 0x50000
F1, F2, F4, FZ = 0, 0x20000, 0x28000, 0x40000
RING = 147456; CTR = RING; LDS_SZ = RING + 64
LOG2E = 1.4426950408889634
OPTS = []; PROF = False; TL_OFF = 0x1000000
SC = "sc1"
def f2u(x): return "0x%08x" % struct.unpack("<I", struct.pack("<f", x))[0]
def v(n, k=1): return f"v{n}" if k == 1 else f"v[{n}:{n+k-1}]"
def opt(name, default=None):
    for o in OPTS:
        if o == name: return True
        if o.startswith(name + "="): return int(o.split("=")[1])
    return default

def srd(a, d, base, size, off=0):
    if off: a(f"s_add_u32 s{d}, s{base}, {off}\ns_addc_u32 s{d+1}, s{base+1}, 0")
    elif d != base: a(f"s_mov_b32 s{d}, s{base}\ns_mov_b32 s{d+1}, s{base+1}")
    a(f"s_mov_b32 s{d+2}, {size}\ns_mov_b32 s{d+3}, 0x20000")

def estamp(a, i):
    if PROF and opt("early"): a(f"s_memrealtime s[{70+2*i}:{71+2*i}]\ns_waitcnt lgkmcnt(0)")
def stamp(a, i, wait=False):
    if PROF and (i == 0 or not opt("early")): a(f"s_memrealtime s[{70+2*i}:{71+2*i}]" + ("\ns_waitcnt lgkmcnt(0)" if wait else ""))
def endp(a):
    if PROF:
        a(f"""
        s_waitcnt vmcnt(0)
        s_memrealtime s[84:85]
        s_getreg_b32 s86, hwreg(HW_REG_XCC_ID)
        s_waitcnt lgkmcnt(0)
        s_add_u32 s60, s20, {TL_OFF + 0x40000}
        s_addc_u32 s61, s21, 0
        s_mov_b32 s62, 0x40000
        s_mov_b32 s63, 0x20000
        s_mov_b64 exec, 1
        s_lshl_b32 s64, s2, 3
        s_add_u32 s64, s64, s69
        s_lshl_b32 s64, s64, 6
        v_mov_b32 v0, s64
        """)
        for i in range(8): a(f"v_mov_b32 v{4+i}, s{70+2*i}")
        a("v_mov_b32 v12, s86")
        a("buffer_store_dwordx4 v[4:7], v0, s[60:63], 0 offen\nbuffer_store_dwordx4 v[8:11], v0, s[60:63], 0 offen offset:16\nbuffer_store_dword v12, v0, s[60:63], 0 offen offset:32")
    a("s_endpgm")

def emit_step(a, M, prev_ids, R, extra, per_gap=2, head=2):
    q = list(prev_ids); fill = [("r", x) for x in R] + [("x", x) for x in extra]
    def put(n):
        for _ in range(n):
            if not fill: return
            k, x = fill.pop(0)
            if k == "r": a(x[0]); q.append(("n", x[1]))
            else: a(x)
    put(head)
    for text, need_ in M:
        idx = [i for i, t in enumerate(q) if t in need_]
        if idx:
            n = min(len(q) - 1 - idx[-1], 15)
            a(f"s_waitcnt lgkmcnt({n})"); del q[:len(q) - n]
        a(text); put(per_gap)
    put(len(fill))

def slot_adv(SLOT, S):
    return [f"s_add_u32 s40, s37, {SLOT}", f"s_cmp_ge_u32 s40, {SLOT*S}", "s_cselect_b32 s41, 0, s40", "s_sub_u32 s40, s41, s37", "s_mov_b32 s37, s41"]

UID = [0]
def uid(p): UID[0] += 1; return f"{p}{UID[0]}"

def issue_n(a, n, issue):
    L = uid("Li")
    a(f"s_add_u32 s32, s33, {n}")
    a.label(L); issue()
    a(f"s_add_u32 s33, s33, 1\ns_cmp_lt_u32 s33, s32\ns_cbranch_scc1 {L}")
def steady(a, upto, n, ahead, issue):
    L = uid("Ls")
    a.label(L)
    a(f"s_waitcnt vmcnt({n*(ahead-1)})\ns_barrier"); issue()
    a(f"s_add_u32 s33, s33, 1\ns_cmp_lt_u32 s33, {upto}\ns_cbranch_scc1 {L}")
def drain(a, n, ahead):
    for k in range(ahead - 1, -1, -1): a(f"s_waitcnt vmcnt({n*k})\ns_barrier")

def publish(a, ctr, nw, vaddr, lanes):
    L = uid("Lpub")
    a(f"""
    s_waitcnt vmcnt(0)
    s_mov_b64 exec, 1
    v_mov_b32 v2, {CTR + ctr}
    v_mov_b32 v3, 1
    ds_add_rtn_u32 v3, v2, v3
    s_waitcnt lgkmcnt(0)
    v_readfirstlane_b32 s22, v3
    s_mov_b64 exec, {(1 << lanes) - 1}
    s_cmp_lg_u32 s22, {nw - 1}
    s_cbranch_scc1 {L}
    v_mov_b32 v3, s48
    buffer_store_dword v3, v{vaddr}, s[44:47], 0 offen {SC}
    """)
    a.label(L); a("s_mov_b64 exec, -1")
def gate(a, vaddr, mask, two=False):
    L = uid("Lg"); slp = "s_sleep %d" % opt("slp", 8) if opt("slp", 8) else ""
    a(f"s_mov_b32 s49, 0\ns_mov_b32 exec_lo, {mask & 0xffffffff}\ns_mov_b32 exec_hi, {mask >> 32}")
    a.label(L)
    if two: a(f"buffer_load_dword v2, v{vaddr}, s[44:47], 0 offen {SC}\ns_mov_b32 s22, 8192\nbuffer_load_dword v3, v{vaddr}, s[44:47], s22 offen {SC}\ns_waitcnt vmcnt(0)\nv_xor_b32 v2, s48, v2\nv_xor_b32 v3, s48, v3\nv_or_b32 v2, v2, v3")
    else: a(f"buffer_load_dword v2, v{vaddr}, s[44:47], 0 offen {SC}\ns_waitcnt vmcnt(0)\nv_xor_b32 v2, s48, v2")
    a(f"v_cmp_ne_u32 vcc, 0, v2\ns_add_u32 s49, s49, 1\ns_cmp_eq_u64 vcc, 0\ns_cbranch_scc1 {L}d\n{slp}\ns_cmp_lt_u32 s49, 20000\ns_cbranch_scc1 {L}")
    a.label(L + "d"); a("s_mov_b64 exec, -1")
def tag_ready(a):
    a("s_waitcnt lgkmcnt(0)\ns_mul_i32 s48, s48, 1664525\ns_add_u32 s48, s48, 1013904223")
def arrive_issue(a, vd):
    a(f"s_mov_b64 exec, 1\nv_mov_b32 v{vd}, 1\nv_mov_b32 v{vd+1}, 0\nbuffer_atomic_add v{vd}, v{vd+1}, s[12:15], 0 offen sc0\ns_mov_b64 exec, -1")
def arrive_finish(a, vd):
    L = uid("Larr")
    a(f"v_readfirstlane_b32 s22, v{vd}\ns_cmp_lg_u32 s22, 255\ns_cbranch_scc1 {L}\ns_mov_b64 exec, 1\nv_mov_b32 v{vd}, s48\nv_mov_b32 v{vd+1}, {FZ}")
    a(f"buffer_store_dword v{vd}, v{vd+1}, s[44:47], 0 offen {SC}\ns_mov_b64 exec, -1")
    a.label(L)

def code_prefetch(a):
    L = uid("Lpc")
    a(f"s_getpc_b64 s[30:31]\n{L}:\ns_sub_u32 s30, s30, {L}-{NAME}_kernel\ns_subb_u32 s31, s31, 0\nv_lshlrev_b32 v2, 7, v1")
    for i in range(opt("ncode", 3)):
        a(f"v_min_u32 v3, Lcode_end-{NAME}_kernel-4, v2\nglobal_load_dword v{40+i}, v3, s[30:31]\nv_add_u32 v2, 8192, v2")

def ln_issue(a):
    a(f"""
    s_lshl_b32 s22, s19, 4
    s_lshl_b32 s23, s3, 2
    s_add_u32 s22, s22, s23
    v_lshrrev_b32 v2, 4, v1
    v_add_u32 v10, s22, v2
    v_and_b32 v11, 15, v1
    v_lshlrev_b32 v4, 4, v11
    v_mul_u32_u24 v5, 1280, v10
    v_add_u32 v5, v5, v4
    s_waitcnt lgkmcnt(0)
    """)
    srd(a, 4, 4, H_SZ); srd(a, 8, 8, 1280)
    for i in range(5): a(f"buffer_load_dwordx4 {v(16+4*i,4)}, v5, s[4:7], 0 offen offset:{256*i}")
    for i in range(5): a(f"buffer_load_dwordx4 {v(36+4*i,4)}, v4, s[8:11], 0 offen offset:{256*i}")
def ln_finish(a):
    X, GW, U = 16, 36, 56
    srd(a, 4, 20, H_SZ, H_OFF); srd(a, 8, 20, G_SZ, G_OFF)
    a("s_mov_b32 s30, 0x3f803f80\ns_mov_b32 s31, 0xffff0000"); estamp(a, 1); a("s_waitcnt vmcnt(5)"); estamp(a, 2)
    a(f"v_dot2_f32_bf16 v6, v{X}, s30, 0\nv_dot2_f32_bf16 v8, v{X+1}, s30, 0")
    for i in range(2, 20): a(f"v_dot2_f32_bf16 v{6+2*(i&1)}, v{X+i}, s30, v{6+2*(i&1)}")
    for i in range(20): a(f"v_lshlrev_b32 v{U+2*i}, 16, v{X+i}\nv_and_b32 v{U+1+2*i}, s31, v{X+i}")
    def red(*rs):
        for sh in (8, 4, 2, 1):
            for r in rs: a(f"v_add_f32_dpp v{r}, v{r}, v{r} row_ror:{sh} row_mask:0xf bank_mask:0xf")
    a("v_add_f32 v6, v6, v8"); red(6)
    a(f"v_mul_f32 v6, {f2u(1/640)}, v6\ns_waitcnt vmcnt(0)")
    a(f"v_dot2_f32_bf16 v9, v{X}, v{GW}, 0")
    for i in range(1, 20): a(f"v_dot2_f32_bf16 v9, v{X+i}, v{GW+i}, v9")
    for i in range(20): a(f"v_pk_add_f32 {v(U+2*i,2)}, {v(U+2*i,2)}, v[6:7] op_sel_hi:[1,0] neg_lo:[0,1] neg_hi:[0,1]")
    a(f"v_pk_mul_f32 v[12:13], {v(U,2)}, {v(U,2)}\nv_pk_mul_f32 v[14:15], {v(U+2,2)}, {v(U+2,2)}")
    for i in range(2, 20): a(f"v_pk_fma_f32 {v(12+2*(i&1),2)}, {v(U+2*i,2)}, {v(U+2*i,2)}, {v(12+2*(i&1),2)}")
    a("v_pk_add_f32 v[12:13], v[12:13], v[14:15]\nv_add_f32 v12, v12, v13")
    red(12, 9)
    a(f"v_mov_b32 v8, {f2u(1e-5)}\nv_fmac_f32 v8, {f2u(1/640)}, v12\nv_rsq_f32 v12, v8\nv_mul_f32 v9, {f2u(-LOG2E)}, v9\nv_exp_f32 v9, v9")
    for j in range(5):
        for i in range(4*j, 4*j+4): a(f"v_pk_mul_f32 {v(U+2*i,2)}, {v(U+2*i,2)}, v[12:13] op_sel_hi:[1,0]")
        for i in range(4*j, 4*j+4): a(f"v_cvt_pk_bf16_f32 v{X+i}, v{U+2*i}, v{U+1+2*i}")
        a(f"buffer_store_dwordx4 {v(X+4*j,4)}, v5, s[4:7], 0 offen offset:{256*j} {SC}")
    a(f"""
    v_add_f32 v9, 1.0, v9
    v_rcp_f32 v9, v9
    v_lshlrev_b32 v10, 2, v10
    s_mov_b32 exec_lo, 0x00010001
    s_mov_b32 exec_hi, 0x00010001
    buffer_store_dword v9, v10, s[8:11], 0 offen {SC}
    s_mov_b64 exec, -1
    s_lshl_b32 s22, s19, 7
    v_lshl_add_u32 v10, v1, 14, s22
    """)
    if True: a("s_barrier")
    estamp(a, 3); tag_ready(a)
    if opt("early"): a("s_waitcnt vmcnt(0)"); estamp(a, 4)
    publish(a, 0, 6, 10, 8)
    if opt("early"): estamp(a, 5); a("s_waitcnt vmcnt(0)"); estamp(a, 6)

G1_S, G1_SLOT = 6, 24576
def w1_sweep(a):
    a(f"s_lshl_b32 s23, s53, 1\ns_add_u32 s23, s23, s3\ns_lshl_b32 s23, s23, 6\nv_add_u32 v2, s23, v1\ns_lshr_b32 s23, s52, 1\ns_mul_i32 s23, s23, 768\ns_mov_b32 s26, 43691")
    for n in range(3):
        a(f"v_add_u32 v3, {4096*n}, v2\nv_mul_u32_u24 v4, s26, v3\nv_lshrrev_b32 v4, 18, v4\nv_mul_u32_u24 v5, {3072-768}, v4\nv_lshl_add_u32 v5, v3, 7, v5\nv_add_u32 v{16+n}, s23, v5")
    srd(a, 4, 4, S_ * 3072)
    a("s_barrier"); estamp(a, 1)
    pre = opt("pre", 1)
    for n in range(3):
        if n == pre: a("s_barrier")
        if not opt("nopfw1"): a(f"buffer_load_dword v{20+n}, v{16+n}, s[4:7], 0 offen")
    if pre == 3: a("s_barrier")
    estamp(a, 2)
    if opt("pfwait"): a("s_waitcnt vmcnt(0)")
    estamp(a, 3)
def g1_loader_w(a):
    a(f"""
    v_lshrrev_b32 v2, 4, v1
    s_lshl_b32 s23, s3, 2
    v_add_u32 v2, s23, v2
    v_lshlrev_b32 v4, 1, v2
    v_and_b32 v3, 15, v1
    v_xor_b32 v3, v3, v4
    v_lshlrev_b32 v3, 4, v3
    v_mul_u32_u24 v2, 3072, v2
    s_lshl_b32 s26, s16, 8
    v_add3_u32 v8, v2, v3, s26
    """)
    for i in range(1, 8): a(f"v_add_u32 v{8+i}, {8*3072*i}, v8")
    a(f"""
    s_mov_b32 s34, s18
    s_lshl_b32 s37, s3, 10
    s_add_u32 s38, s37, {G1_SLOT*G1_S}
    s_mov_b32 s33, 0
    """)
    def issue():
        a(f"s_mul_i32 s40, s34, {64*3072}")
        for i in range(8): a(f"s_add_u32 m0, s37, {2048*i}\nbuffer_load_dwordx4 v{8+i}, s[4:7], s40 offen lds")
        a(f"s_add_u32 s37, s37, {G1_SLOT}\ns_cmp_ge_u32 s37, s38\ns_cselect_b32 s42, {G1_SLOT*G1_S}, 0\ns_sub_u32 s37, s37, s42\ns_add_u32 s34, s34, 1\ns_and_b32 s34, s34, 31")
    w1_sweep(a)
    issue_n(a, G1_S - 2, issue)
    if opt("early"): estamp(a, 4); a("s_waitcnt vmcnt(0)"); estamp(a, 5)
    tag_ready(a); stamp(a, 1)
    steady(a, 32, 8, G1_S - 2, issue); drain(a, 8, G1_S - 2)
    stamp(a, 2)
def g1_loader_h(a):
    a(f"""
    v_lshrrev_b32 v2, 3, v1
    v_and_b32 v3, 7, v1
    v_and_b32 v4, 6, v2
    v_xor_b32 v3, v3, v4
    v_lshlrev_b32 v3, 4, v3
    s_sub_u32 s22, s3, 2
    s_lshl_b32 s23, s22, 3
    v_add_u32 v2, s23, v2
    v_mul_u32_u24 v2, 1280, v2
    s_lshl_b32 s26, s17, 7
    v_add3_u32 v8, v2, v3, s26
    """)
    for i in range(1, 4): a(f"v_add_u32 v{8+i}, {16*1280*i}, v8")
    a(f"""
    s_lshl_b32 s23, s52, 14
    v_lshl_add_u32 v12, v1, 7, s23
    s_mov_b32 s34, s18
    s_lshl_b32 s37, s22, 10
    s_add_u32 s37, s37, 16384
    s_add_u32 s38, s37, {G1_SLOT*G1_S}
    s_mov_b32 s33, 0
    """)
    srd(a, 4, 20, H_SZ, H_OFF)
    def issue():
        a(f"s_mul_i32 s40, s34, {64*1280}")
        for i in range(4): a(f"s_add_u32 m0, s37, {2048*i}\nbuffer_load_dwordx4 v{8+i}, s[4:7], s40 offen {SC} lds")
        a(f"s_add_u32 s37, s37, {G1_SLOT}\ns_cmp_ge_u32 s37, s38\ns_cselect_b32 s42, {G1_SLOT*G1_S}, 0\ns_sub_u32 s37, s37, s42\ns_add_u32 s34, s34, 1\ns_and_b32 s34, s34, 31")
    estamp(a, 1)
    if opt("early"): a("s_waitcnt vmcnt(0)"); estamp(a, 2)
    gate(a, 12, (1 << 64) - 1, two=True)
    stamp(a, 1); estamp(a, 3)
    if opt("early"): a("s_add_u32 s78, s70, s49\ns_mov_b32 s79, 0")
    issue_n(a, G1_S - 2, issue)
    steady(a, 32, 4, G1_S - 2, issue); drain(a, 4, G1_S - 2)
    stamp(a, 2)
def g1_consumer(a):
    L = "Lg1"
    ACC, T = 16, 48
    a(f"""
    s_load_dwordx2 s[24:25], s[0:1], {KA['b1']}
    s_load_dwordx2 s[12:13], s[0:1], {KA['dbg']}
    s_and_b32 s22, s3, 1
    s_lshr_b32 s23, s3, 1
    s_lshl_b32 s26, s16, 8
    s_lshl_b32 s27, s22, 7
    s_add_u32 s26, s26, s27
    v_lshrrev_b32 v2, 4, v1
    v_lshl_add_u32 v3, v2, 3, s26
    s_waitcnt lgkmcnt(0)
    """)
    srd(a, 24, 24, 3072); srd(a, 8, 20, UW_SZ, UW_OFF); srd(a, 12, 12, 256)
    for ft in range(4): a(f"buffer_load_dwordx2 {v(T+2*ft,2)}, v3, s[24:27], 0 offen offset:{32*ft}")
    a(f"""
    s_setprio 0
    v_lshrrev_b32 v5, 2, v1
    v_and_b32 v6, 3, v1
    v_lshlrev_b32 v6, 3, v6
    v_and_b32 v7, 7, v5
    v_lshl_add_u32 v4, v5, 8, v6
    s_lshl_b32 s27, s22, 2
    """)
    for ft in range(4): a(f"s_add_u32 s28, s27, {ft}\nv_xor_b32 v2, s28, v7\nv_lshl_add_u32 v{8+ft}, v2, 5, v4")
    a(f"v_lshrrev_b32 v7, 1, v5\nv_and_b32 v7, 3, v7\nv_lshl_add_u32 v4, v5, 7, v6\nv_add_u32 v4, 16384, v4\ns_lshl_b32 s27, s23, 1")
    for dt in range(2): a(f"s_add_u32 s28, s27, {dt}\nv_xor_b32 v2, s28, v7\nv_lshl_add_u32 v{12+dt}, v2, 5, v4")
    a(f"""
    s_lshl_b32 s28, s17, 2
    s_add_u32 s28, s28, s27
    s_mul_i32 s28, s28, 68
    s_lshl_b32 s29, s16, 2
    s_add_u32 s28, s28, s29
    s_lshl_b32 s29, s22, 1
    s_add_u32 s28, s28, s29
    s_lshl_b32 s28, s28, 10
    v_lshl_add_u32 v14, v1, 4, s28
    s_lshl_b32 s28, s17, 4
    s_add_u32 s28, s28, s16
    s_lshl_b32 s28, s28, 7
    s_add_u32 s28, s28, {F4}
    v_mul_u32_u24 v15, {160*128}, v1
    v_add_u32 v15, s28, v15
    s_mov_b32 s31, 0xffff0000
    s_waitcnt vmcnt(0)
    """)
    for ft in range(4):
        for dt in range(2):
            b = ACC + 8 * ft + 4 * dt
            a(f"v_lshlrev_b32 v{b}, 16, v{T+2*ft}\nv_and_b32 v{b+1}, s31, v{T+2*ft}\nv_lshlrev_b32 v{b+2}, 16, v{T+2*ft+1}\nv_and_b32 v{b+3}, s31, v{T+2*ft+1}")
    SETS = (48, 96)
    def reads(st):
        r = []
        for kk in range(2):
            b = SETS[st] + 24 * kk
            for dt in range(2): r += [(f"ds_read_b64_tr_b16 {v(b+4*dt+2*h,2)}, v{12+dt} offset:{kk*4096+2048*h}", (kk, "b", dt, h)) for h in range(2)]
            for ft in range(4): r += [(f"ds_read_b64_tr_b16 {v(b+8+4*ft+2*h,2)}, v{8+ft} offset:{kk*8192+4096*h}", (kk, "a", ft, h)) for h in range(2)]
        return r
    def mf(st):
        return [(f"v_mfma_f32_16x16x32_bf16 {v(ACC+8*ft+4*dt,4)}, {v(SETS[st]+24*kk+8+4*ft,4)}, {v(SETS[st]+24*kk+4*dt,4)}, {v(ACC+8*ft+4*dt,4)}", {(kk, "a", ft, 1)})
                for kk in range(2) for ft in range(4) for dt in range(2)]
    ids = [x[1] for x in reads(0)]
    adv = slot_adv(G1_SLOT, G1_S) + [f"v_add_u32 v{8+i}, s40, v{8+i}" for i in range(6)]
    a("s_mov_b32 s33, 0\ns_mov_b32 s37, 0\ns_barrier"); stamp(a, 2, True)
    emit_step(a, [], [], reads(0), adv)
    a.label(f"{L}_c", 3)
    a("s_barrier")
    emit_step(a, mf(0), ids, reads(1), adv + ["s_add_u32 s33, s33, 2", "s_cmp_ge_u32 s33, 32"])
    a(f"s_cbranch_scc1 {L}_clast\ns_barrier")
    emit_step(a, mf(1), ids, reads(0), adv)
    a(f"s_branch {L}_c")
    a.label(f"{L}_clast")
    a("s_waitcnt lgkmcnt(0)\ns_barrier"); stamp(a, 3, True)
    emit_step(a, mf(1), [], [], [])
    La = uid("Lna")
    a(f"s_cmp_lg_u32 s3, 0\ns_cbranch_scc1 {La}"); arrive_issue(a, 144); a.label(La)
    c0 = -2 * 0.7978845608028654 * LOG2E; c1 = c0 * 0.044715
    a(f"v_mov_b32 v2, {f2u(c0)}\nv_mov_b32 v4, {f2u(c1)}\nv_mov_b32 v6, 1.0\ns_nop 4")
    for p in range(2):
        for dt in range(2):
            o = 72 + 4 * (2 * p + dt)
            prs = [ACC + 8 * (2 * p + h) + 4 * dt + 2 * q for h in range(2) for q in range(2)]
            for i, b in enumerate(prs): a(f"v_pk_mul_f32 {v(T+2*i,2)}, {v(b,2)}, {v(b,2)}")
            for i, b in enumerate(prs): a(f"v_pk_fma_f32 {v(T+2*i,2)}, {v(T+2*i,2)}, v[4:5], v[2:3] op_sel_hi:[1,0,0]")
            for i, b in enumerate(prs): a(f"v_pk_mul_f32 {v(T+2*i,2)}, {v(T+2*i,2)}, {v(b,2)}")
            for i in range(8): a(f"v_exp_f32 v{T+i}, v{T+i}")
            for i, b in enumerate(prs): a(f"v_pk_add_f32 {v(T+2*i,2)}, {v(T+2*i,2)}, v[6:7] op_sel_hi:[1,0]")
            for i in range(8): a(f"v_rcp_f32 v{T+i}, v{T+i}")
            for i, b in enumerate(prs): a(f"v_pk_mul_f32 {v(T+2*i,2)}, {v(T+2*i,2)}, {v(b,2)}")
            for i in range(4): a(f"v_cvt_pk_bf16_f32 v{o+i}, v{T+2*i}, v{T+2*i+1}")
            if p == 0 and dt == 0: a("s_setprio 2")
            a(f"s_mov_b32 s29, {dt*68*1024}\nbuffer_store_dwordx4 {v(o,4)}, v14, s[8:11], s29 offen offset:{1024*p} {SC}")
    publish(a, 4, 4, 15, 4)
    La = uid("Lna")
    a(f"s_cmp_lg_u32 s3, 0\ns_cbranch_scc1 {La}"); arrive_finish(a, 144); a.label(La)
    stamp(a, 4, True)

def wo_task(a):
    L = uid("Lwo")
    a(f"""
    v_lshrrev_b32 v2, 3, v1
    v_and_b32 v3, 7, v1
    v_and_b32 v4, 6, v2
    v_xor_b32 v3, v3, v4
    v_lshlrev_b32 v14, 4, v3
    v_mul_u32_u24 v15, 1280, v2
    v_add_u32 v15, v15, v14
    v_lshrrev_b32 v3, 2, v2
    v_lshl_add_u32 v3, v3, 4, v2
    v_add_u32 v3, 16, v3
    v_mul_u32_u24 v3, 1280, v3
    v_add_u32 v14, v14, v3
    s_sub_u32 s22, s3, 2
    s_lshl_b32 s23, s22, 12
    s_add_u32 s23, s23, 16384
    v_lshrrev_b32 v5, 2, v1
    v_lshrrev_b32 v6, 1, v5
    v_and_b32 v6, 3, v6
    v_lshlrev_b32 v5, 7, v5
    v_and_b32 v7, 3, v1
    v_lshlrev_b32 v7, 3, v7
    v_add3_u32 v5, v5, v7, s23
    """)
    for t in range(4): a(f"v_xor_b32 v7, {t}, v6\nv_lshl_add_u32 v{8+t}, v7, 5, v5")
    a(f"""
    v_lshlrev_b32 v12, 4, v1
    s_lshl_b32 s26, s19, 7
    v_lshl_add_u32 v13, v1, 14, s26
    s_lshl_b32 s27, s19, 1
    s_add_u32 s27, s27, s22
    s_mul_i32 s26, s27, 6554
    s_lshr_b32 s26, s26, 16
    s_mul_i32 s28, s26, 10
    s_sub_u32 s27, s27, s28
    """)
    srd(a, 4, 4, 640 * 1280); srd(a, 8, 20, UW_SZ, UW_OFF)
    a(f"s_barrier\ns_cmp_ge_u32 s26, 20\ns_cbranch_scc1 {L}n")
    for half in range(2):
        a(f"""
        s_lshl_b32 s28, s26, 1
        s_add_u32 s28, s28, {half}
        s_mul_i32 s29, s28, 52
        s_lshr_b32 s29, s29, 8
        s_mul_i32 s30, s29, 5
        s_sub_u32 s28, s28, s30
        s_mul_i32 s29, s29, 80
        s_mul_i32 s30, s28, 20
        s_cmp_eq_u32 s28, 4
        s_cselect_b64 vcc, -1, 0
        s_cselect_b32 s30, 0, s30
        s_cselect_b32 s31, 40, 8
        s_mul_i32 s31, s31, 1280
        s_add_u32 s29, s29, s30
        s_mul_i32 s28, s29, 1280
        s_lshl_b32 s29, s27, 7
        s_add_u32 s28, s28, s29
        v_cndmask_b32 v2, v15, v14, vcc
        """)
        for i in range(2): a(f"s_add_u32 m0, s23, {2048*half+1024*i}\nbuffer_load_dwordx4 v2, s[4:7], s28 offen lds\ns_add_u32 s28, s28, s31")
    a(f"s_lshl_b32 s28, s27, 2\ns_mul_i32 s28, s28, 68\ns_add_u32 s28, s28, s26\ns_add_u32 s28, s28, 48\ns_lshl_b32 s28, s28, 10")
    tag_ready(a)
    a("s_waitcnt vmcnt(0)")
    for t in range(4): a(f"ds_read_b64_tr_b16 {v(16+4*t,2)}, v{8+t}\nds_read_b64_tr_b16 {v(18+4*t,2)}, v{8+t} offset:2048")
    for t in range(4): a(f"s_waitcnt lgkmcnt({6-2*t})\nbuffer_store_dwordx4 {v(16+4*t,4)}, v12, s[8:11], s28 offen {SC}\ns_add_u32 s28, s28, {68*1024}")
    a(f"s_branch {L}d"); a.label(L + "n"); tag_ready(a); a.label(L + "d")
    a("s_barrier")
    publish(a, 0, 6, 13, 8)

QA_S, QA_SLOT, QA_W = 3, 49152, 18432
def qa_loader(a):
    a(f"v_lshrrev_b32 v2, 3, v1\ns_lshl_b32 s23, s3, 3\nv_add_u32 v2, s23, v2\ns_lshl_b32 s26, s16, 7\ns_sub_u32 s26, s26, 16\nv_and_b32 v3, 7, v1")
    for i in range(6):
        a(f"v_add_u32 v4, {24*i}, v2\nv_lshrrev_b32 v5, 1, v4\nv_and_b32 v5, 7, v5\nv_xor_b32 v5, v5, v3\nv_add_u32 v4, s26, v4\nv_max_i32 v4, 0, v4\nv_mul_u32_u24 v4, 1280, v4\nv_lshl_add_u32 v{8+i}, v5, 4, v4")
    a(f"s_mul_i32 s23, s3, 320\ns_mul_i32 s26, s17, 160\nv_add_u32 v2, s23, v1")
    for i in range(5):
        a(f"""
        v_add_u32 v3, {64*i}, v2
        v_mul_u32_u24 v4, 2185, v3
        v_lshrrev_b32 v4, 16, v4
        v_mul_u32_u24 v5, 30, v4
        v_sub_u32 v3, v3, v5
        v_mul_u32_u24 v5, 26, v3
        v_lshrrev_b32 v5, 8, v5
        v_mul_u32_u24 v5, {1280-160}, v5
        v_lshl_add_u32 v3, v3, 4, v5
        v_and_b32 v5, 12, v4
        v_lshlrev_b32 v5, 1, v5
        v_lshrrev_b32 v6, 4, v4
        v_lshl_add_u32 v5, v6, 2, v5
        v_and_b32 v4, 3, v4
        v_add_u32 v4, v4, v5
        v_mul_u32_u24 v4, 3840, v4
        v_add3_u32 v{16+i}, v4, v3, s26
        """)
    a(f"s_mov_b32 s34, s18\ns_mov_b32 s37, 0\ns_lshl_b32 s38, s3, 10\ns_mul_i32 s39, s3, 5120\ns_add_u32 s39, s39, {QA_W}\ns_mov_b32 s33, 0")
    srd(a, 4, 4, H_SZ); srd(a, 8, 8, 640 * 3840)
    def issue():
        a(f"s_lshl_b32 s40, s34, 7\ns_mul_i32 s41, s34, {64*3840}\ns_add_u32 s42, s37, s38\ns_add_u32 s43, s37, s39\ns_add_u32 s36, s41, {32*3840}")
        for i in range(3): a(f"s_add_u32 m0, s42, {3072*i}\nbuffer_load_dwordx4 v{8+i}, s[4:7], s40 offen lds")
        for i in range(5): a(f"s_add_u32 m0, s43, {1024*i}\nbuffer_load_dwordx4 v{16+i}, s[8:11], s41 offen lds")
        for i in range(3, 6): a(f"s_add_u32 m0, s42, {3072*i}\nbuffer_load_dwordx4 v{8+i}, s[4:7], s40 offen lds")
        for i in range(5): a(f"s_add_u32 m0, s43, {15360+1024*i}\nbuffer_load_dwordx4 v{16+i}, s[8:11], s36 offen lds")
        a(f"s_add_u32 s37, s37, {QA_SLOT}\ns_cmp_ge_u32 s37, {QA_SLOT*QA_S}\ns_cselect_b32 s37, 0, s37\ns_add_u32 s34, s34, 1\ns_cmp_ge_u32 s34, 10\ns_cselect_b32 s34, 0, s34")
    issue_n(a, QA_S - 1, issue)
    tag_ready(a); stamp(a, 1)
    steady(a, 10, 16, QA_S - 1, issue); drain(a, 16, QA_S - 1)
    stamp(a, 2)
def qa_idle(a):
    code_prefetch(a)
    a(f"""
    s_load_dwordx2 s[12:13], s[0:1], {KA['w2']}
    v_lshrrev_b32 v2, 3, v1
    s_lshl_b32 s22, s53, 3
    v_add_u32 v2, s22, v2
    v_lshlrev_b32 v2, 12, v2
    v_and_b32 v3, 7, v1
    v_lshl_add_u32 v2, v3, 7, v2
    s_lshr_b32 s22, s52, 1
    s_lshl_b32 s22, s22, 10
    """)
    tag_ready(a)
    srd(a, 12, 12, F_ * 4096)
    w0 = opt("w2at", 3)
    for i in range(10):
        a("s_barrier")
        if w0 <= i < w0 + 6 and not opt("nopfw2"): a(f"buffer_load_dword v30, v2, s[12:15], s22 offen\ns_add_u32 s22, s22, {256*4096}")
def qa_consumer(a):
    L = "Lqa"
    AQ, AK, AV = 16, 56, 116
    XF, WB = 176, 200
    NB, DD = 5, 3
    a(f"""
    s_load_dwordx2 s[12:13], s[0:1], {KA['dbg']}
    v_and_b32 v2, 15, v1
    v_lshrrev_b32 v3, 4, v1
    v_lshrrev_b32 v4, 1, v2
    v_xor_b32 v4, v4, v3
    v_lshlrev_b32 v4, 4, v4
    v_lshl_add_u32 v4, v2, 7, v4
    s_lshl_b32 s23, s3, 12
    v_add_u32 v8, s23, v4
    v_xor_b32 v9, 64, v8
    v_lshrrev_b32 v5, 2, v1
    v_mul_u32_u24 v5, 480, v5
    v_add_u32 v5, {QA_W}, v5
    v_and_b32 v6, 3, v1
    v_lshl_add_u32 v10, v6, 3, v5
    v_mul_u32_u24 v6, 40, v6
    v_add3_u32 v11, v6, v5, 32
    """)
    for i in range(160): a(f"v_mov_b32 v{16+i}, 0")
    M0, M1, MF, PM = 220, 224, 228, 232
    TM = 236
    a(f"v_lshlrev_b32 v4, 2, v3\nv_sub_u32 v4, v2, v4\nv_mov_b32 v5, {f2u(-1e30)}")
    for r in range(4):
        a(f"""
        v_subrev_u32 v6, {r}, v4
        v_and_b32 v6, 0x80000001, v6
        v_cmp_eq_u32 vcc, 0, v6
        v_cndmask_b32_e64 v{M1+r}, v5, 0, vcc
        v_cndmask_b32_e64 v{TM+4+r}, 0, -1, vcc
        v_cmp_eq_u32 vcc, 0x80000000, v6
        v_cndmask_b32_e64 v{M0+r}, v5, 0, vcc
        v_cndmask_b32_e64 v{TM+r}, 0, -1, vcc
        """)
    a("s_mov_b32 s30, 0xffff")
    for i in range(4): a(f"v_bfi_b32 v{PM+i}, s30, v{TM+2*i}, v{TM+2*i+1}")
    a(f"s_or_b32 s23, s16, s3\ns_cmp_eq_u32 s23, 0\ns_cselect_b64 vcc, -1, 0")
    for r in range(4): a(f"v_cndmask_b32 v{MF+r}, v{M0+r}, v5, vcc")
    GM, CM = 90, 52
    for h in range(4): a(f"v_cmp_eq_u32 s[{GM+2*h}:{GM+1+2*h}], {h}, v3")
    a(f"""
    s_lshl_b32 s23, s16, 3
    s_lshl_b32 s26, s3, 1
    s_add_u32 s23, s23, s26
    s_mul_i32 s23, s23, 40
    s_mul_i32 s26, s17, 5
    s_add_u32 s23, s23, s26
    s_lshl_b32 s23, s23, 9
    v_lshl_add_u32 v12, v1, 3, s23
    s_lshl_b32 s23, s16, 4
    s_add_u32 s23, s23, s17
    s_lshl_b32 s23, s23, 7
    s_add_u32 s23, s23, {F2}
    v_lshl_add_u32 v14, v1, 10, s23
    s_mov_b32 s31, {f2u(20 ** -0.5 * LOG2E)}
    s_mov_b32 s33, 0
    s_mov_b32 s37, 0
    s_waitcnt lgkmcnt(0)
    """)
    srd(a, 4, 20, OT_SZ, OT_OFF); srd(a, 12, 12, 256); tag_ready(a)
    def xread(kk): return [f"ds_read_b128 {v(XF+12*kk+4*rt,4)}, v{8+kk} offset:{2048*rt}" for rt in range(3)]
    def wread(u):
        kk, c = divmod(u, 15); p, tt = divmod(c, 5)
        b = WB + 4 * (u % NB); ad = 11 if tt == 4 else 10
        off = kk * 15360 + p * 160 + (0 if tt == 4 else 40 * tt)
        return [f"ds_read_b64_tr_b16 {v(b,2)}, v{ad} offset:{off}", f"ds_read_b64_tr_b16 {v(b+2,2)}, v{ad} offset:{off+7680}"]
    def mf(u):
        kk, c = divmod(u, 15); p, tt = divmod(c, 5)
        w = v(WB + 4 * (u % NB), 4); r = []
        for rt in range(3):
            x = v(XF + 12 * kk + 4 * rt, 4)
            if p == 0:
                if rt == 0: continue
                d = v(AQ + 20 * (rt - 1) + 4 * tt, 4); r.append(f"v_mfma_f32_16x16x32_bf16 {d}, {w}, {x}, {d}")
            elif p == 1:
                d = v(AK + 20 * rt + 4 * tt, 4); r.append(f"v_mfma_f32_16x16x32_bf16 {d}, {w}, {x}, {d}")
            else:
                d = v(AV + 12 * tt + 4 * rt, 4); r.append(f"v_mfma_f32_16x16x32_bf16 {d}, {x}, {w}, {d}")
        return r
    stamp(a, 1, True); a("s_barrier"); stamp(a, 2, True)
    for t in xread(0): a(t)
    for u in range(DD):
        for t in wread(u): a(t)
    a(f"s_waitcnt lgkmcnt({2*DD-2})")
    a.label(f"{L}_c", 3)
    q = []
    for u in range(1, DD): q += [u, u]
    misc = slot_adv(QA_SLOT, QA_S) + ["s_add_u32 s33, s33, 1", "s_cmp_ge_u32 s33, 10"]
    for u in range(30):
        nx = u + DD; fill = []
        if nx < 30:
            if nx == 15: fill += [(t, 15) for t in xread(1)]
            fill += [(t, nx) for t in wread(nx)]
        else:
            if nx == 30: fill += [(t, 30) for t in xread(0)]
            fill += [(t, nx) for t in wread(nx - 30)]
        ms = mf(u)
        if nx == 30:
            a(f"s_waitcnt lgkmcnt(0)\ns_barrier\ns_cbranch_scc1 {L}_clast"); q = []
        per = -(-len(fill) // len(ms))
        for i, m in enumerate(ms):
            a(m)
            for t, tag in fill[i*per:(i+1)*per]: a(t); q.append(tag)
            if len(ms) == 3 and i == 2 and misc and u < 20: a(misc.pop(0))
        if nx == 29:
            for i in range(4): a(f"v_add_u32 v{8+i}, s40, v{8+i}")
        if any(t <= u + 1 for t in q):
            last = max(i for i, t in enumerate(q) if t <= u + 1)
            q = q[last + 1:]
            a(f"s_waitcnt lgkmcnt({len(q)})")
    assert not misc and len(q) == 2 * DD - 2
    a(f"s_branch {L}_c")
    a.label(f"{L}_clast"); stamp(a, 3, True)
    for u in range(30 - DD, 30):
        for m in mf(u): a(m)
    La = uid("Lna")
    a(f"s_cmp_lg_u32 s3, 0\ns_cbranch_scc1 {La}"); arrive_issue(a, 6); a.label(La)
    SR = 176
    P = 208
    PR = [208, 212, 216, 248]
    cv = lambda d, s0: a(f"v_cvt_pk_bf16_f32 v{d}, v{s0}, v{s0+1}")
    for rt in range(3):
        t4 = AK + 20 * rt + 16
        for h in range(4):
            b = AK + 20 * rt + 4 * h
            cv(b, b); cv(b + 1, b + 2); cv(b + 2, t4); cv(b + 3, t4 + 2)
    for rt in range(2):
        t4 = AQ + 20 * rt + 16
        cv(t4, t4); cv(t4 + 1, t4 + 2)
        for h in range(4):
            b = AQ + 20 * rt + 4 * h
            cv(b, b); cv(b + 1, b + 2)
            a(f"v_cndmask_b32 v{b+2}, 0, v{t4}, s[{GM+2*h}:{GM+1+2*h}]\nv_cndmask_b32 v{b+3}, 0, v{t4+1}, s[{GM+2*h}:{GM+1+2*h}]")
    vdone = False
    for rt in (1, 2):
        for h in range(4):
            qf = v(AQ + 20 * (rt - 1) + 4 * h, 4)
            a(f"v_mfma_f32_16x16x32_bf16 {v(SR+8*h,4)}, {v(AK+20*(rt-1)+4*h,4)}, {qf}, {v(MF if rt == 1 else M0,4)}")
            a(f"v_mfma_f32_16x16x32_bf16 {v(SR+8*h+4,4)}, {v(AK+20*rt+4*h,4)}, {qf}, {v(M1,4)}")
        if not vdone:
            for tt in range(5):
                b = AV + 12 * tt
                for i in range(6): cv(b + i, b + 2 * i)
            vdone = True
        VA, VB, X = TM, TM + 4, TM + 8
        for h in range(4):
            s = SR + 8 * h
            a(f"v_max3_f32 v{VA+h}, v{s}, v{s+1}, v{s+4}\nv_max3_f32 v{VB+h}, v{s+2}, v{s+3}, v{s+6}")
        for h in range(4):
            s = SR + 8 * h
            a(f"v_max_f32 v{VA+h}, v{VA+h}, v{s+5}\nv_max_f32 v{VB+h}, v{VB+h}, v{s+7}")
        def xred(op):
            a(f"v_permlane32_swap_b32 v{X}, v{X+1}\nv_permlane32_swap_b32 v{X+2}, v{X+3}")
            a(f"{op} v{X}, v{X}, v{X+1}\n{op} v{X+2}, v{X+2}, v{X+3}")
            a(f"v_permlane16_swap_b32 v{X}, v{X+2}\n{op} v{X}, v{X}, v{X+2}")
        def xbc():
            a(f"v_mov_b32 v{X+2}, v{X}\nv_permlane16_swap_b32 v{X}, v{X+2}")
            a(f"v_mov_b32 v{X+1}, v{X}\nv_mov_b32 v{X+3}, v{X+2}")
            a(f"v_permlane32_swap_b32 v{X}, v{X+1}\nv_permlane32_swap_b32 v{X+2}, v{X+3}")
        for h in range(4): a(f"v_max_f32 v{X+h}, v{VA+h}, v{VB+h}")
        xred("v_max_f32")
        a(f"v_mul_f32 v{X}, s31, v{X}")
        xbc()
        for h in range(4): a(f"v_fma_f32 v{VA+h}, v{VA+h}, s31, -v{X+h}\nv_fma_f32 v{VB+h}, v{VB+h}, s31, -v{X+h}")
        for h in range(4): a(f"v_exp_f32 v{VA+h}, v{VA+h}\nv_exp_f32 v{VB+h}, v{VB+h}")
        for h in range(4): a(f"v_add_f32 v{X+h}, v{VA+h}, v{VB+h}")
        xred("v_add_f32")
        a(f"v_rcp_f32 v{X}, v{X}")
        xbc()
        for h in range(4): a(f"v_mul_f32 v{VA+h}, v{VA+h}, v{X+h}\nv_mul_f32 v{VB+h}, v{VB+h}, v{X+h}")
        for h in range(4): a(f"v_cvt_pk_bf16_f32 v{VA+h}, v{VA+h}, v{VA+h}\nv_cvt_pk_bf16_f32 v{VB+h}, v{VB+h}, v{VB+h}")
        for h in range(4):
            p = PR[h]
            a(f"v_and_b32 v{p}, v{VA+h}, v{PM}\nv_and_b32 v{p+1}, v{VB+h}, v{PM+1}\nv_and_b32 v{p+2}, v{VA+h}, v{PM+2}\nv_and_b32 v{p+3}, v{VB+h}, v{PM+3}")
        for h in range(4):
            a(f"v_mfma_f32_16x16x32_bf16 {v(SR+8*h,4)}, {v(AV+12*h+2*(rt-1),4)}, {v(PR[h],4)}, 0")
            a(f"v_mfma_f32_16x16x32_bf16 {v(SR+8*h+4,4)}, {v(AV+48+2*(rt-1),4)}, {v(PR[h],4)}, 0")
        O = TM
        if rt == 1: a("s_setprio 2")
        for h in range(4):
            cv(O + 2 * h, SR + 8 * h); cv(O + 2 * h + 1, SR + 8 * h + 2)
            a(f"s_mov_b32 s29, {40*512*(rt-1)}\nbuffer_store_dwordx2 {v(O+2*h,2)}, v12, s[4:7], s29 offen offset:{512*h} {SC}")
        for h in range(1, 4):
            for r in range(4): a(f"v_cndmask_b32 v{SR+4+r}, v{SR+4+r}, v{SR+8*h+4+r}, s[{GM+2*h}:{GM+1+2*h}]")
        cv(O + 8, SR + 4); cv(O + 9, SR + 6)
        a(f"buffer_store_dwordx2 {v(O+8,2)}, v12, s[4:7], s29 offen offset:2048 {SC}")
    publish(a, 4, 4, 14, 2)
    La = uid("Lna")
    a(f"s_cmp_lg_u32 s3, 0\ns_cbranch_scc1 {La}"); arrive_finish(a, 6); a.label(La)
    stamp(a, 4, True)

P2_S, P2_SLOT = 8, 18432
def p2_common_adv():
    return f"s_add_u32 s37, s37, {P2_SLOT}\ns_cmp_ge_u32 s37, s38\ns_cselect_b32 s42, {P2_SLOT*P2_S}, 0\ns_sub_u32 s37, s37, s42\ns_add_u32 s34, s34, 1\ns_cmp_ge_u32 s34, s35\ns_cselect_b32 s34, 0, s34"
def p2_phase(a, sreg, n):
    st = opt("stagp", 0)
    if st: a(f"s_lshr_b32 s22, s2, 3\ns_lshr_b32 s23, s22, 3\ns_lshl_b32 s23, s23, 1\ns_add_u32 s22, s22, s23\ns_and_b32 s22, s22, 7\ns_mul_i32 s22, s22, {n}\ns_lshr_b32 s{sreg}, s22, 3")
    else: a(f"s_mov_b32 s{sreg}, 0")
def p2_loader_s(a):
    AH = P2_S - 2
    a(f"""
    s_load_dwordx2 s[12:13], s[0:1], {KA['w2']}
    v_lshrrev_b32 v2, 3, v1
    v_and_b32 v3, 7, v1
    v_and_b32 v4, 6, v2
    v_xor_b32 v3, v3, v4
    v_lshlrev_b32 v3, 4, v3
    v_lshl_add_u32 v2, v2, 12, v3
    s_lshl_b32 s23, s3, 17
    s_lshl_b32 s26, s50, 7
    s_add_u32 s23, s23, s26
    v_add_u32 v8, s23, v2
    """)
    for i in range(1, 4): a(f"v_add_u32 v{8+i}, {8*4096*i}, v8")
    a(f"s_lshl_b32 s23, s50, 2\ns_mul_i32 s23, s23, 40\ns_lshl_b32 s26, s3, 1\ns_add_u32 s23, s23, s26\ns_lshl_b32 s23, s23, 9\nv_lshl_add_u32 v16, v1, 4, s23")
    for i in range(1, 4): a(f"v_add_u32 v{16+i}, {40*512*i}, v16")
    a(f"s_and_b32 s23, s50, -2\ns_and_b32 s26, s52, 1\ns_add_u32 s23, s23, s26\ns_lshl_b32 s23, s23, 10\ns_add_u32 s23, s23, {F2}\nv_lshl_add_u32 v12, v1, 7, s23")
    p2_phase(a, 34, 10); p2_phase(a, 39, 24)
    a(f"s_mov_b32 s35, 10\ns_lshl_b32 s37, s3, 12\ns_add_u32 s38, s37, {P2_SLOT*P2_S}\ns_mov_b32 s33, 0\ns_waitcnt lgkmcnt(0)")
    srd(a, 4, 20, OT_SZ, OT_OFF)
    a("s_barrier")
    gate(a, 12, 0xff)
    stamp(a, 3)
    def issue(sc):
        a(f"s_lshl_b32 s40, s34, {11 if sc else 18}")
        for i in range(4): a(f"s_add_u32 m0, s37, {1024*i}\nbuffer_load_dwordx4 v{(16 if sc else 8)+i}, s[4:7], s40 offen {sc} lds")
        a(p2_common_adv())
    issue_n(a, AH, lambda: issue(SC))
    steady(a, 10, 4, AH, lambda: issue(SC))
    srd(a, 4, 12, F_ * 4096); a("s_mov_b32 s35, 24\ns_mov_b32 s34, s39")
    steady(a, 34, 4, AH, lambda: issue(""))
    stamp(a, 5)
    drain(a, 4, AH)
    endp(a)
def p2_loader_d(a):
    AH = P2_S - 2
    a(f"s_sub_u32 s22, s3, 2\ns_mul_i32 s23, s51, {5*68}\ns_add_u32 s23, s23, s22\ns_lshl_b32 s23, s23, 10\nv_lshl_add_u32 v8, v1, 4, s23")
    for i in range(1, 5): a(f"v_add_u32 v{8+i}, {68*1024*i}, v8")
    a(f"""
    s_mul_i32 s37, s22, 5120
    s_add_u32 s37, s37, 8192
    s_add_u32 s38, s37, {P2_SLOT*P2_S}
    s_lshl_b32 s23, s52, 14
    v_lshl_add_u32 v14, v1, 7, s23
    s_mul_i32 s23, s51, 5
    s_lshr_b32 s23, s23, 2
    s_lshl_b32 s23, s23, 11
    s_lshr_b32 s26, s52, 1
    s_mul_i32 s26, s26, {160*128}
    s_add_u32 s23, s23, s26
    s_add_u32 s23, s23, {F4}
    v_lshl_add_u32 v15, v1, 7, s23
    """)
    p2_phase(a, 34, 10); p2_phase(a, 39, 24)
    a("s_mov_b32 s35, 10\ns_mov_b32 s36, 48\ns_mov_b32 s33, 0")
    srd(a, 8, 20, UW_SZ, UW_OFF)
    a("s_barrier")
    gate(a, 14, (1 << 64) - 1, two=True)
    stamp(a, 3)
    def issue():
        a("s_lshl_b32 s41, s34, 1\ns_add_u32 s41, s41, s36\ns_lshl_b32 s41, s41, 10")
        for i in range(5): a(f"s_add_u32 m0, s37, {1024*i}\nbuffer_load_dwordx4 v{8+i}, s[8:11], s41 offen {SC} lds")
        a(p2_common_adv())
    issue_n(a, AH, issue)
    steady(a, 10, 5, AH, issue); drain(a, 5, AH)
    a("s_mov_b32 s35, 24\ns_mov_b32 s36, 0\ns_mov_b32 s34, s39")
    gate(a, 15, 0x0fff0fff)
    stamp(a, 4)
    issue_n(a, AH, issue)
    steady(a, 34, 5, AH, issue)
    stamp(a, 5)
    drain(a, 5, AH)
    endp(a)
def p2_consumer(a):
    L = "Lp2"
    ACB, ACA = 16, 36
    a(f"""
    s_load_dwordx2 s[24:25], s[0:1], {KA['b2']}
    s_load_dwordx2 s[28:29], s[0:1], {KA['out']}
    s_lshl_b32 s23, s50, 6
    s_lshl_b32 s26, s3, 4
    s_add_u32 s23, s23, s26
    v_and_b32 v2, 15, v1
    v_add_u32 v2, s23, v2
    v_lshlrev_b32 v3, 1, v2
    v_lshlrev_b32 v4, 2, v2
    s_waitcnt lgkmcnt(0)
    """)
    srd(a, 24, 24, 4096); srd(a, 8, 20, G_SZ, G_OFF); srd(a, 28, 28, S_ * 1280)
    a(f"""
    buffer_load_ushort v10, v3, s[24:27], 0 offen
    s_setprio 0
    v_lshrrev_b32 v5, 2, v1
    v_lshrrev_b32 v6, 1, v5
    v_and_b32 v6, 3, v6
    v_xor_b32 v6, s3, v6
    v_lshlrev_b32 v6, 5, v6
    v_lshl_add_u32 v5, v5, 7, v6
    v_and_b32 v6, 3, v1
    v_lshl_add_u32 v8, v6, 3, v5
    v_lshlrev_b32 v9, 4, v1
    v_add_u32 v9, 8192, v9
    v_mul_u32_u24 v12, 1280, v2
    v_lshrrev_b32 v6, 4, v1
    v_lshl_add_u32 v12, v6, 3, v12
    s_mul_i32 s26, s51, 160
    v_add_u32 v12, s26, v12
    s_lshl_b32 s26, s3, 10
    v_lshl_add_u32 v13, v1, 3, s26
    """)
    for i in range(20): a(f"v_mov_b32 v{ACA+i}, 0")
    SETS = (56, 104)
    def reads(st, ph="b"):
        r = []
        for kk in range(2):
            b = SETS[st] + 24 * kk
            if ph == "a": r += [(f"ds_read_b64 {v(b,2)}, v13 offset:{kk*4096}", (kk, "b0")), (f"ds_read_b64 {v(b+2,2)}, v13 offset:{kk*4096+512}", (kk, "b1"))]
            else: r += [(f"ds_read_b64_tr_b16 {v(b,2)}, v8 offset:{kk*4096}", (kk, "b0")), (f"ds_read_b64_tr_b16 {v(b+2,2)}, v8 offset:{kk*4096+2048}", (kk, "b1"))]
            r += [(f"ds_read_b128 {v(b+4+4*dt,4)}, v9 offset:{(kk*5+dt)*1024}", (kk, dt)) for dt in range(5)]
        return r
    def mf(acc, st):
        return [(f"v_mfma_f32_16x16x32_bf16 {v(acc+4*dt,4)}, {v(SETS[st]+24*kk+4+4*dt,4)}, {v(SETS[st]+24*kk,4)}, {v(acc+4*dt,4)}", {(kk, "b1"), (kk, dt)}) for kk in range(2) for dt in range(5)]
    ids = [x[1] for x in reads(0)]
    adv = slot_adv(P2_SLOT, P2_S) + ["v_add_u32 v8, s40, v8", "v_add_u32 v9, s40, v9"]
    a("s_mov_b32 s33, 0\ns_mov_b32 s37, 0\ns_barrier"); stamp(a, 5, True)
    adva = adv + ["v_add_u32 v13, s40, v13"]
    emit_step(a, [], [], reads(0, "a"), adva)
    a.label(f"{L}_ca", 3)
    a("s_barrier")
    emit_step(a, mf(ACA, 0), ids, reads(1, "a"), adva + ["s_add_u32 s33, s33, 2", "s_cmp_ge_u32 s33, 10"])
    a(f"s_barrier\ns_cbranch_scc1 {L}_cax")
    emit_step(a, mf(ACA, 1), ids, reads(0, "a"), adva)
    a(f"s_branch {L}_ca")
    a.label(f"{L}_cax")
    emit_step(a, mf(ACA, 1), ids, reads(0, "b"), adv)
    def loop(tag, acc, end, last):
        a.label(f"{L}_c{tag}", 3)
        a("s_barrier")
        emit_step(a, mf(acc, 0), ids, reads(1), adv + ["s_add_u32 s33, s33, 2", f"s_cmp_ge_u32 s33, {end}"])
        a(f"s_cbranch_scc1 {L}_clast\ns_barrier")
        emit_step(a, mf(acc, 1), ids, reads(0), adv)
        a(f"s_branch {L}_c{tag}")
    a(f"s_waitcnt vmcnt(0)\nbuffer_load_dword v11, v4, s[8:11], 0 offen {SC}\nv_lshlrev_b32 v10, 16, v10")
    for i in range(20): a(f"v_mov_b32 v{ACB+i}, v10")
    loop("b", ACB, 34, True)
    a.label(f"{L}_clast")
    emit_step(a, mf(ACB, 1), ids, [], [])
    stamp(a, 6)
    a("s_waitcnt vmcnt(0)\ns_nop 4")
    for dt in range(5):
        for r in range(4): a(f"v_sub_f32 v{ACA+4*dt+r}, v{ACA+4*dt+r}, v{ACB+4*dt+r}")
        for r in range(4): a(f"v_fmac_f32 v{ACB+4*dt+r}, v11, v{ACA+4*dt+r}")
        a(f"v_cvt_pk_bf16_f32 v{56+2*dt}, v{ACB+4*dt}, v{ACB+4*dt+1}\nv_cvt_pk_bf16_f32 v{57+2*dt}, v{ACB+4*dt+2}, v{ACB+4*dt+3}")
        a(f"buffer_store_dwordx2 {v(56+2*dt,2)}, v12, s[28:31], 0 offen offset:{32*dt}")
    endp(a)

def gen_main(a, name):
    kernel_head(a, name)
    if PROF:
        for i in range(1, 8): a(f"s_mov_b64 s[{70+2*i}:{71+2*i}], 0")
        stamp(a, 0)
    a(f"""
    s_cmp_ge_u32 s2, 256
    s_cbranch_scc1 Lend
    s_load_dwordx2 s[20:21], s[0:1], {KA['ws']}
    v_lshrrev_b32 v1, 6, v0
    v_readfirstlane_b32 s3, v1
    v_and_b32 v1, 63, v0
    s_and_b32 s52, s2, 7
    s_lshr_b32 s53, s2, 3
    s_lshr_b32 s22, s52, 1
    s_lshl_b32 s50, s22, 3
    s_and_b32 s23, s53, 7
    s_add_u32 s50, s50, s23
    s_and_b32 s51, s52, 1
    s_lshl_b32 s51, s51, 2
    s_lshr_b32 s26, s53, 3
    s_add_u32 s51, s51, s26
    """)
    if PROF: a("s_mov_b32 s69, s3")
    a(f"s_bitcmp1_b32 s52, 0\ns_cbranch_scc1 Lrole_qa")
    a(f"""
    s_lshl_b32 s19, s22, 5
    s_add_u32 s19, s19, s53
    s_mul_i32 s17, s53, 86
    s_lshr_b32 s17, s17, 8
    s_mul_i32 s23, s17, 3
    s_sub_u32 s23, s53, s23
    s_mul_i32 s16, s22, 3
    s_add_u32 s16, s16, s23
    """)
    a(f"s_mul_i32 s18, s23, {opt('stagg', 0)}")
    a("s_cmp_ge_u32 s3, 4\ns_cbranch_scc1 Lg_cons\ns_setprio 1\ns_cmp_ge_u32 s3, 2\ns_cbranch_scc1 Lg_h")
    def flags():
        a(f"s_waitcnt lgkmcnt(0)"); srd(a, 44, 20, FL_SZ, FL_OFF); a(f"s_load_dword s48, s[44:45], {FZ}")
    a(f"s_load_dwordx2 s[4:5], s[0:1], {KA['w1']}"); flags()
    a("s_cmp_ge_u32 s53, 30\ns_cbranch_scc1 Lsp_w")
    g1_loader_w(a); a("s_branch Lp2_s")
    a.label("Lsp_w"); w1_sweep(a); tag_ready(a); a("s_branch Lp2_s")
    a.label("Lg_h"); code_prefetch(a); a(f"s_load_dwordx2 s[4:5], s[0:1], {KA['wo']}"); flags(); wo_task(a)
    a("s_cmp_ge_u32 s53, 30\ns_cbranch_scc1 Lp2_d")
    g1_loader_h(a); a("s_branch Lp2_d")
    a.label("Lg_cons")
    a(f"s_setprio 2\ns_load_dwordx2 s[4:5], s[0:1], {KA['x']}\ns_load_dwordx2 s[8:9], s[0:1], {KA['gw']}\ns_sub_u32 s3, s3, 4")
    ln_issue(a)
    srd(a, 44, 20, FL_SZ, FL_OFF)
    a(f"v_mov_b32 v2, {CTR}\nv_mov_b32 v6, 0\nv_mov_b32 v7, 0\nds_write_b64 v2, v[6:7]\ns_waitcnt lgkmcnt(0)\ns_barrier\ns_load_dword s48, s[44:45], {FZ}")
    ln_finish(a); stamp(a, 1, True)
    a("s_cmp_ge_u32 s53, 30\ns_cbranch_scc1 Lsp_cons")
    g1_consumer(a); a("s_branch Lp2_c")
    a.label("Lsp_cons")
    a(f"s_load_dwordx2 s[12:13], s[0:1], {KA['dbg']}\ns_waitcnt lgkmcnt(0)"); srd(a, 12, 12, 256)
    a("s_barrier\ns_cmp_lg_u32 s3, 0\ns_cbranch_scc1 Lp2_c"); arrive_issue(a, 6); a("s_waitcnt vmcnt(0)"); arrive_finish(a, 6); a("s_branch Lp2_c")
    a.label("Lrole_qa")
    a(f"""
    s_and_b32 s16, s22, 1
    s_lshl_b32 s16, s16, 3
    s_add_u32 s16, s16, s23
    s_lshr_b32 s17, s22, 1
    s_lshl_b32 s17, s17, 2
    s_add_u32 s17, s17, s26
    """)
    if opt("nsq"): a("s_mov_b32 s18, 0")
    else: a("s_lshl_b32 s18, s26, 1\ns_add_u32 s18, s18, s23\ns_and_b32 s18, s18, 7\ns_mul_i32 s18, s18, 10\ns_lshr_b32 s18, s18, 3")
    a(f"s_cmp_ge_u32 s3, 4\ns_cbranch_scc1 Lq_cons\ns_setprio 1\ns_cmp_eq_u32 s3, 3\ns_cbranch_scc1 Lq_idle")
    a(f"s_load_dwordx2 s[4:5], s[0:1], {KA['x']}\ns_load_dwordx2 s[8:9], s[0:1], {KA['wqkv']}"); flags(); qa_loader(a)
    a("s_cmp_ge_u32 s3, 2\ns_cbranch_scc1 Lp2_d\ns_branch Lp2_s")
    a.label("Lq_idle"); flags(); qa_idle(a); a("s_branch Lp2_d")
    a.label("Lq_cons"); a("s_sub_u32 s3, s3, 4"); flags()
    a(f"v_mov_b32 v2, {CTR}\nv_mov_b32 v6, 0\nv_mov_b32 v7, 0\nds_write_b64 v2, v[6:7]")
    qa_consumer(a)
    a.label("Lp2_c"); p2_consumer(a)
    a.label("Lp2_s"); p2_loader_s(a)
    a.label("Lp2_d"); p2_loader_d(a)
    a.label("Lend"); a("s_endpgm")
    a.raw("Lcode_end:")
    return kernel_desc(name, 256, 102)

def build(spec=""):
    global PROF
    OPTS[:] = [o for o in spec.split("+") if o]; PROF = bool(opt("prof")); UID[0] = 0
    ref = open(f"cdna_kernels/{NAME}.s.ref").read().split("\n")
    head = ref[:ref.index(next(x for x in ref if x.startswith("; Override")))]
    a = Asm(); a.raw("\n".join(head))
    a.raw(f"; @launch grid=(256,1,1) block=(512,1,1) lds={LDS_SZ}")
    a.raw('.amdgcn_target "amdgcn-amd-amdhsa--gfx950"')
    d = gen_main(a, NAME + "_kernel")
    if opt("nocomp"): a.lines = [(t, c) for t, c in a.lines if not (c is not None and (c.kind == "mfma" or c.op.startswith("ds_read")))]
    bad = a.check_branches()
    for b in bad: print("HAZARD across branch:", b, file=sys.stderr)
    assert not bad
    a.raw(d)
    return a.text()

if __name__ == "__main__":
    open(sys.argv[2] if len(sys.argv) > 2 else f"cdna_kernels/{NAME}.s", "w").write(build(sys.argv[1] if len(sys.argv) > 1 else ""))
```

```python
import sys, math
from dsl import *

NAME = "gated_mix__sliding_local_dilated__mixer_token_mlp__prompt"
S_, D_, F_ = 2048, 640, 1536
KA = dict(x=0, wqkv=8, wo=16, w1=32, b1=40, w2=48, b2=56, gw=64, out=72, dbg=80, ws=88)
H_OFF, OT_OFF, UW_OFF, G_OFF = 0, 0x280000, 0x500000, 0x800000
H_SZ, OT_SZ, UW_SZ, G_SZ = 2621440, 2621440, 40 * 68 * 1024, 8192
LOG2E = 1.4426950408889634
def f2u(x):
    import struct
    return "0x%08x" % struct.unpack("<I", struct.pack("<f", x))[0]

def srd(a, d, base, size, off=0):
    if off:
        a(f"s_add_u32 s{d}, s{base}, {off}\ns_addc_u32 s{d+1}, s{base+1}, 0")
    elif d != base:
        a(f"s_mov_b32 s{d}, s{base}\ns_mov_b32 s{d+1}, s{base+1}")
    a(f"s_mov_b32 s{d+2}, {size}\ns_mov_b32 s{d+3}, 0x20000")

def v(n, k=1): return f"v{n}" if k == 1 else f"v[{n}:{n+k-1}]"

PROF = False
OPTS = []
PROF2 = False
TL_OFF = 0x1000000
KIDX = {"pf_kernel": 2, "k0_kernel": 0, "k1_kernel": 1, "qa_kernel": 1, "g1_kernel": 2, "p2_kernel": 3}
CUR = [0]
def stamp(a, i):
    if PROF: a(f"s_memrealtime s[{70+2*i}:{71+2*i}]")
def bar(a, pre=""):
    if PROF2:
        a("s_memtime s[64:65]\ns_waitcnt lgkmcnt(0)")
        a(pre); a("s_memtime s[88:89]\ns_waitcnt lgkmcnt(0)\ns_barrier\ns_memtime s[66:67]\ns_waitcnt lgkmcnt(0)")
        a("s_cselect_b32 s87, 1, 0\ns_sub_u32 s66, s66, s88\ns_add_u32 s80, s80, s66\ns_sub_u32 s88, s88, s64\ns_add_u32 s82, s82, s88\ns_cmp_lg_u32 s87, 0")
    else:
        a(pre); a("s_barrier")
def endp(a):
    if PROF:
        a(f"""
        s_memrealtime s[84:85]
        s_load_dwordx2 s[60:61], s[0:1], {KA['ws']}
        s_getreg_b32 s86, hwreg(HW_REG_XCC_ID)
        s_waitcnt lgkmcnt(0)
        s_add_u32 s60, s60, {TL_OFF + CUR[0] * 0x40000}
        s_addc_u32 s61, s61, 0
        s_mov_b32 s62, 0x40000
        s_mov_b32 s63, 0x20000
        s_mov_b64 exec, 1
        s_lshl_b32 s64, s68, 3
        s_add_u32 s64, s64, s69
        s_lshl_b32 s64, s64, 6
        v_mov_b32 v0, s64
        """)
        for i in range(8): a(f"v_mov_b32 v{4+i}, s{70+2*i}")
        a("v_mov_b32 v12, s86")
        a("buffer_store_dwordx4 v[4:7], v0, s[60:63], 0 offen\nbuffer_store_dwordx4 v[8:11], v0, s[60:63], 0 offen offset:16\nbuffer_store_dword v12, v0, s[60:63], 0 offen offset:32")
    a("s_endpgm")

def lane_wave(a, vlane, swave):
    if PROF:
        for i in range(1, 8): a(f"s_mov_b64 s[{70+2*i}:{71+2*i}], 0")
        stamp(a, 0)
        a(f"v_lshrrev_b32 v{vlane}, 6, v0\nv_readfirstlane_b32 s69, v{vlane}\ns_mov_b32 s68, s2")
    a(f"v_lshrrev_b32 v{vlane}, 6, v0\nv_readfirstlane_b32 s{swave}, v{vlane}\nv_and_b32 v{vlane}, 63, v0")

def tr_row(a, vd, vl, vt):
    a(f"v_lshrrev_b32 v{vd}, 2, v{vl}")

def k0_ln(a, L):
    a(f"""
    s_load_dwordx2 s[4:5], s[0:1], {KA['x']}
    s_load_dwordx2 s[8:9], s[0:1], {KA['gw']}
    s_load_dwordx2 s[20:21], s[0:1], {KA['ws']}
    s_lshl_b32 s16, s2, 3
    s_lshl_b32 s17, s3, 1
    s_add_u32 s16, s16, s17
    v_lshrrev_b32 v2, 5, v1
    v_add_u32 v2, s16, v2
    v_and_b32 v3, 31, v1
    v_lshlrev_b32 v4, 3, v3
    v_mul_u32_u24 v5, 1280, v2
    v_add_u32 v5, v5, v4
    s_waitcnt lgkmcnt(0)
    """)
    srd(a, 4, 4, H_SZ); srd(a, 8, 8, 1280)
    for i in range(5): a(f"buffer_load_dwordx2 {v(10+2*i,2)}, v5, s[4:7], 0 offen offset:{256*i}")
    for i in range(5): a(f"buffer_load_dwordx2 {v(20+2*i,2)}, v4, s[8:11], 0 offen offset:{256*i}")
    srd(a, 12, 20, H_SZ, H_OFF); srd(a, 24, 20, G_SZ, G_OFF)
    a("s_mov_b32 s30, 0x3f803f80\ns_mov_b32 s31, 0xffff0000")
    a("s_waitcnt vmcnt(5)")
    a("v_dot2_f32_bf16 v6, v10, s30, 0")
    for i in range(1, 10): a(f"v_dot2_f32_bf16 v6, v{10+i}, s30, v6")
    for i in range(10): a(f"v_lshlrev_b32 v{30+2*i}, 16, v{10+i}\nv_and_b32 v{31+2*i}, s31, v{10+i}")
    def red(r, t):
        for sh in (8, 4, 2, 1): a(f"v_add_f32_dpp v{r}, v{r}, v{r} row_ror:{sh} row_mask:0xf bank_mask:0xf")
        a(f"v_mov_b32 v{t}, v{r}\nv_permlane16_swap_b32 v{r}, v{t}\nv_add_f32 v{r}, v{r}, v{t}")
    red(6, 8)
    a(f"v_mul_f32 v6, {f2u(1/640)}, v6")
    a("s_waitcnt vmcnt(0)")
    a("v_dot2_f32_bf16 v9, v10, v20, 0")
    for i in range(1, 10): a(f"v_dot2_f32_bf16 v9, v{10+i}, v{20+i}, v9")
    for i in range(10): a(f"v_pk_add_f32 {v(30+2*i,2)}, {v(30+2*i,2)}, v[6:7] op_sel_hi:[1,0] neg_lo:[0,1] neg_hi:[0,1]")
    a("v_pk_mul_f32 v[50:51], v[30:31], v[30:31]")
    for i in range(1, 10): a(f"v_pk_fma_f32 v[50:51], {v(30+2*i,2)}, {v(30+2*i,2)}, v[50:51]")
    a("v_add_f32 v50, v50, v51")
    red(50, 8); red(9, 52)
    a(f"""
    v_mov_b32 v8, {f2u(1e-5)}
    v_fmac_f32 v8, {f2u(1/640)}, v50
    v_rsq_f32 v50, v8
    v_mul_f32 v9, {f2u(-LOG2E)}, v9
    v_exp_f32 v9, v9
    """)
    for i in range(10): a(f"v_pk_mul_f32 {v(30+2*i,2)}, {v(30+2*i,2)}, v[50:51] op_sel_hi:[1,0]")
    a("v_add_f32 v9, 1.0, v9\nv_rcp_f32 v9, v9")
    for i in range(10): a(f"v_cvt_pk_bf16_f32 v{10+i}, v{30+2*i}, v{31+2*i}")
    for i in range(5): a(f"buffer_store_dwordx2 {v(10+2*i,2)}, v5, s[12:15], 0 offen offset:{256*i}")
    a(f"""
    v_lshlrev_b32 v2, 2, v2
    v_cmp_eq_u32 vcc, 0, v3
    s_and_saveexec_b64 s[32:33], vcc
    s_cbranch_execz {L}_end
    buffer_store_dword v9, v2, s[24:27], 0 offen
    """)

def k0_wo(a, L, wg0):
    a(f"""
    s_load_dwordx2 s[4:5], s[0:1], {KA['wo']}
    s_load_dwordx2 s[20:21], s[0:1], {KA['ws']}
    s_sub_u32 s16, s2, {wg0}
    s_lshl_b32 s16, s16, 2
    s_add_u32 s16, s16, s3
    s_mul_i32 s17, s16, 6554
    s_lshr_b32 s17, s17, 16
    s_mul_i32 s18, s17, 10
    s_sub_u32 s18, s16, s18
    v_lshrrev_b32 v2, 3, v1
    v_and_b32 v3, 7, v1
    v_and_b32 v4, 6, v2
    v_xor_b32 v3, v3, v4
    v_lshlrev_b32 v3, 4, v3
    v_mul_u32_u24 v2, 1280, v2
    v_add_u32 v2, v2, v3
    s_mul_i32 s19, s17, {32*1280}
    s_lshl_b32 s22, s18, 7
    s_add_u32 s19, s19, s22
    s_lshl_b32 s23, s3, 12
    s_waitcnt lgkmcnt(0)
    """)
    srd(a, 4, 4, 640 * 1280)
    for i in range(4):
        a(f"s_add_u32 m0, s23, {1024*i}\ns_add_u32 s22, s19, {8*1280*i}\nbuffer_load_dwordx4 v2, s[4:7], s22 offen lds")
    srd(a, 12, 20, UW_SZ, UW_OFF)
    a("""
    v_lshrrev_b32 v5, 2, v1
    v_lshrrev_b32 v6, 1, v5
    v_and_b32 v6, 3, v6
    v_lshlrev_b32 v5, 7, v5
    v_and_b32 v7, 3, v1
    v_lshlrev_b32 v7, 3, v7
    v_add3_u32 v5, v5, v7, s23
    """)
    for t in range(4): a(f"v_xor_b32 v7, {t}, v6\nv_lshl_add_u32 v{8+t}, v7, 5, v5")
    a(f"""
    s_lshl_b32 s22, s18, 2
    s_mul_i32 s22, s22, 68
    s_add_u32 s22, s22, s17
    s_add_u32 s22, s22, 48
    s_lshl_b32 s22, s22, 10
    v_lshlrev_b32 v12, 4, v1
    s_waitcnt vmcnt(0)
    """)
    for t in range(4):
        a(f"ds_read_b64_tr_b16 {v(16+4*t,2)}, v{8+t}\nds_read_b64_tr_b16 {v(18+4*t,2)}, v{8+t} offset:2048")
    for t in range(4):
        a(f"s_waitcnt lgkmcnt({6-2*t})\nbuffer_store_dwordx4 {v(16+4*t,4)}, v12, s[12:15], s22 offen\ns_add_u32 s22, s22, {68*1024}")

def gen_k0(a, name):
    kernel_head(a, name)
    L = "Lk0"
    lane_wave(a, 1, 3)
    a(f"s_cmp_ge_u32 s2, 306\ns_cbranch_scc1 {L}_end\ns_cmp_ge_u32 s2, 256\ns_cbranch_scc1 {L}_wo")
    k0_ln(a, L)
    a("s_waitcnt vmcnt(0)" if PROF else ""); endp(a)
    a.label(f"{L}_wo")
    k0_wo(a, L, 256)
    a("s_waitcnt vmcnt(0)" if PROF else ""); endp(a)
    a.label(f"{L}_end")
    a("s_endpgm")
    return kernel_desc(name, 64, 96)

def emit_step(a, M, prev_ids, R, extra, per_gap=2, head=2):
    q = list(prev_ids); fill = [("r", x) for x in R] + [("x", x) for x in extra]
    def put(n):
        for _ in range(n):
            if not fill: return
            k, x = fill.pop(0)
            if k == "r": a(x[0]); q.append(("n", x[1]))
            else: a(x)
    put(head)
    for text, need_ in M:
        idx = [i for i, t in enumerate(q) if t in need_]
        if idx:
            n = min(len(q) - 1 - idx[-1], 15)
            a(f"s_waitcnt lgkmcnt({n})"); del q[:len(q) - n]
        a(text); put(per_gap)
    put(len(fill))

def slot_adv(SLOT, S):
    return [f"s_add_u32 s40, s37, {SLOT}", f"s_cmp_ge_u32 s40, {SLOT*S}", "s_cselect_b32 s41, 0, s40", "s_sub_u32 s40, s41, s37", "s_mov_b32 s37, s41"]

def loader_loop(a, L, J, S, n, issue, scnt):
    a(f"s_mov_b32 s{scnt}, 0")
    a.label(f"{L}_pro")
    issue("p")
    a(f"s_add_u32 s{scnt}, s{scnt}, 1\ns_cmp_lt_u32 s{scnt}, {S-1}\ns_cbranch_scc1 {L}_pro")
    stamp(a, 1)
    a.label(f"{L}_main")
    bar(a, f"s_waitcnt vmcnt({n*(S-2)})")
    issue("m")
    a(f"s_add_u32 s{scnt}, s{scnt}, 1\ns_cmp_lt_u32 s{scnt}, {J}\ns_cbranch_scc1 {L}_main")
    stamp(a, 2)
    for k in range(S - 2, -1, -1):
        a(f"s_waitcnt vmcnt({n*k})\ns_barrier")
    endp(a)

P2_S, P2_SLOT = 7, 18432
def gen_p2(a, name):
    stag = "nsp" not in OPTS
    kernel_head(a, name)
    L = "Lp2"
    lane_wave(a, 1, 3)
    a(f"""
    s_cmp_ge_u32 s2, 256
    s_cbranch_scc1 {L}_end
    s_load_dwordx2 s[4:5], s[0:1], {KA['w2']}
    s_load_dwordx2 s[20:21], s[0:1], {KA['ws']}
    s_load_dwordx2 s[24:25], s[0:1], {KA['b2']}
    s_load_dwordx2 s[28:29], s[0:1], {KA['out']}
    s_and_b32 s16, s2, 7
    s_lshr_b32 s17, s2, 3
    s_lshr_b32 s18, s16, 1
    s_lshl_b32 s18, s18, 3
    s_and_b32 s19, s17, 7
    s_add_u32 s18, s18, s19
    s_and_b32 s16, s16, 1
    s_lshl_b32 s16, s16, 2
    s_lshr_b32 s22, s17, 3
    s_add_u32 s16, s16, s22
    s_cmp_ge_u32 s3, 2
    s_cbranch_scc1 {L}_cons
    """)
    a(f"""
    s_setprio 1
    v_lshrrev_b32 v2, 3, v1
    v_and_b32 v3, 7, v1
    v_and_b32 v4, 6, v2
    v_xor_b32 v3, v3, v4
    v_lshlrev_b32 v3, 4, v3
    v_lshl_add_u32 v2, v2, 12, v3
    s_lshl_b32 s23, s3, 5
    s_lshl_b32 s23, s23, 12
    s_lshl_b32 s26, s18, 7
    s_add_u32 s23, s23, s26
    """)
    for i in range(4): a(f"s_add_u32 s26, s23, {8*4096*i}\nv_add_u32 v{8+i}, s26, v2")
    a(f"s_mul_i32 s23, s16, {5*68}\ns_add_u32 s23, s23, s3\ns_lshl_b32 s23, s23, 10\nv_lshlrev_b32 v3, 4, v1")
    for i in range(5): a(f"s_add_u32 s26, s23, {68*1024*i}\nv_add_u32 v{12+i}, s26, v3")
    if stag:
        a("s_lshl_b32 s34, s22, 1\ns_add_u32 s34, s34, s19\ns_and_b32 s34, s34, 7\ns_mul_i32 s34, s34, 3")
    else:
        a("s_mov_b32 s34, 0")
    a(f"""
    s_mov_b32 s35, 24
    s_mov_b32 s36, 0
    s_mov_b32 s37, 0
    s_lshl_b32 s38, s3, 12
    s_mul_i32 s39, s3, 5120
    s_add_u32 s39, s39, 8192
    s_waitcnt lgkmcnt(0)
    """)
    srd(a, 4, 4, F_ * 4096); srd(a, 8, 20, UW_SZ, UW_OFF)
    def issue(tag):
        a(f"""
        s_lshl_b32 s40, s34, 18
        s_lshl_b32 s41, s34, 1
        s_add_u32 s41, s41, s36
        s_lshl_b32 s41, s41, 10
        s_add_u32 s42, s37, s38
        s_add_u32 s43, s37, s39
        """)
        for i in range(4): a(f"s_add_u32 m0, s42, {1024*i}\nbuffer_load_dwordx4 v{8+i}, s[4:7], s40 offen lds")
        for i in range(5): a(f"s_add_u32 m0, s43, {1024*i}\nbuffer_load_dwordx4 v{12+i}, s[8:11], s41 offen lds")
        a(f"""
        s_add_u32 s37, s37, {P2_SLOT}
        s_cmp_ge_u32 s37, {P2_SLOT*P2_S}
        s_cselect_b32 s37, 0, s37
        s_add_u32 s34, s34, 1
        s_cmp_ge_u32 s34, s35
        s_cselect_b32 s34, 0, s34
        s_cmp_lg_u32 s33, 23
        s_cbranch_scc1 {L}_nosw{tag}
        """)
        srd(a, 4, 20, OT_SZ, OT_OFF)
        a("s_mov_b32 s35, 10\ns_mov_b32 s36, 48")
        a("s_mov_b32 s34, s19" if stag else "s_mov_b32 s34, 0")
        a.label(f"{L}_nosw{tag}")
    loader_loop(a, L, 34, P2_S - 1, 9, issue, 33)
    a.label(f"{L}_cons")
    ACB, ACA, PA, PB, QA_, QB = 16, 36, 56, 76, 80, 100
    a(f"""
    s_setprio 2
    s_sub_u32 s3, s3, 2
    s_lshl_b32 s23, s18, 6
    s_lshl_b32 s26, s3, 4
    s_add_u32 s23, s23, s26
    v_and_b32 v2, 15, v1
    v_add_u32 v2, s23, v2
    v_lshlrev_b32 v3, 1, v2
    v_lshlrev_b32 v4, 2, v2
    s_waitcnt lgkmcnt(0)
    """)
    srd(a, 24, 24, 4096); srd(a, 8, 20, G_SZ, G_OFF); srd(a, 28, 28, S_ * 1280)
    a(f"""
    buffer_load_ushort v10, v3, s[24:27], 0 offen
    buffer_load_dword v11, v4, s[8:11], 0 offen
    s_setprio 0
    v_lshrrev_b32 v5, 2, v1
    v_lshrrev_b32 v6, 1, v5
    v_and_b32 v6, 3, v6
    v_xor_b32 v6, s3, v6
    v_lshlrev_b32 v6, 5, v6
    v_lshl_add_u32 v5, v5, 7, v6
    v_and_b32 v6, 3, v1
    v_lshl_add_u32 v8, v6, 3, v5
    v_lshlrev_b32 v9, 4, v1
    v_add_u32 v9, 8192, v9
    v_mul_u32_u24 v12, 1280, v2
    v_lshrrev_b32 v6, 4, v1
    v_lshl_add_u32 v12, v6, 3, v12
    s_mul_i32 s26, s16, 160
    v_add_u32 v12, s26, v12
    """)
    for i in range(20): a(f"v_mov_b32 v{ACA+i}, 0")
    a("s_waitcnt vmcnt(1)\nv_lshlrev_b32 v10, 16, v10")
    for i in range(20): a(f"v_mov_b32 v{ACB+i}, v10")
    SETS = (56, 104)
    def reads(st):
        r = []
        for kk in range(2):
            b = SETS[st] + 24 * kk
            r += [(f"ds_read_b64_tr_b16 {v(b,2)}, v8 offset:{kk*4096}", (kk, "b0")), (f"ds_read_b64_tr_b16 {v(b+2,2)}, v8 offset:{kk*4096+2048}", (kk, "b1"))]
            r += [(f"ds_read_b128 {v(b+4+4*dt,4)}, v9 offset:{(kk*5+dt)*1024}", (kk, dt)) for dt in range(5)]
        return r
    def mf(acc, st):
        return [(f"v_mfma_f32_16x16x32_bf16 {v(acc+4*dt,4)}, {v(SETS[st]+24*kk+4+4*dt,4)}, {v(SETS[st]+24*kk,4)}, {v(acc+4*dt,4)}", {(kk, "b1"), (kk, dt)}) for kk in range(2) for dt in range(5)]
    ids = [x[1] for x in reads(0)]
    adv = slot_adv(P2_SLOT, P2_S) + ["v_add_u32 v8, s40, v8", "v_add_u32 v9, s40, v9"]
    a("s_mov_b32 s33, 0\ns_mov_b32 s37, 0")
    stamp(a, 1); a("s_waitcnt lgkmcnt(0)\ns_barrier"); stamp(a, 2); a("s_waitcnt lgkmcnt(0)" if PROF else "")
    emit_step(a, [], [], reads(0), adv)
    def loop(tag, acc, end, last):
        a.label(f"{L}_c{tag}", 3)
        bar(a)
        emit_step(a, mf(acc, 0), ids, reads(1), adv + ["s_add_u32 s33, s33, 2", f"s_cmp_ge_u32 s33, {end}"])
        if last: a(f"s_cbranch_scc1 {L}_clast")
        bar(a)
        emit_step(a, mf(acc, 1), ids, reads(0), adv + ([] if last else [f"s_cmp_lt_u32 s33, {end}"]))
        a(f"s_branch {L}_c{tag}" if last else f"s_cbranch_scc1 {L}_c{tag}")
    loop("b", ACB, 24, False)
    loop("a", ACA, 34, True)
    a.label(f"{L}_clast"); stamp(a, 3)
    if PROF: a("s_waitcnt lgkmcnt(0)")
    emit_step(a, mf(ACA, 1), ids, [], [])
    a("s_waitcnt vmcnt(0)\ns_nop 4")
    for dt in range(5):
        for r in range(4): a(f"v_sub_f32 v{ACA+4*dt+r}, v{ACA+4*dt+r}, v{ACB+4*dt+r}")
        for r in range(4): a(f"v_fmac_f32 v{ACB+4*dt+r}, v11, v{ACA+4*dt+r}")
        a(f"v_cvt_pk_bf16_f32 v{PA+2*dt}, v{ACB+4*dt}, v{ACB+4*dt+1}\nv_cvt_pk_bf16_f32 v{PA+2*dt+1}, v{ACB+4*dt+2}, v{ACB+4*dt+3}")
        a(f"buffer_store_dwordx2 {v(PA+2*dt,2)}, v12, s[28:31], 0 offen offset:{32*dt}")
    stamp(a, 4); a("s_waitcnt vmcnt(0)" if PROF else ""); endp(a)
    a.label(f"{L}_end")
    a("s_endpgm")
    return kernel_desc(name, 152, 96)

G1_S, G1_SLOT = 6, 24576
def body_g1(a, L):
    a(f"""
    s_load_dwordx2 s[4:5], s[0:1], {KA['w1']}
    s_load_dwordx2 s[20:21], s[0:1], {KA['ws']}
    s_load_dwordx2 s[24:25], s[0:1], {KA['b1']}
    s_cmp_ge_u32 s3, 4
    s_cbranch_scc1 {L}_cons
    s_setprio 1
    v_lshrrev_b32 v2, 4, v1
    s_lshl_b32 s23, s3, 2
    v_add_u32 v2, s23, v2
    v_and_b32 v4, 7, v2
    v_lshlrev_b32 v4, 1, v4
    v_and_b32 v3, 15, v1
    v_xor_b32 v3, v3, v4
    v_lshlrev_b32 v3, 4, v3
    v_mul_u32_u24 v2, 3072, v2
    s_lshl_b32 s26, s16, 8
    v_add3_u32 v8, v2, v3, s26
    """)
    for i in range(1, 4): a(f"v_add_u32 v{8+i}, {16*3072*i}, v8")
    a(f"""
    v_lshrrev_b32 v2, 3, v1
    v_and_b32 v3, 7, v1
    v_and_b32 v4, 6, v2
    v_xor_b32 v3, v3, v4
    v_lshlrev_b32 v3, 4, v3
    s_lshl_b32 s23, s3, 3
    v_add_u32 v2, s23, v2
    v_mul_u32_u24 v2, 1280, v2
    s_lshl_b32 s26, s17, 7
    v_add3_u32 v12, v2, v3, s26
    v_add_u32 v13, {32*1280}, v12
    s_mov_b32 s34, s18
    s_lshl_b32 s37, s3, 10
    s_add_u32 s38, s37, {G1_SLOT*G1_S}
    s_waitcnt lgkmcnt(0)
    """)
    srd(a, 4, 4, S_ * 3072); srd(a, 8, 20, H_SZ, H_OFF)
    def issue(tag):
        a(f"s_mul_i32 s40, s34, {64*3072}\ns_mul_i32 s41, s34, {64*1280}")
        for i in range(4): a(f"s_add_u32 m0, s37, {4096*i}\nbuffer_load_dwordx4 v{8+i}, s[4:7], s40 offen lds")
        for i in range(2): a(f"s_add_u32 m0, s37, {16384+4096*i}\nbuffer_load_dwordx4 v{12+i}, s[8:11], s41 offen lds")
        a(f"""
        s_add_u32 s37, s37, {G1_SLOT}
        s_cmp_ge_u32 s37, s38
        s_cselect_b32 s42, {G1_SLOT*G1_S}, 0
        s_sub_u32 s37, s37, s42
        s_add_u32 s34, s34, 1
        s_and_b32 s34, s34, 31
        """)
    loader_loop(a, L, 32, G1_S - 1, 6, issue, 33)
    a.label(f"{L}_cons")
    ACC, PA, PB, QA_, QB = 16, 48, 64, 72, 88
    a(f"""
    s_setprio 2
    s_sub_u32 s3, s3, 4
    s_and_b32 s22, s3, 1
    s_lshr_b32 s23, s3, 1
    s_lshl_b32 s26, s16, 8
    s_lshl_b32 s27, s22, 7
    s_add_u32 s26, s26, s27
    v_lshrrev_b32 v2, 4, v1
    v_lshl_add_u32 v3, v2, 3, s26
    s_waitcnt lgkmcnt(0)
    """)
    srd(a, 24, 24, 3072); srd(a, 8, 20, UW_SZ, UW_OFF)
    for ft in range(4): a(f"buffer_load_dwordx2 {v(PA+2*ft,2)}, v3, s[24:27], 0 offen offset:{32*ft}")
    a("s_setprio 0")
    a(f"""
    v_lshrrev_b32 v5, 2, v1
    v_and_b32 v6, 3, v1
    v_lshlrev_b32 v6, 3, v6
    v_and_b32 v7, 7, v5
    v_lshl_add_u32 v4, v5, 8, v6
    s_lshl_b32 s27, s22, 2
    """)
    for ft in range(4): a(f"s_add_u32 s28, s27, {ft}\nv_xor_b32 v2, s28, v7\nv_lshl_add_u32 v{8+ft}, v2, 5, v4")
    a(f"""
    v_lshrrev_b32 v7, 1, v5
    v_and_b32 v7, 3, v7
    v_lshl_add_u32 v4, v5, 7, v6
    v_add_u32 v4, 16384, v4
    s_lshl_b32 s27, s23, 1
    """)
    for dt in range(2): a(f"s_add_u32 s28, s27, {dt}\nv_xor_b32 v2, s28, v7\nv_lshl_add_u32 v{12+dt}, v2, 5, v4")
    a(f"""
    s_lshl_b32 s28, s17, 2
    s_add_u32 s28, s28, s27
    s_mul_i32 s28, s28, 68
    s_lshl_b32 s29, s16, 2
    s_add_u32 s28, s28, s29
    s_lshl_b32 s29, s22, 1
    s_add_u32 s28, s28, s29
    s_lshl_b32 s28, s28, 10
    v_lshl_add_u32 v14, v1, 4, s28
    s_mov_b32 s31, 0xffff0000
    s_waitcnt vmcnt(0)
    """)
    for ft in range(4):
        for dt in range(2):
            b = ACC + 8 * ft + 4 * dt
            a(f"v_lshlrev_b32 v{b}, 16, v{PA+2*ft}\nv_and_b32 v{b+1}, s31, v{PA+2*ft}\nv_lshlrev_b32 v{b+2}, 16, v{PA+2*ft+1}\nv_and_b32 v{b+3}, s31, v{PA+2*ft+1}")
    SETS = (48, 96)
    def reads(st):
        r = []
        for kk in range(2):
            b = SETS[st] + 24 * kk
            for dt in range(2): r += [(f"ds_read_b64_tr_b16 {v(b+4*dt+2*h,2)}, v{12+dt} offset:{kk*4096+2048*h}", (kk, "b", dt, h)) for h in range(2)]
            for ft in range(4): r += [(f"ds_read_b64_tr_b16 {v(b+8+4*ft+2*h,2)}, v{8+ft} offset:{kk*8192+4096*h}", (kk, "a", ft, h)) for h in range(2)]
        return r
    def mf(st):
        return [(f"v_mfma_f32_16x16x32_bf16 {v(ACC+8*ft+4*dt,4)}, {v(SETS[st]+24*kk+8+4*ft,4)}, {v(SETS[st]+24*kk+4*dt,4)}, {v(ACC+8*ft+4*dt,4)}", {(kk, "a", ft, 1)})
                for kk in range(2) for ft in range(4) for dt in range(2)]
    ids = [x[1] for x in reads(0)]
    adv = slot_adv(G1_SLOT, G1_S) + [f"v_add_u32 v{8+i}, s40, v{8+i}" for i in range(6)]
    a("s_mov_b32 s33, 0\ns_mov_b32 s37, 0")
    stamp(a, 1); a("s_waitcnt lgkmcnt(0)\ns_barrier"); stamp(a, 2); a("s_waitcnt lgkmcnt(0)" if PROF else "")
    emit_step(a, [], [], reads(0), adv)
    a.label(f"{L}_c", 3)
    bar(a)
    emit_step(a, mf(0), ids, reads(1), adv + ["s_add_u32 s33, s33, 2", "s_cmp_ge_u32 s33, 32"])
    a(f"s_cbranch_scc1 {L}_clast")
    bar(a)
    emit_step(a, mf(1), ids, reads(0), adv)
    a(f"s_branch {L}_c")
    a.label(f"{L}_clast"); stamp(a, 3)
    if PROF: a("s_waitcnt lgkmcnt(0)")
    emit_step(a, mf(1), ids, [], [])
    c0 = -2 * 0.7978845608028654 * LOG2E; c1 = c0 * 0.044715
    a(f"v_mov_b32 v2, {f2u(c0)}\nv_mov_b32 v4, {f2u(c1)}\nv_mov_b32 v6, 1.0\ns_nop 4")
    T = PA
    for p in range(2):
        for dt in range(2):
            o = QA_ + 4 * (2 * p + dt)
            prs = [ACC + 8 * (2 * p + h) + 4 * dt + 2 * q for h in range(2) for q in range(2)]
            for i, b in enumerate(prs): a(f"v_pk_mul_f32 {v(T+2*i,2)}, {v(b,2)}, {v(b,2)}")
            for i, b in enumerate(prs): a(f"v_pk_fma_f32 {v(T+2*i,2)}, {v(T+2*i,2)}, v[4:5], v[2:3] op_sel_hi:[1,0,0]")
            for i, b in enumerate(prs): a(f"v_pk_mul_f32 {v(T+2*i,2)}, {v(T+2*i,2)}, {v(b,2)}")
            for i in range(8): a(f"v_exp_f32 v{T+i}, v{T+i}")
            for i, b in enumerate(prs): a(f"v_pk_add_f32 {v(T+2*i,2)}, {v(T+2*i,2)}, v[6:7] op_sel_hi:[1,0]")
            for i in range(8): a(f"v_rcp_f32 v{T+i}, v{T+i}")
            for i, b in enumerate(prs): a(f"v_pk_mul_f32 {v(T+2*i,2)}, {v(T+2*i,2)}, {v(b,2)}")
            for i in range(4): a(f"v_cvt_pk_bf16_f32 v{o+i}, v{T+2*i}, v{T+2*i+1}")
            a(f"s_mov_b32 s29, {dt*68*1024}\nbuffer_store_dwordx4 {v(o,4)}, v14, s[8:11], s29 offen offset:{1024*p}")
    stamp(a, 4); a("s_waitcnt vmcnt(0)" if PROF else ""); endp(a)

def map_g1(a, swg):
    stag = "nsg" not in OPTS
    a(f"""
    s_and_b32 s16, s{swg}, 7
    s_lshr_b32 s18, s{swg}, 3
    s_mul_i32 s19, s18, 86
    s_lshr_b32 s19, s19, 8
    s_mul_i32 s22, s19, 3
    s_sub_u32 s22, s18, s22
    s_and_b32 s17, s16, 1
    s_mul_i32 s17, s17, 5
    s_add_u32 s17, s17, s19
    s_lshr_b32 s16, s16, 1
    s_mul_i32 s16, s16, 3
    s_add_u32 s16, s16, s22
    """)
    if stag: a("s_mul_i32 s18, s19, 6\ns_mul_i32 s22, s22, 10\ns_add_u32 s18, s18, s22\ns_and_b32 s18, s18, 31")
    else: a("s_mov_b32 s18, 0")

def gen_g1(a, name):
    kernel_head(a, name)
    lane_wave(a, 1, 3)
    a(f"s_cmp_ge_u32 s2, 120\ns_cbranch_scc1 Lg1_end")
    map_g1(a, 2)
    body_g1(a, "Lg1")
    a.label("Lg1_end")
    a("s_endpgm")
    return kernel_desc(name, 144, 96)

QA_S, QA_SLOT, QA_W = 3, 49152, 18432
def body_qa(a, L):
    a(f"""
    s_load_dwordx2 s[4:5], s[0:1], {KA['x']}
    s_load_dwordx2 s[8:9], s[0:1], {KA['wqkv']}
    s_load_dwordx2 s[20:21], s[0:1], {KA['ws']}
    s_cmp_ge_u32 s3, 4
    s_cbranch_scc1 {L}_cons
    s_cmp_eq_u32 s3, 3
    s_cbranch_scc1 {L}_idle
    s_setprio 1
    v_lshrrev_b32 v2, 3, v1
    s_lshl_b32 s23, s3, 3
    v_add_u32 v2, s23, v2
    s_lshl_b32 s26, s16, 7
    s_sub_u32 s26, s26, 16
    v_and_b32 v3, 7, v1
    """)
    for i in range(6):
        a(f"""
        v_add_u32 v4, {24*i}, v2
        v_lshrrev_b32 v5, 1, v4
        v_and_b32 v5, 7, v5
        v_xor_b32 v5, v5, v3
        v_add_u32 v4, s26, v4
        v_max_i32 v4, 0, v4
        v_mul_u32_u24 v4, 1280, v4
        v_lshl_add_u32 v{8+i}, v5, 4, v4
        """)
    a(f"s_mul_i32 s23, s3, 320\ns_mul_i32 s26, s17, 160\nv_add_u32 v2, s23, v1")
    for i in range(5):
        a(f"""
        v_add_u32 v3, {64*i}, v2
        v_mul_u32_u24 v4, 2185, v3
        v_lshrrev_b32 v4, 16, v4
        v_mul_u32_u24 v5, 30, v4
        v_sub_u32 v3, v3, v5
        v_mul_u32_u24 v5, 26, v3
        v_lshrrev_b32 v5, 8, v5
        v_mul_u32_u24 v5, {1280-160}, v5
        v_lshl_add_u32 v3, v3, 4, v5
        v_and_b32 v5, 12, v4
        v_lshlrev_b32 v5, 1, v5
        v_lshrrev_b32 v6, 4, v4
        v_lshl_add_u32 v5, v6, 2, v5
        v_and_b32 v4, 3, v4
        v_add_u32 v4, v4, v5
        v_mul_u32_u24 v4, 3840, v4
        v_add3_u32 v{16+i}, v4, v3, s26
        """)
    a(f"""
    s_mov_b32 s34, s18
    s_mov_b32 s37, 0
    s_lshl_b32 s38, s3, 10
    s_mul_i32 s39, s3, 5120
    s_add_u32 s39, s39, {QA_W}
    s_waitcnt lgkmcnt(0)
    """)
    srd(a, 4, 4, H_SZ); srd(a, 8, 8, 640 * 3840)
    def issue(tag):
        a(f"s_lshl_b32 s40, s34, 7\ns_mul_i32 s41, s34, {64*3840}\ns_add_u32 s42, s37, s38\ns_add_u32 s43, s37, s39\ns_add_u32 s44, s41, {32*3840}")
        for i in range(3): a(f"s_add_u32 m0, s42, {3072*i}\nbuffer_load_dwordx4 v{8+i}, s[4:7], s40 offen lds")
        for i in range(5): a(f"s_add_u32 m0, s43, {1024*i}\nbuffer_load_dwordx4 v{16+i}, s[8:11], s41 offen lds")
        for i in range(3, 6): a(f"s_add_u32 m0, s42, {3072*i}\nbuffer_load_dwordx4 v{8+i}, s[4:7], s40 offen lds")
        for i in range(5): a(f"s_add_u32 m0, s43, {15360+1024*i}\nbuffer_load_dwordx4 v{16+i}, s[8:11], s44 offen lds")
        a(f"""
        s_add_u32 s37, s37, {QA_SLOT}
        s_cmp_ge_u32 s37, {QA_SLOT*QA_S}
        s_cselect_b32 s37, 0, s37
        s_add_u32 s34, s34, 1
        s_cmp_ge_u32 s34, 10
        s_cselect_b32 s34, 0, s34
        """)
    loader_loop(a, L, 10, QA_S, 16, issue, 33)
    a.label(f"{L}_idle")
    a("s_endpgm")
    a.label(f"{L}_cons")
    AQ, AK, AV = 16, 56, 116
    XF, WB = 176, 200
    NB, DD = 5, 3
    a(f"""
    s_sub_u32 s3, s3, 4
    v_and_b32 v2, 15, v1
    v_lshrrev_b32 v3, 4, v1
    v_lshrrev_b32 v4, 1, v2
    v_xor_b32 v4, v4, v3
    v_lshlrev_b32 v4, 4, v4
    v_lshl_add_u32 v4, v2, 7, v4
    s_lshl_b32 s23, s3, 12
    v_add_u32 v8, s23, v4
    v_xor_b32 v9, 64, v8
    v_lshrrev_b32 v5, 2, v1
    v_mul_u32_u24 v5, 480, v5
    v_add_u32 v5, {QA_W}, v5
    v_and_b32 v6, 3, v1
    v_lshl_add_u32 v10, v6, 3, v5
    v_mul_u32_u24 v6, 40, v6
    v_add3_u32 v11, v6, v5, 32
    """)
    for i in range(160): a(f"v_mov_b32 v{16+i}, 0")
    def xread(kk): return [f"ds_read_b128 {v(XF+12*kk+4*rt,4)}, v{8+kk} offset:{2048*rt}" for rt in range(3)]
    def wread(u):
        kk, c = divmod(u, 15); p, tt = divmod(c, 5)
        b = WB + 4 * (u % NB)
        ad = 11 if tt == 4 else 10
        off = kk * 15360 + p * 160 + (0 if tt == 4 else 40 * tt)
        return [f"ds_read_b64_tr_b16 {v(b,2)}, v{ad} offset:{off}", f"ds_read_b64_tr_b16 {v(b+2,2)}, v{ad} offset:{off+7680}"]
    def mf(u):
        kk, c = divmod(u, 15); p, tt = divmod(c, 5)
        w = v(WB + 4 * (u % NB), 4); r = []
        for rt in range(3):
            x = v(XF + 12 * kk + 4 * rt, 4)
            if p == 0:
                if rt == 0: continue
                d = v(AQ + 20 * (rt - 1) + 4 * tt, 4); r.append(f"v_mfma_f32_16x16x32_bf16 {d}, {w}, {x}, {d}")
            elif p == 1:
                d = v(AK + 20 * rt + 4 * tt, 4); r.append(f"v_mfma_f32_16x16x32_bf16 {d}, {w}, {x}, {d}")
            else:
                d = v(AV + 12 * tt + 4 * rt, 4); r.append(f"v_mfma_f32_16x16x32_bf16 {d}, {x}, {w}, {d}")
        return r
    a("s_mov_b32 s33, 0\ns_mov_b32 s37, 0")
    stamp(a, 1); a("s_waitcnt lgkmcnt(0)\ns_barrier"); stamp(a, 2); a("s_waitcnt lgkmcnt(0)" if PROF else "")
    for t in xread(0): a(t)
    for u in range(DD):
        for t in wread(u): a(t)
    a(f"s_waitcnt lgkmcnt({2*DD-2})")
    a.label(f"{L}_c", 3)
    q = []
    for u in range(1, DD): q += [u, u]
    misc = slot_adv(QA_SLOT, QA_S) + ["s_add_u32 s33, s33, 1", "s_cmp_ge_u32 s33, 10"]
    for u in range(30):
        nx = u + DD; fill = []
        if nx < 30:
            if nx == 15: fill += [(t, 15) for t in xread(1)]
            fill += [(t, nx) for t in wread(nx)]
        else:
            if nx == 30: fill += [(t, 30) for t in xread(0)]
            fill += [(t, nx) for t in wread(nx - 30)]
        ms = mf(u)
        if nx == 30:
            a(f"s_waitcnt lgkmcnt(0)\ns_cbranch_scc1 {L}_clast"); bar(a); q = []
        per = -(-len(fill) // len(ms))
        for i, m in enumerate(ms):
            a(m)
            for t, tag in fill[i*per:(i+1)*per]: a(t); q.append(tag)
            if len(ms) == 3 and i == 2 and misc and u < 20: a(misc.pop(0))
        if nx == 29:
            for i in range(4): a(f"v_add_u32 v{8+i}, s40, v{8+i}")
        if any(t <= u + 1 for t in q):
            last = max(i for i, t in enumerate(q) if t <= u + 1)
            q = q[last + 1:]
            a(f"s_waitcnt lgkmcnt({len(q)})")
    assert not misc and len(q) == 2 * DD - 2
    a(f"s_branch {L}_c")
    a.label(f"{L}_clast"); stamp(a, 3)
    for u in range(30 - DD, 30):
        for m in mf(u): a(m)
    M0, M1, MF, PM = 176, 180, 184, 188
    SR = 192
    TM = 224
    a(f"""
    s_waitcnt lgkmcnt(0)
    v_lshlrev_b32 v4, 2, v3
    v_sub_u32 v4, v2, v4
    v_mov_b32 v5, {f2u(-1e30)}
    """)
    for r in range(4):
        a(f"""
        v_subrev_u32 v6, {r}, v4
        v_and_b32 v6, 0x80000001, v6
        v_cmp_eq_u32 vcc, 0, v6
        v_cndmask_b32 v{M1+r}, v5, 0, vcc
        v_cndmask_b32 v{TM+4+r}, 0, -1, vcc
        v_cmp_eq_u32 vcc, 0x80000000, v6
        v_cndmask_b32 v{M0+r}, v5, 0, vcc
        v_cndmask_b32 v{TM+r}, 0, -1, vcc
        """.replace("v_cndmask_b32", "v_cndmask_b32_e64"))
    a("s_mov_b32 s30, 0xffff")
    for i in range(4): a(f"v_bfi_b32 v{PM+i}, s30, v{TM+2*i}, v{TM+2*i+1}")
    a(f"s_or_b32 s23, s16, s3\ns_cmp_eq_u32 s23, 0\ns_cselect_b64 vcc, -1, 0")
    for r in range(4): a(f"v_cndmask_b32 v{MF+r}, v{M0+r}, v5, vcc")
    for h in range(4): a(f"v_cmp_eq_u32 s[{44+2*h}:{45+2*h}], {h}, v3")
    a("v_lshrrev_b32 v6, 2, v2")
    for h in range(1, 4): a(f"v_cmp_eq_u32 s[{52+2*h}:{53+2*h}], {h}, v6")
    a(f"""
    s_mul_i32 s23, s17, 80
    s_lshl_b32 s26, s16, 8
    s_lshl_b32 s27, s3, 6
    s_add_u32 s26, s26, s27
    v_lshl_add_u32 v7, v3, 3, s26
    v_add_u32 v12, s23, v2
    v_lshl_add_u32 v12, v12, 12, v7
    v_mul_u32_u24 v6, 20, v6
    v_and_b32 v13, 3, v2
    v_add3_u32 v13, v13, v6, s23
    v_add_u32 v13, 16, v13
    v_lshl_add_u32 v13, v13, 12, v7
    """)
    srd(a, 4, 20, OT_SZ, OT_OFF)
    cv = lambda d, s0: a(f"v_cvt_pk_bf16_f32 v{d}, v{s0}, v{s0+1}")
    for rt in range(3):
        t4 = AK + 20 * rt + 16
        for h in range(4):
            b = AK + 20 * rt + 4 * h
            cv(b, b); cv(b + 1, b + 2); cv(b + 2, t4); cv(b + 3, t4 + 2)
    for rt in range(2):
        t4 = AQ + 20 * rt + 16
        cv(t4, t4); cv(t4 + 1, t4 + 2)
        for h in range(4):
            b = AQ + 20 * rt + 4 * h
            cv(b, b); cv(b + 1, b + 2)
            a(f"v_cndmask_b32 v{b+2}, 0, v{t4}, s[{44+2*h}:{45+2*h}]\nv_cndmask_b32 v{b+3}, 0, v{t4+1}, s[{44+2*h}:{45+2*h}]")
    cs = f2u(20 ** -0.5 * LOG2E)
    a(f"s_mov_b32 s31, {cs}")
    vdone = False
    for rt in (1, 2):
        for h in range(4):
            qf = v(AQ + 20 * (rt - 1) + 4 * h, 4)
            a(f"v_mfma_f32_16x16x32_bf16 {v(SR+8*h,4)}, {v(AK+20*(rt-1)+4*h,4)}, {qf}, {v(MF if rt == 1 else M0,4)}")
            a(f"v_mfma_f32_16x16x32_bf16 {v(SR+8*h+4,4)}, {v(AK+20*rt+4*h,4)}, {qf}, {v(M1,4)}")
        if not vdone:
            for tt in range(5):
                b = AV + 12 * tt
                for i in range(6): cv(b + i, b + 2 * i)
            vdone = True
        VA, VB, X = TM, TM + 4, TM + 8
        for h in range(4):
            s = SR + 8 * h
            a(f"v_max3_f32 v{VA+h}, v{s}, v{s+1}, v{s+4}\nv_max3_f32 v{VB+h}, v{s+2}, v{s+3}, v{s+6}")
        for h in range(4):
            s = SR + 8 * h
            a(f"v_max_f32 v{VA+h}, v{VA+h}, v{s+5}\nv_max_f32 v{VB+h}, v{VB+h}, v{s+7}")
        def xred(op):
            a(f"v_permlane32_swap_b32 v{X}, v{X+1}\nv_permlane32_swap_b32 v{X+2}, v{X+3}")
            a(f"{op} v{X}, v{X}, v{X+1}\n{op} v{X+2}, v{X+2}, v{X+3}")
            a(f"v_permlane16_swap_b32 v{X}, v{X+2}\n{op} v{X}, v{X}, v{X+2}")
        def xbc():
            a(f"v_mov_b32 v{X+2}, v{X}\nv_permlane16_swap_b32 v{X}, v{X+2}")
            a(f"v_mov_b32 v{X+1}, v{X}\nv_mov_b32 v{X+3}, v{X+2}")
            a(f"v_permlane32_swap_b32 v{X}, v{X+1}\nv_permlane32_swap_b32 v{X+2}, v{X+3}")
        for h in range(4): a(f"v_max_f32 v{X+h}, v{VA+h}, v{VB+h}")
        xred("v_max_f32")
        a(f"v_mul_f32 v{X}, s31, v{X}")
        xbc()
        for h in range(4): a(f"v_fma_f32 v{VA+h}, v{VA+h}, s31, -v{X+h}\nv_fma_f32 v{VB+h}, v{VB+h}, s31, -v{X+h}")
        for h in range(4): a(f"v_exp_f32 v{VA+h}, v{VA+h}\nv_exp_f32 v{VB+h}, v{VB+h}")
        for h in range(4): a(f"v_add_f32 v{X+h}, v{VA+h}, v{VB+h}")
        xred("v_add_f32")
        a(f"v_rcp_f32 v{X}, v{X}")
        xbc()
        for h in range(4): a(f"v_mul_f32 v{VA+h}, v{VA+h}, v{X+h}\nv_mul_f32 v{VB+h}, v{VB+h}, v{X+h}")
        for h in range(4): a(f"v_cvt_pk_bf16_f32 v{VA+h}, v{VA+h}, v{VA+h}\nv_cvt_pk_bf16_f32 v{VB+h}, v{VB+h}, v{VB+h}")
        P = TM + 12
        for h in range(4):
            a(f"v_and_b32 v{P+4*h}, v{VA+h}, v{PM}\nv_and_b32 v{P+4*h+1}, v{VB+h}, v{PM+1}\nv_and_b32 v{P+4*h+2}, v{VA+h}, v{PM+2}\nv_and_b32 v{P+4*h+3}, v{VB+h}, v{PM+3}")
        for h in range(4):
            a(f"v_mfma_f32_16x16x32_bf16 {v(SR+8*h,4)}, {v(P+4*h,4)}, {v(AV+12*h+2*(rt-1),4)}, 0")
            a(f"v_mfma_f32_16x16x32_bf16 {v(SR+8*h+4,4)}, {v(P+4*h,4)}, {v(AV+48+2*(rt-1),4)}, 0")
        O = TM
        for h in range(4):
            cv(O + 2 * h, SR + 8 * h); cv(O + 2 * h + 1, SR + 8 * h + 2)
            a(f"s_mov_b32 s29, {20*4096*h}\nbuffer_store_dwordx2 {v(O+2*h,2)}, v12, s[4:7], s29 offen offset:{32*(rt-1)}")
        for h in range(1, 4):
            for r in range(4): a(f"v_cndmask_b32 v{SR+4+r}, v{SR+4+r}, v{SR+8*h+4+r}, s[{52+2*h}:{53+2*h}]")
        cv(O + 8, SR + 4); cv(O + 9, SR + 6)
        a(f"buffer_store_dwordx2 {v(O+8,2)}, v13, s[4:7], 0 offen offset:{32*(rt-1)}")
    stamp(a, 4); a("s_waitcnt vmcnt(0)" if PROF else ""); endp(a)

def map_qa(a, swg):
    stag = "nsq" not in OPTS
    a(f"""
    s_and_b32 s17, s{swg}, 7
    s_lshr_b32 s18, s{swg}, 3
    s_lshr_b32 s16, s17, 1
    s_lshl_b32 s16, s16, 2
    s_and_b32 s19, s18, 3
    s_add_u32 s16, s16, s19
    s_and_b32 s17, s17, 1
    s_lshl_b32 s17, s17, 2
    s_lshr_b32 s18, s18, 2
    s_add_u32 s17, s17, s18
    """)
    if stag: a("s_add_u32 s18, s18, s19\ns_and_b32 s18, s18, 3\ns_mul_i32 s18, s18, 5\ns_lshr_b32 s18, s18, 1")
    else: a("s_mov_b32 s18, 0")

def gen_qa(a, name):
    kernel_head(a, name)
    lane_wave(a, 1, 3)
    a(f"s_cmp_ge_u32 s2, 128\ns_cbranch_scc1 Lqa_end")
    map_qa(a, 2)
    body_qa(a, "Lqa")
    a.label("Lqa_end")
    a("s_endpgm")
    return kernel_desc(name, 256, 96)

def gen_k1(a, name):
    kernel_head(a, name)
    lane_wave(a, 1, 3)
    a(f"s_cmp_ge_u32 s2, 248\ns_cbranch_scc1 Lk1_end\ns_cmp_lt_u32 s2, 120\ns_cbranch_scc1 Lk1_g1\ns_sub_u32 s2, s2, 120")
    map_qa(a, 2)
    body_qa(a, "Lqa")
    a.label("Lk1_g1")
    map_g1(a, 2)
    body_g1(a, "Lg1")
    a.label("Lk1_end")
    a("s_endpgm")
    return kernel_desc(name, 256, 96)

def gen_empty(a, name):
    kernel_head(a, name)
    a("s_endpgm")
    return kernel_desc(name, 8, 16)

def gen_pf(a, name):
    kernel_head(a, name)
    bufs = dict(X=(0, 2621440), Q=(8, 640*3840), O=(16, 640*1280), B=(24, 2621440), U=(32, 2048*3072), V=(48, 1536*4096))
    sel = next(o for o in OPTS if o.startswith("pf"))[2:]
    lane_wave(a, 1, 3)
    a("s_cmp_ge_u32 s2, 256\ns_cbranch_scc1 Lpf_end\ns_lshl_b32 s3, s2, 12\nv_lshl_add_u32 v1, v0, 4, s3")
    r = 4
    for ch in sel:
        if ch == "C":
            a("s_getpc_b64 s[12:13]\nLpf_pc:\ns_add_u32 s12, s12, k0_kernel-Lpf_pc\ns_addc_u32 s13, s13, 0\nv_lshlrev_b32 v2, 7, v0")
            a("v_cmp_gt_u32 vcc, Lcode_end-k0_kernel, v2\ns_and_saveexec_b64 s[14:15], vcc\ns_cbranch_execz Lpf_nc\nglobal_load_dword v3, v2, s[12:13]\nLpf_nc:\ns_mov_b64 exec, s[14:15]")
            continue
        off, size = bufs[ch]
        a(f"s_load_dwordx2 s[4:5], s[0:1], {off}\ns_waitcnt lgkmcnt(0)\ns_mov_b32 s6, {size}\ns_mov_b32 s7, 0x20000")
        for i in range((size + (1 << 20) - 1) >> 20):
            a(f"s_mov_b32 s8, {i << 20}\nbuffer_load_dwordx4 v[{r}:{r+3}], v1, s[4:7], s8 offen {'nt' if 'nt' in OPTS else ''}"); r += 4
    a("s_waitcnt vmcnt(0)"); endp(a)
    a.label("Lpf_end")
    a("s_endpgm")
    return kernel_desc(name, 128, 96)

def gen_osc(a, name):
    kernel_head(a, name)
    o = next(o for o in OPTS if o.startswith("osc"))[3:].split("_")
    first = next(o for o in OPTS if o.startswith("t0"))[2:].split("_")
    a(f"s_cmp_ge_u32 s2, 1\ns_cbranch_scc1 Losc_end\ns_load_dwordx2 s[4:5], s[0:1], {KA['ws']}\ns_waitcnt lgkmcnt(0)")
    srd(a, 4, 4, 0x100000, TL_OFF)
    def red(dst, k, wg0, wg1, wave, slot, op):
        a(f"v_min_u32 v1, {wg1-wg0-1}, v0\nv_add_u32 v1, {wg0}, v1\nv_lshlrev_b32 v1, 9, v1\ns_mov_b32 s8, {k*0x40000 + wave*64 + slot*4}")
        a(f"buffer_load_dword v2, v1, s[4:7], s8 offen\ns_waitcnt vmcnt(0)\nv_lshlrev_b32 v3, 2, v0\nds_write_b32 v3, v2\ns_waitcnt lgkmcnt(0)\ns_barrier")
        a("v_and_b32 v3, 63, v0\nv_lshlrev_b32 v3, 2, v3")
        for i in range(8): a(f"ds_read_b32 v{4+i}, v3 offset:{256*i}")
        a("s_waitcnt lgkmcnt(0)\ns_barrier")
        for i in range(1, 8): a(f"v_{op}_u32 v4, v4, v{4+i}")
        a(f"v_readlane_b32 s{dst}, v4, 0")
        for i in range(1, 64): a(f"v_readlane_b32 s9, v4, {i}\ns_nop 0\ns_{op}_u32 s{dst}, s{dst}, s9")
    red(20, int(first[0]), 0, int(first[1]), 0, 0, "min")
    if len(o) > 1:
        red(21, int(o[0]), int(o[1]), int(o[2]), int(o[3]), int(o[4]), "min" if o[5] == "n" else "max")
        a("s_sub_u32 s21, s21, s20\ns_min_u32 s21, s21, 20000\ns_lshl_b32 s21, s21, 2")
    else: a("s_mov_b32 s21, 0")
    a("s_add_u32 s21, s21, 10000\nLosc_spin:\ns_memrealtime s[10:11]\ns_waitcnt lgkmcnt(0)\ns_sub_u32 s10, s10, s20\ns_cmp_lt_u32 s10, s21\ns_cbranch_scc1 Losc_spin")
    a.label("Losc_end")
    a("s_endpgm")
    return kernel_desc(name, 16, 32)

def build(variant="split"):
    global PROF, PROF2
    variant, *opts = variant.split("+")
    OPTS[:] = opts
    PROF2 = "prof2" in opts
    PROF = "prof" in opts or PROF2
    ref = open(f"cdna_kernels/{NAME}.s.ref").read().split("\n")
    head = [l for l in ref[:ref.index(next(x for x in ref if x.startswith("; Override")))]]
    a = Asm()
    a.raw("\n".join(head))
    if variant == "split":
        launches = [("k0_kernel", 306, 256, 16384), ("qa_kernel", 128, 512, QA_S * QA_SLOT), ("g1_kernel", 120, 512, G1_S * G1_SLOT), ("p2_kernel", 256, 384, P2_S * P2_SLOT)]
        gens = [gen_k0, gen_qa, gen_g1, gen_p2]
    else:
        launches = [("k0_kernel", 306, 256, 16384), ("k1_kernel", 248, 512, 147456), ("p2_kernel", 256, 384, P2_S * P2_SLOT)]
        gens = [gen_k0, gen_k1, gen_p2]
    for o in opts:
        if o[0] == "e" and o[1:].isdigit():
            n = int(o[1:])
            launches = launches + [("empty_kernel", 256, 256, 0)] * n
        if o[0] == "x" and o[1:].isdigit():
            launches = launches * int(o[1:])
        if o[0] == "d" and o[1:].isdigit():
            i = int(o[1:]); launches = launches[:i+1] + launches[i:]
        if o[0] == "f" and o[1:].isdigit():
            n = int(o[1:])
            launches = [("empty_kernel", 256, 256, 0)] * n + launches
    if any(o.startswith("pf") for o in opts): launches = [("pf_kernel", 256, 256, 0)] + launches
    if any(o.startswith("osc") for o in opts): launches = launches + [("osc_kernel", 1, 512, 4096)]
    byname = dict(osc_kernel=gen_osc, pf_kernel=gen_pf, k0_kernel=gen_k0, qa_kernel=gen_qa, g1_kernel=gen_g1, p2_kernel=gen_p2, k1_kernel=gen_k1, empty_kernel=gen_empty)
    for n, g, b, l in launches: a.raw(f"; @launch kernel={n} grid=({g},1,1) block=({b},1,1) lds={l}")
    a.raw('.amdgcn_target "amdgcn-amd-amdhsa--gfx950"')
    descs = []
    for n in dict.fromkeys(l[0] for l in launches):
        CUR[0] = KIDX.get(n, 0); descs.append(byname[n](a, n))
    a.raw("Lcode_end:")
    if "noload" in opts:
        a.lines = [(t, c) for t, c in a.lines if not (c is not None and c.kind == "vmem" and c.lds)]
    if "nocomp" in opts:
        a.lines = [(t, c) for t, c in a.lines if not (c is not None and (c.kind == "mfma" or c.op.startswith("ds_read")))]
    if "nomfma" in opts:
        a.lines = [(t, c) for t, c in a.lines if not (c is not None and c.kind == "mfma")]
    if "nods" in opts:
        a.lines = [(t, c) for t, c in a.lines if not (c is not None and c.op.startswith("ds_read"))]
    bad = a.check_branches()
    for b in bad: print("HAZARD across branch:", b, file=sys.stderr)
    assert not bad
    for d in descs: a.raw(d)
    return a.text()

if __name__ == "__main__":
    variant = sys.argv[1] if len(sys.argv) > 1 else "split"
    out = sys.argv[2] if len(sys.argv) > 2 else f"cdna_kernels/{NAME}.s"
    open(out, "w").write(build(variant))
```

```python
import sys, struct
from dsl import *

NAME = "gated_mix__sliding_local_dilated__mixer_token_mlp__prompt"
S_, D_, F_ = 2048, 640, 1536
KA = dict(x=0, wqkv=8, wo=16, w1=32, b1=40, w2=48, b2=56, gw=64, out=72, dbg=80, ws=88)
H_OFF, OT_OFF, UW_OFF, G_OFF, FL_OFF = 0, 0x280000, 0x500000, 0x800000, 0x810000
H_SZ, OT_SZ, UW_SZ, G_SZ, FL_SZ = 2621440, 2621440, 40 * 68 * 1024, 8192, 0x70000
F1, F2, F4, FZ, F3 = 0, 0x20000, 0x28000, 0x40000, 0x50000
RING = 147456; CTR = RING; LDS_SZ = RING + 64
LOG2E = 1.4426950408889634
OPTS = []; PROF = False; TL_OFF = 0x1000000
SC = "sc1"
def f2u(x): return "0x%08x" % struct.unpack("<I", struct.pack("<f", x))[0]
def v(n, k=1): return f"v{n}" if k == 1 else f"v[{n}:{n+k-1}]"
def opt(name, default=None):
    for o in OPTS:
        if o == name: return True
        if o.startswith(name + "="): return int(o.split("=")[1])
    return default

def srd(a, d, base, size, off=0):
    if off: a(f"s_add_u32 s{d}, s{base}, {off}\ns_addc_u32 s{d+1}, s{base+1}, 0")
    elif d != base: a(f"s_mov_b32 s{d}, s{base}\ns_mov_b32 s{d+1}, s{base+1}")
    a(f"s_mov_b32 s{d+2}, {size}\ns_mov_b32 s{d+3}, 0x20000")

def estamp(a, i):
    if PROF and opt("early"): a(f"s_memrealtime s[{70+2*i}:{71+2*i}]\ns_waitcnt lgkmcnt(0)")
def lstamp(a, i):
    if PROF and opt("late"): a(f"s_memrealtime s[{70+2*i}:{71+2*i}]\ns_waitcnt lgkmcnt(0)")
def stamp(a, i, wait=False):
    if PROF and (i == 0 or not (opt("early") or opt("late"))): a(f"s_memrealtime s[{70+2*i}:{71+2*i}]" + ("\ns_waitcnt lgkmcnt(0)" if wait else ""))
def endp(a):
    if PROF:
        a(f"""
        s_waitcnt vmcnt(0)
        s_memrealtime s[84:85]
        s_memtime s[86:87]
        s_waitcnt lgkmcnt(0)
        s_sub_u32 s86, s86, s66
        s_add_u32 s60, s20, {TL_OFF + 0x40000}
        s_addc_u32 s61, s21, 0
        s_mov_b32 s62, 0x40000
        s_mov_b32 s63, 0x20000
        s_mov_b64 exec, 1
        s_lshl_b32 s64, s2, 3
        s_add_u32 s64, s64, s69
        s_lshl_b32 s64, s64, 6
        v_mov_b32 v0, s64
        """)
        for i in range(8): a(f"v_mov_b32 v{4+i}, s{70+2*i}")
        a("v_mov_b32 v12, s86")
        a("buffer_store_dwordx4 v[4:7], v0, s[60:63], 0 offen\nbuffer_store_dwordx4 v[8:11], v0, s[60:63], 0 offen offset:16\nbuffer_store_dword v12, v0, s[60:63], 0 offen offset:32")
    a("s_endpgm")

def emit_step(a, M, prev_ids, R, extra, per_gap=2, head=2):
    q = list(prev_ids); fill = [("r", x) for x in R] + [("x", x) for x in extra]
    def put(n):
        for _ in range(n):
            if not fill: return
            k, x = fill.pop(0)
            if k == "r": a(x[0]); q.append(("n", x[1]))
            else: a(x)
    put(head)
    for text, need_ in M:
        idx = [i for i, t in enumerate(q) if t in need_]
        if idx:
            n = min(len(q) - 1 - idx[-1], 15)
            a(f"s_waitcnt lgkmcnt({n})"); del q[:len(q) - n]
        a(text); put(per_gap)
    put(len(fill))

def slot_adv(SLOT, S):
    return [f"s_add_u32 s40, s37, {SLOT}", f"s_cmp_ge_u32 s40, {SLOT*S}", "s_cselect_b32 s41, 0, s40", "s_sub_u32 s40, s41, s37", "s_mov_b32 s37, s41"]

def thr(name, default):
    t = opt("t" + name, default if opt("thr") else 0)
    return f"s_waitcnt vmcnt({t-1})\n" if t else ""
UID = [0]
def uid(p): UID[0] += 1; return f"{p}{UID[0]}"

def issue_n(a, n, issue):
    L = uid("Li")
    a(f"s_add_u32 s32, s33, {n}")
    a.label(L); issue()
    a(f"s_add_u32 s33, s33, 1\ns_cmp_lt_u32 s33, s32\ns_cbranch_scc1 {L}")
def steady(a, upto, n, ahead, issue):
    L = uid("Ls")
    a.label(L)
    a(f"s_waitcnt vmcnt({n*(ahead-1)})\ns_barrier"); issue()
    a(f"s_add_u32 s33, s33, 1\ns_cmp_lt_u32 s33, {upto}\ns_cbranch_scc1 {L}")
def drain(a, n, ahead):
    for k in range(ahead - 1, -1, -1): a(f"s_waitcnt vmcnt({n*k})\ns_barrier")

def publish(a, ctr, nw, vaddr, lanes):
    L = uid("Lpub")
    a(f"""
    s_waitcnt vmcnt(0)
    s_mov_b64 exec, 1
    v_mov_b32 v2, {CTR + ctr}
    v_mov_b32 v3, 1
    ds_add_rtn_u32 v3, v2, v3
    s_waitcnt lgkmcnt(0)
    v_readfirstlane_b32 s22, v3
    s_mov_b64 exec, {(1 << lanes) - 1}
    s_cmp_lg_u32 s22, {nw - 1}
    s_cbranch_scc1 {L}
    v_mov_b32 v3, s48
    buffer_store_dword v3, v{vaddr}, s[44:47], 0 offen {SC}
    """)
    a.label(L); a("s_mov_b64 exec, -1")
def gate(a, vaddr, mask, two=False):
    L = uid("Lg"); slp = "s_sleep %d" % opt("slp", 16) if opt("slp", 16) else ""
    a(f"s_mov_b32 s49, 0\ns_mov_b32 exec_lo, {mask & 0xffffffff}\ns_mov_b32 exec_hi, {mask >> 32}")
    a.label(L)
    if two: a(f"buffer_load_dword v2, v{vaddr}, s[44:47], 0 offen {SC}\ns_mov_b32 s22, 8192\nbuffer_load_dword v3, v{vaddr}, s[44:47], s22 offen {SC}\ns_waitcnt vmcnt(0)\nv_xor_b32 v2, s48, v2\nv_xor_b32 v3, s48, v3\nv_or_b32 v2, v2, v3")
    else: a(f"buffer_load_dword v2, v{vaddr}, s[44:47], 0 offen {SC}\ns_waitcnt vmcnt(0)\nv_xor_b32 v2, s48, v2")
    a(f"v_cmp_ne_u32 vcc, 0, v2\ns_add_u32 s49, s49, 1\ns_cmp_eq_u64 vcc, 0\ns_cbranch_scc1 {L}d\n{slp}\ns_cmp_lt_u32 s49, 20000\ns_cbranch_scc1 {L}")
    a.label(L + "d"); a("s_mov_b64 exec, -1")
def tag_ready(a):
    a("s_waitcnt lgkmcnt(0)\ns_mul_i32 s48, s48, 1664525\ns_add_u32 s48, s48, 1013904223")
def arrive_issue(a, vd):
    a(f"s_mov_b64 exec, 1\nv_mov_b32 v{vd}, 1\nv_mov_b32 v{vd+1}, 0\nbuffer_atomic_add v{vd}, v{vd+1}, s[12:15], 0 offen sc0\ns_mov_b64 exec, -1")
def arrive_finish(a, vd):
    L = uid("Larr")
    a(f"v_readfirstlane_b32 s22, v{vd}\ns_cmp_lg_u32 s22, 255\ns_cbranch_scc1 {L}\ns_mov_b64 exec, 1\nv_mov_b32 v{vd}, s48\nv_mov_b32 v{vd+1}, {FZ}")
    a(f"buffer_store_dword v{vd}, v{vd+1}, s[44:47], 0 offen {SC}\ns_mov_b64 exec, -1")
    a.label(L)

def code_prefetch(a):
    L = uid("Lpc")
    a(f"s_getpc_b64 s[30:31]\n{L}:\ns_sub_u32 s30, s30, {L}-{NAME}_kernel\ns_subb_u32 s31, s31, 0\nv_lshlrev_b32 v2, 7, v1")
    for i in range(opt("ncode", 0)):
        a(f"v_min_u32 v3, Lcode_end-{NAME}_kernel-4, v2\nglobal_load_dword v{40+i}, v3, s[30:31]\nv_add_u32 v2, 8192, v2")

def ln_issue(a):
    a(f"""
    s_lshl_b32 s22, s19, 4
    s_lshl_b32 s23, s3, 2
    s_add_u32 s22, s22, s23
    v_lshrrev_b32 v2, 4, v1
    v_add_u32 v10, s22, v2
    v_and_b32 v11, 15, v1
    v_lshlrev_b32 v4, 4, v11
    v_mul_u32_u24 v5, 1280, v10
    v_add_u32 v5, v5, v4
    s_waitcnt lgkmcnt(0)
    """)
    srd(a, 4, 4, H_SZ); srd(a, 8, 8, 1280)
    for i in range(5): a(f"buffer_load_dwordx4 {v(16+4*i,4)}, v5, s[4:7], 0 offen offset:{256*i}")
    for i in range(5): a(f"buffer_load_dwordx4 {v(36+4*i,4)}, v4, s[8:11], 0 offen offset:{256*i}")
def ln_finish(a):
    X, GW, U = 16, 36, 56
    srd(a, 4, 20, H_SZ, H_OFF); srd(a, 8, 20, G_SZ, G_OFF)
    a("s_mov_b32 s30, 0x3f803f80\ns_mov_b32 s31, 0xffff0000"); estamp(a, 1); a("s_waitcnt vmcnt(5)"); estamp(a, 2)
    a(f"v_dot2_f32_bf16 v6, v{X}, s30, 0\nv_dot2_f32_bf16 v8, v{X+1}, s30, 0")
    for i in range(2, 20): a(f"v_dot2_f32_bf16 v{6+2*(i&1)}, v{X+i}, s30, v{6+2*(i&1)}")
    for i in range(20): a(f"v_lshlrev_b32 v{U+2*i}, 16, v{X+i}\nv_and_b32 v{U+1+2*i}, s31, v{X+i}")
    def red(*rs):
        for sh in (8, 4, 2, 1):
            for r in rs: a(f"v_add_f32_dpp v{r}, v{r}, v{r} row_ror:{sh} row_mask:0xf bank_mask:0xf")
    a("v_add_f32 v6, v6, v8"); red(6)
    a(f"v_mul_f32 v6, {f2u(1/640)}, v6\ns_waitcnt vmcnt(0)")
    a(f"v_dot2_f32_bf16 v9, v{X}, v{GW}, 0")
    for i in range(1, 20): a(f"v_dot2_f32_bf16 v9, v{X+i}, v{GW+i}, v9")
    for i in range(20): a(f"v_pk_add_f32 {v(U+2*i,2)}, {v(U+2*i,2)}, v[6:7] op_sel_hi:[1,0] neg_lo:[0,1] neg_hi:[0,1]")
    a(f"v_pk_mul_f32 v[12:13], {v(U,2)}, {v(U,2)}\nv_pk_mul_f32 v[14:15], {v(U+2,2)}, {v(U+2,2)}")
    for i in range(2, 20): a(f"v_pk_fma_f32 {v(12+2*(i&1),2)}, {v(U+2*i,2)}, {v(U+2*i,2)}, {v(12+2*(i&1),2)}")
    a("v_pk_add_f32 v[12:13], v[12:13], v[14:15]\nv_add_f32 v12, v12, v13")
    red(12, 9)
    a(f"v_mov_b32 v8, {f2u(1e-5)}\nv_fmac_f32 v8, {f2u(1/640)}, v12\nv_rsq_f32 v12, v8\nv_mul_f32 v9, {f2u(-LOG2E)}, v9\nv_exp_f32 v9, v9")
    for j in range(5):
        for i in range(4*j, 4*j+4): a(f"v_pk_mul_f32 {v(U+2*i,2)}, {v(U+2*i,2)}, v[12:13] op_sel_hi:[1,0]")
        for i in range(4*j, 4*j+4): a(f"v_cvt_pk_bf16_f32 v{X+i}, v{U+2*i}, v{U+1+2*i}")
        a(f"buffer_store_dwordx4 {v(X+4*j,4)}, v5, s[4:7], 0 offen offset:{256*j} {SC}")
    a(f"""
    v_add_f32 v9, 1.0, v9
    v_rcp_f32 v9, v9
    v_lshlrev_b32 v10, 2, v10
    s_mov_b32 exec_lo, 0x00010001
    s_mov_b32 exec_hi, 0x00010001
    buffer_store_dword v9, v10, s[8:11], 0 offen {SC}
    s_mov_b64 exec, -1
    s_lshl_b32 s22, s19, 7
    v_lshl_add_u32 v10, v1, {14 if opt("mixed") else 15}, s22
    """)
    if True: a("s_barrier")
    estamp(a, 3); tag_ready(a)
    if opt("early"): a("s_waitcnt vmcnt(0)"); estamp(a, 4)
    publish(a, 0, 4, 10, 8 if opt('mixed') else 4)
    if opt("early"): estamp(a, 5); a("s_waitcnt vmcnt(0)"); estamp(a, 6)

G1_S, G1_SLOT = 6, 24576
def w1_sweep(a):
    a(f"s_lshl_b32 s23, s53, {2 if opt('mixed') else 1}\ns_add_u32 s23, s23, s3\ns_lshl_b32 s23, s23, 6\nv_add_u32 v2, s23, v1\ns_lshr_b32 s23, s52, 1\ns_mul_i32 s23, s23, 768\ns_mov_b32 s26, 43691")
    for n in range(3):
        a(f"v_add_u32 v3, {4096*n}, v2\nv_mul_u32_u24 v4, s26, v3\nv_lshrrev_b32 v4, 18, v4\nv_mul_u32_u24 v5, {3072-768}, v4\nv_lshl_add_u32 v5, v3, 7, v5\nv_add_u32 v{16+n}, s23, v5")
    srd(a, 4, 4, S_ * 3072)
    a("s_barrier"); estamp(a, 1)
    pre = opt("pre", 1)
    for n in range(3):
        if n == pre: a("s_barrier")
        if not opt("nopfw1"): a(f"buffer_load_dword v{20+n}, v{16+n}, s[4:7], 0 offen")
    if pre == 3: a("s_barrier")
    estamp(a, 2)
    if opt("pfwait"): a("s_waitcnt vmcnt(0)")
    estamp(a, 3)
def g1_loader_w(a):
    a(f"""
    v_lshrrev_b32 v2, 4, v1
    s_lshl_b32 s23, s3, 2
    v_add_u32 v2, s23, v2
    v_lshlrev_b32 v4, 1, v2
    v_and_b32 v3, 15, v1
    v_xor_b32 v3, v3, v4
    v_lshlrev_b32 v3, 4, v3
    v_mul_u32_u24 v2, 3072, v2
    s_lshl_b32 s26, s16, 8
    v_add3_u32 v8, v2, v3, s26
    """)
    for i in range(1, 8): a(f"v_add_u32 v{8+i}, {8*3072*i}, v8")
    a(f"""
    s_mov_b32 s34, s18
    s_lshl_b32 s37, s3, 10
    s_add_u32 s38, s37, {G1_SLOT*G1_S}
    s_mov_b32 s33, 0
    """)
    def issue():
        a(f"s_mul_i32 s40, s34, {64*3072}" if not opt("wwrap") else f"s_and_b32 s40, s34, 3\ns_mul_i32 s40, s40, {64*3072}")
        for i in range(8): a(f"s_add_u32 m0, s37, {2048*i}\n{thr('w', 11)}buffer_load_dwordx4 v{8+i}, s[4:7], s40 offen lds")
        a(f"s_add_u32 s37, s37, {G1_SLOT}\ns_cmp_ge_u32 s37, s38\ns_cselect_b32 s42, {G1_SLOT*G1_S}, 0\ns_sub_u32 s37, s37, s42\ns_add_u32 s34, s34, 1\ns_and_b32 s34, s34, 31")
    w1_sweep(a)
    if not opt("nos2"): a("s_barrier")
    issue_n(a, G1_S - 2, issue)
    if opt("early"): estamp(a, 4); a("s_waitcnt vmcnt(0)"); estamp(a, 5)
    tag_ready(a); stamp(a, 1)
    steady(a, 32, 8, G1_S - 2, issue); drain(a, 8, G1_S - 2)
    stamp(a, 2)
def g1_loader_h(a):
    a(f"""
    v_lshrrev_b32 v2, 3, v1
    v_and_b32 v3, 7, v1
    v_and_b32 v4, 6, v2
    v_xor_b32 v3, v3, v4
    v_lshlrev_b32 v3, 4, v3
    s_sub_u32 s22, s3, 2
    s_lshl_b32 s23, s22, 3
    v_add_u32 v2, s23, v2
    v_mul_u32_u24 v2, 1280, v2
    s_lshl_b32 s26, s17, 7
    v_add3_u32 v8, v2, v3, s26
    """)
    for i in range(1, 4): a(f"v_add_u32 v{8+i}, {16*1280*i}, v8")
    a(f"""
    s_lshl_b32 s23, s52, 14
    v_lshl_add_u32 v12, v1, 7, s23
    s_mov_b32 s34, s18
    s_lshl_b32 s37, s22, 10
    s_add_u32 s37, s37, 16384
    s_add_u32 s38, s37, {G1_SLOT*G1_S}
    s_mov_b32 s33, 0
    """)
    srd(a, 4, 20, H_SZ, H_OFF)
    def issue():
        a(f"s_mul_i32 s40, s34, {64*1280}" if not opt("hwrap") else f"s_and_b32 s40, s34, 3\ns_mul_i32 s40, s40, {64*1280}")
        for i in range(4): a(f"s_add_u32 m0, s37, {2048*i}\n{thr('h', 5)}buffer_load_dwordx4 v{8+i}, s[4:7], s40 offen {'' if opt('hplain') else SC} lds")
        a(f"s_add_u32 s37, s37, {G1_SLOT}\ns_cmp_ge_u32 s37, s38\ns_cselect_b32 s42, {G1_SLOT*G1_S}, 0\ns_sub_u32 s37, s37, s42\ns_add_u32 s34, s34, 1\ns_and_b32 s34, s34, 31")
    if not opt("mixed"): a("s_barrier\ns_barrier")
    tag_ready(a)
    estamp(a, 1)
    gate(a, 12, (1 << 64) - 1, two=True)
    stamp(a, 1); estamp(a, 3)
    if opt("early"): a("s_add_u32 s78, s70, s49\ns_mov_b32 s79, 0")
    if not opt("nos2"): a("s_barrier")
    issue_n(a, G1_S - 2, issue)
    steady(a, 32, 4, G1_S - 2, issue); drain(a, 4, G1_S - 2)
    stamp(a, 2)
def g1_consumer(a):
    L = "Lg1"
    ACC, T = 16, 48
    a(f"""
    s_load_dwordx2 s[24:25], s[0:1], {KA['b1']}
    s_load_dwordx2 s[12:13], s[0:1], {KA['dbg']}
    s_and_b32 s22, s3, 1
    s_lshr_b32 s23, s3, 1
    s_lshl_b32 s26, s16, 8
    s_lshl_b32 s27, s22, 7
    s_add_u32 s26, s26, s27
    v_lshrrev_b32 v2, 4, v1
    v_lshl_add_u32 v3, v2, 3, s26
    s_waitcnt lgkmcnt(0)
    """)
    srd(a, 24, 24, 3072); srd(a, 8, 20, UW_SZ, UW_OFF); srd(a, 12, 12, 256)
    for ft in range(4): a(f"buffer_load_dwordx2 {v(T+2*ft,2)}, v3, s[24:27], 0 offen offset:{32*ft}")
    a(f"""
    s_setprio 0
    v_lshrrev_b32 v5, 2, v1
    v_and_b32 v6, 3, v1
    v_lshlrev_b32 v6, 3, v6
    v_and_b32 v7, 7, v5
    v_lshl_add_u32 v4, v5, 8, v6
    s_lshl_b32 s27, s22, 2
    """)
    for ft in range(4): a(f"s_add_u32 s28, s27, {ft}\nv_xor_b32 v2, s28, v7\nv_lshl_add_u32 v{8+ft}, v2, 5, v4")
    a(f"v_lshrrev_b32 v7, 1, v5\nv_and_b32 v7, 3, v7\nv_lshl_add_u32 v4, v5, 7, v6\nv_add_u32 v4, 16384, v4\ns_lshl_b32 s27, s23, 1")
    for dt in range(2): a(f"s_add_u32 s28, s27, {dt}\nv_xor_b32 v2, s28, v7\nv_lshl_add_u32 v{12+dt}, v2, 5, v4")
    a(f"""
    s_lshl_b32 s28, s17, 2
    s_add_u32 s28, s28, s27
    s_mul_i32 s28, s28, 68
    s_lshl_b32 s29, s16, 2
    s_add_u32 s28, s28, s29
    s_lshl_b32 s29, s22, 1
    s_add_u32 s28, s28, s29
    s_lshl_b32 s28, s28, 10
    v_lshl_add_u32 v14, v1, 4, s28
    s_lshl_b32 s28, s17, 4
    s_add_u32 s28, s28, s16
    s_lshl_b32 s28, s28, 7
    s_add_u32 s28, s28, {F4}
    v_mul_u32_u24 v15, {160*128}, v1
    v_add_u32 v15, s28, v15
    s_mov_b32 s31, 0xffff0000
    s_waitcnt vmcnt(0)
    """)
    for ft in range(4):
        for dt in range(2):
            b = ACC + 8 * ft + 4 * dt
            a(f"v_lshlrev_b32 v{b}, 16, v{T+2*ft}\nv_and_b32 v{b+1}, s31, v{T+2*ft}\nv_lshlrev_b32 v{b+2}, 16, v{T+2*ft+1}\nv_and_b32 v{b+3}, s31, v{T+2*ft+1}")
    SETS = (48, 96)
    def reads(st):
        r = []
        for kk in range(2):
            b = SETS[st] + 24 * kk
            for dt in range(2): r += [(f"ds_read_b64_tr_b16 {v(b+4*dt+2*h,2)}, v{12+dt} offset:{kk*4096+2048*h}", (kk, "b", dt, h)) for h in range(2)]
            for ft in range(4): r += [(f"ds_read_b64_tr_b16 {v(b+8+4*ft+2*h,2)}, v{8+ft} offset:{kk*8192+4096*h}", (kk, "a", ft, h)) for h in range(2)]
        return r
    def mf(st):
        return [(f"v_mfma_f32_16x16x32_bf16 {v(ACC+8*ft+4*dt,4)}, {v(SETS[st]+24*kk+8+4*ft,4)}, {v(SETS[st]+24*kk+4*dt,4)}, {v(ACC+8*ft+4*dt,4)}", {(kk, "a", ft, 1)})
                for kk in range(2) for ft in range(4) for dt in range(2)]
    ids = [x[1] for x in reads(0)]
    adv = slot_adv(G1_SLOT, G1_S) + [f"v_add_u32 v{8+i}, s40, v{8+i}" for i in range(6)]
    if not opt("nos2"): a("s_barrier")
    a("s_mov_b32 s33, 0\ns_mov_b32 s37, 0\ns_barrier"); stamp(a, 2, True)
    emit_step(a, [], [], reads(0), adv)
    a.label(f"{L}_c", 3)
    a("s_barrier")
    emit_step(a, mf(0), ids, reads(1), adv + ["s_add_u32 s33, s33, 2", "s_cmp_ge_u32 s33, 32"])
    a(f"s_cbranch_scc1 {L}_clast\ns_barrier")
    emit_step(a, mf(1), ids, reads(0), adv)
    a(f"s_branch {L}_c")
    a.label(f"{L}_clast")
    a("s_waitcnt lgkmcnt(0)" + ("\ns_barrier" if opt("noe2") else "")); stamp(a, 3, True); lstamp(a, 1)
    emit_step(a, mf(1), [], [], [])
    La = uid("Lna")
    a(f"s_cmp_lg_u32 s3, 0\ns_cbranch_scc1 {La}"); arrive_issue(a, 144); a.label(La)
    c0 = -2 * 0.7978845608028654 * LOG2E; c1 = c0 * 0.044715
    lstamp(a, 2)
    a(f"v_mov_b32 v2, {f2u(c0)}\nv_mov_b32 v4, {f2u(c1)}\nv_mov_b32 v6, 1.0\ns_nop 4")
    for p in range(2):
        for dt in range(2):
            o = 72 + 4 * (2 * p + dt)
            prs = [ACC + 8 * (2 * p + h) + 4 * dt + 2 * q for h in range(2) for q in range(2)]
            for i, b in enumerate(prs): a(f"v_pk_mul_f32 {v(T+2*i,2)}, {v(b,2)}, {v(b,2)}")
            for i, b in enumerate(prs): a(f"v_pk_fma_f32 {v(T+2*i,2)}, {v(T+2*i,2)}, v[4:5], v[2:3] op_sel_hi:[1,0,0]")
            for i, b in enumerate(prs): a(f"v_pk_mul_f32 {v(T+2*i,2)}, {v(T+2*i,2)}, {v(b,2)}")
            for i in range(8): a(f"v_exp_f32 v{T+i}, v{T+i}")
            for i, b in enumerate(prs): a(f"v_pk_add_f32 {v(T+2*i,2)}, {v(T+2*i,2)}, v[6:7] op_sel_hi:[1,0]")
            for i in range(8): a(f"v_rcp_f32 v{T+i}, v{T+i}")
            for i, b in enumerate(prs): a(f"v_pk_mul_f32 {v(T+2*i,2)}, {v(T+2*i,2)}, {v(b,2)}")
            for i in range(4): a(f"v_cvt_pk_bf16_f32 v{o+i}, v{T+2*i}, v{T+2*i+1}")
            if p == 0 and dt == 0: a("s_setprio 2")
            a(f"s_mov_b32 s29, {dt*68*1024}\nbuffer_store_dwordx4 {v(o,4)}, v14, s[8:11], s29 offen offset:{1024*p} {SC}")
    lstamp(a, 3)
    if not opt("noe2"): a("s_barrier")
    if opt("late"): a("s_waitcnt vmcnt(0)"); lstamp(a, 4)
    publish(a, 4, 4, 15, 4)
    if opt("late"): lstamp(a, 5); a("s_waitcnt vmcnt(0)"); lstamp(a, 6)
    La = uid("Lna")
    a(f"s_cmp_lg_u32 s3, 0\ns_cbranch_scc1 {La}"); arrive_finish(a, 144); a.label(La)
    stamp(a, 4, True)

def spare_loader(a):
    a(f"""
    s_load_dwordx2 s[4:5], s[0:1], {KA['wo']}
    s_load_dwordx2 s[12:13], s[0:1], {KA['w2']}
    v_lshrrev_b32 v2, 3, v1
    v_and_b32 v3, 7, v1
    v_and_b32 v4, 6, v2
    v_xor_b32 v3, v3, v4
    v_lshlrev_b32 v14, 4, v3
    v_mul_u32_u24 v15, 1280, v2
    v_add_u32 v15, v15, v14
    v_lshrrev_b32 v3, 2, v2
    v_lshl_add_u32 v3, v3, 4, v2
    v_add_u32 v3, 16, v3
    v_mul_u32_u24 v3, 1280, v3
    v_add_u32 v14, v14, v3
    s_mul_i32 s23, s3, {7*4096}
    v_lshrrev_b32 v5, 2, v1
    v_lshrrev_b32 v6, 1, v5
    v_and_b32 v6, 3, v6
    v_lshlrev_b32 v5, 7, v5
    v_and_b32 v7, 3, v1
    v_lshlrev_b32 v7, 3, v7
    v_add3_u32 v5, v5, v7, s23
    """)
    for t in range(4): a(f"v_xor_b32 v7, {t}, v6\nv_lshl_add_u32 v{8+t}, v7, 5, v5")
    a(f"v_lshlrev_b32 v12, 4, v1\ns_lshl_b32 s26, s16, 7\ns_add_u32 s26, s26, {F3}\nv_lshl_add_u32 v13, v1, 10, s26")
    tag_ready(a)
    srd(a, 4, 4, 640 * 1280); srd(a, 8, 20, UW_SZ, UW_OFF); srd(a, 12, 12, F_ * 4096)
    def task():
        a("s_lshl_b32 s26, s33, 2\ns_add_u32 s26, s26, s3\ns_min_u32 s26, s26, 24\ns_mul_i32 s27, s16, 25\ns_add_u32 s27, s27, s26\ns_mul_i32 s26, s27, 6554\ns_lshr_b32 s26, s26, 16\ns_mul_i32 s28, s26, 10\ns_sub_u32 s27, s27, s28")
    L = uid("Lwo")
    a("s_mov_b32 s33, 0"); a.label(L); task()
    for half in range(2):
        a(f"""
        s_lshl_b32 s28, s26, 1
        s_add_u32 s28, s28, {half}
        s_mul_i32 s29, s28, 52
        s_lshr_b32 s29, s29, 8
        s_mul_i32 s30, s29, 5
        s_sub_u32 s28, s28, s30
        s_mul_i32 s29, s29, 80
        s_mul_i32 s30, s28, 20
        s_cmp_eq_u32 s28, 4
        s_cselect_b64 vcc, -1, 0
        s_cselect_b32 s30, 0, s30
        s_cselect_b32 s31, 40, 8
        s_mul_i32 s31, s31, 1280
        s_add_u32 s29, s29, s30
        s_mul_i32 s28, s29, 1280
        s_lshl_b32 s29, s27, 7
        s_add_u32 s28, s28, s29
        v_cndmask_b32 v2, v15, v14, vcc
        """)
        for i in range(2): a(f"s_add_u32 m0, s23, {2048*half+1024*i}\nbuffer_load_dwordx4 v2, s[4:7], s28 offen lds\ns_add_u32 s28, s28, s31")
    a(f"s_add_u32 s23, s23, 4096\ns_add_u32 s33, s33, 1\ns_cmp_lt_u32 s33, 7\ns_cbranch_scc1 {L}\ns_waitcnt vmcnt(0)\ns_mov_b32 s33, 0")
    L = uid("Lwo"); a.label(L); task()
    for t in range(4): a(f"ds_read_b64_tr_b16 {v(16+4*t,2)}, v{8+t}\nds_read_b64_tr_b16 {v(18+4*t,2)}, v{8+t} offset:2048\nv_add_u32 v{8+t}, 4096, v{8+t}")
    a(f"s_lshl_b32 s28, s27, 2\ns_mul_i32 s28, s28, 68\ns_add_u32 s28, s28, s26\ns_add_u32 s28, s28, 48\ns_lshl_b32 s28, s28, 10")
    for t in range(4): a(f"s_waitcnt lgkmcnt({6-2*t})\nbuffer_store_dwordx4 {v(16+4*t,4)}, v12, s[8:11], s28 offen {SC}\ns_add_u32 s28, s28, {68*1024}")
    a(f"s_add_u32 s33, s33, 1\ns_cmp_lt_u32 s33, 7\ns_cbranch_scc1 {L}")
    publish(a, 8, 4, 13, 8)
    stamp(a, 1)
    if not opt("nospw2") and not opt("mixed"):
        L = uid("Lw2")
        a(f"""
        s_and_b32 s22, s16, 1
        s_lshl_b32 s22, s22, 2
        s_add_u32 s22, s22, s3
        s_lshl_b32 s22, s22, 3
        v_lshrrev_b32 v2, 3, v1
        v_add_u32 v2, s22, v2
        v_lshlrev_b32 v2, 12, v2
        v_and_b32 v3, 7, v1
        v_lshl_add_u32 v2, v3, 7, v2
        s_lshr_b32 s22, s52, 1
        s_lshl_b32 s22, s22, 10
        s_mov_b32 s33, 0
        {L}:
        buffer_load_dword v30, v2, s[12:15], s22 offen
        s_add_u32 s22, s22, {64*4096}
        s_add_u32 s33, s33, 1
        s_cmp_lt_u32 s33, 24
        s_cbranch_scc1 {L}
        """)
    stamp(a, 2)

QA_S, QA_SLOT, QA_W = 3, 49152, 18432
def qa_w1_sweep(a):
    if not opt("qsw"): return
    a(f"""
    s_load_dwordx2 s[12:13], s[0:1], {KA['w1']}
    s_lshr_b32 s22, s2, 1
    s_lshl_b32 s22, s22, 2
    s_add_u32 s22, s22, s3
    s_lshl_b32 s23, s22, 12
    s_lshl_b32 s22, s22, 13
    s_add_u32 s23, s23, {512*8192}
    v_lshlrev_b32 v2, 7, v1
    s_waitcnt lgkmcnt(0)
    """)
    srd(a, 12, 12, S_ * 3072)
    a("buffer_load_dword v32, v2, s[12:15], s22 offen\ns_mov_b32 exec_hi, 0\nbuffer_load_dword v33, v2, s[12:15], s23 offen\ns_mov_b32 exec_hi, -1")
def qa_w2_burst(a):
    if not (opt("mixed") or opt("burst")) or opt("nopfw2"): return
    a(f"""
    s_load_dwordx2 s[12:13], s[0:1], {KA['w2']}
    s_sub_u32 s22, s53, {16 if opt("mixed") else 0}
    s_lshl_b32 s22, s22, 2
    s_add_u32 s22, s22, s3
    s_lshl_b32 s22, s22, 3
    v_lshrrev_b32 v2, 3, v1
    v_add_u32 v2, s22, v2
    v_lshlrev_b32 v2, 12, v2
    v_and_b32 v3, 7, v1
    v_lshl_add_u32 v2, v3, 7, v2
    s_lshr_b32 s22, s52, 1
    s_lshl_b32 s22, s22, 10
    s_waitcnt lgkmcnt(0)
    """)
    srd(a, 12, 12, F_ * 4096)
    if opt("mixed"):
        for n in range(3): a(f"buffer_load_dword v30, v2, s[12:15], s22 offen\ns_add_u32 s22, s22, {512*4096}")
    else:
        for n in range(2): a(f"buffer_load_dword v30, v2, s[12:15], s22 offen\ns_add_u32 s22, s22, {1024*4096}")
def qa_loader(a):
    a(f"v_lshrrev_b32 v2, 3, v1\ns_lshl_b32 s23, s3, 3\nv_add_u32 v2, s23, v2\ns_lshl_b32 s26, s16, 7\ns_sub_u32 s26, s26, 16\nv_and_b32 v3, 7, v1")
    for i in range(6):
        a(f"v_add_u32 v4, {24*i}, v2\nv_lshrrev_b32 v5, 1, v4\nv_and_b32 v5, 7, v5\nv_xor_b32 v5, v5, v3\nv_add_u32 v4, s26, v4\nv_max_i32 v4, 0, v4\nv_mul_u32_u24 v4, 1280, v4\nv_lshl_add_u32 v{8+i}, v5, 4, v4")
    a(f"s_mul_i32 s23, s3, 320\ns_mul_i32 s26, s17, 160\nv_add_u32 v2, s23, v1")
    for i in range(5):
        a(f"""
        v_add_u32 v3, {64*i}, v2
        v_mul_u32_u24 v4, 2185, v3
        v_lshrrev_b32 v4, 16, v4
        v_mul_u32_u24 v5, 30, v4
        v_sub_u32 v3, v3, v5
        v_mul_u32_u24 v5, 26, v3
        v_lshrrev_b32 v5, 8, v5
        v_mul_u32_u24 v5, {1280-160}, v5
        v_lshl_add_u32 v3, v3, 4, v5
        v_and_b32 v5, 12, v4
        v_lshlrev_b32 v5, 1, v5
        v_lshrrev_b32 v6, 4, v4
        v_lshl_add_u32 v5, v6, 2, v5
        v_and_b32 v4, 3, v4
        v_add_u32 v4, v4, v5
        v_mul_u32_u24 v4, 3840, v4
        v_add3_u32 v{16+i}, v4, v3, s26
        """)
    a(f"s_mov_b32 s34, s18\ns_mov_b32 s37, 0\ns_lshl_b32 s38, s3, 10\ns_mul_i32 s39, s3, 5120\ns_add_u32 s39, s39, {QA_W}\ns_mov_b32 s33, 0")
    srd(a, 4, 4, H_SZ); srd(a, 8, 8, 640 * 3840)
    def issue():
        a(f"s_lshl_b32 s40, s34, 7\ns_mul_i32 s41, s34, {64*3840}\ns_add_u32 s42, s37, s38\ns_add_u32 s43, s37, s39\ns_add_u32 s36, s41, {32*3840}")
        for i in range(3): a(f"s_add_u32 m0, s42, {3072*i}\n{thr('q', 9)}buffer_load_dwordx4 v{8+i}, s[4:7], s40 offen lds")
        for i in range(5): a(f"s_add_u32 m0, s43, {1024*i}\n{thr('q', 9)}buffer_load_dwordx4 v{16+i}, s[8:11], s41 offen lds")
        for i in range(3, 6): a(f"s_add_u32 m0, s42, {3072*i}\n{thr('q', 9)}buffer_load_dwordx4 v{8+i}, s[4:7], s40 offen lds")
        for i in range(5): a(f"s_add_u32 m0, s43, {15360+1024*i}\n{thr('q', 9)}buffer_load_dwordx4 v{16+i}, s[8:11], s36 offen lds")
        a(f"s_add_u32 s37, s37, {QA_SLOT}\ns_cmp_ge_u32 s37, {QA_SLOT*QA_S}\ns_cselect_b32 s37, 0, s37\ns_add_u32 s34, s34, 1\ns_cmp_ge_u32 s34, 10\ns_cselect_b32 s34, 0, s34")
    issue_n(a, QA_S - 1, issue)
    tag_ready(a); stamp(a, 1)
    steady(a, 10, 16, QA_S - 1, issue); drain(a, 16, QA_S - 1)
    stamp(a, 2); qa_w2_burst(a)
def qa_idle(a):
    code_prefetch(a)
    a(f"""
    s_load_dwordx2 s[12:13], s[0:1], {KA['w2']}
    v_lshrrev_b32 v2, 3, v1
    s_lshl_b32 s22, s53, 3
    v_add_u32 v2, s22, v2
    v_lshlrev_b32 v2, 12, v2
    v_and_b32 v3, 7, v1
    v_lshl_add_u32 v2, v3, 7, v2
    s_lshr_b32 s22, s52, 1
    s_lshl_b32 s22, s22, 10
    """)
    tag_ready(a)
    srd(a, 12, 12, F_ * 4096)
    w0 = opt("w2at", 3); per = opt("w2per", 1)
    for i in range(10):
        a("s_barrier")
        if w0 <= i < w0 + 6 // per and not opt("nopfw2") and not opt("mixed") and not opt("burst"):
            for k in range(per): a(f"buffer_load_dword v30, v2, s[12:15], s22 offen\ns_add_u32 s22, s22, {256*4096}")
    qa_w2_burst(a)
def qa_consumer(a):
    L = "Lqa"
    AQ, AK, AV = 16, 56, 116
    XF, WB = 176, 200
    NB, DD = 5, 3
    a(f"""
    s_load_dwordx2 s[12:13], s[0:1], {KA['dbg']}
    v_and_b32 v2, 15, v1
    v_lshrrev_b32 v3, 4, v1
    v_lshrrev_b32 v4, 1, v2
    v_xor_b32 v4, v4, v3
    v_lshlrev_b32 v4, 4, v4
    v_lshl_add_u32 v4, v2, 7, v4
    s_lshl_b32 s23, s3, 12
    v_add_u32 v8, s23, v4
    v_xor_b32 v9, 64, v8
    v_lshrrev_b32 v5, 2, v1
    v_mul_u32_u24 v5, 480, v5
    v_add_u32 v5, {QA_W}, v5
    v_and_b32 v6, 3, v1
    v_lshl_add_u32 v10, v6, 3, v5
    v_mul_u32_u24 v6, 40, v6
    v_add3_u32 v11, v6, v5, 32
    """)
    for i in range(160): a(f"v_mov_b32 v{16+i}, 0")
    M0, M1, MF, PM = 220, 224, 228, 232
    TM = 236
    a(f"v_lshlrev_b32 v4, 2, v3\nv_sub_u32 v4, v2, v4\nv_mov_b32 v5, {f2u(-1e30)}")
    for r in range(4):
        a(f"""
        v_subrev_u32 v6, {r}, v4
        v_and_b32 v6, 0x80000001, v6
        v_cmp_eq_u32 vcc, 0, v6
        v_cndmask_b32_e64 v{M1+r}, v5, 0, vcc
        v_cndmask_b32_e64 v{TM+4+r}, 0, -1, vcc
        v_cmp_eq_u32 vcc, 0x80000000, v6
        v_cndmask_b32_e64 v{M0+r}, v5, 0, vcc
        v_cndmask_b32_e64 v{TM+r}, 0, -1, vcc
        """)
    a("s_mov_b32 s30, 0xffff")
    for i in range(4): a(f"v_bfi_b32 v{PM+i}, s30, v{TM+2*i}, v{TM+2*i+1}")
    a(f"s_or_b32 s23, s16, s3\ns_cmp_eq_u32 s23, 0\ns_cselect_b64 vcc, -1, 0")
    for r in range(4): a(f"v_cndmask_b32 v{MF+r}, v{M0+r}, v5, vcc")
    GM, CM = 90, 52
    for h in range(4): a(f"v_cmp_eq_u32 s[{GM+2*h}:{GM+1+2*h}], {h}, v3")
    a(f"""
    s_lshl_b32 s23, s16, 3
    s_lshl_b32 s26, s3, 1
    s_add_u32 s23, s23, s26
    s_mul_i32 s23, s23, 40
    s_mul_i32 s26, s17, 5
    s_add_u32 s23, s23, s26
    s_lshl_b32 s23, s23, 9
    v_lshl_add_u32 v12, v1, 3, s23
    s_lshl_b32 s23, s16, 4
    s_add_u32 s23, s23, s17
    s_lshl_b32 s23, s23, 7
    s_add_u32 s23, s23, {F2}
    v_lshl_add_u32 v14, v1, 10, s23
    s_mov_b32 s31, {f2u(20 ** -0.5 * LOG2E)}
    s_mov_b32 s33, 0
    s_mov_b32 s37, 0
    s_waitcnt lgkmcnt(0)
    """)
    srd(a, 4, 20, OT_SZ, OT_OFF); srd(a, 12, 12, 256); tag_ready(a)
    def xread(kk): return [f"ds_read_b128 {v(XF+12*kk+4*rt,4)}, v{8+kk} offset:{2048*rt}" for rt in range(3)]
    def wread(u):
        kk, c = divmod(u, 15); p, tt = divmod(c, 5)
        b = WB + 4 * (u % NB); ad = 11 if tt == 4 else 10
        off = kk * 15360 + p * 160 + (0 if tt == 4 else 40 * tt)
        return [f"ds_read_b64_tr_b16 {v(b,2)}, v{ad} offset:{off}", f"ds_read_b64_tr_b16 {v(b+2,2)}, v{ad} offset:{off+7680}"]
    def mf(u):
        kk, c = divmod(u, 15); p, tt = divmod(c, 5)
        w = v(WB + 4 * (u % NB), 4); r = []
        for rt in range(3):
            x = v(XF + 12 * kk + 4 * rt, 4)
            if p == 0:
                if rt == 0: continue
                d = v(AQ + 20 * (rt - 1) + 4 * tt, 4); r.append(f"v_mfma_f32_16x16x32_bf16 {d}, {w}, {x}, {d}")
            elif p == 1:
                d = v(AK + 20 * rt + 4 * tt, 4); r.append(f"v_mfma_f32_16x16x32_bf16 {d}, {w}, {x}, {d}")
            else:
                d = v(AV + 12 * tt + 4 * rt, 4); r.append(f"v_mfma_f32_16x16x32_bf16 {d}, {x}, {w}, {d}")
        return r
    stamp(a, 1, True); a("s_barrier"); stamp(a, 2, True)
    for t in xread(0): a(t)
    for u in range(DD):
        for t in wread(u): a(t)
    a(f"s_waitcnt lgkmcnt({2*DD-2})")
    a.label(f"{L}_c", 3)
    q = []
    for u in range(1, DD): q += [u, u]
    misc = slot_adv(QA_SLOT, QA_S) + ["s_add_u32 s33, s33, 1", "s_cmp_ge_u32 s33, 10"]
    for u in range(30):
        nx = u + DD; fill = []
        if nx < 30:
            if nx == 15: fill += [(t, 15) for t in xread(1)]
            fill += [(t, nx) for t in wread(nx)]
        else:
            if nx == 30: fill += [(t, 30) for t in xread(0)]
            fill += [(t, nx) for t in wread(nx - 30)]
        ms = mf(u)
        if nx == 30:
            a(f"s_waitcnt lgkmcnt(0)\ns_barrier\ns_cbranch_scc1 {L}_clast"); q = []
        per = -(-len(fill) // len(ms))
        for i, m in enumerate(ms):
            a(m)
            for t, tag in fill[i*per:(i+1)*per]: a(t); q.append(tag)
            if len(ms) == 3 and i == 2 and misc and u < 20: a(misc.pop(0))
        if nx == 29:
            for i in range(4): a(f"v_add_u32 v{8+i}, s40, v{8+i}")
        if any(t <= u + 1 for t in q):
            last = max(i for i, t in enumerate(q) if t <= u + 1)
            q = q[last + 1:]
            a(f"s_waitcnt lgkmcnt({len(q)})")
    assert not misc and len(q) == 2 * DD - 2
    a(f"s_branch {L}_c")
    a.label(f"{L}_clast"); stamp(a, 3, True); lstamp(a, 1)
    for u in range(30 - DD, 30):
        for m in mf(u): a(m)
    La = uid("Lna")
    a(f"s_cmp_lg_u32 s3, 0\ns_cbranch_scc1 {La}"); arrive_issue(a, 6); a.label(La)
    SR = 176
    P = 208
    PR = [208, 212, 216, 248]
    cv = lambda d, s0: a(f"v_cvt_pk_bf16_f32 v{d}, v{s0}, v{s0+1}")
    for rt in range(3):
        t4 = AK + 20 * rt + 16
        for h in range(4):
            b = AK + 20 * rt + 4 * h
            cv(b, b); cv(b + 1, b + 2); cv(b + 2, t4); cv(b + 3, t4 + 2)
    for rt in range(2):
        t4 = AQ + 20 * rt + 16
        cv(t4, t4); cv(t4 + 1, t4 + 2)
        for h in range(4):
            b = AQ + 20 * rt + 4 * h
            cv(b, b); cv(b + 1, b + 2)
            a(f"v_cndmask_b32 v{b+2}, 0, v{t4}, s[{GM+2*h}:{GM+1+2*h}]\nv_cndmask_b32 v{b+3}, 0, v{t4+1}, s[{GM+2*h}:{GM+1+2*h}]")
    vdone = False; lstamp(a, 2)
    for rt in (1, 2):
        for h in range(4):
            qf = v(AQ + 20 * (rt - 1) + 4 * h, 4)
            a(f"v_mfma_f32_16x16x32_bf16 {v(SR+8*h,4)}, {v(AK+20*(rt-1)+4*h,4)}, {qf}, {v(MF if rt == 1 else M0,4)}")
            a(f"v_mfma_f32_16x16x32_bf16 {v(SR+8*h+4,4)}, {v(AK+20*rt+4*h,4)}, {qf}, {v(M1,4)}")
        if not vdone:
            for tt in range(5):
                b = AV + 12 * tt
                for i in range(6): cv(b + i, b + 2 * i)
            vdone = True
        VA, VB, X = TM, TM + 4, TM + 8
        for h in range(4):
            s = SR + 8 * h
            a(f"v_max3_f32 v{VA+h}, v{s}, v{s+1}, v{s+4}\nv_max3_f32 v{VB+h}, v{s+2}, v{s+3}, v{s+6}")
        for h in range(4):
            s = SR + 8 * h
            a(f"v_max_f32 v{VA+h}, v{VA+h}, v{s+5}\nv_max_f32 v{VB+h}, v{VB+h}, v{s+7}")
        def xred(op):
            a(f"v_permlane32_swap_b32 v{X}, v{X+1}\nv_permlane32_swap_b32 v{X+2}, v{X+3}")
            a(f"{op} v{X}, v{X}, v{X+1}\n{op} v{X+2}, v{X+2}, v{X+3}")
            a(f"v_permlane16_swap_b32 v{X}, v{X+2}\n{op} v{X}, v{X}, v{X+2}")
        def xbc():
            a(f"v_mov_b32 v{X+2}, v{X}\nv_permlane16_swap_b32 v{X}, v{X+2}")
            a(f"v_mov_b32 v{X+1}, v{X}\nv_mov_b32 v{X+3}, v{X+2}")
            a(f"v_permlane32_swap_b32 v{X}, v{X+1}\nv_permlane32_swap_b32 v{X+2}, v{X+3}")
        for h in range(4): a(f"v_max_f32 v{X+h}, v{VA+h}, v{VB+h}")
        xred("v_max_f32")
        a(f"v_mul_f32 v{X}, s31, v{X}")
        xbc()
        for h in range(4): a(f"v_fma_f32 v{VA+h}, v{VA+h}, s31, -v{X+h}\nv_fma_f32 v{VB+h}, v{VB+h}, s31, -v{X+h}")
        for h in range(4): a(f"v_exp_f32 v{VA+h}, v{VA+h}\nv_exp_f32 v{VB+h}, v{VB+h}")
        for h in range(4): a(f"v_add_f32 v{X+h}, v{VA+h}, v{VB+h}")
        xred("v_add_f32")
        a(f"v_rcp_f32 v{X}, v{X}")
        xbc()
        for h in range(4): a(f"v_mul_f32 v{VA+h}, v{VA+h}, v{X+h}\nv_mul_f32 v{VB+h}, v{VB+h}, v{X+h}")
        for h in range(4): a(f"v_cvt_pk_bf16_f32 v{VA+h}, v{VA+h}, v{VA+h}\nv_cvt_pk_bf16_f32 v{VB+h}, v{VB+h}, v{VB+h}")
        for h in range(4):
            p = PR[h]
            a(f"v_and_b32 v{p}, v{VA+h}, v{PM}\nv_and_b32 v{p+1}, v{VB+h}, v{PM+1}\nv_and_b32 v{p+2}, v{VA+h}, v{PM+2}\nv_and_b32 v{p+3}, v{VB+h}, v{PM+3}")
        for h in range(4):
            a(f"v_mfma_f32_16x16x32_bf16 {v(SR+8*h,4)}, {v(AV+12*h+2*(rt-1),4)}, {v(PR[h],4)}, 0")
            a(f"v_mfma_f32_16x16x32_bf16 {v(SR+8*h+4,4)}, {v(AV+48+2*(rt-1),4)}, {v(PR[h],4)}, 0")
        O = TM
        if rt == 1: a("s_setprio 2")
        for h in range(4):
            cv(O + 2 * h, SR + 8 * h); cv(O + 2 * h + 1, SR + 8 * h + 2)
            a(f"s_mov_b32 s29, {40*512*(rt-1)}\nbuffer_store_dwordx2 {v(O+2*h,2)}, v12, s[4:7], s29 offen offset:{512*h} {SC}")
        for h in range(1, 4):
            for r in range(4): a(f"v_cndmask_b32 v{SR+4+r}, v{SR+4+r}, v{SR+8*h+4+r}, s[{GM+2*h}:{GM+1+2*h}]")
        cv(O + 8, SR + 4); cv(O + 9, SR + 6)
        a(f"buffer_store_dwordx2 {v(O+8,2)}, v12, s[4:7], s29 offen offset:2048 {SC}")
    lstamp(a, 3)
    if opt("late"): a("s_waitcnt vmcnt(0)"); lstamp(a, 4)
    publish(a, 4, 4, 14, 2)
    if opt("late"): lstamp(a, 5); a("s_waitcnt vmcnt(0)"); lstamp(a, 6)
    La = uid("Lna")
    a(f"s_cmp_lg_u32 s3, 0\ns_cbranch_scc1 {La}"); arrive_finish(a, 6); a.label(La)
    stamp(a, 4, True)

P2_S, P2_SLOT = 8, 18432
def p2_common_adv():
    return f"s_add_u32 s37, s37, {P2_SLOT}\ns_cmp_ge_u32 s37, s38\ns_cselect_b32 s42, {P2_SLOT*P2_S}, 0\ns_sub_u32 s37, s37, s42\ns_add_u32 s34, s34, 1\ns_cmp_ge_u32 s34, s35\ns_cselect_b32 s34, 0, s34"
def p2_phase(a, sreg, n):
    st = opt("stagp", 0) if n == 24 else opt("stagpa", 0)
    if st: a(f"s_lshr_b32 s22, s2, 3\ns_lshr_b32 s23, s22, 3\ns_lshl_b32 s23, s23, 1\ns_add_u32 s22, s22, s23\ns_and_b32 s22, s22, 7\ns_mul_i32 s22, s22, {n}\ns_lshr_b32 s{sreg}, s22, 3")
    else: a(f"s_mov_b32 s{sreg}, 0")
def p2_loader_s(a):
    AH = P2_S - 2
    a(f"""
    s_load_dwordx2 s[12:13], s[0:1], {KA['w2']}
    v_lshrrev_b32 v2, 3, v1
    v_and_b32 v3, 7, v1
    v_and_b32 v4, 6, v2
    v_xor_b32 v3, v3, v4
    v_lshlrev_b32 v3, 4, v3
    v_lshl_add_u32 v2, v2, 12, v3
    s_lshl_b32 s23, s3, 17
    s_lshl_b32 s26, s50, 7
    s_add_u32 s23, s23, s26
    v_add_u32 v8, s23, v2
    """)
    for i in range(1, 4): a(f"v_add_u32 v{8+i}, {8*4096*i}, v8")
    a(f"s_lshl_b32 s23, s50, 2\ns_mul_i32 s23, s23, 40\ns_lshl_b32 s26, s3, 1\ns_add_u32 s23, s23, s26\ns_lshl_b32 s23, s23, 9\nv_lshl_add_u32 v16, v1, 4, s23")
    for i in range(1, 4): a(f"v_add_u32 v{16+i}, {40*512*i}, v16")
    a(f"s_and_b32 s23, s50, -2\ns_and_b32 s26, s52, 1\ns_add_u32 s23, s23, s26\ns_lshl_b32 s23, s23, 10\ns_add_u32 s23, s23, {F2}\nv_lshl_add_u32 v12, v1, 7, s23")
    p2_phase(a, 34, 10); p2_phase(a, 39, 24)
    a(f"s_mov_b32 s35, 10\ns_lshl_b32 s37, s3, 12\ns_add_u32 s38, s37, {P2_SLOT*P2_S}\ns_mov_b32 s33, 0\ns_waitcnt lgkmcnt(0)")
    srd(a, 4, 20, OT_SZ, OT_OFF)
    a("s_barrier")
    gate(a, 12, 0xff)
    stamp(a, 3)
    def issue(sc):
        a(f"s_lshl_b32 s40, s34, {11 if sc else 18}")
        for i in range(4): a(f"s_add_u32 m0, s37, {1024*i}\n{thr('s', 7)}buffer_load_dwordx4 v{(16 if sc else 8)+i}, s[4:7], s40 offen {sc} lds")
        a(p2_common_adv())
    AA = opt("aha", 3)
    issue_n(a, AA, lambda: issue(SC))
    steady(a, 10, 4, AA, lambda: issue(SC))
    srd(a, 4, 12, F_ * 4096); a("s_mov_b32 s35, 24\ns_mov_b32 s34, s39")
    if AA < AH:
        a(f"s_waitcnt vmcnt({4*(AA-1)})\ns_barrier"); issue_n(a, AH - AA + 1, lambda: issue(""))
    steady(a, 34, 4, AH, lambda: issue(""))
    stamp(a, 5)
    drain(a, 4, AH)
    endp(a)
def p2_loader_d(a):
    AH = P2_S - 2
    a(f"s_sub_u32 s22, s3, 2\ns_mul_i32 s23, s51, {5*68}\ns_add_u32 s23, s23, s22\ns_lshl_b32 s23, s23, 10\nv_lshl_add_u32 v8, v1, 4, s23")
    for i in range(1, 5): a(f"v_add_u32 v{8+i}, {68*1024*i}, v8")
    a(f"""
    s_mul_i32 s37, s22, 5120
    s_add_u32 s37, s37, 8192
    s_add_u32 s38, s37, {P2_SLOT*P2_S}
    s_lshl_b32 s23, s52, 10
    s_add_u32 s23, s23, {F3}
    v_lshl_add_u32 v14, v1, 7, s23
    s_mul_i32 s23, s51, 5
    s_lshr_b32 s23, s23, 2
    s_lshl_b32 s23, s23, 11
    s_lshr_b32 s26, s52, 1
    s_mul_i32 s26, s26, {160*128}
    s_add_u32 s23, s23, s26
    s_add_u32 s23, s23, {F4}
    v_lshl_add_u32 v15, v1, 7, s23
    """)
    p2_phase(a, 34, 10); p2_phase(a, 39, 24)
    a("s_mov_b32 s35, 10\ns_mov_b32 s36, 48\ns_mov_b32 s33, 0")
    srd(a, 8, 20, UW_SZ, UW_OFF)
    a("s_barrier")
    gate(a, 14, 0xff)
    stamp(a, 3)
    def issue():
        a("s_lshl_b32 s41, s34, 1\ns_add_u32 s41, s41, s36\ns_lshl_b32 s41, s41, 10")
        for i in range(5): a(f"s_add_u32 m0, s37, {1024*i}\n{thr('d', 9)}buffer_load_dwordx4 v{8+i}, s[8:11], s41 offen {SC} lds")
        a(p2_common_adv())
    AA = opt("aha", 3)
    issue_n(a, AA, issue)
    steady(a, 10, 5, AA, issue)
    GB = opt("gb", 10)
    for j in range(10 - AA, GB): a(f"s_waitcnt vmcnt({5*(9-j)})\ns_barrier")
    a("s_mov_b32 s35, 24\ns_mov_b32 s36, 0\ns_mov_b32 s34, s39")
    gate(a, 15, 0x0fff0fff)
    stamp(a, 4)
    issue_n(a, GB + AH - 10, issue)
    steady(a, 34, 5, AH, issue)
    stamp(a, 5)
    drain(a, 5, AH)
    endp(a)
def p2_consumer(a):
    L = "Lp2"
    ACB, ACA = 16, 36
    a(f"""
    s_load_dwordx2 s[24:25], s[0:1], {KA['b2']}
    s_load_dwordx2 s[28:29], s[0:1], {KA['out']}
    s_lshl_b32 s23, s50, 6
    s_lshl_b32 s26, s3, 4
    s_add_u32 s23, s23, s26
    v_and_b32 v2, 15, v1
    v_add_u32 v2, s23, v2
    v_lshlrev_b32 v3, 1, v2
    v_lshlrev_b32 v4, 2, v2
    s_waitcnt lgkmcnt(0)
    """)
    srd(a, 24, 24, 4096); srd(a, 8, 20, G_SZ, G_OFF); srd(a, 28, 28, S_ * 1280)
    a(f"""
    buffer_load_ushort v10, v3, s[24:27], 0 offen
    s_setprio 0
    v_lshrrev_b32 v5, 2, v1
    v_lshrrev_b32 v6, 1, v5
    v_and_b32 v6, 3, v6
    v_xor_b32 v6, s3, v6
    v_lshlrev_b32 v6, 5, v6
    v_lshl_add_u32 v5, v5, 7, v6
    v_and_b32 v6, 3, v1
    v_lshl_add_u32 v8, v6, 3, v5
    v_lshlrev_b32 v9, 4, v1
    v_add_u32 v9, 8192, v9
    v_mul_u32_u24 v12, 1280, v2
    v_lshrrev_b32 v6, 4, v1
    v_lshl_add_u32 v12, v6, 3, v12
    s_mul_i32 s26, s51, 160
    v_add_u32 v12, s26, v12
    s_lshl_b32 s26, s3, 10
    v_lshl_add_u32 v13, v1, 3, s26
    """)
    for i in range(20): a(f"v_mov_b32 v{ACA+i}, 0")
    SETS = (56, 104)
    def reads(st, ph="b"):
        r = []
        for kk in range(2):
            b = SETS[st] + 24 * kk
            if ph == "a": r += [(f"ds_read_b64 {v(b,2)}, v13 offset:{kk*4096}", (kk, "b0")), (f"ds_read_b64 {v(b+2,2)}, v13 offset:{kk*4096+512}", (kk, "b1"))]
            else: r += [(f"ds_read_b64_tr_b16 {v(b,2)}, v8 offset:{kk*4096}", (kk, "b0")), (f"ds_read_b64_tr_b16 {v(b+2,2)}, v8 offset:{kk*4096+2048}", (kk, "b1"))]
            r += [(f"ds_read_b128 {v(b+4+4*dt,4)}, v9 offset:{(kk*5+dt)*1024}", (kk, dt)) for dt in range(5)]
        return r
    def mf(acc, st):
        return [(f"v_mfma_f32_16x16x32_bf16 {v(acc+4*dt,4)}, {v(SETS[st]+24*kk+4+4*dt,4)}, {v(SETS[st]+24*kk,4)}, {v(acc+4*dt,4)}", {(kk, "b1"), (kk, dt)}) for kk in range(2) for dt in range(5)]
    ids = [x[1] for x in reads(0)]
    adv = slot_adv(P2_SLOT, P2_S) + ["v_add_u32 v8, s40, v8", "v_add_u32 v9, s40, v9"]
    a("s_mov_b32 s33, 0\ns_mov_b32 s37, 0\ns_barrier"); stamp(a, 5, True)
    adva = adv + ["v_add_u32 v13, s40, v13"]
    emit_step(a, [], [], reads(0, "a"), adva)
    a.label(f"{L}_ca", 3)
    a("s_barrier")
    emit_step(a, mf(ACA, 0), ids, reads(1, "a"), adva + ["s_add_u32 s33, s33, 2", "s_cmp_ge_u32 s33, 10"])
    a(f"s_barrier\ns_cbranch_scc1 {L}_cax")
    emit_step(a, mf(ACA, 1), ids, reads(0, "a"), adva)
    a(f"s_branch {L}_ca")
    a.label(f"{L}_cax")
    emit_step(a, mf(ACA, 1), ids, reads(0, "b"), adv)
    def loop(tag, acc, end, last):
        a.label(f"{L}_c{tag}", 3)
        a("s_barrier")
        emit_step(a, mf(acc, 0), ids, reads(1), adv + ["s_add_u32 s33, s33, 2", f"s_cmp_ge_u32 s33, {end}"])
        a(f"s_cbranch_scc1 {L}_clast\ns_barrier")
        emit_step(a, mf(acc, 1), ids, reads(0), adv)
        a(f"s_branch {L}_c{tag}")
    a(f"s_waitcnt vmcnt(0)\nbuffer_load_dword v11, v4, s[8:11], 0 offen {SC}\nv_lshlrev_b32 v10, 16, v10")
    for i in range(20): a(f"v_mov_b32 v{ACB+i}, v10")
    loop("b", ACB, 34, True)
    a.label(f"{L}_clast")
    emit_step(a, mf(ACB, 1), ids, [], [])
    stamp(a, 6)
    a("s_waitcnt vmcnt(0)\ns_nop 4")
    for dt in range(5):
        for r in range(4): a(f"v_sub_f32 v{ACA+4*dt+r}, v{ACA+4*dt+r}, v{ACB+4*dt+r}")
        for r in range(4): a(f"v_fmac_f32 v{ACB+4*dt+r}, v11, v{ACA+4*dt+r}")
        a(f"v_cvt_pk_bf16_f32 v{56+2*dt}, v{ACB+4*dt}, v{ACB+4*dt+1}\nv_cvt_pk_bf16_f32 v{57+2*dt}, v{ACB+4*dt+2}, v{ACB+4*dt+3}")
        a(f"buffer_store_dwordx2 {v(56+2*dt,2)}, v12, s[28:31], 0 offen offset:{32*dt} {'sc1' if opt('osc1') else 'nt' if opt('ont') else ''}")
    endp(a)

def gen_main(a, name):
    kernel_head(a, name)
    if PROF:
        for i in range(1, 8): a(f"s_mov_b64 s[{70+2*i}:{71+2*i}], 0")
        stamp(a, 0); a("s_memtime s[66:67]")
    a(f"""
    s_cmp_ge_u32 s2, 256
    s_cbranch_scc1 Lend
    s_load_dwordx2 s[20:21], s[0:1], {KA['ws']}
    v_lshrrev_b32 v1, 6, v0
    v_readfirstlane_b32 s3, v1
    v_and_b32 v1, 63, v0
    s_and_b32 s52, s2, 7
    s_lshr_b32 s53, s2, 3
    s_lshr_b32 s22, s52, 1
    s_lshl_b32 s50, s22, 3
    s_and_b32 s23, s53, 7
    s_add_u32 s50, s50, s23
    s_and_b32 s51, s52, 1
    s_lshl_b32 s51, s51, 2
    s_lshr_b32 s26, s53, 3
    s_add_u32 s51, s51, s26
    """)
    if PROF: a("s_mov_b32 s69, s3")
    NG = 15 if opt("mixed") else 30
    a("s_cmp_ge_u32 s53, 16\ns_cbranch_scc1 Lrole_qa" if opt("mixed") else "s_bitcmp1_b32 s52, 0\ns_cbranch_scc1 Lrole_qa")
    a(f"""
    {"s_lshl_b32 s19, s52, 4" if opt("mixed") else "s_lshl_b32 s19, s22, 5"}
    s_add_u32 s19, s19, s53
    s_mul_i32 s17, s53, 86
    s_lshr_b32 s17, s17, 8
    s_mul_i32 s23, s17, 3
    s_sub_u32 s23, s53, s23
    s_mul_i32 s16, s22, 3
    s_add_u32 s16, s16, s23
    """)
    if opt("mixed"): a("s_and_b32 s26, s52, 1\ns_mul_i32 s26, s26, 5\ns_add_u32 s17, s17, s26")
    a(f"s_mul_i32 s18, s23, {opt('stagg', 0)}\ns_mul_i32 s26, s17, {opt('stagd', 0)}\ns_add_u32 s18, s18, s26\ns_and_b32 s18, s18, 31")
    a("s_cmp_ge_u32 s3, 4\ns_cbranch_scc1 Lg_cons\ns_setprio 1\ns_cmp_ge_u32 s3, 2\ns_cbranch_scc1 Lg_h")
    def flags():
        a(f"s_waitcnt lgkmcnt(0)"); srd(a, 44, 20, FL_SZ, FL_OFF); a(f"s_load_dword s48, s[44:45], {FZ}")
    a(f"s_load_dwordx2 s[4:5], s[0:1], {KA['w1']}"); flags()
    a(f"s_cmp_ge_u32 s53, {NG}\ns_cbranch_scc1 Lsp_w")
    g1_loader_w(a); a("s_branch Lp2_s")
    a.label("Lsp_w"); w1_sweep(a)
    a.label("Lsp_l"); a("s_mov_b32 s16, s52" if opt("mixed") else "s_lshr_b32 s16, s52, 1\ns_lshl_b32 s16, s16, 1\ns_add_u32 s16, s16, s53\ns_sub_u32 s16, s16, 30"); spare_loader(a)
    a("s_cmp_ge_u32 s3, 2\ns_cbranch_scc1 Lp2_d\ns_branch Lp2_s")
    a.label("Lg_h"); code_prefetch(a)
    if opt("mixed"):
        a(f"s_load_dwordx2 s[4:5], s[0:1], {KA['w1']}"); flags(); w1_sweep(a)
        a("s_cmp_ge_u32 s53, 15\ns_cbranch_scc1 Lsp_l")
    else:
        flags(); a("s_cmp_lt_u32 s53, 30\ns_cbranch_scc1 Lg_h2\ns_barrier\ns_barrier\ns_branch Lsp_l")
    a.label("Lg_h2"); g1_loader_h(a); a("s_branch Lp2_d")
    a.label("Lg_cons")
    a(f"s_setprio 2\ns_load_dwordx2 s[4:5], s[0:1], {KA['x']}\ns_load_dwordx2 s[8:9], s[0:1], {KA['gw']}\ns_sub_u32 s3, s3, 4")
    ln_issue(a)
    srd(a, 44, 20, FL_SZ, FL_OFF)
    a(f"v_mov_b32 v2, {CTR}\nv_mov_b32 v6, 0\nv_mov_b32 v7, 0\nv_mov_b32 v8, 0\nv_mov_b32 v9, 0\nds_write_b128 v2, v[6:9]\ns_waitcnt lgkmcnt(0)\ns_barrier\ns_load_dword s48, s[44:45], {FZ}")
    ln_finish(a); stamp(a, 1, True)
    a(f"s_cmp_ge_u32 s53, {NG}\ns_cbranch_scc1 Lsp_cons")
    g1_consumer(a); a("s_branch Lp2_c")
    a.label("Lsp_cons")
    a(f"s_load_dwordx2 s[12:13], s[0:1], {KA['dbg']}\ns_waitcnt lgkmcnt(0)"); srd(a, 12, 12, 256)
    a("s_barrier\ns_cmp_lg_u32 s3, 0\ns_cbranch_scc1 Lp2_c"); arrive_issue(a, 6); a("s_waitcnt vmcnt(0)"); arrive_finish(a, 6); a("s_branch Lp2_c")
    a.label("Lrole_qa")
    if opt("mixed"): a("s_and_b32 s23, s53, 3\ns_lshl_b32 s16, s22, 2\ns_add_u32 s16, s16, s23\ns_lshr_b32 s26, s53, 2\ns_and_b32 s26, s26, 3\ns_and_b32 s17, s52, 1\ns_lshl_b32 s17, s17, 2\ns_add_u32 s17, s17, s26")
    else: a(f"""
    s_and_b32 s16, s22, 1
    s_lshl_b32 s16, s16, 3
    s_add_u32 s16, s16, s23
    s_lshr_b32 s17, s22, 1
    s_lshl_b32 s17, s17, 2
    s_add_u32 s17, s17, s26
    """)
    if opt("nsq"): a("s_mov_b32 s18, 0")
    elif opt("mixed"): a("s_add_u32 s18, s26, s23\ns_and_b32 s18, s18, 3\ns_mul_i32 s18, s18, 10\ns_lshr_b32 s18, s18, 2")
    else: a("s_lshl_b32 s18, s26, 1\ns_add_u32 s18, s18, s23\ns_and_b32 s18, s18, 7\ns_mul_i32 s18, s18, 10\ns_lshr_b32 s18, s18, 3")
    a(f"s_cmp_ge_u32 s3, 4\ns_cbranch_scc1 Lq_cons\ns_setprio 1\ns_cmp_eq_u32 s3, 3\ns_cbranch_scc1 Lq_idle")
    a(f"s_load_dwordx2 s[4:5], s[0:1], {KA['x']}\ns_load_dwordx2 s[8:9], s[0:1], {KA['wqkv']}"); qa_w1_sweep(a); flags(); qa_loader(a)
    a("s_cmp_ge_u32 s3, 2\ns_cbranch_scc1 Lp2_d\ns_branch Lp2_s")
    a.label("Lq_idle"); qa_w1_sweep(a); flags(); qa_idle(a); a("s_branch Lp2_d")
    a.label("Lq_cons"); a("s_sub_u32 s3, s3, 4"); flags()
    a(f"v_mov_b32 v2, {CTR}\nv_mov_b32 v6, 0\nv_mov_b32 v7, 0\nv_mov_b32 v8, 0\nv_mov_b32 v9, 0\nds_write_b128 v2, v[6:9]")
    qa_consumer(a)
    a.label("Lp2_c"); p2_consumer(a)
    a.label("Lp2_s"); p2_loader_s(a)
    a.label("Lp2_d"); p2_loader_d(a)
    a.label("Lend"); a("s_endpgm")
    a.raw("Lcode_end:")
    return kernel_desc(name, 256, 102)

def build(spec=""):
    global PROF
    OPTS[:] = [o for o in spec.split("+") if o]; PROF = bool(opt("prof")); UID[0] = 0
    ref = open(f"cdna_kernels/{NAME}.s.ref").read().split("\n")
    head = ref[:ref.index(next(x for x in ref if x.startswith("; Override")))]
    a = Asm(); a.raw("\n".join(head))
    if opt("mixed"): a.raw("; mixed")
    a.raw(f"; @launch grid=(256,1,1) block=(512,1,1) lds={LDS_SZ}")
    a.raw('.amdgcn_target "amdgcn-amd-amdhsa--gfx950"')
    d = gen_main(a, NAME + "_kernel")
    if opt("nocomp"): a.lines = [(t, c) for t, c in a.lines if not (c is not None and (c.kind == "mfma" or c.op.startswith("ds_read")))]
    bad = a.check_branches()
    for b in bad: print("HAZARD across branch:", b, file=sys.stderr)
    assert not bad
    a.raw(d)
    return a.text()

if __name__ == "__main__":
    open(sys.argv[2] if len(sys.argv) > 2 else f"cdna_kernels/{NAME}.s", "w").write(build(sys.argv[1] if len(sys.argv) > 1 else ""))
```

```python
import sys, struct
from dsl import *

NAME = "gated_mix__sliding_local_dilated__mixer_token_mlp__prompt"
S_, D_, F_ = 2048, 640, 1536
KA = dict(x=0, wqkv=8, wo=16, w1=32, b1=40, w2=48, b2=56, gw=64, out=72, dbg=80, ws=88)
H_OFF, OT_OFF, UW_OFF, G_OFF, FL_OFF = 0, 0x280000, 0x500000, 0x800000, 0x810000
H_SZ, OT_SZ, UW_SZ, G_SZ, FL_SZ = 2621440, 2621440, 40 * 68 * 1024, 8192, 0x70000
F1, F2, F4, FZ, F3 = 0, 0x20000, 0x28000, 0x40000, 0x50000
RING = 147456; CTR = RING; LDS_SZ = RING + 64
LOG2E = 1.4426950408889634
OPTS = []; PROF = False; TL_OFF = 0x1000000
SC = "sc1"
def f2u(x): return "0x%08x" % struct.unpack("<I", struct.pack("<f", x))[0]
def v(n, k=1): return f"v{n}" if k == 1 else f"v[{n}:{n+k-1}]"
def opt(name, default=None):
    for o in OPTS:
        if o == name: return True
        if o.startswith(name + "="): return int(o.split("=")[1])
    return default

def srd(a, d, base, size, off=0):
    if off: a(f"s_add_u32 s{d}, s{base}, {off}\ns_addc_u32 s{d+1}, s{base+1}, 0")
    elif d != base: a(f"s_mov_b32 s{d}, s{base}\ns_mov_b32 s{d+1}, s{base+1}")
    a(f"s_mov_b32 s{d+2}, {size}\ns_mov_b32 s{d+3}, 0x20000")

def estamp(a, i):
    if PROF and opt("early"): a(f"s_memrealtime s[{70+2*i}:{71+2*i}]\ns_waitcnt lgkmcnt(0)")
def lstamp(a, i):
    if PROF and opt("late"): a(f"s_memrealtime s[{70+2*i}:{71+2*i}]\ns_waitcnt lgkmcnt(0)")
def stamp(a, i, wait=False):
    if PROF and (i == 0 or not (opt("early") or opt("late"))): a(f"s_memrealtime s[{70+2*i}:{71+2*i}]" + ("\ns_waitcnt lgkmcnt(0)" if wait else ""))
def endp(a):
    if PROF:
        a(f"""
        s_waitcnt vmcnt(0)
        s_memrealtime s[84:85]
        s_memtime s[86:87]
        s_waitcnt lgkmcnt(0)
        s_sub_u32 s86, s86, s66
        s_add_u32 s60, s20, {TL_OFF + 0x40000}
        s_addc_u32 s61, s21, 0
        s_mov_b32 s62, 0x40000
        s_mov_b32 s63, 0x20000
        s_mov_b64 exec, 1
        s_lshl_b32 s64, s2, 3
        s_add_u32 s64, s64, s69
        s_lshl_b32 s64, s64, 6
        v_mov_b32 v0, s64
        """)
        for i in range(8): a(f"v_mov_b32 v{4+i}, s{70+2*i}")
        a("v_mov_b32 v12, s86")
        a("buffer_store_dwordx4 v[4:7], v0, s[60:63], 0 offen\nbuffer_store_dwordx4 v[8:11], v0, s[60:63], 0 offen offset:16\nbuffer_store_dword v12, v0, s[60:63], 0 offen offset:32")
    a("s_endpgm")

def emit_step(a, M, prev_ids, R, extra, per_gap=2, head=2):
    q = list(prev_ids); fill = [("r", x) for x in R] + [("x", x) for x in extra]
    def put(n):
        for _ in range(n):
            if not fill: return
            k, x = fill.pop(0)
            if k == "r": a(x[0]); q.append(("n", x[1]))
            else: a(x)
    put(head)
    for text, need_ in M:
        idx = [i for i, t in enumerate(q) if t in need_]
        if idx:
            n = min(len(q) - 1 - idx[-1], 15)
            a(f"s_waitcnt lgkmcnt({n})"); del q[:len(q) - n]
        a(text); put(per_gap)
    put(len(fill))

def slot_adv(SLOT, S):
    return [f"s_add_u32 s40, s37, {SLOT}", f"s_cmp_ge_u32 s40, {SLOT*S}", "s_cselect_b32 s41, 0, s40", "s_sub_u32 s40, s41, s37", "s_mov_b32 s37, s41"]

def thr(name, default):
    t = opt("t" + name, default if opt("thr") else 0)
    return f"s_waitcnt vmcnt({t-1})\n" if t else ""
UID = [0]
def uid(p): UID[0] += 1; return f"{p}{UID[0]}"

def issue_n(a, n, issue):
    L = uid("Li")
    a(f"s_add_u32 s32, s33, {n}")
    a.label(L); issue()
    a(f"s_add_u32 s33, s33, 1\ns_cmp_lt_u32 s33, s32\ns_cbranch_scc1 {L}")
def steady(a, upto, n, ahead, issue):
    L = uid("Ls")
    a.label(L)
    a(f"s_waitcnt vmcnt({n*(ahead-1)})\ns_barrier"); issue()
    a(f"s_add_u32 s33, s33, 1\ns_cmp_lt_u32 s33, {upto}\ns_cbranch_scc1 {L}")
def drain(a, n, ahead):
    for k in range(ahead - 1, -1, -1): a(f"s_waitcnt vmcnt({n*k})\ns_barrier")

def publish(a, ctr, nw, vaddr, lanes):
    L = uid("Lpub")
    a(f"""
    s_waitcnt vmcnt(0)
    s_mov_b64 exec, 1
    v_mov_b32 v2, {CTR + ctr}
    v_mov_b32 v3, 1
    ds_add_rtn_u32 v3, v2, v3
    s_waitcnt lgkmcnt(0)
    v_readfirstlane_b32 s22, v3
    s_mov_b64 exec, {(1 << lanes) - 1}
    s_cmp_lg_u32 s22, {nw - 1}
    s_cbranch_scc1 {L}
    v_mov_b32 v3, s48
    buffer_store_dword v3, v{vaddr}, s[44:47], 0 offen {SC}
    """)
    a.label(L); a("s_mov_b64 exec, -1")
def gate(a, vaddr, mask, two=False):
    L = uid("Lg"); slp = "s_sleep %d" % opt("slp", 16) if opt("slp", 16) else ""
    a(f"s_mov_b32 s49, 0\ns_mov_b32 exec_lo, {mask & 0xffffffff}\ns_mov_b32 exec_hi, {mask >> 32}")
    a.label(L)
    if two: a(f"buffer_load_dword v2, v{vaddr}, s[44:47], 0 offen {SC}\ns_mov_b32 s22, 8192\nbuffer_load_dword v3, v{vaddr}, s[44:47], s22 offen {SC}\ns_waitcnt vmcnt(0)\nv_xor_b32 v2, s48, v2\nv_xor_b32 v3, s48, v3\nv_or_b32 v2, v2, v3")
    else: a(f"buffer_load_dword v2, v{vaddr}, s[44:47], 0 offen {SC}\ns_waitcnt vmcnt(0)\nv_xor_b32 v2, s48, v2")
    a(f"v_cmp_ne_u32 vcc, 0, v2\ns_add_u32 s49, s49, 1\ns_cmp_eq_u64 vcc, 0\ns_cbranch_scc1 {L}d\n{slp}\ns_cmp_lt_u32 s49, 20000\ns_cbranch_scc1 {L}")
    a.label(L + "d"); a("s_mov_b64 exec, -1")
def tag_ready(a):
    a("s_waitcnt lgkmcnt(0)\ns_mul_i32 s48, s48, 1664525\ns_add_u32 s48, s48, 1013904223")
def arrive_issue(a, vd):
    a(f"s_mov_b64 exec, 1\nv_mov_b32 v{vd}, 1\nv_mov_b32 v{vd+1}, 0\nbuffer_atomic_add v{vd}, v{vd+1}, s[12:15], 0 offen sc0\ns_mov_b64 exec, -1")
def arrive_finish(a, vd):
    L = uid("Larr")
    a(f"v_readfirstlane_b32 s22, v{vd}\ns_cmp_lg_u32 s22, 255\ns_cbranch_scc1 {L}\ns_mov_b64 exec, 1\nv_mov_b32 v{vd}, s48\nv_mov_b32 v{vd+1}, {FZ}")
    a(f"buffer_store_dword v{vd}, v{vd+1}, s[44:47], 0 offen {SC}\ns_mov_b64 exec, -1")
    a.label(L)

def code_prefetch(a):
    L = uid("Lpc")
    a(f"s_getpc_b64 s[30:31]\n{L}:\ns_sub_u32 s30, s30, {L}-{NAME}_kernel\ns_subb_u32 s31, s31, 0\nv_lshlrev_b32 v2, 7, v1")
    for i in range(opt("ncode", 0)):
        a(f"v_min_u32 v3, Lcode_end-{NAME}_kernel-4, v2\nglobal_load_dword v{40+i}, v3, s[30:31]\nv_add_u32 v2, 8192, v2")

def ln_issue(a):
    a(f"""
    s_lshl_b32 s22, s19, 4
    s_lshl_b32 s23, s3, 2
    s_add_u32 s22, s22, s23
    v_lshrrev_b32 v2, 4, v1
    v_add_u32 v10, s22, v2
    v_and_b32 v11, 15, v1
    v_lshlrev_b32 v4, 4, v11
    v_mul_u32_u24 v5, 1280, v10
    v_add_u32 v5, v5, v4
    s_waitcnt lgkmcnt(0)
    """)
    srd(a, 4, 4, H_SZ); srd(a, 8, 8, 1280)
    for i in range(5): a(f"buffer_load_dwordx4 {v(16+4*i,4)}, v5, s[4:7], 0 offen offset:{256*i}")
    for i in range(5): a(f"buffer_load_dwordx4 {v(36+4*i,4)}, v4, s[8:11], 0 offen offset:{256*i}")
def ln_finish(a):
    X, GW, U = 16, 36, 56
    srd(a, 4, 20, H_SZ, H_OFF); srd(a, 8, 20, G_SZ, G_OFF)
    a("s_mov_b32 s30, 0x3f803f80\ns_mov_b32 s31, 0xffff0000"); estamp(a, 1); a("s_waitcnt vmcnt(5)"); estamp(a, 2)
    a(f"v_dot2_f32_bf16 v6, v{X}, s30, 0\nv_dot2_f32_bf16 v8, v{X+1}, s30, 0")
    for i in range(2, 20): a(f"v_dot2_f32_bf16 v{6+2*(i&1)}, v{X+i}, s30, v{6+2*(i&1)}")
    for i in range(20): a(f"v_lshlrev_b32 v{U+2*i}, 16, v{X+i}\nv_and_b32 v{U+1+2*i}, s31, v{X+i}")
    def red(*rs):
        for sh in (8, 4, 2, 1):
            for r in rs: a(f"v_add_f32_dpp v{r}, v{r}, v{r} row_ror:{sh} row_mask:0xf bank_mask:0xf")
    a("v_add_f32 v6, v6, v8"); red(6)
    a(f"v_mul_f32 v6, {f2u(1/640)}, v6\ns_waitcnt vmcnt(0)")
    a(f"v_dot2_f32_bf16 v9, v{X}, v{GW}, 0")
    for i in range(1, 20): a(f"v_dot2_f32_bf16 v9, v{X+i}, v{GW+i}, v9")
    for i in range(20): a(f"v_pk_add_f32 {v(U+2*i,2)}, {v(U+2*i,2)}, v[6:7] op_sel_hi:[1,0] neg_lo:[0,1] neg_hi:[0,1]")
    a(f"v_pk_mul_f32 v[12:13], {v(U,2)}, {v(U,2)}\nv_pk_mul_f32 v[14:15], {v(U+2,2)}, {v(U+2,2)}")
    for i in range(2, 20): a(f"v_pk_fma_f32 {v(12+2*(i&1),2)}, {v(U+2*i,2)}, {v(U+2*i,2)}, {v(12+2*(i&1),2)}")
    a("v_pk_add_f32 v[12:13], v[12:13], v[14:15]\nv_add_f32 v12, v12, v13")
    red(12, 9)
    a(f"v_mov_b32 v8, {f2u(1e-5)}\nv_fmac_f32 v8, {f2u(1/640)}, v12\nv_rsq_f32 v12, v8\nv_mul_f32 v9, {f2u(-LOG2E)}, v9\nv_exp_f32 v9, v9")
    for j in range(5):
        for i in range(4*j, 4*j+4): a(f"v_pk_mul_f32 {v(U+2*i,2)}, {v(U+2*i,2)}, v[12:13] op_sel_hi:[1,0]")
        for i in range(4*j, 4*j+4): a(f"v_cvt_pk_bf16_f32 v{X+i}, v{U+2*i}, v{U+1+2*i}")
        a(f"buffer_store_dwordx4 {v(X+4*j,4)}, v5, s[4:7], 0 offen offset:{256*j} {SC}")
    a(f"""
    v_add_f32 v9, 1.0, v9
    v_rcp_f32 v9, v9
    v_lshlrev_b32 v10, 2, v10
    s_mov_b32 exec_lo, 0x00010001
    s_mov_b32 exec_hi, 0x00010001
    buffer_store_dword v9, v10, s[8:11], 0 offen {SC}
    s_mov_b64 exec, -1
    s_lshl_b32 s22, s19, 7
    v_lshl_add_u32 v10, v1, {14 if opt("mixed") else 15}, s22
    """)
    if True: a("s_barrier")
    estamp(a, 3); tag_ready(a)
    if opt("early"): a("s_waitcnt vmcnt(0)"); estamp(a, 4)
    publish(a, 0, 4, 10, 8 if opt('mixed') else 4)
    if opt("early"): estamp(a, 5); a("s_waitcnt vmcnt(0)"); estamp(a, 6)

G1_S, G1_SLOT = 6, 24576
def w1_sweep(a):
    a(f"s_lshl_b32 s23, s53, {2 if opt('mixed') else 1}\ns_add_u32 s23, s23, s3\ns_lshl_b32 s23, s23, 6\nv_add_u32 v2, s23, v1\ns_lshr_b32 s23, s52, 1\ns_mul_i32 s23, s23, 768\ns_mov_b32 s26, 43691")
    for n in range(3):
        a(f"v_add_u32 v3, {4096*n}, v2\nv_mul_u32_u24 v4, s26, v3\nv_lshrrev_b32 v4, 18, v4\nv_mul_u32_u24 v5, {3072-768}, v4\nv_lshl_add_u32 v5, v3, 7, v5\nv_add_u32 v{16+n}, s23, v5")
    srd(a, 4, 4, S_ * 3072)
    a("s_barrier"); estamp(a, 1)
    pre = opt("pre", 1)
    for n in range(3):
        if n == pre: a("s_barrier")
        if not opt("nopfw1"): a(f"buffer_load_dword v{20+n}, v{16+n}, s[4:7], 0 offen")
    if pre == 3: a("s_barrier")
    estamp(a, 2)
    if opt("pfwait"): a("s_waitcnt vmcnt(0)")
    estamp(a, 3)
def g1_loader_w(a):
    a(f"""
    v_lshrrev_b32 v2, 4, v1
    s_lshl_b32 s23, s3, 2
    v_add_u32 v2, s23, v2
    v_lshlrev_b32 v4, 1, v2
    v_and_b32 v3, 15, v1
    v_xor_b32 v3, v3, v4
    v_lshlrev_b32 v3, 4, v3
    v_mul_u32_u24 v2, 3072, v2
    s_lshl_b32 s26, s16, 8
    v_add3_u32 v8, v2, v3, s26
    """)
    for i in range(1, 8): a(f"v_add_u32 v{8+i}, {8*3072*i}, v8")
    a(f"""
    s_mov_b32 s34, s18
    s_lshl_b32 s37, s3, 10
    s_add_u32 s38, s37, {G1_SLOT*G1_S}
    s_mov_b32 s33, 0
    """)
    def issue():
        a(f"s_mul_i32 s40, s34, {64*3072}" if not opt("wwrap") else f"s_and_b32 s40, s34, 3\ns_mul_i32 s40, s40, {64*3072}")
        for i in range(8): a(f"s_add_u32 m0, s37, {2048*i}\n{thr('w', 11)}buffer_load_dwordx4 v{8+i}, s[4:7], s40 offen lds")
        a(f"s_add_u32 s37, s37, {G1_SLOT}\ns_cmp_ge_u32 s37, s38\ns_cselect_b32 s42, {G1_SLOT*G1_S}, 0\ns_sub_u32 s37, s37, s42\ns_add_u32 s34, s34, 1\ns_and_b32 s34, s34, 31")
    w1_sweep(a)
    if not opt("nos2"): a("s_barrier")
    issue_n(a, G1_S - 2, issue)
    if opt("early"): estamp(a, 4); a("s_waitcnt vmcnt(0)"); estamp(a, 5)
    tag_ready(a); stamp(a, 1)
    steady(a, 32, 8, G1_S - 2, issue); drain(a, 8, G1_S - 2)
    stamp(a, 2)
def g1_loader_h(a):
    a(f"""
    v_lshrrev_b32 v2, 3, v1
    v_and_b32 v3, 7, v1
    v_and_b32 v4, 6, v2
    v_xor_b32 v3, v3, v4
    v_lshlrev_b32 v3, 4, v3
    s_sub_u32 s22, s3, 2
    s_lshl_b32 s23, s22, 3
    v_add_u32 v2, s23, v2
    v_mul_u32_u24 v2, 1280, v2
    s_lshl_b32 s26, s17, 7
    v_add3_u32 v8, v2, v3, s26
    """)
    for i in range(1, 4): a(f"v_add_u32 v{8+i}, {16*1280*i}, v8")
    a(f"""
    s_lshl_b32 s23, s52, 14
    v_lshl_add_u32 v12, v1, 7, s23
    s_mov_b32 s34, s18
    s_lshl_b32 s37, s22, 10
    s_add_u32 s37, s37, 16384
    s_add_u32 s38, s37, {G1_SLOT*G1_S}
    s_mov_b32 s33, 0
    """)
    srd(a, 4, 20, H_SZ, H_OFF)
    def issue():
        a(f"s_mul_i32 s40, s34, {64*1280}" if not opt("hwrap") else f"s_and_b32 s40, s34, 3\ns_mul_i32 s40, s40, {64*1280}")
        for i in range(4): a(f"s_add_u32 m0, s37, {2048*i}\n{thr('h', 5)}buffer_load_dwordx4 v{8+i}, s[4:7], s40 offen {'' if opt('hplain') else SC} lds")
        a(f"s_add_u32 s37, s37, {G1_SLOT}\ns_cmp_ge_u32 s37, s38\ns_cselect_b32 s42, {G1_SLOT*G1_S}, 0\ns_sub_u32 s37, s37, s42\ns_add_u32 s34, s34, 1\ns_and_b32 s34, s34, 31")
    if not opt("mixed"): a("s_barrier\ns_barrier")
    tag_ready(a)
    estamp(a, 1)
    gate(a, 12, (1 << 64) - 1, two=True)
    stamp(a, 1); estamp(a, 3)
    if opt("early"): a("s_add_u32 s78, s70, s49\ns_mov_b32 s79, 0")
    if not opt("nos2"): a("s_barrier")
    issue_n(a, G1_S - 2, issue)
    steady(a, 32, 4, G1_S - 2, issue); drain(a, 4, G1_S - 2)
    stamp(a, 2)
def g1_consumer(a):
    L = "Lg1"
    ACC, T = 16, 48
    a(f"""
    s_load_dwordx2 s[24:25], s[0:1], {KA['b1']}
    s_load_dwordx2 s[12:13], s[0:1], {KA['dbg']}
    s_and_b32 s22, s3, 1
    s_lshr_b32 s23, s3, 1
    s_lshl_b32 s26, s16, 8
    s_lshl_b32 s27, s22, 7
    s_add_u32 s26, s26, s27
    v_lshrrev_b32 v2, 4, v1
    v_lshl_add_u32 v3, v2, 3, s26
    s_waitcnt lgkmcnt(0)
    """)
    srd(a, 24, 24, 3072); srd(a, 8, 20, UW_SZ, UW_OFF); srd(a, 12, 12, 256)
    for ft in range(4): a(f"buffer_load_dwordx2 {v(T+2*ft,2)}, v3, s[24:27], 0 offen offset:{32*ft}")
    a(f"""
    s_setprio 0
    v_lshrrev_b32 v5, 2, v1
    v_and_b32 v6, 3, v1
    v_lshlrev_b32 v6, 3, v6
    v_and_b32 v7, 7, v5
    v_lshl_add_u32 v4, v5, 8, v6
    s_lshl_b32 s27, s22, 2
    """)
    for ft in range(4): a(f"s_add_u32 s28, s27, {ft}\nv_xor_b32 v2, s28, v7\nv_lshl_add_u32 v{8+ft}, v2, 5, v4")
    a(f"v_lshrrev_b32 v7, 1, v5\nv_and_b32 v7, 3, v7\nv_lshl_add_u32 v4, v5, 7, v6\nv_add_u32 v4, 16384, v4\ns_lshl_b32 s27, s23, 1")
    for dt in range(2): a(f"s_add_u32 s28, s27, {dt}\nv_xor_b32 v2, s28, v7\nv_lshl_add_u32 v{12+dt}, v2, 5, v4")
    a(f"""
    s_lshl_b32 s28, s17, 2
    s_add_u32 s28, s28, s27
    s_mul_i32 s28, s28, 68
    s_lshl_b32 s29, s16, 2
    s_add_u32 s28, s28, s29
    s_lshl_b32 s29, s22, 1
    s_add_u32 s28, s28, s29
    s_lshl_b32 s28, s28, 10
    v_lshl_add_u32 v14, v1, 4, s28
    s_lshl_b32 s28, s17, 4
    s_add_u32 s28, s28, s16
    s_lshl_b32 s28, s28, 7
    s_add_u32 s28, s28, {F4}
    v_mul_u32_u24 v15, {160*128}, v1
    v_add_u32 v15, s28, v15
    s_mov_b32 s31, 0xffff0000
    s_waitcnt vmcnt(0)
    """)
    for ft in range(4):
        for dt in range(2):
            b = ACC + 8 * ft + 4 * dt
            a(f"v_lshlrev_b32 v{b}, 16, v{T+2*ft}\nv_and_b32 v{b+1}, s31, v{T+2*ft}\nv_lshlrev_b32 v{b+2}, 16, v{T+2*ft+1}\nv_and_b32 v{b+3}, s31, v{T+2*ft+1}")
    SETS = (48, 96)
    def reads(st):
        r = []
        for kk in range(2):
            b = SETS[st] + 24 * kk
            for dt in range(2): r += [(f"ds_read_b64_tr_b16 {v(b+4*dt+2*h,2)}, v{12+dt} offset:{kk*4096+2048*h}", (kk, "b", dt, h)) for h in range(2)]
            for ft in range(4): r += [(f"ds_read_b64_tr_b16 {v(b+8+4*ft+2*h,2)}, v{8+ft} offset:{kk*8192+4096*h}", (kk, "a", ft, h)) for h in range(2)]
        return r
    def mf(st):
        return [(f"v_mfma_f32_16x16x32_bf16 {v(ACC+8*ft+4*dt,4)}, {v(SETS[st]+24*kk+8+4*ft,4)}, {v(SETS[st]+24*kk+4*dt,4)}, {v(ACC+8*ft+4*dt,4)}", {(kk, "a", ft, 1)})
                for kk in range(2) for ft in range(4) for dt in range(2)]
    ids = [x[1] for x in reads(0)]
    adv = slot_adv(G1_SLOT, G1_S) + [f"v_add_u32 v{8+i}, s40, v{8+i}" for i in range(6)]
    if not opt("nos2"): a("s_barrier")
    a("s_mov_b32 s33, 0\ns_mov_b32 s37, 0\ns_barrier"); stamp(a, 2, True)
    emit_step(a, [], [], reads(0), adv)
    a.label(f"{L}_c", 3)
    a("s_barrier")
    emit_step(a, mf(0), ids, reads(1), adv + ["s_add_u32 s33, s33, 2", "s_cmp_ge_u32 s33, 32"])
    a(f"s_cbranch_scc1 {L}_clast\ns_barrier")
    emit_step(a, mf(1), ids, reads(0), adv)
    a(f"s_branch {L}_c")
    a.label(f"{L}_clast")
    a("s_waitcnt lgkmcnt(0)" + ("\ns_barrier" if opt("noe2") else "")); stamp(a, 3, True); lstamp(a, 1)
    emit_step(a, mf(1), [], [], [])
    La = uid("Lna")
    a(f"s_cmp_lg_u32 s3, 0\ns_cbranch_scc1 {La}"); arrive_issue(a, 144); a.label(La)
    c0 = -2 * 0.7978845608028654 * LOG2E; c1 = c0 * 0.044715
    lstamp(a, 2)
    a(f"v_mov_b32 v2, {f2u(c0)}\nv_mov_b32 v4, {f2u(c1)}\nv_mov_b32 v6, 1.0\ns_nop 4")
    for p in range(2):
        for dt in range(2):
            o = 72 + 4 * (2 * p + dt)
            prs = [ACC + 8 * (2 * p + h) + 4 * dt + 2 * q for h in range(2) for q in range(2)]
            for i, b in enumerate(prs): a(f"v_pk_mul_f32 {v(T+2*i,2)}, {v(b,2)}, {v(b,2)}")
            for i, b in enumerate(prs): a(f"v_pk_fma_f32 {v(T+2*i,2)}, {v(T+2*i,2)}, v[4:5], v[2:3] op_sel_hi:[1,0,0]")
            for i, b in enumerate(prs): a(f"v_pk_mul_f32 {v(T+2*i,2)}, {v(T+2*i,2)}, {v(b,2)}")
            for i in range(8): a(f"v_exp_f32 v{T+i}, v{T+i}")
            for i, b in enumerate(prs): a(f"v_pk_add_f32 {v(T+2*i,2)}, {v(T+2*i,2)}, v[6:7] op_sel_hi:[1,0]")
            for i in range(8): a(f"v_rcp_f32 v{T+i}, v{T+i}")
            for i, b in enumerate(prs): a(f"v_pk_mul_f32 {v(T+2*i,2)}, {v(T+2*i,2)}, {v(b,2)}")
            for i in range(4): a(f"v_cvt_pk_bf16_f32 v{o+i}, v{T+2*i}, v{T+2*i+1}")
            if p == 0 and dt == 0: a("s_setprio 2")
            a(f"s_mov_b32 s29, {dt*68*1024}\nbuffer_store_dwordx4 {v(o,4)}, v14, s[8:11], s29 offen offset:{1024*p} {SC}")
    lstamp(a, 3)
    if not opt("noe2"): a("s_barrier")
    if opt("late"): a("s_waitcnt vmcnt(0)"); lstamp(a, 4)
    publish(a, 4, 4, 15, 4)
    if opt("late"): lstamp(a, 5); a("s_waitcnt vmcnt(0)"); lstamp(a, 6)
    La = uid("Lna")
    a(f"s_cmp_lg_u32 s3, 0\ns_cbranch_scc1 {La}"); arrive_finish(a, 144); a.label(La)
    stamp(a, 4, True)

def spare_loader(a):
    a(f"""
    s_load_dwordx2 s[4:5], s[0:1], {KA['wo']}
    s_load_dwordx2 s[12:13], s[0:1], {KA['w2']}
    v_lshrrev_b32 v2, 3, v1
    v_and_b32 v3, 7, v1
    v_and_b32 v4, 6, v2
    v_xor_b32 v3, v3, v4
    v_lshlrev_b32 v14, 4, v3
    v_mul_u32_u24 v15, 1280, v2
    v_add_u32 v15, v15, v14
    v_lshrrev_b32 v3, 2, v2
    v_lshl_add_u32 v3, v3, 4, v2
    v_add_u32 v3, 16, v3
    v_mul_u32_u24 v3, 1280, v3
    v_add_u32 v14, v14, v3
    s_mul_i32 s23, s3, {7*4096}
    v_lshrrev_b32 v5, 2, v1
    v_lshrrev_b32 v6, 1, v5
    v_and_b32 v6, 3, v6
    v_lshlrev_b32 v5, 7, v5
    v_and_b32 v7, 3, v1
    v_lshlrev_b32 v7, 3, v7
    v_add3_u32 v5, v5, v7, s23
    """)
    for t in range(4): a(f"v_xor_b32 v7, {t}, v6\nv_lshl_add_u32 v{8+t}, v7, 5, v5")
    a(f"v_lshlrev_b32 v12, 4, v1\ns_lshl_b32 s26, s16, 7\ns_add_u32 s26, s26, {F3}\nv_lshl_add_u32 v13, v1, 10, s26")
    tag_ready(a)
    srd(a, 4, 4, 640 * 1280); srd(a, 8, 20, UW_SZ, UW_OFF); srd(a, 12, 12, F_ * 4096)
    def task():
        a("s_lshl_b32 s26, s33, 2\ns_add_u32 s26, s26, s3\ns_min_u32 s26, s26, 24\ns_mul_i32 s27, s16, 25\ns_add_u32 s27, s27, s26\ns_mul_i32 s26, s27, 6554\ns_lshr_b32 s26, s26, 16\ns_mul_i32 s28, s26, 10\ns_sub_u32 s27, s27, s28")
    L = uid("Lwo")
    a("s_mov_b32 s33, 0"); a.label(L); task()
    for half in range(2):
        a(f"""
        s_lshl_b32 s28, s26, 1
        s_add_u32 s28, s28, {half}
        s_mul_i32 s29, s28, 52
        s_lshr_b32 s29, s29, 8
        s_mul_i32 s30, s29, 5
        s_sub_u32 s28, s28, s30
        s_mul_i32 s29, s29, 80
        s_mul_i32 s30, s28, 20
        s_cmp_eq_u32 s28, 4
        s_cselect_b64 vcc, -1, 0
        s_cselect_b32 s30, 0, s30
        s_cselect_b32 s31, 40, 8
        s_mul_i32 s31, s31, 1280
        s_add_u32 s29, s29, s30
        s_mul_i32 s28, s29, 1280
        s_lshl_b32 s29, s27, 7
        s_add_u32 s28, s28, s29
        v_cndmask_b32 v2, v15, v14, vcc
        """)
        for i in range(2): a(f"s_add_u32 m0, s23, {2048*half+1024*i}\nbuffer_load_dwordx4 v2, s[4:7], s28 offen lds\ns_add_u32 s28, s28, s31")
    a(f"s_add_u32 s23, s23, 4096\ns_add_u32 s33, s33, 1\ns_cmp_lt_u32 s33, 7\ns_cbranch_scc1 {L}\ns_waitcnt vmcnt(0)\ns_mov_b32 s33, 0")
    L = uid("Lwo"); a.label(L); task()
    for t in range(4): a(f"ds_read_b64_tr_b16 {v(16+4*t,2)}, v{8+t}\nds_read_b64_tr_b16 {v(18+4*t,2)}, v{8+t} offset:2048\nv_add_u32 v{8+t}, 4096, v{8+t}")
    a(f"s_lshl_b32 s28, s27, 2\ns_mul_i32 s28, s28, 68\ns_add_u32 s28, s28, s26\ns_add_u32 s28, s28, 48\ns_lshl_b32 s28, s28, 10")
    for t in range(4): a(f"s_waitcnt lgkmcnt({6-2*t})\nbuffer_store_dwordx4 {v(16+4*t,4)}, v12, s[8:11], s28 offen {SC}\ns_add_u32 s28, s28, {68*1024}")
    a(f"s_add_u32 s33, s33, 1\ns_cmp_lt_u32 s33, 7\ns_cbranch_scc1 {L}")
    publish(a, 8, 4, 13, 8)
    stamp(a, 1)
    if not opt("nospw2") and not opt("mixed"):
        L = uid("Lw2")
        a(f"""
        s_and_b32 s22, s16, 1
        s_lshl_b32 s22, s22, 2
        s_add_u32 s22, s22, s3
        s_lshl_b32 s22, s22, 3
        v_lshrrev_b32 v2, 3, v1
        v_add_u32 v2, s22, v2
        v_lshlrev_b32 v2, 12, v2
        v_and_b32 v3, 7, v1
        v_lshl_add_u32 v2, v3, 7, v2
        s_lshr_b32 s22, s52, 1
        s_lshl_b32 s22, s22, 10
        s_mov_b32 s33, 0
        {L}:
        buffer_load_dword v30, v2, s[12:15], s22 offen
        s_add_u32 s22, s22, {64*4096}
        s_add_u32 s33, s33, 1
        s_cmp_lt_u32 s33, 24
        s_cbranch_scc1 {L}
        """)
    stamp(a, 2)

QA_S, QA_SLOT, QA_W = 3, 49152, 18432
def qa_w1_sweep(a):
    if not opt("qsw"): return
    a(f"""
    s_load_dwordx2 s[12:13], s[0:1], {KA['w1']}
    s_lshr_b32 s22, s2, 1
    s_lshl_b32 s22, s22, 2
    s_add_u32 s22, s22, s3
    s_lshl_b32 s23, s22, 12
    s_lshl_b32 s22, s22, 13
    s_add_u32 s23, s23, {512*8192}
    v_lshlrev_b32 v2, 7, v1
    s_waitcnt lgkmcnt(0)
    """)
    srd(a, 12, 12, S_ * 3072)
    a("buffer_load_dword v32, v2, s[12:15], s22 offen\ns_mov_b32 exec_hi, 0\nbuffer_load_dword v33, v2, s[12:15], s23 offen\ns_mov_b32 exec_hi, -1")
def qa_w2_burst(a):
    if not (opt("mixed") or opt("burst")) or opt("nopfw2"): return
    a(f"""
    s_load_dwordx2 s[12:13], s[0:1], {KA['w2']}
    s_sub_u32 s22, s53, {16 if opt("mixed") else 0}
    s_lshl_b32 s22, s22, 2
    s_add_u32 s22, s22, s3
    s_lshl_b32 s22, s22, 3
    v_lshrrev_b32 v2, 3, v1
    v_add_u32 v2, s22, v2
    v_lshlrev_b32 v2, 12, v2
    v_and_b32 v3, 7, v1
    v_lshl_add_u32 v2, v3, 7, v2
    s_lshr_b32 s22, s52, 1
    s_lshl_b32 s22, s22, 10
    s_waitcnt lgkmcnt(0)
    """)
    srd(a, 12, 12, F_ * 4096)
    if opt("mixed"):
        for n in range(3): a(f"buffer_load_dword v30, v2, s[12:15], s22 offen\ns_add_u32 s22, s22, {512*4096}")
    else:
        for n in range(2): a(f"buffer_load_dword v30, v2, s[12:15], s22 offen\ns_add_u32 s22, s22, {1024*4096}")
def qa_loader(a):
    a(f"v_lshrrev_b32 v2, 3, v1\ns_lshl_b32 s23, s3, 3\nv_add_u32 v2, s23, v2\ns_lshl_b32 s26, s16, 7\ns_sub_u32 s26, s26, 16\nv_and_b32 v3, 7, v1")
    for i in range(6):
        a(f"v_add_u32 v4, {24*i}, v2\nv_lshrrev_b32 v5, 1, v4\nv_and_b32 v5, 7, v5\nv_xor_b32 v5, v5, v3\nv_add_u32 v4, s26, v4\nv_max_i32 v4, 0, v4\nv_mul_u32_u24 v4, 1280, v4\nv_lshl_add_u32 v{8+i}, v5, 4, v4")
    a(f"s_mul_i32 s23, s3, 320\ns_mul_i32 s26, s17, 160\nv_add_u32 v2, s23, v1")
    for i in range(5):
        a(f"""
        v_add_u32 v3, {64*i}, v2
        v_mul_u32_u24 v4, 2185, v3
        v_lshrrev_b32 v4, 16, v4
        v_mul_u32_u24 v5, 30, v4
        v_sub_u32 v3, v3, v5
        v_mul_u32_u24 v5, 26, v3
        v_lshrrev_b32 v5, 8, v5
        v_mul_u32_u24 v5, {1280-160}, v5
        v_lshl_add_u32 v3, v3, 4, v5
        v_and_b32 v5, 12, v4
        v_lshlrev_b32 v5, 1, v5
        v_lshrrev_b32 v6, 4, v4
        v_lshl_add_u32 v5, v6, 2, v5
        v_and_b32 v4, 3, v4
        v_add_u32 v4, v4, v5
        v_mul_u32_u24 v4, 3840, v4
        v_add3_u32 v{16+i}, v4, v3, s26
        """)
    a(f"s_mov_b32 s34, s18\ns_mov_b32 s37, 0\ns_lshl_b32 s38, s3, 10\ns_mul_i32 s39, s3, 5120\ns_add_u32 s39, s39, {QA_W}\ns_mov_b32 s33, 0")
    srd(a, 4, 4, H_SZ); srd(a, 8, 8, 640 * 3840)
    def issue():
        a(f"s_lshl_b32 s40, s34, 7\ns_mul_i32 s41, s34, {64*3840}\ns_add_u32 s42, s37, s38\ns_add_u32 s43, s37, s39\ns_add_u32 s36, s41, {32*3840}")
        for i in range(3): a(f"s_add_u32 m0, s42, {3072*i}\n{thr('q', 9)}buffer_load_dwordx4 v{8+i}, s[4:7], s40 offen lds")
        for i in range(5): a(f"s_add_u32 m0, s43, {1024*i}\n{thr('q', 9)}buffer_load_dwordx4 v{16+i}, s[8:11], s41 offen lds")
        for i in range(3, 6): a(f"s_add_u32 m0, s42, {3072*i}\n{thr('q', 9)}buffer_load_dwordx4 v{8+i}, s[4:7], s40 offen lds")
        for i in range(5): a(f"s_add_u32 m0, s43, {15360+1024*i}\n{thr('q', 9)}buffer_load_dwordx4 v{16+i}, s[8:11], s36 offen lds")
        a(f"s_add_u32 s37, s37, {QA_SLOT}\ns_cmp_ge_u32 s37, {QA_SLOT*QA_S}\ns_cselect_b32 s37, 0, s37\ns_add_u32 s34, s34, 1\ns_cmp_ge_u32 s34, 10\ns_cselect_b32 s34, 0, s34")
    issue_n(a, QA_S - 1, issue)
    tag_ready(a); stamp(a, 1)
    steady(a, 10, 16, QA_S - 1, issue); drain(a, 16, QA_S - 1)
    stamp(a, 2); qa_w2_burst(a)
def qa_idle(a):
    code_prefetch(a)
    a(f"""
    s_load_dwordx2 s[12:13], s[0:1], {KA['w2']}
    v_lshrrev_b32 v2, 3, v1
    s_lshl_b32 s22, s53, 3
    v_add_u32 v2, s22, v2
    v_lshlrev_b32 v2, 12, v2
    v_and_b32 v3, 7, v1
    v_lshl_add_u32 v2, v3, 7, v2
    s_lshr_b32 s22, s52, 1
    s_lshl_b32 s22, s22, 10
    """)
    tag_ready(a)
    srd(a, 12, 12, F_ * 4096)
    w0 = opt("w2at", 3); per = opt("w2per", 1)
    for i in range(10):
        a("s_barrier")
        if w0 <= i < w0 + 6 // per and not opt("nopfw2") and not opt("mixed") and not opt("burst"):
            for k in range(per): a(f"buffer_load_dword v30, v2, s[12:15], s22 offen\ns_add_u32 s22, s22, {256*4096}")
    qa_w2_burst(a)
def qa_consumer(a):
    L = "Lqa"
    AQ, AK, AV = 16, 56, 116
    XF, WB = 176, 200
    NB, DD = 5, 3
    a(f"""
    s_load_dwordx2 s[12:13], s[0:1], {KA['dbg']}
    v_and_b32 v2, 15, v1
    v_lshrrev_b32 v3, 4, v1
    v_lshrrev_b32 v4, 1, v2
    v_xor_b32 v4, v4, v3
    v_lshlrev_b32 v4, 4, v4
    v_lshl_add_u32 v4, v2, 7, v4
    s_lshl_b32 s23, s3, 12
    v_add_u32 v8, s23, v4
    v_xor_b32 v9, 64, v8
    v_lshrrev_b32 v5, 2, v1
    v_mul_u32_u24 v5, 480, v5
    v_add_u32 v5, {QA_W}, v5
    v_and_b32 v6, 3, v1
    v_lshl_add_u32 v10, v6, 3, v5
    v_mul_u32_u24 v6, 40, v6
    v_add3_u32 v11, v6, v5, 32
    """)
    for i in range(160): a(f"v_mov_b32 v{16+i}, 0")
    M0, M1, MF, PM = 220, 224, 228, 232
    TM = 236
    a(f"v_lshlrev_b32 v4, 2, v3\nv_sub_u32 v4, v2, v4\nv_mov_b32 v5, {f2u(-1e30)}")
    for r in range(4):
        a(f"""
        v_subrev_u32 v6, {r}, v4
        v_and_b32 v6, 0x80000001, v6
        v_cmp_eq_u32 vcc, 0, v6
        v_cndmask_b32_e64 v{M1+r}, v5, 0, vcc
        v_cndmask_b32_e64 v{TM+4+r}, 0, -1, vcc
        v_cmp_eq_u32 vcc, 0x80000000, v6
        v_cndmask_b32_e64 v{M0+r}, v5, 0, vcc
        v_cndmask_b32_e64 v{TM+r}, 0, -1, vcc
        """)
    a("s_mov_b32 s30, 0xffff")
    for i in range(4): a(f"v_bfi_b32 v{PM+i}, s30, v{TM+2*i}, v{TM+2*i+1}")
    a(f"s_or_b32 s23, s16, s3\ns_cmp_eq_u32 s23, 0\ns_cselect_b64 vcc, -1, 0")
    for r in range(4): a(f"v_cndmask_b32 v{MF+r}, v{M0+r}, v5, vcc")
    GM, CM = 90, 52
    for h in range(4): a(f"v_cmp_eq_u32 s[{GM+2*h}:{GM+1+2*h}], {h}, v3")
    a(f"""
    s_lshl_b32 s23, s16, 3
    s_lshl_b32 s26, s3, 1
    s_add_u32 s23, s23, s26
    s_mul_i32 s23, s23, 40
    s_mul_i32 s26, s17, 5
    s_add_u32 s23, s23, s26
    s_lshl_b32 s23, s23, 9
    v_lshl_add_u32 v12, v1, 3, s23
    s_lshl_b32 s23, s16, 4
    s_add_u32 s23, s23, s17
    s_lshl_b32 s23, s23, 7
    s_add_u32 s23, s23, {F2}
    v_lshl_add_u32 v14, v1, 10, s23
    s_mov_b32 s31, {f2u(20 ** -0.5 * LOG2E)}
    s_mov_b32 s33, 0
    s_mov_b32 s37, 0
    s_waitcnt lgkmcnt(0)
    """)
    srd(a, 4, 20, OT_SZ, OT_OFF); srd(a, 12, 12, 256); tag_ready(a)
    def xread(kk): return [f"ds_read_b128 {v(XF+12*kk+4*rt,4)}, v{8+kk} offset:{2048*rt}" for rt in range(3)]
    def wread(u):
        kk, c = divmod(u, 15); p, tt = divmod(c, 5)
        b = WB + 4 * (u % NB); ad = 11 if tt == 4 else 10
        off = kk * 15360 + p * 160 + (0 if tt == 4 else 40 * tt)
        return [f"ds_read_b64_tr_b16 {v(b,2)}, v{ad} offset:{off}", f"ds_read_b64_tr_b16 {v(b+2,2)}, v{ad} offset:{off+7680}"]
    def mf(u):
        kk, c = divmod(u, 15); p, tt = divmod(c, 5)
        w = v(WB + 4 * (u % NB), 4); r = []
        for rt in range(3):
            x = v(XF + 12 * kk + 4 * rt, 4)
            if p == 0:
                if rt == 0: continue
                d = v(AQ + 20 * (rt - 1) + 4 * tt, 4); r.append(f"v_mfma_f32_16x16x32_bf16 {d}, {w}, {x}, {d}")
            elif p == 1:
                d = v(AK + 20 * rt + 4 * tt, 4); r.append(f"v_mfma_f32_16x16x32_bf16 {d}, {w}, {x}, {d}")
            else:
                d = v(AV + 12 * tt + 4 * rt, 4); r.append(f"v_mfma_f32_16x16x32_bf16 {d}, {x}, {w}, {d}")
        return r
    stamp(a, 1, True); a("s_barrier"); stamp(a, 2, True)
    for t in xread(0): a(t)
    for u in range(DD):
        for t in wread(u): a(t)
    a(f"s_waitcnt lgkmcnt({2*DD-2})")
    a.label(f"{L}_c", 3)
    q = []
    for u in range(1, DD): q += [u, u]
    misc = slot_adv(QA_SLOT, QA_S) + ["s_add_u32 s33, s33, 1", "s_cmp_ge_u32 s33, 10"]
    for u in range(30):
        nx = u + DD; fill = []
        if nx < 30:
            if nx == 15: fill += [(t, 15) for t in xread(1)]
            fill += [(t, nx) for t in wread(nx)]
        else:
            if nx == 30: fill += [(t, 30) for t in xread(0)]
            fill += [(t, nx) for t in wread(nx - 30)]
        ms = mf(u)
        if nx == 30:
            a(f"s_waitcnt lgkmcnt(0)\ns_barrier\ns_cbranch_scc1 {L}_clast"); q = []
        per = -(-len(fill) // len(ms))
        for i, m in enumerate(ms):
            a(m)
            for t, tag in fill[i*per:(i+1)*per]: a(t); q.append(tag)
            if len(ms) == 3 and i == 2 and misc and u < 20: a(misc.pop(0))
        if nx == 29:
            for i in range(4): a(f"v_add_u32 v{8+i}, s40, v{8+i}")
        if any(t <= u + 1 for t in q):
            last = max(i for i, t in enumerate(q) if t <= u + 1)
            q = q[last + 1:]
            a(f"s_waitcnt lgkmcnt({len(q)})")
    assert not misc and len(q) == 2 * DD - 2
    a(f"s_branch {L}_c")
    a.label(f"{L}_clast"); stamp(a, 3, True); lstamp(a, 1)
    for u in range(30 - DD, 30):
        for m in mf(u): a(m)
    La = uid("Lna")
    a(f"s_cmp_lg_u32 s3, 0\ns_cbranch_scc1 {La}"); arrive_issue(a, 6); a.label(La)
    SR = 176
    P = 208
    PR = [208, 212, 216, 248]
    cv = lambda d, s0: a(f"v_cvt_pk_bf16_f32 v{d}, v{s0}, v{s0+1}")
    for rt in range(3):
        t4 = AK + 20 * rt + 16
        for h in range(4):
            b = AK + 20 * rt + 4 * h
            cv(b, b); cv(b + 1, b + 2); cv(b + 2, t4); cv(b + 3, t4 + 2)
    for rt in range(2):
        t4 = AQ + 20 * rt + 16
        cv(t4, t4); cv(t4 + 1, t4 + 2)
        for h in range(4):
            b = AQ + 20 * rt + 4 * h
            cv(b, b); cv(b + 1, b + 2)
            a(f"v_cndmask_b32 v{b+2}, 0, v{t4}, s[{GM+2*h}:{GM+1+2*h}]\nv_cndmask_b32 v{b+3}, 0, v{t4+1}, s[{GM+2*h}:{GM+1+2*h}]")
    vdone = False; lstamp(a, 2)
    for rt in (1, 2):
        for h in range(4):
            qf = v(AQ + 20 * (rt - 1) + 4 * h, 4)
            a(f"v_mfma_f32_16x16x32_bf16 {v(SR+8*h,4)}, {v(AK+20*(rt-1)+4*h,4)}, {qf}, {v(MF if rt == 1 else M0,4)}")
            a(f"v_mfma_f32_16x16x32_bf16 {v(SR+8*h+4,4)}, {v(AK+20*rt+4*h,4)}, {qf}, {v(M1,4)}")
        if not vdone:
            for tt in range(5):
                b = AV + 12 * tt
                for i in range(6): cv(b + i, b + 2 * i)
            vdone = True
        VA, VB, X = TM, TM + 4, TM + 8
        for h in range(4):
            s = SR + 8 * h
            a(f"v_max3_f32 v{VA+h}, v{s}, v{s+1}, v{s+4}\nv_max3_f32 v{VB+h}, v{s+2}, v{s+3}, v{s+6}")
        for h in range(4):
            s = SR + 8 * h
            a(f"v_max_f32 v{VA+h}, v{VA+h}, v{s+5}\nv_max_f32 v{VB+h}, v{VB+h}, v{s+7}")
        def xred(op):
            a(f"v_permlane32_swap_b32 v{X}, v{X+1}\nv_permlane32_swap_b32 v{X+2}, v{X+3}")
            a(f"{op} v{X}, v{X}, v{X+1}\n{op} v{X+2}, v{X+2}, v{X+3}")
            a(f"v_permlane16_swap_b32 v{X}, v{X+2}\n{op} v{X}, v{X}, v{X+2}")
        def xbc():
            a(f"v_mov_b32 v{X+2}, v{X}\nv_permlane16_swap_b32 v{X}, v{X+2}")
            a(f"v_mov_b32 v{X+1}, v{X}\nv_mov_b32 v{X+3}, v{X+2}")
            a(f"v_permlane32_swap_b32 v{X}, v{X+1}\nv_permlane32_swap_b32 v{X+2}, v{X+3}")
        for h in range(4): a(f"v_max_f32 v{X+h}, v{VA+h}, v{VB+h}")
        xred("v_max_f32")
        a(f"v_mul_f32 v{X}, s31, v{X}")
        xbc()
        for h in range(4): a(f"v_fma_f32 v{VA+h}, v{VA+h}, s31, -v{X+h}\nv_fma_f32 v{VB+h}, v{VB+h}, s31, -v{X+h}")
        for h in range(4): a(f"v_exp_f32 v{VA+h}, v{VA+h}\nv_exp_f32 v{VB+h}, v{VB+h}")
        for h in range(4): a(f"v_add_f32 v{X+h}, v{VA+h}, v{VB+h}")
        xred("v_add_f32")
        a(f"v_rcp_f32 v{X}, v{X}")
        xbc()
        for h in range(4): a(f"v_mul_f32 v{VA+h}, v{VA+h}, v{X+h}\nv_mul_f32 v{VB+h}, v{VB+h}, v{X+h}")
        for h in range(4): a(f"v_cvt_pk_bf16_f32 v{VA+h}, v{VA+h}, v{VA+h}\nv_cvt_pk_bf16_f32 v{VB+h}, v{VB+h}, v{VB+h}")
        for h in range(4):
            p = PR[h]
            a(f"v_and_b32 v{p}, v{VA+h}, v{PM}\nv_and_b32 v{p+1}, v{VB+h}, v{PM+1}\nv_and_b32 v{p+2}, v{VA+h}, v{PM+2}\nv_and_b32 v{p+3}, v{VB+h}, v{PM+3}")
        for h in range(4):
            a(f"v_mfma_f32_16x16x32_bf16 {v(SR+8*h,4)}, {v(AV+12*h+2*(rt-1),4)}, {v(PR[h],4)}, 0")
            a(f"v_mfma_f32_16x16x32_bf16 {v(SR+8*h+4,4)}, {v(AV+48+2*(rt-1),4)}, {v(PR[h],4)}, 0")
        O = TM
        if rt == 1: a("s_setprio 2")
        for h in range(4):
            cv(O + 2 * h, SR + 8 * h); cv(O + 2 * h + 1, SR + 8 * h + 2)
            a(f"s_mov_b32 s29, {40*512*(rt-1)}\nbuffer_store_dwordx2 {v(O+2*h,2)}, v12, s[4:7], s29 offen offset:{512*h} {SC}")
        for h in range(1, 4):
            for r in range(4): a(f"v_cndmask_b32 v{SR+4+r}, v{SR+4+r}, v{SR+8*h+4+r}, s[{GM+2*h}:{GM+1+2*h}]")
        cv(O + 8, SR + 4); cv(O + 9, SR + 6)
        a(f"buffer_store_dwordx2 {v(O+8,2)}, v12, s[4:7], s29 offen offset:2048 {SC}")
    lstamp(a, 3)
    if opt("late"): a("s_waitcnt vmcnt(0)"); lstamp(a, 4)
    publish(a, 4, 4, 14, 2)
    if opt("late"): lstamp(a, 5); a("s_waitcnt vmcnt(0)"); lstamp(a, 6)
    La = uid("Lna")
    a(f"s_cmp_lg_u32 s3, 0\ns_cbranch_scc1 {La}"); arrive_finish(a, 6); a.label(La)
    stamp(a, 4, True)

P2_S, P2_SLOT = 8, 18432
def p2_common_adv():
    return f"s_add_u32 s37, s37, {P2_SLOT}\ns_cmp_ge_u32 s37, s38\ns_cselect_b32 s42, {P2_SLOT*P2_S}, 0\ns_sub_u32 s37, s37, s42\ns_add_u32 s34, s34, 1\ns_cmp_ge_u32 s34, s35\ns_cselect_b32 s34, 0, s34"
def p2_phase(a, sreg, n):
    st = opt("stagp", 0) if n == 24 else opt("stagpa", 0)
    if st: a(f"s_lshr_b32 s22, s2, 3\ns_lshr_b32 s23, s22, 3\ns_lshl_b32 s23, s23, 1\ns_add_u32 s22, s22, s23\ns_and_b32 s22, s22, 7\ns_mul_i32 s22, s22, {n}\ns_lshr_b32 s{sreg}, s22, 3")
    else: a(f"s_mov_b32 s{sreg}, 0")
def p2_loader_s(a):
    AH = P2_S - 2
    a(f"""
    s_load_dwordx2 s[12:13], s[0:1], {KA['w2']}
    v_lshrrev_b32 v2, 3, v1
    v_and_b32 v3, 7, v1
    v_and_b32 v4, 6, v2
    v_xor_b32 v3, v3, v4
    v_lshlrev_b32 v3, 4, v3
    v_lshl_add_u32 v2, v2, 12, v3
    s_lshl_b32 s23, s3, 17
    s_lshl_b32 s26, s50, 7
    s_add_u32 s23, s23, s26
    v_add_u32 v8, s23, v2
    """)
    for i in range(1, 4): a(f"v_add_u32 v{8+i}, {8*4096*i}, v8")
    a(f"s_lshl_b32 s23, s50, 2\ns_mul_i32 s23, s23, 40\ns_lshl_b32 s26, s3, 1\ns_add_u32 s23, s23, s26\ns_lshl_b32 s23, s23, 9\nv_lshl_add_u32 v16, v1, 4, s23")
    for i in range(1, 4): a(f"v_add_u32 v{16+i}, {40*512*i}, v16")
    a(f"s_and_b32 s23, s50, -2\ns_and_b32 s26, s52, 1\ns_add_u32 s23, s23, s26\ns_lshl_b32 s23, s23, 10\ns_add_u32 s23, s23, {F2}\nv_lshl_add_u32 v12, v1, 7, s23")
    p2_phase(a, 34, 10); p2_phase(a, 39, 24)
    a(f"s_mov_b32 s35, 10\ns_lshl_b32 s37, s3, 12\ns_add_u32 s38, s37, {P2_SLOT*P2_S}\ns_mov_b32 s33, 0\ns_waitcnt lgkmcnt(0)")
    srd(a, 4, 20, OT_SZ, OT_OFF)
    a("s_barrier")
    gate(a, 12, 0xff)
    stamp(a, 3)
    def issue(sc):
        a(f"s_lshl_b32 s40, s34, {11 if sc else 18}")
        for i in range(4): a(f"s_add_u32 m0, s37, {1024*i}\n{thr('s', 7)}buffer_load_dwordx4 v{(16 if sc else 8)+i}, s[4:7], s40 offen {sc} lds")
        a(p2_common_adv())
    AA = opt("aha", 3)
    issue_n(a, AA, lambda: issue(SC))
    steady(a, 10, 4, AA, lambda: issue(SC))
    srd(a, 4, 12, F_ * 4096); a("s_mov_b32 s35, 24\ns_mov_b32 s34, s39")
    if AA < AH:
        a(f"s_waitcnt vmcnt({4*(AA-1)})\ns_barrier"); issue_n(a, AH - AA + 1, lambda: issue(""))
    steady(a, 34, 4, AH, lambda: issue(""))
    stamp(a, 5)
    drain(a, 4, AH)
    endp(a)
def p2_loader_d(a):
    AH = P2_S - 2
    a(f"s_sub_u32 s22, s3, 2\ns_mul_i32 s23, s51, {5*68}\ns_add_u32 s23, s23, s22\ns_lshl_b32 s23, s23, 10\nv_lshl_add_u32 v8, v1, 4, s23")
    for i in range(1, 5): a(f"v_add_u32 v{8+i}, {68*1024*i}, v8")
    a(f"""
    s_mul_i32 s37, s22, 5120
    s_add_u32 s37, s37, 8192
    s_add_u32 s38, s37, {P2_SLOT*P2_S}
    s_lshl_b32 s23, s52, 10
    s_add_u32 s23, s23, {F3}
    v_lshl_add_u32 v14, v1, 7, s23
    s_mul_i32 s23, s51, 5
    s_lshr_b32 s23, s23, 2
    s_lshl_b32 s23, s23, 11
    s_lshr_b32 s26, s52, 1
    s_mul_i32 s26, s26, {160*128}
    s_add_u32 s23, s23, s26
    s_add_u32 s23, s23, {F4}
    v_lshl_add_u32 v15, v1, 7, s23
    """)
    p2_phase(a, 34, 10); p2_phase(a, 39, 24)
    a("s_mov_b32 s35, 10\ns_mov_b32 s36, 48\ns_mov_b32 s33, 0")
    srd(a, 8, 20, UW_SZ, UW_OFF)
    a("s_barrier")
    gate(a, 14, 0xff)
    stamp(a, 3)
    def issue():
        a("s_lshl_b32 s41, s34, 1\ns_add_u32 s41, s41, s36\ns_lshl_b32 s41, s41, 10")
        for i in range(5): a(f"s_add_u32 m0, s37, {1024*i}\n{thr('d', 9)}buffer_load_dwordx4 v{8+i}, s[8:11], s41 offen {SC} lds")
        a(p2_common_adv())
    AA = opt("aha", 3)
    issue_n(a, AA, issue)
    steady(a, 10, 5, AA, issue)
    GB = opt("gb", 10)
    for j in range(10 - AA, GB): a(f"s_waitcnt vmcnt({5*(9-j)})\ns_barrier")
    a("s_mov_b32 s35, 24\ns_mov_b32 s36, 0\ns_mov_b32 s34, s39")
    gate(a, 15, 0x0fff0fff)
    stamp(a, 4)
    issue_n(a, GB + AH - 10, issue)
    steady(a, 34, 5, AH, issue)
    stamp(a, 5)
    drain(a, 5, AH)
    endp(a)
def p2_consumer(a):
    L = "Lp2"
    ACB, ACA = 16, 36
    a(f"""
    s_load_dwordx2 s[24:25], s[0:1], {KA['b2']}
    s_load_dwordx2 s[28:29], s[0:1], {KA['out']}
    s_lshl_b32 s23, s50, 6
    s_lshl_b32 s26, s3, 4
    s_add_u32 s23, s23, s26
    v_and_b32 v2, 15, v1
    v_add_u32 v2, s23, v2
    v_lshlrev_b32 v3, 1, v2
    v_lshlrev_b32 v4, 2, v2
    s_waitcnt lgkmcnt(0)
    """)
    srd(a, 24, 24, 4096); srd(a, 8, 20, G_SZ, G_OFF); srd(a, 28, 28, S_ * 1280)
    a(f"""
    buffer_load_ushort v10, v3, s[24:27], 0 offen
    s_setprio 0
    v_lshrrev_b32 v5, 2, v1
    v_lshrrev_b32 v6, 1, v5
    v_and_b32 v6, 3, v6
    v_xor_b32 v6, s3, v6
    v_lshlrev_b32 v6, 5, v6
    v_lshl_add_u32 v5, v5, 7, v6
    v_and_b32 v6, 3, v1
    v_lshl_add_u32 v8, v6, 3, v5
    v_lshlrev_b32 v9, 4, v1
    v_add_u32 v9, 8192, v9
    v_mul_u32_u24 v12, 1280, v2
    v_lshrrev_b32 v6, 4, v1
    v_lshl_add_u32 v12, v6, 3, v12
    s_mul_i32 s26, s51, 160
    v_add_u32 v12, s26, v12
    s_lshl_b32 s26, s3, 10
    v_lshl_add_u32 v13, v1, 3, s26
    """)
    for i in range(20): a(f"v_mov_b32 v{ACA+i}, 0")
    SETS = (56, 104)
    def reads(st, ph="b"):
        r = []
        for kk in range(2):
            b = SETS[st] + 24 * kk
            if ph == "a": r += [(f"ds_read_b64 {v(b,2)}, v13 offset:{kk*4096}", (kk, "b0")), (f"ds_read_b64 {v(b+2,2)}, v13 offset:{kk*4096+512}", (kk, "b1"))]
            else: r += [(f"ds_read_b64_tr_b16 {v(b,2)}, v8 offset:{kk*4096}", (kk, "b0")), (f"ds_read_b64_tr_b16 {v(b+2,2)}, v8 offset:{kk*4096+2048}", (kk, "b1"))]
            r += [(f"ds_read_b128 {v(b+4+4*dt,4)}, v9 offset:{(kk*5+dt)*1024}", (kk, dt)) for dt in range(5)]
        return r
    def mf(acc, st):
        return [(f"v_mfma_f32_16x16x32_bf16 {v(acc+4*dt,4)}, {v(SETS[st]+24*kk+4+4*dt,4)}, {v(SETS[st]+24*kk,4)}, {v(acc+4*dt,4)}", {(kk, "b1"), (kk, dt)}) for kk in range(2) for dt in range(5)]
    ids = [x[1] for x in reads(0)]
    adv = slot_adv(P2_SLOT, P2_S) + ["v_add_u32 v8, s40, v8", "v_add_u32 v9, s40, v9"]
    a("s_mov_b32 s33, 0\ns_mov_b32 s37, 0\ns_barrier"); stamp(a, 5, True)
    adva = adv + ["v_add_u32 v13, s40, v13"]
    emit_step(a, [], [], reads(0, "a"), adva)
    a.label(f"{L}_ca", 3)
    a("s_barrier")
    emit_step(a, mf(ACA, 0), ids, reads(1, "a"), adva + ["s_add_u32 s33, s33, 2", "s_cmp_ge_u32 s33, 10"])
    a(f"s_barrier\ns_cbranch_scc1 {L}_cax")
    emit_step(a, mf(ACA, 1), ids, reads(0, "a"), adva)
    a(f"s_branch {L}_ca")
    a.label(f"{L}_cax")
    emit_step(a, mf(ACA, 1), ids, reads(0, "b"), adv)
    def loop(tag, acc, end, last):
        a.label(f"{L}_c{tag}", 3)
        a("s_barrier")
        emit_step(a, mf(acc, 0), ids, reads(1), adv + ["s_add_u32 s33, s33, 2", f"s_cmp_ge_u32 s33, {end}"])
        a(f"s_cbranch_scc1 {L}_clast\ns_barrier")
        emit_step(a, mf(acc, 1), ids, reads(0), adv)
        a(f"s_branch {L}_c{tag}")
    a(f"s_waitcnt vmcnt(0)\nbuffer_load_dword v11, v4, s[8:11], 0 offen {SC}\nv_lshlrev_b32 v10, 16, v10")
    for i in range(20): a(f"v_mov_b32 v{ACB+i}, v10")
    loop("b", ACB, 34, True)
    a.label(f"{L}_clast")
    emit_step(a, mf(ACB, 1), ids, [], [])
    stamp(a, 6)
    a("s_waitcnt vmcnt(0)\ns_nop 4")
    for dt in range(5):
        for r in range(4): a(f"v_sub_f32 v{ACA+4*dt+r}, v{ACA+4*dt+r}, v{ACB+4*dt+r}")
        for r in range(4): a(f"v_fmac_f32 v{ACB+4*dt+r}, v11, v{ACA+4*dt+r}")
        a(f"v_cvt_pk_bf16_f32 v{56+2*dt}, v{ACB+4*dt}, v{ACB+4*dt+1}\nv_cvt_pk_bf16_f32 v{57+2*dt}, v{ACB+4*dt+2}, v{ACB+4*dt+3}")
        a(f"buffer_store_dwordx2 {v(56+2*dt,2)}, v12, s[28:31], 0 offen offset:{32*dt} {'sc1' if opt('osc1') else 'nt' if opt('ont') else ''}")
    endp(a)

def gen_main(a, name):
    kernel_head(a, name)
    if PROF:
        for i in range(1, 8): a(f"s_mov_b64 s[{70+2*i}:{71+2*i}], 0")
        stamp(a, 0); a("s_memtime s[66:67]")
    a(f"""
    s_cmp_ge_u32 s2, 256
    s_cbranch_scc1 Lend
    s_load_dwordx2 s[20:21], s[0:1], {KA['ws']}
    v_lshrrev_b32 v1, 6, v0
    v_readfirstlane_b32 s3, v1
    v_and_b32 v1, 63, v0
    s_and_b32 s52, s2, 7
    s_lshr_b32 s53, s2, 3
    s_lshr_b32 s22, s52, 1
    s_lshl_b32 s50, s22, 3
    s_and_b32 s23, s53, 7
    s_add_u32 s50, s50, s23
    s_and_b32 s51, s52, 1
    s_lshl_b32 s51, s51, 2
    s_lshr_b32 s26, s53, 3
    s_add_u32 s51, s51, s26
    """)
    if PROF: a("s_mov_b32 s69, s3")
    NG = 15 if opt("mixed") else 30
    a("s_cmp_ge_u32 s53, 16\ns_cbranch_scc1 Lrole_qa" if opt("mixed") else "s_bitcmp1_b32 s52, 0\ns_cbranch_scc1 Lrole_qa")
    a(f"""
    {"s_lshl_b32 s19, s52, 4" if opt("mixed") else "s_lshl_b32 s19, s22, 5"}
    s_add_u32 s19, s19, s53
    s_mul_i32 s17, s53, 86
    s_lshr_b32 s17, s17, 8
    s_mul_i32 s23, s17, 3
    s_sub_u32 s23, s53, s23
    s_mul_i32 s16, s22, 3
    s_add_u32 s16, s16, s23
    """)
    if opt("mixed"): a("s_and_b32 s26, s52, 1\ns_mul_i32 s26, s26, 5\ns_add_u32 s17, s17, s26")
    a(f"s_mul_i32 s18, s23, {opt('stagg', 0)}\ns_mul_i32 s26, s17, {opt('stagd', 0)}\ns_add_u32 s18, s18, s26\ns_and_b32 s18, s18, 31")
    a("s_cmp_ge_u32 s3, 4\ns_cbranch_scc1 Lg_cons\ns_setprio 1\ns_cmp_ge_u32 s3, 2\ns_cbranch_scc1 Lg_h")
    def flags():
        a(f"s_waitcnt lgkmcnt(0)"); srd(a, 44, 20, FL_SZ, FL_OFF); a(f"s_load_dword s48, s[44:45], {FZ}")
    a(f"s_load_dwordx2 s[4:5], s[0:1], {KA['w1']}"); flags()
    a(f"s_cmp_ge_u32 s53, {NG}\ns_cbranch_scc1 Lsp_w")
    g1_loader_w(a); a("s_branch Lp2_s")
    a.label("Lsp_w"); w1_sweep(a)
    a.label("Lsp_l"); a("s_mov_b32 s16, s52" if opt("mixed") else "s_lshr_b32 s16, s52, 1\ns_lshl_b32 s16, s16, 1\ns_add_u32 s16, s16, s53\ns_sub_u32 s16, s16, 30"); spare_loader(a)
    a("s_cmp_ge_u32 s3, 2\ns_cbranch_scc1 Lp2_d\ns_branch Lp2_s")
    a.label("Lg_h"); code_prefetch(a)
    if opt("mixed"):
        a(f"s_load_dwordx2 s[4:5], s[0:1], {KA['w1']}"); flags(); w1_sweep(a)
        a("s_cmp_ge_u32 s53, 15\ns_cbranch_scc1 Lsp_l")
    else:
        flags(); a("s_cmp_lt_u32 s53, 30\ns_cbranch_scc1 Lg_h2\ns_barrier\ns_barrier\ns_branch Lsp_l")
    a.label("Lg_h2"); g1_loader_h(a); a("s_branch Lp2_d")
    a.label("Lg_cons")
    a(f"s_setprio 2\ns_load_dwordx2 s[4:5], s[0:1], {KA['x']}\ns_load_dwordx2 s[8:9], s[0:1], {KA['gw']}\ns_sub_u32 s3, s3, 4")
    ln_issue(a)
    srd(a, 44, 20, FL_SZ, FL_OFF)
    a(f"v_mov_b32 v2, {CTR}\nv_mov_b32 v6, 0\nv_mov_b32 v7, 0\nv_mov_b32 v8, 0\nv_mov_b32 v9, 0\nds_write_b128 v2, v[6:9]\ns_waitcnt lgkmcnt(0)\ns_barrier\ns_load_dword s48, s[44:45], {FZ}")
    ln_finish(a); stamp(a, 1, True)
    a(f"s_cmp_ge_u32 s53, {NG}\ns_cbranch_scc1 Lsp_cons")
    g1_consumer(a); a("s_branch Lp2_c")
    a.label("Lsp_cons")
    a(f"s_load_dwordx2 s[12:13], s[0:1], {KA['dbg']}\ns_waitcnt lgkmcnt(0)"); srd(a, 12, 12, 256)
    a("s_barrier\ns_cmp_lg_u32 s3, 0\ns_cbranch_scc1 Lp2_c"); arrive_issue(a, 6); a("s_waitcnt vmcnt(0)"); arrive_finish(a, 6); a("s_branch Lp2_c")
    a.label("Lrole_qa")
    if opt("mixed"): a("s_and_b32 s23, s53, 3\ns_lshl_b32 s16, s22, 2\ns_add_u32 s16, s16, s23\ns_lshr_b32 s26, s53, 2\ns_and_b32 s26, s26, 3\ns_and_b32 s17, s52, 1\ns_lshl_b32 s17, s17, 2\ns_add_u32 s17, s17, s26")
    else: a(f"""
    s_and_b32 s16, s22, 1
    s_lshl_b32 s16, s16, 3
    s_add_u32 s16, s16, s23
    s_lshr_b32 s17, s22, 1
    s_lshl_b32 s17, s17, 2
    s_add_u32 s17, s17, s26
    """)
    if opt("nsq"): a("s_mov_b32 s18, 0")
    elif opt("mixed"): a("s_add_u32 s18, s26, s23\ns_and_b32 s18, s18, 3\ns_mul_i32 s18, s18, 10\ns_lshr_b32 s18, s18, 2")
    else: a("s_lshl_b32 s18, s26, 1\ns_add_u32 s18, s18, s23\ns_and_b32 s18, s18, 7\ns_mul_i32 s18, s18, 10\ns_lshr_b32 s18, s18, 3")
    a(f"s_cmp_ge_u32 s3, 4\ns_cbranch_scc1 Lq_cons\ns_setprio 1\ns_cmp_eq_u32 s3, 3\ns_cbranch_scc1 Lq_idle")
    a(f"s_load_dwordx2 s[4:5], s[0:1], {KA['x']}\ns_load_dwordx2 s[8:9], s[0:1], {KA['wqkv']}"); qa_w1_sweep(a); flags(); qa_loader(a)
    a("s_cmp_ge_u32 s3, 2\ns_cbranch_scc1 Lp2_d\ns_branch Lp2_s")
    a.label("Lq_idle"); qa_w1_sweep(a); flags(); qa_idle(a); a("s_branch Lp2_d")
    a.label("Lq_cons"); a("s_sub_u32 s3, s3, 4"); flags()
    a(f"v_mov_b32 v2, {CTR}\nv_mov_b32 v6, 0\nv_mov_b32 v7, 0\nv_mov_b32 v8, 0\nv_mov_b32 v9, 0\nds_write_b128 v2, v[6:9]")
    qa_consumer(a)
    a.label("Lp2_c"); p2_consumer(a)
    a.label("Lp2_s"); p2_loader_s(a)
    a.label("Lp2_d"); p2_loader_d(a)
    a.label("Lend"); a("s_endpgm")
    a.raw("Lcode_end:")
    return kernel_desc(name, 256, 102)

def gen_osc(a, name):
    kernel_head(a, name)
    o = next(o for o in OPTS if o.startswith("osc"))[3:].split("_")
    a(f"s_cmp_ge_u32 s2, 1\ns_cbranch_scc1 Losc_end\ns_load_dwordx2 s[4:5], s[0:1], {KA['ws']}\ns_waitcnt lgkmcnt(0)")
    srd(a, 4, 4, 0x100000, TL_OFF + 0x40000)
    def red(dst, base, stride, count, wave, slot, op):
        n = -(-count // 64)
        for i in range(n):
            a(f"v_add_u32 v1, {64*i}, v0\nv_min_u32 v1, {count-1}, v1\nv_mul_u32_u24 v1, {stride}, v1\nv_add_u32 v1, {base}, v1\nv_lshlrev_b32 v1, 9, v1\ns_mov_b32 s8, {wave*64 + slot*4}")
            a(f"buffer_load_dword v{4+i}, v1, s[4:7], s8 offen")
        a("s_waitcnt vmcnt(0)")
        if op == "add":
            for i in range(n): a(f"v_subrev_u32 v{4+i}, s20, v{4+i}")
        for i in range(1, n): a(f"v_{op}_u32 v4, v4, v{4+i}")
        a(f"v_readlane_b32 s{dst}, v4, 0")
        for i in range(1, 64): a(f"v_readlane_b32 s9, v4, {i}\ns_nop 0\ns_{op}_u32 s{dst}, s{dst}, s9")
        if op == "add": a(f"s_lshr_b32 s{dst}, s{dst}, {(64*n).bit_length()-1}\ns_add_u32 s{dst}, s{dst}, s20")
    red(20, 0, 1, 256, 0, 0, "min")
    if len(o) > 1:
        red(21, int(o[0]), int(o[1]), int(o[2]), int(o[3]), int(o[4]), dict(n="min", x="max", a="add")[o[5]])
        a("s_sub_u32 s21, s21, s20\ns_min_u32 s21, s21, 20000\ns_lshl_b32 s21, s21, 2")
    else: a("s_mov_b32 s21, 0")
    a("s_add_u32 s21, s21, 10000\nLosc_spin:\ns_memrealtime s[10:11]\ns_waitcnt lgkmcnt(0)\ns_sub_u32 s10, s10, s20\ns_cmp_lt_u32 s10, s21\ns_cbranch_scc1 Losc_spin")
    a.label("Losc_end"); a("s_endpgm")
    return kernel_desc(name, 16, 32)

def build(spec=""):
    global PROF
    OPTS[:] = [o for o in spec.split("+") if o]; PROF = bool(opt("prof")); UID[0] = 0
    ref = open(f"cdna_kernels/{NAME}.s.ref").read().split("\n")
    head = ref[:ref.index(next(x for x in ref if x.startswith("; Override")))]
    a = Asm(); a.raw("\n".join(head))
    if opt("mixed"): a.raw("; mixed")
    osc = any(o.startswith("osc") and o != "osc1" for o in OPTS)
    if osc: a.raw(f"; @launch kernel={NAME}_kernel grid=(256,1,1) block=(512,1,1) lds={LDS_SZ}\n; @launch kernel=osc_kernel grid=(1,1,1) block=(64,1,1) lds=0")
    else: a.raw(f"; @launch grid=(256,1,1) block=(512,1,1) lds={LDS_SZ}")
    a.raw('.amdgcn_target "amdgcn-amd-amdhsa--gfx950"')
    d = gen_main(a, NAME + "_kernel")
    if osc: d += gen_osc(a, "osc_kernel")
    if opt("nocomp"): a.lines = [(t, c) for t, c in a.lines if not (c is not None and (c.kind == "mfma" or c.op.startswith("ds_read")))]
    bad = a.check_branches()
    for b in bad: print("HAZARD across branch:", b, file=sys.stderr)
    assert not bad
    a.raw(d)
    return a.text()

if __name__ == "__main__":
    open(sys.argv[2] if len(sys.argv) > 2 else f"cdna_kernels/{NAME}.s", "w").write(build(sys.argv[1] if len(sys.argv) > 1 else ""))
```

```python
import sys, struct
from dsl import *

NAME = "gated_mix__sliding_local_dilated__mixer_token_mlp__prompt"
S_, D_, F_ = 2048, 640, 1536
KA = dict(x=0, wqkv=8, wo=16, w1=32, b1=40, w2=48, b2=56, gw=64, out=72, dbg=80, ws=88)
H_OFF, OT_OFF, UW_OFF, G_OFF, FL_OFF = 0, 0x280000, 0x500000, 0x800000, 0x810000
H_SZ, OT_SZ, UW_SZ, G_SZ, FL_SZ = 2621440, 2621440, 40 * 68 * 1024, 8192, 0x70000
F1, F2, F4, FZ, F3 = 0, 0x20000, 0x28000, 0x40000, 0x50000
RING = 147456; CTR = RING; LDS_SZ = RING + 64
LOG2E = 1.4426950408889634
OPTS = []; PROF = False; TL_OFF = 0x1000000
SC = "sc1"
def f2u(x): return "0x%08x" % struct.unpack("<I", struct.pack("<f", x))[0]
def v(n, k=1): return f"v{n}" if k == 1 else f"v[{n}:{n+k-1}]"
def opt(name, default=None):
    for o in OPTS:
        if o == name: return True
        if o.startswith(name + "="): return int(o.split("=")[1])
    return default

def srd(a, d, base, size, off=0):
    if off: a(f"s_add_u32 s{d}, s{base}, {off}\ns_addc_u32 s{d+1}, s{base+1}, 0")
    elif d != base: a(f"s_mov_b32 s{d}, s{base}\ns_mov_b32 s{d+1}, s{base+1}")
    a(f"s_mov_b32 s{d+2}, {size}\ns_mov_b32 s{d+3}, 0x20000")

def estamp(a, i):
    if PROF and opt("early"): a(f"s_memrealtime s[{70+2*i}:{71+2*i}]\ns_waitcnt lgkmcnt(0)")
def lstamp(a, i):
    if PROF and opt("late"): a(f"s_memrealtime s[{70+2*i}:{71+2*i}]\ns_waitcnt lgkmcnt(0)")
def stamp(a, i, wait=False):
    if PROF and (i == 0 or not (opt("early") or opt("late"))): a(f"s_memrealtime s[{70+2*i}:{71+2*i}]" + ("\ns_waitcnt lgkmcnt(0)" if wait else ""))
def endp(a):
    if PROF:
        a(f"""
        s_waitcnt vmcnt(0)
        s_memrealtime s[84:85]
        s_memtime s[86:87]
        s_waitcnt lgkmcnt(0)
        s_sub_u32 s86, s86, s66
        s_add_u32 s60, s20, {TL_OFF + 0x40000}
        s_addc_u32 s61, s21, 0
        s_mov_b32 s62, 0x40000
        s_mov_b32 s63, 0x20000
        s_mov_b64 exec, 1
        s_lshl_b32 s64, s2, 3
        s_add_u32 s64, s64, s69
        s_lshl_b32 s64, s64, 6
        v_mov_b32 v0, s64
        """)
        for i in range(8): a(f"v_mov_b32 v{4+i}, s{70+2*i}")
        a("v_mov_b32 v12, s86")
        a("buffer_store_dwordx4 v[4:7], v0, s[60:63], 0 offen\nbuffer_store_dwordx4 v[8:11], v0, s[60:63], 0 offen offset:16\nbuffer_store_dword v12, v0, s[60:63], 0 offen offset:32")
    a("s_endpgm")

def emit_step(a, M, prev_ids, R, extra, per_gap=2, head=2):
    q = list(prev_ids); fill = [("r", x) for x in R] + [("x", x) for x in extra]
    def put(n):
        for _ in range(n):
            if not fill: return
            k, x = fill.pop(0)
            if k == "r": a(x[0]); q.append(("n", x[1]))
            else: a(x)
    put(head)
    for text, need_ in M:
        idx = [i for i, t in enumerate(q) if t in need_]
        if idx:
            n = min(len(q) - 1 - idx[-1], 15)
            a(f"s_waitcnt lgkmcnt({n})"); del q[:len(q) - n]
        a(text); put(per_gap)
    put(len(fill))

def slot_adv(SLOT, S):
    return [f"s_add_u32 s40, s37, {SLOT}", f"s_cmp_ge_u32 s40, {SLOT*S}", "s_cselect_b32 s41, 0, s40", "s_sub_u32 s40, s41, s37", "s_mov_b32 s37, s41"]

def thr(name, default):
    t = opt("t" + name, default if opt("thr") else 0)
    return f"s_waitcnt vmcnt({t-1})\n" if t else ""
UID = [0]
def uid(p): UID[0] += 1; return f"{p}{UID[0]}"

def issue_n(a, n, issue):
    L = uid("Li")
    a(f"s_add_u32 s32, s33, {n}")
    a.label(L); issue()
    a(f"s_add_u32 s33, s33, 1\ns_cmp_lt_u32 s33, s32\ns_cbranch_scc1 {L}")
def steady(a, upto, n, ahead, issue):
    L = uid("Ls")
    a.label(L)
    a(f"s_waitcnt vmcnt({n*(ahead-1)})\ns_barrier"); issue()
    a(f"s_add_u32 s33, s33, 1\ns_cmp_lt_u32 s33, {upto}\ns_cbranch_scc1 {L}")
def drain(a, n, ahead):
    for k in range(ahead - 1, -1, -1): a(f"s_waitcnt vmcnt({n*k})\ns_barrier")

def publish(a, ctr, nw, vaddr, lanes):
    L = uid("Lpub")
    a(f"""
    s_waitcnt vmcnt(0)
    s_mov_b64 exec, 1
    v_mov_b32 v2, {CTR + ctr}
    v_mov_b32 v3, 1
    ds_add_rtn_u32 v3, v2, v3
    s_waitcnt lgkmcnt(0)
    v_readfirstlane_b32 s22, v3
    s_mov_b64 exec, {(1 << lanes) - 1}
    s_cmp_lg_u32 s22, {nw - 1}
    s_cbranch_scc1 {L}
    v_mov_b32 v3, s48
    buffer_store_dword v3, v{vaddr}, s[44:47], 0 offen {SC}
    """)
    a.label(L); a("s_mov_b64 exec, -1")
def gate(a, vaddr, mask, two=False):
    L = uid("Lg"); slp = "s_sleep %d" % opt("slp", 16) if opt("slp", 16) else ""
    a(f"s_mov_b32 s49, 0\ns_mov_b32 exec_lo, {mask & 0xffffffff}\ns_mov_b32 exec_hi, {mask >> 32}")
    a.label(L)
    if two: a(f"buffer_load_dword v2, v{vaddr}, s[44:47], 0 offen {SC}\ns_mov_b32 s22, 8192\nbuffer_load_dword v3, v{vaddr}, s[44:47], s22 offen {SC}\ns_waitcnt vmcnt(0)\nv_xor_b32 v2, s48, v2\nv_xor_b32 v3, s48, v3\nv_or_b32 v2, v2, v3")
    else: a(f"buffer_load_dword v2, v{vaddr}, s[44:47], 0 offen {SC}\ns_waitcnt vmcnt(0)\nv_xor_b32 v2, s48, v2")
    a(f"v_cmp_ne_u32 vcc, 0, v2\ns_add_u32 s49, s49, 1\ns_cmp_eq_u64 vcc, 0\ns_cbranch_scc1 {L}d\n{slp}\ns_cmp_lt_u32 s49, 20000\ns_cbranch_scc1 {L}")
    a.label(L + "d"); a("s_mov_b64 exec, -1")
def tag_ready(a):
    a("s_waitcnt lgkmcnt(0)\ns_mul_i32 s48, s48, 1664525\ns_add_u32 s48, s48, 1013904223")
def arrive_issue(a, vd):
    a(f"s_mov_b64 exec, 1\nv_mov_b32 v{vd}, 1\nv_mov_b32 v{vd+1}, 0\nbuffer_atomic_add v{vd}, v{vd+1}, s[12:15], 0 offen sc0\ns_mov_b64 exec, -1")
def arrive_finish(a, vd):
    L = uid("Larr")
    a(f"v_readfirstlane_b32 s22, v{vd}\ns_cmp_lg_u32 s22, 255\ns_cbranch_scc1 {L}\ns_mov_b64 exec, 1\nv_mov_b32 v{vd}, s48\nv_mov_b32 v{vd+1}, {FZ}")
    a(f"buffer_store_dword v{vd}, v{vd+1}, s[44:47], 0 offen {SC}\ns_mov_b64 exec, -1")
    a.label(L)

def code_prefetch(a):
    L = uid("Lpc")
    a(f"s_getpc_b64 s[30:31]\n{L}:\ns_sub_u32 s30, s30, {L}-{NAME}_kernel\ns_subb_u32 s31, s31, 0\nv_lshlrev_b32 v2, 7, v1")
    for i in range(opt("ncode", 0)):
        a(f"v_min_u32 v3, Lcode_end-{NAME}_kernel-4, v2\nglobal_load_dword v{40+i}, v3, s[30:31]\nv_add_u32 v2, 8192, v2")

def ln_issue(a):
    a(f"""
    s_lshl_b32 s22, s19, 4
    s_lshl_b32 s23, s3, 2
    s_add_u32 s22, s22, s23
    v_lshrrev_b32 v2, 4, v1
    v_add_u32 v10, s22, v2
    v_and_b32 v11, 15, v1
    v_lshlrev_b32 v4, 4, v11
    v_mul_u32_u24 v5, 1280, v10
    v_add_u32 v5, v5, v4
    s_waitcnt lgkmcnt(0)
    """)
    srd(a, 4, 4, H_SZ); srd(a, 8, 8, 1280)
    for i in range(5): a(f"buffer_load_dwordx4 {v(16+4*i,4)}, v5, s[4:7], 0 offen offset:{256*i}")
    for i in range(5): a(f"buffer_load_dwordx4 {v(36+4*i,4)}, v4, s[8:11], 0 offen offset:{256*i}")
def ln_finish(a):
    X, GW, U = 16, 36, 56
    srd(a, 4, 20, H_SZ, H_OFF); srd(a, 8, 20, G_SZ, G_OFF)
    a("s_mov_b32 s30, 0x3f803f80\ns_mov_b32 s31, 0xffff0000"); estamp(a, 1); a("s_waitcnt vmcnt(5)"); estamp(a, 2)
    a(f"v_dot2_f32_bf16 v6, v{X}, s30, 0\nv_dot2_f32_bf16 v8, v{X+1}, s30, 0")
    for i in range(2, 20): a(f"v_dot2_f32_bf16 v{6+2*(i&1)}, v{X+i}, s30, v{6+2*(i&1)}")
    for i in range(20): a(f"v_lshlrev_b32 v{U+2*i}, 16, v{X+i}\nv_and_b32 v{U+1+2*i}, s31, v{X+i}")
    def red(*rs):
        for sh in (8, 4, 2, 1):
            for r in rs: a(f"v_add_f32_dpp v{r}, v{r}, v{r} row_ror:{sh} row_mask:0xf bank_mask:0xf")
    a("v_add_f32 v6, v6, v8"); red(6)
    a(f"v_mul_f32 v6, {f2u(1/640)}, v6\ns_waitcnt vmcnt(0)")
    a(f"v_dot2_f32_bf16 v9, v{X}, v{GW}, 0")
    for i in range(1, 20): a(f"v_dot2_f32_bf16 v9, v{X+i}, v{GW+i}, v9")
    for i in range(20): a(f"v_pk_add_f32 {v(U+2*i,2)}, {v(U+2*i,2)}, v[6:7] op_sel_hi:[1,0] neg_lo:[0,1] neg_hi:[0,1]")
    a(f"v_pk_mul_f32 v[12:13], {v(U,2)}, {v(U,2)}\nv_pk_mul_f32 v[14:15], {v(U+2,2)}, {v(U+2,2)}")
    for i in range(2, 20): a(f"v_pk_fma_f32 {v(12+2*(i&1),2)}, {v(U+2*i,2)}, {v(U+2*i,2)}, {v(12+2*(i&1),2)}")
    a("v_pk_add_f32 v[12:13], v[12:13], v[14:15]\nv_add_f32 v12, v12, v13")
    red(12, 9)
    a(f"v_mov_b32 v8, {f2u(1e-5)}\nv_fmac_f32 v8, {f2u(1/640)}, v12\nv_rsq_f32 v12, v8\nv_mul_f32 v9, {f2u(-LOG2E)}, v9\nv_exp_f32 v9, v9")
    for j in range(5):
        for i in range(4*j, 4*j+4): a(f"v_pk_mul_f32 {v(U+2*i,2)}, {v(U+2*i,2)}, v[12:13] op_sel_hi:[1,0]")
        for i in range(4*j, 4*j+4): a(f"v_cvt_pk_bf16_f32 v{X+i}, v{U+2*i}, v{U+1+2*i}")
        a(f"buffer_store_dwordx4 {v(X+4*j,4)}, v5, s[4:7], 0 offen offset:{256*j} {SC}")
    a(f"""
    v_add_f32 v9, 1.0, v9
    v_rcp_f32 v9, v9
    v_lshlrev_b32 v10, 2, v10
    s_mov_b32 exec_lo, 0x00010001
    s_mov_b32 exec_hi, 0x00010001
    buffer_store_dword v9, v10, s[8:11], 0 offen {SC}
    s_mov_b64 exec, -1
    s_lshl_b32 s22, s19, 7
    v_lshl_add_u32 v10, v1, {14 if opt("mixed") else 15}, s22
    """)
    if True: a("s_barrier")
    estamp(a, 3); tag_ready(a)
    if opt("early"): a("s_waitcnt vmcnt(0)"); estamp(a, 4)
    publish(a, 0, 4, 10, 8 if opt('mixed') else 4)
    if opt("early"): estamp(a, 5); a("s_waitcnt vmcnt(0)"); estamp(a, 6)

G1_S, G1_SLOT = 6, 24576
def w1_sweep(a):
    a(f"s_lshl_b32 s23, s53, {2 if opt('mixed') else 1}\ns_add_u32 s23, s23, s3\ns_lshl_b32 s23, s23, 6\nv_add_u32 v2, s23, v1\ns_lshr_b32 s23, s52, 1\ns_mul_i32 s23, s23, 768\ns_mov_b32 s26, 43691")
    for n in range(3):
        a(f"v_add_u32 v3, {4096*n}, v2\nv_mul_u32_u24 v4, s26, v3\nv_lshrrev_b32 v4, 18, v4\nv_mul_u32_u24 v5, {3072-768}, v4\nv_lshl_add_u32 v5, v3, 7, v5\nv_add_u32 v{16+n}, s23, v5")
        if opt("slowcol") and n > 0:
            a(f"v_and_b32 v5, 0x380, v{16+n}\nv_lshrrev_b32 v4, 10, v4\nv_or_b32 v5, v5, v4\nv_cmp_eq_u32 vcc, 0x181, v5\nv_cndmask_b32_e64 v{16+n}, v{16+n}, -16, vcc")
    srd(a, 4, 4, S_ * 3072)
    a("s_barrier"); estamp(a, 1)
    pre = opt("pre", 2)
    for n in range(3):
        if n == pre: a("s_barrier")
        if not opt("nopfw1"): a(f"buffer_load_dword v{20+n}, v{16+n}, s[4:7], 0 offen")
    if pre == 3: a("s_barrier")
    estamp(a, 2)
    if opt("pfwait"): a("s_waitcnt vmcnt(0)")
    estamp(a, 3)
def g1_loader_w(a):
    a(f"""
    v_lshrrev_b32 v2, 4, v1
    s_lshl_b32 s23, s3, 2
    v_add_u32 v2, s23, v2
    v_lshlrev_b32 v4, 1, v2
    v_and_b32 v3, 15, v1
    v_xor_b32 v3, v3, v4
    v_lshlrev_b32 v3, 4, v3
    v_mul_u32_u24 v2, 3072, v2
    s_lshl_b32 s26, s16, 8
    v_add3_u32 v8, v2, v3, s26
    """)
    for i in range(1, 8): a(f"v_add_u32 v{8+i}, {8*3072*i}, v8")
    a(f"""
    s_mov_b32 s34, s18
    s_lshl_b32 s37, s3, 10
    s_add_u32 s38, s37, {G1_SLOT*G1_S}
    s_mov_b32 s33, 0
    """)
    def issue():
        a(f"s_mul_i32 s40, s34, {64*3072}" if not opt("wwrap") else f"s_and_b32 s40, s34, 3\ns_mul_i32 s40, s40, {64*3072}")
        for i in range(8): a(f"s_add_u32 m0, s37, {2048*i}\n{thr('w', 11)}buffer_load_dwordx4 v{8+i}, s[4:7], s40 offen lds")
        a(f"s_add_u32 s37, s37, {G1_SLOT}\ns_cmp_ge_u32 s37, s38\ns_cselect_b32 s42, {G1_SLOT*G1_S}, 0\ns_sub_u32 s37, s37, s42\ns_add_u32 s34, s34, 1\ns_and_b32 s34, s34, 31")
    w1_sweep(a)
    if not (not opt("s2")): a("s_barrier")
    issue_n(a, G1_S - 2, issue)
    if opt("early"): estamp(a, 4); a("s_waitcnt vmcnt(0)"); estamp(a, 5)
    tag_ready(a); stamp(a, 1)
    steady(a, 32, 8, G1_S - 2, issue); drain(a, 8, G1_S - 2)
    stamp(a, 2)
def g1_loader_h(a):
    a(f"""
    v_lshrrev_b32 v2, 3, v1
    v_and_b32 v3, 7, v1
    v_and_b32 v4, 6, v2
    v_xor_b32 v3, v3, v4
    v_lshlrev_b32 v3, 4, v3
    s_sub_u32 s22, s3, 2
    s_lshl_b32 s23, s22, 3
    v_add_u32 v2, s23, v2
    v_mul_u32_u24 v2, 1280, v2
    s_lshl_b32 s26, s17, 7
    v_add3_u32 v8, v2, v3, s26
    """)
    for i in range(1, 4): a(f"v_add_u32 v{8+i}, {16*1280*i}, v8")
    a(f"""
    s_lshl_b32 s23, s52, 14
    v_lshl_add_u32 v12, v1, 7, s23
    s_mov_b32 s34, s18
    s_lshl_b32 s37, s22, 10
    s_add_u32 s37, s37, 16384
    s_add_u32 s38, s37, {G1_SLOT*G1_S}
    s_mov_b32 s33, 0
    """)
    srd(a, 4, 20, H_SZ, H_OFF)
    def issue():
        a(f"s_mul_i32 s40, s34, {64*1280}" if not opt("hwrap") else f"s_and_b32 s40, s34, 3\ns_mul_i32 s40, s40, {64*1280}")
        for i in range(4): a(f"s_add_u32 m0, s37, {2048*i}\n{thr('h', 5)}buffer_load_dwordx4 v{8+i}, s[4:7], s40 offen {'' if opt('hplain') else SC} lds")
        a(f"s_add_u32 s37, s37, {G1_SLOT}\ns_cmp_ge_u32 s37, s38\ns_cselect_b32 s42, {G1_SLOT*G1_S}, 0\ns_sub_u32 s37, s37, s42\ns_add_u32 s34, s34, 1\ns_and_b32 s34, s34, 31")
    if not opt("mixed"): a("s_barrier\ns_barrier")
    tag_ready(a)
    estamp(a, 1)
    gate(a, 12, (1 << 64) - 1, two=True)
    stamp(a, 1); estamp(a, 3)
    if opt("early"): a("s_add_u32 s78, s70, s49\ns_mov_b32 s79, 0")
    if not (not opt("s2")): a("s_barrier")
    issue_n(a, G1_S - 2, issue)
    steady(a, 32, 4, G1_S - 2, issue); drain(a, 4, G1_S - 2)
    stamp(a, 2)
def g1_consumer(a):
    L = "Lg1"
    ACC, T = 16, 48
    a(f"""
    s_load_dwordx2 s[24:25], s[0:1], {KA['b1']}
    s_load_dwordx2 s[12:13], s[0:1], {KA['dbg']}
    s_and_b32 s22, s3, 1
    s_lshr_b32 s23, s3, 1
    s_lshl_b32 s26, s16, 8
    s_lshl_b32 s27, s22, 7
    s_add_u32 s26, s26, s27
    v_lshrrev_b32 v2, 4, v1
    v_lshl_add_u32 v3, v2, 3, s26
    s_waitcnt lgkmcnt(0)
    """)
    srd(a, 24, 24, 3072); srd(a, 8, 20, UW_SZ, UW_OFF); srd(a, 12, 12, 256)
    for ft in range(4): a(f"buffer_load_dwordx2 {v(T+2*ft,2)}, v3, s[24:27], 0 offen offset:{32*ft}")
    a(f"""
    s_setprio 0
    v_lshrrev_b32 v5, 2, v1
    v_and_b32 v6, 3, v1
    v_lshlrev_b32 v6, 3, v6
    v_and_b32 v7, 7, v5
    v_lshl_add_u32 v4, v5, 8, v6
    s_lshl_b32 s27, s22, 2
    """)
    for ft in range(4): a(f"s_add_u32 s28, s27, {ft}\nv_xor_b32 v2, s28, v7\nv_lshl_add_u32 v{8+ft}, v2, 5, v4")
    a(f"v_lshrrev_b32 v7, 1, v5\nv_and_b32 v7, 3, v7\nv_lshl_add_u32 v4, v5, 7, v6\nv_add_u32 v4, 16384, v4\ns_lshl_b32 s27, s23, 1")
    for dt in range(2): a(f"s_add_u32 s28, s27, {dt}\nv_xor_b32 v2, s28, v7\nv_lshl_add_u32 v{12+dt}, v2, 5, v4")
    a(f"""
    s_lshl_b32 s28, s17, 2
    s_add_u32 s28, s28, s27
    s_mul_i32 s28, s28, 68
    s_lshl_b32 s29, s16, 2
    s_add_u32 s28, s28, s29
    s_lshl_b32 s29, s22, 1
    s_add_u32 s28, s28, s29
    s_lshl_b32 s28, s28, 10
    v_lshl_add_u32 v14, v1, 4, s28
    s_lshl_b32 s28, s17, 4
    s_add_u32 s28, s28, s16
    s_lshl_b32 s28, s28, 7
    s_add_u32 s28, s28, {F4}
    v_mul_u32_u24 v15, {160*128}, v1
    v_add_u32 v15, s28, v15
    s_mov_b32 s31, 0xffff0000
    s_waitcnt vmcnt(0)
    """)
    for ft in range(4):
        for dt in range(2):
            b = ACC + 8 * ft + 4 * dt
            a(f"v_lshlrev_b32 v{b}, 16, v{T+2*ft}\nv_and_b32 v{b+1}, s31, v{T+2*ft}\nv_lshlrev_b32 v{b+2}, 16, v{T+2*ft+1}\nv_and_b32 v{b+3}, s31, v{T+2*ft+1}")
    SETS = (48, 96)
    def reads(st):
        r = []
        for kk in range(2):
            b = SETS[st] + 24 * kk
            for dt in range(2): r += [(f"ds_read_b64_tr_b16 {v(b+4*dt+2*h,2)}, v{12+dt} offset:{kk*4096+2048*h}", (kk, "b", dt, h)) for h in range(2)]
            for ft in range(4): r += [(f"ds_read_b64_tr_b16 {v(b+8+4*ft+2*h,2)}, v{8+ft} offset:{kk*8192+4096*h}", (kk, "a", ft, h)) for h in range(2)]
        return r
    def mf(st):
        return [(f"v_mfma_f32_16x16x32_bf16 {v(ACC+8*ft+4*dt,4)}, {v(SETS[st]+24*kk+8+4*ft,4)}, {v(SETS[st]+24*kk+4*dt,4)}, {v(ACC+8*ft+4*dt,4)}", {(kk, "a", ft, 1)})
                for kk in range(2) for ft in range(4) for dt in range(2)]
    ids = [x[1] for x in reads(0)]
    adv = slot_adv(G1_SLOT, G1_S) + [f"v_add_u32 v{8+i}, s40, v{8+i}" for i in range(6)]
    if not (not opt("s2")): a("s_barrier")
    a("s_mov_b32 s33, 0\ns_mov_b32 s37, 0\ns_barrier"); stamp(a, 2, True)
    emit_step(a, [], [], reads(0), adv)
    a.label(f"{L}_c", 3)
    a("s_barrier")
    emit_step(a, mf(0), ids, reads(1), adv + ["s_add_u32 s33, s33, 2", "s_cmp_ge_u32 s33, 32"])
    a(f"s_cbranch_scc1 {L}_clast\ns_barrier")
    emit_step(a, mf(1), ids, reads(0), adv)
    a(f"s_branch {L}_c")
    a.label(f"{L}_clast")
    a("s_waitcnt lgkmcnt(0)" + ("\ns_barrier" if (not opt("e2")) else "")); stamp(a, 3, True); lstamp(a, 1)
    emit_step(a, mf(1), [], [], [])
    La = uid("Lna")
    a(f"s_cmp_lg_u32 s3, 0\ns_cbranch_scc1 {La}"); arrive_issue(a, 144); a.label(La)
    c0 = -2 * 0.7978845608028654 * LOG2E; c1 = c0 * 0.044715
    lstamp(a, 2)
    a(f"v_mov_b32 v2, {f2u(c0)}\nv_mov_b32 v4, {f2u(c1)}\nv_mov_b32 v6, 1.0\ns_nop 4")
    for p in range(2):
        for dt in range(2):
            o = 72 + 4 * (2 * p + dt)
            prs = [ACC + 8 * (2 * p + h) + 4 * dt + 2 * q for h in range(2) for q in range(2)]
            for i, b in enumerate(prs): a(f"v_pk_mul_f32 {v(T+2*i,2)}, {v(b,2)}, {v(b,2)}")
            for i, b in enumerate(prs): a(f"v_pk_fma_f32 {v(T+2*i,2)}, {v(T+2*i,2)}, v[4:5], v[2:3] op_sel_hi:[1,0,0]")
            for i, b in enumerate(prs): a(f"v_pk_mul_f32 {v(T+2*i,2)}, {v(T+2*i,2)}, {v(b,2)}")
            for i in range(8): a(f"v_exp_f32 v{T+i}, v{T+i}")
            for i, b in enumerate(prs): a(f"v_pk_add_f32 {v(T+2*i,2)}, {v(T+2*i,2)}, v[6:7] op_sel_hi:[1,0]")
            for i in range(8): a(f"v_rcp_f32 v{T+i}, v{T+i}")
            for i, b in enumerate(prs): a(f"v_pk_mul_f32 {v(T+2*i,2)}, {v(T+2*i,2)}, {v(b,2)}")
            for i in range(4): a(f"v_cvt_pk_bf16_f32 v{o+i}, v{T+2*i}, v{T+2*i+1}")
            if p == 0 and dt == 0: a("s_setprio 2")
            a(f"s_mov_b32 s29, {dt*68*1024}\nbuffer_store_dwordx4 {v(o,4)}, v14, s[8:11], s29 offen offset:{1024*p} {SC}")
    lstamp(a, 3)
    if not (not opt("e2")): a("s_barrier")
    if opt("late"): a("s_waitcnt vmcnt(0)"); lstamp(a, 4)
    publish(a, 4, 4, 15, 4)
    if opt("late"): lstamp(a, 5); a("s_waitcnt vmcnt(0)"); lstamp(a, 6)
    La = uid("Lna")
    a(f"s_cmp_lg_u32 s3, 0\ns_cbranch_scc1 {La}"); arrive_finish(a, 144); a.label(La)
    stamp(a, 4, True)

def spare_loader(a):
    a(f"""
    s_load_dwordx2 s[4:5], s[0:1], {KA['wo']}
    s_load_dwordx2 s[12:13], s[0:1], {KA['w2']}
    v_lshrrev_b32 v2, 3, v1
    v_and_b32 v3, 7, v1
    v_and_b32 v4, 6, v2
    v_xor_b32 v3, v3, v4
    v_lshlrev_b32 v14, 4, v3
    v_mul_u32_u24 v15, 1280, v2
    v_add_u32 v15, v15, v14
    v_lshrrev_b32 v3, 2, v2
    v_lshl_add_u32 v3, v3, 4, v2
    v_add_u32 v3, 16, v3
    v_mul_u32_u24 v3, 1280, v3
    v_add_u32 v14, v14, v3
    s_mul_i32 s23, s3, {7*4096}
    v_lshrrev_b32 v5, 2, v1
    v_lshrrev_b32 v6, 1, v5
    v_and_b32 v6, 3, v6
    v_lshlrev_b32 v5, 7, v5
    v_and_b32 v7, 3, v1
    v_lshlrev_b32 v7, 3, v7
    v_add3_u32 v5, v5, v7, s23
    """)
    for t in range(4): a(f"v_xor_b32 v7, {t}, v6\nv_lshl_add_u32 v{8+t}, v7, 5, v5")
    a(f"v_lshlrev_b32 v12, 4, v1\ns_lshl_b32 s26, s16, 7\ns_add_u32 s26, s26, {F3}\nv_lshl_add_u32 v13, v1, 10, s26")
    tag_ready(a)
    srd(a, 4, 4, 640 * 1280); srd(a, 8, 20, UW_SZ, UW_OFF); srd(a, 12, 12, F_ * 4096)
    def task():
        a("s_lshl_b32 s26, s33, 2\ns_add_u32 s26, s26, s3\ns_min_u32 s26, s26, 24\ns_mul_i32 s27, s16, 25\ns_add_u32 s27, s27, s26\ns_mul_i32 s26, s27, 6554\ns_lshr_b32 s26, s26, 16\ns_mul_i32 s28, s26, 10\ns_sub_u32 s27, s27, s28")
    L = uid("Lwo")
    a("s_mov_b32 s33, 0"); a.label(L); task()
    for half in range(2):
        a(f"""
        s_lshl_b32 s28, s26, 1
        s_add_u32 s28, s28, {half}
        s_mul_i32 s29, s28, 52
        s_lshr_b32 s29, s29, 8
        s_mul_i32 s30, s29, 5
        s_sub_u32 s28, s28, s30
        s_mul_i32 s29, s29, 80
        s_mul_i32 s30, s28, 20
        s_cmp_eq_u32 s28, 4
        s_cselect_b64 vcc, -1, 0
        s_cselect_b32 s30, 0, s30
        s_cselect_b32 s31, 40, 8
        s_mul_i32 s31, s31, 1280
        s_add_u32 s29, s29, s30
        s_mul_i32 s28, s29, 1280
        s_lshl_b32 s29, s27, 7
        s_add_u32 s28, s28, s29
        v_cndmask_b32 v2, v15, v14, vcc
        """)
        for i in range(2): a(f"s_add_u32 m0, s23, {2048*half+1024*i}\nbuffer_load_dwordx4 v2, s[4:7], s28 offen lds\ns_add_u32 s28, s28, s31")
    a(f"s_add_u32 s23, s23, 4096\ns_add_u32 s33, s33, 1\ns_cmp_lt_u32 s33, 7\ns_cbranch_scc1 {L}\ns_waitcnt vmcnt(0)\ns_mov_b32 s33, 0")
    L = uid("Lwo"); a.label(L); task()
    for t in range(4): a(f"ds_read_b64_tr_b16 {v(16+4*t,2)}, v{8+t}\nds_read_b64_tr_b16 {v(18+4*t,2)}, v{8+t} offset:2048\nv_add_u32 v{8+t}, 4096, v{8+t}")
    a(f"s_lshl_b32 s28, s27, 2\ns_mul_i32 s28, s28, 68\ns_add_u32 s28, s28, s26\ns_add_u32 s28, s28, 48\ns_lshl_b32 s28, s28, 10")
    for t in range(4): a(f"s_waitcnt lgkmcnt({6-2*t})\nbuffer_store_dwordx4 {v(16+4*t,4)}, v12, s[8:11], s28 offen {SC}\ns_add_u32 s28, s28, {68*1024}")
    a(f"s_add_u32 s33, s33, 1\ns_cmp_lt_u32 s33, 7\ns_cbranch_scc1 {L}")
    publish(a, 8, 4, 13, 8)
    stamp(a, 1)
    if opt("spw2"):
        L = uid("Lw2")
        a(f"""
        s_and_b32 s22, s16, 1
        s_lshl_b32 s22, s22, 2
        s_add_u32 s22, s22, s3
        s_lshl_b32 s22, s22, 3
        v_lshrrev_b32 v2, 3, v1
        v_add_u32 v2, s22, v2
        v_lshlrev_b32 v2, 12, v2
        v_and_b32 v3, 7, v1
        v_lshl_add_u32 v2, v3, 7, v2
        s_lshr_b32 s22, s52, 1
        s_lshl_b32 s22, s22, 10
        s_mov_b32 s33, 0
        {L}:
        buffer_load_dword v30, v2, s[12:15], s22 offen
        s_add_u32 s22, s22, {64*4096}
        s_add_u32 s33, s33, 1
        s_cmp_lt_u32 s33, 24
        s_cbranch_scc1 {L}
        """)
    h0 = opt("sph", 14)
    if h0:
        L = uid("Lsh"); n = ((32 - h0 + 1) // 2 * 10 + 7) // 8
        srd(a, 4, 20, H_SZ, H_OFF)
        a(f"s_lshl_b32 s23, s52, 14\nv_lshl_add_u32 v12, v1, 7, s23")
        gate(a, 12, (1 << 64) - 1, two=True)
        a(f"""
        s_and_b32 s22, s16, 1
        s_lshl_b32 s22, s22, 2
        s_add_u32 s22, s22, s3
        v_lshlrev_b32 v2, 7, v1
        s_mov_b32 s33, 0
        {L}:
        s_mul_i32 s23, s22, 6554
        s_lshr_b32 s23, s23, 16
        s_mul_i32 s23, s23, {64*1280}
        s_lshl_b32 s26, s22, 13
        s_add_u32 s23, s23, s26
        s_add_u32 s23, s23, {h0*64*1280}
        buffer_load_dword v30, v2, s[4:7], s23 offen {SC}
        s_add_u32 s22, s22, 8
        s_add_u32 s33, s33, 1
        s_cmp_lt_u32 s33, {n}
        s_cbranch_scc1 {L}
        """)
    nw = opt("c3", 2)
    if nw:
        L = uid("Lc3")
        a(f"""
        s_cmp_ge_u32 s3, {nw}
        s_cbranch_scc1 {L}d
        s_and_b32 s22, s16, 1
        s_mul_i32 s22, s22, {nw}
        s_add_u32 s22, s22, s3
        s_lshl_b32 s22, s22, 6
        v_add_u32 v2, s22, v1
        v_lshlrev_b32 v2, 12, v2
        s_lshr_b32 s22, s52, 1
        s_lshl_b32 s22, s22, 10
        s_add_u32 s22, s22, 384
        s_mov_b32 s33, 0
        {L}:
        buffer_load_dword v30, v2, s[12:15], s22 offen
        s_add_u32 s22, s22, {128*nw*4096}
        s_add_u32 s33, s33, 1
        s_cmp_lt_u32 s33, {12//nw}
        s_waitcnt vmcnt(0)
        s_cbranch_scc1 {L}
        {L}d:
        """)
    stamp(a, 2)

QA_S, QA_SLOT, QA_W = 3, 49152, 18432
def qa_w1_sweep(a):
    if not opt("qsw"): return
    a(f"""
    s_load_dwordx2 s[12:13], s[0:1], {KA['w1']}
    s_lshr_b32 s22, s2, 1
    s_lshl_b32 s22, s22, 2
    s_add_u32 s22, s22, s3
    s_lshl_b32 s23, s22, 12
    s_lshl_b32 s22, s22, 13
    s_add_u32 s23, s23, {512*8192}
    v_lshlrev_b32 v2, 7, v1
    s_waitcnt lgkmcnt(0)
    """)
    srd(a, 12, 12, S_ * 3072)
    a("buffer_load_dword v32, v2, s[12:15], s22 offen\ns_mov_b32 exec_hi, 0\nbuffer_load_dword v33, v2, s[12:15], s23 offen\ns_mov_b32 exec_hi, -1")
def w2_setup(a):
    a(f"""
    s_load_dwordx2 s[24:25], s[0:1], {KA['w2']}
    v_lshrrev_b32 v2, 3, v1
    s_lshl_b32 s22, s53, 3
    v_add_u32 v2, s22, v2
    v_lshlrev_b32 v2, 12, v2
    v_and_b32 v3, 7, v1
    v_lshl_add_u32 v2, v3, 7, v2
    s_lshr_b32 s22, s52, 1
    s_lshl_b32 s22, s22, 10
    v_add_u32 v29, s22, v2
    s_waitcnt lgkmcnt(0)
    """)
    srd(a, 24, 24, F_ * 4096)
def w2_last(a):
    if not opt("nopfw2"): a("s_lshl_b32 s22, s3, 20\nbuffer_load_dword v30, v29, s[24:27], s22 offen")
def qa_loader(a):
    a(f"v_lshrrev_b32 v2, 3, v1\ns_lshl_b32 s23, s3, 3\nv_add_u32 v2, s23, v2\ns_lshl_b32 s26, s16, 7\ns_sub_u32 s26, s26, 16\nv_and_b32 v3, 7, v1")
    for i in range(6):
        a(f"v_add_u32 v4, {24*i}, v2\nv_lshrrev_b32 v5, 1, v4\nv_and_b32 v5, 7, v5\nv_xor_b32 v5, v5, v3\nv_add_u32 v4, s26, v4\nv_max_i32 v4, 0, v4\nv_mul_u32_u24 v4, 1280, v4\nv_lshl_add_u32 v{8+i}, v5, 4, v4")
    a(f"s_mul_i32 s23, s3, 320\ns_mul_i32 s26, s17, 160\nv_add_u32 v2, s23, v1")
    for i in range(5):
        a(f"""
        v_add_u32 v3, {64*i}, v2
        v_mul_u32_u24 v4, 2185, v3
        v_lshrrev_b32 v4, 16, v4
        v_mul_u32_u24 v5, 30, v4
        v_sub_u32 v3, v3, v5
        v_mul_u32_u24 v5, 26, v3
        v_lshrrev_b32 v5, 8, v5
        v_mul_u32_u24 v5, {1280-160}, v5
        v_lshl_add_u32 v3, v3, 4, v5
        v_and_b32 v5, 12, v4
        v_lshlrev_b32 v5, 1, v5
        v_lshrrev_b32 v6, 4, v4
        v_lshl_add_u32 v5, v6, 2, v5
        v_and_b32 v4, 3, v4
        v_add_u32 v4, v4, v5
        v_mul_u32_u24 v4, 3840, v4
        v_add3_u32 v{16+i}, v4, v3, s26
        """)
    a(f"s_mov_b32 s34, s18\ns_mov_b32 s37, 0\ns_lshl_b32 s38, s3, 10\ns_mul_i32 s39, s3, 5120\ns_add_u32 s39, s39, {QA_W}\ns_mov_b32 s33, 0")
    srd(a, 4, 4, H_SZ); srd(a, 8, 8, 640 * 3840)
    def issue():
        a(f"s_lshl_b32 s40, s34, 7\ns_mul_i32 s41, s34, {64*3840}\ns_add_u32 s42, s37, s38\ns_add_u32 s43, s37, s39\ns_add_u32 s36, s41, {32*3840}")
        for i in range(3): a(f"s_add_u32 m0, s42, {3072*i}\n{thr('q', 9)}buffer_load_dwordx4 v{8+i}, s[4:7], s40 offen lds")
        for i in range(5): a(f"s_add_u32 m0, s43, {1024*i}\n{thr('q', 9)}buffer_load_dwordx4 v{16+i}, s[8:11], s41 offen lds")
        for i in range(3, 6): a(f"s_add_u32 m0, s42, {3072*i}\n{thr('q', 9)}buffer_load_dwordx4 v{8+i}, s[4:7], s40 offen lds")
        for i in range(5): a(f"s_add_u32 m0, s43, {15360+1024*i}\n{thr('q', 9)}buffer_load_dwordx4 v{16+i}, s[8:11], s36 offen lds")
        a(f"s_add_u32 s37, s37, {QA_SLOT}\ns_cmp_ge_u32 s37, {QA_SLOT*QA_S}\ns_cselect_b32 s37, 0, s37\ns_add_u32 s34, s34, 1\ns_cmp_ge_u32 s34, 10\ns_cselect_b32 s34, 0, s34")
    issue_n(a, QA_S - 1, issue)
    tag_ready(a); w2_setup(a); stamp(a, 1)
    steady(a, 10, 16, QA_S - 1, issue); drain(a, 16, QA_S - 1)
    stamp(a, 2); w2_last(a); a("s_barrier")
def qa_idle(a):
    code_prefetch(a); tag_ready(a); w2_setup(a)
    at = (opt("w2a", 5), opt("w2b", 7))
    for i in range(10):
        a("s_barrier")
        for k in range(2):
            if at[k] == i and not opt("nopfw2"): a(f"s_mov_b32 s22, {(4+k) << 20}\nbuffer_load_dword v30, v29, s[24:27], s22 offen")
    w2_last(a); a("s_barrier")
def qa_consumer(a):
    L = "Lqa"
    AQ, AK, AV = 16, 56, 96
    HK, HV, KP = 146, 154, 162
    XF, WB = 178, 202
    DD = opt("dd", 6)
    M0, M1, MF, PM, TM = 220, 224, 228, 232, 236
    XB = QA_SLOT
    a(f"""
    s_load_dwordx2 s[12:13], s[0:1], {KA['dbg']}
    v_and_b32 v2, 15, v1
    v_lshrrev_b32 v3, 4, v1
    v_lshrrev_b32 v4, 1, v2
    v_xor_b32 v4, v4, v3
    v_lshlrev_b32 v4, 4, v4
    v_lshl_add_u32 v6, v2, 7, v4
    v_xor_b32 v7, 64, v6
    s_lshl_b32 s23, s3, 12
    s_add_u32 s23, s23, 2048
    v_add_u32 v8, s23, v6
    v_xor_b32 v9, 64, v8
    v_lshrrev_b32 v5, 2, v1
    v_mul_u32_u24 v5, 480, v5
    v_add_u32 v5, {QA_W}, v5
    v_and_b32 v4, 3, v1
    v_lshl_add_u32 v10, v4, 3, v5
    v_mul_u32_u24 v4, 40, v4
    v_add3_u32 v11, v4, v5, 32
    s_mul_i32 s23, s3, 40
    v_add_u32 v13, s23, v10
    """)
    for i in range(AQ, KP): a(f"v_mov_b32 v{i}, 0")
    a(f"v_lshlrev_b32 v4, 2, v3\nv_sub_u32 v4, v2, v4\nv_mov_b32 v5, {f2u(-1e30)}")
    for r in range(4):
        a(f"""
        v_subrev_u32 v15, {r}, v4
        v_and_b32 v15, 0x80000001, v15
        v_cmp_eq_u32 vcc, 0, v15
        v_cndmask_b32_e64 v{M1+r}, v5, 0, vcc
        v_cndmask_b32_e64 v{TM+4+r}, 0, -1, vcc
        v_cmp_eq_u32 vcc, 0x80000000, v15
        v_cndmask_b32_e64 v{M0+r}, v5, 0, vcc
        v_cndmask_b32_e64 v{TM+r}, 0, -1, vcc
        """)
    a("s_mov_b32 s30, 0xffff")
    for i in range(4): a(f"v_bfi_b32 v{PM+i}, s30, v{TM+2*i}, v{TM+2*i+1}")
    a(f"s_or_b32 s23, s16, s3\ns_cmp_eq_u32 s23, 0\ns_cselect_b64 vcc, -1, 0")
    for r in range(4): a(f"v_cndmask_b32 v{MF+r}, v{M0+r}, v5, vcc")
    GM = 90
    for h in range(4): a(f"v_cmp_eq_u32 s[{GM+2*h}:{GM+1+2*h}], {h}, v3")
    a(f"""
    s_lshl_b32 s23, s16, 3
    s_lshl_b32 s26, s3, 1
    s_add_u32 s23, s23, s26
    s_mul_i32 s23, s23, 40
    s_mul_i32 s26, s17, 5
    s_add_u32 s23, s23, s26
    s_lshl_b32 s23, s23, 9
    v_lshl_add_u32 v12, v1, 3, s23
    s_lshl_b32 s23, s16, 4
    s_add_u32 s23, s23, s17
    s_lshl_b32 s23, s23, 7
    s_add_u32 s23, s23, {F2}
    v_lshl_add_u32 v14, v1, 10, s23
    s_mov_b32 s31, {f2u(20 ** -0.5 * LOG2E)}
    s_mov_b32 s33, 0
    s_mov_b32 s37, 0
    s_waitcnt lgkmcnt(0)
    """)
    srd(a, 4, 20, OT_SZ, OT_OFF); srd(a, 12, 12, 256); tag_ready(a)
    U = [(0, t) for t in range(5)] + [(1, t) for t in range(5)] + [(1, "h")] + [(2, t) for t in range(5)] + [(2, "h")] + [None] * 0
    NU = len(U)
    UU = 2 * NU
    BUFS = [KP + 4 * i for i in range(4)] + [WB + 4 * i for i in range(4)] + [TM + 4 * i for i in range(5)]
    buf = lambda u: BUFS[u % 7] if u < 28 else BUFS[u - 21]
    def xread(kk): return [f"ds_read_b128 {v(XF+12*kk,4)}, v{6+kk}"] + [f"ds_read_b128 {v(XF+12*kk+4+4*rt,4)}, v{8+kk} offset:{2048*rt}" for rt in range(2)]
    def wread(u):
        kk, c = divmod(u, NU); p, tt = U[c]; b = buf(u)
        ad = {4: 11, "h": 13}.get(tt, 10)
        off = kk * 15360 + p * 160 + (40 * tt if tt in (1, 2, 3) else 0)
        return [f"ds_read_b64_tr_b16 {v(b,2)}, v{ad} offset:{off}", f"ds_read_b64_tr_b16 {v(b+2,2)}, v{ad} offset:{off+7680}"]
    def mf(u):
        kk, c = divmod(u, NU); p, tt = U[c]; w = v(buf(u), 4); r = []
        X = lambda i: v(XF + 12 * kk + 4 * i, 4)
        def one(d, x): d = v(d, 4); r.append(f"v_mfma_f32_16x16x32_bf16 {d}, {w}, {x}, {d}" if p < 2 else f"v_mfma_f32_16x16x32_bf16 {d}, {x}, {w}, {d}")
        if tt == "h": one(HK if p == 1 else HV, X(0)); return r
        for rt in range(2): one((AQ + 20 * rt + 4 * tt, AK + 20 * rt + 4 * tt, AV + 10 * tt + 2 + 4 * rt)[p], X(1 + rt))
        if tt == 4 and p: one((HK if p == 1 else HV) + 4, X(0))
        return r
    stamp(a, 1, True); a("s_barrier"); stamp(a, 2, True)
    for t in xread(0): a(t)
    for u in range(DD):
        for t in wread(u): a(t)
    a(f"s_waitcnt lgkmcnt({2*DD-2})")
    a.label(f"{L}_c", 3)
    q = []
    for u in range(1, DD): q += [u, u]
    misc = slot_adv(QA_SLOT, QA_S) + ["s_add_u32 s33, s33, 1", "s_cmp_ge_u32 s33, 10"]
    for u in range(UU):
        nx = u + DD; fill = []
        if nx < UU:
            if nx == NU: fill += [(t, NU) for t in xread(1)]
            fill += [(t, nx) for t in wread(nx)]
        else:
            if nx == UU: fill += [(t, UU) for t in xread(0)]
            fill += [(t, nx) for t in wread(nx - UU)]
        ms = mf(u)
        if nx == UU:
            a(f"s_waitcnt lgkmcnt(0)\ns_cbranch_scc1 {L}_clast\ns_barrier"); q = []
        per = -(-len(fill) // len(ms))
        for i, m in enumerate(ms):
            a(m)
            for t, tag in fill[i*per:(i+1)*per]: a(t); q.append(tag)
        if misc and 2 <= u: a(misc.pop(0))
        if nx == UU - 1:
            for i in (6, 7, 8, 9, 10, 11, 13): a(f"v_add_u32 v{i}, s40, v{i}")
        if any(t <= u + 1 for t in q):
            last = max(i for i, t in enumerate(q) if t <= u + 1)
            q = q[last + 1:]
            a(f"s_waitcnt lgkmcnt({len(q)})")
    assert not misc and len(q) == 2 * DD - 2
    a(f"s_branch {L}_c")
    a.label(f"{L}_clast"); stamp(a, 3, True); lstamp(a, 1)
    for u in range(UU - DD, UU):
        for m in mf(u): a(m)
    La = uid("Lna")
    a(f"s_cmp_lg_u32 s3, 0\ns_cbranch_scc1 {La}"); arrive_issue(a, 6); a.label(La)
    SR = XF; PR = [210, 214, 248, 252]
    cv = lambda d, s0: a(f"v_cvt_pk_bf16_f32 v{d}, v{s0}, v{s0+1}")
    def kcv(rt):
        t4 = AK + 20 * rt + 16
        for h in range(4):
            b = AK + 20 * rt + 4 * h
            cv(b, b); cv(b + 1, b + 2); cv(b + 2, t4); cv(b + 3, t4 + 2)
    a(f"v_lshlrev_b32 v8, 3, v1\nv_add_u32 v8, {XB}, v8\ns_mul_i32 s23, s3, 5120\nv_add_u32 v9, s23, v8\ns_lshl_b32 s23, s3, 9\nv_add_u32 v10, s23, v8")
    kcv(1)
    for h in range(4): a(f"ds_write_b64 v9, {v(AK+20+4*h,2)} offset:{5120+512*h}")
    a(f"ds_write_b64 v9, {v(AK+22,2)} offset:{5120+2048}")
    for b in (HK, HK + 4, HV, HV + 4): cv(b, b); cv(b + 1, b + 2)
    a(f"ds_write_b64 v10, {v(HK,2)}\nds_write_b64 v8, {v(HK+4,2)} offset:2048\nds_write_b64 v10, {v(HV,2)} offset:2560\nds_write_b64 v8, {v(HV+4,2)} offset:{2560+2048}")
    for tt in range(5):
        b = AV + 10 * tt
        for i in range(4): cv(b + 2 + i, b + 2 + 2 * i)
        a(f"ds_write_b64 v9, {v(b+4,2)} offset:{5120+2560+512*tt}")
    kcv(0)
    a("s_waitcnt lgkmcnt(0)\ns_barrier")
    for h in range(4): a(f"ds_read_b64 {v(KP+4*h,2)}, v9 offset:{512*h}\nds_read_b64 {v(KP+4*h+2,2)}, v9 offset:2048")
    for tt in range(5): a(f"ds_read_b64 {v(AV+10*tt,2)}, v9 offset:{2560+512*tt}")
    for rt in (1, 0):
        t4 = AQ + 20 * rt + 16
        cv(t4, t4); cv(t4 + 1, t4 + 2)
        for h in range(4):
            b = AQ + 20 * rt + 4 * h
            cv(b, b); cv(b + 1, b + 2)
            a(f"v_cndmask_b32 v{b+2}, 0, v{t4}, s[{GM+2*h}:{GM+1+2*h}]\nv_cndmask_b32 v{b+3}, 0, v{t4+1}, s[{GM+2*h}:{GM+1+2*h}]")
    a("s_waitcnt lgkmcnt(0)\ns_barrier")
    lstamp(a, 2)
    for rt in (1, 0):
        for h in range(4):
            qf = v(AQ + 20 * rt + 4 * h, 4)
            a(f"v_mfma_f32_16x16x32_bf16 {v(SR+8*h,4)}, {v(AK+4*h if rt else KP+4*h,4)}, {qf}, {v(M0 if rt else MF,4)}")
            a(f"v_mfma_f32_16x16x32_bf16 {v(SR+8*h+4,4)}, {v(AK+20*rt+4*h,4)}, {qf}, {v(M1,4)}")
        VA, VB, X = TM, TM + 4, TM + 8
        for h in range(4):
            s = SR + 8 * h
            a(f"v_max3_f32 v{VA+h}, v{s}, v{s+1}, v{s+4}\nv_max3_f32 v{VB+h}, v{s+2}, v{s+3}, v{s+6}")
        for h in range(4):
            s = SR + 8 * h
            a(f"v_max_f32 v{VA+h}, v{VA+h}, v{s+5}\nv_max_f32 v{VB+h}, v{VB+h}, v{s+7}")
        def xred(op):
            a(f"v_permlane32_swap_b32 v{X}, v{X+1}\nv_permlane32_swap_b32 v{X+2}, v{X+3}")
            a(f"{op} v{X}, v{X}, v{X+1}\n{op} v{X+2}, v{X+2}, v{X+3}")
            a(f"v_permlane16_swap_b32 v{X}, v{X+2}\n{op} v{X}, v{X}, v{X+2}")
        def xbc():
            a(f"v_mov_b32 v{X+2}, v{X}\nv_permlane16_swap_b32 v{X}, v{X+2}")
            a(f"v_mov_b32 v{X+1}, v{X}\nv_mov_b32 v{X+3}, v{X+2}")
            a(f"v_permlane32_swap_b32 v{X}, v{X+1}\nv_permlane32_swap_b32 v{X+2}, v{X+3}")
        for h in range(4): a(f"v_max_f32 v{X+h}, v{VA+h}, v{VB+h}")
        xred("v_max_f32")
        a(f"v_mul_f32 v{X}, s31, v{X}")
        xbc()
        for h in range(4): a(f"v_fma_f32 v{VA+h}, v{VA+h}, s31, -v{X+h}\nv_fma_f32 v{VB+h}, v{VB+h}, s31, -v{X+h}")
        for h in range(4): a(f"v_exp_f32 v{VA+h}, v{VA+h}\nv_exp_f32 v{VB+h}, v{VB+h}")
        for h in range(4): a(f"v_add_f32 v{X+h}, v{VA+h}, v{VB+h}")
        xred("v_add_f32")
        a(f"v_rcp_f32 v{X}, v{X}")
        xbc()
        for h in range(4): a(f"v_mul_f32 v{VA+h}, v{VA+h}, v{X+h}\nv_mul_f32 v{VB+h}, v{VB+h}, v{X+h}")
        for h in range(4): a(f"v_cvt_pk_bf16_f32 v{VA+h}, v{VA+h}, v{VA+h}\nv_cvt_pk_bf16_f32 v{VB+h}, v{VB+h}, v{VB+h}")
        for h in range(4):
            p = PR[h]
            a(f"v_and_b32 v{p}, v{VA+h}, v{PM}\nv_and_b32 v{p+1}, v{VB+h}, v{PM+1}\nv_and_b32 v{p+2}, v{VA+h}, v{PM+2}\nv_and_b32 v{p+3}, v{VB+h}, v{PM+3}")
        for h in range(4):
            a(f"v_mfma_f32_16x16x32_bf16 {v(SR+8*h,4)}, {v(AV+10*h+2*rt,4)}, {v(PR[h],4)}, 0")
            a(f"v_mfma_f32_16x16x32_bf16 {v(SR+8*h+4,4)}, {v(AV+40+2*rt,4)}, {v(PR[h],4)}, 0")
        O = TM
        if rt == 1: a("s_setprio 2")
        a(f"s_mov_b32 s29, {40*512*rt}")
        for h in range(4):
            cv(O + 2 * h, SR + 8 * h); cv(O + 2 * h + 1, SR + 8 * h + 2)
            a(f"buffer_store_dwordx2 {v(O+2*h,2)}, v12, s[4:7], s29 offen offset:{512*h} {SC}")
        for h in range(1, 4):
            for r in range(4): a(f"v_cndmask_b32 v{SR+4+r}, v{SR+4+r}, v{SR+8*h+4+r}, s[{GM+2*h}:{GM+1+2*h}]")
        cv(O + 8, SR + 4); cv(O + 9, SR + 6)
        a(f"buffer_store_dwordx2 {v(O+8,2)}, v12, s[4:7], s29 offen offset:2048 {SC}")
    lstamp(a, 3)
    if opt("late"): a("s_waitcnt vmcnt(0)"); lstamp(a, 4)
    publish(a, 4, 4, 14, 2)
    if opt("late"): lstamp(a, 5); a("s_waitcnt vmcnt(0)"); lstamp(a, 6)
    La = uid("Lna")
    a(f"s_cmp_lg_u32 s3, 0\ns_cbranch_scc1 {La}"); arrive_finish(a, 6); a.label(La)
    stamp(a, 4, True)

P2_S, P2_SLOT = 8, 18432
def p2_common_adv():
    return f"s_add_u32 s37, s37, {P2_SLOT}\ns_cmp_ge_u32 s37, s38\ns_cselect_b32 s42, {P2_SLOT*P2_S}, 0\ns_sub_u32 s37, s37, s42\ns_add_u32 s34, s34, 1\ns_cmp_ge_u32 s34, s35\ns_cselect_b32 s34, 0, s34"
def p2_phase(a, sreg, n):
    st = opt("stagp", 0) if n == 24 else opt("stagpa", 0)
    if st: a(f"s_lshr_b32 s22, s2, 3\ns_lshr_b32 s23, s22, 3\ns_lshl_b32 s23, s23, 1\ns_add_u32 s22, s22, s23\ns_and_b32 s22, s22, 7\ns_mul_i32 s22, s22, {n}\ns_lshr_b32 s{sreg}, s22, 3")
    else: a(f"s_mov_b32 s{sreg}, 0")
def p2_loader_s(a):
    AH = P2_S - 2
    a(f"""
    s_load_dwordx2 s[12:13], s[0:1], {KA['w2']}
    v_lshrrev_b32 v2, 3, v1
    v_and_b32 v3, 7, v1
    v_and_b32 v4, 6, v2
    v_xor_b32 v3, v3, v4
    v_lshlrev_b32 v3, 4, v3
    v_lshl_add_u32 v2, v2, 12, v3
    s_lshl_b32 s23, s3, 17
    s_lshl_b32 s26, s50, 7
    s_add_u32 s23, s23, s26
    v_add_u32 v8, s23, v2
    """)
    for i in range(1, 4): a(f"v_add_u32 v{8+i}, {8*4096*i}, v8")
    a(f"s_lshl_b32 s23, s50, 2\ns_mul_i32 s23, s23, 40\ns_lshl_b32 s26, s3, 1\ns_add_u32 s23, s23, s26\ns_lshl_b32 s23, s23, 9\nv_lshl_add_u32 v16, v1, 4, s23")
    for i in range(1, 4): a(f"v_add_u32 v{16+i}, {40*512*i}, v16")
    a(f"s_and_b32 s23, s50, -2\ns_and_b32 s26, s52, 1\ns_add_u32 s23, s23, s26\ns_lshl_b32 s23, s23, 10\ns_add_u32 s23, s23, {F2}\nv_lshl_add_u32 v12, v1, 7, s23")
    p2_phase(a, 34, 10); p2_phase(a, 39, 24)
    a(f"s_mov_b32 s35, 10\ns_lshl_b32 s37, s3, 12\ns_add_u32 s38, s37, {P2_SLOT*P2_S}\ns_mov_b32 s33, 0\ns_waitcnt lgkmcnt(0)")
    srd(a, 4, 20, OT_SZ, OT_OFF)
    a("s_barrier")
    gate(a, 12, 0xff)
    stamp(a, 3)
    def issue(sc):
        a(f"s_lshl_b32 s40, s34, {11 if sc else 18}")
        for i in range(4): a(f"s_add_u32 m0, s37, {1024*i}\n{thr('s', 7)}buffer_load_dwordx4 v{(16 if sc else 8)+i}, s[4:7], s40 offen {sc} lds")
        a(p2_common_adv())
    AA = opt("aha", 6)
    issue_n(a, AA, lambda: issue(SC))
    steady(a, 10, 4, AA, lambda: issue(SC))
    srd(a, 4, 12, F_ * 4096); a("s_mov_b32 s35, 24\ns_mov_b32 s34, s39")
    if AA < AH:
        a(f"s_waitcnt vmcnt({4*(AA-1)})\ns_barrier"); issue_n(a, AH - AA + 1, lambda: issue(""))
    steady(a, 34, 4, AH, lambda: issue(""))
    stamp(a, 5)
    drain(a, 4, AH)
    endp(a)
def p2_loader_d(a):
    AH = P2_S - 2
    a(f"s_sub_u32 s22, s3, 2\ns_mul_i32 s23, s51, {5*68}\ns_add_u32 s23, s23, s22\ns_lshl_b32 s23, s23, 10\nv_lshl_add_u32 v8, v1, 4, s23")
    for i in range(1, 5): a(f"v_add_u32 v{8+i}, {68*1024*i}, v8")
    a(f"""
    s_mul_i32 s37, s22, 5120
    s_add_u32 s37, s37, 8192
    s_add_u32 s38, s37, {P2_SLOT*P2_S}
    s_lshl_b32 s23, s52, 10
    s_add_u32 s23, s23, {F3}
    v_lshl_add_u32 v14, v1, 7, s23
    s_mul_i32 s23, s51, 5
    s_lshr_b32 s23, s23, 2
    s_lshl_b32 s23, s23, 11
    s_lshr_b32 s26, s52, 1
    s_mul_i32 s26, s26, {160*128}
    s_add_u32 s23, s23, s26
    s_add_u32 s23, s23, {F4}
    v_lshl_add_u32 v15, v1, 7, s23
    """)
    p2_phase(a, 34, 10); p2_phase(a, 39, 24)
    a("s_mov_b32 s35, 10\ns_mov_b32 s36, 48\ns_mov_b32 s33, 0")
    srd(a, 8, 20, UW_SZ, UW_OFF)
    a("s_barrier")
    gate(a, 14, 0xff)
    stamp(a, 3)
    def issue():
        a("s_lshl_b32 s41, s34, 1\ns_add_u32 s41, s41, s36\ns_lshl_b32 s41, s41, 10")
        for i in range(5): a(f"s_add_u32 m0, s37, {1024*i}\n{thr('d', 9)}buffer_load_dwordx4 v{8+i}, s[8:11], s41 offen {SC} lds")
        a(p2_common_adv())
    AA = opt("aha", 6)
    issue_n(a, AA, issue)
    steady(a, 10, 5, AA, issue)
    GB = opt("gb", 7)
    for j in range(10 - AA, GB): a(f"s_waitcnt vmcnt({5*(9-j)})\ns_barrier")
    a("s_mov_b32 s35, 24\ns_mov_b32 s36, 0\ns_mov_b32 s34, s39")
    gate(a, 15, 0x0fff0fff)
    stamp(a, 4)
    issue_n(a, GB + AH - 10, issue)
    steady(a, 34, 5, AH, issue)
    stamp(a, 5)
    drain(a, 5, AH)
    endp(a)
def p2_consumer(a):
    L = "Lp2"
    ACB, ACA = 16, 36
    a(f"""
    s_load_dwordx2 s[24:25], s[0:1], {KA['b2']}
    s_load_dwordx2 s[28:29], s[0:1], {KA['out']}
    s_lshl_b32 s23, s50, 6
    s_lshl_b32 s26, s3, 4
    s_add_u32 s23, s23, s26
    v_and_b32 v2, 15, v1
    v_add_u32 v2, s23, v2
    v_lshlrev_b32 v3, 1, v2
    v_lshlrev_b32 v4, 2, v2
    s_waitcnt lgkmcnt(0)
    """)
    srd(a, 24, 24, 4096); srd(a, 8, 20, G_SZ, G_OFF); srd(a, 28, 28, S_ * 1280)
    a(f"""
    buffer_load_ushort v10, v3, s[24:27], 0 offen
    s_setprio 0
    v_lshrrev_b32 v5, 2, v1
    v_lshrrev_b32 v6, 1, v5
    v_and_b32 v6, 3, v6
    v_xor_b32 v6, s3, v6
    v_lshlrev_b32 v6, 5, v6
    v_lshl_add_u32 v5, v5, 7, v6
    v_and_b32 v6, 3, v1
    v_lshl_add_u32 v8, v6, 3, v5
    v_lshlrev_b32 v9, 4, v1
    v_add_u32 v9, 8192, v9
    v_mul_u32_u24 v12, 1280, v2
    v_lshrrev_b32 v6, 4, v1
    v_lshl_add_u32 v12, v6, 3, v12
    s_mul_i32 s26, s51, 160
    v_add_u32 v12, s26, v12
    s_lshl_b32 s26, s3, 10
    v_lshl_add_u32 v13, v1, 3, s26
    v_and_b32 v14, 1, v6
    v_mul_u32_u24 v14, 24, v14
    v_add_u32 v14, v14, v12
    """)
    for i in range(20): a(f"v_mov_b32 v{ACA+i}, 0")
    SETS = (56, 104)
    def reads(st, ph="b"):
        r = []
        for kk in range(2):
            b = SETS[st] + 24 * kk
            if ph == "a": r += [(f"ds_read_b64 {v(b,2)}, v13 offset:{kk*4096}", (kk, "b0")), (f"ds_read_b64 {v(b+2,2)}, v13 offset:{kk*4096+512}", (kk, "b1"))]
            else: r += [(f"ds_read_b64_tr_b16 {v(b,2)}, v8 offset:{kk*4096}", (kk, "b0")), (f"ds_read_b64_tr_b16 {v(b+2,2)}, v8 offset:{kk*4096+2048}", (kk, "b1"))]
            r += [(f"ds_read_b128 {v(b+4+4*dt,4)}, v9 offset:{(kk*5+dt)*1024}", (kk, dt)) for dt in range(5)]
        return r
    def mf(acc, st):
        return [(f"v_mfma_f32_16x16x32_bf16 {v(acc+4*dt,4)}, {v(SETS[st]+24*kk+4+4*dt,4)}, {v(SETS[st]+24*kk,4)}, {v(acc+4*dt,4)}", {(kk, "b1"), (kk, dt)}) for kk in range(2) for dt in range(5)]
    ids = [x[1] for x in reads(0)]
    adv = slot_adv(P2_SLOT, P2_S) + ["v_add_u32 v8, s40, v8", "v_add_u32 v9, s40, v9"]
    a("s_mov_b32 s33, 0\ns_mov_b32 s37, 0\ns_barrier"); stamp(a, 5, True)
    adva = adv + ["v_add_u32 v13, s40, v13"]
    emit_step(a, [], [], reads(0, "a"), adva)
    a.label(f"{L}_ca", 3)
    a("s_barrier")
    emit_step(a, mf(ACA, 0), ids, reads(1, "a"), adva + ["s_add_u32 s33, s33, 2", "s_cmp_ge_u32 s33, 10"])
    a(f"s_barrier\ns_cbranch_scc1 {L}_cax")
    emit_step(a, mf(ACA, 1), ids, reads(0, "a"), adva)
    a(f"s_branch {L}_ca")
    a.label(f"{L}_cax")
    emit_step(a, mf(ACA, 1), ids, reads(0, "b"), adv)
    def loop(tag, acc, end, last):
        a.label(f"{L}_c{tag}", 3)
        a("s_barrier")
        emit_step(a, mf(acc, 0), ids, reads(1), adv + ["s_add_u32 s33, s33, 2", f"s_cmp_ge_u32 s33, {end}"])
        a(f"s_cbranch_scc1 {L}_clast\ns_barrier")
        emit_step(a, mf(acc, 1), ids, reads(0), adv)
        a(f"s_branch {L}_c{tag}")
    a(f"s_waitcnt vmcnt(0)\nbuffer_load_dword v11, v4, s[8:11], 0 offen {SC}\nv_lshlrev_b32 v10, 16, v10")
    for i in range(20): a(f"v_mov_b32 v{ACB+i}, v10")
    loop("b", ACB, 34, True)
    a.label(f"{L}_clast")
    emit_step(a, mf(ACB, 1), ids, [], [])
    stamp(a, 6)
    a("s_waitcnt vmcnt(0)\ns_nop 4")
    aux = '' if opt('oplain') else 'nt' if opt('ont') else 'sc1'
    for dt in range(5):
        for r in range(0, 4, 2): a(f"v_pk_add_f32 {v(ACA+4*dt+r,2)}, {v(ACA+4*dt+r,2)}, {v(ACB+4*dt+r,2)} neg_lo:[0,1] neg_hi:[0,1]")
        for r in range(0, 4, 2): a(f"v_pk_fma_f32 {v(ACB+4*dt+r,2)}, {v(ACA+4*dt+r,2)}, v[10:11], {v(ACB+4*dt+r,2)} op_sel:[0,1,0] op_sel_hi:[1,1,1]")
        a(f"v_cvt_pk_bf16_f32 v{56+2*dt}, v{ACB+4*dt}, v{ACB+4*dt+1}\nv_cvt_pk_bf16_f32 v{57+2*dt}, v{ACB+4*dt+2}, v{ACB+4*dt+3}")
        if opt("narrow") or dt == 4: a(f"buffer_store_dwordx2 {v(56+2*dt,2)}, v12, s[28:31], 0 offen offset:{32*dt} {aux}")
        elif dt & 1:
            b = 56 + 2 * (dt - 1)
            a(f"v_permlane16_swap_b32 v{b}, v{b+2}\nv_permlane16_swap_b32 v{b+1}, v{b+3}\nbuffer_store_dwordx4 {v(b,4)}, v14, s[28:31], 0 offen offset:{32*(dt-1)} {aux}")
    endp(a)

def gen_main(a, name):
    kernel_head(a, name)
    if PROF:
        for i in range(1, 8): a(f"s_mov_b64 s[{70+2*i}:{71+2*i}], 0")
        stamp(a, 0); a("s_memtime s[66:67]")
    a(f"""
    s_cmp_ge_u32 s2, 256
    s_cbranch_scc1 Lend
    s_load_dwordx2 s[20:21], s[0:1], {KA['ws']}
    v_lshrrev_b32 v1, 6, v0
    v_readfirstlane_b32 s3, v1
    v_and_b32 v1, 63, v0
    s_and_b32 s52, s2, 7
    s_lshr_b32 s53, s2, 3
    s_lshr_b32 s22, s52, 1
    s_lshl_b32 s50, s22, 3
    s_and_b32 s23, s53, 7
    s_add_u32 s50, s50, s23
    s_and_b32 s51, s52, 1
    s_lshl_b32 s51, s51, 2
    s_lshr_b32 s26, s53, 3
    s_add_u32 s51, s51, s26
    """)
    if opt("swap"):
        a(f"""
        s_bitcmp1_b32 s52, 0
        s_cbranch_scc1 Lsw_odd
        s_cmp_lg_u32 s23, 3
        s_cbranch_scc1 Lsw_done
        s_cmp_eq_u32 s26, 3
        s_cselect_b32 s27, 4, s26
        s_sub_u32 s50, s50, 3
        s_add_u32 s50, s50, s27
        s_mov_b32 s51, 4
        s_branch Lsw_done
        Lsw_odd:
        s_cmp_lg_u32 s26, 0
        s_cbranch_scc1 Lsw_done
        s_cmp_gt_u32 s23, 4
        s_cbranch_scc1 Lsw_done
        s_min_u32 s51, s23, 3
        s_cmp_eq_u32 s23, 3
        s_cselect_b32 s51, 4, s51
        s_sub_u32 s50, s50, s23
        s_add_u32 s50, s50, 3
        Lsw_done:
        """)
    if PROF: a("s_mov_b32 s69, s3")
    NG = 15 if opt("mixed") else 30
    a("s_cmp_ge_u32 s53, 16\ns_cbranch_scc1 Lrole_qa" if opt("mixed") else "s_bitcmp1_b32 s52, 0\ns_cbranch_scc1 Lrole_qa")
    a(f"""
    {"s_lshl_b32 s19, s52, 4" if opt("mixed") else "s_lshl_b32 s19, s22, 5"}
    s_add_u32 s19, s19, s53
    s_mul_i32 s17, s53, 86
    s_lshr_b32 s17, s17, 8
    s_mul_i32 s23, s17, 3
    s_sub_u32 s23, s53, s23
    s_mul_i32 s16, s22, 3
    s_add_u32 s16, s16, s23
    """)
    if opt("mixed"): a("s_and_b32 s26, s52, 1\ns_mul_i32 s26, s26, 5\ns_add_u32 s17, s17, s26")
    a(f"s_mul_i32 s18, s23, {opt('stagg', 0)}\ns_mul_i32 s26, s17, {opt('stagd', 0)}\ns_add_u32 s18, s18, s26\ns_and_b32 s18, s18, 31")
    a("s_cmp_ge_u32 s3, 4\ns_cbranch_scc1 Lg_cons\ns_setprio 1\ns_cmp_ge_u32 s3, 2\ns_cbranch_scc1 Lg_h")
    def flags():
        a(f"s_waitcnt lgkmcnt(0)"); srd(a, 44, 20, FL_SZ, FL_OFF); a(f"s_load_dword s48, s[44:45], {FZ}")
    a(f"s_load_dwordx2 s[4:5], s[0:1], {KA['w1']}"); flags()
    a(f"s_cmp_ge_u32 s53, {NG}\ns_cbranch_scc1 Lsp_w")
    g1_loader_w(a); a("s_branch Lp2_s")
    a.label("Lsp_w"); w1_sweep(a)
    a.label("Lsp_l"); a("s_mov_b32 s16, s52" if opt("mixed") else "s_lshr_b32 s16, s52, 1\ns_lshl_b32 s16, s16, 1\ns_add_u32 s16, s16, s53\ns_sub_u32 s16, s16, 30"); spare_loader(a)
    a("s_cmp_ge_u32 s3, 2\ns_cbranch_scc1 Lp2_d\ns_branch Lp2_s")
    a.label("Lg_h"); code_prefetch(a)
    if opt("mixed"):
        a(f"s_load_dwordx2 s[4:5], s[0:1], {KA['w1']}"); flags(); w1_sweep(a)
        a("s_cmp_ge_u32 s53, 15\ns_cbranch_scc1 Lsp_l")
    else:
        flags(); a("s_cmp_lt_u32 s53, 30\ns_cbranch_scc1 Lg_h2\ns_barrier\ns_barrier\ns_branch Lsp_l")
    a.label("Lg_h2"); g1_loader_h(a); a("s_branch Lp2_d")
    a.label("Lg_cons")
    a(f"s_setprio 2\ns_load_dwordx2 s[4:5], s[0:1], {KA['x']}\ns_load_dwordx2 s[8:9], s[0:1], {KA['gw']}\ns_sub_u32 s3, s3, 4")
    ln_issue(a)
    srd(a, 44, 20, FL_SZ, FL_OFF)
    a(f"v_mov_b32 v2, {CTR}\nv_mov_b32 v6, 0\nv_mov_b32 v7, 0\nv_mov_b32 v8, 0\nv_mov_b32 v9, 0\nds_write_b128 v2, v[6:9]\ns_waitcnt lgkmcnt(0)\ns_barrier\ns_load_dword s48, s[44:45], {FZ}")
    ln_finish(a); stamp(a, 1, True)
    a(f"s_cmp_ge_u32 s53, {NG}\ns_cbranch_scc1 Lsp_cons")
    g1_consumer(a); a("s_branch Lp2_c")
    a.label("Lsp_cons")
    a(f"s_load_dwordx2 s[12:13], s[0:1], {KA['dbg']}\ns_waitcnt lgkmcnt(0)"); srd(a, 12, 12, 256)
    if opt("slowcol"):
        a(f"""
        s_load_dwordx2 s[4:5], s[0:1], {KA['w1']}
        s_lshr_b32 s22, s52, 1
        s_cmp_eq_u32 s22, 2
        s_cselect_b32 s23, 1, s3
        s_cmp_lg_u32 s23, 0
        s_cbranch_scc1 Lsc_done
        s_min_u32 s22, s22, 2
        s_lshl_b32 s22, s22, 10
        s_add_u32 s22, s22, {384 + 1024 * 3072}
        s_and_b32 s23, s53, 1
        s_lshl_b32 s23, s23, 6
        v_add_u32 v2, s23, v1
        v_mul_u32_u24 v2, 3072, v2
        s_mov_b32 s33, 0
        s_waitcnt lgkmcnt(0)
        """)
        srd(a, 4, 4, S_ * 3072)
        a(f"Lsc_l:\nbuffer_load_dword v3, v2, s[4:7], s22 offen\ns_add_u32 s22, s22, {128*3072}\ns_add_u32 s33, s33, 1\ns_cmp_lt_u32 s33, 8\ns_waitcnt vmcnt(0)\ns_cbranch_scc1 Lsc_l\nLsc_done:\ns_waitcnt lgkmcnt(0)")
    a("s_barrier\ns_cmp_lg_u32 s3, 0\ns_cbranch_scc1 Lp2_c"); arrive_issue(a, 6); a("s_waitcnt vmcnt(0)"); arrive_finish(a, 6); a("s_branch Lp2_c")
    a.label("Lrole_qa")
    if opt("mixed"): a("s_and_b32 s23, s53, 3\ns_lshl_b32 s16, s22, 2\ns_add_u32 s16, s16, s23\ns_lshr_b32 s26, s53, 2\ns_and_b32 s26, s26, 3\ns_and_b32 s17, s52, 1\ns_lshl_b32 s17, s17, 2\ns_add_u32 s17, s17, s26")
    else: a(f"""
    s_and_b32 s16, s22, 1
    s_lshl_b32 s16, s16, 3
    s_add_u32 s16, s16, s23
    s_lshr_b32 s17, s22, 1
    s_lshl_b32 s17, s17, 2
    s_add_u32 s17, s17, s26
    """)
    if opt("nsq"): a("s_mov_b32 s18, 0")
    elif opt("mixed"): a("s_add_u32 s18, s26, s23\ns_and_b32 s18, s18, 3\ns_mul_i32 s18, s18, 10\ns_lshr_b32 s18, s18, 2")
    else: a("s_lshl_b32 s18, s26, 1\ns_add_u32 s18, s18, s23\ns_and_b32 s18, s18, 7\ns_mul_i32 s18, s18, 10\ns_lshr_b32 s18, s18, 3")
    a(f"s_cmp_ge_u32 s3, 4\ns_cbranch_scc1 Lq_cons\ns_setprio 1\ns_cmp_eq_u32 s3, 3\ns_cbranch_scc1 Lq_idle")
    a(f"s_load_dwordx2 s[4:5], s[0:1], {KA['x']}\ns_load_dwordx2 s[8:9], s[0:1], {KA['wqkv']}"); qa_w1_sweep(a); flags(); qa_loader(a)
    a("s_cmp_ge_u32 s3, 2\ns_cbranch_scc1 Lp2_d\ns_branch Lp2_s")
    a.label("Lq_idle"); qa_w1_sweep(a); flags(); qa_idle(a); a("s_branch Lp2_d")
    a.label("Lq_cons"); a("s_sub_u32 s3, s3, 4"); flags()
    a(f"v_mov_b32 v2, {CTR}\nv_mov_b32 v6, 0\nv_mov_b32 v7, 0\nv_mov_b32 v8, 0\nv_mov_b32 v9, 0\nds_write_b128 v2, v[6:9]")
    qa_consumer(a)
    a.label("Lp2_c"); p2_consumer(a)
    a.label("Lp2_s"); p2_loader_s(a)
    a.label("Lp2_d"); p2_loader_d(a)
    a.label("Lend"); a("s_endpgm")
    a.raw("Lcode_end:")
    return kernel_desc(name, 256, 102)

def gen_osc(a, name):
    kernel_head(a, name)
    o = next(o for o in OPTS if o.startswith("osc"))[3:].split("_")
    a(f"s_cmp_ge_u32 s2, 1\ns_cbranch_scc1 Losc_end\ns_load_dwordx2 s[4:5], s[0:1], {KA['ws']}\ns_waitcnt lgkmcnt(0)")
    srd(a, 4, 4, 0x100000, TL_OFF + 0x40000)
    def red(dst, base, stride, count, wave, slot, op):
        n = -(-count // 64)
        for i in range(n):
            a(f"v_add_u32 v1, {64*i}, v0\nv_min_u32 v1, {count-1}, v1\nv_mul_u32_u24 v1, {stride}, v1\nv_add_u32 v1, {base}, v1\nv_lshlrev_b32 v1, 9, v1\ns_mov_b32 s8, {wave*64 + slot*4}")
            a(f"buffer_load_dword v{4+i}, v1, s[4:7], s8 offen")
        a("s_waitcnt vmcnt(0)")
        if op == "add":
            for i in range(n): a(f"v_subrev_u32 v{4+i}, s20, v{4+i}")
        for i in range(1, n): a(f"v_{op}_u32 v4, v4, v{4+i}")
        a(f"v_readlane_b32 s{dst}, v4, 0")
        for i in range(1, 64): a(f"v_readlane_b32 s9, v4, {i}\ns_nop 0\ns_{op}_u32 s{dst}, s{dst}, s9")
        if op == "add": a(f"s_lshr_b32 s{dst}, s{dst}, {(64*n).bit_length()-1}\ns_add_u32 s{dst}, s{dst}, s20")
    red(20, 0, 1, 256, 0, 0, "min")
    if len(o) > 1:
        red(21, int(o[0]), int(o[1]), int(o[2]), int(o[3]), int(o[4]), dict(n="min", x="max", a="add")[o[5]])
        a("s_sub_u32 s21, s21, s20\ns_min_u32 s21, s21, 20000\ns_lshl_b32 s21, s21, 2")
    else: a("s_mov_b32 s21, 0")
    a("s_add_u32 s21, s21, 10000\nLosc_spin:\ns_memrealtime s[10:11]\ns_waitcnt lgkmcnt(0)\ns_sub_u32 s10, s10, s20\ns_cmp_lt_u32 s10, s21\ns_cbranch_scc1 Losc_spin")
    a.label("Losc_end"); a("s_endpgm")
    return kernel_desc(name, 16, 32)

def build(spec=""):
    global PROF
    OPTS[:] = [o for o in spec.split("+") if o]; PROF = bool(opt("prof")); UID[0] = 0
    ref = open(f"cdna_kernels/{NAME}.s.ref").read().split("\n")
    head = ref[:ref.index(next(x for x in ref if x.startswith("; Override")))]
    a = Asm(); a.raw("\n".join(head))
    if opt("mixed"): a.raw("; mixed")
    osc = any(o.startswith("osc") and o != "osc1" for o in OPTS)
    if osc: a.raw(f"; @launch kernel={NAME}_kernel grid=(256,1,1) block=(512,1,1) lds={LDS_SZ}\n; @launch kernel=osc_kernel grid=(1,1,1) block=(64,1,1) lds=0")
    else: a.raw(f"; @launch grid=(256,1,1) block=(512,1,1) lds={LDS_SZ}")
    a.raw('.amdgcn_target "amdgcn-amd-amdhsa--gfx950"')
    d = gen_main(a, NAME + "_kernel")
    if osc: d += gen_osc(a, "osc_kernel")
    if opt("nocomp"): a.lines = [(t, c) for t, c in a.lines if not (c is not None and (c.kind == "mfma" or c.op.startswith("ds_read")))]
    if opt("noload"): a.lines = [(t, c) for t, c in a.lines if not (c is not None and c.kind == "vmem" and c.lds)]
    if opt("nomfma"): a.lines = [(t, c) for t, c in a.lines if not (c is not None and c.kind == "mfma")]
    if opt("nods"): a.lines = [(t, c) for t, c in a.lines if not (c is not None and c.op.startswith("ds_read"))]
    if opt("nowait"): a.lines = [(t, c) for t, c in a.lines if not (c is not None and c.op == "s_waitcnt" and "lgkm" in t and "(0)" not in t)]
    bad = a.check_branches()
    for b in bad: print("HAZARD across branch:", b, file=sys.stderr)
    assert not bad
    a.raw(d)
    return a.text()

if __name__ == "__main__":
    open(sys.argv[2] if len(sys.argv) > 2 else f"cdna_kernels/{NAME}.s", "w").write(build(sys.argv[1] if len(sys.argv) > 1 else ""))
```

```python
import re

def regs(op):
    op = op.strip()
    op = re.sub(r"^-|^abs\(|\)$|^\|", "", op).strip("|")
    m = re.fullmatch(r"([vsa])(\d+)", op)
    if m: return {(m.group(1), int(m.group(2)))}
    m = re.fullmatch(r"([vsa])\[(\d+):(\d+)\]", op)
    if m: return {(m.group(1), i) for i in range(int(m.group(2)), int(m.group(3)) + 1)}
    if op == "vcc": return {("s", "vcc")}
    if op == "exec": return {("s", "exec")}
    if op == "m0": return {("s", "m0")}
    return set()

TRANS = ("v_exp_f32", "v_log_f32", "v_rcp_f32", "v_rsq_f32", "v_sqrt_f32", "v_sin_f32", "v_cos_f32")

class Ins:
    def __init__(self, text):
        self.text = text
        t = text.split(";")[0].strip()
        p = t.split(None, 1)
        self.op = p[0]
        rest = p[1] if len(p) > 1 else ""
        ops = [o.strip() for o in re.split(r",(?![^\[]*\])", rest)] if rest else []
        if ops:
            last = ops[-1].split()
            self.mods = " ".join(last[1:]); ops[-1] = last[0] if last else ""
        else: self.mods = ""
        self.ops = ops
        op = self.op
        self.w = set(); self.r = set()
        self.kind = "other"
        R = lambda l: set().union(*[regs(o) for o in l]) if l else set()
        self.states = 1
        if op == "s_nop": self.states = int(ops[0]) + 1; self.kind = "nop"
        elif op.startswith("v_mfma"):
            self.kind = "mfma"; self.w = regs(ops[0]); self.A = regs(ops[1]); self.B = regs(ops[2]); self.C = regs(ops[3]); self.r = self.A | self.B | self.C
            self.passes = 8 if "32x32" in op else 4
        elif op.startswith("v_"):
            self.kind = "valu"
            if op.startswith("v_permlane") and "swap" in op: self.w = R(ops[:2]); self.r = R(ops[:2])
            elif op.startswith("v_cmp"): self.w = regs(ops[0]); self.r = R(ops[1:])
            elif "_co_" in op: self.w = R(ops[:2]); self.r = R(ops[2:])
            else:
                self.w = regs(ops[0]); self.r = R(ops[1:])
                if op.startswith(("v_fmac", "v_dot2c", "v_pk_fmac")) or "_dpp" in op or "row_" in self.mods or "quad_perm" in self.mods: self.r |= self.w
            if op.startswith("v_cndmask") and len(ops) == 3: self.r |= {("s", "vcc")}
            self.dpp = "_dpp" in op or "row_" in self.mods or "quad_perm" in self.mods
        elif op.startswith("ds_"):
            self.kind = "ds"
            if "read" in op or "permute" in op or "swizzle" in op: self.w = regs(ops[0]); self.r = R(ops[1:])
            else: self.r = R(ops)
        elif op.startswith(("buffer_", "global_")):
            self.kind = "vmem"
            self.lds = (" lds" in " " + self.mods) or "_lds_" in op
            if op.startswith(("buffer_inv", "buffer_wbl2")): pass
            elif "store" in op or "atomic" in op:
                self.r = R(ops)
                self.data = regs(ops[0]) if op.startswith("buffer_") else regs(ops[1])
                self.wide = "x4" in op or "x3" in op
                if "atomic" in op and "sc0" in self.mods: self.w = regs(ops[0])
            elif self.lds: self.r = R(ops) | {("s", "m0")}
            else: self.w = regs(ops[0]); self.r = R(ops[1:])
        elif op.startswith("s_"):
            self.kind = "salu"
            if op.startswith(("s_cmp", "s_cbranch", "s_branch", "s_waitcnt", "s_barrier", "s_endpgm", "s_setprio", "s_sleep")): self.r = R(ops)
            else:
                self.w = regs(ops[0]) if ops else set(); self.r = R(ops[1:])
                if "saveexec" in op: self.w |= {("s", "exec")}

def need(p, c):
    n = 0
    vw = {x for x in p.w if x[0] in "va"}; sw = {x for x in p.w if x[0] == "s"}
    if p.kind == "valu":
        if c.kind == "mfma" and vw & c.r: n = max(n, 2)
        if c.kind == "valu":
            if c.op.startswith(("v_readfirstlane", "v_readlane")) and vw & c.r: n = max(n, 1)
            if c.op.startswith("v_permlane") and vw & c.r: n = max(n, 2)
            if c.dpp and vw & c.r: n = max(n, 2)
            if sw & c.r: n = max(n, 2)
            if p.op.startswith(TRANS) and vw & c.r: n = max(n, 1)
            if p.op.startswith("v_dot") and vw & (c.r | c.w) and not (c.op == p.op): n = max(n, 3)
            if p.op.startswith("v_dot") and c.op == p.op and vw & set().union(*[regs(o) for o in c.ops[1:3]]): n = max(n, 3)
            if ("s", "exec") in sw and c.dpp: n = max(n, 5)
        if p.op.startswith("v_dot") and c.kind in ("vmem", "ds", "mfma") and vw & c.r: n = max(n, 3)
        if c.kind == "vmem" and sw & c.r: n = max(n, 5)
        if c.kind == "salu" and sw & c.r: n = max(n, 1)
        if ("s", "exec") in sw and c.kind == "mfma": n = max(n, 4)
    if p.kind == "salu":
        if ("s", "m0") in sw and c.kind == "vmem" and getattr(c, "lds", False): n = max(n, 1)
    if p.kind == "mfma":
        P = p.passes
        if c.kind == "mfma":
            if p.w & (c.A | c.B): n = max(n, {4: 8, 8: 12}[P])
            if p.w & c.C and not (p.w == c.C and c.passes == P): n = max(n, {4: 6, 8: 10}[P])
            if p.w & c.w and not (p.w == c.C and c.passes == P): n = max(n, {4: 6, 8: 10}[P])
        elif c.kind in ("valu", "ds", "vmem"):
            if p.w & (c.r | c.w): n = max(n, {4: 8, 8: 12}[P])
            if c.kind == "valu" and p.C & c.w: n = max(n, {4: 3, 8: 7}[P])
    if p.kind == "vmem" and getattr(p, "wide", False) and p.data & c.w and c.kind in ("valu", "mfma"): n = max(n, 2)
    return n

class Asm:
    def __init__(self):
        self.lines = []
        self.hist = []
        self.nops = 0
    def raw(self, text):
        for l in text.split("\n"): self.lines.append((l, None))
    def label(self, name, align=None):
        if align: self.lines.append((f".p2align {align}", None))
        self.lines.append((name + ":", None))
    def reset(self): self.hist = []
    def __call__(self, text):
        for l in text.split("\n"):
            l = l.strip()
            if not l: continue
            if l.startswith(";"): self.lines.append(("    " + l, None)); continue
            if l.endswith(":"): self.label(l[:-1]); continue
            if l.startswith("."): self.lines.append((l, None)); continue
            c = Ins(l)
            d = 0; pad = 0
            for p in reversed(self.hist):
                pad = max(pad, need(p, c) - d)
                d += p.states
                if d > 20: break
            if pad > 0:
                n = Ins(f"s_nop {pad-1}"); self.lines.append((f"    s_nop {pad-1}", n)); self.hist.append(n); self.nops += 1
            self.lines.append(("    " + l, c)); self.hist.append(c)
            if c.op in ("s_branch", "s_endpgm"): self.hist = []
    def align_hot(self, hot):
        import subprocess, tempfile, os
        def sizes():
            txt = '.amdgcn_target "amdgcn-amd-amdhsa--gfx950"\n' + "\n".join(t for t, _ in self.lines if not t.startswith((";", ".amdgcn"))) + "\n"
            p = tempfile.mktemp(suffix=".s"); open(p, "w").write(txt)
            subprocess.run(["clang", "-x", "assembler", "-target", "amdgcn-amd-amdhsa", "-mcpu=gfx950", "-c", p, "-o", p + ".o"], check=True)
            out = subprocess.run(["llvm-objdump", "-d", "--mcpu=gfx950", p + ".o"], capture_output=True, text=True).stdout
            os.remove(p); os.remove(p + ".o")
            return [(l.split()[0], len(l.split("//")[1].split(":")[1].split()) * 4) for l in out.split("\n") if "//" in l and l.startswith("\t")]
        sz = sizes(); k = 0; S = []
        for t, c in self.lines:
            if c is None: S.append(0); continue
            while sz[k][0].split("_e")[0] != c.op.split("_e")[0] and not sz[k][0].startswith(c.op):
                assert sz[k][0] == "s_nop", (sz[k], c.op); k += 1
            S.append(sz[k][1]); k += 1
        new = []; on = False; par = 0; last4 = None; n = 0
        starts = {a + ":" for a, b in hot}; ends = {b + ":" for a, b in hot}
        for (t, c), s in zip(self.lines, S):
            if c is None:
                if t in ends: on = False
                if t in starts: on = True; par = 0; last4 = None
                new.append((t, c)); continue
            if on:
                if s == 8 and par:
                    lt, lc = new[last4]
                    if lc.kind == "valu" and not lc.op.endswith("_e64") and not lc.op.startswith("v_permlane"):
                        t2 = lt.replace(lc.op, lc.op + "_e64", 1); new[last4] = (t2, Ins(t2.strip()))
                    else: new.append(("    s_nop 0", Ins("s_nop 0"))); n += 1
                    par = 0
                if s == 4: par ^= 1; last4 = len(new)
            new.append((t, c))
        self.lines = new
        return n
    def check_branches(self):
        lab = {t[:-1]: i for i, (t, c) in enumerate(self.lines) if c is None and t.endswith(":")}
        bad = []
        for i, (t, c) in enumerate(self.lines):
            if c is not None and c.op.startswith(("s_cbranch", "s_branch")):
                tgt = lab[c.ops[0]]
                before = []
                k = i; d = 0
                while k >= 0 and d < 20:
                    x = self.lines[k][1]
                    if x is not None:
                        if k != i and x.op in ("s_branch", "s_endpgm"): break
                        before.append(x); d += x.states
                    k -= 1
                after = []; k = tgt; d = 0
                while k < len(self.lines) and d < 20:
                    x = self.lines[k][1]
                    if x is not None:
                        after.append(x); d += x.states
                        if x.op in ("s_branch", "s_endpgm"): break
                    k += 1
                da = 0
                for y in after:
                    db = 0
                    for x in before:
                        if need(x, y) > da + db: bad.append((x.text, y.text, c.text))
                        db += x.states
                    da += y.states
        return bad
    def text(self): return "\n".join(t for t, _ in self.lines) + "\n"

def kernel_head(a, name):
    a.raw(f".text\n.globl {name}\n.p2align 8\n.type {name},@function\n{name}:")
    a.reset()

def kernel_desc(name, vgpr, sgpr=102, accum=None):
    accum = accum or (vgpr + 3) // 4 * 4
    return f""".section .rodata,"a"
.p2align 6
.amdhsa_kernel {name}
  .amdhsa_next_free_vgpr {vgpr}
  .amdhsa_next_free_sgpr {sgpr}
  .amdhsa_accum_offset {accum}
  .amdhsa_group_segment_fixed_size 0
  .amdhsa_kernarg_size 96
  .amdhsa_user_sgpr_count 2
  .amdhsa_user_sgpr_kernarg_segment_ptr 1
  .amdhsa_system_sgpr_workgroup_id_x 1
  .amdhsa_float_denorm_mode_32 3
.end_amdhsa_kernel
"""
```

```python
import sys, struct
from dsl import *

NAME = "gated_mix__sliding_local_dilated__mixer_token_mlp__prompt"
S_, D_, F_ = 2048, 640, 1536
KA = dict(x=0, wqkv=8, wo=16, w1=32, b1=40, w2=48, b2=56, gw=64, out=72, dbg=80, ws=88)
H_OFF, OT_OFF, UW_OFF, G_OFF, FL_OFF = 0, 0x280000, 0x500000, 0x800000, 0x810000
H_SZ, OT_SZ, UW_SZ, G_SZ, FL_SZ = 2621440, 2621440, 40 * 68 * 1024, 8192, 0x70000
F1, F2, F4, FZ, F3 = 0, 0x20000, 0x28000, 0x40000, 0x50000
RING = 147456; CTR = RING; LDS_SZ = RING + 64
LOG2E = 1.4426950408889634
OPTS = []; PROF = False; TL_OFF = 0x1000000
SC = "sc1"
def f2u(x): return "0x%08x" % struct.unpack("<I", struct.pack("<f", x))[0]
def v(n, k=1): return f"v{n}" if k == 1 else f"v[{n}:{n+k-1}]"
def opt(name, default=None):
    for o in OPTS:
        if o == name: return True
        if o.startswith(name + "="): return int(o.split("=")[1])
    return default

def srd(a, d, base, size, off=0):
    if off: a(f"s_add_u32 s{d}, s{base}, {off}\ns_addc_u32 s{d+1}, s{base+1}, 0")
    elif d != base: a(f"s_mov_b32 s{d}, s{base}\ns_mov_b32 s{d+1}, s{base+1}")
    a(f"s_mov_b32 s{d+2}, {size}\ns_mov_b32 s{d+3}, 0x20000")

def estamp(a, i):
    if PROF and opt("early"): a(f"s_memrealtime s[{70+2*i}:{71+2*i}]\ns_waitcnt lgkmcnt(0)")
def lstamp(a, i):
    if PROF and opt("late"): a(f"s_memrealtime s[{70+2*i}:{71+2*i}]\ns_waitcnt lgkmcnt(0)")
def stamp(a, i, wait=False):
    if PROF and opt("clk"):
        k = {2: 1, 3: 3, 6: 5}.get(i)
        if i == 0: a("s_memrealtime s[70:71]")
        elif k and (wait or i == 6): a(f"s_memrealtime s[{70+2*k}:{71+2*k}]\ns_memtime s[{72+2*k}:{73+2*k}]\ns_waitcnt lgkmcnt(0)")
        return
    if PROF and (i == 0 or not (opt("early") or opt("late"))): a(f"s_memrealtime s[{70+2*i}:{71+2*i}]" + ("\ns_waitcnt lgkmcnt(0)" if wait else ""))
def endp(a):
    if PROF:
        a(f"""
        s_waitcnt vmcnt(0)
        s_memrealtime s[84:85]
        s_memtime s[86:87]
        s_waitcnt lgkmcnt(0)
        s_sub_u32 s86, s86, s66
        s_add_u32 s60, s20, {TL_OFF + 0x40000}
        s_addc_u32 s61, s21, 0
        s_mov_b32 s62, 0x40000
        s_mov_b32 s63, 0x20000
        s_mov_b64 exec, 1
        s_lshl_b32 s64, s2, 3
        s_add_u32 s64, s64, s69
        s_lshl_b32 s64, s64, 6
        v_mov_b32 v0, s64
        """)
        for i in range(8): a(f"v_mov_b32 v{4+i}, s{70+2*i}")
        a("v_mov_b32 v12, s86")
        a("buffer_store_dwordx4 v[4:7], v0, s[60:63], 0 offen\nbuffer_store_dwordx4 v[8:11], v0, s[60:63], 0 offen offset:16\nbuffer_store_dword v12, v0, s[60:63], 0 offen offset:32")
    a("s_endpgm")

def emit_step(a, M, prev_ids, R, extra, per_gap=2, head=2):
    q = list(prev_ids); fill = [("r", x) for x in R] + [("x", x) for x in extra]
    def put(n):
        for _ in range(n):
            if not fill: return
            k, x = fill.pop(0)
            if k == "r": a(x[0]); q.append(("n", x[1]))
            else: a(x)
    put(head)
    for text, need_ in M:
        idx = [i for i, t in enumerate(q) if t in need_]
        if idx:
            n = min(len(q) - 1 - idx[-1], 15)
            a(f"s_waitcnt lgkmcnt({n})"); del q[:len(q) - n]
        a(text); put(per_gap)
    put(len(fill))

def slot_adv(SLOT, S):
    return [f"s_add_u32 s40, s37, {SLOT}", f"s_cmp_ge_u32 s40, {SLOT*S}", "s_cselect_b32 s41, 0, s40", "s_sub_u32 s40, s41, s37", "s_mov_b32 s37, s41"]

def thr(name, default):
    t = opt("t" + name, default if opt("thr") else 0)
    return f"s_waitcnt vmcnt({t-1})\n" if t else ""
UID = [0]
def uid(p): UID[0] += 1; return f"{p}{UID[0]}"

def issue_n(a, n, issue):
    L = uid("Li")
    a(f"s_add_u32 s32, s33, {n}")
    a.label(L); issue()
    a(f"s_add_u32 s33, s33, 1\ns_cmp_lt_u32 s33, s32\ns_cbranch_scc1 {L}")
def steady(a, upto, n, ahead, issue):
    L = uid("Ls")
    a.label(L)
    a(f"s_waitcnt vmcnt({n*(ahead-1)})\ns_barrier"); issue()
    a(f"s_add_u32 s33, s33, 1\ns_cmp_lt_u32 s33, {upto}\ns_cbranch_scc1 {L}")
def drain(a, n, ahead):
    for k in range(ahead - 1, -1, -1): a(f"s_waitcnt vmcnt({n*k})\ns_barrier")

def publish(a, ctr, nw, vaddr, lanes):
    L = uid("Lpub")
    a(f"""
    s_waitcnt vmcnt(0)
    s_mov_b64 exec, 1
    v_mov_b32 v2, {CTR + ctr}
    v_mov_b32 v3, 1
    ds_add_rtn_u32 v3, v2, v3
    s_waitcnt lgkmcnt(0)
    v_readfirstlane_b32 s22, v3
    s_mov_b64 exec, {(1 << lanes) - 1}
    s_cmp_lg_u32 s22, {nw - 1}
    s_cbranch_scc1 {L}
    v_mov_b32 v3, s48
    buffer_store_dword v3, v{vaddr}, s[44:47], 0 offen {SC}
    """)
    a.label(L); a("s_mov_b64 exec, -1")
def gate(a, vaddr, mask, two=False):
    L = uid("Lg"); slp = "s_sleep %d" % opt("slp", 4) if opt("slp", 4) else ""
    a(f"s_mov_b32 s49, 0\ns_mov_b32 exec_lo, {mask & 0xffffffff}\ns_mov_b32 exec_hi, {mask >> 32}")
    a.label(L)
    if two: a(f"buffer_load_dword v2, v{vaddr}, s[44:47], 0 offen {SC}\ns_mov_b32 s22, 8192\nbuffer_load_dword v3, v{vaddr}, s[44:47], s22 offen {SC}\ns_waitcnt vmcnt(0)\nv_xor_b32 v2, s48, v2\nv_xor_b32 v3, s48, v3\nv_or_b32 v2, v2, v3")
    else: a(f"buffer_load_dword v2, v{vaddr}, s[44:47], 0 offen {SC}\ns_waitcnt vmcnt(0)\nv_xor_b32 v2, s48, v2")
    a(f"v_cmp_ne_u32 vcc, 0, v2\ns_add_u32 s49, s49, 1\ns_cmp_eq_u64 vcc, 0\ns_cbranch_scc1 {L}d\n{slp}\ns_cmp_lt_u32 s49, 20000\ns_cbranch_scc1 {L}")
    a.label(L + "d"); a("s_mov_b64 exec, -1")
def tag_ready(a):
    a("s_waitcnt lgkmcnt(0)\ns_mul_i32 s48, s48, 1664525\ns_add_u32 s48, s48, 1013904223")
def arrive_issue(a, vd):
    a(f"s_mov_b64 exec, 1\nv_mov_b32 v{vd}, 1\nv_mov_b32 v{vd+1}, 0\nbuffer_atomic_add v{vd}, v{vd+1}, s[12:15], 0 offen sc0\ns_mov_b64 exec, -1")
def arrive_finish(a, vd):
    L = uid("Larr")
    a(f"v_readfirstlane_b32 s22, v{vd}\ns_cmp_lg_u32 s22, 255\ns_cbranch_scc1 {L}\ns_mov_b64 exec, 1\nv_mov_b32 v{vd}, s48\nv_mov_b32 v{vd+1}, {FZ}")
    a(f"buffer_store_dword v{vd}, v{vd+1}, s[44:47], 0 offen {SC}\ns_mov_b64 exec, -1")
    a.label(L)

def code_prefetch(a):
    L = uid("Lpc")
    a(f"s_getpc_b64 s[30:31]\n{L}:\ns_sub_u32 s30, s30, {L}-{NAME}_kernel\ns_subb_u32 s31, s31, 0\nv_lshlrev_b32 v2, 7, v1")
    for i in range(opt("ncode", 0)):
        a(f"v_min_u32 v3, Lcode_end-{NAME}_kernel-4, v2\nglobal_load_dword v{40+i}, v3, s[30:31]\nv_add_u32 v2, 8192, v2")

def ln_issue(a):
    a(f"""
    s_lshl_b32 s22, s19, 4
    s_lshl_b32 s23, s3, 2
    s_add_u32 s22, s22, s23
    v_lshrrev_b32 v2, 4, v1
    v_add_u32 v10, s22, v2
    v_and_b32 v11, 15, v1
    v_lshlrev_b32 v4, 4, v11
    v_mul_u32_u24 v5, 1280, v10
    v_add_u32 v5, v5, v4
    s_waitcnt lgkmcnt(0)
    """)
    srd(a, 4, 4, H_SZ); srd(a, 8, 8, 1280)
    for i in range(5): a(f"buffer_load_dwordx4 {v(16+4*i,4)}, v5, s[4:7], 0 offen offset:{256*i}")
    for i in range(5): a(f"buffer_load_dwordx4 {v(36+4*i,4)}, v4, s[8:11], 0 offen offset:{256*i}")
def ln_finish(a):
    X, GW, U = 16, 36, 56
    srd(a, 4, 20, H_SZ, H_OFF); srd(a, 8, 20, G_SZ, G_OFF)
    a("s_mov_b32 s30, 0x3f803f80\ns_mov_b32 s31, 0xffff0000"); estamp(a, 1); a("s_waitcnt vmcnt(5)"); estamp(a, 2)
    a(f"v_dot2_f32_bf16 v6, v{X}, s30, 0\nv_dot2_f32_bf16 v8, v{X+1}, s30, 0")
    for i in range(2, 20): a(f"v_dot2_f32_bf16 v{6+2*(i&1)}, v{X+i}, s30, v{6+2*(i&1)}")
    for i in range(20): a(f"v_lshlrev_b32 v{U+2*i}, 16, v{X+i}\nv_and_b32 v{U+1+2*i}, s31, v{X+i}")
    def red(*rs):
        for sh in (8, 4, 2, 1):
            for r in rs: a(f"v_add_f32_dpp v{r}, v{r}, v{r} row_ror:{sh} row_mask:0xf bank_mask:0xf")
    a("v_add_f32 v6, v6, v8"); red(6)
    a(f"v_mul_f32 v6, {f2u(1/640)}, v6\ns_waitcnt vmcnt(0)")
    a(f"v_dot2_f32_bf16 v9, v{X}, v{GW}, 0")
    for i in range(1, 20): a(f"v_dot2_f32_bf16 v9, v{X+i}, v{GW+i}, v9")
    for i in range(20): a(f"v_pk_add_f32 {v(U+2*i,2)}, {v(U+2*i,2)}, v[6:7] op_sel_hi:[1,0] neg_lo:[0,1] neg_hi:[0,1]")
    a(f"v_pk_mul_f32 v[12:13], {v(U,2)}, {v(U,2)}\nv_pk_mul_f32 v[14:15], {v(U+2,2)}, {v(U+2,2)}")
    for i in range(2, 20): a(f"v_pk_fma_f32 {v(12+2*(i&1),2)}, {v(U+2*i,2)}, {v(U+2*i,2)}, {v(12+2*(i&1),2)}")
    a("v_pk_add_f32 v[12:13], v[12:13], v[14:15]\nv_add_f32 v12, v12, v13")
    red(12, 9)
    a(f"v_mov_b32 v8, {f2u(1e-5)}\nv_fmac_f32 v8, {f2u(1/640)}, v12\nv_rsq_f32 v12, v8\nv_mul_f32 v9, {f2u(-LOG2E)}, v9\nv_exp_f32 v9, v9")
    for j in range(5):
        for i in range(4*j, 4*j+4): a(f"v_pk_mul_f32 {v(U+2*i,2)}, {v(U+2*i,2)}, v[12:13] op_sel_hi:[1,0]")
        for i in range(4*j, 4*j+4): a(f"v_cvt_pk_bf16_f32 v{X+i}, v{U+2*i}, v{U+1+2*i}")
        a(f"buffer_store_dwordx4 {v(X+4*j,4)}, v5, s[4:7], 0 offen offset:{256*j} {SC}")
    a(f"""
    v_add_f32 v9, 1.0, v9
    v_rcp_f32 v9, v9
    v_lshlrev_b32 v10, 2, v10
    s_mov_b32 exec_lo, 0x00010001
    s_mov_b32 exec_hi, 0x00010001
    buffer_store_dword v9, v10, s[8:11], 0 offen {SC}
    s_mov_b64 exec, -1
    s_lshl_b32 s22, s19, 7
    v_lshl_add_u32 v10, v1, {14 if opt("mixed") else 15}, s22
    """)
    if True: a("s_barrier")
    estamp(a, 3); tag_ready(a)
    if opt("early"): a("s_waitcnt vmcnt(0)"); estamp(a, 4)
    publish(a, 0, 4, 10, 8 if opt('mixed') else 4)
    if opt("early"): estamp(a, 5); a("s_waitcnt vmcnt(0)"); estamp(a, 6)

G1_S, G1_SLOT = 6, 24576
def w1_sweep(a):
    a(f"s_lshl_b32 s23, s53, {2 if opt('mixed') else 1}\ns_add_u32 s23, s23, s3\ns_lshl_b32 s23, s23, 6\nv_add_u32 v2, s23, v1\ns_lshr_b32 s23, s52, 1\ns_mul_i32 s23, s23, 768\ns_mov_b32 s26, 43691")
    for n in range(3):
        a(f"v_add_u32 v3, {4096*n}, v2\nv_mul_u32_u24 v4, s26, v3\nv_lshrrev_b32 v4, 18, v4\nv_mul_u32_u24 v5, {3072-768}, v4\nv_lshl_add_u32 v5, v3, 7, v5\nv_add_u32 v{16+n}, s23, v5")
        if (not opt("noslowcol")) and n > 0:
            a(f"v_and_b32 v5, 0x380, v{16+n}\nv_lshrrev_b32 v4, 10, v4\nv_or_b32 v5, v5, v4\nv_cmp_eq_u32 vcc, 0x181, v5\nv_cndmask_b32_e64 v{16+n}, v{16+n}, -16, vcc")
    srd(a, 4, 4, S_ * 3072)
    a("s_barrier"); estamp(a, 1)
    pre = opt("pre", 2)
    for n in range(3):
        if n == pre: a("s_barrier")
        if not opt("nopfw1"): a(f"buffer_load_dword v{20+n}, v{16+n}, s[4:7], 0 offen")
    if pre == 3: a("s_barrier")
    estamp(a, 2)
    if opt("pfwait"): a("s_waitcnt vmcnt(0)")
    estamp(a, 3)
def g1_loader_w(a):
    a(f"""
    v_lshrrev_b32 v2, 4, v1
    s_lshl_b32 s23, s3, 2
    v_add_u32 v2, s23, v2
    v_lshlrev_b32 v4, 1, v2
    v_and_b32 v3, 15, v1
    v_xor_b32 v3, v3, v4
    v_lshlrev_b32 v3, 4, v3
    v_mul_u32_u24 v2, 3072, v2
    s_lshl_b32 s26, s16, 8
    v_add3_u32 v8, v2, v3, s26
    """)
    for i in range(1, 8): a(f"v_add_u32 v{8+i}, {8*3072*i}, v8")
    a(f"""
    s_mov_b32 s34, s18
    s_lshl_b32 s37, s3, 10
    s_add_u32 s38, s37, {G1_SLOT*G1_S}
    s_mov_b32 s33, 0
    """)
    def issue():
        a(f"s_mul_i32 s40, s34, {64*3072}" if not opt("wwrap") else f"s_and_b32 s40, s34, 3\ns_mul_i32 s40, s40, {64*3072}")
        for i in range(8): a(f"s_add_u32 m0, s37, {2048*i}\n{thr('w', 11)}buffer_load_dwordx4 v{8+i}, s[4:7], s40 offen lds")
        a(f"s_add_u32 s37, s37, {G1_SLOT}\ns_cmp_ge_u32 s37, s38\ns_cselect_b32 s42, {G1_SLOT*G1_S}, 0\ns_sub_u32 s37, s37, s42\ns_add_u32 s34, s34, 1\ns_and_b32 s34, s34, 31")
    w1_sweep(a)
    if not (not opt("s2")): a("s_barrier")
    issue_n(a, G1_S - 2, issue)
    if opt("early"): estamp(a, 4); a("s_waitcnt vmcnt(0)"); estamp(a, 5)
    tag_ready(a); stamp(a, 1)
    steady(a, 32, 8, G1_S - 2, issue)
    if opt("withe"): drain(a, 8, G1_S - 2); stamp(a, 2); a("s_branch Lp2_s")
    else:
        p2s_setup(a)
        a(f"""
        s_waitcnt vmcnt(24)
        s_barrier
        s_waitcnt vmcnt(16)
        s_barrier
        s_mov_b64 exec, 0xff
        buffer_load_dword v2, v12, s[44:47], 0 offen {SC}
        s_waitcnt vmcnt(9)
        s_barrier
        s_waitcnt vmcnt(1)
        s_barrier
        """)
        stamp(a, 2)
        a("s_waitcnt vmcnt(0)\nv_cmp_ne_u32 vcc, s48, v2\ns_mov_b64 exec, -1\ns_cmp_eq_u64 vcc, 0\ns_cbranch_scc0 Lp2_s_e")
        ne = opt("ne", 2)
        issue_n(a, ne, lambda: p2s_issue(a, SC)); a("s_barrier"); stamp(a, 3); issue_n(a, AA - ne, lambda: p2s_issue(a, SC)); a("s_branch Lp2_s_ok")
def g1_loader_h(a):
    a(f"""
    v_lshrrev_b32 v2, 3, v1
    v_and_b32 v3, 7, v1
    v_and_b32 v4, 6, v2
    v_xor_b32 v3, v3, v4
    v_lshlrev_b32 v3, 4, v3
    s_sub_u32 s22, s3, 2
    s_lshl_b32 s23, s22, 3
    v_add_u32 v2, s23, v2
    v_mul_u32_u24 v2, 1280, v2
    s_lshl_b32 s26, s17, 7
    v_add3_u32 v8, v2, v3, s26
    """)
    for i in range(1, 4): a(f"v_add_u32 v{8+i}, {16*1280*i}, v8")
    a(f"""
    s_lshl_b32 s23, s52, 14
    v_lshl_add_u32 v12, v1, 7, s23
    s_mov_b32 s34, s18
    s_lshl_b32 s37, s22, 10
    s_add_u32 s37, s37, 16384
    s_add_u32 s38, s37, {G1_SLOT*G1_S}
    s_mov_b32 s33, 0
    """)
    srd(a, 4, 20, H_SZ, H_OFF)
    def issue():
        a(f"s_mul_i32 s40, s34, {64*1280}" if not opt("hwrap") else f"s_and_b32 s40, s34, 3\ns_mul_i32 s40, s40, {64*1280}")
        for i in range(4): a(f"s_add_u32 m0, s37, {2048*i}\n{thr('h', 5)}buffer_load_dwordx4 v{8+i}, s[4:7], s40 offen {'' if opt('hplain') else SC} lds")
        a(f"s_add_u32 s37, s37, {G1_SLOT}\ns_cmp_ge_u32 s37, s38\ns_cselect_b32 s42, {G1_SLOT*G1_S}, 0\ns_sub_u32 s37, s37, s42\ns_add_u32 s34, s34, 1\ns_and_b32 s34, s34, 31")
    if not opt("mixed"): a("s_barrier\ns_barrier")
    tag_ready(a)
    estamp(a, 1)
    gate(a, 12, (1 << 64) - 1, two=True)
    stamp(a, 1); estamp(a, 3)
    if opt("early"): a("s_add_u32 s78, s70, s49\ns_mov_b32 s79, 0")
    if not (not opt("s2")): a("s_barrier")
    issue_n(a, G1_S - 2, issue)
    steady(a, 22, 4, G1_S - 2, issue)
    a(f"s_lshl_b32 s23, s52, 10\ns_add_u32 s23, s23, {F3}\ns_add_u32 s26, s44, s23\ns_addc_u32 s27, s45, 0")
    for k in range(8):
        if not opt("nosl"): a(f"s_load_dword s{90+k}, s[26:27], {128*k} {'glc' if opt('glc') else ''}")
    steady(a, 32, 4, G1_S - 2, issue)
    if opt("withe"): drain(a, 4, G1_S - 2); stamp(a, 2); a("s_branch Lp2_d")
    else: g1h_drain(a)
def g1_consumer(a):
    L = "Lg1"
    ACC, T = 16, 48
    a(f"""
    s_load_dwordx2 s[24:25], s[0:1], {KA['b1']}
    s_load_dwordx2 s[12:13], s[0:1], {KA['dbg']}
    s_and_b32 s22, s3, 1
    s_lshr_b32 s23, s3, 1
    s_lshl_b32 s26, s16, 8
    s_lshl_b32 s27, s22, 7
    s_add_u32 s26, s26, s27
    v_lshrrev_b32 v2, 4, v1
    v_lshl_add_u32 v3, v2, 3, s26
    s_waitcnt lgkmcnt(0)
    """)
    srd(a, 24, 24, 3072); srd(a, 8, 20, UW_SZ, UW_OFF); srd(a, 12, 12, 256)
    for ft in range(4): a(f"buffer_load_dwordx2 {v(T+2*ft,2)}, v3, s[24:27], 0 offen offset:{32*ft}")
    a(f"""
    s_setprio 0
    v_lshrrev_b32 v5, 2, v1
    v_and_b32 v6, 3, v1
    v_lshlrev_b32 v6, 3, v6
    v_and_b32 v7, 7, v5
    v_lshl_add_u32 v4, v5, 8, v6
    s_lshl_b32 s27, s22, 2
    """)
    for ft in range(4): a(f"s_add_u32 s28, s27, {ft}\nv_xor_b32 v2, s28, v7\nv_lshl_add_u32 v{8+ft}, v2, 5, v4")
    a(f"v_lshrrev_b32 v7, 1, v5\nv_and_b32 v7, 3, v7\nv_lshl_add_u32 v4, v5, 7, v6\nv_add_u32 v4, 16384, v4\ns_lshl_b32 s27, s23, 1")
    for dt in range(2): a(f"s_add_u32 s28, s27, {dt}\nv_xor_b32 v2, s28, v7\nv_lshl_add_u32 v{12+dt}, v2, 5, v4")
    a(f"""
    s_lshl_b32 s28, s17, 2
    s_add_u32 s28, s28, s27
    s_mul_i32 s28, s28, 68
    s_lshl_b32 s29, s16, 2
    s_add_u32 s28, s28, s29
    s_lshl_b32 s29, s22, 1
    s_add_u32 s28, s28, s29
    s_lshl_b32 s28, s28, 10
    v_lshl_add_u32 v14, v1, 4, s28
    s_lshl_b32 s28, s17, 4
    s_add_u32 s28, s28, s16
    s_lshl_b32 s28, s28, 7
    s_add_u32 s28, s28, {F4}
    v_mul_u32_u24 v15, {160*128}, v1
    v_add_u32 v15, s28, v15
    s_mov_b32 s31, 0xffff0000
    s_waitcnt vmcnt(0)
    """)
    for ft in range(4):
        for dt in range(2):
            b = ACC + 8 * ft + 4 * dt
            a(f"v_lshlrev_b32 v{b}, 16, v{T+2*ft}\nv_and_b32 v{b+1}, s31, v{T+2*ft}\nv_lshlrev_b32 v{b+2}, 16, v{T+2*ft+1}\nv_and_b32 v{b+3}, s31, v{T+2*ft+1}")
    SETS = (48, 96)
    def reads(st):
        r = []
        for kk in range(2):
            b = SETS[st] + 24 * kk
            for dt in range(2): r += [(f"ds_read_b64_tr_b16 {v(b+4*dt+2*h,2)}, v{12+dt} offset:{kk*4096+2048*h}", (kk, "b", dt, h)) for h in range(2)]
            for ft in range(4): r += [(f"ds_read_b64_tr_b16 {v(b+8+4*ft+2*h,2)}, v{8+ft} offset:{kk*8192+4096*h}", (kk, "a", ft, h)) for h in range(2)]
        return r
    def mf(st):
        return [(f"v_mfma_f32_16x16x32_bf16 {v(ACC+8*ft+4*dt,4)}, {v(SETS[st]+24*kk+8+4*ft,4)}, {v(SETS[st]+24*kk+4*dt,4)}, {v(ACC+8*ft+4*dt,4)}", {(kk, "a", ft, 1)})
                for kk in range(2) for ft, dt in ([(f, d) for d in range(2) for f in range(4)] if opt("g1ord") else [(f, d) for f in range(4) for d in range(2)])]
    ids = [x[1] for x in reads(0)]
    adv = slot_adv(G1_SLOT, G1_S) + [f"v_add_u32 v{8+i}, s40, v{8+i}" for i in range(6)]
    if not (not opt("s2")): a("s_barrier")
    a("s_mov_b32 s33, 0\ns_mov_b32 s37, 0\ns_barrier"); stamp(a, 2, True)
    emit_step(a, [], [], reads(0), adv)
    a.label(f"{L}_c", 3)
    a("s_barrier")
    emit_step(a, mf(0), ids, reads(1), adv + ["s_add_u32 s33, s33, 2", "s_cmp_ge_u32 s33, 32"])
    a(f"s_cbranch_scc1 {L}_clast\ns_barrier")
    emit_step(a, mf(1), ids, reads(0), adv)
    a(f"s_branch {L}_c")
    a.label(f"{L}_clast")
    a("s_waitcnt lgkmcnt(0)" + ("\ns_barrier" if opt("noe2") else "")); stamp(a, 3, True); lstamp(a, 1)
    emit_step(a, mf(1), [], [], [])
    La = uid("Lna")
    a(f"s_cmp_lg_u32 s3, 0\ns_cbranch_scc1 {La}"); arrive_issue(a, 144); a.label(La)
    c0 = -2 * 0.7978845608028654 * LOG2E; c1 = c0 * 0.044715
    lstamp(a, 2)
    a(f"v_mov_b32 v2, {f2u(c0)}\nv_mov_b32 v4, {f2u(c1)}\nv_mov_b32 v6, 1.0\ns_nop 4")
    for p in range(2):
        for dt in range(2):
            o = 72 + 4 * (2 * p + dt)
            prs = [ACC + 8 * (2 * p + h) + 4 * dt + 2 * q for h in range(2) for q in range(2)]
            for i, b in enumerate(prs): a(f"v_pk_mul_f32 {v(T+2*i,2)}, {v(b,2)}, {v(b,2)}")
            for i, b in enumerate(prs): a(f"v_pk_fma_f32 {v(T+2*i,2)}, {v(T+2*i,2)}, v[4:5], v[2:3] op_sel_hi:[1,0,0]")
            for i, b in enumerate(prs): a(f"v_pk_mul_f32 {v(T+2*i,2)}, {v(T+2*i,2)}, {v(b,2)}")
            for i in range(8): a(f"v_exp_f32 v{T+i}, v{T+i}")
            for i, b in enumerate(prs): a(f"v_pk_add_f32 {v(T+2*i,2)}, {v(T+2*i,2)}, v[6:7] op_sel_hi:[1,0]")
            for i in range(8): a(f"v_rcp_f32 v{T+i}, v{T+i}")
            for i, b in enumerate(prs): a(f"v_pk_mul_f32 {v(T+2*i,2)}, {v(T+2*i,2)}, {v(b,2)}")
            for i in range(4): a(f"v_cvt_pk_bf16_f32 v{o+i}, v{T+2*i}, v{T+2*i+1}")
            if p == 0 and dt == 0: a("s_setprio 2")
            a(f"s_mov_b32 s29, {dt*68*1024}\nbuffer_store_dwordx4 {v(o,4)}, v14, s[8:11], s29 offen offset:{1024*p} {SC}")
    lstamp(a, 3)
    if not opt("noe2"): a("s_barrier")
    if opt("late"): a("s_waitcnt vmcnt(0)"); lstamp(a, 4)
    publish(a, 4, 4, 15, 4)
    if opt("late"): lstamp(a, 5); a("s_waitcnt vmcnt(0)"); lstamp(a, 6)
    La = uid("Lna")
    a(f"s_cmp_lg_u32 s3, 0\ns_cbranch_scc1 {La}"); arrive_finish(a, 144); a.label(La)
    stamp(a, 4, True)

def spare_loader(a):
    a(f"""
    s_load_dwordx2 s[4:5], s[0:1], {KA['wo']}
    s_load_dwordx2 s[12:13], s[0:1], {KA['w2']}
    v_lshrrev_b32 v2, 3, v1
    v_and_b32 v3, 7, v1
    v_and_b32 v4, 6, v2
    v_xor_b32 v3, v3, v4
    v_lshlrev_b32 v14, 4, v3
    v_mul_u32_u24 v15, 1280, v2
    v_add_u32 v15, v15, v14
    v_lshrrev_b32 v3, 2, v2
    v_lshl_add_u32 v3, v3, 4, v2
    v_add_u32 v3, 16, v3
    v_mul_u32_u24 v3, 1280, v3
    v_add_u32 v14, v14, v3
    s_mul_i32 s23, s3, {7*4096}
    v_lshrrev_b32 v5, 2, v1
    v_lshrrev_b32 v6, 1, v5
    v_and_b32 v6, 3, v6
    v_lshlrev_b32 v5, 7, v5
    v_and_b32 v7, 3, v1
    v_lshlrev_b32 v7, 3, v7
    v_add3_u32 v5, v5, v7, s23
    """)
    for t in range(4): a(f"v_xor_b32 v7, {t}, v6\nv_lshl_add_u32 v{8+t}, v7, 5, v5")
    a(f"v_lshlrev_b32 v12, 4, v1\ns_lshl_b32 s26, s16, 7\ns_add_u32 s26, s26, {F3}\nv_lshl_add_u32 v13, v1, 10, s26")
    tag_ready(a)
    srd(a, 4, 4, 640 * 1280); srd(a, 8, 20, UW_SZ, UW_OFF); srd(a, 12, 12, F_ * 4096)
    def task():
        a("s_lshl_b32 s26, s33, 2\ns_add_u32 s26, s26, s3\ns_min_u32 s26, s26, 24\ns_mul_i32 s27, s16, 25\ns_add_u32 s27, s27, s26\ns_mul_i32 s26, s27, 6554\ns_lshr_b32 s26, s26, 16\ns_mul_i32 s28, s26, 10\ns_sub_u32 s27, s27, s28")
    L = uid("Lwo")
    a("s_mov_b32 s33, 0"); a.label(L); task()
    for half in range(2):
        a(f"""
        s_lshl_b32 s28, s26, 1
        s_add_u32 s28, s28, {half}
        s_mul_i32 s29, s28, 52
        s_lshr_b32 s29, s29, 8
        s_mul_i32 s30, s29, 5
        s_sub_u32 s28, s28, s30
        s_mul_i32 s29, s29, 80
        s_mul_i32 s30, s28, 20
        s_cmp_eq_u32 s28, 4
        s_cselect_b64 vcc, -1, 0
        s_cselect_b32 s30, 0, s30
        s_cselect_b32 s31, 40, 8
        s_mul_i32 s31, s31, 1280
        s_add_u32 s29, s29, s30
        s_mul_i32 s28, s29, 1280
        s_lshl_b32 s29, s27, 7
        s_add_u32 s28, s28, s29
        v_cndmask_b32 v2, v15, v14, vcc
        """)
        for i in range(2): a(f"s_add_u32 m0, s23, {2048*half+1024*i}\nbuffer_load_dwordx4 v2, s[4:7], s28 offen lds\ns_add_u32 s28, s28, s31")
    a(f"s_add_u32 s23, s23, 4096\ns_add_u32 s33, s33, 1\ns_cmp_lt_u32 s33, 7\ns_cbranch_scc1 {L}\ns_waitcnt vmcnt(0)\ns_mov_b32 s33, 0")
    L = uid("Lwo"); a.label(L); task()
    for t in range(4): a(f"ds_read_b64_tr_b16 {v(16+4*t,2)}, v{8+t}\nds_read_b64_tr_b16 {v(18+4*t,2)}, v{8+t} offset:2048\nv_add_u32 v{8+t}, 4096, v{8+t}")
    a(f"s_lshl_b32 s28, s27, 2\ns_mul_i32 s28, s28, 68\ns_add_u32 s28, s28, s26\ns_add_u32 s28, s28, 48\ns_lshl_b32 s28, s28, 10")
    for t in range(4): a(f"s_waitcnt lgkmcnt({6-2*t})\nbuffer_store_dwordx4 {v(16+4*t,4)}, v12, s[8:11], s28 offen {SC}\ns_add_u32 s28, s28, {68*1024}")
    a(f"s_add_u32 s33, s33, 1\ns_cmp_lt_u32 s33, 7\ns_cbranch_scc1 {L}")
    publish(a, 8, 4, 13, 8)
    stamp(a, 1)
    if opt("spw2"):
        L = uid("Lw2")
        a(f"""
        s_and_b32 s22, s16, 1
        s_lshl_b32 s22, s22, 2
        s_add_u32 s22, s22, s3
        s_lshl_b32 s22, s22, 3
        v_lshrrev_b32 v2, 3, v1
        v_add_u32 v2, s22, v2
        v_lshlrev_b32 v2, 12, v2
        v_and_b32 v3, 7, v1
        v_lshl_add_u32 v2, v3, 7, v2
        s_lshr_b32 s22, s52, 1
        s_lshl_b32 s22, s22, 10
        s_mov_b32 s33, 0
        {L}:
        buffer_load_dword v30, v2, s[12:15], s22 offen
        s_add_u32 s22, s22, {64*4096}
        s_add_u32 s33, s33, 1
        s_cmp_lt_u32 s33, 24
        s_cbranch_scc1 {L}
        """)
    h0 = opt("sph", 14)
    if h0:
        L = uid("Lsh"); n = ((32 - h0 + 1) // 2 * 10 + 7) // 8
        srd(a, 4, 20, H_SZ, H_OFF)
        a(f"s_lshl_b32 s23, s52, 14\nv_lshl_add_u32 v12, v1, 7, s23")
        gate(a, 12, (1 << 64) - 1, two=True)
        a(f"""
        s_and_b32 s22, s16, 1
        s_lshl_b32 s22, s22, 2
        s_add_u32 s22, s22, s3
        v_lshlrev_b32 v2, 7, v1
        s_mov_b32 s33, 0
        {L}:
        s_mul_i32 s23, s22, 6554
        s_lshr_b32 s23, s23, 16
        s_mul_i32 s23, s23, {64*1280}
        s_lshl_b32 s26, s22, 13
        s_add_u32 s23, s23, s26
        s_add_u32 s23, s23, {h0*64*1280}
        buffer_load_dword v30, v2, s[4:7], s23 offen {SC}
        s_add_u32 s22, s22, 8
        s_add_u32 s33, s33, 1
        s_cmp_lt_u32 s33, {n}
        s_cbranch_scc1 {L}
        """)
    nw = opt("c3", 2)
    if nw:
        L = uid("Lc3")
        a(f"""
        s_cmp_ge_u32 s3, {nw}
        s_cbranch_scc1 {L}d
        s_and_b32 s22, s16, 1
        s_mul_i32 s22, s22, {nw}
        s_add_u32 s22, s22, s3
        s_lshl_b32 s22, s22, 6
        v_add_u32 v2, s22, v1
        v_lshlrev_b32 v2, 12, v2
        s_lshr_b32 s22, s52, 1
        s_lshl_b32 s22, s22, 10
        s_add_u32 s22, s22, 384
        s_mov_b32 s33, 0
        {L}:
        buffer_load_dword v30, v2, s[12:15], s22 offen
        s_add_u32 s22, s22, {128*nw*4096}
        s_add_u32 s33, s33, 1
        s_cmp_lt_u32 s33, {12//nw}
        s_waitcnt vmcnt(0)
        s_cbranch_scc1 {L}
        {L}d:
        """)
    stamp(a, 2)

QA_S, QA_SLOT, QA_W = 3, 49152, 18432
def qa_w1_sweep(a):
    if not opt("qsw"): return
    a(f"""
    s_load_dwordx2 s[12:13], s[0:1], {KA['w1']}
    s_lshr_b32 s22, s2, 1
    s_lshl_b32 s22, s22, 2
    s_add_u32 s22, s22, s3
    s_lshl_b32 s23, s22, 12
    s_lshl_b32 s22, s22, 13
    s_add_u32 s23, s23, {512*8192}
    v_lshlrev_b32 v2, 7, v1
    s_waitcnt lgkmcnt(0)
    """)
    srd(a, 12, 12, S_ * 3072)
    a("buffer_load_dword v32, v2, s[12:15], s22 offen\ns_mov_b32 exec_hi, 0\nbuffer_load_dword v33, v2, s[12:15], s23 offen\ns_mov_b32 exec_hi, -1")
def w2_setup(a):
    a(f"""
    s_load_dwordx2 s[24:25], s[0:1], {KA['w2']}
    v_lshrrev_b32 v2, 3, v1
    s_lshl_b32 s22, s53, 3
    v_add_u32 v2, s22, v2
    v_lshlrev_b32 v2, 12, v2
    v_and_b32 v3, 7, v1
    v_lshl_add_u32 v2, v3, 7, v2
    s_lshr_b32 s22, s52, 1
    s_lshl_b32 s22, s22, 10
    v_add_u32 v29, s22, v2
    s_waitcnt lgkmcnt(0)
    """)
    srd(a, 24, 24, F_ * 4096)
def w2_last(a):
    if not opt("nopfw2"): a("s_lshl_b32 s22, s3, 20\nbuffer_load_dword v30, v29, s[24:27], s22 offen")
def qa_loader(a):
    a(f"v_lshrrev_b32 v2, 3, v1\ns_lshl_b32 s23, s3, 3\nv_add_u32 v2, s23, v2\ns_lshl_b32 s26, s16, 7\ns_sub_u32 s26, s26, 16\nv_and_b32 v3, 7, v1")
    for i in range(6):
        a(f"v_add_u32 v4, {24*i}, v2\nv_lshrrev_b32 v5, 1, v4\nv_and_b32 v5, 7, v5\nv_xor_b32 v5, v5, v3\nv_add_u32 v4, s26, v4\nv_max_i32 v4, 0, v4\nv_mul_u32_u24 v4, 1280, v4\nv_lshl_add_u32 v{8+i}, v5, 4, v4")
    a(f"s_mul_i32 s23, s3, 320\ns_mul_i32 s26, s17, 160\nv_add_u32 v2, s23, v1")
    for i in range(5):
        a(f"""
        v_add_u32 v3, {64*i}, v2
        v_mul_u32_u24 v4, 2185, v3
        v_lshrrev_b32 v4, 16, v4
        v_mul_u32_u24 v5, 30, v4
        v_sub_u32 v3, v3, v5
        v_mul_u32_u24 v5, 26, v3
        v_lshrrev_b32 v5, 8, v5
        v_mul_u32_u24 v5, {1280-160}, v5
        v_lshl_add_u32 v3, v3, 4, v5
        v_and_b32 v5, 12, v4
        v_lshlrev_b32 v5, 1, v5
        v_lshrrev_b32 v6, 4, v4
        v_lshl_add_u32 v5, v6, 2, v5
        v_and_b32 v4, 3, v4
        v_add_u32 v4, v4, v5
        v_mul_u32_u24 v4, 3840, v4
        v_add3_u32 v{16+i}, v4, v3, s26
        """)
    a(f"s_mov_b32 s34, s18\ns_mov_b32 s37, 0\ns_lshl_b32 s38, s3, 10\ns_mul_i32 s39, s3, 5120\ns_add_u32 s39, s39, {QA_W}\ns_mov_b32 s33, 0")
    srd(a, 4, 4, H_SZ); srd(a, 8, 8, 640 * 3840)
    def issue(half=None):
        if half != 1: a(f"s_lshl_b32 s40, s34, 7\ns_mul_i32 s41, s34, {64*3840}\ns_add_u32 s42, s37, s38\ns_add_u32 s43, s37, s39\ns_add_u32 s36, s41, {32*3840}")
        if half != 1:
            for i in range(3): a(f"s_add_u32 m0, s42, {3072*i}\nbuffer_load_dwordx4 v{8+i}, s[4:7], s40 offen lds")
            for i in range(5): a(f"s_add_u32 m0, s43, {1024*i}\nbuffer_load_dwordx4 v{16+i}, s[8:11], s41 offen lds")
        if half != 0:
            for i in range(3, 6): a(f"s_add_u32 m0, s42, {3072*i}\nbuffer_load_dwordx4 v{8+i}, s[4:7], s40 offen lds")
            for i in range(5): a(f"s_add_u32 m0, s43, {15360+1024*i}\nbuffer_load_dwordx4 v{16+i}, s[8:11], s36 offen lds")
            a(f"s_add_u32 s37, s37, {QA_SLOT}\ns_cmp_ge_u32 s37, {QA_SLOT*QA_S}\ns_cselect_b32 s37, 0, s37\ns_add_u32 s34, s34, 1\ns_cmp_ge_u32 s34, 10\ns_cselect_b32 s34, 0, s34")
    if opt("lateb0"):
        issue_n(a, 2, issue); tag_ready(a); w2_setup(a); stamp(a, 1)
    else:
        issue(); issue(0); a("s_waitcnt vmcnt(8)\ns_barrier"); issue(1); issue(); a("s_mov_b32 s33, 3")
        tag_ready(a); w2_setup(a); stamp(a, 1)
    steady(a, 10, 16, QA_S - 1, issue); drain(a, 16, QA_S - 1)
    stamp(a, 2); w2_last(a)
def qa_idle(a):
    code_prefetch(a); tag_ready(a); w2_setup(a)
    at = (opt("w2a", 5), opt("w2b", 7))
    for i in range(10):
        a("s_barrier")
        for k in range(2):
            if at[k] == i and not opt("nopfw2"): a(f"s_mov_b32 s22, {(4+k) << 20}\nbuffer_load_dword v30, v29, s[24:27], s22 offen")
    w2_last(a)
def qa_consumer(a):
    L = "Lqa"
    AQ, AK, AR, AV, AW = 16, 48, 88, 108, 148
    XF, WB = 168, 208
    M0, M1, MF, PM, TM = 224, 228, 232, 236, 240
    NB, DD = 4, opt("dd", 2)
    a(f"""
    s_load_dwordx2 s[12:13], s[0:1], {KA['dbg']}
    s_lshr_b32 s28, s3, 1
    s_and_b32 s29, s3, 1
    v_and_b32 v2, 15, v1
    v_lshrrev_b32 v3, 4, v1
    v_lshrrev_b32 v4, 1, v2
    v_xor_b32 v4, v4, v3
    v_lshlrev_b32 v4, 4, v4
    v_lshl_add_u32 v4, v2, 7, v4
    s_lshl_b32 s23, s28, 13
    v_add_u32 v8, s23, v4
    v_xor_b32 v9, 64, v8
    v_lshrrev_b32 v5, 2, v1
    v_mul_u32_u24 v5, 480, v5
    s_mul_i32 s23, s29, 80
    s_add_u32 s23, s23, {QA_W}
    v_add_u32 v5, s23, v5
    v_and_b32 v4, 3, v1
    v_lshl_add_u32 v10, v4, 3, v5
    v_and_b32 v6, 1, v1
    v_mul_u32_u24 v6, 40, v6
    v_add3_u32 v13, v6, v5, 32
    v_lshrrev_b32 v4, 1, v4
    v_mul_u32_u24 v4, 160, v4
    v_add_u32 v11, v4, v13
    """)
    if opt("zv"):
        a(f"v_and_b32 v4, 3, v1\nv_lshrrev_b32 v4, 1, v4\nv_cmp_ne_u32 s[98:99], s29, v4")
    for i in range(AQ, XF): a(f"v_mov_b32 v{i}, 0")
    a(f"v_lshlrev_b32 v4, 2, v3\nv_sub_u32 v4, v2, v4\nv_mov_b32 v5, {f2u(-1e30)}")
    for r in range(4):
        a(f"""
        v_subrev_u32 v15, {r}, v4
        v_and_b32 v15, 0x80000001, v15
        v_cmp_eq_u32 vcc, 0, v15
        v_cndmask_b32_e64 v{M1+r}, v5, 0, vcc
        v_cndmask_b32_e64 v{TM+4+r}, 0, -1, vcc
        v_cmp_eq_u32 vcc, 0x80000000, v15
        v_cndmask_b32_e64 v{M0+r}, v5, 0, vcc
        v_cndmask_b32_e64 v{TM+r}, 0, -1, vcc
        """)
    a("s_mov_b32 s30, 0xffff")
    for i in range(4): a(f"v_bfi_b32 v{PM+i}, s30, v{TM+2*i}, v{TM+2*i+1}")
    a(f"s_or_b32 s23, s16, s28\ns_cmp_eq_u32 s23, 0\ns_cselect_b64 vcc, -1, 0")
    for r in range(4): a(f"v_cndmask_b32 v{MF+r}, v{M0+r}, v5, vcc")
    GM = 90
    for j in range(2): a(f"v_cmp_eq_u32 s[{GM+2*j}:{GM+1+2*j}], {j}, v3")
    a(f"""
    v_and_b32 v4, 1, v3
    v_cmp_eq_u32 s[94:95], 1, v4
    s_cmp_eq_u32 s29, 0
    s_cselect_b32 s96, -1, 0
    s_cselect_b32 s97, 0, -1
    s_lshl_b32 s23, s16, 3
    s_lshl_b32 s26, s28, 2
    s_add_u32 s23, s23, s26
    s_mul_i32 s23, s23, 40
    s_mul_i32 s26, s17, 5
    s_add_u32 s23, s23, s26
    s_lshl_b32 s23, s23, 9
    v_lshl_add_u32 v15, v1, 3, s23
    s_lshl_b32 s26, s29, 10
    v_add_u32 v12, s26, v15
    s_lshl_b32 s23, s16, 4
    s_add_u32 s23, s23, s17
    s_lshl_b32 s23, s23, 7
    s_add_u32 s23, s23, {F2}
    v_lshl_add_u32 v14, v1, 10, s23
    s_mov_b32 s31, {f2u(20 ** -0.5 * LOG2E)}
    s_mov_b32 s33, 0
    s_mov_b32 s37, 0
    s_waitcnt lgkmcnt(0)
    """)
    srd(a, 4, 20, OT_SZ, OT_OFF); srd(a, 12, 12, 256); tag_ready(a)
    U = [("q", 0), ("q", 1), ("k", 0), ("k", 1), ("r", 0), ("v", 0), ("v", 1), ("w", 0)]
    NU = len(U); UU = 2 * NU
    def xread(kk): return [f"ds_read_b128 {v(XF+20*kk+4*t,4)}, v{8+kk} offset:{2048*t}" for t in (1, 2, 3, 4, 0)]
    def wread(u):
        kk, c = divmod(u, NU); p, j = U[c]; b = WB + 4 * (u % NB)
        ad, off = {"q": (10, 40 * j), "k": (10, 160 + 40 * j), "v": (10, 320 + 40 * j), "r": (11, 0), "w": (13, 320)}[p]
        off += kk * 15360
        return [f"ds_read_b64_tr_b16 {v(b,2)}, v{ad} offset:{off}", f"ds_read_b64_tr_b16 {v(b+2,2)}, v{ad} offset:{off+7680}"]
    def acc(p, j, t): return {"q": AQ + 8 * (t - 1) + 4 * j, "k": AK + 8 * t + 4 * j, "r": AR + 4 * t, "v": AV + 20 * j + 4 * t, "w": AW + 4 * t}[p]
    def mf(u):
        kk, c = divmod(u, NU); p, j = U[c]; w = v(WB + 4 * (u % NB), 4); r = []
        for t in ((1, 2, 3, 4) if p == "q" else (1, 2, 3, 4, 0)):
            x = v(XF + 20 * kk + 4 * t, 4); d = v(acc(p, j, t), 4)
            r.append(f"v_mfma_f32_16x16x32_bf16 {d}, {w}, {x}, {d}" if p in "qkr" else f"v_mfma_f32_16x16x32_bf16 {d}, {x}, {w}, {d}")
        return r
    stamp(a, 1, True); a("s_barrier"); stamp(a, 2, True)
    for t in xread(0): a(t)
    for u in range(DD):
        for t in wread(u): a(t)
    a(f"s_waitcnt lgkmcnt({2*DD-2})")
    a.label(f"{L}_c", 3)
    q = []
    for u in range(1, DD): q += [u, u]
    misc = slot_adv(QA_SLOT, QA_S) + ["s_add_u32 s33, s33, 1", "s_cmp_ge_u32 s33, 10"]
    x1 = xread(1)
    for u in range(UU):
        nx = u + DD; fill = []
        if nx == UU: fill += [(t, UU) for t in xread(0)]
        fill += [(t, nx) for t in wread(nx % UU)]
        if 1 <= u < NU - 1 and x1: fill.append((x1.pop(0), NU))
        ms = mf(u)
        if nx == UU:
            a(f"s_waitcnt lgkmcnt(0)\ns_barrier\ns_cbranch_scc1 {L}_clast"); q = []
        per = -(-len(fill) // len(ms))
        for i, m in enumerate(ms):
            a(m)
            for t, tag in fill[i*per:(i+1)*per]: a(t); q.append(tag)
            if i == len(ms) - 2 and misc and u >= 2: a(misc.pop(0))
            if i >= 2 and nx == UU - 1:
                for r in ((8, 9), (10, 11), (13,))[i - 2]: a(f"v_add_u32 v{r}, s40, v{r}")
        if any(t <= u + 1 for t in q) and nx != UU - 1:
            last = max(i for i, t in enumerate(q) if t <= u + 1)
            q = q[last + 1:]
            a(f"s_waitcnt lgkmcnt({len(q)})")
    assert not misc and not x1 and len(q) == 2 * DD - 2, (misc, x1, q)
    a(f"s_branch {L}_c")
    a.label(f"{L}_clast"); stamp(a, 3, True); lstamp(a, 1)
    for u in range(UU - DD, UU):
        for m in mf(u): a(m)
    La = uid("Lna")
    a(f"s_cmp_lg_u32 s3, 0\ns_cbranch_scc1 {La}"); arrive_issue(a, 6); a.label(La)
    cv = lambda d, s0: a(f"v_cvt_pk_bf16_f32 v{d}, v{s0}, v{s0+1}")
    for t in range(5):
        r = AR + 4 * t; ka = acc("k", 0, t); kb = acc("k", 1, t)
        for b in (ka, kb, r): cv(b, b); cv(b + 1, b + 2)
        a(f"v_mov_b32 v{ka+2}, 0\nv_mov_b32 v{ka+3}, 0")
    for t in range(5):
        r = AR + 4 * t; ka = acc("k", 0, t)
        a(f"v_permlane32_swap_b32 v{r}, v{ka+2}\nv_permlane32_swap_b32 v{r+1}, v{ka+3}")
    for t in range(5):
        ka = acc("k", 0, t); kb = acc("k", 1, t); r = AR + 4 * t
        a(f"v_mov_b32 v{kb+2}, v{ka+2}\nv_mov_b32 v{kb+3}, v{ka+3}")
        if t:
            for j in range(2):
                b = acc("q", j, t); cv(b, b); cv(b + 1, b + 2)
                a(f"v_cndmask_b32 v{b+2}, 0, v{r}, s[{GM+2*j}:{GM+1+2*j}]\nv_cndmask_b32 v{b+3}, 0, v{r+1}, s[{GM+2*j}:{GM+1+2*j}]")
    lstamp(a, 2)
    UN = [(t, j) for t in range(1, 5) for j in range(2)]
    SRS = [XF + 8 * n for n in range(7)] + [TM + 8]
    for n, (t, j) in enumerate(UN):
        qf = v(acc("q", j, t), 4)
        a(f"v_mfma_f32_16x16x32_bf16 {v(SRS[n],4)}, {v(acc('k',j,t-1),4)}, {qf}, {v(MF if t == 1 else M0,4)}")
        a(f"v_mfma_f32_16x16x32_bf16 {v(SRS[n]+4,4)}, {v(acc('k',j,t),4)}, {qf}, {v(M1,4)}")
    for b in (AV, AV + 20, AW):
        for i in range(10): cv(b + i, b + 2 * i)
    VA, VB, X = AQ, AQ + 8, AQ + 16
    P = [AK + 4 * n for n in range(8)]
    for n in range(8): s_ = SRS[n]; a(f"v_max3_f32 v{VA+n}, v{s_}, v{s_+1}, v{s_+4}\nv_max3_f32 v{VB+n}, v{s_+2}, v{s_+3}, v{s_+6}")
    for n in range(8): s_ = SRS[n]; a(f"v_max_f32 v{VA+n}, v{VA+n}, v{s_+5}\nv_max_f32 v{VB+n}, v{VB+n}, v{s_+7}")
    def both(f): return [f(X), f(X + 4)]
    def seq(*steps):
        for st in steps:
            for x in (X, X + 4): a(st(x))
    def xred(op):
        seq(lambda x: f"v_permlane32_swap_b32 v{x}, v{x+1}\nv_permlane32_swap_b32 v{x+2}, v{x+3}",
            lambda x: f"{op} v{x}, v{x}, v{x+1}\n{op} v{x+2}, v{x+2}, v{x+3}",
            lambda x: f"v_permlane16_swap_b32 v{x}, v{x+2}", lambda x: f"{op} v{x}, v{x}, v{x+2}")
    def xbc():
        seq(lambda x: f"v_mov_b32 v{x+2}, v{x}", lambda x: f"v_permlane16_swap_b32 v{x}, v{x+2}",
            lambda x: f"v_mov_b32 v{x+1}, v{x}\nv_mov_b32 v{x+3}, v{x+2}",
            lambda x: f"v_permlane32_swap_b32 v{x}, v{x+1}\nv_permlane32_swap_b32 v{x+2}, v{x+3}")
    for n in range(8): a(f"v_max_f32 v{X+n}, v{VA+n}, v{VB+n}")
    xred("v_max_f32"); seq(lambda x: f"v_mul_f32 v{x}, s31, v{x}"); xbc()
    for n in range(8): a(f"v_fma_f32 v{VA+n}, v{VA+n}, s31, -v{X+n}\nv_fma_f32 v{VB+n}, v{VB+n}, s31, -v{X+n}")
    for n in range(8): a(f"v_exp_f32 v{VA+n}, v{VA+n}\nv_exp_f32 v{VB+n}, v{VB+n}")
    for n in range(8): a(f"v_add_f32 v{X+n}, v{VA+n}, v{VB+n}")
    xred("v_add_f32"); seq(lambda x: f"v_rcp_f32 v{x}, v{x}"); xbc()
    for n in range(8): a(f"v_mul_f32 v{VA+n}, v{VA+n}, v{X+n}\nv_mul_f32 v{VB+n}, v{VB+n}, v{X+n}")
    for n in range(8): a(f"v_cvt_pk_bf16_f32 v{VA+n}, v{VA+n}, v{VA+n}\nv_cvt_pk_bf16_f32 v{VB+n}, v{VB+n}, v{VB+n}")
    a("s_setprio 2")
    for n, (t, j) in enumerate(UN):
        p = P[n]
        a(f"v_and_b32 v{p}, v{VA+n}, v{PM}\nv_and_b32 v{p+1}, v{VB+n}, v{PM+1}\nv_and_b32 v{p+2}, v{VA+n}, v{PM+2}\nv_and_b32 v{p+3}, v{VB+n}, v{PM+3}")
        if n:
            t0, j0 = UN[n - 1]
            a(f"v_mfma_f32_16x16x32_bf16 {v(SRS[n-1],4)}, {v(AV+20*j0+2*(t0-1),4)}, {v(P[n-1],4)}, 0")
            a(f"v_mfma_f32_16x16x32_bf16 {v(SRS[n-1]+4,4)}, {v(AW+2*(t0-1),4)}, {v(P[n-1],4)}, 0")
    a(f"v_mfma_f32_16x16x32_bf16 {v(SRS[7],4)}, {v(AV+20+6,4)}, {v(P[7],4)}, 0\nv_mfma_f32_16x16x32_bf16 {v(SRS[7]+4,4)}, {v(AW+6,4)}, {v(P[7],4)}, 0")
    O = AQ
    for t in range(1, 5):
        n = 2 * (t - 1); o = O + 6 * (t - 1)
        a(f"s_mov_b32 s29, {40*512*(t-1)}")
        for j in range(2):
            cv(o + 2 * j, SRS[n + j]); cv(o + 2 * j + 1, SRS[n + j] + 2)
            a(f"buffer_store_dwordx2 {v(o+2*j,2)}, v12, s[4:7], s29 offen offset:{512*j} {SC}")
        for r in range(4): a(f"v_cndmask_b32 v{SRS[n]+4+r}, v{SRS[n]+4+r}, v{SRS[n+1]+4+r}, s[94:95]")
        cv(o + 4, SRS[n] + 4); cv(o + 5, SRS[n] + 6)
        a(f"s_mov_b64 exec, s[96:97]\nbuffer_store_dwordx2 {v(o+4,2)}, v15, s[4:7], s29 offen offset:2048 {SC}\ns_mov_b64 exec, -1")
    lstamp(a, 3)
    if opt("late"): a("s_waitcnt vmcnt(0)"); lstamp(a, 4)
    publish(a, 4, 4, 14, 2)
    if opt("late"): lstamp(a, 5); a("s_waitcnt vmcnt(0)"); lstamp(a, 6)
    La = uid("Lna")
    a(f"s_cmp_lg_u32 s3, 0\ns_cbranch_scc1 {La}"); arrive_finish(a, 6); a.label(La)
    stamp(a, 4, True)

P2_S, P2_SLOT = 8, 18432
def p2_common_adv():
    return f"s_add_u32 s37, s37, {P2_SLOT}\ns_cmp_ge_u32 s37, s38\ns_cselect_b32 s42, {P2_SLOT*P2_S}, 0\ns_sub_u32 s37, s37, s42\ns_add_u32 s34, s34, 1\ns_cmp_ge_u32 s34, s35\ns_cselect_b32 s34, 0, s34"
def p2_phase(a, sreg, n):
    st = opt("stagp", 0) if n == 24 else opt("stagpa", 0)
    if st: a(f"s_lshr_b32 s22, s2, 3\ns_lshr_b32 s23, s22, 3\ns_lshl_b32 s23, s23, 1\ns_add_u32 s22, s22, s23\ns_and_b32 s22, s22, 7\ns_mul_i32 s22, s22, {n}\ns_lshr_b32 s{sreg}, s22, 3")
    else: a(f"s_mov_b32 s{sreg}, 0")
P2_0 = 3 * P2_SLOT
AA = 5
def p2s_setup(a):
    a(f"""
    s_load_dwordx2 s[12:13], s[0:1], {KA['w2']}
    v_lshrrev_b32 v2, 3, v1
    v_and_b32 v3, 7, v1
    v_and_b32 v4, 6, v2
    v_xor_b32 v3, v3, v4
    v_lshlrev_b32 v3, 4, v3
    v_lshl_add_u32 v2, v2, 12, v3
    s_lshl_b32 s23, s3, 17
    s_lshl_b32 s26, s50, 7
    s_add_u32 s23, s23, s26
    v_add_u32 v8, s23, v2
    """)
    for i in range(1, 4): a(f"v_add_u32 v{8+i}, {8*4096*i}, v8")
    a(f"s_lshl_b32 s23, s50, 2\ns_mul_i32 s23, s23, 40\ns_lshl_b32 s26, s3, 1\ns_add_u32 s23, s23, s26\ns_lshl_b32 s23, s23, 9\nv_lshl_add_u32 v16, v1, 4, s23")
    for i in range(1, 4): a(f"v_add_u32 v{16+i}, {40*512*i}, v16")
    a(f"s_and_b32 s23, s50, -2\ns_and_b32 s26, s52, 1\ns_add_u32 s23, s23, s26\ns_lshl_b32 s23, s23, 10\ns_add_u32 s23, s23, {F2}\nv_lshl_add_u32 v12, v1, 7, s23")
    a(f"s_mov_b32 s34, 0\ns_mov_b32 s35, 10\ns_lshl_b32 s37, s3, 12\ns_add_u32 s38, s37, {P2_SLOT*P2_S}\ns_add_u32 s37, s37, {P2_0}\ns_mov_b32 s33, 0\ns_waitcnt lgkmcnt(0)")
    srd(a, 4, 20, OT_SZ, OT_OFF)
def p2s_issue(a, sc):
    a(f"s_lshl_b32 s40, s34, {11 if sc else 18}")
    for i in range(4): a(f"s_add_u32 m0, s37, {1024*i}\nbuffer_load_dwordx4 v{(16 if sc else 8)+i}, s[4:7], s40 offen {sc} lds")
    a(p2_common_adv())
def p2_loader_s(a):
    AH = P2_S - 2
    p2s_setup(a)
    a.label("Lp2_s_e")
    a("s_barrier")
    gate(a, 12, 0xff)
    stamp(a, 3)
    issue = lambda sc: p2s_issue(a, sc)
    issue_n(a, AA, lambda: issue(SC))
    a.label("Lp2_s_ok")
    steady(a, 10, 4, AA, lambda: issue(SC))
    srd(a, 4, 12, F_ * 4096); a("s_mov_b32 s35, 24\ns_mov_b32 s34, 0")
    a(f"s_waitcnt vmcnt({4*(AA-1)})\ns_barrier"); issue_n(a, AH - AA + 1, lambda: issue(""))
    steady(a, 34, 4, AH, lambda: issue(""))
    stamp(a, 5)
    drain(a, 4, AH)
    endp(a)
def p2d_setup(a):
    a(f"s_sub_u32 s22, s3, 2\ns_mul_i32 s23, s51, {5*68}\ns_add_u32 s23, s23, s22\ns_lshl_b32 s23, s23, 10\nv_lshl_add_u32 v8, v1, 4, s23")
    for i in range(1, 5): a(f"v_add_u32 v{8+i}, {68*1024*i}, v8")
    a(f"""
    s_mul_i32 s37, s22, 5120
    s_add_u32 s37, s37, 8192
    s_add_u32 s38, s37, {P2_SLOT*P2_S}
    s_add_u32 s37, s37, {P2_0}
    s_lshl_b32 s23, s52, 10
    s_add_u32 s23, s23, {F3}
    v_lshl_add_u32 v14, v1, 7, s23
    s_mul_i32 s23, s51, 5
    s_lshr_b32 s23, s23, 2
    s_lshl_b32 s23, s23, 11
    s_lshr_b32 s26, s52, 1
    s_mul_i32 s26, s26, {160*128}
    s_add_u32 s23, s23, s26
    s_add_u32 s23, s23, {F4}
    v_lshl_add_u32 v15, v1, 7, s23
    s_mov_b32 s34, 0
    s_mov_b32 s35, 10
    s_mov_b32 s36, 48
    s_mov_b32 s33, 0
    """)
    srd(a, 8, 20, UW_SZ, UW_OFF)
def p2d_issue(a):
    a("s_lshl_b32 s41, s34, 1\ns_add_u32 s41, s41, s36\ns_lshl_b32 s41, s41, 10")
    for i in range(5): a(f"s_add_u32 m0, s37, {1024*i}\nbuffer_load_dwordx4 v{8+i}, s[8:11], s41 offen {SC} lds")
    a(p2_common_adv())
def g1h_drain(a):
    L = uid("Ldr")
    p2d_setup(a)
    a("s_waitcnt vmcnt(12)\ns_barrier\ns_waitcnt lgkmcnt(0)")
    for k in range(8): a(f"s_xor_b32 s{90+k}, s{90+k}, s48")
    for k in range(1, 8): a(f"s_or_b32 s90, s90, s{90+k}")
    a(f"s_cbranch_scc0 {L}"); gate(a, 14, 0xff); stamp(a, 6); a.label(L)
    nd = opt("nd", 2)
    for k in range(3):
        if k < nd: p2d_issue(a)
        a(f"s_waitcnt vmcnt({8 - 4*k + 5*min(k+1, nd)})\ns_barrier")
    stamp(a, 2)
    a("s_barrier")
    stamp(a, 3)
    a(f"s_mov_b32 s33, {nd}"); issue_n(a, AA - nd, lambda: p2d_issue(a)); a("s_branch Lp2_d_go")
def p2_loader_d(a):
    AH = P2_S - 2
    issue = lambda: p2d_issue(a)
    p2d_setup(a)
    a("s_barrier")
    a.label("Lp2_d_gate")
    gate(a, 14, 0xff)
    stamp(a, 3)
    issue_n(a, AA, issue)
    a.label("Lp2_d_go")
    steady(a, 10, 5, AA, issue)
    GB = opt("gb", 7)
    for j in range(10 - AA, GB): a(f"s_waitcnt vmcnt({5*(9-j)})\ns_barrier")
    a("s_mov_b32 s35, 24\ns_mov_b32 s36, 0\ns_mov_b32 s34, 0")
    gate(a, 15, 0x0fff0fff)
    stamp(a, 4)
    issue_n(a, GB + AH - 10, issue)
    steady(a, 34, 5, AH, issue)
    stamp(a, 5)
    drain(a, 5, AH)
    endp(a)
def p2_consumer(a):
    L = "Lp2"
    ACB, ACA = 16, 36
    a(f"""
    s_load_dwordx2 s[24:25], s[0:1], {KA['b2']}
    s_load_dwordx2 s[28:29], s[0:1], {KA['out']}
    s_lshl_b32 s23, s50, 6
    s_lshl_b32 s26, s3, 4
    s_add_u32 s23, s23, s26
    v_and_b32 v2, 15, v1
    v_add_u32 v2, s23, v2
    v_lshlrev_b32 v3, 1, v2
    v_lshlrev_b32 v4, 2, v2
    s_waitcnt lgkmcnt(0)
    """)
    srd(a, 24, 24, 4096); srd(a, 8, 20, G_SZ, G_OFF); srd(a, 28, 28, S_ * 1280)
    a(f"""
    buffer_load_ushort v10, v3, s[24:27], 0 offen
    s_setprio 0
    v_lshrrev_b32 v5, 2, v1
    v_lshrrev_b32 v6, 1, v5
    v_and_b32 v6, 3, v6
    v_xor_b32 v6, s3, v6
    v_lshlrev_b32 v6, 5, v6
    v_lshl_add_u32 v5, v5, 7, v6
    v_and_b32 v6, 3, v1
    v_lshl_add_u32 v8, v6, 3, v5
    v_add_u32 v8, {P2_0}, v8
    v_lshlrev_b32 v9, 4, v1
    v_add_u32 v9, {8192 + P2_0}, v9
    v_mul_u32_u24 v12, 1280, v2
    v_lshrrev_b32 v6, 4, v1
    v_lshl_add_u32 v12, v6, 3, v12
    s_mul_i32 s26, s51, 160
    v_add_u32 v12, s26, v12
    s_lshl_b32 s26, s3, 10
    s_add_u32 s26, s26, {P2_0}
    v_lshl_add_u32 v13, v1, 3, s26
    v_and_b32 v14, 1, v6
    v_mul_u32_u24 v14, 24, v14
    v_add_u32 v14, v14, v12
    """)
    for i in range(20): a(f"v_mov_b32 v{ACA+i}, 0")
    SETS = (56, 104)
    def reads(st, ph="b"):
        r = []
        for kk in range(2):
            b = SETS[st] + 24 * kk
            if ph == "a": r += [(f"ds_read_b64 {v(b,2)}, v13 offset:{kk*4096}", (kk, "b0")), (f"ds_read_b64 {v(b+2,2)}, v13 offset:{kk*4096+512}", (kk, "b1"))]
            else: r += [(f"ds_read_b64_tr_b16 {v(b,2)}, v8 offset:{kk*4096}", (kk, "b0")), (f"ds_read_b64_tr_b16 {v(b+2,2)}, v8 offset:{kk*4096+2048}", (kk, "b1"))]
            r += [(f"ds_read_b128 {v(b+4+4*dt,4)}, v9 offset:{(kk*5+dt)*1024}", (kk, dt)) for dt in range(5)]
        return r
    def mf(acc, st):
        return [(f"v_mfma_f32_16x16x32_bf16 {v(acc+4*dt,4)}, {v(SETS[st]+24*kk+4+4*dt,4)}, {v(SETS[st]+24*kk,4)}, {v(acc+4*dt,4)}", {(kk, "b1"), (kk, dt)}) for kk in range(2) for dt in range(5)]
    ids = [x[1] for x in reads(0)]
    adv = slot_adv(P2_SLOT, P2_S) + ["v_add_u32 v8, s40, v8", "v_add_u32 v9, s40, v9"]
    a(f"s_mov_b32 s33, 0\ns_mov_b32 s37, {P2_0}\ns_barrier"); stamp(a, 5, True)
    adva = adv + ["v_add_u32 v13, s40, v13"]
    emit_step(a, [], [], reads(0, "a"), adva)
    a.label(f"{L}_ca", 3)
    a("s_barrier")
    emit_step(a, mf(ACA, 0), ids, reads(1, "a"), adva + ["s_add_u32 s33, s33, 2", "s_cmp_ge_u32 s33, 10"])
    a(f"s_barrier\ns_cbranch_scc1 {L}_cax")
    emit_step(a, mf(ACA, 1), ids, reads(0, "a"), adva)
    a(f"s_branch {L}_ca")
    a.label(f"{L}_cax")
    emit_step(a, mf(ACA, 1), ids, reads(0, "b"), adv)
    def loop(tag, acc, end, last):
        a.label(f"{L}_c{tag}", 3)
        a("s_barrier")
        emit_step(a, mf(acc, 0), ids, reads(1), adv + ["s_add_u32 s33, s33, 2", f"s_cmp_ge_u32 s33, {end}"])
        a(f"s_cbranch_scc1 {L}_clast\ns_barrier")
        emit_step(a, mf(acc, 1), ids, reads(0), adv)
        a(f"s_branch {L}_c{tag}")
    a(f"s_waitcnt vmcnt(0)\nbuffer_load_dword v11, v4, s[8:11], 0 offen {SC}\nv_lshlrev_b32 v10, 16, v10")
    for i in range(20): a(f"v_mov_b32 v{ACB+i}, v10")
    loop("b", ACB, 34, True)
    a.label(f"{L}_clast")
    emit_step(a, mf(ACB, 1), ids, [], [])
    stamp(a, 6)
    a("s_waitcnt vmcnt(0)\ns_nop 4")
    aux = '' if opt('oplain') else 'nt' if opt('ont') else 'sc1'
    for dt in range(5):
        for r in range(0, 4, 2): a(f"v_pk_add_f32 {v(ACA+4*dt+r,2)}, {v(ACA+4*dt+r,2)}, {v(ACB+4*dt+r,2)} neg_lo:[0,1] neg_hi:[0,1]")
        for r in range(0, 4, 2): a(f"v_pk_fma_f32 {v(ACB+4*dt+r,2)}, {v(ACA+4*dt+r,2)}, v[10:11], {v(ACB+4*dt+r,2)} op_sel:[0,1,0] op_sel_hi:[1,1,1]")
        a(f"v_cvt_pk_bf16_f32 v{56+2*dt}, v{ACB+4*dt}, v{ACB+4*dt+1}\nv_cvt_pk_bf16_f32 v{57+2*dt}, v{ACB+4*dt+2}, v{ACB+4*dt+3}")
        if opt("narrow") or dt == 4: a(f"buffer_store_dwordx2 {v(56+2*dt,2)}, v12, s[28:31], 0 offen offset:{32*dt} {aux}")
        elif dt & 1:
            b = 56 + 2 * (dt - 1)
            a(f"v_permlane16_swap_b32 v{b}, v{b+2}\nv_permlane16_swap_b32 v{b+1}, v{b+3}\nbuffer_store_dwordx4 {v(b,4)}, v14, s[28:31], 0 offen offset:{32*(dt-1)} {aux}")
    endp(a)

def gen_main(a, name):
    kernel_head(a, name)
    if PROF:
        for i in range(1, 8): a(f"s_mov_b64 s[{70+2*i}:{71+2*i}], 0")
        stamp(a, 0); a("s_memtime s[66:67]")
    a(f"""
    s_cmp_ge_u32 s2, 256
    s_cbranch_scc1 Lend
    s_load_dwordx2 s[20:21], s[0:1], {KA['ws']}
    v_lshrrev_b32 v1, 6, v0
    v_readfirstlane_b32 s3, v1
    v_and_b32 v1, 63, v0
    s_and_b32 s52, s2, 7
    s_lshr_b32 s53, s2, 3
    s_lshr_b32 s22, s52, 1
    s_lshl_b32 s50, s22, 3
    s_and_b32 s23, s53, 7
    s_add_u32 s50, s50, s23
    s_and_b32 s51, s52, 1
    s_lshl_b32 s51, s51, 2
    s_lshr_b32 s26, s53, 3
    s_add_u32 s51, s51, s26
    """)
    if opt("swap"):
        a(f"""
        s_bitcmp1_b32 s52, 0
        s_cbranch_scc1 Lsw_odd
        s_cmp_lg_u32 s23, 3
        s_cbranch_scc1 Lsw_done
        s_cmp_eq_u32 s26, 3
        s_cselect_b32 s27, 4, s26
        s_sub_u32 s50, s50, 3
        s_add_u32 s50, s50, s27
        s_mov_b32 s51, 4
        s_branch Lsw_done
        Lsw_odd:
        s_cmp_lg_u32 s26, 0
        s_cbranch_scc1 Lsw_done
        s_cmp_gt_u32 s23, 4
        s_cbranch_scc1 Lsw_done
        s_min_u32 s51, s23, 3
        s_cmp_eq_u32 s23, 3
        s_cselect_b32 s51, 4, s51
        s_sub_u32 s50, s50, s23
        s_add_u32 s50, s50, 3
        Lsw_done:
        """)
    if PROF: a("s_mov_b32 s69, s3")
    NG = 15 if opt("mixed") else 30
    a("s_cmp_ge_u32 s53, 16\ns_cbranch_scc1 Lrole_qa" if opt("mixed") else "s_bitcmp1_b32 s52, 0\ns_cbranch_scc1 Lrole_qa")
    a(f"""
    {"s_lshl_b32 s19, s52, 4" if opt("mixed") else "s_lshl_b32 s19, s22, 5"}
    s_add_u32 s19, s19, s53
    s_mul_i32 s17, s53, 86
    s_lshr_b32 s17, s17, 8
    s_mul_i32 s23, s17, 3
    s_sub_u32 s23, s53, s23
    s_mul_i32 s16, s22, 3
    s_add_u32 s16, s16, s23
    """)
    if opt("mixed"): a("s_and_b32 s26, s52, 1\ns_mul_i32 s26, s26, 5\ns_add_u32 s17, s17, s26")
    a(f"s_mul_i32 s18, s23, {opt('stagg', 0)}\ns_mul_i32 s26, s17, {opt('stagd', 0)}\ns_add_u32 s18, s18, s26\ns_and_b32 s18, s18, 31")
    a("s_cmp_ge_u32 s3, 4\ns_cbranch_scc1 Lg_cons\ns_setprio 1\ns_cmp_ge_u32 s3, 2\ns_cbranch_scc1 Lg_h")
    def flags():
        a(f"s_waitcnt lgkmcnt(0)"); srd(a, 44, 20, FL_SZ, FL_OFF); a(f"s_load_dword s48, s[44:45], {FZ}")
    a(f"s_load_dwordx2 s[4:5], s[0:1], {KA['w1']}"); flags()
    a(f"s_cmp_ge_u32 s53, {NG}\ns_cbranch_scc1 Lsp_w")
    g1_loader_w(a)
    a.label("Lsp_w"); w1_sweep(a)
    a.label("Lsp_l"); a("s_mov_b32 s16, s52" if opt("mixed") else "s_lshr_b32 s16, s52, 1\ns_lshl_b32 s16, s16, 1\ns_add_u32 s16, s16, s53\ns_sub_u32 s16, s16, 30"); spare_loader(a)
    a("s_cmp_ge_u32 s3, 2\ns_cbranch_scc1 Lp2_d\ns_branch Lp2_s")
    a.label("Lg_h"); code_prefetch(a)
    if opt("mixed"):
        a(f"s_load_dwordx2 s[4:5], s[0:1], {KA['w1']}"); flags(); w1_sweep(a)
        a("s_cmp_ge_u32 s53, 15\ns_cbranch_scc1 Lsp_l")
    else:
        flags(); a("s_cmp_lt_u32 s53, 30\ns_cbranch_scc1 Lg_h2\ns_barrier\ns_barrier\ns_branch Lsp_l")
    a.label("Lg_h2"); g1_loader_h(a)
    a.label("Lg_cons")
    a(f"s_setprio 2\ns_load_dwordx2 s[4:5], s[0:1], {KA['x']}\ns_load_dwordx2 s[8:9], s[0:1], {KA['gw']}\ns_sub_u32 s3, s3, 4")
    ln_issue(a)
    srd(a, 44, 20, FL_SZ, FL_OFF)
    a(f"v_mov_b32 v2, {CTR}\nv_mov_b32 v6, 0\nv_mov_b32 v7, 0\nv_mov_b32 v8, 0\nv_mov_b32 v9, 0\nds_write_b128 v2, v[6:9]\ns_waitcnt lgkmcnt(0)\ns_barrier\ns_load_dword s48, s[44:45], {FZ}")
    ln_finish(a); stamp(a, 1, True)
    a(f"s_cmp_ge_u32 s53, {NG}\ns_cbranch_scc1 Lsp_cons")
    g1_consumer(a); a("s_branch Lp2_c")
    a.label("Lsp_cons")
    a(f"s_load_dwordx2 s[12:13], s[0:1], {KA['dbg']}\ns_waitcnt lgkmcnt(0)"); srd(a, 12, 12, 256)
    if (not opt("noslowcol")):
        a(f"""
        s_load_dwordx2 s[4:5], s[0:1], {KA['w1']}
        s_lshr_b32 s22, s52, 1
        s_cmp_eq_u32 s22, 2
        s_cselect_b32 s23, 1, s3
        s_cmp_lg_u32 s23, 0
        s_cbranch_scc1 Lsc_done
        s_min_u32 s22, s22, 2
        s_lshl_b32 s22, s22, 10
        s_add_u32 s22, s22, {384 + 1024 * 3072}
        s_and_b32 s23, s53, 1
        s_lshl_b32 s23, s23, 6
        v_add_u32 v2, s23, v1
        v_mul_u32_u24 v2, 3072, v2
        s_mov_b32 s33, 0
        s_waitcnt lgkmcnt(0)
        """)
        srd(a, 4, 4, S_ * 3072)
        a(f"Lsc_l:\nbuffer_load_dword v3, v2, s[4:7], s22 offen\ns_add_u32 s22, s22, {128*3072}\ns_add_u32 s33, s33, 1\ns_cmp_lt_u32 s33, 8\ns_waitcnt vmcnt(0)\ns_cbranch_scc1 Lsc_l\nLsc_done:\ns_waitcnt lgkmcnt(0)")
    a("s_barrier\ns_cmp_lg_u32 s3, 0\ns_cbranch_scc1 Lp2_c"); arrive_issue(a, 6); a("s_waitcnt vmcnt(0)"); arrive_finish(a, 6); a("s_branch Lp2_c")
    a.label("Lrole_qa")
    if opt("mixed"): a("s_and_b32 s23, s53, 3\ns_lshl_b32 s16, s22, 2\ns_add_u32 s16, s16, s23\ns_lshr_b32 s26, s53, 2\ns_and_b32 s26, s26, 3\ns_and_b32 s17, s52, 1\ns_lshl_b32 s17, s17, 2\ns_add_u32 s17, s17, s26")
    else: a(f"""
    s_and_b32 s16, s22, 1
    s_lshl_b32 s16, s16, 3
    s_add_u32 s16, s16, s23
    s_lshr_b32 s17, s22, 1
    s_lshl_b32 s17, s17, 2
    s_add_u32 s17, s17, s26
    """)
    if opt("nsq"): a("s_mov_b32 s18, 0")
    elif opt("mixed"): a("s_add_u32 s18, s26, s23\ns_and_b32 s18, s18, 3\ns_mul_i32 s18, s18, 10\ns_lshr_b32 s18, s18, 2")
    else: a("s_lshl_b32 s18, s26, 1\ns_add_u32 s18, s18, s23\ns_and_b32 s18, s18, 7\ns_mul_i32 s18, s18, 10\ns_lshr_b32 s18, s18, 3")
    a(f"s_cmp_ge_u32 s3, 4\ns_cbranch_scc1 Lq_cons\ns_setprio 1\ns_cmp_eq_u32 s3, 3\ns_cbranch_scc1 Lq_idle")
    a(f"s_load_dwordx2 s[4:5], s[0:1], {KA['x']}\ns_load_dwordx2 s[8:9], s[0:1], {KA['wqkv']}"); qa_w1_sweep(a); flags(); qa_loader(a)
    a("s_cmp_ge_u32 s3, 2\ns_cbranch_scc1 Lp2_d\ns_branch Lp2_s")
    a.label("Lq_idle"); qa_w1_sweep(a); flags(); qa_idle(a); a("s_branch Lp2_d")
    a.label("Lq_cons"); a("s_sub_u32 s3, s3, 4"); flags()
    a(f"v_mov_b32 v2, {CTR}\nv_mov_b32 v6, 0\nv_mov_b32 v7, 0\nv_mov_b32 v8, 0\nv_mov_b32 v9, 0\nds_write_b128 v2, v[6:9]")
    qa_consumer(a)
    a.label("Lp2_c"); p2_consumer(a)
    a.label("Lp2_s"); p2_loader_s(a)
    a.label("Lp2_d"); p2_loader_d(a)
    a.label("Lend"); a("s_endpgm")
    a.raw("Lcode_end:")
    return kernel_desc(name, 256, 102)

def gen_osc(a, name):
    kernel_head(a, name)
    o = next(o for o in OPTS if o.startswith("osc"))[3:].split("_")
    a(f"s_cmp_ge_u32 s2, 1\ns_cbranch_scc1 Losc_end\ns_load_dwordx2 s[4:5], s[0:1], {KA['ws']}\ns_waitcnt lgkmcnt(0)")
    srd(a, 4, 4, 0x100000, TL_OFF + 0x40000)
    def red(dst, base, stride, count, wave, slot, op):
        n = -(-count // 64)
        for i in range(n):
            a(f"v_add_u32 v1, {64*i}, v0\nv_min_u32 v1, {count-1}, v1\nv_mul_u32_u24 v1, {stride}, v1\nv_add_u32 v1, {base}, v1\nv_lshlrev_b32 v1, 9, v1\ns_mov_b32 s8, {wave*64 + slot*4}")
            a(f"buffer_load_dword v{4+i}, v1, s[4:7], s8 offen")
        a("s_waitcnt vmcnt(0)")
        if op == "add":
            for i in range(n): a(f"v_subrev_u32 v{4+i}, s20, v{4+i}")
        for i in range(1, n): a(f"v_{op}_u32 v4, v4, v{4+i}")
        a(f"v_readlane_b32 s{dst}, v4, 0")
        for i in range(1, 64): a(f"v_readlane_b32 s9, v4, {i}\ns_nop 0\ns_{op}_u32 s{dst}, s{dst}, s9")
        if op == "add": a(f"s_lshr_b32 s{dst}, s{dst}, {(64*n).bit_length()-1}\ns_add_u32 s{dst}, s{dst}, s20")
    red(20, 0, 1, 256, 0, 0, "min")
    if len(o) > 1:
        red(21, int(o[0]), int(o[1]), int(o[2]), int(o[3]), int(o[4]), dict(n="min", x="max", a="add")[o[5]])
        a("s_sub_u32 s21, s21, s20\ns_min_u32 s21, s21, 20000\ns_lshl_b32 s21, s21, 2")
    else: a("s_mov_b32 s21, 0")
    a("s_add_u32 s21, s21, 10000\nLosc_spin:\ns_memrealtime s[10:11]\ns_waitcnt lgkmcnt(0)\ns_sub_u32 s10, s10, s20\ns_cmp_lt_u32 s10, s21\ns_cbranch_scc1 Losc_spin")
    a.label("Losc_end"); a("s_endpgm")
    return kernel_desc(name, 16, 32)

def build(spec=""):
    global PROF
    OPTS[:] = [o for o in spec.split("+") if o]; PROF = bool(opt("prof")); UID[0] = 0
    ref = open(f"cdna_kernels/{NAME}.s.ref").read().split("\n")
    head = ref[:ref.index(next(x for x in ref if x.startswith("; Override")))]
    a = Asm(); a.raw("\n".join(head))
    if opt("mixed"): a.raw("; mixed")
    osc = any(o.startswith("osc") and o != "osc1" for o in OPTS)
    if osc: a.raw(f"; @launch kernel={NAME}_kernel grid=(256,1,1) block=(512,1,1) lds={LDS_SZ}\n; @launch kernel=osc_kernel grid=(1,1,1) block=(64,1,1) lds=0")
    else: a.raw(f"; @launch grid=(256,1,1) block=(512,1,1) lds={LDS_SZ}")
    a.raw('.amdgcn_target "amdgcn-amd-amdhsa--gfx950"')
    d = gen_main(a, NAME + "_kernel")
    if osc: d += gen_osc(a, "osc_kernel")
    if opt("nocomp"): a.lines = [(t, c) for t, c in a.lines if not (c is not None and (c.kind == "mfma" or c.op.startswith("ds_read")))]
    if opt("noload"): a.lines = [(t, c) for t, c in a.lines if not (c is not None and c.kind == "vmem" and c.lds)]
    if opt("nomfma"): a.lines = [(t, c) for t, c in a.lines if not (c is not None and c.kind == "mfma")]
    if opt("nods"): a.lines = [(t, c) for t, c in a.lines if not (c is not None and c.op.startswith("ds_read"))]
    if opt("nowait"): a.lines = [(t, c) for t, c in a.lines if not (c is not None and c.op == "s_waitcnt" and "lgkm" in t and "(0)" not in t)]
    if opt("al"): a.align_hot([("Lqa_c", "Lqa_clast"), ("Lg1_c", "Lg1_clast"), ("Lp2_ca", "Lp2_cax"), ("Lp2_cb", "Lp2_clast")])
    bad = a.check_branches()
    for b in bad: print("HAZARD across branch:", b, file=sys.stderr)
    assert not bad
    a.raw(d)
    return a.text()

if __name__ == "__main__":
    open(sys.argv[2] if len(sys.argv) > 2 else f"cdna_kernels/{NAME}.s", "w").write(build(sys.argv[1] if len(sys.argv) > 1 else ""))
```

```python
import sys, struct
from dsl import *

NAME = "gated_mix__sliding_local_dilated__mixer_token_mlp__prompt"
S_, D_, F_ = 2048, 640, 1536
KA = dict(x=0, wqkv=8, wo=16, w1=32, b1=40, w2=48, b2=56, gw=64, out=72, dbg=80, ws=88)
H_OFF, OT_OFF, UW_OFF, G_OFF, FL_OFF = 0, 0x280000, 0x500000, 0x800000, 0x810000
H_SZ, OT_SZ, UW_SZ, G_SZ, FL_SZ = 2621440, 2621440, 40 * 68 * 1024, 16384, 0x70000
F1, F2, F4, FZ, F3 = 0, 0x20000, 0x28000, 0x40000, 0x50000
RING = 163840; CTR = RING - 64; LDS_SZ = RING
LOG2E = 1.4426950408889634
OPTS = []; PROF = False; TL_OFF = 0x1000000
SC = "sc1"
def f2u(x): return "0x%08x" % struct.unpack("<I", struct.pack("<f", x))[0]
def v(n, k=1): return f"v{n}" if k == 1 else f"v[{n}:{n+k-1}]"
def opt(name, default=None):
    for o in OPTS:
        if o == name: return True
        if o.startswith(name + "="): return int(o.split("=")[1])
    return default

def srd(a, d, base, size, off=0):
    if off: a(f"s_add_u32 s{d}, s{base}, {off}\ns_addc_u32 s{d+1}, s{base+1}, 0")
    elif d != base: a(f"s_mov_b32 s{d}, s{base}\ns_mov_b32 s{d+1}, s{base+1}")
    a(f"s_mov_b32 s{d+2}, {size}\ns_mov_b32 s{d+3}, 0x20000")

def estamp(a, i):
    if PROF and opt("early"): a(f"s_memrealtime s[{70+2*i}:{71+2*i}]\ns_waitcnt lgkmcnt(0)")
def lstamp(a, i):
    if PROF and opt("late"): a(f"s_memrealtime s[{70+2*i}:{71+2*i}]\ns_waitcnt lgkmcnt(0)")
def stamp(a, i, wait=False):
    if PROF and opt("clk"):
        k = {2: 1, 3: 3, 6: 5}.get(i)
        if i == 0: a("s_memrealtime s[70:71]")
        elif k and (wait or i == 6): a(f"s_memrealtime s[{70+2*k}:{71+2*k}]\ns_memtime s[{72+2*k}:{73+2*k}]\ns_waitcnt lgkmcnt(0)")
        return
    if PROF and (i == 0 or not (opt("early") or opt("late"))): a(f"s_memrealtime s[{70+2*i}:{71+2*i}]" + ("\ns_waitcnt lgkmcnt(0)" if wait else ""))
def endp(a):
    if PROF:
        a(f"""
        s_waitcnt vmcnt(0)
        s_memrealtime s[84:85]
        s_memtime s[86:87]
        s_waitcnt lgkmcnt(0)
        s_sub_u32 s86, s86, s66
        s_add_u32 s60, s20, {TL_OFF + 0x40000}
        s_addc_u32 s61, s21, 0
        s_mov_b32 s62, 0x40000
        s_mov_b32 s63, 0x20000
        s_mov_b64 exec, 1
        s_lshl_b32 s64, s2, 3
        s_add_u32 s64, s64, s69
        s_lshl_b32 s64, s64, 6
        v_mov_b32 v0, s64
        """)
        for i in range(8): a(f"v_mov_b32 v{4+i}, s{70+2*i}")
        a("v_mov_b32 v12, s86")
        a("buffer_store_dwordx4 v[4:7], v0, s[60:63], 0 offen\nbuffer_store_dwordx4 v[8:11], v0, s[60:63], 0 offen offset:16\nbuffer_store_dword v12, v0, s[60:63], 0 offen offset:32")
    a("s_endpgm")

def emit_step(a, M, prev_ids, R, extra, per_gap=2, head=2):
    q = list(prev_ids); fill = [("r", x) for x in R] + [("x", x) for x in extra]
    def put(n):
        for _ in range(n):
            if not fill: return
            k, x = fill.pop(0)
            if k == "r": a(x[0]); q.append(("n", x[1]))
            else: a(x)
    put(head)
    for text, need_ in M:
        idx = [i for i, t in enumerate(q) if t in need_]
        if idx:
            n = min(len(q) - 1 - idx[-1], 15)
            a(f"s_waitcnt lgkmcnt({n})"); del q[:len(q) - n]
        a(text); put(per_gap)
    put(len(fill))

def slot_adv(SLOT, S):
    return [f"s_add_u32 s40, s37, {SLOT}", f"s_cmp_ge_u32 s40, {SLOT*S}", "s_cselect_b32 s41, 0, s40", "s_sub_u32 s40, s41, s37", "s_mov_b32 s37, s41"]

def thr(name, default):
    t = opt("t" + name, default if opt("thr") else 0)
    return f"s_waitcnt vmcnt({t-1})\n" if t else ""
UID = [0]
def uid(p): UID[0] += 1; return f"{p}{UID[0]}"

def issue_n(a, n, issue):
    L = uid("Li")
    a(f"s_add_u32 s32, s33, {n}")
    a.label(L); issue()
    a(f"s_add_u32 s33, s33, 1\ns_cmp_lt_u32 s33, s32\ns_cbranch_scc1 {L}")
def steady(a, upto, n, ahead, issue):
    L = uid("Ls")
    a.label(L)
    a(f"s_waitcnt vmcnt({n*(ahead-1)})\ns_barrier"); issue()
    a(f"s_add_u32 s33, s33, 1\ns_cmp_lt_u32 s33, {upto}\ns_cbranch_scc1 {L}")
def drain(a, n, ahead):
    for k in range(ahead - 1, -1, -1): a(f"s_waitcnt vmcnt({n*k})\ns_barrier")

def publish(a, ctr, nw, vaddr, lanes, keep=0):
    L = uid("Lpub")
    a(f"""
    s_waitcnt vmcnt({keep})
    s_mov_b64 exec, 1
    v_mov_b32 v2, {CTR + ctr}
    v_mov_b32 v3, 1
    ds_add_rtn_u32 v3, v2, v3
    s_waitcnt lgkmcnt(0)
    v_readfirstlane_b32 s22, v3
    s_mov_b64 exec, {(1 << lanes) - 1}
    s_cmp_lg_u32 s22, {nw - 1}
    s_cbranch_scc1 {L}
    v_mov_b32 v3, s48
    buffer_store_dword v3, v{vaddr}, s[44:47], 0 offen {SC}
    """)
    a.label(L); a("s_mov_b64 exec, -1")
def gate(a, vaddr, mask, two=False):
    L = uid("Lg"); slp = "s_sleep %d" % opt("slp", 4) if opt("slp", 4) else ""
    a(f"s_mov_b32 s49, 0\ns_mov_b32 exec_lo, {mask & 0xffffffff}\ns_mov_b32 exec_hi, {mask >> 32}")
    a.label(L)
    if two: a(f"buffer_load_dword v2, v{vaddr}, s[44:47], 0 offen {SC}\ns_mov_b32 s22, 8192\nbuffer_load_dword v3, v{vaddr}, s[44:47], s22 offen {SC}\ns_waitcnt vmcnt(0)\nv_xor_b32 v2, s48, v2\nv_xor_b32 v3, s48, v3\nv_or_b32 v2, v2, v3")
    else: a(f"buffer_load_dword v2, v{vaddr}, s[44:47], 0 offen {SC}\ns_waitcnt vmcnt(0)\nv_xor_b32 v2, s48, v2")
    a(f"v_cmp_ne_u32 vcc, 0, v2\ns_add_u32 s49, s49, 1\ns_cmp_eq_u64 vcc, 0\ns_cbranch_scc1 {L}d\n{slp}\ns_cmp_lt_u32 s49, 20000\ns_cbranch_scc1 {L}")
    a.label(L + "d"); a("s_mov_b64 exec, -1")
def tag_ready(a):
    a("s_waitcnt lgkmcnt(0)\ns_mul_i32 s48, s48, 1664525\ns_add_u32 s48, s48, 1013904223")
def arrive_issue(a, vd):
    a(f"s_mov_b64 exec, 1\nv_mov_b32 v{vd}, 1\nv_mov_b32 v{vd+1}, 0\nbuffer_atomic_add v{vd}, v{vd+1}, s[12:15], 0 offen sc0\ns_mov_b64 exec, -1")
def arrive_finish(a, vd):
    L = uid("Larr")
    a(f"v_readfirstlane_b32 s22, v{vd}\ns_cmp_lg_u32 s22, 255\ns_cbranch_scc1 {L}\ns_mov_b64 exec, 1\nv_mov_b32 v{vd}, s48\nv_mov_b32 v{vd+1}, {FZ}")
    a(f"buffer_store_dword v{vd}, v{vd+1}, s[44:47], 0 offen {SC}\ns_mov_b64 exec, -1")
    a.label(L)

def code_prefetch(a):
    L = uid("Lpc")
    a(f"s_getpc_b64 s[30:31]\n{L}:\ns_sub_u32 s30, s30, {L}-{NAME}_kernel\ns_subb_u32 s31, s31, 0\nv_lshlrev_b32 v2, 7, v1")
    for i in range(opt("ncode", 0)):
        a(f"v_min_u32 v3, Lcode_end-{NAME}_kernel-4, v2\nglobal_load_dword v{40+i}, v3, s[30:31]\nv_add_u32 v2, 8192, v2")

def ln_issue(a):
    a(f"""
    s_lshl_b32 s22, s19, 4
    s_lshl_b32 s23, s3, 2
    s_add_u32 s22, s22, s23
    v_lshrrev_b32 v2, 4, v1
    v_add_u32 v10, s22, v2
    v_and_b32 v11, 15, v1
    v_lshlrev_b32 v4, 4, v11
    v_mul_u32_u24 v5, 1280, v10
    v_add_u32 v5, v5, v4
    s_waitcnt lgkmcnt(0)
    """)
    srd(a, 4, 4, H_SZ); srd(a, 8, 8, 1280)
    for i in range(5): a(f"buffer_load_dwordx4 {v(16+4*i,4)}, v5, s[4:7], 0 offen offset:{256*i}")
    for i in range(5): a(f"buffer_load_dwordx4 {v(36+4*i,4)}, v4, s[8:11], 0 offen offset:{256*i}")
def ln_finish(a):
    X, GW, U = 16, 36, 56
    srd(a, 4, 20, H_SZ, H_OFF); srd(a, 8, 20, G_SZ, G_OFF)
    a("s_mov_b32 s30, 0x3f803f80\ns_mov_b32 s31, 0xffff0000"); estamp(a, 1); a("s_waitcnt vmcnt(5)"); estamp(a, 2)
    a(f"v_dot2_f32_bf16 v6, v{X}, s30, 0\nv_dot2_f32_bf16 v8, v{X+1}, s30, 0")
    for i in range(2, 20): a(f"v_dot2_f32_bf16 v{6+2*(i&1)}, v{X+i}, s30, v{6+2*(i&1)}")
    for i in range(20): a(f"v_lshlrev_b32 v{U+2*i}, 16, v{X+i}\nv_and_b32 v{U+1+2*i}, s31, v{X+i}")
    def red(*rs):
        for sh in (8, 4, 2, 1):
            for r in rs: a(f"v_add_f32_dpp v{r}, v{r}, v{r} row_ror:{sh} row_mask:0xf bank_mask:0xf")
    a("v_add_f32 v6, v6, v8"); red(6)
    a(f"v_mul_f32 v6, {f2u(1/640)}, v6")
    for i in range(20): a(f"v_pk_add_f32 {v(U+2*i,2)}, {v(U+2*i,2)}, v[6:7] op_sel_hi:[1,0] neg_lo:[0,1] neg_hi:[0,1]")
    a(f"v_pk_mul_f32 v[12:13], {v(U,2)}, {v(U,2)}\nv_pk_mul_f32 v[14:15], {v(U+2,2)}, {v(U+2,2)}")
    for i in range(2, 20): a(f"v_pk_fma_f32 {v(12+2*(i&1),2)}, {v(U+2*i,2)}, {v(U+2*i,2)}, {v(12+2*(i&1),2)}")
    a("v_pk_add_f32 v[12:13], v[12:13], v[14:15]\nv_add_f32 v12, v12, v13")
    red(12)
    a(f"v_mov_b32 v8, {f2u(1e-5)}\nv_fmac_f32 v8, {f2u(1/640)}, v12\nv_rsq_f32 v12, v8")
    for j in range(5):
        for i in range(4*j, 4*j+4): a(f"v_pk_mul_f32 {v(U+2*i,2)}, {v(U+2*i,2)}, v[12:13] op_sel_hi:[1,0]")
        for i in range(4*j, 4*j+4): a(f"v_cvt_pk_bf16_f32 v{96+i}, v{U+2*i}, v{U+1+2*i}")
        a(f"buffer_store_dwordx4 {v(96+4*j,4)}, v5, s[4:7], 0 offen offset:{256*j} {SC}")
    estamp(a, 3)
    a("s_barrier")
    a(f"s_waitcnt vmcnt(5)\nv_dot2_f32_bf16 v9, v{X}, v{GW}, 0\nv_dot2_f32_bf16 v8, v{X+1}, v{GW+1}, 0")
    for i in range(2, 20): a(f"v_dot2_f32_bf16 v{9-(i&1)}, v{X+i}, v{GW+i}, v{9-(i&1)}")
    a("v_add_f32 v9, v9, v8"); red(9)
    a(f"""
    v_mul_f32 v9, {f2u(-LOG2E)}, v9
    v_exp_f32 v9, v9
    v_add_f32 v9, 1.0, v9
    v_rcp_f32 v8, v9
    v_lshlrev_b32 v10, 3, v10
    """)
    tag_ready(a)
    a(f"""
    v_mov_b32 v9, s48
    s_mov_b32 exec_lo, 0x00010001
    s_mov_b32 exec_hi, 0x00010001
    buffer_store_dwordx2 v[8:9], v10, s[8:11], 0 offen {SC}
    s_mov_b64 exec, -1
    s_lshl_b32 s22, s19, 7
    v_lshl_add_u32 v10, v1, {14 if opt("mixed") else 15}, s22
    """)
    if opt("early"): a("s_waitcnt vmcnt(1)"); estamp(a, 4)
    publish(a, 0, 4, 10, 4, keep=1)
    if opt("early"): estamp(a, 5); a("s_waitcnt vmcnt(0)"); estamp(a, 6)

G1_S, G1_SLOT = 6, 24576
def w1_sweep(a):
    a(f"s_lshl_b32 s23, s53, {2 if opt('mixed') else 1}\ns_add_u32 s23, s23, s3\ns_lshl_b32 s23, s23, 6\nv_add_u32 v2, s23, v1\ns_lshr_b32 s23, s52, 1\ns_mul_i32 s23, s23, 768\ns_mov_b32 s26, 43691")
    for n in range(3):
        a(f"v_add_u32 v3, {4096*n}, v2\nv_mul_u32_u24 v4, s26, v3\nv_lshrrev_b32 v4, 18, v4\nv_mul_u32_u24 v5, {3072-768}, v4\nv_lshl_add_u32 v5, v3, 7, v5\nv_add_u32 v{16+n}, s23, v5")
        if not opt("noslowcol"):
            a(f"v_and_b32 v5, 0x380, v{16+n}\nv_cmp_le_u32 vcc, {opt('sc0', 1024)}, v4\nv_cndmask_b32_e64 v5, 0, v5, vcc\nv_cmp_eq_u32 vcc, 0x180, v5\nv_cndmask_b32_e64 v{16+n}, v{16+n}, -16, vcc")
    srd(a, 4, 4, S_ * 3072)
    a("s_barrier"); estamp(a, 1)
    pre = opt("pre", 2)
    for n in range(3):
        if n == pre: a("s_barrier")
        if not opt("nopfw1"): a(f"buffer_load_dword v{20+n}, v{16+n}, s[4:7], 0 offen")
    if pre == 3: a("s_barrier")
    estamp(a, 2)
    if opt("pfwait"): a("s_waitcnt vmcnt(0)")
    estamp(a, 3)
def g1_loader_w(a):
    a(f"""
    v_lshrrev_b32 v2, 4, v1
    s_lshl_b32 s23, s3, 2
    v_add_u32 v2, s23, v2
    v_lshlrev_b32 v4, 1, v2
    v_and_b32 v3, 15, v1
    v_xor_b32 v3, v3, v4
    v_lshlrev_b32 v3, 4, v3
    v_mul_u32_u24 v2, 3072, v2
    s_lshl_b32 s26, s16, 8
    v_add3_u32 v8, v2, v3, s26
    """)
    for i in range(1, 8): a(f"v_add_u32 v{8+i}, {8*3072*i}, v8")
    a(f"""
    s_mov_b32 s34, s18
    s_lshl_b32 s37, s3, 10
    s_add_u32 s38, s37, {G1_SLOT*G1_S}
    s_mov_b32 s33, 0
    """)
    def issue():
        a(f"s_mul_i32 s40, s34, {64*3072}" if not opt("wwrap") else f"s_and_b32 s40, s34, 3\ns_mul_i32 s40, s40, {64*3072}")
        for i in range(8): a(f"s_add_u32 m0, s37, {2048*i}\n{thr('w', 11)}buffer_load_dwordx4 v{8+i}, s[4:7], s40 offen lds")
        a(f"s_add_u32 s37, s37, {G1_SLOT}\ns_cmp_ge_u32 s37, s38\ns_cselect_b32 s42, {G1_SLOT*G1_S}, 0\ns_sub_u32 s37, s37, s42\ns_add_u32 s34, s34, 1\ns_and_b32 s34, s34, 31")
    w1_sweep(a)
    if opt("s15"): a("s_barrier")
    if not (not opt("s2")): a("s_barrier")
    issue_n(a, G1_S - 2, issue)
    if opt("early"): estamp(a, 4); a("s_waitcnt vmcnt(0)"); estamp(a, 5)
    tag_ready(a); stamp(a, 1)
    steady(a, 32, 8, G1_S - 2, issue)
    if (not opt("earlyp")): drain(a, 8, G1_S - 2); stamp(a, 2); a("s_branch Lp2_s0")
    else: P2(0).setup_s(a); P2(0).early(a, 8, 12, "s")
def g1_loader_h(a):
    a(f"""
    v_lshrrev_b32 v2, 3, v1
    v_and_b32 v3, 7, v1
    v_and_b32 v4, 6, v2
    v_xor_b32 v3, v3, v4
    v_lshlrev_b32 v3, 4, v3
    s_sub_u32 s22, s3, 2
    s_lshl_b32 s23, s22, 3
    v_add_u32 v2, s23, v2
    v_mul_u32_u24 v2, 1280, v2
    s_lshl_b32 s26, s17, 7
    v_add3_u32 v8, v2, v3, s26
    """)
    for i in range(1, 4): a(f"v_add_u32 v{8+i}, {16*1280*i}, v8")
    a(f"""
    s_lshl_b32 s23, s52, 14
    v_lshl_add_u32 v12, v1, 7, s23
    s_mov_b32 s34, s18
    s_lshl_b32 s37, s22, 10
    s_add_u32 s37, s37, 16384
    s_add_u32 s38, s37, {G1_SLOT*G1_S}
    s_mov_b32 s33, 0
    """)
    srd(a, 4, 20, H_SZ, H_OFF)
    def issue():
        a(f"s_mul_i32 s40, s34, {64*1280}" if not opt("hwrap") else f"s_and_b32 s40, s34, 3\ns_mul_i32 s40, s40, {64*1280}")
        for i in range(4): a(f"s_add_u32 m0, s37, {2048*i}\n{thr('h', 5)}buffer_load_dwordx4 v{8+i}, s[4:7], s40 offen {'' if opt('hplain') else SC} lds")
        a(f"s_add_u32 s37, s37, {G1_SLOT}\ns_cmp_ge_u32 s37, s38\ns_cselect_b32 s42, {G1_SLOT*G1_S}, 0\ns_sub_u32 s37, s37, s42\ns_add_u32 s34, s34, 1\ns_and_b32 s34, s34, 31")
    if not opt("mixed"): a("s_barrier\ns_barrier")
    tag_ready(a)
    if opt("s15"): a("s_barrier")
    estamp(a, 1)
    gate(a, 12, (1 << 64) - 1, two=True)
    stamp(a, 1); estamp(a, 3)
    if opt("early"): a("s_add_u32 s78, s70, s49\ns_mov_b32 s79, 0")
    if not (not opt("s2")): a("s_barrier")
    issue_n(a, G1_S - 2, issue)
    steady(a, 32, 4, G1_S - 2, issue)
    if (not opt("earlyp")): drain(a, 4, G1_S - 2); stamp(a, 2); a("s_branch Lp2_d0")
    else: P2(0).setup_d(a); P2(0).early(a, 4, 16, "d")
def g1_consumer(a):
    L = "Lg1"
    if opt("s15"): a("s_barrier")
    ACC, T = 16, 48
    a(f"""
    s_load_dwordx2 s[24:25], s[0:1], {KA['b1']}
    s_load_dwordx2 s[12:13], s[0:1], {KA['dbg']}
    s_and_b32 s22, s3, 1
    s_lshr_b32 s23, s3, 1
    s_lshl_b32 s26, s16, 8
    s_lshl_b32 s27, s22, 7
    s_add_u32 s26, s26, s27
    v_lshrrev_b32 v2, 4, v1
    v_lshl_add_u32 v3, v2, 3, s26
    s_waitcnt lgkmcnt(0)
    """)
    srd(a, 24, 24, 3072); srd(a, 8, 20, UW_SZ, UW_OFF); srd(a, 12, 12, 256)
    for ft in range(4): a(f"buffer_load_dwordx2 {v(T+2*ft,2)}, v3, s[24:27], 0 offen offset:{32*ft}")
    a(f"""
    s_setprio 0
    v_lshrrev_b32 v5, 2, v1
    v_and_b32 v6, 3, v1
    v_lshlrev_b32 v6, 3, v6
    v_and_b32 v7, 7, v5
    v_lshl_add_u32 v4, v5, 8, v6
    s_lshl_b32 s27, s22, 2
    """)
    for ft in range(4): a(f"s_add_u32 s28, s27, {ft}\nv_xor_b32 v2, s28, v7\nv_lshl_add_u32 v{8+ft}, v2, 5, v4")
    a(f"v_lshrrev_b32 v7, 1, v5\nv_and_b32 v7, 3, v7\nv_lshl_add_u32 v4, v5, 7, v6\nv_add_u32 v4, 16384, v4\ns_lshl_b32 s27, s23, 1")
    for dt in range(2): a(f"s_add_u32 s28, s27, {dt}\nv_xor_b32 v2, s28, v7\nv_lshl_add_u32 v{12+dt}, v2, 5, v4")
    a(f"""
    s_lshl_b32 s28, s17, 2
    s_add_u32 s28, s28, s27
    s_mul_i32 s28, s28, 68
    s_lshl_b32 s29, s16, 2
    s_add_u32 s28, s28, s29
    s_lshl_b32 s29, s22, 1
    s_add_u32 s28, s28, s29
    s_lshl_b32 s28, s28, 10
    v_lshl_add_u32 v14, v1, 4, s28
    s_lshl_b32 s28, s17, 4
    s_add_u32 s28, s28, s16
    s_lshl_b32 s28, s28, 7
    s_add_u32 s28, s28, {F4}
    v_mul_u32_u24 v15, {160*128}, v1
    v_add_u32 v15, s28, v15
    s_mov_b32 s31, 0xffff0000
    s_waitcnt vmcnt(0)
    """)
    for ft in range(4):
        for dt in range(2):
            b = ACC + 8 * ft + 4 * dt
            a(f"v_lshlrev_b32 v{b}, 16, v{T+2*ft}\nv_and_b32 v{b+1}, s31, v{T+2*ft}\nv_lshlrev_b32 v{b+2}, 16, v{T+2*ft+1}\nv_and_b32 v{b+3}, s31, v{T+2*ft+1}")
    SETS = (48, 96)
    def reads(st):
        r = []
        for kk in range(2):
            b = SETS[st] + 24 * kk
            for dt in range(2): r += [(f"ds_read_b64_tr_b16 {v(b+4*dt+2*h,2)}, v{12+dt} offset:{kk*4096+2048*h}", (kk, "b", dt, h)) for h in range(2)]
            for ft in range(4): r += [(f"ds_read_b64_tr_b16 {v(b+8+4*ft+2*h,2)}, v{8+ft} offset:{kk*8192+4096*h}", (kk, "a", ft, h)) for h in range(2)]
        return r
    def mf(st):
        return [(f"v_mfma_f32_16x16x32_bf16 {v(ACC+8*ft+4*dt,4)}, {v(SETS[st]+24*kk+8+4*ft,4)}, {v(SETS[st]+24*kk+4*dt,4)}, {v(ACC+8*ft+4*dt,4)}", {(kk, "a", ft, 1)})
                for kk in range(2) for ft, dt in ([(f, d) for d in range(2) for f in range(4)] if opt("g1ord") else [(f, d) for f in range(4) for d in range(2)])]
    ids = [x[1] for x in reads(0)]
    adv = slot_adv(G1_SLOT, G1_S) + [f"v_add_u32 v{8+i}, s40, v{8+i}" for i in range(6)]
    if not (not opt("s2")): a("s_barrier")
    a("s_mov_b32 s33, 0\ns_mov_b32 s37, 0\ns_barrier"); stamp(a, 2, True)
    emit_step(a, [], [], reads(0), adv)
    a.label(f"{L}_c", 3)
    a("s_barrier")
    emit_step(a, mf(0), ids, reads(1), adv + ["s_add_u32 s33, s33, 2", "s_cmp_ge_u32 s33, 32"])
    a(f"s_cbranch_scc1 {L}_clast\ns_barrier")
    emit_step(a, mf(1), ids, reads(0), adv)
    a(f"s_branch {L}_c")
    a.label(f"{L}_clast")
    a("s_waitcnt lgkmcnt(0)" + ("\ns_barrier" if opt("noe2") else "")); stamp(a, 3, True); lstamp(a, 1)
    last = [t for t, _ in mf(1)]
    grp = lambda p, dt: [last[8 * kk + 2 * (2 * p + h) + dt] for kk in range(2) for h in range(2)]
    G = [(p, dt) for p in range(2) for dt in range(2)]
    for t in grp(*G[0]) + grp(*G[1]): a(t)
    rest = grp(*G[2]) + grp(*G[3])
    c0 = -2 * 0.7978845608028654 * LOG2E; c1 = c0 * 0.044715
    a(f"v_mov_b32 v2, {f2u(c0)}\nv_mov_b32 v4, {f2u(c1)}\nv_mov_b32 v6, 1.0\ns_setprio 2")
    lstamp(a, 2)
    T = 48
    for n, (p, dt) in enumerate(G):
        o = 72 + 4 * n
        prs = [ACC + 8 * (2 * p + h) + 4 * dt + 2 * q for h in range(2) for q in range(2)]
        def ops(l):
            for x in l:
                a(x)
                if rest and not x.startswith(("v_exp", "v_rcp")): a(rest.pop(0))
        ops([f"v_pk_mul_f32 {v(T+2*i,2)}, {v(b,2)}, {v(b,2)}" for i, b in enumerate(prs)])
        ops([f"v_pk_fma_f32 {v(T+2*i,2)}, {v(T+2*i,2)}, v[4:5], v[2:3] op_sel_hi:[1,0,0]" for i, b in enumerate(prs)])
        ops([f"v_pk_mul_f32 {v(T+2*i,2)}, {v(T+2*i,2)}, {v(b,2)}" for i, b in enumerate(prs)])
        ops([f"v_exp_f32 v{T+i}, v{T+i}" for i in range(8)])
        ops([f"v_pk_add_f32 {v(T+2*i,2)}, {v(T+2*i,2)}, v[6:7] op_sel_hi:[1,0]" for i, b in enumerate(prs)])
        ops([f"v_rcp_f32 v{T+i}, v{T+i}" for i in range(8)])
        ops([f"v_pk_mul_f32 {v(T+2*i,2)}, {v(T+2*i,2)}, {v(b,2)}" for i, b in enumerate(prs)])
        ops([f"v_cvt_pk_bf16_f32 v{o+i}, v{T+2*i}, v{T+2*i+1}" for i in range(4)])
        a(f"s_mov_b32 s29, {dt*68*1024}\nbuffer_store_dwordx4 {v(o,4)}, v14, s[8:11], s29 offen offset:{1024*p} {SC}")
    La = uid("Lna")
    a(f"s_cmp_lg_u32 s3, 0\ns_cbranch_scc1 {La}"); arrive_issue(a, 144); a.label(La)
    lstamp(a, 3)
    if not opt("noe2"): a("s_barrier")
    if opt("late"): a("s_waitcnt vmcnt(0)"); lstamp(a, 4)
    publish(a, 4, 4, 15, 4)
    if opt("late"): lstamp(a, 5); a("s_waitcnt vmcnt(0)"); lstamp(a, 6)
    La = uid("Lna")
    a(f"s_cmp_lg_u32 s3, 0\ns_cbranch_scc1 {La}"); arrive_finish(a, 144); a.label(La)
    stamp(a, 4, True)

def spare_loader(a):
    a(f"""
    s_load_dwordx2 s[4:5], s[0:1], {KA['wo']}
    s_load_dwordx2 s[12:13], s[0:1], {KA['w2']}
    v_lshrrev_b32 v2, 3, v1
    v_and_b32 v3, 7, v1
    v_and_b32 v4, 6, v2
    v_xor_b32 v3, v3, v4
    v_lshlrev_b32 v14, 4, v3
    v_mul_u32_u24 v15, 1280, v2
    v_add_u32 v15, v15, v14
    v_lshrrev_b32 v3, 2, v2
    v_lshl_add_u32 v3, v3, 4, v2
    v_add_u32 v3, 16, v3
    v_mul_u32_u24 v3, 1280, v3
    v_add_u32 v14, v14, v3
    s_mul_i32 s23, s3, {7*4096}
    v_lshrrev_b32 v5, 2, v1
    v_lshrrev_b32 v6, 1, v5
    v_and_b32 v6, 3, v6
    v_lshlrev_b32 v5, 7, v5
    v_and_b32 v7, 3, v1
    v_lshlrev_b32 v7, 3, v7
    v_add3_u32 v5, v5, v7, s23
    """)
    for t in range(4): a(f"v_xor_b32 v7, {t}, v6\nv_lshl_add_u32 v{8+t}, v7, 5, v5")
    a(f"v_lshlrev_b32 v12, 4, v1\ns_lshl_b32 s26, s16, 7\ns_add_u32 s26, s26, {F3}\nv_lshl_add_u32 v13, v1, 10, s26")
    tag_ready(a)
    srd(a, 4, 4, 640 * 1280); srd(a, 8, 20, UW_SZ, UW_OFF); srd(a, 12, 12, F_ * 4096)
    def task():
        a("s_lshl_b32 s26, s33, 2\ns_add_u32 s26, s26, s3\ns_min_u32 s26, s26, 24\ns_mul_i32 s27, s16, 25\ns_add_u32 s27, s27, s26\ns_mul_i32 s26, s27, 6554\ns_lshr_b32 s26, s26, 16\ns_mul_i32 s28, s26, 10\ns_sub_u32 s27, s27, s28")
    L = uid("Lwo")
    a("s_mov_b32 s33, 0"); a.label(L); task()
    for half in range(2):
        a(f"""
        s_lshl_b32 s28, s26, 1
        s_add_u32 s28, s28, {half}
        s_mul_i32 s29, s28, 52
        s_lshr_b32 s29, s29, 8
        s_mul_i32 s30, s29, 5
        s_sub_u32 s28, s28, s30
        s_mul_i32 s29, s29, 80
        s_mul_i32 s30, s28, 20
        s_cmp_eq_u32 s28, 4
        s_cselect_b64 vcc, -1, 0
        s_cselect_b32 s30, 0, s30
        s_cselect_b32 s31, 40, 8
        s_mul_i32 s31, s31, 1280
        s_add_u32 s29, s29, s30
        s_mul_i32 s28, s29, 1280
        s_lshl_b32 s29, s27, 7
        s_add_u32 s28, s28, s29
        v_cndmask_b32 v2, v15, v14, vcc
        """)
        for i in range(2): a(f"s_add_u32 m0, s23, {2048*half+1024*i}\nbuffer_load_dwordx4 v2, s[4:7], s28 offen lds\ns_add_u32 s28, s28, s31")
    a(f"s_add_u32 s23, s23, 4096\ns_add_u32 s33, s33, 1\ns_cmp_lt_u32 s33, 7\ns_cbranch_scc1 {L}\ns_waitcnt vmcnt(0)\ns_mov_b32 s33, 0")
    L = uid("Lwo"); a.label(L); task()
    for t in range(4): a(f"ds_read_b64_tr_b16 {v(16+4*t,2)}, v{8+t}\nds_read_b64_tr_b16 {v(18+4*t,2)}, v{8+t} offset:2048\nv_add_u32 v{8+t}, 4096, v{8+t}")
    a(f"s_lshl_b32 s28, s27, 2\ns_mul_i32 s28, s28, 68\ns_add_u32 s28, s28, s26\ns_add_u32 s28, s28, 48\ns_lshl_b32 s28, s28, 10")
    for t in range(4): a(f"s_waitcnt lgkmcnt({6-2*t})\nbuffer_store_dwordx4 {v(16+4*t,4)}, v12, s[8:11], s28 offen {SC}\ns_add_u32 s28, s28, {68*1024}")
    a(f"s_add_u32 s33, s33, 1\ns_cmp_lt_u32 s33, 7\ns_cbranch_scc1 {L}")
    publish(a, 8, 4, 13, 8)
    stamp(a, 1)
    if opt("spw2"):
        L = uid("Lw2")
        a(f"""
        s_and_b32 s22, s16, 1
        s_lshl_b32 s22, s22, 2
        s_add_u32 s22, s22, s3
        s_lshl_b32 s22, s22, 3
        v_lshrrev_b32 v2, 3, v1
        v_add_u32 v2, s22, v2
        v_lshlrev_b32 v2, 12, v2
        v_and_b32 v3, 7, v1
        v_lshl_add_u32 v2, v3, 7, v2
        s_lshr_b32 s22, s52, 1
        s_lshl_b32 s22, s22, 10
        s_mov_b32 s33, 0
        {L}:
        buffer_load_dword v30, v2, s[12:15], s22 offen
        s_add_u32 s22, s22, {64*4096}
        s_add_u32 s33, s33, 1
        s_cmp_lt_u32 s33, 24
        s_cbranch_scc1 {L}
        """)
    h0 = opt("sph", 14)
    if h0:
        L = uid("Lsh"); n = ((32 - h0 + 1) // 2 * 10 + 7) // 8
        srd(a, 4, 20, H_SZ, H_OFF)
        a(f"s_lshl_b32 s23, s52, 14\nv_lshl_add_u32 v12, v1, 7, s23")
        gate(a, 12, (1 << 64) - 1, two=True)
        a(f"""
        s_and_b32 s22, s16, 1
        s_lshl_b32 s22, s22, 2
        s_add_u32 s22, s22, s3
        v_lshlrev_b32 v2, 7, v1
        s_mov_b32 s33, 0
        {L}:
        s_mul_i32 s23, s22, 6554
        s_lshr_b32 s23, s23, 16
        s_mul_i32 s23, s23, {64*1280}
        s_lshl_b32 s26, s22, 13
        s_add_u32 s23, s23, s26
        s_add_u32 s23, s23, {h0*64*1280}
        buffer_load_dword v30, v2, s[4:7], s23 offen {SC}
        s_add_u32 s22, s22, 8
        s_add_u32 s33, s33, 1
        s_cmp_lt_u32 s33, {n}
        s_cbranch_scc1 {L}
        """)
    nw = opt("c3", 2)
    if nw:
        L = uid("Lc3")
        a(f"""
        s_cmp_ge_u32 s3, {nw}
        s_cbranch_scc1 {L}d
        s_and_b32 s22, s16, 1
        s_mul_i32 s22, s22, {nw}
        s_add_u32 s22, s22, s3
        s_lshl_b32 s22, s22, 6
        v_add_u32 v2, s22, v1
        v_lshlrev_b32 v2, 12, v2
        s_lshr_b32 s22, s52, 1
        s_lshl_b32 s22, s22, 10
        s_add_u32 s22, s22, 384
        s_mov_b32 s33, 0
        {L}:
        buffer_load_dword v30, v2, s[12:15], s22 offen
        s_add_u32 s22, s22, {128*nw*4096}
        s_add_u32 s33, s33, 1
        s_cmp_lt_u32 s33, {12//nw}
        s_waitcnt vmcnt(0)
        s_cbranch_scc1 {L}
        {L}d:
        """)
    stamp(a, 2)

QA_S, QA_SLOT, QA_W = 3, 49152, 18432
def qa_w1_sweep(a):
    if not opt("qsw"): return
    a(f"""
    s_load_dwordx2 s[12:13], s[0:1], {KA['w1']}
    s_lshr_b32 s22, s2, 1
    s_lshl_b32 s22, s22, 2
    s_add_u32 s22, s22, s3
    s_lshl_b32 s23, s22, 12
    s_lshl_b32 s22, s22, 13
    s_add_u32 s23, s23, {512*8192}
    v_lshlrev_b32 v2, 7, v1
    s_waitcnt lgkmcnt(0)
    """)
    srd(a, 12, 12, S_ * 3072)
    a("buffer_load_dword v32, v2, s[12:15], s22 offen\ns_mov_b32 exec_hi, 0\nbuffer_load_dword v33, v2, s[12:15], s23 offen\ns_mov_b32 exec_hi, -1")
def w2_setup(a):
    a(f"""
    s_load_dwordx2 s[24:25], s[0:1], {KA['w2']}
    v_lshrrev_b32 v2, 3, v1
    s_lshl_b32 s22, s53, 3
    v_add_u32 v2, s22, v2
    v_lshlrev_b32 v2, 12, v2
    v_and_b32 v3, 7, v1
    v_lshl_add_u32 v2, v3, 7, v2
    s_lshr_b32 s22, s52, 1
    s_lshl_b32 s22, s22, 10
    v_add_u32 v29, s22, v2
    s_waitcnt lgkmcnt(0)
    """)
    srd(a, 24, 24, F_ * 4096)
def w2_last(a):
    if not opt("nopfw2"): a("s_lshl_b32 s22, s3, 20\nbuffer_load_dword v30, v29, s[24:27], s22 offen")
def qa_loader(a):
    a(f"v_lshrrev_b32 v2, 3, v1\ns_lshl_b32 s23, s3, 3\nv_add_u32 v2, s23, v2\ns_lshl_b32 s26, s16, 7\ns_sub_u32 s26, s26, 16\nv_and_b32 v3, 7, v1")
    for i in range(6):
        a(f"v_add_u32 v4, {24*i}, v2\nv_lshrrev_b32 v5, 1, v4\nv_and_b32 v5, 7, v5\nv_xor_b32 v5, v5, v3\nv_add_u32 v4, s26, v4\nv_max_i32 v4, 0, v4\nv_mul_u32_u24 v4, 1280, v4\nv_lshl_add_u32 v{8+i}, v5, 4, v4")
    a(f"s_mul_i32 s23, s3, 320\ns_mul_i32 s26, s17, 160\nv_add_u32 v2, s23, v1")
    for i in range(5):
        a(f"""
        v_add_u32 v3, {64*i}, v2
        v_mul_u32_u24 v4, 2185, v3
        v_lshrrev_b32 v4, 16, v4
        v_mul_u32_u24 v5, 30, v4
        v_sub_u32 v3, v3, v5
        v_mul_u32_u24 v5, 26, v3
        v_lshrrev_b32 v5, 8, v5
        v_mul_u32_u24 v5, {1280-160}, v5
        v_lshl_add_u32 v3, v3, 4, v5
        v_and_b32 v5, 12, v4
        v_lshlrev_b32 v5, 1, v5
        v_lshrrev_b32 v6, 4, v4
        v_lshl_add_u32 v5, v6, 2, v5
        v_and_b32 v4, 3, v4
        v_add_u32 v4, v4, v5
        v_mul_u32_u24 v4, 3840, v4
        v_add3_u32 v{16+i}, v4, v3, s26
        """)
    a(f"s_mov_b32 s34, s18\ns_mov_b32 s37, 0\ns_lshl_b32 s38, s3, 10\ns_mul_i32 s39, s3, 5120\ns_add_u32 s39, s39, {QA_W}\ns_mov_b32 s33, 0")
    srd(a, 4, 4, H_SZ); srd(a, 8, 8, 640 * 3840)
    def issue(half=None):
        if half != 1: a(f"s_lshl_b32 s40, s34, 7\ns_mul_i32 s41, s34, {64*3840}\ns_add_u32 s42, s37, s38\ns_add_u32 s43, s37, s39\ns_add_u32 s36, s41, {32*3840}")
        if half != 1:
            for i in range(3): a(f"s_add_u32 m0, s42, {3072*i}\nbuffer_load_dwordx4 v{8+i}, s[4:7], s40 offen lds")
            for i in range(5): a(f"s_add_u32 m0, s43, {1024*i}\nbuffer_load_dwordx4 v{16+i}, s[8:11], s41 offen lds")
        if half != 0:
            for i in range(3, 6): a(f"s_add_u32 m0, s42, {3072*i}\nbuffer_load_dwordx4 v{8+i}, s[4:7], s40 offen lds")
            for i in range(5): a(f"s_add_u32 m0, s43, {15360+1024*i}\nbuffer_load_dwordx4 v{16+i}, s[8:11], s36 offen lds")
            a(f"s_add_u32 s37, s37, {QA_SLOT}\ns_cmp_ge_u32 s37, {QA_SLOT*QA_S}\ns_cselect_b32 s37, 0, s37\ns_add_u32 s34, s34, 1\ns_cmp_ge_u32 s34, 10\ns_cselect_b32 s34, 0, s34")
    if opt("lateb0"):
        issue_n(a, 2, issue); tag_ready(a); w2_setup(a); stamp(a, 1)
    else:
        issue(); issue(0); a("s_waitcnt vmcnt(8)\ns_barrier"); issue(1); issue(); a("s_mov_b32 s33, 3")
        tag_ready(a); w2_setup(a); stamp(a, 1)
    steady(a, 10, 16, QA_S - 1, issue); drain(a, 16, QA_S - 1)
    stamp(a, 2); w2_last(a)
def qa_idle(a):
    code_prefetch(a); tag_ready(a); w2_setup(a)
    at = (opt("w2a", 5), opt("w2b", 7))
    for i in range(10):
        a("s_barrier")
        for k in range(2):
            if at[k] == i and not opt("nopfw2"): a(f"s_mov_b32 s22, {(4+k) << 20}\nbuffer_load_dword v30, v29, s[24:27], s22 offen")
    w2_last(a)
def qa_consumer(a):
    L = "Lqa"
    AQ, AK, AR, AV, AW = 16, 48, 88, 108, 148
    XF, WB = 168, 208
    M0, M1, MF, PM, TM = 224, 228, 232, 236, 240
    NB, DD = 4, opt("dd", 2)
    a(f"""
    s_load_dwordx2 s[12:13], s[0:1], {KA['dbg']}
    s_lshr_b32 s28, s3, 1
    s_and_b32 s29, s3, 1
    v_and_b32 v2, 15, v1
    v_lshrrev_b32 v3, 4, v1
    v_lshrrev_b32 v4, 1, v2
    v_xor_b32 v4, v4, v3
    v_lshlrev_b32 v4, 4, v4
    v_lshl_add_u32 v4, v2, 7, v4
    s_lshl_b32 s23, s28, 13
    v_add_u32 v8, s23, v4
    v_xor_b32 v9, 64, v8
    v_lshrrev_b32 v5, 2, v1
    v_mul_u32_u24 v5, 480, v5
    s_mul_i32 s23, s29, 80
    s_add_u32 s23, s23, {QA_W}
    v_add_u32 v5, s23, v5
    v_and_b32 v4, 3, v1
    v_lshl_add_u32 v10, v4, 3, v5
    v_and_b32 v6, 1, v1
    v_mul_u32_u24 v6, 40, v6
    v_add3_u32 v13, v6, v5, 32
    v_lshrrev_b32 v4, 1, v4
    v_mul_u32_u24 v4, 160, v4
    v_add_u32 v11, v4, v13
    """)
    if opt("zv"):
        a(f"v_and_b32 v4, 3, v1\nv_lshrrev_b32 v4, 1, v4\nv_cmp_ne_u32 s[98:99], s29, v4")
    for i in range(AQ, XF): a(f"v_mov_b32 v{i}, 0")
    a(f"v_lshlrev_b32 v4, 2, v3\nv_sub_u32 v4, v2, v4\nv_mov_b32 v5, {f2u(-1e30)}")
    for r in range(4):
        a(f"""
        v_subrev_u32 v15, {r}, v4
        v_and_b32 v15, 0x80000001, v15
        v_cmp_eq_u32 vcc, 0, v15
        v_cndmask_b32_e64 v{M1+r}, v5, 0, vcc
        v_cndmask_b32_e64 v{TM+4+r}, 0, -1, vcc
        v_cmp_eq_u32 vcc, 0x80000000, v15
        v_cndmask_b32_e64 v{M0+r}, v5, 0, vcc
        v_cndmask_b32_e64 v{TM+r}, 0, -1, vcc
        """)
    a("s_mov_b32 s30, 0xffff")
    for i in range(4): a(f"v_bfi_b32 v{PM+i}, s30, v{TM+2*i}, v{TM+2*i+1}")
    a(f"s_or_b32 s23, s16, s28\ns_cmp_eq_u32 s23, 0\ns_cselect_b64 vcc, -1, 0")
    for r in range(4): a(f"v_cndmask_b32 v{MF+r}, v{M0+r}, v5, vcc")
    GM = 90
    for j in range(2): a(f"v_cmp_eq_u32 s[{GM+2*j}:{GM+1+2*j}], {j}, v3")
    a(f"""
    v_and_b32 v4, 1, v3
    v_cmp_eq_u32 s[94:95], 1, v4
    s_cmp_eq_u32 s29, 0
    s_cselect_b32 s96, -1, 0
    s_cselect_b32 s97, 0, -1
    s_lshl_b32 s23, s16, 3
    s_lshl_b32 s26, s28, 2
    s_add_u32 s23, s23, s26
    s_mul_i32 s23, s23, 40
    s_mul_i32 s26, s17, 5
    s_add_u32 s23, s23, s26
    s_lshl_b32 s23, s23, 9
    v_lshl_add_u32 v15, v1, 3, s23
    s_lshl_b32 s26, s29, 10
    v_add_u32 v12, s26, v15
    s_lshl_b32 s23, s16, 4
    s_add_u32 s23, s23, s17
    s_lshl_b32 s23, s23, 7
    s_add_u32 s23, s23, {F2}
    v_lshl_add_u32 v14, v1, 10, s23
    s_mov_b32 s31, {f2u(20 ** -0.5 * LOG2E)}
    s_mov_b32 s33, 0
    s_mov_b32 s37, 0
    s_waitcnt lgkmcnt(0)
    """)
    srd(a, 4, 20, OT_SZ, OT_OFF); srd(a, 12, 12, 256); tag_ready(a)
    U = [("q", 0), ("q", 1), ("k", 0), ("k", 1), ("r", 0), ("v", 0), ("v", 1), ("w", 0)]
    NU = len(U); UU = 2 * NU
    def xread(kk): return [f"ds_read_b128 {v(XF+20*kk+4*t,4)}, v{8+kk} offset:{2048*t}" for t in (1, 2, 3, 4, 0)]
    def wread(u):
        kk, c = divmod(u, NU); p, j = U[c]; b = WB + 4 * (u % NB)
        ad, off = {"q": (10, 40 * j), "k": (10, 160 + 40 * j), "v": (10, 320 + 40 * j), "r": (11, 0), "w": (13, 320)}[p]
        off += kk * 15360
        return [f"ds_read_b64_tr_b16 {v(b,2)}, v{ad} offset:{off}", f"ds_read_b64_tr_b16 {v(b+2,2)}, v{ad} offset:{off+7680}"]
    def acc(p, j, t): return {"q": AQ + 8 * (t - 1) + 4 * j, "k": AK + 8 * t + 4 * j, "r": AR + 4 * t, "v": AV + 20 * j + 4 * t, "w": AW + 4 * t}[p]
    def mf(u):
        kk, c = divmod(u, NU); p, j = U[c]; w = v(WB + 4 * (u % NB), 4); r = []
        for t in ((1, 2, 3, 4) if p == "q" else (1, 2, 3, 4, 0)):
            x = v(XF + 20 * kk + 4 * t, 4); d = v(acc(p, j, t), 4)
            r.append(f"v_mfma_f32_16x16x32_bf16 {d}, {w}, {x}, {d}" if p in "qkr" else f"v_mfma_f32_16x16x32_bf16 {d}, {x}, {w}, {d}")
        return r
    stamp(a, 1, True); a("s_barrier"); stamp(a, 2, True)
    for t in xread(0): a(t)
    for u in range(DD):
        for t in wread(u): a(t)
    a(f"s_waitcnt lgkmcnt({2*DD-2})")
    a.label(f"{L}_c", 3)
    q = []
    for u in range(1, DD): q += [u, u]
    misc = slot_adv(QA_SLOT, QA_S) + ["s_add_u32 s33, s33, 1", "s_cmp_ge_u32 s33, 10"]
    x1 = xread(1)
    for u in range(UU):
        nx = u + DD; fill = []
        if nx == UU: fill += [(t, UU) for t in xread(0)]
        fill += [(t, nx) for t in wread(nx % UU)]
        if 1 <= u < NU - 1 and x1: fill.append((x1.pop(0), NU))
        ms = mf(u)
        if nx == UU:
            a(f"s_waitcnt lgkmcnt(0)\ns_barrier\ns_cbranch_scc1 {L}_clast"); q = []
        per = -(-len(fill) // len(ms))
        for i, m in enumerate(ms):
            a(m)
            for t, tag in fill[i*per:(i+1)*per]: a(t); q.append(tag)
            if i == len(ms) - 2 and misc and u >= 2: a(misc.pop(0))
            if i >= 2 and nx == UU - 1:
                for r in ((8, 9), (10, 11), (13,))[i - 2]: a(f"v_add_u32 v{r}, s40, v{r}")
        if any(t <= u + 1 for t in q) and nx != UU - 1:
            last = max(i for i, t in enumerate(q) if t <= u + 1)
            q = q[last + 1:]
            a(f"s_waitcnt lgkmcnt({len(q)})")
    assert not misc and not x1 and len(q) == 2 * DD - 2, (misc, x1, q)
    a(f"s_branch {L}_c")
    a.label(f"{L}_clast"); stamp(a, 3, True); lstamp(a, 1)
    for u in range(UU - DD, UU):
        for m in mf(u): a(m)
    La = uid("Lna")
    a(f"s_cmp_lg_u32 s3, 0\ns_cbranch_scc1 {La}"); arrive_issue(a, 6); a.label(La)
    cv = lambda d, s0: a(f"v_cvt_pk_bf16_f32 v{d}, v{s0}, v{s0+1}")
    for t in range(5):
        r = AR + 4 * t; ka = acc("k", 0, t); kb = acc("k", 1, t)
        for b in (ka, kb, r): cv(b, b); cv(b + 1, b + 2)
        a(f"v_mov_b32 v{ka+2}, 0\nv_mov_b32 v{ka+3}, 0")
    for t in range(5):
        r = AR + 4 * t; ka = acc("k", 0, t)
        a(f"v_permlane32_swap_b32 v{r}, v{ka+2}\nv_permlane32_swap_b32 v{r+1}, v{ka+3}")
    for t in range(5):
        ka = acc("k", 0, t); kb = acc("k", 1, t); r = AR + 4 * t
        a(f"v_mov_b32 v{kb+2}, v{ka+2}\nv_mov_b32 v{kb+3}, v{ka+3}")
        if t:
            for j in range(2):
                b = acc("q", j, t); cv(b, b); cv(b + 1, b + 2)
                a(f"v_cndmask_b32 v{b+2}, 0, v{r}, s[{GM+2*j}:{GM+1+2*j}]\nv_cndmask_b32 v{b+3}, 0, v{r+1}, s[{GM+2*j}:{GM+1+2*j}]")
    lstamp(a, 2)
    UN = [(t, j) for t in range(1, 5) for j in range(2)]
    SRS = [XF + 8 * n for n in range(7)] + [TM + 8]
    for n, (t, j) in enumerate(UN):
        qf = v(acc("q", j, t), 4)
        a(f"v_mfma_f32_16x16x32_bf16 {v(SRS[n],4)}, {v(acc('k',j,t-1),4)}, {qf}, {v(MF if t == 1 else M0,4)}")
        a(f"v_mfma_f32_16x16x32_bf16 {v(SRS[n]+4,4)}, {v(acc('k',j,t),4)}, {qf}, {v(M1,4)}")
    for b in (AV, AV + 20, AW):
        for i in range(10): cv(b + i, b + 2 * i)
    VA, VB, X = AQ, AQ + 8, AQ + 16
    P = [AK + 4 * n for n in range(8)]
    for n in range(8): s_ = SRS[n]; a(f"v_max3_f32 v{VA+n}, v{s_}, v{s_+1}, v{s_+4}\nv_max3_f32 v{VB+n}, v{s_+2}, v{s_+3}, v{s_+6}")
    for n in range(8): s_ = SRS[n]; a(f"v_max_f32 v{VA+n}, v{VA+n}, v{s_+5}\nv_max_f32 v{VB+n}, v{VB+n}, v{s_+7}")
    def both(f): return [f(X), f(X + 4)]
    def seq(*steps):
        for st in steps:
            for x in (X, X + 4): a(st(x))
    def xred(op):
        seq(lambda x: f"v_permlane32_swap_b32 v{x}, v{x+1}\nv_permlane32_swap_b32 v{x+2}, v{x+3}",
            lambda x: f"{op} v{x}, v{x}, v{x+1}\n{op} v{x+2}, v{x+2}, v{x+3}",
            lambda x: f"v_permlane16_swap_b32 v{x}, v{x+2}", lambda x: f"{op} v{x}, v{x}, v{x+2}")
    def xbc():
        seq(lambda x: f"v_mov_b32 v{x+2}, v{x}", lambda x: f"v_permlane16_swap_b32 v{x}, v{x+2}",
            lambda x: f"v_mov_b32 v{x+1}, v{x}\nv_mov_b32 v{x+3}, v{x+2}",
            lambda x: f"v_permlane32_swap_b32 v{x}, v{x+1}\nv_permlane32_swap_b32 v{x+2}, v{x+3}")
    for n in range(8): a(f"v_max_f32 v{X+n}, v{VA+n}, v{VB+n}")
    xred("v_max_f32"); seq(lambda x: f"v_mul_f32 v{x}, s31, v{x}"); xbc()
    for n in range(8): a(f"v_fma_f32 v{VA+n}, v{VA+n}, s31, -v{X+n}\nv_fma_f32 v{VB+n}, v{VB+n}, s31, -v{X+n}")
    for n in range(8): a(f"v_exp_f32 v{VA+n}, v{VA+n}\nv_exp_f32 v{VB+n}, v{VB+n}")
    for n in range(8): a(f"v_add_f32 v{X+n}, v{VA+n}, v{VB+n}")
    xred("v_add_f32"); seq(lambda x: f"v_rcp_f32 v{x}, v{x}"); xbc()
    for n in range(8): a(f"v_mul_f32 v{VA+n}, v{VA+n}, v{X+n}\nv_mul_f32 v{VB+n}, v{VB+n}, v{X+n}")
    for n in range(8): a(f"v_cvt_pk_bf16_f32 v{VA+n}, v{VA+n}, v{VA+n}\nv_cvt_pk_bf16_f32 v{VB+n}, v{VB+n}, v{VB+n}")
    a("s_setprio 2")
    for n, (t, j) in enumerate(UN):
        p = P[n]
        a(f"v_and_b32 v{p}, v{VA+n}, v{PM}\nv_and_b32 v{p+1}, v{VB+n}, v{PM+1}\nv_and_b32 v{p+2}, v{VA+n}, v{PM+2}\nv_and_b32 v{p+3}, v{VB+n}, v{PM+3}")
        if n:
            t0, j0 = UN[n - 1]
            a(f"v_mfma_f32_16x16x32_bf16 {v(SRS[n-1],4)}, {v(AV+20*j0+2*(t0-1),4)}, {v(P[n-1],4)}, 0")
            a(f"v_mfma_f32_16x16x32_bf16 {v(SRS[n-1]+4,4)}, {v(AW+2*(t0-1),4)}, {v(P[n-1],4)}, 0")
    a(f"v_mfma_f32_16x16x32_bf16 {v(SRS[7],4)}, {v(AV+20+6,4)}, {v(P[7],4)}, 0\nv_mfma_f32_16x16x32_bf16 {v(SRS[7]+4,4)}, {v(AW+6,4)}, {v(P[7],4)}, 0")
    O = AQ
    for t in range(1, 5):
        n = 2 * (t - 1); o = O + 6 * (t - 1)
        a(f"s_mov_b32 s29, {40*512*(t-1)}")
        for j in range(2):
            cv(o + 2 * j, SRS[n + j]); cv(o + 2 * j + 1, SRS[n + j] + 2)
            a(f"buffer_store_dwordx2 {v(o+2*j,2)}, v12, s[4:7], s29 offen offset:{512*j} {SC}")
        for r in range(4): a(f"v_cndmask_b32 v{SRS[n]+4+r}, v{SRS[n]+4+r}, v{SRS[n+1]+4+r}, s[94:95]")
        cv(o + 4, SRS[n] + 4); cv(o + 5, SRS[n] + 6)
        a(f"s_mov_b64 exec, s[96:97]\nbuffer_store_dwordx2 {v(o+4,2)}, v15, s[4:7], s29 offen offset:2048 {SC}\ns_mov_b64 exec, -1")
    lstamp(a, 3)
    if opt("late"): a("s_waitcnt vmcnt(0)"); lstamp(a, 4)
    publish(a, 4, 4, 14, 2)
    if opt("late"): lstamp(a, 5); a("s_waitcnt vmcnt(0)"); lstamp(a, 6)
    La = uid("Lna")
    a(f"s_cmp_lg_u32 s3, 0\ns_cbranch_scc1 {La}"); arrive_finish(a, 6); a.label(La)
    stamp(a, 4, True)

class P2:
    def __init__(s, par):
        s.par = par; s.ND = (opt("nd0", 4), 10 - opt("nd0", 4))[par]
        s.SLOT = 8192 + 2048 * s.ND; s.S = min(RING // s.SLOT, 8); s.AH = s.S - 2
        s.AA = min(opt("aha", 6), s.AH); s.GB = max(opt("gb%d" % par, 7), 11 - s.AH, 10 - s.AA)
    def adv(s): return f"s_add_u32 s37, s37, {s.SLOT}\ns_cmp_ge_u32 s37, s38\ns_cselect_b32 s42, {s.SLOT*s.S}, 0\ns_sub_u32 s37, s37, s42\ns_add_u32 s34, s34, 1"
    def setup_s(s, a):
        a(f"""
        s_load_dwordx2 s[12:13], s[0:1], {KA['w2']}
        v_lshrrev_b32 v2, 3, v1
        v_and_b32 v3, 7, v1
        v_and_b32 v4, 6, v2
        v_xor_b32 v3, v3, v4
        v_lshlrev_b32 v3, 4, v3
        v_lshl_add_u32 v2, v2, 12, v3
        s_lshl_b32 s23, s3, 17
        s_lshl_b32 s26, s50, 7
        s_add_u32 s23, s23, s26
        v_add_u32 v8, s23, v2
        """)
        for i in range(1, 4): a(f"v_add_u32 v{8+i}, {8*4096*i}, v8")
        a(f"s_lshl_b32 s23, s50, 2\ns_mul_i32 s23, s23, 40\ns_lshl_b32 s26, s3, 1\ns_add_u32 s23, s23, s26\ns_lshl_b32 s23, s23, 9\nv_lshl_add_u32 v16, v1, 4, s23")
        for i in range(1, 4): a(f"v_add_u32 v{16+i}, {40*512*i}, v16")
        a(f"s_and_b32 s23, s50, -2\ns_add_u32 s23, s23, {s.par}\ns_lshl_b32 s23, s23, 10\ns_add_u32 s23, s23, {F2}\nv_lshl_add_u32 v12, v1, 7, s23")
        a(f"s_mov_b32 s34, 0\ns_lshl_b32 s37, s3, 12\ns_add_u32 s38, s37, {s.SLOT*s.S}\ns_mov_b32 s33, 0\ns_waitcnt lgkmcnt(0)")
        srd(a, 4, 20, OT_SZ, OT_OFF)
    def early(s, a, n, vflag, tag):
        a(f"""
        s_waitcnt vmcnt({3*n})
        s_barrier
        s_waitcnt vmcnt({2*n})
        s_barrier
        s_mov_b64 exec, 0xff
        buffer_load_dword v2, v{vflag}, s[44:47], 0 offen {SC}
        s_waitcnt vmcnt({n+1})
        s_barrier
        s_waitcnt vmcnt(1)
        s_barrier
        """)
        stamp(a, 2)
        a(f"s_waitcnt vmcnt(0)\nv_cmp_ne_u32 vcc, s48, v2\ns_mov_b64 exec, -1\ns_cmp_eq_u64 vcc, 0\ns_cbranch_scc0 Lp2_{tag}{s.par}e\ns_barrier\ns_branch Lp2_{tag}{s.par}k")
    def loader_s(s, a):
        AH, AA = s.AH, s.AA
        s.setup_s(a)
        a.label(f"Lp2_s{s.par}e")
        a("s_barrier")
        gate(a, 12, 0xff)
        a.label(f"Lp2_s{s.par}k")
        stamp(a, 3)
        def issue(sc):
            a(f"s_lshl_b32 s40, s34, {11 if sc else 18}")
            for i in range(4): a(f"s_add_u32 m0, s37, {1024*i}\nbuffer_load_dwordx4 v{(16 if sc else 8)+i}, s[4:7], s40 offen {sc} lds")
            a(s.adv())
        issue_n(a, AA, lambda: issue(SC))
        steady(a, 10, 4, AA, lambda: issue(SC))
        srd(a, 4, 12, F_ * 4096); a("s_mov_b32 s34, 0")
        if AA < AH: a(f"s_waitcnt vmcnt({4*(AA-1)})\ns_barrier"); issue_n(a, AH - AA + 1, lambda: issue(""))
        steady(a, 34, 4, AH, lambda: issue(""))
        stamp(a, 5)
        drain(a, 4, AH)
        endp(a)
    def setup_d(s, a):
        ND = s.ND
        a(f"s_sub_u32 s22, s3, 2\ns_mul_i32 s23, s51, 68\ns_add_u32 s23, s23, s22\ns_lshl_b32 s23, s23, 10\nv_lshl_add_u32 v8, v1, 4, s23")
        for i in range(1, ND): a(f"v_add_u32 v{8+i}, {68*1024*i}, v8")
        a(f"""
        s_mul_i32 s37, s22, {1024*ND}
        s_add_u32 s37, s37, 8192
        s_add_u32 s38, s37, {s.SLOT*s.S}
        s_lshl_b32 s23, s52, 10
        s_add_u32 s23, s23, {F3}
        v_lshl_add_u32 v16, v1, 7, s23
        s_lshr_b32 s23, s51, 2
        s_lshl_b32 s23, s23, 11
        s_lshr_b32 s26, s52, 1
        s_mul_i32 s26, s26, {160*128}
        s_add_u32 s23, s23, s26
        s_add_u32 s23, s23, {F4}
        v_lshl_add_u32 v17, v1, 7, s23
        s_mov_b32 s34, 0
        s_mov_b32 s36, 48
        s_mov_b32 s33, 0
        """)
        srd(a, 8, 20, UW_SZ, UW_OFF)
    def loader_d(s, a):
        AH, AA, GB, ND = s.AH, s.AA, s.GB, s.ND
        s.setup_d(a)
        a.label(f"Lp2_d{s.par}e")
        a("s_barrier")
        gate(a, 16, 0xff)
        a.label(f"Lp2_d{s.par}k")
        stamp(a, 3)
        def issue():
            a("s_lshl_b32 s41, s34, 1\ns_add_u32 s41, s41, s36\ns_lshl_b32 s41, s41, 10")
            for i in range(ND): a(f"s_add_u32 m0, s37, {1024*i}\nbuffer_load_dwordx4 v{8+i}, s[8:11], s41 offen {SC} lds")
            a(s.adv())
        issue_n(a, AA, issue)
        steady(a, 10, ND, AA, issue)
        for j in range(10 - AA, GB): a(f"s_waitcnt vmcnt({ND*(9-j)})\ns_barrier")
        a("s_mov_b32 s36, 0\ns_mov_b32 s34, 0")
        gate(a, 17, 0x0fff if ND == 4 else 0x0fff0fff)
        stamp(a, 4)
        issue_n(a, GB + AH - 10, issue)
        steady(a, 34, ND, AH, issue)
        stamp(a, 5)
        drain(a, ND, AH)
        endp(a)
    def consumer(s, a):
        ND = s.ND; L = f"Lp2{s.par}"
        ACB = 16; ACA = ACB + 4 * ND; KS = 4 + 4 * ND; SETS = (ACA + 4 * ND, ACA + 4 * ND + 2 * KS)
        a(f"""
        s_load_dwordx2 s[24:25], s[0:1], {KA['b2']}
        s_load_dwordx2 s[28:29], s[0:1], {KA['out']}
        s_lshl_b32 s23, s50, 6
        s_lshl_b32 s26, s3, 4
        s_add_u32 s23, s23, s26
        v_and_b32 v2, 15, v1
        v_add_u32 v2, s23, v2
        v_lshlrev_b32 v3, 1, v2
        v_lshlrev_b32 v4, 3, v2
        s_waitcnt lgkmcnt(0)
        """)
        srd(a, 24, 24, 4096); srd(a, 8, 20, G_SZ, G_OFF); srd(a, 28, 28, S_ * 1280)
        a(f"""
        buffer_load_ushort v10, v3, s[24:27], 0 offen
        s_setprio 0
        v_lshrrev_b32 v5, 2, v1
        v_lshrrev_b32 v6, 1, v5
        v_and_b32 v6, 3, v6
        v_xor_b32 v6, s3, v6
        v_lshlrev_b32 v6, 5, v6
        v_lshl_add_u32 v5, v5, 7, v6
        v_and_b32 v6, 3, v1
        v_lshl_add_u32 v8, v6, 3, v5
        v_lshlrev_b32 v9, 4, v1
        v_add_u32 v9, 8192, v9
        v_mul_u32_u24 v12, 1280, v2
        v_lshrrev_b32 v6, 4, v1
        v_lshl_add_u32 v12, v6, 3, v12
        s_lshl_b32 s26, s51, 5
        v_add_u32 v12, s26, v12
        s_lshl_b32 s26, s3, 10
        v_lshl_add_u32 v13, v1, 3, s26
        v_and_b32 v14, 1, v6
        v_mul_u32_u24 v14, 24, v14
        v_add_u32 v14, v14, v12
        """)
        for i in range(4 * ND): a(f"v_mov_b32 v{ACA+i}, 0")
        def reads(st, ph="b"):
            r = []
            for kk in range(2):
                b = SETS[st] + KS * kk
                if ph == "a": r += [(f"ds_read_b64 {v(b,2)}, v13 offset:{kk*4096}", (kk, "b0")), (f"ds_read_b64 {v(b+2,2)}, v13 offset:{kk*4096+512}", (kk, "b1"))]
                else: r += [(f"ds_read_b64_tr_b16 {v(b,2)}, v8 offset:{kk*4096}", (kk, "b0")), (f"ds_read_b64_tr_b16 {v(b+2,2)}, v8 offset:{kk*4096+2048}", (kk, "b1"))]
                r += [(f"ds_read_b128 {v(b+4+4*dt,4)}, v9 offset:{(kk*ND+dt)*1024}", (kk, dt)) for dt in range(ND)]
            return r
        def mf(acc, st):
            return [(f"v_mfma_f32_16x16x32_bf16 {v(acc+4*dt,4)}, {v(SETS[st]+KS*kk+4+4*dt,4)}, {v(SETS[st]+KS*kk,4)}, {v(acc+4*dt,4)}", {(kk, "b1"), (kk, dt)}) for kk in range(2) for dt in range(ND)]
        ids = [x[1] for x in reads(0)]
        adv = slot_adv(s.SLOT, s.S) + ["v_add_u32 v8, s40, v8", "v_add_u32 v9, s40, v9"]
        a("s_mov_b32 s33, 0\ns_mov_b32 s37, 0\ns_barrier"); stamp(a, 5, True)
        adva = adv + ["v_add_u32 v13, s40, v13"]
        emit_step(a, [], [], reads(0, "a"), adva)
        a.label(f"{L}_ca", 3)
        a("s_barrier")
        emit_step(a, mf(ACA, 0), ids, reads(1, "a"), adva + ["s_add_u32 s33, s33, 2", "s_cmp_ge_u32 s33, 10"])
        a(f"s_barrier\ns_cbranch_scc1 {L}_cax")
        emit_step(a, mf(ACA, 1), ids, reads(0, "a"), adva)
        a(f"s_branch {L}_ca")
        a.label(f"{L}_cax")
        emit_step(a, mf(ACA, 1), ids, reads(0, "b"), adv)
        a(f"s_waitcnt vmcnt(0)\nbuffer_load_dwordx2 v[6:7], v4, s[8:11], 0 offen {SC}\nv_lshlrev_b32 v10, 16, v10")
        for i in range(4 * ND): a(f"v_mov_b32 v{ACB+i}, v10")
        a.label(f"{L}_cb", 3)
        a("s_barrier")
        emit_step(a, mf(ACB, 0), ids, reads(1), adv + ["s_add_u32 s33, s33, 2", "s_cmp_ge_u32 s33, 34"])
        a(f"s_cbranch_scc1 {L}_clast\ns_barrier")
        emit_step(a, mf(ACB, 1), ids, reads(0), adv)
        a(f"s_branch {L}_cb")
        a.label(f"{L}_clast")
        emit_step(a, mf(ACB, 1), ids, [], [])
        stamp(a, 6)
        a(f"""
        s_mov_b32 s49, 0
        {L}_g:
        s_waitcnt vmcnt(0)
        v_cmp_ne_u32 vcc, s48, v7
        s_add_u32 s49, s49, 1
        s_cmp_eq_u64 vcc, 0
        s_cbranch_scc1 {L}_gk
        buffer_load_dwordx2 v[6:7], v4, s[8:11], 0 offen {SC}
        s_cmp_lt_u32 s49, 20000
        s_cbranch_scc1 {L}_g
        s_waitcnt vmcnt(0)
        {L}_gk:
        """)
        aux = 'sc1' if opt('osc1') else ''; O = SETS[0]
        for dt in range(ND):
            for r in range(0, 4, 2): a(f"v_pk_add_f32 {v(ACA+4*dt+r,2)}, {v(ACA+4*dt+r,2)}, {v(ACB+4*dt+r,2)} neg_lo:[0,1] neg_hi:[0,1]")
            for r in range(0, 4, 2): a(f"v_pk_fma_f32 {v(ACB+4*dt+r,2)}, {v(ACA+4*dt+r,2)}, v[6:7], {v(ACB+4*dt+r,2)} op_sel_hi:[1,0,1]")
            a(f"v_cvt_pk_bf16_f32 v{O+2*dt}, v{ACB+4*dt}, v{ACB+4*dt+1}\nv_cvt_pk_bf16_f32 v{O+1+2*dt}, v{ACB+4*dt+2}, v{ACB+4*dt+3}")
            if dt & 1:
                b = O + 2 * (dt - 1)
                a(f"v_permlane16_swap_b32 v{b}, v{b+2}\nv_permlane16_swap_b32 v{b+1}, v{b+3}\nbuffer_store_dwordx4 {v(b,4)}, v14, s[28:31], 0 offen offset:{32*(dt-1)} {aux}")
            elif dt == ND - 1: a(f"buffer_store_dwordx2 {v(O+2*dt,2)}, v12, s[28:31], 0 offen offset:{32*dt} {aux}")
        endp(a)

def gen_main(a, name):
    kernel_head(a, name)
    if PROF:
        for i in range(1, 8): a(f"s_mov_b64 s[{70+2*i}:{71+2*i}], 0")
        stamp(a, 0); a("s_memtime s[66:67]")
    a(f"""
    s_cmp_ge_u32 s2, 256
    s_cbranch_scc1 Lend
    s_load_dwordx2 s[20:21], s[0:1], {KA['ws']}
    v_lshrrev_b32 v1, 6, v0
    v_readfirstlane_b32 s3, v1
    v_and_b32 v1, 63, v0
    s_and_b32 s52, s2, 7
    s_lshr_b32 s53, s2, 3
    s_lshr_b32 s22, s52, 1
    s_lshl_b32 s50, s22, 3
    s_and_b32 s23, s53, 7
    s_add_u32 s50, s50, s23
    s_lshr_b32 s26, s53, 3
    """)
    if PROF: a("s_mov_b32 s69, s3")
    NG = 15 if opt("mixed") else 30
    a("s_cmp_ge_u32 s53, 16\ns_cbranch_scc1 Lrole_qa" if opt("mixed") else "s_bitcmp1_b32 s52, 0\ns_cbranch_scc1 Lrole_qa")
    PE, PO = P2(0), P2(1)
    a(f"s_mul_i32 s51, s26, {PE.ND}")
    a(f"""
    {"s_lshl_b32 s19, s52, 4" if opt("mixed") else "s_lshl_b32 s19, s22, 5"}
    s_add_u32 s19, s19, s53
    s_mul_i32 s17, s53, 86
    s_lshr_b32 s17, s17, 8
    s_mul_i32 s23, s17, 3
    s_sub_u32 s23, s53, s23
    s_mul_i32 s16, s22, 3
    s_add_u32 s16, s16, s23
    """)
    if opt("mixed"): a("s_and_b32 s26, s52, 1\ns_mul_i32 s26, s26, 5\ns_add_u32 s17, s17, s26")
    a(f"s_mul_i32 s18, s23, {opt('stagg', 0)}\ns_mul_i32 s26, s17, {opt('stagd', 0)}\ns_add_u32 s18, s18, s26\ns_and_b32 s18, s18, 31")
    a("s_cmp_ge_u32 s3, 4\ns_cbranch_scc1 Lg_cons\ns_setprio 1\ns_cmp_ge_u32 s3, 2\ns_cbranch_scc1 Lg_h")
    def flags():
        a(f"s_waitcnt lgkmcnt(0)"); srd(a, 44, 20, FL_SZ, FL_OFF); a(f"s_load_dword s48, s[44:45], {FZ}")
    a(f"s_load_dwordx2 s[4:5], s[0:1], {KA['w1']}"); flags()
    a(f"s_cmp_ge_u32 s53, {NG}\ns_cbranch_scc1 Lsp_w")
    g1_loader_w(a)
    a.label("Lsp_w"); w1_sweep(a)
    a.label("Lsp_l"); a("s_mov_b32 s16, s52" if opt("mixed") else "s_lshr_b32 s16, s52, 1\ns_lshl_b32 s16, s16, 1\ns_add_u32 s16, s16, s53\ns_sub_u32 s16, s16, 30"); spare_loader(a)
    a("s_cmp_ge_u32 s3, 2\ns_cbranch_scc1 Lp2_d0\ns_branch Lp2_s0")
    a.label("Lg_h"); code_prefetch(a)
    if opt("mixed"):
        a(f"s_load_dwordx2 s[4:5], s[0:1], {KA['w1']}"); flags(); w1_sweep(a)
        a("s_cmp_ge_u32 s53, 15\ns_cbranch_scc1 Lsp_l")
    else:
        flags(); a("s_cmp_lt_u32 s53, 30\ns_cbranch_scc1 Lg_h2\ns_barrier\ns_barrier\ns_branch Lsp_l")
    a.label("Lg_h2"); g1_loader_h(a)
    a.label("Lg_cons")
    a(f"s_setprio 2\ns_load_dwordx2 s[4:5], s[0:1], {KA['x']}\ns_load_dwordx2 s[8:9], s[0:1], {KA['gw']}\ns_sub_u32 s3, s3, 4")
    ln_issue(a)
    srd(a, 44, 20, FL_SZ, FL_OFF)
    a(f"v_mov_b32 v2, {CTR}\nv_mov_b32 v6, 0\nv_mov_b32 v7, 0\nv_mov_b32 v8, 0\nv_mov_b32 v9, 0\nds_write_b128 v2, v[6:9]\ns_waitcnt lgkmcnt(0)\ns_barrier\ns_load_dword s48, s[44:45], {FZ}")
    ln_finish(a); stamp(a, 1, True)
    a(f"s_cmp_ge_u32 s53, {NG}\ns_cbranch_scc1 Lsp_cons")
    g1_consumer(a); a("s_branch Lp2_c0")
    a.label("Lsp_cons")
    a(f"s_load_dwordx2 s[12:13], s[0:1], {KA['dbg']}\ns_waitcnt lgkmcnt(0)"); srd(a, 12, 12, 256)
    if (not opt("noslowcol")):
        R0, SW = opt("sc0", 1024), opt("scw", 1)
        a(f"""
        s_load_dwordx2 s[4:5], s[0:1], {KA['w1']}
        s_lshr_b32 s22, s52, 1
        s_cmp_eq_u32 s22, 2
        s_cselect_b32 s23, 4, s3
        s_cmp_ge_u32 s23, {SW}
        s_cbranch_scc1 Lsc_done
        s_min_u32 s22, s22, 2
        s_lshl_b32 s22, s22, 10
        s_add_u32 s22, s22, {384 + R0 * 3072}
        s_and_b32 s23, s53, 1
        s_mul_i32 s23, s23, {SW}
        s_add_u32 s23, s23, s3
        s_lshl_b32 s23, s23, 6
        v_add_u32 v2, s23, v1
        v_mul_u32_u24 v2, 3072, v2
        s_mov_b32 s33, 0
        s_waitcnt lgkmcnt(0)
        """)
        srd(a, 4, 4, S_ * 3072)
        a(f"Lsc_l:\nbuffer_load_dword v3, v2, s[4:7], s22 offen\ns_add_u32 s22, s22, {128*SW*3072}\ns_add_u32 s33, s33, 1\ns_cmp_lt_u32 s33, {-(-(2048-R0)//(128*SW))}\ns_waitcnt vmcnt(0)\ns_cbranch_scc1 Lsc_l\nLsc_done:\ns_waitcnt lgkmcnt(0)")
    a("s_barrier\ns_cmp_lg_u32 s3, 0\ns_cbranch_scc1 Lp2_c0"); arrive_issue(a, 6); a("s_waitcnt vmcnt(0)"); arrive_finish(a, 6); a("s_branch Lp2_c0")
    a.label("Lrole_qa")
    a(f"s_mul_i32 s51, s26, {PO.ND}\ns_add_u32 s51, s51, {4*PE.ND}")
    if opt("mixed"): a("s_and_b32 s23, s53, 3\ns_lshl_b32 s16, s22, 2\ns_add_u32 s16, s16, s23\ns_lshr_b32 s26, s53, 2\ns_and_b32 s26, s26, 3\ns_and_b32 s17, s52, 1\ns_lshl_b32 s17, s17, 2\ns_add_u32 s17, s17, s26")
    else: a(f"""
    s_and_b32 s16, s22, 1
    s_lshl_b32 s16, s16, 3
    s_add_u32 s16, s16, s23
    s_lshr_b32 s17, s22, 1
    s_lshl_b32 s17, s17, 2
    s_add_u32 s17, s17, s26
    """)
    if opt("nsq"): a("s_mov_b32 s18, 0")
    elif opt("mixed"): a("s_add_u32 s18, s26, s23\ns_and_b32 s18, s18, 3\ns_mul_i32 s18, s18, 10\ns_lshr_b32 s18, s18, 2")
    else: a("s_lshl_b32 s18, s26, 1\ns_add_u32 s18, s18, s23\ns_and_b32 s18, s18, 7\ns_mul_i32 s18, s18, 10\ns_lshr_b32 s18, s18, 3")
    a(f"s_cmp_ge_u32 s3, 4\ns_cbranch_scc1 Lq_cons\ns_setprio 1\ns_cmp_eq_u32 s3, 3\ns_cbranch_scc1 Lq_idle")
    a(f"s_load_dwordx2 s[4:5], s[0:1], {KA['x']}\ns_load_dwordx2 s[8:9], s[0:1], {KA['wqkv']}"); qa_w1_sweep(a); flags(); qa_loader(a)
    a("s_cmp_ge_u32 s3, 2\ns_cbranch_scc1 Lp2_d1\ns_branch Lp2_s1")
    a.label("Lq_idle"); qa_w1_sweep(a); flags(); qa_idle(a); a("s_branch Lp2_d1")
    a.label("Lq_cons"); a("s_sub_u32 s3, s3, 4"); flags()
    a(f"v_mov_b32 v2, {CTR}\nv_mov_b32 v6, 0\nv_mov_b32 v7, 0\nv_mov_b32 v8, 0\nv_mov_b32 v9, 0\nds_write_b128 v2, v[6:9]")
    qa_consumer(a)
    for p in (PO, PE):
        a.label(f"Lp2_c{p.par}"); p.consumer(a)
        a.label(f"Lp2_s{p.par}"); p.loader_s(a)
        a.label(f"Lp2_d{p.par}"); p.loader_d(a)
    a.label("Lend"); a("s_endpgm")
    a.raw("Lcode_end:")
    return kernel_desc(name, 256, 102)

def gen_osc(a, name):
    kernel_head(a, name)
    o = next(o for o in OPTS if o.startswith("osc"))[3:].split("_")
    a(f"s_cmp_ge_u32 s2, 1\ns_cbranch_scc1 Losc_end\ns_load_dwordx2 s[4:5], s[0:1], {KA['ws']}\ns_waitcnt lgkmcnt(0)")
    srd(a, 4, 4, 0x100000, TL_OFF + 0x40000)
    def red(dst, base, stride, count, wave, slot, op):
        n = -(-count // 64)
        for i in range(n):
            a(f"v_add_u32 v1, {64*i}, v0\nv_min_u32 v1, {count-1}, v1\nv_mul_u32_u24 v1, {stride}, v1\nv_add_u32 v1, {base}, v1\nv_lshlrev_b32 v1, 9, v1\ns_mov_b32 s8, {wave*64 + slot*4}")
            a(f"buffer_load_dword v{4+i}, v1, s[4:7], s8 offen")
        a("s_waitcnt vmcnt(0)")
        if op == "add":
            for i in range(n): a(f"v_subrev_u32 v{4+i}, s20, v{4+i}")
        for i in range(1, n): a(f"v_{op}_u32 v4, v4, v{4+i}")
        a(f"v_readlane_b32 s{dst}, v4, 0")
        for i in range(1, 64): a(f"v_readlane_b32 s9, v4, {i}\ns_nop 0\ns_{op}_u32 s{dst}, s{dst}, s9")
        if op == "add": a(f"s_lshr_b32 s{dst}, s{dst}, {(64*n).bit_length()-1}\ns_add_u32 s{dst}, s{dst}, s20")
    red(20, 0, 1, 256, 0, 0, "min")
    if len(o) > 1:
        red(21, int(o[0]), int(o[1]), int(o[2]), int(o[3]), int(o[4]), dict(n="min", x="max", a="add")[o[5]])
        a("s_sub_u32 s21, s21, s20\ns_min_u32 s21, s21, 20000\ns_lshl_b32 s21, s21, 2")
    else: a("s_mov_b32 s21, 0")
    a("s_add_u32 s21, s21, 10000\nLosc_spin:\ns_memrealtime s[10:11]\ns_waitcnt lgkmcnt(0)\ns_sub_u32 s10, s10, s20\ns_cmp_lt_u32 s10, s21\ns_cbranch_scc1 Losc_spin")
    a.label("Losc_end"); a("s_endpgm")
    return kernel_desc(name, 16, 32)

def build(spec=""):
    global PROF
    OPTS[:] = [o for o in spec.split("+") if o]; PROF = bool(opt("prof")); UID[0] = 0
    ref = open(f"cdna_kernels/{NAME}.s.ref").read().split("\n")
    head = ref[:ref.index(next(x for x in ref if x.startswith("; Override")))]
    a = Asm(); a.raw("\n".join(head))
    if opt("mixed"): a.raw("; mixed")
    osc = any(o.startswith("osc") and o != "osc1" for o in OPTS)
    if osc: a.raw(f"; @launch kernel={NAME}_kernel grid=(256,1,1) block=(512,1,1) lds={LDS_SZ}\n; @launch kernel=osc_kernel grid=(1,1,1) block=(64,1,1) lds=0")
    else: a.raw(f"; @launch grid=(256,1,1) block=(512,1,1) lds={LDS_SZ}")
    a.raw('.amdgcn_target "amdgcn-amd-amdhsa--gfx950"')
    d = gen_main(a, NAME + "_kernel")
    if osc: d += gen_osc(a, "osc_kernel")
    if opt("nocomp"): a.lines = [(t, c) for t, c in a.lines if not (c is not None and (c.kind == "mfma" or c.op.startswith("ds_read")))]
    if opt("noload"): a.lines = [(t, c) for t, c in a.lines if not (c is not None and c.kind == "vmem" and c.lds)]
    if opt("nomfma"): a.lines = [(t, c) for t, c in a.lines if not (c is not None and c.kind == "mfma")]
    if opt("nods"): a.lines = [(t, c) for t, c in a.lines if not (c is not None and c.op.startswith("ds_read"))]
    if opt("nowait"): a.lines = [(t, c) for t, c in a.lines if not (c is not None and c.op == "s_waitcnt" and "lgkm" in t and "(0)" not in t)]
    if opt("al"): a.align_hot([("Lqa_c", "Lqa_clast"), ("Lg1_c", "Lg1_clast"), ("Lp2_ca", "Lp2_cax"), ("Lp2_cb", "Lp2_clast")])
    bad = a.check_branches()
    for b in bad: print("HAZARD across branch:", b, file=sys.stderr)
    assert not bad
    a.raw(d)
    return a.text()

if __name__ == "__main__":
    open(sys.argv[2] if len(sys.argv) > 2 else f"cdna_kernels/{NAME}.s", "w").write(build(sys.argv[1] if len(sys.argv) > 1 else ""))
```

```python
import sys, struct
from dsl import *

NAME = "gated_mix__sliding_local_dilated__mixer_token_mlp__prompt"
S_, D_, F_ = 2048, 640, 1536
KA = dict(x=0, wqkv=8, wo=16, w1=32, b1=40, w2=48, b2=56, gw=64, out=72, dbg=80, ws=88)
H_OFF, OT_OFF, UW_OFF, G_OFF, FL_OFF = 0, 0x280000, 0x500000, 0x800000, 0x810000
H_SZ, OT_SZ, UW_SZ, G_SZ, FL_SZ = 2621440, 2621440, 40 * 68 * 1024, 16384, 0x70000
F1, F2, F4, FZ, F3 = 0, 0x20000, 0x28000, 0x40000, 0x50000
RING = 163840; CTR = RING - 64; LDS_SZ = RING
LOG2E = 1.4426950408889634
OPTS = []; PROF = False; TL_OFF = 0x1000000
SC = "sc1"
def f2u(x): return "0x%08x" % struct.unpack("<I", struct.pack("<f", x))[0]
def v(n, k=1): return f"v{n}" if k == 1 else f"v[{n}:{n+k-1}]"
def opt(name, default=None):
    for o in OPTS:
        if o == name: return True
        if o.startswith(name + "="): return int(o.split("=")[1])
    return default

def srd(a, d, base, size, off=0):
    if off: a(f"s_add_u32 s{d}, s{base}, {off}\ns_addc_u32 s{d+1}, s{base+1}, 0")
    elif d != base: a(f"s_mov_b32 s{d}, s{base}\ns_mov_b32 s{d+1}, s{base+1}")
    a(f"s_mov_b32 s{d+2}, {size}\ns_mov_b32 s{d+3}, 0x20000")

def estamp(a, i):
    if PROF and opt("early"): a(f"s_memrealtime s[{70+2*i}:{71+2*i}]\ns_waitcnt lgkmcnt(0)")
def lstamp(a, i):
    if PROF and opt("late"): a(f"s_memrealtime s[{70+2*i}:{71+2*i}]\ns_waitcnt lgkmcnt(0)")
def stamp(a, i, wait=False):
    if PROF and opt("clk"):
        k = {2: 1, 3: 3, 6: 5}.get(i)
        if i == 0: a("s_memrealtime s[70:71]")
        elif k and (wait or i == 6): a(f"s_memrealtime s[{70+2*k}:{71+2*k}]\ns_memtime s[{72+2*k}:{73+2*k}]\ns_waitcnt lgkmcnt(0)")
        return
    if PROF and (i == 0 or not (opt("early") or opt("late"))): a(f"s_memrealtime s[{70+2*i}:{71+2*i}]" + ("\ns_waitcnt lgkmcnt(0)" if wait else ""))
def endp(a):
    if PROF:
        a(f"""
        s_waitcnt vmcnt(0)
        s_memrealtime s[84:85]
        s_memtime s[86:87]
        s_waitcnt lgkmcnt(0)
        s_sub_u32 s86, s86, s66
        s_add_u32 s60, s20, {TL_OFF + 0x40000}
        s_addc_u32 s61, s21, 0
        s_mov_b32 s62, 0x40000
        s_mov_b32 s63, 0x20000
        s_mov_b64 exec, 1
        s_lshl_b32 s64, s2, 3
        s_add_u32 s64, s64, s69
        s_lshl_b32 s64, s64, 6
        v_mov_b32 v0, s64
        """)
        for i in range(8): a(f"v_mov_b32 v{4+i}, s{70+2*i}")
        a("v_mov_b32 v12, s86")
        a("buffer_store_dwordx4 v[4:7], v0, s[60:63], 0 offen\nbuffer_store_dwordx4 v[8:11], v0, s[60:63], 0 offen offset:16\nbuffer_store_dword v12, v0, s[60:63], 0 offen offset:32")
    a("s_endpgm")

def emit_step(a, M, prev_ids, R, extra, per_gap=2, head=2):
    q = list(prev_ids); fill = [("r", x) for x in R] + [("x", x) for x in extra]
    def put(n):
        for _ in range(n):
            if not fill: return
            k, x = fill.pop(0)
            if k == "r": a(x[0]); q.append(("n", x[1]))
            else: a(x)
    put(head)
    for text, need_ in M:
        idx = [i for i, t in enumerate(q) if t in need_]
        if idx:
            n = min(len(q) - 1 - idx[-1], 15)
            a(f"s_waitcnt lgkmcnt({n})"); del q[:len(q) - n]
        a(text); put(per_gap)
    put(len(fill))

def slot_adv(SLOT, S):
    return [f"s_add_u32 s40, s37, {SLOT}", f"s_cmp_ge_u32 s40, {SLOT*S}", "s_cselect_b32 s41, 0, s40", "s_sub_u32 s40, s41, s37", "s_mov_b32 s37, s41"]

def thr(name, default):
    t = opt("t" + name, default if opt("thr") else 0)
    return f"s_waitcnt vmcnt({t-1})\n" if t else ""
UID = [0]
def uid(p): UID[0] += 1; return f"{p}{UID[0]}"

def issue_n(a, n, issue):
    L = uid("Li")
    a(f"s_add_u32 s32, s33, {n}")
    a.label(L); issue()
    a(f"s_add_u32 s33, s33, 1\ns_cmp_lt_u32 s33, s32\ns_cbranch_scc1 {L}")
def steady(a, upto, n, ahead, issue):
    L = uid("Ls")
    a.label(L)
    a(f"s_waitcnt vmcnt({n*(ahead-1)})\ns_barrier"); issue()
    a(f"s_add_u32 s33, s33, 1\ns_cmp_lt_u32 s33, {upto}\ns_cbranch_scc1 {L}")
def drain(a, n, ahead):
    for k in range(ahead - 1, -1, -1): a(f"s_waitcnt vmcnt({n*k})\ns_barrier")

def publish(a, ctr, nw, vaddr, lanes, keep=0):
    L = uid("Lpub")
    a(f"""
    s_waitcnt vmcnt({keep})
    s_mov_b64 exec, 1
    v_mov_b32 v2, {CTR + ctr}
    v_mov_b32 v3, 1
    ds_add_rtn_u32 v3, v2, v3
    s_waitcnt lgkmcnt(0)
    v_readfirstlane_b32 s22, v3
    s_mov_b64 exec, {(1 << lanes) - 1}
    s_cmp_lg_u32 s22, {nw - 1}
    s_cbranch_scc1 {L}
    v_mov_b32 v3, s48
    buffer_store_dword v3, v{vaddr}, s[44:47], 0 offen {SC}
    """)
    a.label(L); a("s_mov_b64 exec, -1")
def gate(a, vaddr, mask, two=False):
    L = uid("Lg"); slp = "s_sleep %d" % opt("slp", 4) if opt("slp", 4) else ""
    a(f"s_mov_b32 s49, 0\ns_mov_b32 exec_lo, {mask & 0xffffffff}\ns_mov_b32 exec_hi, {mask >> 32}")
    a.label(L)
    if two: a(f"buffer_load_dword v2, v{vaddr}, s[44:47], 0 offen {SC}\ns_mov_b32 s22, {two}\nbuffer_load_dword v3, v{vaddr}, s[44:47], s22 offen {SC}\ns_waitcnt vmcnt(0)\nv_xor_b32 v2, s48, v2\nv_xor_b32 v3, s48, v3\nv_or_b32 v2, v2, v3")
    else: a(f"buffer_load_dword v2, v{vaddr}, s[44:47], 0 offen {SC}\ns_waitcnt vmcnt(0)\nv_xor_b32 v2, s48, v2")
    a(f"v_cmp_ne_u32 vcc, 0, v2\ns_add_u32 s49, s49, 1\ns_cmp_eq_u64 vcc, 0\ns_cbranch_scc1 {L}d\n{slp}\ns_cmp_lt_u32 s49, 20000\ns_cbranch_scc1 {L}")
    a.label(L + "d"); a("s_mov_b64 exec, -1")
def tag_ready(a):
    a("s_waitcnt lgkmcnt(0)\ns_mul_i32 s48, s48, 1664525\ns_add_u32 s48, s48, 1013904223")
def step_tag(a):
    a(f"v_lshlrev_b32 v12, 7, v1"); gate(a, 12, (1 << 64) - 1, two=8192)
    a(f"v_lshrrev_b32 v12, 3, v1\nv_lshlrev_b32 v12, 11, v12\nv_and_b32 v13, 7, v1\nv_lshl_add_u32 v12, v13, 7, v12\nv_add_u32 v12, {F2}, v12"); gate(a, 12, (1 << 64) - 1, two=16384)
    a(f"s_mov_b64 exec, 1\nv_mov_b32 v2, s48\nv_mov_b32 v3, {FZ}\nbuffer_store_dword v2, v3, s[44:47], 0 offen {SC}\ns_mov_b64 exec, -1")

def code_prefetch(a):
    L = uid("Lpc")
    a(f"s_getpc_b64 s[30:31]\n{L}:\ns_sub_u32 s30, s30, {L}-{NAME}_kernel\ns_subb_u32 s31, s31, 0\nv_lshlrev_b32 v2, 7, v1")
    for i in range(opt("ncode", 0)):
        a(f"v_min_u32 v3, Lcode_end-{NAME}_kernel-4, v2\nglobal_load_dword v{40+i}, v3, s[30:31]\nv_add_u32 v2, 8192, v2")

def ln_issue(a):
    a(f"""
    s_lshl_b32 s22, s19, 4
    s_lshl_b32 s23, s3, 2
    s_add_u32 s22, s22, s23
    v_lshrrev_b32 v2, 4, v1
    v_add_u32 v10, s22, v2
    v_and_b32 v11, 15, v1
    v_lshlrev_b32 v4, 4, v11
    v_mul_u32_u24 v5, 1280, v10
    v_add_u32 v5, v5, v4
    s_waitcnt lgkmcnt(0)
    """)
    srd(a, 4, 4, H_SZ); srd(a, 8, 8, 1280)
    for i in range(5): a(f"buffer_load_dwordx4 {v(16+4*i,4)}, v5, s[4:7], 0 offen offset:{256*i}")
    for i in range(5): a(f"buffer_load_dwordx4 {v(36+4*i,4)}, v4, s[8:11], 0 offen offset:{256*i}")
def ln_finish(a):
    X, GW, U = 16, 36, 56
    srd(a, 4, 20, H_SZ, H_OFF); srd(a, 8, 20, G_SZ, G_OFF)
    a("s_mov_b32 s30, 0x3f803f80\ns_mov_b32 s31, 0xffff0000"); estamp(a, 1); a("s_waitcnt vmcnt(5)"); estamp(a, 2)
    a(f"v_dot2_f32_bf16 v6, v{X}, s30, 0\nv_dot2_f32_bf16 v8, v{X+1}, s30, 0")
    for i in range(2, 20): a(f"v_dot2_f32_bf16 v{6+2*(i&1)}, v{X+i}, s30, v{6+2*(i&1)}")
    for i in range(20): a(f"v_lshlrev_b32 v{U+2*i}, 16, v{X+i}\nv_and_b32 v{U+1+2*i}, s31, v{X+i}")
    def red(*rs):
        for sh in (8, 4, 2, 1):
            for r in rs: a(f"v_add_f32_dpp v{r}, v{r}, v{r} row_ror:{sh} row_mask:0xf bank_mask:0xf")
    a("v_add_f32 v6, v6, v8"); red(6)
    a(f"v_mul_f32 v6, {f2u(1/640)}, v6")
    for i in range(20): a(f"v_pk_add_f32 {v(U+2*i,2)}, {v(U+2*i,2)}, v[6:7] op_sel_hi:[1,0] neg_lo:[0,1] neg_hi:[0,1]")
    a(f"v_pk_mul_f32 v[12:13], {v(U,2)}, {v(U,2)}\nv_pk_mul_f32 v[14:15], {v(U+2,2)}, {v(U+2,2)}")
    for i in range(2, 20): a(f"v_pk_fma_f32 {v(12+2*(i&1),2)}, {v(U+2*i,2)}, {v(U+2*i,2)}, {v(12+2*(i&1),2)}")
    a("v_pk_add_f32 v[12:13], v[12:13], v[14:15]\nv_add_f32 v12, v12, v13")
    red(12)
    a(f"v_mov_b32 v8, {f2u(1e-5)}\nv_fmac_f32 v8, {f2u(1/640)}, v12\nv_rsq_f32 v12, v8")
    for j in range(5):
        for i in range(4*j, 4*j+4): a(f"v_pk_mul_f32 {v(U+2*i,2)}, {v(U+2*i,2)}, v[12:13] op_sel_hi:[1,0]")
        for i in range(4*j, 4*j+4): a(f"v_cvt_pk_bf16_f32 v{96+i}, v{U+2*i}, v{U+1+2*i}")
        a(f"buffer_store_dwordx4 {v(96+4*j,4)}, v5, s[4:7], 0 offen offset:{256*j} {SC}")
    estamp(a, 3)
    a("s_barrier")
    a(f"s_waitcnt vmcnt(5)\nv_dot2_f32_bf16 v9, v{X}, v{GW}, 0\nv_dot2_f32_bf16 v8, v{X+1}, v{GW+1}, 0")
    for i in range(2, 20): a(f"v_dot2_f32_bf16 v{9-(i&1)}, v{X+i}, v{GW+i}, v{9-(i&1)}")
    a("v_add_f32 v9, v9, v8"); red(9)
    a(f"""
    v_mul_f32 v9, {f2u(-LOG2E)}, v9
    v_exp_f32 v9, v9
    v_add_f32 v9, 1.0, v9
    v_rcp_f32 v8, v9
    v_lshlrev_b32 v10, 3, v10
    """)
    tag_ready(a)
    a(f"""
    v_mov_b32 v9, s48
    s_mov_b32 exec_lo, 0x00010001
    s_mov_b32 exec_hi, 0x00010001
    buffer_store_dwordx2 v[8:9], v10, s[8:11], 0 offen {SC}
    s_mov_b64 exec, -1
    s_lshl_b32 s22, s19, 7
    v_lshl_add_u32 v10, v1, {14 if opt("mixed") else 15}, s22
    """)
    if opt("early"): a("s_waitcnt vmcnt(1)"); estamp(a, 4)
    publish(a, 0, 4, 10, 4, keep=1)
    if opt("early"): estamp(a, 5); a("s_waitcnt vmcnt(0)"); estamp(a, 6)

G1_S, G1_SLOT = 6, 24576
def w1_sweep(a):
    a(f"s_lshl_b32 s23, s53, {2 if opt('mixed') else 1}\ns_add_u32 s23, s23, s3\ns_lshl_b32 s23, s23, 6\nv_add_u32 v2, s23, v1\ns_lshr_b32 s23, s52, 1\ns_mul_i32 s23, s23, 768\ns_mov_b32 s26, 43691")
    for n in range(3):
        a(f"v_add_u32 v3, {4096*n}, v2\nv_mul_u32_u24 v4, s26, v3\nv_lshrrev_b32 v4, 18, v4\nv_mul_u32_u24 v5, {3072-768}, v4\nv_lshl_add_u32 v5, v3, 7, v5\nv_add_u32 v{16+n}, s23, v5")
        if not opt("noslowcol"):
            a(f"v_and_b32 v5, 0x380, v{16+n}\nv_cmp_le_u32 vcc, {opt('sc0', 1024)}, v4\nv_cndmask_b32_e64 v5, 0, v5, vcc\nv_cmp_eq_u32 vcc, 0x180, v5\nv_cndmask_b32_e64 v{16+n}, v{16+n}, -16, vcc")
    srd(a, 4, 4, S_ * 3072)
    a("s_barrier"); estamp(a, 1)
    pre = opt("pre", 2)
    for n in range(3):
        if n == pre: tag_ready(a); a("s_barrier")
        if not opt("nopfw1"): a(f"buffer_load_dword v{20+n}, v{16+n}, s[4:7], 0 offen")
    if pre == 3: tag_ready(a); a("s_barrier")
    estamp(a, 2)
    if opt("pfwait"): a("s_waitcnt vmcnt(0)")
    estamp(a, 3)
def g1_loader_w(a):
    a(f"""
    v_lshrrev_b32 v2, 4, v1
    s_lshl_b32 s23, s3, 2
    v_add_u32 v2, s23, v2
    v_lshlrev_b32 v4, 1, v2
    v_and_b32 v3, 15, v1
    v_xor_b32 v3, v3, v4
    v_lshlrev_b32 v3, 4, v3
    v_mul_u32_u24 v2, 3072, v2
    s_lshl_b32 s26, s16, 8
    v_add3_u32 v8, v2, v3, s26
    """)
    for i in range(1, 8): a(f"v_add_u32 v{8+i}, {8*3072*i}, v8")
    a(f"""
    s_mov_b32 s34, s18
    s_lshl_b32 s37, s3, 10
    s_add_u32 s38, s37, {G1_SLOT*G1_S}
    s_mov_b32 s33, 0
    """)
    def issue():
        a(f"s_mul_i32 s40, s34, {64*3072}" if not opt("wwrap") else f"s_and_b32 s40, s34, 3\ns_mul_i32 s40, s40, {64*3072}")
        for i in range(8): a(f"s_add_u32 m0, s37, {2048*i}\n{thr('w', 11)}buffer_load_dwordx4 v{8+i}, s[4:7], s40 offen lds")
        a(f"s_add_u32 s37, s37, {G1_SLOT}\ns_cmp_ge_u32 s37, s38\ns_cselect_b32 s42, {G1_SLOT*G1_S}, 0\ns_sub_u32 s37, s37, s42\ns_add_u32 s34, s34, 1\ns_and_b32 s34, s34, 31")
    w1_sweep(a)
    if opt("s15"): a("s_barrier")
    if not (not opt("s2")): a("s_barrier")
    issue_n(a, G1_S - 2, issue)
    if opt("early"): estamp(a, 4); a("s_waitcnt vmcnt(0)"); estamp(a, 5)
    stamp(a, 1)
    steady(a, 32, 8, G1_S - 2, issue)
    if (not opt("earlyp")): drain(a, 8, G1_S - 2); stamp(a, 2); a("s_branch Lp2_s0")
    else: P2(0).setup_s(a); P2(0).early(a, 8, 12, "s")
def g1_loader_h(a):
    a(f"""
    v_lshrrev_b32 v2, 3, v1
    v_and_b32 v3, 7, v1
    v_and_b32 v4, 6, v2
    v_xor_b32 v3, v3, v4
    v_lshlrev_b32 v3, 4, v3
    s_sub_u32 s22, s3, 2
    s_lshl_b32 s23, s22, 3
    v_add_u32 v2, s23, v2
    v_mul_u32_u24 v2, 1280, v2
    s_lshl_b32 s26, s17, 7
    v_add3_u32 v8, v2, v3, s26
    """)
    for i in range(1, 4): a(f"v_add_u32 v{8+i}, {16*1280*i}, v8")
    a(f"""
    s_lshl_b32 s23, s52, 14
    v_lshl_add_u32 v12, v1, 7, s23
    s_mov_b32 s34, s18
    s_lshl_b32 s37, s22, 10
    s_add_u32 s37, s37, 16384
    s_add_u32 s38, s37, {G1_SLOT*G1_S}
    s_mov_b32 s33, 0
    """)
    srd(a, 4, 20, H_SZ, H_OFF)
    def issue():
        a(f"s_mul_i32 s40, s34, {64*1280}" if not opt("hwrap") else f"s_and_b32 s40, s34, 3\ns_mul_i32 s40, s40, {64*1280}")
        for i in range(4): a(f"s_add_u32 m0, s37, {2048*i}\n{thr('h', 5)}buffer_load_dwordx4 v{8+i}, s[4:7], s40 offen {'' if opt('hplain') else SC} lds")
        a(f"s_add_u32 s37, s37, {G1_SLOT}\ns_cmp_ge_u32 s37, s38\ns_cselect_b32 s42, {G1_SLOT*G1_S}, 0\ns_sub_u32 s37, s37, s42\ns_add_u32 s34, s34, 1\ns_and_b32 s34, s34, 31")
    a("s_barrier"); tag_ready(a); a("s_barrier")
    if opt("s15"): a("s_barrier")
    estamp(a, 1)
    gate(a, 12, (1 << 64) - 1, two=8192)
    stamp(a, 1); estamp(a, 3)
    if opt("early"): a("s_add_u32 s78, s70, s49\ns_mov_b32 s79, 0")
    if not (not opt("s2")): a("s_barrier")
    issue_n(a, G1_S - 2, issue)
    steady(a, 32, 4, G1_S - 2, issue)
    if (not opt("earlyp")): drain(a, 4, G1_S - 2); stamp(a, 2); a("s_branch Lp2_d0")
    else: P2(0).setup_d(a); P2(0).early(a, 4, 16, "d")
def g1_consumer(a):
    L = "Lg1"
    if opt("s15"): a("s_barrier")
    ACC, T = 16, 48
    a(f"""
    s_load_dwordx2 s[24:25], s[0:1], {KA['b1']}
    s_and_b32 s22, s3, 1
    s_lshr_b32 s23, s3, 1
    s_lshl_b32 s26, s16, 8
    s_lshl_b32 s27, s22, 7
    s_add_u32 s26, s26, s27
    v_lshrrev_b32 v2, 4, v1
    v_lshl_add_u32 v3, v2, 3, s26
    s_waitcnt lgkmcnt(0)
    """)
    srd(a, 24, 24, 3072); srd(a, 8, 20, UW_SZ, UW_OFF)
    for ft in range(4): a(f"buffer_load_dwordx2 {v(T+2*ft,2)}, v3, s[24:27], 0 offen offset:{32*ft}")
    a(f"""
    s_setprio 0
    v_lshrrev_b32 v5, 2, v1
    v_and_b32 v6, 3, v1
    v_lshlrev_b32 v6, 3, v6
    v_and_b32 v7, 7, v5
    v_lshl_add_u32 v4, v5, 8, v6
    s_lshl_b32 s27, s22, 2
    """)
    for ft in range(4): a(f"s_add_u32 s28, s27, {ft}\nv_xor_b32 v2, s28, v7\nv_lshl_add_u32 v{8+ft}, v2, 5, v4")
    a(f"v_lshrrev_b32 v7, 1, v5\nv_and_b32 v7, 3, v7\nv_lshl_add_u32 v4, v5, 7, v6\nv_add_u32 v4, 16384, v4\ns_lshl_b32 s27, s23, 1")
    for dt in range(2): a(f"s_add_u32 s28, s27, {dt}\nv_xor_b32 v2, s28, v7\nv_lshl_add_u32 v{12+dt}, v2, 5, v4")
    a(f"""
    s_lshl_b32 s28, s17, 2
    s_add_u32 s28, s28, s27
    s_mul_i32 s28, s28, 68
    s_lshl_b32 s29, s16, 2
    s_add_u32 s28, s28, s29
    s_lshl_b32 s29, s22, 1
    s_add_u32 s28, s28, s29
    s_lshl_b32 s28, s28, 10
    v_lshl_add_u32 v14, v1, 4, s28
    s_lshl_b32 s28, s17, 4
    s_add_u32 s28, s28, s16
    s_lshl_b32 s28, s28, 7
    s_add_u32 s28, s28, {F4}
    v_mul_u32_u24 v15, {160*128}, v1
    v_add_u32 v15, s28, v15
    s_mov_b32 s31, 0xffff0000
    s_waitcnt vmcnt(0)
    """)
    for ft in range(4):
        for dt in range(2):
            b = ACC + 8 * ft + 4 * dt
            a(f"v_lshlrev_b32 v{b}, 16, v{T+2*ft}\nv_and_b32 v{b+1}, s31, v{T+2*ft}\nv_lshlrev_b32 v{b+2}, 16, v{T+2*ft+1}\nv_and_b32 v{b+3}, s31, v{T+2*ft+1}")
    SETS = (48, 96)
    def reads(st):
        r = []
        for kk in range(2):
            b = SETS[st] + 24 * kk
            for dt in range(2): r += [(f"ds_read_b64_tr_b16 {v(b+4*dt+2*h,2)}, v{12+dt} offset:{kk*4096+2048*h}", (kk, "b", dt, h)) for h in range(2)]
            for ft in range(4): r += [(f"ds_read_b64_tr_b16 {v(b+8+4*ft+2*h,2)}, v{8+ft} offset:{kk*8192+4096*h}", (kk, "a", ft, h)) for h in range(2)]
        return r
    def mf(st):
        return [(f"v_mfma_f32_16x16x32_bf16 {v(ACC+8*ft+4*dt,4)}, {v(SETS[st]+24*kk+8+4*ft,4)}, {v(SETS[st]+24*kk+4*dt,4)}, {v(ACC+8*ft+4*dt,4)}", {(kk, "a", ft, 1)})
                for kk in range(2) for ft, dt in ([(f, d) for d in range(2) for f in range(4)] if opt("g1ord") else [(f, d) for f in range(4) for d in range(2)])]
    ids = [x[1] for x in reads(0)]
    adv = slot_adv(G1_SLOT, G1_S) + [f"v_add_u32 v{8+i}, s40, v{8+i}" for i in range(6)]
    if not (not opt("s2")): a("s_barrier")
    a("s_mov_b32 s33, 0\ns_mov_b32 s37, 0\ns_barrier"); stamp(a, 2, True)
    emit_step(a, [], [], reads(0), adv)

    a.label(f"{L}_c", 3)
    a("s_barrier")
    emit_step(a, mf(0), ids, reads(1), adv + ["s_add_u32 s33, s33, 2", "s_cmp_ge_u32 s33, 32"])
    a(f"s_cbranch_scc1 {L}_clast\ns_barrier")
    emit_step(a, mf(1), ids, reads(0), adv)
    a(f"s_branch {L}_c")
    a.label(f"{L}_clast")
    a("s_waitcnt lgkmcnt(0)" + ("\ns_barrier" if opt("noe2") else "")); stamp(a, 3, True); lstamp(a, 1)
    last = [t for t, _ in mf(1)]
    grp = lambda p, dt: [last[8 * kk + 2 * (2 * p + h) + dt] for kk in range(2) for h in range(2)]
    G = [(p, dt) for p in range(2) for dt in range(2)]
    for t in grp(*G[0]) + grp(*G[1]): a(t)
    rest = grp(*G[2]) + grp(*G[3])
    c0 = -2 * 0.7978845608028654 * LOG2E; c1 = c0 * 0.044715
    a(f"v_mov_b32 v2, {f2u(c0)}\nv_mov_b32 v4, {f2u(c1)}\nv_mov_b32 v6, 1.0\ns_setprio 2")
    lstamp(a, 2)
    T = 48
    for n, (p, dt) in enumerate(G):
        o = 72 + 4 * n
        prs = [ACC + 8 * (2 * p + h) + 4 * dt + 2 * q for h in range(2) for q in range(2)]
        def ops(l):
            for x in l:
                a(x)
                if rest and not x.startswith(("v_exp", "v_rcp")): a(rest.pop(0))
        ops([f"v_pk_mul_f32 {v(T+2*i,2)}, {v(b,2)}, {v(b,2)}" for i, b in enumerate(prs)])
        ops([f"v_pk_fma_f32 {v(T+2*i,2)}, {v(T+2*i,2)}, v[4:5], v[2:3] op_sel_hi:[1,0,0]" for i, b in enumerate(prs)])
        ops([f"v_pk_mul_f32 {v(T+2*i,2)}, {v(T+2*i,2)}, {v(b,2)}" for i, b in enumerate(prs)])
        ops([f"v_exp_f32 v{T+i}, v{T+i}" for i in range(8)])
        ops([f"v_pk_add_f32 {v(T+2*i,2)}, {v(T+2*i,2)}, v[6:7] op_sel_hi:[1,0]" for i, b in enumerate(prs)])
        ops([f"v_rcp_f32 v{T+i}, v{T+i}" for i in range(8)])
        ops([f"v_pk_mul_f32 {v(T+2*i,2)}, {v(T+2*i,2)}, {v(b,2)}" for i, b in enumerate(prs)])
        ops([f"v_cvt_pk_bf16_f32 v{o+i}, v{T+2*i}, v{T+2*i+1}" for i in range(4)])
        a(f"s_mov_b32 s29, {dt*68*1024}\nbuffer_store_dwordx4 {v(o,4)}, v14, s[8:11], s29 offen offset:{1024*p} {SC}")
    lstamp(a, 3)
    if not opt("noe2"): a("s_barrier")
    if opt("late"): a("s_waitcnt vmcnt(0)"); lstamp(a, 4)
    publish(a, 4, 4, 15, 4)
    if opt("late"): lstamp(a, 5); a("s_waitcnt vmcnt(0)"); lstamp(a, 6)
    stamp(a, 4, True)

def spare_loader(a):
    a(f"""
    s_load_dwordx2 s[4:5], s[0:1], {KA['wo']}
    s_load_dwordx2 s[12:13], s[0:1], {KA['w2']}
    v_lshrrev_b32 v2, 3, v1
    v_and_b32 v3, 7, v1
    v_and_b32 v4, 6, v2
    v_xor_b32 v3, v3, v4
    v_lshlrev_b32 v14, 4, v3
    v_mul_u32_u24 v15, 1280, v2
    v_add_u32 v15, v15, v14
    v_lshrrev_b32 v3, 2, v2
    v_lshl_add_u32 v3, v3, 4, v2
    v_add_u32 v3, 16, v3
    v_mul_u32_u24 v3, 1280, v3
    v_add_u32 v14, v14, v3
    s_mul_i32 s23, s3, {7*4096}
    v_lshrrev_b32 v5, 2, v1
    v_lshrrev_b32 v6, 1, v5
    v_and_b32 v6, 3, v6
    v_lshlrev_b32 v5, 7, v5
    v_and_b32 v7, 3, v1
    v_lshlrev_b32 v7, 3, v7
    v_add3_u32 v5, v5, v7, s23
    """)
    for t in range(4): a(f"v_xor_b32 v7, {t}, v6\nv_lshl_add_u32 v{8+t}, v7, 5, v5")
    a(f"v_lshlrev_b32 v12, 4, v1\ns_lshl_b32 s26, s16, 7\ns_add_u32 s26, s26, {F3}\nv_lshl_add_u32 v13, v1, 10, s26\ns_waitcnt lgkmcnt(0)")
    srd(a, 4, 4, 640 * 1280); srd(a, 8, 20, UW_SZ, UW_OFF); srd(a, 12, 12, F_ * 4096)
    def task():
        a("s_lshl_b32 s26, s33, 2\ns_add_u32 s26, s26, s3\ns_min_u32 s26, s26, 24\ns_mul_i32 s27, s16, 25\ns_add_u32 s27, s27, s26\ns_mul_i32 s26, s27, 6554\ns_lshr_b32 s26, s26, 16\ns_mul_i32 s28, s26, 10\ns_sub_u32 s27, s27, s28")
    L = uid("Lwo")
    a("s_mov_b32 s33, 0"); a.label(L); task()
    for half in range(2):
        a(f"""
        s_lshl_b32 s28, s26, 1
        s_add_u32 s28, s28, {half}
        s_mul_i32 s29, s28, 52
        s_lshr_b32 s29, s29, 8
        s_mul_i32 s30, s29, 5
        s_sub_u32 s28, s28, s30
        s_mul_i32 s29, s29, 80
        s_mul_i32 s30, s28, 20
        s_cmp_eq_u32 s28, 4
        s_cselect_b64 vcc, -1, 0
        s_cselect_b32 s30, 0, s30
        s_cselect_b32 s31, 40, 8
        s_mul_i32 s31, s31, 1280
        s_add_u32 s29, s29, s30
        s_mul_i32 s28, s29, 1280
        s_lshl_b32 s29, s27, 7
        s_add_u32 s28, s28, s29
        v_cndmask_b32 v2, v15, v14, vcc
        """)
        for i in range(2): a(f"s_add_u32 m0, s23, {2048*half+1024*i}\nbuffer_load_dwordx4 v2, s[4:7], s28 offen lds\ns_add_u32 s28, s28, s31")
    a(f"s_add_u32 s23, s23, 4096\ns_add_u32 s33, s33, 1\ns_cmp_lt_u32 s33, 7\ns_cbranch_scc1 {L}\ns_waitcnt vmcnt(0)\ns_mov_b32 s33, 0")
    L = uid("Lwo"); a.label(L); task()
    for t in range(4): a(f"ds_read_b64_tr_b16 {v(16+4*t,2)}, v{8+t}\nds_read_b64_tr_b16 {v(18+4*t,2)}, v{8+t} offset:2048\nv_add_u32 v{8+t}, 4096, v{8+t}")
    a(f"s_lshl_b32 s28, s27, 2\ns_mul_i32 s28, s28, 68\ns_add_u32 s28, s28, s26\ns_add_u32 s28, s28, 48\ns_lshl_b32 s28, s28, 10")
    for t in range(4): a(f"s_waitcnt lgkmcnt({6-2*t})\nbuffer_store_dwordx4 {v(16+4*t,4)}, v12, s[8:11], s28 offen {SC}\ns_add_u32 s28, s28, {68*1024}")
    a(f"s_add_u32 s33, s33, 1\ns_cmp_lt_u32 s33, 7\ns_cbranch_scc1 {L}")
    publish(a, 8, 4, 13, 8)
    stamp(a, 1)
    if opt("spw2"):
        L = uid("Lw2")
        a(f"""
        s_and_b32 s22, s16, 1
        s_lshl_b32 s22, s22, 2
        s_add_u32 s22, s22, s3
        s_lshl_b32 s22, s22, 3
        v_lshrrev_b32 v2, 3, v1
        v_add_u32 v2, s22, v2
        v_lshlrev_b32 v2, 12, v2
        v_and_b32 v3, 7, v1
        v_lshl_add_u32 v2, v3, 7, v2
        s_lshr_b32 s22, s52, 1
        s_lshl_b32 s22, s22, 10
        s_mov_b32 s33, 0
        {L}:
        buffer_load_dword v30, v2, s[12:15], s22 offen
        s_add_u32 s22, s22, {64*4096}
        s_add_u32 s33, s33, 1
        s_cmp_lt_u32 s33, 24
        s_cbranch_scc1 {L}
        """)
    h0 = opt("sph", 14)
    if h0:
        L = uid("Lsh"); n = ((32 - h0 + 1) // 2 * 10 + 7) // 8
        srd(a, 4, 20, H_SZ, H_OFF)
        a(f"s_lshl_b32 s23, s52, 14\nv_lshl_add_u32 v12, v1, 7, s23")
        gate(a, 12, (1 << 64) - 1, two=8192)
        a(f"""
        s_and_b32 s22, s16, 1
        s_lshl_b32 s22, s22, 2
        s_add_u32 s22, s22, s3
        v_lshlrev_b32 v2, 7, v1
        s_mov_b32 s33, 0
        {L}:
        s_mul_i32 s23, s22, 6554
        s_lshr_b32 s23, s23, 16
        s_mul_i32 s23, s23, {64*1280}
        s_lshl_b32 s26, s22, 13
        s_add_u32 s23, s23, s26
        s_add_u32 s23, s23, {h0*64*1280}
        buffer_load_dword v30, v2, s[4:7], s23 offen {SC}
        s_add_u32 s22, s22, 8
        s_add_u32 s33, s33, 1
        s_cmp_lt_u32 s33, {n}
        s_cbranch_scc1 {L}
        """)
    nw = opt("c3", 2)
    if nw:
        L = uid("Lc3")
        a(f"""
        s_cmp_ge_u32 s3, {nw}
        s_cbranch_scc1 {L}d
        s_and_b32 s22, s16, 1
        s_mul_i32 s22, s22, {nw}
        s_add_u32 s22, s22, s3
        s_lshl_b32 s22, s22, 6
        v_add_u32 v2, s22, v1
        v_lshlrev_b32 v2, 12, v2
        s_lshr_b32 s22, s52, 1
        s_lshl_b32 s22, s22, 10
        s_add_u32 s22, s22, 384
        s_mov_b32 s33, 0
        {L}:
        buffer_load_dword v30, v2, s[12:15], s22 offen
        s_add_u32 s22, s22, {128*nw*4096}
        s_add_u32 s33, s33, 1
        s_cmp_lt_u32 s33, {12//nw}
        s_waitcnt vmcnt(0)
        s_cbranch_scc1 {L}
        {L}d:
        """)
    stamp(a, 2)

QA_S, QA_SLOT, QA_W = 3, 49152, 18432
def qa_w1_sweep(a):
    if not opt("qsw"): return
    a(f"""
    s_load_dwordx2 s[12:13], s[0:1], {KA['w1']}
    s_lshr_b32 s22, s2, 1
    s_lshl_b32 s22, s22, 2
    s_add_u32 s22, s22, s3
    s_lshl_b32 s23, s22, 12
    s_lshl_b32 s22, s22, 13
    s_add_u32 s23, s23, {512*8192}
    v_lshlrev_b32 v2, 7, v1
    s_waitcnt lgkmcnt(0)
    """)
    srd(a, 12, 12, S_ * 3072)
    a("buffer_load_dword v32, v2, s[12:15], s22 offen\ns_mov_b32 exec_hi, 0\nbuffer_load_dword v33, v2, s[12:15], s23 offen\ns_mov_b32 exec_hi, -1")
def w2_setup(a):
    a(f"""
    s_load_dwordx2 s[24:25], s[0:1], {KA['w2']}
    v_lshrrev_b32 v2, 3, v1
    s_lshl_b32 s22, s53, 3
    v_add_u32 v2, s22, v2
    v_lshlrev_b32 v2, 12, v2
    v_and_b32 v3, 7, v1
    v_lshl_add_u32 v2, v3, 7, v2
    s_lshr_b32 s22, s52, 1
    s_lshl_b32 s22, s22, 10
    v_add_u32 v29, s22, v2
    s_waitcnt lgkmcnt(0)
    """)
    srd(a, 24, 24, F_ * 4096)
def w2_load(a):
    if opt("sc3"): a("s_mov_b32 exec_lo, 0xf7f7f7f7\ns_mov_b32 exec_hi, 0xf7f7f7f7\nbuffer_load_dword v30, v29, s[24:27], s22 offen\ns_mov_b64 exec, -1")
    else: a("buffer_load_dword v30, v29, s[24:27], s22 offen")
def w2_last(a):
    if not opt("nopfw2"): a("s_lshl_b32 s22, s3, 20"); w2_load(a)
def w2_slow(a):
    n = opt("sc3")
    if not n or n > 2: return
    a(f"s_lshl_b32 s22, s53, 2\ns_add_u32 s22, s22, s3\ns_lshl_b32 s22, s22, 12\ns_lshr_b32 s23, s52, 1\ns_lshl_b32 s23, s23, 10\ns_add_u32 s22, s22, s23\ns_add_u32 s22, s22, 384\ns_add_u32 s26, s24, s22\ns_addc_u32 s27, s25, 0")
    for k in range(12):
        for h in range(n): a(f"s_load_dword s98, s[26:27], {64*h}")
        a(f"s_add_u32 s26, s26, {128*4096}\ns_addc_u32 s27, s27, 0")
def qa_loader(a):
    a(f"v_lshrrev_b32 v2, 3, v1\ns_lshl_b32 s23, s3, 3\nv_add_u32 v2, s23, v2\ns_lshl_b32 s26, s16, 7\ns_sub_u32 s26, s26, 16\nv_and_b32 v3, 7, v1")
    for i in range(6):
        a(f"v_add_u32 v4, {24*i}, v2\nv_lshrrev_b32 v5, 1, v4\nv_and_b32 v5, 7, v5\nv_xor_b32 v5, v5, v3\nv_add_u32 v4, s26, v4\nv_max_i32 v4, 0, v4\nv_mul_u32_u24 v4, 1280, v4\nv_lshl_add_u32 v{8+i}, v5, 4, v4")
    a(f"s_mul_i32 s23, s3, 320\ns_mul_i32 s26, s17, 160\nv_add_u32 v2, s23, v1")
    for i in range(5):
        a(f"""
        v_add_u32 v3, {64*i}, v2
        v_mul_u32_u24 v4, 2185, v3
        v_lshrrev_b32 v4, 16, v4
        v_mul_u32_u24 v5, 30, v4
        v_sub_u32 v3, v3, v5
        v_mul_u32_u24 v5, 26, v3
        v_lshrrev_b32 v5, 8, v5
        v_mul_u32_u24 v5, {1280-160}, v5
        v_lshl_add_u32 v3, v3, 4, v5
        v_and_b32 v5, 12, v4
        v_lshlrev_b32 v5, 1, v5
        v_lshrrev_b32 v6, 4, v4
        v_lshl_add_u32 v5, v6, 2, v5
        v_and_b32 v4, 3, v4
        v_add_u32 v4, v4, v5
        v_mul_u32_u24 v4, 3840, v4
        v_add3_u32 v{16+i}, v4, v3, s26
        """)
    a(f"s_mov_b32 s34, s18\ns_mov_b32 s37, 0\ns_lshl_b32 s38, s3, 10\ns_mul_i32 s39, s3, 5120\ns_add_u32 s39, s39, {QA_W}\ns_mov_b32 s33, 0")
    srd(a, 4, 4, H_SZ); srd(a, 8, 8, 640 * 3840)
    def issue(half=None):
        if half != 1: a(f"s_lshl_b32 s40, s34, 7\ns_mul_i32 s41, s34, {64*3840}\ns_add_u32 s42, s37, s38\ns_add_u32 s43, s37, s39\ns_add_u32 s36, s41, {32*3840}")
        if half != 1:
            for i in range(3): a(f"s_add_u32 m0, s42, {3072*i}\nbuffer_load_dwordx4 v{8+i}, s[4:7], s40 offen lds")
            for i in range(5): a(f"s_add_u32 m0, s43, {1024*i}\nbuffer_load_dwordx4 v{16+i}, s[8:11], s41 offen lds")
        if half != 0:
            for i in range(3, 6): a(f"s_add_u32 m0, s42, {3072*i}\nbuffer_load_dwordx4 v{8+i}, s[4:7], s40 offen lds")
            for i in range(5): a(f"s_add_u32 m0, s43, {15360+1024*i}\nbuffer_load_dwordx4 v{16+i}, s[8:11], s36 offen lds")
            a(f"s_add_u32 s37, s37, {QA_SLOT}\ns_cmp_ge_u32 s37, {QA_SLOT*QA_S}\ns_cselect_b32 s37, 0, s37\ns_add_u32 s34, s34, 1\ns_cmp_ge_u32 s34, 10\ns_cselect_b32 s34, 0, s34")
    if opt("lateb0"):
        issue_n(a, 2, issue); tag_ready(a); w2_setup(a); stamp(a, 1)
    else:
        issue(); issue(0); tag_ready(a); a("s_waitcnt vmcnt(8)\ns_barrier"); issue(1); issue(); a("s_mov_b32 s33, 3")
        w2_setup(a); stamp(a, 1)
    steady(a, 10, 16, QA_S - 1, issue); drain(a, 16, QA_S - 1)
    stamp(a, 2); w2_last(a)
def qa_idle(a):
    if not opt("now49"):
        a(f"""
        s_mul_i32 s22, s53, 60
        v_add_u32 v2, s22, v1
        v_mul_u32_u24 v3, 4370, v2
        v_lshrrev_b32 v3, 16, v3
        v_mul_u32_u24 v4, 15, v3
        v_sub_u32 v2, v2, v4
        v_mul_u32_u24 v4, 52, v2
        v_lshrrev_b32 v4, 8, v4
        v_mul_u32_u24 v4, {1280-640}, v4
        v_lshl_add_u32 v2, v2, 7, v4
        v_lshrrev_b32 v4, 6, v3
        v_lshl_add_u32 v3, v4, 8, v3
        v_add_u32 v3, 256, v3
        v_mul_u32_u24 v3, 3840, v3
        s_lshr_b32 s22, s52, 2
        s_mul_i32 s22, s22, 640
        v_add3_u32 v2, v2, v3, s22
        """)
        srd(a, 8, 8, 640 * 3840)
        a("s_mov_b32 exec_hi, 0x0fffffff\nbuffer_load_dword v31, v2, s[8:11], 0 offen\ns_mov_b32 exec_hi, -1")
    tag_ready(a); w2_setup(a)
    at = (opt("w2a", 5), opt("w2b", 7))
    for i in range(10):
        a("s_barrier")
        for k in range(2):
            if at[k] == i and not opt("nopfw2"): a(f"s_mov_b32 s22, {(4+k) << 20}"); w2_load(a)
    w2_last(a)
def qa_consumer(a):
    L = "Lqa"
    AQ, AK, AR, AV, AW = 16, 48, 88, 108, 148
    XF, WB = 168, 208
    M0, M1, MF, PM, TM = 224, 228, 232, 236, 240
    NB, DD = 4, opt("dd", 3)
    a(f"""
    s_lshr_b32 s28, s3, 1
    s_and_b32 s29, s3, 1
    v_and_b32 v2, 15, v1
    v_lshrrev_b32 v3, 4, v1
    v_lshrrev_b32 v4, 1, v2
    v_xor_b32 v4, v4, v3
    v_lshlrev_b32 v4, 4, v4
    v_lshl_add_u32 v4, v2, 7, v4
    s_lshl_b32 s23, s28, 13
    v_add_u32 v8, s23, v4
    v_xor_b32 v9, 64, v8
    v_lshrrev_b32 v5, 2, v1
    v_mul_u32_u24 v5, 480, v5
    s_mul_i32 s23, s29, 80
    s_add_u32 s23, s23, {QA_W}
    v_add_u32 v5, s23, v5
    v_and_b32 v4, 3, v1
    v_lshl_add_u32 v10, v4, 3, v5
    v_and_b32 v6, 1, v1
    v_mul_u32_u24 v6, 40, v6
    v_add3_u32 v13, v6, v5, 32
    v_lshrrev_b32 v4, 1, v4
    v_mul_u32_u24 v4, 160, v4
    v_add_u32 v11, v4, v13
    """)
    if opt("zv"):
        a(f"v_and_b32 v4, 3, v1\nv_lshrrev_b32 v4, 1, v4\nv_cmp_ne_u32 s[98:99], s29, v4")
    for i in range(AQ, XF): a(f"v_mov_b32 v{i}, 0")
    a(f"v_lshlrev_b32 v4, 2, v3\nv_sub_u32 v4, v2, v4\nv_mov_b32 v5, {f2u(-1e30)}")
    for r in range(4):
        a(f"""
        v_subrev_u32 v15, {r}, v4
        v_and_b32 v15, 0x80000001, v15
        v_cmp_eq_u32 vcc, 0, v15
        v_cndmask_b32_e64 v{M1+r}, v5, 0, vcc
        v_cndmask_b32_e64 v{TM+4+r}, 0, -1, vcc
        v_cmp_eq_u32 vcc, 0x80000000, v15
        v_cndmask_b32_e64 v{M0+r}, v5, 0, vcc
        v_cndmask_b32_e64 v{TM+r}, 0, -1, vcc
        """)
    a("s_mov_b32 s30, 0xffff\ns_mov_b32 s22, 0x0c0c0c0c\ns_mov_b32 s26, 0x01000100\ns_mov_b32 s27, 0x03020302")
    for i in range(4): a(f"v_bfi_b32 v{PM+i}, s30, v{TM+2*i}, v{TM+2*i+1}\nv_mov_b32 v15, s22\nv_bfi_b32 v{PM+i}, v{PM+i}, s{26+(i&1)}, v15")
    a(f"s_or_b32 s23, s16, s28\ns_cmp_eq_u32 s23, 0\ns_cselect_b64 vcc, -1, 0")
    for r in range(4): a(f"v_cndmask_b32 v{MF+r}, v{M0+r}, v5, vcc")
    GM = 90
    for j in range(2): a(f"v_cmp_eq_u32 s[{GM+2*j}:{GM+1+2*j}], {j}, v3")
    a(f"""
    v_and_b32 v4, 1, v3
    v_cmp_eq_u32 s[94:95], 1, v4
    s_cmp_eq_u32 s29, 0
    s_cselect_b32 s96, -1, 0
    s_cselect_b32 s97, 0, -1
    s_lshl_b32 s23, s16, 3
    s_lshl_b32 s26, s28, 2
    s_add_u32 s23, s23, s26
    s_mul_i32 s23, s23, 40
    s_mul_i32 s26, s17, 5
    s_add_u32 s23, s23, s26
    s_lshl_b32 s23, s23, 9
    v_lshl_add_u32 v15, v1, 3, s23
    s_lshl_b32 s26, s29, 10
    v_add_u32 v12, s26, v15
    s_lshl_b32 s23, s16, 4
    s_add_u32 s23, s23, s17
    s_lshl_b32 s23, s23, 7
    s_add_u32 s23, s23, {F2}
    v_lshl_add_u32 v14, v1, 10, s23
    s_mov_b32 s31, {f2u(20 ** -0.5 * LOG2E)}
    v_mov_b32 v6, s31
    s_mov_b32 s33, 0
    s_mov_b32 s37, 0
    s_waitcnt lgkmcnt(0)
    """)
    srd(a, 4, 20, OT_SZ, OT_OFF); tag_ready(a)
    U = [("q", 0), ("q", 1), ("k", 0), ("k", 1), ("r", 0), ("v", 0), ("v", 1), ("w", 0)]
    NU = len(U); UU = 2 * NU
    def xread(kk): return [f"ds_read_b128 {v(XF+20*kk+4*t,4)}, v{8+kk} offset:{2048*t}" for t in (1, 2, 3, 4, 0)]
    def wread(u):
        kk, c = divmod(u, NU); p, j = U[c]; b = WB + 4 * (u % NB)
        ad, off = {"q": (10, 40 * j), "k": (10, 160 + 40 * j), "v": (10, 320 + 40 * j), "r": (11, 0), "w": (13, 320)}[p]
        off += kk * 15360
        return [f"ds_read_b64_tr_b16 {v(b,2)}, v{ad} offset:{off}", f"ds_read_b64_tr_b16 {v(b+2,2)}, v{ad} offset:{off+7680}"]
    def acc(p, j, t): return {"q": AQ + 8 * (t - 1) + 4 * j, "k": AK + 8 * t + 4 * j, "r": AR + 4 * t, "v": AV + 20 * j + 4 * t, "w": AW + 4 * t}[p]
    def mf(u):
        kk, c = divmod(u, NU); p, j = U[c]; w = v(WB + 4 * (u % NB), 4); r = []
        for t in ((1, 2, 3, 4) if p == "q" else (1, 2, 3, 4, 0)):
            x = v(XF + 20 * kk + 4 * t, 4); d = v(acc(p, j, t), 4)
            r.append(f"v_mfma_f32_16x16x32_bf16 {d}, {w}, {x}, {d}" if p in "qkr" else f"v_mfma_f32_16x16x32_bf16 {d}, {x}, {w}, {d}")
        return r
    stamp(a, 1, True); a("s_barrier"); stamp(a, 2, True)
    for t in xread(0): a(t)
    for u in range(DD):
        for t in wread(u): a(t)
    a(f"s_waitcnt lgkmcnt({2*DD-2})")
    a.label(f"{L}_c", 3)
    q = []
    for u in range(1, DD): q += [u, u]
    misc = slot_adv(QA_SLOT, QA_S) + ["s_add_u32 s33, s33, 1", "s_cmp_ge_u32 s33, 10"]
    x1 = xread(1)
    for u in range(UU):
        nx = u + DD; fill = []
        if nx == UU: fill += [(t, UU) for t in xread(0)]
        fill += [(t, nx) for t in wread(nx % UU)]
        if 1 <= u < NU - 1 and x1: fill.append((x1.pop(0), NU))
        ms = mf(u)
        if nx == UU:
            a(f"s_waitcnt lgkmcnt(0)\ns_barrier\ns_cbranch_scc1 {L}_clast" if opt("qe1") else f"s_waitcnt lgkmcnt(0)\ns_cbranch_scc1 {L}_clast\ns_barrier"); q = []
        per = -(-len(fill) // len(ms))
        for i, m in enumerate(ms):
            a(m)
            for t, tag in fill[i*per:(i+1)*per]: a(t); q.append(tag)
            if i == len(ms) - 2 and misc and u >= 2: a(misc.pop(0))
            if i >= 2 and nx == UU - 1:
                for r in ((8, 9), (10, 11), (13,))[i - 2]: a(f"v_add_u32 v{r}, s40, v{r}")
        if any(t <= u + 1 for t in q) and nx != UU - 1:
            last = max(i for i, t in enumerate(q) if t <= u + 1)
            q = q[last + 1:]
            a(f"s_waitcnt lgkmcnt({len(q)})")
    assert not misc and not x1 and len(q) == 2 * DD - 2, (misc, x1, q)
    a(f"s_branch {L}_c")
    a.label(f"{L}_clast"); stamp(a, 3, True); lstamp(a, 1)
    cvt = lambda d, s0: f"v_cvt_pk_bf16_f32 v{d}, v{s0}, v{s0+1}"
    cv = lambda d, s0: a(cvt(d, s0))
    prep = []
    for t in range(5):
        r = AR + 4 * t; k = AK + 8 * t
        prep += [cvt(k, k), cvt(k + 1, k + 2), cvt(k + 4, k + 4), cvt(k + 5, k + 6), cvt(k + 2, r), cvt(k + 3, r + 2), cvt(r, r), cvt(r + 1, r + 2)]
    for t in range(5):
        r = AR + 4 * t; k = AK + 8 * t
        prep += [f"v_permlane32_swap_b32 v{r}, v{k+2}", f"v_permlane32_swap_b32 v{r+1}, v{k+3}"]
    for t in range(1, 5):
        r = AR + 4 * t; qa, qb = acc("q", 0, t), acc("q", 1, t)
        prep += [cvt(qa, qa), cvt(qa + 1, qa + 2), cvt(qb + 3, qb + 2), cvt(qb + 2, qb)]
        prep += [f"v_cndmask_b32 v{qa+2+i}, 0, v{r+i}, s[{GM}:{GM+1}]" for i in range(2)] + [f"v_cndmask_b32 v{qb+i}, 0, v{r+i}, s[{GM+2}:{GM+3}]" for i in range(2)]
    assert DD <= 3
    for u in range(UU - DD, UU):
        for m in mf(u):
            a(m); a(prep.pop(0)); a(prep.pop(0))
    for x in prep: a(x)
    lstamp(a, 2)
    UN = [(t, j) for t in range(1, 5) for j in range(2)]
    SRS = [XF + 8 * n for n in range(7)] + [TM + 8]
    vc = [cvt(b + i, b + 2 * i) for b in (AV, AV + 20, AW) for i in range(10)]
    for n, (t, j) in enumerate(UN):
        qf = v(acc("q", j, t), 4)
        a(f"v_mfma_f32_16x16x32_bf16 {v(SRS[n],4)}, {v(AK+8*(t-1)+2*j,4)}, {qf}, {v(MF if t == 1 else M0,4)}"); a(vc.pop(0)); a(vc.pop(0))
        a(f"v_mfma_f32_16x16x32_bf16 {v(SRS[n]+4,4)}, {v(AK+8*t+2*j,4)}, {qf}, {v(M1,4)}")
        if vc: a(vc.pop(0)); a(vc.pop(0))
    V2, X = AQ, AQ + 16
    P = [AK + 4 * n for n in range(8)]
    for n in range(8): s_ = SRS[n]; a(f"v_max3_f32 v{V2+2*n}, v{s_}, v{s_+1}, v{s_+4}\nv_max3_f32 v{V2+2*n+1}, v{s_+2}, v{s_+3}, v{s_+6}")
    for n in range(8): s_ = SRS[n]; a(f"v_max_f32 v{V2+2*n}, v{V2+2*n}, v{s_+5}\nv_max_f32 v{V2+2*n+1}, v{V2+2*n+1}, v{s_+7}")
    def seq(*steps):
        for st in steps:
            for x in (X, X + 4): a(st(x))
    def xred(op):
        seq(lambda x: f"v_permlane32_swap_b32 v{x}, v{x+1}\nv_permlane32_swap_b32 v{x+2}, v{x+3}",
            lambda x: f"{op} v{x}, v{x}, v{x+1}\n{op} v{x+2}, v{x+2}, v{x+3}",
            lambda x: f"v_permlane16_swap_b32 v{x}, v{x+2}", lambda x: f"{op} v{x}, v{x}, v{x+2}")
    def xbc():
        seq(lambda x: f"v_mov_b32 v{x+2}, v{x}", lambda x: f"v_permlane16_swap_b32 v{x}, v{x+2}",
            lambda x: f"v_mov_b32 v{x+1}, v{x}\nv_mov_b32 v{x+3}, v{x+2}",
            lambda x: f"v_permlane32_swap_b32 v{x}, v{x+1}\nv_permlane32_swap_b32 v{x+2}, v{x+3}")
    sel = lambda n: f"op_sel:[0,{n&1},{n&1}] op_sel_hi:[1,{n&1},{n&1}]"
    for n in range(8): a(f"v_max_f32 v{X+n}, v{V2+2*n}, v{V2+2*n+1}")
    xred("v_max_f32"); seq(lambda x: f"v_mul_f32 v{x}, s31, v{x}"); xbc()
    for n in range(8): a(f"v_pk_fma_f32 {v(V2+2*n,2)}, {v(V2+2*n,2)}, v[6:7], {v(X+(n&6),2)} op_sel:[0,0,{n&1}] op_sel_hi:[1,0,{n&1}] neg_lo:[0,0,1] neg_hi:[0,0,1]")
    for n in range(16): a(f"v_exp_f32 v{V2+n}, v{V2+n}")
    for n in range(8): a(f"v_add_f32 v{X+n}, v{V2+2*n}, v{V2+2*n+1}")
    xred("v_add_f32"); seq(lambda x: f"v_rcp_f32 v{x}, v{x}"); xbc()
    for n in range(8): a(f"v_pk_mul_f32 {v(V2+2*n,2)}, {v(V2+2*n,2)}, {v(X+(n&6),2)} op_sel:[0,{n&1}] op_sel_hi:[1,{n&1}]")
    for n in range(8): cv(X + n, V2 + 2 * n)
    a("s_setprio 2")
    def pv(n):
        t, j = UN[n]
        return [f"v_mfma_f32_16x16x32_bf16 {v(SRS[n],4)}, {v(AV+20*j+2*(t-1),4)}, {v(P[n],4)}, 0", f"v_mfma_f32_16x16x32_bf16 {v(SRS[n]+4,4)}, {v(AW+2*(t-1),4)}, {v(P[n],4)}, 0"]
    for n in range(8):
        pm = [f"v_perm_b32 v{P[n]+i}, v{X+n}, v{X+n}, v{PM+i}" for i in range(4)]
        m = pv(n - 1) if n else ["", ""]
        a(pm[0]); a(pm[1]); a(m[0]); a(pm[2]); a(pm[3]); a(m[1])
    for m in pv(7): a(m)
    O = AQ
    for t in range(1, 5):
        n = 2 * (t - 1); o = AK + 6 * (t - 1) if t > 3 else O + 6 * (t - 1)
        a(f"s_mov_b32 s29, {40*512*(t-1)}")
        for j in range(2):
            cv(o + 2 * j, SRS[n + j]); cv(o + 2 * j + 1, SRS[n + j] + 2)
            a(f"buffer_store_dwordx2 {v(o+2*j,2)}, v12, s[4:7], s29 offen offset:{512*j} {SC}")
        for r in range(4): a(f"v_cndmask_b32 v{SRS[n]+4+r}, v{SRS[n]+4+r}, v{SRS[n+1]+4+r}, s[94:95]")
        cv(o + 4, SRS[n] + 4); cv(o + 5, SRS[n] + 6)
        a(f"s_mov_b64 exec, s[96:97]\nbuffer_store_dwordx2 {v(o+4,2)}, v15, s[4:7], s29 offen offset:2048 {SC}\ns_mov_b64 exec, -1")
    lstamp(a, 3)
    if not opt("qe1"): a("s_barrier")
    if opt("late"): a("s_waitcnt vmcnt(0)"); lstamp(a, 4)
    publish(a, 4, 4, 14, 2)
    if opt("late"): lstamp(a, 5); a("s_waitcnt vmcnt(0)"); lstamp(a, 6)
    stamp(a, 4, True)

class P2:
    def __init__(s, par):
        s.par = par; s.ND = (opt("nd0", 4), 10 - opt("nd0", 4))[par]
        s.SLOT = 8192 + 2048 * s.ND; s.S = min(RING // s.SLOT, 8); s.AH = s.S - 2
        s.AA = min(opt("aha", 6), s.AH); s.GB = max(opt("gb%d" % par, 7), 11 - s.AH, 10 - s.AA)
    def adv(s): return f"s_add_u32 s37, s37, {s.SLOT}\ns_cmp_ge_u32 s37, s38\ns_cselect_b32 s42, {s.SLOT*s.S}, 0\ns_sub_u32 s37, s37, s42\ns_add_u32 s34, s34, 1"
    def setup_s(s, a):
        a(f"""
        s_load_dwordx2 s[12:13], s[0:1], {KA['w2']}
        v_lshrrev_b32 v2, 3, v1
        v_and_b32 v3, 7, v1
        v_and_b32 v4, 6, v2
        v_xor_b32 v3, v3, v4
        v_lshlrev_b32 v3, 4, v3
        v_lshl_add_u32 v2, v2, 12, v3
        s_lshl_b32 s23, s3, 17
        s_lshl_b32 s26, s50, 7
        s_add_u32 s23, s23, s26
        v_add_u32 v8, s23, v2
        """)
        for i in range(1, 4): a(f"v_add_u32 v{8+i}, {8*4096*i}, v8")
        a(f"s_lshl_b32 s23, s50, 2\ns_mul_i32 s23, s23, 40\ns_lshl_b32 s26, s3, 1\ns_add_u32 s23, s23, s26\ns_lshl_b32 s23, s23, 9\nv_lshl_add_u32 v16, v1, 4, s23")
        for i in range(1, 4): a(f"v_add_u32 v{16+i}, {40*512*i}, v16")
        a(f"s_and_b32 s23, s50, -2\ns_add_u32 s23, s23, {s.par}\ns_lshl_b32 s23, s23, 10\ns_add_u32 s23, s23, {F2}\nv_lshl_add_u32 v12, v1, 7, s23")
        a(f"s_mov_b32 s34, 0\ns_lshl_b32 s37, s3, 12\ns_add_u32 s38, s37, {s.SLOT*s.S}\ns_mov_b32 s33, 0\ns_waitcnt lgkmcnt(0)")
        srd(a, 4, 20, OT_SZ, OT_OFF)
    def early(s, a, n, vflag, tag):
        a(f"""
        s_waitcnt vmcnt({3*n})
        s_barrier
        s_waitcnt vmcnt({2*n})
        s_barrier
        s_mov_b64 exec, 0xff
        buffer_load_dword v2, v{vflag}, s[44:47], 0 offen {SC}
        s_waitcnt vmcnt({n+1})
        s_barrier
        s_waitcnt vmcnt(1)
        s_barrier
        """)
        stamp(a, 2)
        a(f"s_waitcnt vmcnt(0)\nv_cmp_ne_u32 vcc, s48, v2\ns_mov_b64 exec, -1\ns_cmp_eq_u64 vcc, 0\ns_cbranch_scc0 Lp2_{tag}{s.par}e\ns_barrier\ns_branch Lp2_{tag}{s.par}k")
    def loader_s(s, a):
        AH, AA = s.AH, s.AA
        s.setup_s(a)
        a.label(f"Lp2_s{s.par}e")
        a("s_barrier")
        if s.par: w2_slow(a)
        gate(a, 12, 0xff)
        a.label(f"Lp2_s{s.par}k")
        stamp(a, 3)
        def issue(sc):
            a(f"s_lshl_b32 s40, s34, {11 if sc else 18}")
            for i in range(4): a(f"s_add_u32 m0, s37, {1024*i}\nbuffer_load_dwordx4 v{(16 if sc else 8)+i}, s[4:7], s40 offen {sc} lds")
            a(s.adv())
        issue_n(a, AA, lambda: issue(SC))
        steady(a, 10, 4, AA, lambda: issue(SC))
        srd(a, 4, 12, F_ * 4096); a("s_mov_b32 s34, 0")
        if AA < AH: a(f"s_waitcnt vmcnt({4*(AA-1)})\ns_barrier"); issue_n(a, AH - AA + 1, lambda: issue(""))
        steady(a, 34, 4, AH, lambda: issue(""))
        stamp(a, 5)
        drain(a, 4, AH)
        endp(a)
    def setup_d(s, a):
        ND = s.ND
        a(f"s_sub_u32 s22, s3, 2\ns_mul_i32 s23, s51, 68\ns_add_u32 s23, s23, s22\ns_lshl_b32 s23, s23, 10\nv_lshl_add_u32 v8, v1, 4, s23")
        for i in range(1, ND): a(f"v_add_u32 v{8+i}, {68*1024*i}, v8")
        a(f"""
        s_mul_i32 s37, s22, {1024*ND}
        s_add_u32 s37, s37, 8192
        s_add_u32 s38, s37, {s.SLOT*s.S}
        s_lshl_b32 s23, s52, 10
        s_add_u32 s23, s23, {F3}
        v_lshl_add_u32 v16, v1, 7, s23
        s_lshr_b32 s23, s51, 2
        s_lshl_b32 s23, s23, 11
        s_lshr_b32 s26, s52, 1
        s_mul_i32 s26, s26, {160*128}
        s_add_u32 s23, s23, s26
        s_add_u32 s23, s23, {F4}
        v_lshl_add_u32 v17, v1, 7, s23
        s_mov_b32 s34, 0
        s_mov_b32 s36, 48
        s_mov_b32 s33, 0
        """)
        srd(a, 8, 20, UW_SZ, UW_OFF)
    def loader_d(s, a):
        AH, AA, GB, ND = s.AH, s.AA, s.GB, s.ND
        s.setup_d(a)
        a.label(f"Lp2_d{s.par}e")
        a("s_barrier")
        if s.par: w2_slow(a)
        gate(a, 16, 0xff)
        a.label(f"Lp2_d{s.par}k")
        stamp(a, 3)
        def issue():
            a("s_lshl_b32 s41, s34, 1\ns_add_u32 s41, s41, s36\ns_lshl_b32 s41, s41, 10")
            for i in range(ND): a(f"s_add_u32 m0, s37, {1024*i}\nbuffer_load_dwordx4 v{8+i}, s[8:11], s41 offen {SC} lds")
            a(s.adv())
        issue_n(a, AA, issue)
        steady(a, 10, ND, AA, issue)
        for j in range(10 - AA, GB): a(f"s_waitcnt vmcnt({ND*(9-j)})\ns_barrier")
        a("s_mov_b32 s36, 0\ns_mov_b32 s34, 0")
        gate(a, 17, 0x0fff if ND == 4 else 0x0fff0fff)
        stamp(a, 4)
        issue_n(a, GB + AH - 10, issue)
        steady(a, 34, ND, AH, issue)
        stamp(a, 5)
        drain(a, ND, AH)
        endp(a)
    def consumer(s, a):
        ND = s.ND; L = f"Lp2{s.par}"
        ACB = 16; ACA = ACB + 4 * ND; KS = 4 + 4 * ND; SETS = (ACA + 4 * ND, ACA + 4 * ND + 2 * KS)
        a(f"""
        s_load_dwordx2 s[24:25], s[0:1], {KA['b2']}
        s_load_dwordx2 s[28:29], s[0:1], {KA['out']}
        s_lshl_b32 s23, s50, 6
        s_lshl_b32 s26, s3, 4
        s_add_u32 s23, s23, s26
        v_and_b32 v2, 15, v1
        v_add_u32 v2, s23, v2
        v_lshlrev_b32 v3, 1, v2
        v_lshlrev_b32 v4, 3, v2
        s_waitcnt lgkmcnt(0)
        """)
        srd(a, 24, 24, 4096); srd(a, 8, 20, G_SZ, G_OFF); srd(a, 28, 28, S_ * 1280)
        a(f"""
        buffer_load_ushort v10, v3, s[24:27], 0 offen
        s_setprio 0
        v_lshrrev_b32 v5, 2, v1
        v_lshrrev_b32 v6, 1, v5
        v_and_b32 v6, 3, v6
        v_xor_b32 v6, s3, v6
        v_lshlrev_b32 v6, 5, v6
        v_lshl_add_u32 v5, v5, 7, v6
        v_and_b32 v6, 3, v1
        v_lshl_add_u32 v8, v6, 3, v5
        v_lshlrev_b32 v9, 4, v1
        v_add_u32 v9, 8192, v9
        v_mul_u32_u24 v12, 1280, v2
        v_lshrrev_b32 v6, 4, v1
        v_lshl_add_u32 v12, v6, 3, v12
        s_lshl_b32 s26, s51, 5
        v_add_u32 v12, s26, v12
        s_lshl_b32 s26, s3, 10
        v_lshl_add_u32 v13, v1, 3, s26
        v_and_b32 v14, 1, v6
        v_mul_u32_u24 v14, 24, v14
        v_add_u32 v14, v14, v12
        """)
        for i in range(4 * ND): a(f"v_mov_b32 v{ACA+i}, 0")
        def reads(st, ph="b"):
            r = []
            for kk in range(2):
                b = SETS[st] + KS * kk
                if ph == "a": r += [(f"ds_read_b64 {v(b,2)}, v13 offset:{kk*4096}", (kk, "b0")), (f"ds_read_b64 {v(b+2,2)}, v13 offset:{kk*4096+512}", (kk, "b1"))]
                else: r += [(f"ds_read_b64_tr_b16 {v(b,2)}, v8 offset:{kk*4096}", (kk, "b0")), (f"ds_read_b64_tr_b16 {v(b+2,2)}, v8 offset:{kk*4096+2048}", (kk, "b1"))]
                r += [(f"ds_read_b128 {v(b+4+4*dt,4)}, v9 offset:{(kk*ND+dt)*1024}", (kk, dt)) for dt in range(ND)]
            return r
        def mf(acc, st):
            return [(f"v_mfma_f32_16x16x32_bf16 {v(acc+4*dt,4)}, {v(SETS[st]+KS*kk+4+4*dt,4)}, {v(SETS[st]+KS*kk,4)}, {v(acc+4*dt,4)}", {(kk, "b1"), (kk, dt)}) for kk in range(2) for dt in range(ND)]
        ids = [x[1] for x in reads(0)]
        adv = slot_adv(s.SLOT, s.S) + ["v_add_u32 v8, s40, v8", "v_add_u32 v9, s40, v9"]
        a("s_mov_b32 s33, 0\ns_mov_b32 s37, 0\ns_barrier"); stamp(a, 5, True)
        adva = adv + ["v_add_u32 v13, s40, v13"]
        emit_step(a, [], [], reads(0, "a"), adva)
        a.label(f"{L}_ca", 3)
        a("s_barrier")
        emit_step(a, mf(ACA, 0), ids, reads(1, "a"), adva + ["s_add_u32 s33, s33, 2", "s_cmp_ge_u32 s33, 10"])
        a(f"s_barrier\ns_cbranch_scc1 {L}_cax")
        emit_step(a, mf(ACA, 1), ids, reads(0, "a"), adva)
        a(f"s_branch {L}_ca")
        a.label(f"{L}_cax")
        emit_step(a, mf(ACA, 1), ids, reads(0, "b"), adv)
        a(f"s_waitcnt vmcnt(0)\nbuffer_load_dwordx2 v[6:7], v4, s[8:11], 0 offen {SC}\nv_lshlrev_b32 v10, 16, v10")
        for i in range(4 * ND): a(f"v_mov_b32 v{ACB+i}, v10")
        a.label(f"{L}_cb", 3)
        a("s_barrier")
        emit_step(a, mf(ACB, 0), ids, reads(1), adv + ["s_add_u32 s33, s33, 2", "s_cmp_ge_u32 s33, 34"])
        a(f"s_cbranch_scc1 {L}_clast\ns_barrier")
        emit_step(a, mf(ACB, 1), ids, reads(0), adv)
        a(f"s_branch {L}_cb")
        a.label(f"{L}_clast")
        emit_step(a, mf(ACB, 1), ids, [], [])
        stamp(a, 6)
        a(f"""
        s_mov_b32 s49, 0
        {L}_g:
        s_waitcnt vmcnt(0)
        v_cmp_ne_u32 vcc, s48, v7
        s_add_u32 s49, s49, 1
        s_cmp_eq_u64 vcc, 0
        s_cbranch_scc1 {L}_gk
        buffer_load_dwordx2 v[6:7], v4, s[8:11], 0 offen {SC}
        s_cmp_lt_u32 s49, 20000
        s_cbranch_scc1 {L}_g
        s_waitcnt vmcnt(0)
        {L}_gk:
        """)
        aux = 'sc1' if opt('osc1') else ''; O = SETS[0]
        for dt in range(ND):
            for r in range(0, 4, 2): a(f"v_pk_add_f32 {v(ACA+4*dt+r,2)}, {v(ACA+4*dt+r,2)}, {v(ACB+4*dt+r,2)} neg_lo:[0,1] neg_hi:[0,1]")
            for r in range(0, 4, 2): a(f"v_pk_fma_f32 {v(ACB+4*dt+r,2)}, {v(ACA+4*dt+r,2)}, v[6:7], {v(ACB+4*dt+r,2)} op_sel_hi:[1,0,1]")
            a(f"v_cvt_pk_bf16_f32 v{O+2*dt}, v{ACB+4*dt}, v{ACB+4*dt+1}\nv_cvt_pk_bf16_f32 v{O+1+2*dt}, v{ACB+4*dt+2}, v{ACB+4*dt+3}")
            if dt & 1:
                b = O + 2 * (dt - 1)
                a(f"v_permlane16_swap_b32 v{b}, v{b+2}\nv_permlane16_swap_b32 v{b+1}, v{b+3}\nbuffer_store_dwordx4 {v(b,4)}, v14, s[28:31], 0 offen offset:{32*(dt-1)} {aux}")
            elif dt == ND - 1: a(f"buffer_store_dwordx2 {v(O+2*dt,2)}, v12, s[28:31], 0 offen offset:{32*dt} {aux}")
        endp(a)

def gen_main(a, name):
    kernel_head(a, name)
    if PROF:
        for i in range(1, 8): a(f"s_mov_b64 s[{70+2*i}:{71+2*i}], 0")
        stamp(a, 0); a("s_memtime s[66:67]")
    a(f"""
    s_cmp_ge_u32 s2, 256
    s_cbranch_scc1 Lend
    s_load_dwordx2 s[20:21], s[0:1], {KA['ws']}
    v_lshrrev_b32 v1, 6, v0
    v_readfirstlane_b32 s3, v1
    v_and_b32 v1, 63, v0
    s_and_b32 s52, s2, 7
    s_lshr_b32 s53, s2, 3
    s_lshr_b32 s22, s52, 1
    s_lshl_b32 s50, s22, 3
    s_and_b32 s23, s53, 7
    s_add_u32 s50, s50, s23
    s_lshr_b32 s26, s53, 3
    """)
    if PROF: a("s_mov_b32 s69, s3")
    NG = 15 if opt("mixed") else 30
    a("s_cmp_ge_u32 s53, 16\ns_cbranch_scc1 Lrole_qa" if opt("mixed") else "s_bitcmp1_b32 s52, 0\ns_cbranch_scc1 Lrole_qa")
    PE, PO = P2(0), P2(1)
    a(f"s_mul_i32 s51, s26, {PE.ND}")
    a(f"""
    {"s_lshl_b32 s19, s52, 4" if opt("mixed") else "s_lshl_b32 s19, s22, 5"}
    s_add_u32 s19, s19, s53
    s_mul_i32 s17, s53, 86
    s_lshr_b32 s17, s17, 8
    s_mul_i32 s23, s17, 3
    s_sub_u32 s23, s53, s23
    s_mul_i32 s16, s22, 3
    s_add_u32 s16, s16, s23
    """)
    if opt("mixed"): a("s_and_b32 s26, s52, 1\ns_mul_i32 s26, s26, 5\ns_add_u32 s17, s17, s26")
    a(f"s_mul_i32 s18, s23, {opt('stagg', 0)}\ns_mul_i32 s26, s17, {opt('stagd', 0)}\ns_add_u32 s18, s18, s26\ns_and_b32 s18, s18, 31")
    a("s_cmp_ge_u32 s3, 4\ns_cbranch_scc1 Lg_cons\ns_setprio 1\ns_cmp_ge_u32 s3, 2\ns_cbranch_scc1 Lg_h")
    def flags():
        a(f"s_waitcnt lgkmcnt(0)"); srd(a, 44, 20, FL_SZ, FL_OFF); a(f"s_load_dword s48, s[44:45], {FZ}")
    a(f"s_load_dwordx2 s[4:5], s[0:1], {KA['w1']}"); flags()
    a(f"s_cmp_ge_u32 s53, {NG}\ns_cbranch_scc1 Lsp_w")
    g1_loader_w(a)
    a.label("Lsp_w"); w1_sweep(a)
    a.label("Lsp_l"); a("s_mov_b32 s16, s52" if opt("mixed") else "s_lshr_b32 s16, s52, 1\ns_lshl_b32 s16, s16, 1\ns_add_u32 s16, s16, s53\ns_sub_u32 s16, s16, 30"); spare_loader(a)
    a("s_cmp_ge_u32 s3, 2\ns_cbranch_scc1 Lp2_d0\ns_branch Lp2_s0")
    a.label("Lg_h"); code_prefetch(a)
    if opt("mixed"):
        a(f"s_load_dwordx2 s[4:5], s[0:1], {KA['w1']}"); flags(); w1_sweep(a)
        a("s_cmp_ge_u32 s53, 15\ns_cbranch_scc1 Lsp_l")
    else:
        flags(); a("s_cmp_lt_u32 s53, 30\ns_cbranch_scc1 Lg_h2\ns_barrier"); tag_ready(a); a("s_barrier\ns_branch Lsp_l")
    a.label("Lg_h2"); g1_loader_h(a)
    a.label("Lg_cons")
    a(f"s_setprio 2\ns_load_dwordx2 s[4:5], s[0:1], {KA['x']}\ns_load_dwordx2 s[8:9], s[0:1], {KA['gw']}\ns_sub_u32 s3, s3, 4")
    ln_issue(a)
    srd(a, 44, 20, FL_SZ, FL_OFF)
    a(f"v_mov_b32 v2, {CTR}\nv_mov_b32 v6, 0\nv_mov_b32 v7, 0\nv_mov_b32 v8, 0\nv_mov_b32 v9, 0\nds_write_b128 v2, v[6:9]\ns_waitcnt lgkmcnt(0)\ns_barrier\ns_load_dword s48, s[44:45], {FZ}")
    ln_finish(a); stamp(a, 1, True)
    a(f"s_cmp_ge_u32 s53, {NG}\ns_cbranch_scc1 Lsp_cons")
    g1_consumer(a); a("s_branch Lp2_c0")
    a.label("Lsp_cons")
    if (not opt("noslowcol")):
        R0, SW = opt("sc0", 1024), opt("scw", 1)
        a(f"""
        s_load_dwordx2 s[4:5], s[0:1], {KA['w1']}
        s_lshr_b32 s22, s52, 1
        s_cmp_eq_u32 s22, 2
        s_cselect_b32 s23, 4, s3
        s_cmp_ge_u32 s23, {SW}
        s_cbranch_scc1 Lsc_done
        s_min_u32 s22, s22, 2
        s_lshl_b32 s22, s22, 10
        s_add_u32 s22, s22, {384 + R0 * 3072}
        s_and_b32 s23, s53, 1
        s_mul_i32 s23, s23, {SW}
        s_add_u32 s23, s23, s3
        s_lshl_b32 s23, s23, 6
        v_add_u32 v2, s23, v1
        v_mul_u32_u24 v2, 3072, v2
        s_mov_b32 s33, 0
        s_waitcnt lgkmcnt(0)
        """)
        srd(a, 4, 4, S_ * 3072)
        a(f"Lsc_l:\nbuffer_load_dword v3, v2, s[4:7], s22 offen\ns_add_u32 s22, s22, {128*SW*3072}\ns_add_u32 s33, s33, 1\ns_cmp_lt_u32 s33, {-(-(2048-R0)//(128*SW))}\ns_waitcnt vmcnt(0)\ns_cbranch_scc1 Lsc_l\nLsc_done:\ns_waitcnt lgkmcnt(0)")
    a("s_barrier\ns_lshl_b32 s22, s3, 8\ns_add_u32 s22, s22, s2\ns_cmp_lg_u32 s22, 240\ns_cbranch_scc1 Lp2_c0"); step_tag(a); a("s_branch Lp2_c0")
    a.label("Lrole_qa")
    a(f"s_mul_i32 s51, s26, {PO.ND}\ns_add_u32 s51, s51, {4*PE.ND}")
    if opt("mixed"): a("s_and_b32 s23, s53, 3\ns_lshl_b32 s16, s22, 2\ns_add_u32 s16, s16, s23\ns_lshr_b32 s26, s53, 2\ns_and_b32 s26, s26, 3\ns_and_b32 s17, s52, 1\ns_lshl_b32 s17, s17, 2\ns_add_u32 s17, s17, s26")
    else: a(f"""
    s_and_b32 s16, s22, 1
    s_lshl_b32 s16, s16, 3
    s_add_u32 s16, s16, s23
    s_lshr_b32 s17, s22, 1
    s_lshl_b32 s17, s17, 2
    s_add_u32 s17, s17, s26
    """)
    if opt("nsq"): a("s_mov_b32 s18, 0")
    elif opt("mixed"): a("s_add_u32 s18, s26, s23\ns_and_b32 s18, s18, 3\ns_mul_i32 s18, s18, 10\ns_lshr_b32 s18, s18, 2")
    else: a("s_lshl_b32 s18, s26, 1\ns_add_u32 s18, s18, s23\ns_and_b32 s18, s18, 7\ns_mul_i32 s18, s18, 10\ns_lshr_b32 s18, s18, 3")
    a(f"s_cmp_ge_u32 s3, 4\ns_cbranch_scc1 Lq_cons\ns_setprio 1\ns_cmp_eq_u32 s3, 3\ns_cbranch_scc1 Lq_idle")
    a(f"s_load_dwordx2 s[4:5], s[0:1], {KA['x']}\ns_load_dwordx2 s[8:9], s[0:1], {KA['wqkv']}"); qa_w1_sweep(a); flags(); qa_loader(a)
    a("s_cmp_ge_u32 s3, 2\ns_cbranch_scc1 Lp2_d1\ns_branch Lp2_s1")
    a.label("Lq_idle"); a(f"s_load_dwordx2 s[8:9], s[0:1], {KA['wqkv']}"); flags(); qa_idle(a); a("s_branch Lp2_d1")
    a.label("Lq_cons"); a("s_sub_u32 s3, s3, 4"); flags()
    a(f"v_mov_b32 v2, {CTR}\nv_mov_b32 v6, 0\nv_mov_b32 v7, 0\nv_mov_b32 v8, 0\nv_mov_b32 v9, 0\nds_write_b128 v2, v[6:9]")
    qa_consumer(a)
    for p in (PO, PE):
        a.label(f"Lp2_c{p.par}"); p.consumer(a)
        a.label(f"Lp2_s{p.par}"); p.loader_s(a)
        a.label(f"Lp2_d{p.par}"); p.loader_d(a)
    a.label("Lend"); a("s_endpgm")
    a.raw("Lcode_end:")
    return kernel_desc(name, 256, 102)

def gen_osc(a, name):
    kernel_head(a, name)
    o = next(o for o in OPTS if o.startswith("osc"))[3:].split("_")
    a(f"s_cmp_ge_u32 s2, 1\ns_cbranch_scc1 Losc_end\ns_load_dwordx2 s[4:5], s[0:1], {KA['ws']}\ns_waitcnt lgkmcnt(0)")
    srd(a, 4, 4, 0x100000, TL_OFF + 0x40000)
    def red(dst, base, stride, count, wave, slot, op):
        n = -(-count // 64)
        for i in range(n):
            a(f"v_add_u32 v1, {64*i}, v0\nv_min_u32 v1, {count-1}, v1\nv_mul_u32_u24 v1, {stride}, v1\nv_add_u32 v1, {base}, v1\nv_lshlrev_b32 v1, 9, v1\ns_mov_b32 s8, {wave*64 + slot*4}")
            a(f"buffer_load_dword v{4+i}, v1, s[4:7], s8 offen")
        a("s_waitcnt vmcnt(0)")
        if op == "add":
            for i in range(n): a(f"v_subrev_u32 v{4+i}, s20, v{4+i}")
        for i in range(1, n): a(f"v_{op}_u32 v4, v4, v{4+i}")
        a(f"v_readlane_b32 s{dst}, v4, 0")
        for i in range(1, 64): a(f"v_readlane_b32 s9, v4, {i}\ns_nop 0\ns_{op}_u32 s{dst}, s{dst}, s9")
        if op == "add": a(f"s_lshr_b32 s{dst}, s{dst}, {(64*n).bit_length()-1}\ns_add_u32 s{dst}, s{dst}, s20")
    red(20, 0, 1, 256, 0, 0, "min")
    if len(o) > 1:
        red(21, int(o[0]), int(o[1]), int(o[2]), int(o[3]), int(o[4]), dict(n="min", x="max", a="add")[o[5]])
        a("s_sub_u32 s21, s21, s20\ns_min_u32 s21, s21, 20000\ns_lshl_b32 s21, s21, 2")
    else: a("s_mov_b32 s21, 0")
    a("s_add_u32 s21, s21, 10000\nLosc_spin:\ns_memrealtime s[10:11]\ns_waitcnt lgkmcnt(0)\ns_sub_u32 s10, s10, s20\ns_cmp_lt_u32 s10, s21\ns_cbranch_scc1 Losc_spin")
    a.label("Losc_end"); a("s_endpgm")
    return kernel_desc(name, 16, 32)

def build(spec=""):
    global PROF
    OPTS[:] = [o for o in spec.split("+") if o]; PROF = bool(opt("prof")); UID[0] = 0
    ref = open(f"cdna_kernels/{NAME}.s.ref").read().split("\n")
    head = ref[:ref.index(next(x for x in ref if x.startswith("; Override")))]
    a = Asm(); a.raw("\n".join(head))
    if opt("mixed"): a.raw("; mixed")
    osc = any(o.startswith("osc") and o != "osc1" for o in OPTS)
    if osc: a.raw(f"; @launch kernel={NAME}_kernel grid=(256,1,1) block=(512,1,1) lds={LDS_SZ}\n; @launch kernel=osc_kernel grid=(1,1,1) block=(64,1,1) lds=0")
    else: a.raw(f"; @launch grid=(256,1,1) block=(512,1,1) lds={LDS_SZ}")
    a.raw('.amdgcn_target "amdgcn-amd-amdhsa--gfx950"')
    d = gen_main(a, NAME + "_kernel")
    if osc: d += gen_osc(a, "osc_kernel")
    if opt("nocomp"): a.lines = [(t, c) for t, c in a.lines if not (c is not None and (c.kind == "mfma" or c.op.startswith("ds_read")))]
    if opt("noload"): a.lines = [(t, c) for t, c in a.lines if not (c is not None and c.kind == "vmem" and c.lds)]
    if opt("nomfma"): a.lines = [(t, c) for t, c in a.lines if not (c is not None and c.kind == "mfma")]
    if opt("nods"): a.lines = [(t, c) for t, c in a.lines if not (c is not None and c.op.startswith("ds_read"))]
    if opt("nowait"): a.lines = [(t, c) for t, c in a.lines if not (c is not None and c.op == "s_waitcnt" and "lgkm" in t and "(0)" not in t)]
    if opt("al"): a.align_hot([("Lqa_c", "Lqa_clast"), ("Lg1_c", "Lg1_clast"), ("Lp2_ca", "Lp2_cax"), ("Lp2_cb", "Lp2_clast")])
    bad = a.check_branches()
    for b in bad: print("HAZARD across branch:", b, file=sys.stderr)
    assert not bad
    a.raw(d)
    return a.text()

if __name__ == "__main__":
    open(sys.argv[2] if len(sys.argv) > 2 else f"cdna_kernels/{NAME}.s", "w").write(build(sys.argv[1] if len(sys.argv) > 1 else ""))
```

```python
import sys, struct
from dsl import *

NAME = "gated_mix__sliding_local_dilated__mixer_token_mlp__prompt"
S_, D_, F_ = 2048, 640, 1536
KA = dict(x=0, wqkv=8, wo=16, w1=32, b1=40, w2=48, b2=56, gw=64, out=72, dbg=80, ws=88)
H_OFF, OT_OFF, UW_OFF, G_OFF, FL_OFF = 0, 0x280000, 0x500000, 0x800000, 0x810000
H_SZ, OT_SZ, UW_SZ, G_SZ, FL_SZ = 2621440, 2621440, 40 * 68 * 1024, 16384, 0x70000
F1, F2, F4, FZ, F3 = 0, 0x20000, 0x28000, 0x40000, 0x50000
RING = 163840; CTR = RING - 64; LDS_SZ = RING
LOG2E = 1.4426950408889634
OPTS = []; PROF = False; TL_OFF = 0x1000000
SC = "sc1"
def f2u(x): return "0x%08x" % struct.unpack("<I", struct.pack("<f", x))[0]
def v(n, k=1): return f"v{n}" if k == 1 else f"v[{n}:{n+k-1}]"
def opt(name, default=None):
    for o in OPTS:
        if o == name: return True
        if o.startswith(name + "="): return int(o.split("=")[1])
    return default

def srd(a, d, base, size, off=0):
    if off: a(f"s_add_u32 s{d}, s{base}, {off}\ns_addc_u32 s{d+1}, s{base+1}, 0")
    elif d != base: a(f"s_mov_b32 s{d}, s{base}\ns_mov_b32 s{d+1}, s{base+1}")
    a(f"s_mov_b32 s{d+2}, {size}\ns_mov_b32 s{d+3}, 0x20000")

def estamp(a, i):
    if PROF and opt("early"): a(f"s_memrealtime s[{70+2*i}:{71+2*i}]\ns_waitcnt lgkmcnt(0)")
def lstamp(a, i):
    if PROF and opt("late"): a(f"s_memrealtime s[{70+2*i}:{71+2*i}]\ns_waitcnt lgkmcnt(0)")
def stamp(a, i, wait=False):
    if PROF and opt("clk"):
        k = {2: 1, 3: 3, 6: 5}.get(i)
        if i == 0: a("s_memrealtime s[70:71]")
        elif k and (wait or i == 6): a(f"s_memrealtime s[{70+2*k}:{71+2*k}]\ns_memtime s[{72+2*k}:{73+2*k}]\ns_waitcnt lgkmcnt(0)")
        return
    if PROF and (i == 0 or not (opt("early") or opt("late"))): a(f"s_memrealtime s[{70+2*i}:{71+2*i}]" + ("\ns_waitcnt lgkmcnt(0)" if wait else ""))
def endp(a):
    if PROF:
        a(f"""
        s_waitcnt vmcnt(0)
        s_memrealtime s[84:85]
        s_memtime s[86:87]
        s_waitcnt lgkmcnt(0)
        s_sub_u32 s86, s86, s66
        s_add_u32 s60, s20, {TL_OFF + 0x40000}
        s_addc_u32 s61, s21, 0
        s_mov_b32 s62, 0x40000
        s_mov_b32 s63, 0x20000
        s_mov_b64 exec, 1
        s_lshl_b32 s64, s2, 3
        s_add_u32 s64, s64, s69
        s_lshl_b32 s64, s64, 6
        v_mov_b32 v0, s64
        """)
        for i in range(8): a(f"v_mov_b32 v{4+i}, s{70+2*i}")
        a("v_mov_b32 v12, s86")
        a("buffer_store_dwordx4 v[4:7], v0, s[60:63], 0 offen\nbuffer_store_dwordx4 v[8:11], v0, s[60:63], 0 offen offset:16\nbuffer_store_dword v12, v0, s[60:63], 0 offen offset:32")
    a("s_endpgm")

def emit_step(a, M, prev_ids, R, extra, per_gap=2, head=2):
    q = list(prev_ids); fill = [("r", x) for x in R] + [("x", x) for x in extra]
    def put(n):
        for _ in range(n):
            if not fill: return
            k, x = fill.pop(0)
            if k == "r": a(x[0]); q.append(("n", x[1]))
            else: a(x)
    put(head)
    for text, need_ in M:
        idx = [i for i, t in enumerate(q) if t in need_]
        if idx:
            n = min(len(q) - 1 - idx[-1], 15)
            a(f"s_waitcnt lgkmcnt({n})"); del q[:len(q) - n]
        a(text); put(per_gap)
    put(len(fill))

def slot_adv(SLOT, S):
    return [f"s_add_u32 s40, s37, {SLOT}", f"s_cmp_ge_u32 s40, {SLOT*S}", "s_cselect_b32 s41, 0, s40", "s_sub_u32 s40, s41, s37", "s_mov_b32 s37, s41"]

def thr(name, default):
    t = opt("t" + name, default if opt("thr") else 0)
    return f"s_waitcnt vmcnt({t-1})\n" if t else ""
UID = [0]
def uid(p): UID[0] += 1; return f"{p}{UID[0]}"

def issue_n(a, n, issue):
    L = uid("Li")
    a(f"s_add_u32 s32, s33, {n}")
    a.label(L); issue()
    a(f"s_add_u32 s33, s33, 1\ns_cmp_lt_u32 s33, s32\ns_cbranch_scc1 {L}")
def steady(a, upto, n, ahead, issue):
    L = uid("Ls")
    a.label(L)
    a(f"s_waitcnt vmcnt({n*(ahead-1)})\ns_barrier"); issue()
    a(f"s_add_u32 s33, s33, 1\ns_cmp_lt_u32 s33, {upto}\ns_cbranch_scc1 {L}")
def drain(a, n, ahead):
    for k in range(ahead - 1, -1, -1): a(f"s_waitcnt vmcnt({n*k})\ns_barrier")

def publish(a, ctr, nw, vaddr, lanes, keep=0):
    L = uid("Lpub")
    a(f"""
    s_waitcnt vmcnt({keep})
    s_mov_b64 exec, 1
    v_mov_b32 v2, {CTR + ctr}
    v_mov_b32 v3, 1
    ds_add_rtn_u32 v3, v2, v3
    s_waitcnt lgkmcnt(0)
    v_readfirstlane_b32 s22, v3
    s_mov_b64 exec, {(1 << lanes) - 1}
    s_cmp_lg_u32 s22, {nw - 1}
    s_cbranch_scc1 {L}
    v_mov_b32 v3, s48
    buffer_store_dword v3, v{vaddr}, s[44:47], 0 offen {SC}
    """)
    a.label(L); a("s_mov_b64 exec, -1")
def gate(a, vaddr, mask, two=False):
    L = uid("Lg"); slp = "s_sleep %d" % opt("slp", 0) if opt("slp", 0) else ""
    a(f"s_mov_b32 s49, 0\ns_mov_b32 exec_lo, {mask & 0xffffffff}\ns_mov_b32 exec_hi, {mask >> 32}")
    a.label(L)
    if two: a(f"buffer_load_dword v2, v{vaddr}, s[44:47], 0 offen {SC}\ns_mov_b32 s22, {two}\nbuffer_load_dword v3, v{vaddr}, s[44:47], s22 offen {SC}\ns_waitcnt vmcnt(0)\nv_xor_b32 v2, s48, v2\nv_xor_b32 v3, s48, v3\nv_or_b32 v2, v2, v3")
    else: a(f"buffer_load_dword v2, v{vaddr}, s[44:47], 0 offen {SC}\ns_waitcnt vmcnt(0)\nv_xor_b32 v2, s48, v2")
    a(f"v_cmp_ne_u32 vcc, 0, v2\ns_add_u32 s49, s49, 1\ns_cmp_eq_u64 vcc, 0\ns_cbranch_scc1 {L}d\n{slp}\ns_cmp_lt_u32 s49, 20000\ns_cbranch_scc1 {L}")
    a.label(L + "d"); a("s_mov_b64 exec, -1")
def tag_ready(a):
    a("s_waitcnt lgkmcnt(0)\ns_mul_i32 s48, s48, 1664525\ns_add_u32 s48, s48, 1013904223")
def step_tag(a):
    a(f"v_lshlrev_b32 v12, 7, v1"); gate(a, 12, (1 << 64) - 1, two=8192)
    a(f"v_lshrrev_b32 v12, 3, v1\nv_lshlrev_b32 v12, 11, v12\nv_and_b32 v13, 7, v1\nv_lshl_add_u32 v12, v13, 7, v12\nv_add_u32 v12, {F2}, v12"); gate(a, 12, (1 << 64) - 1, two=16384)
    a(f"s_mov_b64 exec, 1\nv_mov_b32 v2, s48\nv_mov_b32 v3, {FZ}\nbuffer_store_dword v2, v3, s[44:47], 0 offen {SC}\ns_mov_b64 exec, -1")

def code_prefetch(a):
    if not opt("ncode"): return
    L = uid("Lpc")
    a(f"s_getpc_b64 s[30:31]\n{L}:\ns_sub_u32 s30, s30, {L}-{NAME}_kernel\ns_subb_u32 s31, s31, 0\nv_lshlrev_b32 v2, 7, v1")
    for i in range(opt("ncode", 0)):
        a(f"v_min_u32 v3, Lcode_end-{NAME}_kernel-4, v2\nglobal_load_dword v{40+i}, v3, s[30:31]\nv_add_u32 v2, 8192, v2")

def ln_issue(a):
    a(f"""
    s_lshl_b32 s22, s19, 4
    s_lshl_b32 s23, s3, 2
    s_add_u32 s22, s22, s23
    v_lshrrev_b32 v2, 4, v1
    v_add_u32 v10, s22, v2
    v_and_b32 v11, 15, v1
    v_lshlrev_b32 v4, 4, v11
    v_mul_u32_u24 v5, 1280, v10
    v_add_u32 v5, v5, v4
    s_waitcnt lgkmcnt(0)
    """)
    srd(a, 4, 4, H_SZ); srd(a, 8, 8, 1280)
    for i in range(5): a(f"buffer_load_dwordx4 {v(16+4*i,4)}, v5, s[4:7], 0 offen offset:{256*i}")
    for i in range(5): a(f"buffer_load_dwordx4 {v(36+4*i,4)}, v4, s[8:11], 0 offen offset:{256*i}")
def ln_finish(a):
    X, GW, U = 16, 36, 56
    srd(a, 4, 20, H_SZ, H_OFF); srd(a, 8, 20, G_SZ, G_OFF)
    a("s_mov_b32 s30, 0x3f803f80\ns_mov_b32 s31, 0xffff0000"); estamp(a, 1); a("s_waitcnt vmcnt(5)"); estamp(a, 2)
    a(f"v_dot2_f32_bf16 v6, v{X}, s30, 0\nv_dot2_f32_bf16 v8, v{X+1}, s30, 0")
    for i in range(2, 20): a(f"v_dot2_f32_bf16 v{6+2*(i&1)}, v{X+i}, s30, v{6+2*(i&1)}")
    for i in range(20): a(f"v_lshlrev_b32 v{U+2*i}, 16, v{X+i}\nv_and_b32 v{U+1+2*i}, s31, v{X+i}")
    def red(*rs):
        for sh in (8, 4, 2, 1):
            for r in rs: a(f"v_add_f32_dpp v{r}, v{r}, v{r} row_ror:{sh} row_mask:0xf bank_mask:0xf")
    a("v_add_f32 v6, v6, v8"); red(6)
    a(f"v_mul_f32 v6, {f2u(1/640)}, v6")
    for i in range(20): a(f"v_pk_add_f32 {v(U+2*i,2)}, {v(U+2*i,2)}, v[6:7] op_sel_hi:[1,0] neg_lo:[0,1] neg_hi:[0,1]")
    a(f"v_pk_mul_f32 v[12:13], {v(U,2)}, {v(U,2)}\nv_pk_mul_f32 v[14:15], {v(U+2,2)}, {v(U+2,2)}")
    for i in range(2, 20): a(f"v_pk_fma_f32 {v(12+2*(i&1),2)}, {v(U+2*i,2)}, {v(U+2*i,2)}, {v(12+2*(i&1),2)}")
    a("v_pk_add_f32 v[12:13], v[12:13], v[14:15]\nv_add_f32 v12, v12, v13")
    red(12)
    a(f"v_mov_b32 v8, {f2u(1e-5)}\nv_fmac_f32 v8, {f2u(1/640)}, v12\nv_rsq_f32 v12, v8")
    for j in range(5):
        for i in range(4*j, 4*j+4): a(f"v_pk_mul_f32 {v(U+2*i,2)}, {v(U+2*i,2)}, v[12:13] op_sel_hi:[1,0]")
        for i in range(4*j, 4*j+4): a(f"v_cvt_pk_bf16_f32 v{96+i}, v{U+2*i}, v{U+1+2*i}")
        a(f"buffer_store_dwordx4 {v(96+4*j,4)}, v5, s[4:7], 0 offen offset:{256*j} {SC}")
    estamp(a, 3)
    a("s_barrier")
    a(f"s_waitcnt vmcnt(5)\nv_dot2_f32_bf16 v9, v{X}, v{GW}, 0\nv_dot2_f32_bf16 v8, v{X+1}, v{GW+1}, 0")
    for i in range(2, 20): a(f"v_dot2_f32_bf16 v{9-(i&1)}, v{X+i}, v{GW+i}, v{9-(i&1)}")
    a("v_add_f32 v9, v9, v8"); red(9)
    a(f"""
    v_mul_f32 v9, {f2u(-LOG2E)}, v9
    v_exp_f32 v9, v9
    v_add_f32 v9, 1.0, v9
    v_rcp_f32 v8, v9
    v_lshlrev_b32 v10, 3, v10
    """)
    tag_ready(a)
    a(f"""
    v_mov_b32 v9, s48
    s_mov_b32 exec_lo, 0x00010001
    s_mov_b32 exec_hi, 0x00010001
    buffer_store_dwordx2 v[8:9], v10, s[8:11], 0 offen {SC}
    s_mov_b64 exec, -1
    s_lshl_b32 s22, s19, 7
    v_lshl_add_u32 v10, v1, {14 if opt("mixed") else 15}, s22
    """)
    if opt("early"): a("s_waitcnt vmcnt(1)"); estamp(a, 4)
    publish(a, 0, 4, 10, 4, keep=1)
    if opt("early"): estamp(a, 5); a("s_waitcnt vmcnt(0)"); estamp(a, 6)

G1_S, G1_SLOT = 6, 24576
def w1_sweep(a):
    a(f"s_lshl_b32 s23, s53, {2 if opt('mixed') else 1}\ns_add_u32 s23, s23, s3\ns_lshl_b32 s23, s23, 6\nv_add_u32 v2, s23, v1\ns_lshr_b32 s23, s52, 1\ns_mul_i32 s23, s23, 768\ns_mov_b32 s26, 43691")
    for n in range(3):
        a(f"v_add_u32 v3, {4096*n}, v2\nv_mul_u32_u24 v4, s26, v3\nv_lshrrev_b32 v4, 18, v4\nv_mul_u32_u24 v5, {3072-768}, v4\nv_lshl_add_u32 v5, v3, 7, v5\nv_add_u32 v{16+n}, s23, v5")
        if not opt("noslowcol"):
            a(f"v_and_b32 v5, 0x380, v{16+n}\nv_cmp_le_u32 vcc, {opt('sc0', 1024)}, v4\nv_cndmask_b32_e64 v5, 0, v5, vcc\nv_cmp_eq_u32 vcc, 0x180, v5\nv_cndmask_b32_e64 v{16+n}, v{16+n}, -16, vcc")
    srd(a, 4, 4, S_ * 3072)
    a("s_barrier"); estamp(a, 1)
    pre = opt("pre", 2)
    for n in range(3):
        if n == pre: tag_ready(a); a("s_barrier")
        if not opt("nopfw1"): a(f"buffer_load_dword v{20+n}, v{16+n}, s[4:7], 0 offen")
    if pre == 3: tag_ready(a); a("s_barrier")
    estamp(a, 2)
    if opt("pfwait"): a("s_waitcnt vmcnt(0)")
    estamp(a, 3)
def g1_loader_w(a):
    a(f"""
    v_lshrrev_b32 v2, 4, v1
    s_lshl_b32 s23, s3, 2
    v_add_u32 v2, s23, v2
    v_lshlrev_b32 v4, 1, v2
    v_and_b32 v3, 15, v1
    v_xor_b32 v3, v3, v4
    v_lshlrev_b32 v3, 4, v3
    v_mul_u32_u24 v2, 3072, v2
    s_lshl_b32 s26, s16, 8
    v_add3_u32 v8, v2, v3, s26
    """)
    for i in range(1, 8): a(f"v_add_u32 v{8+i}, {8*3072*i}, v8")
    a(f"""
    s_mov_b32 s34, s18
    s_lshl_b32 s37, s3, 10
    s_add_u32 s38, s37, {G1_SLOT*G1_S}
    s_mov_b32 s33, 0
    """)
    def issue():
        a(f"s_mul_i32 s40, s34, {64*3072}" if not opt("wwrap") else f"s_and_b32 s40, s34, 3\ns_mul_i32 s40, s40, {64*3072}")
        for i in range(8): a(f"s_add_u32 m0, s37, {2048*i}\n{thr('w', 11)}buffer_load_dwordx4 v{8+i}, s[4:7], s40 offen lds")
        a(f"s_add_u32 s37, s37, {G1_SLOT}\ns_cmp_ge_u32 s37, s38\ns_cselect_b32 s42, {G1_SLOT*G1_S}, 0\ns_sub_u32 s37, s37, s42\ns_add_u32 s34, s34, 1\ns_and_b32 s34, s34, 31")
    if opt("sweep"):
        w1_sweep(a); issue_n(a, G1_S - 2, issue)
    else:
        pp = opt("ppre", 1)
        srd(a, 4, 4, S_ * 3072); a("s_barrier")
        if pp: issue_n(a, pp, issue)
        tag_ready(a); a("s_barrier")
        if pp < G1_S - 2: issue_n(a, G1_S - 2 - pp, issue)
    if opt("early"): estamp(a, 4); a("s_waitcnt vmcnt(0)"); estamp(a, 5)
    stamp(a, 1)
    steady(a, 32, 8, G1_S - 2, issue)
    if (not opt("earlyp")): drain(a, 8, G1_S - 2); stamp(a, 2); a("s_branch Lp2_s0")
    else: P2(0).setup_s(a); P2(0).early(a, 8, 12, "s")
def g1_loader_h(a):
    a(f"""
    v_lshrrev_b32 v2, 3, v1
    v_and_b32 v3, 7, v1
    v_and_b32 v4, 6, v2
    v_xor_b32 v3, v3, v4
    v_lshlrev_b32 v3, 4, v3
    s_sub_u32 s22, s3, 2
    s_lshl_b32 s23, s22, 3
    v_add_u32 v2, s23, v2
    v_mul_u32_u24 v2, 1280, v2
    s_lshl_b32 s26, s17, 7
    v_add3_u32 v8, v2, v3, s26
    """)
    for i in range(1, 4): a(f"v_add_u32 v{8+i}, {16*1280*i}, v8")
    a(f"""
    s_lshl_b32 s23, s52, 14
    v_lshl_add_u32 v12, v1, 7, s23
    s_mov_b32 s34, s18
    s_lshl_b32 s37, s22, 10
    s_add_u32 s37, s37, 16384
    s_add_u32 s38, s37, {G1_SLOT*G1_S}
    s_mov_b32 s33, 0
    """)
    srd(a, 4, 20, H_SZ, H_OFF)
    def issue():
        a(f"s_mul_i32 s40, s34, {64*1280}" if not opt("hwrap") else f"s_and_b32 s40, s34, 3\ns_mul_i32 s40, s40, {64*1280}")
        for i in range(4): a(f"s_add_u32 m0, s37, {2048*i}\n{thr('h', 5)}buffer_load_dwordx4 v{8+i}, s[4:7], s40 offen {'' if opt('hplain') else SC} lds")
        a(f"s_add_u32 s37, s37, {G1_SLOT}\ns_cmp_ge_u32 s37, s38\ns_cselect_b32 s42, {G1_SLOT*G1_S}, 0\ns_sub_u32 s37, s37, s42\ns_add_u32 s34, s34, 1\ns_and_b32 s34, s34, 31")
    a("s_barrier"); tag_ready(a); a("s_barrier")
    if opt("s15"): a("s_barrier")
    estamp(a, 1)
    gate(a, 12, (1 << 64) - 1, two=8192)
    stamp(a, 1); estamp(a, 3)
    if opt("early"): a("s_add_u32 s78, s70, s49\ns_mov_b32 s79, 0")
    if not (not opt("s2")): a("s_barrier")
    issue_n(a, G1_S - 2, issue)
    steady(a, 32, 4, G1_S - 2, issue)
    if (not opt("earlyp")): drain(a, 4, G1_S - 2); stamp(a, 2); a("s_branch Lp2_d0")
    else: P2(0).setup_d(a); P2(0).early(a, 4, 16, "d")
def g1_consumer(a):
    L = "Lg1"
    if opt("s15"): a("s_barrier")
    ACC, T = 16, 48
    a(f"""
    s_load_dwordx2 s[24:25], s[0:1], {KA['b1']}
    s_and_b32 s22, s3, 1
    s_lshr_b32 s23, s3, 1
    s_lshl_b32 s26, s16, 8
    s_lshl_b32 s27, s22, 7
    s_add_u32 s26, s26, s27
    v_lshrrev_b32 v2, 4, v1
    v_lshl_add_u32 v3, v2, 3, s26
    s_waitcnt lgkmcnt(0)
    """)
    srd(a, 24, 24, 3072); srd(a, 8, 20, UW_SZ, UW_OFF)
    for ft in range(4): a(f"buffer_load_dwordx2 {v(T+2*ft,2)}, v3, s[24:27], 0 offen offset:{32*ft}")
    a(f"""
    s_setprio 0
    v_lshrrev_b32 v5, 2, v1
    v_and_b32 v6, 3, v1
    v_lshlrev_b32 v6, 3, v6
    v_and_b32 v7, 7, v5
    v_lshl_add_u32 v4, v5, 8, v6
    s_lshl_b32 s27, s22, 2
    """)
    for ft in range(4): a(f"s_add_u32 s28, s27, {ft}\nv_xor_b32 v2, s28, v7\nv_lshl_add_u32 v{8+ft}, v2, 5, v4")
    a(f"v_lshrrev_b32 v7, 1, v5\nv_and_b32 v7, 3, v7\nv_lshl_add_u32 v4, v5, 7, v6\nv_add_u32 v4, 16384, v4\ns_lshl_b32 s27, s23, 1")
    for dt in range(2): a(f"s_add_u32 s28, s27, {dt}\nv_xor_b32 v2, s28, v7\nv_lshl_add_u32 v{12+dt}, v2, 5, v4")
    a(f"""
    s_lshl_b32 s28, s17, 2
    s_add_u32 s28, s28, s27
    s_mul_i32 s28, s28, 68
    s_lshl_b32 s29, s16, 2
    s_add_u32 s28, s28, s29
    s_lshl_b32 s29, s22, 1
    s_add_u32 s28, s28, s29
    s_lshl_b32 s28, s28, 10
    v_lshl_add_u32 v14, v1, 4, s28
    s_lshl_b32 s28, s17, 4
    s_add_u32 s28, s28, s16
    s_lshl_b32 s28, s28, 7
    s_add_u32 s28, s28, {F4}
    v_mul_u32_u24 v15, {160*128}, v1
    v_add_u32 v15, s28, v15
    s_mov_b32 s31, 0xffff0000
    s_waitcnt vmcnt(0)
    """)
    for ft in range(4):
        for dt in range(2):
            b = ACC + 8 * ft + 4 * dt
            a(f"v_lshlrev_b32 v{b}, 16, v{T+2*ft}\nv_and_b32 v{b+1}, s31, v{T+2*ft}\nv_lshlrev_b32 v{b+2}, 16, v{T+2*ft+1}\nv_and_b32 v{b+3}, s31, v{T+2*ft+1}")
    SETS = (48, 96)
    def reads(st):
        r = []
        for kk in range(2):
            b = SETS[st] + 24 * kk
            for dt in range(2): r += [(f"ds_read_b64_tr_b16 {v(b+4*dt+2*h,2)}, v{12+dt} offset:{kk*4096+2048*h}", (kk, "b", dt, h)) for h in range(2)]
            for ft in range(4): r += [(f"ds_read_b64_tr_b16 {v(b+8+4*ft+2*h,2)}, v{8+ft} offset:{kk*8192+4096*h}", (kk, "a", ft, h)) for h in range(2)]
        return r
    def mf(st):
        return [(f"v_mfma_f32_16x16x32_bf16 {v(ACC+8*ft+4*dt,4)}, {v(SETS[st]+24*kk+8+4*ft,4)}, {v(SETS[st]+24*kk+4*dt,4)}, {v(ACC+8*ft+4*dt,4)}", {(kk, "a", ft, 1)})
                for kk in range(2) for ft, dt in ([(f, d) for d in range(2) for f in range(4)] if opt("g1ord") else [(f, d) for f in range(4) for d in range(2)])]
    ids = [x[1] for x in reads(0)]
    adv = slot_adv(G1_SLOT, G1_S) + [f"v_add_u32 v{8+i}, s40, v{8+i}" for i in range(6)]
    if not (not opt("s2")): a("s_barrier")
    a("s_mov_b32 s33, 0\ns_mov_b32 s37, 0\ns_barrier"); stamp(a, 2, True)
    emit_step(a, [], [], reads(0), adv)

    a.label(f"{L}_c", 3)
    a("s_barrier")
    emit_step(a, mf(0), ids, reads(1), adv + ["s_add_u32 s33, s33, 2", "s_cmp_ge_u32 s33, 32"])
    a(f"s_cbranch_scc1 {L}_clast\ns_barrier")
    emit_step(a, mf(1), ids, reads(0), adv)
    a(f"s_branch {L}_c")
    a.label(f"{L}_clast")
    a("s_waitcnt lgkmcnt(0)" + ("\ns_barrier" if opt("noe2") else "")); stamp(a, 3, True); lstamp(a, 1)
    last = [t for t, _ in mf(1)]
    grp = lambda p, dt: [last[8 * kk + 2 * (2 * p + h) + dt] for kk in range(2) for h in range(2)]
    G = [(p, dt) for p in range(2) for dt in range(2)]
    for t in grp(*G[0]) + grp(*G[1]): a(t)
    rest = grp(*G[2]) + grp(*G[3])
    c0 = -2 * 0.7978845608028654 * LOG2E; c1 = c0 * 0.044715
    a(f"v_mov_b32 v2, {f2u(c0)}\nv_mov_b32 v4, {f2u(c1)}\nv_mov_b32 v6, 1.0\ns_setprio 2")
    lstamp(a, 2)
    T = 48
    for n, (p, dt) in enumerate(G):
        o = 72 + 4 * n
        prs = [ACC + 8 * (2 * p + h) + 4 * dt + 2 * q for h in range(2) for q in range(2)]
        def ops(l):
            for x in l:
                a(x)
                if rest and not x.startswith(("v_exp", "v_rcp")): a(rest.pop(0))
        ops([f"v_pk_mul_f32 {v(T+2*i,2)}, {v(b,2)}, {v(b,2)}" for i, b in enumerate(prs)])
        ops([f"v_pk_fma_f32 {v(T+2*i,2)}, {v(T+2*i,2)}, v[4:5], v[2:3] op_sel_hi:[1,0,0]" for i, b in enumerate(prs)])
        ops([f"v_pk_mul_f32 {v(T+2*i,2)}, {v(T+2*i,2)}, {v(b,2)}" for i, b in enumerate(prs)])
        ops([f"v_exp_f32 v{T+i}, v{T+i}" for i in range(8)])
        ops([f"v_pk_add_f32 {v(T+2*i,2)}, {v(T+2*i,2)}, v[6:7] op_sel_hi:[1,0]" for i, b in enumerate(prs)])
        ops([f"v_rcp_f32 v{T+i}, v{T+i}" for i in range(8)])
        ops([f"v_pk_mul_f32 {v(T+2*i,2)}, {v(T+2*i,2)}, {v(b,2)}" for i, b in enumerate(prs)])
        ops([f"v_cvt_pk_bf16_f32 v{o+i}, v{T+2*i}, v{T+2*i+1}" for i in range(4)])
        a(f"s_mov_b32 s29, {dt*68*1024}\nbuffer_store_dwordx4 {v(o,4)}, v14, s[8:11], s29 offen offset:{1024*p} {SC}")
    lstamp(a, 3)
    if not opt("noe2"): a("s_barrier")
    if opt("late"): a("s_waitcnt vmcnt(0)"); lstamp(a, 4)
    publish(a, 4, 4, 15, 4)
    if opt("late"): lstamp(a, 5); a("s_waitcnt vmcnt(0)"); lstamp(a, 6)
    stamp(a, 4, True)

def spare_loader(a):
    a(f"""
    s_load_dwordx2 s[4:5], s[0:1], {KA['wo']}
    s_load_dwordx2 s[12:13], s[0:1], {KA['w2']}
    v_lshrrev_b32 v2, 3, v1
    v_and_b32 v3, 7, v1
    v_and_b32 v4, 6, v2
    v_xor_b32 v3, v3, v4
    v_lshlrev_b32 v14, 4, v3
    v_mul_u32_u24 v15, 1280, v2
    v_add_u32 v15, v15, v14
    v_lshrrev_b32 v3, 2, v2
    v_lshl_add_u32 v3, v3, 4, v2
    v_add_u32 v3, 16, v3
    v_mul_u32_u24 v3, 1280, v3
    v_add_u32 v14, v14, v3
    s_mul_i32 s23, s3, {7*4096}
    v_lshrrev_b32 v5, 2, v1
    v_lshrrev_b32 v6, 1, v5
    v_and_b32 v6, 3, v6
    v_lshlrev_b32 v5, 7, v5
    v_and_b32 v7, 3, v1
    v_lshlrev_b32 v7, 3, v7
    v_add3_u32 v5, v5, v7, s23
    """)
    for t in range(4): a(f"v_xor_b32 v7, {t}, v6\nv_lshl_add_u32 v{8+t}, v7, 5, v5")
    a(f"v_lshlrev_b32 v12, 4, v1\ns_lshl_b32 s26, s16, 7\ns_add_u32 s26, s26, {F3}\nv_lshl_add_u32 v13, v1, 10, s26\ns_waitcnt lgkmcnt(0)")
    srd(a, 4, 4, 640 * 1280); srd(a, 8, 20, UW_SZ, UW_OFF); srd(a, 12, 12, F_ * 4096)
    def task():
        a("s_lshl_b32 s26, s33, 2\ns_add_u32 s26, s26, s3\ns_min_u32 s26, s26, 24\ns_mul_i32 s27, s16, 25\ns_add_u32 s27, s27, s26\ns_mul_i32 s26, s27, 6554\ns_lshr_b32 s26, s26, 16\ns_mul_i32 s28, s26, 10\ns_sub_u32 s27, s27, s28")
    L = uid("Lwo")
    a("s_mov_b32 s33, 0"); a.label(L); task()
    for half in range(2):
        a(f"""
        s_lshl_b32 s28, s26, 1
        s_add_u32 s28, s28, {half}
        s_mul_i32 s29, s28, 52
        s_lshr_b32 s29, s29, 8
        s_mul_i32 s30, s29, 5
        s_sub_u32 s28, s28, s30
        s_mul_i32 s29, s29, 80
        s_mul_i32 s30, s28, 20
        s_cmp_eq_u32 s28, 4
        s_cselect_b64 vcc, -1, 0
        s_cselect_b32 s30, 0, s30
        s_cselect_b32 s31, 40, 8
        s_mul_i32 s31, s31, 1280
        s_add_u32 s29, s29, s30
        s_mul_i32 s28, s29, 1280
        s_lshl_b32 s29, s27, 7
        s_add_u32 s28, s28, s29
        v_cndmask_b32 v2, v15, v14, vcc
        """)
        for i in range(2): a(f"s_add_u32 m0, s23, {2048*half+1024*i}\nbuffer_load_dwordx4 v2, s[4:7], s28 offen lds\ns_add_u32 s28, s28, s31")
    a(f"s_add_u32 s23, s23, 4096\ns_add_u32 s33, s33, 1\ns_cmp_lt_u32 s33, 7\ns_cbranch_scc1 {L}\ns_waitcnt vmcnt(0)\ns_mov_b32 s33, 0")
    L = uid("Lwo"); a.label(L); task()
    for t in range(4): a(f"ds_read_b64_tr_b16 {v(16+4*t,2)}, v{8+t}\nds_read_b64_tr_b16 {v(18+4*t,2)}, v{8+t} offset:2048\nv_add_u32 v{8+t}, 4096, v{8+t}")
    a(f"s_lshl_b32 s28, s27, 2\ns_mul_i32 s28, s28, 68\ns_add_u32 s28, s28, s26\ns_add_u32 s28, s28, 48\ns_lshl_b32 s28, s28, 10")
    for t in range(4): a(f"s_waitcnt lgkmcnt({6-2*t})\nbuffer_store_dwordx4 {v(16+4*t,4)}, v12, s[8:11], s28 offen {SC}\ns_add_u32 s28, s28, {68*1024}")
    a(f"s_add_u32 s33, s33, 1\ns_cmp_lt_u32 s33, 7\ns_cbranch_scc1 {L}")
    publish(a, 8, 4, 13, 8)
    stamp(a, 1)
    if opt("spw2"):
        L = uid("Lw2")
        a(f"""
        s_and_b32 s22, s16, 1
        s_lshl_b32 s22, s22, 2
        s_add_u32 s22, s22, s3
        s_lshl_b32 s22, s22, 3
        v_lshrrev_b32 v2, 3, v1
        v_add_u32 v2, s22, v2
        v_lshlrev_b32 v2, 12, v2
        v_and_b32 v3, 7, v1
        v_lshl_add_u32 v2, v3, 7, v2
        s_lshr_b32 s22, s52, 1
        s_lshl_b32 s22, s22, 10
        s_mov_b32 s33, 0
        {L}:
        buffer_load_dword v30, v2, s[12:15], s22 offen
        s_add_u32 s22, s22, {64*4096}
        s_add_u32 s33, s33, 1
        s_cmp_lt_u32 s33, 24
        s_cbranch_scc1 {L}
        """)
    h0 = opt("sph", 0)
    if h0:
        L = uid("Lsh"); n = ((32 - h0 + 1) // 2 * 10 + 7) // 8
        srd(a, 4, 20, H_SZ, H_OFF)
        a(f"s_lshl_b32 s23, s52, 14\nv_lshl_add_u32 v12, v1, 7, s23")
        gate(a, 12, (1 << 64) - 1, two=8192)
        a(f"""
        s_and_b32 s22, s16, 1
        s_lshl_b32 s22, s22, 2
        s_add_u32 s22, s22, s3
        v_lshlrev_b32 v2, 7, v1
        s_mov_b32 s33, 0
        {L}:
        s_mul_i32 s23, s22, 6554
        s_lshr_b32 s23, s23, 16
        s_mul_i32 s23, s23, {64*1280}
        s_lshl_b32 s26, s22, 13
        s_add_u32 s23, s23, s26
        s_add_u32 s23, s23, {h0*64*1280}
        buffer_load_dword v30, v2, s[4:7], s23 offen {SC}
        s_add_u32 s22, s22, 8
        s_add_u32 s33, s33, 1
        s_cmp_lt_u32 s33, {n}
        s_cbranch_scc1 {L}
        """)
    nw = opt("c3", 0)
    if nw:
        L = uid("Lc3")
        a(f"""
        s_cmp_ge_u32 s3, {nw}
        s_cbranch_scc1 {L}d
        s_and_b32 s22, s16, 1
        s_mul_i32 s22, s22, {nw}
        s_add_u32 s22, s22, s3
        s_lshl_b32 s22, s22, 6
        v_add_u32 v2, s22, v1
        v_lshlrev_b32 v2, 12, v2
        s_lshr_b32 s22, s52, 1
        s_lshl_b32 s22, s22, 10
        s_add_u32 s22, s22, 384
        s_mov_b32 s33, 0
        {L}:
        buffer_load_dword v30, v2, s[12:15], s22 offen
        s_add_u32 s22, s22, {128*nw*4096}
        s_add_u32 s33, s33, 1
        s_cmp_lt_u32 s33, {12//nw}
        s_waitcnt vmcnt(0)
        s_cbranch_scc1 {L}
        {L}d:
        """)
    stamp(a, 2)

QA_S, QA_SLOT, QA_W = 3, 49152, 18432
def qa_w1_sweep(a):
    if not opt("qsw"): return
    a(f"""
    s_load_dwordx2 s[12:13], s[0:1], {KA['w1']}
    s_lshr_b32 s22, s2, 1
    s_lshl_b32 s22, s22, 2
    s_add_u32 s22, s22, s3
    s_lshl_b32 s23, s22, 12
    s_lshl_b32 s22, s22, 13
    s_add_u32 s23, s23, {512*8192}
    v_lshlrev_b32 v2, 7, v1
    s_waitcnt lgkmcnt(0)
    """)
    srd(a, 12, 12, S_ * 3072)
    a("buffer_load_dword v32, v2, s[12:15], s22 offen\ns_mov_b32 exec_hi, 0\nbuffer_load_dword v33, v2, s[12:15], s23 offen\ns_mov_b32 exec_hi, -1")
def w2_setup(a):
    a(f"""
    s_load_dwordx2 s[24:25], s[0:1], {KA['w2']}
    v_lshrrev_b32 v2, 3, v1
    s_lshl_b32 s22, s53, 3
    v_add_u32 v2, s22, v2
    v_lshlrev_b32 v2, 12, v2
    v_and_b32 v3, 7, v1
    v_lshl_add_u32 v2, v3, 7, v2
    s_lshr_b32 s22, s52, 1
    s_lshl_b32 s22, s22, 10
    v_add_u32 v29, s22, v2
    s_waitcnt lgkmcnt(0)
    """)
    srd(a, 24, 24, F_ * 4096)
def w2_load(a):
    if opt("sc3"): a("s_mov_b32 exec_lo, 0xf7f7f7f7\ns_mov_b32 exec_hi, 0xf7f7f7f7\nbuffer_load_dword v30, v29, s[24:27], s22 offen\ns_mov_b64 exec, -1")
    else: a("buffer_load_dword v30, v29, s[24:27], s22 offen")
def w2_last(a):
    if not opt("nopfw2"): a("s_lshl_b32 s22, s3, 20"); w2_load(a)
def w2_slow(a):
    n = opt("sc3")
    if not n or n > 2: return
    a(f"s_lshl_b32 s22, s53, 2\ns_add_u32 s22, s22, s3\ns_lshl_b32 s22, s22, 12\ns_lshr_b32 s23, s52, 1\ns_lshl_b32 s23, s23, 10\ns_add_u32 s22, s22, s23\ns_add_u32 s22, s22, 384\ns_add_u32 s26, s24, s22\ns_addc_u32 s27, s25, 0")
    for k in range(12):
        for h in range(n): a(f"s_load_dword s98, s[26:27], {64*h}")
        a(f"s_add_u32 s26, s26, {128*4096}\ns_addc_u32 s27, s27, 0")
def qa_loader(a):
    a(f"v_lshrrev_b32 v2, 3, v1\ns_lshl_b32 s23, s3, 3\nv_add_u32 v2, s23, v2\ns_lshl_b32 s26, s16, 7\ns_sub_u32 s26, s26, 16\nv_and_b32 v3, 7, v1")
    for i in range(6):
        a(f"v_add_u32 v4, {24*i}, v2\nv_lshrrev_b32 v5, 1, v4\nv_and_b32 v5, 7, v5\nv_xor_b32 v5, v5, v3\nv_add_u32 v4, s26, v4\nv_max_i32 v4, 0, v4\nv_mul_u32_u24 v4, 1280, v4\nv_lshl_add_u32 v{8+i}, v5, 4, v4")
    a(f"s_mul_i32 s23, s3, 320\ns_mul_i32 s26, s17, 160\nv_add_u32 v2, s23, v1")
    for i in range(5):
        a(f"""
        v_add_u32 v3, {64*i}, v2
        v_mul_u32_u24 v4, 2185, v3
        v_lshrrev_b32 v4, 16, v4
        v_mul_u32_u24 v5, 30, v4
        v_sub_u32 v3, v3, v5
        v_mul_u32_u24 v5, 26, v3
        v_lshrrev_b32 v5, 8, v5
        v_mul_u32_u24 v5, {1280-160}, v5
        v_lshl_add_u32 v3, v3, 4, v5
        v_and_b32 v5, 12, v4
        v_lshlrev_b32 v5, 1, v5
        v_lshrrev_b32 v6, 4, v4
        v_lshl_add_u32 v5, v6, 2, v5
        v_and_b32 v4, 3, v4
        v_add_u32 v4, v4, v5
        v_mul_u32_u24 v4, 3840, v4
        v_add3_u32 v{16+i}, v4, v3, s26
        """)
    a(f"s_mov_b32 s34, s18\ns_mov_b32 s37, 0\ns_lshl_b32 s38, s3, 10\ns_mul_i32 s39, s3, 5120\ns_add_u32 s39, s39, {QA_W}\ns_mov_b32 s33, 0")
    srd(a, 4, 4, H_SZ); srd(a, 8, 8, 640 * 3840)
    def issue(half=None):
        if half != 1: a(f"s_lshl_b32 s40, s34, 7\ns_mul_i32 s41, s34, {64*3840}\ns_add_u32 s42, s37, s38\ns_add_u32 s43, s37, s39\ns_add_u32 s36, s41, {32*3840}")
        if half != 1:
            for i in range(3): a(f"s_add_u32 m0, s42, {3072*i}\nbuffer_load_dwordx4 v{8+i}, s[4:7], s40 offen lds")
            for i in range(5): a(f"s_add_u32 m0, s43, {1024*i}\nbuffer_load_dwordx4 v{16+i}, s[8:11], s41 offen lds")
        if half != 0:
            for i in range(3, 6): a(f"s_add_u32 m0, s42, {3072*i}\nbuffer_load_dwordx4 v{8+i}, s[4:7], s40 offen lds")
            for i in range(5): a(f"s_add_u32 m0, s43, {15360+1024*i}\nbuffer_load_dwordx4 v{16+i}, s[8:11], s36 offen lds")
            a(f"s_add_u32 s37, s37, {QA_SLOT}\ns_cmp_ge_u32 s37, {QA_SLOT*QA_S}\ns_cselect_b32 s37, 0, s37\ns_add_u32 s34, s34, 1\ns_cmp_ge_u32 s34, 10\ns_cselect_b32 s34, 0, s34")
    if opt("lateb0"):
        issue_n(a, 2, issue); tag_ready(a); w2_setup(a); stamp(a, 1)
    else:
        issue(); issue(0); tag_ready(a); a("s_waitcnt vmcnt(8)\ns_barrier"); issue(1); issue(); a("s_mov_b32 s33, 3")
        w2_setup(a); stamp(a, 1)
    steady(a, 10, 16, QA_S - 1, issue); drain(a, 16, QA_S - 1)
    stamp(a, 2); w2_last(a); a("s_barrier")
def qa_idle(a):
    code_prefetch(a)
    if not opt("now49"):
        a(f"""
        s_mul_i32 s22, s53, 60
        v_add_u32 v2, s22, v1
        v_mul_u32_u24 v3, 4370, v2
        v_lshrrev_b32 v3, 16, v3
        v_mul_u32_u24 v4, 15, v3
        v_sub_u32 v2, v2, v4
        v_mul_u32_u24 v4, 52, v2
        v_lshrrev_b32 v4, 8, v4
        v_mul_u32_u24 v4, {1280-640}, v4
        v_lshl_add_u32 v2, v2, 7, v4
        v_lshrrev_b32 v4, 6, v3
        v_lshl_add_u32 v3, v4, 8, v3
        v_add_u32 v3, 256, v3
        v_mul_u32_u24 v3, 3840, v3
        s_lshr_b32 s22, s52, 2
        s_mul_i32 s22, s22, 640
        v_add3_u32 v2, v2, v3, s22
        """)
        srd(a, 8, 8, 640 * 3840)
        a("s_mov_b32 exec_hi, 0x0fffffff\nbuffer_load_dword v31, v2, s[8:11], 0 offen\ns_mov_b32 exec_hi, -1")
    if opt("x49"):
        a(f"""
        s_lshr_b32 s22, s53, 3
        s_mul_i32 s22, s22, 36
        s_lshl_b32 s23, s16, 7
        s_add_u32 s22, s22, s23
        s_sub_u32 s22, s22, 16
        v_add_u32 v2, s22, v1
        v_max_i32 v2, 0, v2
        v_mul_u32_u24 v2, 1280, v2
        s_bitcmp1_b32 s53, 0
        s_cselect_b32 s22, 5, 4
        s_cselect_b32 s23, 0, 9
        s_lshl_b32 s22, s22, 7
        s_lshl_b32 s23, s23, 7
        """)
        srd(a, 4, 4, H_SZ)
        a("s_mov_b32 exec_hi, 0xf\nbuffer_load_dword v32, v2, s[4:7], s22 offen\nbuffer_load_dword v33, v2, s[4:7], s23 offen\ns_mov_b32 exec_hi, -1")
    tag_ready(a); w2_setup(a)
    at = (opt("w2a", 5), opt("w2b", 7))
    for i in range(10):
        a("s_barrier")
        for k in range(2):
            if at[k] == i and not opt("nopfw2"): a(f"s_mov_b32 s22, {(4+k) << 20}"); w2_load(a)
    w2_last(a); a("s_barrier")
def qa_consumer(a):
    L = "Lqa"
    AQ, AK, AR, AV, AW = 16, 48, 88, 108, 148
    XF, WB = 168, 208
    M0, M1, MF, PM, TM = 224, 228, 232, 236, 240
    NB, DD = 4, opt("dd", 3)
    a(f"""
    s_lshr_b32 s28, s3, 1
    s_and_b32 s29, s3, 1
    v_and_b32 v2, 15, v1
    v_lshrrev_b32 v3, 4, v1
    v_lshrrev_b32 v4, 1, v2
    v_xor_b32 v4, v4, v3
    v_lshlrev_b32 v4, 4, v4
    v_lshl_add_u32 v4, v2, 7, v4
    v_mov_b32 v8, v4
    v_xor_b32 v9, 64, v4
    v_lshrrev_b32 v5, 2, v1
    v_mul_u32_u24 v5, 480, v5
    s_mul_i32 s23, s29, 80
    s_add_u32 s23, s23, {QA_W}
    v_add_u32 v5, s23, v5
    v_and_b32 v4, 3, v1
    v_lshl_add_u32 v10, v4, 3, v5
    v_and_b32 v6, 1, v1
    v_mul_u32_u24 v6, 40, v6
    v_add3_u32 v13, v6, v5, 32
    v_lshrrev_b32 v4, 1, v4
    v_mul_u32_u24 v4, 160, v4
    v_add_u32 v11, v4, v13
    """)
    if opt("zv"):
        a(f"v_and_b32 v4, 3, v1\nv_lshrrev_b32 v4, 1, v4\nv_cmp_ne_u32 s[98:99], s29, v4")
    for i in range(AQ, XF): a(f"v_mov_b32 v{i}, 0")
    a(f"v_lshlrev_b32 v4, 2, v3\nv_sub_u32 v4, v2, v4\nv_mov_b32 v5, {f2u(-1e30)}")
    for r in range(4):
        a(f"""
        v_subrev_u32 v15, {r}, v4
        v_and_b32 v15, 0x80000001, v15
        v_cmp_eq_u32 vcc, 0, v15
        v_cndmask_b32_e64 v{M1+r}, v5, 0, vcc
        v_cndmask_b32_e64 v{TM+4+r}, 0, -1, vcc
        v_cmp_eq_u32 vcc, 0x80000000, v15
        v_cndmask_b32_e64 v{M0+r}, v5, 0, vcc
        v_cndmask_b32_e64 v{TM+r}, 0, -1, vcc
        """)
    a("s_mov_b32 s30, 0xffff\ns_mov_b32 s22, 0x0c0c0c0c\ns_mov_b32 s26, 0x01000100\ns_mov_b32 s27, 0x03020302")
    for i in range(4): a(f"v_bfi_b32 v{PM+i}, s30, v{TM+2*i}, v{TM+2*i+1}\nv_mov_b32 v15, s22\nv_bfi_b32 v{PM+i}, v{PM+i}, s{26+(i&1)}, v15")
    a(f"s_or_b32 s23, s16, s28\ns_cmp_eq_u32 s23, 0\ns_cselect_b64 vcc, -1, 0")
    for r in range(4): a(f"v_cndmask_b32 v{MF+r}, v{M0+r}, v5, vcc")
    GM = 90
    for j in range(2): a(f"v_cmp_eq_u32 s[{GM+2*j}:{GM+1+2*j}], {j}, v3")
    a(f"""
    v_and_b32 v4, 1, v3
    v_cmp_eq_u32 s[94:95], 1, v4
    s_cmp_eq_u32 s29, 0
    s_cselect_b32 s96, -1, 0
    s_cselect_b32 s97, 0, -1
    s_lshl_b32 s23, s16, 3
    s_lshl_b32 s26, s28, 2
    s_add_u32 s23, s23, s26
    s_mul_i32 s23, s23, 40
    s_mul_i32 s26, s17, 5
    s_add_u32 s23, s23, s26
    s_lshl_b32 s23, s23, 9
    v_lshl_add_u32 v15, v1, 3, s23
    s_lshl_b32 s26, s29, 10
    v_add_u32 v12, s26, v15
    s_lshl_b32 s23, s16, 4
    s_add_u32 s23, s23, s17
    s_lshl_b32 s23, s23, 7
    s_add_u32 s23, s23, {F2}
    v_lshl_add_u32 v14, v1, 10, s23
    s_mov_b32 s31, {f2u(20 ** -0.5 * LOG2E)}
    v_mov_b32 v6, s31
    s_mov_b32 s33, 0
    s_mov_b32 s37, 0
    s_waitcnt lgkmcnt(0)
    """)
    srd(a, 4, 20, OT_SZ, OT_OFF); tag_ready(a)
    U = [("q", 0), ("q", 1), ("k", 0), ("k", 1), ("r", 0), ("v", 0), ("v", 1), ("w", 0)]
    NU = len(U); UU = 2 * NU
    def wread(u):
        kk, c = divmod(u, NU); p, j = U[c]; b = WB + 4 * (u % NB)
        ad, off = {"q": (10, 40 * j), "k": (10, 160 + 40 * j), "v": (10, 320 + 40 * j), "r": (11, 0), "w": (13, 320)}[p]
        off += kk * 15360
        return [f"ds_read_b64_tr_b16 {v(b,2)}, v{ad} offset:{off}", f"ds_read_b64_tr_b16 {v(b+2,2)}, v{ad} offset:{off+7680}"]
    def acc(p, j, t): return {"q": AQ + 8 * (t - 1) + 4 * j, "k": AK + 8 * t + 4 * j, "r": AR + 4 * t, "v": AV + 20 * j + 4 * t, "w": AW + 4 * t}[p]
    cvt = lambda d, s0: f"v_cvt_pk_bf16_f32 v{d}, v{s0}, v{s0+1}"
    cv = lambda d, s0: a(cvt(d, s0))
    VCH = (AV, AV + 20, AW)
    stamp(a, 1, True); a("s_barrier"); stamp(a, 2, True)
    a(f"s_cmp_lg_u32 s28, 0\ns_cbranch_scc1 {L}_h1")
    for rh in range(2):
        a.label(f"{L}_h{rh}")
        def xread(kk): return [f"ds_read_b128 {v(XF+20*kk+4*t,4)}, v{8+kk} offset:{2048*(4*rh+t) if t else 0}" for t in (1, 2, 3, 4, 0)]
        def mf(u):
            kk, c = divmod(u, NU); p, j = U[c]; w = v(WB + 4 * (u % NB), 4); r = []
            for t in ((1, 2, 3, 4, 0) if p in ("kr", "vw")[rh] else (1, 2, 3, 4)):
                x = v(XF + 20 * kk + 4 * t, 4); d = v(acc(p, j, t), 4)
                r.append(f"v_mfma_f32_16x16x32_bf16 {d}, {w}, {x}, {d}" if p in "qkr" else f"v_mfma_f32_16x16x32_bf16 {d}, {x}, {w}, {d}")
            return r
        for t in xread(0): a(t)
        for u in range(DD):
            for t in wread(u): a(t)
        a(f"s_waitcnt lgkmcnt({2*DD-2})")
        a.label(f"{L}_c{rh}", 3)
        q = []
        for u in range(1, DD): q += [u, u]
        misc = slot_adv(QA_SLOT, QA_S) + ["s_add_u32 s33, s33, 1", "s_cmp_ge_u32 s33, 10"]
        x1 = xread(1)
        for u in range(UU):
            nx = u + DD; fill = []
            if nx == UU: fill += [(t, UU) for t in xread(0)]
            fill += [(t, nx) for t in wread(nx % UU)]
            if 1 <= u < NU - 1 and x1: fill.append((x1.pop(0), NU))
            ms = mf(u)
            if nx == UU:
                a(f"s_waitcnt lgkmcnt(0)\ns_cbranch_scc1 {L}_clast{rh}\ns_barrier"); q = []
            per = -(-len(fill) // len(ms))
            for i, m in enumerate(ms):
                a(m)
                for t, tag in fill[i*per:(i+1)*per]: a(t); q.append(tag)
                if i == len(ms) - 2 and misc and u >= 2: a(misc.pop(0))
                if 1 <= i <= 3 and nx == UU - 1:
                    for r in ((), (8, 9, 10), (11, 13))[i - 1]: a(f"v_add_u32 v{r}, s40, v{r}")
            if any(t <= u + 1 for t in q) and nx != UU - 1:
                last = max(i for i, t in enumerate(q) if t <= u + 1)
                q = q[last + 1:]
                a(f"s_waitcnt lgkmcnt({len(q)})")
        assert not misc and not x1 and len(q) == 2 * DD - 2, (misc, x1, q)
        a(f"s_branch {L}_c{rh}")
        a.label(f"{L}_clast{rh}"); stamp(a, 3, True); lstamp(a, 1)
        TK = (4, 3, 2, 1) if rh else (4, 3, 2, 1, 0); prep = []
        for t in TK:
            r = AR + 4 * t; k = AK + 8 * t
            prep += [cvt(k, k), cvt(k + 1, k + 2), cvt(k + 4, k + 4), cvt(k + 5, k + 6), cvt(k + 2, r), cvt(k + 3, r + 2), cvt(r, r), cvt(r + 1, r + 2)]
        for t in TK:
            r = AR + 4 * t; k = AK + 8 * t
            prep += [f"v_permlane32_swap_b32 v{r}, v{k+2}", f"v_permlane32_swap_b32 v{r+1}, v{k+3}"]
        assert DD == 3
        for u in range(UU - DD, UU):
            for m in mf(u): a(m); a(prep.pop(0)); a(prep.pop(0))
        a(f"v_lshlrev_b32 v8, 3, v1\ns_mul_i32 s23, s29, 4608\ns_add_u32 s23, s23, {QA_SLOT}\nv_add_u32 v8, s23, v8")
        for x in prep: a(x)
        if rh == 0:
            for i in range(3): a(f"ds_write_b64 v8, {v(AK+32+2*i,2)} offset:{512*i}")
        for n, b in enumerate(VCH):
            for i in range(0 if rh else 2, 10): cv(b + i, b + 2 * i)
            a(f"ds_write_b64 v8, {v(b + (0 if rh else 8),2)} offset:{(3072 if rh else 1536) + 512*n}")
        a("s_waitcnt lgkmcnt(0)\ns_barrier")
        if rh:
            for i in range(3): a(f"ds_read_b64 {v(AK+2*i,2)}, v8 offset:{512*i}")
        for n, b in enumerate(VCH): a(f"ds_read_b64 {v(b,2)}, v8 offset:{(1536 if rh else 3072) + 512*n}")
        if rh == 0: a(f"s_branch {L}_j")
    a.label(f"{L}_j")
    lstamp(a, 2)
    UN = [(t, j) for t in (4, 3, 2, 1) for j in range(2)]
    SRS = [XF + 8 * n for n in range(7)] + [TM + 8]
    def qprep(t):
        r = AR + 4 * t; qa, qb = acc("q", 0, t), acc("q", 1, t)
        return [cvt(qa, qa), cvt(qa + 1, qa + 2), cvt(qb + 3, qb + 2), cvt(qb + 2, qb)] + \
               [f"v_cndmask_b32 v{qa+2+i}, 0, v{r+i}, s[{GM}:{GM+1}]" for i in range(2)] + [f"v_cndmask_b32 v{qb+i}, 0, v{r+i}, s[{GM+2}:{GM+3}]" for i in range(2)]
    for x in qprep(4): a(x)
    for n, (t, j) in enumerate(UN):
        qf = v(acc("q", j, t), 4)
        if j == 0: nxt = qprep(t - 1) if t > 1 else []
        if n == 6: a("s_waitcnt lgkmcnt(0)")
        a(f"v_mfma_f32_16x16x32_bf16 {v(SRS[n],4)}, {v(AK+8*(t-1)+2*j,4)}, {qf}, {v(MF if t == 1 else M0,4)}")
        for x in nxt[4*j:4*j+2]: a(x)
        a(f"v_mfma_f32_16x16x32_bf16 {v(SRS[n]+4,4)}, {v(AK+8*t+2*j,4)}, {qf}, {v(M1,4)}")
        for x in nxt[4*j+2:4*j+4]: a(x)
    V2, X = AQ, AQ + 16
    P = [AK + 4 * n for n in range(8)]
    for n in range(8): s_ = SRS[n]; a(f"v_max3_f32 v{V2+2*n}, v{s_}, v{s_+1}, v{s_+4}\nv_max3_f32 v{V2+2*n+1}, v{s_+2}, v{s_+3}, v{s_+6}")
    for n in range(8): s_ = SRS[n]; a(f"v_max_f32 v{V2+2*n}, v{V2+2*n}, v{s_+5}\nv_max_f32 v{V2+2*n+1}, v{V2+2*n+1}, v{s_+7}")
    def seq(*steps):
        for st in steps:
            for x in (X, X + 4): a(st(x))
    def xred(op):
        seq(lambda x: f"v_permlane32_swap_b32 v{x}, v{x+1}\nv_permlane32_swap_b32 v{x+2}, v{x+3}",
            lambda x: f"{op} v{x}, v{x}, v{x+1}\n{op} v{x+2}, v{x+2}, v{x+3}",
            lambda x: f"v_permlane16_swap_b32 v{x}, v{x+2}", lambda x: f"{op} v{x}, v{x}, v{x+2}")
    def xbc():
        seq(lambda x: f"v_mov_b32 v{x+2}, v{x}", lambda x: f"v_permlane16_swap_b32 v{x}, v{x+2}",
            lambda x: f"v_mov_b32 v{x+1}, v{x}\nv_mov_b32 v{x+3}, v{x+2}",
            lambda x: f"v_permlane32_swap_b32 v{x}, v{x+1}\nv_permlane32_swap_b32 v{x+2}, v{x+3}")
    sel = lambda n: f"op_sel:[0,{n&1},{n&1}] op_sel_hi:[1,{n&1},{n&1}]"
    for n in range(8): a(f"v_max_f32 v{X+n}, v{V2+2*n}, v{V2+2*n+1}")
    xred("v_max_f32"); seq(lambda x: f"v_mul_f32 v{x}, s31, v{x}"); xbc()
    for n in range(8): a(f"v_pk_fma_f32 {v(V2+2*n,2)}, {v(V2+2*n,2)}, v[6:7], {v(X+(n&6),2)} op_sel:[0,0,{n&1}] op_sel_hi:[1,0,{n&1}] neg_lo:[0,0,1] neg_hi:[0,0,1]")
    for n in range(16): a(f"v_exp_f32 v{V2+n}, v{V2+n}")
    for n in range(8): a(f"v_add_f32 v{X+n}, v{V2+2*n}, v{V2+2*n+1}")
    xred("v_add_f32"); seq(lambda x: f"v_rcp_f32 v{x}, v{x}"); xbc()
    for n in range(8): a(f"v_pk_mul_f32 {v(V2+2*n,2)}, {v(V2+2*n,2)}, {v(X+(n&6),2)} op_sel:[0,{n&1}] op_sel_hi:[1,{n&1}]")
    for n in range(8): cv(X + n, V2 + 2 * n)
    a("s_setprio 2")
    def pv(n):
        t, j = UN[n]
        return [f"v_mfma_f32_16x16x32_bf16 {v(SRS[n],4)}, {v(AV+20*j+2*(t-1),4)}, {v(P[n],4)}, 0", f"v_mfma_f32_16x16x32_bf16 {v(SRS[n]+4,4)}, {v(AW+2*(t-1),4)}, {v(P[n],4)}, 0"]
    for n in range(8):
        pm = [f"v_perm_b32 v{P[n]+i}, v{X+n}, v{X+n}, v{PM+i}" for i in range(4)]
        m = pv(n - 1) if n else ["", ""]
        a(pm[0]); a(pm[1]); a(m[0]); a(pm[2]); a(pm[3]); a(m[1])
    for m in pv(7): a(m)
    O = AQ
    for t in (4, 3, 2, 1):
        n = 2 * (4 - t); o = O + 6 * (4 - t)
        a(f"s_mov_b32 s29, {40*512*(t-1)}")
        for j in range(2):
            cv(o + 2 * j, SRS[n + j]); cv(o + 2 * j + 1, SRS[n + j] + 2)
            a(f"buffer_store_dwordx2 {v(o+2*j,2)}, v12, s[4:7], s29 offen offset:{512*j} {SC}")
        for r in range(4): a(f"v_cndmask_b32 v{SRS[n]+4+r}, v{SRS[n]+4+r}, v{SRS[n+1]+4+r}, s[94:95]")
        cv(o + 4, SRS[n] + 4); cv(o + 5, SRS[n] + 6)
        a(f"s_mov_b64 exec, s[96:97]\nbuffer_store_dwordx2 {v(o+4,2)}, v15, s[4:7], s29 offen offset:2048 {SC}\ns_mov_b64 exec, -1")
    lstamp(a, 3)
    a("s_barrier")
    if opt("late"): a("s_waitcnt vmcnt(0)"); lstamp(a, 4)
    publish(a, 4, 4, 14, 2)
    if opt("late"): lstamp(a, 5); a("s_waitcnt vmcnt(0)"); lstamp(a, 6)
    stamp(a, 4, True)

class P2:
    def __init__(s, par):
        s.par = par; s.ND = (opt("nd0", 4), 10 - opt("nd0", 4))[par]
        s.SLOT = 8192 + 2048 * s.ND; s.S = min(RING // s.SLOT, 8); s.AH = s.S - 2
        s.AA = min(opt("aha", 6), s.AH); s.GB = max(opt("gb%d" % par, 7), 11 - s.AH, 10 - s.AA)
    def adv(s): return f"s_add_u32 s37, s37, {s.SLOT}\ns_cmp_ge_u32 s37, s38\ns_cselect_b32 s42, {s.SLOT*s.S}, 0\ns_sub_u32 s37, s37, s42\ns_add_u32 s34, s34, 1"
    def setup_s(s, a):
        a(f"""
        s_load_dwordx2 s[12:13], s[0:1], {KA['w2']}
        v_lshrrev_b32 v2, 3, v1
        v_and_b32 v3, 7, v1
        v_and_b32 v4, 6, v2
        v_xor_b32 v3, v3, v4
        v_lshlrev_b32 v3, 4, v3
        v_lshl_add_u32 v2, v2, 12, v3
        s_lshl_b32 s23, s3, 17
        s_lshl_b32 s26, s50, 7
        s_add_u32 s23, s23, s26
        v_add_u32 v8, s23, v2
        """)
        for i in range(1, 4): a(f"v_add_u32 v{8+i}, {8*4096*i}, v8")
        a(f"s_lshl_b32 s23, s50, 2\ns_mul_i32 s23, s23, 40\ns_lshl_b32 s26, s3, 1\ns_add_u32 s23, s23, s26\ns_lshl_b32 s23, s23, 9\nv_lshl_add_u32 v16, v1, 4, s23")
        for i in range(1, 4): a(f"v_add_u32 v{16+i}, {40*512*i}, v16")
        a(f"s_and_b32 s23, s50, -2\ns_add_u32 s23, s23, {s.par}\ns_lshl_b32 s23, s23, 10\ns_add_u32 s23, s23, {F2}\nv_lshl_add_u32 v12, v1, 7, s23")
        a(f"s_mov_b32 s34, 0\ns_lshl_b32 s37, s3, 12\ns_add_u32 s38, s37, {s.SLOT*s.S}\ns_mov_b32 s33, 0\ns_waitcnt lgkmcnt(0)")
        srd(a, 4, 20, OT_SZ, OT_OFF)
    def early(s, a, n, vflag, tag):
        a(f"""
        s_waitcnt vmcnt({3*n})
        s_barrier
        s_waitcnt vmcnt({2*n})
        s_barrier
        s_mov_b64 exec, 0xff
        buffer_load_dword v2, v{vflag}, s[44:47], 0 offen {SC}
        s_waitcnt vmcnt({n+1})
        s_barrier
        s_waitcnt vmcnt(1)
        s_barrier
        """)
        stamp(a, 2)
        a(f"s_waitcnt vmcnt(0)\nv_cmp_ne_u32 vcc, s48, v2\ns_mov_b64 exec, -1\ns_cmp_eq_u64 vcc, 0\ns_cbranch_scc0 Lp2_{tag}{s.par}e\ns_barrier\ns_branch Lp2_{tag}{s.par}k")
    def loader_s(s, a):
        AH, AA = s.AH, s.AA
        s.setup_s(a)
        a.label(f"Lp2_s{s.par}e")
        a("s_barrier")
        if s.par: w2_slow(a)
        gate(a, 12, 0xff)
        a.label(f"Lp2_s{s.par}k")
        stamp(a, 3)
        def issue(sc):
            a(f"s_lshl_b32 s40, s34, {11 if sc else 18}")
            for i in range(4): a(f"s_add_u32 m0, s37, {1024*i}\nbuffer_load_dwordx4 v{(16 if sc else 8)+i}, s[4:7], s40 offen {sc} lds")
            a(s.adv())
        issue_n(a, AA, lambda: issue(SC))
        steady(a, 10, 4, AA, lambda: issue(SC))
        srd(a, 4, 12, F_ * 4096); a("s_mov_b32 s34, 0")
        if AA < AH: a(f"s_waitcnt vmcnt({4*(AA-1)})\ns_barrier"); issue_n(a, AH - AA + 1, lambda: issue(""))
        steady(a, 34, 4, AH, lambda: issue(""))
        stamp(a, 5)
        drain(a, 4, AH)
        endp(a)
    def setup_d(s, a):
        ND = s.ND
        a(f"s_sub_u32 s22, s3, 2\ns_mul_i32 s23, s51, 68\ns_add_u32 s23, s23, s22\ns_lshl_b32 s23, s23, 10\nv_lshl_add_u32 v8, v1, 4, s23")
        for i in range(1, ND): a(f"v_add_u32 v{8+i}, {68*1024*i}, v8")
        a(f"""
        s_mul_i32 s37, s22, {1024*ND}
        s_add_u32 s37, s37, 8192
        s_add_u32 s38, s37, {s.SLOT*s.S}
        s_lshl_b32 s23, s52, 10
        s_add_u32 s23, s23, {F3}
        v_lshl_add_u32 v16, v1, 7, s23
        s_lshr_b32 s23, s51, 2
        s_lshl_b32 s23, s23, 11
        s_lshr_b32 s26, s52, 1
        s_mul_i32 s26, s26, {160*128}
        s_add_u32 s23, s23, s26
        s_add_u32 s23, s23, {F4}
        v_lshl_add_u32 v17, v1, 7, s23
        s_mov_b32 s34, 0
        s_mov_b32 s36, 48
        s_mov_b32 s33, 0
        """)
        srd(a, 8, 20, UW_SZ, UW_OFF)
    def loader_d(s, a):
        AH, AA, GB, ND = s.AH, s.AA, s.GB, s.ND
        s.setup_d(a)
        a.label(f"Lp2_d{s.par}e")
        a("s_barrier")
        if s.par: w2_slow(a)
        gate(a, 16, 0xff)
        a.label(f"Lp2_d{s.par}k")
        stamp(a, 3)
        def issue():
            a("s_lshl_b32 s41, s34, 1\ns_add_u32 s41, s41, s36\ns_lshl_b32 s41, s41, 10")
            for i in range(ND): a(f"s_add_u32 m0, s37, {1024*i}\nbuffer_load_dwordx4 v{8+i}, s[8:11], s41 offen {SC} lds")
            a(s.adv())
        issue_n(a, AA, issue)
        steady(a, 10, ND, AA, issue)
        for j in range(10 - AA, GB): a(f"s_waitcnt vmcnt({ND*(9-j)})\ns_barrier")
        a("s_mov_b32 s36, 0\ns_mov_b32 s34, 0")
        gate(a, 17, 0x0fff if ND == 4 else 0x0fff0fff)
        stamp(a, 4)
        issue_n(a, GB + AH - 10, issue)
        steady(a, 34, ND, AH, issue)
        stamp(a, 5)
        drain(a, ND, AH)
        endp(a)
    def consumer(s, a):
        ND = s.ND; L = f"Lp2{s.par}"
        ACB = 16; ACA = ACB + 4 * ND; KS = 4 + 4 * ND; SETS = (ACA + 4 * ND, ACA + 4 * ND + 2 * KS)
        a(f"""
        s_load_dwordx2 s[24:25], s[0:1], {KA['b2']}
        s_load_dwordx2 s[28:29], s[0:1], {KA['out']}
        s_lshl_b32 s23, s50, 6
        s_lshl_b32 s26, s3, 4
        s_add_u32 s23, s23, s26
        v_and_b32 v2, 15, v1
        v_add_u32 v2, s23, v2
        v_lshlrev_b32 v3, 1, v2
        v_lshlrev_b32 v4, 3, v2
        s_waitcnt lgkmcnt(0)
        """)
        srd(a, 24, 24, 4096); srd(a, 8, 20, G_SZ, G_OFF); srd(a, 28, 28, S_ * 1280)
        a(f"""
        buffer_load_ushort v10, v3, s[24:27], 0 offen
        s_setprio 0
        v_lshrrev_b32 v5, 2, v1
        v_lshrrev_b32 v6, 1, v5
        v_and_b32 v6, 3, v6
        v_xor_b32 v6, s3, v6
        v_lshlrev_b32 v6, 5, v6
        v_lshl_add_u32 v5, v5, 7, v6
        v_and_b32 v6, 3, v1
        v_lshl_add_u32 v8, v6, 3, v5
        v_lshlrev_b32 v9, 4, v1
        v_add_u32 v9, 8192, v9
        v_mul_u32_u24 v12, 1280, v2
        v_lshrrev_b32 v6, 4, v1
        v_lshl_add_u32 v12, v6, 3, v12
        s_lshl_b32 s26, s51, 5
        v_add_u32 v12, s26, v12
        s_lshl_b32 s26, s3, 10
        v_lshl_add_u32 v13, v1, 3, s26
        v_and_b32 v14, 1, v6
        v_mul_u32_u24 v14, 24, v14
        v_add_u32 v14, v14, v12
        """)
        for i in range(4 * ND): a(f"v_mov_b32 v{ACA+i}, 0")
        def reads(st, ph="b"):
            r = []
            for kk in range(2):
                b = SETS[st] + KS * kk
                if ph == "a": r += [(f"ds_read_b64 {v(b,2)}, v13 offset:{kk*4096}", (kk, "b0")), (f"ds_read_b64 {v(b+2,2)}, v13 offset:{kk*4096+512}", (kk, "b1"))]
                else: r += [(f"ds_read_b64_tr_b16 {v(b,2)}, v8 offset:{kk*4096}", (kk, "b0")), (f"ds_read_b64_tr_b16 {v(b+2,2)}, v8 offset:{kk*4096+2048}", (kk, "b1"))]
                r += [(f"ds_read_b128 {v(b+4+4*dt,4)}, v9 offset:{(kk*ND+dt)*1024}", (kk, dt)) for dt in range(ND)]
            return r
        def mf(acc, st):
            return [(f"v_mfma_f32_16x16x32_bf16 {v(acc+4*dt,4)}, {v(SETS[st]+KS*kk+4+4*dt,4)}, {v(SETS[st]+KS*kk,4)}, {v(acc+4*dt,4)}", {(kk, "b1"), (kk, dt)}) for kk in range(2) for dt in range(ND)]
        ids = [x[1] for x in reads(0)]
        adv = slot_adv(s.SLOT, s.S) + ["v_add_u32 v8, s40, v8", "v_add_u32 v9, s40, v9"]
        a("s_mov_b32 s33, 0\ns_mov_b32 s37, 0\ns_barrier"); stamp(a, 5, True)
        adva = adv + ["v_add_u32 v13, s40, v13"]
        emit_step(a, [], [], reads(0, "a"), adva)
        a.label(f"{L}_ca", 3)
        a("s_barrier")
        emit_step(a, mf(ACA, 0), ids, reads(1, "a"), adva + ["s_add_u32 s33, s33, 2", "s_cmp_ge_u32 s33, 10"])
        a(f"s_barrier\ns_cbranch_scc1 {L}_cax")
        emit_step(a, mf(ACA, 1), ids, reads(0, "a"), adva)
        a(f"s_branch {L}_ca")
        a.label(f"{L}_cax")
        emit_step(a, mf(ACA, 1), ids, reads(0, "b"), adv)
        a(f"s_waitcnt vmcnt(0)\nbuffer_load_dwordx2 v[6:7], v4, s[8:11], 0 offen {SC}\nv_lshlrev_b32 v10, 16, v10")
        for i in range(4 * ND): a(f"v_mov_b32 v{ACB+i}, v10")
        a.label(f"{L}_cb", 3)
        a("s_barrier")
        emit_step(a, mf(ACB, 0), ids, reads(1), adv + ["s_add_u32 s33, s33, 2", "s_cmp_ge_u32 s33, 34"])
        a(f"s_cbranch_scc1 {L}_clast\ns_barrier")
        emit_step(a, mf(ACB, 1), ids, reads(0), adv)
        a(f"s_branch {L}_cb")
        a.label(f"{L}_clast")
        emit_step(a, mf(ACB, 1), ids, [], [])
        stamp(a, 6)
        a(f"""
        s_mov_b32 s49, 0
        {L}_g:
        s_waitcnt vmcnt(0)
        v_cmp_ne_u32 vcc, s48, v7
        s_add_u32 s49, s49, 1
        s_cmp_eq_u64 vcc, 0
        s_cbranch_scc1 {L}_gk
        buffer_load_dwordx2 v[6:7], v4, s[8:11], 0 offen {SC}
        s_cmp_lt_u32 s49, 20000
        s_cbranch_scc1 {L}_g
        s_waitcnt vmcnt(0)
        {L}_gk:
        """)
        aux = 'sc1' if opt('osc1') else ''; O = SETS[0]
        for dt in range(ND):
            for r in range(0, 4, 2): a(f"v_pk_add_f32 {v(ACA+4*dt+r,2)}, {v(ACA+4*dt+r,2)}, {v(ACB+4*dt+r,2)} neg_lo:[0,1] neg_hi:[0,1]")
            for r in range(0, 4, 2): a(f"v_pk_fma_f32 {v(ACB+4*dt+r,2)}, {v(ACA+4*dt+r,2)}, v[6:7], {v(ACB+4*dt+r,2)} op_sel_hi:[1,0,1]")
            a(f"v_cvt_pk_bf16_f32 v{O+2*dt}, v{ACB+4*dt}, v{ACB+4*dt+1}\nv_cvt_pk_bf16_f32 v{O+1+2*dt}, v{ACB+4*dt+2}, v{ACB+4*dt+3}")
            if dt & 1:
                b = O + 2 * (dt - 1)
                a(f"v_permlane16_swap_b32 v{b}, v{b+2}\nv_permlane16_swap_b32 v{b+1}, v{b+3}\nbuffer_store_dwordx4 {v(b,4)}, v14, s[28:31], 0 offen offset:{32*(dt-1)} {aux}")
            elif dt == ND - 1: a(f"buffer_store_dwordx2 {v(O+2*dt,2)}, v12, s[28:31], 0 offen offset:{32*dt} {aux}")
        endp(a)

def gen_main(a, name):
    kernel_head(a, name)
    if PROF:
        for i in range(1, 8): a(f"s_mov_b64 s[{70+2*i}:{71+2*i}], 0")
        stamp(a, 0); a("s_memtime s[66:67]")
    a(f"""
    s_cmp_ge_u32 s2, 256
    s_cbranch_scc1 Lend
    s_load_dwordx2 s[20:21], s[0:1], {KA['ws']}
    v_lshrrev_b32 v1, 6, v0
    v_readfirstlane_b32 s3, v1
    v_and_b32 v1, 63, v0
    {"s_and_b32 s52, s2, 3" + chr(10) + "s_lshl_b32 s52, s52, 1" + chr(10) + "s_bfe_u32 s53, s2, 0x10002" + chr(10) + "s_or_b32 s52, s52, s53" if opt("lo") else "s_and_b32 s52, s2, 7"}
    s_lshr_b32 s53, s2, 3
    s_lshr_b32 s22, s52, 1
    s_lshl_b32 s50, s22, 3
    s_and_b32 s23, s53, 7
    s_add_u32 s50, s50, s23
    s_lshr_b32 s26, s53, 3
    """)
    if PROF: a("s_mov_b32 s69, s3")
    NG = 15 if opt("mixed") else 30
    a("s_cmp_ge_u32 s53, 16\ns_cbranch_scc1 Lrole_qa" if opt("mixed") else "s_bitcmp1_b32 s52, 0\ns_cbranch_scc1 Lrole_qa")
    PE, PO = P2(0), P2(1)
    a(f"s_mul_i32 s51, s26, {PE.ND}")
    a(f"""
    {"s_lshl_b32 s19, s52, 4" if opt("mixed") else "s_lshl_b32 s19, s22, 5"}
    s_add_u32 s19, s19, s53
    s_mul_i32 s17, s53, 86
    s_lshr_b32 s17, s17, 8
    s_mul_i32 s23, s17, 3
    s_sub_u32 s23, s53, s23
    s_mul_i32 s16, s22, 3
    s_add_u32 s16, s16, s23
    """)
    if opt("mixed"): a("s_and_b32 s26, s52, 1\ns_mul_i32 s26, s26, 5\ns_add_u32 s17, s17, s26")
    if opt("sweep"): a("s_mov_b32 s18, 0")
    else: a("s_mul_i32 s18, s17, 205\ns_lshr_b32 s18, s18, 6")
    a("s_cmp_ge_u32 s3, 4\ns_cbranch_scc1 Lg_cons\ns_setprio 1\ns_cmp_ge_u32 s3, 2\ns_cbranch_scc1 Lg_h")
    def flags():
        a(f"s_waitcnt lgkmcnt(0)"); srd(a, 44, 20, FL_SZ, FL_OFF); a(f"s_load_dword s48, s[44:45], {FZ}")
    a(f"s_load_dwordx2 s[4:5], s[0:1], {KA['w1']}"); flags()
    a(f"s_cmp_ge_u32 s53, {NG}\ns_cbranch_scc1 Lsp_w")
    g1_loader_w(a)
    a.label("Lsp_w")
    if opt("sweep"): w1_sweep(a)
    else: a("s_barrier"); tag_ready(a); a("s_barrier")
    a.label("Lsp_l"); a("s_mov_b32 s16, s52" if opt("mixed") else "s_lshr_b32 s16, s52, 1\ns_lshl_b32 s16, s16, 1\ns_add_u32 s16, s16, s53\ns_sub_u32 s16, s16, 30"); spare_loader(a)
    a("s_cmp_ge_u32 s3, 2\ns_cbranch_scc1 Lp2_d0\ns_branch Lp2_s0")
    a.label("Lg_h"); code_prefetch(a)
    if opt("mixed"):
        a(f"s_load_dwordx2 s[4:5], s[0:1], {KA['w1']}"); flags(); w1_sweep(a)
        a("s_cmp_ge_u32 s53, 15\ns_cbranch_scc1 Lsp_l")
    else:
        flags(); a("s_cmp_lt_u32 s53, 30\ns_cbranch_scc1 Lg_h2\ns_barrier"); tag_ready(a); a("s_barrier\ns_branch Lsp_l")
    a.label("Lg_h2"); g1_loader_h(a)
    a.label("Lg_cons")
    a(f"s_setprio 2\ns_load_dwordx2 s[4:5], s[0:1], {KA['x']}\ns_load_dwordx2 s[8:9], s[0:1], {KA['gw']}\ns_sub_u32 s3, s3, 4")
    ln_issue(a)
    srd(a, 44, 20, FL_SZ, FL_OFF)
    a(f"v_mov_b32 v2, {CTR}\nv_mov_b32 v6, 0\nv_mov_b32 v7, 0\nv_mov_b32 v8, 0\nv_mov_b32 v9, 0\nds_write_b128 v2, v[6:9]\ns_waitcnt lgkmcnt(0)\ns_barrier\ns_load_dword s48, s[44:45], {FZ}")
    ln_finish(a); stamp(a, 1, True)
    a(f"s_cmp_ge_u32 s53, {NG}\ns_cbranch_scc1 Lsp_cons")
    g1_consumer(a); a("s_branch Lp2_c0")
    a.label("Lsp_cons")
    if (opt("sweep") and not opt("noslowcol")):
        R0, SW = opt("sc0", 1024), opt("scw", 1)
        a(f"""
        s_load_dwordx2 s[4:5], s[0:1], {KA['w1']}
        s_lshr_b32 s22, s52, 1
        s_cmp_eq_u32 s22, 2
        s_cselect_b32 s23, 4, s3
        s_cmp_ge_u32 s23, {SW}
        s_cbranch_scc1 Lsc_done
        s_min_u32 s22, s22, 2
        s_lshl_b32 s22, s22, 10
        s_add_u32 s22, s22, {384 + R0 * 3072}
        s_and_b32 s23, s53, 1
        s_mul_i32 s23, s23, {SW}
        s_add_u32 s23, s23, s3
        s_lshl_b32 s23, s23, 6
        v_add_u32 v2, s23, v1
        v_mul_u32_u24 v2, 3072, v2
        s_mov_b32 s33, 0
        s_waitcnt lgkmcnt(0)
        """)
        srd(a, 4, 4, S_ * 3072)
        a(f"Lsc_l:\nbuffer_load_dword v3, v2, s[4:7], s22 offen\ns_add_u32 s22, s22, {128*SW*3072}\ns_add_u32 s33, s33, 1\ns_cmp_lt_u32 s33, {-(-(2048-R0)//(128*SW))}\ns_waitcnt vmcnt(0)\ns_cbranch_scc1 Lsc_l\nLsc_done:\ns_waitcnt lgkmcnt(0)")
    a("s_barrier")
    nw, r0, nr = opt("cw", 2), opt("cr0", 384), opt("cnr", 768)
    if nw:
        a(f"""
        s_cmp_ge_u32 s3, {nw}
        s_cbranch_scc1 Lc3_d
        s_load_dwordx2 s[12:13], s[0:1], {KA['w2']}
        s_lshr_b32 s22, s50, 1
        s_lshl_b32 s22, s22, 11
        s_add_u32 s22, s22, {F2}
        v_mov_b32 v12, s22
        """)
        gate(a, 12, 1)
        a(f"""
        s_and_b32 s22, s53, 1
        s_mul_i32 s22, s22, {nw}
        s_add_u32 s22, s22, s3
        s_lshl_b32 s22, s22, 6
        v_add_u32 v2, s22, v1
        v_lshlrev_b32 v2, 12, v2
        s_lshr_b32 s22, s52, 1
        s_lshl_b32 s22, s22, 10
        s_add_u32 s22, s22, {384 + r0 * 4096}
        s_mov_b32 s33, 0
        s_waitcnt lgkmcnt(0)
        """)
        srd(a, 12, 12, F_ * 4096)
        a(f"Lc3_l:\nbuffer_load_dword v30, v2, s[12:15], s22 offen\ns_add_u32 s22, s22, {128*nw*4096}\ns_add_u32 s33, s33, 1\ns_cmp_lt_u32 s33, {nr//(128*nw)}\ns_waitcnt vmcnt(0)\ns_cbranch_scc1 Lc3_l\nLc3_d:")
    a("s_lshl_b32 s22, s3, 8\ns_add_u32 s22, s22, s2\ns_cmp_lg_u32 s22, 240\ns_cbranch_scc1 Lp2_c0"); step_tag(a); a("s_branch Lp2_c0")
    a.label("Lrole_qa")
    a(f"s_mul_i32 s51, s26, {PO.ND}\ns_add_u32 s51, s51, {4*PE.ND}")
    if opt("mixed"): a("s_and_b32 s23, s53, 3\ns_lshl_b32 s16, s22, 2\ns_add_u32 s16, s16, s23\ns_lshr_b32 s26, s53, 2\ns_and_b32 s26, s26, 3\ns_and_b32 s17, s52, 1\ns_lshl_b32 s17, s17, 2\ns_add_u32 s17, s17, s26")
    else: a(f"""
    s_and_b32 s16, s22, 1
    s_lshl_b32 s16, s16, 3
    s_add_u32 s16, s16, s23
    s_lshr_b32 s17, s22, 1
    s_lshl_b32 s17, s17, 2
    s_add_u32 s17, s17, s26
    """)
    if opt("nsq"): a("s_mov_b32 s18, 0")
    elif opt("mixed"): a("s_add_u32 s18, s26, s23\ns_and_b32 s18, s18, 3\ns_mul_i32 s18, s18, 10\ns_lshr_b32 s18, s18, 2")
    else: a("s_lshl_b32 s18, s26, 1\ns_add_u32 s18, s18, s23\ns_and_b32 s18, s18, 7\ns_mul_i32 s18, s18, 10\ns_lshr_b32 s18, s18, 3")
    a(f"s_cmp_ge_u32 s3, 4\ns_cbranch_scc1 Lq_cons\ns_setprio 1\ns_cmp_eq_u32 s3, 3\ns_cbranch_scc1 Lq_idle")
    a(f"s_load_dwordx2 s[4:5], s[0:1], {KA['x']}\ns_load_dwordx2 s[8:9], s[0:1], {KA['wqkv']}"); qa_w1_sweep(a); flags(); qa_loader(a)
    a("s_cmp_ge_u32 s3, 2\ns_cbranch_scc1 Lp2_d1\ns_branch Lp2_s1")
    a.label("Lq_idle"); a(f"s_load_dwordx2 s[4:5], s[0:1], {KA['x']}\ns_load_dwordx2 s[8:9], s[0:1], {KA['wqkv']}"); flags(); qa_idle(a); a("s_branch Lp2_d1")
    a.label("Lq_cons"); a("s_sub_u32 s3, s3, 4"); flags()
    a(f"v_mov_b32 v2, {CTR}\nv_mov_b32 v6, 0\nv_mov_b32 v7, 0\nv_mov_b32 v8, 0\nv_mov_b32 v9, 0\nds_write_b128 v2, v[6:9]")
    qa_consumer(a)
    for p in (PO, PE):
        a.label(f"Lp2_c{p.par}"); p.consumer(a)
        a.label(f"Lp2_s{p.par}"); p.loader_s(a)
        a.label(f"Lp2_d{p.par}"); p.loader_d(a)
    a.label("Lend"); a("s_endpgm")
    a.raw("Lcode_end:")
    return kernel_desc(name, 256, 102)

def gen_osc(a, name):
    kernel_head(a, name)
    o = next(o for o in OPTS if o.startswith("osc"))[3:].split("_")
    a(f"s_cmp_ge_u32 s2, 1\ns_cbranch_scc1 Losc_end\ns_load_dwordx2 s[4:5], s[0:1], {KA['ws']}\ns_waitcnt lgkmcnt(0)")
    srd(a, 4, 4, 0x100000, TL_OFF + (0x80000 if opt("pthr") else 0x40000))
    def red(dst, base, stride, count, wave, slot, op):
        n = -(-count // 64)
        for i in range(n):
            a(f"v_add_u32 v1, {64*i}, v0\nv_min_u32 v1, {count-1}, v1\nv_mul_u32_u24 v1, {stride}, v1\nv_add_u32 v1, {base}, v1\nv_lshlrev_b32 v1, 9, v1\ns_mov_b32 s8, {wave*64 + slot*4}")
            a(f"buffer_load_dword v{4+i}, v1, s[4:7], s8 offen")
        a("s_waitcnt vmcnt(0)")
        if op == "add":
            for i in range(n): a(f"v_subrev_u32 v{4+i}, s20, v{4+i}")
        for i in range(1, n): a(f"v_{op}_u32 v4, v4, v{4+i}")
        a(f"v_readlane_b32 s{dst}, v4, 0")
        for i in range(1, 64): a(f"v_readlane_b32 s9, v4, {i}\ns_nop 0\ns_{op}_u32 s{dst}, s{dst}, s9")
        if op == "add": a(f"s_lshr_b32 s{dst}, s{dst}, {(64*n).bit_length()-1}\ns_add_u32 s{dst}, s{dst}, s20")
    red(20, 0, 1, 256, 0, 0, "min")
    if len(o) > 1:
        red(21, int(o[0]), int(o[1]), int(o[2]), int(o[3]), int(o[4]), dict(n="min", x="max", a="add")[o[5]])
        a("s_sub_u32 s21, s21, s20\ns_min_u32 s21, s21, 20000\ns_lshl_b32 s21, s21, 2")
    else: a("s_mov_b32 s21, 0")
    a("s_add_u32 s21, s21, 10000\nLosc_spin:\ns_memrealtime s[10:11]\ns_waitcnt lgkmcnt(0)\ns_sub_u32 s10, s10, s20\ns_cmp_lt_u32 s10, s21\ns_cbranch_scc1 Losc_spin")
    a.label("Losc_end"); a("s_endpgm")
    return kernel_desc(name, 16, 32)

def gen_probe(a, name, vg):
    kernel_head(a, name)
    a(f"s_memrealtime s[70:71]\ns_cmp_ge_u32 s2, 256\ns_cbranch_scc1 Lpr_end\ns_load_dwordx2 s[4:5], s[0:1], {KA['ws']}\ns_waitcnt lgkmcnt(0)")
    srd(a, 4, 4, 0x100000, TL_OFF + 0x80000)
    a("s_lshl_b32 s8, s2, 9\nv_mov_b32 v1, s8\nv_mov_b32 v2, s70\nv_cmp_eq_u32 vcc, 0, v0\ns_and_saveexec_b64 s[10:11], vcc\ns_cbranch_execz Lpr_end\nbuffer_store_dword v2, v1, s[4:7], 0 offen")
    a.label("Lpr_end"); a("s_endpgm")
    return kernel_desc(name, vg, 102)

def build(spec=""):
    global PROF
    OPTS[:] = [o for o in spec.split("+") if o]; PROF = bool(opt("prof")); UID[0] = 0
    ref = open(f"cdna_kernels/{NAME}.s.ref").read().split("\n")
    head = ref[:ref.index(next(x for x in ref if x.startswith("; Override")))]
    a = Asm(); a.raw("\n".join(head))
    if opt("lo"): a.raw("; lo")
    osc = any(o.startswith("osc") and o != "osc1" for o in OPTS)
    if opt("pthr"): a.raw(f"; @launch kernel=probe_kernel grid=(256,1,1) block=({opt('pthr')},1,1) lds={opt('plds', 0)}")
    if osc: a.raw(f"; @launch kernel={NAME}_kernel grid=(256,1,1) block=(512,1,1) lds={LDS_SZ}\n; @launch kernel=osc_kernel grid=(1,1,1) block=(64,1,1) lds=0")
    else: a.raw(f"; @launch grid=(256,1,1) block=(512,1,1) lds={LDS_SZ}")
    a.raw('.amdgcn_target "amdgcn-amd-amdhsa--gfx950"')
    d = gen_main(a, NAME + "_kernel")
    if osc: d += gen_osc(a, "osc_kernel")
    if opt("pthr"): d += gen_probe(a, "probe_kernel", opt("pvg"))
    if opt("nocomp"): a.lines = [(t, c) for t, c in a.lines if not (c is not None and (c.kind == "mfma" or c.op.startswith("ds_read")))]
    if opt("noload"): a.lines = [(t, c) for t, c in a.lines if not (c is not None and c.kind == "vmem" and c.lds)]
    if opt("nomfma"): a.lines = [(t, c) for t, c in a.lines if not (c is not None and c.kind == "mfma")]
    if opt("nods"): a.lines = [(t, c) for t, c in a.lines if not (c is not None and c.op.startswith("ds_read"))]
    if opt("nowait"): a.lines = [(t, c) for t, c in a.lines if not (c is not None and c.op == "s_waitcnt" and "lgkm" in t and "(0)" not in t)]
    if opt("al"): a.align_hot([("Lg1_c", "Lg1_clast"), ("Lp2_ca", "Lp2_cax"), ("Lp2_cb", "Lp2_clast")])
    if opt("lp") is not None: a.lines = [((t.replace("s_setprio 1", f"s_setprio {opt('lp')}"), c) if c is not None and c.op == "s_setprio" else (t, c)) for t, c in a.lines]
    bad = a.check_branches()
    for b in bad: print("HAZARD across branch:", b, file=sys.stderr)
    assert not bad
    a.raw(d)
    return a.text()

if __name__ == "__main__":
    open(sys.argv[2] if len(sys.argv) > 2 else f"cdna_kernels/{NAME}.s", "w").write(build(sys.argv[1] if len(sys.argv) > 1 else ""))
```

```python
import sys, struct
from dsl import *

NAME = "gated_mix__sliding_local_dilated__mixer_token_mlp__prompt"
S_, D_, F_ = 2048, 640, 1536
KA = dict(x=0, wqkv=8, wo=16, w1=32, b1=40, w2=48, b2=56, gw=64, out=72, dbg=80, ws=88)
H_OFF, OT_OFF, UW_OFF, G_OFF, FL_OFF = 0, 0x280000, 0x500000, 0x800000, 0x810000
H_SZ, OT_SZ, UW_SZ, G_SZ, FL_SZ = 2621440, 2621440, 40 * 68 * 1024, 16384, 0x70000
F1, F2, F4, FZ, F3 = 0, 0x20000, 0x28000, 0x40000, 0x50000
RING = 163840; CTR = RING - 64; LDS_SZ = RING
LOG2E = 1.4426950408889634
OPTS = []; PROF = False; TL_OFF = 0x1000000
SC = "sc1"
def f2u(x): return "0x%08x" % struct.unpack("<I", struct.pack("<f", x))[0]
def v(n, k=1): return f"v{n}" if k == 1 else f"v[{n}:{n+k-1}]"
def opt(name, default=None):
    for o in OPTS:
        if o == name: return True
        if o.startswith(name + "="): return int(o.split("=")[1])
    return default

def srd(a, d, base, size, off=0):
    if off: a(f"s_add_u32 s{d}, s{base}, {off}\ns_addc_u32 s{d+1}, s{base+1}, 0")
    elif d != base: a(f"s_mov_b32 s{d}, s{base}\ns_mov_b32 s{d+1}, s{base+1}")
    a(f"s_mov_b32 s{d+2}, {size}\ns_mov_b32 s{d+3}, 0x20000")

def estamp(a, i):
    if PROF and opt("early"): a(f"s_memrealtime s[{70+2*i}:{71+2*i}]\ns_waitcnt lgkmcnt(0)")
def lstamp(a, i):
    if PROF and opt("late"): a(f"s_memrealtime s[{70+2*i}:{71+2*i}]\ns_waitcnt lgkmcnt(0)")
def stamp(a, i, wait=False):
    if PROF and opt("clk"):
        k = {2: 1, 3: 3, 6: 5}.get(i)
        if i == 0: a("s_memrealtime s[70:71]")
        elif k and (wait or i == 6): a(f"s_memrealtime s[{70+2*k}:{71+2*k}]\ns_memtime s[{72+2*k}:{73+2*k}]\ns_waitcnt lgkmcnt(0)")
        return
    if PROF and (i == 0 or not (opt("early") or opt("late"))): a(f"s_memrealtime s[{70+2*i}:{71+2*i}]" + ("\ns_waitcnt lgkmcnt(0)" if wait else ""))
def endp(a):
    if PROF:
        a(f"""
        s_waitcnt vmcnt(0)
        s_memrealtime s[84:85]
        s_memtime s[86:87]
        s_waitcnt lgkmcnt(0)
        s_sub_u32 s86, s86, s66
        s_add_u32 s60, s20, {TL_OFF + 0x40000}
        s_addc_u32 s61, s21, 0
        s_mov_b32 s62, 0x40000
        s_mov_b32 s63, 0x20000
        s_mov_b64 exec, 1
        s_lshl_b32 s64, s2, 3
        s_add_u32 s64, s64, s69
        s_lshl_b32 s64, s64, 6
        v_mov_b32 v0, s64
        """)
        for i in range(8): a(f"v_mov_b32 v{4+i}, s{70+2*i}")
        a("v_mov_b32 v12, s86")
        a("buffer_store_dwordx4 v[4:7], v0, s[60:63], 0 offen\nbuffer_store_dwordx4 v[8:11], v0, s[60:63], 0 offen offset:16\nbuffer_store_dword v12, v0, s[60:63], 0 offen offset:32")
    a("s_endpgm")

def emit_step(a, M, prev_ids, R, extra, per_gap=2, head=2):
    q = list(prev_ids); fill = [("r", x) for x in R] + [("x", x) for x in extra]
    def put(n):
        for _ in range(n):
            if not fill: return
            k, x = fill.pop(0)
            if k == "r": a(x[0]); q.append(("n", x[1]))
            else: a(x)
    put(head)
    for text, need_ in M:
        idx = [i for i, t in enumerate(q) if t in need_]
        if idx:
            n = min(len(q) - 1 - idx[-1], 15)
            a(f"s_waitcnt lgkmcnt({n})"); del q[:len(q) - n]
        a(text); put(per_gap)
    put(len(fill))

def slot_adv(SLOT, S):
    return [f"s_add_u32 s40, s37, {SLOT}", f"s_cmp_ge_u32 s40, {SLOT*S}", "s_cselect_b32 s41, 0, s40", "s_sub_u32 s40, s41, s37", "s_mov_b32 s37, s41"]

def thr(name, default):
    t = opt("t" + name, default if opt("thr") else 0)
    return f"s_waitcnt vmcnt({t-1})\n" if t else ""
UID = [0]
def uid(p): UID[0] += 1; return f"{p}{UID[0]}"

def issue_n(a, n, issue):
    L = uid("Li")
    a(f"s_add_u32 s32, s33, {n}")
    a.label(L); issue()
    a(f"s_add_u32 s33, s33, 1\ns_cmp_lt_u32 s33, s32\ns_cbranch_scc1 {L}")
def steady(a, upto, n, ahead, issue):
    L = uid("Ls")
    a.label(L)
    a(f"s_waitcnt vmcnt({n*(ahead-1)})\ns_barrier"); issue()
    a(f"s_add_u32 s33, s33, 1\ns_cmp_lt_u32 s33, {upto}\ns_cbranch_scc1 {L}")
def drain(a, n, ahead):
    for k in range(ahead - 1, -1, -1): a(f"s_waitcnt vmcnt({n*k})\ns_barrier")

def publish(a, ctr, nw, vaddr, lanes, keep=0):
    L = uid("Lpub")
    a(f"""
    s_waitcnt vmcnt({keep})
    s_mov_b64 exec, 1
    v_mov_b32 v2, {CTR + ctr}
    v_mov_b32 v3, 1
    ds_add_rtn_u32 v3, v2, v3
    s_waitcnt lgkmcnt(0)
    v_readfirstlane_b32 s22, v3
    s_mov_b64 exec, {(1 << lanes) - 1}
    s_cmp_lg_u32 s22, {nw - 1}
    s_cbranch_scc1 {L}
    v_mov_b32 v3, s48
    buffer_store_dword v3, v{vaddr}, s[44:47], 0 offen {SC}
    """)
    a.label(L); a("s_mov_b64 exec, -1")
def gate(a, vaddr, mask, two=False):
    L = uid("Lg"); slp = "s_sleep %d" % opt("slp", 4) if opt("slp", 4) else ""
    a(f"s_mov_b32 s49, 0\ns_mov_b32 exec_lo, {mask & 0xffffffff}\ns_mov_b32 exec_hi, {mask >> 32}")
    a.label(L)
    if two: a(f"buffer_load_dword v2, v{vaddr}, s[44:47], 0 offen {SC}\ns_mov_b32 s22, {two}\nbuffer_load_dword v3, v{vaddr}, s[44:47], s22 offen {SC}\ns_waitcnt vmcnt(0)\nv_xor_b32 v2, s48, v2\nv_xor_b32 v3, s48, v3\nv_or_b32 v2, v2, v3")
    else: a(f"buffer_load_dword v2, v{vaddr}, s[44:47], 0 offen {SC}\ns_waitcnt vmcnt(0)\nv_xor_b32 v2, s48, v2")
    a(f"v_cmp_ne_u32 vcc, 0, v2\ns_add_u32 s49, s49, 1\ns_cmp_eq_u64 vcc, 0\ns_cbranch_scc1 {L}d\n{slp}\ns_cmp_lt_u32 s49, 20000\ns_cbranch_scc1 {L}")
    a.label(L + "d"); a("s_mov_b64 exec, -1")
def tag_ready(a):
    a("s_waitcnt lgkmcnt(0)\ns_mul_i32 s48, s48, 1664525\ns_add_u32 s48, s48, 1013904223")
def step_tag(a):
    a(f"v_lshlrev_b32 v12, 7, v1"); gate(a, 12, (1 << 64) - 1, two=8192)
    a(f"v_lshrrev_b32 v12, 3, v1\nv_lshlrev_b32 v12, 11, v12\nv_and_b32 v13, 7, v1\nv_lshl_add_u32 v12, v13, 7, v12\nv_add_u32 v12, {F2}, v12"); gate(a, 12, (1 << 64) - 1, two=16384)
    a(f"s_mov_b64 exec, 1\nv_mov_b32 v2, s48\nv_mov_b32 v3, {FZ}\nbuffer_store_dword v2, v3, s[44:47], 0 offen {SC}\ns_mov_b64 exec, -1")

def code_prefetch(a):
    L = uid("Lpc")
    a(f"s_getpc_b64 s[30:31]\n{L}:\ns_sub_u32 s30, s30, {L}-{NAME}_kernel\ns_subb_u32 s31, s31, 0\nv_lshlrev_b32 v2, 7, v1")
    for i in range(opt("ncode", 0)):
        a(f"v_min_u32 v3, Lcode_end-{NAME}_kernel-4, v2\nglobal_load_dword v{40+i}, v3, s[30:31]\nv_add_u32 v2, 8192, v2")

def ln_issue(a):
    a(f"""
    s_lshl_b32 s22, s19, 4
    s_lshl_b32 s23, s3, 2
    s_add_u32 s22, s22, s23
    v_lshrrev_b32 v2, 4, v1
    v_add_u32 v10, s22, v2
    v_and_b32 v11, 15, v1
    v_lshlrev_b32 v4, 4, v11
    v_mul_u32_u24 v5, 1280, v10
    v_add_u32 v5, v5, v4
    s_waitcnt lgkmcnt(0)
    """)
    srd(a, 4, 4, H_SZ); srd(a, 8, 8, 1280)
    for i in range(5): a(f"buffer_load_dwordx4 {v(16+4*i,4)}, v5, s[4:7], 0 offen offset:{256*i}")
    for i in range(5): a(f"buffer_load_dwordx4 {v(36+4*i,4)}, v4, s[8:11], 0 offen offset:{256*i}")
def ln_finish(a):
    X, GW, U = 16, 36, 56
    srd(a, 4, 20, H_SZ, H_OFF); srd(a, 8, 20, G_SZ, G_OFF)
    a("s_mov_b32 s30, 0x3f803f80\ns_mov_b32 s31, 0xffff0000"); estamp(a, 1); a("s_waitcnt vmcnt(5)"); estamp(a, 2)
    a(f"v_dot2_f32_bf16 v6, v{X}, s30, 0\nv_dot2_f32_bf16 v8, v{X+1}, s30, 0")
    for i in range(2, 20): a(f"v_dot2_f32_bf16 v{6+2*(i&1)}, v{X+i}, s30, v{6+2*(i&1)}")
    for i in range(20): a(f"v_lshlrev_b32 v{U+2*i}, 16, v{X+i}\nv_and_b32 v{U+1+2*i}, s31, v{X+i}")
    def red(*rs):
        for sh in (8, 4, 2, 1):
            for r in rs: a(f"v_add_f32_dpp v{r}, v{r}, v{r} row_ror:{sh} row_mask:0xf bank_mask:0xf")
    a("v_add_f32 v6, v6, v8"); red(6)
    a(f"v_mul_f32 v6, {f2u(1/640)}, v6")
    for i in range(20): a(f"v_pk_add_f32 {v(U+2*i,2)}, {v(U+2*i,2)}, v[6:7] op_sel_hi:[1,0] neg_lo:[0,1] neg_hi:[0,1]")
    a(f"v_pk_mul_f32 v[12:13], {v(U,2)}, {v(U,2)}\nv_pk_mul_f32 v[14:15], {v(U+2,2)}, {v(U+2,2)}")
    for i in range(2, 20): a(f"v_pk_fma_f32 {v(12+2*(i&1),2)}, {v(U+2*i,2)}, {v(U+2*i,2)}, {v(12+2*(i&1),2)}")
    a("v_pk_add_f32 v[12:13], v[12:13], v[14:15]\nv_add_f32 v12, v12, v13")
    red(12)
    a(f"v_mov_b32 v8, {f2u(1e-5)}\nv_fmac_f32 v8, {f2u(1/640)}, v12\nv_rsq_f32 v12, v8")
    for j in range(5):
        for i in range(4*j, 4*j+4): a(f"v_pk_mul_f32 {v(U+2*i,2)}, {v(U+2*i,2)}, v[12:13] op_sel_hi:[1,0]")
        for i in range(4*j, 4*j+4): a(f"v_cvt_pk_bf16_f32 v{96+i}, v{U+2*i}, v{U+1+2*i}")
        a(f"buffer_store_dwordx4 {v(96+4*j,4)}, v5, s[4:7], 0 offen offset:{256*j} {SC}")
    estamp(a, 3)
    a("s_barrier")
    a(f"s_waitcnt vmcnt(5)\nv_dot2_f32_bf16 v9, v{X}, v{GW}, 0\nv_dot2_f32_bf16 v8, v{X+1}, v{GW+1}, 0")
    for i in range(2, 20): a(f"v_dot2_f32_bf16 v{9-(i&1)}, v{X+i}, v{GW+i}, v{9-(i&1)}")
    a("v_add_f32 v9, v9, v8"); red(9)
    a(f"""
    v_mul_f32 v9, {f2u(-LOG2E)}, v9
    v_exp_f32 v9, v9
    v_add_f32 v9, 1.0, v9
    v_rcp_f32 v8, v9
    v_lshlrev_b32 v10, 3, v10
    """)
    tag_ready(a)
    a(f"""
    v_mov_b32 v9, s48
    s_mov_b32 exec_lo, 0x00010001
    s_mov_b32 exec_hi, 0x00010001
    buffer_store_dwordx2 v[8:9], v10, s[8:11], 0 offen {SC}
    s_mov_b64 exec, -1
    s_lshl_b32 s22, s19, 7
    v_lshl_add_u32 v10, v1, {14 if opt("mixed") else 15}, s22
    """)
    if opt("early"): a("s_waitcnt vmcnt(1)"); estamp(a, 4)
    publish(a, 0, 4, 10, 4, keep=1)
    if opt("early"): estamp(a, 5); a("s_waitcnt vmcnt(0)"); estamp(a, 6)

G1_S, G1_SLOT = 6, 24576
def w1_sweep(a):
    a(f"s_lshl_b32 s23, s53, {2 if opt('mixed') else 1}\ns_add_u32 s23, s23, s3\ns_lshl_b32 s23, s23, 6\nv_add_u32 v2, s23, v1\ns_lshr_b32 s23, s52, 1\ns_mul_i32 s23, s23, 768\ns_mov_b32 s26, 43691")
    for n in range(3):
        a(f"v_add_u32 v3, {4096*n}, v2\nv_mul_u32_u24 v4, s26, v3\nv_lshrrev_b32 v4, 18, v4\nv_mul_u32_u24 v5, {3072-768}, v4\nv_lshl_add_u32 v5, v3, 7, v5\nv_add_u32 v{16+n}, s23, v5")
        if not opt("noslowcol"):
            a(f"v_and_b32 v5, 0x380, v{16+n}\nv_cmp_le_u32 vcc, {opt('sc0', 1024)}, v4\nv_cndmask_b32_e64 v5, 0, v5, vcc\nv_cmp_eq_u32 vcc, 0x180, v5\nv_cndmask_b32_e64 v{16+n}, v{16+n}, -16, vcc")
    srd(a, 4, 4, S_ * 3072)
    a("s_barrier"); estamp(a, 1)
    pre = opt("pre", 2)
    for n in range(3):
        if n == pre: tag_ready(a); a("s_barrier")
        if not opt("nopfw1"): a(f"buffer_load_dword v{20+n}, v{16+n}, s[4:7], 0 offen")
    if pre == 3: tag_ready(a); a("s_barrier")
    estamp(a, 2)
    if opt("pfwait"): a("s_waitcnt vmcnt(0)")
    estamp(a, 3)
def g1_loader_w(a):
    a(f"""
    v_lshrrev_b32 v2, 4, v1
    s_lshl_b32 s23, s3, 2
    v_add_u32 v2, s23, v2
    v_lshlrev_b32 v4, 1, v2
    v_and_b32 v3, 15, v1
    v_xor_b32 v3, v3, v4
    v_lshlrev_b32 v3, 4, v3
    v_mul_u32_u24 v2, 3072, v2
    s_lshl_b32 s26, s16, 8
    v_add3_u32 v8, v2, v3, s26
    """)
    for i in range(1, 8): a(f"v_add_u32 v{8+i}, {8*3072*i}, v8")
    a(f"""
    s_mov_b32 s34, s18
    s_lshl_b32 s37, s3, 10
    s_add_u32 s38, s37, {G1_SLOT*G1_S}
    s_mov_b32 s33, 0
    """)
    def issue():
        a(f"s_mul_i32 s40, s34, {64*3072}" if not opt("wwrap") else f"s_and_b32 s40, s34, 3\ns_mul_i32 s40, s40, {64*3072}")
        for i in range(8): a(f"s_add_u32 m0, s37, {2048*i}\n{thr('w', 11)}buffer_load_dwordx4 v{8+i}, s[4:7], s40 offen lds")
        a(f"s_add_u32 s37, s37, {G1_SLOT}\ns_cmp_ge_u32 s37, s38\ns_cselect_b32 s42, {G1_SLOT*G1_S}, 0\ns_sub_u32 s37, s37, s42\ns_add_u32 s34, s34, 1\ns_and_b32 s34, s34, 31")
    w1_sweep(a)
    if opt("s15"): a("s_barrier")
    if not (not opt("s2")): a("s_barrier")
    issue_n(a, G1_S - 2, issue)
    if opt("early"): estamp(a, 4); a("s_waitcnt vmcnt(0)"); estamp(a, 5)
    stamp(a, 1)
    steady(a, 32, 8, G1_S - 2, issue)
    if (not opt("earlyp")): drain(a, 8, G1_S - 2); stamp(a, 2); a("s_branch Lp2_s0")
    else: P2(0).setup_s(a); P2(0).early(a, 8, 12, "s")
def g1_loader_h(a):
    a(f"""
    v_lshrrev_b32 v2, 3, v1
    v_and_b32 v3, 7, v1
    v_and_b32 v4, 6, v2
    v_xor_b32 v3, v3, v4
    v_lshlrev_b32 v3, 4, v3
    s_sub_u32 s22, s3, 2
    s_lshl_b32 s23, s22, 3
    v_add_u32 v2, s23, v2
    v_mul_u32_u24 v2, 1280, v2
    s_lshl_b32 s26, s17, 7
    v_add3_u32 v8, v2, v3, s26
    """)
    for i in range(1, 4): a(f"v_add_u32 v{8+i}, {16*1280*i}, v8")
    a(f"""
    s_lshl_b32 s23, s52, 14
    v_lshl_add_u32 v12, v1, 7, s23
    s_mov_b32 s34, s18
    s_lshl_b32 s37, s22, 10
    s_add_u32 s37, s37, 16384
    s_add_u32 s38, s37, {G1_SLOT*G1_S}
    s_mov_b32 s33, 0
    """)
    srd(a, 4, 20, H_SZ, H_OFF)
    def issue():
        a(f"s_mul_i32 s40, s34, {64*1280}" if not opt("hwrap") else f"s_and_b32 s40, s34, 3\ns_mul_i32 s40, s40, {64*1280}")
        for i in range(4): a(f"s_add_u32 m0, s37, {2048*i}\n{thr('h', 5)}buffer_load_dwordx4 v{8+i}, s[4:7], s40 offen {'' if opt('hplain') else SC} lds")
        a(f"s_add_u32 s37, s37, {G1_SLOT}\ns_cmp_ge_u32 s37, s38\ns_cselect_b32 s42, {G1_SLOT*G1_S}, 0\ns_sub_u32 s37, s37, s42\ns_add_u32 s34, s34, 1\ns_and_b32 s34, s34, 31")
    a("s_barrier"); tag_ready(a); a("s_barrier")
    if opt("s15"): a("s_barrier")
    estamp(a, 1)
    gate(a, 12, (1 << 64) - 1, two=8192)
    stamp(a, 1); estamp(a, 3)
    if opt("early"): a("s_add_u32 s78, s70, s49\ns_mov_b32 s79, 0")
    if not (not opt("s2")): a("s_barrier")
    issue_n(a, G1_S - 2, issue)
    steady(a, 32, 4, G1_S - 2, issue)
    if (not opt("earlyp")): drain(a, 4, G1_S - 2); stamp(a, 2); a("s_branch Lp2_d0")
    else: P2(0).setup_d(a); P2(0).early(a, 4, 16, "d")
def g1_consumer(a):
    L = "Lg1"
    if opt("s15"): a("s_barrier")
    ACC, T = 16, 48
    a(f"""
    s_load_dwordx2 s[24:25], s[0:1], {KA['b1']}
    s_and_b32 s22, s3, 1
    s_lshr_b32 s23, s3, 1
    s_lshl_b32 s26, s16, 8
    s_lshl_b32 s27, s22, 7
    s_add_u32 s26, s26, s27
    v_lshrrev_b32 v2, 4, v1
    v_lshl_add_u32 v3, v2, 3, s26
    s_waitcnt lgkmcnt(0)
    """)
    srd(a, 24, 24, 3072); srd(a, 8, 20, UW_SZ, UW_OFF)
    for ft in range(4): a(f"buffer_load_dwordx2 {v(T+2*ft,2)}, v3, s[24:27], 0 offen offset:{32*ft}")
    a(f"""
    s_setprio 0
    v_lshrrev_b32 v5, 2, v1
    v_and_b32 v6, 3, v1
    v_lshlrev_b32 v6, 3, v6
    v_and_b32 v7, 7, v5
    v_lshl_add_u32 v4, v5, 8, v6
    s_lshl_b32 s27, s22, 2
    """)
    for ft in range(4): a(f"s_add_u32 s28, s27, {ft}\nv_xor_b32 v2, s28, v7\nv_lshl_add_u32 v{8+ft}, v2, 5, v4")
    a(f"v_lshrrev_b32 v7, 1, v5\nv_and_b32 v7, 3, v7\nv_lshl_add_u32 v4, v5, 7, v6\nv_add_u32 v4, 16384, v4\ns_lshl_b32 s27, s23, 1")
    for dt in range(2): a(f"s_add_u32 s28, s27, {dt}\nv_xor_b32 v2, s28, v7\nv_lshl_add_u32 v{12+dt}, v2, 5, v4")
    a(f"""
    s_lshl_b32 s28, s17, 2
    s_add_u32 s28, s28, s27
    s_mul_i32 s28, s28, 68
    s_lshl_b32 s29, s16, 2
    s_add_u32 s28, s28, s29
    s_lshl_b32 s29, s22, 1
    s_add_u32 s28, s28, s29
    s_lshl_b32 s28, s28, 10
    v_lshl_add_u32 v14, v1, 4, s28
    s_lshl_b32 s28, s17, 4
    s_add_u32 s28, s28, s16
    s_lshl_b32 s28, s28, 7
    s_add_u32 s28, s28, {F4}
    v_mul_u32_u24 v15, {160*128}, v1
    v_add_u32 v15, s28, v15
    s_mov_b32 s31, 0xffff0000
    s_waitcnt vmcnt(0)
    """)
    for ft in range(4):
        for dt in range(2):
            b = ACC + 8 * ft + 4 * dt
            a(f"v_lshlrev_b32 v{b}, 16, v{T+2*ft}\nv_and_b32 v{b+1}, s31, v{T+2*ft}\nv_lshlrev_b32 v{b+2}, 16, v{T+2*ft+1}\nv_and_b32 v{b+3}, s31, v{T+2*ft+1}")
    SETS = (48, 96)
    def reads(st):
        r = []
        for kk in range(2):
            b = SETS[st] + 24 * kk
            for dt in range(2): r += [(f"ds_read_b64_tr_b16 {v(b+4*dt+2*h,2)}, v{12+dt} offset:{kk*4096+2048*h}", (kk, "b", dt, h)) for h in range(2)]
            for ft in range(4): r += [(f"ds_read_b64_tr_b16 {v(b+8+4*ft+2*h,2)}, v{8+ft} offset:{kk*8192+4096*h}", (kk, "a", ft, h)) for h in range(2)]
        return r
    def mf(st):
        return [(f"v_mfma_f32_16x16x32_bf16 {v(ACC+8*ft+4*dt,4)}, {v(SETS[st]+24*kk+8+4*ft,4)}, {v(SETS[st]+24*kk+4*dt,4)}, {v(ACC+8*ft+4*dt,4)}", {(kk, "a", ft, 1)})
                for kk in range(2) for ft, dt in ([(f, d) for d in range(2) for f in range(4)] if opt("g1ord") else [(f, d) for f in range(4) for d in range(2)])]
    ids = [x[1] for x in reads(0)]
    adv = slot_adv(G1_SLOT, G1_S) + [f"v_add_u32 v{8+i}, s40, v{8+i}" for i in range(6)]
    if not (not opt("s2")): a("s_barrier")
    a("s_mov_b32 s33, 0\ns_mov_b32 s37, 0\ns_barrier"); stamp(a, 2, True)
    emit_step(a, [], [], reads(0), adv)

    a.label(f"{L}_c", 3)
    a("s_barrier")
    emit_step(a, mf(0), ids, reads(1), adv + ["s_add_u32 s33, s33, 2", "s_cmp_ge_u32 s33, 32"])
    a(f"s_cbranch_scc1 {L}_clast\ns_barrier")
    emit_step(a, mf(1), ids, reads(0), adv)
    a(f"s_branch {L}_c")
    a.label(f"{L}_clast")
    a("s_waitcnt lgkmcnt(0)" + ("\ns_barrier" if opt("noe2") else "")); stamp(a, 3, True); lstamp(a, 1)
    last = [t for t, _ in mf(1)]
    grp = lambda p, dt: [last[8 * kk + 2 * (2 * p + h) + dt] for kk in range(2) for h in range(2)]
    G = [(p, dt) for p in range(2) for dt in range(2)]
    for t in grp(*G[0]) + grp(*G[1]): a(t)
    rest = grp(*G[2]) + grp(*G[3])
    c0 = -2 * 0.7978845608028654 * LOG2E; c1 = c0 * 0.044715
    a(f"v_mov_b32 v2, {f2u(c0)}\nv_mov_b32 v4, {f2u(c1)}\nv_mov_b32 v6, 1.0\ns_setprio 2")
    lstamp(a, 2)
    T = 48
    for n, (p, dt) in enumerate(G):
        o = 72 + 4 * n
        prs = [ACC + 8 * (2 * p + h) + 4 * dt + 2 * q for h in range(2) for q in range(2)]
        def ops(l):
            for x in l:
                a(x)
                if rest and not x.startswith(("v_exp", "v_rcp")): a(rest.pop(0))
        ops([f"v_pk_mul_f32 {v(T+2*i,2)}, {v(b,2)}, {v(b,2)}" for i, b in enumerate(prs)])
        ops([f"v_pk_fma_f32 {v(T+2*i,2)}, {v(T+2*i,2)}, v[4:5], v[2:3] op_sel_hi:[1,0,0]" for i, b in enumerate(prs)])
        ops([f"v_pk_mul_f32 {v(T+2*i,2)}, {v(T+2*i,2)}, {v(b,2)}" for i, b in enumerate(prs)])
        ops([f"v_exp_f32 v{T+i}, v{T+i}" for i in range(8)])
        ops([f"v_pk_add_f32 {v(T+2*i,2)}, {v(T+2*i,2)}, v[6:7] op_sel_hi:[1,0]" for i, b in enumerate(prs)])
        ops([f"v_rcp_f32 v{T+i}, v{T+i}" for i in range(8)])
        ops([f"v_pk_mul_f32 {v(T+2*i,2)}, {v(T+2*i,2)}, {v(b,2)}" for i, b in enumerate(prs)])
        ops([f"v_cvt_pk_bf16_f32 v{o+i}, v{T+2*i}, v{T+2*i+1}" for i in range(4)])
        a(f"s_mov_b32 s29, {dt*68*1024}\nbuffer_store_dwordx4 {v(o,4)}, v14, s[8:11], s29 offen offset:{1024*p} {SC}")
    lstamp(a, 3)
    if not opt("noe2"): a("s_barrier")
    if opt("late"): a("s_waitcnt vmcnt(0)"); lstamp(a, 4)
    publish(a, 4, 4, 15, 4)
    if opt("late"): lstamp(a, 5); a("s_waitcnt vmcnt(0)"); lstamp(a, 6)
    stamp(a, 4, True)

def spare_loader(a):
    a(f"""
    s_load_dwordx2 s[4:5], s[0:1], {KA['wo']}
    s_load_dwordx2 s[12:13], s[0:1], {KA['w2']}
    v_lshrrev_b32 v2, 3, v1
    v_and_b32 v3, 7, v1
    v_and_b32 v4, 6, v2
    v_xor_b32 v3, v3, v4
    v_lshlrev_b32 v14, 4, v3
    v_mul_u32_u24 v15, 1280, v2
    v_add_u32 v15, v15, v14
    v_lshrrev_b32 v3, 2, v2
    v_lshl_add_u32 v3, v3, 4, v2
    v_add_u32 v3, 16, v3
    v_mul_u32_u24 v3, 1280, v3
    v_add_u32 v14, v14, v3
    s_mul_i32 s23, s3, {7*4096}
    v_lshrrev_b32 v5, 2, v1
    v_lshrrev_b32 v6, 1, v5
    v_and_b32 v6, 3, v6
    v_lshlrev_b32 v5, 7, v5
    v_and_b32 v7, 3, v1
    v_lshlrev_b32 v7, 3, v7
    v_add3_u32 v5, v5, v7, s23
    """)
    for t in range(4): a(f"v_xor_b32 v7, {t}, v6\nv_lshl_add_u32 v{8+t}, v7, 5, v5")
    a(f"v_lshlrev_b32 v12, 4, v1\ns_lshl_b32 s26, s16, 7\ns_add_u32 s26, s26, {F3}\nv_lshl_add_u32 v13, v1, 10, s26\ns_waitcnt lgkmcnt(0)")
    srd(a, 4, 4, 640 * 1280); srd(a, 8, 20, UW_SZ, UW_OFF); srd(a, 12, 12, F_ * 4096)
    def task():
        a("s_lshl_b32 s26, s33, 2\ns_add_u32 s26, s26, s3\ns_min_u32 s26, s26, 24\ns_mul_i32 s27, s16, 25\ns_add_u32 s27, s27, s26\ns_mul_i32 s26, s27, 6554\ns_lshr_b32 s26, s26, 16\ns_mul_i32 s28, s26, 10\ns_sub_u32 s27, s27, s28")
    L = uid("Lwo")
    a("s_mov_b32 s33, 0"); a.label(L); task()
    for half in range(2):
        a(f"""
        s_lshl_b32 s28, s26, 1
        s_add_u32 s28, s28, {half}
        s_mul_i32 s29, s28, 52
        s_lshr_b32 s29, s29, 8
        s_mul_i32 s30, s29, 5
        s_sub_u32 s28, s28, s30
        s_mul_i32 s29, s29, 80
        s_mul_i32 s30, s28, 20
        s_cmp_eq_u32 s28, 4
        s_cselect_b64 vcc, -1, 0
        s_cselect_b32 s30, 0, s30
        s_cselect_b32 s31, 40, 8
        s_mul_i32 s31, s31, 1280
        s_add_u32 s29, s29, s30
        s_mul_i32 s28, s29, 1280
        s_lshl_b32 s29, s27, 7
        s_add_u32 s28, s28, s29
        v_cndmask_b32 v2, v15, v14, vcc
        """)
        for i in range(2): a(f"s_add_u32 m0, s23, {2048*half+1024*i}\nbuffer_load_dwordx4 v2, s[4:7], s28 offen lds\ns_add_u32 s28, s28, s31")
    a(f"s_add_u32 s23, s23, 4096\ns_add_u32 s33, s33, 1\ns_cmp_lt_u32 s33, 7\ns_cbranch_scc1 {L}\ns_waitcnt vmcnt(0)\ns_mov_b32 s33, 0")
    L = uid("Lwo"); a.label(L); task()
    for t in range(4): a(f"ds_read_b64_tr_b16 {v(16+4*t,2)}, v{8+t}\nds_read_b64_tr_b16 {v(18+4*t,2)}, v{8+t} offset:2048\nv_add_u32 v{8+t}, 4096, v{8+t}")
    a(f"s_lshl_b32 s28, s27, 2\ns_mul_i32 s28, s28, 68\ns_add_u32 s28, s28, s26\ns_add_u32 s28, s28, 48\ns_lshl_b32 s28, s28, 10")
    for t in range(4): a(f"s_waitcnt lgkmcnt({6-2*t})\nbuffer_store_dwordx4 {v(16+4*t,4)}, v12, s[8:11], s28 offen {SC}\ns_add_u32 s28, s28, {68*1024}")
    a(f"s_add_u32 s33, s33, 1\ns_cmp_lt_u32 s33, 7\ns_cbranch_scc1 {L}")
    publish(a, 8, 4, 13, 8)
    stamp(a, 1)
    if opt("spw2"):
        L = uid("Lw2")
        a(f"""
        s_and_b32 s22, s16, 1
        s_lshl_b32 s22, s22, 2
        s_add_u32 s22, s22, s3
        s_lshl_b32 s22, s22, 3
        v_lshrrev_b32 v2, 3, v1
        v_add_u32 v2, s22, v2
        v_lshlrev_b32 v2, 12, v2
        v_and_b32 v3, 7, v1
        v_lshl_add_u32 v2, v3, 7, v2
        s_lshr_b32 s22, s52, 1
        s_lshl_b32 s22, s22, 10
        s_mov_b32 s33, 0
        {L}:
        buffer_load_dword v30, v2, s[12:15], s22 offen
        s_add_u32 s22, s22, {64*4096}
        s_add_u32 s33, s33, 1
        s_cmp_lt_u32 s33, 24
        s_cbranch_scc1 {L}
        """)
    h0 = opt("sph", 14)
    if h0:
        L = uid("Lsh"); n = ((32 - h0 + 1) // 2 * 10 + 7) // 8
        srd(a, 4, 20, H_SZ, H_OFF)
        a(f"s_lshl_b32 s23, s52, 14\nv_lshl_add_u32 v12, v1, 7, s23")
        gate(a, 12, (1 << 64) - 1, two=8192)
        a(f"""
        s_and_b32 s22, s16, 1
        s_lshl_b32 s22, s22, 2
        s_add_u32 s22, s22, s3
        v_lshlrev_b32 v2, 7, v1
        s_mov_b32 s33, 0
        {L}:
        s_mul_i32 s23, s22, 6554
        s_lshr_b32 s23, s23, 16
        s_mul_i32 s23, s23, {64*1280}
        s_lshl_b32 s26, s22, 13
        s_add_u32 s23, s23, s26
        s_add_u32 s23, s23, {h0*64*1280}
        buffer_load_dword v30, v2, s[4:7], s23 offen {SC}
        s_add_u32 s22, s22, 8
        s_add_u32 s33, s33, 1
        s_cmp_lt_u32 s33, {n}
        s_cbranch_scc1 {L}
        """)
    nw = opt("c3", 2)
    if nw:
        L = uid("Lc3")
        a(f"""
        s_cmp_ge_u32 s3, {nw}
        s_cbranch_scc1 {L}d
        s_and_b32 s22, s16, 1
        s_mul_i32 s22, s22, {nw}
        s_add_u32 s22, s22, s3
        s_lshl_b32 s22, s22, 6
        v_add_u32 v2, s22, v1
        v_lshlrev_b32 v2, 12, v2
        s_lshr_b32 s22, s52, 1
        s_lshl_b32 s22, s22, 10
        s_add_u32 s22, s22, 384
        s_mov_b32 s33, 0
        {L}:
        buffer_load_dword v30, v2, s[12:15], s22 offen
        s_add_u32 s22, s22, {128*nw*4096}
        s_add_u32 s33, s33, 1
        s_cmp_lt_u32 s33, {12//nw}
        s_waitcnt vmcnt(0)
        s_cbranch_scc1 {L}
        {L}d:
        """)
    stamp(a, 2)

QA_S, QA_SLOT, QA_W = 3, 49152, 18432
def qa_w1_sweep(a):
    if not opt("qsw"): return
    a(f"""
    s_load_dwordx2 s[12:13], s[0:1], {KA['w1']}
    s_lshr_b32 s22, s2, 1
    s_lshl_b32 s22, s22, 2
    s_add_u32 s22, s22, s3
    s_lshl_b32 s23, s22, 12
    s_lshl_b32 s22, s22, 13
    s_add_u32 s23, s23, {512*8192}
    v_lshlrev_b32 v2, 7, v1
    s_waitcnt lgkmcnt(0)
    """)
    srd(a, 12, 12, S_ * 3072)
    a("buffer_load_dword v32, v2, s[12:15], s22 offen\ns_mov_b32 exec_hi, 0\nbuffer_load_dword v33, v2, s[12:15], s23 offen\ns_mov_b32 exec_hi, -1")
def w2_setup(a):
    a(f"""
    s_load_dwordx2 s[24:25], s[0:1], {KA['w2']}
    v_lshrrev_b32 v2, 3, v1
    s_lshl_b32 s22, s53, 3
    v_add_u32 v2, s22, v2
    v_lshlrev_b32 v2, 12, v2
    v_and_b32 v3, 7, v1
    v_lshl_add_u32 v2, v3, 7, v2
    s_lshr_b32 s22, s52, 1
    s_lshl_b32 s22, s22, 10
    v_add_u32 v29, s22, v2
    s_waitcnt lgkmcnt(0)
    """)
    srd(a, 24, 24, F_ * 4096)
def w2_last(a):
    if not opt("nopfw2"): a("s_lshl_b32 s22, s3, 20\nbuffer_load_dword v30, v29, s[24:27], s22 offen")
def qa_loader(a):
    a(f"v_lshrrev_b32 v2, 3, v1\ns_lshl_b32 s23, s3, 3\nv_add_u32 v2, s23, v2\ns_lshl_b32 s26, s16, 7\ns_sub_u32 s26, s26, 16\nv_and_b32 v3, 7, v1")
    for i in range(6):
        a(f"v_add_u32 v4, {24*i}, v2\nv_lshrrev_b32 v5, 1, v4\nv_and_b32 v5, 7, v5\nv_xor_b32 v5, v5, v3\nv_add_u32 v4, s26, v4\nv_max_i32 v4, 0, v4\nv_mul_u32_u24 v4, 1280, v4\nv_lshl_add_u32 v{8+i}, v5, 4, v4")
    a(f"s_mul_i32 s23, s3, 320\ns_mul_i32 s26, s17, 160\nv_add_u32 v2, s23, v1")
    for i in range(5):
        a(f"""
        v_add_u32 v3, {64*i}, v2
        v_mul_u32_u24 v4, 2185, v3
        v_lshrrev_b32 v4, 16, v4
        v_mul_u32_u24 v5, 30, v4
        v_sub_u32 v3, v3, v5
        v_mul_u32_u24 v5, 26, v3
        v_lshrrev_b32 v5, 8, v5
        v_mul_u32_u24 v5, {1280-160}, v5
        v_lshl_add_u32 v3, v3, 4, v5
        v_and_b32 v5, 12, v4
        v_lshlrev_b32 v5, 1, v5
        v_lshrrev_b32 v6, 4, v4
        v_lshl_add_u32 v5, v6, 2, v5
        v_and_b32 v4, 3, v4
        v_add_u32 v4, v4, v5
        v_mul_u32_u24 v4, 3840, v4
        v_add3_u32 v{16+i}, v4, v3, s26
        """)
    a(f"s_mov_b32 s34, s18\ns_mov_b32 s37, 0\ns_lshl_b32 s38, s3, 10\ns_mul_i32 s39, s3, 5120\ns_add_u32 s39, s39, {QA_W}\ns_mov_b32 s33, 0")
    srd(a, 4, 4, H_SZ); srd(a, 8, 8, 640 * 3840)
    def issue(half=None):
        if half != 1: a(f"s_lshl_b32 s40, s34, 7\ns_mul_i32 s41, s34, {64*3840}\ns_add_u32 s42, s37, s38\ns_add_u32 s43, s37, s39\ns_add_u32 s36, s41, {32*3840}")
        if half != 1:
            for i in range(3): a(f"s_add_u32 m0, s42, {3072*i}\nbuffer_load_dwordx4 v{8+i}, s[4:7], s40 offen lds")
            for i in range(5): a(f"s_add_u32 m0, s43, {1024*i}\nbuffer_load_dwordx4 v{16+i}, s[8:11], s41 offen lds")
        if half != 0:
            for i in range(3, 6): a(f"s_add_u32 m0, s42, {3072*i}\nbuffer_load_dwordx4 v{8+i}, s[4:7], s40 offen lds")
            for i in range(5): a(f"s_add_u32 m0, s43, {15360+1024*i}\nbuffer_load_dwordx4 v{16+i}, s[8:11], s36 offen lds")
            a(f"s_add_u32 s37, s37, {QA_SLOT}\ns_cmp_ge_u32 s37, {QA_SLOT*QA_S}\ns_cselect_b32 s37, 0, s37\ns_add_u32 s34, s34, 1\ns_cmp_ge_u32 s34, 10\ns_cselect_b32 s34, 0, s34")
    if opt("lateb0"):
        issue_n(a, 2, issue); tag_ready(a); w2_setup(a); stamp(a, 1)
    else:
        issue(); issue(0); tag_ready(a); a("s_waitcnt vmcnt(8)\ns_barrier"); issue(1); issue(); a("s_mov_b32 s33, 3")
        w2_setup(a); stamp(a, 1)
    steady(a, 10, 16, QA_S - 1, issue); drain(a, 16, QA_S - 1)
    stamp(a, 2); w2_last(a)
def qa_idle(a):
    code_prefetch(a); tag_ready(a); w2_setup(a)
    at = (opt("w2a", 5), opt("w2b", 7))
    for i in range(10):
        a("s_barrier")
        for k in range(2):
            if at[k] == i and not opt("nopfw2"): a(f"s_mov_b32 s22, {(4+k) << 20}\nbuffer_load_dword v30, v29, s[24:27], s22 offen")
    w2_last(a)
def qa_consumer(a):
    L = "Lqa"
    AQ, AK, AR, AV, AW = 16, 48, 88, 108, 148
    XF, WB = 168, 208
    M0, M1, MF, PM, TM = 224, 228, 232, 236, 240
    NB, DD = 4, opt("dd", 2)
    a(f"""
    s_lshr_b32 s28, s3, 1
    s_and_b32 s29, s3, 1
    v_and_b32 v2, 15, v1
    v_lshrrev_b32 v3, 4, v1
    v_lshrrev_b32 v4, 1, v2
    v_xor_b32 v4, v4, v3
    v_lshlrev_b32 v4, 4, v4
    v_lshl_add_u32 v4, v2, 7, v4
    s_lshl_b32 s23, s28, 13
    v_add_u32 v8, s23, v4
    v_xor_b32 v9, 64, v8
    v_lshrrev_b32 v5, 2, v1
    v_mul_u32_u24 v5, 480, v5
    s_mul_i32 s23, s29, 80
    s_add_u32 s23, s23, {QA_W}
    v_add_u32 v5, s23, v5
    v_and_b32 v4, 3, v1
    v_lshl_add_u32 v10, v4, 3, v5
    v_and_b32 v6, 1, v1
    v_mul_u32_u24 v6, 40, v6
    v_add3_u32 v13, v6, v5, 32
    v_lshrrev_b32 v4, 1, v4
    v_mul_u32_u24 v4, 160, v4
    v_add_u32 v11, v4, v13
    """)
    if opt("zv"):
        a(f"v_and_b32 v4, 3, v1\nv_lshrrev_b32 v4, 1, v4\nv_cmp_ne_u32 s[98:99], s29, v4")
    for i in range(AQ, XF): a(f"v_mov_b32 v{i}, 0")
    a(f"v_lshlrev_b32 v4, 2, v3\nv_sub_u32 v4, v2, v4\nv_mov_b32 v5, {f2u(-1e30)}")
    for r in range(4):
        a(f"""
        v_subrev_u32 v15, {r}, v4
        v_and_b32 v15, 0x80000001, v15
        v_cmp_eq_u32 vcc, 0, v15
        v_cndmask_b32_e64 v{M1+r}, v5, 0, vcc
        v_cndmask_b32_e64 v{TM+4+r}, 0, -1, vcc
        v_cmp_eq_u32 vcc, 0x80000000, v15
        v_cndmask_b32_e64 v{M0+r}, v5, 0, vcc
        v_cndmask_b32_e64 v{TM+r}, 0, -1, vcc
        """)
    a("s_mov_b32 s30, 0xffff")
    for i in range(4): a(f"v_bfi_b32 v{PM+i}, s30, v{TM+2*i}, v{TM+2*i+1}")
    a(f"s_or_b32 s23, s16, s28\ns_cmp_eq_u32 s23, 0\ns_cselect_b64 vcc, -1, 0")
    for r in range(4): a(f"v_cndmask_b32 v{MF+r}, v{M0+r}, v5, vcc")
    GM = 90
    for j in range(2): a(f"v_cmp_eq_u32 s[{GM+2*j}:{GM+1+2*j}], {j}, v3")
    a(f"""
    v_and_b32 v4, 1, v3
    v_cmp_eq_u32 s[94:95], 1, v4
    s_cmp_eq_u32 s29, 0
    s_cselect_b32 s96, -1, 0
    s_cselect_b32 s97, 0, -1
    s_lshl_b32 s23, s16, 3
    s_lshl_b32 s26, s28, 2
    s_add_u32 s23, s23, s26
    s_mul_i32 s23, s23, 40
    s_mul_i32 s26, s17, 5
    s_add_u32 s23, s23, s26
    s_lshl_b32 s23, s23, 9
    v_lshl_add_u32 v15, v1, 3, s23
    s_lshl_b32 s26, s29, 10
    v_add_u32 v12, s26, v15
    s_lshl_b32 s23, s16, 4
    s_add_u32 s23, s23, s17
    s_lshl_b32 s23, s23, 7
    s_add_u32 s23, s23, {F2}
    v_lshl_add_u32 v14, v1, 10, s23
    s_mov_b32 s31, {f2u(20 ** -0.5 * LOG2E)}
    s_mov_b32 s33, 0
    s_mov_b32 s37, 0
    s_waitcnt lgkmcnt(0)
    """)
    srd(a, 4, 20, OT_SZ, OT_OFF); tag_ready(a)
    U = [("q", 0), ("q", 1), ("k", 0), ("k", 1), ("r", 0), ("v", 0), ("v", 1), ("w", 0)]
    NU = len(U); UU = 2 * NU
    def xread(kk): return [f"ds_read_b128 {v(XF+20*kk+4*t,4)}, v{8+kk} offset:{2048*t}" for t in (1, 2, 3, 4, 0)]
    def wread(u):
        kk, c = divmod(u, NU); p, j = U[c]; b = WB + 4 * (u % NB)
        ad, off = {"q": (10, 40 * j), "k": (10, 160 + 40 * j), "v": (10, 320 + 40 * j), "r": (11, 0), "w": (13, 320)}[p]
        off += kk * 15360
        return [f"ds_read_b64_tr_b16 {v(b,2)}, v{ad} offset:{off}", f"ds_read_b64_tr_b16 {v(b+2,2)}, v{ad} offset:{off+7680}"]
    def acc(p, j, t): return {"q": AQ + 8 * (t - 1) + 4 * j, "k": AK + 8 * t + 4 * j, "r": AR + 4 * t, "v": AV + 20 * j + 4 * t, "w": AW + 4 * t}[p]
    def mf(u):
        kk, c = divmod(u, NU); p, j = U[c]; w = v(WB + 4 * (u % NB), 4); r = []
        for t in ((1, 2, 3, 4) if p == "q" else (1, 2, 3, 4, 0)):
            x = v(XF + 20 * kk + 4 * t, 4); d = v(acc(p, j, t), 4)
            r.append(f"v_mfma_f32_16x16x32_bf16 {d}, {w}, {x}, {d}" if p in "qkr" else f"v_mfma_f32_16x16x32_bf16 {d}, {x}, {w}, {d}")
        return r
    stamp(a, 1, True); a("s_barrier"); stamp(a, 2, True)
    for t in xread(0): a(t)
    for u in range(DD):
        for t in wread(u): a(t)
    a(f"s_waitcnt lgkmcnt({2*DD-2})")
    a.label(f"{L}_c", 3)
    q = []
    for u in range(1, DD): q += [u, u]
    misc = slot_adv(QA_SLOT, QA_S) + ["s_add_u32 s33, s33, 1", "s_cmp_ge_u32 s33, 10"]
    x1 = xread(1)
    for u in range(UU):
        nx = u + DD; fill = []
        if nx == UU: fill += [(t, UU) for t in xread(0)]
        fill += [(t, nx) for t in wread(nx % UU)]
        if 1 <= u < NU - 1 and x1: fill.append((x1.pop(0), NU))
        ms = mf(u)
        if nx == UU:
            a(f"s_waitcnt lgkmcnt(0)\ns_barrier\ns_cbranch_scc1 {L}_clast"); q = []
        per = -(-len(fill) // len(ms))
        for i, m in enumerate(ms):
            a(m)
            for t, tag in fill[i*per:(i+1)*per]: a(t); q.append(tag)
            if i == len(ms) - 2 and misc and u >= 2: a(misc.pop(0))
            if i >= 2 and nx == UU - 1:
                for r in ((8, 9), (10, 11), (13,))[i - 2]: a(f"v_add_u32 v{r}, s40, v{r}")
        if any(t <= u + 1 for t in q) and nx != UU - 1:
            last = max(i for i, t in enumerate(q) if t <= u + 1)
            q = q[last + 1:]
            a(f"s_waitcnt lgkmcnt({len(q)})")
    assert not misc and not x1 and len(q) == 2 * DD - 2, (misc, x1, q)
    a(f"s_branch {L}_c")
    a.label(f"{L}_clast"); stamp(a, 3, True); lstamp(a, 1)
    for u in range(UU - DD, UU):
        for m in mf(u): a(m)
    cv = lambda d, s0: a(f"v_cvt_pk_bf16_f32 v{d}, v{s0}, v{s0+1}")
    for t in range(5):
        r = AR + 4 * t; ka = acc("k", 0, t); kb = acc("k", 1, t)
        for b in (ka, kb, r): cv(b, b); cv(b + 1, b + 2)
        a(f"v_mov_b32 v{ka+2}, 0\nv_mov_b32 v{ka+3}, 0")
    for t in range(5):
        r = AR + 4 * t; ka = acc("k", 0, t)
        a(f"v_permlane32_swap_b32 v{r}, v{ka+2}\nv_permlane32_swap_b32 v{r+1}, v{ka+3}")
    for t in range(5):
        ka = acc("k", 0, t); kb = acc("k", 1, t); r = AR + 4 * t
        a(f"v_mov_b32 v{kb+2}, v{ka+2}\nv_mov_b32 v{kb+3}, v{ka+3}")
        if t:
            for j in range(2):
                b = acc("q", j, t); cv(b, b); cv(b + 1, b + 2)
                a(f"v_cndmask_b32 v{b+2}, 0, v{r}, s[{GM+2*j}:{GM+1+2*j}]\nv_cndmask_b32 v{b+3}, 0, v{r+1}, s[{GM+2*j}:{GM+1+2*j}]")
    lstamp(a, 2)
    UN = [(t, j) for t in range(1, 5) for j in range(2)]
    SRS = [XF + 8 * n for n in range(7)] + [TM + 8]
    for n, (t, j) in enumerate(UN):
        qf = v(acc("q", j, t), 4)
        a(f"v_mfma_f32_16x16x32_bf16 {v(SRS[n],4)}, {v(acc('k',j,t-1),4)}, {qf}, {v(MF if t == 1 else M0,4)}")
        a(f"v_mfma_f32_16x16x32_bf16 {v(SRS[n]+4,4)}, {v(acc('k',j,t),4)}, {qf}, {v(M1,4)}")
    for b in (AV, AV + 20, AW):
        for i in range(10): cv(b + i, b + 2 * i)
    VA, VB, X = AQ, AQ + 8, AQ + 16
    P = [AK + 4 * n for n in range(8)]
    for n in range(8): s_ = SRS[n]; a(f"v_max3_f32 v{VA+n}, v{s_}, v{s_+1}, v{s_+4}\nv_max3_f32 v{VB+n}, v{s_+2}, v{s_+3}, v{s_+6}")
    for n in range(8): s_ = SRS[n]; a(f"v_max_f32 v{VA+n}, v{VA+n}, v{s_+5}\nv_max_f32 v{VB+n}, v{VB+n}, v{s_+7}")
    def both(f): return [f(X), f(X + 4)]
    def seq(*steps):
        for st in steps:
            for x in (X, X + 4): a(st(x))
    def xred(op):
        seq(lambda x: f"v_permlane32_swap_b32 v{x}, v{x+1}\nv_permlane32_swap_b32 v{x+2}, v{x+3}",
            lambda x: f"{op} v{x}, v{x}, v{x+1}\n{op} v{x+2}, v{x+2}, v{x+3}",
            lambda x: f"v_permlane16_swap_b32 v{x}, v{x+2}", lambda x: f"{op} v{x}, v{x}, v{x+2}")
    def xbc():
        seq(lambda x: f"v_mov_b32 v{x+2}, v{x}", lambda x: f"v_permlane16_swap_b32 v{x}, v{x+2}",
            lambda x: f"v_mov_b32 v{x+1}, v{x}\nv_mov_b32 v{x+3}, v{x+2}",
            lambda x: f"v_permlane32_swap_b32 v{x}, v{x+1}\nv_permlane32_swap_b32 v{x+2}, v{x+3}")
    for n in range(8): a(f"v_max_f32 v{X+n}, v{VA+n}, v{VB+n}")
    xred("v_max_f32"); seq(lambda x: f"v_mul_f32 v{x}, s31, v{x}"); xbc()
    for n in range(8): a(f"v_fma_f32 v{VA+n}, v{VA+n}, s31, -v{X+n}\nv_fma_f32 v{VB+n}, v{VB+n}, s31, -v{X+n}")
    for n in range(8): a(f"v_exp_f32 v{VA+n}, v{VA+n}\nv_exp_f32 v{VB+n}, v{VB+n}")
    for n in range(8): a(f"v_add_f32 v{X+n}, v{VA+n}, v{VB+n}")
    xred("v_add_f32"); seq(lambda x: f"v_rcp_f32 v{x}, v{x}"); xbc()
    for n in range(8): a(f"v_mul_f32 v{VA+n}, v{VA+n}, v{X+n}\nv_mul_f32 v{VB+n}, v{VB+n}, v{X+n}")
    for n in range(8): a(f"v_cvt_pk_bf16_f32 v{VA+n}, v{VA+n}, v{VA+n}\nv_cvt_pk_bf16_f32 v{VB+n}, v{VB+n}, v{VB+n}")
    a("s_setprio 2")
    for n, (t, j) in enumerate(UN):
        p = P[n]
        a(f"v_and_b32 v{p}, v{VA+n}, v{PM}\nv_and_b32 v{p+1}, v{VB+n}, v{PM+1}\nv_and_b32 v{p+2}, v{VA+n}, v{PM+2}\nv_and_b32 v{p+3}, v{VB+n}, v{PM+3}")
        if n:
            t0, j0 = UN[n - 1]
            a(f"v_mfma_f32_16x16x32_bf16 {v(SRS[n-1],4)}, {v(AV+20*j0+2*(t0-1),4)}, {v(P[n-1],4)}, 0")
            a(f"v_mfma_f32_16x16x32_bf16 {v(SRS[n-1]+4,4)}, {v(AW+2*(t0-1),4)}, {v(P[n-1],4)}, 0")
    a(f"v_mfma_f32_16x16x32_bf16 {v(SRS[7],4)}, {v(AV+20+6,4)}, {v(P[7],4)}, 0\nv_mfma_f32_16x16x32_bf16 {v(SRS[7]+4,4)}, {v(AW+6,4)}, {v(P[7],4)}, 0")
    O = AQ
    for t in range(1, 5):
        n = 2 * (t - 1); o = O + 6 * (t - 1)
        a(f"s_mov_b32 s29, {40*512*(t-1)}")
        for j in range(2):
            cv(o + 2 * j, SRS[n + j]); cv(o + 2 * j + 1, SRS[n + j] + 2)
            a(f"buffer_store_dwordx2 {v(o+2*j,2)}, v12, s[4:7], s29 offen offset:{512*j} {SC}")
        for r in range(4): a(f"v_cndmask_b32 v{SRS[n]+4+r}, v{SRS[n]+4+r}, v{SRS[n+1]+4+r}, s[94:95]")
        cv(o + 4, SRS[n] + 4); cv(o + 5, SRS[n] + 6)
        a(f"s_mov_b64 exec, s[96:97]\nbuffer_store_dwordx2 {v(o+4,2)}, v15, s[4:7], s29 offen offset:2048 {SC}\ns_mov_b64 exec, -1")
    lstamp(a, 3)
    if opt("late"): a("s_waitcnt vmcnt(0)"); lstamp(a, 4)
    publish(a, 4, 4, 14, 2)
    if opt("late"): lstamp(a, 5); a("s_waitcnt vmcnt(0)"); lstamp(a, 6)
    stamp(a, 4, True)

class P2:
    def __init__(s, par):
        s.par = par; s.ND = (opt("nd0", 4), 10 - opt("nd0", 4))[par]
        s.SLOT = 8192 + 2048 * s.ND; s.S = min(RING // s.SLOT, 8); s.AH = s.S - 2
        s.AA = min(opt("aha", 6), s.AH); s.GB = max(opt("gb%d" % par, 7), 11 - s.AH, 10 - s.AA)
    def adv(s): return f"s_add_u32 s37, s37, {s.SLOT}\ns_cmp_ge_u32 s37, s38\ns_cselect_b32 s42, {s.SLOT*s.S}, 0\ns_sub_u32 s37, s37, s42\ns_add_u32 s34, s34, 1"
    def setup_s(s, a):
        a(f"""
        s_load_dwordx2 s[12:13], s[0:1], {KA['w2']}
        v_lshrrev_b32 v2, 3, v1
        v_and_b32 v3, 7, v1
        v_and_b32 v4, 6, v2
        v_xor_b32 v3, v3, v4
        v_lshlrev_b32 v3, 4, v3
        v_lshl_add_u32 v2, v2, 12, v3
        s_lshl_b32 s23, s3, 17
        s_lshl_b32 s26, s50, 7
        s_add_u32 s23, s23, s26
        v_add_u32 v8, s23, v2
        """)
        for i in range(1, 4): a(f"v_add_u32 v{8+i}, {8*4096*i}, v8")
        a(f"s_lshl_b32 s23, s50, 2\ns_mul_i32 s23, s23, 40\ns_lshl_b32 s26, s3, 1\ns_add_u32 s23, s23, s26\ns_lshl_b32 s23, s23, 9\nv_lshl_add_u32 v16, v1, 4, s23")
        for i in range(1, 4): a(f"v_add_u32 v{16+i}, {40*512*i}, v16")
        a(f"s_and_b32 s23, s50, -2\ns_add_u32 s23, s23, {s.par}\ns_lshl_b32 s23, s23, 10\ns_add_u32 s23, s23, {F2}\nv_lshl_add_u32 v12, v1, 7, s23")
        a(f"s_mov_b32 s34, 0\ns_lshl_b32 s37, s3, 12\ns_add_u32 s38, s37, {s.SLOT*s.S}\ns_mov_b32 s33, 0\ns_waitcnt lgkmcnt(0)")
        srd(a, 4, 20, OT_SZ, OT_OFF)
    def early(s, a, n, vflag, tag):
        a(f"""
        s_waitcnt vmcnt({3*n})
        s_barrier
        s_waitcnt vmcnt({2*n})
        s_barrier
        s_mov_b64 exec, 0xff
        buffer_load_dword v2, v{vflag}, s[44:47], 0 offen {SC}
        s_waitcnt vmcnt({n+1})
        s_barrier
        s_waitcnt vmcnt(1)
        s_barrier
        """)
        stamp(a, 2)
        a(f"s_waitcnt vmcnt(0)\nv_cmp_ne_u32 vcc, s48, v2\ns_mov_b64 exec, -1\ns_cmp_eq_u64 vcc, 0\ns_cbranch_scc0 Lp2_{tag}{s.par}e\ns_barrier\ns_branch Lp2_{tag}{s.par}k")
    def loader_s(s, a):
        AH, AA = s.AH, s.AA
        s.setup_s(a)
        a.label(f"Lp2_s{s.par}e")
        a("s_barrier")
        gate(a, 12, 0xff)
        a.label(f"Lp2_s{s.par}k")
        stamp(a, 3)
        def issue(sc):
            a(f"s_lshl_b32 s40, s34, {11 if sc else 18}")
            for i in range(4): a(f"s_add_u32 m0, s37, {1024*i}\nbuffer_load_dwordx4 v{(16 if sc else 8)+i}, s[4:7], s40 offen {sc} lds")
            a(s.adv())
        issue_n(a, AA, lambda: issue(SC))
        steady(a, 10, 4, AA, lambda: issue(SC))
        srd(a, 4, 12, F_ * 4096); a("s_mov_b32 s34, 0")
        if AA < AH: a(f"s_waitcnt vmcnt({4*(AA-1)})\ns_barrier"); issue_n(a, AH - AA + 1, lambda: issue(""))
        steady(a, 34, 4, AH, lambda: issue(""))
        stamp(a, 5)
        drain(a, 4, AH)
        endp(a)
    def setup_d(s, a):
        ND = s.ND
        a(f"s_sub_u32 s22, s3, 2\ns_mul_i32 s23, s51, 68\ns_add_u32 s23, s23, s22\ns_lshl_b32 s23, s23, 10\nv_lshl_add_u32 v8, v1, 4, s23")
        for i in range(1, ND): a(f"v_add_u32 v{8+i}, {68*1024*i}, v8")
        a(f"""
        s_mul_i32 s37, s22, {1024*ND}
        s_add_u32 s37, s37, 8192
        s_add_u32 s38, s37, {s.SLOT*s.S}
        s_lshl_b32 s23, s52, 10
        s_add_u32 s23, s23, {F3}
        v_lshl_add_u32 v16, v1, 7, s23
        s_lshr_b32 s23, s51, 2
        s_lshl_b32 s23, s23, 11
        s_lshr_b32 s26, s52, 1
        s_mul_i32 s26, s26, {160*128}
        s_add_u32 s23, s23, s26
        s_add_u32 s23, s23, {F4}
        v_lshl_add_u32 v17, v1, 7, s23
        s_mov_b32 s34, 0
        s_mov_b32 s36, 48
        s_mov_b32 s33, 0
        """)
        srd(a, 8, 20, UW_SZ, UW_OFF)
    def loader_d(s, a):
        AH, AA, GB, ND = s.AH, s.AA, s.GB, s.ND
        s.setup_d(a)
        a.label(f"Lp2_d{s.par}e")
        a("s_barrier")
        gate(a, 16, 0xff)
        a.label(f"Lp2_d{s.par}k")
        stamp(a, 3)
        def issue():
            a("s_lshl_b32 s41, s34, 1\ns_add_u32 s41, s41, s36\ns_lshl_b32 s41, s41, 10")
            for i in range(ND): a(f"s_add_u32 m0, s37, {1024*i}\nbuffer_load_dwordx4 v{8+i}, s[8:11], s41 offen {SC} lds")
            a(s.adv())
        issue_n(a, AA, issue)
        steady(a, 10, ND, AA, issue)
        for j in range(10 - AA, GB): a(f"s_waitcnt vmcnt({ND*(9-j)})\ns_barrier")
        a("s_mov_b32 s36, 0\ns_mov_b32 s34, 0")
        gate(a, 17, 0x0fff if ND == 4 else 0x0fff0fff)
        stamp(a, 4)
        issue_n(a, GB + AH - 10, issue)
        steady(a, 34, ND, AH, issue)
        stamp(a, 5)
        drain(a, ND, AH)
        endp(a)
    def consumer(s, a):
        ND = s.ND; L = f"Lp2{s.par}"
        ACB = 16; ACA = ACB + 4 * ND; KS = 4 + 4 * ND; SETS = (ACA + 4 * ND, ACA + 4 * ND + 2 * KS)
        a(f"""
        s_load_dwordx2 s[24:25], s[0:1], {KA['b2']}
        s_load_dwordx2 s[28:29], s[0:1], {KA['out']}
        s_lshl_b32 s23, s50, 6
        s_lshl_b32 s26, s3, 4
        s_add_u32 s23, s23, s26
        v_and_b32 v2, 15, v1
        v_add_u32 v2, s23, v2
        v_lshlrev_b32 v3, 1, v2
        v_lshlrev_b32 v4, 3, v2
        s_waitcnt lgkmcnt(0)
        """)
        srd(a, 24, 24, 4096); srd(a, 8, 20, G_SZ, G_OFF); srd(a, 28, 28, S_ * 1280)
        a(f"""
        buffer_load_ushort v10, v3, s[24:27], 0 offen
        s_setprio 0
        v_lshrrev_b32 v5, 2, v1
        v_lshrrev_b32 v6, 1, v5
        v_and_b32 v6, 3, v6
        v_xor_b32 v6, s3, v6
        v_lshlrev_b32 v6, 5, v6
        v_lshl_add_u32 v5, v5, 7, v6
        v_and_b32 v6, 3, v1
        v_lshl_add_u32 v8, v6, 3, v5
        v_lshlrev_b32 v9, 4, v1
        v_add_u32 v9, 8192, v9
        v_mul_u32_u24 v12, 1280, v2
        v_lshrrev_b32 v6, 4, v1
        v_lshl_add_u32 v12, v6, 3, v12
        s_lshl_b32 s26, s51, 5
        v_add_u32 v12, s26, v12
        s_lshl_b32 s26, s3, 10
        v_lshl_add_u32 v13, v1, 3, s26
        v_and_b32 v14, 1, v6
        v_mul_u32_u24 v14, 24, v14
        v_add_u32 v14, v14, v12
        """)
        for i in range(4 * ND): a(f"v_mov_b32 v{ACA+i}, 0")
        def reads(st, ph="b"):
            r = []
            for kk in range(2):
                b = SETS[st] + KS * kk
                if ph == "a": r += [(f"ds_read_b64 {v(b,2)}, v13 offset:{kk*4096}", (kk, "b0")), (f"ds_read_b64 {v(b+2,2)}, v13 offset:{kk*4096+512}", (kk, "b1"))]
                else: r += [(f"ds_read_b64_tr_b16 {v(b,2)}, v8 offset:{kk*4096}", (kk, "b0")), (f"ds_read_b64_tr_b16 {v(b+2,2)}, v8 offset:{kk*4096+2048}", (kk, "b1"))]
                r += [(f"ds_read_b128 {v(b+4+4*dt,4)}, v9 offset:{(kk*ND+dt)*1024}", (kk, dt)) for dt in range(ND)]
            return r
        def mf(acc, st):
            return [(f"v_mfma_f32_16x16x32_bf16 {v(acc+4*dt,4)}, {v(SETS[st]+KS*kk+4+4*dt,4)}, {v(SETS[st]+KS*kk,4)}, {v(acc+4*dt,4)}", {(kk, "b1"), (kk, dt)}) for kk in range(2) for dt in range(ND)]
        ids = [x[1] for x in reads(0)]
        adv = slot_adv(s.SLOT, s.S) + ["v_add_u32 v8, s40, v8", "v_add_u32 v9, s40, v9"]
        a("s_mov_b32 s33, 0\ns_mov_b32 s37, 0\ns_barrier"); stamp(a, 5, True)
        adva = adv + ["v_add_u32 v13, s40, v13"]
        emit_step(a, [], [], reads(0, "a"), adva)
        a.label(f"{L}_ca", 3)
        a("s_barrier")
        emit_step(a, mf(ACA, 0), ids, reads(1, "a"), adva + ["s_add_u32 s33, s33, 2", "s_cmp_ge_u32 s33, 10"])
        a(f"s_barrier\ns_cbranch_scc1 {L}_cax")
        emit_step(a, mf(ACA, 1), ids, reads(0, "a"), adva)
        a(f"s_branch {L}_ca")
        a.label(f"{L}_cax")
        emit_step(a, mf(ACA, 1), ids, reads(0, "b"), adv)
        a(f"s_waitcnt vmcnt(0)\nbuffer_load_dwordx2 v[6:7], v4, s[8:11], 0 offen {SC}\nv_lshlrev_b32 v10, 16, v10")
        for i in range(4 * ND): a(f"v_mov_b32 v{ACB+i}, v10")
        a.label(f"{L}_cb", 3)
        a("s_barrier")
        emit_step(a, mf(ACB, 0), ids, reads(1), adv + ["s_add_u32 s33, s33, 2", "s_cmp_ge_u32 s33, 34"])
        a(f"s_cbranch_scc1 {L}_clast\ns_barrier")
        emit_step(a, mf(ACB, 1), ids, reads(0), adv)
        a(f"s_branch {L}_cb")
        a.label(f"{L}_clast")
        emit_step(a, mf(ACB, 1), ids, [], [])
        stamp(a, 6)
        a(f"""
        s_mov_b32 s49, 0
        {L}_g:
        s_waitcnt vmcnt(0)
        v_cmp_ne_u32 vcc, s48, v7
        s_add_u32 s49, s49, 1
        s_cmp_eq_u64 vcc, 0
        s_cbranch_scc1 {L}_gk
        buffer_load_dwordx2 v[6:7], v4, s[8:11], 0 offen {SC}
        s_cmp_lt_u32 s49, 20000
        s_cbranch_scc1 {L}_g
        s_waitcnt vmcnt(0)
        {L}_gk:
        """)
        aux = 'sc1' if opt('osc1') else ''; O = SETS[0]
        for dt in range(ND):
            for r in range(0, 4, 2): a(f"v_pk_add_f32 {v(ACA+4*dt+r,2)}, {v(ACA+4*dt+r,2)}, {v(ACB+4*dt+r,2)} neg_lo:[0,1] neg_hi:[0,1]")
            for r in range(0, 4, 2): a(f"v_pk_fma_f32 {v(ACB+4*dt+r,2)}, {v(ACA+4*dt+r,2)}, v[6:7], {v(ACB+4*dt+r,2)} op_sel_hi:[1,0,1]")
            a(f"v_cvt_pk_bf16_f32 v{O+2*dt}, v{ACB+4*dt}, v{ACB+4*dt+1}\nv_cvt_pk_bf16_f32 v{O+1+2*dt}, v{ACB+4*dt+2}, v{ACB+4*dt+3}")
            if dt & 1:
                b = O + 2 * (dt - 1)
                a(f"v_permlane16_swap_b32 v{b}, v{b+2}\nv_permlane16_swap_b32 v{b+1}, v{b+3}\nbuffer_store_dwordx4 {v(b,4)}, v14, s[28:31], 0 offen offset:{32*(dt-1)} {aux}")
            elif dt == ND - 1: a(f"buffer_store_dwordx2 {v(O+2*dt,2)}, v12, s[28:31], 0 offen offset:{32*dt} {aux}")
        endp(a)

def gen_main(a, name):
    kernel_head(a, name)
    if PROF:
        for i in range(1, 8): a(f"s_mov_b64 s[{70+2*i}:{71+2*i}], 0")
        stamp(a, 0); a("s_memtime s[66:67]")
    a(f"""
    s_cmp_ge_u32 s2, 256
    s_cbranch_scc1 Lend
    s_load_dwordx2 s[20:21], s[0:1], {KA['ws']}
    v_lshrrev_b32 v1, 6, v0
    v_readfirstlane_b32 s3, v1
    v_and_b32 v1, 63, v0
    s_and_b32 s52, s2, 7
    s_lshr_b32 s53, s2, 3
    s_lshr_b32 s22, s52, 1
    s_lshl_b32 s50, s22, 3
    s_and_b32 s23, s53, 7
    s_add_u32 s50, s50, s23
    s_lshr_b32 s26, s53, 3
    """)
    if PROF: a("s_mov_b32 s69, s3")
    NG = 15 if opt("mixed") else 30
    a("s_cmp_ge_u32 s53, 16\ns_cbranch_scc1 Lrole_qa" if opt("mixed") else "s_bitcmp1_b32 s52, 0\ns_cbranch_scc1 Lrole_qa")
    PE, PO = P2(0), P2(1)
    a(f"s_mul_i32 s51, s26, {PE.ND}")
    a(f"""
    {"s_lshl_b32 s19, s52, 4" if opt("mixed") else "s_lshl_b32 s19, s22, 5"}
    s_add_u32 s19, s19, s53
    s_mul_i32 s17, s53, 86
    s_lshr_b32 s17, s17, 8
    s_mul_i32 s23, s17, 3
    s_sub_u32 s23, s53, s23
    s_mul_i32 s16, s22, 3
    s_add_u32 s16, s16, s23
    """)
    if opt("mixed"): a("s_and_b32 s26, s52, 1\ns_mul_i32 s26, s26, 5\ns_add_u32 s17, s17, s26")
    a(f"s_mul_i32 s18, s23, {opt('stagg', 0)}\ns_mul_i32 s26, s17, {opt('stagd', 0)}\ns_add_u32 s18, s18, s26\ns_and_b32 s18, s18, 31")
    a("s_cmp_ge_u32 s3, 4\ns_cbranch_scc1 Lg_cons\ns_setprio 1\ns_cmp_ge_u32 s3, 2\ns_cbranch_scc1 Lg_h")
    def flags():
        a(f"s_waitcnt lgkmcnt(0)"); srd(a, 44, 20, FL_SZ, FL_OFF); a(f"s_load_dword s48, s[44:45], {FZ}")
    a(f"s_load_dwordx2 s[4:5], s[0:1], {KA['w1']}"); flags()
    a(f"s_cmp_ge_u32 s53, {NG}\ns_cbranch_scc1 Lsp_w")
    g1_loader_w(a)
    a.label("Lsp_w"); w1_sweep(a)
    a.label("Lsp_l"); a("s_mov_b32 s16, s52" if opt("mixed") else "s_lshr_b32 s16, s52, 1\ns_lshl_b32 s16, s16, 1\ns_add_u32 s16, s16, s53\ns_sub_u32 s16, s16, 30"); spare_loader(a)
    a("s_cmp_ge_u32 s3, 2\ns_cbranch_scc1 Lp2_d0\ns_branch Lp2_s0")
    a.label("Lg_h"); code_prefetch(a)
    if opt("mixed"):
        a(f"s_load_dwordx2 s[4:5], s[0:1], {KA['w1']}"); flags(); w1_sweep(a)
        a("s_cmp_ge_u32 s53, 15\ns_cbranch_scc1 Lsp_l")
    else:
        flags(); a("s_cmp_lt_u32 s53, 30\ns_cbranch_scc1 Lg_h2\ns_barrier"); tag_ready(a); a("s_barrier\ns_branch Lsp_l")
    a.label("Lg_h2"); g1_loader_h(a)
    a.label("Lg_cons")
    a(f"s_setprio 2\ns_load_dwordx2 s[4:5], s[0:1], {KA['x']}\ns_load_dwordx2 s[8:9], s[0:1], {KA['gw']}\ns_sub_u32 s3, s3, 4")
    ln_issue(a)
    srd(a, 44, 20, FL_SZ, FL_OFF)
    a(f"v_mov_b32 v2, {CTR}\nv_mov_b32 v6, 0\nv_mov_b32 v7, 0\nv_mov_b32 v8, 0\nv_mov_b32 v9, 0\nds_write_b128 v2, v[6:9]\ns_waitcnt lgkmcnt(0)\ns_barrier\ns_load_dword s48, s[44:45], {FZ}")
    ln_finish(a); stamp(a, 1, True)
    a(f"s_cmp_ge_u32 s53, {NG}\ns_cbranch_scc1 Lsp_cons")
    g1_consumer(a); a("s_branch Lp2_c0")
    a.label("Lsp_cons")
    if (not opt("noslowcol")):
        R0, SW = opt("sc0", 1024), opt("scw", 1)
        a(f"""
        s_load_dwordx2 s[4:5], s[0:1], {KA['w1']}
        s_lshr_b32 s22, s52, 1
        s_cmp_eq_u32 s22, 2
        s_cselect_b32 s23, 4, s3
        s_cmp_ge_u32 s23, {SW}
        s_cbranch_scc1 Lsc_done
        s_min_u32 s22, s22, 2
        s_lshl_b32 s22, s22, 10
        s_add_u32 s22, s22, {384 + R0 * 3072}
        s_and_b32 s23, s53, 1
        s_mul_i32 s23, s23, {SW}
        s_add_u32 s23, s23, s3
        s_lshl_b32 s23, s23, 6
        v_add_u32 v2, s23, v1
        v_mul_u32_u24 v2, 3072, v2
        s_mov_b32 s33, 0
        s_waitcnt lgkmcnt(0)
        """)
        srd(a, 4, 4, S_ * 3072)
        a(f"Lsc_l:\nbuffer_load_dword v3, v2, s[4:7], s22 offen\ns_add_u32 s22, s22, {128*SW*3072}\ns_add_u32 s33, s33, 1\ns_cmp_lt_u32 s33, {-(-(2048-R0)//(128*SW))}\ns_waitcnt vmcnt(0)\ns_cbranch_scc1 Lsc_l\nLsc_done:\ns_waitcnt lgkmcnt(0)")
    a("s_barrier\ns_lshl_b32 s22, s3, 8\ns_add_u32 s22, s22, s2\ns_cmp_lg_u32 s22, 240\ns_cbranch_scc1 Lp2_c0"); step_tag(a); a("s_branch Lp2_c0")
    a.label("Lrole_qa")
    a(f"s_mul_i32 s51, s26, {PO.ND}\ns_add_u32 s51, s51, {4*PE.ND}")
    if opt("mixed"): a("s_and_b32 s23, s53, 3\ns_lshl_b32 s16, s22, 2\ns_add_u32 s16, s16, s23\ns_lshr_b32 s26, s53, 2\ns_and_b32 s26, s26, 3\ns_and_b32 s17, s52, 1\ns_lshl_b32 s17, s17, 2\ns_add_u32 s17, s17, s26")
    else: a(f"""
    s_and_b32 s16, s22, 1
    s_lshl_b32 s16, s16, 3
    s_add_u32 s16, s16, s23
    s_lshr_b32 s17, s22, 1
    s_lshl_b32 s17, s17, 2
    s_add_u32 s17, s17, s26
    """)
    if opt("nsq"): a("s_mov_b32 s18, 0")
    elif opt("mixed"): a("s_add_u32 s18, s26, s23\ns_and_b32 s18, s18, 3\ns_mul_i32 s18, s18, 10\ns_lshr_b32 s18, s18, 2")
    else: a("s_lshl_b32 s18, s26, 1\ns_add_u32 s18, s18, s23\ns_and_b32 s18, s18, 7\ns_mul_i32 s18, s18, 10\ns_lshr_b32 s18, s18, 3")
    a(f"s_cmp_ge_u32 s3, 4\ns_cbranch_scc1 Lq_cons\ns_setprio 1\ns_cmp_eq_u32 s3, 3\ns_cbranch_scc1 Lq_idle")
    a(f"s_load_dwordx2 s[4:5], s[0:1], {KA['x']}\ns_load_dwordx2 s[8:9], s[0:1], {KA['wqkv']}"); qa_w1_sweep(a); flags(); qa_loader(a)
    a("s_cmp_ge_u32 s3, 2\ns_cbranch_scc1 Lp2_d1\ns_branch Lp2_s1")
    a.label("Lq_idle"); qa_w1_sweep(a); flags(); qa_idle(a); a("s_branch Lp2_d1")
    a.label("Lq_cons"); a("s_sub_u32 s3, s3, 4"); flags()
    a(f"v_mov_b32 v2, {CTR}\nv_mov_b32 v6, 0\nv_mov_b32 v7, 0\nv_mov_b32 v8, 0\nv_mov_b32 v9, 0\nds_write_b128 v2, v[6:9]")
    qa_consumer(a)
    for p in (PO, PE):
        a.label(f"Lp2_c{p.par}"); p.consumer(a)
        a.label(f"Lp2_s{p.par}"); p.loader_s(a)
        a.label(f"Lp2_d{p.par}"); p.loader_d(a)
    a.label("Lend"); a("s_endpgm")
    a.raw("Lcode_end:")
    return kernel_desc(name, 256, 102)

def gen_osc(a, name):
    kernel_head(a, name)
    o = next(o for o in OPTS if o.startswith("osc"))[3:].split("_")
    a(f"s_cmp_ge_u32 s2, 1\ns_cbranch_scc1 Losc_end\ns_load_dwordx2 s[4:5], s[0:1], {KA['ws']}\ns_waitcnt lgkmcnt(0)")
    srd(a, 4, 4, 0x100000, TL_OFF + 0x40000)
    def red(dst, base, stride, count, wave, slot, op):
        n = -(-count // 64)
        for i in range(n):
            a(f"v_add_u32 v1, {64*i}, v0\nv_min_u32 v1, {count-1}, v1\nv_mul_u32_u24 v1, {stride}, v1\nv_add_u32 v1, {base}, v1\nv_lshlrev_b32 v1, 9, v1\ns_mov_b32 s8, {wave*64 + slot*4}")
            a(f"buffer_load_dword v{4+i}, v1, s[4:7], s8 offen")
        a("s_waitcnt vmcnt(0)")
        if op == "add":
            for i in range(n): a(f"v_subrev_u32 v{4+i}, s20, v{4+i}")
        for i in range(1, n): a(f"v_{op}_u32 v4, v4, v{4+i}")
        a(f"v_readlane_b32 s{dst}, v4, 0")
        for i in range(1, 64): a(f"v_readlane_b32 s9, v4, {i}\ns_nop 0\ns_{op}_u32 s{dst}, s{dst}, s9")
        if op == "add": a(f"s_lshr_b32 s{dst}, s{dst}, {(64*n).bit_length()-1}\ns_add_u32 s{dst}, s{dst}, s20")
    red(20, 0, 1, 256, 0, 0, "min")
    if len(o) > 1:
        red(21, int(o[0]), int(o[1]), int(o[2]), int(o[3]), int(o[4]), dict(n="min", x="max", a="add")[o[5]])
        a("s_sub_u32 s21, s21, s20\ns_min_u32 s21, s21, 20000\ns_lshl_b32 s21, s21, 2")
    else: a("s_mov_b32 s21, 0")
    a("s_add_u32 s21, s21, 10000\nLosc_spin:\ns_memrealtime s[10:11]\ns_waitcnt lgkmcnt(0)\ns_sub_u32 s10, s10, s20\ns_cmp_lt_u32 s10, s21\ns_cbranch_scc1 Losc_spin")
    a.label("Losc_end"); a("s_endpgm")
    return kernel_desc(name, 16, 32)

def build(spec=""):
    global PROF
    OPTS[:] = [o for o in spec.split("+") if o]; PROF = bool(opt("prof")); UID[0] = 0
    ref = open(f"cdna_kernels/{NAME}.s.ref").read().split("\n")
    head = ref[:ref.index(next(x for x in ref if x.startswith("; Override")))]
    a = Asm(); a.raw("\n".join(head))
    if opt("mixed"): a.raw("; mixed")
    osc = any(o.startswith("osc") and o != "osc1" for o in OPTS)
    if osc: a.raw(f"; @launch kernel={NAME}_kernel grid=(256,1,1) block=(512,1,1) lds={LDS_SZ}\n; @launch kernel=osc_kernel grid=(1,1,1) block=(64,1,1) lds=0")
    else: a.raw(f"; @launch grid=(256,1,1) block=(512,1,1) lds={LDS_SZ}")
    a.raw('.amdgcn_target "amdgcn-amd-amdhsa--gfx950"')
    d = gen_main(a, NAME + "_kernel")
    if osc: d += gen_osc(a, "osc_kernel")
    if opt("nocomp"): a.lines = [(t, c) for t, c in a.lines if not (c is not None and (c.kind == "mfma" or c.op.startswith("ds_read")))]
    if opt("noload"): a.lines = [(t, c) for t, c in a.lines if not (c is not None and c.kind == "vmem" and c.lds)]
    if opt("nomfma"): a.lines = [(t, c) for t, c in a.lines if not (c is not None and c.kind == "mfma")]
    if opt("nods"): a.lines = [(t, c) for t, c in a.lines if not (c is not None and c.op.startswith("ds_read"))]
    if opt("nowait"): a.lines = [(t, c) for t, c in a.lines if not (c is not None and c.op == "s_waitcnt" and "lgkm" in t and "(0)" not in t)]
    if opt("al"): a.align_hot([("Lqa_c", "Lqa_clast"), ("Lg1_c", "Lg1_clast"), ("Lp2_ca", "Lp2_cax"), ("Lp2_cb", "Lp2_clast")])
    bad = a.check_branches()
    for b in bad: print("HAZARD across branch:", b, file=sys.stderr)
    assert not bad
    a.raw(d)
    return a.text()

if __name__ == "__main__":
    open(sys.argv[2] if len(sys.argv) > 2 else f"cdna_kernels/{NAME}.s", "w").write(build(sys.argv[1] if len(sys.argv) > 1 else ""))
```

```python
import sys, struct
from dsl import *

NAME = "gated_mix__sliding_local_dilated__mixer_token_mlp__prompt"
S_, D_, F_ = 2048, 640, 1536
KA = dict(x=0, wqkv=8, wo=16, w1=32, b1=40, w2=48, b2=56, gw=64, out=72, dbg=80, ws=88)
H_OFF, OT_OFF, UW_OFF, G_OFF, FL_OFF = 0, 0x280000, 0x500000, 0x800000, 0x810000
H_SZ, OT_SZ, UW_SZ, G_SZ, FL_SZ = 2621440, 2621440, 40 * 68 * 1024, 16384, 0x70000
F1, F2, F4, FZ, F3 = 0, 0x20000, 0x28000, 0x40000, 0x50000
RING = 163840; CTR = RING - 64; LDS_SZ = RING
LOG2E = 1.4426950408889634
OPTS = []; PROF = False; TL_OFF = 0x1000000
SC = "sc1"
def f2u(x): return "0x%08x" % struct.unpack("<I", struct.pack("<f", x))[0]
def v(n, k=1): return f"v{n}" if k == 1 else f"v[{n}:{n+k-1}]"
def opt(name, default=None):
    for o in OPTS:
        if o == name: return True
        if o.startswith(name + "="): return int(o.split("=")[1])
    return default

def srd(a, d, base, size, off=0):
    if off: a(f"s_add_u32 s{d}, s{base}, {off}\ns_addc_u32 s{d+1}, s{base+1}, 0")
    elif d != base: a(f"s_mov_b32 s{d}, s{base}\ns_mov_b32 s{d+1}, s{base+1}")
    a(f"s_mov_b32 s{d+2}, {size}\ns_mov_b32 s{d+3}, 0x20000")

def estamp(a, i):
    if PROF and opt("early"): a(f"s_memrealtime s[{70+2*i}:{71+2*i}]\ns_waitcnt lgkmcnt(0)")
def lstamp(a, i):
    if PROF and opt("late"): a(f"s_memrealtime s[{70+2*i}:{71+2*i}]\ns_waitcnt lgkmcnt(0)")
def stamp(a, i, wait=False):
    if PROF and opt("clk"):
        k = {2: 1, 3: 3, 6: 5}.get(i)
        if i == 0: a("s_memrealtime s[70:71]")
        elif k and (wait or i == 6): a(f"s_memrealtime s[{70+2*k}:{71+2*k}]\ns_memtime s[{72+2*k}:{73+2*k}]\ns_waitcnt lgkmcnt(0)")
        return
    if PROF and (i == 0 or not (opt("early") or opt("late"))): a(f"s_memrealtime s[{70+2*i}:{71+2*i}]" + ("\ns_waitcnt lgkmcnt(0)" if wait else ""))
def endp(a):
    if PROF:
        a(f"""
        s_waitcnt vmcnt(0)
        s_memrealtime s[84:85]
        s_memtime s[86:87]
        s_waitcnt lgkmcnt(0)
        s_sub_u32 s86, s86, s66
        s_add_u32 s60, s20, {TL_OFF + 0x40000}
        s_addc_u32 s61, s21, 0
        s_mov_b32 s62, 0x40000
        s_mov_b32 s63, 0x20000
        s_mov_b64 exec, 1
        s_lshl_b32 s64, s2, 3
        s_add_u32 s64, s64, s69
        s_lshl_b32 s64, s64, 6
        v_mov_b32 v0, s64
        """)
        for i in range(8): a(f"v_mov_b32 v{4+i}, s{70+2*i}")
        a("v_mov_b32 v12, s86")
        a("buffer_store_dwordx4 v[4:7], v0, s[60:63], 0 offen\nbuffer_store_dwordx4 v[8:11], v0, s[60:63], 0 offen offset:16\nbuffer_store_dword v12, v0, s[60:63], 0 offen offset:32")
    a("s_endpgm")

def emit_step(a, M, prev_ids, R, extra, per_gap=2, head=2):
    q = list(prev_ids); fill = [("r", x) for x in R] + [("x", x) for x in extra]
    def put(n):
        for _ in range(n):
            if not fill: return
            k, x = fill.pop(0)
            if k == "r": a(x[0]); q.append(("n", x[1]))
            else: a(x)
    put(head)
    for text, need_ in M:
        idx = [i for i, t in enumerate(q) if t in need_]
        if idx:
            n = min(len(q) - 1 - idx[-1], 15)
            a(f"s_waitcnt lgkmcnt({n})"); del q[:len(q) - n]
        a(text); put(per_gap)
    put(len(fill))

def slot_adv(SLOT, S):
    return [f"s_add_u32 s40, s37, {SLOT}", f"s_cmp_ge_u32 s40, {SLOT*S}", "s_cselect_b32 s41, 0, s40", "s_sub_u32 s40, s41, s37", "s_mov_b32 s37, s41"]

def thr(name, default):
    t = opt("t" + name, default if opt("thr") else 0)
    return f"s_waitcnt vmcnt({t-1})\n" if t else ""
UID = [0]
def uid(p): UID[0] += 1; return f"{p}{UID[0]}"

def issue_n(a, n, issue):
    L = uid("Li")
    a(f"s_add_u32 s32, s33, {n}")
    a.label(L); issue()
    a(f"s_add_u32 s33, s33, 1\ns_cmp_lt_u32 s33, s32\ns_cbranch_scc1 {L}")
def steady(a, upto, n, ahead, issue):
    L = uid("Ls")
    a.label(L)
    a(f"s_waitcnt vmcnt({n*(ahead-1)})\ns_barrier"); issue()
    a(f"s_add_u32 s33, s33, 1\ns_cmp_lt_u32 s33, {upto}\ns_cbranch_scc1 {L}")
def drain(a, n, ahead):
    for k in range(ahead - 1, -1, -1): a(f"s_waitcnt vmcnt({n*k})\ns_barrier")

def publish(a, ctr, nw, vaddr, lanes, keep=0):
    L = uid("Lpub")
    a(f"""
    s_waitcnt vmcnt({keep})
    s_mov_b64 exec, 1
    v_mov_b32 v2, {CTR + ctr}
    v_mov_b32 v3, 1
    ds_add_rtn_u32 v3, v2, v3
    s_waitcnt lgkmcnt(0)
    v_readfirstlane_b32 s22, v3
    s_mov_b64 exec, {(1 << lanes) - 1}
    s_cmp_lg_u32 s22, {nw - 1}
    s_cbranch_scc1 {L}
    v_mov_b32 v3, s48
    buffer_store_dword v3, v{vaddr}, s[44:47], 0 offen {SC}
    """)
    a.label(L); a("s_mov_b64 exec, -1")
def gate(a, vaddr, mask, two=False):
    L = uid("Lg"); slp = "s_sleep %d" % opt("slp", 4) if opt("slp", 4) else ""
    a(f"s_mov_b32 s49, 0\ns_mov_b32 exec_lo, {mask & 0xffffffff}\ns_mov_b32 exec_hi, {mask >> 32}")
    a.label(L)
    if two: a(f"buffer_load_dword v2, v{vaddr}, s[44:47], 0 offen {SC}\ns_mov_b32 s22, {two}\nbuffer_load_dword v3, v{vaddr}, s[44:47], s22 offen {SC}\ns_waitcnt vmcnt(0)\nv_xor_b32 v2, s48, v2\nv_xor_b32 v3, s48, v3\nv_or_b32 v2, v2, v3")
    else: a(f"buffer_load_dword v2, v{vaddr}, s[44:47], 0 offen {SC}\ns_waitcnt vmcnt(0)\nv_xor_b32 v2, s48, v2")
    a(f"v_cmp_ne_u32 vcc, 0, v2\ns_add_u32 s49, s49, 1\ns_cmp_eq_u64 vcc, 0\ns_cbranch_scc1 {L}d\n{slp}\ns_cmp_lt_u32 s49, 20000\ns_cbranch_scc1 {L}")
    a.label(L + "d"); a("s_mov_b64 exec, -1")
def tag_ready(a):
    a("s_waitcnt lgkmcnt(0)\ns_mul_i32 s48, s48, 1664525\ns_add_u32 s48, s48, 1013904223")
def step_tag(a):
    a(f"v_lshlrev_b32 v12, 7, v1"); gate(a, 12, (1 << 64) - 1, two=8192)
    a(f"v_lshrrev_b32 v12, 3, v1\nv_lshlrev_b32 v12, 11, v12\nv_and_b32 v13, 7, v1\nv_lshl_add_u32 v12, v13, 7, v12\nv_add_u32 v12, {F2}, v12"); gate(a, 12, (1 << 64) - 1, two=16384)
    a(f"s_mov_b64 exec, 1\nv_mov_b32 v2, s48\nv_mov_b32 v3, {FZ}\nbuffer_store_dword v2, v3, s[44:47], 0 offen {SC}\ns_mov_b64 exec, -1")

def code_prefetch(a):
    if not opt("ncode"): return
    L = uid("Lpc")
    a(f"s_getpc_b64 s[30:31]\n{L}:\ns_sub_u32 s30, s30, {L}-{NAME}_kernel\ns_subb_u32 s31, s31, 0\nv_lshlrev_b32 v2, 7, v1")
    for i in range(opt("ncode", 0)):
        a(f"v_min_u32 v3, Lcode_end-{NAME}_kernel-4, v2\nglobal_load_dword v{40+i}, v3, s[30:31]\nv_add_u32 v2, 8192, v2")

def ln_issue(a):
    a(f"""
    s_lshl_b32 s22, s19, 4
    s_lshl_b32 s23, s3, 2
    s_add_u32 s22, s22, s23
    v_lshrrev_b32 v2, 4, v1
    v_add_u32 v10, s22, v2
    v_and_b32 v11, 15, v1
    v_lshlrev_b32 v4, 4, v11
    v_mul_u32_u24 v5, 1280, v10
    v_add_u32 v5, v5, v4
    s_waitcnt lgkmcnt(0)
    """)
    srd(a, 4, 4, H_SZ); srd(a, 8, 8, 1280)
    for i in range(5): a(f"buffer_load_dwordx4 {v(16+4*i,4)}, v5, s[4:7], 0 offen offset:{256*i}")
    for i in range(5): a(f"buffer_load_dwordx4 {v(36+4*i,4)}, v4, s[8:11], 0 offen offset:{256*i}")
def ln_finish(a):
    X, GW, U = 16, 36, 56
    srd(a, 4, 20, H_SZ, H_OFF); srd(a, 8, 20, G_SZ, G_OFF)
    a("s_mov_b32 s30, 0x3f803f80\ns_mov_b32 s31, 0xffff0000"); estamp(a, 1); a("s_waitcnt vmcnt(5)"); estamp(a, 2)
    a(f"v_dot2_f32_bf16 v6, v{X}, s30, 0\nv_dot2_f32_bf16 v8, v{X+1}, s30, 0")
    for i in range(2, 20): a(f"v_dot2_f32_bf16 v{6+2*(i&1)}, v{X+i}, s30, v{6+2*(i&1)}")
    for i in range(20): a(f"v_lshlrev_b32 v{U+2*i}, 16, v{X+i}\nv_and_b32 v{U+1+2*i}, s31, v{X+i}")
    def red(*rs):
        for sh in (8, 4, 2, 1):
            for r in rs: a(f"v_add_f32_dpp v{r}, v{r}, v{r} row_ror:{sh} row_mask:0xf bank_mask:0xf")
    a("v_add_f32 v6, v6, v8"); red(6)
    a(f"v_mul_f32 v6, {f2u(1/640)}, v6")
    for i in range(20): a(f"v_pk_add_f32 {v(U+2*i,2)}, {v(U+2*i,2)}, v[6:7] op_sel_hi:[1,0] neg_lo:[0,1] neg_hi:[0,1]")
    a(f"v_pk_mul_f32 v[12:13], {v(U,2)}, {v(U,2)}\nv_pk_mul_f32 v[14:15], {v(U+2,2)}, {v(U+2,2)}")
    for i in range(2, 20): a(f"v_pk_fma_f32 {v(12+2*(i&1),2)}, {v(U+2*i,2)}, {v(U+2*i,2)}, {v(12+2*(i&1),2)}")
    a("v_pk_add_f32 v[12:13], v[12:13], v[14:15]\nv_add_f32 v12, v12, v13")
    red(12)
    a(f"v_mov_b32 v8, {f2u(1e-5)}\nv_fmac_f32 v8, {f2u(1/640)}, v12\nv_rsq_f32 v12, v8")
    for j in range(5):
        for i in range(4*j, 4*j+4): a(f"v_pk_mul_f32 {v(U+2*i,2)}, {v(U+2*i,2)}, v[12:13] op_sel_hi:[1,0]")
        for i in range(4*j, 4*j+4): a(f"v_cvt_pk_bf16_f32 v{96+i}, v{U+2*i}, v{U+1+2*i}")
        a(f"buffer_store_dwordx4 {v(96+4*j,4)}, v5, s[4:7], 0 offen offset:{256*j} {SC}")
    estamp(a, 3)
    a("s_barrier")
    a(f"s_waitcnt vmcnt(5)\nv_dot2_f32_bf16 v9, v{X}, v{GW}, 0\nv_dot2_f32_bf16 v8, v{X+1}, v{GW+1}, 0")
    for i in range(2, 20): a(f"v_dot2_f32_bf16 v{9-(i&1)}, v{X+i}, v{GW+i}, v{9-(i&1)}")
    a("v_add_f32 v9, v9, v8"); red(9)
    a(f"""
    v_mul_f32 v9, {f2u(-LOG2E)}, v9
    v_exp_f32 v9, v9
    v_add_f32 v9, 1.0, v9
    v_rcp_f32 v8, v9
    v_lshlrev_b32 v10, 3, v10
    """)
    tag_ready(a)
    a(f"""
    v_mov_b32 v9, s48
    s_mov_b32 exec_lo, 0x00010001
    s_mov_b32 exec_hi, 0x00010001
    buffer_store_dwordx2 v[8:9], v10, s[8:11], 0 offen {SC}
    s_mov_b64 exec, -1
    s_lshl_b32 s22, s19, 7
    v_lshl_add_u32 v10, v1, {14 if opt("mixed") else 15}, s22
    """)
    if opt("early"): a("s_waitcnt vmcnt(1)"); estamp(a, 4)
    publish(a, 0, 4, 10, 4, keep=1)
    if opt("early"): estamp(a, 5); a("s_waitcnt vmcnt(0)"); estamp(a, 6)

G1_S, G1_SLOT = 6, 24576
def w1_sweep(a):
    a(f"s_lshl_b32 s23, s53, {2 if opt('mixed') else 1}\ns_add_u32 s23, s23, s3\ns_lshl_b32 s23, s23, 6\nv_add_u32 v2, s23, v1\ns_lshr_b32 s23, s52, 1\ns_mul_i32 s23, s23, 768\ns_mov_b32 s26, 43691")
    for n in range(3):
        a(f"v_add_u32 v3, {4096*n}, v2\nv_mul_u32_u24 v4, s26, v3\nv_lshrrev_b32 v4, 18, v4\nv_mul_u32_u24 v5, {3072-768}, v4\nv_lshl_add_u32 v5, v3, 7, v5\nv_add_u32 v{16+n}, s23, v5")
        if not opt("noslowcol"):
            a(f"v_and_b32 v5, 0x380, v{16+n}\nv_cmp_le_u32 vcc, {opt('sc0', 1024)}, v4\nv_cndmask_b32_e64 v5, 0, v5, vcc\nv_cmp_eq_u32 vcc, 0x180, v5\nv_cndmask_b32_e64 v{16+n}, v{16+n}, -16, vcc")
    srd(a, 4, 4, S_ * 3072)
    a("s_barrier"); estamp(a, 1)
    pre = opt("pre", 2)
    for n in range(3):
        if n == pre: tag_ready(a); a("s_barrier")
        if not opt("nopfw1"): a(f"buffer_load_dword v{20+n}, v{16+n}, s[4:7], 0 offen")
    if pre == 3: tag_ready(a); a("s_barrier")
    estamp(a, 2)
    if opt("pfwait"): a("s_waitcnt vmcnt(0)")
    estamp(a, 3)
def g1_loader_w(a):
    a(f"""
    v_lshrrev_b32 v2, 4, v1
    s_lshl_b32 s23, s3, 2
    v_add_u32 v2, s23, v2
    v_lshlrev_b32 v4, 1, v2
    v_and_b32 v3, 15, v1
    v_xor_b32 v3, v3, v4
    v_lshlrev_b32 v3, 4, v3
    v_mul_u32_u24 v2, 3072, v2
    s_lshl_b32 s26, s16, 8
    v_add3_u32 v8, v2, v3, s26
    """)
    for i in range(1, 8): a(f"v_add_u32 v{8+i}, {8*3072*i}, v8")
    a(f"""
    s_mov_b32 s34, s18
    s_lshl_b32 s37, s3, 10
    s_add_u32 s38, s37, {G1_SLOT*G1_S}
    s_mov_b32 s33, 0
    """)
    def issue():
        a(f"s_mul_i32 s40, s34, {64*3072}" if not opt("wwrap") else f"s_and_b32 s40, s34, 3\ns_mul_i32 s40, s40, {64*3072}")
        for i in range(8): a(f"s_add_u32 m0, s37, {2048*i}\n{thr('w', 11)}buffer_load_dwordx4 v{8+i}, s[4:7], s40 offen lds")
        a(f"s_add_u32 s37, s37, {G1_SLOT}\ns_cmp_ge_u32 s37, s38\ns_cselect_b32 s42, {G1_SLOT*G1_S}, 0\ns_sub_u32 s37, s37, s42\ns_add_u32 s34, s34, 1\ns_and_b32 s34, s34, 31")
    if opt("sweep"):
        w1_sweep(a); issue_n(a, G1_S - 2, issue)
    else:
        pp = opt("ppre", 1)
        srd(a, 4, 4, S_ * 3072); a("s_barrier")
        if pp: issue_n(a, pp, issue)
        tag_ready(a); a("s_barrier")
        if opt("s15"): a("s_barrier")
        m = opt("g1in", G1_S - 2)
        if pp < m: issue_n(a, m - pp, issue)
        for j in range(m - (G1_S - 2)): a(f"s_waitcnt vmcnt({8*(m-1-j)})\ns_barrier")
    if opt("early"): estamp(a, 4); a("s_waitcnt vmcnt(0)"); estamp(a, 5)
    stamp(a, 1)
    steady(a, 32, 8, G1_S - 2, issue)
    if (not opt("earlyp")): drain(a, 8, G1_S - 2); stamp(a, 2); a("s_branch Lp2_s0")
    else: P2(0).setup_s(a); P2(0).early(a, 8, 12, "s")
def g1_loader_h(a):
    a(f"""
    v_lshrrev_b32 v2, 3, v1
    v_and_b32 v3, 7, v1
    v_and_b32 v4, 6, v2
    v_xor_b32 v3, v3, v4
    v_lshlrev_b32 v3, 4, v3
    s_sub_u32 s22, s3, 2
    s_lshl_b32 s23, s22, 3
    v_add_u32 v2, s23, v2
    v_mul_u32_u24 v2, 1280, v2
    s_lshl_b32 s26, s17, 7
    v_add3_u32 v8, v2, v3, s26
    """)
    for i in range(1, 4): a(f"v_add_u32 v{8+i}, {16*1280*i}, v8")
    a(f"""
    s_lshl_b32 s23, s52, 14
    v_lshl_add_u32 v12, v1, 7, s23
    s_mov_b32 s34, s18
    s_lshl_b32 s37, s22, 10
    s_add_u32 s37, s37, 16384
    s_add_u32 s38, s37, {G1_SLOT*G1_S}
    s_mov_b32 s33, 0
    """)
    srd(a, 4, 20, H_SZ, H_OFF)
    def issue():
        a(f"s_mul_i32 s40, s34, {64*1280}" if not opt("hwrap") else f"s_and_b32 s40, s34, 3\ns_mul_i32 s40, s40, {64*1280}")
        for i in range(4): a(f"s_add_u32 m0, s37, {2048*i}\n{thr('h', 5)}buffer_load_dwordx4 v{8+i}, s[4:7], s40 offen {'' if opt('hplain') else SC} lds")
        a(f"s_add_u32 s37, s37, {G1_SLOT}\ns_cmp_ge_u32 s37, s38\ns_cselect_b32 s42, {G1_SLOT*G1_S}, 0\ns_sub_u32 s37, s37, s42\ns_add_u32 s34, s34, 1\ns_and_b32 s34, s34, 31")
    a("s_barrier"); tag_ready(a); a("s_barrier")
    if opt("s15"): a("s_barrier")
    estamp(a, 1)
    if opt("nosplit"): gate(a, 12, (1 << 64) - 1, two=8192)
    else:
        L = uid("Lm")
        a("s_sub_u32 s22, s3, 2\ns_lshl_b32 s22, s22, 13\nv_add_u32 v12, s22, v12"); gate(a, 12, (1 << 64) - 1)
        a(f"v_mov_b32 v2, {CTR + 12}\nv_mov_b32 v3, 1\ns_mov_b64 exec, 1\nds_add_u32 v2, v3\ns_mov_b32 s49, 0\n{L}:\nds_read_b32 v3, v2\ns_add_u32 s49, s49, 1\ns_waitcnt lgkmcnt(0)\nv_readfirstlane_b32 s22, v3")
        a(f"s_cmp_ge_u32 s22, 2\ns_cbranch_scc1 {L}d\ns_cmp_lt_u32 s49, 0x400000\ns_cbranch_scc1 {L}\n{L}d:\ns_mov_b64 exec, -1")
    stamp(a, 1); estamp(a, 3)
    if opt("early"): a("s_add_u32 s78, s70, s49\ns_mov_b32 s79, 0")
    if not (not opt("s2")): a("s_barrier")
    issue_n(a, G1_S - 2, issue)
    steady(a, 32, 4, G1_S - 2, issue)
    if (not opt("earlyp")): drain(a, 4, G1_S - 2); stamp(a, 2); a("s_branch Lp2_d0")
    else: P2(0).setup_d(a); P2(0).early(a, 4, 16, "d")
def g1_consumer(a):
    L = "Lg1"
    if opt("s15"): a("s_barrier")
    ACC, T = 16, 48
    a(f"""
    s_load_dwordx2 s[24:25], s[0:1], {KA['b1']}
    s_and_b32 s22, s3, 1
    s_lshr_b32 s23, s3, 1
    s_lshl_b32 s26, s16, 8
    s_lshl_b32 s27, s22, 7
    s_add_u32 s26, s26, s27
    v_lshrrev_b32 v2, 4, v1
    v_lshl_add_u32 v3, v2, 3, s26
    s_waitcnt lgkmcnt(0)
    """)
    srd(a, 24, 24, 3072); srd(a, 8, 20, UW_SZ, UW_OFF)
    for ft in range(4): a(f"buffer_load_dwordx2 {v(T+2*ft,2)}, v3, s[24:27], 0 offen offset:{32*ft}")
    a(f"""
    s_setprio 0
    v_lshrrev_b32 v5, 2, v1
    v_and_b32 v6, 3, v1
    v_lshlrev_b32 v6, 3, v6
    v_and_b32 v7, 7, v5
    v_lshl_add_u32 v4, v5, 8, v6
    s_lshl_b32 s27, s22, 2
    """)
    for ft in range(4): a(f"s_add_u32 s28, s27, {ft}\nv_xor_b32 v2, s28, v7\nv_lshl_add_u32 v{8+ft}, v2, 5, v4")
    a(f"v_lshrrev_b32 v7, 1, v5\nv_and_b32 v7, 3, v7\nv_lshl_add_u32 v4, v5, 7, v6\nv_add_u32 v4, 16384, v4\ns_lshl_b32 s27, s23, 1")
    for dt in range(2): a(f"s_add_u32 s28, s27, {dt}\nv_xor_b32 v2, s28, v7\nv_lshl_add_u32 v{12+dt}, v2, 5, v4")
    a(f"""
    s_lshl_b32 s28, s17, 2
    s_add_u32 s28, s28, s27
    s_mul_i32 s28, s28, 68
    s_lshl_b32 s29, s16, 2
    s_add_u32 s28, s28, s29
    s_lshl_b32 s29, s22, 1
    s_add_u32 s28, s28, s29
    s_lshl_b32 s28, s28, 10
    v_lshl_add_u32 v14, v1, 4, s28
    s_lshl_b32 s28, s17, 4
    s_add_u32 s28, s28, s16
    s_lshl_b32 s28, s28, 7
    s_add_u32 s28, s28, {F4}
    v_mul_u32_u24 v15, {160*128}, v1
    v_add_u32 v15, s28, v15
    s_mov_b32 s31, 0xffff0000
    s_waitcnt vmcnt(0)
    """)
    for ft in range(4):
        for dt in range(2):
            b = ACC + 8 * ft + 4 * dt
            a(f"v_lshlrev_b32 v{b}, 16, v{T+2*ft}\nv_and_b32 v{b+1}, s31, v{T+2*ft}\nv_lshlrev_b32 v{b+2}, 16, v{T+2*ft+1}\nv_and_b32 v{b+3}, s31, v{T+2*ft+1}")
    SETS = (48, 96)
    def reads(st):
        r = []
        for kk in range(2):
            b = SETS[st] + 24 * kk
            for dt in range(2): r += [(f"ds_read_b64_tr_b16 {v(b+4*dt+2*h,2)}, v{12+dt} offset:{kk*4096+2048*h}", (kk, "b", dt, h)) for h in range(2)]
            for ft in range(4): r += [(f"ds_read_b64_tr_b16 {v(b+8+4*ft+2*h,2)}, v{8+ft} offset:{kk*8192+4096*h}", (kk, "a", ft, h)) for h in range(2)]
        return r
    def mf(st):
        return [(f"v_mfma_f32_16x16x32_bf16 {v(ACC+8*ft+4*dt,4)}, {v(SETS[st]+24*kk+8+4*ft,4)}, {v(SETS[st]+24*kk+4*dt,4)}, {v(ACC+8*ft+4*dt,4)}", {(kk, "a", ft, 1)})
                for kk in range(2) for ft, dt in ([(f, d) for d in range(2) for f in range(4)] if opt("g1ord") else [(f, d) for f in range(4) for d in range(2)])]
    ids = [x[1] for x in reads(0)]
    adv = slot_adv(G1_SLOT, G1_S) + [f"v_add_u32 v{8+i}, s40, v{8+i}" for i in range(6)]
    if not (not opt("s2")): a("s_barrier")
    a("s_mov_b32 s33, 0\ns_mov_b32 s37, 0\ns_barrier"); stamp(a, 2, True)
    emit_step(a, [], [], reads(0), adv)

    a.label(f"{L}_c", 3)
    a("s_barrier")
    emit_step(a, mf(0), ids, reads(1), adv + ["s_add_u32 s33, s33, 2", "s_cmp_ge_u32 s33, 32"])
    a(f"s_cbranch_scc1 {L}_clast\ns_barrier")
    emit_step(a, mf(1), ids, reads(0), adv)
    a(f"s_branch {L}_c")
    a.label(f"{L}_clast")
    a("s_waitcnt lgkmcnt(0)" + ("\ns_barrier" if opt("noe2") else "")); stamp(a, 3, True); lstamp(a, 1)
    last = [t for t, _ in mf(1)]
    grp = lambda p, dt: [last[8 * kk + 2 * (2 * p + h) + dt] for kk in range(2) for h in range(2)]
    G = [(p, dt) for p in range(2) for dt in range(2)]
    for t in grp(*G[0]) + grp(*G[1]): a(t)
    rest = grp(*G[2]) + grp(*G[3])
    c0 = -2 * 0.7978845608028654 * LOG2E; c1 = c0 * 0.044715
    a(f"v_mov_b32 v2, {f2u(c0)}\nv_mov_b32 v4, {f2u(c1)}\nv_mov_b32 v6, 1.0\ns_setprio 2")
    lstamp(a, 2)
    T = 48
    for n, (p, dt) in enumerate(G):
        o = 72 + 4 * n
        prs = [ACC + 8 * (2 * p + h) + 4 * dt + 2 * q for h in range(2) for q in range(2)]
        def ops(l):
            for x in l:
                a(x)
                if rest and not x.startswith(("v_exp", "v_rcp")): a(rest.pop(0))
        ops([f"v_pk_mul_f32 {v(T+2*i,2)}, {v(b,2)}, {v(b,2)}" for i, b in enumerate(prs)])
        ops([f"v_pk_fma_f32 {v(T+2*i,2)}, {v(T+2*i,2)}, v[4:5], v[2:3] op_sel_hi:[1,0,0]" for i, b in enumerate(prs)])
        ops([f"v_pk_mul_f32 {v(T+2*i,2)}, {v(T+2*i,2)}, {v(b,2)}" for i, b in enumerate(prs)])
        ops([f"v_exp_f32 v{T+i}, v{T+i}" for i in range(8)])
        ops([f"v_pk_add_f32 {v(T+2*i,2)}, {v(T+2*i,2)}, v[6:7] op_sel_hi:[1,0]" for i, b in enumerate(prs)])
        ops([f"v_rcp_f32 v{T+i}, v{T+i}" for i in range(8)])
        ops([f"v_pk_mul_f32 {v(T+2*i,2)}, {v(T+2*i,2)}, {v(b,2)}" for i, b in enumerate(prs)])
        ops([f"v_cvt_pk_bf16_f32 v{o+i}, v{T+2*i}, v{T+2*i+1}" for i in range(4)])
        a(f"s_mov_b32 s29, {dt*68*1024}\nbuffer_store_dwordx4 {v(o,4)}, v14, s[8:11], s29 offen offset:{1024*p} {SC}")
    lstamp(a, 3)
    if not opt("noe2"): a("s_barrier")
    if opt("late"): a("s_waitcnt vmcnt(0)"); lstamp(a, 4)
    publish(a, 4, 4, 15, 4)
    if opt("late"): lstamp(a, 5); a("s_waitcnt vmcnt(0)"); lstamp(a, 6)
    stamp(a, 4, True)

def spare_loader(a):
    a(f"""
    s_load_dwordx2 s[4:5], s[0:1], {KA['wo']}
    s_load_dwordx2 s[12:13], s[0:1], {KA['w2']}
    v_lshrrev_b32 v2, 3, v1
    v_and_b32 v3, 7, v1
    v_and_b32 v4, 6, v2
    v_xor_b32 v3, v3, v4
    v_lshlrev_b32 v14, 4, v3
    v_mul_u32_u24 v15, 1280, v2
    v_add_u32 v15, v15, v14
    v_lshrrev_b32 v3, 2, v2
    v_lshl_add_u32 v3, v3, 4, v2
    v_add_u32 v3, 16, v3
    v_mul_u32_u24 v3, 1280, v3
    v_add_u32 v14, v14, v3
    s_mul_i32 s23, s3, {7*4096}
    v_lshrrev_b32 v5, 2, v1
    v_lshrrev_b32 v6, 1, v5
    v_and_b32 v6, 3, v6
    v_lshlrev_b32 v5, 7, v5
    v_and_b32 v7, 3, v1
    v_lshlrev_b32 v7, 3, v7
    v_add3_u32 v5, v5, v7, s23
    """)
    for t in range(4): a(f"v_xor_b32 v7, {t}, v6\nv_lshl_add_u32 v{8+t}, v7, 5, v5")
    a(f"v_lshlrev_b32 v12, 4, v1\ns_lshl_b32 s26, s16, 7\ns_add_u32 s26, s26, {F3}\nv_lshl_add_u32 v13, v1, 10, s26\ns_waitcnt lgkmcnt(0)")
    srd(a, 4, 4, 640 * 1280); srd(a, 8, 20, UW_SZ, UW_OFF); srd(a, 12, 12, F_ * 4096)
    def task():
        a("s_lshl_b32 s26, s33, 2\ns_add_u32 s26, s26, s3\ns_min_u32 s26, s26, 24\ns_mul_i32 s27, s16, 25\ns_add_u32 s27, s27, s26\ns_mul_i32 s26, s27, 6554\ns_lshr_b32 s26, s26, 16\ns_mul_i32 s28, s26, 10\ns_sub_u32 s27, s27, s28")
    L = uid("Lwo")
    a("s_mov_b32 s33, 0"); a.label(L); task()
    for half in range(2):
        a(f"""
        s_lshl_b32 s28, s26, 1
        s_add_u32 s28, s28, {half}
        s_mul_i32 s29, s28, 52
        s_lshr_b32 s29, s29, 8
        s_mul_i32 s30, s29, 5
        s_sub_u32 s28, s28, s30
        s_mul_i32 s29, s29, 80
        s_mul_i32 s30, s28, 20
        s_cmp_eq_u32 s28, 4
        s_cselect_b64 vcc, -1, 0
        s_cselect_b32 s30, 0, s30
        s_cselect_b32 s31, 40, 8
        s_mul_i32 s31, s31, 1280
        s_add_u32 s29, s29, s30
        s_mul_i32 s28, s29, 1280
        s_lshl_b32 s29, s27, 7
        s_add_u32 s28, s28, s29
        v_cndmask_b32 v2, v15, v14, vcc
        """)
        for i in range(2): a(f"s_add_u32 m0, s23, {2048*half+1024*i}\nbuffer_load_dwordx4 v2, s[4:7], s28 offen lds\ns_add_u32 s28, s28, s31")
    a(f"s_add_u32 s23, s23, 4096\ns_add_u32 s33, s33, 1\ns_cmp_lt_u32 s33, 7\ns_cbranch_scc1 {L}\ns_waitcnt vmcnt(0)\ns_mov_b32 s33, 0")
    L = uid("Lwo"); a.label(L); task()
    for t in range(4): a(f"ds_read_b64_tr_b16 {v(16+4*t,2)}, v{8+t}\nds_read_b64_tr_b16 {v(18+4*t,2)}, v{8+t} offset:2048\nv_add_u32 v{8+t}, 4096, v{8+t}")
    a(f"s_lshl_b32 s28, s27, 2\ns_mul_i32 s28, s28, 68\ns_add_u32 s28, s28, s26\ns_add_u32 s28, s28, 48\ns_lshl_b32 s28, s28, 10")
    for t in range(4): a(f"s_waitcnt lgkmcnt({6-2*t})\nbuffer_store_dwordx4 {v(16+4*t,4)}, v12, s[8:11], s28 offen {SC}\ns_add_u32 s28, s28, {68*1024}")
    a(f"s_add_u32 s33, s33, 1\ns_cmp_lt_u32 s33, 7\ns_cbranch_scc1 {L}")
    publish(a, 8, 4, 13, 8)
    stamp(a, 1)
    if opt("spw2"):
        L = uid("Lw2")
        a(f"""
        s_and_b32 s22, s16, 1
        s_lshl_b32 s22, s22, 2
        s_add_u32 s22, s22, s3
        s_lshl_b32 s22, s22, 3
        v_lshrrev_b32 v2, 3, v1
        v_add_u32 v2, s22, v2
        v_lshlrev_b32 v2, 12, v2
        v_and_b32 v3, 7, v1
        v_lshl_add_u32 v2, v3, 7, v2
        s_lshr_b32 s22, s52, 1
        s_lshl_b32 s22, s22, 10
        s_mov_b32 s33, 0
        {L}:
        buffer_load_dword v30, v2, s[12:15], s22 offen
        s_add_u32 s22, s22, {64*4096}
        s_add_u32 s33, s33, 1
        s_cmp_lt_u32 s33, 24
        s_cbranch_scc1 {L}
        """)
    h0 = opt("sph", 0)
    if h0:
        L = uid("Lsh"); n = ((32 - h0 + 1) // 2 * 10 + 7) // 8
        srd(a, 4, 20, H_SZ, H_OFF)
        a(f"s_lshl_b32 s23, s52, 14\nv_lshl_add_u32 v12, v1, 7, s23")
        gate(a, 12, (1 << 64) - 1, two=8192)
        a(f"""
        s_and_b32 s22, s16, 1
        s_lshl_b32 s22, s22, 2
        s_add_u32 s22, s22, s3
        v_lshlrev_b32 v2, 7, v1
        s_mov_b32 s33, 0
        {L}:
        s_mul_i32 s23, s22, 6554
        s_lshr_b32 s23, s23, 16
        s_mul_i32 s23, s23, {64*1280}
        s_lshl_b32 s26, s22, 13
        s_add_u32 s23, s23, s26
        s_add_u32 s23, s23, {h0*64*1280}
        buffer_load_dword v30, v2, s[4:7], s23 offen {SC}
        s_add_u32 s22, s22, 8
        s_add_u32 s33, s33, 1
        s_cmp_lt_u32 s33, {n}
        s_cbranch_scc1 {L}
        """)
    nw = opt("c3", 0)
    if nw:
        L = uid("Lc3")
        a(f"""
        s_cmp_ge_u32 s3, {nw}
        s_cbranch_scc1 {L}d
        s_and_b32 s22, s16, 1
        s_mul_i32 s22, s22, {nw}
        s_add_u32 s22, s22, s3
        s_lshl_b32 s22, s22, 6
        v_add_u32 v2, s22, v1
        v_lshlrev_b32 v2, 12, v2
        s_lshr_b32 s22, s52, 1
        s_lshl_b32 s22, s22, 10
        s_add_u32 s22, s22, 384
        s_mov_b32 s33, 0
        {L}:
        buffer_load_dword v30, v2, s[12:15], s22 offen
        s_add_u32 s22, s22, {128*nw*4096}
        s_add_u32 s33, s33, 1
        s_cmp_lt_u32 s33, {12//nw}
        s_waitcnt vmcnt(0)
        s_cbranch_scc1 {L}
        {L}d:
        """)
    stamp(a, 2)

QA_S, QA_SLOT, QA_W = 3, 49152, 18432
def qa_w1_sweep(a):
    if not opt("qsw"): return
    a(f"""
    s_load_dwordx2 s[12:13], s[0:1], {KA['w1']}
    s_lshr_b32 s22, s2, 1
    s_lshl_b32 s22, s22, 2
    s_add_u32 s22, s22, s3
    s_lshl_b32 s23, s22, 12
    s_lshl_b32 s22, s22, 13
    s_add_u32 s23, s23, {512*8192}
    v_lshlrev_b32 v2, 7, v1
    s_waitcnt lgkmcnt(0)
    """)
    srd(a, 12, 12, S_ * 3072)
    a("buffer_load_dword v32, v2, s[12:15], s22 offen\ns_mov_b32 exec_hi, 0\nbuffer_load_dword v33, v2, s[12:15], s23 offen\ns_mov_b32 exec_hi, -1")
def w2_setup(a):
    a(f"""
    s_load_dwordx2 s[24:25], s[0:1], {KA['w2']}
    v_lshrrev_b32 v2, 3, v1
    s_lshl_b32 s22, s53, 3
    v_add_u32 v2, s22, v2
    v_lshlrev_b32 v2, 12, v2
    v_and_b32 v3, 7, v1
    v_lshl_add_u32 v2, v3, 7, v2
    s_lshr_b32 s22, s52, 1
    s_lshl_b32 s22, s22, 10
    v_add_u32 v29, s22, v2
    s_waitcnt lgkmcnt(0)
    """)
    srd(a, 24, 24, F_ * 4096)
def w2_load(a):
    if opt("sc3"): a("s_mov_b32 exec_lo, 0xf7f7f7f7\ns_mov_b32 exec_hi, 0xf7f7f7f7\nbuffer_load_dword v30, v29, s[24:27], s22 offen\ns_mov_b64 exec, -1")
    else: a("buffer_load_dword v30, v29, s[24:27], s22 offen")
def w2_last(a):
    if not opt("nopfw2"): a("s_lshl_b32 s22, s3, 20"); w2_load(a)
def w2_slow(a):
    n = opt("sc3")
    if not n or n > 2: return
    a(f"s_lshl_b32 s22, s53, 2\ns_add_u32 s22, s22, s3\ns_lshl_b32 s22, s22, 12\ns_lshr_b32 s23, s52, 1\ns_lshl_b32 s23, s23, 10\ns_add_u32 s22, s22, s23\ns_add_u32 s22, s22, 384\ns_add_u32 s26, s24, s22\ns_addc_u32 s27, s25, 0")
    for k in range(12):
        for h in range(n): a(f"s_load_dword s98, s[26:27], {64*h}")
        a(f"s_add_u32 s26, s26, {128*4096}\ns_addc_u32 s27, s27, 0")
def qa_loader(a):
    a(f"v_lshrrev_b32 v2, 3, v1\ns_lshl_b32 s23, s3, 3\nv_add_u32 v2, s23, v2\ns_lshl_b32 s26, s16, 7\ns_sub_u32 s26, s26, 16\nv_and_b32 v3, 7, v1")
    for i in range(6):
        a(f"v_add_u32 v4, {24*i}, v2\nv_lshrrev_b32 v5, 1, v4\nv_and_b32 v5, 7, v5\nv_xor_b32 v5, v5, v3\nv_add_u32 v4, s26, v4\nv_max_i32 v4, 0, v4\nv_mul_u32_u24 v4, 1280, v4\nv_lshl_add_u32 v{8+i}, v5, 4, v4")
    a(f"s_mul_i32 s23, s3, 320\ns_mul_i32 s26, s17, 160\nv_add_u32 v2, s23, v1")
    for i in range(5):
        a(f"""
        v_add_u32 v3, {64*i}, v2
        v_mul_u32_u24 v4, 2185, v3
        v_lshrrev_b32 v4, 16, v4
        v_mul_u32_u24 v5, 30, v4
        v_sub_u32 v3, v3, v5
        v_mul_u32_u24 v5, 26, v3
        v_lshrrev_b32 v5, 8, v5
        v_mul_u32_u24 v5, {1280-160}, v5
        v_lshl_add_u32 v3, v3, 4, v5
        v_and_b32 v5, 12, v4
        v_lshlrev_b32 v5, 1, v5
        v_lshrrev_b32 v6, 4, v4
        v_lshl_add_u32 v5, v6, 2, v5
        v_and_b32 v4, 3, v4
        v_add_u32 v4, v4, v5
        v_mul_u32_u24 v4, 3840, v4
        v_add3_u32 v{16+i}, v4, v3, s26
        """)
    a(f"s_mov_b32 s34, s18\ns_mov_b32 s37, 0\ns_lshl_b32 s38, s3, 10\ns_mul_i32 s39, s3, 5120\ns_add_u32 s39, s39, {QA_W}\ns_mov_b32 s33, 0")
    srd(a, 4, 4, H_SZ); srd(a, 8, 8, 640 * 3840)
    def issue(half=None):
        if half != 1: a(f"s_lshl_b32 s40, s34, 7\ns_mul_i32 s41, s34, {64*3840}\ns_add_u32 s42, s37, s38\ns_add_u32 s43, s37, s39\ns_add_u32 s36, s41, {32*3840}")
        if half != 1:
            for i in range(3): a(f"s_add_u32 m0, s42, {3072*i}\nbuffer_load_dwordx4 v{8+i}, s[4:7], s40 offen lds")
            for i in range(5): a(f"s_add_u32 m0, s43, {1024*i}\nbuffer_load_dwordx4 v{16+i}, s[8:11], s41 offen lds")
        if half != 0:
            for i in range(3, 6): a(f"s_add_u32 m0, s42, {3072*i}\nbuffer_load_dwordx4 v{8+i}, s[4:7], s40 offen lds")
            for i in range(5): a(f"s_add_u32 m0, s43, {15360+1024*i}\nbuffer_load_dwordx4 v{16+i}, s[8:11], s36 offen lds")
            a(f"s_add_u32 s37, s37, {QA_SLOT}\ns_cmp_ge_u32 s37, {QA_SLOT*QA_S}\ns_cselect_b32 s37, 0, s37\ns_add_u32 s34, s34, 1\ns_cmp_ge_u32 s34, 10\ns_cselect_b32 s34, 0, s34")
    if opt("lateb0"):
        issue_n(a, 2, issue); tag_ready(a); w2_setup(a); stamp(a, 1)
    else:
        issue(); issue(0); tag_ready(a); a("s_waitcnt vmcnt(8)\ns_barrier"); issue(1); issue(); a("s_mov_b32 s33, 3")
        w2_setup(a); stamp(a, 1)
    steady(a, 10, 16, QA_S - 1, issue); drain(a, 16, QA_S - 1)
    stamp(a, 2); w2_last(a); a("s_barrier")
def qa_idle(a):
    code_prefetch(a)
    if not opt("now49"):
        a(f"""
        s_mul_i32 s22, s53, 60
        v_add_u32 v2, s22, v1
        v_mul_u32_u24 v3, 4370, v2
        v_lshrrev_b32 v3, 16, v3
        v_mul_u32_u24 v4, 15, v3
        v_sub_u32 v2, v2, v4
        v_mul_u32_u24 v4, 52, v2
        v_lshrrev_b32 v4, 8, v4
        v_mul_u32_u24 v4, {1280-640}, v4
        v_lshl_add_u32 v2, v2, 7, v4
        v_lshrrev_b32 v4, 6, v3
        v_lshl_add_u32 v3, v4, 8, v3
        v_add_u32 v3, 256, v3
        v_mul_u32_u24 v3, 3840, v3
        s_lshr_b32 s22, s52, 2
        s_mul_i32 s22, s22, 640
        v_add3_u32 v2, v2, v3, s22
        """)
        srd(a, 8, 8, 640 * 3840)
        a("s_mov_b32 exec_hi, 0x0fffffff\nbuffer_load_dword v31, v2, s[8:11], 0 offen\ns_mov_b32 exec_hi, -1")
    if opt("x49"):
        a(f"""
        s_lshr_b32 s22, s53, 3
        s_mul_i32 s22, s22, 36
        s_lshl_b32 s23, s16, 7
        s_add_u32 s22, s22, s23
        s_sub_u32 s22, s22, 16
        v_add_u32 v2, s22, v1
        v_max_i32 v2, 0, v2
        v_mul_u32_u24 v2, 1280, v2
        s_bitcmp1_b32 s53, 0
        s_cselect_b32 s22, 5, 4
        s_cselect_b32 s23, 0, 9
        s_lshl_b32 s22, s22, 7
        s_lshl_b32 s23, s23, 7
        """)
        srd(a, 4, 4, H_SZ)
        a("s_mov_b32 exec_hi, 0xf\nbuffer_load_dword v32, v2, s[4:7], s22 offen\nbuffer_load_dword v33, v2, s[4:7], s23 offen\ns_mov_b32 exec_hi, -1")
    tag_ready(a); w2_setup(a)
    at = (opt("w2a", 5), opt("w2b", 7))
    for i in range(10):
        a("s_barrier")
        for k in range(2):
            if at[k] == i and not opt("nopfw2"): a(f"s_mov_b32 s22, {(4+k) << 20}"); w2_load(a)
    w2_last(a); a("s_barrier")
def qa_consumer(a):
    L = "Lqa"
    AQ, AK, AR, AV, AW = 16, 48, 88, 108, 148
    XF, WB = 168, 208
    M0, M1, MF, PM, TM = 224, 228, 232, 236, 240
    NB, DD = 4, opt("dd", 3)
    a(f"""
    s_lshr_b32 s28, s3, 1
    s_and_b32 s29, s3, 1
    v_and_b32 v2, 15, v1
    v_lshrrev_b32 v3, 4, v1
    v_lshrrev_b32 v4, 1, v2
    v_xor_b32 v4, v4, v3
    v_lshlrev_b32 v4, 4, v4
    v_lshl_add_u32 v4, v2, 7, v4
    v_mov_b32 v8, v4
    v_xor_b32 v9, 64, v4
    v_lshrrev_b32 v5, 2, v1
    v_mul_u32_u24 v5, 480, v5
    s_mul_i32 s23, s29, 80
    s_add_u32 s23, s23, {QA_W}
    v_add_u32 v5, s23, v5
    v_and_b32 v4, 3, v1
    v_lshl_add_u32 v10, v4, 3, v5
    v_and_b32 v6, 1, v1
    v_mul_u32_u24 v6, 40, v6
    v_add3_u32 v13, v6, v5, 32
    v_lshrrev_b32 v4, 1, v4
    v_mul_u32_u24 v4, 160, v4
    v_add_u32 v11, v4, v13
    """)
    if opt("zv"):
        a(f"v_and_b32 v4, 3, v1\nv_lshrrev_b32 v4, 1, v4\nv_cmp_ne_u32 s[98:99], s29, v4")
    for i in range(AQ, XF): a(f"v_mov_b32 v{i}, 0")
    a(f"v_lshlrev_b32 v4, 2, v3\nv_sub_u32 v4, v2, v4\nv_mov_b32 v5, {f2u(-1e30)}")
    for r in range(4):
        a(f"""
        v_subrev_u32 v15, {r}, v4
        v_and_b32 v15, 0x80000001, v15
        v_cmp_eq_u32 vcc, 0, v15
        v_cndmask_b32_e64 v{M1+r}, v5, 0, vcc
        v_cndmask_b32_e64 v{TM+4+r}, 0, -1, vcc
        v_cmp_eq_u32 vcc, 0x80000000, v15
        v_cndmask_b32_e64 v{M0+r}, v5, 0, vcc
        v_cndmask_b32_e64 v{TM+r}, 0, -1, vcc
        """)
    a("s_mov_b32 s30, 0xffff\ns_mov_b32 s22, 0x0c0c0c0c\ns_mov_b32 s26, 0x01000100\ns_mov_b32 s27, 0x03020302")
    for i in range(4): a(f"v_bfi_b32 v{PM+i}, s30, v{TM+2*i}, v{TM+2*i+1}\nv_mov_b32 v15, s22\nv_bfi_b32 v{PM+i}, v{PM+i}, s{26+(i&1)}, v15")
    a(f"s_or_b32 s23, s16, s28\ns_cmp_eq_u32 s23, 0\ns_cselect_b64 vcc, -1, 0")
    for r in range(4): a(f"v_cndmask_b32 v{MF+r}, v{M0+r}, v5, vcc")
    GM = 90
    for j in range(2): a(f"v_cmp_eq_u32 s[{GM+2*j}:{GM+1+2*j}], {j}, v3")
    a(f"""
    v_and_b32 v4, 1, v3
    v_cmp_eq_u32 s[94:95], 1, v4
    s_cmp_eq_u32 s29, 0
    s_cselect_b32 s96, -1, 0
    s_cselect_b32 s97, 0, -1
    s_lshl_b32 s23, s16, 3
    s_lshl_b32 s26, s28, 2
    s_add_u32 s23, s23, s26
    s_mul_i32 s23, s23, 40
    s_mul_i32 s26, s17, 5
    s_add_u32 s23, s23, s26
    s_lshl_b32 s23, s23, 9
    v_lshl_add_u32 v15, v1, 3, s23
    s_lshl_b32 s26, s29, 10
    v_add_u32 v12, s26, v15
    s_lshl_b32 s23, s16, 4
    s_add_u32 s23, s23, s17
    s_lshl_b32 s23, s23, 7
    s_add_u32 s23, s23, {F2}
    v_lshl_add_u32 v14, v1, 10, s23
    s_mov_b32 s31, {f2u(20 ** -0.5 * LOG2E)}
    v_mov_b32 v6, s31
    s_mov_b32 s33, 0
    s_mov_b32 s37, 0
    s_waitcnt lgkmcnt(0)
    """)
    srd(a, 4, 20, OT_SZ, OT_OFF); tag_ready(a)
    U = [("q", 0), ("q", 1), ("k", 0), ("k", 1), ("r", 0), ("v", 0), ("v", 1), ("w", 0)]
    NU = len(U); UU = 2 * NU
    def wread(u):
        kk, c = divmod(u, NU); p, j = U[c]; b = WB + 4 * (u % NB)
        ad, off = {"q": (10, 40 * j), "k": (10, 160 + 40 * j), "v": (10, 320 + 40 * j), "r": (11, 0), "w": (13, 320)}[p]
        off += kk * 15360
        return [f"ds_read_b64_tr_b16 {v(b,2)}, v{ad} offset:{off}", f"ds_read_b64_tr_b16 {v(b+2,2)}, v{ad} offset:{off+7680}"]
    def acc(p, j, t): return {"q": AQ + 8 * (t - 1) + 4 * j, "k": AK + 8 * t + 4 * j, "r": AR + 4 * t, "v": AV + 20 * j + 4 * t, "w": AW + 4 * t}[p]
    cvt = lambda d, s0: f"v_cvt_pk_bf16_f32 v{d}, v{s0}, v{s0+1}"
    cv = lambda d, s0: a(cvt(d, s0))
    VCH = (AV, AV + 20, AW)
    stamp(a, 1, True); a("s_barrier"); stamp(a, 2, True)
    a(f"s_cmp_lg_u32 s28, 0\ns_cbranch_scc1 {L}_h1")
    for rh in range(2):
        a.label(f"{L}_h{rh}")
        def xread(kk): return [f"ds_read_b128 {v(XF+20*kk+4*t,4)}, v{8+kk} offset:{2048*(4*rh+t) if t else 0}" for t in (1, 2, 3, 4, 0)]
        def mf(u):
            kk, c = divmod(u, NU); p, j = U[c]; w = v(WB + 4 * (u % NB), 4); r = []
            for t in ((1, 2, 3, 4, 0) if p in ("kr", "vw")[rh] else (1, 2, 3, 4)):
                x = v(XF + 20 * kk + 4 * t, 4); d = v(acc(p, j, t), 4)
                r.append(f"v_mfma_f32_16x16x32_bf16 {d}, {w}, {x}, {d}" if p in "qkr" else f"v_mfma_f32_16x16x32_bf16 {d}, {x}, {w}, {d}")
            return r
        for t in xread(0): a(t)
        for u in range(DD):
            for t in wread(u): a(t)
        a(f"s_waitcnt lgkmcnt({2*DD-2})")
        a.label(f"{L}_c{rh}", 3)
        q = []
        for u in range(1, DD): q += [u, u]
        misc = slot_adv(QA_SLOT, QA_S) + ["s_add_u32 s33, s33, 1", "s_cmp_ge_u32 s33, 10"]
        x1 = xread(1)
        for u in range(UU):
            nx = u + DD; fill = []
            if nx == UU: fill += [(t, UU) for t in xread(0)]
            fill += [(t, nx) for t in wread(nx % UU)]
            if 1 <= u < NU - 1 and x1: fill.append((x1.pop(0), NU))
            ms = mf(u)
            if nx == UU:
                a(f"s_waitcnt lgkmcnt(0)\ns_cbranch_scc1 {L}_clast{rh}\ns_barrier"); q = []
            per = -(-len(fill) // len(ms))
            for i, m in enumerate(ms):
                a(m)
                for t, tag in fill[i*per:(i+1)*per]: a(t); q.append(tag)
                if i == len(ms) - 2 and misc and u >= 2: a(misc.pop(0))
                if 1 <= i <= 3 and nx == UU - 1:
                    for r in ((), (8, 9, 10), (11, 13))[i - 1]: a(f"v_add_u32 v{r}, s40, v{r}")
            if any(t <= u + 1 for t in q) and nx != UU - 1:
                last = max(i for i, t in enumerate(q) if t <= u + 1)
                q = q[last + 1:]
                a(f"s_waitcnt lgkmcnt({len(q)})")
        assert not misc and not x1 and len(q) == 2 * DD - 2, (misc, x1, q)
        a(f"s_branch {L}_c{rh}")
        a.label(f"{L}_clast{rh}"); stamp(a, 3, True); lstamp(a, 1)
        TK = (4, 3, 2, 1) if rh else (4, 3, 2, 1, 0); prep = []
        for t in TK:
            r = AR + 4 * t; k = AK + 8 * t
            prep += [cvt(k, k), cvt(k + 1, k + 2), cvt(k + 4, k + 4), cvt(k + 5, k + 6), cvt(k + 2, r), cvt(k + 3, r + 2), cvt(r, r), cvt(r + 1, r + 2)]
        for t in TK:
            r = AR + 4 * t; k = AK + 8 * t
            prep += [f"v_permlane32_swap_b32 v{r}, v{k+2}", f"v_permlane32_swap_b32 v{r+1}, v{k+3}"]
        assert DD == 3
        for u in range(UU - DD, UU):
            for m in mf(u): a(m); a(prep.pop(0)); a(prep.pop(0))
        a(f"v_lshlrev_b32 v8, 3, v1\ns_mul_i32 s23, s29, 4608\ns_add_u32 s23, s23, {QA_SLOT}\nv_add_u32 v8, s23, v8")
        for x in prep: a(x)
        if rh == 0:
            for i in range(3): a(f"ds_write_b64 v8, {v(AK+32+2*i,2)} offset:{512*i}")
        for n, b in enumerate(VCH):
            for i in range(0 if rh else 2, 10): cv(b + i, b + 2 * i)
            a(f"ds_write_b64 v8, {v(b + (0 if rh else 8),2)} offset:{(3072 if rh else 1536) + 512*n}")
        a("s_waitcnt lgkmcnt(0)\ns_barrier")
        if rh:
            for i in range(3): a(f"ds_read_b64 {v(AK+2*i,2)}, v8 offset:{512*i}")
        for n, b in enumerate(VCH): a(f"ds_read_b64 {v(b,2)}, v8 offset:{(1536 if rh else 3072) + 512*n}")
        if rh == 0: a(f"s_branch {L}_j")
    a.label(f"{L}_j")
    lstamp(a, 2)
    UN = [(t, j) for t in (4, 3, 2, 1) for j in range(2)]
    SRS = [XF + 8 * n for n in range(7)] + [TM + 8]
    def qprep(t):
        r = AR + 4 * t; qa, qb = acc("q", 0, t), acc("q", 1, t)
        return [cvt(qa, qa), cvt(qa + 1, qa + 2), cvt(qb + 3, qb + 2), cvt(qb + 2, qb)] + \
               [f"v_cndmask_b32 v{qa+2+i}, 0, v{r+i}, s[{GM}:{GM+1}]" for i in range(2)] + [f"v_cndmask_b32 v{qb+i}, 0, v{r+i}, s[{GM+2}:{GM+3}]" for i in range(2)]
    for x in qprep(4): a(x)
    for n, (t, j) in enumerate(UN):
        qf = v(acc("q", j, t), 4)
        if j == 0: nxt = qprep(t - 1) if t > 1 else []
        if n == 6: a("s_waitcnt lgkmcnt(0)")
        a(f"v_mfma_f32_16x16x32_bf16 {v(SRS[n],4)}, {v(AK+8*(t-1)+2*j,4)}, {qf}, {v(MF if t == 1 else M0,4)}")
        for x in nxt[4*j:4*j+2]: a(x)
        a(f"v_mfma_f32_16x16x32_bf16 {v(SRS[n]+4,4)}, {v(AK+8*t+2*j,4)}, {qf}, {v(M1,4)}")
        for x in nxt[4*j+2:4*j+4]: a(x)
    V2, X = AQ, AQ + 16
    P = [AK + 4 * n for n in range(8)]
    for n in range(8): s_ = SRS[n]; a(f"v_max3_f32 v{V2+2*n}, v{s_}, v{s_+1}, v{s_+4}\nv_max3_f32 v{V2+2*n+1}, v{s_+2}, v{s_+3}, v{s_+6}")
    for n in range(8): s_ = SRS[n]; a(f"v_max_f32 v{V2+2*n}, v{V2+2*n}, v{s_+5}\nv_max_f32 v{V2+2*n+1}, v{V2+2*n+1}, v{s_+7}")
    def seq(*steps):
        for st in steps:
            for x in (X, X + 4): a(st(x))
    def xred(op):
        seq(lambda x: f"v_permlane32_swap_b32 v{x}, v{x+1}\nv_permlane32_swap_b32 v{x+2}, v{x+3}",
            lambda x: f"{op} v{x}, v{x}, v{x+1}\n{op} v{x+2}, v{x+2}, v{x+3}",
            lambda x: f"v_permlane16_swap_b32 v{x}, v{x+2}", lambda x: f"{op} v{x}, v{x}, v{x+2}")
    def xbc():
        seq(lambda x: f"v_mov_b32 v{x+2}, v{x}", lambda x: f"v_permlane16_swap_b32 v{x}, v{x+2}",
            lambda x: f"v_mov_b32 v{x+1}, v{x}\nv_mov_b32 v{x+3}, v{x+2}",
            lambda x: f"v_permlane32_swap_b32 v{x}, v{x+1}\nv_permlane32_swap_b32 v{x+2}, v{x+3}")
    sel = lambda n: f"op_sel:[0,{n&1},{n&1}] op_sel_hi:[1,{n&1},{n&1}]"
    for n in range(8): a(f"v_max_f32 v{X+n}, v{V2+2*n}, v{V2+2*n+1}")
    xred("v_max_f32"); seq(lambda x: f"v_mul_f32 v{x}, s31, v{x}"); xbc()
    for n in range(8): a(f"v_pk_fma_f32 {v(V2+2*n,2)}, {v(V2+2*n,2)}, v[6:7], {v(X+(n&6),2)} op_sel:[0,0,{n&1}] op_sel_hi:[1,0,{n&1}] neg_lo:[0,0,1] neg_hi:[0,0,1]")
    for n in range(16): a(f"v_exp_f32 v{V2+n}, v{V2+n}")
    for n in range(8): a(f"v_add_f32 v{X+n}, v{V2+2*n}, v{V2+2*n+1}")
    xred("v_add_f32"); seq(lambda x: f"v_rcp_f32 v{x}, v{x}"); xbc()
    for n in range(8): a(f"v_pk_mul_f32 {v(V2+2*n,2)}, {v(V2+2*n,2)}, {v(X+(n&6),2)} op_sel:[0,{n&1}] op_sel_hi:[1,{n&1}]")
    for n in range(8): cv(X + n, V2 + 2 * n)
    a("s_setprio 2")
    def pv(n):
        t, j = UN[n]
        return [f"v_mfma_f32_16x16x32_bf16 {v(SRS[n],4)}, {v(AV+20*j+2*(t-1),4)}, {v(P[n],4)}, 0", f"v_mfma_f32_16x16x32_bf16 {v(SRS[n]+4,4)}, {v(AW+2*(t-1),4)}, {v(P[n],4)}, 0"]
    for n in range(8):
        pm = [f"v_perm_b32 v{P[n]+i}, v{X+n}, v{X+n}, v{PM+i}" for i in range(4)]
        m = pv(n - 1) if n else ["", ""]
        a(pm[0]); a(pm[1]); a(m[0]); a(pm[2]); a(pm[3]); a(m[1])
    for m in pv(7): a(m)
    O = AQ
    for t in (4, 3, 2, 1):
        n = 2 * (4 - t); o = O + 6 * (4 - t)
        a(f"s_mov_b32 s29, {40*512*(t-1)}")
        for j in range(2):
            cv(o + 2 * j, SRS[n + j]); cv(o + 2 * j + 1, SRS[n + j] + 2)
            a(f"buffer_store_dwordx2 {v(o+2*j,2)}, v12, s[4:7], s29 offen offset:{512*j} {SC}")
        for r in range(4): a(f"v_cndmask_b32 v{SRS[n]+4+r}, v{SRS[n]+4+r}, v{SRS[n+1]+4+r}, s[94:95]")
        cv(o + 4, SRS[n] + 4); cv(o + 5, SRS[n] + 6)
        a(f"s_mov_b64 exec, s[96:97]\nbuffer_store_dwordx2 {v(o+4,2)}, v15, s[4:7], s29 offen offset:2048 {SC}\ns_mov_b64 exec, -1")
    lstamp(a, 3)
    a("s_waitcnt vmcnt(0)"); lstamp(a, 4)
    a(f"s_barrier\ns_cmp_lg_u32 s3, 0\ns_cbranch_scc1 {L}_np\ns_mov_b64 exec, 3\nv_mov_b32 v3, s48\nbuffer_store_dword v3, v14, s[44:47], 0 offen {SC}\ns_mov_b64 exec, -1")
    a.label(f"{L}_np")
    if opt("late"): lstamp(a, 5); a("s_waitcnt vmcnt(0)"); lstamp(a, 6)
    stamp(a, 4, True)

class P2:
    def __init__(s, par, ND=None):
        s.par = par; s.ND = ND or (opt("nd0", 4), 10 - opt("nd0", 4))[par]; s.tag = f"{par}{s.ND}"
        s.SLOT = 8192 + 2048 * s.ND; s.S = min(RING // s.SLOT, 8); s.AH = s.S - 2
        s.st = opt("stb%d" % par, 0); s.stm = opt("stm", 7)
        s.IN = opt("in%d" % par, s.S if par else 0)
        s.AA = min(opt("aha", 6), s.AH); s.GB = max(opt("gb%d" % par, 7), 11 - s.AH, 10 - s.AA)
    def adv(s): return f"s_add_u32 s37, s37, {s.SLOT}\ns_cmp_ge_u32 s37, s38\ns_cselect_b32 s42, {s.SLOT*s.S}, 0\ns_sub_u32 s37, s37, s42\ns_add_u32 s34, s34, 1" + ("\ns_cmp_ge_u32 s34, 24\ns_cselect_b32 s34, 0, s34" if s.st else "")
    def phase_b(s): return f"s_and_b32 s34, s50, {s.stm}\ns_mul_i32 s34, s34, {s.st}" if s.st else "s_mov_b32 s34, 0"
    def first(s, a, n, issue, IN=None):
        m = max(s.IN if IN is None else IN, s.AA)
        issue_n(a, m, issue)
        return lambda: [a(f"s_waitcnt vmcnt({n*(m-1-j)})\ns_barrier") for j in range(m - s.AA)]
    def setup_s(s, a):
        a(f"""
        s_load_dwordx2 s[12:13], s[0:1], {KA['w2']}
        v_lshrrev_b32 v2, 3, v1
        v_and_b32 v3, 7, v1
        v_and_b32 v4, 6, v2
        v_xor_b32 v3, v3, v4
        v_lshlrev_b32 v3, 4, v3
        v_lshl_add_u32 v2, v2, 12, v3
        s_lshl_b32 s23, s3, 17
        s_lshl_b32 s26, s50, 7
        s_add_u32 s23, s23, s26
        v_add_u32 v8, s23, v2
        """)
        for i in range(1, 4): a(f"v_add_u32 v{8+i}, {8*4096*i}, v8")
        a(f"s_lshl_b32 s23, s50, 2\ns_mul_i32 s23, s23, 40\ns_lshl_b32 s26, s3, 1\ns_add_u32 s23, s23, s26\ns_lshl_b32 s23, s23, 9\nv_lshl_add_u32 v16, v1, 4, s23")
        for i in range(1, 4): a(f"v_add_u32 v{16+i}, {40*512*i}, v16")
        a(f"s_and_b32 s23, s50, -2\ns_add_u32 s23, s23, {s.par}\ns_lshl_b32 s23, s23, 10\ns_add_u32 s23, s23, {F2}\nv_lshl_add_u32 v12, v1, 7, s23")
        a(f"s_mov_b32 s34, 0\ns_lshl_b32 s37, s3, 12\ns_add_u32 s38, s37, {s.SLOT*s.S}\ns_mov_b32 s33, 0\ns_waitcnt lgkmcnt(0)")
        srd(a, 4, 20, OT_SZ, OT_OFF)
    def early(s, a, n, vflag, tag):
        a(f"""
        s_waitcnt vmcnt({3*n})
        s_barrier
        s_waitcnt vmcnt({2*n})
        s_barrier
        s_mov_b64 exec, 0xff
        buffer_load_dword v2, v{vflag}, s[44:47], 0 offen {SC}
        s_waitcnt vmcnt({n+1})
        s_barrier
        s_waitcnt vmcnt(1)
        s_barrier
        """)
        stamp(a, 2)
        a(f"s_waitcnt vmcnt(0)\nv_cmp_ne_u32 vcc, s48, v2\ns_mov_b64 exec, -1\ns_cmp_eq_u64 vcc, 0\ns_cbranch_scc0 Lp2_{tag}{s.tag}e\ns_barrier\ns_branch Lp2_{tag}{s.tag}k")
    def loader_s(s, a):
        AH, AA = s.AH, s.AA
        s.setup_s(a)
        a.label(f"Lp2_s{s.tag}e")
        a("s_barrier")
        if s.par: w2_slow(a)
        gate(a, 12, 0xff)
        a.label(f"Lp2_s{s.tag}k")
        stamp(a, 3)
        def issue(sc):
            a(f"s_lshl_b32 s40, s34, {11 if sc else 18}" if not opt("w2wrap") else f"s_and_b32 s40, s34, 1\ns_lshl_b32 s40, s40, {11 if sc else 18}")
            for i in range(4): a(f"s_add_u32 m0, s37, {1024*i}\nbuffer_load_dwordx4 v{(16 if sc else 8)+i}, s[4:7], s40 offen {sc} lds")
            a(s.adv())
        s.first(a, 4, lambda: issue(SC), opt("ins", 0))()
        steady(a, 10, 4, AA, lambda: issue(SC))
        srd(a, 4, 12, F_ * 4096); a(s.phase_b())
        if AA < AH: a(f"s_waitcnt vmcnt({4*(AA-1)})\ns_barrier"); issue_n(a, AH - AA + 1, lambda: issue(""))
        steady(a, 34, 4, AH, lambda: issue(""))
        stamp(a, 5)
        drain(a, 4, AH)
        endp(a)
    def setup_d(s, a):
        ND = s.ND
        a(f"s_sub_u32 s22, s3, 2\ns_mul_i32 s23, s51, 68\ns_add_u32 s23, s23, s22\ns_lshl_b32 s23, s23, 10\nv_lshl_add_u32 v8, v1, 4, s23")
        for i in range(1, ND): a(f"v_add_u32 v{8+i}, {68*1024*i}, v8")
        a(f"""
        s_mul_i32 s37, s22, {1024*ND}
        s_add_u32 s37, s37, 8192
        s_add_u32 s38, s37, {s.SLOT*s.S}
        s_lshl_b32 s23, s52, 10
        s_add_u32 s23, s23, {F3}
        v_lshl_add_u32 v16, v1, 7, s23
        s_lshr_b32 s23, s51, 2
        s_lshl_b32 s23, s23, 11
        s_lshr_b32 s26, s52, 1
        s_mul_i32 s26, s26, {160*128}
        s_add_u32 s23, s23, s26
        s_add_u32 s23, s23, {F4}
        v_lshl_add_u32 v17, v1, 7, s23
        s_mov_b32 s34, 0
        s_mov_b32 s36, 48
        s_mov_b32 s33, 0
        """)
        srd(a, 8, 20, UW_SZ, UW_OFF)
    def loader_d(s, a):
        AH, AA, GB, ND = s.AH, s.AA, s.GB, s.ND
        s.setup_d(a)
        a.label(f"Lp2_d{s.tag}e")
        if s.par: gate(a, 16, 0xff); a("s_barrier")
        else: a("s_barrier"); gate(a, 16, 0xff)
        a.label(f"Lp2_d{s.tag}k")
        stamp(a, 3)
        def issue():
            a(("s_and_b32 s41, s34, 1\ns_lshl_b32 s41, s41, 1" if opt("uwrap") else "s_lshl_b32 s41, s34, 1") + "\ns_add_u32 s41, s41, s36\ns_lshl_b32 s41, s41, 10")
            for i in range(ND): a(f"s_add_u32 m0, s37, {1024*i}\nbuffer_load_dwordx4 v{8+i}, s[8:11], s41 offen {'' if opt('uplain') else SC} lds")
            a(s.adv())
        s.first(a, ND, issue)()
        steady(a, 10, ND, AA, issue)
        for j in range(10 - AA, GB): a(f"s_waitcnt vmcnt({ND*(9-j)})\ns_barrier")
        a("s_mov_b32 s36, 0\n" + s.phase_b())
        gate(a, 17, 0x0fff if ND == 4 else 0x0fff0fff)
        stamp(a, 4)
        issue_n(a, GB + AH - 10, issue)
        steady(a, 34, ND, AH, issue)
        stamp(a, 5)
        drain(a, ND, AH)
        endp(a)
    def consumer1(s, a):
        ND = s.ND; L = f"Lp2{s.tag}"
        ACB = 16; ACA = ACB + 4 * ND; KS = 4 + 4 * ND; SETS = (ACA + 4 * ND, ACA + 4 * ND + 2 * KS)
        a(f"""
        s_load_dwordx2 s[24:25], s[0:1], {KA['b2']}
        s_load_dwordx2 s[28:29], s[0:1], {KA['out']}
        s_lshl_b32 s23, s50, 6
        s_lshl_b32 s26, s3, 4
        s_add_u32 s23, s23, s26
        v_and_b32 v2, 15, v1
        v_add_u32 v2, s23, v2
        v_lshlrev_b32 v3, 1, v2
        v_lshlrev_b32 v4, 3, v2
        s_waitcnt lgkmcnt(0)
        """)
        srd(a, 24, 24, 4096); srd(a, 8, 20, G_SZ, G_OFF); srd(a, 28, 28, S_ * 1280)
        a(f"""
        buffer_load_ushort v10, v3, s[24:27], 0 offen
        s_setprio 0
        v_lshrrev_b32 v5, 2, v1
        v_lshrrev_b32 v6, 1, v5
        v_and_b32 v6, 3, v6
        v_xor_b32 v6, s3, v6
        v_lshlrev_b32 v6, 5, v6
        v_lshl_add_u32 v5, v5, 7, v6
        v_and_b32 v6, 3, v1
        v_lshl_add_u32 v8, v6, 3, v5
        v_lshlrev_b32 v9, 4, v1
        v_add_u32 v9, 8192, v9
        v_mul_u32_u24 v12, 1280, v2
        v_lshrrev_b32 v6, 4, v1
        v_lshl_add_u32 v12, v6, 3, v12
        s_lshl_b32 s26, s51, 5
        v_add_u32 v12, s26, v12
        s_lshl_b32 s26, s3, 10
        v_lshl_add_u32 v13, v1, 3, s26
        v_and_b32 v14, 1, v6
        v_mul_u32_u24 v14, 24, v14
        v_add_u32 v14, v14, v12
        """)
        for i in range(4 * ND): a(f"v_mov_b32 v{ACA+i}, 0")
        def reads(st, ph="b"):
            r = []
            for kk in range(2):
                b = SETS[st] + KS * kk
                if ph == "a": r += [(f"ds_read_b64 {v(b,2)}, v13 offset:{kk*4096}", (kk, "b0")), (f"ds_read_b64 {v(b+2,2)}, v13 offset:{kk*4096+512}", (kk, "b1"))]
                else: r += [(f"ds_read_b64_tr_b16 {v(b,2)}, v8 offset:{kk*4096}", (kk, "b0")), (f"ds_read_b64_tr_b16 {v(b+2,2)}, v8 offset:{kk*4096+2048}", (kk, "b1"))]
                r += [(f"ds_read_b128 {v(b+4+4*dt,4)}, v9 offset:{(kk*ND+dt)*1024}", (kk, dt)) for dt in range(ND)]
            return r
        def mf(acc, st):
            return [(f"v_mfma_f32_16x16x32_bf16 {v(acc+4*dt,4)}, {v(SETS[st]+KS*kk+4+4*dt,4)}, {v(SETS[st]+KS*kk,4)}, {v(acc+4*dt,4)}", {(kk, "b1"), (kk, dt)}) for kk in range(2) for dt in range(ND)]
        ids = [x[1] for x in reads(0)]
        adv = slot_adv(s.SLOT, s.S) + ["v_add_u32 v8, s40, v8", "v_add_u32 v9, s40, v9"]
        a("s_mov_b32 s33, 0\ns_mov_b32 s37, 0\ns_barrier"); stamp(a, 5, True)
        adva = adv + ["v_add_u32 v13, s40, v13"]
        emit_step(a, [], [], reads(0, "a"), adva)
        a.label(f"{L}_ca", 3)
        a("s_barrier")
        emit_step(a, mf(ACA, 0), ids, reads(1, "a"), adva + ["s_add_u32 s33, s33, 2", "s_cmp_ge_u32 s33, 10"])
        a(f"s_barrier\ns_cbranch_scc1 {L}_cax")
        emit_step(a, mf(ACA, 1), ids, reads(0, "a"), adva)
        a(f"s_branch {L}_ca")
        a.label(f"{L}_cax")
        emit_step(a, mf(ACA, 1), ids, reads(0, "b"), adv)
        a(f"s_waitcnt vmcnt(0)\nbuffer_load_dwordx2 v[6:7], v4, s[8:11], 0 offen {SC}\nv_lshlrev_b32 v10, 16, v10")
        for i in range(4 * ND): a(f"v_mov_b32 v{ACB+i}, v10")
        a.label(f"{L}_cb", 3)
        a("s_barrier")
        emit_step(a, mf(ACB, 0), ids, reads(1), adv + ["s_add_u32 s33, s33, 2", "s_cmp_ge_u32 s33, 34"])
        a(f"s_cbranch_scc1 {L}_clast\ns_barrier")
        emit_step(a, mf(ACB, 1), ids, reads(0), adv)
        a(f"s_branch {L}_cb")
        a.label(f"{L}_clast")
        emit_step(a, mf(ACB, 1), ids, [], [])
        stamp(a, 6)
        a(f"""
        s_mov_b32 s49, 0
        {L}_g:
        s_waitcnt vmcnt(0)
        v_cmp_ne_u32 vcc, s48, v7
        s_add_u32 s49, s49, 1
        s_cmp_eq_u64 vcc, 0
        s_cbranch_scc1 {L}_gk
        buffer_load_dwordx2 v[6:7], v4, s[8:11], 0 offen {SC}
        s_cmp_lt_u32 s49, 20000
        s_cbranch_scc1 {L}_g
        s_waitcnt vmcnt(0)
        {L}_gk:
        """)
        aux = 'sc1' if opt('osc1') else ''; O = SETS[0]
        for dt in range(ND):
            for r in range(0, 4, 2): a(f"v_pk_add_f32 {v(ACA+4*dt+r,2)}, {v(ACA+4*dt+r,2)}, {v(ACB+4*dt+r,2)} neg_lo:[0,1] neg_hi:[0,1]")
            for r in range(0, 4, 2): a(f"v_pk_fma_f32 {v(ACB+4*dt+r,2)}, {v(ACA+4*dt+r,2)}, v[6:7], {v(ACB+4*dt+r,2)} op_sel_hi:[1,0,1]")
            a(f"v_cvt_pk_bf16_f32 v{O+2*dt}, v{ACB+4*dt}, v{ACB+4*dt+1}\nv_cvt_pk_bf16_f32 v{O+1+2*dt}, v{ACB+4*dt+2}, v{ACB+4*dt+3}")
            if dt & 1:
                b = O + 2 * (dt - 1)
                a(f"v_permlane16_swap_b32 v{b}, v{b+2}\nv_permlane16_swap_b32 v{b+1}, v{b+3}\nbuffer_store_dwordx4 {v(b,4)}, v14, s[28:31], 0 offen offset:{32*(dt-1)} {aux}")
            elif dt == ND - 1: a(f"buffer_store_dwordx2 {v(O+2*dt,2)}, v12, s[28:31], 0 offen offset:{32*dt} {aux}")
        endp(a)
    def consumer(s, a):
        if s.ND % 2: return s.consumer1(a)
        ND = s.ND; NH = ND // 2; L = f"Lp2{s.tag}"
        ACB = 20; ACA = ACB + 8 * NH; KS = 8 + 4 * NH; SETS = (ACA + 8 * NH, ACA + 8 * NH + 2 * KS)
        a(f"""
        s_load_dwordx2 s[24:25], s[0:1], {KA['b2']}
        s_load_dwordx2 s[28:29], s[0:1], {KA['out']}
        s_and_b32 s27, s3, 2
        s_lshl_b32 s23, s50, 6
        s_lshl_b32 s26, s27, 4
        s_add_u32 s23, s23, s26
        v_and_b32 v2, 15, v1
        v_add_u32 v2, s23, v2
        v_lshlrev_b32 v3, 1, v2
        v_lshlrev_b32 v4, 3, v2
        s_and_b32 s22, s3, 1
        s_mul_i32 s22, s22, {NH}
        v_lshrrev_b32 v5, 2, v1
        v_lshrrev_b32 v6, 1, v5
        v_and_b32 v6, 3, v6
        v_xor_b32 v6, s27, v6
        v_lshlrev_b32 v6, 5, v6
        v_lshl_add_u32 v5, v5, 7, v6
        v_and_b32 v6, 3, v1
        v_lshl_add_u32 v8, v6, 3, v5
        v_xor_b32 v15, 32, v8
        s_lshl_b32 s23, s22, 10
        s_add_u32 s23, s23, 8192
        v_lshl_add_u32 v9, v1, 4, s23
        s_lshl_b32 s23, s27, 10
        v_lshl_add_u32 v13, v1, 3, s23
        v_mul_u32_u24 v12, 1280, v2
        v_lshrrev_b32 v6, 4, v1
        v_lshl_add_u32 v12, v6, 3, v12
        s_add_u32 s23, s22, s51
        s_lshl_b32 s23, s23, 5
        v_add_u32 v12, s23, v12
        v_and_b32 v14, 1, v6
        v_mul_u32_u24 v14, 24, v14
        v_add_u32 v14, v14, v12
        s_waitcnt lgkmcnt(0)
        """)
        srd(a, 24, 24, 4096); srd(a, 8, 20, G_SZ, G_OFF); srd(a, 28, 28, S_ * 1280)
        a("buffer_load_ushort v10, v3, s[24:27], 0 offen\nbuffer_load_ushort v11, v3, s[24:27], 0 offen offset:32\ns_setprio 0")
        for i in range(8 * NH): a(f"v_mov_b32 v{ACA+i}, 0")
        def reads(st, ph="b"):
            r = []
            for kk in range(2):
                b = SETS[st] + KS * kk
                def bread(t):
                    if ph == "a": return [(f"ds_read_b64 {v(b+4*t+2*h,2)}, v13 offset:{kk*4096+1024*t+512*h}", (kk, "b", t, h)) for h in range(2)]
                    return [(f"ds_read_b64_tr_b16 {v(b+4*t+2*h,2)}, v{(8, 15)[t]} offset:{kk*4096+2048*h}", (kk, "b", t, h)) for h in range(2)]
                r += bread(0) + [(f"ds_read_b128 {v(b+8+4*dt,4)}, v9 offset:{(kk*ND+dt)*1024}", (kk, dt)) for dt in range(NH)] + bread(1)
            return r
        def mf(acc, st):
            return [(f"v_mfma_f32_16x16x32_bf16 {v(acc+4*(NH*t+dt),4)}, {v(SETS[st]+KS*kk+8+4*dt,4)}, {v(SETS[st]+KS*kk+4*t,4)}, {v(acc+4*(NH*t+dt),4)}", {(kk, "b", t, 1), (kk, dt)})
                    for kk in range(2) for t in range(2) for dt in range(NH)]
        ids = [x[1] for x in reads(0)]
        adv = slot_adv(s.SLOT, s.S) + ["v_add_u32 v8, s40, v8", "v_add_u32 v15, s40, v15", "v_add_u32 v9, s40, v9"]
        a("s_mov_b32 s33, 0\ns_mov_b32 s37, 0\ns_barrier"); stamp(a, 5, True)
        adva = adv + ["v_add_u32 v13, s40, v13"]
        emit_step(a, [], [], reads(0, "a"), adva)
        a.label(f"{L}_ca", 3)
        a("s_barrier")
        emit_step(a, mf(ACA, 0), ids, reads(1, "a"), adva + ["s_add_u32 s33, s33, 2", "s_cmp_ge_u32 s33, 10"])
        a(f"s_barrier\ns_cbranch_scc1 {L}_cax")
        emit_step(a, mf(ACA, 1), ids, reads(0, "a"), adva)
        a(f"s_branch {L}_ca")
        a.label(f"{L}_cax")
        emit_step(a, mf(ACA, 1), ids, reads(0, "b"), adv)
        gl = f"buffer_load_dwordx2 v[16:17], v4, s[8:11], 0 offen {SC}\nbuffer_load_dwordx2 v[18:19], v4, s[8:11], 0 offen offset:128 {SC}"
        a(f"s_waitcnt vmcnt(0)\n{gl}\nv_lshlrev_b32 v10, 16, v10\nv_lshlrev_b32 v11, 16, v11")
        for i in range(8 * NH): a(f"v_mov_b32 v{ACB+i}, v{10 + i // (4 * NH)}")
        a.label(f"{L}_cb", 3)
        a("s_barrier")
        emit_step(a, mf(ACB, 0), ids, reads(1), adv + ["s_add_u32 s33, s33, 2", "s_cmp_ge_u32 s33, 34"])
        a(f"s_cbranch_scc1 {L}_clast\ns_barrier")
        emit_step(a, mf(ACB, 1), ids, reads(0), adv)
        a(f"s_branch {L}_cb")
        a.label(f"{L}_clast")
        emit_step(a, mf(ACB, 1), ids, [], [])
        stamp(a, 6)
        a(f"""
        s_mov_b32 s49, 0
        s_mov_b32 s22, {16*1280}
        {L}_g:
        s_waitcnt vmcnt(0)
        v_cmp_ne_u32 vcc, s48, v17
        v_cmp_ne_u32 s[26:27], s48, v19
        s_add_u32 s49, s49, 1
        s_or_b64 vcc, vcc, s[26:27]
        s_cbranch_scc0 {L}_gk
        {gl}
        s_cmp_lt_u32 s49, 20000
        s_cbranch_scc1 {L}_g
        s_waitcnt vmcnt(0)
        {L}_gk:
        """)
        O = SETS[0]
        for t in range(2):
            so = "s22" if t else "0"
            for dt in range(NH):
                x = 4 * (NH * t + dt); o = O + 8 * t + 2 * dt
                for r in (0, 2): a(f"v_pk_add_f32 {v(ACA+x+r,2)}, {v(ACA+x+r,2)}, {v(ACB+x+r,2)} neg_lo:[0,1] neg_hi:[0,1]")
                for r in (0, 2): a(f"v_pk_fma_f32 {v(ACB+x+r,2)}, {v(ACA+x+r,2)}, {v(16+2*t,2)}, {v(ACB+x+r,2)} op_sel_hi:[1,0,1]")
                a(f"v_cvt_pk_bf16_f32 v{o}, v{ACB+x}, v{ACB+x+1}\nv_cvt_pk_bf16_f32 v{o+1}, v{ACB+x+2}, v{ACB+x+3}")
                if dt == 1:
                    b = o - 2
                    a(f"v_permlane16_swap_b32 v{b}, v{b+2}\nv_permlane16_swap_b32 v{b+1}, v{b+3}\nbuffer_store_dwordx4 {v(b,4)}, v14, s[28:31], {so} offen")
                elif dt == 2: a(f"buffer_store_dwordx2 {v(o,2)}, v12, s[28:31], {so} offen offset:64")
        endp(a)

def gen_main(a, name):
    kernel_head(a, name)
    if PROF:
        for i in range(1, 8): a(f"s_mov_b64 s[{70+2*i}:{71+2*i}], 0")
        stamp(a, 0); a("s_memtime s[66:67]")
    a(f"""
    s_cmp_ge_u32 s2, 256
    s_cbranch_scc1 Lend
    {"s_and_b32 s22, s2, 7" + chr(10) + "s_lshl_b32 s22, s22, 5" + chr(10) + "s_lshr_b32 s2, s2, 3" + chr(10) + "s_or_b32 s2, s2, s22" if opt("perm") else ""}
    s_load_dwordx2 s[20:21], s[0:1], {KA['ws']}
    v_lshrrev_b32 v1, 6, v0
    v_readfirstlane_b32 s3, v1
    v_and_b32 v1, 63, v0
    {"s_and_b32 s52, s2, 3" + chr(10) + "s_lshl_b32 s52, s52, 1" + chr(10) + "s_bfe_u32 s53, s2, 0x10002" + chr(10) + "s_or_b32 s52, s52, s53" if opt("lo") else "s_and_b32 s52, s2, 7"}
    s_lshr_b32 s53, s2, 3
    s_lshr_b32 s22, s52, 1
    s_lshl_b32 s50, s22, 3
    s_and_b32 s23, s53, 7
    s_add_u32 s50, s50, s23
    s_lshr_b32 s26, s53, 3
    """)
    if PROF: a("s_mov_b32 s69, s3")
    NG = 15 if opt("mixed") else 30
    a("s_cmp_ge_u32 s53, 16\ns_cbranch_scc1 Lrole_qa" if opt("mixed") else "s_bitcmp1_b32 s52, 0\ns_cbranch_scc1 Lrole_qa")
    PE, PO = P2(0), P2(1)
    MX = opt("mix", 0)
    a(f"s_and_b32 s54, s23, {MX}\ns_cselect_b32 s51, 5, {PE.ND}\ns_mul_i32 s51, s51, s26")
    a(f"""
    {"s_lshl_b32 s19, s52, 4" if opt("mixed") else "s_lshl_b32 s19, s22, 5"}
    s_add_u32 s19, s19, s53
    s_mul_i32 s17, s53, 86
    s_lshr_b32 s17, s17, 8
    s_mul_i32 s23, s17, 3
    s_sub_u32 s23, s53, s23
    s_mul_i32 s16, s22, 3
    s_add_u32 s16, s16, s23
    """)
    if opt("mixed"): a("s_and_b32 s26, s52, 1\ns_mul_i32 s26, s26, 5\ns_add_u32 s17, s17, s26")
    if opt("sweep"): a("s_mov_b32 s18, 0")
    else: a("s_mul_i32 s18, s17, 205\ns_lshr_b32 s18, s18, 6")
    a("s_cmp_ge_u32 s3, 4\ns_cbranch_scc1 Lg_cons\ns_setprio 1\ns_cmp_ge_u32 s3, 2\ns_cbranch_scc1 Lg_h")
    def flags():
        a(f"s_waitcnt lgkmcnt(0)"); srd(a, 44, 20, FL_SZ, FL_OFF); a(f"s_load_dword s48, s[44:45], {FZ}")
    a(f"s_load_dwordx2 s[4:5], s[0:1], {KA['w1']}"); flags()
    a(f"s_cmp_ge_u32 s53, {NG}\ns_cbranch_scc1 Lsp_w")
    g1_loader_w(a)
    a.label("Lsp_w")
    if opt("sweep"): w1_sweep(a)
    else: a("s_barrier"); tag_ready(a); a("s_barrier")
    a.label("Lsp_l"); a("s_mov_b32 s16, s52" if opt("mixed") else "s_lshr_b32 s16, s52, 1\ns_lshl_b32 s16, s16, 1\ns_add_u32 s16, s16, s53\ns_sub_u32 s16, s16, 30"); spare_loader(a)
    a("s_cmp_ge_u32 s3, 2\ns_cbranch_scc1 Lp2_d0\ns_branch Lp2_s0")
    a.label("Lg_h"); code_prefetch(a)
    if opt("mixed"):
        a(f"s_load_dwordx2 s[4:5], s[0:1], {KA['w1']}"); flags(); w1_sweep(a)
        a("s_cmp_ge_u32 s53, 15\ns_cbranch_scc1 Lsp_l")
    else:
        flags(); a("s_cmp_lt_u32 s53, 30\ns_cbranch_scc1 Lg_h2\ns_barrier"); tag_ready(a); a("s_barrier\ns_branch Lsp_l")
    a.label("Lg_h2"); g1_loader_h(a)
    a.label("Lg_cons")
    a(f"s_setprio 2\ns_load_dwordx2 s[4:5], s[0:1], {KA['x']}\ns_load_dwordx2 s[8:9], s[0:1], {KA['gw']}\ns_sub_u32 s3, s3, 4")
    ln_issue(a)
    srd(a, 44, 20, FL_SZ, FL_OFF)
    a(f"v_mov_b32 v2, {CTR}\nv_mov_b32 v6, 0\nv_mov_b32 v7, 0\nv_mov_b32 v8, 0\nv_mov_b32 v9, 0\nds_write_b128 v2, v[6:9]\ns_waitcnt lgkmcnt(0)\ns_barrier\ns_load_dword s48, s[44:45], {FZ}")
    ln_finish(a); stamp(a, 1, True)
    a(f"s_cmp_ge_u32 s53, {NG}\ns_cbranch_scc1 Lsp_cons")
    g1_consumer(a); a("s_branch Lp2_c0")
    a.label("Lsp_cons")
    if (opt("sweep") and not opt("noslowcol")):
        R0, SW = opt("sc0", 1024), opt("scw", 1)
        a(f"""
        s_load_dwordx2 s[4:5], s[0:1], {KA['w1']}
        s_lshr_b32 s22, s52, 1
        s_cmp_eq_u32 s22, 2
        s_cselect_b32 s23, 4, s3
        s_cmp_ge_u32 s23, {SW}
        s_cbranch_scc1 Lsc_done
        s_min_u32 s22, s22, 2
        s_lshl_b32 s22, s22, 10
        s_add_u32 s22, s22, {384 + R0 * 3072}
        s_and_b32 s23, s53, 1
        s_mul_i32 s23, s23, {SW}
        s_add_u32 s23, s23, s3
        s_lshl_b32 s23, s23, 6
        v_add_u32 v2, s23, v1
        v_mul_u32_u24 v2, 3072, v2
        s_mov_b32 s33, 0
        s_waitcnt lgkmcnt(0)
        """)
        srd(a, 4, 4, S_ * 3072)
        a(f"Lsc_l:\nbuffer_load_dword v3, v2, s[4:7], s22 offen\ns_add_u32 s22, s22, {128*SW*3072}\ns_add_u32 s33, s33, 1\ns_cmp_lt_u32 s33, {-(-(2048-R0)//(128*SW))}\ns_waitcnt vmcnt(0)\ns_cbranch_scc1 Lsc_l\nLsc_done:\ns_waitcnt lgkmcnt(0)")
    a("s_barrier")
    nw, r0, nr = opt("cw", 2), opt("cr0", 384), opt("cnr", 768)
    if nw:
        a(f"""
        s_cmp_ge_u32 s3, {nw}
        s_cbranch_scc1 Lc3_d
        s_load_dwordx2 s[12:13], s[0:1], {KA['w2']}
        s_lshr_b32 s22, s50, 1
        s_lshl_b32 s22, s22, 11
        s_add_u32 s22, s22, {F2}
        v_mov_b32 v12, s22
        """)
        gate(a, 12, 1)
        a(f"""
        s_and_b32 s22, s53, 1
        s_mul_i32 s22, s22, {nw}
        s_add_u32 s22, s22, s3
        s_lshl_b32 s22, s22, 6
        v_add_u32 v2, s22, v1
        v_lshlrev_b32 v2, 12, v2
        s_lshr_b32 s22, s52, 1
        s_lshl_b32 s22, s22, 10
        s_add_u32 s22, s22, {384 + r0 * 4096}
        s_mov_b32 s33, 0
        s_waitcnt lgkmcnt(0)
        """)
        srd(a, 12, 12, F_ * 4096)
        a(f"Lc3_l:\nbuffer_load_dword v30, v2, s[12:15], s22 offen\ns_add_u32 s22, s22, {128*nw*4096}\ns_add_u32 s33, s33, 1\ns_cmp_lt_u32 s33, {nr//(128*nw)}\ns_waitcnt vmcnt(0)\ns_cbranch_scc1 Lc3_l\nLc3_d:")
    a("s_lshl_b32 s22, s3, 8\ns_add_u32 s22, s22, s2\ns_cmp_lg_u32 s22, 240\ns_cbranch_scc1 Lp2_c0"); step_tag(a); a("s_branch Lp2_c0")
    a.label("Lrole_qa")
    a(f"s_and_b32 s54, s23, {MX}\ns_cselect_b32 s51, 5, {PO.ND}\ns_cselect_b32 s27, 20, {4*PE.ND}\ns_mul_i32 s51, s51, s26\ns_add_u32 s51, s51, s27")
    if opt("mixed"): a("s_and_b32 s23, s53, 3\ns_lshl_b32 s16, s22, 2\ns_add_u32 s16, s16, s23\ns_lshr_b32 s26, s53, 2\ns_and_b32 s26, s26, 3\ns_and_b32 s17, s52, 1\ns_lshl_b32 s17, s17, 2\ns_add_u32 s17, s17, s26")
    else: a(f"""
    s_and_b32 s16, s22, 1
    s_lshl_b32 s16, s16, 3
    s_add_u32 s16, s16, s23
    s_lshr_b32 s17, s22, 1
    s_lshl_b32 s17, s17, 2
    s_add_u32 s17, s17, s26
    """)
    if opt("nsq"): a("s_mov_b32 s18, 0")
    elif opt("mixed"): a("s_add_u32 s18, s26, s23\ns_and_b32 s18, s18, 3\ns_mul_i32 s18, s18, 10\ns_lshr_b32 s18, s18, 2")
    else: a("s_lshl_b32 s18, s26, 1\ns_add_u32 s18, s18, s23\ns_and_b32 s18, s18, 7\ns_mul_i32 s18, s18, 10\ns_lshr_b32 s18, s18, 3")
    a(f"s_cmp_ge_u32 s3, 4\ns_cbranch_scc1 Lq_cons\ns_setprio 1\ns_cmp_eq_u32 s3, 3\ns_cbranch_scc1 Lq_idle")
    a(f"s_load_dwordx2 s[4:5], s[0:1], {KA['x']}\ns_load_dwordx2 s[8:9], s[0:1], {KA['wqkv']}"); qa_w1_sweep(a); flags(); qa_loader(a)
    a("s_cmp_ge_u32 s3, 2\ns_cbranch_scc1 Lp2_d1\ns_branch Lp2_s1")
    a.label("Lq_idle"); a(f"s_load_dwordx2 s[4:5], s[0:1], {KA['x']}\ns_load_dwordx2 s[8:9], s[0:1], {KA['wqkv']}"); flags(); qa_idle(a); a("s_branch Lp2_d1")
    a.label("Lq_cons"); a("s_sub_u32 s3, s3, 4"); flags()
    qa_consumer(a)
    for p in (PO, PE):
        for k, f in (("c", P2.consumer), ("s", P2.loader_s), ("d", P2.loader_d)):
            a.label(f"Lp2_{k}{p.par}")
            if MX: a(f"s_cmp_lg_u32 s54, 0\ns_cbranch_scc1 Lp2_{k}{p.par}x")
            f(p, a)
            if MX: a.label(f"Lp2_{k}{p.par}x"); f(P2(p.par, 5), a)
    a.label("Lend"); a("s_endpgm")
    a.raw("Lcode_end:")
    return kernel_desc(name, 256, 102)

def gen_osc(a, name):
    kernel_head(a, name)
    o = next(o for o in OPTS if o.startswith("osc"))[3:].split("_")
    a(f"s_cmp_ge_u32 s2, 1\ns_cbranch_scc1 Losc_end\ns_load_dwordx2 s[4:5], s[0:1], {KA['ws']}\ns_waitcnt lgkmcnt(0)")
    srd(a, 4, 4, 0x100000, TL_OFF + (0x80000 if opt("pthr") else 0x40000))
    def red(dst, base, stride, count, wave, slot, op):
        n = -(-count // 64)
        for i in range(n):
            a(f"v_add_u32 v1, {64*i}, v0\nv_min_u32 v1, {count-1}, v1\nv_mul_u32_u24 v1, {stride}, v1\nv_add_u32 v1, {base}, v1\nv_lshlrev_b32 v1, 9, v1\ns_mov_b32 s8, {wave*64 + slot*4}")
            a(f"buffer_load_dword v{4+i}, v1, s[4:7], s8 offen")
        a("s_waitcnt vmcnt(0)")
        if op == "add":
            for i in range(n): a(f"v_subrev_u32 v{4+i}, s20, v{4+i}")
        for i in range(1, n): a(f"v_{op}_u32 v4, v4, v{4+i}")
        a(f"v_readlane_b32 s{dst}, v4, 0")
        for i in range(1, 64): a(f"v_readlane_b32 s9, v4, {i}\ns_nop 0\ns_{op}_u32 s{dst}, s{dst}, s9")
        if op == "add": a(f"s_lshr_b32 s{dst}, s{dst}, {(64*n).bit_length()-1}\ns_add_u32 s{dst}, s{dst}, s20")
    red(20, 0, 1, 256, 0, 0, "min")
    if len(o) > 1:
        red(21, int(o[0]), int(o[1]), int(o[2]), int(o[3]), int(o[4]), dict(n="min", x="max", a="add")[o[5]])
        a("s_sub_u32 s21, s21, s20\ns_min_u32 s21, s21, 20000\ns_lshl_b32 s21, s21, 2")
    else: a("s_mov_b32 s21, 0")
    a("s_add_u32 s21, s21, 10000\nLosc_spin:\ns_memrealtime s[10:11]\ns_waitcnt lgkmcnt(0)\ns_sub_u32 s10, s10, s20\ns_cmp_lt_u32 s10, s21\ns_cbranch_scc1 Losc_spin")
    a.label("Losc_end"); a("s_endpgm")
    return kernel_desc(name, 16, 32)

def gen_probe(a, name, vg):
    kernel_head(a, name)
    a(f"s_memrealtime s[70:71]\ns_cmp_ge_u32 s2, 256\ns_cbranch_scc1 Lpr_end\ns_load_dwordx2 s[4:5], s[0:1], {KA['ws']}\ns_waitcnt lgkmcnt(0)")
    srd(a, 4, 4, 0x100000, TL_OFF + 0x80000)
    a("s_lshl_b32 s8, s2, 9\nv_mov_b32 v1, s8\nv_mov_b32 v2, s70\nv_cmp_eq_u32 vcc, 0, v0\ns_and_saveexec_b64 s[10:11], vcc\ns_cbranch_execz Lpr_end\nbuffer_store_dword v2, v1, s[4:7], 0 offen")
    a.label("Lpr_end"); a("s_endpgm")
    return kernel_desc(name, vg, 102)

def build(spec=""):
    global PROF
    OPTS[:] = [o for o in spec.split("+") if o]; PROF = bool(opt("prof")); UID[0] = 0
    ref = open(f"cdna_kernels/{NAME}.s.ref").read().split("\n")
    head = ref[:ref.index(next(x for x in ref if x.startswith("; Override")))]
    a = Asm(); a.raw("\n".join(head))
    if opt("lo"): a.raw("; lo")
    osc = any(o.startswith("osc") and o != "osc1" for o in OPTS)
    if opt("pthr"): a.raw(f"; @launch kernel=probe_kernel grid=(256,1,1) block=({opt('pthr')},1,1) lds={opt('plds', 0)}")
    if osc: a.raw(f"; @launch kernel={NAME}_kernel grid=(256,1,1) block=(512,1,1) lds={LDS_SZ}\n; @launch kernel=osc_kernel grid=(1,1,1) block=(64,1,1) lds=0")
    else: a.raw(f"; @launch grid=(256,1,1) block=(512,1,1) lds={LDS_SZ}")
    a.raw('.amdgcn_target "amdgcn-amd-amdhsa--gfx950"')
    d = gen_main(a, NAME + "_kernel")
    if osc: d += gen_osc(a, "osc_kernel")
    if opt("pthr"): d += gen_probe(a, "probe_kernel", opt("pvg"))
    if opt("nocomp"): a.lines = [(t, c) for t, c in a.lines if not (c is not None and (c.kind == "mfma" or c.op.startswith("ds_read")))]
    if opt("noload"): a.lines = [(t, c) for t, c in a.lines if not (c is not None and c.kind == "vmem" and c.lds)]
    if opt("nomfma"): a.lines = [(t, c) for t, c in a.lines if not (c is not None and c.kind == "mfma")]
    if opt("nods"): a.lines = [(t, c) for t, c in a.lines if not (c is not None and c.op.startswith("ds_read"))]
    if opt("nowait"): a.lines = [(t, c) for t, c in a.lines if not (c is not None and c.op == "s_waitcnt" and "lgkm" in t and "(0)" not in t)]
    if opt("al"): a.align_hot([("Lg1_c", "Lg1_clast"), ("Lp2_ca", "Lp2_cax"), ("Lp2_cb", "Lp2_clast")])
    if opt("lp") is not None: a.lines = [((t.replace("s_setprio 1", f"s_setprio {opt('lp')}"), c) if c is not None and c.op == "s_setprio" else (t, c)) for t, c in a.lines]
    bad = a.check_branches()
    for b in bad: print("HAZARD across branch:", b, file=sys.stderr)
    assert not bad
    a.raw(d)
    return a.text()

if __name__ == "__main__":
    open(sys.argv[2] if len(sys.argv) > 2 else f"cdna_kernels/{NAME}.s", "w").write(build(sys.argv[1] if len(sys.argv) > 1 else ""))
```

```python
import sys, struct
from dsl import *

NAME = "gated_mix__sliding_local_dilated__mixer_token_mlp__prompt"
S_, D_, F_ = 2048, 640, 1536
KA = dict(x=0, wqkv=8, wo=16, w1=32, b1=40, w2=48, b2=56, gw=64, out=72, dbg=80, ws=88)
H_OFF, OT_OFF, UW_OFF, G_OFF, FL_OFF = 0, 0x280000, 0x500000, 0x800000, 0x810000
H_SZ, OT_SZ, UW_SZ, G_SZ, FL_SZ = 2621440, 2621440, 40 * 68 * 1024, 16384, 0x70000
F1, F2, F4, FZ, F3 = 0, 0x20000, 0x28000, 0x40000, 0x50000
RING = 163840; CTR = RING - 64; LDS_SZ = RING
LOG2E = 1.4426950408889634
OPTS = []; PROF = False; TL_OFF = 0x1000000
SC = "sc1"
def f2u(x): return "0x%08x" % struct.unpack("<I", struct.pack("<f", x))[0]
def v(n, k=1): return f"v{n}" if k == 1 else f"v[{n}:{n+k-1}]"
def opt(name, default=None):
    for o in OPTS:
        if o == name: return True
        if o.startswith(name + "="): return int(o.split("=")[1])
    return default

def srd(a, d, base, size, off=0):
    if off: a(f"s_add_u32 s{d}, s{base}, {off}\ns_addc_u32 s{d+1}, s{base+1}, 0")
    elif d != base: a(f"s_mov_b32 s{d}, s{base}\ns_mov_b32 s{d+1}, s{base+1}")
    a(f"s_mov_b32 s{d+2}, {size}\ns_mov_b32 s{d+3}, 0x20000")

def estamp(a, i):
    if PROF and opt("early"): a(f"s_memrealtime s[{70+2*i}:{71+2*i}]\ns_waitcnt lgkmcnt(0)")
def lstamp(a, i):
    if PROF and opt("late"): a(f"s_memrealtime s[{70+2*i}:{71+2*i}]\ns_waitcnt lgkmcnt(0)")
def stamp(a, i, wait=False):
    if PROF and opt("clk"):
        k = {2: 1, 3: 3, 6: 5}.get(i)
        if i == 0: a("s_memrealtime s[70:71]")
        elif k and (wait or i == 6): a(f"s_memrealtime s[{70+2*k}:{71+2*k}]\ns_memtime s[{72+2*k}:{73+2*k}]\ns_waitcnt lgkmcnt(0)")
        return
    if PROF and (i == 0 or not (opt("early") or opt("late"))): a(f"s_memrealtime s[{70+2*i}:{71+2*i}]" + ("\ns_waitcnt lgkmcnt(0)" if wait else ""))
def endp(a):
    if PROF:
        a(f"""
        s_waitcnt vmcnt(0)
        s_memrealtime s[84:85]
        s_memtime s[86:87]
        s_waitcnt lgkmcnt(0)
        s_sub_u32 s86, s86, s66
        s_add_u32 s60, s20, {TL_OFF + 0x40000}
        s_addc_u32 s61, s21, 0
        s_mov_b32 s62, 0x40000
        s_mov_b32 s63, 0x20000
        s_mov_b64 exec, 1
        s_lshl_b32 s64, s2, 3
        s_add_u32 s64, s64, s69
        s_lshl_b32 s64, s64, 6
        v_mov_b32 v0, s64
        """)
        for i in range(8): a(f"v_mov_b32 v{4+i}, s{70+2*i}")
        a("v_mov_b32 v12, s86")
        a("buffer_store_dwordx4 v[4:7], v0, s[60:63], 0 offen\nbuffer_store_dwordx4 v[8:11], v0, s[60:63], 0 offen offset:16\nbuffer_store_dword v12, v0, s[60:63], 0 offen offset:32")
    a("s_endpgm")

def emit_step(a, M, prev_ids, R, extra, per_gap=2, head=2):
    q = list(prev_ids); fill = [("r", x) for x in R] + [("x", x) for x in extra]
    def put(n):
        for _ in range(n):
            if not fill: return
            k, x = fill.pop(0)
            if k == "r": a(x[0]); q.append(("n", x[1]))
            else: a(x)
    put(head)
    for text, need_ in M:
        idx = [i for i, t in enumerate(q) if t in need_]
        if idx:
            n = min(len(q) - 1 - idx[-1], 15)
            a(f"s_waitcnt lgkmcnt({n})"); del q[:len(q) - n]
        a(text); put(per_gap)
    put(len(fill))

def slot_adv(SLOT, S):
    return [f"s_add_u32 s40, s37, {SLOT}", f"s_cmp_ge_u32 s40, {SLOT*S}", "s_cselect_b32 s41, 0, s40", "s_sub_u32 s40, s41, s37", "s_mov_b32 s37, s41"]

def thr(name, default):
    t = opt("t" + name, default if opt("thr") else 0)
    return f"s_waitcnt vmcnt({t-1})\n" if t else ""
UID = [0]
def uid(p): UID[0] += 1; return f"{p}{UID[0]}"

def issue_n(a, n, issue):
    L = uid("Li")
    a(f"s_add_u32 s32, s33, {n}")
    a.label(L); issue()
    a(f"s_add_u32 s33, s33, 1\ns_cmp_lt_u32 s33, s32\ns_cbranch_scc1 {L}")
def steady(a, upto, n, ahead, issue):
    L = uid("Ls")
    a.label(L)
    a(f"s_waitcnt vmcnt({n*(ahead-1)})\ns_barrier"); issue()
    a(f"s_add_u32 s33, s33, 1\ns_cmp_lt_u32 s33, {upto}\ns_cbranch_scc1 {L}")
def drain(a, n, ahead):
    for k in range(ahead - 1, -1, -1): a(f"s_waitcnt vmcnt({n*k})\ns_barrier")

def publish(a, ctr, nw, vaddr, lanes, keep=0):
    L = uid("Lpub")
    a(f"""
    s_waitcnt vmcnt({keep})
    s_mov_b64 exec, 1
    v_mov_b32 v2, {CTR + ctr}
    v_mov_b32 v3, 1
    ds_add_rtn_u32 v3, v2, v3
    s_waitcnt lgkmcnt(0)
    v_readfirstlane_b32 s22, v3
    s_mov_b64 exec, {(1 << lanes) - 1}
    s_cmp_lg_u32 s22, {nw - 1}
    s_cbranch_scc1 {L}
    v_mov_b32 v3, s48
    buffer_store_dword v3, v{vaddr}, s[44:47], 0 offen {SC}
    """)
    a.label(L); a("s_mov_b64 exec, -1")
def gate(a, vaddr, mask, two=False):
    L = uid("Lg"); slp = "s_sleep %d" % opt("slp", 8) if opt("slp", 8) else ""
    a(f"s_mov_b32 s49, 0\ns_mov_b32 exec_lo, {mask & 0xffffffff}\ns_mov_b32 exec_hi, {mask >> 32}")
    a.label(L)
    if two: a(f"buffer_load_dword v2, v{vaddr}, s[44:47], 0 offen {SC}\ns_mov_b32 s22, {two}\nbuffer_load_dword v3, v{vaddr}, s[44:47], s22 offen {SC}\ns_waitcnt vmcnt(0)\nv_xor_b32 v2, s48, v2\nv_xor_b32 v3, s48, v3\nv_or_b32 v2, v2, v3")
    else: a(f"buffer_load_dword v2, v{vaddr}, s[44:47], 0 offen {SC}\ns_waitcnt vmcnt(0)\nv_xor_b32 v2, s48, v2")
    a(f"v_cmp_ne_u32 vcc, 0, v2\ns_add_u32 s49, s49, 1\ns_cmp_eq_u64 vcc, 0\ns_cbranch_scc1 {L}d\n{slp}\ns_cmp_lt_u32 s49, 20000\ns_cbranch_scc1 {L}")
    a.label(L + "d"); a("s_mov_b64 exec, -1")
def tag_ready(a):
    a("s_waitcnt lgkmcnt(0)\ns_mul_i32 s48, s48, 1664525\ns_add_u32 s48, s48, 1013904223")
def step_tag(a):
    a(f"v_lshlrev_b32 v12, 7, v1"); gate(a, 12, (1 << 64) - 1, two=8192)
    a(f"v_lshrrev_b32 v12, 3, v1\nv_lshlrev_b32 v12, 11, v12\nv_and_b32 v13, 7, v1\nv_lshl_add_u32 v12, v13, 7, v12\nv_add_u32 v12, {F2}, v12"); gate(a, 12, (1 << 64) - 1, two=16384)
    a(f"s_mov_b64 exec, 1\nv_mov_b32 v2, s48\nv_mov_b32 v3, {FZ}\nbuffer_store_dword v2, v3, s[44:47], 0 offen {SC}\ns_mov_b64 exec, -1")

def code_prefetch(a):
    if not opt("ncode"): return
    L = uid("Lpc")
    a(f"s_getpc_b64 s[30:31]\n{L}:\ns_sub_u32 s30, s30, {L}-{NAME}_kernel\ns_subb_u32 s31, s31, 0\nv_lshlrev_b32 v2, 7, v1")
    for i in range(opt("ncode", 0)):
        a(f"v_min_u32 v3, Lcode_end-{NAME}_kernel-4, v2\nglobal_load_dword v{40+i}, v3, s[30:31]\nv_add_u32 v2, 8192, v2")

def ln_issue(a):
    a(f"""
    s_lshl_b32 s22, s19, 4
    s_lshl_b32 s23, s3, 2
    s_add_u32 s22, s22, s23
    v_lshrrev_b32 v2, 4, v1
    v_add_u32 v10, s22, v2
    v_and_b32 v11, 15, v1
    v_lshlrev_b32 v4, 4, v11
    v_mul_u32_u24 v5, 1280, v10
    v_add_u32 v5, v5, v4
    s_waitcnt lgkmcnt(0)
    """)
    srd(a, 4, 4, H_SZ); srd(a, 8, 8, 1280)
    for i in range(5): a(f"buffer_load_dwordx4 {v(16+4*i,4)}, v5, s[4:7], 0 offen offset:{256*i}")
    for i in range(5): a(f"buffer_load_dwordx4 {v(36+4*i,4)}, v4, s[8:11], 0 offen offset:{256*i}")
def ln_finish(a):
    X, GW, U = 16, 36, 56
    srd(a, 4, 20, H_SZ, H_OFF); srd(a, 8, 20, G_SZ, G_OFF)
    a("s_mov_b32 s30, 0x3f803f80\ns_mov_b32 s31, 0xffff0000"); estamp(a, 1); a("s_waitcnt vmcnt(5)"); estamp(a, 2)
    a(f"v_dot2_f32_bf16 v6, v{X}, s30, 0\nv_dot2_f32_bf16 v8, v{X+1}, s30, 0")
    for i in range(2, 20): a(f"v_dot2_f32_bf16 v{6+2*(i&1)}, v{X+i}, s30, v{6+2*(i&1)}")
    for i in range(20): a(f"v_lshlrev_b32 v{U+2*i}, 16, v{X+i}\nv_and_b32 v{U+1+2*i}, s31, v{X+i}")
    def red(*rs):
        for sh in (8, 4, 2, 1):
            for r in rs: a(f"v_add_f32_dpp v{r}, v{r}, v{r} row_ror:{sh} row_mask:0xf bank_mask:0xf")
    a("v_add_f32 v6, v6, v8"); red(6)
    a(f"v_mul_f32 v6, {f2u(1/640)}, v6")
    for i in range(20): a(f"v_pk_add_f32 {v(U+2*i,2)}, {v(U+2*i,2)}, v[6:7] op_sel_hi:[1,0] neg_lo:[0,1] neg_hi:[0,1]")
    a(f"v_pk_mul_f32 v[12:13], {v(U,2)}, {v(U,2)}\nv_pk_mul_f32 v[14:15], {v(U+2,2)}, {v(U+2,2)}")
    for i in range(2, 20): a(f"v_pk_fma_f32 {v(12+2*(i&1),2)}, {v(U+2*i,2)}, {v(U+2*i,2)}, {v(12+2*(i&1),2)}")
    a("v_pk_add_f32 v[12:13], v[12:13], v[14:15]\nv_add_f32 v12, v12, v13")
    red(12)
    a(f"v_mov_b32 v8, {f2u(1e-5)}\nv_fmac_f32 v8, {f2u(1/640)}, v12\nv_rsq_f32 v12, v8")
    for j in range(5):
        for i in range(4*j, 4*j+4): a(f"v_pk_mul_f32 {v(U+2*i,2)}, {v(U+2*i,2)}, v[12:13] op_sel_hi:[1,0]")
        for i in range(4*j, 4*j+4): a(f"v_cvt_pk_bf16_f32 v{96+i}, v{U+2*i}, v{U+1+2*i}")
        a(f"buffer_store_dwordx4 {v(96+4*j,4)}, v5, s[4:7], 0 offen offset:{256*j} {SC}")
    estamp(a, 3)
    a("s_barrier")
    a(f"s_waitcnt vmcnt(5)\nv_dot2_f32_bf16 v9, v{X}, v{GW}, 0\nv_dot2_f32_bf16 v8, v{X+1}, v{GW+1}, 0")
    for i in range(2, 20): a(f"v_dot2_f32_bf16 v{9-(i&1)}, v{X+i}, v{GW+i}, v{9-(i&1)}")
    a("v_add_f32 v9, v9, v8"); red(9)
    a(f"""
    v_mul_f32 v9, {f2u(-LOG2E)}, v9
    v_exp_f32 v9, v9
    v_add_f32 v9, 1.0, v9
    v_rcp_f32 v8, v9
    v_lshlrev_b32 v10, 3, v10
    """)
    tag_ready(a)
    a(f"""
    v_mov_b32 v9, s48
    s_mov_b32 exec_lo, 0x00010001
    s_mov_b32 exec_hi, 0x00010001
    buffer_store_dwordx2 v[8:9], v10, s[8:11], 0 offen {SC}
    s_mov_b64 exec, -1
    s_lshl_b32 s22, s19, 7
    v_lshl_add_u32 v10, v1, {14 if opt("mixed") else 15}, s22
    """)
    if opt("early"): a("s_waitcnt vmcnt(1)"); estamp(a, 4)
    publish(a, 0, 4, 10, 4, keep=1)
    if opt("early"): estamp(a, 5); a("s_waitcnt vmcnt(0)"); estamp(a, 6)

G1_S, G1_SLOT = 6, 24576
def w1_sweep(a):
    a(f"s_lshl_b32 s23, s53, {2 if opt('mixed') else 1}\ns_add_u32 s23, s23, s3\ns_lshl_b32 s23, s23, 6\nv_add_u32 v2, s23, v1\ns_lshr_b32 s23, s52, 1\ns_mul_i32 s23, s23, 768\ns_mov_b32 s26, 43691")
    for n in range(3):
        a(f"v_add_u32 v3, {4096*n}, v2\nv_mul_u32_u24 v4, s26, v3\nv_lshrrev_b32 v4, 18, v4\nv_mul_u32_u24 v5, {3072-768}, v4\nv_lshl_add_u32 v5, v3, 7, v5\nv_add_u32 v{16+n}, s23, v5")
        if not opt("noslowcol"):
            a(f"v_and_b32 v5, 0x380, v{16+n}\nv_cmp_le_u32 vcc, {opt('sc0', 1024)}, v4\nv_cndmask_b32_e64 v5, 0, v5, vcc\nv_cmp_eq_u32 vcc, 0x180, v5\nv_cndmask_b32_e64 v{16+n}, v{16+n}, -16, vcc")
    srd(a, 4, 4, S_ * 3072)
    a("s_barrier"); estamp(a, 1)
    pre = opt("pre", 2)
    for n in range(3):
        if n == pre: tag_ready(a); a("s_barrier")
        if not opt("nopfw1"): a(f"buffer_load_dword v{20+n}, v{16+n}, s[4:7], 0 offen")
    if pre == 3: tag_ready(a); a("s_barrier")
    estamp(a, 2)
    if opt("pfwait"): a("s_waitcnt vmcnt(0)")
    estamp(a, 3)
def g1_loader_w(a):
    a(f"""
    v_lshrrev_b32 v2, 4, v1
    s_lshl_b32 s23, s3, 2
    v_add_u32 v2, s23, v2
    v_lshlrev_b32 v4, 1, v2
    v_and_b32 v3, 15, v1
    v_xor_b32 v3, v3, v4
    v_lshlrev_b32 v3, 4, v3
    v_mul_u32_u24 v2, 3072, v2
    s_lshl_b32 s26, s16, 8
    v_add3_u32 v8, v2, v3, s26
    """)
    for i in range(1, 8): a(f"v_add_u32 v{8+i}, {8*3072*i}, v8")
    a(f"""
    s_mov_b32 s34, s18
    s_lshl_b32 s37, s3, 10
    s_add_u32 s38, s37, {G1_SLOT*G1_S}
    s_mov_b32 s33, 0
    """)
    def issue():
        a(f"s_mul_i32 s40, s34, {64*3072}" if not opt("wwrap") else f"s_and_b32 s40, s34, 3\ns_mul_i32 s40, s40, {64*3072}")
        for i in range(8): a(f"s_add_u32 m0, s37, {2048*i}\n{thr('w', 11)}buffer_load_dwordx4 v{8+i}, s[4:7], s40 offen lds")
        a(f"s_add_u32 s37, s37, {G1_SLOT}\ns_cmp_ge_u32 s37, s38\ns_cselect_b32 s42, {G1_SLOT*G1_S}, 0\ns_sub_u32 s37, s37, s42\ns_add_u32 s34, s34, 1\ns_and_b32 s34, s34, 31")
    if opt("sweep"):
        w1_sweep(a); issue_n(a, G1_S - 2, issue)
    else:
        pp = opt("ppre", 0)
        srd(a, 4, 4, S_ * 3072); a("s_barrier")
        if pp: issue_n(a, pp, issue)
        tag_ready(a); a("s_barrier")
        if (not opt("nos15")): a("s_barrier")
        m = opt("g1in", G1_S - 2)
        if pp < m: issue_n(a, m - pp, issue)
        for j in range(m - (G1_S - 2)): a(f"s_waitcnt vmcnt({8*(m-1-j)})\ns_barrier")
        if m < G1_S - 2: a(f"s_waitcnt vmcnt({8*(m-1)})\ns_barrier"); issue_n(a, G1_S - 1 - m, issue)
    if opt("early"): estamp(a, 4); a("s_waitcnt vmcnt(0)"); estamp(a, 5)
    stamp(a, 1)
    steady(a, 32, 8, G1_S - 2, issue)
    if (not opt("earlyp")): drain(a, 8, G1_S - 2); stamp(a, 2); a("s_branch Lp2_s0")
    else: P2(0).setup_s(a); P2(0).early(a, 8, 12, "s")
def g1_loader_h(a):
    a(f"""
    v_lshrrev_b32 v2, 3, v1
    v_and_b32 v3, 7, v1
    v_and_b32 v4, 6, v2
    v_xor_b32 v3, v3, v4
    v_lshlrev_b32 v3, 4, v3
    s_sub_u32 s22, s3, 2
    s_lshl_b32 s23, s22, 3
    v_add_u32 v2, s23, v2
    v_mul_u32_u24 v2, 1280, v2
    s_lshl_b32 s26, s17, 7
    v_add3_u32 v8, v2, v3, s26
    """)
    for i in range(1, 4): a(f"v_add_u32 v{8+i}, {16*1280*i}, v8")
    a(f"""
    s_lshl_b32 s23, s52, 14
    v_lshl_add_u32 v12, v1, 7, s23
    s_mov_b32 s34, s18
    s_lshl_b32 s37, s22, 10
    s_add_u32 s37, s37, 16384
    s_add_u32 s38, s37, {G1_SLOT*G1_S}
    s_mov_b32 s33, 0
    """)
    srd(a, 4, 20, H_SZ, H_OFF)
    def issue():
        a(f"s_mul_i32 s40, s34, {64*1280}" if not opt("hwrap") else f"s_and_b32 s40, s34, 3\ns_mul_i32 s40, s40, {64*1280}")
        for i in range(4): a(f"s_add_u32 m0, s37, {2048*i}\n{thr('h', 5)}buffer_load_dwordx4 v{8+i}, s[4:7], s40 offen {'' if opt('hplain') else SC} lds")
        a(f"s_add_u32 s37, s37, {G1_SLOT}\ns_cmp_ge_u32 s37, s38\ns_cselect_b32 s42, {G1_SLOT*G1_S}, 0\ns_sub_u32 s37, s37, s42\ns_add_u32 s34, s34, 1\ns_and_b32 s34, s34, 31")
    a("s_barrier"); tag_ready(a); a("s_barrier")
    if (not opt("nos15")): a("s_barrier")
    estamp(a, 1)
    if opt("nosplit"): gate(a, 12, (1 << 64) - 1, two=8192)
    else:
        L = uid("Lm")
        a("s_sub_u32 s22, s3, 2\ns_lshl_b32 s22, s22, 13\nv_add_u32 v12, s22, v12"); gate(a, 12, (1 << 64) - 1)
        a(f"v_mov_b32 v2, {CTR + 12}\nv_mov_b32 v3, 1\ns_mov_b64 exec, 1\nds_add_u32 v2, v3\ns_mov_b32 s49, 0\n{L}:\nds_read_b32 v3, v2\ns_add_u32 s49, s49, 1\ns_waitcnt lgkmcnt(0)\nv_readfirstlane_b32 s22, v3")
        a(f"s_cmp_ge_u32 s22, 2\ns_cbranch_scc1 {L}d\ns_cmp_lt_u32 s49, 0x400000\ns_cbranch_scc1 {L}\n{L}d:\ns_mov_b64 exec, -1")
    stamp(a, 1); estamp(a, 3)
    if opt("early"): a("s_add_u32 s78, s70, s49\ns_mov_b32 s79, 0")
    if not (not opt("s2")): a("s_barrier")
    issue_n(a, G1_S - 2, issue)
    steady(a, 32, 4, G1_S - 2, issue)
    if (not opt("earlyp")): drain(a, 4, G1_S - 2); stamp(a, 2); a("s_branch Lp2_d0")
    else: P2(0).setup_d(a); P2(0).early(a, 4, 16, "d")
def g1_consumer(a):
    L = "Lg1"
    if (not opt("nos15")): a("s_barrier")
    ACC, T = 16, 48
    a(f"""
    s_load_dwordx2 s[24:25], s[0:1], {KA['b1']}
    s_and_b32 s22, s3, 1
    s_lshr_b32 s23, s3, 1
    s_lshl_b32 s26, s16, 8
    s_lshl_b32 s27, s22, 7
    s_add_u32 s26, s26, s27
    v_lshrrev_b32 v2, 4, v1
    v_lshl_add_u32 v3, v2, 3, s26
    s_waitcnt lgkmcnt(0)
    """)
    srd(a, 24, 24, 3072); srd(a, 8, 20, UW_SZ, UW_OFF)
    for ft in range(4): a(f"buffer_load_dwordx2 {v(T+2*ft,2)}, v3, s[24:27], 0 offen offset:{32*ft}")
    a(f"""
    s_setprio 0
    v_lshrrev_b32 v5, 2, v1
    v_and_b32 v6, 3, v1
    v_lshlrev_b32 v6, 3, v6
    v_and_b32 v7, 7, v5
    v_lshl_add_u32 v4, v5, 8, v6
    s_lshl_b32 s27, s22, 2
    """)
    for ft in range(4): a(f"s_add_u32 s28, s27, {ft}\nv_xor_b32 v2, s28, v7\nv_lshl_add_u32 v{8+ft}, v2, 5, v4")
    a(f"v_lshrrev_b32 v7, 1, v5\nv_and_b32 v7, 3, v7\nv_lshl_add_u32 v4, v5, 7, v6\nv_add_u32 v4, 16384, v4\ns_lshl_b32 s27, s23, 1")
    for dt in range(2): a(f"s_add_u32 s28, s27, {dt}\nv_xor_b32 v2, s28, v7\nv_lshl_add_u32 v{12+dt}, v2, 5, v4")
    a(f"""
    s_lshl_b32 s28, s17, 2
    s_add_u32 s28, s28, s27
    s_mul_i32 s28, s28, 68
    s_lshl_b32 s29, s16, 2
    s_add_u32 s28, s28, s29
    s_lshl_b32 s29, s22, 1
    s_add_u32 s28, s28, s29
    s_lshl_b32 s28, s28, 10
    v_lshl_add_u32 v14, v1, 4, s28
    s_lshl_b32 s28, s17, 4
    s_add_u32 s28, s28, s16
    s_lshl_b32 s28, s28, 7
    s_add_u32 s28, s28, {F4}
    v_mul_u32_u24 v15, {160*128}, v1
    v_add_u32 v15, s28, v15
    s_mov_b32 s31, 0xffff0000
    s_waitcnt vmcnt(0)
    """)
    for ft in range(4):
        for dt in range(2):
            b = ACC + 8 * ft + 4 * dt
            a(f"v_lshlrev_b32 v{b}, 16, v{T+2*ft}\nv_and_b32 v{b+1}, s31, v{T+2*ft}\nv_lshlrev_b32 v{b+2}, 16, v{T+2*ft+1}\nv_and_b32 v{b+3}, s31, v{T+2*ft+1}")
    SETS = (48, 96)
    def reads(st):
        r = []
        for kk in range(2):
            b = SETS[st] + 24 * kk
            for dt in range(2): r += [(f"ds_read_b64_tr_b16 {v(b+4*dt+2*h,2)}, v{12+dt} offset:{kk*4096+2048*h}", (kk, "b", dt, h)) for h in range(2)]
            for ft in range(4): r += [(f"ds_read_b64_tr_b16 {v(b+8+4*ft+2*h,2)}, v{8+ft} offset:{kk*8192+4096*h}", (kk, "a", ft, h)) for h in range(2)]
        return r
    def mf(st):
        return [(f"v_mfma_f32_16x16x32_bf16 {v(ACC+8*ft+4*dt,4)}, {v(SETS[st]+24*kk+8+4*ft,4)}, {v(SETS[st]+24*kk+4*dt,4)}, {v(ACC+8*ft+4*dt,4)}", {(kk, "a", ft, 1)})
                for kk in range(2) for ft, dt in ([(f, d) for d in range(2) for f in range(4)] if opt("g1ord") else [(f, d) for f in range(4) for d in range(2)])]
    ids = [x[1] for x in reads(0)]
    adv = slot_adv(G1_SLOT, G1_S) + [f"v_add_u32 v{8+i}, s40, v{8+i}" for i in range(6)]
    if not (not opt("s2")): a("s_barrier")
    a("s_mov_b32 s33, 0\ns_mov_b32 s37, 0\ns_barrier"); stamp(a, 2, True)
    emit_step(a, [], [], reads(0), adv)

    a.label(f"{L}_c", 3)
    a("s_barrier")
    emit_step(a, mf(0), ids, reads(1), adv + ["s_add_u32 s33, s33, 2", "s_cmp_ge_u32 s33, 32"])
    a(f"s_cbranch_scc1 {L}_clast\ns_barrier")
    emit_step(a, mf(1), ids, reads(0), adv)
    a(f"s_branch {L}_c")
    a.label(f"{L}_clast")
    a("s_waitcnt lgkmcnt(0)" + ("\ns_barrier" if opt("noe2") else "")); stamp(a, 3, True); lstamp(a, 1)
    last = [t for t, _ in mf(1)]
    grp = lambda p, dt: [last[8 * kk + 2 * (2 * p + h) + dt] for kk in range(2) for h in range(2)]
    G = [(p, dt) for p in range(2) for dt in range(2)]
    for t in grp(*G[0]) + grp(*G[1]): a(t)
    rest = grp(*G[2]) + grp(*G[3])
    c0 = -2 * 0.7978845608028654 * LOG2E; c1 = c0 * 0.044715
    a(f"v_mov_b32 v2, {f2u(c0)}\nv_mov_b32 v4, {f2u(c1)}\nv_mov_b32 v6, 1.0\ns_setprio 2")
    lstamp(a, 2)
    T = 48
    for n, (p, dt) in enumerate(G):
        o = 72 + 4 * n
        prs = [ACC + 8 * (2 * p + h) + 4 * dt + 2 * q for h in range(2) for q in range(2)]
        def ops(l):
            for x in l:
                a(x)
                if rest and not x.startswith(("v_exp", "v_rcp")): a(rest.pop(0))
        ops([f"v_pk_mul_f32 {v(T+2*i,2)}, {v(b,2)}, {v(b,2)}" for i, b in enumerate(prs)])
        ops([f"v_pk_fma_f32 {v(T+2*i,2)}, {v(T+2*i,2)}, v[4:5], v[2:3] op_sel_hi:[1,0,0]" for i, b in enumerate(prs)])
        ops([f"v_pk_mul_f32 {v(T+2*i,2)}, {v(T+2*i,2)}, {v(b,2)}" for i, b in enumerate(prs)])
        ops([f"v_exp_f32 v{T+i}, v{T+i}" for i in range(8)])
        ops([f"v_pk_add_f32 {v(T+2*i,2)}, {v(T+2*i,2)}, v[6:7] op_sel_hi:[1,0]" for i, b in enumerate(prs)])
        ops([f"v_rcp_f32 v{T+i}, v{T+i}" for i in range(8)])
        ops([f"v_pk_mul_f32 {v(T+2*i,2)}, {v(T+2*i,2)}, {v(b,2)}" for i, b in enumerate(prs)])
        ops([f"v_cvt_pk_bf16_f32 v{o+i}, v{T+2*i}, v{T+2*i+1}" for i in range(4)])
        a(f"s_mov_b32 s29, {dt*68*1024}\nbuffer_store_dwordx4 {v(o,4)}, v14, s[8:11], s29 offen offset:{1024*p} {SC}")
    lstamp(a, 3)
    if not opt("noe2"): a("s_barrier")
    if opt("late"): a("s_waitcnt vmcnt(0)"); lstamp(a, 4)
    publish(a, 4, 4, 15, 4)
    if opt("late"): lstamp(a, 5); a("s_waitcnt vmcnt(0)"); lstamp(a, 6)
    stamp(a, 4, True)

def spare_loader(a):
    a(f"""
    s_load_dwordx2 s[4:5], s[0:1], {KA['wo']}
    s_load_dwordx2 s[12:13], s[0:1], {KA['w2']}
    v_lshrrev_b32 v2, 3, v1
    v_and_b32 v3, 7, v1
    v_and_b32 v4, 6, v2
    v_xor_b32 v3, v3, v4
    v_lshlrev_b32 v14, 4, v3
    v_mul_u32_u24 v15, 1280, v2
    v_add_u32 v15, v15, v14
    v_lshrrev_b32 v3, 2, v2
    v_lshl_add_u32 v3, v3, 4, v2
    v_add_u32 v3, 16, v3
    v_mul_u32_u24 v3, 1280, v3
    v_add_u32 v14, v14, v3
    s_mul_i32 s23, s3, {7*4096}
    v_lshrrev_b32 v5, 2, v1
    v_lshrrev_b32 v6, 1, v5
    v_and_b32 v6, 3, v6
    v_lshlrev_b32 v5, 7, v5
    v_and_b32 v7, 3, v1
    v_lshlrev_b32 v7, 3, v7
    v_add3_u32 v5, v5, v7, s23
    """)
    for t in range(4): a(f"v_xor_b32 v7, {t}, v6\nv_lshl_add_u32 v{8+t}, v7, 5, v5")
    a(f"v_lshlrev_b32 v12, 4, v1\ns_lshl_b32 s26, s16, 7\ns_add_u32 s26, s26, {F3}\nv_lshl_add_u32 v13, v1, 10, s26\ns_waitcnt lgkmcnt(0)")
    srd(a, 4, 4, 640 * 1280); srd(a, 8, 20, UW_SZ, UW_OFF); srd(a, 12, 12, F_ * 4096)
    def task():
        a("s_lshl_b32 s26, s33, 2\ns_add_u32 s26, s26, s3\ns_min_u32 s26, s26, 24\ns_mul_i32 s27, s16, 25\ns_add_u32 s27, s27, s26\ns_mul_i32 s26, s27, 6554\ns_lshr_b32 s26, s26, 16\ns_mul_i32 s28, s26, 10\ns_sub_u32 s27, s27, s28")
    L = uid("Lwo")
    a("s_mov_b32 s33, 0"); a.label(L); task()
    for half in range(2):
        a(f"""
        s_lshl_b32 s28, s26, 1
        s_add_u32 s28, s28, {half}
        s_mul_i32 s29, s28, 52
        s_lshr_b32 s29, s29, 8
        s_mul_i32 s30, s29, 5
        s_sub_u32 s28, s28, s30
        s_mul_i32 s29, s29, 80
        s_mul_i32 s30, s28, 20
        s_cmp_eq_u32 s28, 4
        s_cselect_b64 vcc, -1, 0
        s_cselect_b32 s30, 0, s30
        s_cselect_b32 s31, 40, 8
        s_mul_i32 s31, s31, 1280
        s_add_u32 s29, s29, s30
        s_mul_i32 s28, s29, 1280
        s_lshl_b32 s29, s27, 7
        s_add_u32 s28, s28, s29
        v_cndmask_b32 v2, v15, v14, vcc
        """)
        for i in range(2): a(f"s_add_u32 m0, s23, {2048*half+1024*i}\nbuffer_load_dwordx4 v2, s[4:7], s28 offen lds\ns_add_u32 s28, s28, s31")
    a(f"s_add_u32 s23, s23, 4096\ns_add_u32 s33, s33, 1\ns_cmp_lt_u32 s33, 7\ns_cbranch_scc1 {L}\ns_waitcnt vmcnt(0)\ns_mov_b32 s33, 0")
    L = uid("Lwo"); a.label(L); task()
    for t in range(4): a(f"ds_read_b64_tr_b16 {v(16+4*t,2)}, v{8+t}\nds_read_b64_tr_b16 {v(18+4*t,2)}, v{8+t} offset:2048\nv_add_u32 v{8+t}, 4096, v{8+t}")
    a(f"s_lshl_b32 s28, s27, 2\ns_mul_i32 s28, s28, 68\ns_add_u32 s28, s28, s26\ns_add_u32 s28, s28, 48\ns_lshl_b32 s28, s28, 10")
    for t in range(4): a(f"s_waitcnt lgkmcnt({6-2*t})\nbuffer_store_dwordx4 {v(16+4*t,4)}, v12, s[8:11], s28 offen {SC}\ns_add_u32 s28, s28, {68*1024}")
    a(f"s_add_u32 s33, s33, 1\ns_cmp_lt_u32 s33, 7\ns_cbranch_scc1 {L}")
    publish(a, 8, 4, 13, 8)
    stamp(a, 1)
    if opt("spw2"):
        L = uid("Lw2")
        a(f"""
        s_and_b32 s22, s16, 1
        s_lshl_b32 s22, s22, 2
        s_add_u32 s22, s22, s3
        s_lshl_b32 s22, s22, 3
        v_lshrrev_b32 v2, 3, v1
        v_add_u32 v2, s22, v2
        v_lshlrev_b32 v2, 12, v2
        v_and_b32 v3, 7, v1
        v_lshl_add_u32 v2, v3, 7, v2
        s_lshr_b32 s22, s52, 1
        s_lshl_b32 s22, s22, 10
        s_mov_b32 s33, 0
        {L}:
        buffer_load_dword v30, v2, s[12:15], s22 offen
        s_add_u32 s22, s22, {64*4096}
        s_add_u32 s33, s33, 1
        s_cmp_lt_u32 s33, 24
        s_cbranch_scc1 {L}
        """)
    h0 = opt("sph", 0)
    if h0:
        L = uid("Lsh"); n = ((32 - h0 + 1) // 2 * 10 + 7) // 8
        srd(a, 4, 20, H_SZ, H_OFF)
        a(f"s_lshl_b32 s23, s52, 14\nv_lshl_add_u32 v12, v1, 7, s23")
        gate(a, 12, (1 << 64) - 1, two=8192)
        a(f"""
        s_and_b32 s22, s16, 1
        s_lshl_b32 s22, s22, 2
        s_add_u32 s22, s22, s3
        v_lshlrev_b32 v2, 7, v1
        s_mov_b32 s33, 0
        {L}:
        s_mul_i32 s23, s22, 6554
        s_lshr_b32 s23, s23, 16
        s_mul_i32 s23, s23, {64*1280}
        s_lshl_b32 s26, s22, 13
        s_add_u32 s23, s23, s26
        s_add_u32 s23, s23, {h0*64*1280}
        buffer_load_dword v30, v2, s[4:7], s23 offen {SC}
        s_add_u32 s22, s22, 8
        s_add_u32 s33, s33, 1
        s_cmp_lt_u32 s33, {n}
        s_cbranch_scc1 {L}
        """)
    nw = opt("c3", 0)
    if nw:
        L = uid("Lc3")
        a(f"""
        s_cmp_ge_u32 s3, {nw}
        s_cbranch_scc1 {L}d
        s_and_b32 s22, s16, 1
        s_mul_i32 s22, s22, {nw}
        s_add_u32 s22, s22, s3
        s_lshl_b32 s22, s22, 6
        v_add_u32 v2, s22, v1
        v_lshlrev_b32 v2, 12, v2
        s_lshr_b32 s22, s52, 1
        s_lshl_b32 s22, s22, 10
        s_add_u32 s22, s22, 384
        s_mov_b32 s33, 0
        {L}:
        buffer_load_dword v30, v2, s[12:15], s22 offen
        s_add_u32 s22, s22, {128*nw*4096}
        s_add_u32 s33, s33, 1
        s_cmp_lt_u32 s33, {12//nw}
        s_waitcnt vmcnt(0)
        s_cbranch_scc1 {L}
        {L}d:
        """)
    stamp(a, 2)

QA_S, QA_SLOT, QA_W = 3, 49152, 18432
def qa_w1_sweep(a):
    if not opt("qsw"): return
    a(f"""
    s_load_dwordx2 s[12:13], s[0:1], {KA['w1']}
    s_lshr_b32 s22, s2, 1
    s_lshl_b32 s22, s22, 2
    s_add_u32 s22, s22, s3
    s_lshl_b32 s23, s22, 12
    s_lshl_b32 s22, s22, 13
    s_add_u32 s23, s23, {512*8192}
    v_lshlrev_b32 v2, 7, v1
    s_waitcnt lgkmcnt(0)
    """)
    srd(a, 12, 12, S_ * 3072)
    a("buffer_load_dword v32, v2, s[12:15], s22 offen\ns_mov_b32 exec_hi, 0\nbuffer_load_dword v33, v2, s[12:15], s23 offen\ns_mov_b32 exec_hi, -1")
def w2_setup(a):
    a(f"""
    s_load_dwordx2 s[24:25], s[0:1], {KA['w2']}
    v_lshrrev_b32 v2, 3, v1
    s_lshl_b32 s22, s53, 3
    v_add_u32 v2, s22, v2
    v_lshlrev_b32 v2, 12, v2
    v_and_b32 v3, 7, v1
    v_lshl_add_u32 v2, v3, 7, v2
    s_lshr_b32 s22, s52, 1
    s_lshl_b32 s22, s22, 10
    v_add_u32 v29, s22, v2
    s_waitcnt lgkmcnt(0)
    """)
    srd(a, 24, 24, F_ * 4096)
def w2_load(a):
    if opt("sc3"): a("s_mov_b32 exec_lo, 0xf7f7f7f7\ns_mov_b32 exec_hi, 0xf7f7f7f7\nbuffer_load_dword v30, v29, s[24:27], s22 offen\ns_mov_b64 exec, -1")
    else: a("buffer_load_dword v30, v29, s[24:27], s22 offen")
def w2_last(a):
    if not opt("nopfw2"): a("s_lshl_b32 s22, s3, 20"); w2_load(a)
def w2_slow(a):
    n = opt("sc3")
    if not n or n > 2: return
    a(f"s_lshl_b32 s22, s53, 2\ns_add_u32 s22, s22, s3\ns_lshl_b32 s22, s22, 12\ns_lshr_b32 s23, s52, 1\ns_lshl_b32 s23, s23, 10\ns_add_u32 s22, s22, s23\ns_add_u32 s22, s22, 384\ns_add_u32 s26, s24, s22\ns_addc_u32 s27, s25, 0")
    for k in range(12):
        for h in range(n): a(f"s_load_dword s98, s[26:27], {64*h}")
        a(f"s_add_u32 s26, s26, {128*4096}\ns_addc_u32 s27, s27, 0")
def qa_loader(a):
    a(f"v_lshrrev_b32 v2, 3, v1\ns_lshl_b32 s23, s3, 3\nv_add_u32 v2, s23, v2\ns_lshl_b32 s26, s16, 7\ns_sub_u32 s26, s26, 16\nv_and_b32 v3, 7, v1")
    for i in range(6):
        a(f"v_add_u32 v4, {24*i}, v2\nv_lshrrev_b32 v5, 1, v4\nv_and_b32 v5, 7, v5\nv_xor_b32 v5, v5, v3\nv_add_u32 v4, s26, v4\nv_max_i32 v4, 0, v4\nv_mul_u32_u24 v4, 1280, v4\nv_lshl_add_u32 v{8+i}, v5, 4, v4")
    a(f"s_mul_i32 s23, s3, 320\ns_mul_i32 s26, s17, 160\nv_add_u32 v2, s23, v1")
    for i in range(5):
        a(f"""
        v_add_u32 v3, {64*i}, v2
        v_mul_u32_u24 v4, 2185, v3
        v_lshrrev_b32 v4, 16, v4
        v_mul_u32_u24 v5, 30, v4
        v_sub_u32 v3, v3, v5
        v_mul_u32_u24 v5, 26, v3
        v_lshrrev_b32 v5, 8, v5
        v_mul_u32_u24 v5, {1280-160}, v5
        v_lshl_add_u32 v3, v3, 4, v5
        v_and_b32 v5, 12, v4
        v_lshlrev_b32 v5, 1, v5
        v_lshrrev_b32 v6, 4, v4
        v_lshl_add_u32 v5, v6, 2, v5
        v_and_b32 v4, 3, v4
        v_add_u32 v4, v4, v5
        v_mul_u32_u24 v4, 3840, v4
        v_add3_u32 v{16+i}, v4, v3, s26
        """)
    a(f"s_mov_b32 s34, s18\ns_mov_b32 s37, 0\ns_lshl_b32 s38, s3, 10\ns_mul_i32 s39, s3, 5120\ns_add_u32 s39, s39, {QA_W}\ns_mov_b32 s33, 0")
    srd(a, 4, 4, H_SZ); srd(a, 8, 8, 640 * 3840)
    def issue(half=None):
        if half != 1: a(f"s_lshl_b32 s40, s34, 7\ns_mul_i32 s41, s34, {64*3840}\ns_add_u32 s42, s37, s38\ns_add_u32 s43, s37, s39\ns_add_u32 s36, s41, {32*3840}")
        if half != 1:
            for i in range(3): a(f"s_add_u32 m0, s42, {3072*i}\nbuffer_load_dwordx4 v{8+i}, s[4:7], s40 offen lds")
            for i in range(5): a(f"s_add_u32 m0, s43, {1024*i}\nbuffer_load_dwordx4 v{16+i}, s[8:11], s41 offen lds")
        if half != 0:
            for i in range(3, 6): a(f"s_add_u32 m0, s42, {3072*i}\nbuffer_load_dwordx4 v{8+i}, s[4:7], s40 offen lds")
            for i in range(5): a(f"s_add_u32 m0, s43, {15360+1024*i}\nbuffer_load_dwordx4 v{16+i}, s[8:11], s36 offen lds")
            a(f"s_add_u32 s37, s37, {QA_SLOT}\ns_cmp_ge_u32 s37, {QA_SLOT*QA_S}\ns_cselect_b32 s37, 0, s37\ns_add_u32 s34, s34, 1\ns_cmp_ge_u32 s34, 10\ns_cselect_b32 s34, 0, s34")
    if opt("lateb0"):
        issue_n(a, 2, issue); tag_ready(a); w2_setup(a); stamp(a, 1)
    else:
        issue(); issue(0); tag_ready(a); a("s_waitcnt vmcnt(8)\ns_barrier"); issue(1); issue(); a("s_mov_b32 s33, 3")
        w2_setup(a); stamp(a, 1)
    steady(a, 10, 16, QA_S - 1, issue); drain(a, 16, QA_S - 1)
    stamp(a, 2); w2_last(a); a("s_barrier")
def qa_idle(a):
    code_prefetch(a)
    if opt("w49"):
        a(f"""
        s_mul_i32 s22, s53, 60
        v_add_u32 v2, s22, v1
        v_mul_u32_u24 v3, 4370, v2
        v_lshrrev_b32 v3, 16, v3
        v_mul_u32_u24 v4, 15, v3
        v_sub_u32 v2, v2, v4
        v_mul_u32_u24 v4, 52, v2
        v_lshrrev_b32 v4, 8, v4
        v_mul_u32_u24 v4, {1280-640}, v4
        v_lshl_add_u32 v2, v2, 7, v4
        v_lshrrev_b32 v4, 6, v3
        v_lshl_add_u32 v3, v4, 8, v3
        v_add_u32 v3, 256, v3
        v_mul_u32_u24 v3, 3840, v3
        s_lshr_b32 s22, s52, 2
        s_mul_i32 s22, s22, 640
        v_add3_u32 v2, v2, v3, s22
        """)
        srd(a, 8, 8, 640 * 3840)
        a("s_mov_b32 exec_hi, 0x0fffffff\nbuffer_load_dword v31, v2, s[8:11], 0 offen\ns_mov_b32 exec_hi, -1")
    if opt("x49"):
        a(f"""
        s_lshr_b32 s22, s53, 3
        s_mul_i32 s22, s22, 36
        s_lshl_b32 s23, s16, 7
        s_add_u32 s22, s22, s23
        s_sub_u32 s22, s22, 16
        v_add_u32 v2, s22, v1
        v_max_i32 v2, 0, v2
        v_mul_u32_u24 v2, 1280, v2
        s_bitcmp1_b32 s53, 0
        s_cselect_b32 s22, 5, 4
        s_cselect_b32 s23, 0, 9
        s_lshl_b32 s22, s22, 7
        s_lshl_b32 s23, s23, 7
        """)
        srd(a, 4, 4, H_SZ)
        a("s_mov_b32 exec_hi, 0xf\nbuffer_load_dword v32, v2, s[4:7], s22 offen\nbuffer_load_dword v33, v2, s[4:7], s23 offen\ns_mov_b32 exec_hi, -1")
    tag_ready(a); w2_setup(a)
    at = (opt("w2a", 9), opt("w2b", 9))
    for i in range(10):
        a("s_barrier")
        for k in range(2):
            if at[k] == i and not opt("nopfw2"): a(f"s_mov_b32 s22, {(4+k) << 20}"); w2_load(a)
    w2_last(a); a("s_barrier")
def qa_consumer(a):
    L = "Lqa"
    AQ, AK, AR, AV, AW = 16, 48, 88, 108, 148
    XF, WB = 168, 208
    M0, M1, MF, PM, TM = 224, 228, 232, 236, 240
    NB, DD = 4, opt("dd", 3)
    a(f"""
    s_lshr_b32 s28, s3, 1
    s_and_b32 s29, s3, 1
    v_and_b32 v2, 15, v1
    v_lshrrev_b32 v3, 4, v1
    v_lshrrev_b32 v4, 1, v2
    v_xor_b32 v4, v4, v3
    v_lshlrev_b32 v4, 4, v4
    v_lshl_add_u32 v4, v2, 7, v4
    v_mov_b32 v8, v4
    v_xor_b32 v9, 64, v4
    v_lshrrev_b32 v5, 2, v1
    v_mul_u32_u24 v5, 480, v5
    s_mul_i32 s23, s29, 80
    s_add_u32 s23, s23, {QA_W}
    v_add_u32 v5, s23, v5
    v_and_b32 v4, 3, v1
    v_lshl_add_u32 v10, v4, 3, v5
    v_and_b32 v6, 1, v1
    v_mul_u32_u24 v6, 40, v6
    v_add3_u32 v13, v6, v5, 32
    v_lshrrev_b32 v4, 1, v4
    v_mul_u32_u24 v4, 160, v4
    v_add_u32 v11, v4, v13
    """)
    if opt("zv"):
        a(f"v_and_b32 v4, 3, v1\nv_lshrrev_b32 v4, 1, v4\nv_cmp_ne_u32 s[98:99], s29, v4")
    for i in range(AQ, XF): a(f"v_mov_b32 v{i}, 0")
    a(f"v_lshlrev_b32 v4, 2, v3\nv_sub_u32 v4, v2, v4\nv_mov_b32 v5, {f2u(-1e30)}")
    for r in range(4):
        a(f"""
        v_subrev_u32 v15, {r}, v4
        v_and_b32 v15, 0x80000001, v15
        v_cmp_eq_u32 vcc, 0, v15
        v_cndmask_b32_e64 v{M1+r}, v5, 0, vcc
        v_cndmask_b32_e64 v{TM+4+r}, 0, -1, vcc
        v_cmp_eq_u32 vcc, 0x80000000, v15
        v_cndmask_b32_e64 v{M0+r}, v5, 0, vcc
        v_cndmask_b32_e64 v{TM+r}, 0, -1, vcc
        """)
    a("s_mov_b32 s30, 0xffff\ns_mov_b32 s22, 0x0c0c0c0c\ns_mov_b32 s26, 0x01000100\ns_mov_b32 s27, 0x03020302")
    for i in range(4): a(f"v_bfi_b32 v{PM+i}, s30, v{TM+2*i}, v{TM+2*i+1}\nv_mov_b32 v15, s22\nv_bfi_b32 v{PM+i}, v{PM+i}, s{26+(i&1)}, v15")
    a(f"s_or_b32 s23, s16, s28\ns_cmp_eq_u32 s23, 0\ns_cselect_b64 vcc, -1, 0")
    for r in range(4): a(f"v_cndmask_b32 v{MF+r}, v{M0+r}, v5, vcc")
    GM = 90
    for j in range(2): a(f"v_cmp_eq_u32 s[{GM+2*j}:{GM+1+2*j}], {j}, v3")
    a(f"""
    v_and_b32 v4, 1, v3
    v_cmp_eq_u32 s[94:95], 1, v4
    s_cmp_eq_u32 s29, 0
    s_cselect_b32 s96, -1, 0
    s_cselect_b32 s97, 0, -1
    s_lshl_b32 s23, s16, 3
    s_lshl_b32 s26, s28, 2
    s_add_u32 s23, s23, s26
    s_mul_i32 s23, s23, 40
    s_mul_i32 s26, s17, 5
    s_add_u32 s23, s23, s26
    s_lshl_b32 s23, s23, 9
    v_lshl_add_u32 v15, v1, 3, s23
    s_lshl_b32 s26, s29, 10
    v_add_u32 v12, s26, v15
    s_lshl_b32 s23, s16, 4
    s_add_u32 s23, s23, s17
    s_lshl_b32 s23, s23, 7
    s_add_u32 s23, s23, {F2}
    v_lshl_add_u32 v14, v1, 10, s23
    s_mov_b32 s31, {f2u(20 ** -0.5 * LOG2E)}
    v_mov_b32 v6, s31
    s_mov_b32 s33, 0
    s_mov_b32 s37, 0
    s_waitcnt lgkmcnt(0)
    """)
    srd(a, 4, 20, OT_SZ, OT_OFF); tag_ready(a)
    U = [("q", 0), ("q", 1), ("k", 0), ("k", 1), ("r", 0), ("v", 0), ("v", 1), ("w", 0)]
    NU = len(U); UU = 2 * NU
    def wread(u):
        kk, c = divmod(u, NU); p, j = U[c]; b = WB + 4 * (u % NB)
        ad, off = {"q": (10, 40 * j), "k": (10, 160 + 40 * j), "v": (10, 320 + 40 * j), "r": (11, 0), "w": (13, 320)}[p]
        off += kk * 15360
        return [f"ds_read_b64_tr_b16 {v(b,2)}, v{ad} offset:{off}", f"ds_read_b64_tr_b16 {v(b+2,2)}, v{ad} offset:{off+7680}"]
    def acc(p, j, t): return {"q": AQ + 8 * (t - 1) + 4 * j, "k": AK + 8 * t + 4 * j, "r": AR + 4 * t, "v": AV + 20 * j + 4 * t, "w": AW + 4 * t}[p]
    cvt = lambda d, s0: f"v_cvt_pk_bf16_f32 v{d}, v{s0}, v{s0+1}"
    cv = lambda d, s0: a(cvt(d, s0))
    VCH = (AV, AV + 20, AW)
    stamp(a, 1, True); a("s_barrier"); stamp(a, 2, True)
    a(f"s_cmp_lg_u32 s28, 0\ns_cbranch_scc1 {L}_h1")
    for rh in range(2):
        a.label(f"{L}_h{rh}")
        def xread(kk): return [f"ds_read_b128 {v(XF+20*kk+4*t,4)}, v{8+kk} offset:{2048*(4*rh+t) if t else 0}" for t in (1, 2, 3, 4, 0)]
        def mf(u):
            kk, c = divmod(u, NU); p, j = U[c]; w = v(WB + 4 * (u % NB), 4); r = []
            for t in ((1, 2, 3, 4, 0) if p in ("kr", "vw")[rh] else (1, 2, 3, 4)):
                x = v(XF + 20 * kk + 4 * t, 4); d = v(acc(p, j, t), 4)
                r.append(f"v_mfma_f32_16x16x32_bf16 {d}, {w}, {x}, {d}" if p in "qkr" else f"v_mfma_f32_16x16x32_bf16 {d}, {x}, {w}, {d}")
            return r
        for t in xread(0): a(t)
        for u in range(DD):
            for t in wread(u): a(t)
        a(f"s_waitcnt lgkmcnt({2*DD-2})")
        a.label(f"{L}_c{rh}", 3)
        q = []
        for u in range(1, DD): q += [u, u]
        misc = slot_adv(QA_SLOT, QA_S) + ["s_add_u32 s33, s33, 1", "s_cmp_ge_u32 s33, 10"]
        x1 = xread(1)
        for u in range(UU):
            nx = u + DD; fill = []
            if nx == UU: fill += [(t, UU) for t in xread(0)]
            fill += [(t, nx) for t in wread(nx % UU)]
            if 1 <= u < NU - 1 and x1: fill.append((x1.pop(0), NU))
            ms = mf(u)
            if nx == UU:
                a(f"s_waitcnt lgkmcnt(0)\ns_cbranch_scc1 {L}_clast{rh}\ns_barrier"); q = []
            per = -(-len(fill) // len(ms))
            for i, m in enumerate(ms):
                a(m)
                for t, tag in fill[i*per:(i+1)*per]: a(t); q.append(tag)
                if i == len(ms) - 2 and misc and u >= 2: a(misc.pop(0))
                if 1 <= i <= 3 and nx == UU - 1:
                    for r in ((), (8, 9, 10), (11, 13))[i - 1]: a(f"v_add_u32 v{r}, s40, v{r}")
            if any(t <= u + 1 for t in q) and nx != UU - 1:
                last = max(i for i, t in enumerate(q) if t <= u + 1)
                q = q[last + 1:]
                a(f"s_waitcnt lgkmcnt({len(q)})")
        assert not misc and not x1 and len(q) == 2 * DD - 2, (misc, x1, q)
        a(f"s_branch {L}_c{rh}")
        a.label(f"{L}_clast{rh}"); stamp(a, 3, True); lstamp(a, 1)
        TK = (4, 3, 2, 1) if rh else (4, 3, 2, 1, 0); prep = []
        for t in TK:
            r = AR + 4 * t; k = AK + 8 * t
            prep += [cvt(k, k), cvt(k + 1, k + 2), cvt(k + 4, k + 4), cvt(k + 5, k + 6), cvt(k + 2, r), cvt(k + 3, r + 2), cvt(r, r), cvt(r + 1, r + 2)]
        for t in TK:
            r = AR + 4 * t; k = AK + 8 * t
            prep += [f"v_permlane32_swap_b32 v{r}, v{k+2}", f"v_permlane32_swap_b32 v{r+1}, v{k+3}"]
        assert DD == 3
        for u in range(UU - DD, UU):
            for m in mf(u): a(m); a(prep.pop(0)); a(prep.pop(0))
        a(f"v_lshlrev_b32 v8, 3, v1\ns_mul_i32 s23, s29, 4608\ns_add_u32 s23, s23, {QA_SLOT}\nv_add_u32 v8, s23, v8")
        for x in prep: a(x)
        if rh == 0:
            for i in range(3): a(f"ds_write_b64 v8, {v(AK+32+2*i,2)} offset:{512*i}")
        for n, b in enumerate(VCH):
            for i in range(0 if rh else 2, 10): cv(b + i, b + 2 * i)
            a(f"ds_write_b64 v8, {v(b + (0 if rh else 8),2)} offset:{(3072 if rh else 1536) + 512*n}")
        a("s_waitcnt lgkmcnt(0)\ns_barrier")
        if rh:
            for i in range(3): a(f"ds_read_b64 {v(AK+2*i,2)}, v8 offset:{512*i}")
        for n, b in enumerate(VCH): a(f"ds_read_b64 {v(b,2)}, v8 offset:{(1536 if rh else 3072) + 512*n}")
        if rh == 0: a(f"s_branch {L}_j")
    a.label(f"{L}_j")
    lstamp(a, 2)
    UN = [(t, j) for t in (4, 3, 2, 1) for j in range(2)]
    SRS = [XF + 8 * n for n in range(7)] + [TM + 8]
    def qprep(t):
        r = AR + 4 * t; qa, qb = acc("q", 0, t), acc("q", 1, t)
        return [cvt(qa, qa), cvt(qa + 1, qa + 2), cvt(qb + 3, qb + 2), cvt(qb + 2, qb)] + \
               [f"v_cndmask_b32 v{qa+2+i}, 0, v{r+i}, s[{GM}:{GM+1}]" for i in range(2)] + [f"v_cndmask_b32 v{qb+i}, 0, v{r+i}, s[{GM+2}:{GM+3}]" for i in range(2)]
    for x in qprep(4): a(x)
    for n, (t, j) in enumerate(UN):
        qf = v(acc("q", j, t), 4)
        if j == 0: nxt = qprep(t - 1) if t > 1 else []
        if n == 6: a("s_waitcnt lgkmcnt(0)")
        a(f"v_mfma_f32_16x16x32_bf16 {v(SRS[n],4)}, {v(AK+8*(t-1)+2*j,4)}, {qf}, {v(MF if t == 1 else M0,4)}")
        for x in nxt[4*j:4*j+2]: a(x)
        a(f"v_mfma_f32_16x16x32_bf16 {v(SRS[n]+4,4)}, {v(AK+8*t+2*j,4)}, {qf}, {v(M1,4)}")
        for x in nxt[4*j+2:4*j+4]: a(x)
    V2, X = AQ, AQ + 16
    P = [AK + 4 * n for n in range(8)]
    for n in range(8): s_ = SRS[n]; a(f"v_max3_f32 v{V2+2*n}, v{s_}, v{s_+1}, v{s_+4}\nv_max3_f32 v{V2+2*n+1}, v{s_+2}, v{s_+3}, v{s_+6}")
    for n in range(8): s_ = SRS[n]; a(f"v_max_f32 v{V2+2*n}, v{V2+2*n}, v{s_+5}\nv_max_f32 v{V2+2*n+1}, v{V2+2*n+1}, v{s_+7}")
    def seq(*steps):
        for st in steps:
            for x in (X, X + 4): a(st(x))
    def xred(op):
        seq(lambda x: f"v_permlane32_swap_b32 v{x}, v{x+1}\nv_permlane32_swap_b32 v{x+2}, v{x+3}",
            lambda x: f"{op} v{x}, v{x}, v{x+1}\n{op} v{x+2}, v{x+2}, v{x+3}",
            lambda x: f"v_permlane16_swap_b32 v{x}, v{x+2}", lambda x: f"{op} v{x}, v{x}, v{x+2}")
    def xbc():
        seq(lambda x: f"v_mov_b32 v{x+2}, v{x}", lambda x: f"v_permlane16_swap_b32 v{x}, v{x+2}",
            lambda x: f"v_mov_b32 v{x+1}, v{x}\nv_mov_b32 v{x+3}, v{x+2}",
            lambda x: f"v_permlane32_swap_b32 v{x}, v{x+1}\nv_permlane32_swap_b32 v{x+2}, v{x+3}")
    sel = lambda n: f"op_sel:[0,{n&1},{n&1}] op_sel_hi:[1,{n&1},{n&1}]"
    for n in range(8): a(f"v_max_f32 v{X+n}, v{V2+2*n}, v{V2+2*n+1}")
    xred("v_max_f32"); seq(lambda x: f"v_mul_f32 v{x}, s31, v{x}"); xbc()
    for n in range(8): a(f"v_pk_fma_f32 {v(V2+2*n,2)}, {v(V2+2*n,2)}, v[6:7], {v(X+(n&6),2)} op_sel:[0,0,{n&1}] op_sel_hi:[1,0,{n&1}] neg_lo:[0,0,1] neg_hi:[0,0,1]")
    for n in range(16): a(f"v_exp_f32 v{V2+n}, v{V2+n}")
    for n in range(8): a(f"v_add_f32 v{X+n}, v{V2+2*n}, v{V2+2*n+1}")
    xred("v_add_f32"); seq(lambda x: f"v_rcp_f32 v{x}, v{x}"); xbc()
    for n in range(8): a(f"v_pk_mul_f32 {v(V2+2*n,2)}, {v(V2+2*n,2)}, {v(X+(n&6),2)} op_sel:[0,{n&1}] op_sel_hi:[1,{n&1}]")
    for n in range(8): cv(X + n, V2 + 2 * n)
    a("s_setprio 2")
    def pv(n):
        t, j = UN[n]
        return [f"v_mfma_f32_16x16x32_bf16 {v(SRS[n],4)}, {v(AV+20*j+2*(t-1),4)}, {v(P[n],4)}, 0", f"v_mfma_f32_16x16x32_bf16 {v(SRS[n]+4,4)}, {v(AW+2*(t-1),4)}, {v(P[n],4)}, 0"]
    for n in range(8):
        pm = [f"v_perm_b32 v{P[n]+i}, v{X+n}, v{X+n}, v{PM+i}" for i in range(4)]
        m = pv(n - 1) if n else ["", ""]
        a(pm[0]); a(pm[1]); a(m[0]); a(pm[2]); a(pm[3]); a(m[1])
    for m in pv(7): a(m)
    O = AQ
    for t in (4, 3, 2, 1):
        n = 2 * (4 - t); o = O + 6 * (4 - t)
        a(f"s_mov_b32 s29, {40*512*(t-1)}")
        for j in range(2):
            cv(o + 2 * j, SRS[n + j]); cv(o + 2 * j + 1, SRS[n + j] + 2)
            a(f"buffer_store_dwordx2 {v(o+2*j,2)}, v12, s[4:7], s29 offen offset:{512*j} {SC}")
        for r in range(4): a(f"v_cndmask_b32 v{SRS[n]+4+r}, v{SRS[n]+4+r}, v{SRS[n+1]+4+r}, s[94:95]")
        cv(o + 4, SRS[n] + 4); cv(o + 5, SRS[n] + 6)
        a(f"s_mov_b64 exec, s[96:97]\nbuffer_store_dwordx2 {v(o+4,2)}, v15, s[4:7], s29 offen offset:2048 {SC}\ns_mov_b64 exec, -1")
    lstamp(a, 3)
    a("s_waitcnt vmcnt(0)"); lstamp(a, 4)
    a(f"s_barrier\ns_cmp_lg_u32 s3, 0\ns_cbranch_scc1 {L}_np\ns_mov_b64 exec, 3\nv_mov_b32 v3, s48\nbuffer_store_dword v3, v14, s[44:47], 0 offen {SC}\ns_mov_b64 exec, -1")
    a.label(f"{L}_np")
    if opt("late"): lstamp(a, 5); a("s_waitcnt vmcnt(0)"); lstamp(a, 6)
    stamp(a, 4, True)

class P2:
    def __init__(s, par, ND=None):
        s.par = par; s.ND = ND or (opt("nd0", 4), 10 - opt("nd0", 4))[par]; s.tag = f"{par}{s.ND}"
        s.SLOT = 8192 + 2048 * s.ND; s.S = min(RING // s.SLOT, 8); s.AH = s.S - 2
        s.st = opt("stb%d" % par, 0); s.stm = opt("stm", 7)
        s.IN = opt("in%d" % par, 0)
        s.AA = min(opt("aha", 6), s.AH); s.GB = max(opt("gb%d" % par, 7), 11 - s.AH, 10 - s.AA)
    def adv(s): return f"s_add_u32 s37, s37, {s.SLOT}\ns_cmp_ge_u32 s37, s38\ns_cselect_b32 s42, {s.SLOT*s.S}, 0\ns_sub_u32 s37, s37, s42\ns_add_u32 s34, s34, 1" + ("\ns_cmp_ge_u32 s34, 24\ns_cselect_b32 s34, 0, s34" if s.st else "")
    def phase_b(s): return f"s_and_b32 s34, s50, {s.stm}\ns_mul_i32 s34, s34, {s.st}" if s.st else "s_mov_b32 s34, 0"
    def first(s, a, n, issue, IN=None):
        m = max(s.IN if IN is None else IN, s.AA)
        issue_n(a, m, issue)
        return lambda: [a(f"s_waitcnt vmcnt({n*(m-1-j)})\ns_barrier") for j in range(m - s.AA)]
    def setup_s(s, a):
        a(f"""
        s_load_dwordx2 s[12:13], s[0:1], {KA['w2']}
        v_lshrrev_b32 v2, 3, v1
        v_and_b32 v3, 7, v1
        v_and_b32 v4, 6, v2
        v_xor_b32 v3, v3, v4
        v_lshlrev_b32 v3, 4, v3
        v_lshl_add_u32 v2, v2, 12, v3
        s_lshl_b32 s23, s3, 17
        s_lshl_b32 s26, s50, 7
        s_add_u32 s23, s23, s26
        v_add_u32 v8, s23, v2
        """)
        for i in range(1, 4): a(f"v_add_u32 v{8+i}, {8*4096*i}, v8")
        a(f"s_lshl_b32 s23, s50, 2\ns_mul_i32 s23, s23, 40\ns_lshl_b32 s26, s3, 1\ns_add_u32 s23, s23, s26\ns_lshl_b32 s23, s23, 9\nv_lshl_add_u32 v16, v1, 4, s23")
        for i in range(1, 4): a(f"v_add_u32 v{16+i}, {40*512*i}, v16")
        a(f"s_and_b32 s23, s50, -2\ns_add_u32 s23, s23, {s.par}\ns_lshl_b32 s23, s23, 10\ns_add_u32 s23, s23, {F2}\nv_lshl_add_u32 v12, v1, 7, s23")
        a(f"s_mov_b32 s34, 0\ns_lshl_b32 s37, s3, 12\ns_add_u32 s38, s37, {s.SLOT*s.S}\ns_mov_b32 s33, 0\ns_waitcnt lgkmcnt(0)")
        srd(a, 4, 20, OT_SZ, OT_OFF)
    def early(s, a, n, vflag, tag):
        a(f"""
        s_waitcnt vmcnt({3*n})
        s_barrier
        s_waitcnt vmcnt({2*n})
        s_barrier
        s_mov_b64 exec, 0xff
        buffer_load_dword v2, v{vflag}, s[44:47], 0 offen {SC}
        s_waitcnt vmcnt({n+1})
        s_barrier
        s_waitcnt vmcnt(1)
        s_barrier
        """)
        stamp(a, 2)
        a(f"s_waitcnt vmcnt(0)\nv_cmp_ne_u32 vcc, s48, v2\ns_mov_b64 exec, -1\ns_cmp_eq_u64 vcc, 0\ns_cbranch_scc0 Lp2_{tag}{s.tag}e\ns_barrier\ns_branch Lp2_{tag}{s.tag}k")
    def loader_s(s, a):
        AH, AA = s.AH, s.AA
        s.setup_s(a)
        a.label(f"Lp2_s{s.tag}e")
        a("s_barrier")
        if s.par: w2_slow(a)
        gate(a, 12, 0xff)
        a.label(f"Lp2_s{s.tag}k")
        stamp(a, 3)
        def issue(sc):
            a(f"s_lshl_b32 s40, s34, {11 if sc else 18}" if not opt("w2wrap") else f"s_and_b32 s40, s34, 1\ns_lshl_b32 s40, s40, {11 if sc else 18}")
            for i in range(4): a(f"s_add_u32 m0, s37, {1024*i}\nbuffer_load_dwordx4 v{(16 if sc else 8)+i}, s[4:7], s40 offen {sc} lds")
            a(s.adv())
        s.first(a, 4, lambda: issue(SC), opt("ins", 0))()
        steady(a, 10, 4, AA, lambda: issue(SC))
        srd(a, 4, 12, F_ * 4096); a(s.phase_b())
        if AA < AH: a(f"s_waitcnt vmcnt({4*(AA-1)})\ns_barrier"); issue_n(a, AH - AA + 1, lambda: issue(""))
        steady(a, 34, 4, AH, lambda: issue(""))
        stamp(a, 5)
        drain(a, 4, AH)
        endp(a)
    def setup_d(s, a):
        ND = s.ND
        a(f"s_sub_u32 s22, s3, 2\ns_mul_i32 s23, s51, 68\ns_add_u32 s23, s23, s22\ns_lshl_b32 s23, s23, 10\nv_lshl_add_u32 v8, v1, 4, s23")
        for i in range(1, ND): a(f"v_add_u32 v{8+i}, {68*1024*i}, v8")
        a(f"""
        s_mul_i32 s37, s22, {1024*ND}
        s_add_u32 s37, s37, 8192
        s_add_u32 s38, s37, {s.SLOT*s.S}
        s_lshl_b32 s23, s52, 10
        s_add_u32 s23, s23, {F3}
        v_lshl_add_u32 v16, v1, 7, s23
        s_lshr_b32 s23, s51, 2
        s_lshl_b32 s23, s23, 11
        s_lshr_b32 s26, s52, 1
        s_mul_i32 s26, s26, {160*128}
        s_add_u32 s23, s23, s26
        s_add_u32 s23, s23, {F4}
        v_lshl_add_u32 v17, v1, 7, s23
        s_mov_b32 s34, 0
        s_mov_b32 s36, 48
        s_mov_b32 s33, 0
        """)
        srd(a, 8, 20, UW_SZ, UW_OFF)
    def loader_d(s, a):
        AH, AA, GB, ND = s.AH, s.AA, s.GB, s.ND
        s.setup_d(a)
        a.label(f"Lp2_d{s.tag}e")
        if s.par: gate(a, 16, 0xff); a("s_barrier")
        else: a("s_barrier"); gate(a, 16, 0xff)
        a.label(f"Lp2_d{s.tag}k")
        stamp(a, 3)
        def issue():
            a(("s_and_b32 s41, s34, 1\ns_lshl_b32 s41, s41, 1" if opt("uwrap") else "s_lshl_b32 s41, s34, 1") + "\ns_add_u32 s41, s41, s36\ns_lshl_b32 s41, s41, 10")
            for i in range(ND): a(f"s_add_u32 m0, s37, {1024*i}\nbuffer_load_dwordx4 v{8+i}, s[8:11], s41 offen {'' if opt('uplain') else SC} lds")
            a(s.adv())
        s.first(a, ND, issue)()
        steady(a, 10, ND, AA, issue)
        for j in range(10 - AA, GB): a(f"s_waitcnt vmcnt({ND*(9-j)})\ns_barrier")
        a("s_mov_b32 s36, 0\n" + s.phase_b())
        gate(a, 17, 0x0fff if ND == 4 else 0x0fff0fff)
        stamp(a, 4)
        issue_n(a, GB + AH - 10, issue)
        steady(a, 34, ND, AH, issue)
        stamp(a, 5)
        drain(a, ND, AH)
        endp(a)
    def consumer1(s, a):
        ND = s.ND; L = f"Lp2{s.tag}"
        ACB = 16; ACA = ACB + 4 * ND; KS = 4 + 4 * ND; SETS = (ACA + 4 * ND, ACA + 4 * ND + 2 * KS)
        a(f"""
        s_load_dwordx2 s[24:25], s[0:1], {KA['b2']}
        s_load_dwordx2 s[28:29], s[0:1], {KA['out']}
        s_lshl_b32 s23, s50, 6
        s_lshl_b32 s26, s3, 4
        s_add_u32 s23, s23, s26
        v_and_b32 v2, 15, v1
        v_add_u32 v2, s23, v2
        v_lshlrev_b32 v3, 1, v2
        v_lshlrev_b32 v4, 3, v2
        s_waitcnt lgkmcnt(0)
        """)
        srd(a, 24, 24, 4096); srd(a, 8, 20, G_SZ, G_OFF); srd(a, 28, 28, S_ * 1280)
        a(f"""
        buffer_load_ushort v10, v3, s[24:27], 0 offen
        s_setprio 0
        v_lshrrev_b32 v5, 2, v1
        v_lshrrev_b32 v6, 1, v5
        v_and_b32 v6, 3, v6
        v_xor_b32 v6, s3, v6
        v_lshlrev_b32 v6, 5, v6
        v_lshl_add_u32 v5, v5, 7, v6
        v_and_b32 v6, 3, v1
        v_lshl_add_u32 v8, v6, 3, v5
        v_lshlrev_b32 v9, 4, v1
        v_add_u32 v9, 8192, v9
        v_mul_u32_u24 v12, 1280, v2
        v_lshrrev_b32 v6, 4, v1
        v_lshl_add_u32 v12, v6, 3, v12
        s_lshl_b32 s26, s51, 5
        v_add_u32 v12, s26, v12
        s_lshl_b32 s26, s3, 10
        v_lshl_add_u32 v13, v1, 3, s26
        v_and_b32 v14, 1, v6
        v_mul_u32_u24 v14, 24, v14
        v_add_u32 v14, v14, v12
        """)
        for i in range(4 * ND): a(f"v_mov_b32 v{ACA+i}, 0")
        def reads(st, ph="b"):
            r = []
            for kk in range(2):
                b = SETS[st] + KS * kk
                if ph == "a": r += [(f"ds_read_b64 {v(b,2)}, v13 offset:{kk*4096}", (kk, "b0")), (f"ds_read_b64 {v(b+2,2)}, v13 offset:{kk*4096+512}", (kk, "b1"))]
                else: r += [(f"ds_read_b64_tr_b16 {v(b,2)}, v8 offset:{kk*4096}", (kk, "b0")), (f"ds_read_b64_tr_b16 {v(b+2,2)}, v8 offset:{kk*4096+2048}", (kk, "b1"))]
                r += [(f"ds_read_b128 {v(b+4+4*dt,4)}, v9 offset:{(kk*ND+dt)*1024}", (kk, dt)) for dt in range(ND)]
            return r
        def mf(acc, st):
            return [(f"v_mfma_f32_16x16x32_bf16 {v(acc+4*dt,4)}, {v(SETS[st]+KS*kk+4+4*dt,4)}, {v(SETS[st]+KS*kk,4)}, {v(acc+4*dt,4)}", {(kk, "b1"), (kk, dt)}) for kk in range(2) for dt in range(ND)]
        ids = [x[1] for x in reads(0)]
        adv = slot_adv(s.SLOT, s.S) + ["v_add_u32 v8, s40, v8", "v_add_u32 v9, s40, v9"]
        a("s_mov_b32 s33, 0\ns_mov_b32 s37, 0\ns_barrier"); stamp(a, 5, True)
        adva = adv + ["v_add_u32 v13, s40, v13"]
        emit_step(a, [], [], reads(0, "a"), adva)
        a.label(f"{L}_ca", 3)
        a("s_barrier")
        emit_step(a, mf(ACA, 0), ids, reads(1, "a"), adva + ["s_add_u32 s33, s33, 2", "s_cmp_ge_u32 s33, 10"])
        a(f"s_barrier\ns_cbranch_scc1 {L}_cax")
        emit_step(a, mf(ACA, 1), ids, reads(0, "a"), adva)
        a(f"s_branch {L}_ca")
        a.label(f"{L}_cax")
        emit_step(a, mf(ACA, 1), ids, reads(0, "b"), adv)
        a(f"s_waitcnt vmcnt(0)\nbuffer_load_dwordx2 v[6:7], v4, s[8:11], 0 offen {SC}\nv_lshlrev_b32 v10, 16, v10")
        for i in range(4 * ND): a(f"v_mov_b32 v{ACB+i}, v10")
        a.label(f"{L}_cb", 3)
        a("s_barrier")
        emit_step(a, mf(ACB, 0), ids, reads(1), adv + ["s_add_u32 s33, s33, 2", "s_cmp_ge_u32 s33, 34"])
        a(f"s_cbranch_scc1 {L}_clast\ns_barrier")
        emit_step(a, mf(ACB, 1), ids, reads(0), adv)
        a(f"s_branch {L}_cb")
        a.label(f"{L}_clast")
        emit_step(a, mf(ACB, 1), ids, [], [])
        stamp(a, 6)
        a(f"""
        s_mov_b32 s49, 0
        {L}_g:
        s_waitcnt vmcnt(0)
        v_cmp_ne_u32 vcc, s48, v7
        s_add_u32 s49, s49, 1
        s_cmp_eq_u64 vcc, 0
        s_cbranch_scc1 {L}_gk
        buffer_load_dwordx2 v[6:7], v4, s[8:11], 0 offen {SC}
        s_cmp_lt_u32 s49, 20000
        s_cbranch_scc1 {L}_g
        s_waitcnt vmcnt(0)
        {L}_gk:
        """)
        aux = 'sc1' if opt('osc1') else ''; O = SETS[0]
        for dt in range(ND):
            for r in range(0, 4, 2): a(f"v_pk_add_f32 {v(ACA+4*dt+r,2)}, {v(ACA+4*dt+r,2)}, {v(ACB+4*dt+r,2)} neg_lo:[0,1] neg_hi:[0,1]")
            for r in range(0, 4, 2): a(f"v_pk_fma_f32 {v(ACB+4*dt+r,2)}, {v(ACA+4*dt+r,2)}, v[6:7], {v(ACB+4*dt+r,2)} op_sel_hi:[1,0,1]")
            a(f"v_cvt_pk_bf16_f32 v{O+2*dt}, v{ACB+4*dt}, v{ACB+4*dt+1}\nv_cvt_pk_bf16_f32 v{O+1+2*dt}, v{ACB+4*dt+2}, v{ACB+4*dt+3}")
            if dt & 1:
                b = O + 2 * (dt - 1)
                a(f"v_permlane16_swap_b32 v{b}, v{b+2}\nv_permlane16_swap_b32 v{b+1}, v{b+3}\nbuffer_store_dwordx4 {v(b,4)}, v14, s[28:31], 0 offen offset:{32*(dt-1)} {aux}")
            elif dt == ND - 1: a(f"buffer_store_dwordx2 {v(O+2*dt,2)}, v12, s[28:31], 0 offen offset:{32*dt} {aux}")
        endp(a)
    def consumer(s, a):
        if s.ND % 2: return s.consumer1(a)
        ND = s.ND; NH = ND // 2; L = f"Lp2{s.tag}"
        ACB = 20; ACA = ACB + 8 * NH; KS = 8 + 4 * NH; SETS = (ACA + 8 * NH, ACA + 8 * NH + 2 * KS)
        a(f"""
        s_load_dwordx2 s[24:25], s[0:1], {KA['b2']}
        s_load_dwordx2 s[28:29], s[0:1], {KA['out']}
        s_and_b32 s27, s3, 2
        s_lshl_b32 s23, s50, 6
        s_lshl_b32 s26, s27, 4
        s_add_u32 s23, s23, s26
        v_and_b32 v2, 15, v1
        v_add_u32 v2, s23, v2
        v_lshlrev_b32 v3, 1, v2
        v_lshlrev_b32 v4, 3, v2
        s_and_b32 s22, s3, 1
        s_mul_i32 s22, s22, {NH}
        v_lshrrev_b32 v5, 2, v1
        v_lshrrev_b32 v6, 1, v5
        v_and_b32 v6, 3, v6
        v_xor_b32 v6, s27, v6
        v_lshlrev_b32 v6, 5, v6
        v_lshl_add_u32 v5, v5, 7, v6
        v_and_b32 v6, 3, v1
        v_lshl_add_u32 v8, v6, 3, v5
        v_xor_b32 v15, 32, v8
        s_lshl_b32 s23, s22, 10
        s_add_u32 s23, s23, 8192
        v_lshl_add_u32 v9, v1, 4, s23
        s_lshl_b32 s23, s27, 10
        v_lshl_add_u32 v13, v1, 3, s23
        v_mul_u32_u24 v12, 1280, v2
        v_lshrrev_b32 v6, 4, v1
        v_lshl_add_u32 v12, v6, 3, v12
        s_add_u32 s23, s22, s51
        s_lshl_b32 s23, s23, 5
        v_add_u32 v12, s23, v12
        v_and_b32 v14, 1, v6
        v_mul_u32_u24 v14, 24, v14
        v_add_u32 v14, v14, v12
        s_waitcnt lgkmcnt(0)
        """)
        srd(a, 24, 24, 4096); srd(a, 8, 20, G_SZ, G_OFF); srd(a, 28, 28, S_ * 1280)
        a("buffer_load_ushort v10, v3, s[24:27], 0 offen\nbuffer_load_ushort v11, v3, s[24:27], 0 offen offset:32\ns_setprio 0")
        for i in range(8 * NH): a(f"v_mov_b32 v{ACA+i}, 0")
        def reads(st, ph="b"):
            r = []
            for kk in range(2):
                b = SETS[st] + KS * kk
                def bread(t):
                    if ph == "a": return [(f"ds_read_b64 {v(b+4*t+2*h,2)}, v13 offset:{kk*4096+1024*t+512*h}", (kk, "b", t, h)) for h in range(2)]
                    return [(f"ds_read_b64_tr_b16 {v(b+4*t+2*h,2)}, v{(8, 15)[t]} offset:{kk*4096+2048*h}", (kk, "b", t, h)) for h in range(2)]
                r += bread(0) + [(f"ds_read_b128 {v(b+8+4*dt,4)}, v9 offset:{(kk*ND+dt)*1024}", (kk, dt)) for dt in range(NH)] + bread(1)
            return r
        def mf(acc, st):
            return [(f"v_mfma_f32_16x16x32_bf16 {v(acc+4*(NH*t+dt),4)}, {v(SETS[st]+KS*kk+8+4*dt,4)}, {v(SETS[st]+KS*kk+4*t,4)}, {v(acc+4*(NH*t+dt),4)}", {(kk, "b", t, 1), (kk, dt)})
                    for kk in range(2) for t in range(2) for dt in range(NH)]
        ids = [x[1] for x in reads(0)]
        adv = slot_adv(s.SLOT, s.S) + ["v_add_u32 v8, s40, v8", "v_add_u32 v15, s40, v15", "v_add_u32 v9, s40, v9"]
        a("s_mov_b32 s33, 0\ns_mov_b32 s37, 0\ns_barrier"); stamp(a, 5, True)
        adva = adv + ["v_add_u32 v13, s40, v13"]
        emit_step(a, [], [], reads(0, "a"), adva)
        a.label(f"{L}_ca", 3)
        a("s_barrier")
        emit_step(a, mf(ACA, 0), ids, reads(1, "a"), adva + ["s_add_u32 s33, s33, 2", "s_cmp_ge_u32 s33, 10"])
        a(f"s_barrier\ns_cbranch_scc1 {L}_cax")
        emit_step(a, mf(ACA, 1), ids, reads(0, "a"), adva)
        a(f"s_branch {L}_ca")
        a.label(f"{L}_cax")
        emit_step(a, mf(ACA, 1), ids, reads(0, "b"), adv)
        gl = f"buffer_load_dwordx2 v[16:17], v4, s[8:11], 0 offen {SC}\nbuffer_load_dwordx2 v[18:19], v4, s[8:11], 0 offen offset:128 {SC}"
        a(f"s_waitcnt vmcnt(0)\n{gl}\nv_lshlrev_b32 v10, 16, v10\nv_lshlrev_b32 v11, 16, v11")
        for i in range(8 * NH): a(f"v_mov_b32 v{ACB+i}, v{10 + i // (4 * NH)}")
        a.label(f"{L}_cb", 3)
        a("s_barrier")
        emit_step(a, mf(ACB, 0), ids, reads(1), adv + ["s_add_u32 s33, s33, 2", "s_cmp_ge_u32 s33, 34"])
        a(f"s_cbranch_scc1 {L}_clast\ns_barrier")
        emit_step(a, mf(ACB, 1), ids, reads(0), adv)
        a(f"s_branch {L}_cb")
        a.label(f"{L}_clast")
        emit_step(a, mf(ACB, 1), ids, [], [])
        stamp(a, 6)
        a(f"""
        s_mov_b32 s49, 0
        s_mov_b32 s22, {16*1280}
        {L}_g:
        s_waitcnt vmcnt(0)
        v_cmp_ne_u32 vcc, s48, v17
        v_cmp_ne_u32 s[26:27], s48, v19
        s_add_u32 s49, s49, 1
        s_or_b64 vcc, vcc, s[26:27]
        s_cbranch_scc0 {L}_gk
        {gl}
        s_cmp_lt_u32 s49, 20000
        s_cbranch_scc1 {L}_g
        s_waitcnt vmcnt(0)
        {L}_gk:
        """)
        O = SETS[0]
        for t in range(2):
            so = "s22" if t else "0"
            for dt in range(NH):
                x = 4 * (NH * t + dt); o = O + 8 * t + 2 * dt
                for r in (0, 2): a(f"v_pk_add_f32 {v(ACA+x+r,2)}, {v(ACA+x+r,2)}, {v(ACB+x+r,2)} neg_lo:[0,1] neg_hi:[0,1]")
                for r in (0, 2): a(f"v_pk_fma_f32 {v(ACB+x+r,2)}, {v(ACA+x+r,2)}, {v(16+2*t,2)}, {v(ACB+x+r,2)} op_sel_hi:[1,0,1]")
                a(f"v_cvt_pk_bf16_f32 v{o}, v{ACB+x}, v{ACB+x+1}\nv_cvt_pk_bf16_f32 v{o+1}, v{ACB+x+2}, v{ACB+x+3}")
                if dt == 1:
                    b = o - 2
                    a(f"v_permlane16_swap_b32 v{b}, v{b+2}\nv_permlane16_swap_b32 v{b+1}, v{b+3}\nbuffer_store_dwordx4 {v(b,4)}, v14, s[28:31], {so} offen")
                elif dt == 2: a(f"buffer_store_dwordx2 {v(o,2)}, v12, s[28:31], {so} offen offset:64")
        endp(a)

def gen_main(a, name):
    kernel_head(a, name)
    if PROF:
        for i in range(1, 8): a(f"s_mov_b64 s[{70+2*i}:{71+2*i}], 0")
        stamp(a, 0); a("s_memtime s[66:67]")
    a(f"""
    s_cmp_ge_u32 s2, 256
    s_cbranch_scc1 Lend
    {"s_and_b32 s22, s2, 7" + chr(10) + "s_lshl_b32 s22, s22, 5" + chr(10) + "s_lshr_b32 s2, s2, 3" + chr(10) + "s_or_b32 s2, s2, s22" if opt("perm") else ""}
    s_load_dwordx2 s[20:21], s[0:1], {KA['ws']}
    v_lshrrev_b32 v1, 6, v0
    v_readfirstlane_b32 s3, v1
    v_and_b32 v1, 63, v0
    {"s_and_b32 s52, s2, 3" + chr(10) + "s_lshl_b32 s52, s52, 1" + chr(10) + "s_bfe_u32 s53, s2, 0x10002" + chr(10) + "s_or_b32 s52, s52, s53" if opt("lo") else "s_and_b32 s52, s2, 7"}
    s_lshr_b32 s53, s2, 3
    s_lshr_b32 s22, s52, 1
    s_lshl_b32 s50, s22, 3
    s_and_b32 s23, s53, 7
    s_add_u32 s50, s50, s23
    s_lshr_b32 s26, s53, 3
    """)
    if PROF: a("s_mov_b32 s69, s3")
    NG = 15 if opt("mixed") else 30
    a("s_cmp_ge_u32 s53, 16\ns_cbranch_scc1 Lrole_qa" if opt("mixed") else "s_bitcmp1_b32 s52, 0\ns_cbranch_scc1 Lrole_qa")
    PE, PO = P2(0), P2(1)
    MX = opt("mix", 0)
    a(f"s_and_b32 s54, s23, {MX}\ns_cselect_b32 s51, 5, {PE.ND}\ns_mul_i32 s51, s51, s26")
    a(f"""
    {"s_lshl_b32 s19, s52, 4" if opt("mixed") else "s_lshl_b32 s19, s22, 5"}
    s_add_u32 s19, s19, s53
    s_mul_i32 s17, s53, 86
    s_lshr_b32 s17, s17, 8
    s_mul_i32 s23, s17, 3
    s_sub_u32 s23, s53, s23
    s_mul_i32 s16, s22, 3
    s_add_u32 s16, s16, s23
    """)
    if opt("mixed"): a("s_and_b32 s26, s52, 1\ns_mul_i32 s26, s26, 5\ns_add_u32 s17, s17, s26")
    if opt("sweep"): a("s_mov_b32 s18, 0")
    else: a("s_mul_i32 s18, s17, 205\ns_lshr_b32 s18, s18, 6")
    a("s_cmp_ge_u32 s3, 4\ns_cbranch_scc1 Lg_cons\ns_setprio 1\ns_cmp_ge_u32 s3, 2\ns_cbranch_scc1 Lg_h")
    def flags():
        a(f"s_waitcnt lgkmcnt(0)"); srd(a, 44, 20, FL_SZ, FL_OFF); a(f"s_load_dword s48, s[44:45], {FZ}")
    a(f"s_load_dwordx2 s[4:5], s[0:1], {KA['w1']}"); flags()
    a(f"s_cmp_ge_u32 s53, {NG}\ns_cbranch_scc1 Lsp_w")
    a("; ---- even slots, waves 0-1: w1 tiles"); g1_loader_w(a)
    a.label("Lsp_w"); a("; ---- spare workgroups, waves 0-3: wo -> fragments")
    if opt("sweep"): w1_sweep(a)
    else: a("s_barrier"); tag_ready(a); a("s_barrier")
    a.label("Lsp_l"); a("s_mov_b32 s16, s52" if opt("mixed") else "s_lshr_b32 s16, s52, 1\ns_lshl_b32 s16, s16, 1\ns_add_u32 s16, s16, s53\ns_sub_u32 s16, s16, 30"); spare_loader(a)
    a("s_cmp_ge_u32 s3, 2\ns_cbranch_scc1 Lp2_d0\ns_branch Lp2_s0")
    a.label("Lg_h"); code_prefetch(a)
    if opt("mixed"):
        a(f"s_load_dwordx2 s[4:5], s[0:1], {KA['w1']}"); flags(); w1_sweep(a)
        a("s_cmp_ge_u32 s53, 15\ns_cbranch_scc1 Lsp_l")
    else:
        flags(); a("s_cmp_lt_u32 s53, 30\ns_cbranch_scc1 Lg_h2\ns_barrier"); tag_ready(a); a("s_barrier\ns_branch Lsp_l")
    a.label("Lg_h2"); a("; ---- even slots, waves 2-3: h tiles"); g1_loader_h(a)
    a.label("Lg_cons"); a("; ---- even slots, waves 4-7: layernorm, then the first MLP GEMM")
    a(f"s_setprio 2\ns_load_dwordx2 s[4:5], s[0:1], {KA['x']}\ns_load_dwordx2 s[8:9], s[0:1], {KA['gw']}\ns_sub_u32 s3, s3, 4")
    ln_issue(a)
    srd(a, 44, 20, FL_SZ, FL_OFF)
    a(f"v_mov_b32 v2, {CTR}\nv_mov_b32 v6, 0\nv_mov_b32 v7, 0\nv_mov_b32 v8, 0\nv_mov_b32 v9, 0\nds_write_b128 v2, v[6:9]\ns_waitcnt lgkmcnt(0)\ns_barrier\ns_load_dword s48, s[44:45], {FZ}")
    ln_finish(a); stamp(a, 1, True)
    a(f"s_cmp_ge_u32 s53, {NG}\ns_cbranch_scc1 Lsp_cons")
    g1_consumer(a); a("s_branch Lp2_c0")
    a.label("Lsp_cons")
    if (opt("sweep") and not opt("noslowcol")):
        R0, SW = opt("sc0", 1024), opt("scw", 1)
        a(f"""
        s_load_dwordx2 s[4:5], s[0:1], {KA['w1']}
        s_lshr_b32 s22, s52, 1
        s_cmp_eq_u32 s22, 2
        s_cselect_b32 s23, 4, s3
        s_cmp_ge_u32 s23, {SW}
        s_cbranch_scc1 Lsc_done
        s_min_u32 s22, s22, 2
        s_lshl_b32 s22, s22, 10
        s_add_u32 s22, s22, {384 + R0 * 3072}
        s_and_b32 s23, s53, 1
        s_mul_i32 s23, s23, {SW}
        s_add_u32 s23, s23, s3
        s_lshl_b32 s23, s23, 6
        v_add_u32 v2, s23, v1
        v_mul_u32_u24 v2, 3072, v2
        s_mov_b32 s33, 0
        s_waitcnt lgkmcnt(0)
        """)
        srd(a, 4, 4, S_ * 3072)
        a(f"Lsc_l:\nbuffer_load_dword v3, v2, s[4:7], s22 offen\ns_add_u32 s22, s22, {128*SW*3072}\ns_add_u32 s33, s33, 1\ns_cmp_lt_u32 s33, {-(-(2048-R0)//(128*SW))}\ns_waitcnt vmcnt(0)\ns_cbranch_scc1 Lsc_l\nLsc_done:\ns_waitcnt lgkmcnt(0)")
    a("s_barrier")
    nw, r0, nr = opt("cw", 2), opt("cr0", 384), opt("cnr", 768)
    if nw:
        a(f"""
        s_cmp_ge_u32 s3, {nw}
        s_cbranch_scc1 Lc3_d
        s_load_dwordx2 s[12:13], s[0:1], {KA['w2']}
        s_lshr_b32 s22, s50, 1
        s_lshl_b32 s22, s22, 11
        s_add_u32 s22, s22, {F2}
        v_mov_b32 v12, s22
        """)
        gate(a, 12, 1)
        a(f"""
        s_and_b32 s22, s53, 1
        s_mul_i32 s22, s22, {nw}
        s_add_u32 s22, s22, s3
        s_lshl_b32 s22, s22, 6
        v_add_u32 v2, s22, v1
        v_lshlrev_b32 v2, 12, v2
        s_lshr_b32 s22, s52, 1
        s_lshl_b32 s22, s22, 10
        s_add_u32 s22, s22, {384 + r0 * 4096}
        s_mov_b32 s33, 0
        s_waitcnt lgkmcnt(0)
        """)
        srd(a, 12, 12, F_ * 4096)
        a(f"Lc3_l:\nbuffer_load_dword v30, v2, s[12:15], s22 offen\ns_add_u32 s22, s22, {128*nw*4096}\ns_add_u32 s33, s33, 1\ns_cmp_lt_u32 s33, {nr//(128*nw)}\ns_waitcnt vmcnt(0)\ns_cbranch_scc1 Lc3_l\nLc3_d:")
    a("s_lshl_b32 s22, s3, 8\ns_add_u32 s22, s22, s2\ns_cmp_lg_u32 s22, 240\ns_cbranch_scc1 Lp2_c0"); step_tag(a); a("s_branch Lp2_c0")
    a.label("Lrole_qa"); a("; ---- odd slots: qkv projection + attention")
    a(f"s_and_b32 s54, s23, {MX}\ns_cselect_b32 s51, 5, {PO.ND}\ns_cselect_b32 s27, 20, {4*PE.ND}\ns_mul_i32 s51, s51, s26\ns_add_u32 s51, s51, s27")
    if opt("mixed"): a("s_and_b32 s23, s53, 3\ns_lshl_b32 s16, s22, 2\ns_add_u32 s16, s16, s23\ns_lshr_b32 s26, s53, 2\ns_and_b32 s26, s26, 3\ns_and_b32 s17, s52, 1\ns_lshl_b32 s17, s17, 2\ns_add_u32 s17, s17, s26")
    else: a(f"""
    s_and_b32 s16, s22, 1
    s_lshl_b32 s16, s16, 3
    s_add_u32 s16, s16, s23
    s_lshr_b32 s17, s22, 1
    s_lshl_b32 s17, s17, 2
    s_add_u32 s17, s17, s26
    """)
    if opt("nsq"): a("s_mov_b32 s18, 0")
    elif opt("mixed"): a("s_add_u32 s18, s26, s23\ns_and_b32 s18, s18, 3\ns_mul_i32 s18, s18, 10\ns_lshr_b32 s18, s18, 2")
    else: a("s_lshl_b32 s18, s26, 1\ns_add_u32 s18, s18, s23\ns_and_b32 s18, s18, 7\ns_mul_i32 s18, s18, 10\ns_lshr_b32 s18, s18, 3")
    a(f"s_cmp_ge_u32 s3, 4\ns_cbranch_scc1 Lq_cons\ns_setprio 1\ns_cmp_eq_u32 s3, 3\ns_cbranch_scc1 Lq_idle")
    a(f"s_load_dwordx2 s[4:5], s[0:1], {KA['x']}\ns_load_dwordx2 s[8:9], s[0:1], {KA['wqkv']}"); qa_w1_sweep(a); flags(); qa_loader(a)
    a("s_cmp_ge_u32 s3, 2\ns_cbranch_scc1 Lp2_d1\ns_branch Lp2_s1")
    a.label("Lq_idle"); a(f"s_load_dwordx2 s[4:5], s[0:1], {KA['x']}\ns_load_dwordx2 s[8:9], s[0:1], {KA['wqkv']}"); flags(); qa_idle(a); a("s_branch Lp2_d1")
    a.label("Lq_cons"); a("s_sub_u32 s3, s3, 4"); flags()
    qa_consumer(a)
    for p in (PO, PE):
        for k, f in (("c", P2.consumer), ("s", P2.loader_s), ("d", P2.loader_d)):
            a.label(f"Lp2_{k}{p.par}"); a(f"; ---- output tile 64 x {16*p.ND}: " + dict(c="MFMA waves", s="loader of o / w2", d="loader of wo / u")[k])
            if MX: a(f"s_cmp_lg_u32 s54, 0\ns_cbranch_scc1 Lp2_{k}{p.par}x")
            f(p, a)
            if MX: a.label(f"Lp2_{k}{p.par}x"); f(P2(p.par, 5), a)
    a.label("Lend"); a("s_endpgm")
    a.raw("Lcode_end:")
    return kernel_desc(name, 256, 102)

def gen_osc(a, name):
    kernel_head(a, name)
    o = next(o for o in OPTS if o.startswith("osc"))[3:].split("_")
    a(f"s_cmp_ge_u32 s2, 1\ns_cbranch_scc1 Losc_end\ns_load_dwordx2 s[4:5], s[0:1], {KA['ws']}\ns_waitcnt lgkmcnt(0)")
    srd(a, 4, 4, 0x100000, TL_OFF + (0x80000 if opt("pthr") else 0x40000))
    def red(dst, base, stride, count, wave, slot, op):
        n = -(-count // 64)
        for i in range(n):
            a(f"v_add_u32 v1, {64*i}, v0\nv_min_u32 v1, {count-1}, v1\nv_mul_u32_u24 v1, {stride}, v1\nv_add_u32 v1, {base}, v1\nv_lshlrev_b32 v1, 9, v1\ns_mov_b32 s8, {wave*64 + slot*4}")
            a(f"buffer_load_dword v{4+i}, v1, s[4:7], s8 offen")
        a("s_waitcnt vmcnt(0)")
        if op == "add":
            for i in range(n): a(f"v_subrev_u32 v{4+i}, s20, v{4+i}")
        for i in range(1, n): a(f"v_{op}_u32 v4, v4, v{4+i}")
        a(f"v_readlane_b32 s{dst}, v4, 0")
        for i in range(1, 64): a(f"v_readlane_b32 s9, v4, {i}\ns_nop 0\ns_{op}_u32 s{dst}, s{dst}, s9")
        if op == "add": a(f"s_lshr_b32 s{dst}, s{dst}, {(64*n).bit_length()-1}\ns_add_u32 s{dst}, s{dst}, s20")
    red(20, 0, 1, 256, 0, 0, "min")
    if len(o) > 1:
        red(21, int(o[0]), int(o[1]), int(o[2]), int(o[3]), int(o[4]), dict(n="min", x="max", a="add")[o[5]])
        a("s_sub_u32 s21, s21, s20\ns_min_u32 s21, s21, 20000\ns_lshl_b32 s21, s21, 2")
    else: a("s_mov_b32 s21, 0")
    a("s_add_u32 s21, s21, 10000\nLosc_spin:\ns_memrealtime s[10:11]\ns_waitcnt lgkmcnt(0)\ns_sub_u32 s10, s10, s20\ns_cmp_lt_u32 s10, s21\ns_cbranch_scc1 Losc_spin")
    a.label("Losc_end"); a("s_endpgm")
    return kernel_desc(name, 16, 32)

def gen_probe(a, name, vg):
    kernel_head(a, name)
    a(f"s_memrealtime s[70:71]\ns_cmp_ge_u32 s2, 256\ns_cbranch_scc1 Lpr_end\ns_load_dwordx2 s[4:5], s[0:1], {KA['ws']}\ns_waitcnt lgkmcnt(0)")
    srd(a, 4, 4, 0x100000, TL_OFF + 0x80000)
    a("s_lshl_b32 s8, s2, 9\nv_mov_b32 v1, s8\nv_mov_b32 v2, s70\nv_cmp_eq_u32 vcc, 0, v0\ns_and_saveexec_b64 s[10:11], vcc\ns_cbranch_execz Lpr_end\nbuffer_store_dword v2, v1, s[4:7], 0 offen")
    a.label("Lpr_end"); a("s_endpgm")
    return kernel_desc(name, vg, 102)

DOC = """;
; waves 4-7 read fragments and run v_mfma_f32_16x16x32_bf16; one s_barrier per K step).  id&7 picks the role; that
; Hand-offs through d_ws: write-through (sc1) stores, s_waitcnt vmcnt(0) in every storing wave, then one flag per
;"""

def build(spec=""):
    global PROF
    OPTS[:] = [o for o in spec.split("+") if o]; PROF = bool(opt("prof")); UID[0] = 0
    ref = open(f"cdna_kernels/{NAME}.s.ref").read().split("\n")
    head = ref[:ref.index(next(x for x in ref if x.startswith("; Override")))]
    a = Asm(); a.raw("\n".join(head))
    if opt("lo"): a.raw("; lo")
    osc = any(o.startswith("osc") and o != "osc1" for o in OPTS)
    if opt("pthr"): a.raw(f"; @launch kernel=probe_kernel grid=(256,1,1) block=({opt('pthr')},1,1) lds={opt('plds', 0)}")
    if osc: a.raw(f"; @launch kernel={NAME}_kernel grid=(256,1,1) block=(512,1,1) lds={LDS_SZ}\n; @launch kernel=osc_kernel grid=(1,1,1) block=(64,1,1) lds=0")
    else: a.raw(f"; @launch grid=(256,1,1) block=(512,1,1) lds={LDS_SZ}")
    a.raw(DOC)
    a.raw('.amdgcn_target "amdgcn-amd-amdhsa--gfx950"')
    d = gen_main(a, NAME + "_kernel")
    if osc: d += gen_osc(a, "osc_kernel")
    if opt("pthr"): d += gen_probe(a, "probe_kernel", opt("pvg"))
    if opt("nocomp"): a.lines = [(t, c) for t, c in a.lines if not (c is not None and (c.kind == "mfma" or c.op.startswith("ds_read")))]
    if opt("noload"): a.lines = [(t, c) for t, c in a.lines if not (c is not None and c.kind == "vmem" and c.lds)]
    if opt("nomfma"): a.lines = [(t, c) for t, c in a.lines if not (c is not None and c.kind == "mfma")]
    if opt("nods"): a.lines = [(t, c) for t, c in a.lines if not (c is not None and c.op.startswith("ds_read"))]
    if opt("nowait"): a.lines = [(t, c) for t, c in a.lines if not (c is not None and c.op == "s_waitcnt" and "lgkm" in t and "(0)" not in t)]
    if opt("al"): a.align_hot([("Lg1_c", "Lg1_clast"), ("Lp2_ca", "Lp2_cax"), ("Lp2_cb", "Lp2_clast")])
    if opt("lp") is not None: a.lines = [((t.replace("s_setprio 1", f"s_setprio {opt('lp')}"), c) if c is not None and c.op == "s_setprio" else (t, c)) for t, c in a.lines]
    bad = a.check_branches()
    for b in bad: print("HAZARD across branch:", b, file=sys.stderr)
    assert not bad
    a.raw(d)
    return a.text()

if __name__ == "__main__":
    open(sys.argv[2] if len(sys.argv) > 2 else f"cdna_kernels/{NAME}.s", "w").write(build(sys.argv[1] if len(sys.argv) > 1 else ""))
```

```python
import sys, struct
from dsl import *

NAME = "gated_mix__sliding_local_dilated__mixer_token_mlp__prompt"
S_, D_, F_ = 2048, 640, 1536
KA = dict(x=0, wqkv=8, wo=16, w1=32, b1=40, w2=48, b2=56, gw=64, out=72, dbg=80, ws=88)
H_OFF, OT_OFF, UW_OFF, G_OFF, FL_OFF = 0, 0x280000, 0x500000, 0x800000, 0x810000
H_SZ, OT_SZ, UW_SZ, G_SZ, FL_SZ = 2621440, 2621440, 40 * 68 * 1024, 16384, 0x70000
F1, F2, F4, FZ, F3 = 0, 0x20000, 0x28000, 0x40000, 0x50000
RING = 163840; CTR = RING - 64; LDS_SZ = RING
LOG2E = 1.4426950408889634
OPTS = []; PROF = False; TL_OFF = 0x1000000
SC = "sc1"
def f2u(x): return "0x%08x" % struct.unpack("<I", struct.pack("<f", x))[0]
def v(n, k=1): return f"v{n}" if k == 1 else f"v[{n}:{n+k-1}]"
def opt(name, default=None):
    for o in OPTS:
        if o == name: return True
        if o.startswith(name + "="): return int(o.split("=")[1])
    return default

def srd(a, d, base, size, off=0):
    if off: a(f"s_add_u32 s{d}, s{base}, {off}\ns_addc_u32 s{d+1}, s{base+1}, 0")
    elif d != base: a(f"s_mov_b32 s{d}, s{base}\ns_mov_b32 s{d+1}, s{base+1}")
    a(f"s_mov_b32 s{d+2}, {size}\ns_mov_b32 s{d+3}, 0x20000")

def estamp(a, i):
    if PROF and opt("early"): a(f"s_memrealtime s[{70+2*i}:{71+2*i}]\ns_waitcnt lgkmcnt(0)")
def lstamp(a, i):
    if PROF and opt("late"): a(f"s_memrealtime s[{70+2*i}:{71+2*i}]\ns_waitcnt lgkmcnt(0)")
def stamp(a, i, wait=False):
    if PROF and opt("clk"):
        k = {2: 1, 3: 3, 6: 5}.get(i)
        if i == 0: a("s_memrealtime s[70:71]")
        elif k and (wait or i == 6): a(f"s_memrealtime s[{70+2*k}:{71+2*k}]\ns_memtime s[{72+2*k}:{73+2*k}]\ns_waitcnt lgkmcnt(0)")
        return
    if PROF and (i == 0 or not (opt("early") or opt("late"))): a(f"s_memrealtime s[{70+2*i}:{71+2*i}]" + ("\ns_waitcnt lgkmcnt(0)" if wait else ""))
def endp(a):
    if PROF:
        a(f"""
        s_waitcnt vmcnt(0)
        s_memrealtime s[84:85]
        s_memtime s[86:87]
        s_waitcnt lgkmcnt(0)
        s_sub_u32 s86, s86, s66
        s_add_u32 s60, s20, {TL_OFF + 0x40000}
        s_addc_u32 s61, s21, 0
        s_mov_b32 s62, 0x40000
        s_mov_b32 s63, 0x20000
        s_mov_b64 exec, 1
        s_lshl_b32 s64, s2, 3
        s_add_u32 s64, s64, s69
        s_lshl_b32 s64, s64, 6
        v_mov_b32 v0, s64
        """)
        for i in range(8): a(f"v_mov_b32 v{4+i}, s{70+2*i}")
        a("v_mov_b32 v12, s86")
        a("buffer_store_dwordx4 v[4:7], v0, s[60:63], 0 offen\nbuffer_store_dwordx4 v[8:11], v0, s[60:63], 0 offen offset:16\nbuffer_store_dword v12, v0, s[60:63], 0 offen offset:32")
    a("s_endpgm")

def emit_step(a, M, prev_ids, R, extra, per_gap=2, head=2):
    q = list(prev_ids); fill = [("r", x) for x in R] + [("x", x) for x in extra]
    def put(n):
        for _ in range(n):
            if not fill: return
            k, x = fill.pop(0)
            if k == "r": a(x[0]); q.append(("n", x[1]))
            else: a(x)
    put(head)
    for text, need_ in M:
        idx = [i for i, t in enumerate(q) if t in need_]
        if idx:
            n = min(len(q) - 1 - idx[-1], 15)
            a(f"s_waitcnt lgkmcnt({n})"); del q[:len(q) - n]
        a(text); put(per_gap)
    put(len(fill))

def slot_adv(SLOT, S):
    return [f"s_add_u32 s40, s37, {SLOT}", f"s_cmp_ge_u32 s40, {SLOT*S}", "s_cselect_b32 s41, 0, s40", "s_sub_u32 s40, s41, s37", "s_mov_b32 s37, s41"]

def thr(name, default):
    t = opt("t" + name, default if opt("thr") else 0)
    return f"s_waitcnt vmcnt({t-1})\n" if t else ""
UID = [0]
def uid(p): UID[0] += 1; return f"{p}{UID[0]}"

def issue_n(a, n, issue):
    L = uid("Li")
    a(f"s_add_u32 s32, s33, {n}")
    a.label(L); issue()
    a(f"s_add_u32 s33, s33, 1\ns_cmp_lt_u32 s33, s32\ns_cbranch_scc1 {L}")
def steady(a, upto, n, ahead, issue):
    L = uid("Ls")
    a.label(L)
    a(f"s_waitcnt vmcnt({n*(ahead-1)})\ns_barrier"); issue()
    a(f"s_add_u32 s33, s33, 1\ns_cmp_lt_u32 s33, {upto}\ns_cbranch_scc1 {L}")
def drain(a, n, ahead):
    for k in range(ahead - 1, -1, -1): a(f"s_waitcnt vmcnt({n*k})\ns_barrier")

def publish(a, ctr, nw, vaddr, lanes, keep=0):
    L = uid("Lpub")
    a(f"""
    s_waitcnt vmcnt({keep})
    s_mov_b64 exec, 1
    v_mov_b32 v2, {CTR + ctr}
    v_mov_b32 v3, 1
    ds_add_rtn_u32 v3, v2, v3
    s_waitcnt lgkmcnt(0)
    v_readfirstlane_b32 s22, v3
    s_mov_b64 exec, {(1 << lanes) - 1}
    s_cmp_lg_u32 s22, {nw - 1}
    s_cbranch_scc1 {L}
    v_mov_b32 v3, s48
    buffer_store_dword v3, v{vaddr}, s[44:47], 0 offen {SC}
    """)
    a.label(L); a("s_mov_b64 exec, -1")
def gate(a, vaddr, mask, two=False, sl=None):
    sl = opt("slp", 8) if sl is None else sl
    L = uid("Lg"); slp = "s_sleep %d" % sl if sl else ""
    a(f"s_mov_b32 s49, 0\ns_mov_b32 exec_lo, {mask & 0xffffffff}\ns_mov_b32 exec_hi, {mask >> 32}")
    a.label(L)
    if two: a(f"buffer_load_dword v2, v{vaddr}, s[44:47], 0 offen {SC}\ns_mov_b32 s22, {two}\nbuffer_load_dword v3, v{vaddr}, s[44:47], s22 offen {SC}\ns_waitcnt vmcnt(0)\nv_xor_b32 v2, s48, v2\nv_xor_b32 v3, s48, v3\nv_or_b32 v2, v2, v3")
    else: a(f"buffer_load_dword v2, v{vaddr}, s[44:47], 0 offen {SC}\ns_waitcnt vmcnt(0)\nv_xor_b32 v2, s48, v2")
    a(f"v_cmp_ne_u32 vcc, 0, v2\ns_add_u32 s49, s49, 1\ns_cmp_eq_u64 vcc, 0\ns_cbranch_scc1 {L}d\n{slp}\ns_cmp_lt_u32 s49, 20000\ns_cbranch_scc1 {L}")
    a.label(L + "d"); a("s_mov_b64 exec, -1")
def tag_ready(a):
    a("s_waitcnt lgkmcnt(0)\ns_mul_i32 s48, s48, 1664525\ns_add_u32 s48, s48, 1013904223")
def step_tag(a):
    a(f"v_lshlrev_b32 v12, 7, v1"); gate(a, 12, (1 << 64) - 1, two=8192)
    a(f"v_lshrrev_b32 v12, 3, v1\nv_lshlrev_b32 v12, 11, v12\nv_and_b32 v13, 7, v1\nv_lshl_add_u32 v12, v13, 7, v12\nv_add_u32 v12, {F2}, v12"); gate(a, 12, (1 << 64) - 1, two=16384)
    a(f"s_mov_b64 exec, 1\nv_mov_b32 v2, s48\nv_mov_b32 v3, {FZ}\nbuffer_store_dword v2, v3, s[44:47], 0 offen {SC}\ns_mov_b64 exec, -1")

def code_prefetch(a):
    if not opt("ncode"): return
    L = uid("Lpc")
    a(f"s_getpc_b64 s[30:31]\n{L}:\ns_sub_u32 s30, s30, {L}-{NAME}_kernel\ns_subb_u32 s31, s31, 0\nv_lshlrev_b32 v2, 7, v1")
    for i in range(opt("ncode", 0)):
        a(f"v_min_u32 v3, Lcode_end-{NAME}_kernel-4, v2\nglobal_load_dword v{40+i}, v3, s[30:31]\nv_add_u32 v2, 8192, v2")

def ln_issue(a):
    a(f"""
    s_lshl_b32 s22, s19, 4
    s_lshl_b32 s23, s3, 2
    s_add_u32 s22, s22, s23
    v_lshrrev_b32 v2, 4, v1
    v_add_u32 v10, s22, v2
    v_and_b32 v11, 15, v1
    v_lshlrev_b32 v4, 4, v11
    v_mul_u32_u24 v5, 1280, v10
    v_add_u32 v5, v5, v4
    s_waitcnt lgkmcnt(0)
    """)
    srd(a, 4, 4, H_SZ); srd(a, 8, 8, 1280)
    for i in range(5): a(f"buffer_load_dwordx4 {v(16+4*i,4)}, v5, s[4:7], 0 offen offset:{256*i}")
    for i in range(5): a(f"buffer_load_dwordx4 {v(36+4*i,4)}, v4, s[8:11], 0 offen offset:{256*i}")
def ln_finish(a):
    X, GW, U = 16, 36, 56
    srd(a, 4, 20, H_SZ, H_OFF); srd(a, 8, 20, G_SZ, G_OFF)
    a("s_mov_b32 s30, 0x3f803f80\ns_mov_b32 s31, 0xffff0000"); estamp(a, 1); a("s_waitcnt vmcnt(5)"); estamp(a, 2)
    a(f"v_dot2_f32_bf16 v6, v{X}, s30, 0\nv_dot2_f32_bf16 v8, v{X+1}, s30, 0")
    for i in range(2, 20): a(f"v_dot2_f32_bf16 v{6+2*(i&1)}, v{X+i}, s30, v{6+2*(i&1)}")
    for i in range(20): a(f"v_lshlrev_b32 v{U+2*i}, 16, v{X+i}\nv_and_b32 v{U+1+2*i}, s31, v{X+i}")
    def red(*rs):
        for sh in (8, 4, 2, 1):
            for r in rs: a(f"v_add_f32_dpp v{r}, v{r}, v{r} row_ror:{sh} row_mask:0xf bank_mask:0xf")
    a("v_add_f32 v6, v6, v8"); red(6)
    a(f"v_mul_f32 v6, {f2u(1/640)}, v6")
    for i in range(20): a(f"v_pk_add_f32 {v(U+2*i,2)}, {v(U+2*i,2)}, v[6:7] op_sel_hi:[1,0] neg_lo:[0,1] neg_hi:[0,1]")
    a(f"v_pk_mul_f32 v[12:13], {v(U,2)}, {v(U,2)}\nv_pk_mul_f32 v[14:15], {v(U+2,2)}, {v(U+2,2)}")
    for i in range(2, 20): a(f"v_pk_fma_f32 {v(12+2*(i&1),2)}, {v(U+2*i,2)}, {v(U+2*i,2)}, {v(12+2*(i&1),2)}")
    a("v_pk_add_f32 v[12:13], v[12:13], v[14:15]\nv_add_f32 v12, v12, v13")
    red(12)
    a(f"v_mov_b32 v8, {f2u(1e-5)}\nv_fmac_f32 v8, {f2u(1/640)}, v12\nv_rsq_f32 v12, v8")
    for j in range(5):
        for i in range(4*j, 4*j+4): a(f"v_pk_mul_f32 {v(U+2*i,2)}, {v(U+2*i,2)}, v[12:13] op_sel_hi:[1,0]")
        for i in range(4*j, 4*j+4): a(f"v_cvt_pk_bf16_f32 v{96+i}, v{U+2*i}, v{U+1+2*i}")
        a(f"buffer_store_dwordx4 {v(96+4*j,4)}, v5, s[4:7], 0 offen offset:{256*j} {SC}")
    estamp(a, 3)
    a("s_barrier")
    a(f"s_waitcnt vmcnt(5)\nv_dot2_f32_bf16 v9, v{X}, v{GW}, 0\nv_dot2_f32_bf16 v8, v{X+1}, v{GW+1}, 0")
    for i in range(2, 20): a(f"v_dot2_f32_bf16 v{9-(i&1)}, v{X+i}, v{GW+i}, v{9-(i&1)}")
    a("v_add_f32 v9, v9, v8"); red(9)
    a(f"""
    v_mul_f32 v9, {f2u(-LOG2E)}, v9
    v_exp_f32 v9, v9
    v_add_f32 v9, 1.0, v9
    v_rcp_f32 v8, v9
    v_lshlrev_b32 v10, 3, v10
    """)
    tag_ready(a)
    a(f"""
    v_mov_b32 v9, s48
    s_mov_b32 exec_lo, 0x00010001
    s_mov_b32 exec_hi, 0x00010001
    buffer_store_dwordx2 v[8:9], v10, s[8:11], 0 offen {SC}
    s_mov_b64 exec, -1
    s_lshl_b32 s22, s19, 7
    v_lshl_add_u32 v10, v1, {14 if opt("mixed") else 15}, s22
    """)
    if opt("early"): a("s_waitcnt vmcnt(1)"); estamp(a, 4)
    publish(a, 0, 4, 10, 4, keep=1)
    if opt("early"): estamp(a, 5); a("s_waitcnt vmcnt(0)"); estamp(a, 6)

G1_S, G1_SLOT = 6, 24576
def w1_sweep(a):
    a(f"s_lshl_b32 s23, s53, {2 if opt('mixed') else 1}\ns_add_u32 s23, s23, s3\ns_lshl_b32 s23, s23, 6\nv_add_u32 v2, s23, v1\ns_lshr_b32 s23, s52, 1\ns_mul_i32 s23, s23, 768\ns_mov_b32 s26, 43691")
    for n in range(3):
        a(f"v_add_u32 v3, {4096*n}, v2\nv_mul_u32_u24 v4, s26, v3\nv_lshrrev_b32 v4, 18, v4\nv_mul_u32_u24 v5, {3072-768}, v4\nv_lshl_add_u32 v5, v3, 7, v5\nv_add_u32 v{16+n}, s23, v5")
        if not opt("noslowcol"):
            a(f"v_and_b32 v5, 0x380, v{16+n}\nv_cmp_le_u32 vcc, {opt('sc0', 1024)}, v4\nv_cndmask_b32_e64 v5, 0, v5, vcc\nv_cmp_eq_u32 vcc, 0x180, v5\nv_cndmask_b32_e64 v{16+n}, v{16+n}, -16, vcc")
    srd(a, 4, 4, S_ * 3072)
    a("s_barrier"); estamp(a, 1)
    pre = opt("pre", 2)
    for n in range(3):
        if n == pre: tag_ready(a); a("s_barrier")
        if not opt("nopfw1"): a(f"buffer_load_dword v{20+n}, v{16+n}, s[4:7], 0 offen")
    if pre == 3: tag_ready(a); a("s_barrier")
    estamp(a, 2)
    if opt("pfwait"): a("s_waitcnt vmcnt(0)")
    estamp(a, 3)
def g1_loader_w(a):
    a(f"""
    v_lshrrev_b32 v2, 4, v1
    s_lshl_b32 s23, s3, 2
    v_add_u32 v2, s23, v2
    v_lshlrev_b32 v4, 1, v2
    v_and_b32 v3, 15, v1
    v_xor_b32 v3, v3, v4
    v_lshlrev_b32 v3, 4, v3
    v_mul_u32_u24 v2, 3072, v2
    s_lshl_b32 s26, s16, 8
    v_add3_u32 v8, v2, v3, s26
    """)
    for i in range(1, 8): a(f"v_add_u32 v{8+i}, {8*3072*i}, v8")
    a(f"""
    s_mov_b32 s34, s18
    s_lshl_b32 s37, s3, 10
    s_add_u32 s38, s37, {G1_SLOT*G1_S}
    s_mov_b32 s33, 0
    """)
    def issue():
        a(f"s_mul_i32 s40, s34, {64*3072}" if not opt("wwrap") else f"s_and_b32 s40, s34, 3\ns_mul_i32 s40, s40, {64*3072}")
        for i in range(8): a(f"s_add_u32 m0, s37, {2048*i}\n{thr('w', 11)}buffer_load_dwordx4 v{8+i}, s[4:7], s40 offen lds")
        a(f"s_add_u32 s37, s37, {G1_SLOT}\ns_cmp_ge_u32 s37, s38\ns_cselect_b32 s42, {G1_SLOT*G1_S}, 0\ns_sub_u32 s37, s37, s42\ns_add_u32 s34, s34, 1\ns_and_b32 s34, s34, 31")
    if opt("sweep"):
        w1_sweep(a); issue_n(a, G1_S - 2, issue)
    else:
        pp = opt("ppre", 1)
        srd(a, 4, 4, S_ * 3072); a("s_barrier")
        if pp: issue_n(a, pp, issue)
        tag_ready(a); a("s_barrier")
        if opt("s15"): a("s_barrier")
        m = opt("g1in", G1_S - 2)
        if pp < m: issue_n(a, m - pp, issue)
        for j in range(m - (G1_S - 2)): a(f"s_waitcnt vmcnt({8*(m-1-j)})\ns_barrier")
        if m < G1_S - 2: a(f"s_waitcnt vmcnt({8*(m-1)})\ns_barrier"); issue_n(a, G1_S - 1 - m, issue)
    if opt("early"): estamp(a, 4); a("s_waitcnt vmcnt(0)"); estamp(a, 5)
    stamp(a, 1)
    steady(a, 32, 8, G1_S - 2, issue)
    if (not opt("earlyp")): drain(a, 8, G1_S - 2); stamp(a, 2); a("s_branch Lp2_s0")
    else: P2(0).setup_s(a); P2(0).early(a, 8, 12, "s")
def g1_loader_h(a):
    a(f"""
    v_lshrrev_b32 v2, 3, v1
    v_and_b32 v3, 7, v1
    v_and_b32 v4, 6, v2
    v_xor_b32 v3, v3, v4
    v_lshlrev_b32 v3, 4, v3
    s_sub_u32 s22, s3, 2
    s_lshl_b32 s23, s22, 3
    v_add_u32 v2, s23, v2
    v_mul_u32_u24 v2, 1280, v2
    s_lshl_b32 s26, s17, 7
    v_add3_u32 v8, v2, v3, s26
    """)
    for i in range(1, 4): a(f"v_add_u32 v{8+i}, {16*1280*i}, v8")
    a(f"""
    s_lshl_b32 s23, s52, 14
    v_lshl_add_u32 v12, v1, 7, s23
    s_mov_b32 s34, s18
    s_lshl_b32 s37, s22, 10
    s_add_u32 s37, s37, 16384
    s_add_u32 s38, s37, {G1_SLOT*G1_S}
    s_mov_b32 s33, 0
    """)
    srd(a, 4, 20, H_SZ, H_OFF)
    def issue():
        a(f"s_mul_i32 s40, s34, {64*1280}" if not opt("hwrap") else f"s_and_b32 s40, s34, 3\ns_mul_i32 s40, s40, {64*1280}")
        for i in range(4): a(f"s_add_u32 m0, s37, {2048*i}\n{thr('h', 5)}buffer_load_dwordx4 v{8+i}, s[4:7], s40 offen {'' if opt('hplain') else SC} lds")
        a(f"s_add_u32 s37, s37, {G1_SLOT}\ns_cmp_ge_u32 s37, s38\ns_cselect_b32 s42, {G1_SLOT*G1_S}, 0\ns_sub_u32 s37, s37, s42\ns_add_u32 s34, s34, 1\ns_and_b32 s34, s34, 31")
    tag_ready(a); a("s_barrier")
    if opt("s15"): a("s_barrier")
    estamp(a, 1)
    if opt("nosplit"): gate(a, 12, (1 << 64) - 1, two=8192)
    else:
        L = uid("Lm")
        a("s_sub_u32 s22, s3, 2\ns_lshl_b32 s22, s22, 13\nv_add_u32 v12, s22, v12"); gate(a, 12, (1 << 64) - 1)
        a(f"v_mov_b32 v2, {CTR + 12}\nv_mov_b32 v3, 1\ns_mov_b64 exec, 1\nds_add_u32 v2, v3\ns_mov_b32 s49, 0\n{L}:\nds_read_b32 v3, v2\ns_add_u32 s49, s49, 1\ns_waitcnt lgkmcnt(0)\nv_readfirstlane_b32 s22, v3")
        a(f"s_cmp_ge_u32 s22, 2\ns_cbranch_scc1 {L}d\ns_cmp_lt_u32 s49, 0x400000\ns_cbranch_scc1 {L}\n{L}d:\ns_mov_b64 exec, -1")
    stamp(a, 1); estamp(a, 3)
    if opt("early"): a("s_add_u32 s78, s70, s49\ns_mov_b32 s79, 0")
    if not (not opt("s2")): a("s_barrier")
    issue_n(a, G1_S - 2, issue)
    steady(a, 32, 4, G1_S - 2, issue)
    if (not opt("earlyp")): drain(a, 4, G1_S - 2); stamp(a, 2); a("s_branch Lp2_d0")
    else: P2(0).setup_d(a); P2(0).early(a, 4, 16, "d")
def g1_consumer(a):
    L = "Lg1"
    if opt("s15"): a("s_barrier")
    ACC, T = 16, 48
    a(f"""
    s_load_dwordx2 s[24:25], s[0:1], {KA['b1']}
    s_and_b32 s22, s3, 1
    s_lshr_b32 s23, s3, 1
    s_lshl_b32 s26, s16, 8
    s_lshl_b32 s27, s22, 7
    s_add_u32 s26, s26, s27
    v_lshrrev_b32 v2, 4, v1
    v_lshl_add_u32 v3, v2, 3, s26
    s_waitcnt lgkmcnt(0)
    """)
    srd(a, 24, 24, 3072); srd(a, 8, 20, UW_SZ, UW_OFF)
    for ft in range(4): a(f"buffer_load_dwordx2 {v(T+2*ft,2)}, v3, s[24:27], 0 offen offset:{32*ft}")
    a(f"""
    s_setprio 0
    v_lshrrev_b32 v5, 2, v1
    v_and_b32 v6, 3, v1
    v_lshlrev_b32 v6, 3, v6
    v_and_b32 v7, 7, v5
    v_lshl_add_u32 v4, v5, 8, v6
    s_lshl_b32 s27, s22, 2
    """)
    for ft in range(4): a(f"s_add_u32 s28, s27, {ft}\nv_xor_b32 v2, s28, v7\nv_lshl_add_u32 v{8+ft}, v2, 5, v4")
    a(f"v_lshrrev_b32 v7, 1, v5\nv_and_b32 v7, 3, v7\nv_lshl_add_u32 v4, v5, 7, v6\nv_add_u32 v4, 16384, v4\ns_lshl_b32 s27, s23, 1")
    for dt in range(2): a(f"s_add_u32 s28, s27, {dt}\nv_xor_b32 v2, s28, v7\nv_lshl_add_u32 v{12+dt}, v2, 5, v4")
    a(f"""
    s_lshl_b32 s28, s17, 2
    s_add_u32 s28, s28, s27
    s_mul_i32 s28, s28, 68
    s_lshl_b32 s29, s16, 2
    s_add_u32 s28, s28, s29
    s_lshl_b32 s29, s22, 1
    s_add_u32 s28, s28, s29
    s_lshl_b32 s28, s28, 10
    v_lshl_add_u32 v14, v1, 4, s28
    s_lshl_b32 s28, s17, 4
    s_add_u32 s28, s28, s16
    s_lshl_b32 s28, s28, 7
    s_add_u32 s28, s28, {F4}
    v_mul_u32_u24 v15, {160*128}, v1
    v_add_u32 v15, s28, v15
    s_mov_b32 s31, 0xffff0000
    s_waitcnt vmcnt(0)
    """)
    for ft in range(4):
        for dt in range(2):
            b = ACC + 8 * ft + 4 * dt
            a(f"v_lshlrev_b32 v{b}, 16, v{T+2*ft}\nv_and_b32 v{b+1}, s31, v{T+2*ft}\nv_lshlrev_b32 v{b+2}, 16, v{T+2*ft+1}\nv_and_b32 v{b+3}, s31, v{T+2*ft+1}")
    SETS = (48, 96)
    def reads(st):
        r = []
        for kk in range(2):
            b = SETS[st] + 24 * kk
            for dt in range(2): r += [(f"ds_read_b64_tr_b16 {v(b+4*dt+2*h,2)}, v{12+dt} offset:{kk*4096+2048*h}", (kk, "b", dt, h)) for h in range(2)]
            for ft in range(4): r += [(f"ds_read_b64_tr_b16 {v(b+8+4*ft+2*h,2)}, v{8+ft} offset:{kk*8192+4096*h}", (kk, "a", ft, h)) for h in range(2)]
        return r
    def mf(st):
        return [(f"v_mfma_f32_16x16x32_bf16 {v(ACC+8*ft+4*dt,4)}, {v(SETS[st]+24*kk+8+4*ft,4)}, {v(SETS[st]+24*kk+4*dt,4)}, {v(ACC+8*ft+4*dt,4)}", {(kk, "a", ft, 1)})
                for kk in range(2) for ft, dt in ([(f, d) for d in range(2) for f in range(4)] if opt("g1ord") else [(f, d) for f in range(4) for d in range(2)])]
    ids = [x[1] for x in reads(0)]
    adv = slot_adv(G1_SLOT, G1_S) + [f"v_add_u32 v{8+i}, s40, v{8+i}" for i in range(6)]
    if not (not opt("s2")): a("s_barrier")
    a("s_mov_b32 s33, 0\ns_mov_b32 s37, 0\ns_barrier"); stamp(a, 2, True)
    emit_step(a, [], [], reads(0), adv)

    a.label(f"{L}_c", 3)
    a("s_barrier")
    emit_step(a, mf(0), ids, reads(1), adv + ["s_add_u32 s33, s33, 2", "s_cmp_ge_u32 s33, 32"])
    a(f"s_cbranch_scc1 {L}_clast\ns_barrier")
    emit_step(a, mf(1), ids, reads(0), adv)
    a(f"s_branch {L}_c")
    a.label(f"{L}_clast")
    a("s_waitcnt lgkmcnt(0)" + ("\ns_barrier" if opt("noe2") else "")); stamp(a, 3, True); lstamp(a, 1)
    last = [t for t, _ in mf(1)]
    grp = lambda p, dt: [last[8 * kk + 2 * (2 * p + h) + dt] for kk in range(2) for h in range(2)]
    G = [(p, dt) for p in range(2) for dt in range(2)]
    for t in grp(*G[0]) + grp(*G[1]): a(t)
    rest = grp(*G[2]) + grp(*G[3])
    c0 = -2 * 0.7978845608028654 * LOG2E; c1 = c0 * 0.044715
    a(f"v_mov_b32 v2, {f2u(c0)}\nv_mov_b32 v4, {f2u(c1)}\nv_mov_b32 v6, 1.0\ns_setprio 2")
    lstamp(a, 2)
    T = 48
    for n, (p, dt) in enumerate(G):
        o = 72 + 4 * n
        prs = [ACC + 8 * (2 * p + h) + 4 * dt + 2 * q for h in range(2) for q in range(2)]
        def ops(l):
            for x in l:
                a(x)
                if rest and not x.startswith(("v_exp", "v_rcp")): a(rest.pop(0))
        ops([f"v_pk_mul_f32 {v(T+2*i,2)}, {v(b,2)}, {v(b,2)}" for i, b in enumerate(prs)])
        ops([f"v_pk_fma_f32 {v(T+2*i,2)}, {v(T+2*i,2)}, v[4:5], v[2:3] op_sel_hi:[1,0,0]" for i, b in enumerate(prs)])
        ops([f"v_pk_mul_f32 {v(T+2*i,2)}, {v(T+2*i,2)}, {v(b,2)}" for i, b in enumerate(prs)])
        ops([f"v_exp_f32 v{T+i}, v{T+i}" for i in range(8)])
        ops([f"v_pk_add_f32 {v(T+2*i,2)}, {v(T+2*i,2)}, v[6:7] op_sel_hi:[1,0]" for i, b in enumerate(prs)])
        ops([f"v_rcp_f32 v{T+i}, v{T+i}" for i in range(8)])
        ops([f"v_pk_mul_f32 {v(T+2*i,2)}, {v(T+2*i,2)}, {v(b,2)}" for i, b in enumerate(prs)])
        ops([f"v_cvt_pk_bf16_f32 v{o+i}, v{T+2*i}, v{T+2*i+1}" for i in range(4)])
        a(f"s_mov_b32 s29, {dt*68*1024}\nbuffer_store_dwordx4 {v(o,4)}, v14, s[8:11], s29 offen offset:{1024*p} {SC}")
    lstamp(a, 3)
    if not opt("noe2"): a("s_barrier")
    if opt("late"): a("s_waitcnt vmcnt(0)"); lstamp(a, 4)
    publish(a, 4, 4, 15, 4)
    if opt("late"): lstamp(a, 5); a("s_waitcnt vmcnt(0)"); lstamp(a, 6)
    stamp(a, 4, True)

def spare_loader(a):
    a(f"""
    s_load_dwordx2 s[4:5], s[0:1], {KA['wo']}
    s_load_dwordx2 s[12:13], s[0:1], {KA['w2']}
    v_lshrrev_b32 v2, 3, v1
    v_and_b32 v3, 7, v1
    v_and_b32 v4, 6, v2
    v_xor_b32 v3, v3, v4
    v_lshlrev_b32 v14, 4, v3
    v_mul_u32_u24 v15, 1280, v2
    v_add_u32 v15, v15, v14
    v_lshrrev_b32 v3, 2, v2
    v_lshl_add_u32 v3, v3, 4, v2
    v_add_u32 v3, 16, v3
    v_mul_u32_u24 v3, 1280, v3
    v_add_u32 v14, v14, v3
    s_mul_i32 s23, s3, {7*4096}
    v_lshrrev_b32 v5, 2, v1
    v_lshrrev_b32 v6, 1, v5
    v_and_b32 v6, 3, v6
    v_lshlrev_b32 v5, 7, v5
    v_and_b32 v7, 3, v1
    v_lshlrev_b32 v7, 3, v7
    v_add3_u32 v5, v5, v7, s23
    """)
    for t in range(4): a(f"v_xor_b32 v7, {t}, v6\nv_lshl_add_u32 v{8+t}, v7, 5, v5")
    a(f"v_lshlrev_b32 v12, 4, v1\ns_lshl_b32 s26, s16, 7\ns_add_u32 s26, s26, {F3}\nv_lshl_add_u32 v13, v1, 10, s26\ns_waitcnt lgkmcnt(0)")
    srd(a, 4, 4, 640 * 1280); srd(a, 8, 20, UW_SZ, UW_OFF); srd(a, 12, 12, F_ * 4096)
    def task():
        a("s_lshl_b32 s26, s33, 2\ns_add_u32 s26, s26, s3\ns_min_u32 s26, s26, 24\ns_mul_i32 s27, s16, 25\ns_add_u32 s27, s27, s26\ns_mul_i32 s26, s27, 6554\ns_lshr_b32 s26, s26, 16\ns_mul_i32 s28, s26, 10\ns_sub_u32 s27, s27, s28")
    L = uid("Lwo")
    a("s_mov_b32 s33, 0"); a.label(L); task()
    for half in range(2):
        a(f"""
        s_lshl_b32 s28, s26, 1
        s_add_u32 s28, s28, {half}
        s_mul_i32 s29, s28, 52
        s_lshr_b32 s29, s29, 8
        s_mul_i32 s30, s29, 5
        s_sub_u32 s28, s28, s30
        s_mul_i32 s29, s29, 80
        s_mul_i32 s30, s28, 20
        s_cmp_eq_u32 s28, 4
        s_cselect_b64 vcc, -1, 0
        s_cselect_b32 s30, 0, s30
        s_cselect_b32 s31, 40, 8
        s_mul_i32 s31, s31, 1280
        s_add_u32 s29, s29, s30
        s_mul_i32 s28, s29, 1280
        s_lshl_b32 s29, s27, 7
        s_add_u32 s28, s28, s29
        v_cndmask_b32 v2, v15, v14, vcc
        """)
        for i in range(2): a(f"s_add_u32 m0, s23, {2048*half+1024*i}\nbuffer_load_dwordx4 v2, s[4:7], s28 offen lds\ns_add_u32 s28, s28, s31")
    a(f"s_add_u32 s23, s23, 4096\ns_add_u32 s33, s33, 1\ns_cmp_lt_u32 s33, 7\ns_cbranch_scc1 {L}\ns_waitcnt vmcnt(0)\ns_mov_b32 s33, 0")
    L = uid("Lwo"); a.label(L); task()
    for t in range(4): a(f"ds_read_b64_tr_b16 {v(16+4*t,2)}, v{8+t}\nds_read_b64_tr_b16 {v(18+4*t,2)}, v{8+t} offset:2048\nv_add_u32 v{8+t}, 4096, v{8+t}")
    a(f"s_lshl_b32 s28, s27, 2\ns_mul_i32 s28, s28, 68\ns_add_u32 s28, s28, s26\ns_add_u32 s28, s28, 48\ns_lshl_b32 s28, s28, 10")
    for t in range(4): a(f"s_waitcnt lgkmcnt({6-2*t})\nbuffer_store_dwordx4 {v(16+4*t,4)}, v12, s[8:11], s28 offen {SC}\ns_add_u32 s28, s28, {68*1024}")
    a(f"s_add_u32 s33, s33, 1\ns_cmp_lt_u32 s33, 7\ns_cbranch_scc1 {L}")
    publish(a, 8, 4, 13, 8)
    stamp(a, 1)
    if opt("spw2"):
        L = uid("Lw2")
        a(f"""
        s_and_b32 s22, s16, 1
        s_lshl_b32 s22, s22, 2
        s_add_u32 s22, s22, s3
        s_lshl_b32 s22, s22, 3
        v_lshrrev_b32 v2, 3, v1
        v_add_u32 v2, s22, v2
        v_lshlrev_b32 v2, 12, v2
        v_and_b32 v3, 7, v1
        v_lshl_add_u32 v2, v3, 7, v2
        s_lshr_b32 s22, s52, 1
        s_lshl_b32 s22, s22, 10
        s_mov_b32 s33, 0
        {L}:
        buffer_load_dword v30, v2, s[12:15], s22 offen
        s_add_u32 s22, s22, {64*4096}
        s_add_u32 s33, s33, 1
        s_cmp_lt_u32 s33, 24
        s_cbranch_scc1 {L}
        """)
    h0 = opt("sph", 0)
    if h0:
        L = uid("Lsh"); n = ((32 - h0 + 1) // 2 * 10 + 7) // 8
        srd(a, 4, 20, H_SZ, H_OFF)
        a(f"s_lshl_b32 s23, s52, 14\nv_lshl_add_u32 v12, v1, 7, s23")
        gate(a, 12, (1 << 64) - 1, two=8192)
        a(f"""
        s_and_b32 s22, s16, 1
        s_lshl_b32 s22, s22, 2
        s_add_u32 s22, s22, s3
        v_lshlrev_b32 v2, 7, v1
        s_mov_b32 s33, 0
        {L}:
        s_mul_i32 s23, s22, 6554
        s_lshr_b32 s23, s23, 16
        s_mul_i32 s23, s23, {64*1280}
        s_lshl_b32 s26, s22, 13
        s_add_u32 s23, s23, s26
        s_add_u32 s23, s23, {h0*64*1280}
        buffer_load_dword v30, v2, s[4:7], s23 offen {SC}
        s_add_u32 s22, s22, 8
        s_add_u32 s33, s33, 1
        s_cmp_lt_u32 s33, {n}
        s_cbranch_scc1 {L}
        """)
    nw = opt("c3", 0)
    if nw:
        L = uid("Lc3")
        a(f"""
        s_cmp_ge_u32 s3, {nw}
        s_cbranch_scc1 {L}d
        s_and_b32 s22, s16, 1
        s_mul_i32 s22, s22, {nw}
        s_add_u32 s22, s22, s3
        s_lshl_b32 s22, s22, 6
        v_add_u32 v2, s22, v1
        v_lshlrev_b32 v2, 12, v2
        s_lshr_b32 s22, s52, 1
        s_lshl_b32 s22, s22, 10
        s_add_u32 s22, s22, 384
        s_mov_b32 s33, 0
        {L}:
        buffer_load_dword v30, v2, s[12:15], s22 offen
        s_add_u32 s22, s22, {128*nw*4096}
        s_add_u32 s33, s33, 1
        s_cmp_lt_u32 s33, {12//nw}
        s_waitcnt vmcnt(0)
        s_cbranch_scc1 {L}
        {L}d:
        """)
    stamp(a, 2)

QA_S, QA_SLOT, QA_W = 3, 49152, 18432
def qa_w1_sweep(a):
    if not opt("qsw"): return
    a(f"""
    s_load_dwordx2 s[12:13], s[0:1], {KA['w1']}
    s_lshr_b32 s22, s2, 1
    s_lshl_b32 s22, s22, 2
    s_add_u32 s22, s22, s3
    s_lshl_b32 s23, s22, 12
    s_lshl_b32 s22, s22, 13
    s_add_u32 s23, s23, {512*8192}
    v_lshlrev_b32 v2, 7, v1
    s_waitcnt lgkmcnt(0)
    """)
    srd(a, 12, 12, S_ * 3072)
    a("buffer_load_dword v32, v2, s[12:15], s22 offen\ns_mov_b32 exec_hi, 0\nbuffer_load_dword v33, v2, s[12:15], s23 offen\ns_mov_b32 exec_hi, -1")
def w2_setup(a):
    a(f"""
    s_load_dwordx2 s[24:25], s[0:1], {KA['w2']}
    v_lshrrev_b32 v2, 3, v1
    s_lshl_b32 s22, s53, 3
    v_add_u32 v2, s22, v2
    v_lshlrev_b32 v2, 12, v2
    v_and_b32 v3, 7, v1
    v_lshl_add_u32 v2, v3, 7, v2
    s_lshr_b32 s22, s52, 1
    s_lshl_b32 s22, s22, 10
    v_add_u32 v29, s22, v2
    s_waitcnt lgkmcnt(0)
    """)
    srd(a, 24, 24, F_ * 4096)
def w2_load(a):
    if opt("sc3"): a("s_mov_b32 exec_lo, 0xf7f7f7f7\ns_mov_b32 exec_hi, 0xf7f7f7f7\nbuffer_load_dword v30, v29, s[24:27], s22 offen\ns_mov_b64 exec, -1")
    else: a("buffer_load_dword v30, v29, s[24:27], s22 offen")
def w2_last(a):
    if not opt("nopfw2"): a("s_lshl_b32 s22, s3, 20"); w2_load(a)
def w2_slow(a):
    n = opt("sc3")
    if not n or n > 2: return
    a(f"s_lshl_b32 s22, s53, 2\ns_add_u32 s22, s22, s3\ns_lshl_b32 s22, s22, 12\ns_lshr_b32 s23, s52, 1\ns_lshl_b32 s23, s23, 10\ns_add_u32 s22, s22, s23\ns_add_u32 s22, s22, 384\ns_add_u32 s26, s24, s22\ns_addc_u32 s27, s25, 0")
    for k in range(12):
        for h in range(n): a(f"s_load_dword s98, s[26:27], {64*h}")
        a(f"s_add_u32 s26, s26, {128*4096}\ns_addc_u32 s27, s27, 0")
def qa_loader(a):
    a(f"v_lshrrev_b32 v2, 3, v1\ns_lshl_b32 s23, s3, 3\nv_add_u32 v2, s23, v2\ns_lshl_b32 s26, s16, 7\ns_sub_u32 s26, s26, 16\nv_and_b32 v3, 7, v1")
    for i in range(6):
        a(f"v_add_u32 v4, {24*i}, v2\nv_lshrrev_b32 v5, 1, v4\nv_and_b32 v5, 7, v5\nv_xor_b32 v5, v5, v3\nv_add_u32 v4, s26, v4\nv_max_i32 v4, 0, v4\nv_mul_u32_u24 v4, 1280, v4\nv_lshl_add_u32 v{8+i}, v5, 4, v4")
    a(f"s_mul_i32 s23, s3, 320\ns_mul_i32 s26, s17, 160\nv_add_u32 v2, s23, v1")
    for i in range(5):
        a(f"""
        v_add_u32 v3, {64*i}, v2
        v_mul_u32_u24 v4, 2185, v3
        v_lshrrev_b32 v4, 16, v4
        v_mul_u32_u24 v5, 30, v4
        v_sub_u32 v3, v3, v5
        v_mul_u32_u24 v5, 26, v3
        v_lshrrev_b32 v5, 8, v5
        v_mul_u32_u24 v5, {1280-160}, v5
        v_lshl_add_u32 v3, v3, 4, v5
        v_and_b32 v5, 12, v4
        v_lshlrev_b32 v5, 1, v5
        v_lshrrev_b32 v6, 4, v4
        v_lshl_add_u32 v5, v6, 2, v5
        v_and_b32 v4, 3, v4
        v_add_u32 v4, v4, v5
        v_mul_u32_u24 v4, 3840, v4
        v_add3_u32 v{16+i}, v4, v3, s26
        """)
    a(f"s_mov_b32 s34, s18\ns_mov_b32 s37, 0\ns_lshl_b32 s38, s3, 10\ns_mul_i32 s39, s3, 5120\ns_add_u32 s39, s39, {QA_W}\ns_mov_b32 s33, 0")
    srd(a, 4, 4, H_SZ); srd(a, 8, 8, 640 * 3840)
    def issue(half=None):
        if half != 1: a(f"s_lshl_b32 s40, s34, 7\ns_mul_i32 s41, s34, {64*3840}\ns_add_u32 s42, s37, s38\ns_add_u32 s43, s37, s39\ns_add_u32 s36, s41, {32*3840}")
        if half != 1:
            for i in range(3): a(f"s_add_u32 m0, s42, {3072*i}\nbuffer_load_dwordx4 v{8+i}, s[4:7], s40 offen lds")
            for i in range(5): a(f"s_add_u32 m0, s43, {1024*i}\nbuffer_load_dwordx4 v{16+i}, s[8:11], s41 offen lds")
        if half != 0:
            for i in range(3, 6): a(f"s_add_u32 m0, s42, {3072*i}\nbuffer_load_dwordx4 v{8+i}, s[4:7], s40 offen lds")
            for i in range(5): a(f"s_add_u32 m0, s43, {15360+1024*i}\nbuffer_load_dwordx4 v{16+i}, s[8:11], s36 offen lds")
            a(f"s_add_u32 s37, s37, {QA_SLOT}\ns_cmp_ge_u32 s37, {QA_SLOT*QA_S}\ns_cselect_b32 s37, 0, s37\ns_add_u32 s34, s34, 1\ns_cmp_ge_u32 s34, 10\ns_cselect_b32 s34, 0, s34")
    if opt("lateb0"):
        issue_n(a, 2, issue); tag_ready(a); w2_setup(a); stamp(a, 1)
    else:
        issue(); issue(0); tag_ready(a); a("s_waitcnt vmcnt(8)\ns_barrier"); issue(1); issue(); a("s_mov_b32 s33, 3")
        w2_setup(a); stamp(a, 1)
    steady(a, 10, 16, QA_S - 1, issue); drain(a, 16, QA_S - 1)
    stamp(a, 2); w2_last(a); a("s_barrier")
def qa_idle(a):
    code_prefetch(a)
    if opt("wsq", 1) == 1:
        a("s_lshr_b32 s22, s52, 1\ns_lshl_b32 s22, s22, 5\ns_add_u32 s22, s22, s53\ns_mul_i32 s26, s22, 22\ns_add_u32 s26, s26, 16384\ns_lshl_b32 s26, s26, 7\ns_lshl_b32 s22, s22, 13\ns_add_u32 s23, s22, 0x100000\nv_lshlrev_b32 v2, 7, v1")
        srd(a, 8, 8, 640 * 3840)
        a("buffer_load_dword v40, v2, s[8:11], s22 offen\nbuffer_load_dword v41, v2, s[8:11], s23 offen\ns_mov_b64 exec, 0x3fffff\nbuffer_load_dword v42, v2, s[8:11], s26 offen\ns_mov_b64 exec, -1")
    if opt("wsq") == 2:
        a(f"s_mul_i32 s22, s53, 60\nv_add_u32 v2, s22, v1\nv_mul_u32_u24 v3, 4370, v2\nv_lshrrev_b32 v3, 16, v3\nv_mul_u32_u24 v4, 15, v3\nv_sub_u32 v2, v2, v4\nv_mul_u32_u24 v4, 52, v2\nv_lshrrev_b32 v4, 8, v4\nv_mul_u32_u24 v4, {1280-640}, v4\nv_lshl_add_u32 v2, v2, 7, v4\nv_mul_u32_u24 v3, 3840, v3\ns_lshr_b32 s22, s52, 2\ns_mul_i32 s22, s22, 640\nv_add3_u32 v2, v2, v3, s22")
        srd(a, 8, 8, 640 * 3840)
        a("s_mov_b32 exec_hi, 0x0fffffff")
        for n in range(5): a(f"s_mov_b32 s22, {128*3840*n}\nbuffer_load_dword v{40+n}, v2, s[8:11], s22 offen")
        a("s_mov_b32 exec_hi, -1")
    if opt("w49"):
        a(f"""
        s_mul_i32 s22, s53, 60
        v_add_u32 v2, s22, v1
        v_mul_u32_u24 v3, 4370, v2
        v_lshrrev_b32 v3, 16, v3
        v_mul_u32_u24 v4, 15, v3
        v_sub_u32 v2, v2, v4
        v_mul_u32_u24 v4, 52, v2
        v_lshrrev_b32 v4, 8, v4
        v_mul_u32_u24 v4, {1280-640}, v4
        v_lshl_add_u32 v2, v2, 7, v4
        v_lshrrev_b32 v4, 6, v3
        v_lshl_add_u32 v3, v4, 8, v3
        v_add_u32 v3, 256, v3
        v_mul_u32_u24 v3, 3840, v3
        s_lshr_b32 s22, s52, 2
        s_mul_i32 s22, s22, 640
        v_add3_u32 v2, v2, v3, s22
        """)
        srd(a, 8, 8, 640 * 3840)
        a("s_mov_b32 exec_hi, 0x0fffffff\nbuffer_load_dword v31, v2, s[8:11], 0 offen\ns_mov_b32 exec_hi, -1")
    if opt("x49"):
        a(f"""
        s_lshr_b32 s22, s53, 3
        s_mul_i32 s22, s22, 36
        s_lshl_b32 s23, s16, 7
        s_add_u32 s22, s22, s23
        s_sub_u32 s22, s22, 16
        v_add_u32 v2, s22, v1
        v_max_i32 v2, 0, v2
        v_mul_u32_u24 v2, 1280, v2
        s_bitcmp1_b32 s53, 0
        s_cselect_b32 s22, 5, 4
        s_cselect_b32 s23, 0, 9
        s_lshl_b32 s22, s22, 7
        s_lshl_b32 s23, s23, 7
        """)
        srd(a, 4, 4, H_SZ)
        a("s_mov_b32 exec_hi, 0xf\nbuffer_load_dword v32, v2, s[4:7], s22 offen\nbuffer_load_dword v33, v2, s[4:7], s23 offen\ns_mov_b32 exec_hi, -1")
    tag_ready(a); w2_setup(a)
    at = (opt("w2a", 9), opt("w2b", 9))
    for i in range(10):
        a("s_barrier")
        for k in range(2):
            if at[k] == i and not opt("nopfw2"): a(f"s_mov_b32 s22, {(4+k) << 20}"); w2_load(a)
    w2_last(a); a("s_barrier")
def qa_consumer(a):
    L = "Lqa"
    AQ, AK, AR, AV, AW = 16, 48, 88, 108, 148
    XF, WB = 168, 208
    M0, M1, MF, PM, TM = 224, 228, 232, 236, 240
    NB, DD = 4, opt("dd", 3)
    a(f"""
    s_lshr_b32 s28, s3, 1
    s_and_b32 s29, s3, 1
    v_and_b32 v2, 15, v1
    v_lshrrev_b32 v3, 4, v1
    v_lshrrev_b32 v4, 1, v2
    v_xor_b32 v4, v4, v3
    v_lshlrev_b32 v4, 4, v4
    v_lshl_add_u32 v4, v2, 7, v4
    v_mov_b32 v8, v4
    v_xor_b32 v9, 64, v4
    v_lshrrev_b32 v5, 2, v1
    v_mul_u32_u24 v5, 480, v5
    s_mul_i32 s23, s29, 80
    s_add_u32 s23, s23, {QA_W}
    v_add_u32 v5, s23, v5
    v_and_b32 v4, 3, v1
    v_lshl_add_u32 v10, v4, 3, v5
    v_and_b32 v6, 1, v1
    v_mul_u32_u24 v6, 40, v6
    v_add3_u32 v13, v6, v5, 32
    v_lshrrev_b32 v4, 1, v4
    v_mul_u32_u24 v4, 160, v4
    v_add_u32 v11, v4, v13
    """)
    if opt("zv"):
        a(f"v_and_b32 v4, 3, v1\nv_lshrrev_b32 v4, 1, v4\nv_cmp_ne_u32 s[98:99], s29, v4")
    for i in range(AQ, XF): a(f"v_mov_b32 v{i}, 0")
    a(f"v_lshlrev_b32 v4, 2, v3\nv_sub_u32 v4, v2, v4\nv_mov_b32 v5, {f2u(-1e30)}")
    for r in range(4):
        a(f"""
        v_subrev_u32 v15, {r}, v4
        v_and_b32 v15, 0x80000001, v15
        v_cmp_eq_u32 vcc, 0, v15
        v_cndmask_b32_e64 v{M1+r}, v5, 0, vcc
        v_cndmask_b32_e64 v{TM+4+r}, 0, -1, vcc
        v_cmp_eq_u32 vcc, 0x80000000, v15
        v_cndmask_b32_e64 v{M0+r}, v5, 0, vcc
        v_cndmask_b32_e64 v{TM+r}, 0, -1, vcc
        """)
    a("s_mov_b32 s30, 0xffff\ns_mov_b32 s22, 0x0c0c0c0c\ns_mov_b32 s26, 0x01000100\ns_mov_b32 s27, 0x03020302")
    for i in range(4): a(f"v_bfi_b32 v{PM+i}, s30, v{TM+2*i}, v{TM+2*i+1}\nv_mov_b32 v15, s22\nv_bfi_b32 v{PM+i}, v{PM+i}, s{26+(i&1)}, v15")
    a(f"s_or_b32 s23, s16, s28\ns_cmp_eq_u32 s23, 0\ns_cselect_b64 vcc, -1, 0")
    for r in range(4): a(f"v_cndmask_b32 v{MF+r}, v{M0+r}, v5, vcc")
    GM = 90
    for j in range(2): a(f"v_cmp_eq_u32 s[{GM+2*j}:{GM+1+2*j}], {j}, v3")
    a(f"""
    v_and_b32 v4, 1, v3
    v_cmp_eq_u32 s[94:95], 1, v4
    s_cmp_eq_u32 s29, 0
    s_cselect_b32 s96, -1, 0
    s_cselect_b32 s97, 0, -1
    s_lshl_b32 s23, s16, 3
    s_lshl_b32 s26, s28, 2
    s_add_u32 s23, s23, s26
    s_mul_i32 s23, s23, 40
    s_mul_i32 s26, s17, 5
    s_add_u32 s23, s23, s26
    s_lshl_b32 s23, s23, 9
    v_lshl_add_u32 v15, v1, 3, s23
    s_lshl_b32 s26, s29, 10
    v_add_u32 v12, s26, v15
    s_lshl_b32 s23, s16, 4
    s_add_u32 s23, s23, s17
    s_lshl_b32 s23, s23, 7
    s_add_u32 s23, s23, {F2}
    v_lshl_add_u32 v14, v1, 10, s23
    s_mov_b32 s31, {f2u(20 ** -0.5 * LOG2E)}
    v_mov_b32 v6, s31
    s_mov_b32 s33, 0
    s_mov_b32 s37, 0
    s_waitcnt lgkmcnt(0)
    """)
    srd(a, 4, 20, OT_SZ, OT_OFF); tag_ready(a)
    U = [("q", 0), ("q", 1), ("k", 0), ("k", 1), ("r", 0), ("v", 0), ("v", 1), ("w", 0)]
    NU = len(U); UU = 2 * NU
    def wread(u):
        kk, c = divmod(u, NU); p, j = U[c]; b = WB + 4 * (u % NB)
        ad, off = {"q": (10, 40 * j), "k": (10, 160 + 40 * j), "v": (10, 320 + 40 * j), "r": (11, 0), "w": (13, 320)}[p]
        off += kk * 15360
        return [f"ds_read_b64_tr_b16 {v(b,2)}, v{ad} offset:{off}", f"ds_read_b64_tr_b16 {v(b+2,2)}, v{ad} offset:{off+7680}"]
    def acc(p, j, t): return {"q": AQ + 8 * (t - 1) + 4 * j, "k": AK + 8 * t + 4 * j, "r": AR + 4 * t, "v": AV + 20 * j + 4 * t, "w": AW + 4 * t}[p]
    cvt = lambda d, s0: f"v_cvt_pk_bf16_f32 v{d}, v{s0}, v{s0+1}"
    cv = lambda d, s0: a(cvt(d, s0))
    VCH = (AV, AV + 20, AW)
    stamp(a, 1, True); a("s_barrier"); stamp(a, 2, True)
    a(f"s_cmp_lg_u32 s28, 0\ns_cbranch_scc1 {L}_h1")
    for rh in range(2):
        a.label(f"{L}_h{rh}")
        def xread(kk): return [f"ds_read_b128 {v(XF+20*kk+4*t,4)}, v{8+kk} offset:{2048*(4*rh+t) if t else 0}" for t in (1, 2, 3, 4, 0)]
        def mf(u):
            kk, c = divmod(u, NU); p, j = U[c]; w = v(WB + 4 * (u % NB), 4); r = []
            for t in ((1, 2, 3, 4, 0) if p in ("kr", "vw")[rh] else (1, 2, 3, 4)):
                x = v(XF + 20 * kk + 4 * t, 4); d = v(acc(p, j, t), 4)
                r.append(f"v_mfma_f32_16x16x32_bf16 {d}, {w}, {x}, {d}" if p in "qkr" else f"v_mfma_f32_16x16x32_bf16 {d}, {x}, {w}, {d}")
            return r
        for t in xread(0): a(t)
        for u in range(DD):
            for t in wread(u): a(t)
        a(f"s_waitcnt lgkmcnt({2*DD-2})")
        a.label(f"{L}_c{rh}", 3)
        q = []
        for u in range(1, DD): q += [u, u]
        misc = slot_adv(QA_SLOT, QA_S) + ["s_add_u32 s33, s33, 1", "s_cmp_ge_u32 s33, 10"]
        x1 = xread(1)
        for u in range(UU):
            nx = u + DD; fill = []
            if nx == UU: fill += [(t, UU) for t in xread(0)]
            fill += [(t, nx) for t in wread(nx % UU)]
            if 1 <= u < NU - 1 and x1: fill.append((x1.pop(0), NU))
            ms = mf(u)
            if nx == UU:
                a(f"s_waitcnt lgkmcnt(0)\ns_cbranch_scc1 {L}_clast{rh}\ns_barrier"); q = []
            per = -(-len(fill) // len(ms))
            for i, m in enumerate(ms):
                a(m)
                for t, tag in fill[i*per:(i+1)*per]: a(t); q.append(tag)
                if i == len(ms) - 2 and misc and u >= 2: a(misc.pop(0))
                if 1 <= i <= 3 and nx == UU - 1:
                    for r in ((), (8, 9, 10), (11, 13))[i - 1]: a(f"v_add_u32 v{r}, s40, v{r}")
            if any(t <= u + 1 for t in q) and nx != UU - 1:
                last = max(i for i, t in enumerate(q) if t <= u + 1)
                q = q[last + 1:]
                a(f"s_waitcnt lgkmcnt({len(q)})")
        assert not misc and not x1 and len(q) == 2 * DD - 2, (misc, x1, q)
        a(f"s_branch {L}_c{rh}")
        a.label(f"{L}_clast{rh}"); stamp(a, 3, True); lstamp(a, 1)
        TK = (4, 3, 2, 1) if rh else (4, 3, 2, 1, 0); prep = []
        for t in TK:
            r = AR + 4 * t; k = AK + 8 * t
            prep += [cvt(k, k), cvt(k + 1, k + 2), cvt(k + 4, k + 4), cvt(k + 5, k + 6), cvt(k + 2, r), cvt(k + 3, r + 2), cvt(r, r), cvt(r + 1, r + 2)]
        for t in TK:
            r = AR + 4 * t; k = AK + 8 * t
            prep += [f"v_permlane32_swap_b32 v{r}, v{k+2}", f"v_permlane32_swap_b32 v{r+1}, v{k+3}"]
        assert DD == 3
        for u in range(UU - DD, UU):
            for m in mf(u): a(m); a(prep.pop(0)); a(prep.pop(0))
        a(f"v_lshlrev_b32 v8, 3, v1\ns_mul_i32 s23, s29, 20480\ns_add_u32 s23, s23, 61440\nv_add_u32 v8, s23, v8")
        for x in prep: a(x)
        if rh == 0:
            for i in range(3): a(f"ds_write_b64 v8, {v(AK+32+2*i,2)} offset:{512*i}")
        for n, b in enumerate(VCH):
            for i in range(0 if rh else 2, 10): cv(b + i, b + 2 * i)
            a(f"ds_write_b64 v8, {v(b + (0 if rh else 8),2)} offset:{(3072 if rh else 1536) + 512*n}")
        a("s_waitcnt lgkmcnt(0)\ns_barrier")
        if rh:
            for i in range(3): a(f"ds_read_b64 {v(AK+2*i,2)}, v8 offset:{512*i}")
        for n, b in enumerate(VCH): a(f"ds_read_b64 {v(b,2)}, v8 offset:{(1536 if rh else 3072) + 512*n}")
        if rh == 0: a(f"s_branch {L}_j")
    a.label(f"{L}_j")
    lstamp(a, 2)
    UN = [(t, j) for t in (4, 3, 2, 1) for j in range(2)]
    SRS = [XF + 8 * n for n in range(7)] + [TM + 8]
    def qprep(t):
        r = AR + 4 * t; qa, qb = acc("q", 0, t), acc("q", 1, t)
        return [cvt(qa, qa), cvt(qa + 1, qa + 2), cvt(qb + 3, qb + 2), cvt(qb + 2, qb)] + \
               [f"v_cndmask_b32 v{qa+2+i}, 0, v{r+i}, s[{GM}:{GM+1}]" for i in range(2)] + [f"v_cndmask_b32 v{qb+i}, 0, v{r+i}, s[{GM+2}:{GM+3}]" for i in range(2)]
    for x in qprep(4): a(x)
    for n, (t, j) in enumerate(UN):
        qf = v(acc("q", j, t), 4)
        if j == 0: nxt = qprep(t - 1) if t > 1 else []
        if n == 6: a("s_waitcnt lgkmcnt(0)")
        a(f"v_mfma_f32_16x16x32_bf16 {v(SRS[n],4)}, {v(AK+8*(t-1)+2*j,4)}, {qf}, {v(MF if t == 1 else M0,4)}")
        for x in nxt[4*j:4*j+2]: a(x)
        a(f"v_mfma_f32_16x16x32_bf16 {v(SRS[n]+4,4)}, {v(AK+8*t+2*j,4)}, {qf}, {v(M1,4)}")
        for x in nxt[4*j+2:4*j+4]: a(x)
    V2, X = AQ, AQ + 16
    P = [AK + 4 * n for n in range(8)]
    for n in range(8): s_ = SRS[n]; a(f"v_max3_f32 v{V2+2*n}, v{s_}, v{s_+1}, v{s_+4}\nv_max3_f32 v{V2+2*n+1}, v{s_+2}, v{s_+3}, v{s_+6}")
    for n in range(8): s_ = SRS[n]; a(f"v_max_f32 v{V2+2*n}, v{V2+2*n}, v{s_+5}\nv_max_f32 v{V2+2*n+1}, v{V2+2*n+1}, v{s_+7}")
    def seq(*steps):
        for st in steps:
            for x in (X, X + 4): a(st(x))
    def xred(op):
        seq(lambda x: f"v_permlane32_swap_b32 v{x}, v{x+1}\nv_permlane32_swap_b32 v{x+2}, v{x+3}",
            lambda x: f"{op} v{x}, v{x}, v{x+1}\n{op} v{x+2}, v{x+2}, v{x+3}",
            lambda x: f"v_permlane16_swap_b32 v{x}, v{x+2}", lambda x: f"{op} v{x}, v{x}, v{x+2}")
    def xbc():
        seq(lambda x: f"v_mov_b32 v{x+2}, v{x}", lambda x: f"v_permlane16_swap_b32 v{x}, v{x+2}",
            lambda x: f"v_mov_b32 v{x+1}, v{x}\nv_mov_b32 v{x+3}, v{x+2}",
            lambda x: f"v_permlane32_swap_b32 v{x}, v{x+1}\nv_permlane32_swap_b32 v{x+2}, v{x+3}")
    sel = lambda n: f"op_sel:[0,{n&1},{n&1}] op_sel_hi:[1,{n&1},{n&1}]"
    for n in range(8): a(f"v_max_f32 v{X+n}, v{V2+2*n}, v{V2+2*n+1}")
    xred("v_max_f32"); seq(lambda x: f"v_mul_f32 v{x}, s31, v{x}"); xbc()
    for n in range(8): a(f"v_pk_fma_f32 {v(V2+2*n,2)}, {v(V2+2*n,2)}, v[6:7], {v(X+(n&6),2)} op_sel:[0,0,{n&1}] op_sel_hi:[1,0,{n&1}] neg_lo:[0,0,1] neg_hi:[0,0,1]")
    for n in range(16): a(f"v_exp_f32 v{V2+n}, v{V2+n}")
    for n in range(8): a(f"v_add_f32 v{X+n}, v{V2+2*n}, v{V2+2*n+1}")
    xred("v_add_f32"); seq(lambda x: f"v_rcp_f32 v{x}, v{x}"); xbc()
    for n in range(8): a(f"v_pk_mul_f32 {v(V2+2*n,2)}, {v(V2+2*n,2)}, {v(X+(n&6),2)} op_sel:[0,{n&1}] op_sel_hi:[1,{n&1}]")
    for n in range(8): cv(X + n, V2 + 2 * n)
    a("s_setprio 2")
    def pv(n):
        t, j = UN[n]
        return [f"v_mfma_f32_16x16x32_bf16 {v(SRS[n],4)}, {v(AV+20*j+2*(t-1),4)}, {v(P[n],4)}, 0", f"v_mfma_f32_16x16x32_bf16 {v(SRS[n]+4,4)}, {v(AW+2*(t-1),4)}, {v(P[n],4)}, 0"]
    for n in range(8):
        pm = [f"v_perm_b32 v{P[n]+i}, v{X+n}, v{X+n}, v{PM+i}" for i in range(4)]
        m = pv(n - 1) if n else ["", ""]
        a(pm[0]); a(pm[1]); a(m[0]); a(pm[2]); a(pm[3]); a(m[1])
    for m in pv(7): a(m)
    O = AQ
    for t in (4, 3, 2, 1):
        n = 2 * (4 - t); o = O + 6 * (4 - t)
        a(f"s_mov_b32 s29, {40*512*(t-1)}")
        for j in range(2):
            cv(o + 2 * j, SRS[n + j]); cv(o + 2 * j + 1, SRS[n + j] + 2)
            a(f"buffer_store_dwordx2 {v(o+2*j,2)}, v12, s[4:7], s29 offen offset:{512*j} {SC}")
        for r in range(4): a(f"v_cndmask_b32 v{SRS[n]+4+r}, v{SRS[n]+4+r}, v{SRS[n+1]+4+r}, s[94:95]")
        cv(o + 4, SRS[n] + 4); cv(o + 5, SRS[n] + 6)
        a(f"s_mov_b64 exec, s[96:97]\nbuffer_store_dwordx2 {v(o+4,2)}, v15, s[4:7], s29 offen offset:2048 {SC}\ns_mov_b64 exec, -1")
    lstamp(a, 3)
    a("s_waitcnt vmcnt(0)"); lstamp(a, 4)
    a(f"s_barrier\ns_cmp_lg_u32 s3, 0\ns_cbranch_scc1 {L}_np\ns_mov_b64 exec, 3\nv_mov_b32 v3, s48\nbuffer_store_dword v3, v14, s[44:47], 0 offen {SC}\ns_mov_b64 exec, -1")
    a.label(f"{L}_np")
    if opt("late"): lstamp(a, 5); a("s_waitcnt vmcnt(0)"); lstamp(a, 6)
    stamp(a, 4, True)

class P2:
    def __init__(s, par, ND=None):
        s.par = par; s.ND = ND or (opt("nd0", 4), 10 - opt("nd0", 4))[par]; s.tag = f"{par}{s.ND}"
        s.SLOT = 8192 + 2048 * s.ND; s.S = min(RING // s.SLOT, 8); s.AH = s.S - 2
        s.st = opt("stb%d" % par, 0); s.stm = opt("stm", 7)
        s.IN = opt("in%d" % par, 0)
        s.AA = min(opt("aha", 6), s.AH); s.GB = max(opt("gb%d" % par, 7), 11 - s.AH, 10 - s.AA)
    def adv(s): return f"s_add_u32 s37, s37, {s.SLOT}\ns_cmp_ge_u32 s37, s38\ns_cselect_b32 s42, {s.SLOT*s.S}, 0\ns_sub_u32 s37, s37, s42\ns_add_u32 s34, s34, 1" + ("\ns_cmp_ge_u32 s34, 24\ns_cselect_b32 s34, 0, s34" if s.st else "")
    def phase_b(s): return f"s_and_b32 s34, s50, {s.stm}\ns_mul_i32 s34, s34, {s.st}" if s.st else "s_mov_b32 s34, 0"
    def first(s, a, n, issue, IN=None):
        m = max(s.IN if IN is None else IN, s.AA)
        issue_n(a, m, issue)
        return lambda: [a(f"s_waitcnt vmcnt({n*(m-1-j)})\ns_barrier") for j in range(m - s.AA)]
    def setup_s(s, a):
        a(f"""
        s_load_dwordx2 s[12:13], s[0:1], {KA['w2']}
        v_lshrrev_b32 v2, 3, v1
        v_and_b32 v3, 7, v1
        v_and_b32 v4, 6, v2
        v_xor_b32 v3, v3, v4
        v_lshlrev_b32 v3, 4, v3
        v_lshl_add_u32 v2, v2, 12, v3
        s_lshl_b32 s23, s3, 17
        s_lshl_b32 s26, s50, 7
        s_add_u32 s23, s23, s26
        v_add_u32 v8, s23, v2
        """)
        for i in range(1, 4): a(f"v_add_u32 v{8+i}, {8*4096*i}, v8")
        a(f"s_lshl_b32 s23, s50, 2\ns_mul_i32 s23, s23, 40\ns_lshl_b32 s26, s3, 1\ns_add_u32 s23, s23, s26\ns_lshl_b32 s23, s23, 9\nv_lshl_add_u32 v16, v1, 4, s23")
        for i in range(1, 4): a(f"v_add_u32 v{16+i}, {40*512*i}, v16")
        a(f"s_and_b32 s23, s50, -2\ns_add_u32 s23, s23, {s.par}\ns_lshl_b32 s23, s23, 10\ns_add_u32 s23, s23, {F2}\nv_lshl_add_u32 v12, v1, 7, s23")
        a(f"s_mov_b32 s34, 0\ns_lshl_b32 s37, s3, 12\ns_add_u32 s38, s37, {s.SLOT*s.S}\ns_mov_b32 s33, 0\ns_waitcnt lgkmcnt(0)")
        srd(a, 4, 20, OT_SZ, OT_OFF)
    def early(s, a, n, vflag, tag):
        a(f"""
        s_waitcnt vmcnt({3*n})
        s_barrier
        s_waitcnt vmcnt({2*n})
        s_barrier
        s_mov_b64 exec, 0xff
        buffer_load_dword v2, v{vflag}, s[44:47], 0 offen {SC}
        s_waitcnt vmcnt({n+1})
        s_barrier
        s_waitcnt vmcnt(1)
        s_barrier
        """)
        stamp(a, 2)
        a(f"s_waitcnt vmcnt(0)\nv_cmp_ne_u32 vcc, s48, v2\ns_mov_b64 exec, -1\ns_cmp_eq_u64 vcc, 0\ns_cbranch_scc0 Lp2_{tag}{s.tag}e\ns_barrier\ns_branch Lp2_{tag}{s.tag}k")
    def loader_s(s, a):
        AH, AA = s.AH, s.AA
        s.setup_s(a)
        a.label(f"Lp2_s{s.tag}e")
        a("s_barrier")
        if s.par: w2_slow(a)
        gate(a, 12, 0xff, sl=opt("slp2", 2))
        a.label(f"Lp2_s{s.tag}k")
        stamp(a, 3)
        def issue(sc):
            a(f"s_lshl_b32 s40, s34, {11 if sc else 18}" if not opt("w2wrap") else f"s_and_b32 s40, s34, 1\ns_lshl_b32 s40, s40, {11 if sc else 18}")
            for i in range(4): a(f"s_add_u32 m0, s37, {1024*i}\nbuffer_load_dwordx4 v{(16 if sc else 8)+i}, s[4:7], s40 offen {sc} lds")
            a(s.adv())
        s.first(a, 4, lambda: issue(SC), opt("ins", 0))()
        steady(a, 10, 4, AA, lambda: issue(SC))
        srd(a, 4, 12, F_ * 4096); a(s.phase_b())
        if AA < AH: a(f"s_waitcnt vmcnt({4*(AA-1)})\ns_barrier"); issue_n(a, AH - AA + 1, lambda: issue(""))
        steady(a, 34, 4, AH, lambda: issue(""))
        stamp(a, 5)
        drain(a, 4, AH)
        endp(a)
    def setup_d(s, a):
        ND = s.ND
        a(f"s_sub_u32 s22, s3, 2\ns_mul_i32 s23, s51, 68\ns_add_u32 s23, s23, s22\ns_lshl_b32 s23, s23, 10\nv_lshl_add_u32 v8, v1, 4, s23")
        for i in range(1, ND): a(f"v_add_u32 v{8+i}, {68*1024*i}, v8")
        a(f"""
        s_mul_i32 s37, s22, {1024*ND}
        s_add_u32 s37, s37, 8192
        s_add_u32 s38, s37, {s.SLOT*s.S}
        s_lshl_b32 s23, s52, 10
        s_add_u32 s23, s23, {F3}
        v_lshl_add_u32 v16, v1, 7, s23
        s_lshr_b32 s23, s51, 2
        s_lshl_b32 s23, s23, 11
        s_lshr_b32 s26, s52, 1
        s_mul_i32 s26, s26, {160*128}
        s_add_u32 s23, s23, s26
        s_add_u32 s23, s23, {F4}
        v_lshl_add_u32 v17, v1, 7, s23
        s_mov_b32 s34, 0
        s_mov_b32 s36, 48
        s_mov_b32 s33, 0
        """)
        srd(a, 8, 20, UW_SZ, UW_OFF)
    def loader_d(s, a):
        AH, AA, GB, ND = s.AH, s.AA, s.GB, s.ND
        s.setup_d(a)
        a.label(f"Lp2_d{s.tag}e")
        if s.par: gate(a, 16, 0xff); a("" if opt("wearly") else "s_barrier")
        else: a("s_barrier"); gate(a, 16, 0xff)
        a.label(f"Lp2_d{s.tag}k")
        stamp(a, 3)
        def issue():
            a(("s_and_b32 s41, s34, 1\ns_lshl_b32 s41, s41, 1" if opt("uwrap") else "s_lshl_b32 s41, s34, 1") + "\ns_add_u32 s41, s41, s36\ns_lshl_b32 s41, s41, 10")
            for i in range(ND): a(f"s_add_u32 m0, s37, {1024*i}\nbuffer_load_dwordx4 v{8+i}, s[8:11], s41 offen {'' if opt('uplain') else SC} lds")
            a(s.adv())
        f = s.first(a, ND, issue)
        if s.par and opt("wearly"): a("s_barrier")
        f()
        steady(a, 10, ND, AA, issue)
        for j in range(10 - AA, GB): a(f"s_waitcnt vmcnt({ND*(9-j)})\ns_barrier")
        a("s_mov_b32 s36, 0\n" + s.phase_b())
        gate(a, 17, 0x0fff if ND == 4 else 0x0fff0fff, sl=opt("slp4", 2))
        stamp(a, 4)
        issue_n(a, GB + AH - 10, issue)
        steady(a, 34, ND, AH, issue)
        stamp(a, 5)
        drain(a, ND, AH)
        endp(a)
    def consumer1(s, a):
        ND = s.ND; L = f"Lp2{s.tag}"
        ACB = 16; ACA = ACB + 4 * ND; KS = 4 + 4 * ND; SETS = (ACA + 4 * ND, ACA + 4 * ND + 2 * KS)
        a(f"""
        s_load_dwordx2 s[24:25], s[0:1], {KA['b2']}
        s_load_dwordx2 s[28:29], s[0:1], {KA['out']}
        s_lshl_b32 s23, s50, 6
        s_lshl_b32 s26, s3, 4
        s_add_u32 s23, s23, s26
        v_and_b32 v2, 15, v1
        v_add_u32 v2, s23, v2
        v_lshlrev_b32 v3, 1, v2
        v_lshlrev_b32 v4, 3, v2
        s_waitcnt lgkmcnt(0)
        """)
        srd(a, 24, 24, 4096); srd(a, 8, 20, G_SZ, G_OFF); srd(a, 28, 28, S_ * 1280)
        a(f"""
        buffer_load_ushort v10, v3, s[24:27], 0 offen
        s_setprio 0
        v_lshrrev_b32 v5, 2, v1
        v_lshrrev_b32 v6, 1, v5
        v_and_b32 v6, 3, v6
        v_xor_b32 v6, s3, v6
        v_lshlrev_b32 v6, 5, v6
        v_lshl_add_u32 v5, v5, 7, v6
        v_and_b32 v6, 3, v1
        v_lshl_add_u32 v8, v6, 3, v5
        v_lshlrev_b32 v9, 4, v1
        v_add_u32 v9, 8192, v9
        v_mul_u32_u24 v12, 1280, v2
        v_lshrrev_b32 v6, 4, v1
        v_lshl_add_u32 v12, v6, 3, v12
        s_lshl_b32 s26, s51, 5
        v_add_u32 v12, s26, v12
        s_lshl_b32 s26, s3, 10
        v_lshl_add_u32 v13, v1, 3, s26
        v_and_b32 v14, 1, v6
        v_mul_u32_u24 v14, 24, v14
        v_add_u32 v14, v14, v12
        """)
        for i in range(4 * ND): a(f"v_mov_b32 v{ACA+i}, 0")
        def reads(st, ph="b"):
            r = []
            for kk in range(2):
                b = SETS[st] + KS * kk
                if ph == "a": r += [(f"ds_read_b64 {v(b,2)}, v13 offset:{kk*4096}", (kk, "b0")), (f"ds_read_b64 {v(b+2,2)}, v13 offset:{kk*4096+512}", (kk, "b1"))]
                else: r += [(f"ds_read_b64_tr_b16 {v(b,2)}, v8 offset:{kk*4096}", (kk, "b0")), (f"ds_read_b64_tr_b16 {v(b+2,2)}, v8 offset:{kk*4096+2048}", (kk, "b1"))]
                r += [(f"ds_read_b128 {v(b+4+4*dt,4)}, v9 offset:{(kk*ND+dt)*1024}", (kk, dt)) for dt in range(ND)]
            return r
        def mf(acc, st):
            return [(f"v_mfma_f32_16x16x32_bf16 {v(acc+4*dt,4)}, {v(SETS[st]+KS*kk+4+4*dt,4)}, {v(SETS[st]+KS*kk,4)}, {v(acc+4*dt,4)}", {(kk, "b1"), (kk, dt)}) for kk in range(2) for dt in range(ND)]
        ids = [x[1] for x in reads(0)]
        adv = slot_adv(s.SLOT, s.S) + ["v_add_u32 v8, s40, v8", "v_add_u32 v9, s40, v9"]
        a("s_mov_b32 s33, 0\ns_mov_b32 s37, 0\ns_barrier"); stamp(a, 5, True)
        adva = adv + ["v_add_u32 v13, s40, v13"]
        emit_step(a, [], [], reads(0, "a"), adva)
        a.label(f"{L}_ca", 3)
        a("s_barrier")
        emit_step(a, mf(ACA, 0), ids, reads(1, "a"), adva + ["s_add_u32 s33, s33, 2", "s_cmp_ge_u32 s33, 10"])
        a(f"s_barrier\ns_cbranch_scc1 {L}_cax")
        emit_step(a, mf(ACA, 1), ids, reads(0, "a"), adva)
        a(f"s_branch {L}_ca")
        a.label(f"{L}_cax")
        emit_step(a, mf(ACA, 1), ids, reads(0, "b"), adv)
        a(f"s_waitcnt vmcnt(0)\nbuffer_load_dwordx2 v[6:7], v4, s[8:11], 0 offen {SC}\nv_lshlrev_b32 v10, 16, v10")
        for i in range(4 * ND): a(f"v_mov_b32 v{ACB+i}, v10")
        a.label(f"{L}_cb", 3)
        a("s_barrier")
        emit_step(a, mf(ACB, 0), ids, reads(1), adv + ["s_add_u32 s33, s33, 2", "s_cmp_ge_u32 s33, 34"])
        a(f"s_cbranch_scc1 {L}_clast\ns_barrier")
        emit_step(a, mf(ACB, 1), ids, reads(0), adv)
        a(f"s_branch {L}_cb")
        a.label(f"{L}_clast")
        emit_step(a, mf(ACB, 1), ids, [], [])
        stamp(a, 6)
        a(f"""
        s_mov_b32 s49, 0
        {L}_g:
        s_waitcnt vmcnt(0)
        v_cmp_ne_u32 vcc, s48, v7
        s_add_u32 s49, s49, 1
        s_cmp_eq_u64 vcc, 0
        s_cbranch_scc1 {L}_gk
        buffer_load_dwordx2 v[6:7], v4, s[8:11], 0 offen {SC}
        s_cmp_lt_u32 s49, 20000
        s_cbranch_scc1 {L}_g
        s_waitcnt vmcnt(0)
        {L}_gk:
        """)
        aux = 'sc1' if opt('osc1') else ''; O = SETS[0]
        for dt in range(ND):
            for r in range(0, 4, 2): a(f"v_pk_add_f32 {v(ACA+4*dt+r,2)}, {v(ACA+4*dt+r,2)}, {v(ACB+4*dt+r,2)} neg_lo:[0,1] neg_hi:[0,1]")
            for r in range(0, 4, 2): a(f"v_pk_fma_f32 {v(ACB+4*dt+r,2)}, {v(ACA+4*dt+r,2)}, v[6:7], {v(ACB+4*dt+r,2)} op_sel_hi:[1,0,1]")
            a(f"v_cvt_pk_bf16_f32 v{O+2*dt}, v{ACB+4*dt}, v{ACB+4*dt+1}\nv_cvt_pk_bf16_f32 v{O+1+2*dt}, v{ACB+4*dt+2}, v{ACB+4*dt+3}")
            if dt & 1:
                b = O + 2 * (dt - 1)
                a(f"v_permlane16_swap_b32 v{b}, v{b+2}\nv_permlane16_swap_b32 v{b+1}, v{b+3}\nbuffer_store_dwordx4 {v(b,4)}, v14, s[28:31], 0 offen offset:{32*(dt-1)} {aux}")
            elif dt == ND - 1: a(f"buffer_store_dwordx2 {v(O+2*dt,2)}, v12, s[28:31], 0 offen offset:{32*dt} {aux}")
        endp(a)
    def consumer(s, a):
        if s.ND % 2: return s.consumer1(a)
        ND = s.ND; NH = ND // 2; L = f"Lp2{s.tag}"
        ACB = 20; ACA = ACB + 8 * NH; KS = 8 + 4 * NH; SETS = (ACA + 8 * NH, ACA + 8 * NH + 2 * KS)
        a(f"""
        s_load_dwordx2 s[24:25], s[0:1], {KA['b2']}
        s_load_dwordx2 s[28:29], s[0:1], {KA['out']}
        s_and_b32 s27, s3, 2
        s_lshl_b32 s23, s50, 6
        s_lshl_b32 s26, s27, 4
        s_add_u32 s23, s23, s26
        v_and_b32 v2, 15, v1
        v_add_u32 v2, s23, v2
        v_lshlrev_b32 v3, 1, v2
        v_lshlrev_b32 v4, 3, v2
        s_and_b32 s22, s3, 1
        s_mul_i32 s22, s22, {NH}
        v_lshrrev_b32 v5, 2, v1
        v_lshrrev_b32 v6, 1, v5
        v_and_b32 v6, 3, v6
        v_xor_b32 v6, s27, v6
        v_lshlrev_b32 v6, 5, v6
        v_lshl_add_u32 v5, v5, 7, v6
        v_and_b32 v6, 3, v1
        v_lshl_add_u32 v8, v6, 3, v5
        v_xor_b32 v15, 32, v8
        s_lshl_b32 s23, s22, 10
        s_add_u32 s23, s23, 8192
        v_lshl_add_u32 v9, v1, 4, s23
        s_lshl_b32 s23, s27, 10
        v_lshl_add_u32 v13, v1, 3, s23
        v_mul_u32_u24 v12, 1280, v2
        v_lshrrev_b32 v6, 4, v1
        v_lshl_add_u32 v12, v6, 3, v12
        s_add_u32 s23, s22, s51
        s_lshl_b32 s23, s23, 5
        v_add_u32 v12, s23, v12
        v_and_b32 v14, 1, v6
        v_mul_u32_u24 v14, 24, v14
        v_add_u32 v14, v14, v12
        s_waitcnt lgkmcnt(0)
        """)
        srd(a, 24, 24, 4096); srd(a, 8, 20, G_SZ, G_OFF); srd(a, 28, 28, S_ * 1280)
        a("buffer_load_ushort v10, v3, s[24:27], 0 offen\nbuffer_load_ushort v11, v3, s[24:27], 0 offen offset:32\ns_setprio 0")
        for i in range(8 * NH): a(f"v_mov_b32 v{ACA+i}, 0")
        def reads(st, ph="b"):
            r = []
            for kk in range(2):
                b = SETS[st] + KS * kk
                def bread(t):
                    if ph == "a": return [(f"ds_read_b64 {v(b+4*t+2*h,2)}, v13 offset:{kk*4096+1024*t+512*h}", (kk, "b", t, h)) for h in range(2)]
                    return [(f"ds_read_b64_tr_b16 {v(b+4*t+2*h,2)}, v{(8, 15)[t]} offset:{kk*4096+2048*h}", (kk, "b", t, h)) for h in range(2)]
                r += bread(0) + [(f"ds_read_b128 {v(b+8+4*dt,4)}, v9 offset:{(kk*ND+dt)*1024}", (kk, dt)) for dt in range(NH)] + bread(1)
            return r
        def mf(acc, st):
            return [(f"v_mfma_f32_16x16x32_bf16 {v(acc+4*(NH*t+dt),4)}, {v(SETS[st]+KS*kk+8+4*dt,4)}, {v(SETS[st]+KS*kk+4*t,4)}, {v(acc+4*(NH*t+dt),4)}", {(kk, "b", t, 1), (kk, dt)})
                    for kk in range(2) for t in range(2) for dt in range(NH)]
        ids = [x[1] for x in reads(0)]
        adv = slot_adv(s.SLOT, s.S) + ["v_add_u32 v8, s40, v8", "v_add_u32 v15, s40, v15", "v_add_u32 v9, s40, v9"]
        a("s_mov_b32 s33, 0\ns_mov_b32 s37, 0\ns_barrier"); stamp(a, 5, True)
        adva = adv + ["v_add_u32 v13, s40, v13"]
        emit_step(a, [], [], reads(0, "a"), adva)
        a.label(f"{L}_ca", 3)
        a("s_barrier")
        emit_step(a, mf(ACA, 0), ids, reads(1, "a"), adva + ["s_add_u32 s33, s33, 2", "s_cmp_ge_u32 s33, 10"])
        a(f"s_barrier\ns_cbranch_scc1 {L}_cax")
        emit_step(a, mf(ACA, 1), ids, reads(0, "a"), adva)
        a(f"s_branch {L}_ca")
        a.label(f"{L}_cax")
        emit_step(a, mf(ACA, 1), ids, reads(0, "b"), adv)
        gl = f"buffer_load_dwordx2 v[16:17], v4, s[8:11], 0 offen {SC}\nbuffer_load_dwordx2 v[18:19], v4, s[8:11], 0 offen offset:128 {SC}"
        a(f"s_waitcnt vmcnt(0)\n{gl}\nv_lshlrev_b32 v10, 16, v10\nv_lshlrev_b32 v11, 16, v11")
        for i in range(8 * NH): a(f"v_mov_b32 v{ACB+i}, v{10 + i // (4 * NH)}")
        a.label(f"{L}_cb", 3)
        a("s_barrier")
        emit_step(a, mf(ACB, 0), ids, reads(1), adv + ["s_add_u32 s33, s33, 2", "s_cmp_ge_u32 s33, 34"])
        a(f"s_cbranch_scc1 {L}_clast\ns_barrier")
        emit_step(a, mf(ACB, 1), ids, reads(0), adv)
        a(f"s_branch {L}_cb")
        a.label(f"{L}_clast")
        emit_step(a, mf(ACB, 1), ids, [], [])
        stamp(a, 6)
        a(f"""
        s_mov_b32 s49, 0
        s_mov_b32 s22, {16*1280}
        {L}_g:
        s_waitcnt vmcnt(0)
        v_cmp_ne_u32 vcc, s48, v17
        v_cmp_ne_u32 s[26:27], s48, v19
        s_add_u32 s49, s49, 1
        s_or_b64 vcc, vcc, s[26:27]
        s_cbranch_scc0 {L}_gk
        {gl}
        s_cmp_lt_u32 s49, 20000
        s_cbranch_scc1 {L}_g
        s_waitcnt vmcnt(0)
        {L}_gk:
        """)
        O = SETS[0]
        for t in range(2):
            so = "s22" if t else "0"
            for dt in range(NH):
                x = 4 * (NH * t + dt); o = O + 8 * t + 2 * dt
                for r in (0, 2): a(f"v_pk_add_f32 {v(ACA+x+r,2)}, {v(ACA+x+r,2)}, {v(ACB+x+r,2)} neg_lo:[0,1] neg_hi:[0,1]")
                for r in (0, 2): a(f"v_pk_fma_f32 {v(ACB+x+r,2)}, {v(ACA+x+r,2)}, {v(16+2*t,2)}, {v(ACB+x+r,2)} op_sel_hi:[1,0,1]")
                a(f"v_cvt_pk_bf16_f32 v{o}, v{ACB+x}, v{ACB+x+1}\nv_cvt_pk_bf16_f32 v{o+1}, v{ACB+x+2}, v{ACB+x+3}")
                if dt == 1:
                    b = o - 2
                    a(f"v_permlane16_swap_b32 v{b}, v{b+2}\nv_permlane16_swap_b32 v{b+1}, v{b+3}\nbuffer_store_dwordx4 {v(b,4)}, v14, s[28:31], {so} offen")
                elif dt == 2: a(f"buffer_store_dwordx2 {v(o,2)}, v12, s[28:31], {so} offen offset:64")
        endp(a)

def gen_main(a, name):
    kernel_head(a, name)
    if PROF:
        for i in range(1, 8): a(f"s_mov_b64 s[{70+2*i}:{71+2*i}], 0")
        stamp(a, 0); a("s_memtime s[66:67]")
    a(f"""
    s_cmp_ge_u32 s2, 256
    s_cbranch_scc1 Lend
    {"s_and_b32 s22, s2, 7" + chr(10) + "s_lshl_b32 s22, s22, 5" + chr(10) + "s_lshr_b32 s2, s2, 3" + chr(10) + "s_or_b32 s2, s2, s22" if opt("perm") else ""}
    s_load_dwordx2 s[20:21], s[0:1], {KA['ws']}
    v_lshrrev_b32 v1, 6, v0
    v_readfirstlane_b32 s3, v1
    v_and_b32 v1, 63, v0
    {"s_and_b32 s52, s2, 3" + chr(10) + "s_lshl_b32 s52, s52, 1" + chr(10) + "s_bfe_u32 s53, s2, 0x10002" + chr(10) + "s_or_b32 s52, s52, s53" if opt("lo") else "s_and_b32 s52, s2, 7"}
    s_lshr_b32 s53, s2, 3
    s_lshr_b32 s22, s52, 1
    s_lshl_b32 s50, s22, 3
    s_and_b32 s23, s53, 7
    s_add_u32 s50, s50, s23
    s_lshr_b32 s26, s53, 3
    """)
    if PROF: a("s_mov_b32 s69, s3")
    NG = 15 if opt("mixed") else 30
    a("s_cmp_ge_u32 s53, 16\ns_cbranch_scc1 Lrole_qa" if opt("mixed") else "s_bitcmp1_b32 s52, 0\ns_cbranch_scc1 Lrole_qa")
    PE, PO = P2(0), P2(1)
    MX = opt("mix", 0)
    a(f"s_and_b32 s54, s23, {MX}\ns_cselect_b32 s51, 5, {PE.ND}\ns_mul_i32 s51, s51, s26")
    a(f"""
    {"s_lshl_b32 s19, s52, 4" if opt("mixed") else "s_lshl_b32 s19, s22, 5"}
    s_add_u32 s19, s19, s53
    s_mul_i32 s17, s53, 86
    s_lshr_b32 s17, s17, 8
    s_mul_i32 s23, s17, 3
    s_sub_u32 s23, s53, s23
    s_mul_i32 s16, s22, 3
    s_add_u32 s16, s16, s23
    """)
    if opt("mixed"): a("s_and_b32 s26, s52, 1\ns_mul_i32 s26, s26, 5\ns_add_u32 s17, s17, s26")
    if opt("sweep"): a("s_mov_b32 s18, 0")
    else: a("s_mul_i32 s18, s17, 205\ns_lshr_b32 s18, s18, 6")
    a("s_cmp_ge_u32 s3, 4\ns_cbranch_scc1 Lg_cons\ns_setprio 1\ns_cmp_ge_u32 s3, 2\ns_cbranch_scc1 Lg_h")
    def flags():
        a(f"s_waitcnt lgkmcnt(0)"); srd(a, 44, 20, FL_SZ, FL_OFF); a(f"s_load_dword s48, s[44:45], {FZ}")
    a(f"s_load_dwordx2 s[4:5], s[0:1], {KA['w1']}"); flags()
    a(f"s_cmp_ge_u32 s53, {NG}\ns_cbranch_scc1 Lsp_w")
    a("; ---- even slots, waves 0-1: w1 tiles"); g1_loader_w(a)
    a.label("Lsp_w"); a("; ---- spare workgroups, waves 0-3: wo -> fragments")
    if opt("sweep"): w1_sweep(a)
    else: a("s_barrier"); tag_ready(a); a("s_barrier")
    a.label("Lsp_l"); a("s_mov_b32 s16, s52" if opt("mixed") else "s_lshr_b32 s16, s52, 1\ns_lshl_b32 s16, s16, 1\ns_add_u32 s16, s16, s53\ns_sub_u32 s16, s16, 30"); spare_loader(a)
    a("s_cmp_ge_u32 s3, 2\ns_cbranch_scc1 Lp2_d0\ns_branch Lp2_s0")
    a.label("Lg_h"); code_prefetch(a)
    if opt("mixed"):
        a(f"s_load_dwordx2 s[4:5], s[0:1], {KA['w1']}"); flags(); w1_sweep(a)
        a("s_cmp_ge_u32 s53, 15\ns_cbranch_scc1 Lsp_l")
    else:
        if opt("wsw"):
            a(f"s_load_dwordx2 s[8:9], s[0:1], {KA['wqkv']}")
        flags()
        if opt("wsw"):
            a("s_lshl_b32 s22, s19, 1\ns_add_u32 s22, s22, s3\ns_sub_u32 s22, s22, 2\ns_mul_i32 s23, s22, 11\ns_add_u32 s23, s23, 16384\ns_lshl_b32 s23, s23, 7\ns_lshl_b32 s22, s22, 13\nv_lshlrev_b32 v2, 7, v1")
            srd(a, 8, 8, 640 * 3840)
        if opt("wsw") == 2: a("s_barrier")
        if opt("wsw"): a("buffer_load_dword v40, v2, s[8:11], s22 offen\ns_mov_b64 exec, 0x7ff\nbuffer_load_dword v41, v2, s[8:11], s23 offen\ns_mov_b64 exec, -1")
        if opt("wsw") != 2: a("s_barrier")
        a("s_cmp_lt_u32 s53, 30\ns_cbranch_scc1 Lg_h2"); tag_ready(a); a("s_barrier\ns_branch Lsp_l")
    a.label("Lg_h2"); a("; ---- even slots, waves 2-3: h tiles"); g1_loader_h(a)
    a.label("Lg_cons"); a("; ---- even slots, waves 4-7: layernorm, then the first MLP GEMM")
    a(f"s_setprio 2\ns_load_dwordx2 s[4:5], s[0:1], {KA['x']}\ns_load_dwordx2 s[8:9], s[0:1], {KA['gw']}\ns_sub_u32 s3, s3, 4")
    ln_issue(a)
    srd(a, 44, 20, FL_SZ, FL_OFF)
    a(f"v_mov_b32 v2, {CTR}\nv_mov_b32 v6, 0\nv_mov_b32 v7, 0\nv_mov_b32 v8, 0\nv_mov_b32 v9, 0\nds_write_b128 v2, v[6:9]\ns_waitcnt lgkmcnt(0)\ns_barrier\ns_load_dword s48, s[44:45], {FZ}")
    ln_finish(a); stamp(a, 1, True)
    a(f"s_cmp_ge_u32 s53, {NG}\ns_cbranch_scc1 Lsp_cons")
    g1_consumer(a); a("s_branch Lp2_c0")
    a.label("Lsp_cons")
    if (opt("sweep") and not opt("noslowcol")):
        R0, SW = opt("sc0", 1024), opt("scw", 1)
        a(f"""
        s_load_dwordx2 s[4:5], s[0:1], {KA['w1']}
        s_lshr_b32 s22, s52, 1
        s_cmp_eq_u32 s22, 2
        s_cselect_b32 s23, 4, s3
        s_cmp_ge_u32 s23, {SW}
        s_cbranch_scc1 Lsc_done
        s_min_u32 s22, s22, 2
        s_lshl_b32 s22, s22, 10
        s_add_u32 s22, s22, {384 + R0 * 3072}
        s_and_b32 s23, s53, 1
        s_mul_i32 s23, s23, {SW}
        s_add_u32 s23, s23, s3
        s_lshl_b32 s23, s23, 6
        v_add_u32 v2, s23, v1
        v_mul_u32_u24 v2, 3072, v2
        s_mov_b32 s33, 0
        s_waitcnt lgkmcnt(0)
        """)
        srd(a, 4, 4, S_ * 3072)
        a(f"Lsc_l:\nbuffer_load_dword v3, v2, s[4:7], s22 offen\ns_add_u32 s22, s22, {128*SW*3072}\ns_add_u32 s33, s33, 1\ns_cmp_lt_u32 s33, {-(-(2048-R0)//(128*SW))}\ns_waitcnt vmcnt(0)\ns_cbranch_scc1 Lsc_l\nLsc_done:\ns_waitcnt lgkmcnt(0)")
    a("s_barrier")
    nw, r0, nr = opt("cw", 2), opt("cr0", 384), opt("cnr", 768)
    if nw:
        a(f"""
        s_cmp_ge_u32 s3, {nw}
        s_cbranch_scc1 Lc3_d
        s_load_dwordx2 s[12:13], s[0:1], {KA['w2']}
        s_lshr_b32 s22, s50, 1
        s_lshl_b32 s22, s22, 11
        s_add_u32 s22, s22, {F2}
        v_mov_b32 v12, s22
        """)
        gate(a, 12, 1)
        a(f"""
        s_and_b32 s22, s53, 1
        s_mul_i32 s22, s22, {nw}
        s_add_u32 s22, s22, s3
        s_lshl_b32 s22, s22, 6
        v_add_u32 v2, s22, v1
        v_lshlrev_b32 v2, 12, v2
        s_lshr_b32 s22, s52, 1
        s_lshl_b32 s22, s22, 10
        s_add_u32 s22, s22, {384 + r0 * 4096}
        s_mov_b32 s33, 0
        s_waitcnt lgkmcnt(0)
        """)
        srd(a, 12, 12, F_ * 4096)
        a(f"Lc3_l:\nbuffer_load_dword v30, v2, s[12:15], s22 offen\ns_add_u32 s22, s22, {128*nw*4096}\ns_add_u32 s33, s33, 1\ns_cmp_lt_u32 s33, {nr//(128*nw)}\ns_waitcnt vmcnt(0)\ns_cbranch_scc1 Lc3_l\nLc3_d:")
    a("s_lshl_b32 s22, s3, 8\ns_add_u32 s22, s22, s2\ns_cmp_lg_u32 s22, 240\ns_cbranch_scc1 Lp2_c0"); step_tag(a); a("s_branch Lp2_c0")
    a.label("Lrole_qa"); a("; ---- odd slots: qkv projection + attention")
    a(f"s_and_b32 s54, s23, {MX}\ns_cselect_b32 s51, 5, {PO.ND}\ns_cselect_b32 s27, 20, {4*PE.ND}\ns_mul_i32 s51, s51, s26\ns_add_u32 s51, s51, s27")
    if opt("mixed"): a("s_and_b32 s23, s53, 3\ns_lshl_b32 s16, s22, 2\ns_add_u32 s16, s16, s23\ns_lshr_b32 s26, s53, 2\ns_and_b32 s26, s26, 3\ns_and_b32 s17, s52, 1\ns_lshl_b32 s17, s17, 2\ns_add_u32 s17, s17, s26")
    else: a(f"""
    s_and_b32 s16, s22, 1
    s_lshl_b32 s16, s16, 3
    s_add_u32 s16, s16, s23
    s_lshr_b32 s17, s22, 1
    s_lshl_b32 s17, s17, 2
    s_add_u32 s17, s17, s26
    """)
    if opt("nsq"): a("s_mov_b32 s18, 0")
    elif not opt("q8") and not opt("q4"): a("s_xor_b32 s18, s26, s23\ns_and_b32 s18, s18, 1\ns_mul_i32 s18, s18, 5")
    elif opt("q4"): a("s_add_u32 s18, s26, s23\ns_and_b32 s18, s18, 3\ns_mul_i32 s18, s18, 5\ns_lshr_b32 s18, s18, 1")
    elif opt("mixed"): a("s_add_u32 s18, s26, s23\ns_and_b32 s18, s18, 3\ns_mul_i32 s18, s18, 10\ns_lshr_b32 s18, s18, 2")
    else: a("s_lshl_b32 s18, s26, 1\ns_add_u32 s18, s18, s23\ns_and_b32 s18, s18, 7\ns_mul_i32 s18, s18, 10\ns_lshr_b32 s18, s18, 3")
    a(f"s_cmp_ge_u32 s3, 4\ns_cbranch_scc1 Lq_cons\ns_setprio 1\ns_cmp_eq_u32 s3, 3\ns_cbranch_scc1 Lq_idle")
    a(f"s_load_dwordx2 s[4:5], s[0:1], {KA['x']}\ns_load_dwordx2 s[8:9], s[0:1], {KA['wqkv']}"); qa_w1_sweep(a); flags(); qa_loader(a)
    a("s_cmp_ge_u32 s3, 2\ns_cbranch_scc1 Lp2_d1\ns_branch Lp2_s1")
    a.label("Lq_idle"); a(f"s_load_dwordx2 s[4:5], s[0:1], {KA['x']}\ns_load_dwordx2 s[8:9], s[0:1], {KA['wqkv']}"); flags(); qa_idle(a); a("s_branch Lp2_d1")
    a.label("Lq_cons"); a("s_sub_u32 s3, s3, 4"); flags()
    qa_consumer(a)
    for p in (PO, PE):
        for k, f in (("c", P2.consumer), ("s", P2.loader_s), ("d", P2.loader_d)):
            a.label(f"Lp2_{k}{p.par}"); a(f"; ---- output tile 64 x {16*p.ND}: " + dict(c="MFMA waves", s="loader of o / w2", d="loader of wo / u")[k])
            if MX: a(f"s_cmp_lg_u32 s54, 0\ns_cbranch_scc1 Lp2_{k}{p.par}x")
            f(p, a)
            if MX: a.label(f"Lp2_{k}{p.par}x"); f(P2(p.par, 5), a)
    a.label("Lend"); a("s_endpgm")
    a.raw("Lcode_end:")
    return kernel_desc(name, 256, 102)

def gen_osc(a, name):
    kernel_head(a, name)
    o = next(o for o in OPTS if o.startswith("osc"))[3:].split("_")
    a(f"s_cmp_ge_u32 s2, 1\ns_cbranch_scc1 Losc_end\ns_load_dwordx2 s[4:5], s[0:1], {KA['ws']}\ns_waitcnt lgkmcnt(0)")
    srd(a, 4, 4, 0x100000, TL_OFF + (0x80000 if opt("pthr") else 0x40000))
    def red(dst, base, stride, count, wave, slot, op):
        n = -(-count // 64)
        for i in range(n):
            a(f"v_add_u32 v1, {64*i}, v0\nv_min_u32 v1, {count-1}, v1\nv_mul_u32_u24 v1, {stride}, v1\nv_add_u32 v1, {base}, v1\nv_lshlrev_b32 v1, 9, v1\ns_mov_b32 s8, {wave*64 + slot*4}")
            a(f"buffer_load_dword v{4+i}, v1, s[4:7], s8 offen")
        a("s_waitcnt vmcnt(0)")
        if op == "add":
            for i in range(n): a(f"v_subrev_u32 v{4+i}, s20, v{4+i}")
        for i in range(1, n): a(f"v_{op}_u32 v4, v4, v{4+i}")
        a(f"v_readlane_b32 s{dst}, v4, 0")
        for i in range(1, 64): a(f"v_readlane_b32 s9, v4, {i}\ns_nop 0\ns_{op}_u32 s{dst}, s{dst}, s9")
        if op == "add": a(f"s_lshr_b32 s{dst}, s{dst}, {(64*n).bit_length()-1}\ns_add_u32 s{dst}, s{dst}, s20")
    red(20, 0, 1, 256, 0, 0, "min")
    if len(o) > 1:
        red(21, int(o[0]), int(o[1]), int(o[2]), int(o[3]), int(o[4]), dict(n="min", x="max", a="add")[o[5]])
        a("s_sub_u32 s21, s21, s20\ns_min_u32 s21, s21, 20000\ns_lshl_b32 s21, s21, 2")
    else: a("s_mov_b32 s21, 0")
    a("s_add_u32 s21, s21, 10000\nLosc_spin:\ns_memrealtime s[10:11]\ns_waitcnt lgkmcnt(0)\ns_sub_u32 s10, s10, s20\ns_cmp_lt_u32 s10, s21\ns_cbranch_scc1 Losc_spin")
    a.label("Losc_end"); a("s_endpgm")
    return kernel_desc(name, 16, 32)

def gen_probe(a, name, vg):
    kernel_head(a, name)
    a(f"s_memrealtime s[70:71]\ns_cmp_ge_u32 s2, 256\ns_cbranch_scc1 Lpr_end\ns_load_dwordx2 s[4:5], s[0:1], {KA['ws']}\ns_waitcnt lgkmcnt(0)")
    srd(a, 4, 4, 0x100000, TL_OFF + 0x80000)
    a("s_lshl_b32 s8, s2, 9\nv_mov_b32 v1, s8\nv_mov_b32 v2, s70\nv_cmp_eq_u32 vcc, 0, v0\ns_and_saveexec_b64 s[10:11], vcc\ns_cbranch_execz Lpr_end\nbuffer_store_dword v2, v1, s[4:7], 0 offen")
    a.label("Lpr_end"); a("s_endpgm")
    return kernel_desc(name, vg, 102)

DOC = """;
; waves 4-7 read fragments and run v_mfma_f32_16x16x32_bf16; one s_barrier per K step).  id&7 picks the role; that
; Hand-offs through d_ws: write-through (sc1) stores, s_waitcnt vmcnt(0) in every storing wave, then one flag per
;"""

def build(spec=""):
    global PROF
    OPTS[:] = [o for o in spec.split("+") if o]; PROF = bool(opt("prof")); UID[0] = 0
    ref = open(f"cdna_kernels/{NAME}.s.ref").read().split("\n")
    head = ref[:ref.index(next(x for x in ref if x.startswith("; Override")))]
    a = Asm(); a.raw("\n".join(head))
    if opt("lo"): a.raw("; lo")
    osc = any(o.startswith("osc") and o != "osc1" for o in OPTS)
    if opt("pthr"): a.raw(f"; @launch kernel=probe_kernel grid=(256,1,1) block=({opt('pthr')},1,1) lds={opt('plds', 0)}")
    if osc: a.raw(f"; @launch kernel={NAME}_kernel grid=(256,1,1) block=(512,1,1) lds={LDS_SZ}\n; @launch kernel=osc_kernel grid=(1,1,1) block=(64,1,1) lds=0")
    else: a.raw(f"; @launch grid=(256,1,1) block=(512,1,1) lds={LDS_SZ}")
    a.raw(DOC)
    a.raw('.amdgcn_target "amdgcn-amd-amdhsa--gfx950"')
    d = gen_main(a, NAME + "_kernel")
    if osc: d += gen_osc(a, "osc_kernel")
    if opt("pthr"): d += gen_probe(a, "probe_kernel", opt("pvg"))
    if opt("nocomp"): a.lines = [(t, c) for t, c in a.lines if not (c is not None and (c.kind == "mfma" or c.op.startswith("ds_read")))]
    if opt("noload"): a.lines = [(t, c) for t, c in a.lines if not (c is not None and c.kind == "vmem" and c.lds)]
    if opt("nomfma"): a.lines = [(t, c) for t, c in a.lines if not (c is not None and c.kind == "mfma")]
    if opt("nods"): a.lines = [(t, c) for t, c in a.lines if not (c is not None and c.op.startswith("ds_read"))]
    if opt("nowait"): a.lines = [(t, c) for t, c in a.lines if not (c is not None and c.op == "s_waitcnt" and "lgkm" in t and "(0)" not in t)]
    if opt("al"): a.align_hot([("Lg1_c", "Lg1_clast"), ("Lp2_ca", "Lp2_cax"), ("Lp2_cb", "Lp2_clast")])
    if opt("lp") is not None: a.lines = [((t.replace("s_setprio 1", f"s_setprio {opt('lp')}"), c) if c is not None and c.op == "s_setprio" else (t, c)) for t, c in a.lines]
    bad = a.check_branches()
    for b in bad: print("HAZARD across branch:", b, file=sys.stderr)
    assert not bad
    a.raw(d)
    return a.text()

if __name__ == "__main__":
    open(sys.argv[2] if len(sys.argv) > 2 else f"cdna_kernels/{NAME}.s", "w").write(build(sys.argv[1] if len(sys.argv) > 1 else ""))
```

```python
import sys, struct
from dsl import *

NAME = "gated_mix__sliding_local_dilated__mixer_token_mlp__prompt"
S_, D_, F_ = 2048, 640, 1536
KA = dict(x=0, wqkv=8, wo=16, w1=32, b1=40, w2=48, b2=56, gw=64, out=72, dbg=80, ws=88)
H_OFF, OT_OFF, UW_OFF, G_OFF, FL_OFF = 0, 0x280000, 0x500000, 0x800000, 0x810000
H_SZ, OT_SZ, UW_SZ, G_SZ, FL_SZ = 2621440, 2621440, 40 * 68 * 1024, 16384, 0x70000
F1, F2, F4, FZ, F3 = 0, 0x20000, 0x28000, 0x40000, 0x50000
RING = 163840; CTR = RING - 64; LDS_SZ = RING
LOG2E = 1.4426950408889634
OPTS = []; PROF = False; TL_OFF = 0x1000000
SC = "sc1"
def f2u(x): return "0x%08x" % struct.unpack("<I", struct.pack("<f", x))[0]
def v(n, k=1): return f"v{n}" if k == 1 else f"v[{n}:{n+k-1}]"
def opt(name, default=None):
    for o in OPTS:
        if o == name: return True
        if o.startswith(name + "="): return int(o.split("=")[1])
    return default

def srd(a, d, base, size, off=0):
    if off: a(f"s_add_u32 s{d}, s{base}, {off}\ns_addc_u32 s{d+1}, s{base+1}, 0")
    elif d != base: a(f"s_mov_b32 s{d}, s{base}\ns_mov_b32 s{d+1}, s{base+1}")
    a(f"s_mov_b32 s{d+2}, {size}\ns_mov_b32 s{d+3}, 0x20000")

def estamp(a, i):
    if PROF and opt("early"): a(f"s_memrealtime s[{70+2*i}:{71+2*i}]\ns_waitcnt lgkmcnt(0)")
def lstamp(a, i):
    if PROF and opt("late"): a(f"s_memrealtime s[{70+2*i}:{71+2*i}]\ns_waitcnt lgkmcnt(0)")
def stamp(a, i, wait=False):
    if PROF and opt("clk"):
        k = {2: 1, 3: 3, 6: 5}.get(i)
        if i == 0: a("s_memrealtime s[70:71]")
        elif k and (wait or i == 6): a(f"s_memrealtime s[{70+2*k}:{71+2*k}]\ns_memtime s[{72+2*k}:{73+2*k}]\ns_waitcnt lgkmcnt(0)")
        return
    if PROF and (i == 0 or not (opt("early") or opt("late"))): a(f"s_memrealtime s[{70+2*i}:{71+2*i}]" + ("\ns_waitcnt lgkmcnt(0)" if wait else ""))
def endp(a):
    if PROF:
        a(f"""
        s_waitcnt vmcnt(0)
        s_memrealtime s[84:85]
        s_memtime s[86:87]
        s_waitcnt lgkmcnt(0)
        s_sub_u32 s86, s86, s66
        s_add_u32 s60, s20, {TL_OFF + 0x40000}
        s_addc_u32 s61, s21, 0
        s_mov_b32 s62, 0x40000
        s_mov_b32 s63, 0x20000
        s_mov_b64 exec, 1
        s_lshl_b32 s64, s2, 3
        s_add_u32 s64, s64, s69
        s_lshl_b32 s64, s64, 6
        v_mov_b32 v0, s64
        """)
        for i in range(8): a(f"v_mov_b32 v{4+i}, s{70+2*i}")
        a("v_mov_b32 v12, s86")
        a("buffer_store_dwordx4 v[4:7], v0, s[60:63], 0 offen\nbuffer_store_dwordx4 v[8:11], v0, s[60:63], 0 offen offset:16\nbuffer_store_dword v12, v0, s[60:63], 0 offen offset:32")
    a("s_endpgm")

def emit_step(a, M, prev_ids, R, extra, per_gap=2, head=2):
    q = list(prev_ids); fill = [("r", x) for x in R] + [("x", x) for x in extra]
    def put(n):
        for _ in range(n):
            if not fill: return
            k, x = fill.pop(0)
            if k == "r": a(x[0]); q.append(("n", x[1]))
            else: a(x)
    put(head)
    for text, need_ in M:
        idx = [i for i, t in enumerate(q) if t in need_]
        if idx:
            n = min(len(q) - 1 - idx[-1], 15)
            a(f"s_waitcnt lgkmcnt({n})"); del q[:len(q) - n]
        a(text); put(per_gap)
    put(len(fill))

def slot_adv(SLOT, S):
    return [f"s_add_u32 s40, s37, {SLOT}", f"s_cmp_ge_u32 s40, {SLOT*S}", "s_cselect_b32 s41, 0, s40", "s_sub_u32 s40, s41, s37", "s_mov_b32 s37, s41"]

def thr(name, default):
    t = opt("t" + name, default if opt("thr") else 0)
    return f"s_waitcnt vmcnt({t-1})\n" if t else ""
UID = [0]
def uid(p): UID[0] += 1; return f"{p}{UID[0]}"

def issue_n(a, n, issue):
    L = uid("Li")
    a(f"s_add_u32 s32, s33, {n}")
    a.label(L); issue()
    a(f"s_add_u32 s33, s33, 1\ns_cmp_lt_u32 s33, s32\ns_cbranch_scc1 {L}")
def steady(a, upto, n, ahead, issue):
    L = uid("Ls")
    a.label(L)
    a(f"s_waitcnt vmcnt({n*(ahead-1)})\ns_barrier"); issue()
    a(f"s_add_u32 s33, s33, 1\ns_cmp_lt_u32 s33, {upto}\ns_cbranch_scc1 {L}")
def drain(a, n, ahead):
    for k in range(ahead - 1, -1, -1): a(f"s_waitcnt vmcnt({n*k})\ns_barrier")

def publish(a, ctr, nw, vaddr, lanes, keep=0):
    L = uid("Lpub")
    a(f"""
    s_waitcnt vmcnt({keep})
    s_mov_b64 exec, 1
    v_mov_b32 v2, {CTR + ctr}
    v_mov_b32 v3, 1
    ds_add_rtn_u32 v3, v2, v3
    s_waitcnt lgkmcnt(0)
    v_readfirstlane_b32 s22, v3
    s_mov_b64 exec, {(1 << lanes) - 1}
    s_cmp_lg_u32 s22, {nw - 1}
    s_cbranch_scc1 {L}
    v_mov_b32 v3, s48
    buffer_store_dword v3, v{vaddr}, s[44:47], 0 offen {SC}
    """)
    a.label(L); a("s_mov_b64 exec, -1")
def gate(a, vaddr, mask, two=False, sl=None):
    sl = opt("slp", 8) if sl is None else sl
    L = uid("Lg"); slp = "s_sleep %d" % sl if sl else ""
    a(f"s_mov_b32 s49, 0\ns_mov_b32 exec_lo, {mask & 0xffffffff}\ns_mov_b32 exec_hi, {mask >> 32}")
    a.label(L)
    if two: a(f"buffer_load_dword v2, v{vaddr}, s[44:47], 0 offen {SC}\ns_mov_b32 s22, {two}\nbuffer_load_dword v3, v{vaddr}, s[44:47], s22 offen {SC}\ns_waitcnt vmcnt(0)\nv_xor_b32 v2, s48, v2\nv_xor_b32 v3, s48, v3\nv_or_b32 v2, v2, v3")
    else: a(f"buffer_load_dword v2, v{vaddr}, s[44:47], 0 offen {SC}\ns_waitcnt vmcnt(0)\nv_xor_b32 v2, s48, v2")
    a(f"v_cmp_ne_u32 vcc, 0, v2\ns_add_u32 s49, s49, 1\ns_cmp_eq_u64 vcc, 0\ns_cbranch_scc1 {L}d\n{slp}\ns_cmp_lt_u32 s49, 20000\ns_cbranch_scc1 {L}")
    a.label(L + "d"); a("s_mov_b64 exec, -1")
def tag_ready(a):
    a("s_waitcnt lgkmcnt(0)\ns_mul_i32 s48, s48, 1664525\ns_add_u32 s48, s48, 1013904223")
def step_tag(a):
    a(f"v_lshlrev_b32 v12, 7, v1"); gate(a, 12, (1 << 64) - 1, two=8192)
    a(f"v_lshrrev_b32 v12, 3, v1\nv_lshlrev_b32 v12, 11, v12\nv_and_b32 v13, 7, v1\nv_lshl_add_u32 v12, v13, 7, v12\nv_add_u32 v12, {F2}, v12"); gate(a, 12, (1 << 64) - 1, two=16384)
    a(f"s_mov_b64 exec, 1\nv_mov_b32 v2, s48\nv_mov_b32 v3, {FZ}\nbuffer_store_dword v2, v3, s[44:47], 0 offen {SC}\ns_mov_b64 exec, -1")

def code_prefetch(a):
    if not opt("ncode"): return
    L = uid("Lpc")
    a(f"s_getpc_b64 s[30:31]\n{L}:\ns_sub_u32 s30, s30, {L}-{NAME}_kernel\ns_subb_u32 s31, s31, 0\nv_lshlrev_b32 v2, 7, v1")
    for i in range(opt("ncode", 0)):
        a(f"v_min_u32 v3, Lcode_end-{NAME}_kernel-4, v2\nglobal_load_dword v{40+i}, v3, s[30:31]\nv_add_u32 v2, 8192, v2")

def ln_issue(a):
    a(f"""
    s_lshl_b32 s22, s19, 4
    s_lshl_b32 s23, s3, 2
    s_add_u32 s22, s22, s23
    v_lshrrev_b32 v2, 4, v1
    v_add_u32 v10, s22, v2
    v_and_b32 v11, 15, v1
    v_lshlrev_b32 v4, 4, v11
    v_mul_u32_u24 v5, 1280, v10
    v_add_u32 v5, v5, v4
    s_waitcnt lgkmcnt(0)
    """)
    srd(a, 4, 4, H_SZ); srd(a, 8, 8, 1280)
    for i in range(5): a(f"buffer_load_dwordx4 {v(16+4*i,4)}, v5, s[4:7], 0 offen offset:{256*i}")
    for i in range(5): a(f"buffer_load_dwordx4 {v(36+4*i,4)}, v4, s[8:11], 0 offen offset:{256*i}")
def ln_finish(a):
    X, GW, U = 16, 36, 56
    srd(a, 4, 20, H_SZ, H_OFF); srd(a, 8, 20, G_SZ, G_OFF)
    a("s_mov_b32 s30, 0x3f803f80\ns_mov_b32 s31, 0xffff0000"); estamp(a, 1); a("s_waitcnt vmcnt(5)"); estamp(a, 2)
    a(f"v_dot2_f32_bf16 v6, v{X}, s30, 0\nv_dot2_f32_bf16 v8, v{X+1}, s30, 0")
    for i in range(2, 20): a(f"v_dot2_f32_bf16 v{6+2*(i&1)}, v{X+i}, s30, v{6+2*(i&1)}")
    for i in range(20): a(f"v_lshlrev_b32 v{U+2*i}, 16, v{X+i}\nv_and_b32 v{U+1+2*i}, s31, v{X+i}")
    def red(*rs):
        for sh in (8, 4, 2, 1):
            for r in rs: a(f"v_add_f32_dpp v{r}, v{r}, v{r} row_ror:{sh} row_mask:0xf bank_mask:0xf")
    a("v_add_f32 v6, v6, v8"); red(6)
    a(f"v_mul_f32 v6, {f2u(1/640)}, v6")
    for i in range(20): a(f"v_pk_add_f32 {v(U+2*i,2)}, {v(U+2*i,2)}, v[6:7] op_sel_hi:[1,0] neg_lo:[0,1] neg_hi:[0,1]")
    a(f"v_pk_mul_f32 v[12:13], {v(U,2)}, {v(U,2)}\nv_pk_mul_f32 v[14:15], {v(U+2,2)}, {v(U+2,2)}")
    for i in range(2, 20): a(f"v_pk_fma_f32 {v(12+2*(i&1),2)}, {v(U+2*i,2)}, {v(U+2*i,2)}, {v(12+2*(i&1),2)}")
    a("v_pk_add_f32 v[12:13], v[12:13], v[14:15]\nv_add_f32 v12, v12, v13")
    red(12)
    a(f"v_mov_b32 v8, {f2u(1e-5)}\nv_fmac_f32 v8, {f2u(1/640)}, v12\nv_rsq_f32 v12, v8")
    for j in range(5):
        for i in range(4*j, 4*j+4): a(f"v_pk_mul_f32 {v(U+2*i,2)}, {v(U+2*i,2)}, v[12:13] op_sel_hi:[1,0]")
        for i in range(4*j, 4*j+4): a(f"v_cvt_pk_bf16_f32 v{96+i}, v{U+2*i}, v{U+1+2*i}")
        a(f"buffer_store_dwordx4 {v(96+4*j,4)}, v5, s[4:7], 0 offen offset:{256*j} {SC}")
    estamp(a, 3)
    a("s_barrier")
    a(f"s_waitcnt vmcnt(5)\nv_dot2_f32_bf16 v9, v{X}, v{GW}, 0\nv_dot2_f32_bf16 v8, v{X+1}, v{GW+1}, 0")
    for i in range(2, 20): a(f"v_dot2_f32_bf16 v{9-(i&1)}, v{X+i}, v{GW+i}, v{9-(i&1)}")
    a("v_add_f32 v9, v9, v8"); red(9)
    a(f"""
    v_mul_f32 v9, {f2u(-LOG2E)}, v9
    v_exp_f32 v9, v9
    v_add_f32 v9, 1.0, v9
    v_rcp_f32 v8, v9
    v_lshlrev_b32 v10, 3, v10
    """)
    tag_ready(a)
    a(f"""
    v_mov_b32 v9, s48
    s_mov_b32 exec_lo, 0x00010001
    s_mov_b32 exec_hi, 0x00010001
    buffer_store_dwordx2 v[8:9], v10, s[8:11], 0 offen {SC}
    s_mov_b64 exec, -1
    s_lshl_b32 s22, s19, 7
    v_lshl_add_u32 v10, v1, {14 if opt("mixed") else 15}, s22
    """)
    if opt("early"): a("s_waitcnt vmcnt(1)"); estamp(a, 4)
    publish(a, 0, 4, 10, 4, keep=1)
    if opt("early"): estamp(a, 5); a("s_waitcnt vmcnt(0)"); estamp(a, 6)

G1_S, G1_SLOT = 6, 24576
def w1_sweep(a):
    a(f"s_lshl_b32 s23, s53, {2 if opt('mixed') else 1}\ns_add_u32 s23, s23, s3\ns_lshl_b32 s23, s23, 6\nv_add_u32 v2, s23, v1\ns_lshr_b32 s23, s52, 1\ns_mul_i32 s23, s23, 768\ns_mov_b32 s26, 43691")
    for n in range(3):
        a(f"v_add_u32 v3, {4096*n}, v2\nv_mul_u32_u24 v4, s26, v3\nv_lshrrev_b32 v4, 18, v4\nv_mul_u32_u24 v5, {3072-768}, v4\nv_lshl_add_u32 v5, v3, 7, v5\nv_add_u32 v{16+n}, s23, v5")
        if not opt("noslowcol"):
            a(f"v_and_b32 v5, 0x380, v{16+n}\nv_cmp_le_u32 vcc, {opt('sc0', 1024)}, v4\nv_cndmask_b32_e64 v5, 0, v5, vcc\nv_cmp_eq_u32 vcc, 0x180, v5\nv_cndmask_b32_e64 v{16+n}, v{16+n}, -16, vcc")
    srd(a, 4, 4, S_ * 3072)
    a("s_barrier"); estamp(a, 1)
    pre = opt("pre", 2)
    for n in range(3):
        if n == pre: tag_ready(a); a("s_barrier")
        if not opt("nopfw1"): a(f"buffer_load_dword v{20+n}, v{16+n}, s[4:7], 0 offen")
    if pre == 3: tag_ready(a); a("s_barrier")
    estamp(a, 2)
    if opt("pfwait"): a("s_waitcnt vmcnt(0)")
    estamp(a, 3)
def g1_loader_w(a):
    a(f"""
    v_lshrrev_b32 v2, 4, v1
    s_lshl_b32 s23, s3, 2
    v_add_u32 v2, s23, v2
    v_lshlrev_b32 v4, 1, v2
    v_and_b32 v3, 15, v1
    v_xor_b32 v3, v3, v4
    v_lshlrev_b32 v3, 4, v3
    v_mul_u32_u24 v2, 3072, v2
    s_lshl_b32 s26, s16, 8
    v_add3_u32 v8, v2, v3, s26
    """)
    for i in range(1, 8): a(f"v_add_u32 v{8+i}, {8*3072*i}, v8")
    a(f"""
    s_mov_b32 s34, s18
    s_lshl_b32 s37, s3, 10
    s_add_u32 s38, s37, {G1_SLOT*G1_S}
    s_mov_b32 s33, 0
    """)
    def issue():
        a(f"s_mul_i32 s40, s34, {64*3072}" if not opt("wwrap") else f"s_and_b32 s40, s34, 3\ns_mul_i32 s40, s40, {64*3072}")
        for i in range(8): a(f"s_add_u32 m0, s37, {2048*i}\n{thr('w', 11)}buffer_load_dwordx4 v{8+i}, s[4:7], s40 offen lds")
        a(f"s_add_u32 s37, s37, {G1_SLOT}\ns_cmp_ge_u32 s37, s38\ns_cselect_b32 s42, {G1_SLOT*G1_S}, 0\ns_sub_u32 s37, s37, s42\ns_add_u32 s34, s34, 1\ns_and_b32 s34, s34, 31")
    if opt("sweep"):
        w1_sweep(a); issue_n(a, G1_S - 2, issue)
    else:
        pp = opt("ppre", 1)
        srd(a, 4, 4, S_ * 3072); a("s_barrier")
        if pp: issue_n(a, pp, issue)
        tag_ready(a); a("s_barrier")
        if opt("s15"): a("s_barrier")
        m = opt("g1in", G1_S)
        if pp < m: issue_n(a, m - pp, issue)
        for j in range(m - (G1_S - 2)): a(f"s_waitcnt vmcnt({8*(m-1-j)})\ns_barrier")
        if m < G1_S - 2: a(f"s_waitcnt vmcnt({8*(m-1)})\ns_barrier"); issue_n(a, G1_S - 1 - m, issue)
    if opt("early"): estamp(a, 4); a("s_waitcnt vmcnt(0)"); estamp(a, 5)
    stamp(a, 1)
    steady(a, 32, 8, G1_S - 2, issue)
    if (not opt("earlyp")): drain(a, 8, G1_S - 2); stamp(a, 2); a("s_branch Lp2_s0")
    else: P2(0).setup_s(a); P2(0).early(a, 8, 12, "s")
def g1_loader_h(a):
    a(f"""
    v_lshrrev_b32 v2, 3, v1
    v_and_b32 v3, 7, v1
    v_and_b32 v4, 6, v2
    v_xor_b32 v3, v3, v4
    v_lshlrev_b32 v3, 4, v3
    s_sub_u32 s22, s3, 2
    s_lshl_b32 s23, s22, 3
    v_add_u32 v2, s23, v2
    v_mul_u32_u24 v2, 1280, v2
    s_lshl_b32 s26, s17, 7
    v_add3_u32 v8, v2, v3, s26
    """)
    for i in range(1, 4): a(f"v_add_u32 v{8+i}, {16*1280*i}, v8")
    a(f"""
    s_lshl_b32 s23, s52, 14
    v_lshl_add_u32 v12, v1, 7, s23
    s_mov_b32 s34, s18
    s_lshl_b32 s37, s22, 10
    s_add_u32 s37, s37, 16384
    s_add_u32 s38, s37, {G1_SLOT*G1_S}
    s_mov_b32 s33, 0
    """)
    srd(a, 4, 20, H_SZ, H_OFF)
    def issue():
        a(f"s_mul_i32 s40, s34, {64*1280}" if not opt("hwrap") else f"s_and_b32 s40, s34, 3\ns_mul_i32 s40, s40, {64*1280}")
        for i in range(4): a(f"s_add_u32 m0, s37, {2048*i}\n{thr('h', 5)}buffer_load_dwordx4 v{8+i}, s[4:7], s40 offen {'' if opt('hplain') else SC} lds")
        a(f"s_add_u32 s37, s37, {G1_SLOT}\ns_cmp_ge_u32 s37, s38\ns_cselect_b32 s42, {G1_SLOT*G1_S}, 0\ns_sub_u32 s37, s37, s42\ns_add_u32 s34, s34, 1\ns_and_b32 s34, s34, 31")
    tag_ready(a); a("s_barrier")
    if opt("s15"): a("s_barrier")
    estamp(a, 1)
    if opt("nosplit"): gate(a, 12, (1 << 64) - 1, two=8192)
    else:
        L = uid("Lm")
        a("s_sub_u32 s22, s3, 2\ns_lshl_b32 s22, s22, 13\nv_add_u32 v12, s22, v12"); gate(a, 12, (1 << 64) - 1)
        a(f"v_mov_b32 v2, {CTR + 12}\nv_mov_b32 v3, 1\ns_mov_b64 exec, 1\nds_add_u32 v2, v3\ns_mov_b32 s49, 0\n{L}:\nds_read_b32 v3, v2\ns_add_u32 s49, s49, 1\ns_waitcnt lgkmcnt(0)\nv_readfirstlane_b32 s22, v3")
        a(f"s_cmp_ge_u32 s22, 2\ns_cbranch_scc1 {L}d\ns_cmp_lt_u32 s49, 0x400000\ns_cbranch_scc1 {L}\n{L}d:\ns_mov_b64 exec, -1")
    stamp(a, 1); estamp(a, 3)
    if opt("early"): a("s_add_u32 s78, s70, s49\ns_mov_b32 s79, 0")
    if not (not opt("s2")): a("s_barrier")
    issue_n(a, G1_S - 2, issue)
    steady(a, 32, 4, G1_S - 2, issue)
    if (not opt("earlyp")): drain(a, 4, G1_S - 2); stamp(a, 2); a("s_branch Lp2_d0")
    else: P2(0).setup_d(a); P2(0).early(a, 4, 16, "d")
def g1_consumer(a):
    L = "Lg1"
    if opt("s15"): a("s_barrier")
    ACC, T = 16, 48
    a(f"""
    s_load_dwordx2 s[24:25], s[0:1], {KA['b1']}
    s_and_b32 s22, s3, 1
    s_lshr_b32 s23, s3, 1
    s_lshl_b32 s26, s16, 8
    s_lshl_b32 s27, s22, 7
    s_add_u32 s26, s26, s27
    v_lshrrev_b32 v2, 4, v1
    v_lshl_add_u32 v3, v2, 3, s26
    s_waitcnt lgkmcnt(0)
    """)
    srd(a, 24, 24, 3072); srd(a, 8, 20, UW_SZ, UW_OFF)
    for ft in range(4): a(f"buffer_load_dwordx2 {v(T+2*ft,2)}, v3, s[24:27], 0 offen offset:{32*ft}")
    a(f"""
    s_setprio 0
    v_lshrrev_b32 v5, 2, v1
    v_and_b32 v6, 3, v1
    v_lshlrev_b32 v6, 3, v6
    v_and_b32 v7, 7, v5
    v_lshl_add_u32 v4, v5, 8, v6
    s_lshl_b32 s27, s22, 2
    """)
    for ft in range(4): a(f"s_add_u32 s28, s27, {ft}\nv_xor_b32 v2, s28, v7\nv_lshl_add_u32 v{8+ft}, v2, 5, v4")
    a(f"v_lshrrev_b32 v7, 1, v5\nv_and_b32 v7, 3, v7\nv_lshl_add_u32 v4, v5, 7, v6\nv_add_u32 v4, 16384, v4\ns_lshl_b32 s27, s23, 1")
    for dt in range(2): a(f"s_add_u32 s28, s27, {dt}\nv_xor_b32 v2, s28, v7\nv_lshl_add_u32 v{12+dt}, v2, 5, v4")
    a(f"""
    s_lshl_b32 s28, s17, 2
    s_add_u32 s28, s28, s27
    s_mul_i32 s28, s28, 68
    s_lshl_b32 s29, s16, 2
    s_add_u32 s28, s28, s29
    s_lshl_b32 s29, s22, 1
    s_add_u32 s28, s28, s29
    s_lshl_b32 s28, s28, 10
    v_lshl_add_u32 v14, v1, 4, s28
    s_lshl_b32 s28, s17, 4
    s_add_u32 s28, s28, s16
    s_lshl_b32 s28, s28, 7
    s_add_u32 s28, s28, {F4}
    v_mul_u32_u24 v15, {160*128}, v1
    v_add_u32 v15, s28, v15
    s_mov_b32 s31, 0xffff0000
    s_waitcnt vmcnt(0)
    """)
    for ft in range(4):
        for dt in range(2):
            b = ACC + 8 * ft + 4 * dt
            a(f"v_lshlrev_b32 v{b}, 16, v{T+2*ft}\nv_and_b32 v{b+1}, s31, v{T+2*ft}\nv_lshlrev_b32 v{b+2}, 16, v{T+2*ft+1}\nv_and_b32 v{b+3}, s31, v{T+2*ft+1}")
    SETS = (48, 96)
    def reads(st):
        r = []
        for kk in range(2):
            b = SETS[st] + 24 * kk
            for dt in range(2): r += [(f"ds_read_b64_tr_b16 {v(b+4*dt+2*h,2)}, v{12+dt} offset:{kk*4096+2048*h}", (kk, "b", dt, h)) for h in range(2)]
            for ft in range(4): r += [(f"ds_read_b64_tr_b16 {v(b+8+4*ft+2*h,2)}, v{8+ft} offset:{kk*8192+4096*h}", (kk, "a", ft, h)) for h in range(2)]
        return r
    def mf(st):
        return [(f"v_mfma_f32_16x16x32_bf16 {v(ACC+8*ft+4*dt,4)}, {v(SETS[st]+24*kk+8+4*ft,4)}, {v(SETS[st]+24*kk+4*dt,4)}, {v(ACC+8*ft+4*dt,4)}", {(kk, "a", ft, 1)})
                for kk in range(2) for ft, dt in ([(f, d) for d in range(2) for f in range(4)] if opt("g1ord") else [(f, d) for f in range(4) for d in range(2)])]
    ids = [x[1] for x in reads(0)]
    adv = slot_adv(G1_SLOT, G1_S) + [f"v_add_u32 v{8+i}, s40, v{8+i}" for i in range(6)]
    if not (not opt("s2")): a("s_barrier")
    a("s_mov_b32 s33, 0\ns_mov_b32 s37, 0\ns_barrier"); stamp(a, 2, True)
    emit_step(a, [], [], reads(0), adv)

    a.label(f"{L}_c", 3)
    a("s_barrier")
    emit_step(a, mf(0), ids, reads(1), adv + ["s_add_u32 s33, s33, 2", "s_cmp_ge_u32 s33, 32"])
    a(f"s_cbranch_scc1 {L}_clast\ns_barrier")
    emit_step(a, mf(1), ids, reads(0), adv)
    a(f"s_branch {L}_c")
    a.label(f"{L}_clast")
    a("s_waitcnt lgkmcnt(0)" + ("\ns_barrier" if opt("noe2") else "")); stamp(a, 3, True); lstamp(a, 1)
    last = [t for t, _ in mf(1)]
    grp = lambda p, dt: [last[8 * kk + 2 * (2 * p + h) + dt] for kk in range(2) for h in range(2)]
    G = [(p, dt) for p in range(2) for dt in range(2)]
    for t in grp(*G[0]) + grp(*G[1]): a(t)
    rest = grp(*G[2]) + grp(*G[3])
    c0 = -2 * 0.7978845608028654 * LOG2E; c1 = c0 * 0.044715
    a(f"v_mov_b32 v2, {f2u(c0)}\nv_mov_b32 v4, {f2u(c1)}\nv_mov_b32 v6, 1.0\ns_setprio 2")
    lstamp(a, 2)
    T = 48
    for n, (p, dt) in enumerate(G):
        o = 72 + 4 * n
        prs = [ACC + 8 * (2 * p + h) + 4 * dt + 2 * q for h in range(2) for q in range(2)]
        def ops(l):
            for x in l:
                a(x)
                if rest and not x.startswith(("v_exp", "v_rcp")): a(rest.pop(0))
        ops([f"v_pk_mul_f32 {v(T+2*i,2)}, {v(b,2)}, {v(b,2)}" for i, b in enumerate(prs)])
        ops([f"v_pk_fma_f32 {v(T+2*i,2)}, {v(T+2*i,2)}, v[4:5], v[2:3] op_sel_hi:[1,0,0]" for i, b in enumerate(prs)])
        ops([f"v_pk_mul_f32 {v(T+2*i,2)}, {v(T+2*i,2)}, {v(b,2)}" for i, b in enumerate(prs)])
        ops([f"v_exp_f32 v{T+i}, v{T+i}" for i in range(8)])
        ops([f"v_pk_add_f32 {v(T+2*i,2)}, {v(T+2*i,2)}, v[6:7] op_sel_hi:[1,0]" for i, b in enumerate(prs)])
        ops([f"v_rcp_f32 v{T+i}, v{T+i}" for i in range(8)])
        ops([f"v_pk_mul_f32 {v(T+2*i,2)}, {v(T+2*i,2)}, {v(b,2)}" for i, b in enumerate(prs)])
        ops([f"v_cvt_pk_bf16_f32 v{o+i}, v{T+2*i}, v{T+2*i+1}" for i in range(4)])
        a(f"s_mov_b32 s29, {dt*68*1024}\nbuffer_store_dwordx4 {v(o,4)}, v14, s[8:11], s29 offen offset:{1024*p} {SC}")
    lstamp(a, 3)
    if not opt("noe2"): a("s_barrier")
    if opt("late"): a("s_waitcnt vmcnt(0)"); lstamp(a, 4)
    publish(a, 4, 4, 15, 4)
    if opt("late"): lstamp(a, 5); a("s_waitcnt vmcnt(0)"); lstamp(a, 6)
    stamp(a, 4, True)

def spare_loader(a):
    if opt("wol", 2):
        a(f"s_lshl_b32 s23, s52, 14\nv_lshl_add_u32 v12, v1, 7, s23"); gate(a, 12, (1 << 64) - 1 if opt("wol", 2) == 1 else 1, sl=16)
    a(f"""
    s_load_dwordx2 s[4:5], s[0:1], {KA['wo']}
    s_load_dwordx2 s[12:13], s[0:1], {KA['w2']}
    v_lshrrev_b32 v2, 3, v1
    v_and_b32 v3, 7, v1
    v_and_b32 v4, 6, v2
    v_xor_b32 v3, v3, v4
    v_lshlrev_b32 v14, 4, v3
    v_mul_u32_u24 v15, 1280, v2
    v_add_u32 v15, v15, v14
    v_lshrrev_b32 v3, 2, v2
    v_lshl_add_u32 v3, v3, 4, v2
    v_add_u32 v3, 16, v3
    v_mul_u32_u24 v3, 1280, v3
    v_add_u32 v14, v14, v3
    s_mul_i32 s23, s3, {7*4096}
    v_lshrrev_b32 v5, 2, v1
    v_lshrrev_b32 v6, 1, v5
    v_and_b32 v6, 3, v6
    v_lshlrev_b32 v5, 7, v5
    v_and_b32 v7, 3, v1
    v_lshlrev_b32 v7, 3, v7
    v_add3_u32 v5, v5, v7, s23
    """)
    for t in range(4): a(f"v_xor_b32 v7, {t}, v6\nv_lshl_add_u32 v{8+t}, v7, 5, v5")
    a(f"v_lshlrev_b32 v12, 4, v1\ns_lshl_b32 s26, s16, 7\ns_add_u32 s26, s26, {F3}\nv_lshl_add_u32 v13, v1, 10, s26\ns_waitcnt lgkmcnt(0)")
    srd(a, 4, 4, 640 * 1280); srd(a, 8, 20, UW_SZ, UW_OFF); srd(a, 12, 12, F_ * 4096)
    def task():
        a("s_lshl_b32 s26, s33, 2\ns_add_u32 s26, s26, s3\ns_min_u32 s26, s26, 24\ns_mul_i32 s27, s16, 25\ns_add_u32 s27, s27, s26\ns_mul_i32 s26, s27, 6554\ns_lshr_b32 s26, s26, 16\ns_mul_i32 s28, s26, 10\ns_sub_u32 s27, s27, s28")
    L = uid("Lwo")
    a("s_mov_b32 s33, 0"); a.label(L); task()
    for half in range(2):
        a(f"""
        s_lshl_b32 s28, s26, 1
        s_add_u32 s28, s28, {half}
        s_mul_i32 s29, s28, 52
        s_lshr_b32 s29, s29, 8
        s_mul_i32 s30, s29, 5
        s_sub_u32 s28, s28, s30
        s_mul_i32 s29, s29, 80
        s_mul_i32 s30, s28, 20
        s_cmp_eq_u32 s28, 4
        s_cselect_b64 vcc, -1, 0
        s_cselect_b32 s30, 0, s30
        s_cselect_b32 s31, 40, 8
        s_mul_i32 s31, s31, 1280
        s_add_u32 s29, s29, s30
        s_mul_i32 s28, s29, 1280
        s_lshl_b32 s29, s27, 7
        s_add_u32 s28, s28, s29
        v_cndmask_b32 v2, v15, v14, vcc
        """)
        for i in range(2): a(f"s_add_u32 m0, s23, {2048*half+1024*i}\nbuffer_load_dwordx4 v2, s[4:7], s28 offen lds\ns_add_u32 s28, s28, s31")
    a(f"s_add_u32 s23, s23, 4096\ns_add_u32 s33, s33, 1\ns_cmp_lt_u32 s33, 7\ns_cbranch_scc1 {L}\ns_waitcnt vmcnt(0)\ns_mov_b32 s33, 0")
    L = uid("Lwo"); a.label(L); task()
    for t in range(4): a(f"ds_read_b64_tr_b16 {v(16+4*t,2)}, v{8+t}\nds_read_b64_tr_b16 {v(18+4*t,2)}, v{8+t} offset:2048\nv_add_u32 v{8+t}, 4096, v{8+t}")
    a(f"s_lshl_b32 s28, s27, 2\ns_mul_i32 s28, s28, 68\ns_add_u32 s28, s28, s26\ns_add_u32 s28, s28, 48\ns_lshl_b32 s28, s28, 10")
    for t in range(4): a(f"s_waitcnt lgkmcnt({6-2*t})\nbuffer_store_dwordx4 {v(16+4*t,4)}, v12, s[8:11], s28 offen {SC}\ns_add_u32 s28, s28, {68*1024}")
    a(f"s_add_u32 s33, s33, 1\ns_cmp_lt_u32 s33, 7\ns_cbranch_scc1 {L}")
    publish(a, 8, 4, 13, 8)
    stamp(a, 1)
    if opt("spw2"):
        L = uid("Lw2")
        a(f"""
        s_and_b32 s22, s16, 1
        s_lshl_b32 s22, s22, 2
        s_add_u32 s22, s22, s3
        s_lshl_b32 s22, s22, 3
        v_lshrrev_b32 v2, 3, v1
        v_add_u32 v2, s22, v2
        v_lshlrev_b32 v2, 12, v2
        v_and_b32 v3, 7, v1
        v_lshl_add_u32 v2, v3, 7, v2
        s_lshr_b32 s22, s52, 1
        s_lshl_b32 s22, s22, 10
        s_mov_b32 s33, 0
        {L}:
        buffer_load_dword v30, v2, s[12:15], s22 offen
        s_add_u32 s22, s22, {64*4096}
        s_add_u32 s33, s33, 1
        s_cmp_lt_u32 s33, 24
        s_cbranch_scc1 {L}
        """)
    h0 = opt("sph", 0)
    if h0:
        L = uid("Lsh"); n = ((32 - h0 + 1) // 2 * 10 + 7) // 8
        srd(a, 4, 20, H_SZ, H_OFF)
        a(f"s_lshl_b32 s23, s52, 14\nv_lshl_add_u32 v12, v1, 7, s23")
        gate(a, 12, (1 << 64) - 1, two=8192)
        a(f"""
        s_and_b32 s22, s16, 1
        s_lshl_b32 s22, s22, 2
        s_add_u32 s22, s22, s3
        v_lshlrev_b32 v2, 7, v1
        s_mov_b32 s33, 0
        {L}:
        s_mul_i32 s23, s22, 6554
        s_lshr_b32 s23, s23, 16
        s_mul_i32 s23, s23, {64*1280}
        s_lshl_b32 s26, s22, 13
        s_add_u32 s23, s23, s26
        s_add_u32 s23, s23, {h0*64*1280}
        buffer_load_dword v30, v2, s[4:7], s23 offen {SC}
        s_add_u32 s22, s22, 8
        s_add_u32 s33, s33, 1
        s_cmp_lt_u32 s33, {n}
        s_cbranch_scc1 {L}
        """)
    nw = opt("c3", 0)
    if nw:
        L = uid("Lc3")
        a(f"""
        s_cmp_ge_u32 s3, {nw}
        s_cbranch_scc1 {L}d
        s_and_b32 s22, s16, 1
        s_mul_i32 s22, s22, {nw}
        s_add_u32 s22, s22, s3
        s_lshl_b32 s22, s22, 6
        v_add_u32 v2, s22, v1
        v_lshlrev_b32 v2, 12, v2
        s_lshr_b32 s22, s52, 1
        s_lshl_b32 s22, s22, 10
        s_add_u32 s22, s22, 384
        s_mov_b32 s33, 0
        {L}:
        buffer_load_dword v30, v2, s[12:15], s22 offen
        s_add_u32 s22, s22, {128*nw*4096}
        s_add_u32 s33, s33, 1
        s_cmp_lt_u32 s33, {12//nw}
        s_waitcnt vmcnt(0)
        s_cbranch_scc1 {L}
        {L}d:
        """)
    stamp(a, 2)

QA_S, QA_SLOT, QA_W = 3, 49152, 18432
def qa_w1_sweep(a):
    if not opt("qsw"): return
    a(f"""
    s_load_dwordx2 s[12:13], s[0:1], {KA['w1']}
    s_lshr_b32 s22, s2, 1
    s_lshl_b32 s22, s22, 2
    s_add_u32 s22, s22, s3
    s_lshl_b32 s23, s22, 12
    s_lshl_b32 s22, s22, 13
    s_add_u32 s23, s23, {512*8192}
    v_lshlrev_b32 v2, 7, v1
    s_waitcnt lgkmcnt(0)
    """)
    srd(a, 12, 12, S_ * 3072)
    a("buffer_load_dword v32, v2, s[12:15], s22 offen\ns_mov_b32 exec_hi, 0\nbuffer_load_dword v33, v2, s[12:15], s23 offen\ns_mov_b32 exec_hi, -1")
def w2_setup(a):
    a(f"""
    s_load_dwordx2 s[24:25], s[0:1], {KA['w2']}
    v_lshrrev_b32 v2, 3, v1
    s_lshl_b32 s22, s53, 3
    v_add_u32 v2, s22, v2
    v_lshlrev_b32 v2, 12, v2
    v_and_b32 v3, 7, v1
    v_lshl_add_u32 v2, v3, 7, v2
    s_lshr_b32 s22, s52, 1
    s_lshl_b32 s22, s22, 10
    v_add_u32 v29, s22, v2
    s_waitcnt lgkmcnt(0)
    """)
    srd(a, 24, 24, F_ * 4096)
def w2_load(a):
    if opt("sc3"): a("s_mov_b32 exec_lo, 0xf7f7f7f7\ns_mov_b32 exec_hi, 0xf7f7f7f7\nbuffer_load_dword v30, v29, s[24:27], s22 offen\ns_mov_b64 exec, -1")
    else: a("buffer_load_dword v30, v29, s[24:27], s22 offen")
def w2_last(a):
    if not opt("nopfw2"): a("s_lshl_b32 s22, s3, 20"); w2_load(a)
def w2_slow(a):
    n = opt("sc3")
    if not n or n > 2: return
    a(f"s_lshl_b32 s22, s53, 2\ns_add_u32 s22, s22, s3\ns_lshl_b32 s22, s22, 12\ns_lshr_b32 s23, s52, 1\ns_lshl_b32 s23, s23, 10\ns_add_u32 s22, s22, s23\ns_add_u32 s22, s22, 384\ns_add_u32 s26, s24, s22\ns_addc_u32 s27, s25, 0")
    for k in range(12):
        for h in range(n): a(f"s_load_dword s98, s[26:27], {64*h}")
        a(f"s_add_u32 s26, s26, {128*4096}\ns_addc_u32 s27, s27, 0")
def qa_loader(a):
    a(f"v_lshrrev_b32 v2, 3, v1\ns_lshl_b32 s23, s3, 3\nv_add_u32 v2, s23, v2\ns_lshl_b32 s26, s16, 7\ns_sub_u32 s26, s26, 16\nv_and_b32 v3, 7, v1")
    for i in range(6):
        a(f"v_add_u32 v4, {24*i}, v2\nv_lshrrev_b32 v5, 1, v4\nv_and_b32 v5, 7, v5\nv_xor_b32 v5, v5, v3\nv_add_u32 v4, s26, v4\nv_max_i32 v4, 0, v4\nv_mul_u32_u24 v4, 1280, v4\nv_lshl_add_u32 v{8+i}, v5, 4, v4")
    a(f"s_mul_i32 s23, s3, 320\ns_mul_i32 s26, s17, 160\nv_add_u32 v2, s23, v1")
    for i in range(5):
        a(f"""
        v_add_u32 v3, {64*i}, v2
        v_mul_u32_u24 v4, 2185, v3
        v_lshrrev_b32 v4, 16, v4
        v_mul_u32_u24 v5, 30, v4
        v_sub_u32 v3, v3, v5
        v_mul_u32_u24 v5, 26, v3
        v_lshrrev_b32 v5, 8, v5
        v_mul_u32_u24 v5, {1280-160}, v5
        v_lshl_add_u32 v3, v3, 4, v5
        v_and_b32 v5, 12, v4
        v_lshlrev_b32 v5, 1, v5
        v_lshrrev_b32 v6, 4, v4
        v_lshl_add_u32 v5, v6, 2, v5
        v_and_b32 v4, 3, v4
        v_add_u32 v4, v4, v5
        v_mul_u32_u24 v4, 3840, v4
        v_add3_u32 v{16+i}, v4, v3, s26
        """)
    a(f"s_mov_b32 s34, s18\ns_mov_b32 s37, 0\ns_lshl_b32 s38, s3, 10\ns_mul_i32 s39, s3, 5120\ns_add_u32 s39, s39, {QA_W}\ns_mov_b32 s33, 0")
    srd(a, 4, 4, H_SZ); srd(a, 8, 8, 640 * 3840)
    def issue(half=None):
        if half != 1: a(f"s_lshl_b32 s40, s34, 7\ns_mul_i32 s41, s34, {64*3840}\ns_add_u32 s42, s37, s38\ns_add_u32 s43, s37, s39\ns_add_u32 s36, s41, {32*3840}")
        if half != 1:
            for i in range(3): a(f"s_add_u32 m0, s42, {3072*i}\nbuffer_load_dwordx4 v{8+i}, s[4:7], s40 offen lds")
            for i in range(5): a(f"s_add_u32 m0, s43, {1024*i}\nbuffer_load_dwordx4 v{16+i}, s[8:11], s41 offen lds")
        if half != 0:
            for i in range(3, 6): a(f"s_add_u32 m0, s42, {3072*i}\nbuffer_load_dwordx4 v{8+i}, s[4:7], s40 offen lds")
            for i in range(5): a(f"s_add_u32 m0, s43, {15360+1024*i}\nbuffer_load_dwordx4 v{16+i}, s[8:11], s36 offen lds")
            a(f"s_add_u32 s37, s37, {QA_SLOT}\ns_cmp_ge_u32 s37, {QA_SLOT*QA_S}\ns_cselect_b32 s37, 0, s37\ns_add_u32 s34, s34, 1\ns_cmp_ge_u32 s34, 10\ns_cselect_b32 s34, 0, s34")
    if opt("lateb0"):
        issue_n(a, 2, issue); tag_ready(a); w2_setup(a); stamp(a, 1)
    else:
        issue(); issue(0); tag_ready(a); a("s_waitcnt vmcnt(8)\ns_barrier"); issue(1); issue(); a("s_mov_b32 s33, 3")
        w2_setup(a); stamp(a, 1)
    steady(a, 10, 16, QA_S - 1, issue); drain(a, 16, QA_S - 1)
    stamp(a, 2); w2_last(a); a("s_barrier")
def qa_idle(a):
    code_prefetch(a)
    if opt("wsq", 1) == 1:
        a("s_lshr_b32 s22, s52, 1\ns_lshl_b32 s22, s22, 5\ns_add_u32 s22, s22, s53\ns_mul_i32 s26, s22, 22\ns_add_u32 s26, s26, 16384\ns_lshl_b32 s26, s26, 7\ns_lshl_b32 s22, s22, 13\ns_add_u32 s23, s22, 0x100000\nv_lshlrev_b32 v2, 7, v1")
        srd(a, 8, 8, 640 * 3840)
        a("buffer_load_dword v40, v2, s[8:11], s22 offen\nbuffer_load_dword v41, v2, s[8:11], s23 offen\ns_mov_b64 exec, 0x3fffff\nbuffer_load_dword v42, v2, s[8:11], s26 offen\ns_mov_b64 exec, -1")
    if opt("wsq") == 2:
        a(f"s_mul_i32 s22, s53, 60\nv_add_u32 v2, s22, v1\nv_mul_u32_u24 v3, 4370, v2\nv_lshrrev_b32 v3, 16, v3\nv_mul_u32_u24 v4, 15, v3\nv_sub_u32 v2, v2, v4\nv_mul_u32_u24 v4, 52, v2\nv_lshrrev_b32 v4, 8, v4\nv_mul_u32_u24 v4, {1280-640}, v4\nv_lshl_add_u32 v2, v2, 7, v4\nv_mul_u32_u24 v3, 3840, v3\ns_lshr_b32 s22, s52, 2\ns_mul_i32 s22, s22, 640\nv_add3_u32 v2, v2, v3, s22")
        srd(a, 8, 8, 640 * 3840)
        a("s_mov_b32 exec_hi, 0x0fffffff")
        for n in range(5): a(f"s_mov_b32 s22, {128*3840*n}\nbuffer_load_dword v{40+n}, v2, s[8:11], s22 offen")
        a("s_mov_b32 exec_hi, -1")
    if opt("w49"):
        a(f"""
        s_mul_i32 s22, s53, 60
        v_add_u32 v2, s22, v1
        v_mul_u32_u24 v3, 4370, v2
        v_lshrrev_b32 v3, 16, v3
        v_mul_u32_u24 v4, 15, v3
        v_sub_u32 v2, v2, v4
        v_mul_u32_u24 v4, 52, v2
        v_lshrrev_b32 v4, 8, v4
        v_mul_u32_u24 v4, {1280-640}, v4
        v_lshl_add_u32 v2, v2, 7, v4
        v_lshrrev_b32 v4, 6, v3
        v_lshl_add_u32 v3, v4, 8, v3
        v_add_u32 v3, 256, v3
        v_mul_u32_u24 v3, 3840, v3
        s_lshr_b32 s22, s52, 2
        s_mul_i32 s22, s22, 640
        v_add3_u32 v2, v2, v3, s22
        """)
        srd(a, 8, 8, 640 * 3840)
        a("s_mov_b32 exec_hi, 0x0fffffff\nbuffer_load_dword v31, v2, s[8:11], 0 offen\ns_mov_b32 exec_hi, -1")
    if opt("x49"):
        a(f"""
        s_lshr_b32 s22, s53, 3
        s_mul_i32 s22, s22, 36
        s_lshl_b32 s23, s16, 7
        s_add_u32 s22, s22, s23
        s_sub_u32 s22, s22, 16
        v_add_u32 v2, s22, v1
        v_max_i32 v2, 0, v2
        v_mul_u32_u24 v2, 1280, v2
        s_bitcmp1_b32 s53, 0
        s_cselect_b32 s22, 5, 4
        s_cselect_b32 s23, 0, 9
        s_lshl_b32 s22, s22, 7
        s_lshl_b32 s23, s23, 7
        """)
        srd(a, 4, 4, H_SZ)
        a("s_mov_b32 exec_hi, 0xf\nbuffer_load_dword v32, v2, s[4:7], s22 offen\nbuffer_load_dword v33, v2, s[4:7], s23 offen\ns_mov_b32 exec_hi, -1")
    tag_ready(a); w2_setup(a)
    at = (opt("w2a", 9), opt("w2b", 9))
    for i in range(10):
        a("s_barrier")
        for k in range(2):
            if at[k] == i and not opt("nopfw2"): a(f"s_mov_b32 s22, {(4+k) << 20}"); w2_load(a)
    w2_last(a); a("s_barrier")
def qa_consumer(a):
    L = "Lqa"
    AQ, AK, AR, AV, AW = 16, 48, 88, 108, 148
    XF, WB = 168, 208
    M0, M1, MF, PM, TM = 224, 228, 232, 236, 240
    NB, DD = 4, opt("dd", 3)
    a(f"""
    s_lshr_b32 s28, s3, 1
    s_and_b32 s29, s3, 1
    v_and_b32 v2, 15, v1
    v_lshrrev_b32 v3, 4, v1
    v_lshrrev_b32 v4, 1, v2
    v_xor_b32 v4, v4, v3
    v_lshlrev_b32 v4, 4, v4
    v_lshl_add_u32 v4, v2, 7, v4
    v_mov_b32 v8, v4
    v_xor_b32 v9, 64, v4
    v_lshrrev_b32 v5, 2, v1
    v_mul_u32_u24 v5, 480, v5
    s_mul_i32 s23, s29, 80
    s_add_u32 s23, s23, {QA_W}
    v_add_u32 v5, s23, v5
    v_and_b32 v4, 3, v1
    v_lshl_add_u32 v10, v4, 3, v5
    v_and_b32 v6, 1, v1
    v_mul_u32_u24 v6, 40, v6
    v_add3_u32 v13, v6, v5, 32
    v_lshrrev_b32 v4, 1, v4
    v_mul_u32_u24 v4, 160, v4
    v_add_u32 v11, v4, v13
    """)
    if opt("zv"):
        a(f"v_and_b32 v4, 3, v1\nv_lshrrev_b32 v4, 1, v4\nv_cmp_ne_u32 s[98:99], s29, v4")
    for i in range(AQ, XF): a(f"v_mov_b32 v{i}, 0")
    a(f"v_lshlrev_b32 v4, 2, v3\nv_sub_u32 v4, v2, v4\nv_mov_b32 v5, {f2u(-1e30)}")
    for r in range(4):
        a(f"""
        v_subrev_u32 v15, {r}, v4
        v_and_b32 v15, 0x80000001, v15
        v_cmp_eq_u32 vcc, 0, v15
        v_cndmask_b32_e64 v{M1+r}, v5, 0, vcc
        v_cndmask_b32_e64 v{TM+4+r}, 0, -1, vcc
        v_cmp_eq_u32 vcc, 0x80000000, v15
        v_cndmask_b32_e64 v{M0+r}, v5, 0, vcc
        v_cndmask_b32_e64 v{TM+r}, 0, -1, vcc
        """)
    a("s_mov_b32 s30, 0xffff\ns_mov_b32 s22, 0x0c0c0c0c\ns_mov_b32 s26, 0x01000100\ns_mov_b32 s27, 0x03020302")
    for i in range(4): a(f"v_bfi_b32 v{PM+i}, s30, v{TM+2*i}, v{TM+2*i+1}\nv_mov_b32 v15, s22\nv_bfi_b32 v{PM+i}, v{PM+i}, s{26+(i&1)}, v15")
    a(f"s_or_b32 s23, s16, s28\ns_cmp_eq_u32 s23, 0\ns_cselect_b64 vcc, -1, 0")
    for r in range(4): a(f"v_cndmask_b32 v{MF+r}, v{M0+r}, v5, vcc")
    GM = 90
    for j in range(2): a(f"v_cmp_eq_u32 s[{GM+2*j}:{GM+1+2*j}], {j}, v3")
    a(f"""
    v_and_b32 v4, 1, v3
    v_cmp_eq_u32 s[94:95], 1, v4
    s_cmp_eq_u32 s29, 0
    s_cselect_b32 s96, -1, 0
    s_cselect_b32 s97, 0, -1
    s_lshl_b32 s23, s16, 3
    s_lshl_b32 s26, s28, 2
    s_add_u32 s23, s23, s26
    s_mul_i32 s23, s23, 40
    s_mul_i32 s26, s17, 5
    s_add_u32 s23, s23, s26
    s_lshl_b32 s23, s23, 9
    v_lshl_add_u32 v15, v1, 3, s23
    s_lshl_b32 s26, s29, 10
    v_add_u32 v12, s26, v15
    s_lshl_b32 s23, s16, 4
    s_add_u32 s23, s23, s17
    s_lshl_b32 s23, s23, 7
    s_add_u32 s23, s23, {F2}
    v_lshl_add_u32 v14, v1, 10, s23
    s_mov_b32 s31, {f2u(20 ** -0.5 * LOG2E)}
    v_mov_b32 v6, s31
    s_mov_b32 s33, 0
    s_mov_b32 s37, 0
    s_waitcnt lgkmcnt(0)
    """)
    srd(a, 4, 20, OT_SZ, OT_OFF); tag_ready(a)
    U = [("q", 0), ("q", 1), ("k", 0), ("k", 1), ("r", 0), ("v", 0), ("v", 1), ("w", 0)]
    NU = len(U); UU = 2 * NU
    def wread(u):
        kk, c = divmod(u, NU); p, j = U[c]; b = WB + 4 * (u % NB)
        ad, off = {"q": (10, 40 * j), "k": (10, 160 + 40 * j), "v": (10, 320 + 40 * j), "r": (11, 0), "w": (13, 320)}[p]
        off += kk * 15360
        return [f"ds_read_b64_tr_b16 {v(b,2)}, v{ad} offset:{off}", f"ds_read_b64_tr_b16 {v(b+2,2)}, v{ad} offset:{off+7680}"]
    def acc(p, j, t): return {"q": AQ + 8 * (t - 1) + 4 * j, "k": AK + 8 * t + 4 * j, "r": AR + 4 * t, "v": AV + 20 * j + 4 * t, "w": AW + 4 * t}[p]
    cvt = lambda d, s0: f"v_cvt_pk_bf16_f32 v{d}, v{s0}, v{s0+1}"
    cv = lambda d, s0: a(cvt(d, s0))
    VCH = (AV, AV + 20, AW)
    stamp(a, 1, True); a("s_barrier"); stamp(a, 2, True)
    a(f"s_cmp_lg_u32 s28, 0\ns_cbranch_scc1 {L}_h1")
    for rh in range(2):
        a.label(f"{L}_h{rh}")
        def xread(kk): return [f"ds_read_b128 {v(XF+20*kk+4*t,4)}, v{8+kk} offset:{2048*(4*rh+t) if t else 0}" for t in (1, 2, 3, 4, 0)]
        def mf(u):
            kk, c = divmod(u, NU); p, j = U[c]; w = v(WB + 4 * (u % NB), 4); r = []
            for t in ((1, 2, 3, 4, 0) if p in ("kr", "vw")[rh] else (1, 2, 3, 4)):
                x = v(XF + 20 * kk + 4 * t, 4); d = v(acc(p, j, t), 4)
                r.append(f"v_mfma_f32_16x16x32_bf16 {d}, {w}, {x}, {d}" if p in "qkr" else f"v_mfma_f32_16x16x32_bf16 {d}, {x}, {w}, {d}")
            return r
        for t in xread(0): a(t)
        for u in range(DD):
            for t in wread(u): a(t)
        a(f"s_waitcnt lgkmcnt({2*DD-2})")
        a.label(f"{L}_c{rh}", 3)
        q = []
        for u in range(1, DD): q += [u, u]
        misc = slot_adv(QA_SLOT, QA_S) + ["s_add_u32 s33, s33, 1", "s_cmp_ge_u32 s33, 10"]
        x1 = xread(1)
        for u in range(UU):
            nx = u + DD; fill = []
            if nx == UU: fill += [(t, UU) for t in xread(0)]
            fill += [(t, nx) for t in wread(nx % UU)]
            if 1 <= u < NU - 1 and x1: fill.append((x1.pop(0), NU))
            ms = mf(u)
            if nx == UU:
                a(f"s_waitcnt lgkmcnt(0)\ns_cbranch_scc1 {L}_clast{rh}\ns_barrier"); q = []
            per = -(-len(fill) // len(ms))
            for i, m in enumerate(ms):
                a(m)
                for t, tag in fill[i*per:(i+1)*per]: a(t); q.append(tag)
                if i == len(ms) - 2 and misc and u >= 2: a(misc.pop(0))
                if 1 <= i <= 3 and nx == UU - 1:
                    for r in ((), (8, 9, 10), (11, 13))[i - 1]: a(f"v_add_u32 v{r}, s40, v{r}")
            if any(t <= u + 1 for t in q) and nx != UU - 1:
                last = max(i for i, t in enumerate(q) if t <= u + 1)
                q = q[last + 1:]
                a(f"s_waitcnt lgkmcnt({len(q)})")
        assert not misc and not x1 and len(q) == 2 * DD - 2, (misc, x1, q)
        a(f"s_branch {L}_c{rh}")
        a.label(f"{L}_clast{rh}"); stamp(a, 3, True); lstamp(a, 1)
        TK = (4, 3, 2, 1) if rh else (4, 3, 2, 1, 0); prep = []
        for t in TK:
            r = AR + 4 * t; k = AK + 8 * t
            prep += [cvt(k, k), cvt(k + 1, k + 2), cvt(k + 4, k + 4), cvt(k + 5, k + 6), cvt(k + 2, r), cvt(k + 3, r + 2), cvt(r, r), cvt(r + 1, r + 2)]
        for t in TK:
            r = AR + 4 * t; k = AK + 8 * t
            prep += [f"v_permlane32_swap_b32 v{r}, v{k+2}", f"v_permlane32_swap_b32 v{r+1}, v{k+3}"]
        assert DD == 3
        for u in range(UU - DD, UU):
            for m in mf(u): a(m); a(prep.pop(0)); a(prep.pop(0))
        a(f"v_lshlrev_b32 v8, 3, v1\ns_mul_i32 s23, s29, 20480\ns_add_u32 s23, s23, 61440\nv_add_u32 v8, s23, v8")
        for x in prep: a(x)
        if rh == 0:
            for i in range(3): a(f"ds_write_b64 v8, {v(AK+32+2*i,2)} offset:{512*i}")
        for n, b in enumerate(VCH):
            for i in range(0 if rh else 2, 10): cv(b + i, b + 2 * i)
            a(f"ds_write_b64 v8, {v(b + (0 if rh else 8),2)} offset:{(3072 if rh else 1536) + 512*n}")
        a("s_waitcnt lgkmcnt(0)\ns_barrier")
        if rh:
            for i in range(3): a(f"ds_read_b64 {v(AK+2*i,2)}, v8 offset:{512*i}")
        for n, b in enumerate(VCH): a(f"ds_read_b64 {v(b,2)}, v8 offset:{(1536 if rh else 3072) + 512*n}")
        if rh == 0: a(f"s_branch {L}_j")
    a.label(f"{L}_j")
    lstamp(a, 2)
    UN = [(t, j) for t in (4, 3, 2, 1) for j in range(2)]
    SRS = [XF + 8 * n for n in range(7)] + [TM + 8]
    def qprep(t):
        r = AR + 4 * t; qa, qb = acc("q", 0, t), acc("q", 1, t)
        return [cvt(qa, qa), cvt(qa + 1, qa + 2), cvt(qb + 3, qb + 2), cvt(qb + 2, qb)] + \
               [f"v_cndmask_b32 v{qa+2+i}, 0, v{r+i}, s[{GM}:{GM+1}]" for i in range(2)] + [f"v_cndmask_b32 v{qb+i}, 0, v{r+i}, s[{GM+2}:{GM+3}]" for i in range(2)]
    for x in qprep(4): a(x)
    for n, (t, j) in enumerate(UN):
        qf = v(acc("q", j, t), 4)
        if j == 0: nxt = qprep(t - 1) if t > 1 else []
        if n == 6: a("s_waitcnt lgkmcnt(0)")
        a(f"v_mfma_f32_16x16x32_bf16 {v(SRS[n],4)}, {v(AK+8*(t-1)+2*j,4)}, {qf}, {v(MF if t == 1 else M0,4)}")
        for x in nxt[4*j:4*j+2]: a(x)
        a(f"v_mfma_f32_16x16x32_bf16 {v(SRS[n]+4,4)}, {v(AK+8*t+2*j,4)}, {qf}, {v(M1,4)}")
        for x in nxt[4*j+2:4*j+4]: a(x)
    V2, X = AQ, AQ + 16
    P = [AK + 4 * n for n in range(8)]
    for n in range(8): s_ = SRS[n]; a(f"v_max3_f32 v{V2+2*n}, v{s_}, v{s_+1}, v{s_+4}\nv_max3_f32 v{V2+2*n+1}, v{s_+2}, v{s_+3}, v{s_+6}")
    for n in range(8): s_ = SRS[n]; a(f"v_max_f32 v{V2+2*n}, v{V2+2*n}, v{s_+5}\nv_max_f32 v{V2+2*n+1}, v{V2+2*n+1}, v{s_+7}")
    def seq(*steps):
        for st in steps:
            for x in (X, X + 4): a(st(x))
    def xred(op):
        seq(lambda x: f"v_permlane32_swap_b32 v{x}, v{x+1}\nv_permlane32_swap_b32 v{x+2}, v{x+3}",
            lambda x: f"{op} v{x}, v{x}, v{x+1}\n{op} v{x+2}, v{x+2}, v{x+3}",
            lambda x: f"v_permlane16_swap_b32 v{x}, v{x+2}", lambda x: f"{op} v{x}, v{x}, v{x+2}")
    def xbc():
        seq(lambda x: f"v_mov_b32 v{x+2}, v{x}", lambda x: f"v_permlane16_swap_b32 v{x}, v{x+2}",
            lambda x: f"v_mov_b32 v{x+1}, v{x}\nv_mov_b32 v{x+3}, v{x+2}",
            lambda x: f"v_permlane32_swap_b32 v{x}, v{x+1}\nv_permlane32_swap_b32 v{x+2}, v{x+3}")
    sel = lambda n: f"op_sel:[0,{n&1},{n&1}] op_sel_hi:[1,{n&1},{n&1}]"
    for n in range(8): a(f"v_max_f32 v{X+n}, v{V2+2*n}, v{V2+2*n+1}")
    xred("v_max_f32"); seq(lambda x: f"v_mul_f32 v{x}, s31, v{x}"); xbc()
    for n in range(8): a(f"v_pk_fma_f32 {v(V2+2*n,2)}, {v(V2+2*n,2)}, v[6:7], {v(X+(n&6),2)} op_sel:[0,0,{n&1}] op_sel_hi:[1,0,{n&1}] neg_lo:[0,0,1] neg_hi:[0,0,1]")
    for n in range(16): a(f"v_exp_f32 v{V2+n}, v{V2+n}")
    for n in range(8): a(f"v_add_f32 v{X+n}, v{V2+2*n}, v{V2+2*n+1}")
    xred("v_add_f32"); seq(lambda x: f"v_rcp_f32 v{x}, v{x}"); xbc()
    for n in range(8): a(f"v_pk_mul_f32 {v(V2+2*n,2)}, {v(V2+2*n,2)}, {v(X+(n&6),2)} op_sel:[0,{n&1}] op_sel_hi:[1,{n&1}]")
    for n in range(8): cv(X + n, V2 + 2 * n)
    a("s_setprio 2")
    def pv(n):
        t, j = UN[n]
        return [f"v_mfma_f32_16x16x32_bf16 {v(SRS[n],4)}, {v(AV+20*j+2*(t-1),4)}, {v(P[n],4)}, 0", f"v_mfma_f32_16x16x32_bf16 {v(SRS[n]+4,4)}, {v(AW+2*(t-1),4)}, {v(P[n],4)}, 0"]
    for n in range(8):
        pm = [f"v_perm_b32 v{P[n]+i}, v{X+n}, v{X+n}, v{PM+i}" for i in range(4)]
        m = pv(n - 1) if n else ["", ""]
        a(pm[0]); a(pm[1]); a(m[0]); a(pm[2]); a(pm[3]); a(m[1])
    for m in pv(7): a(m)
    O = AQ
    for t in (4, 3, 2, 1):
        n = 2 * (4 - t); o = O + 6 * (4 - t)
        a(f"s_mov_b32 s29, {40*512*(t-1)}")
        for j in range(2):
            cv(o + 2 * j, SRS[n + j]); cv(o + 2 * j + 1, SRS[n + j] + 2)
            a(f"buffer_store_dwordx2 {v(o+2*j,2)}, v12, s[4:7], s29 offen offset:{512*j} {SC}")
        for r in range(4): a(f"v_cndmask_b32 v{SRS[n]+4+r}, v{SRS[n]+4+r}, v{SRS[n+1]+4+r}, s[94:95]")
        cv(o + 4, SRS[n] + 4); cv(o + 5, SRS[n] + 6)
        a(f"s_mov_b64 exec, s[96:97]\nbuffer_store_dwordx2 {v(o+4,2)}, v15, s[4:7], s29 offen offset:2048 {SC}\ns_mov_b64 exec, -1")
    lstamp(a, 3)
    a("s_waitcnt vmcnt(0)"); lstamp(a, 4)
    a(f"s_barrier\ns_cmp_lg_u32 s3, 0\ns_cbranch_scc1 {L}_np\ns_mov_b64 exec, 3\nv_mov_b32 v3, s48\nbuffer_store_dword v3, v14, s[44:47], 0 offen {SC}\ns_mov_b64 exec, -1")
    a.label(f"{L}_np")
    if opt("late"): lstamp(a, 5); a("s_waitcnt vmcnt(0)"); lstamp(a, 6)
    stamp(a, 4, True)

class P2:
    def __init__(s, par, ND=None):
        s.par = par; s.ND = ND or (opt("nd0", 4), 10 - opt("nd0", 4))[par]; s.tag = f"{par}{s.ND}"
        s.SLOT = 8192 + 2048 * s.ND; s.S = min(RING // s.SLOT, 8); s.AH = s.S - 2
        s.st = opt("stb%d" % par, 0); s.stm = opt("stm", 7)
        s.IN = opt("in%d" % par, 0)
        s.AA = min(opt("aha", 6), s.AH); s.GB = max(opt("gb%d" % par, (7, 5)[par]), 11 - s.AH, 10 - s.AA)
    def adv(s): return f"s_add_u32 s37, s37, {s.SLOT}\ns_cmp_ge_u32 s37, s38\ns_cselect_b32 s42, {s.SLOT*s.S}, 0\ns_sub_u32 s37, s37, s42\ns_add_u32 s34, s34, 1" + ("\ns_cmp_ge_u32 s34, 24\ns_cselect_b32 s34, 0, s34" if s.st else "")
    def phase_b(s): return f"s_and_b32 s34, s50, {s.stm}\ns_mul_i32 s34, s34, {s.st}" if s.st else "s_mov_b32 s34, 0"
    def first(s, a, n, issue, IN=None):
        m = max(s.IN if IN is None else IN, s.AA)
        issue_n(a, m, issue)
        return lambda: [a(f"s_waitcnt vmcnt({n*(m-1-j)})\ns_barrier") for j in range(m - s.AA)]
    def setup_s(s, a):
        a(f"""
        s_load_dwordx2 s[12:13], s[0:1], {KA['w2']}
        v_lshrrev_b32 v2, 3, v1
        v_and_b32 v3, 7, v1
        v_and_b32 v4, 6, v2
        v_xor_b32 v3, v3, v4
        v_lshlrev_b32 v3, 4, v3
        v_lshl_add_u32 v2, v2, 12, v3
        s_lshl_b32 s23, s3, 17
        s_lshl_b32 s26, s50, 7
        s_add_u32 s23, s23, s26
        v_add_u32 v8, s23, v2
        """)
        for i in range(1, 4): a(f"v_add_u32 v{8+i}, {8*4096*i}, v8")
        a(f"s_lshl_b32 s23, s50, 2\ns_mul_i32 s23, s23, 40\ns_lshl_b32 s26, s3, 1\ns_add_u32 s23, s23, s26\ns_lshl_b32 s23, s23, 9\nv_lshl_add_u32 v16, v1, 4, s23")
        for i in range(1, 4): a(f"v_add_u32 v{16+i}, {40*512*i}, v16")
        a(f"s_and_b32 s23, s50, -2\ns_add_u32 s23, s23, {s.par}\ns_lshl_b32 s23, s23, 10\ns_add_u32 s23, s23, {F2}\nv_lshl_add_u32 v12, v1, 7, s23")
        a(f"s_mov_b32 s34, 0\ns_lshl_b32 s37, s3, 12\ns_add_u32 s38, s37, {s.SLOT*s.S}\ns_mov_b32 s33, 0\ns_waitcnt lgkmcnt(0)")
        srd(a, 4, 20, OT_SZ, OT_OFF)
    def early(s, a, n, vflag, tag):
        a(f"""
        s_waitcnt vmcnt({3*n})
        s_barrier
        s_waitcnt vmcnt({2*n})
        s_barrier
        s_mov_b64 exec, 0xff
        buffer_load_dword v2, v{vflag}, s[44:47], 0 offen {SC}
        s_waitcnt vmcnt({n+1})
        s_barrier
        s_waitcnt vmcnt(1)
        s_barrier
        """)
        stamp(a, 2)
        a(f"s_waitcnt vmcnt(0)\nv_cmp_ne_u32 vcc, s48, v2\ns_mov_b64 exec, -1\ns_cmp_eq_u64 vcc, 0\ns_cbranch_scc0 Lp2_{tag}{s.tag}e\ns_barrier\ns_branch Lp2_{tag}{s.tag}k")
    def loader_s(s, a):
        AH, AA = s.AH, s.AA
        s.setup_s(a)
        a.label(f"Lp2_s{s.tag}e")
        a("s_barrier")
        if s.par: w2_slow(a)
        gate(a, 12, 0xff, sl=opt("slp2", 2))
        a.label(f"Lp2_s{s.tag}k")
        stamp(a, 3)
        def issue(sc):
            a(f"s_lshl_b32 s40, s34, {11 if sc else 18}" if not opt("w2wrap") else f"s_and_b32 s40, s34, 1\ns_lshl_b32 s40, s40, {11 if sc else 18}")
            for i in range(4): a(f"s_add_u32 m0, s37, {1024*i}\nbuffer_load_dwordx4 v{(16 if sc else 8)+i}, s[4:7], s40 offen {sc} lds")
            a(s.adv())
        s.first(a, 4, lambda: issue(SC), opt("ins", 0))()
        steady(a, 10, 4, AA, lambda: issue(SC))
        srd(a, 4, 12, F_ * 4096); a(s.phase_b())
        if AA < AH: a(f"s_waitcnt vmcnt({4*(AA-1)})\ns_barrier"); issue_n(a, AH - AA + 1, lambda: issue(""))
        steady(a, 34, 4, AH, lambda: issue(""))
        stamp(a, 5)
        drain(a, 4, AH)
        endp(a)
    def setup_d(s, a):
        ND = s.ND
        a(f"s_sub_u32 s22, s3, 2\ns_mul_i32 s23, s51, 68\ns_add_u32 s23, s23, s22\ns_lshl_b32 s23, s23, 10\nv_lshl_add_u32 v8, v1, 4, s23")
        for i in range(1, ND): a(f"v_add_u32 v{8+i}, {68*1024*i}, v8")
        a(f"""
        s_mul_i32 s37, s22, {1024*ND}
        s_add_u32 s37, s37, 8192
        s_add_u32 s38, s37, {s.SLOT*s.S}
        s_lshl_b32 s23, s52, 10
        s_add_u32 s23, s23, {F3}
        v_lshl_add_u32 v16, v1, 7, s23
        s_lshr_b32 s23, s51, 2
        s_lshl_b32 s23, s23, 11
        s_lshr_b32 s26, s52, 1
        s_mul_i32 s26, s26, {160*128}
        s_add_u32 s23, s23, s26
        s_add_u32 s23, s23, {F4}
        v_lshl_add_u32 v17, v1, 7, s23
        s_mov_b32 s34, 0
        s_mov_b32 s36, 48
        s_mov_b32 s33, 0
        """)
        srd(a, 8, 20, UW_SZ, UW_OFF)
    def loader_d(s, a):
        AH, AA, GB, ND = s.AH, s.AA, s.GB, s.ND
        s.setup_d(a)
        a.label(f"Lp2_d{s.tag}e")
        if s.par: gate(a, 16, 0xff); a("" if opt("wearly") else "s_barrier")
        else: a("s_barrier"); gate(a, 16, 0xff)
        a.label(f"Lp2_d{s.tag}k")
        stamp(a, 3)
        def issue():
            a(("s_and_b32 s41, s34, 1\ns_lshl_b32 s41, s41, 1" if opt("uwrap") else "s_lshl_b32 s41, s34, 1") + "\ns_add_u32 s41, s41, s36\ns_lshl_b32 s41, s41, 10")
            for i in range(ND): a(f"s_add_u32 m0, s37, {1024*i}\nbuffer_load_dwordx4 v{8+i}, s[8:11], s41 offen {'' if opt('uplain') else SC} lds")
            a(s.adv())
        f = s.first(a, ND, issue)
        if s.par and opt("wearly"): a("s_barrier")
        f()
        steady(a, 10, ND, AA, issue)
        for j in range(10 - AA, GB): a(f"s_waitcnt vmcnt({ND*(9-j)})\ns_barrier")
        a("s_mov_b32 s36, 0\n" + s.phase_b())
        gate(a, 17, 0x0fff if ND == 4 else 0x0fff0fff, sl=opt("slp4", 2))
        stamp(a, 4)
        issue_n(a, GB + AH - 10, issue)
        steady(a, 34, ND, AH, issue)
        stamp(a, 5)
        drain(a, ND, AH)
        endp(a)
    def consumer1(s, a):
        ND = s.ND; L = f"Lp2{s.tag}"
        ACB = 16; ACA = ACB + 4 * ND; KS = 4 + 4 * ND; SETS = (ACA + 4 * ND, ACA + 4 * ND + 2 * KS)
        a(f"""
        s_load_dwordx2 s[24:25], s[0:1], {KA['b2']}
        s_load_dwordx2 s[28:29], s[0:1], {KA['out']}
        s_lshl_b32 s23, s50, 6
        s_lshl_b32 s26, s3, 4
        s_add_u32 s23, s23, s26
        v_and_b32 v2, 15, v1
        v_add_u32 v2, s23, v2
        v_lshlrev_b32 v3, 1, v2
        v_lshlrev_b32 v4, 3, v2
        s_waitcnt lgkmcnt(0)
        """)
        srd(a, 24, 24, 4096); srd(a, 8, 20, G_SZ, G_OFF); srd(a, 28, 28, S_ * 1280)
        a(f"""
        buffer_load_ushort v10, v3, s[24:27], 0 offen
        s_setprio 0
        v_lshrrev_b32 v5, 2, v1
        v_lshrrev_b32 v6, 1, v5
        v_and_b32 v6, 3, v6
        v_xor_b32 v6, s3, v6
        v_lshlrev_b32 v6, 5, v6
        v_lshl_add_u32 v5, v5, 7, v6
        v_and_b32 v6, 3, v1
        v_lshl_add_u32 v8, v6, 3, v5
        v_lshlrev_b32 v9, 4, v1
        v_add_u32 v9, 8192, v9
        v_mul_u32_u24 v12, 1280, v2
        v_lshrrev_b32 v6, 4, v1
        v_lshl_add_u32 v12, v6, 3, v12
        s_lshl_b32 s26, s51, 5
        v_add_u32 v12, s26, v12
        s_lshl_b32 s26, s3, 10
        v_lshl_add_u32 v13, v1, 3, s26
        v_and_b32 v14, 1, v6
        v_mul_u32_u24 v14, 24, v14
        v_add_u32 v14, v14, v12
        """)
        for i in range(4 * ND): a(f"v_mov_b32 v{ACA+i}, 0")
        def reads(st, ph="b"):
            r = []
            for kk in range(2):
                b = SETS[st] + KS * kk
                if ph == "a": r += [(f"ds_read_b64 {v(b,2)}, v13 offset:{kk*4096}", (kk, "b0")), (f"ds_read_b64 {v(b+2,2)}, v13 offset:{kk*4096+512}", (kk, "b1"))]
                else: r += [(f"ds_read_b64_tr_b16 {v(b,2)}, v8 offset:{kk*4096}", (kk, "b0")), (f"ds_read_b64_tr_b16 {v(b+2,2)}, v8 offset:{kk*4096+2048}", (kk, "b1"))]
                r += [(f"ds_read_b128 {v(b+4+4*dt,4)}, v9 offset:{(kk*ND+dt)*1024}", (kk, dt)) for dt in range(ND)]
            return r
        def mf(acc, st):
            return [(f"v_mfma_f32_16x16x32_bf16 {v(acc+4*dt,4)}, {v(SETS[st]+KS*kk+4+4*dt,4)}, {v(SETS[st]+KS*kk,4)}, {v(acc+4*dt,4)}", {(kk, "b1"), (kk, dt)}) for kk in range(2) for dt in range(ND)]
        ids = [x[1] for x in reads(0)]
        adv = slot_adv(s.SLOT, s.S) + ["v_add_u32 v8, s40, v8", "v_add_u32 v9, s40, v9"]
        a("s_mov_b32 s33, 0\ns_mov_b32 s37, 0\ns_barrier"); stamp(a, 5, True)
        adva = adv + ["v_add_u32 v13, s40, v13"]
        emit_step(a, [], [], reads(0, "a"), adva)
        a.label(f"{L}_ca", 3)
        a("s_barrier")
        emit_step(a, mf(ACA, 0), ids, reads(1, "a"), adva + ["s_add_u32 s33, s33, 2", "s_cmp_ge_u32 s33, 10"])
        a(f"s_barrier\ns_cbranch_scc1 {L}_cax")
        emit_step(a, mf(ACA, 1), ids, reads(0, "a"), adva)
        a(f"s_branch {L}_ca")
        a.label(f"{L}_cax")
        emit_step(a, mf(ACA, 1), ids, reads(0, "b"), adv)
        a(f"s_waitcnt vmcnt(0)\nbuffer_load_dwordx2 v[6:7], v4, s[8:11], 0 offen {SC}\nv_lshlrev_b32 v10, 16, v10")
        for i in range(4 * ND): a(f"v_mov_b32 v{ACB+i}, v10")
        a.label(f"{L}_cb", 3)
        a("s_barrier")
        emit_step(a, mf(ACB, 0), ids, reads(1), adv + ["s_add_u32 s33, s33, 2", "s_cmp_ge_u32 s33, 34"])
        a(f"s_cbranch_scc1 {L}_clast\ns_barrier")
        emit_step(a, mf(ACB, 1), ids, reads(0), adv)
        a(f"s_branch {L}_cb")
        a.label(f"{L}_clast")
        emit_step(a, mf(ACB, 1), ids, [], [])
        stamp(a, 6)
        a(f"""
        s_mov_b32 s49, 0
        {L}_g:
        s_waitcnt vmcnt(0)
        v_cmp_ne_u32 vcc, s48, v7
        s_add_u32 s49, s49, 1
        s_cmp_eq_u64 vcc, 0
        s_cbranch_scc1 {L}_gk
        buffer_load_dwordx2 v[6:7], v4, s[8:11], 0 offen {SC}
        s_cmp_lt_u32 s49, 20000
        s_cbranch_scc1 {L}_g
        s_waitcnt vmcnt(0)
        {L}_gk:
        """)
        aux = 'sc1' if opt('osc1') else ''; O = SETS[0]
        for dt in range(ND):
            for r in range(0, 4, 2): a(f"v_pk_add_f32 {v(ACA+4*dt+r,2)}, {v(ACA+4*dt+r,2)}, {v(ACB+4*dt+r,2)} neg_lo:[0,1] neg_hi:[0,1]")
            for r in range(0, 4, 2): a(f"v_pk_fma_f32 {v(ACB+4*dt+r,2)}, {v(ACA+4*dt+r,2)}, v[6:7], {v(ACB+4*dt+r,2)} op_sel_hi:[1,0,1]")
            a(f"v_cvt_pk_bf16_f32 v{O+2*dt}, v{ACB+4*dt}, v{ACB+4*dt+1}\nv_cvt_pk_bf16_f32 v{O+1+2*dt}, v{ACB+4*dt+2}, v{ACB+4*dt+3}")
            if dt & 1:
                b = O + 2 * (dt - 1)
                a(f"v_permlane16_swap_b32 v{b}, v{b+2}\nv_permlane16_swap_b32 v{b+1}, v{b+3}\nbuffer_store_dwordx4 {v(b,4)}, v14, s[28:31], 0 offen offset:{32*(dt-1)} {aux}")
            elif dt == ND - 1: a(f"buffer_store_dwordx2 {v(O+2*dt,2)}, v12, s[28:31], 0 offen offset:{32*dt} {aux}")
        endp(a)
    def consumer(s, a):
        if s.ND % 2: return s.consumer1(a)
        ND = s.ND; NH = ND // 2; L = f"Lp2{s.tag}"
        ACB = 20; ACA = ACB + 8 * NH; KS = 8 + 4 * NH; SETS = (ACA + 8 * NH, ACA + 8 * NH + 2 * KS)
        a(f"""
        s_load_dwordx2 s[24:25], s[0:1], {KA['b2']}
        s_load_dwordx2 s[28:29], s[0:1], {KA['out']}
        s_and_b32 s27, s3, 2
        s_lshl_b32 s23, s50, 6
        s_lshl_b32 s26, s27, 4
        s_add_u32 s23, s23, s26
        v_and_b32 v2, 15, v1
        v_add_u32 v2, s23, v2
        v_lshlrev_b32 v3, 1, v2
        v_lshlrev_b32 v4, 3, v2
        s_and_b32 s22, s3, 1
        s_mul_i32 s22, s22, {NH}
        v_lshrrev_b32 v5, 2, v1
        v_lshrrev_b32 v6, 1, v5
        v_and_b32 v6, 3, v6
        v_xor_b32 v6, s27, v6
        v_lshlrev_b32 v6, 5, v6
        v_lshl_add_u32 v5, v5, 7, v6
        v_and_b32 v6, 3, v1
        v_lshl_add_u32 v8, v6, 3, v5
        v_xor_b32 v15, 32, v8
        s_lshl_b32 s23, s22, 10
        s_add_u32 s23, s23, 8192
        v_lshl_add_u32 v9, v1, 4, s23
        s_lshl_b32 s23, s27, 10
        v_lshl_add_u32 v13, v1, 3, s23
        v_mul_u32_u24 v12, 1280, v2
        v_lshrrev_b32 v6, 4, v1
        v_lshl_add_u32 v12, v6, 3, v12
        s_add_u32 s23, s22, s51
        s_lshl_b32 s23, s23, 5
        v_add_u32 v12, s23, v12
        v_and_b32 v14, 1, v6
        v_mul_u32_u24 v14, 24, v14
        v_add_u32 v14, v14, v12
        s_waitcnt lgkmcnt(0)
        """)
        srd(a, 24, 24, 4096); srd(a, 8, 20, G_SZ, G_OFF); srd(a, 28, 28, S_ * 1280)
        a("buffer_load_ushort v10, v3, s[24:27], 0 offen\nbuffer_load_ushort v11, v3, s[24:27], 0 offen offset:32\ns_setprio 0")
        for i in range(8 * NH): a(f"v_mov_b32 v{ACA+i}, 0")
        def reads(st, ph="b"):
            r = []
            for kk in range(2):
                b = SETS[st] + KS * kk
                def bread(t):
                    if ph == "a": return [(f"ds_read_b64 {v(b+4*t+2*h,2)}, v13 offset:{kk*4096+1024*t+512*h}", (kk, "b", t, h)) for h in range(2)]
                    return [(f"ds_read_b64_tr_b16 {v(b+4*t+2*h,2)}, v{(8, 15)[t]} offset:{kk*4096+2048*h}", (kk, "b", t, h)) for h in range(2)]
                r += bread(0) + [(f"ds_read_b128 {v(b+8+4*dt,4)}, v9 offset:{(kk*ND+dt)*1024}", (kk, dt)) for dt in range(NH)] + bread(1)
            return r
        def mf(acc, st):
            return [(f"v_mfma_f32_16x16x32_bf16 {v(acc+4*(NH*t+dt),4)}, {v(SETS[st]+KS*kk+8+4*dt,4)}, {v(SETS[st]+KS*kk+4*t,4)}, {v(acc+4*(NH*t+dt),4)}", {(kk, "b", t, 1), (kk, dt)})
                    for kk in range(2) for t in range(2) for dt in range(NH)]
        ids = [x[1] for x in reads(0)]
        adv = slot_adv(s.SLOT, s.S) + ["v_add_u32 v8, s40, v8", "v_add_u32 v15, s40, v15", "v_add_u32 v9, s40, v9"]
        a("s_mov_b32 s33, 0\ns_mov_b32 s37, 0\ns_barrier"); stamp(a, 5, True)
        adva = adv + ["v_add_u32 v13, s40, v13"]
        emit_step(a, [], [], reads(0, "a"), adva)
        a.label(f"{L}_ca", 3)
        a("s_barrier")
        emit_step(a, mf(ACA, 0), ids, reads(1, "a"), adva + ["s_add_u32 s33, s33, 2", "s_cmp_ge_u32 s33, 10"])
        a(f"s_barrier\ns_cbranch_scc1 {L}_cax")
        emit_step(a, mf(ACA, 1), ids, reads(0, "a"), adva)
        a(f"s_branch {L}_ca")
        a.label(f"{L}_cax")
        emit_step(a, mf(ACA, 1), ids, reads(0, "b"), adv)
        gl = f"buffer_load_dwordx2 v[16:17], v4, s[8:11], 0 offen {SC}\nbuffer_load_dwordx2 v[18:19], v4, s[8:11], 0 offen offset:128 {SC}"
        a(f"s_waitcnt vmcnt(0)\n{gl}\nv_lshlrev_b32 v10, 16, v10\nv_lshlrev_b32 v11, 16, v11")
        for i in range(8 * NH): a(f"v_mov_b32 v{ACB+i}, v{10 + i // (4 * NH)}")
        a.label(f"{L}_cb", 3)
        a("s_barrier")
        emit_step(a, mf(ACB, 0), ids, reads(1), adv + ["s_add_u32 s33, s33, 2", "s_cmp_ge_u32 s33, 34"])
        a(f"s_cbranch_scc1 {L}_clast\ns_barrier")
        emit_step(a, mf(ACB, 1), ids, reads(0), adv)
        a(f"s_branch {L}_cb")
        a.label(f"{L}_clast")
        emit_step(a, mf(ACB, 1), ids, [], [])
        stamp(a, 6)
        a(f"""
        s_mov_b32 s49, 0
        s_mov_b32 s22, {16*1280}
        {L}_g:
        s_waitcnt vmcnt(0)
        v_cmp_ne_u32 vcc, s48, v17
        v_cmp_ne_u32 s[26:27], s48, v19
        s_add_u32 s49, s49, 1
        s_or_b64 vcc, vcc, s[26:27]
        s_cbranch_scc0 {L}_gk
        {gl}
        s_cmp_lt_u32 s49, 20000
        s_cbranch_scc1 {L}_g
        s_waitcnt vmcnt(0)
        {L}_gk:
        """)
        O = SETS[0]
        for t in range(2):
            so = "s22" if t else "0"
            for dt in range(NH):
                x = 4 * (NH * t + dt); o = O + 8 * t + 2 * dt
                for r in (0, 2): a(f"v_pk_add_f32 {v(ACA+x+r,2)}, {v(ACA+x+r,2)}, {v(ACB+x+r,2)} neg_lo:[0,1] neg_hi:[0,1]")
                for r in (0, 2): a(f"v_pk_fma_f32 {v(ACB+x+r,2)}, {v(ACA+x+r,2)}, {v(16+2*t,2)}, {v(ACB+x+r,2)} op_sel_hi:[1,0,1]")
                a(f"v_cvt_pk_bf16_f32 v{o}, v{ACB+x}, v{ACB+x+1}\nv_cvt_pk_bf16_f32 v{o+1}, v{ACB+x+2}, v{ACB+x+3}")
                if dt == 1:
                    b = o - 2
                    a(f"v_permlane16_swap_b32 v{b}, v{b+2}\nv_permlane16_swap_b32 v{b+1}, v{b+3}\nbuffer_store_dwordx4 {v(b,4)}, v14, s[28:31], {so} offen")
                elif dt == 2: a(f"buffer_store_dwordx2 {v(o,2)}, v12, s[28:31], {so} offen offset:64")
        endp(a)

def gen_main(a, name):
    kernel_head(a, name)
    if PROF:
        for i in range(1, 8): a(f"s_mov_b64 s[{70+2*i}:{71+2*i}], 0")
        stamp(a, 0); a("s_memtime s[66:67]")
    a(f"""
    s_cmp_ge_u32 s2, 256
    s_cbranch_scc1 Lend
    {"s_and_b32 s22, s2, 7" + chr(10) + "s_lshl_b32 s22, s22, 5" + chr(10) + "s_lshr_b32 s2, s2, 3" + chr(10) + "s_or_b32 s2, s2, s22" if opt("perm") else ""}
    s_load_dwordx2 s[20:21], s[0:1], {KA['ws']}
    v_lshrrev_b32 v1, 6, v0
    v_readfirstlane_b32 s3, v1
    v_and_b32 v1, 63, v0
    {"s_and_b32 s52, s2, 3" + chr(10) + "s_lshl_b32 s52, s52, 1" + chr(10) + "s_bfe_u32 s53, s2, 0x10002" + chr(10) + "s_or_b32 s52, s52, s53" if opt("lo") else "s_and_b32 s52, s2, 7"}
    s_lshr_b32 s53, s2, 3
    s_lshr_b32 s22, s52, 1
    s_lshl_b32 s50, s22, 3
    s_and_b32 s23, s53, 7
    s_add_u32 s50, s50, s23
    s_lshr_b32 s26, s53, 3
    """)
    if PROF: a("s_mov_b32 s69, s3")
    NG = 15 if opt("mixed") else 30
    a("s_cmp_ge_u32 s53, 16\ns_cbranch_scc1 Lrole_qa" if opt("mixed") else "s_bitcmp1_b32 s52, 0\ns_cbranch_scc1 Lrole_qa")
    PE, PO = P2(0), P2(1)
    MX = opt("mix", 0)
    a(f"s_and_b32 s54, s23, {MX}\ns_cselect_b32 s51, 5, {PE.ND}\ns_mul_i32 s51, s51, s26")
    a(f"""
    {"s_lshl_b32 s19, s52, 4" if opt("mixed") else "s_lshl_b32 s19, s22, 5"}
    s_add_u32 s19, s19, s53
    s_mul_i32 s17, s53, 86
    s_lshr_b32 s17, s17, 8
    s_mul_i32 s23, s17, 3
    s_sub_u32 s23, s53, s23
    s_mul_i32 s16, s22, 3
    s_add_u32 s16, s16, s23
    """)
    if opt("mixed"): a("s_and_b32 s26, s52, 1\ns_mul_i32 s26, s26, 5\ns_add_u32 s17, s17, s26")
    if opt("sweep"): a("s_mov_b32 s18, 0")
    else: a("s_mul_i32 s18, s17, 205\ns_lshr_b32 s18, s18, 6")
    a("s_cmp_ge_u32 s3, 4\ns_cbranch_scc1 Lg_cons\ns_setprio 1\ns_cmp_ge_u32 s3, 2\ns_cbranch_scc1 Lg_h")
    def flags():
        a(f"s_waitcnt lgkmcnt(0)"); srd(a, 44, 20, FL_SZ, FL_OFF); a(f"s_load_dword s48, s[44:45], {FZ}")
    a(f"s_load_dwordx2 s[4:5], s[0:1], {KA['w1']}"); flags()
    a(f"s_cmp_ge_u32 s53, {NG}\ns_cbranch_scc1 Lsp_w")
    a("; ---- even slots, waves 0-1: w1 tiles"); g1_loader_w(a)
    a.label("Lsp_w"); a("; ---- spare workgroups, waves 0-3: wo -> fragments")
    if opt("sweep"): w1_sweep(a)
    else: a("s_barrier"); tag_ready(a); a("s_barrier")
    a.label("Lsp_l"); a("s_mov_b32 s16, s52" if opt("mixed") else "s_lshr_b32 s16, s52, 1\ns_lshl_b32 s16, s16, 1\ns_add_u32 s16, s16, s53\ns_sub_u32 s16, s16, 30"); spare_loader(a)
    a("s_cmp_ge_u32 s3, 2\ns_cbranch_scc1 Lp2_d0\ns_branch Lp2_s0")
    a.label("Lg_h"); code_prefetch(a)
    if opt("mixed"):
        a(f"s_load_dwordx2 s[4:5], s[0:1], {KA['w1']}"); flags(); w1_sweep(a)
        a("s_cmp_ge_u32 s53, 15\ns_cbranch_scc1 Lsp_l")
    else:
        if opt("wsw"):
            a(f"s_load_dwordx2 s[8:9], s[0:1], {KA['wqkv']}")
        flags()
        if opt("wsw"):
            a("s_lshl_b32 s22, s19, 1\ns_add_u32 s22, s22, s3\ns_sub_u32 s22, s22, 2\ns_mul_i32 s23, s22, 11\ns_add_u32 s23, s23, 16384\ns_lshl_b32 s23, s23, 7\ns_lshl_b32 s22, s22, 13\nv_lshlrev_b32 v2, 7, v1")
            srd(a, 8, 8, 640 * 3840)
        if opt("wsw") == 2: a("s_barrier")
        if opt("wsw"): a("buffer_load_dword v40, v2, s[8:11], s22 offen\ns_mov_b64 exec, 0x7ff\nbuffer_load_dword v41, v2, s[8:11], s23 offen\ns_mov_b64 exec, -1")
        if opt("wsw") != 2: a("s_barrier")
        a("s_cmp_lt_u32 s53, 30\ns_cbranch_scc1 Lg_h2"); tag_ready(a); a("s_barrier\ns_branch Lsp_l")
    a.label("Lg_h2"); a("; ---- even slots, waves 2-3: h tiles"); g1_loader_h(a)
    a.label("Lg_cons"); a("; ---- even slots, waves 4-7: layernorm, then the first MLP GEMM")
    a(f"s_setprio 2\ns_load_dwordx2 s[4:5], s[0:1], {KA['x']}\ns_load_dwordx2 s[8:9], s[0:1], {KA['gw']}\ns_sub_u32 s3, s3, 4")
    ln_issue(a)
    srd(a, 44, 20, FL_SZ, FL_OFF)
    a(f"v_mov_b32 v2, {CTR}\nv_mov_b32 v6, 0\nv_mov_b32 v7, 0\nv_mov_b32 v8, 0\nv_mov_b32 v9, 0\nds_write_b128 v2, v[6:9]\ns_waitcnt lgkmcnt(0)\ns_barrier\ns_load_dword s48, s[44:45], {FZ}")
    ln_finish(a); stamp(a, 1, True)
    a(f"s_cmp_ge_u32 s53, {NG}\ns_cbranch_scc1 Lsp_cons")
    g1_consumer(a); a("s_branch Lp2_c0")
    a.label("Lsp_cons")
    if (opt("sweep") and not opt("noslowcol")):
        R0, SW = opt("sc0", 1024), opt("scw", 1)
        a(f"""
        s_load_dwordx2 s[4:5], s[0:1], {KA['w1']}
        s_lshr_b32 s22, s52, 1
        s_cmp_eq_u32 s22, 2
        s_cselect_b32 s23, 4, s3
        s_cmp_ge_u32 s23, {SW}
        s_cbranch_scc1 Lsc_done
        s_min_u32 s22, s22, 2
        s_lshl_b32 s22, s22, 10
        s_add_u32 s22, s22, {384 + R0 * 3072}
        s_and_b32 s23, s53, 1
        s_mul_i32 s23, s23, {SW}
        s_add_u32 s23, s23, s3
        s_lshl_b32 s23, s23, 6
        v_add_u32 v2, s23, v1
        v_mul_u32_u24 v2, 3072, v2
        s_mov_b32 s33, 0
        s_waitcnt lgkmcnt(0)
        """)
        srd(a, 4, 4, S_ * 3072)
        a(f"Lsc_l:\nbuffer_load_dword v3, v2, s[4:7], s22 offen\ns_add_u32 s22, s22, {128*SW*3072}\ns_add_u32 s33, s33, 1\ns_cmp_lt_u32 s33, {-(-(2048-R0)//(128*SW))}\ns_waitcnt vmcnt(0)\ns_cbranch_scc1 Lsc_l\nLsc_done:\ns_waitcnt lgkmcnt(0)")
    a("s_barrier")
    nw, r0, nr = opt("cw", 2), opt("cr0", 384), opt("cnr", 768)
    if nw:
        a(f"""
        s_cmp_ge_u32 s3, {nw}
        s_cbranch_scc1 Lc3_d
        s_load_dwordx2 s[12:13], s[0:1], {KA['w2']}
        s_lshr_b32 s22, s50, 1
        s_lshl_b32 s22, s22, 11
        s_add_u32 s22, s22, {F2}
        v_mov_b32 v12, s22
        """)
        gate(a, 12, 1)
        a(f"""
        s_and_b32 s22, s53, 1
        s_mul_i32 s22, s22, {nw}
        s_add_u32 s22, s22, s3
        s_lshl_b32 s22, s22, 6
        v_add_u32 v2, s22, v1
        v_lshlrev_b32 v2, 12, v2
        s_lshr_b32 s22, s52, 1
        s_lshl_b32 s22, s22, 10
        s_add_u32 s22, s22, {384 + r0 * 4096}
        s_mov_b32 s33, 0
        s_waitcnt lgkmcnt(0)
        """)
        srd(a, 12, 12, F_ * 4096)
        a(f"Lc3_l:\nbuffer_load_dword v30, v2, s[12:15], s22 offen\ns_add_u32 s22, s22, {128*nw*4096}\ns_add_u32 s33, s33, 1\ns_cmp_lt_u32 s33, {nr//(128*nw)}\ns_waitcnt vmcnt(0)\ns_cbranch_scc1 Lc3_l\nLc3_d:")
    a("s_lshl_b32 s22, s3, 8\ns_add_u32 s22, s22, s2\ns_cmp_lg_u32 s22, 240\ns_cbranch_scc1 Lp2_c0"); step_tag(a); a("s_branch Lp2_c0")
    a.label("Lrole_qa"); a("; ---- odd slots: qkv projection + attention")
    a(f"s_and_b32 s54, s23, {MX}\ns_cselect_b32 s51, 5, {PO.ND}\ns_cselect_b32 s27, 20, {4*PE.ND}\ns_mul_i32 s51, s51, s26\ns_add_u32 s51, s51, s27")
    if opt("mixed"): a("s_and_b32 s23, s53, 3\ns_lshl_b32 s16, s22, 2\ns_add_u32 s16, s16, s23\ns_lshr_b32 s26, s53, 2\ns_and_b32 s26, s26, 3\ns_and_b32 s17, s52, 1\ns_lshl_b32 s17, s17, 2\ns_add_u32 s17, s17, s26")
    else: a(f"""
    s_and_b32 s16, s22, 1
    s_lshl_b32 s16, s16, 3
    s_add_u32 s16, s16, s23
    s_lshr_b32 s17, s22, 1
    s_lshl_b32 s17, s17, 2
    s_add_u32 s17, s17, s26
    """)
    if opt("nsq"): a("s_mov_b32 s18, 0")
    elif not opt("q8") and not opt("q4"): a("s_xor_b32 s18, s26, s23\ns_and_b32 s18, s18, 1\ns_mul_i32 s18, s18, 5")
    elif opt("q4"): a("s_add_u32 s18, s26, s23\ns_and_b32 s18, s18, 3\ns_mul_i32 s18, s18, 5\ns_lshr_b32 s18, s18, 1")
    elif opt("mixed"): a("s_add_u32 s18, s26, s23\ns_and_b32 s18, s18, 3\ns_mul_i32 s18, s18, 10\ns_lshr_b32 s18, s18, 2")
    else: a("s_lshl_b32 s18, s26, 1\ns_add_u32 s18, s18, s23\ns_and_b32 s18, s18, 7\ns_mul_i32 s18, s18, 10\ns_lshr_b32 s18, s18, 3")
    a(f"s_cmp_ge_u32 s3, 4\ns_cbranch_scc1 Lq_cons\ns_setprio 1\ns_cmp_eq_u32 s3, 3\ns_cbranch_scc1 Lq_idle")
    a(f"s_load_dwordx2 s[4:5], s[0:1], {KA['x']}\ns_load_dwordx2 s[8:9], s[0:1], {KA['wqkv']}"); qa_w1_sweep(a); flags(); qa_loader(a)
    a("s_cmp_ge_u32 s3, 2\ns_cbranch_scc1 Lp2_d1\ns_branch Lp2_s1")
    a.label("Lq_idle"); a(f"s_load_dwordx2 s[4:5], s[0:1], {KA['x']}\ns_load_dwordx2 s[8:9], s[0:1], {KA['wqkv']}"); flags(); qa_idle(a); a("s_branch Lp2_d1")
    a.label("Lq_cons"); a("s_sub_u32 s3, s3, 4"); flags()
    qa_consumer(a)
    for p in (PO, PE):
        for k, f in (("c", P2.consumer), ("s", P2.loader_s), ("d", P2.loader_d)):
            a.label(f"Lp2_{k}{p.par}"); a(f"; ---- output tile 64 x {16*p.ND}: " + dict(c="MFMA waves", s="loader of o / w2", d="loader of wo / u")[k])
            if MX: a(f"s_cmp_lg_u32 s54, 0\ns_cbranch_scc1 Lp2_{k}{p.par}x")
            f(p, a)
            if MX: a.label(f"Lp2_{k}{p.par}x"); f(P2(p.par, 5), a)
    a.label("Lend"); a("s_endpgm")
    a.raw("Lcode_end:")
    return kernel_desc(name, 256, 102)

def gen_osc(a, name):
    kernel_head(a, name)
    o = next(o for o in OPTS if o.startswith("osc"))[3:].split("_")
    a(f"s_cmp_ge_u32 s2, 1\ns_cbranch_scc1 Losc_end\ns_load_dwordx2 s[4:5], s[0:1], {KA['ws']}\ns_waitcnt lgkmcnt(0)")
    srd(a, 4, 4, 0x100000, TL_OFF + (0x80000 if opt("pthr") else 0x40000))
    def red(dst, base, stride, count, wave, slot, op):
        n = -(-count // 64)
        for i in range(n):
            a(f"v_add_u32 v1, {64*i}, v0\nv_min_u32 v1, {count-1}, v1\nv_mul_u32_u24 v1, {stride}, v1\nv_add_u32 v1, {base}, v1\nv_lshlrev_b32 v1, 9, v1\ns_mov_b32 s8, {wave*64 + slot*4}")
            a(f"buffer_load_dword v{4+i}, v1, s[4:7], s8 offen")
        a("s_waitcnt vmcnt(0)")
        if op == "add":
            for i in range(n): a(f"v_subrev_u32 v{4+i}, s20, v{4+i}")
        for i in range(1, n): a(f"v_{op}_u32 v4, v4, v{4+i}")
        a(f"v_readlane_b32 s{dst}, v4, 0")
        for i in range(1, 64): a(f"v_readlane_b32 s9, v4, {i}\ns_nop 0\ns_{op}_u32 s{dst}, s{dst}, s9")
        if op == "add": a(f"s_lshr_b32 s{dst}, s{dst}, {(64*n).bit_length()-1}\ns_add_u32 s{dst}, s{dst}, s20")
    red(20, 0, 1, 256, 0, 0, "min")
    if len(o) > 1:
        red(21, int(o[0]), int(o[1]), int(o[2]), int(o[3]), int(o[4]), dict(n="min", x="max", a="add")[o[5]])
        a("s_sub_u32 s21, s21, s20\ns_min_u32 s21, s21, 20000\ns_lshl_b32 s21, s21, 2")
    else: a("s_mov_b32 s21, 0")
    a("s_add_u32 s21, s21, 10000\nLosc_spin:\ns_memrealtime s[10:11]\ns_waitcnt lgkmcnt(0)\ns_sub_u32 s10, s10, s20\ns_cmp_lt_u32 s10, s21\ns_cbranch_scc1 Losc_spin")
    a.label("Losc_end"); a("s_endpgm")
    return kernel_desc(name, 16, 32)

def gen_probe(a, name, vg):
    kernel_head(a, name)
    a(f"s_memrealtime s[70:71]\ns_cmp_ge_u32 s2, 256\ns_cbranch_scc1 Lpr_end\ns_load_dwordx2 s[4:5], s[0:1], {KA['ws']}\ns_waitcnt lgkmcnt(0)")
    srd(a, 4, 4, 0x100000, TL_OFF + 0x80000)
    a("s_lshl_b32 s8, s2, 9\nv_mov_b32 v1, s8\nv_mov_b32 v2, s70\nv_cmp_eq_u32 vcc, 0, v0\ns_and_saveexec_b64 s[10:11], vcc\ns_cbranch_execz Lpr_end\nbuffer_store_dword v2, v1, s[4:7], 0 offen")
    a.label("Lpr_end"); a("s_endpgm")
    return kernel_desc(name, vg, 102)

DOC = """;
; waves 4-7 read fragments and run v_mfma_f32_16x16x32_bf16; one s_barrier per K step).  id&7 picks the role; that
; Hand-offs through d_ws: write-through (sc1) stores, s_waitcnt vmcnt(0) in every storing wave, then one flag per
;"""

def build(spec=""):
    global PROF
    OPTS[:] = [o for o in spec.split("+") if o]; PROF = bool(opt("prof")); UID[0] = 0
    ref = open(f"cdna_kernels/{NAME}.s.ref").read().split("\n")
    head = ref[:ref.index(next(x for x in ref if x.startswith("; Override")))]
    a = Asm(); a.raw("\n".join(head))
    if opt("lo"): a.raw("; lo")
    osc = any(o.startswith("osc") and o != "osc1" for o in OPTS)
    if opt("pthr"): a.raw(f"; @launch kernel=probe_kernel grid=(256,1,1) block=({opt('pthr')},1,1) lds={opt('plds', 0)}")
    if osc: a.raw(f"; @launch kernel={NAME}_kernel grid=(256,1,1) block=(512,1,1) lds={LDS_SZ}\n; @launch kernel=osc_kernel grid=(1,1,1) block=(64,1,1) lds=0")
    else: a.raw(f"; @launch grid=(256,1,1) block=(512,1,1) lds={LDS_SZ}")
    a.raw(DOC)
    a.raw('.amdgcn_target "amdgcn-amd-amdhsa--gfx950"')
    d = gen_main(a, NAME + "_kernel")
    if osc: d += gen_osc(a, "osc_kernel")
    if opt("pthr"): d += gen_probe(a, "probe_kernel", opt("pvg"))
    if opt("nocomp"): a.lines = [(t, c) for t, c in a.lines if not (c is not None and (c.kind == "mfma" or c.op.startswith("ds_read")))]
    if opt("noload"): a.lines = [(t, c) for t, c in a.lines if not (c is not None and c.kind == "vmem" and c.lds)]
    if opt("nomfma"): a.lines = [(t, c) for t, c in a.lines if not (c is not None and c.kind == "mfma")]
    if opt("nods"): a.lines = [(t, c) for t, c in a.lines if not (c is not None and c.op.startswith("ds_read"))]
    if opt("nowait"): a.lines = [(t, c) for t, c in a.lines if not (c is not None and c.op == "s_waitcnt" and "lgkm" in t and "(0)" not in t)]
    if opt("al"): a.align_hot([("Lg1_c", "Lg1_clast"), ("Lp2_ca", "Lp2_cax"), ("Lp2_cb", "Lp2_clast")])
    if opt("lp") is not None: a.lines = [((t.replace("s_setprio 1", f"s_setprio {opt('lp')}"), c) if c is not None and c.op == "s_setprio" else (t, c)) for t, c in a.lines]
    bad = a.check_branches()
    for b in bad: print("HAZARD across branch:", b, file=sys.stderr)
    assert not bad
    a.raw(d)
    return a.text()

if __name__ == "__main__":
    open(sys.argv[2] if len(sys.argv) > 2 else f"cdna_kernels/{NAME}.s", "w").write(build(sys.argv[1] if len(sys.argv) > 1 else ""))
```

```python
import sys, struct
from dsl import *

NAME = "gated_mix__sliding_local_dilated__mixer_token_mlp__prompt"
S_, D_, F_ = 2048, 640, 1536
KA = dict(x=0, wqkv=8, wo=16, w1=32, b1=40, w2=48, b2=56, gw=64, out=72, dbg=80, ws=88)
H_OFF, OT_OFF, UW_OFF, G_OFF, FL_OFF = 0, 0x280000, 0x500000, 0x800000, 0x810000
H_SZ, OT_SZ, UW_SZ, G_SZ, FL_SZ = 2621440, 2621440, 40 * 68 * 1024, 16384, 0x70000
F1, F2, F4, FZ, F3 = 0, 0x20000, 0x28000, 0x40000, 0x50000
RING = 163840; CTR = RING - 64; LDS_SZ = RING
LOG2E = 1.4426950408889634
OPTS = []; PROF = False; TL_OFF = 0x1000000
SC = "sc1"
def f2u(x): return "0x%08x" % struct.unpack("<I", struct.pack("<f", x))[0]
def v(n, k=1): return f"v{n}" if k == 1 else f"v[{n}:{n+k-1}]"
def opt(name, default=None):
    for o in OPTS:
        if o == name: return True
        if o.startswith(name + "="): return int(o.split("=")[1])
    return default

def srd(a, d, base, size, off=0):
    if off: a(f"s_add_u32 s{d}, s{base}, {off}\ns_addc_u32 s{d+1}, s{base+1}, 0")
    elif d != base: a(f"s_mov_b32 s{d}, s{base}\ns_mov_b32 s{d+1}, s{base+1}")
    a(f"s_mov_b32 s{d+2}, {size}\ns_mov_b32 s{d+3}, 0x20000")

def estamp(a, i):
    if PROF and opt("early"): a(f"s_memrealtime s[{70+2*i}:{71+2*i}]\ns_waitcnt lgkmcnt(0)")
def lstamp(a, i):
    if PROF and opt("late"): a(f"s_memrealtime s[{70+2*i}:{71+2*i}]\ns_waitcnt lgkmcnt(0)")
def stamp(a, i, wait=False):
    if PROF and opt("clk"):
        k = {2: 1, 3: 3, 6: 5}.get(i)
        if i == 0: a("s_memrealtime s[70:71]")
        elif k and (wait or i == 6): a(f"s_memrealtime s[{70+2*k}:{71+2*k}]\ns_memtime s[{72+2*k}:{73+2*k}]\ns_waitcnt lgkmcnt(0)")
        return
    if PROF and (i == 0 or not (opt("early") or opt("late"))): a(f"s_memrealtime s[{70+2*i}:{71+2*i}]" + ("\ns_waitcnt lgkmcnt(0)" if wait else ""))
def endp(a):
    if PROF:
        a(f"""
        s_waitcnt vmcnt(0)
        s_memrealtime s[84:85]
        s_memtime s[86:87]
        s_waitcnt lgkmcnt(0)
        s_sub_u32 s86, s86, s66
        s_add_u32 s60, s20, {TL_OFF + 0x40000}
        s_addc_u32 s61, s21, 0
        s_mov_b32 s62, 0x40000
        s_mov_b32 s63, 0x20000
        s_mov_b64 exec, 1
        s_lshl_b32 s64, s2, 3
        s_add_u32 s64, s64, s69
        s_lshl_b32 s64, s64, 6
        v_mov_b32 v0, s64
        """)
        for i in range(8): a(f"v_mov_b32 v{4+i}, s{70+2*i}")
        a("v_mov_b32 v12, s86")
        a("buffer_store_dwordx4 v[4:7], v0, s[60:63], 0 offen\nbuffer_store_dwordx4 v[8:11], v0, s[60:63], 0 offen offset:16\nbuffer_store_dword v12, v0, s[60:63], 0 offen offset:32")
    a("s_endpgm")

def emit_step(a, M, prev_ids, R, extra, per_gap=2, head=2):
    q = list(prev_ids); fill = [("r", x) for x in R] + [("x", x) for x in extra]
    def put(n):
        for _ in range(n):
            if not fill: return
            k, x = fill.pop(0)
            if k == "r": a(x[0]); q.append(("n", x[1]))
            else: a(x)
    put(head)
    w1 = opt("w1", 1)
    if w1 and M and R and prev_ids:
        if w1 == 1: M = [(M[0][0], set(prev_ids))] + M[1:]
        else: h = len(M) // 2; M = [(M[0][0], set().union(*[m[1] for m in M[:h]]))] + M[1:h] + [(M[h][0], set(prev_ids))] + M[h+1:]
    for text, need_ in M:
        idx = [i for i, t in enumerate(q) if t in need_]
        if idx:
            n = min(len(q) - 1 - idx[-1], 15)
            a(f"s_waitcnt lgkmcnt({n})"); del q[:len(q) - n]
        a(text); put(per_gap)
    put(len(fill))

def slot_adv(SLOT, S):
    return [f"s_add_u32 s40, s37, {SLOT}", f"s_cmp_ge_u32 s40, {SLOT*S}", "s_cselect_b32 s41, 0, s40", "s_sub_u32 s40, s41, s37", "s_mov_b32 s37, s41"]

def thr(name, default):
    t = opt("t" + name, default if opt("thr") else 0)
    return f"s_waitcnt vmcnt({t-1})\n" if t else ""
UID = [0]
def uid(p): UID[0] += 1; return f"{p}{UID[0]}"

def issue_n(a, n, issue):
    L = uid("Li")
    a(f"s_add_u32 s32, s33, {n}")
    a.label(L); issue()
    a(f"s_add_u32 s33, s33, 1\ns_cmp_lt_u32 s33, s32\ns_cbranch_scc1 {L}")
def steady(a, upto, n, ahead, issue):
    L = uid("Ls")
    a.label(L)
    a(f"s_waitcnt vmcnt({n*(ahead-1)})\ns_barrier"); issue()
    a(f"s_add_u32 s33, s33, 1\ns_cmp_lt_u32 s33, {upto}\ns_cbranch_scc1 {L}")
def drain(a, n, ahead):
    for k in range(ahead - 1, -1, -1): a(f"s_waitcnt vmcnt({n*k})\ns_barrier")

def publish(a, ctr, nw, vaddr, lanes, keep=0):
    L = uid("Lpub")
    a(f"""
    s_waitcnt vmcnt({keep})
    s_mov_b64 exec, 1
    v_mov_b32 v2, {CTR + ctr}
    v_mov_b32 v3, 1
    ds_add_rtn_u32 v3, v2, v3
    s_waitcnt lgkmcnt(0)
    v_readfirstlane_b32 s22, v3
    s_mov_b64 exec, {(1 << lanes) - 1}
    s_cmp_lg_u32 s22, {nw - 1}
    s_cbranch_scc1 {L}
    v_mov_b32 v3, s48
    buffer_store_dword v3, v{vaddr}, s[44:47], 0 offen {SC}
    """)
    a.label(L); a("s_mov_b64 exec, -1")
def gate(a, vaddr, mask, two=False, sl=None):
    sl = opt("slp", 8) if sl is None else sl
    L = uid("Lg"); slp = "s_sleep %d" % sl if sl else ""
    a(f"s_mov_b32 s49, 0\ns_mov_b32 exec_lo, {mask & 0xffffffff}\ns_mov_b32 exec_hi, {mask >> 32}")
    a.label(L)
    if two: a(f"buffer_load_dword v2, v{vaddr}, s[44:47], 0 offen {SC}\ns_mov_b32 s22, {two}\nbuffer_load_dword v3, v{vaddr}, s[44:47], s22 offen {SC}\ns_waitcnt vmcnt(0)\nv_xor_b32 v2, s48, v2\nv_xor_b32 v3, s48, v3\nv_or_b32 v2, v2, v3")
    else: a(f"buffer_load_dword v2, v{vaddr}, s[44:47], 0 offen {SC}\ns_waitcnt vmcnt(0)\nv_xor_b32 v2, s48, v2")
    a(f"v_cmp_ne_u32 vcc, 0, v2\ns_add_u32 s49, s49, 1\ns_cmp_eq_u64 vcc, 0\ns_cbranch_scc1 {L}d\n{slp}\ns_cmp_lt_u32 s49, 20000\ns_cbranch_scc1 {L}")
    a.label(L + "d"); a("s_mov_b64 exec, -1")
def tag_ready(a):
    a("s_waitcnt lgkmcnt(0)\ns_mul_i32 s48, s48, 1664525\ns_add_u32 s48, s48, 1013904223")
def step_tag(a):
    a(f"v_lshlrev_b32 v12, 7, v1"); gate(a, 12, (1 << 64) - 1, two=8192)
    a(f"v_lshrrev_b32 v12, 3, v1\nv_lshlrev_b32 v12, 11, v12\nv_and_b32 v13, 7, v1\nv_lshl_add_u32 v12, v13, 7, v12\nv_add_u32 v12, {F2}, v12"); gate(a, 12, (1 << 64) - 1, two=16384)
    a(f"s_mov_b64 exec, 1\nv_mov_b32 v2, s48\nv_mov_b32 v3, {FZ}\nbuffer_store_dword v2, v3, s[44:47], 0 offen {SC}\ns_mov_b64 exec, -1")

def code_prefetch(a):
    if not opt("ncode"): return
    L = uid("Lpc")
    a(f"s_getpc_b64 s[30:31]\n{L}:\ns_sub_u32 s30, s30, {L}-{NAME}_kernel\ns_subb_u32 s31, s31, 0\nv_lshlrev_b32 v2, 7, v1")
    for i in range(opt("ncode", 0)):
        a(f"v_min_u32 v3, Lcode_end-{NAME}_kernel-4, v2\nglobal_load_dword v{40+i}, v3, s[30:31]\nv_add_u32 v2, 8192, v2")

def ln_issue(a):
    a(f"""
    s_lshl_b32 s22, s19, 4
    s_lshl_b32 s23, s3, 2
    s_add_u32 s22, s22, s23
    v_lshrrev_b32 v2, 4, v1
    v_add_u32 v10, s22, v2
    v_and_b32 v11, 15, v1
    v_lshlrev_b32 v4, 4, v11
    v_mul_u32_u24 v5, 1280, v10
    v_add_u32 v5, v5, v4
    s_waitcnt lgkmcnt(0)
    """)
    srd(a, 4, 4, H_SZ); srd(a, 8, 8, 1280)
    for i in range(5): a(f"buffer_load_dwordx4 {v(16+4*i,4)}, v5, s[4:7], 0 offen offset:{256*i}")
    for i in range(5): a(f"buffer_load_dwordx4 {v(36+4*i,4)}, v4, s[8:11], 0 offen offset:{256*i}")
def ln_finish(a):
    X, GW, U = 16, 36, 56
    srd(a, 4, 20, H_SZ, H_OFF); srd(a, 8, 20, G_SZ, G_OFF)
    a("s_mov_b32 s30, 0x3f803f80\ns_mov_b32 s31, 0xffff0000"); estamp(a, 1); a("s_waitcnt vmcnt(5)"); estamp(a, 2)
    a(f"v_dot2_f32_bf16 v6, v{X}, s30, 0\nv_dot2_f32_bf16 v8, v{X+1}, s30, 0")
    for i in range(2, 20): a(f"v_dot2_f32_bf16 v{6+2*(i&1)}, v{X+i}, s30, v{6+2*(i&1)}")
    for i in range(20): a(f"v_lshlrev_b32 v{U+2*i}, 16, v{X+i}\nv_and_b32 v{U+1+2*i}, s31, v{X+i}")
    def red(*rs):
        for sh in (8, 4, 2, 1):
            for r in rs: a(f"v_add_f32_dpp v{r}, v{r}, v{r} row_ror:{sh} row_mask:0xf bank_mask:0xf")
    a("v_add_f32 v6, v6, v8"); red(6)
    a(f"v_mul_f32 v6, {f2u(1/640)}, v6")
    for i in range(20): a(f"v_pk_add_f32 {v(U+2*i,2)}, {v(U+2*i,2)}, v[6:7] op_sel_hi:[1,0] neg_lo:[0,1] neg_hi:[0,1]")
    a(f"v_pk_mul_f32 v[12:13], {v(U,2)}, {v(U,2)}\nv_pk_mul_f32 v[14:15], {v(U+2,2)}, {v(U+2,2)}")
    for i in range(2, 20): a(f"v_pk_fma_f32 {v(12+2*(i&1),2)}, {v(U+2*i,2)}, {v(U+2*i,2)}, {v(12+2*(i&1),2)}")
    a("v_pk_add_f32 v[12:13], v[12:13], v[14:15]\nv_add_f32 v12, v12, v13")
    red(12)
    a(f"v_mov_b32 v8, {f2u(1e-5)}\nv_fmac_f32 v8, {f2u(1/640)}, v12\nv_rsq_f32 v12, v8")
    for j in range(5):
        for i in range(4*j, 4*j+4): a(f"v_pk_mul_f32 {v(U+2*i,2)}, {v(U+2*i,2)}, v[12:13] op_sel_hi:[1,0]")
        for i in range(4*j, 4*j+4): a(f"v_cvt_pk_bf16_f32 v{96+i}, v{U+2*i}, v{U+1+2*i}")
        a(f"buffer_store_dwordx4 {v(96+4*j,4)}, v5, s[4:7], 0 offen offset:{256*j} {SC}")
    estamp(a, 3)
    a("s_barrier")
    a(f"s_waitcnt vmcnt(5)\nv_dot2_f32_bf16 v9, v{X}, v{GW}, 0\nv_dot2_f32_bf16 v8, v{X+1}, v{GW+1}, 0")
    for i in range(2, 20): a(f"v_dot2_f32_bf16 v{9-(i&1)}, v{X+i}, v{GW+i}, v{9-(i&1)}")
    a("v_add_f32 v9, v9, v8"); red(9)
    a(f"""
    v_mul_f32 v9, {f2u(-LOG2E)}, v9
    v_exp_f32 v9, v9
    v_add_f32 v9, 1.0, v9
    v_rcp_f32 v8, v9
    v_lshlrev_b32 v10, 3, v10
    """)
    tag_ready(a)
    a(f"""
    v_mov_b32 v9, s48
    s_mov_b32 exec_lo, 0x00010001
    s_mov_b32 exec_hi, 0x00010001
    buffer_store_dwordx2 v[8:9], v10, s[8:11], 0 offen {SC}
    s_mov_b64 exec, -1
    s_lshl_b32 s22, s19, 7
    v_lshl_add_u32 v10, v1, {14 if opt("mixed") else 15}, s22
    """)
    if opt("early"): a("s_waitcnt vmcnt(1)"); estamp(a, 4)
    publish(a, 0, 4, 10, 4, keep=1)
    if opt("early"): estamp(a, 5); a("s_waitcnt vmcnt(0)"); estamp(a, 6)

G1_S, G1_SLOT = 6, 24576
def w1_sweep(a):
    a(f"s_lshl_b32 s23, s53, {2 if opt('mixed') else 1}\ns_add_u32 s23, s23, s3\ns_lshl_b32 s23, s23, 6\nv_add_u32 v2, s23, v1\ns_lshr_b32 s23, s52, 1\ns_mul_i32 s23, s23, 768\ns_mov_b32 s26, 43691")
    for n in range(3):
        a(f"v_add_u32 v3, {4096*n}, v2\nv_mul_u32_u24 v4, s26, v3\nv_lshrrev_b32 v4, 18, v4\nv_mul_u32_u24 v5, {3072-768}, v4\nv_lshl_add_u32 v5, v3, 7, v5\nv_add_u32 v{16+n}, s23, v5")
        if not opt("noslowcol"):
            a(f"v_and_b32 v5, 0x380, v{16+n}\nv_cmp_le_u32 vcc, {opt('sc0', 1024)}, v4\nv_cndmask_b32_e64 v5, 0, v5, vcc\nv_cmp_eq_u32 vcc, 0x180, v5\nv_cndmask_b32_e64 v{16+n}, v{16+n}, -16, vcc")
    srd(a, 4, 4, S_ * 3072)
    a("s_barrier"); estamp(a, 1)
    pre = opt("pre", 2)
    for n in range(3):
        if n == pre: tag_ready(a); a("s_barrier")
        if not opt("nopfw1"): a(f"buffer_load_dword v{20+n}, v{16+n}, s[4:7], 0 offen")
    if pre == 3: tag_ready(a); a("s_barrier")
    estamp(a, 2)
    if opt("pfwait"): a("s_waitcnt vmcnt(0)")
    estamp(a, 3)
def g1_loader_w(a):
    a(f"""
    v_lshrrev_b32 v2, 4, v1
    s_lshl_b32 s23, s3, 2
    v_add_u32 v2, s23, v2
    v_lshlrev_b32 v4, 1, v2
    v_and_b32 v3, 15, v1
    v_xor_b32 v3, v3, v4
    v_lshlrev_b32 v3, 4, v3
    v_mul_u32_u24 v2, 3072, v2
    s_lshl_b32 s26, s16, 8
    v_add3_u32 v8, v2, v3, s26
    """)
    for i in range(1, 8): a(f"v_add_u32 v{8+i}, {8*3072*i}, v8")
    a(f"""
    s_mov_b32 s34, s18
    s_lshl_b32 s37, s3, 10
    s_add_u32 s38, s37, {G1_SLOT*G1_S}
    s_mov_b32 s33, 0
    """)
    def issue():
        a(f"s_mul_i32 s40, s34, {64*3072}" if not opt("wwrap") else f"s_and_b32 s40, s34, 3\ns_mul_i32 s40, s40, {64*3072}")
        for i in range(8): a(f"s_add_u32 m0, s37, {2048*i}\n{thr('w', 11)}buffer_load_dwordx4 v{8+i}, s[4:7], s40 offen lds")
        a(f"s_add_u32 s37, s37, {G1_SLOT}\ns_cmp_ge_u32 s37, s38\ns_cselect_b32 s42, {G1_SLOT*G1_S}, 0\ns_sub_u32 s37, s37, s42\ns_add_u32 s34, s34, 1\ns_and_b32 s34, s34, 31")
    if opt("sweep"):
        w1_sweep(a); issue_n(a, G1_S - 2, issue)
    else:
        pp = opt("ppre", 1)
        srd(a, 4, 4, S_ * 3072); a("s_barrier")
        if pp: issue_n(a, pp, issue)
        tag_ready(a); a("s_barrier")
        if opt("s15"): a("s_barrier")
        m = opt("g1in", G1_S)
        if pp < m: issue_n(a, m - pp, issue)
        for j in range(m - (G1_S - 2)): a(f"s_waitcnt vmcnt({8*(m-1-j)})\ns_barrier")
        if m < G1_S - 2: a(f"s_waitcnt vmcnt({8*(m-1)})\ns_barrier"); issue_n(a, G1_S - 1 - m, issue)
    if opt("early"): estamp(a, 4); a("s_waitcnt vmcnt(0)"); estamp(a, 5)
    stamp(a, 1)
    steady(a, 32, 8, G1_S - 2, issue)
    if (not opt("earlyp")): drain(a, 8, G1_S - 2); stamp(a, 2); a("s_branch Lp2_s0")
    else: P2(0).setup_s(a); P2(0).early(a, 8, 12, "s")
def g1_loader_h(a):
    a(f"""
    v_lshrrev_b32 v2, 3, v1
    v_and_b32 v3, 7, v1
    v_and_b32 v4, 6, v2
    v_xor_b32 v3, v3, v4
    v_lshlrev_b32 v3, 4, v3
    s_sub_u32 s22, s3, 2
    s_lshl_b32 s23, s22, 3
    v_add_u32 v2, s23, v2
    v_mul_u32_u24 v2, 1280, v2
    s_lshl_b32 s26, s17, 7
    v_add3_u32 v8, v2, v3, s26
    """)
    for i in range(1, 4): a(f"v_add_u32 v{8+i}, {16*1280*i}, v8")
    a(f"""
    s_lshl_b32 s23, s52, 14
    v_lshl_add_u32 v12, v1, 7, s23
    s_mov_b32 s34, s18
    s_lshl_b32 s37, s22, 10
    s_add_u32 s37, s37, 16384
    s_add_u32 s38, s37, {G1_SLOT*G1_S}
    s_mov_b32 s33, 0
    """)
    srd(a, 4, 20, H_SZ, H_OFF)
    def issue():
        a(f"s_mul_i32 s40, s34, {64*1280}" if not opt("hwrap") else f"s_and_b32 s40, s34, 3\ns_mul_i32 s40, s40, {64*1280}")
        for i in range(4): a(f"s_add_u32 m0, s37, {2048*i}\n{thr('h', 5)}buffer_load_dwordx4 v{8+i}, s[4:7], s40 offen {'' if opt('hplain') else SC} lds")
        a(f"s_add_u32 s37, s37, {G1_SLOT}\ns_cmp_ge_u32 s37, s38\ns_cselect_b32 s42, {G1_SLOT*G1_S}, 0\ns_sub_u32 s37, s37, s42\ns_add_u32 s34, s34, 1\ns_and_b32 s34, s34, 31")
    tag_ready(a); a("s_barrier")
    if opt("s15"): a("s_barrier")
    estamp(a, 1)
    if opt("nosplit"): gate(a, 12, (1 << 64) - 1, two=8192)
    else:
        L = uid("Lm")
        a("s_sub_u32 s22, s3, 2\ns_lshl_b32 s22, s22, 13\nv_add_u32 v12, s22, v12"); gate(a, 12, (1 << 64) - 1)
        a(f"v_mov_b32 v2, {CTR + 12}\nv_mov_b32 v3, 1\ns_mov_b64 exec, 1\nds_add_u32 v2, v3\ns_mov_b32 s49, 0\n{L}:\nds_read_b32 v3, v2\ns_add_u32 s49, s49, 1\ns_waitcnt lgkmcnt(0)\nv_readfirstlane_b32 s22, v3")
        a(f"s_cmp_ge_u32 s22, 2\ns_cbranch_scc1 {L}d\ns_cmp_lt_u32 s49, 0x400000\ns_cbranch_scc1 {L}\n{L}d:\ns_mov_b64 exec, -1")
    stamp(a, 1); estamp(a, 3)
    if opt("early"): a("s_add_u32 s78, s70, s49\ns_mov_b32 s79, 0")
    if not (not opt("s2")): a("s_barrier")
    issue_n(a, G1_S - 2, issue)
    steady(a, 32, 4, G1_S - 2, issue)
    if (not opt("earlyp")): drain(a, 4, G1_S - 2); stamp(a, 2); a("s_branch Lp2_d0")
    else: P2(0).setup_d(a); P2(0).early(a, 4, 16, "d")
def g1_consumer(a):
    L = "Lg1"
    if opt("s15"): a("s_barrier")
    ACC, T = 16, 48
    a(f"""
    s_load_dwordx2 s[24:25], s[0:1], {KA['b1']}
    s_and_b32 s22, s3, 1
    s_lshr_b32 s23, s3, 1
    s_lshl_b32 s26, s16, 8
    s_lshl_b32 s27, s22, 7
    s_add_u32 s26, s26, s27
    v_lshrrev_b32 v2, 4, v1
    v_lshl_add_u32 v3, v2, 3, s26
    s_waitcnt lgkmcnt(0)
    """)
    srd(a, 24, 24, 3072); srd(a, 8, 20, UW_SZ, UW_OFF)
    for ft in range(4): a(f"buffer_load_dwordx2 {v(T+2*ft,2)}, v3, s[24:27], 0 offen offset:{32*ft}")
    a(f"""
    s_setprio 0
    v_lshrrev_b32 v5, 2, v1
    v_and_b32 v6, 3, v1
    v_lshlrev_b32 v6, 3, v6
    v_and_b32 v7, 7, v5
    v_lshl_add_u32 v4, v5, 8, v6
    s_lshl_b32 s27, s22, 2
    """)
    for ft in range(4): a(f"s_add_u32 s28, s27, {ft}\nv_xor_b32 v2, s28, v7\nv_lshl_add_u32 v{8+ft}, v2, 5, v4")
    a(f"v_lshrrev_b32 v7, 1, v5\nv_and_b32 v7, 3, v7\nv_lshl_add_u32 v4, v5, 7, v6\nv_add_u32 v4, 16384, v4\ns_lshl_b32 s27, s23, 1")
    for dt in range(2): a(f"s_add_u32 s28, s27, {dt}\nv_xor_b32 v2, s28, v7\nv_lshl_add_u32 v{12+dt}, v2, 5, v4")
    a(f"""
    s_lshl_b32 s28, s17, 2
    s_add_u32 s28, s28, s27
    s_mul_i32 s28, s28, 68
    s_lshl_b32 s29, s16, 2
    s_add_u32 s28, s28, s29
    s_lshl_b32 s29, s22, 1
    s_add_u32 s28, s28, s29
    s_lshl_b32 s28, s28, 10
    v_lshl_add_u32 v14, v1, 4, s28
    s_lshl_b32 s28, s17, 4
    s_add_u32 s28, s28, s16
    s_lshl_b32 s28, s28, 7
    s_add_u32 s28, s28, {F4}
    v_mul_u32_u24 v15, {160*128}, v1
    v_add_u32 v15, s28, v15
    s_mov_b32 s31, 0xffff0000
    s_waitcnt vmcnt(0)
    """)
    for ft in range(4):
        for dt in range(2):
            b = ACC + 8 * ft + 4 * dt
            a(f"v_lshlrev_b32 v{b}, 16, v{T+2*ft}\nv_and_b32 v{b+1}, s31, v{T+2*ft}\nv_lshlrev_b32 v{b+2}, 16, v{T+2*ft+1}\nv_and_b32 v{b+3}, s31, v{T+2*ft+1}")
    SETS = (48, 96)
    def reads(st):
        r = []
        for kk in range(2):
            b = SETS[st] + 24 * kk
            for dt in range(2): r += [(f"ds_read_b64_tr_b16 {v(b+4*dt+2*h,2)}, v{12+dt} offset:{kk*4096+2048*h}", (kk, "b", dt, h)) for h in range(2)]
            for ft in range(4): r += [(f"ds_read_b64_tr_b16 {v(b+8+4*ft+2*h,2)}, v{8+ft} offset:{kk*8192+4096*h}", (kk, "a", ft, h)) for h in range(2)]
        return r
    def mf(st):
        return [(f"v_mfma_f32_16x16x32_bf16 {v(ACC+8*ft+4*dt,4)}, {v(SETS[st]+24*kk+8+4*ft,4)}, {v(SETS[st]+24*kk+4*dt,4)}, {v(ACC+8*ft+4*dt,4)}", {(kk, "a", ft, 1)})
                for kk in range(2) for ft, dt in ([(f, d) for d in range(2) for f in range(4)] if opt("g1ord") else [(f, d) for f in range(4) for d in range(2)])]
    ids = [x[1] for x in reads(0)]
    adv = slot_adv(G1_SLOT, G1_S) + [f"v_add_u32 v{8+i}, s40, v{8+i}" for i in range(6)]
    if not (not opt("s2")): a("s_barrier")
    a("s_mov_b32 s33, 0\ns_mov_b32 s37, 0\ns_barrier"); stamp(a, 2, True)
    emit_step(a, [], [], reads(0), adv)

    a.label(f"{L}_c", 3)
    a("s_barrier")
    emit_step(a, mf(0), ids, reads(1), adv + ["s_add_u32 s33, s33, 2", "s_cmp_ge_u32 s33, 32"])
    a(f"s_cbranch_scc1 {L}_clast\ns_barrier")
    emit_step(a, mf(1), ids, reads(0), adv)
    a(f"s_branch {L}_c")
    a.label(f"{L}_clast")
    a("s_waitcnt lgkmcnt(0)" + ("\ns_barrier" if opt("noe2") else "")); stamp(a, 3, True); lstamp(a, 1)
    last = [t for t, _ in mf(1)]
    grp = lambda p, dt: [last[8 * kk + 2 * (2 * p + h) + dt] for kk in range(2) for h in range(2)]
    G = [(p, dt) for p in range(2) for dt in range(2)]
    for t in grp(*G[0]) + grp(*G[1]): a(t)
    rest = grp(*G[2]) + grp(*G[3])
    c0 = -2 * 0.7978845608028654 * LOG2E; c1 = c0 * 0.044715
    a(f"v_mov_b32 v2, {f2u(c0)}\nv_mov_b32 v4, {f2u(c1)}\nv_mov_b32 v6, 1.0\ns_setprio 2")
    lstamp(a, 2)
    T = 48
    for n, (p, dt) in enumerate(G):
        o = 72 + 4 * n
        prs = [ACC + 8 * (2 * p + h) + 4 * dt + 2 * q for h in range(2) for q in range(2)]
        def ops(l):
            for x in l:
                a(x)
                if rest and not x.startswith(("v_exp", "v_rcp")): a(rest.pop(0))
        ops([f"v_pk_mul_f32 {v(T+2*i,2)}, {v(b,2)}, {v(b,2)}" for i, b in enumerate(prs)])
        ops([f"v_pk_fma_f32 {v(T+2*i,2)}, {v(T+2*i,2)}, v[4:5], v[2:3] op_sel_hi:[1,0,0]" for i, b in enumerate(prs)])
        ops([f"v_pk_mul_f32 {v(T+2*i,2)}, {v(T+2*i,2)}, {v(b,2)}" for i, b in enumerate(prs)])
        ops([f"v_exp_f32 v{T+i}, v{T+i}" for i in range(8)])
        ops([f"v_pk_add_f32 {v(T+2*i,2)}, {v(T+2*i,2)}, v[6:7] op_sel_hi:[1,0]" for i, b in enumerate(prs)])
        ops([f"v_rcp_f32 v{T+i}, v{T+i}" for i in range(8)])
        ops([f"v_pk_mul_f32 {v(T+2*i,2)}, {v(T+2*i,2)}, {v(b,2)}" for i, b in enumerate(prs)])
        ops([f"v_cvt_pk_bf16_f32 v{o+i}, v{T+2*i}, v{T+2*i+1}" for i in range(4)])
        a(f"s_mov_b32 s29, {dt*68*1024}\nbuffer_store_dwordx4 {v(o,4)}, v14, s[8:11], s29 offen offset:{1024*p} {SC}")
    lstamp(a, 3)
    if not opt("noe2"): a("s_barrier")
    if opt("late"): a("s_waitcnt vmcnt(0)"); lstamp(a, 4)
    publish(a, 4, 4, 15, 4)
    if opt("late"): lstamp(a, 5); a("s_waitcnt vmcnt(0)"); lstamp(a, 6)
    stamp(a, 4, True)

def spare_loader(a):
    if opt("wol", 2):
        a(f"s_lshl_b32 s23, s52, 14\nv_lshl_add_u32 v12, v1, 7, s23"); gate(a, 12, (1 << 64) - 1 if opt("wol", 2) == 1 else 1, sl=16)
    a(f"""
    s_load_dwordx2 s[4:5], s[0:1], {KA['wo']}
    s_load_dwordx2 s[12:13], s[0:1], {KA['w2']}
    v_lshrrev_b32 v2, 3, v1
    v_and_b32 v3, 7, v1
    v_and_b32 v4, 6, v2
    v_xor_b32 v3, v3, v4
    v_lshlrev_b32 v14, 4, v3
    v_mul_u32_u24 v15, 1280, v2
    v_add_u32 v15, v15, v14
    v_lshrrev_b32 v3, 2, v2
    v_lshl_add_u32 v3, v3, 4, v2
    v_add_u32 v3, 16, v3
    v_mul_u32_u24 v3, 1280, v3
    v_add_u32 v14, v14, v3
    s_mul_i32 s23, s3, {7*4096}
    v_lshrrev_b32 v5, 2, v1
    v_lshrrev_b32 v6, 1, v5
    v_and_b32 v6, 3, v6
    v_lshlrev_b32 v5, 7, v5
    v_and_b32 v7, 3, v1
    v_lshlrev_b32 v7, 3, v7
    v_add3_u32 v5, v5, v7, s23
    """)
    for t in range(4): a(f"v_xor_b32 v7, {t}, v6\nv_lshl_add_u32 v{8+t}, v7, 5, v5")
    a(f"v_lshlrev_b32 v12, 4, v1\ns_lshl_b32 s26, s16, 7\ns_add_u32 s26, s26, {F3}\nv_lshl_add_u32 v13, v1, 10, s26\ns_waitcnt lgkmcnt(0)")
    srd(a, 4, 4, 640 * 1280); srd(a, 8, 20, UW_SZ, UW_OFF); srd(a, 12, 12, F_ * 4096)
    def task():
        a("s_lshl_b32 s26, s33, 2\ns_add_u32 s26, s26, s3\ns_min_u32 s26, s26, 24\ns_mul_i32 s27, s16, 25\ns_add_u32 s27, s27, s26\ns_mul_i32 s26, s27, 6554\ns_lshr_b32 s26, s26, 16\ns_mul_i32 s28, s26, 10\ns_sub_u32 s27, s27, s28")
    L = uid("Lwo")
    a("s_mov_b32 s33, 0"); a.label(L); task()
    for half in range(2):
        a(f"""
        s_lshl_b32 s28, s26, 1
        s_add_u32 s28, s28, {half}
        s_mul_i32 s29, s28, 52
        s_lshr_b32 s29, s29, 8
        s_mul_i32 s30, s29, 5
        s_sub_u32 s28, s28, s30
        s_mul_i32 s29, s29, 80
        s_mul_i32 s30, s28, 20
        s_cmp_eq_u32 s28, 4
        s_cselect_b64 vcc, -1, 0
        s_cselect_b32 s30, 0, s30
        s_cselect_b32 s31, 40, 8
        s_mul_i32 s31, s31, 1280
        s_add_u32 s29, s29, s30
        s_mul_i32 s28, s29, 1280
        s_lshl_b32 s29, s27, 7
        s_add_u32 s28, s28, s29
        v_cndmask_b32 v2, v15, v14, vcc
        """)
        for i in range(2): a(f"s_add_u32 m0, s23, {2048*half+1024*i}\nbuffer_load_dwordx4 v2, s[4:7], s28 offen lds\ns_add_u32 s28, s28, s31")
    a(f"s_add_u32 s23, s23, 4096\ns_add_u32 s33, s33, 1\ns_cmp_lt_u32 s33, 7\ns_cbranch_scc1 {L}\ns_waitcnt vmcnt(0)\ns_mov_b32 s33, 0")
    L = uid("Lwo"); a.label(L); task()
    for t in range(4): a(f"ds_read_b64_tr_b16 {v(16+4*t,2)}, v{8+t}\nds_read_b64_tr_b16 {v(18+4*t,2)}, v{8+t} offset:2048\nv_add_u32 v{8+t}, 4096, v{8+t}")
    a(f"s_lshl_b32 s28, s27, 2\ns_mul_i32 s28, s28, 68\ns_add_u32 s28, s28, s26\ns_add_u32 s28, s28, 48\ns_lshl_b32 s28, s28, 10")
    for t in range(4): a(f"s_waitcnt lgkmcnt({6-2*t})\nbuffer_store_dwordx4 {v(16+4*t,4)}, v12, s[8:11], s28 offen {SC}\ns_add_u32 s28, s28, {68*1024}")
    a(f"s_add_u32 s33, s33, 1\ns_cmp_lt_u32 s33, 7\ns_cbranch_scc1 {L}")
    publish(a, 8, 4, 13, 8)
    stamp(a, 1)
    if opt("spw2"):
        L = uid("Lw2")
        a(f"""
        s_and_b32 s22, s16, 1
        s_lshl_b32 s22, s22, 2
        s_add_u32 s22, s22, s3
        s_lshl_b32 s22, s22, 3
        v_lshrrev_b32 v2, 3, v1
        v_add_u32 v2, s22, v2
        v_lshlrev_b32 v2, 12, v2
        v_and_b32 v3, 7, v1
        v_lshl_add_u32 v2, v3, 7, v2
        s_lshr_b32 s22, s52, 1
        s_lshl_b32 s22, s22, 10
        s_mov_b32 s33, 0
        {L}:
        buffer_load_dword v30, v2, s[12:15], s22 offen
        s_add_u32 s22, s22, {64*4096}
        s_add_u32 s33, s33, 1
        s_cmp_lt_u32 s33, 24
        s_cbranch_scc1 {L}
        """)
    h0 = opt("sph", 0)
    if h0:
        L = uid("Lsh"); n = ((32 - h0 + 1) // 2 * 10 + 7) // 8
        srd(a, 4, 20, H_SZ, H_OFF)
        a(f"s_lshl_b32 s23, s52, 14\nv_lshl_add_u32 v12, v1, 7, s23")
        gate(a, 12, (1 << 64) - 1, two=8192)
        a(f"""
        s_and_b32 s22, s16, 1
        s_lshl_b32 s22, s22, 2
        s_add_u32 s22, s22, s3
        v_lshlrev_b32 v2, 7, v1
        s_mov_b32 s33, 0
        {L}:
        s_mul_i32 s23, s22, 6554
        s_lshr_b32 s23, s23, 16
        s_mul_i32 s23, s23, {64*1280}
        s_lshl_b32 s26, s22, 13
        s_add_u32 s23, s23, s26
        s_add_u32 s23, s23, {h0*64*1280}
        buffer_load_dword v30, v2, s[4:7], s23 offen {SC}
        s_add_u32 s22, s22, 8
        s_add_u32 s33, s33, 1
        s_cmp_lt_u32 s33, {n}
        s_cbranch_scc1 {L}
        """)
    nw = opt("c3", 0)
    if nw:
        L = uid("Lc3")
        a(f"""
        s_cmp_ge_u32 s3, {nw}
        s_cbranch_scc1 {L}d
        s_and_b32 s22, s16, 1
        s_mul_i32 s22, s22, {nw}
        s_add_u32 s22, s22, s3
        s_lshl_b32 s22, s22, 6
        v_add_u32 v2, s22, v1
        v_lshlrev_b32 v2, 12, v2
        s_lshr_b32 s22, s52, 1
        s_lshl_b32 s22, s22, 10
        s_add_u32 s22, s22, 384
        s_mov_b32 s33, 0
        {L}:
        buffer_load_dword v30, v2, s[12:15], s22 offen
        s_add_u32 s22, s22, {128*nw*4096}
        s_add_u32 s33, s33, 1
        s_cmp_lt_u32 s33, {12//nw}
        s_waitcnt vmcnt(0)
        s_cbranch_scc1 {L}
        {L}d:
        """)
    stamp(a, 2)

QA_S, QA_SLOT, QA_W = 3, 49152, 18432
def qa_w1_sweep(a):
    if not opt("qsw"): return
    a(f"""
    s_load_dwordx2 s[12:13], s[0:1], {KA['w1']}
    s_lshr_b32 s22, s2, 1
    s_lshl_b32 s22, s22, 2
    s_add_u32 s22, s22, s3
    s_lshl_b32 s23, s22, 12
    s_lshl_b32 s22, s22, 13
    s_add_u32 s23, s23, {512*8192}
    v_lshlrev_b32 v2, 7, v1
    s_waitcnt lgkmcnt(0)
    """)
    srd(a, 12, 12, S_ * 3072)
    a("buffer_load_dword v32, v2, s[12:15], s22 offen\ns_mov_b32 exec_hi, 0\nbuffer_load_dword v33, v2, s[12:15], s23 offen\ns_mov_b32 exec_hi, -1")
def w2_setup(a):
    a(f"""
    s_load_dwordx2 s[24:25], s[0:1], {KA['w2']}
    v_lshrrev_b32 v2, 3, v1
    s_lshl_b32 s22, s53, 3
    v_add_u32 v2, s22, v2
    v_lshlrev_b32 v2, 12, v2
    v_and_b32 v3, 7, v1
    v_lshl_add_u32 v2, v3, 7, v2
    s_lshr_b32 s22, s52, 1
    s_lshl_b32 s22, s22, 10
    v_add_u32 v29, s22, v2
    s_waitcnt lgkmcnt(0)
    """)
    srd(a, 24, 24, F_ * 4096)
def w2_load(a):
    if opt("sc3"): a("s_mov_b32 exec_lo, 0xf7f7f7f7\ns_mov_b32 exec_hi, 0xf7f7f7f7\nbuffer_load_dword v30, v29, s[24:27], s22 offen\ns_mov_b64 exec, -1")
    else: a("buffer_load_dword v30, v29, s[24:27], s22 offen")
def w2_last(a):
    if not opt("nopfw2"): a("s_lshl_b32 s22, s3, 20"); w2_load(a)
def w2_slow(a):
    n = opt("sc3")
    if not n or n > 2: return
    a(f"s_lshl_b32 s22, s53, 2\ns_add_u32 s22, s22, s3\ns_lshl_b32 s22, s22, 12\ns_lshr_b32 s23, s52, 1\ns_lshl_b32 s23, s23, 10\ns_add_u32 s22, s22, s23\ns_add_u32 s22, s22, 384\ns_add_u32 s26, s24, s22\ns_addc_u32 s27, s25, 0")
    for k in range(12):
        for h in range(n): a(f"s_load_dword s98, s[26:27], {64*h}")
        a(f"s_add_u32 s26, s26, {128*4096}\ns_addc_u32 s27, s27, 0")
def qa_loader(a):
    a(f"v_lshrrev_b32 v2, 3, v1\ns_lshl_b32 s23, s3, 3\nv_add_u32 v2, s23, v2\ns_lshl_b32 s26, s16, 7\ns_sub_u32 s26, s26, 16\nv_and_b32 v3, 7, v1")
    for i in range(6):
        a(f"v_add_u32 v4, {24*i}, v2\nv_lshrrev_b32 v5, 1, v4\nv_and_b32 v5, 7, v5\nv_xor_b32 v5, v5, v3\nv_add_u32 v4, s26, v4\nv_max_i32 v4, 0, v4\nv_mul_u32_u24 v4, 1280, v4\nv_lshl_add_u32 v{8+i}, v5, 4, v4")
    a(f"s_mul_i32 s23, s3, 320\ns_mul_i32 s26, s17, 160\nv_add_u32 v2, s23, v1")
    for i in range(5):
        a(f"""
        v_add_u32 v3, {64*i}, v2
        v_mul_u32_u24 v4, 2185, v3
        v_lshrrev_b32 v4, 16, v4
        v_mul_u32_u24 v5, 30, v4
        v_sub_u32 v3, v3, v5
        v_mul_u32_u24 v5, 26, v3
        v_lshrrev_b32 v5, 8, v5
        v_mul_u32_u24 v5, {1280-160}, v5
        v_lshl_add_u32 v3, v3, 4, v5
        v_and_b32 v5, 12, v4
        v_lshlrev_b32 v5, 1, v5
        v_lshrrev_b32 v6, 4, v4
        v_lshl_add_u32 v5, v6, 2, v5
        v_and_b32 v4, 3, v4
        v_add_u32 v4, v4, v5
        v_mul_u32_u24 v4, 3840, v4
        v_add3_u32 v{16+i}, v4, v3, s26
        """)
    a(f"s_mov_b32 s34, s18\ns_mov_b32 s37, 0\ns_lshl_b32 s38, s3, 10\ns_mul_i32 s39, s3, 5120\ns_add_u32 s39, s39, {QA_W}\ns_mov_b32 s33, 0")
    srd(a, 4, 4, H_SZ); srd(a, 8, 8, 640 * 3840)
    def issue(half=None):
        if half != 1: a(f"s_lshl_b32 s40, s34, 7\ns_mul_i32 s41, s34, {64*3840}\ns_add_u32 s42, s37, s38\ns_add_u32 s43, s37, s39\ns_add_u32 s36, s41, {32*3840}")
        if half != 1:
            for i in range(3): a(f"s_add_u32 m0, s42, {3072*i}\nbuffer_load_dwordx4 v{8+i}, s[4:7], s40 offen lds")
            for i in range(5): a(f"s_add_u32 m0, s43, {1024*i}\nbuffer_load_dwordx4 v{16+i}, s[8:11], s41 offen lds")
        if half != 0:
            for i in range(3, 6): a(f"s_add_u32 m0, s42, {3072*i}\nbuffer_load_dwordx4 v{8+i}, s[4:7], s40 offen lds")
            for i in range(5): a(f"s_add_u32 m0, s43, {15360+1024*i}\nbuffer_load_dwordx4 v{16+i}, s[8:11], s36 offen lds")
            a(f"s_add_u32 s37, s37, {QA_SLOT}\ns_cmp_ge_u32 s37, {QA_SLOT*QA_S}\ns_cselect_b32 s37, 0, s37\ns_add_u32 s34, s34, 1\ns_cmp_ge_u32 s34, 10\ns_cselect_b32 s34, 0, s34")
    if opt("lateb0"):
        issue_n(a, 2, issue); tag_ready(a); w2_setup(a); stamp(a, 1)
    else:
        issue(); issue(0); tag_ready(a); a("s_waitcnt vmcnt(8)\ns_barrier"); issue(1); issue(); a("s_mov_b32 s33, 3")
        w2_setup(a); stamp(a, 1)
    steady(a, 10, 16, QA_S - 1, issue); drain(a, 16, QA_S - 1)
    stamp(a, 2); w2_last(a); a("s_barrier")
def qa_idle(a):
    code_prefetch(a)
    if opt("wsq", 1) == 1:
        a("s_lshr_b32 s22, s52, 1\ns_lshl_b32 s22, s22, 5\ns_add_u32 s22, s22, s53\ns_mul_i32 s26, s22, 22\ns_add_u32 s26, s26, 16384\ns_lshl_b32 s26, s26, 7\ns_lshl_b32 s22, s22, 13\ns_add_u32 s23, s22, 0x100000\nv_lshlrev_b32 v2, 7, v1")
        srd(a, 8, 8, 640 * 3840)
        a("buffer_load_dword v40, v2, s[8:11], s22 offen\nbuffer_load_dword v41, v2, s[8:11], s23 offen\ns_mov_b64 exec, 0x3fffff\nbuffer_load_dword v42, v2, s[8:11], s26 offen\ns_mov_b64 exec, -1")
    if opt("wsq") == 2:
        a(f"s_mul_i32 s22, s53, 60\nv_add_u32 v2, s22, v1\nv_mul_u32_u24 v3, 4370, v2\nv_lshrrev_b32 v3, 16, v3\nv_mul_u32_u24 v4, 15, v3\nv_sub_u32 v2, v2, v4\nv_mul_u32_u24 v4, 52, v2\nv_lshrrev_b32 v4, 8, v4\nv_mul_u32_u24 v4, {1280-640}, v4\nv_lshl_add_u32 v2, v2, 7, v4\nv_mul_u32_u24 v3, 3840, v3\ns_lshr_b32 s22, s52, 2\ns_mul_i32 s22, s22, 640\nv_add3_u32 v2, v2, v3, s22")
        srd(a, 8, 8, 640 * 3840)
        a("s_mov_b32 exec_hi, 0x0fffffff")
        for n in range(5): a(f"s_mov_b32 s22, {128*3840*n}\nbuffer_load_dword v{40+n}, v2, s[8:11], s22 offen")
        a("s_mov_b32 exec_hi, -1")
    if opt("w49"):
        a(f"""
        s_mul_i32 s22, s53, 60
        v_add_u32 v2, s22, v1
        v_mul_u32_u24 v3, 4370, v2
        v_lshrrev_b32 v3, 16, v3
        v_mul_u32_u24 v4, 15, v3
        v_sub_u32 v2, v2, v4
        v_mul_u32_u24 v4, 52, v2
        v_lshrrev_b32 v4, 8, v4
        v_mul_u32_u24 v4, {1280-640}, v4
        v_lshl_add_u32 v2, v2, 7, v4
        v_lshrrev_b32 v4, 6, v3
        v_lshl_add_u32 v3, v4, 8, v3
        v_add_u32 v3, 256, v3
        v_mul_u32_u24 v3, 3840, v3
        s_lshr_b32 s22, s52, 2
        s_mul_i32 s22, s22, 640
        v_add3_u32 v2, v2, v3, s22
        """)
        srd(a, 8, 8, 640 * 3840)
        a("s_mov_b32 exec_hi, 0x0fffffff\nbuffer_load_dword v31, v2, s[8:11], 0 offen\ns_mov_b32 exec_hi, -1")
    if opt("x49"):
        a(f"""
        s_lshr_b32 s22, s53, 3
        s_mul_i32 s22, s22, 36
        s_lshl_b32 s23, s16, 7
        s_add_u32 s22, s22, s23
        s_sub_u32 s22, s22, 16
        v_add_u32 v2, s22, v1
        v_max_i32 v2, 0, v2
        v_mul_u32_u24 v2, 1280, v2
        s_bitcmp1_b32 s53, 0
        s_cselect_b32 s22, 5, 4
        s_cselect_b32 s23, 0, 9
        s_lshl_b32 s22, s22, 7
        s_lshl_b32 s23, s23, 7
        """)
        srd(a, 4, 4, H_SZ)
        a("s_mov_b32 exec_hi, 0xf\nbuffer_load_dword v32, v2, s[4:7], s22 offen\nbuffer_load_dword v33, v2, s[4:7], s23 offen\ns_mov_b32 exec_hi, -1")
    tag_ready(a); w2_setup(a)
    at = (opt("w2a", 9), opt("w2b", 9))
    for i in range(10):
        a("s_barrier")
        for k in range(2):
            if at[k] == i and not opt("nopfw2"): a(f"s_mov_b32 s22, {(4+k) << 20}"); w2_load(a)
    w2_last(a); a("s_barrier")
def qa_consumer(a):
    L = "Lqa"
    AQ, AK, AR, AV, AW = 16, 48, 88, 108, 148
    XF, WB = 168, 208
    M0, M1, MF, PM, TM = 224, 228, 232, 236, 240
    NB, DD = 4, opt("dd", 3)
    a(f"""
    s_lshr_b32 s28, s3, 1
    s_and_b32 s29, s3, 1
    v_and_b32 v2, 15, v1
    v_lshrrev_b32 v3, 4, v1
    v_lshrrev_b32 v4, 1, v2
    v_xor_b32 v4, v4, v3
    v_lshlrev_b32 v4, 4, v4
    v_lshl_add_u32 v4, v2, 7, v4
    v_mov_b32 v8, v4
    v_xor_b32 v9, 64, v4
    v_lshrrev_b32 v5, 2, v1
    v_mul_u32_u24 v5, 480, v5
    s_mul_i32 s23, s29, 80
    s_add_u32 s23, s23, {QA_W}
    v_add_u32 v5, s23, v5
    v_and_b32 v4, 3, v1
    v_lshl_add_u32 v10, v4, 3, v5
    v_and_b32 v6, 1, v1
    v_mul_u32_u24 v6, 40, v6
    v_add3_u32 v13, v6, v5, 32
    v_lshrrev_b32 v4, 1, v4
    v_mul_u32_u24 v4, 160, v4
    v_add_u32 v11, v4, v13
    """)
    if opt("zv"):
        a(f"v_lshrrev_b32 v4, 3, v2\nv_cmp_eq_u32 vcc, s29, v4\nv_cndmask_b32_e64 v7, 0, -1, vcc")
    for i in range(AQ, XF): a(f"v_mov_b32 v{i}, 0")
    a(f"v_lshlrev_b32 v4, 2, v3\nv_sub_u32 v4, v2, v4\nv_mov_b32 v5, {f2u(-1e30)}")
    for r in range(4):
        a(f"""
        v_subrev_u32 v15, {r}, v4
        v_and_b32 v15, 0x80000001, v15
        v_cmp_eq_u32 vcc, 0, v15
        v_cndmask_b32_e64 v{M1+r}, v5, 0, vcc
        v_cndmask_b32_e64 v{TM+4+r}, 0, -1, vcc
        v_cmp_eq_u32 vcc, 0x80000000, v15
        v_cndmask_b32_e64 v{M0+r}, v5, 0, vcc
        v_cndmask_b32_e64 v{TM+r}, 0, -1, vcc
        """)
    a("s_mov_b32 s30, 0xffff\ns_mov_b32 s22, 0x0c0c0c0c\ns_mov_b32 s26, 0x01000100\ns_mov_b32 s27, 0x03020302")
    for i in range(4): a(f"v_bfi_b32 v{PM+i}, s30, v{TM+2*i}, v{TM+2*i+1}\nv_mov_b32 v15, s22\nv_bfi_b32 v{PM+i}, v{PM+i}, s{26+(i&1)}, v15")
    a(f"s_or_b32 s23, s16, s28\ns_cmp_eq_u32 s23, 0\ns_cselect_b64 vcc, -1, 0")
    for r in range(4): a(f"v_cndmask_b32 v{MF+r}, v{M0+r}, v5, vcc")
    GM = 90
    for j in range(2): a(f"v_cmp_eq_u32 s[{GM+2*j}:{GM+1+2*j}], {j}, v3")
    a(f"""
    v_and_b32 v4, 1, v3
    v_cmp_eq_u32 s[94:95], 1, v4
    s_cmp_eq_u32 s29, 0
    s_cselect_b32 s96, -1, 0
    s_cselect_b32 s97, 0, -1
    s_lshl_b32 s23, s16, 3
    s_lshl_b32 s26, s28, 2
    s_add_u32 s23, s23, s26
    s_mul_i32 s23, s23, 40
    s_mul_i32 s26, s17, 5
    s_add_u32 s23, s23, s26
    s_lshl_b32 s23, s23, 9
    v_lshl_add_u32 v15, v1, 3, s23
    s_lshl_b32 s26, s29, 10
    v_add_u32 v12, s26, v15
    s_lshl_b32 s23, s16, 4
    s_add_u32 s23, s23, s17
    s_lshl_b32 s23, s23, 7
    s_add_u32 s23, s23, {F2}
    v_lshl_add_u32 v14, v1, 10, s23
    s_mov_b32 s31, {f2u(20 ** -0.5 * LOG2E)}
    v_mov_b32 v6, s31
    s_mov_b32 s33, 0
    s_mov_b32 s37, 0
    s_waitcnt lgkmcnt(0)
    """)
    srd(a, 4, 20, OT_SZ, OT_OFF); tag_ready(a)
    U = [("q", 0), ("q", 1), ("k", 0), ("k", 1), ("r", 0), ("v", 0), ("v", 1), ("w", 0)]
    NU = len(U); UU = 2 * NU
    def wread(u):
        kk, c = divmod(u, NU); p, j = U[c]; b = WB + 4 * (u % NB)
        ad, off = {"q": (10, 40 * j), "k": (10, 160 + 40 * j), "v": (10, 320 + 40 * j), "r": (11, 0), "w": (13, 320)}[p]
        off += kk * 15360
        return [f"ds_read_b64_tr_b16 {v(b,2)}, v{ad} offset:{off}", f"ds_read_b64_tr_b16 {v(b+2,2)}, v{ad} offset:{off+7680}"]
    def acc(p, j, t): return {"q": AQ + 8 * (t - 1) + 4 * j, "k": AK + 8 * t + 4 * j, "r": AR + 4 * t, "v": AV + 20 * j + 4 * t, "w": AW + 4 * t}[p]
    cvt = lambda d, s0: f"v_cvt_pk_bf16_f32 v{d}, v{s0}, v{s0+1}"
    cv = lambda d, s0: a(cvt(d, s0))
    VCH = (AV, AV + 20, AW)
    stamp(a, 1, True); a("s_barrier"); stamp(a, 2, True)
    a(f"s_cmp_lg_u32 s28, 0\ns_cbranch_scc1 {L}_h1")
    for rh in range(2):
        a.label(f"{L}_h{rh}")
        def xread(kk): return [f"ds_read_b128 {v(XF+20*kk+4*t,4)}, v{8+kk} offset:{2048*(4*rh+t) if t else 0}" for t in (1, 2, 3, 4, 0)]
        def mf(u):
            kk, c = divmod(u, NU); p, j = U[c]; w = v(WB + 4 * (u % NB), 4); r = []
            for t in ((1, 2, 3, 4, 0) if p in ("kr", "vw")[rh] else (1, 2, 3, 4)):
                x = v(XF + 20 * kk + 4 * t, 4); d = v(acc(p, j, t), 4)
                r.append(f"v_mfma_f32_16x16x32_bf16 {d}, {w}, {x}, {d}" if p in "qkr" else f"v_mfma_f32_16x16x32_bf16 {d}, {x}, {w}, {d}")
            return r
        for t in xread(0): a(t)
        for u in range(DD):
            for t in wread(u): a(t)
        a(f"s_waitcnt lgkmcnt({2*DD-2})")
        a.label(f"{L}_c{rh}", 3)
        q = []
        for u in range(1, DD): q += [u, u]
        misc = slot_adv(QA_SLOT, QA_S) + ["s_add_u32 s33, s33, 1", "s_cmp_ge_u32 s33, 10"]
        x1 = xread(1)
        for u in range(UU):
            nx = u + DD; fill = []
            if nx == UU: fill += [(t, UU) for t in xread(0)]
            fill += [(t, nx) for t in wread(nx % UU)]
            if 1 <= u < NU - 1 and x1: fill.append((x1.pop(0), NU))
            ms = mf(u)
            if nx == UU:
                a(f"s_waitcnt lgkmcnt(0)\ns_cbranch_scc1 {L}_clast{rh}\ns_barrier"); q = []
            per = -(-len(fill) // len(ms))
            for i, m in enumerate(ms):
                a(m)
                for t, tag in fill[i*per:(i+1)*per]: a(t); q.append(tag)
                if opt("zv") and u % NU == NU - 2 and i < 4: a(f"v_and_b32 v{WB+4*((u+1)%NB)+i}, v7, v{WB+4*((u+1)%NB)+i}")
                if i == len(ms) - 2 and misc and u >= 2: a(misc.pop(0))
                if 1 <= i <= 3 and nx == UU - 1:
                    for r in ((), (8, 9, 10), (11, 13))[i - 1]: a(f"v_add_u32 v{r}, s40, v{r}")
            up = u + 2 if opt("zv") and u % NU == NU - 3 else u + 1
            if opt("zv") and u == UU - 2: pass
            if any(t <= up for t in q) and nx != UU - 1:
                last = max(i for i, t in enumerate(q) if t <= up)
                q = q[last + 1:]
                a(f"s_waitcnt lgkmcnt({len(q)})")
        assert not misc and not x1 and len(q) == 2 * DD - 2, (misc, x1, q)
        a(f"s_branch {L}_c{rh}")
        a.label(f"{L}_clast{rh}"); stamp(a, 3, True); lstamp(a, 1)
        TK = (4, 3, 2, 1) if rh else (4, 3, 2, 1, 0); prep = []
        for t in TK:
            r = AR + 4 * t; k = AK + 8 * t
            prep += [cvt(k, k), cvt(k + 1, k + 2), cvt(k + 4, k + 4), cvt(k + 5, k + 6), cvt(k + 2, r), cvt(k + 3, r + 2), cvt(r, r), cvt(r + 1, r + 2)]
        for t in TK:
            r = AR + 4 * t; k = AK + 8 * t
            prep += [f"v_permlane32_swap_b32 v{r}, v{k+2}", f"v_permlane32_swap_b32 v{r+1}, v{k+3}"]
        assert DD == 3
        for u in range(UU - DD, UU):
            for i, m in enumerate(mf(u)):
                a(m); a(prep.pop(0)); a(prep.pop(0))
                if opt("zv") and u == UU - 2 and i < 4: a(f"v_and_b32 v{WB+4*((u+1)%NB)+i}, v7, v{WB+4*((u+1)%NB)+i}")
        a(f"v_lshlrev_b32 v8, 3, v1\ns_mul_i32 s23, s29, 20480\ns_add_u32 s23, s23, 61440\nv_add_u32 v8, s23, v8")
        for x in prep: a(x)
        if rh == 0:
            for i in range(3): a(f"ds_write_b64 v8, {v(AK+32+2*i,2)} offset:{512*i}")
        for n, b in enumerate(VCH):
            for i in range(0 if rh else 2, 10): cv(b + i, b + 2 * i)
            a(f"ds_write_b64 v8, {v(b + (0 if rh else 8),2)} offset:{(3072 if rh else 1536) + 512*n}")
        a("s_waitcnt lgkmcnt(0)\ns_barrier")
        if rh:
            for i in range(3): a(f"ds_read_b64 {v(AK+2*i,2)}, v8 offset:{512*i}")
        for n, b in enumerate(VCH): a(f"ds_read_b64 {v(b,2)}, v8 offset:{(1536 if rh else 3072) + 512*n}")
        if rh == 0: a(f"s_branch {L}_j")
    a.label(f"{L}_j")
    lstamp(a, 2)
    UN = [(t, j) for t in (4, 3, 2, 1) for j in range(2)]
    SRS = [XF + 8 * n for n in range(7)] + [TM + 8]
    def qprep(t):
        r = AR + 4 * t; qa, qb = acc("q", 0, t), acc("q", 1, t)
        return [cvt(qa, qa), cvt(qa + 1, qa + 2), cvt(qb + 3, qb + 2), cvt(qb + 2, qb)] + \
               [f"v_cndmask_b32 v{qa+2+i}, 0, v{r+i}, s[{GM}:{GM+1}]" for i in range(2)] + [f"v_cndmask_b32 v{qb+i}, 0, v{r+i}, s[{GM+2}:{GM+3}]" for i in range(2)]
    for x in qprep(4): a(x)
    for n, (t, j) in enumerate(UN):
        qf = v(acc("q", j, t), 4)
        if j == 0: nxt = qprep(t - 1) if t > 1 else []
        if n == 6: a("s_waitcnt lgkmcnt(0)")
        a(f"v_mfma_f32_16x16x32_bf16 {v(SRS[n],4)}, {v(AK+8*(t-1)+2*j,4)}, {qf}, {v(MF if t == 1 else M0,4)}")
        for x in nxt[4*j:4*j+2]: a(x)
        a(f"v_mfma_f32_16x16x32_bf16 {v(SRS[n]+4,4)}, {v(AK+8*t+2*j,4)}, {qf}, {v(M1,4)}")
        for x in nxt[4*j+2:4*j+4]: a(x)
    V2, X = AQ, AQ + 16
    P = [AK + 4 * n for n in range(8)]
    for n in range(8): s_ = SRS[n]; a(f"v_max3_f32 v{V2+2*n}, v{s_}, v{s_+1}, v{s_+4}\nv_max3_f32 v{V2+2*n+1}, v{s_+2}, v{s_+3}, v{s_+6}")
    for n in range(8): s_ = SRS[n]; a(f"v_max_f32 v{V2+2*n}, v{V2+2*n}, v{s_+5}\nv_max_f32 v{V2+2*n+1}, v{V2+2*n+1}, v{s_+7}")
    def seq(*steps):
        for st in steps:
            for x in (X, X + 4): a(st(x))
    def xred(op):
        seq(lambda x: f"v_permlane32_swap_b32 v{x}, v{x+1}\nv_permlane32_swap_b32 v{x+2}, v{x+3}",
            lambda x: f"{op} v{x}, v{x}, v{x+1}\n{op} v{x+2}, v{x+2}, v{x+3}",
            lambda x: f"v_permlane16_swap_b32 v{x}, v{x+2}", lambda x: f"{op} v{x}, v{x}, v{x+2}")
    def xbc():
        seq(lambda x: f"v_mov_b32 v{x+2}, v{x}", lambda x: f"v_permlane16_swap_b32 v{x}, v{x+2}",
            lambda x: f"v_mov_b32 v{x+1}, v{x}\nv_mov_b32 v{x+3}, v{x+2}",
            lambda x: f"v_permlane32_swap_b32 v{x}, v{x+1}\nv_permlane32_swap_b32 v{x+2}, v{x+3}")
    sel = lambda n: f"op_sel:[0,{n&1},{n&1}] op_sel_hi:[1,{n&1},{n&1}]"
    for n in range(8): a(f"v_max_f32 v{X+n}, v{V2+2*n}, v{V2+2*n+1}")
    xred("v_max_f32"); seq(lambda x: f"v_mul_f32 v{x}, s31, v{x}"); xbc()
    for n in range(8): a(f"v_pk_fma_f32 {v(V2+2*n,2)}, {v(V2+2*n,2)}, v[6:7], {v(X+(n&6),2)} op_sel:[0,0,{n&1}] op_sel_hi:[1,0,{n&1}] neg_lo:[0,0,1] neg_hi:[0,0,1]")
    for n in range(16): a(f"v_exp_f32 v{V2+n}, v{V2+n}")
    for n in range(8): a(f"v_add_f32 v{X+n}, v{V2+2*n}, v{V2+2*n+1}")
    xred("v_add_f32"); seq(lambda x: f"v_rcp_f32 v{x}, v{x}"); xbc()
    for n in range(8): a(f"v_pk_mul_f32 {v(V2+2*n,2)}, {v(V2+2*n,2)}, {v(X+(n&6),2)} op_sel:[0,{n&1}] op_sel_hi:[1,{n&1}]")
    for n in range(8): cv(X + n, V2 + 2 * n)
    a("s_setprio 2")
    def pv(n):
        t, j = UN[n]
        return [f"v_mfma_f32_16x16x32_bf16 {v(SRS[n],4)}, {v(AV+20*j+2*(t-1),4)}, {v(P[n],4)}, 0", f"v_mfma_f32_16x16x32_bf16 {v(SRS[n]+4,4)}, {v(AW+2*(t-1),4)}, {v(P[n],4)}, 0"]
    for n in range(8):
        pm = [f"v_perm_b32 v{P[n]+i}, v{X+n}, v{X+n}, v{PM+i}" for i in range(4)]
        m = pv(n - 1) if n else ["", ""]
        a(pm[0]); a(pm[1]); a(m[0]); a(pm[2]); a(pm[3]); a(m[1])
    for m in pv(7): a(m)
    O = AQ
    for t in (4, 3, 2, 1):
        n = 2 * (4 - t); o = O + 6 * (4 - t)
        a(f"s_mov_b32 s29, {40*512*(t-1)}")
        for j in range(2):
            cv(o + 2 * j, SRS[n + j]); cv(o + 2 * j + 1, SRS[n + j] + 2)
            a(f"buffer_store_dwordx2 {v(o+2*j,2)}, v12, s[4:7], s29 offen offset:{512*j} {SC}")
        for r in range(4): a(f"v_cndmask_b32 v{SRS[n]+4+r}, v{SRS[n]+4+r}, v{SRS[n+1]+4+r}, s[94:95]")
        cv(o + 4, SRS[n] + 4); cv(o + 5, SRS[n] + 6)
        a(f"s_mov_b64 exec, s[96:97]\nbuffer_store_dwordx2 {v(o+4,2)}, v15, s[4:7], s29 offen offset:2048 {SC}\ns_mov_b64 exec, -1")
    lstamp(a, 3)
    a("s_waitcnt vmcnt(0)"); lstamp(a, 4)
    a(f"s_barrier\ns_cmp_lg_u32 s3, 0\ns_cbranch_scc1 {L}_np\ns_mov_b64 exec, 3\nv_mov_b32 v3, s48\nbuffer_store_dword v3, v14, s[44:47], 0 offen {SC}\ns_mov_b64 exec, -1")
    a.label(f"{L}_np")
    if opt("late"): lstamp(a, 5); a("s_waitcnt vmcnt(0)"); lstamp(a, 6)
    stamp(a, 4, True)

class P2:
    def __init__(s, par, ND=None):
        s.par = par; s.ND = ND or (opt("nd0", 4), 10 - opt("nd0", 4))[par]; s.tag = f"{par}{s.ND}"
        s.SLOT = 8192 + 2048 * s.ND; s.S = min(RING // s.SLOT, opt("p2s%d" % par, 8)); s.AH = s.S - 2
        s.st = opt("stb%d" % par, 0); s.stm = opt("stm", 7)
        s.IN = opt("in%d" % par, 0)
        s.AA = min(opt("aha", 6), s.AH); s.GB = max(opt("gb%d" % par, (7, 5)[par]), 11 - s.AH, 10 - s.AA)
    def adv(s): return f"s_add_u32 s37, s37, {s.SLOT}\ns_cmp_ge_u32 s37, s38\ns_cselect_b32 s42, {s.SLOT*s.S}, 0\ns_sub_u32 s37, s37, s42\ns_add_u32 s34, s34, 1" + ("\ns_cmp_ge_u32 s34, 24\ns_cselect_b32 s34, 0, s34" if s.st else "")
    def phase_b(s): return f"s_and_b32 s34, s50, {s.stm}\ns_mul_i32 s34, s34, {s.st}" if s.st else "s_mov_b32 s34, 0"
    def first(s, a, n, issue, IN=None):
        m = max(s.IN if IN is None else IN, s.AA)
        issue_n(a, m, issue)
        return lambda: [a(f"s_waitcnt vmcnt({n*(m-1-j)})\ns_barrier") for j in range(m - s.AA)]
    def setup_s(s, a):
        a(f"""
        s_load_dwordx2 s[12:13], s[0:1], {KA['w2']}
        v_lshrrev_b32 v2, 3, v1
        v_and_b32 v3, 7, v1
        v_and_b32 v4, 6, v2
        v_xor_b32 v3, v3, v4
        v_lshlrev_b32 v3, 4, v3
        v_lshl_add_u32 v2, v2, 12, v3
        s_lshl_b32 s23, s3, 17
        s_lshl_b32 s26, s50, 7
        s_add_u32 s23, s23, s26
        v_add_u32 v8, s23, v2
        """)
        for i in range(1, 4): a(f"v_add_u32 v{8+i}, {8*4096*i}, v8")
        a(f"s_lshl_b32 s23, s50, 2\ns_mul_i32 s23, s23, 40\ns_lshl_b32 s26, s3, 1\ns_add_u32 s23, s23, s26\ns_lshl_b32 s23, s23, 9\nv_lshl_add_u32 v16, v1, 4, s23")
        for i in range(1, 4): a(f"v_add_u32 v{16+i}, {40*512*i}, v16")
        a(f"s_and_b32 s23, s50, -2\ns_add_u32 s23, s23, {s.par}\ns_lshl_b32 s23, s23, 10\ns_add_u32 s23, s23, {F2}\nv_lshl_add_u32 v12, v1, 7, s23")
        a(f"s_mov_b32 s34, 0\ns_lshl_b32 s37, s3, 12\ns_add_u32 s38, s37, {s.SLOT*s.S}\ns_mov_b32 s33, 0\ns_waitcnt lgkmcnt(0)")
        srd(a, 4, 20, OT_SZ, OT_OFF)
    def early(s, a, n, vflag, tag):
        a(f"""
        s_waitcnt vmcnt({3*n})
        s_barrier
        s_waitcnt vmcnt({2*n})
        s_barrier
        s_mov_b64 exec, 0xff
        buffer_load_dword v2, v{vflag}, s[44:47], 0 offen {SC}
        s_waitcnt vmcnt({n+1})
        s_barrier
        s_waitcnt vmcnt(1)
        s_barrier
        """)
        stamp(a, 2)
        a(f"s_waitcnt vmcnt(0)\nv_cmp_ne_u32 vcc, s48, v2\ns_mov_b64 exec, -1\ns_cmp_eq_u64 vcc, 0\ns_cbranch_scc0 Lp2_{tag}{s.tag}e\ns_barrier\ns_branch Lp2_{tag}{s.tag}k")
    def loader_s(s, a):
        AH, AA = s.AH, s.AA
        s.setup_s(a)
        a.label(f"Lp2_s{s.tag}e")
        a("s_barrier")
        if s.par: w2_slow(a)
        gate(a, 12, 0xff, sl=opt("slp2", 2))
        a.label(f"Lp2_s{s.tag}k")
        stamp(a, 3)
        def issue(sc):
            a(f"s_lshl_b32 s40, s34, {11 if sc else 18}" if not opt("w2wrap") else f"s_and_b32 s40, s34, 1\ns_lshl_b32 s40, s40, {11 if sc else 18}")
            for i in range(4): a(f"s_add_u32 m0, s37, {1024*i}\nbuffer_load_dwordx4 v{(16 if sc else 8)+i}, s[4:7], s40 offen {sc} lds")
            a(s.adv())
        s.first(a, 4, lambda: issue(SC), opt("ins", 0))()
        steady(a, 10, 4, AA, lambda: issue(SC))
        srd(a, 4, 12, F_ * 4096); a(s.phase_b())
        if AA < AH: a(f"s_waitcnt vmcnt({4*(AA-1)})\ns_barrier"); issue_n(a, AH - AA + 1, lambda: issue(""))
        steady(a, 34, 4, AH, lambda: issue(""))
        stamp(a, 5)
        drain(a, 4, AH)
        endp(a)
    def setup_d(s, a):
        ND = s.ND
        a(f"s_sub_u32 s22, s3, 2\ns_mul_i32 s23, s51, 68\ns_add_u32 s23, s23, s22\ns_lshl_b32 s23, s23, 10\nv_lshl_add_u32 v8, v1, 4, s23")
        for i in range(1, ND): a(f"v_add_u32 v{8+i}, {68*1024*i}, v8")
        a(f"""
        s_mul_i32 s37, s22, {1024*ND}
        s_add_u32 s37, s37, 8192
        s_add_u32 s38, s37, {s.SLOT*s.S}
        s_lshl_b32 s23, s52, 10
        s_add_u32 s23, s23, {F3}
        v_lshl_add_u32 v16, v1, 7, s23
        s_lshr_b32 s23, s51, 2
        s_lshl_b32 s23, s23, 11
        s_lshr_b32 s26, s52, 1
        s_mul_i32 s26, s26, {160*128}
        s_add_u32 s23, s23, s26
        s_add_u32 s23, s23, {F4}
        v_lshl_add_u32 v17, v1, 7, s23
        s_mov_b32 s34, 0
        s_mov_b32 s36, 48
        s_mov_b32 s33, 0
        """)
        srd(a, 8, 20, UW_SZ, UW_OFF)
    def loader_d(s, a):
        AH, AA, GB, ND = s.AH, s.AA, s.GB, s.ND
        s.setup_d(a)
        a.label(f"Lp2_d{s.tag}e")
        if s.par: gate(a, 16, 0xff); a("" if opt("wearly") else "s_barrier")
        else: a("s_barrier"); gate(a, 16, 0xff)
        a.label(f"Lp2_d{s.tag}k")
        stamp(a, 3)
        def issue():
            a(("s_and_b32 s41, s34, 1\ns_lshl_b32 s41, s41, 1" if opt("uwrap") else "s_lshl_b32 s41, s34, 1") + "\ns_add_u32 s41, s41, s36\ns_lshl_b32 s41, s41, 10")
            for i in range(ND): a(f"s_add_u32 m0, s37, {1024*i}\nbuffer_load_dwordx4 v{8+i}, s[8:11], s41 offen {'' if opt('uplain') else SC} lds")
            a(s.adv())
        f = s.first(a, ND, issue)
        if s.par and opt("wearly"): a("s_barrier")
        f()
        steady(a, 10, ND, AA, issue)
        for j in range(10 - AA, GB): a(f"s_waitcnt vmcnt({ND*(9-j)})\ns_barrier")
        a("s_mov_b32 s36, 0\n" + s.phase_b())
        gate(a, 17, 0x0fff if ND == 4 else 0x0fff0fff, sl=opt("slp4", 2))
        stamp(a, 4)
        issue_n(a, GB + AH - 10, issue)
        steady(a, 34, ND, AH, issue)
        stamp(a, 5)
        drain(a, ND, AH)
        endp(a)
    def consumer1(s, a):
        ND = s.ND; L = f"Lp2{s.tag}"
        ACB = 16; ACA = ACB + 4 * ND; KS = 4 + 4 * ND; SETS = (ACA + 4 * ND, ACA + 4 * ND + 2 * KS)
        a(f"""
        s_load_dwordx2 s[24:25], s[0:1], {KA['b2']}
        s_load_dwordx2 s[28:29], s[0:1], {KA['out']}
        s_lshl_b32 s23, s50, 6
        s_lshl_b32 s26, s3, 4
        s_add_u32 s23, s23, s26
        v_and_b32 v2, 15, v1
        v_add_u32 v2, s23, v2
        v_lshlrev_b32 v3, 1, v2
        v_lshlrev_b32 v4, 3, v2
        s_waitcnt lgkmcnt(0)
        """)
        srd(a, 24, 24, 4096); srd(a, 8, 20, G_SZ, G_OFF); srd(a, 28, 28, S_ * 1280)
        a(f"""
        buffer_load_ushort v10, v3, s[24:27], 0 offen
        s_setprio 0
        v_lshrrev_b32 v5, 2, v1
        v_lshrrev_b32 v6, 1, v5
        v_and_b32 v6, 3, v6
        v_xor_b32 v6, s3, v6
        v_lshlrev_b32 v6, 5, v6
        v_lshl_add_u32 v5, v5, 7, v6
        v_and_b32 v6, 3, v1
        v_lshl_add_u32 v8, v6, 3, v5
        v_lshlrev_b32 v9, 4, v1
        v_add_u32 v9, 8192, v9
        v_mul_u32_u24 v12, 1280, v2
        v_lshrrev_b32 v6, 4, v1
        v_lshl_add_u32 v12, v6, 3, v12
        s_lshl_b32 s26, s51, 5
        v_add_u32 v12, s26, v12
        s_lshl_b32 s26, s3, 10
        v_lshl_add_u32 v13, v1, 3, s26
        v_and_b32 v14, 1, v6
        v_mul_u32_u24 v14, 24, v14
        v_add_u32 v14, v14, v12
        """)
        for i in range(4 * ND): a(f"v_mov_b32 v{ACA+i}, 0")
        def reads(st, ph="b"):
            r = []
            for kk in range(2):
                b = SETS[st] + KS * kk
                if ph == "a": r += [(f"ds_read_b64 {v(b,2)}, v13 offset:{kk*4096}", (kk, "b0")), (f"ds_read_b64 {v(b+2,2)}, v13 offset:{kk*4096+512}", (kk, "b1"))]
                else: r += [(f"ds_read_b64_tr_b16 {v(b,2)}, v8 offset:{kk*4096}", (kk, "b0")), (f"ds_read_b64_tr_b16 {v(b+2,2)}, v8 offset:{kk*4096+2048}", (kk, "b1"))]
                r += [(f"ds_read_b128 {v(b+4+4*dt,4)}, v9 offset:{(kk*ND+dt)*1024}", (kk, dt)) for dt in range(ND)]
            return r
        def mf(acc, st):
            return [(f"v_mfma_f32_16x16x32_bf16 {v(acc+4*dt,4)}, {v(SETS[st]+KS*kk+4+4*dt,4)}, {v(SETS[st]+KS*kk,4)}, {v(acc+4*dt,4)}", {(kk, "b1"), (kk, dt)}) for kk in range(2) for dt in range(ND)]
        ids = [x[1] for x in reads(0)]
        adv = slot_adv(s.SLOT, s.S) + ["v_add_u32 v8, s40, v8", "v_add_u32 v9, s40, v9"]
        a("s_mov_b32 s33, 0\ns_mov_b32 s37, 0\ns_barrier"); stamp(a, 5, True)
        adva = adv + ["v_add_u32 v13, s40, v13"]
        emit_step(a, [], [], reads(0, "a"), adva)
        a.label(f"{L}_ca", 3)
        a("s_barrier")
        emit_step(a, mf(ACA, 0), ids, reads(1, "a"), adva + ["s_add_u32 s33, s33, 2", "s_cmp_ge_u32 s33, 10"])
        a(f"s_barrier\ns_cbranch_scc1 {L}_cax")
        emit_step(a, mf(ACA, 1), ids, reads(0, "a"), adva)
        a(f"s_branch {L}_ca")
        a.label(f"{L}_cax")
        emit_step(a, mf(ACA, 1), ids, reads(0, "b"), adv)
        a(f"s_waitcnt vmcnt(0)\nbuffer_load_dwordx2 v[6:7], v4, s[8:11], 0 offen {SC}\nv_lshlrev_b32 v10, 16, v10")
        for i in range(4 * ND): a(f"v_mov_b32 v{ACB+i}, v10")
        a.label(f"{L}_cb", 3)
        a("s_barrier")
        emit_step(a, mf(ACB, 0), ids, reads(1), adv + ["s_add_u32 s33, s33, 2", "s_cmp_ge_u32 s33, 34"])
        a(f"s_cbranch_scc1 {L}_clast\ns_barrier")
        emit_step(a, mf(ACB, 1), ids, reads(0), adv)
        a(f"s_branch {L}_cb")
        a.label(f"{L}_clast")
        emit_step(a, mf(ACB, 1), ids, [], [])
        stamp(a, 6)
        a(f"""
        s_mov_b32 s49, 0
        {L}_g:
        s_waitcnt vmcnt(0)
        v_cmp_ne_u32 vcc, s48, v7
        s_add_u32 s49, s49, 1
        s_cmp_eq_u64 vcc, 0
        s_cbranch_scc1 {L}_gk
        buffer_load_dwordx2 v[6:7], v4, s[8:11], 0 offen {SC}
        s_cmp_lt_u32 s49, 20000
        s_cbranch_scc1 {L}_g
        s_waitcnt vmcnt(0)
        {L}_gk:
        """)
        aux = 'sc1' if opt('osc1') else ''; O = SETS[0]
        for dt in range(ND):
            for r in range(0, 4, 2): a(f"v_pk_add_f32 {v(ACA+4*dt+r,2)}, {v(ACA+4*dt+r,2)}, {v(ACB+4*dt+r,2)} neg_lo:[0,1] neg_hi:[0,1]")
            for r in range(0, 4, 2): a(f"v_pk_fma_f32 {v(ACB+4*dt+r,2)}, {v(ACA+4*dt+r,2)}, v[6:7], {v(ACB+4*dt+r,2)} op_sel_hi:[1,0,1]")
            a(f"v_cvt_pk_bf16_f32 v{O+2*dt}, v{ACB+4*dt}, v{ACB+4*dt+1}\nv_cvt_pk_bf16_f32 v{O+1+2*dt}, v{ACB+4*dt+2}, v{ACB+4*dt+3}")
            if dt & 1:
                b = O + 2 * (dt - 1)
                a(f"v_permlane16_swap_b32 v{b}, v{b+2}\nv_permlane16_swap_b32 v{b+1}, v{b+3}\nbuffer_store_dwordx4 {v(b,4)}, v14, s[28:31], 0 offen offset:{32*(dt-1)} {aux}")
            elif dt == ND - 1: a(f"buffer_store_dwordx2 {v(O+2*dt,2)}, v12, s[28:31], 0 offen offset:{32*dt} {aux}")
        endp(a)
    def consumer(s, a):
        if s.ND % 2: return s.consumer1(a)
        ND = s.ND; NH = ND // 2; L = f"Lp2{s.tag}"
        ACB = 20; ACA = ACB + 8 * NH; KS = 8 + 4 * NH; SETS = (ACA + 8 * NH, ACA + 8 * NH + 2 * KS)
        a(f"""
        s_load_dwordx2 s[24:25], s[0:1], {KA['b2']}
        s_load_dwordx2 s[28:29], s[0:1], {KA['out']}
        s_and_b32 s27, s3, 2
        s_lshl_b32 s23, s50, 6
        s_lshl_b32 s26, s27, 4
        s_add_u32 s23, s23, s26
        v_and_b32 v2, 15, v1
        v_add_u32 v2, s23, v2
        v_lshlrev_b32 v3, 1, v2
        v_lshlrev_b32 v4, 3, v2
        s_and_b32 s22, s3, 1
        s_mul_i32 s22, s22, {NH}
        v_lshrrev_b32 v5, 2, v1
        v_lshrrev_b32 v6, 1, v5
        v_and_b32 v6, 3, v6
        v_xor_b32 v6, s27, v6
        v_lshlrev_b32 v6, 5, v6
        v_lshl_add_u32 v5, v5, 7, v6
        v_and_b32 v6, 3, v1
        v_lshl_add_u32 v8, v6, 3, v5
        v_xor_b32 v15, 32, v8
        s_lshl_b32 s23, s22, 10
        s_add_u32 s23, s23, 8192
        v_lshl_add_u32 v9, v1, 4, s23
        s_lshl_b32 s23, s27, 10
        v_lshl_add_u32 v13, v1, 3, s23
        v_mul_u32_u24 v12, 1280, v2
        v_lshrrev_b32 v6, 4, v1
        v_lshl_add_u32 v12, v6, 3, v12
        s_add_u32 s23, s22, s51
        s_lshl_b32 s23, s23, 5
        v_add_u32 v12, s23, v12
        v_and_b32 v14, 1, v6
        v_mul_u32_u24 v14, 24, v14
        v_add_u32 v14, v14, v12
        s_waitcnt lgkmcnt(0)
        """)
        srd(a, 24, 24, 4096); srd(a, 8, 20, G_SZ, G_OFF); srd(a, 28, 28, S_ * 1280)
        a("buffer_load_ushort v10, v3, s[24:27], 0 offen\nbuffer_load_ushort v11, v3, s[24:27], 0 offen offset:32\ns_setprio 0")
        for i in range(8 * NH): a(f"v_mov_b32 v{ACA+i}, 0")
        def reads(st, ph="b"):
            r = []
            for kk in range(2):
                b = SETS[st] + KS * kk
                def bread(t):
                    if ph == "a": return [(f"ds_read_b64 {v(b+4*t+2*h,2)}, v13 offset:{kk*4096+1024*t+512*h}", (kk, "b", t, h)) for h in range(2)]
                    return [(f"ds_read_b64_tr_b16 {v(b+4*t+2*h,2)}, v{(8, 15)[t]} offset:{kk*4096+2048*h}", (kk, "b", t, h)) for h in range(2)]
                r += bread(0) + [(f"ds_read_b128 {v(b+8+4*dt,4)}, v9 offset:{(kk*ND+dt)*1024}", (kk, dt)) for dt in range(NH)] + bread(1)
            return r
        def mf(acc, st):
            return [(f"v_mfma_f32_16x16x32_bf16 {v(acc+4*(NH*t+dt),4)}, {v(SETS[st]+KS*kk+8+4*dt,4)}, {v(SETS[st]+KS*kk+4*t,4)}, {v(acc+4*(NH*t+dt),4)}", {(kk, "b", t, 1), (kk, dt)})
                    for kk in range(2) for t in range(2) for dt in range(NH)]
        ids = [x[1] for x in reads(0)]
        adv = slot_adv(s.SLOT, s.S) + ["v_add_u32 v8, s40, v8", "v_add_u32 v15, s40, v15", "v_add_u32 v9, s40, v9"]
        a("s_mov_b32 s33, 0\ns_mov_b32 s37, 0\ns_barrier"); stamp(a, 5, True)
        adva = adv + ["v_add_u32 v13, s40, v13"]
        emit_step(a, [], [], reads(0, "a"), adva)
        a.label(f"{L}_ca", 3)
        a("s_barrier")
        emit_step(a, mf(ACA, 0), ids, reads(1, "a"), adva + ["s_add_u32 s33, s33, 2", "s_cmp_ge_u32 s33, 10"])
        a(f"s_barrier\ns_cbranch_scc1 {L}_cax")
        emit_step(a, mf(ACA, 1), ids, reads(0, "a"), adva)
        a(f"s_branch {L}_ca")
        a.label(f"{L}_cax")
        emit_step(a, mf(ACA, 1), ids, reads(0, "b"), adv)
        gl = f"buffer_load_dwordx2 v[16:17], v4, s[8:11], 0 offen {SC}\nbuffer_load_dwordx2 v[18:19], v4, s[8:11], 0 offen offset:128 {SC}"
        a(f"s_waitcnt vmcnt(0)\n{gl}\nv_lshlrev_b32 v10, 16, v10\nv_lshlrev_b32 v11, 16, v11")
        for i in range(8 * NH): a(f"v_mov_b32 v{ACB+i}, v{10 + i // (4 * NH)}")
        a.label(f"{L}_cb", 3)
        a("s_barrier")
        emit_step(a, mf(ACB, 0), ids, reads(1), adv + ["s_add_u32 s33, s33, 2", "s_cmp_ge_u32 s33, 34"])
        a(f"s_cbranch_scc1 {L}_clast\ns_barrier")
        emit_step(a, mf(ACB, 1), ids, reads(0), adv)
        a(f"s_branch {L}_cb")
        a.label(f"{L}_clast")
        emit_step(a, mf(ACB, 1), ids, [], [])
        stamp(a, 6)
        a(f"""
        s_mov_b32 s49, 0
        s_mov_b32 s22, {16*1280}
        {L}_g:
        s_waitcnt vmcnt(0)
        v_cmp_ne_u32 vcc, s48, v17
        v_cmp_ne_u32 s[26:27], s48, v19
        s_add_u32 s49, s49, 1
        s_or_b64 vcc, vcc, s[26:27]
        s_cbranch_scc0 {L}_gk
        {gl}
        s_cmp_lt_u32 s49, 20000
        s_cbranch_scc1 {L}_g
        s_waitcnt vmcnt(0)
        {L}_gk:
        """)
        O = SETS[0]
        for t in range(2):
            so = "s22" if t else "0"
            for dt in range(NH):
                x = 4 * (NH * t + dt); o = O + 8 * t + 2 * dt
                for r in (0, 2): a(f"v_pk_add_f32 {v(ACA+x+r,2)}, {v(ACA+x+r,2)}, {v(ACB+x+r,2)} neg_lo:[0,1] neg_hi:[0,1]")
                for r in (0, 2): a(f"v_pk_fma_f32 {v(ACB+x+r,2)}, {v(ACA+x+r,2)}, {v(16+2*t,2)}, {v(ACB+x+r,2)} op_sel_hi:[1,0,1]")
                a(f"v_cvt_pk_bf16_f32 v{o}, v{ACB+x}, v{ACB+x+1}\nv_cvt_pk_bf16_f32 v{o+1}, v{ACB+x+2}, v{ACB+x+3}")
                if dt == 1:
                    b = o - 2
                    a(f"v_permlane16_swap_b32 v{b}, v{b+2}\nv_permlane16_swap_b32 v{b+1}, v{b+3}\nbuffer_store_dwordx4 {v(b,4)}, v14, s[28:31], {so} offen {'nt' if opt('ont') else ''}")
                elif dt == 2: a(f"buffer_store_dwordx2 {v(o,2)}, v12, s[28:31], {so} offen offset:64 {'nt' if opt('ont') else ''}")
        endp(a)

def gen_main(a, name):
    kernel_head(a, name)
    if PROF:
        for i in range(1, 8): a(f"s_mov_b64 s[{70+2*i}:{71+2*i}], 0")
        stamp(a, 0); a("s_memtime s[66:67]")
    a(f"""
    s_cmp_ge_u32 s2, 256
    s_cbranch_scc1 Lend
    {"s_and_b32 s22, s2, 7" + chr(10) + "s_lshl_b32 s22, s22, 5" + chr(10) + "s_lshr_b32 s2, s2, 3" + chr(10) + "s_or_b32 s2, s2, s22" if opt("perm") else ""}
    s_load_dwordx2 s[20:21], s[0:1], {KA['ws']}
    v_lshrrev_b32 v1, 6, v0
    v_readfirstlane_b32 s3, v1
    v_and_b32 v1, 63, v0
    {"s_and_b32 s52, s2, 3" + chr(10) + "s_lshl_b32 s52, s52, 1" + chr(10) + "s_bfe_u32 s53, s2, 0x10002" + chr(10) + "s_or_b32 s52, s52, s53" if opt("lo") else "s_and_b32 s52, s2, 7"}
    s_lshr_b32 s53, s2, 3
    s_lshr_b32 s22, s52, 1
    s_lshl_b32 s50, s22, 3
    s_and_b32 s23, s53, 7
    s_add_u32 s50, s50, s23
    s_lshr_b32 s26, s53, 3
    """)
    if PROF: a("s_mov_b32 s69, s3")
    NG = 15 if opt("mixed") else 30
    a("s_cmp_ge_u32 s53, 16\ns_cbranch_scc1 Lrole_qa" if opt("mixed") else "s_bitcmp1_b32 s52, 0\ns_cbranch_scc1 Lrole_qa")
    PE, PO = P2(0), P2(1)
    MX = opt("mix", 0)
    a(f"s_and_b32 s54, s23, {MX}\ns_cselect_b32 s51, 5, {PE.ND}\ns_mul_i32 s51, s51, s26")
    a(f"""
    {"s_lshl_b32 s19, s52, 4" if opt("mixed") else "s_lshl_b32 s19, s22, 5"}
    s_add_u32 s19, s19, s53
    s_mul_i32 s17, s53, 86
    s_lshr_b32 s17, s17, 8
    s_mul_i32 s23, s17, 3
    s_sub_u32 s23, s53, s23
    s_mul_i32 s16, s22, 3
    s_add_u32 s16, s16, s23
    """)
    if opt("mixed"): a("s_and_b32 s26, s52, 1\ns_mul_i32 s26, s26, 5\ns_add_u32 s17, s17, s26")
    if opt("sweep"): a("s_mov_b32 s18, 0")
    else: a("s_mul_i32 s18, s17, 205\ns_lshr_b32 s18, s18, 6")
    a("s_cmp_ge_u32 s3, 4\ns_cbranch_scc1 Lg_cons\ns_setprio 1\ns_cmp_ge_u32 s3, 2\ns_cbranch_scc1 Lg_h")
    def flags():
        a(f"s_waitcnt lgkmcnt(0)"); srd(a, 44, 20, FL_SZ, FL_OFF); a(f"s_load_dword s48, s[44:45], {FZ}")
    a(f"s_load_dwordx2 s[4:5], s[0:1], {KA['w1']}"); flags()
    a(f"s_cmp_ge_u32 s53, {NG}\ns_cbranch_scc1 Lsp_w")
    a("; ---- even slots, waves 0-1: w1 tiles"); g1_loader_w(a)
    a.label("Lsp_w"); a("; ---- spare workgroups, waves 0-3: wo -> fragments")
    if opt("sweep"): w1_sweep(a)
    else: a("s_barrier"); tag_ready(a); a("s_barrier")
    a.label("Lsp_l"); a("s_mov_b32 s16, s52" if opt("mixed") else "s_lshr_b32 s16, s52, 1\ns_lshl_b32 s16, s16, 1\ns_add_u32 s16, s16, s53\ns_sub_u32 s16, s16, 30"); spare_loader(a)
    a("s_cmp_ge_u32 s3, 2\ns_cbranch_scc1 Lp2_d0\ns_branch Lp2_s0")
    a.label("Lg_h"); code_prefetch(a)
    if opt("mixed"):
        a(f"s_load_dwordx2 s[4:5], s[0:1], {KA['w1']}"); flags(); w1_sweep(a)
        a("s_cmp_ge_u32 s53, 15\ns_cbranch_scc1 Lsp_l")
    else:
        if opt("wsw"):
            a(f"s_load_dwordx2 s[8:9], s[0:1], {KA['wqkv']}")
        flags()
        if opt("wsw"):
            a("s_lshl_b32 s22, s19, 1\ns_add_u32 s22, s22, s3\ns_sub_u32 s22, s22, 2\ns_mul_i32 s23, s22, 11\ns_add_u32 s23, s23, 16384\ns_lshl_b32 s23, s23, 7\ns_lshl_b32 s22, s22, 13\nv_lshlrev_b32 v2, 7, v1")
            srd(a, 8, 8, 640 * 3840)
        if opt("wsw") == 2: a("s_barrier")
        if opt("wsw"): a("buffer_load_dword v40, v2, s[8:11], s22 offen\ns_mov_b64 exec, 0x7ff\nbuffer_load_dword v41, v2, s[8:11], s23 offen\ns_mov_b64 exec, -1")
        if opt("wsw") != 2: a("s_barrier")
        a("s_cmp_lt_u32 s53, 30\ns_cbranch_scc1 Lg_h2"); tag_ready(a); a("s_barrier\ns_branch Lsp_l")
    a.label("Lg_h2"); a("; ---- even slots, waves 2-3: h tiles"); g1_loader_h(a)
    a.label("Lg_cons"); a("; ---- even slots, waves 4-7: layernorm, then the first MLP GEMM")
    a(f"s_setprio 2\ns_load_dwordx2 s[4:5], s[0:1], {KA['x']}\ns_load_dwordx2 s[8:9], s[0:1], {KA['gw']}\ns_sub_u32 s3, s3, 4")
    ln_issue(a)
    srd(a, 44, 20, FL_SZ, FL_OFF)
    a(f"v_mov_b32 v2, {CTR}\nv_mov_b32 v6, 0\nv_mov_b32 v7, 0\nv_mov_b32 v8, 0\nv_mov_b32 v9, 0\nds_write_b128 v2, v[6:9]\ns_waitcnt lgkmcnt(0)\ns_barrier\ns_load_dword s48, s[44:45], {FZ}")
    ln_finish(a); stamp(a, 1, True)
    a(f"s_cmp_ge_u32 s53, {NG}\ns_cbranch_scc1 Lsp_cons")
    g1_consumer(a); a("s_branch Lp2_c0")
    a.label("Lsp_cons")
    if (opt("sweep") and not opt("noslowcol")):
        R0, SW = opt("sc0", 1024), opt("scw", 1)
        a(f"""
        s_load_dwordx2 s[4:5], s[0:1], {KA['w1']}
        s_lshr_b32 s22, s52, 1
        s_cmp_eq_u32 s22, 2
        s_cselect_b32 s23, 4, s3
        s_cmp_ge_u32 s23, {SW}
        s_cbranch_scc1 Lsc_done
        s_min_u32 s22, s22, 2
        s_lshl_b32 s22, s22, 10
        s_add_u32 s22, s22, {384 + R0 * 3072}
        s_and_b32 s23, s53, 1
        s_mul_i32 s23, s23, {SW}
        s_add_u32 s23, s23, s3
        s_lshl_b32 s23, s23, 6
        v_add_u32 v2, s23, v1
        v_mul_u32_u24 v2, 3072, v2
        s_mov_b32 s33, 0
        s_waitcnt lgkmcnt(0)
        """)
        srd(a, 4, 4, S_ * 3072)
        a(f"Lsc_l:\nbuffer_load_dword v3, v2, s[4:7], s22 offen\ns_add_u32 s22, s22, {128*SW*3072}\ns_add_u32 s33, s33, 1\ns_cmp_lt_u32 s33, {-(-(2048-R0)//(128*SW))}\ns_waitcnt vmcnt(0)\ns_cbranch_scc1 Lsc_l\nLsc_done:\ns_waitcnt lgkmcnt(0)")
    a("s_barrier")
    nw, r0, nr = opt("cw", 2), opt("cr0", 384), opt("cnr", 768)
    if nw:
        a(f"""
        s_cmp_ge_u32 s3, {nw}
        s_cbranch_scc1 Lc3_d
        s_load_dwordx2 s[12:13], s[0:1], {KA['w2']}
        s_lshr_b32 s22, s50, 1
        s_lshl_b32 s22, s22, 11
        s_add_u32 s22, s22, {F2}
        v_mov_b32 v12, s22
        """)
        gate(a, 12, 1)
        a(f"""
        s_and_b32 s22, s53, 1
        s_mul_i32 s22, s22, {nw}
        s_add_u32 s22, s22, s3
        s_lshl_b32 s22, s22, 6
        v_add_u32 v2, s22, v1
        v_lshlrev_b32 v2, 12, v2
        s_lshr_b32 s22, s52, 1
        s_lshl_b32 s22, s22, 10
        s_add_u32 s22, s22, {384 + r0 * 4096}
        s_mov_b32 s33, 0
        s_waitcnt lgkmcnt(0)
        """)
        srd(a, 12, 12, F_ * 4096)
        a(f"Lc3_l:\nbuffer_load_dword v30, v2, s[12:15], s22 offen\ns_add_u32 s22, s22, {128*nw*4096}\ns_add_u32 s33, s33, 1\ns_cmp_lt_u32 s33, {nr//(128*nw)}\ns_waitcnt vmcnt(0)\ns_cbranch_scc1 Lc3_l\nLc3_d:")
    a("s_lshl_b32 s22, s3, 8\ns_add_u32 s22, s22, s2\ns_cmp_lg_u32 s22, 240\ns_cbranch_scc1 Lp2_c0"); step_tag(a); a("s_branch Lp2_c0")
    a.label("Lrole_qa"); a("; ---- odd slots: qkv projection + attention")
    a(f"s_and_b32 s54, s23, {MX}\ns_cselect_b32 s51, 5, {PO.ND}\ns_cselect_b32 s27, 20, {4*PE.ND}\ns_mul_i32 s51, s51, s26\ns_add_u32 s51, s51, s27")
    if opt("mixed"): a("s_and_b32 s23, s53, 3\ns_lshl_b32 s16, s22, 2\ns_add_u32 s16, s16, s23\ns_lshr_b32 s26, s53, 2\ns_and_b32 s26, s26, 3\ns_and_b32 s17, s52, 1\ns_lshl_b32 s17, s17, 2\ns_add_u32 s17, s17, s26")
    else: a(f"""
    s_and_b32 s16, s22, 1
    s_lshl_b32 s16, s16, 3
    s_add_u32 s16, s16, s23
    s_lshr_b32 s17, s22, 1
    s_lshl_b32 s17, s17, 2
    s_add_u32 s17, s17, s26
    """)
    if opt("nsq"): a("s_mov_b32 s18, 0")
    elif not opt("q8") and not opt("q4"): a("s_xor_b32 s18, s26, s23\ns_and_b32 s18, s18, 1\ns_mul_i32 s18, s18, 5")
    elif opt("q4"): a("s_add_u32 s18, s26, s23\ns_and_b32 s18, s18, 3\ns_mul_i32 s18, s18, 5\ns_lshr_b32 s18, s18, 1")
    elif opt("mixed"): a("s_add_u32 s18, s26, s23\ns_and_b32 s18, s18, 3\ns_mul_i32 s18, s18, 10\ns_lshr_b32 s18, s18, 2")
    else: a("s_lshl_b32 s18, s26, 1\ns_add_u32 s18, s18, s23\ns_and_b32 s18, s18, 7\ns_mul_i32 s18, s18, 10\ns_lshr_b32 s18, s18, 3")
    a(f"s_cmp_ge_u32 s3, 4\ns_cbranch_scc1 Lq_cons\ns_setprio 1\ns_cmp_eq_u32 s3, 3\ns_cbranch_scc1 Lq_idle")
    a(f"s_load_dwordx2 s[4:5], s[0:1], {KA['x']}\ns_load_dwordx2 s[8:9], s[0:1], {KA['wqkv']}"); qa_w1_sweep(a); flags(); qa_loader(a)
    a("s_cmp_ge_u32 s3, 2\ns_cbranch_scc1 Lp2_d1\ns_branch Lp2_s1")
    a.label("Lq_idle"); a(f"s_load_dwordx2 s[4:5], s[0:1], {KA['x']}\ns_load_dwordx2 s[8:9], s[0:1], {KA['wqkv']}"); flags(); qa_idle(a); a("s_branch Lp2_d1")
    a.label("Lq_cons"); a("s_sub_u32 s3, s3, 4"); flags()
    qa_consumer(a)
    for p in (PO, PE):
        for k, f in (("c", P2.consumer), ("s", P2.loader_s), ("d", P2.loader_d)):
            a.label(f"Lp2_{k}{p.par}"); a(f"; ---- output tile 64 x {16*p.ND}: " + dict(c="MFMA waves", s="loader of o / w2", d="loader of wo / u")[k])
            if MX: a(f"s_cmp_lg_u32 s54, 0\ns_cbranch_scc1 Lp2_{k}{p.par}x")
            f(p, a)
            if MX: a.label(f"Lp2_{k}{p.par}x"); f(P2(p.par, 5), a)
    a.label("Lend"); a("s_endpgm")
    a.raw("Lcode_end:")
    return kernel_desc(name, 256, 102)

def gen_osc(a, name):
    kernel_head(a, name)
    o = next(o for o in OPTS if o.startswith("osc"))[3:].split("_")
    a(f"s_cmp_ge_u32 s2, 1\ns_cbranch_scc1 Losc_end\ns_load_dwordx2 s[4:5], s[0:1], {KA['ws']}\ns_waitcnt lgkmcnt(0)")
    srd(a, 4, 4, 0x100000, TL_OFF + (0x80000 if opt("pthr") else 0x40000))
    def red(dst, base, stride, count, wave, slot, op):
        n = -(-count // 64)
        for i in range(n):
            a(f"v_add_u32 v1, {64*i}, v0\nv_min_u32 v1, {count-1}, v1\nv_mul_u32_u24 v1, {stride}, v1\nv_add_u32 v1, {base}, v1\nv_lshlrev_b32 v1, 9, v1\ns_mov_b32 s8, {wave*64 + slot*4}")
            a(f"buffer_load_dword v{4+i}, v1, s[4:7], s8 offen")
        a("s_waitcnt vmcnt(0)")
        if op == "add":
            for i in range(n): a(f"v_subrev_u32 v{4+i}, s20, v{4+i}")
        for i in range(1, n): a(f"v_{op}_u32 v4, v4, v{4+i}")
        a(f"v_readlane_b32 s{dst}, v4, 0")
        for i in range(1, 64): a(f"v_readlane_b32 s9, v4, {i}\ns_nop 0\ns_{op}_u32 s{dst}, s{dst}, s9")
        if op == "add": a(f"s_lshr_b32 s{dst}, s{dst}, {(64*n).bit_length()-1}\ns_add_u32 s{dst}, s{dst}, s20")
    red(20, 0, 1, 256, 0, 0, "min")
    if len(o) > 1:
        red(21, int(o[0]), int(o[1]), int(o[2]), int(o[3]), int(o[4]), dict(n="min", x="max", a="add")[o[5]])
        a("s_sub_u32 s21, s21, s20\ns_min_u32 s21, s21, 20000\ns_lshl_b32 s21, s21, 2")
    else: a("s_mov_b32 s21, 0")
    a("s_add_u32 s21, s21, 10000\nLosc_spin:\ns_memrealtime s[10:11]\ns_waitcnt lgkmcnt(0)\ns_sub_u32 s10, s10, s20\ns_cmp_lt_u32 s10, s21\ns_cbranch_scc1 Losc_spin")
    a.label("Losc_end"); a("s_endpgm")
    return kernel_desc(name, 16, 32)

def gen_probe(a, name, vg):
    kernel_head(a, name)
    a(f"s_memrealtime s[70:71]\ns_cmp_ge_u32 s2, 256\ns_cbranch_scc1 Lpr_end\ns_load_dwordx2 s[4:5], s[0:1], {KA['ws']}\ns_waitcnt lgkmcnt(0)")
    srd(a, 4, 4, 0x100000, TL_OFF + 0x80000)
    a("s_lshl_b32 s8, s2, 9\nv_mov_b32 v1, s8\nv_mov_b32 v2, s70\nv_cmp_eq_u32 vcc, 0, v0\ns_and_saveexec_b64 s[10:11], vcc\ns_cbranch_execz Lpr_end\nbuffer_store_dword v2, v1, s[4:7], 0 offen")
    a.label("Lpr_end"); a("s_endpgm")
    return kernel_desc(name, vg, 102)

DOC = """;
; waves 4-7 read fragments and run v_mfma_f32_16x16x32_bf16; one s_barrier per K step).  id&7 picks the role; that
; Hand-offs through d_ws: write-through (sc1) stores, s_waitcnt vmcnt(0) in every storing wave, then one flag per
;"""

def build(spec=""):
    global PROF
    OPTS[:] = [o for o in spec.split("+") if o]; PROF = bool(opt("prof")); UID[0] = 0
    ref = open(f"cdna_kernels/{NAME}.s.ref").read().split("\n")
    head = ref[:ref.index(next(x for x in ref if x.startswith("; Override")))]
    a = Asm(); a.raw("\n".join(head))
    if opt("lo"): a.raw("; lo")
    osc = any(o.startswith("osc") and o != "osc1" for o in OPTS)
    if opt("pthr"): a.raw(f"; @launch kernel=probe_kernel grid=(256,1,1) block=({opt('pthr')},1,1) lds={opt('plds', 0)}")
    if osc: a.raw(f"; @launch kernel={NAME}_kernel grid=(256,1,1) block=(512,1,1) lds={LDS_SZ}\n; @launch kernel=osc_kernel grid=(1,1,1) block=(64,1,1) lds=0")
    else: a.raw(f"; @launch grid=(256,1,1) block=(512,1,1) lds={LDS_SZ}")
    a.raw(DOC)
    a.raw('.amdgcn_target "amdgcn-amd-amdhsa--gfx950"')
    d = gen_main(a, NAME + "_kernel")
    if osc: d += gen_osc(a, "osc_kernel")
    if opt("pthr"): d += gen_probe(a, "probe_kernel", opt("pvg"))
    if opt("nocomp"): a.lines = [(t, c) for t, c in a.lines if not (c is not None and (c.kind == "mfma" or c.op.startswith("ds_read")))]
    if opt("noload"): a.lines = [(t, c) for t, c in a.lines if not (c is not None and c.kind == "vmem" and c.lds)]
    if opt("nomfma"): a.lines = [(t, c) for t, c in a.lines if not (c is not None and c.kind == "mfma")]
    if opt("nods"): a.lines = [(t, c) for t, c in a.lines if not (c is not None and c.op.startswith("ds_read"))]
    if opt("nowait"): a.lines = [(t, c) for t, c in a.lines if not (c is not None and c.op == "s_waitcnt" and "lgkm" in t and "(0)" not in t)]
    if opt("al"): a.align_hot([("Lg1_c", "Lg1_clast"), ("Lp2_ca", "Lp2_cax"), ("Lp2_cb", "Lp2_clast")])
    if opt("lp") is not None: a.lines = [((t.replace("s_setprio 1", f"s_setprio {opt('lp')}"), c) if c is not None and c.op == "s_setprio" else (t, c)) for t, c in a.lines]
    bad = a.check_branches()
    for b in bad: print("HAZARD across branch:", b, file=sys.stderr)
    assert not bad
    a.raw(d)
    return a.text()

if __name__ == "__main__":
    open(sys.argv[2] if len(sys.argv) > 2 else f"cdna_kernels/{NAME}.s", "w").write(build(sys.argv[1] if len(sys.argv) > 1 else ""))
```

```python
import sys, struct
from dsl import *

NAME = "gated_mix__sliding_local_dilated__mixer_token_mlp__prompt"
S_, D_, F_ = 2048, 640, 1536
KA = dict(x=0, wqkv=8, wo=16, w1=32, b1=40, w2=48, b2=56, gw=64, out=72, dbg=80, ws=88)
H_OFF, OT_OFF, UW_OFF, G_OFF, FL_OFF = 0, 0x280000, 0x500000, 0x800000, 0x810000
H_SZ, OT_SZ, UW_SZ, G_SZ, FL_SZ = 2621440, 2621440, 40 * 68 * 1024, 16384, 0x70000
F1, F2, F4, FZ, F3 = 0, 0x20000, 0x28000, 0x40000, 0x50000
RING = 163840; CTR = RING - 64; LDS_SZ = RING
LOG2E = 1.4426950408889634
OPTS = []; PROF = False; TL_OFF = 0x1000000
SC = "sc1"
def f2u(x): return "0x%08x" % struct.unpack("<I", struct.pack("<f", x))[0]
def v(n, k=1): return f"v{n}" if k == 1 else f"v[{n}:{n+k-1}]"
def opt(name, default=None):
    for o in OPTS:
        if o == name: return True
        if o.startswith(name + "="): return int(o.split("=")[1])
    return default

def srd(a, d, base, size, off=0):
    if off: a(f"s_add_u32 s{d}, s{base}, {off}\ns_addc_u32 s{d+1}, s{base+1}, 0")
    elif d != base: a(f"s_mov_b32 s{d}, s{base}\ns_mov_b32 s{d+1}, s{base+1}")
    a(f"s_mov_b32 s{d+2}, {size}\ns_mov_b32 s{d+3}, 0x20000")

def estamp(a, i):
    if PROF and opt("early"): a(f"s_memrealtime s[{70+2*i}:{71+2*i}]\ns_waitcnt lgkmcnt(0)")
def lstamp(a, i):
    if PROF and opt("late"): a(f"s_memrealtime s[{70+2*i}:{71+2*i}]\ns_waitcnt lgkmcnt(0)")
def stamp(a, i, wait=False):
    if PROF and opt("clk"):
        k = {2: 1, 3: 3, 6: 5}.get(i)
        if i == 0: a("s_memrealtime s[70:71]")
        elif k and (wait or i == 6): a(f"s_memrealtime s[{70+2*k}:{71+2*k}]\ns_memtime s[{72+2*k}:{73+2*k}]\ns_waitcnt lgkmcnt(0)")
        return
    if PROF and (i == 0 or not (opt("early") or opt("late"))): a(f"s_memrealtime s[{70+2*i}:{71+2*i}]" + ("\ns_waitcnt lgkmcnt(0)" if wait else ""))
def endp(a):
    if PROF:
        a(f"""
        s_waitcnt vmcnt(0)
        s_memrealtime s[84:85]
        s_memtime s[86:87]
        s_waitcnt lgkmcnt(0)
        s_sub_u32 s86, s86, s66
        s_add_u32 s60, s20, {TL_OFF + 0x40000}
        s_addc_u32 s61, s21, 0
        s_mov_b32 s62, 0x40000
        s_mov_b32 s63, 0x20000
        s_mov_b64 exec, 1
        s_lshl_b32 s64, s2, 3
        s_add_u32 s64, s64, s69
        s_lshl_b32 s64, s64, 6
        v_mov_b32 v0, s64
        """)
        for i in range(8): a(f"v_mov_b32 v{4+i}, s{70+2*i}")
        a("v_mov_b32 v12, s86")
        a("buffer_store_dwordx4 v[4:7], v0, s[60:63], 0 offen\nbuffer_store_dwordx4 v[8:11], v0, s[60:63], 0 offen offset:16\nbuffer_store_dword v12, v0, s[60:63], 0 offen offset:32")
    a("s_endpgm")

def emit_step(a, M, prev_ids, R, extra, per_gap=2, head=2):
    q = list(prev_ids); fill = [("r", x) for x in R] + [("x", x) for x in extra]
    def put(n):
        for _ in range(n):
            if not fill: return
            k, x = fill.pop(0)
            if k == "r": a(x[0]); q.append(("n", x[1]))
            else: a(x)
    put(head)
    w1 = opt("w1", 1)
    if w1 and M and R and prev_ids:
        if w1 == 1: M = [(M[0][0], set(prev_ids))] + M[1:]
        else: h = len(M) // 2; M = [(M[0][0], set().union(*[m[1] for m in M[:h]]))] + M[1:h] + [(M[h][0], set(prev_ids))] + M[h+1:]
    for text, need_ in M:
        idx = [i for i, t in enumerate(q) if t in need_]
        if idx:
            n = min(len(q) - 1 - idx[-1], 15)
            a(f"s_waitcnt lgkmcnt({n})"); del q[:len(q) - n]
        a(text); put(per_gap)
    put(len(fill))

def slot_adv(SLOT, S):
    return [f"s_add_u32 s40, s37, {SLOT}", f"s_cmp_ge_u32 s40, {SLOT*S}", "s_cselect_b32 s41, 0, s40", "s_sub_u32 s40, s41, s37", "s_mov_b32 s37, s41"]

def thr(name, default):
    t = opt("t" + name, default if opt("thr") else 0)
    return f"s_waitcnt vmcnt({t-1})\n" if t else ""
UID = [0]
def uid(p): UID[0] += 1; return f"{p}{UID[0]}"

def issue_n(a, n, issue):
    L = uid("Li")
    a(f"s_add_u32 s32, s33, {n}")
    a.label(L); issue()
    a(f"s_add_u32 s33, s33, 1\ns_cmp_lt_u32 s33, s32\ns_cbranch_scc1 {L}")
def steady(a, upto, n, ahead, issue):
    L = uid("Ls")
    a.label(L)
    a(f"s_waitcnt vmcnt({n*(ahead-1)})\ns_barrier"); issue()
    a(f"s_add_u32 s33, s33, 1\ns_cmp_lt_u32 s33, {upto}\ns_cbranch_scc1 {L}")
def drain(a, n, ahead):
    for k in range(ahead - 1, -1, -1): a(f"s_waitcnt vmcnt({n*k})\ns_barrier")

def publish(a, ctr, nw, vaddr, lanes, keep=0):
    L = uid("Lpub")
    a(f"""
    s_waitcnt vmcnt({keep})
    s_mov_b64 exec, 1
    v_mov_b32 v2, {CTR + ctr}
    v_mov_b32 v3, 1
    ds_add_rtn_u32 v3, v2, v3
    s_waitcnt lgkmcnt(0)
    v_readfirstlane_b32 s22, v3
    s_mov_b64 exec, {(1 << lanes) - 1}
    s_cmp_lg_u32 s22, {nw - 1}
    s_cbranch_scc1 {L}
    v_mov_b32 v3, s48
    buffer_store_dword v3, v{vaddr}, s[44:47], 0 offen {SC}
    """)
    a.label(L); a("s_mov_b64 exec, -1")
def gate(a, vaddr, mask, two=False, sl=None):
    sl = opt("slp", 8) if sl is None else sl
    L = uid("Lg"); slp = "s_sleep %d      ; back-off between two polls" % sl if sl else ""
    a(f"s_mov_b32 s49, 0\ns_mov_b32 exec_lo, {mask & 0xffffffff}\ns_mov_b32 exec_hi, {mask >> 32}")
    a.label(L)
    if two: a(f"buffer_load_dword v2, v{vaddr}, s[44:47], 0 offen {SC}\ns_mov_b32 s22, {two}\nbuffer_load_dword v3, v{vaddr}, s[44:47], s22 offen {SC}\ns_waitcnt vmcnt(0)\nv_xor_b32 v2, s48, v2\nv_xor_b32 v3, s48, v3\nv_or_b32 v2, v2, v3")
    else: a(f"buffer_load_dword v2, v{vaddr}, s[44:47], 0 offen {SC}\ns_waitcnt vmcnt(0)\nv_xor_b32 v2, s48, v2")
    a(f"v_cmp_ne_u32 vcc, 0, v2\ns_add_u32 s49, s49, 1\ns_cmp_eq_u64 vcc, 0\ns_cbranch_scc1 {L}d\n{slp}\ns_cmp_lt_u32 s49, 20000\ns_cbranch_scc1 {L}")
    a.label(L + "d"); a("s_mov_b64 exec, -1")
def lds_wait(a, ctr, n):
    L = uid("Lm")
    a(f"v_mov_b32 v2, {CTR + ctr}\ns_mov_b32 s49, 0\n{L}:\nds_read_b32 v3, v2\ns_add_u32 s49, s49, 1\ns_waitcnt lgkmcnt(0)\nv_readfirstlane_b32 s22, v3")
    a(f"s_cmp_ge_u32 s22, {n}\ns_cbranch_scc1 {L}d\ns_cmp_lt_u32 s49, 0x400000\ns_cbranch_scc1 {L}\n{L}d:")
def tag_ready(a):
    a("s_waitcnt lgkmcnt(0)\ns_mul_i32 s48, s48, 1664525\ns_add_u32 s48, s48, 1013904223")
def step_tag(a):
    a(f"v_lshlrev_b32 v12, 7, v1"); gate(a, 12, (1 << 64) - 1, two=8192)
    a(f"v_lshrrev_b32 v12, 3, v1\nv_lshlrev_b32 v12, 11, v12\nv_and_b32 v13, 7, v1\nv_lshl_add_u32 v12, v13, 7, v12\nv_add_u32 v12, {F2}, v12"); gate(a, 12, (1 << 64) - 1, two=16384)
    a(f"s_mov_b64 exec, 1\nv_mov_b32 v2, s48\nv_mov_b32 v3, {FZ}\nbuffer_store_dword v2, v3, s[44:47], 0 offen {SC}\ns_mov_b64 exec, -1")

def code_prefetch(a):
    if not opt("ncode"): return
    L = uid("Lpc")
    a(f"s_getpc_b64 s[30:31]\n{L}:\ns_sub_u32 s30, s30, {L}-{NAME}_kernel\ns_subb_u32 s31, s31, 0\nv_lshlrev_b32 v2, 7, v1")
    for i in range(opt("ncode", 0)):
        a(f"v_min_u32 v3, Lcode_end-{NAME}_kernel-4, v2\nglobal_load_dword v{40+i}, v3, s[30:31]\nv_add_u32 v2, 8192, v2")

def ln_issue(a):
    a(f"""
    s_lshl_b32 s22, s19, 4
    s_lshl_b32 s23, s3, 2
    s_add_u32 s22, s22, s23
    v_lshrrev_b32 v2, 4, v1
    v_add_u32 v10, s22, v2
    v_and_b32 v11, 15, v1
    v_lshlrev_b32 v4, 4, v11
    v_mul_u32_u24 v5, 1280, v10
    v_add_u32 v5, v5, v4
    s_waitcnt lgkmcnt(0)
    """)
    srd(a, 4, 4, H_SZ); srd(a, 8, 8, 1280)
    for i in range(5): a(f"buffer_load_dwordx4 {v(16+4*i,4)}, v5, s[4:7], 0 offen offset:{256*i}")
    for i in range(5): a(f"buffer_load_dwordx4 {v(36+4*i,4)}, v4, s[8:11], 0 offen offset:{256*i}")
def ln_finish(a):
    X, GW, U = 16, 36, 56
    srd(a, 4, 20, H_SZ, H_OFF); srd(a, 8, 20, G_SZ, G_OFF)
    a("s_mov_b32 s30, 0x3f803f80\ns_mov_b32 s31, 0xffff0000"); estamp(a, 1); a("s_waitcnt vmcnt(5)"); estamp(a, 2)
    a(f"v_dot2_f32_bf16 v6, v{X}, s30, 0\nv_dot2_f32_bf16 v8, v{X+1}, s30, 0")
    for i in range(2, 20): a(f"v_dot2_f32_bf16 v{6+2*(i&1)}, v{X+i}, s30, v{6+2*(i&1)}")
    for i in range(20): a(f"v_lshlrev_b32 v{U+2*i}, 16, v{X+i}\nv_and_b32 v{U+1+2*i}, s31, v{X+i}")
    def red(*rs):
        for sh in (8, 4, 2, 1):
            for r in rs: a(f"v_add_f32_dpp v{r}, v{r}, v{r} row_ror:{sh} row_mask:0xf bank_mask:0xf")
    a("v_add_f32 v6, v6, v8"); red(6)
    a(f"v_mul_f32 v6, {f2u(1/640)}, v6")
    for i in range(20): a(f"v_pk_add_f32 {v(U+2*i,2)}, {v(U+2*i,2)}, v[6:7] op_sel_hi:[1,0] neg_lo:[0,1] neg_hi:[0,1]")
    a(f"v_pk_mul_f32 v[12:13], {v(U,2)}, {v(U,2)}\nv_pk_mul_f32 v[14:15], {v(U+2,2)}, {v(U+2,2)}")
    for i in range(2, 20): a(f"v_pk_fma_f32 {v(12+2*(i&1),2)}, {v(U+2*i,2)}, {v(U+2*i,2)}, {v(12+2*(i&1),2)}")
    a("v_pk_add_f32 v[12:13], v[12:13], v[14:15]\nv_add_f32 v12, v12, v13")
    red(12)
    a(f"v_mov_b32 v8, {f2u(1e-5)}\nv_fmac_f32 v8, {f2u(1/640)}, v12\nv_rsq_f32 v12, v8")
    for j in range(5):
        for i in range(4*j, 4*j+4): a(f"v_pk_mul_f32 {v(U+2*i,2)}, {v(U+2*i,2)}, v[12:13] op_sel_hi:[1,0]")
        for i in range(4*j, 4*j+4): a(f"v_cvt_pk_bf16_f32 v{96+i}, v{U+2*i}, v{U+1+2*i}")
        a(f"buffer_store_dwordx4 {v(96+4*j,4)}, v5, s[4:7], 0 offen offset:{256*j} {SC}")
    estamp(a, 3)
    a("s_barrier")
    a(f"s_waitcnt vmcnt(5)\nv_dot2_f32_bf16 v9, v{X}, v{GW}, 0\nv_dot2_f32_bf16 v8, v{X+1}, v{GW+1}, 0")
    for i in range(2, 20): a(f"v_dot2_f32_bf16 v{9-(i&1)}, v{X+i}, v{GW+i}, v{9-(i&1)}")
    a("v_add_f32 v9, v9, v8"); red(9)
    a(f"""
    v_mul_f32 v9, {f2u(-LOG2E)}, v9
    v_exp_f32 v9, v9
    v_add_f32 v9, 1.0, v9
    v_rcp_f32 v8, v9
    v_lshlrev_b32 v10, 3, v10
    """)
    tag_ready(a)
    a(f"""
    v_mov_b32 v9, s48
    s_mov_b32 exec_lo, 0x00010001
    s_mov_b32 exec_hi, 0x00010001
    buffer_store_dwordx2 v[8:9], v10, s[8:11], 0 offen {SC}
    s_mov_b64 exec, -1
    s_lshl_b32 s22, s19, 7
    v_lshl_add_u32 v10, v1, {14 if opt("mixed") else 15}, s22
    """)
    if opt("early"): a("s_waitcnt vmcnt(1)"); estamp(a, 4)
    publish(a, 0, 4, 10, 4, keep=1)
    if opt("early"): estamp(a, 5); a("s_waitcnt vmcnt(0)"); estamp(a, 6)

G1_S, G1_SLOT = 6, 24576
def w1_sweep(a):
    a(f"s_lshl_b32 s23, s53, {2 if opt('mixed') else 1}\ns_add_u32 s23, s23, s3\ns_lshl_b32 s23, s23, 6\nv_add_u32 v2, s23, v1\ns_lshr_b32 s23, s52, 1\ns_mul_i32 s23, s23, 768\ns_mov_b32 s26, 43691")
    for n in range(3):
        a(f"v_add_u32 v3, {4096*n}, v2\nv_mul_u32_u24 v4, s26, v3\nv_lshrrev_b32 v4, 18, v4\nv_mul_u32_u24 v5, {3072-768}, v4\nv_lshl_add_u32 v5, v3, 7, v5\nv_add_u32 v{16+n}, s23, v5")
        if not opt("noslowcol"):
            a(f"v_and_b32 v5, 0x380, v{16+n}\nv_cmp_le_u32 vcc, {opt('sc0', 1024)}, v4\nv_cndmask_b32_e64 v5, 0, v5, vcc\nv_cmp_eq_u32 vcc, 0x180, v5\nv_cndmask_b32_e64 v{16+n}, v{16+n}, -16, vcc")
    srd(a, 4, 4, S_ * 3072)
    a("s_barrier"); estamp(a, 1)
    pre = opt("pre", 2)
    for n in range(3):
        if n == pre: tag_ready(a); a("s_barrier")
        if not opt("nopfw1"): a(f"buffer_load_dword v{20+n}, v{16+n}, s[4:7], 0 offen")
    if pre == 3: tag_ready(a); a("s_barrier")
    estamp(a, 2)
    if opt("pfwait"): a("s_waitcnt vmcnt(0)")
    estamp(a, 3)
def g1_loader_w(a):
    a(f"""
    v_lshrrev_b32 v2, 4, v1
    s_lshl_b32 s23, s3, 2
    v_add_u32 v2, s23, v2
    v_lshlrev_b32 v4, 1, v2
    v_and_b32 v3, 15, v1
    v_xor_b32 v3, v3, v4
    v_lshlrev_b32 v3, 4, v3
    v_mul_u32_u24 v2, 3072, v2
    s_lshl_b32 s26, s16, 8
    v_add3_u32 v8, v2, v3, s26
    """)
    for i in range(1, 8): a(f"v_add_u32 v{8+i}, {8*3072*i}, v8")
    a(f"""
    s_mov_b32 s34, s18
    s_lshl_b32 s37, s3, 10
    s_add_u32 s38, s37, {G1_SLOT*G1_S}
    s_mov_b32 s33, 0
    """)
    def issue():
        a(f"s_mul_i32 s40, s34, {64*3072}" if not opt("wwrap") else f"s_and_b32 s40, s34, 3\ns_mul_i32 s40, s40, {64*3072}")
        for i in range(8): a(f"s_add_u32 m0, s37, {2048*i}\n{thr('w', 11)}buffer_load_dwordx4 v{8+i}, s[4:7], s40 offen lds")
        a(f"s_add_u32 s37, s37, {G1_SLOT}\ns_cmp_ge_u32 s37, s38\ns_cselect_b32 s42, {G1_SLOT*G1_S}, 0\ns_sub_u32 s37, s37, s42\ns_add_u32 s34, s34, 1\ns_and_b32 s34, s34, 31")
    if opt("sweep"):
        w1_sweep(a); issue_n(a, G1_S - 2, issue)
    else:
        pp = opt("ppre", 1)
        srd(a, 4, 4, S_ * 3072); a("s_barrier")
        if pp: issue_n(a, pp, issue)
        tag_ready(a); a("s_barrier")
        if opt("s15"): a("s_barrier")
        m = opt("g1in", G1_S)
        if pp < m: issue_n(a, m - pp, issue)
        for j in range(m - (G1_S - 2)): a(f"s_waitcnt vmcnt({8*(m-1-j)})\ns_barrier")
        if m < G1_S - 2: a(f"s_waitcnt vmcnt({8*(m-1)})\ns_barrier"); issue_n(a, G1_S - 1 - m, issue)
    if opt("early"): estamp(a, 4); a("s_waitcnt vmcnt(0)"); estamp(a, 5)
    stamp(a, 1)
    steady(a, 32, 8, G1_S - 2, issue)
    if (not opt("earlyp")): drain(a, 8, G1_S - 2); stamp(a, 2); a("s_branch Lp2_s0")
    else: P2(0).setup_s(a); P2(0).early(a, 8, 12, "s")
def g1_loader_h(a):
    a(f"""
    v_lshrrev_b32 v2, 3, v1
    v_and_b32 v3, 7, v1
    v_and_b32 v4, 6, v2
    v_xor_b32 v3, v3, v4
    v_lshlrev_b32 v3, 4, v3
    s_sub_u32 s22, s3, 2
    s_lshl_b32 s23, s22, 3
    v_add_u32 v2, s23, v2
    v_mul_u32_u24 v2, 1280, v2
    s_lshl_b32 s26, s17, 7
    v_add3_u32 v8, v2, v3, s26
    """)
    for i in range(1, 4): a(f"v_add_u32 v{8+i}, {16*1280*i}, v8")
    a(f"""
    s_lshl_b32 s23, s52, 14
    v_lshl_add_u32 v12, v1, 7, s23
    s_mov_b32 s34, s18
    s_lshl_b32 s37, s22, 10
    s_add_u32 s37, s37, 16384
    s_add_u32 s38, s37, {G1_SLOT*G1_S}
    s_mov_b32 s33, 0
    """)
    srd(a, 4, 20, H_SZ, H_OFF)
    def issue():
        a(f"s_mul_i32 s40, s34, {64*1280}" if not opt("hwrap") else f"s_and_b32 s40, s34, 3\ns_mul_i32 s40, s40, {64*1280}")
        for i in range(4): a(f"s_add_u32 m0, s37, {2048*i}\n{thr('h', 5)}buffer_load_dwordx4 v{8+i}, s[4:7], s40 offen {'' if opt('hplain') else SC} lds")
        a(f"s_add_u32 s37, s37, {G1_SLOT}\ns_cmp_ge_u32 s37, s38\ns_cselect_b32 s42, {G1_SLOT*G1_S}, 0\ns_sub_u32 s37, s37, s42\ns_add_u32 s34, s34, 1\ns_and_b32 s34, s34, 31")
    tag_ready(a); a("s_barrier")
    if opt("s15"): a("s_barrier")
    if opt("own"): lds_wait(a, 0, 4)
    estamp(a, 1)
    if opt("nosplit"): gate(a, 12, (1 << 64) - 1, two=8192)
    else:
        L = uid("Lm")
        a("s_sub_u32 s22, s3, 2\ns_lshl_b32 s22, s22, 13\nv_add_u32 v12, s22, v12"); gate(a, 12, (1 << 64) - 1)
        a(f"v_mov_b32 v2, {CTR + 12}\nv_mov_b32 v3, 1\ns_mov_b64 exec, 1\nds_add_u32 v2, v3\ns_mov_b32 s49, 0\n{L}:\nds_read_b32 v3, v2\ns_add_u32 s49, s49, 1\ns_waitcnt lgkmcnt(0)\nv_readfirstlane_b32 s22, v3")
        a(f"s_cmp_ge_u32 s22, 2\ns_cbranch_scc1 {L}d\ns_cmp_lt_u32 s49, 0x400000\ns_cbranch_scc1 {L}\n{L}d:\ns_mov_b64 exec, -1")
    stamp(a, 1); estamp(a, 3)
    if opt("early"): a("s_add_u32 s78, s70, s49\ns_mov_b32 s79, 0")
    if not (not opt("s2")): a("s_barrier")
    issue_n(a, G1_S - 2, issue)
    steady(a, 32, 4, G1_S - 2, issue)
    if (not opt("earlyp")): drain(a, 4, G1_S - 2); stamp(a, 2); a("s_branch Lp2_d0")
    else: P2(0).setup_d(a); P2(0).early(a, 4, 16, "d")
def g1_consumer(a):
    L = "Lg1"
    if opt("s15"): a("s_barrier")
    ACC, T = 16, 48
    a(f"""
    s_load_dwordx2 s[24:25], s[0:1], {KA['b1']}
    s_and_b32 s22, s3, 1
    s_lshr_b32 s23, s3, 1
    s_lshl_b32 s26, s16, 8
    s_lshl_b32 s27, s22, 7
    s_add_u32 s26, s26, s27
    v_lshrrev_b32 v2, 4, v1
    v_lshl_add_u32 v3, v2, 3, s26
    s_waitcnt lgkmcnt(0)
    """)
    srd(a, 24, 24, 3072); srd(a, 8, 20, UW_SZ, UW_OFF)
    for ft in range(4): a(f"buffer_load_dwordx2 {v(T+2*ft,2)}, v3, s[24:27], 0 offen offset:{32*ft}")
    a(f"""
    s_setprio 0
    v_lshrrev_b32 v5, 2, v1
    v_and_b32 v6, 3, v1
    v_lshlrev_b32 v6, 3, v6
    v_and_b32 v7, 7, v5
    v_lshl_add_u32 v4, v5, 8, v6
    s_lshl_b32 s27, s22, 2
    """)
    for ft in range(4): a(f"s_add_u32 s28, s27, {ft}\nv_xor_b32 v2, s28, v7\nv_lshl_add_u32 v{8+ft}, v2, 5, v4")
    a(f"v_lshrrev_b32 v7, 1, v5\nv_and_b32 v7, 3, v7\nv_lshl_add_u32 v4, v5, 7, v6\nv_add_u32 v4, 16384, v4\ns_lshl_b32 s27, s23, 1")
    for dt in range(2): a(f"s_add_u32 s28, s27, {dt}\nv_xor_b32 v2, s28, v7\nv_lshl_add_u32 v{12+dt}, v2, 5, v4")
    a(f"""
    s_lshl_b32 s28, s17, 2
    s_add_u32 s28, s28, s27
    s_mul_i32 s28, s28, 68
    s_lshl_b32 s29, s16, 2
    s_add_u32 s28, s28, s29
    s_lshl_b32 s29, s22, 1
    s_add_u32 s28, s28, s29
    s_lshl_b32 s28, s28, 10
    v_lshl_add_u32 v14, v1, 4, s28
    s_lshl_b32 s28, s17, 4
    s_add_u32 s28, s28, s16
    s_lshl_b32 s28, s28, 7
    s_add_u32 s28, s28, {F4}
    v_mul_u32_u24 v15, {160*128}, v1
    v_add_u32 v15, s28, v15
    s_mov_b32 s31, 0xffff0000
    s_waitcnt vmcnt(0)
    """)
    for ft in range(4):
        for dt in range(2):
            b = ACC + 8 * ft + 4 * dt
            a(f"v_lshlrev_b32 v{b}, 16, v{T+2*ft}\nv_and_b32 v{b+1}, s31, v{T+2*ft}\nv_lshlrev_b32 v{b+2}, 16, v{T+2*ft+1}\nv_and_b32 v{b+3}, s31, v{T+2*ft+1}")
    SETS = (48, 96)
    def reads(st):
        r = []
        for kk in range(2):
            b = SETS[st] + 24 * kk
            for dt in range(2): r += [(f"ds_read_b64_tr_b16 {v(b+4*dt+2*h,2)}, v{12+dt} offset:{kk*4096+2048*h}", (kk, "b", dt, h)) for h in range(2)]
            for ft in range(4): r += [(f"ds_read_b64_tr_b16 {v(b+8+4*ft+2*h,2)}, v{8+ft} offset:{kk*8192+4096*h}", (kk, "a", ft, h)) for h in range(2)]
        return r
    def mf(st):
        return [(f"v_mfma_f32_16x16x32_bf16 {v(ACC+8*ft+4*dt,4)}, {v(SETS[st]+24*kk+8+4*ft,4)}, {v(SETS[st]+24*kk+4*dt,4)}, {v(ACC+8*ft+4*dt,4)}", {(kk, "a", ft, 1)})
                for kk in range(2) for ft, dt in ([(f, d) for d in range(2) for f in range(4)] if opt("g1ord") else [(f, d) for f in range(4) for d in range(2)])]
    ids = [x[1] for x in reads(0)]
    adv = slot_adv(G1_SLOT, G1_S) + [f"v_add_u32 v{8+i}, s40, v{8+i}" for i in range(6)]
    if not (not opt("s2")): a("s_barrier")
    a("s_mov_b32 s33, 0\ns_mov_b32 s37, 0\ns_barrier"); stamp(a, 2, True)
    emit_step(a, [], [], reads(0), adv)

    a.label(f"{L}_c", 3)
    a("s_barrier")
    emit_step(a, mf(0), ids, reads(1), adv + ["s_add_u32 s33, s33, 2", "s_cmp_ge_u32 s33, 32"])
    a(f"s_cbranch_scc1 {L}_clast\ns_barrier")
    emit_step(a, mf(1), ids, reads(0), adv)
    a(f"s_branch {L}_c")
    a.label(f"{L}_clast")
    a("s_waitcnt lgkmcnt(0)" + ("\ns_barrier" if opt("noe2") else "")); stamp(a, 3, True); lstamp(a, 1)
    last = [t for t, _ in mf(1)]
    grp = lambda p, dt: [last[8 * kk + 2 * (2 * p + h) + dt] for kk in range(2) for h in range(2)]
    G = [(p, dt) for p in range(2) for dt in range(2)]
    for t in grp(*G[0]) + grp(*G[1]): a(t)
    rest = grp(*G[2]) + grp(*G[3])
    c0 = -2 * 0.7978845608028654 * LOG2E; c1 = c0 * 0.044715
    a(f"v_mov_b32 v2, {f2u(c0)}\nv_mov_b32 v4, {f2u(c1)}\nv_mov_b32 v6, 1.0\ns_setprio 2")
    lstamp(a, 2)
    T = 48
    for n, (p, dt) in enumerate(G):
        o = 72 + 4 * n
        prs = [ACC + 8 * (2 * p + h) + 4 * dt + 2 * q for h in range(2) for q in range(2)]
        def ops(l):
            for x in l:
                a(x)
                if rest and not x.startswith(("v_exp", "v_rcp")): a(rest.pop(0))
        ops([f"v_pk_mul_f32 {v(T+2*i,2)}, {v(b,2)}, {v(b,2)}" for i, b in enumerate(prs)])
        ops([f"v_pk_fma_f32 {v(T+2*i,2)}, {v(T+2*i,2)}, v[4:5], v[2:3] op_sel_hi:[1,0,0]" for i, b in enumerate(prs)])
        ops([f"v_pk_mul_f32 {v(T+2*i,2)}, {v(T+2*i,2)}, {v(b,2)}" for i, b in enumerate(prs)])
        ops([f"v_exp_f32 v{T+i}, v{T+i}" for i in range(8)])
        ops([f"v_pk_add_f32 {v(T+2*i,2)}, {v(T+2*i,2)}, v[6:7] op_sel_hi:[1,0]" for i, b in enumerate(prs)])
        ops([f"v_rcp_f32 v{T+i}, v{T+i}" for i in range(8)])
        ops([f"v_pk_mul_f32 {v(T+2*i,2)}, {v(T+2*i,2)}, {v(b,2)}" for i, b in enumerate(prs)])
        ops([f"v_cvt_pk_bf16_f32 v{o+i}, v{T+2*i}, v{T+2*i+1}" for i in range(4)])
        a(f"s_mov_b32 s29, {dt*68*1024}\nbuffer_store_dwordx4 {v(o,4)}, v14, s[8:11], s29 offen offset:{1024*p} {SC}")
    lstamp(a, 3)
    if not opt("noe2"): a("s_barrier")
    if opt("late"): a("s_waitcnt vmcnt(0)"); lstamp(a, 4)
    publish(a, 4, 4, 15, 4)
    if opt("late"): lstamp(a, 5); a("s_waitcnt vmcnt(0)"); lstamp(a, 6)
    stamp(a, 4, True)

def spare_loader(a):
    if opt("wol", 2) == 3: lds_wait(a, 0, 4)
    elif opt("wol", 2):
        a(f"s_lshl_b32 s23, s52, 14\nv_lshl_add_u32 v12, v1, 7, s23"); gate(a, 12, (1 << 64) - 1 if opt("wol", 2) == 1 else 1, sl=opt("slpw", 16))
    a(f"""
    s_load_dwordx2 s[4:5], s[0:1], {KA['wo']}
    s_load_dwordx2 s[12:13], s[0:1], {KA['w2']}
    v_lshrrev_b32 v2, 3, v1
    v_and_b32 v3, 7, v1
    v_and_b32 v4, 6, v2
    v_xor_b32 v3, v3, v4
    v_lshlrev_b32 v14, 4, v3
    v_mul_u32_u24 v15, 1280, v2
    v_add_u32 v15, v15, v14
    v_lshrrev_b32 v3, 2, v2
    v_lshl_add_u32 v3, v3, 4, v2
    v_add_u32 v3, 16, v3
    v_mul_u32_u24 v3, 1280, v3
    v_add_u32 v14, v14, v3
    s_mul_i32 s23, s3, {7*4096}
    v_lshrrev_b32 v5, 2, v1
    v_lshrrev_b32 v6, 1, v5
    v_and_b32 v6, 3, v6
    v_lshlrev_b32 v5, 7, v5
    v_and_b32 v7, 3, v1
    v_lshlrev_b32 v7, 3, v7
    v_add3_u32 v5, v5, v7, s23
    """)
    for t in range(4): a(f"v_xor_b32 v7, {t}, v6\nv_lshl_add_u32 v{8+t}, v7, 5, v5")
    a(f"v_lshlrev_b32 v12, 4, v1\ns_lshl_b32 s26, s16, 7\ns_add_u32 s26, s26, {F3}\nv_lshl_add_u32 v13, v1, 10, s26\ns_waitcnt lgkmcnt(0)")
    srd(a, 4, 4, 640 * 1280); srd(a, 8, 20, UW_SZ, UW_OFF); srd(a, 12, 12, F_ * 4096)
    def task():
        a("s_lshl_b32 s26, s33, 2\ns_add_u32 s26, s26, s3\ns_min_u32 s26, s26, 24\ns_mul_i32 s27, s16, 25\ns_add_u32 s27, s27, s26\ns_mul_i32 s26, s27, 6554\ns_lshr_b32 s26, s26, 16\ns_mul_i32 s28, s26, 10\ns_sub_u32 s27, s27, s28")
    L = uid("Lwo")
    a("s_mov_b32 s33, 0"); a.label(L); task()
    for half in range(2):
        a(f"""
        s_lshl_b32 s28, s26, 1
        s_add_u32 s28, s28, {half}
        s_mul_i32 s29, s28, 52
        s_lshr_b32 s29, s29, 8
        s_mul_i32 s30, s29, 5
        s_sub_u32 s28, s28, s30
        s_mul_i32 s29, s29, 80
        s_mul_i32 s30, s28, 20
        s_cmp_eq_u32 s28, 4
        s_cselect_b64 vcc, -1, 0
        s_cselect_b32 s30, 0, s30
        s_cselect_b32 s31, 40, 8
        s_mul_i32 s31, s31, 1280
        s_add_u32 s29, s29, s30
        s_mul_i32 s28, s29, 1280
        s_lshl_b32 s29, s27, 7
        s_add_u32 s28, s28, s29
        v_cndmask_b32 v2, v15, v14, vcc
        """)
        for i in range(2): a(f"s_add_u32 m0, s23, {2048*half+1024*i}\nbuffer_load_dwordx4 v2, s[4:7], s28 offen lds\ns_add_u32 s28, s28, s31")
    a(f"s_add_u32 s23, s23, 4096\ns_add_u32 s33, s33, 1\ns_cmp_lt_u32 s33, 7\ns_cbranch_scc1 {L}\ns_waitcnt vmcnt(0)\ns_mov_b32 s33, 0")
    L = uid("Lwo"); a.label(L); task()
    for t in range(4): a(f"ds_read_b64_tr_b16 {v(16+4*t,2)}, v{8+t}\nds_read_b64_tr_b16 {v(18+4*t,2)}, v{8+t} offset:2048\nv_add_u32 v{8+t}, 4096, v{8+t}")
    a(f"s_lshl_b32 s28, s27, 2\ns_mul_i32 s28, s28, 68\ns_add_u32 s28, s28, s26\ns_add_u32 s28, s28, 48\ns_lshl_b32 s28, s28, 10")
    for t in range(4): a(f"s_waitcnt lgkmcnt({6-2*t})\nbuffer_store_dwordx4 {v(16+4*t,4)}, v12, s[8:11], s28 offen {SC}\ns_add_u32 s28, s28, {68*1024}")
    a(f"s_add_u32 s33, s33, 1\ns_cmp_lt_u32 s33, 7\ns_cbranch_scc1 {L}")
    publish(a, 8, 4, 13, 8)
    stamp(a, 1)
    if opt("spw2"):
        L = uid("Lw2")
        a(f"""
        s_and_b32 s22, s16, 1
        s_lshl_b32 s22, s22, 2
        s_add_u32 s22, s22, s3
        s_lshl_b32 s22, s22, 3
        v_lshrrev_b32 v2, 3, v1
        v_add_u32 v2, s22, v2
        v_lshlrev_b32 v2, 12, v2
        v_and_b32 v3, 7, v1
        v_lshl_add_u32 v2, v3, 7, v2
        s_lshr_b32 s22, s52, 1
        s_lshl_b32 s22, s22, 10
        s_mov_b32 s33, 0
        {L}:
        buffer_load_dword v30, v2, s[12:15], s22 offen
        s_add_u32 s22, s22, {64*4096}
        s_add_u32 s33, s33, 1
        s_cmp_lt_u32 s33, 24
        s_cbranch_scc1 {L}
        """)
    h0 = opt("sph", 0)
    if h0:
        L = uid("Lsh"); n = ((32 - h0 + 1) // 2 * 10 + 7) // 8
        srd(a, 4, 20, H_SZ, H_OFF)
        a(f"s_lshl_b32 s23, s52, 14\nv_lshl_add_u32 v12, v1, 7, s23")
        gate(a, 12, (1 << 64) - 1, two=8192)
        a(f"""
        s_and_b32 s22, s16, 1
        s_lshl_b32 s22, s22, 2
        s_add_u32 s22, s22, s3
        v_lshlrev_b32 v2, 7, v1
        s_mov_b32 s33, 0
        {L}:
        s_mul_i32 s23, s22, 6554
        s_lshr_b32 s23, s23, 16
        s_mul_i32 s23, s23, {64*1280}
        s_lshl_b32 s26, s22, 13
        s_add_u32 s23, s23, s26
        s_add_u32 s23, s23, {h0*64*1280}
        buffer_load_dword v30, v2, s[4:7], s23 offen {SC}
        s_add_u32 s22, s22, 8
        s_add_u32 s33, s33, 1
        s_cmp_lt_u32 s33, {n}
        s_cbranch_scc1 {L}
        """)
    nw = opt("c3", 0)
    if nw:
        L = uid("Lc3")
        a(f"""
        s_cmp_ge_u32 s3, {nw}
        s_cbranch_scc1 {L}d
        s_and_b32 s22, s16, 1
        s_mul_i32 s22, s22, {nw}
        s_add_u32 s22, s22, s3
        s_lshl_b32 s22, s22, 6
        v_add_u32 v2, s22, v1
        v_lshlrev_b32 v2, 12, v2
        s_lshr_b32 s22, s52, 1
        s_lshl_b32 s22, s22, 10
        s_add_u32 s22, s22, 384
        s_mov_b32 s33, 0
        {L}:
        buffer_load_dword v30, v2, s[12:15], s22 offen
        s_add_u32 s22, s22, {128*nw*4096}
        s_add_u32 s33, s33, 1
        s_cmp_lt_u32 s33, {12//nw}
        s_waitcnt vmcnt(0)
        s_cbranch_scc1 {L}
        {L}d:
        """)
    stamp(a, 2)

QA_S, QA_SLOT, QA_W = 3, 49152, 18432
def qa_w1_sweep(a):
    if not opt("qsw"): return
    a(f"""
    s_load_dwordx2 s[12:13], s[0:1], {KA['w1']}
    s_lshr_b32 s22, s2, 1
    s_lshl_b32 s22, s22, 2
    s_add_u32 s22, s22, s3
    s_lshl_b32 s23, s22, 12
    s_lshl_b32 s22, s22, 13
    s_add_u32 s23, s23, {512*8192}
    v_lshlrev_b32 v2, 7, v1
    s_waitcnt lgkmcnt(0)
    """)
    srd(a, 12, 12, S_ * 3072)
    a("buffer_load_dword v32, v2, s[12:15], s22 offen\ns_mov_b32 exec_hi, 0\nbuffer_load_dword v33, v2, s[12:15], s23 offen\ns_mov_b32 exec_hi, -1")
def w2_setup(a):
    a(f"""
    s_load_dwordx2 s[24:25], s[0:1], {KA['w2']}
    v_lshrrev_b32 v2, 3, v1
    s_lshl_b32 s22, s53, 3
    v_add_u32 v2, s22, v2
    v_lshlrev_b32 v2, 12, v2
    v_and_b32 v3, 7, v1
    v_lshl_add_u32 v2, v3, 7, v2
    s_lshr_b32 s22, s52, 1
    s_lshl_b32 s22, s22, 10
    v_add_u32 v29, s22, v2
    s_waitcnt lgkmcnt(0)
    """)
    srd(a, 24, 24, F_ * 4096)
def w2_load(a):
    if opt("sc3"): a("s_mov_b32 exec_lo, 0xf7f7f7f7\ns_mov_b32 exec_hi, 0xf7f7f7f7\nbuffer_load_dword v30, v29, s[24:27], s22 offen\ns_mov_b64 exec, -1")
    else: a("buffer_load_dword v30, v29, s[24:27], s22 offen")
def w2_last(a):
    if not opt("nopfw2"): a("s_lshl_b32 s22, s3, 20"); w2_load(a)
def w2_slow(a):
    n = opt("sc3")
    if not n or n > 2: return
    a(f"s_lshl_b32 s22, s53, 2\ns_add_u32 s22, s22, s3\ns_lshl_b32 s22, s22, 12\ns_lshr_b32 s23, s52, 1\ns_lshl_b32 s23, s23, 10\ns_add_u32 s22, s22, s23\ns_add_u32 s22, s22, 384\ns_add_u32 s26, s24, s22\ns_addc_u32 s27, s25, 0")
    for k in range(12):
        for h in range(n): a(f"s_load_dword s98, s[26:27], {64*h}")
        a(f"s_add_u32 s26, s26, {128*4096}\ns_addc_u32 s27, s27, 0")
def qa_loader(a):
    a(f"v_lshrrev_b32 v2, 3, v1\ns_lshl_b32 s23, s3, 3\nv_add_u32 v2, s23, v2\ns_lshl_b32 s26, s16, 7\ns_sub_u32 s26, s26, 16\nv_and_b32 v3, 7, v1")
    for i in range(6):
        a(f"v_add_u32 v4, {24*i}, v2\nv_lshrrev_b32 v5, 1, v4\nv_and_b32 v5, 7, v5\nv_xor_b32 v5, v5, v3\nv_add_u32 v4, s26, v4\nv_max_i32 v4, 0, v4\nv_mul_u32_u24 v4, 1280, v4\nv_lshl_add_u32 v{8+i}, v5, 4, v4")
    a(f"s_mul_i32 s23, s3, 320\ns_mul_i32 s26, s17, 160\nv_add_u32 v2, s23, v1")
    for i in range(5):
        a(f"""
        v_add_u32 v3, {64*i}, v2
        v_mul_u32_u24 v4, 2185, v3
        v_lshrrev_b32 v4, 16, v4
        v_mul_u32_u24 v5, 30, v4
        v_sub_u32 v3, v3, v5
        v_mul_u32_u24 v5, 26, v3
        v_lshrrev_b32 v5, 8, v5
        v_mul_u32_u24 v5, {1280-160}, v5
        v_lshl_add_u32 v3, v3, 4, v5
        v_and_b32 v5, 12, v4
        v_lshlrev_b32 v5, 1, v5
        v_lshrrev_b32 v6, 4, v4
        v_lshl_add_u32 v5, v6, 2, v5
        v_and_b32 v4, 3, v4
        v_add_u32 v4, v4, v5
        v_mul_u32_u24 v4, 3840, v4
        v_add3_u32 v{16+i}, v4, v3, s26
        """)
    a(f"s_mov_b32 s34, s18\ns_mov_b32 s37, 0\ns_lshl_b32 s38, s3, 10\ns_mul_i32 s39, s3, 5120\ns_add_u32 s39, s39, {QA_W}\ns_mov_b32 s33, 0")
    srd(a, 4, 4, H_SZ); srd(a, 8, 8, 640 * 3840)
    def issue(half=None):
        if half != 1: a(f"s_lshl_b32 s40, s34, 7\ns_mul_i32 s41, s34, {64*3840}\ns_add_u32 s42, s37, s38\ns_add_u32 s43, s37, s39\ns_add_u32 s36, s41, {32*3840}")
        if half != 1:
            for i in range(3): a(f"s_add_u32 m0, s42, {3072*i}\nbuffer_load_dwordx4 v{8+i}, s[4:7], s40 offen lds")
            for i in range(5): a(f"s_add_u32 m0, s43, {1024*i}\nbuffer_load_dwordx4 v{16+i}, s[8:11], s41 offen lds")
        if half != 0:
            for i in range(3, 6): a(f"s_add_u32 m0, s42, {3072*i}\nbuffer_load_dwordx4 v{8+i}, s[4:7], s40 offen lds")
            for i in range(5): a(f"s_add_u32 m0, s43, {15360+1024*i}\nbuffer_load_dwordx4 v{16+i}, s[8:11], s36 offen lds")
            a(f"s_add_u32 s37, s37, {QA_SLOT}\ns_cmp_ge_u32 s37, {QA_SLOT*QA_S}\ns_cselect_b32 s37, 0, s37\ns_add_u32 s34, s34, 1\ns_cmp_ge_u32 s34, 10\ns_cselect_b32 s34, 0, s34")
    if opt("lateb0"):
        issue_n(a, 2, issue); tag_ready(a); w2_setup(a); stamp(a, 1)
    else:
        issue(); issue(0); tag_ready(a); a("s_waitcnt vmcnt(8)\ns_barrier"); issue(1); issue(); a("s_mov_b32 s33, 3")
        w2_setup(a); stamp(a, 1)
    steady(a, 10, 16, QA_S - 1, issue); drain(a, 16, QA_S - 1)
    stamp(a, 2); w2_last(a); a("s_barrier")
def qa_idle(a):
    code_prefetch(a)
    if opt("wsq", 1) == 1:
        a("s_lshr_b32 s22, s52, 1\ns_lshl_b32 s22, s22, 5\ns_add_u32 s22, s22, s53\ns_mul_i32 s26, s22, 22\ns_add_u32 s26, s26, 16384\ns_lshl_b32 s26, s26, 7\ns_lshl_b32 s22, s22, 13\ns_add_u32 s23, s22, 0x100000\nv_lshlrev_b32 v2, 7, v1")
        srd(a, 8, 8, 640 * 3840)
        a("buffer_load_dword v40, v2, s[8:11], s22 offen\nbuffer_load_dword v41, v2, s[8:11], s23 offen\ns_mov_b64 exec, 0x3fffff\nbuffer_load_dword v42, v2, s[8:11], s26 offen\ns_mov_b64 exec, -1")
    if opt("wsq") == 2:
        a(f"s_mul_i32 s22, s53, 60\nv_add_u32 v2, s22, v1\nv_mul_u32_u24 v3, 4370, v2\nv_lshrrev_b32 v3, 16, v3\nv_mul_u32_u24 v4, 15, v3\nv_sub_u32 v2, v2, v4\nv_mul_u32_u24 v4, 52, v2\nv_lshrrev_b32 v4, 8, v4\nv_mul_u32_u24 v4, {1280-640}, v4\nv_lshl_add_u32 v2, v2, 7, v4\nv_mul_u32_u24 v3, 3840, v3\ns_lshr_b32 s22, s52, 2\ns_mul_i32 s22, s22, 640\nv_add3_u32 v2, v2, v3, s22")
        srd(a, 8, 8, 640 * 3840)
        a("s_mov_b32 exec_hi, 0x0fffffff")
        for n in range(5): a(f"s_mov_b32 s22, {128*3840*n}\nbuffer_load_dword v{40+n}, v2, s[8:11], s22 offen")
        a("s_mov_b32 exec_hi, -1")
    if opt("w49"):
        a(f"""
        s_mul_i32 s22, s53, 60
        v_add_u32 v2, s22, v1
        v_mul_u32_u24 v3, 4370, v2
        v_lshrrev_b32 v3, 16, v3
        v_mul_u32_u24 v4, 15, v3
        v_sub_u32 v2, v2, v4
        v_mul_u32_u24 v4, 52, v2
        v_lshrrev_b32 v4, 8, v4
        v_mul_u32_u24 v4, {1280-640}, v4
        v_lshl_add_u32 v2, v2, 7, v4
        v_lshrrev_b32 v4, 6, v3
        v_lshl_add_u32 v3, v4, 8, v3
        v_add_u32 v3, 256, v3
        v_mul_u32_u24 v3, 3840, v3
        s_lshr_b32 s22, s52, 2
        s_mul_i32 s22, s22, 640
        v_add3_u32 v2, v2, v3, s22
        """)
        srd(a, 8, 8, 640 * 3840)
        a("s_mov_b32 exec_hi, 0x0fffffff\nbuffer_load_dword v31, v2, s[8:11], 0 offen\ns_mov_b32 exec_hi, -1")
    if opt("x49"):
        a(f"""
        s_lshr_b32 s22, s53, 3
        s_mul_i32 s22, s22, 36
        s_lshl_b32 s23, s16, 7
        s_add_u32 s22, s22, s23
        s_sub_u32 s22, s22, 16
        v_add_u32 v2, s22, v1
        v_max_i32 v2, 0, v2
        v_mul_u32_u24 v2, 1280, v2
        s_bitcmp1_b32 s53, 0
        s_cselect_b32 s22, 5, 4
        s_cselect_b32 s23, 0, 9
        s_lshl_b32 s22, s22, 7
        s_lshl_b32 s23, s23, 7
        """)
        srd(a, 4, 4, H_SZ)
        a("s_mov_b32 exec_hi, 0xf\nbuffer_load_dword v32, v2, s[4:7], s22 offen\nbuffer_load_dword v33, v2, s[4:7], s23 offen\ns_mov_b32 exec_hi, -1")
    tag_ready(a); w2_setup(a)
    at = (opt("w2a", 9), opt("w2b", 9))
    for i in range(10):
        a("s_barrier")
        for k in range(2):
            if at[k] == i and not opt("nopfw2"): a(f"s_mov_b32 s22, {(4+k) << 20}"); w2_load(a)
    w2_last(a); a("s_barrier")
def qa_consumer(a):
    L = "Lqa"
    AQ, AK, AR, AV, AW = 16, 48, 88, 108, 148
    XF, WB = 168, 208
    M0, M1, MF, PM, TM = 224, 228, 232, 236, 240
    NB, DD = 4, opt("dd", 3)
    a(f"""
    s_lshr_b32 s28, s3, 1
    s_and_b32 s29, s3, 1
    v_and_b32 v2, 15, v1
    v_lshrrev_b32 v3, 4, v1
    v_lshrrev_b32 v4, 1, v2
    v_xor_b32 v4, v4, v3
    v_lshlrev_b32 v4, 4, v4
    v_lshl_add_u32 v4, v2, 7, v4
    v_mov_b32 v8, v4
    v_xor_b32 v9, 64, v4
    v_lshrrev_b32 v5, 2, v1
    v_mul_u32_u24 v5, 480, v5
    s_mul_i32 s23, s29, 80
    s_add_u32 s23, s23, {QA_W}
    v_add_u32 v5, s23, v5
    v_and_b32 v4, 3, v1
    v_lshl_add_u32 v10, v4, 3, v5
    v_and_b32 v6, 1, v1
    v_mul_u32_u24 v6, 40, v6
    v_add3_u32 v13, v6, v5, 32
    v_lshrrev_b32 v4, 1, v4
    v_mul_u32_u24 v4, 160, v4
    v_add_u32 v11, v4, v13
    """)
    if opt("zv"):
        a(f"v_lshrrev_b32 v4, 3, v2\nv_cmp_eq_u32 vcc, s29, v4\nv_cndmask_b32_e64 v7, 0, -1, vcc")
    for i in range(AQ, XF): a(f"v_mov_b32 v{i}, 0")
    a(f"v_lshlrev_b32 v4, 2, v3\nv_sub_u32 v4, v2, v4\nv_mov_b32 v5, {f2u(-1e30)}")
    for r in range(4):
        a(f"""
        v_subrev_u32 v15, {r}, v4
        v_and_b32 v15, 0x80000001, v15
        v_cmp_eq_u32 vcc, 0, v15
        v_cndmask_b32_e64 v{M1+r}, v5, 0, vcc
        v_cndmask_b32_e64 v{TM+4+r}, 0, -1, vcc
        v_cmp_eq_u32 vcc, 0x80000000, v15
        v_cndmask_b32_e64 v{M0+r}, v5, 0, vcc
        v_cndmask_b32_e64 v{TM+r}, 0, -1, vcc
        """)
    a("s_mov_b32 s30, 0xffff\ns_mov_b32 s22, 0x0c0c0c0c\ns_mov_b32 s26, 0x01000100\ns_mov_b32 s27, 0x03020302")
    for i in range(4): a(f"v_bfi_b32 v{PM+i}, s30, v{TM+2*i}, v{TM+2*i+1}\nv_mov_b32 v15, s22\nv_bfi_b32 v{PM+i}, v{PM+i}, s{26+(i&1)}, v15")
    a(f"s_or_b32 s23, s16, s28\ns_cmp_eq_u32 s23, 0\ns_cselect_b64 vcc, -1, 0")
    for r in range(4): a(f"v_cndmask_b32 v{MF+r}, v{M0+r}, v5, vcc")
    GM = 90
    for j in range(2): a(f"v_cmp_eq_u32 s[{GM+2*j}:{GM+1+2*j}], {j}, v3")
    a(f"""
    v_and_b32 v4, 1, v3
    v_cmp_eq_u32 s[94:95], 1, v4
    s_cmp_eq_u32 s29, 0
    s_cselect_b32 s96, -1, 0
    s_cselect_b32 s97, 0, -1
    s_lshl_b32 s23, s16, 3
    s_lshl_b32 s26, s28, 2
    s_add_u32 s23, s23, s26
    s_mul_i32 s23, s23, 40
    s_mul_i32 s26, s17, 5
    s_add_u32 s23, s23, s26
    s_lshl_b32 s23, s23, 9
    v_lshl_add_u32 v15, v1, 3, s23
    s_lshl_b32 s26, s29, 10
    v_add_u32 v12, s26, v15
    s_lshl_b32 s23, s16, 4
    s_add_u32 s23, s23, s17
    s_lshl_b32 s23, s23, 7
    s_add_u32 s23, s23, {F2}
    v_lshl_add_u32 v14, v1, 10, s23
    s_mov_b32 s31, {f2u(20 ** -0.5 * LOG2E)}
    v_mov_b32 v6, s31
    s_mov_b32 s33, 0
    s_mov_b32 s37, 0
    s_waitcnt lgkmcnt(0)
    """)
    srd(a, 4, 20, OT_SZ, OT_OFF); tag_ready(a)
    U = [("q", 0), ("q", 1), ("k", 0), ("k", 1), ("r", 0), ("v", 0), ("v", 1), ("w", 0)]
    NU = len(U); UU = 2 * NU
    def wread(u):
        kk, c = divmod(u, NU); p, j = U[c]; b = WB + 4 * (u % NB)
        ad, off = {"q": (10, 40 * j), "k": (10, 160 + 40 * j), "v": (10, 320 + 40 * j), "r": (11, 0), "w": (13, 320)}[p]
        off += kk * 15360
        return [f"ds_read_b64_tr_b16 {v(b,2)}, v{ad} offset:{off}", f"ds_read_b64_tr_b16 {v(b+2,2)}, v{ad} offset:{off+7680}"]
    def acc(p, j, t): return {"q": AQ + 8 * (t - 1) + 4 * j, "k": AK + 8 * t + 4 * j, "r": AR + 4 * t, "v": AV + 20 * j + 4 * t, "w": AW + 4 * t}[p]
    cvt = lambda d, s0: f"v_cvt_pk_bf16_f32 v{d}, v{s0}, v{s0+1}"
    cv = lambda d, s0: a(cvt(d, s0))
    VCH = (AV, AV + 20, AW)
    stamp(a, 1, True); a("s_barrier"); stamp(a, 2, True)
    a(f"s_cmp_lg_u32 s28, 0\ns_cbranch_scc1 {L}_h1")
    for rh in range(2):
        a.label(f"{L}_h{rh}")
        def xread(kk): return [f"ds_read_b128 {v(XF+20*kk+4*t,4)}, v{8+kk} offset:{2048*(4*rh+t) if t else 0}" for t in (1, 2, 3, 4, 0)]
        def mf(u):
            kk, c = divmod(u, NU); p, j = U[c]; w = v(WB + 4 * (u % NB), 4); r = []
            for t in ((1, 2, 3, 4, 0) if p in ("kr", "vw")[rh] else (1, 2, 3, 4)):
                x = v(XF + 20 * kk + 4 * t, 4); d = v(acc(p, j, t), 4)
                r.append(f"v_mfma_f32_16x16x32_bf16 {d}, {w}, {x}, {d}" if p in "qkr" else f"v_mfma_f32_16x16x32_bf16 {d}, {x}, {w}, {d}")
            return r
        for t in xread(0): a(t)
        for u in range(DD):
            for t in wread(u): a(t)
        a(f"s_waitcnt lgkmcnt({2*DD-2})")
        a.label(f"{L}_c{rh}", 3)
        q = []
        for u in range(1, DD): q += [u, u]
        misc = slot_adv(QA_SLOT, QA_S) + ["s_add_u32 s33, s33, 1", "s_cmp_ge_u32 s33, 10"]
        x1 = xread(1)
        for u in range(UU):
            nx = u + DD; fill = []
            if nx == UU: fill += [(t, UU) for t in xread(0)]
            fill += [(t, nx) for t in wread(nx % UU)]
            if 1 <= u < NU - 1 and x1: fill.append((x1.pop(0), NU))
            ms = mf(u)
            if nx == UU:
                a(f"s_waitcnt lgkmcnt(0)\ns_cbranch_scc1 {L}_clast{rh}\ns_barrier"); q = []
            per = -(-len(fill) // len(ms))
            for i, m in enumerate(ms):
                a(m)
                for t, tag in fill[i*per:(i+1)*per]: a(t); q.append(tag)
                if opt("zv") and u % NU == NU - 2 and i < 4: a(f"v_and_b32 v{WB+4*((u+1)%NB)+i}, v7, v{WB+4*((u+1)%NB)+i}")
                if i == len(ms) - 2 and misc and u >= 2: a(misc.pop(0))
                if 1 <= i <= 3 and nx == UU - 1:
                    for r in ((), (8, 9, 10), (11, 13))[i - 1]: a(f"v_add_u32 v{r}, s40, v{r}")
            up = u + 2 if opt("zv") and u % NU == NU - 3 else u + 1
            if opt("zv") and u == UU - 2: pass
            if any(t <= up for t in q) and nx != UU - 1:
                last = max(i for i, t in enumerate(q) if t <= up)
                q = q[last + 1:]
                a(f"s_waitcnt lgkmcnt({len(q)})")
        assert not misc and not x1 and len(q) == 2 * DD - 2, (misc, x1, q)
        a(f"s_branch {L}_c{rh}")
        a.label(f"{L}_clast{rh}"); stamp(a, 3, True); lstamp(a, 1)
        TK = (4, 3, 2, 1) if rh else (4, 3, 2, 1, 0); prep = []
        for t in TK:
            r = AR + 4 * t; k = AK + 8 * t
            prep += [cvt(k, k), cvt(k + 1, k + 2), cvt(k + 4, k + 4), cvt(k + 5, k + 6), cvt(k + 2, r), cvt(k + 3, r + 2), cvt(r, r), cvt(r + 1, r + 2)]
        for t in TK:
            r = AR + 4 * t; k = AK + 8 * t
            prep += [f"v_permlane32_swap_b32 v{r}, v{k+2}", f"v_permlane32_swap_b32 v{r+1}, v{k+3}"]
        assert DD == 3
        for u in range(UU - DD, UU):
            for i, m in enumerate(mf(u)):
                a(m); a(prep.pop(0)); a(prep.pop(0))
                if opt("zv") and u == UU - 2 and i < 4: a(f"v_and_b32 v{WB+4*((u+1)%NB)+i}, v7, v{WB+4*((u+1)%NB)+i}")
        a(f"v_lshlrev_b32 v8, 3, v1\ns_mul_i32 s23, s29, 20480\ns_add_u32 s23, s23, 61440\nv_add_u32 v8, s23, v8")
        for x in prep: a(x)
        if rh == 0:
            for i in range(3): a(f"ds_write_b64 v8, {v(AK+32+2*i,2)} offset:{512*i}")
        for n, b in enumerate(VCH):
            for i in range(0 if rh else 2, 10): cv(b + i, b + 2 * i)
            a(f"ds_write_b64 v8, {v(b + (0 if rh else 8),2)} offset:{(3072 if rh else 1536) + 512*n}")
        a("s_waitcnt lgkmcnt(0)\ns_barrier")
        if rh:
            for i in range(3): a(f"ds_read_b64 {v(AK+2*i,2)}, v8 offset:{512*i}")
        for n, b in enumerate(VCH): a(f"ds_read_b64 {v(b,2)}, v8 offset:{(1536 if rh else 3072) + 512*n}")
        if rh == 0: a(f"s_branch {L}_j")
    a.label(f"{L}_j")
    lstamp(a, 2)
    UN = [(t, j) for t in (4, 3, 2, 1) for j in range(2)]
    SRS = [XF + 8 * n for n in range(7)] + [TM + 8]
    def qprep(t):
        r = AR + 4 * t; qa, qb = acc("q", 0, t), acc("q", 1, t)
        return [cvt(qa, qa), cvt(qa + 1, qa + 2), cvt(qb + 3, qb + 2), cvt(qb + 2, qb)] + \
               [f"v_cndmask_b32 v{qa+2+i}, 0, v{r+i}, s[{GM}:{GM+1}]" for i in range(2)] + [f"v_cndmask_b32 v{qb+i}, 0, v{r+i}, s[{GM+2}:{GM+3}]" for i in range(2)]
    for x in qprep(4): a(x)
    for n, (t, j) in enumerate(UN):
        qf = v(acc("q", j, t), 4)
        if j == 0: nxt = qprep(t - 1) if t > 1 else []
        if n == 6: a("s_waitcnt lgkmcnt(0)")
        a(f"v_mfma_f32_16x16x32_bf16 {v(SRS[n],4)}, {v(AK+8*(t-1)+2*j,4)}, {qf}, {v(MF if t == 1 else M0,4)}")
        for x in nxt[4*j:4*j+2]: a(x)
        a(f"v_mfma_f32_16x16x32_bf16 {v(SRS[n]+4,4)}, {v(AK+8*t+2*j,4)}, {qf}, {v(M1,4)}")
        for x in nxt[4*j+2:4*j+4]: a(x)
    V2, X = AQ, AQ + 16
    P = [AK + 4 * n for n in range(8)]
    for n in range(8): s_ = SRS[n]; a(f"v_max3_f32 v{V2+2*n}, v{s_}, v{s_+1}, v{s_+4}\nv_max3_f32 v{V2+2*n+1}, v{s_+2}, v{s_+3}, v{s_+6}")
    for n in range(8): s_ = SRS[n]; a(f"v_max_f32 v{V2+2*n}, v{V2+2*n}, v{s_+5}\nv_max_f32 v{V2+2*n+1}, v{V2+2*n+1}, v{s_+7}")
    def seq(*steps):
        for st in steps:
            for x in (X, X + 4): a(st(x))
    def xred(op):
        seq(lambda x: f"v_permlane32_swap_b32 v{x}, v{x+1}\nv_permlane32_swap_b32 v{x+2}, v{x+3}",
            lambda x: f"{op} v{x}, v{x}, v{x+1}\n{op} v{x+2}, v{x+2}, v{x+3}",
            lambda x: f"v_permlane16_swap_b32 v{x}, v{x+2}", lambda x: f"{op} v{x}, v{x}, v{x+2}")
    def xbc():
        seq(lambda x: f"v_mov_b32 v{x+2}, v{x}", lambda x: f"v_permlane16_swap_b32 v{x}, v{x+2}",
            lambda x: f"v_mov_b32 v{x+1}, v{x}\nv_mov_b32 v{x+3}, v{x+2}",
            lambda x: f"v_permlane32_swap_b32 v{x}, v{x+1}\nv_permlane32_swap_b32 v{x+2}, v{x+3}")
    sel = lambda n: f"op_sel:[0,{n&1},{n&1}] op_sel_hi:[1,{n&1},{n&1}]"
    for n in range(8): a(f"v_max_f32 v{X+n}, v{V2+2*n}, v{V2+2*n+1}")
    xred("v_max_f32"); seq(lambda x: f"v_mul_f32 v{x}, s31, v{x}"); xbc()
    for n in range(8): a(f"v_pk_fma_f32 {v(V2+2*n,2)}, {v(V2+2*n,2)}, v[6:7], {v(X+(n&6),2)} op_sel:[0,0,{n&1}] op_sel_hi:[1,0,{n&1}] neg_lo:[0,0,1] neg_hi:[0,0,1]")
    for n in range(16): a(f"v_exp_f32 v{V2+n}, v{V2+n}")
    for n in range(8): a(f"v_add_f32 v{X+n}, v{V2+2*n}, v{V2+2*n+1}")
    xred("v_add_f32"); seq(lambda x: f"v_rcp_f32 v{x}, v{x}"); xbc()
    for n in range(8): a(f"v_pk_mul_f32 {v(V2+2*n,2)}, {v(V2+2*n,2)}, {v(X+(n&6),2)} op_sel:[0,{n&1}] op_sel_hi:[1,{n&1}]")
    for n in range(8): cv(X + n, V2 + 2 * n)
    a("s_setprio 2")
    def pv(n):
        t, j = UN[n]
        return [f"v_mfma_f32_16x16x32_bf16 {v(SRS[n],4)}, {v(AV+20*j+2*(t-1),4)}, {v(P[n],4)}, 0", f"v_mfma_f32_16x16x32_bf16 {v(SRS[n]+4,4)}, {v(AW+2*(t-1),4)}, {v(P[n],4)}, 0"]
    for n in range(8):
        pm = [f"v_perm_b32 v{P[n]+i}, v{X+n}, v{X+n}, v{PM+i}" for i in range(4)]
        m = pv(n - 1) if n else ["", ""]
        a(pm[0]); a(pm[1]); a(m[0]); a(pm[2]); a(pm[3]); a(m[1])
    for m in pv(7): a(m)
    O = AQ
    for t in (4, 3, 2, 1):
        n = 2 * (4 - t); o = O + 6 * (4 - t)
        a(f"s_mov_b32 s29, {40*512*(t-1)}")
        for j in range(2):
            cv(o + 2 * j, SRS[n + j]); cv(o + 2 * j + 1, SRS[n + j] + 2)
            a(f"buffer_store_dwordx2 {v(o+2*j,2)}, v12, s[4:7], s29 offen offset:{512*j} {SC}")
        for r in range(4): a(f"v_cndmask_b32 v{SRS[n]+4+r}, v{SRS[n]+4+r}, v{SRS[n+1]+4+r}, s[94:95]")
        cv(o + 4, SRS[n] + 4); cv(o + 5, SRS[n] + 6)
        a(f"s_mov_b64 exec, s[96:97]\nbuffer_store_dwordx2 {v(o+4,2)}, v15, s[4:7], s29 offen offset:2048 {SC}\ns_mov_b64 exec, -1")
    lstamp(a, 3)
    a("s_waitcnt vmcnt(0)"); lstamp(a, 4)
    a(f"s_barrier\ns_cmp_lg_u32 s3, 0\ns_cbranch_scc1 {L}_np\ns_mov_b64 exec, 3\nv_mov_b32 v3, s48\nbuffer_store_dword v3, v14, s[44:47], 0 offen {SC}\ns_mov_b64 exec, -1")
    a.label(f"{L}_np")
    if opt("late"): lstamp(a, 5); a("s_waitcnt vmcnt(0)"); lstamp(a, 6)
    stamp(a, 4, True)

class P2:
    def __init__(s, par, ND=None):
        s.par = par; s.ND = ND or (opt("nd0", 4), 10 - opt("nd0", 4))[par]; s.tag = f"{par}{s.ND}"
        s.SLOT = 8192 + 2048 * s.ND; s.S = min(RING // s.SLOT, opt("p2s%d" % par, 8)); s.AH = s.S - 2
        s.st = opt("stb%d" % par, 0); s.stm = opt("stm", 7)
        s.IN = opt("in%d" % par, 0)
        s.AA = min(opt("aha", 6), s.AH); s.GB = max(opt("gb%d" % par, (7, 5)[par]), 11 - s.AH, 10 - s.AA)
    def adv(s): return f"s_add_u32 s37, s37, {s.SLOT}\ns_cmp_ge_u32 s37, s38\ns_cselect_b32 s42, {s.SLOT*s.S}, 0\ns_sub_u32 s37, s37, s42\ns_add_u32 s34, s34, 1" + ("\ns_cmp_ge_u32 s34, 24\ns_cselect_b32 s34, 0, s34" if s.st else "")
    def phase_b(s): return f"s_and_b32 s34, s50, {s.stm}\ns_mul_i32 s34, s34, {s.st}" if s.st else "s_mov_b32 s34, 0"
    def first(s, a, n, issue, IN=None):
        m = max(s.IN if IN is None else IN, s.AA)
        issue_n(a, m, issue)
        return lambda: [a(f"s_waitcnt vmcnt({n*(m-1-j)})\ns_barrier") for j in range(m - s.AA)]
    def setup_s(s, a):
        a(f"""
        s_load_dwordx2 s[12:13], s[0:1], {KA['w2']}
        v_lshrrev_b32 v2, 3, v1
        v_and_b32 v3, 7, v1
        v_and_b32 v4, 6, v2
        v_xor_b32 v3, v3, v4
        v_lshlrev_b32 v3, 4, v3
        v_lshl_add_u32 v2, v2, 12, v3
        s_lshl_b32 s23, s3, 17
        s_lshl_b32 s26, s50, 7
        s_add_u32 s23, s23, s26
        v_add_u32 v8, s23, v2
        """)
        for i in range(1, 4): a(f"v_add_u32 v{8+i}, {8*4096*i}, v8")
        a(f"s_lshl_b32 s23, s50, 2\ns_mul_i32 s23, s23, 40\ns_lshl_b32 s26, s3, 1\ns_add_u32 s23, s23, s26\ns_lshl_b32 s23, s23, 9\nv_lshl_add_u32 v16, v1, 4, s23")
        for i in range(1, 4): a(f"v_add_u32 v{16+i}, {40*512*i}, v16")
        a(f"s_and_b32 s23, s50, -2\ns_add_u32 s23, s23, {s.par}\ns_lshl_b32 s23, s23, 10\ns_add_u32 s23, s23, {F2}\nv_lshl_add_u32 v12, v1, 7, s23")
        a(f"s_mov_b32 s34, 0\ns_lshl_b32 s37, s3, 12\ns_add_u32 s38, s37, {s.SLOT*s.S}\ns_mov_b32 s33, 0\ns_waitcnt lgkmcnt(0)")
        srd(a, 4, 20, OT_SZ, OT_OFF)
    def early(s, a, n, vflag, tag):
        a(f"""
        s_waitcnt vmcnt({3*n})
        s_barrier
        s_waitcnt vmcnt({2*n})
        s_barrier
        s_mov_b64 exec, 0xff
        buffer_load_dword v2, v{vflag}, s[44:47], 0 offen {SC}
        s_waitcnt vmcnt({n+1})
        s_barrier
        s_waitcnt vmcnt(1)
        s_barrier
        """)
        stamp(a, 2)
        a(f"s_waitcnt vmcnt(0)\nv_cmp_ne_u32 vcc, s48, v2\ns_mov_b64 exec, -1\ns_cmp_eq_u64 vcc, 0\ns_cbranch_scc0 Lp2_{tag}{s.tag}e\ns_barrier\ns_branch Lp2_{tag}{s.tag}k")
    def loader_s(s, a):
        AH, AA = s.AH, s.AA
        s.setup_s(a)
        a.label(f"Lp2_s{s.tag}e")
        a("s_barrier")
        if s.par: w2_slow(a)
        gate(a, 12, 0xff, sl=opt("slp2", 2))
        a.label(f"Lp2_s{s.tag}k")
        stamp(a, 3)
        def issue(sc):
            a(f"s_lshl_b32 s40, s34, {11 if sc else 18}" if not opt("w2wrap") else f"s_and_b32 s40, s34, 1\ns_lshl_b32 s40, s40, {11 if sc else 18}")
            for i in range(4): a(f"s_add_u32 m0, s37, {1024*i}\nbuffer_load_dwordx4 v{(16 if sc else 8)+i}, s[4:7], s40 offen {sc} lds")
            a(s.adv())
        s.first(a, 4, lambda: issue(SC), opt("ins", 0))()
        steady(a, 10, 4, AA, lambda: issue(SC))
        srd(a, 4, 12, F_ * 4096); a(s.phase_b())
        if AA < AH: a(f"s_waitcnt vmcnt({4*(AA-1)})\ns_barrier"); issue_n(a, AH - AA + 1, lambda: issue(""))
        steady(a, 34, 4, AH, lambda: issue(""))
        stamp(a, 5)
        drain(a, 4, AH)
        endp(a)
    def setup_d(s, a):
        ND = s.ND
        a(f"s_sub_u32 s22, s3, 2\ns_mul_i32 s23, s51, 68\ns_add_u32 s23, s23, s22\ns_lshl_b32 s23, s23, 10\nv_lshl_add_u32 v8, v1, 4, s23")
        for i in range(1, ND): a(f"v_add_u32 v{8+i}, {68*1024*i}, v8")
        a(f"""
        s_mul_i32 s37, s22, {1024*ND}
        s_add_u32 s37, s37, 8192
        s_add_u32 s38, s37, {s.SLOT*s.S}
        s_lshl_b32 s23, s52, 10
        s_add_u32 s23, s23, {F3}
        v_lshl_add_u32 v16, v1, 7, s23
        s_lshr_b32 s23, s51, 2
        s_lshl_b32 s23, s23, 11
        s_lshr_b32 s26, s52, 1
        s_mul_i32 s26, s26, {160*128}
        s_add_u32 s23, s23, s26
        s_add_u32 s23, s23, {F4}
        v_lshl_add_u32 v17, v1, 7, s23
        s_mov_b32 s34, 0
        s_mov_b32 s36, 48
        s_mov_b32 s33, 0
        """)
        srd(a, 8, 20, UW_SZ, UW_OFF)
    def loader_d(s, a):
        AH, AA, GB, ND = s.AH, s.AA, s.GB, s.ND
        s.setup_d(a)
        a.label(f"Lp2_d{s.tag}e")
        if s.par: gate(a, 16, 0xff); a("" if opt("wearly") else "s_barrier")
        else: a("s_barrier"); gate(a, 16, 0xff)
        a.label(f"Lp2_d{s.tag}k")
        stamp(a, 3)
        def issue():
            a(("s_and_b32 s41, s34, 1\ns_lshl_b32 s41, s41, 1" if opt("uwrap") else "s_lshl_b32 s41, s34, 1") + "\ns_add_u32 s41, s41, s36\ns_lshl_b32 s41, s41, 10")
            for i in range(ND): a(f"s_add_u32 m0, s37, {1024*i}\nbuffer_load_dwordx4 v{8+i}, s[8:11], s41 offen {'' if opt('uplain') else SC} lds")
            a(s.adv())
        f = s.first(a, ND, issue)
        if s.par and opt("wearly"): a("s_barrier")
        f()
        steady(a, 10, ND, AA, issue)
        for j in range(10 - AA, GB): a(f"s_waitcnt vmcnt({ND*(9-j)})\ns_barrier")
        a("s_mov_b32 s36, 0\n" + s.phase_b())
        gate(a, 17, 0x0fff if ND == 4 else 0x0fff0fff, sl=opt("slp4", 2))
        stamp(a, 4)
        issue_n(a, GB + AH - 10, issue)
        steady(a, 34, ND, AH, issue)
        stamp(a, 5)
        drain(a, ND, AH)
        endp(a)
    def consumer1(s, a):
        ND = s.ND; L = f"Lp2{s.tag}"
        ACB = 16; ACA = ACB + 4 * ND; KS = 4 + 4 * ND; SETS = (ACA + 4 * ND, ACA + 4 * ND + 2 * KS)
        a(f"""
        s_load_dwordx2 s[24:25], s[0:1], {KA['b2']}
        s_load_dwordx2 s[28:29], s[0:1], {KA['out']}
        s_lshl_b32 s23, s50, 6
        s_lshl_b32 s26, s3, 4
        s_add_u32 s23, s23, s26
        v_and_b32 v2, 15, v1
        v_add_u32 v2, s23, v2
        v_lshlrev_b32 v3, 1, v2
        v_lshlrev_b32 v4, 3, v2
        s_waitcnt lgkmcnt(0)
        """)
        srd(a, 24, 24, 4096); srd(a, 8, 20, G_SZ, G_OFF); srd(a, 28, 28, S_ * 1280)
        a(f"""
        buffer_load_ushort v10, v3, s[24:27], 0 offen
        s_setprio 0
        v_lshrrev_b32 v5, 2, v1
        v_lshrrev_b32 v6, 1, v5
        v_and_b32 v6, 3, v6
        v_xor_b32 v6, s3, v6
        v_lshlrev_b32 v6, 5, v6
        v_lshl_add_u32 v5, v5, 7, v6
        v_and_b32 v6, 3, v1
        v_lshl_add_u32 v8, v6, 3, v5
        v_lshlrev_b32 v9, 4, v1
        v_add_u32 v9, 8192, v9
        v_mul_u32_u24 v12, 1280, v2
        v_lshrrev_b32 v6, 4, v1
        v_lshl_add_u32 v12, v6, 3, v12
        s_lshl_b32 s26, s51, 5
        v_add_u32 v12, s26, v12
        s_lshl_b32 s26, s3, 10
        v_lshl_add_u32 v13, v1, 3, s26
        v_and_b32 v14, 1, v6
        v_mul_u32_u24 v14, 24, v14
        v_add_u32 v14, v14, v12
        """)
        for i in range(4 * ND): a(f"v_mov_b32 v{ACA+i}, 0")
        def reads(st, ph="b"):
            r = []
            for kk in range(2):
                b = SETS[st] + KS * kk
                if ph == "a": r += [(f"ds_read_b64 {v(b,2)}, v13 offset:{kk*4096}", (kk, "b0")), (f"ds_read_b64 {v(b+2,2)}, v13 offset:{kk*4096+512}", (kk, "b1"))]
                else: r += [(f"ds_read_b64_tr_b16 {v(b,2)}, v8 offset:{kk*4096}", (kk, "b0")), (f"ds_read_b64_tr_b16 {v(b+2,2)}, v8 offset:{kk*4096+2048}", (kk, "b1"))]
                r += [(f"ds_read_b128 {v(b+4+4*dt,4)}, v9 offset:{(kk*ND+dt)*1024}", (kk, dt)) for dt in range(ND)]
            return r
        def mf(acc, st):
            return [(f"v_mfma_f32_16x16x32_bf16 {v(acc+4*dt,4)}, {v(SETS[st]+KS*kk+4+4*dt,4)}, {v(SETS[st]+KS*kk,4)}, {v(acc+4*dt,4)}", {(kk, "b1"), (kk, dt)}) for kk in range(2) for dt in range(ND)]
        ids = [x[1] for x in reads(0)]
        adv = slot_adv(s.SLOT, s.S) + ["v_add_u32 v8, s40, v8", "v_add_u32 v9, s40, v9"]
        a("s_mov_b32 s33, 0\ns_mov_b32 s37, 0\ns_barrier"); stamp(a, 5, True)
        adva = adv + ["v_add_u32 v13, s40, v13"]
        emit_step(a, [], [], reads(0, "a"), adva)
        a.label(f"{L}_ca", 3)
        a("s_barrier")
        emit_step(a, mf(ACA, 0), ids, reads(1, "a"), adva + ["s_add_u32 s33, s33, 2", "s_cmp_ge_u32 s33, 10"])
        a(f"s_barrier\ns_cbranch_scc1 {L}_cax")
        emit_step(a, mf(ACA, 1), ids, reads(0, "a"), adva)
        a(f"s_branch {L}_ca")
        a.label(f"{L}_cax")
        emit_step(a, mf(ACA, 1), ids, reads(0, "b"), adv)
        a(f"s_waitcnt vmcnt(0)\nbuffer_load_dwordx2 v[6:7], v4, s[8:11], 0 offen {SC}\nv_lshlrev_b32 v10, 16, v10")
        for i in range(4 * ND): a(f"v_mov_b32 v{ACB+i}, v10")
        a.label(f"{L}_cb", 3)
        a("s_barrier")
        emit_step(a, mf(ACB, 0), ids, reads(1), adv + ["s_add_u32 s33, s33, 2", "s_cmp_ge_u32 s33, 34"])
        a(f"s_cbranch_scc1 {L}_clast\ns_barrier")
        emit_step(a, mf(ACB, 1), ids, reads(0), adv)
        a(f"s_branch {L}_cb")
        a.label(f"{L}_clast")
        emit_step(a, mf(ACB, 1), ids, [], [])
        stamp(a, 6)
        a(f"""
        s_mov_b32 s49, 0
        {L}_g:
        s_waitcnt vmcnt(0)
        v_cmp_ne_u32 vcc, s48, v7
        s_add_u32 s49, s49, 1
        s_cmp_eq_u64 vcc, 0
        s_cbranch_scc1 {L}_gk
        buffer_load_dwordx2 v[6:7], v4, s[8:11], 0 offen {SC}
        s_cmp_lt_u32 s49, 20000
        s_cbranch_scc1 {L}_g
        s_waitcnt vmcnt(0)
        {L}_gk:
        """)
        aux = 'sc1' if opt('osc1') else ''; O = SETS[0]
        for dt in range(ND):
            for r in range(0, 4, 2): a(f"v_pk_add_f32 {v(ACA+4*dt+r,2)}, {v(ACA+4*dt+r,2)}, {v(ACB+4*dt+r,2)} neg_lo:[0,1] neg_hi:[0,1]")
            for r in range(0, 4, 2): a(f"v_pk_fma_f32 {v(ACB+4*dt+r,2)}, {v(ACA+4*dt+r,2)}, v[6:7], {v(ACB+4*dt+r,2)} op_sel_hi:[1,0,1]")
            a(f"v_cvt_pk_bf16_f32 v{O+2*dt}, v{ACB+4*dt}, v{ACB+4*dt+1}\nv_cvt_pk_bf16_f32 v{O+1+2*dt}, v{ACB+4*dt+2}, v{ACB+4*dt+3}")
            if dt & 1:
                b = O + 2 * (dt - 1)
                a(f"v_permlane16_swap_b32 v{b}, v{b+2}\nv_permlane16_swap_b32 v{b+1}, v{b+3}\nbuffer_store_dwordx4 {v(b,4)}, v14, s[28:31], 0 offen offset:{32*(dt-1)} {aux}")
            elif dt == ND - 1: a(f"buffer_store_dwordx2 {v(O+2*dt,2)}, v12, s[28:31], 0 offen offset:{32*dt} {aux}")
        endp(a)
    def consumer(s, a):
        if s.ND % 2: return s.consumer1(a)
        ND = s.ND; NH = ND // 2; L = f"Lp2{s.tag}"
        ACB = 20; ACA = ACB + 8 * NH; KS = 8 + 4 * NH; SETS = (ACA + 8 * NH, ACA + 8 * NH + 2 * KS)
        a(f"""
        s_load_dwordx2 s[24:25], s[0:1], {KA['b2']}
        s_load_dwordx2 s[28:29], s[0:1], {KA['out']}
        s_and_b32 s27, s3, 2
        s_lshl_b32 s23, s50, 6
        s_lshl_b32 s26, s27, 4
        s_add_u32 s23, s23, s26
        v_and_b32 v2, 15, v1
        v_add_u32 v2, s23, v2
        v_lshlrev_b32 v3, 1, v2
        v_lshlrev_b32 v4, 3, v2
        s_and_b32 s22, s3, 1
        s_mul_i32 s22, s22, {NH}
        v_lshrrev_b32 v5, 2, v1
        v_lshrrev_b32 v6, 1, v5
        v_and_b32 v6, 3, v6
        v_xor_b32 v6, s27, v6
        v_lshlrev_b32 v6, 5, v6
        v_lshl_add_u32 v5, v5, 7, v6
        v_and_b32 v6, 3, v1
        v_lshl_add_u32 v8, v6, 3, v5
        v_xor_b32 v15, 32, v8
        s_lshl_b32 s23, s22, 10
        s_add_u32 s23, s23, 8192
        v_lshl_add_u32 v9, v1, 4, s23
        s_lshl_b32 s23, s27, 10
        v_lshl_add_u32 v13, v1, 3, s23
        v_mul_u32_u24 v12, 1280, v2
        v_lshrrev_b32 v6, 4, v1
        v_lshl_add_u32 v12, v6, 3, v12
        s_add_u32 s23, s22, s51
        s_lshl_b32 s23, s23, 5
        v_add_u32 v12, s23, v12
        v_and_b32 v14, 1, v6
        v_mul_u32_u24 v14, 24, v14
        v_add_u32 v14, v14, v12
        s_waitcnt lgkmcnt(0)
        """)
        srd(a, 24, 24, 4096); srd(a, 8, 20, G_SZ, G_OFF); srd(a, 28, 28, S_ * 1280)
        a("buffer_load_ushort v10, v3, s[24:27], 0 offen\nbuffer_load_ushort v11, v3, s[24:27], 0 offen offset:32\ns_setprio 0")
        for i in range(8 * NH): a(f"v_mov_b32 v{ACA+i}, 0")
        def reads(st, ph="b"):
            r = []
            for kk in range(2):
                b = SETS[st] + KS * kk
                def bread(t):
                    if ph == "a": return [(f"ds_read_b64 {v(b+4*t+2*h,2)}, v13 offset:{kk*4096+1024*t+512*h}", (kk, "b", t, h)) for h in range(2)]
                    return [(f"ds_read_b64_tr_b16 {v(b+4*t+2*h,2)}, v{(8, 15)[t]} offset:{kk*4096+2048*h}", (kk, "b", t, h)) for h in range(2)]
                r += bread(0) + [(f"ds_read_b128 {v(b+8+4*dt,4)}, v9 offset:{(kk*ND+dt)*1024}", (kk, dt)) for dt in range(NH)] + bread(1)
            return r
        def mf(acc, st):
            return [(f"v_mfma_f32_16x16x32_bf16 {v(acc+4*(NH*t+dt),4)}, {v(SETS[st]+KS*kk+8+4*dt,4)}, {v(SETS[st]+KS*kk+4*t,4)}, {v(acc+4*(NH*t+dt),4)}", {(kk, "b", t, 1), (kk, dt)})
                    for kk in range(2) for t in range(2) for dt in range(NH)]
        ids = [x[1] for x in reads(0)]
        adv = slot_adv(s.SLOT, s.S) + ["v_add_u32 v8, s40, v8", "v_add_u32 v15, s40, v15", "v_add_u32 v9, s40, v9"]
        a("s_mov_b32 s33, 0\ns_mov_b32 s37, 0\ns_barrier"); stamp(a, 5, True)
        adva = adv + ["v_add_u32 v13, s40, v13"]
        emit_step(a, [], [], reads(0, "a"), adva)
        a.label(f"{L}_ca", 3)
        a("s_barrier")
        emit_step(a, mf(ACA, 0), ids, reads(1, "a"), adva + ["s_add_u32 s33, s33, 2", "s_cmp_ge_u32 s33, 10"])
        a(f"s_barrier\ns_cbranch_scc1 {L}_cax")
        emit_step(a, mf(ACA, 1), ids, reads(0, "a"), adva)
        a(f"s_branch {L}_ca")
        a.label(f"{L}_cax")
        emit_step(a, mf(ACA, 1), ids, reads(0, "b"), adv)
        gl = f"buffer_load_dwordx2 v[16:17], v4, s[8:11], 0 offen {SC}\nbuffer_load_dwordx2 v[18:19], v4, s[8:11], 0 offen offset:128 {SC}"
        a(f"s_waitcnt vmcnt(0)\n{gl}\nv_lshlrev_b32 v10, 16, v10\nv_lshlrev_b32 v11, 16, v11")
        for i in range(8 * NH): a(f"v_mov_b32 v{ACB+i}, v{10 + i // (4 * NH)}")
        a.label(f"{L}_cb", 3)
        a("s_barrier")
        emit_step(a, mf(ACB, 0), ids, reads(1), adv + ["s_add_u32 s33, s33, 2", "s_cmp_ge_u32 s33, 34"])
        a(f"s_cbranch_scc1 {L}_clast\ns_barrier")
        emit_step(a, mf(ACB, 1), ids, reads(0), adv)
        a(f"s_branch {L}_cb")
        a.label(f"{L}_clast")
        emit_step(a, mf(ACB, 1), ids, [], [])
        stamp(a, 6)
        a(f"""
        s_mov_b32 s49, 0
        s_mov_b32 s22, {16*1280}
        {L}_g:
        s_waitcnt vmcnt(0)
        v_cmp_ne_u32 vcc, s48, v17
        v_cmp_ne_u32 s[26:27], s48, v19
        s_add_u32 s49, s49, 1
        s_or_b64 vcc, vcc, s[26:27]
        s_cbranch_scc0 {L}_gk
        {gl}
        s_cmp_lt_u32 s49, 20000
        s_cbranch_scc1 {L}_g
        s_waitcnt vmcnt(0)
        {L}_gk:
        """)
        O = SETS[0]
        for t in range(2):
            so = "s22" if t else "0"
            for dt in range(NH):
                x = 4 * (NH * t + dt); o = O + 8 * t + 2 * dt
                for r in (0, 2): a(f"v_pk_add_f32 {v(ACA+x+r,2)}, {v(ACA+x+r,2)}, {v(ACB+x+r,2)} neg_lo:[0,1] neg_hi:[0,1]")
                for r in (0, 2): a(f"v_pk_fma_f32 {v(ACB+x+r,2)}, {v(ACA+x+r,2)}, {v(16+2*t,2)}, {v(ACB+x+r,2)} op_sel_hi:[1,0,1]")
                a(f"v_cvt_pk_bf16_f32 v{o}, v{ACB+x}, v{ACB+x+1}\nv_cvt_pk_bf16_f32 v{o+1}, v{ACB+x+2}, v{ACB+x+3}")
                if dt == 1:
                    b = o - 2
                    a(f"v_permlane16_swap_b32 v{b}, v{b+2}\nv_permlane16_swap_b32 v{b+1}, v{b+3}\nbuffer_store_dwordx4 {v(b,4)}, v14, s[28:31], {so} offen {'nt' if opt('ont') else ''}")
                elif dt == 2: a(f"buffer_store_dwordx2 {v(o,2)}, v12, s[28:31], {so} offen offset:64 {'nt' if opt('ont') else ''}")
        endp(a)

def gen_main(a, name):
    kernel_head(a, name)
    if PROF:
        for i in range(1, 8): a(f"s_mov_b64 s[{70+2*i}:{71+2*i}], 0")
        stamp(a, 0); a("s_memtime s[66:67]")
    a(f"""
    s_cmp_ge_u32 s2, 256
    s_cbranch_scc1 Lend
    {"s_and_b32 s22, s2, 7" + chr(10) + "s_lshl_b32 s22, s22, 5" + chr(10) + "s_lshr_b32 s2, s2, 3" + chr(10) + "s_or_b32 s2, s2, s22" if opt("perm") else ""}
    s_load_dwordx2 s[20:21], s[0:1], {KA['ws']}
    v_lshrrev_b32 v1, 6, v0
    v_readfirstlane_b32 s3, v1
    v_and_b32 v1, 63, v0
    {"s_and_b32 s52, s2, 3" + chr(10) + "s_lshl_b32 s52, s52, 1" + chr(10) + "s_bfe_u32 s53, s2, 0x10002" + chr(10) + "s_or_b32 s52, s52, s53" if opt("lo") else "s_and_b32 s52, s2, 7"}
    s_lshr_b32 s53, s2, 3
    s_lshr_b32 s22, s52, 1
    s_lshl_b32 s50, s22, 3
    s_and_b32 s23, s53, 7
    s_add_u32 s50, s50, s23
    s_lshr_b32 s26, s53, 3
    """)
    if PROF: a("s_mov_b32 s69, s3")
    NG = 15 if opt("mixed") else 30
    a("s_cmp_ge_u32 s53, 16\ns_cbranch_scc1 Lrole_qa" if opt("mixed") else "s_bitcmp1_b32 s52, 0\ns_cbranch_scc1 Lrole_qa")
    PE, PO = P2(0), P2(1)
    MX = opt("mix", 0)
    a(f"s_and_b32 s54, s23, {MX}\ns_cselect_b32 s51, 5, {PE.ND}\ns_mul_i32 s51, s51, s26")
    a(f"""
    {"s_lshl_b32 s19, s52, 4" if opt("mixed") else "s_lshl_b32 s19, s22, 5"}
    s_add_u32 s19, s19, s53
    s_mul_i32 s17, s53, 86
    s_lshr_b32 s17, s17, 8
    s_mul_i32 s23, s17, 3
    s_sub_u32 s23, s53, s23
    s_mul_i32 s16, s22, 3
    s_add_u32 s16, s16, s23
    """)
    if opt("mixed"): a("s_and_b32 s26, s52, 1\ns_mul_i32 s26, s26, 5\ns_add_u32 s17, s17, s26")
    if opt("sweep"): a("s_mov_b32 s18, 0")
    else: a("s_mul_i32 s18, s17, 205\ns_lshr_b32 s18, s18, 6")
    a("s_cmp_ge_u32 s3, 4\ns_cbranch_scc1 Lg_cons\ns_setprio 1\ns_cmp_ge_u32 s3, 2\ns_cbranch_scc1 Lg_h")
    def flags():
        a(f"s_waitcnt lgkmcnt(0)"); srd(a, 44, 20, FL_SZ, FL_OFF); a(f"s_load_dword s48, s[44:45], {FZ}")
    a(f"s_load_dwordx2 s[4:5], s[0:1], {KA['w1']}"); flags()
    a(f"s_cmp_ge_u32 s53, {NG}\ns_cbranch_scc1 Lsp_w")
    a("; ---- even slots, waves 0-1: w1 tiles"); g1_loader_w(a)
    a.label("Lsp_w"); a("; ---- spare workgroups, waves 0-3: wo -> fragments")
    if opt("sweep"): w1_sweep(a)
    else: a("s_barrier"); tag_ready(a); a("s_barrier")
    a.label("Lsp_l"); a("s_mov_b32 s16, s52" if opt("mixed") else "s_lshr_b32 s16, s52, 1\ns_lshl_b32 s16, s16, 1\ns_add_u32 s16, s16, s53\ns_sub_u32 s16, s16, 30"); spare_loader(a)
    a("s_cmp_ge_u32 s3, 2\ns_cbranch_scc1 Lp2_d0\ns_branch Lp2_s0")
    a.label("Lg_h"); code_prefetch(a)
    if opt("mixed"):
        a(f"s_load_dwordx2 s[4:5], s[0:1], {KA['w1']}"); flags(); w1_sweep(a)
        a("s_cmp_ge_u32 s53, 15\ns_cbranch_scc1 Lsp_l")
    else:
        if opt("wsw"):
            a(f"s_load_dwordx2 s[8:9], s[0:1], {KA['wqkv']}")
        flags()
        if opt("wsw"):
            a("s_lshl_b32 s22, s19, 1\ns_add_u32 s22, s22, s3\ns_sub_u32 s22, s22, 2\ns_mul_i32 s23, s22, 11\ns_add_u32 s23, s23, 16384\ns_lshl_b32 s23, s23, 7\ns_lshl_b32 s22, s22, 13\nv_lshlrev_b32 v2, 7, v1")
            srd(a, 8, 8, 640 * 3840)
        if opt("wsw") == 2: a("s_barrier")
        if opt("wsw"): a("buffer_load_dword v40, v2, s[8:11], s22 offen\ns_mov_b64 exec, 0x7ff\nbuffer_load_dword v41, v2, s[8:11], s23 offen\ns_mov_b64 exec, -1")
        if opt("wsw") != 2: a("s_barrier")
        a("s_cmp_lt_u32 s53, 30\ns_cbranch_scc1 Lg_h2"); tag_ready(a); a("s_barrier\ns_branch Lsp_l")
    a.label("Lg_h2"); a("; ---- even slots, waves 2-3: h tiles"); g1_loader_h(a)
    a.label("Lg_cons"); a("; ---- even slots, waves 4-7: layernorm, then the first MLP GEMM")
    a(f"s_setprio 2\ns_load_dwordx2 s[4:5], s[0:1], {KA['x']}\ns_load_dwordx2 s[8:9], s[0:1], {KA['gw']}\ns_sub_u32 s3, s3, 4")
    ln_issue(a)
    srd(a, 44, 20, FL_SZ, FL_OFF)
    a(f"v_mov_b32 v2, {CTR}\nv_mov_b32 v6, 0\nv_mov_b32 v7, 0\nv_mov_b32 v8, 0\nv_mov_b32 v9, 0\nds_write_b128 v2, v[6:9]\ns_waitcnt lgkmcnt(0)\ns_barrier\ns_load_dword s48, s[44:45], {FZ}")
    ln_finish(a); stamp(a, 1, True)
    a(f"s_cmp_ge_u32 s53, {NG}\ns_cbranch_scc1 Lsp_cons")
    g1_consumer(a); a("s_branch Lp2_c0")
    a.label("Lsp_cons")
    if (opt("sweep") and not opt("noslowcol")):
        R0, SW = opt("sc0", 1024), opt("scw", 1)
        a(f"""
        s_load_dwordx2 s[4:5], s[0:1], {KA['w1']}
        s_lshr_b32 s22, s52, 1
        s_cmp_eq_u32 s22, 2
        s_cselect_b32 s23, 4, s3
        s_cmp_ge_u32 s23, {SW}
        s_cbranch_scc1 Lsc_done
        s_min_u32 s22, s22, 2
        s_lshl_b32 s22, s22, 10
        s_add_u32 s22, s22, {384 + R0 * 3072}
        s_and_b32 s23, s53, 1
        s_mul_i32 s23, s23, {SW}
        s_add_u32 s23, s23, s3
        s_lshl_b32 s23, s23, 6
        v_add_u32 v2, s23, v1
        v_mul_u32_u24 v2, 3072, v2
        s_mov_b32 s33, 0
        s_waitcnt lgkmcnt(0)
        """)
        srd(a, 4, 4, S_ * 3072)
        a(f"Lsc_l:\nbuffer_load_dword v3, v2, s[4:7], s22 offen\ns_add_u32 s22, s22, {128*SW*3072}\ns_add_u32 s33, s33, 1\ns_cmp_lt_u32 s33, {-(-(2048-R0)//(128*SW))}\ns_waitcnt vmcnt(0)\ns_cbranch_scc1 Lsc_l\nLsc_done:\ns_waitcnt lgkmcnt(0)")
    a("s_barrier")
    nw, r0, nr = opt("cw", 2), opt("cr0", 384), opt("cnr", 768)
    if nw:
        a(f"""
        s_cmp_ge_u32 s3, {nw}
        s_cbranch_scc1 Lc3_d
        s_load_dwordx2 s[12:13], s[0:1], {KA['w2']}
        s_lshr_b32 s22, s50, 1
        s_lshl_b32 s22, s22, 11
        s_add_u32 s22, s22, {F2}
        v_mov_b32 v12, s22
        """)
        gate(a, 12, 1)
        a(f"""
        s_and_b32 s22, s53, 1
        s_mul_i32 s22, s22, {nw}
        s_add_u32 s22, s22, s3
        s_lshl_b32 s22, s22, 6
        v_add_u32 v2, s22, v1
        v_lshlrev_b32 v2, 12, v2
        s_lshr_b32 s22, s52, 1
        s_lshl_b32 s22, s22, 10
        s_add_u32 s22, s22, {384 + r0 * 4096}
        s_mov_b32 s33, 0
        s_waitcnt lgkmcnt(0)
        """)
        srd(a, 12, 12, F_ * 4096)
        a(f"Lc3_l:\nbuffer_load_dword v30, v2, s[12:15], s22 offen\ns_add_u32 s22, s22, {128*nw*4096}\ns_add_u32 s33, s33, 1\ns_cmp_lt_u32 s33, {nr//(128*nw)}\ns_waitcnt vmcnt(0)\ns_cbranch_scc1 Lc3_l\nLc3_d:")
    a("s_lshl_b32 s22, s3, 8\ns_add_u32 s22, s22, s2\ns_cmp_lg_u32 s22, 240\ns_cbranch_scc1 Lp2_c0"); step_tag(a); a("s_branch Lp2_c0")
    a.label("Lrole_qa"); a("; ---- odd slots: qkv projection + attention")
    a(f"s_and_b32 s54, s23, {MX}\ns_cselect_b32 s51, 5, {PO.ND}\ns_cselect_b32 s27, 20, {4*PE.ND}\ns_mul_i32 s51, s51, s26\ns_add_u32 s51, s51, s27")
    if opt("mixed"): a("s_and_b32 s23, s53, 3\ns_lshl_b32 s16, s22, 2\ns_add_u32 s16, s16, s23\ns_lshr_b32 s26, s53, 2\ns_and_b32 s26, s26, 3\ns_and_b32 s17, s52, 1\ns_lshl_b32 s17, s17, 2\ns_add_u32 s17, s17, s26")
    else: a(f"""
    s_and_b32 s16, s22, 1
    s_lshl_b32 s16, s16, 3
    s_add_u32 s16, s16, s23
    s_lshr_b32 s17, s22, 1
    s_lshl_b32 s17, s17, 2
    s_add_u32 s17, s17, s26
    """)
    if opt("nsq"): a("s_mov_b32 s18, 0")
    elif not opt("q8") and not opt("q4"): a("s_xor_b32 s18, s26, s23\ns_and_b32 s18, s18, 1\ns_mul_i32 s18, s18, 5")
    elif opt("q4"): a("s_add_u32 s18, s26, s23\ns_and_b32 s18, s18, 3\ns_mul_i32 s18, s18, 5\ns_lshr_b32 s18, s18, 1")
    elif opt("mixed"): a("s_add_u32 s18, s26, s23\ns_and_b32 s18, s18, 3\ns_mul_i32 s18, s18, 10\ns_lshr_b32 s18, s18, 2")
    else: a("s_lshl_b32 s18, s26, 1\ns_add_u32 s18, s18, s23\ns_and_b32 s18, s18, 7\ns_mul_i32 s18, s18, 10\ns_lshr_b32 s18, s18, 3")
    a(f"s_cmp_ge_u32 s3, 4\ns_cbranch_scc1 Lq_cons\ns_setprio 1\ns_cmp_eq_u32 s3, 3\ns_cbranch_scc1 Lq_idle")
    a(f"s_load_dwordx2 s[4:5], s[0:1], {KA['x']}\ns_load_dwordx2 s[8:9], s[0:1], {KA['wqkv']}"); qa_w1_sweep(a); flags(); qa_loader(a)
    a("s_cmp_ge_u32 s3, 2\ns_cbranch_scc1 Lp2_d1\ns_branch Lp2_s1")
    a.label("Lq_idle"); a(f"s_load_dwordx2 s[4:5], s[0:1], {KA['x']}\ns_load_dwordx2 s[8:9], s[0:1], {KA['wqkv']}"); flags(); qa_idle(a); a("s_branch Lp2_d1")
    a.label("Lq_cons"); a("s_sub_u32 s3, s3, 4"); flags()
    qa_consumer(a)
    for p in (PO, PE):
        for k, f in (("c", P2.consumer), ("s", P2.loader_s), ("d", P2.loader_d)):
            a.label(f"Lp2_{k}{p.par}"); a(f"; ---- output tile 64 x {16*p.ND}: " + dict(c="MFMA waves", s="loader of o / w2", d="loader of wo / u")[k])
            if MX: a(f"s_cmp_lg_u32 s54, 0\ns_cbranch_scc1 Lp2_{k}{p.par}x")
            f(p, a)
            if MX: a.label(f"Lp2_{k}{p.par}x"); f(P2(p.par, 5), a)
    a.label("Lend"); a("s_endpgm")
    a.raw("Lcode_end:")
    return kernel_desc(name, 256, 102)

def gen_osc(a, name):
    kernel_head(a, name)
    o = next(o for o in OPTS if o.startswith("osc"))[3:].split("_")
    a(f"s_cmp_ge_u32 s2, 1\ns_cbranch_scc1 Losc_end\ns_load_dwordx2 s[4:5], s[0:1], {KA['ws']}\ns_waitcnt lgkmcnt(0)")
    srd(a, 4, 4, 0x100000, TL_OFF + (0x80000 if opt("pthr") else 0x40000))
    def red(dst, base, stride, count, wave, slot, op):
        n = -(-count // 64)
        for i in range(n):
            a(f"v_add_u32 v1, {64*i}, v0\nv_min_u32 v1, {count-1}, v1\nv_mul_u32_u24 v1, {stride}, v1\nv_add_u32 v1, {base}, v1\nv_lshlrev_b32 v1, 9, v1\ns_mov_b32 s8, {wave*64 + slot*4}")
            a(f"buffer_load_dword v{4+i}, v1, s[4:7], s8 offen")
        a("s_waitcnt vmcnt(0)")
        if op == "add":
            for i in range(n): a(f"v_subrev_u32 v{4+i}, s20, v{4+i}")
        for i in range(1, n): a(f"v_{op}_u32 v4, v4, v{4+i}")
        a(f"v_readlane_b32 s{dst}, v4, 0")
        for i in range(1, 64): a(f"v_readlane_b32 s9, v4, {i}\ns_nop 0\ns_{op}_u32 s{dst}, s{dst}, s9")
        if op == "add": a(f"s_lshr_b32 s{dst}, s{dst}, {(64*n).bit_length()-1}\ns_add_u32 s{dst}, s{dst}, s20")
    red(20, 0, 1, 256, 0, 0, "min")
    if len(o) > 1:
        red(21, int(o[0]), int(o[1]), int(o[2]), int(o[3]), int(o[4]), dict(n="min", x="max", a="add")[o[5]])
        a("s_sub_u32 s21, s21, s20\ns_min_u32 s21, s21, 20000\ns_lshl_b32 s21, s21, 2")
    else: a("s_mov_b32 s21, 0")
    a("s_add_u32 s21, s21, 10000\nLosc_spin:\ns_memrealtime s[10:11]\ns_waitcnt lgkmcnt(0)\ns_sub_u32 s10, s10, s20\ns_cmp_lt_u32 s10, s21\ns_cbranch_scc1 Losc_spin")
    a.label("Losc_end"); a("s_endpgm")
    return kernel_desc(name, 16, 32)

def gen_probe(a, name, vg):
    kernel_head(a, name)
    a(f"s_memrealtime s[70:71]\ns_cmp_ge_u32 s2, 256\ns_cbranch_scc1 Lpr_end\ns_load_dwordx2 s[4:5], s[0:1], {KA['ws']}\ns_waitcnt lgkmcnt(0)")
    srd(a, 4, 4, 0x100000, TL_OFF + 0x80000)
    a("s_lshl_b32 s8, s2, 9\nv_mov_b32 v1, s8\nv_mov_b32 v2, s70\nv_cmp_eq_u32 vcc, 0, v0\ns_and_saveexec_b64 s[10:11], vcc\ns_cbranch_execz Lpr_end\nbuffer_store_dword v2, v1, s[4:7], 0 offen")
    a.label("Lpr_end"); a("s_endpgm")
    return kernel_desc(name, vg, 102)

DOC = """;
; waves 4-7 read fragments and run v_mfma_f32_16x16x32_bf16; one s_barrier per K step).  id&7 picks the role; that
; Hand-offs through d_ws: write-through (sc1) stores, s_waitcnt vmcnt(0) in every storing wave, then one flag per
;"""

def build(spec=""):
    global PROF
    OPTS[:] = [o for o in spec.split("+") if o]; PROF = bool(opt("prof")); UID[0] = 0
    ref = open(f"cdna_kernels/{NAME}.s.ref").read().split("\n")
    head = ref[:ref.index(next(x for x in ref if x.startswith("; Override")))]
    a = Asm(); a.raw("\n".join(head))
    if opt("lo"): a.raw("; lo")
    osc = any(o.startswith("osc") and o != "osc1" for o in OPTS)
    if opt("pthr"): a.raw(f"; @launch kernel=probe_kernel grid=(256,1,1) block=({opt('pthr')},1,1) lds={opt('plds', 0)}")
    if osc: a.raw(f"; @launch kernel={NAME}_kernel grid=(256,1,1) block=(512,1,1) lds={LDS_SZ}\n; @launch kernel=osc_kernel grid=(1,1,1) block=(64,1,1) lds=0")
    else: a.raw(f"; @launch grid=(256,1,1) block=(512,1,1) lds={LDS_SZ}")
    a.raw(DOC)
    a.raw('.amdgcn_target "amdgcn-amd-amdhsa--gfx950"')
    d = gen_main(a, NAME + "_kernel")
    if osc: d += gen_osc(a, "osc_kernel")
    if opt("pthr"): d += gen_probe(a, "probe_kernel", opt("pvg"))
    if opt("nocomp"): a.lines = [(t, c) for t, c in a.lines if not (c is not None and (c.kind == "mfma" or c.op.startswith("ds_read")))]
    if opt("noload"): a.lines = [(t, c) for t, c in a.lines if not (c is not None and c.kind == "vmem" and c.lds)]
    if opt("nomfma"): a.lines = [(t, c) for t, c in a.lines if not (c is not None and c.kind == "mfma")]
    if opt("nods"): a.lines = [(t, c) for t, c in a.lines if not (c is not None and c.op.startswith("ds_read"))]
    if opt("nowait"): a.lines = [(t, c) for t, c in a.lines if not (c is not None and c.op == "s_waitcnt" and "lgkm" in t and "(0)" not in t)]
    if opt("al"): a.align_hot([("Lg1_c", "Lg1_clast"), ("Lp2_ca", "Lp2_cax"), ("Lp2_cb", "Lp2_clast")])
    if opt("lp") is not None: a.lines = [((t.replace("s_setprio 1", f"s_setprio {opt('lp')}"), c) if c is not None and c.op == "s_setprio" else (t, c)) for t, c in a.lines]
    bad = a.check_branches()
    for b in bad: print("HAZARD across branch:", b, file=sys.stderr)
    assert not bad
    a.raw(d)
    return a.text()

if __name__ == "__main__":
    open(sys.argv[2] if len(sys.argv) > 2 else f"cdna_kernels/{NAME}.s", "w").write(build(sys.argv[1] if len(sys.argv) > 1 else ""))
```

```python
import sys, struct
from dsl import *

NAME = "gated_mix__sliding_local_dilated__mixer_token_mlp__prompt"
S_, D_, F_ = 2048, 640, 1536
KA = dict(x=0, wqkv=8, wo=16, w1=32, b1=40, w2=48, b2=56, gw=64, out=72, dbg=80, ws=88)
H_OFF, OT_OFF, UW_OFF, G_OFF, FL_OFF = 0, 0x280000, 0x500000, 0x800000, 0x810000
H_SZ, OT_SZ, UW_SZ, G_SZ, FL_SZ = 2621440, 2621440, 40 * 68 * 1024, 16384, 0x70000
F1, F2, F4, FZ, F3 = 0, 0x20000, 0x28000, 0x40000, 0x50000
RING = 163840; CTR = RING - 64; LDS_SZ = RING
LOG2E = 1.4426950408889634
OPTS = []; PROF = False; TL_OFF = 0x1000000
SC = "sc1"
def f2u(x): return "0x%08x" % struct.unpack("<I", struct.pack("<f", x))[0]
def v(n, k=1): return f"v{n}" if k == 1 else f"v[{n}:{n+k-1}]"
def opt(name, default=None):
    for o in OPTS:
        if o == name: return True
        if o.startswith(name + "="): return int(o.split("=")[1])
    return default

def srd(a, d, base, size, off=0):
    if off: a(f"s_add_u32 s{d}, s{base}, {off}\ns_addc_u32 s{d+1}, s{base+1}, 0")
    elif d != base: a(f"s_mov_b32 s{d}, s{base}\ns_mov_b32 s{d+1}, s{base+1}")
    a(f"s_mov_b32 s{d+2}, {size}\ns_mov_b32 s{d+3}, 0x20000")

def estamp(a, i):
    if PROF and opt("early"): a(f"s_memrealtime s[{70+2*i}:{71+2*i}]\ns_waitcnt lgkmcnt(0)")
def lstamp(a, i):
    if PROF and opt("late"): a(f"s_memrealtime s[{70+2*i}:{71+2*i}]\ns_waitcnt lgkmcnt(0)")
def stamp(a, i, wait=False):
    if PROF and opt("clk"):
        k = {2: 1, 3: 3, 6: 5}.get(i)
        if i == 0: a("s_memrealtime s[70:71]")
        elif k and (wait or i == 6): a(f"s_memrealtime s[{70+2*k}:{71+2*k}]\ns_memtime s[{72+2*k}:{73+2*k}]\ns_waitcnt lgkmcnt(0)")
        return
    if PROF and (i == 0 or not (opt("early") or opt("late"))): a(f"s_memrealtime s[{70+2*i}:{71+2*i}]" + ("\ns_waitcnt lgkmcnt(0)" if wait else ""))
def endp(a):
    if PROF:
        a(f"""
        s_waitcnt vmcnt(0)
        s_memrealtime s[84:85]
        s_memtime s[86:87]
        s_waitcnt lgkmcnt(0)
        s_sub_u32 s86, s86, s66
        s_add_u32 s60, s20, {TL_OFF + 0x40000}
        s_addc_u32 s61, s21, 0
        s_mov_b32 s62, 0x40000
        s_mov_b32 s63, 0x20000
        s_mov_b64 exec, 1
        s_lshl_b32 s64, s2, 3
        s_add_u32 s64, s64, s69
        s_lshl_b32 s64, s64, 6
        v_mov_b32 v0, s64
        """)
        for i in range(8): a(f"v_mov_b32 v{4+i}, s{70+2*i}")
        a("v_mov_b32 v12, s86")
        a("buffer_store_dwordx4 v[4:7], v0, s[60:63], 0 offen\nbuffer_store_dwordx4 v[8:11], v0, s[60:63], 0 offen offset:16\nbuffer_store_dword v12, v0, s[60:63], 0 offen offset:32")
    a("s_endpgm")

def emit_step(a, M, prev_ids, R, extra, per_gap=2, head=2):
    q = list(prev_ids); fill = [("r", x) for x in R] + [("x", x) for x in extra]
    def put(n):
        for _ in range(n):
            if not fill: return
            k, x = fill.pop(0)
            if k == "r": a(x[0]); q.append(("n", x[1]))
            else: a(x)
    put(head)
    w1 = opt("w1", 1)
    if w1 and M and R and prev_ids:
        if w1 == 1: M = [(M[0][0], set(prev_ids))] + M[1:]
        else: h = len(M) // 2; M = [(M[0][0], set().union(*[m[1] for m in M[:h]]))] + M[1:h] + [(M[h][0], set(prev_ids))] + M[h+1:]
    for text, need_ in M:
        idx = [i for i, t in enumerate(q) if t in need_]
        if idx:
            n = min(len(q) - 1 - idx[-1], 15)
            a(f"s_waitcnt lgkmcnt({n})"); del q[:len(q) - n]
        a(text); put(per_gap)
    put(len(fill))

def emit_smooth(a, M, prev_ids, R, extra, head=2):
    q = list(prev_ids); R = list(R); extra = list(extra)
    def rd():
        if R: x = R.pop(0); a(x[0]); q.append(("n", x[1]))
    for _ in range(head): rd()
    h = len(M) // 2
    M = [(M[0][0], set().union(*[m[1] for m in M[:h]]))] + M[1:h] + [(M[h][0], set(prev_ids))] + M[h+1:]
    for i, (text, need_) in enumerate(M):
        idx = [k for k, t in enumerate(q) if t in need_]
        if idx:
            n = min(len(q) - 1 - idx[-1], 15); a(f"s_waitcnt lgkmcnt({n})"); del q[:len(q) - n]
        a(text); rd()
        if len(R) > len(M) - 1 - i: rd()
        elif extra: a(extra.pop(0))
        if len(extra) > len(M) - 1 - i: a(extra.pop(0))
    while R: rd()
    for x in extra: a(x)

def slot_adv(SLOT, S):
    return [f"s_add_u32 s40, s37, {SLOT}", f"s_cmp_ge_u32 s40, {SLOT*S}", "s_cselect_b32 s41, 0, s40", "s_sub_u32 s40, s41, s37", "s_mov_b32 s37, s41"]

def thr(name, default):
    t = opt("t" + name, default if opt("thr") else 0)
    return f"s_waitcnt vmcnt({t-1})\n" if t else ""
UID = [0]
def uid(p): UID[0] += 1; return f"{p}{UID[0]}"

def issue_n(a, n, issue):
    L = uid("Li")
    a(f"s_add_u32 s32, s33, {n}")
    a.label(L); issue()
    a(f"s_add_u32 s33, s33, 1\ns_cmp_lt_u32 s33, s32\ns_cbranch_scc1 {L}")
def steady(a, upto, n, ahead, issue):
    L = uid("Ls")
    a.label(L)
    a(f"s_waitcnt vmcnt({n*(ahead-1)})\ns_barrier"); issue()
    a(f"s_add_u32 s33, s33, 1\ns_cmp_lt_u32 s33, {upto}\ns_cbranch_scc1 {L}")
def drain(a, n, ahead):
    for k in range(ahead - 1, -1, -1): a(f"s_waitcnt vmcnt({n*k})\ns_barrier")

def publish(a, ctr, nw, vaddr, lanes, keep=0):
    L = uid("Lpub")
    a(f"""
    s_waitcnt vmcnt({keep})
    s_mov_b64 exec, 1
    v_mov_b32 v2, {CTR + ctr}
    v_mov_b32 v3, 1
    ds_add_rtn_u32 v3, v2, v3
    s_waitcnt lgkmcnt(0)
    v_readfirstlane_b32 s22, v3
    s_mov_b64 exec, {(1 << lanes) - 1}
    s_cmp_lg_u32 s22, {nw - 1}
    s_cbranch_scc1 {L}
    v_mov_b32 v3, s48
    buffer_store_dword v3, v{vaddr}, s[44:47], 0 offen {SC}
    """)
    a.label(L); a("s_mov_b64 exec, -1")
def gate(a, vaddr, mask, two=False, sl=None):
    sl = opt("slp", 8) if sl is None else sl
    L = uid("Lg"); slp = "s_sleep %d      ; back-off between two polls" % sl if sl else ""
    a(f"s_mov_b32 s49, 0\ns_mov_b32 exec_lo, {mask & 0xffffffff}\ns_mov_b32 exec_hi, {mask >> 32}")
    a.label(L)
    if two: a(f"buffer_load_dword v2, v{vaddr}, s[44:47], 0 offen {SC}\ns_mov_b32 s22, {two}\nbuffer_load_dword v3, v{vaddr}, s[44:47], s22 offen {SC}\ns_waitcnt vmcnt(0)\nv_xor_b32 v2, s48, v2\nv_xor_b32 v3, s48, v3\nv_or_b32 v2, v2, v3")
    else: a(f"buffer_load_dword v2, v{vaddr}, s[44:47], 0 offen {SC}\ns_waitcnt vmcnt(0)\nv_xor_b32 v2, s48, v2")
    a(f"v_cmp_ne_u32 vcc, 0, v2\ns_add_u32 s49, s49, 1\ns_cmp_eq_u64 vcc, 0\ns_cbranch_scc1 {L}d\n{slp}\ns_cmp_lt_u32 s49, 20000\ns_cbranch_scc1 {L}")
    a.label(L + "d"); a("s_mov_b64 exec, -1")
def lds_wait(a, ctr, n):
    L = uid("Lm")
    a(f"v_mov_b32 v2, {CTR + ctr}\ns_mov_b32 s49, 0\n{L}:\nds_read_b32 v3, v2\ns_add_u32 s49, s49, 1\ns_waitcnt lgkmcnt(0)\nv_readfirstlane_b32 s22, v3")
    a(f"s_cmp_ge_u32 s22, {n}\ns_cbranch_scc1 {L}d\ns_cmp_lt_u32 s49, 0x400000\ns_cbranch_scc1 {L}\n{L}d:")
def tag_ready(a):
    a("s_waitcnt lgkmcnt(0)\ns_mul_i32 s48, s48, 1664525\ns_add_u32 s48, s48, 1013904223")
def step_tag(a):
    a(f"v_lshlrev_b32 v12, 7, v1"); gate(a, 12, (1 << 64) - 1, two=8192)
    a(f"v_lshrrev_b32 v12, 3, v1\nv_lshlrev_b32 v12, 11, v12\nv_and_b32 v13, 7, v1\nv_lshl_add_u32 v12, v13, 7, v12\nv_add_u32 v12, {F2}, v12"); gate(a, 12, (1 << 64) - 1, two=16384)
    a(f"s_mov_b64 exec, 1\nv_mov_b32 v2, s48\nv_mov_b32 v3, {FZ}\nbuffer_store_dword v2, v3, s[44:47], 0 offen {SC}\ns_mov_b64 exec, -1")

def code_prefetch(a):
    if not opt("ncode"): return
    L = uid("Lpc")
    a(f"s_getpc_b64 s[30:31]\n{L}:\ns_sub_u32 s30, s30, {L}-{NAME}_kernel\ns_subb_u32 s31, s31, 0\nv_lshlrev_b32 v2, 7, v1")
    for i in range(opt("ncode", 0)):
        a(f"v_min_u32 v3, Lcode_end-{NAME}_kernel-4, v2\nglobal_load_dword v{40+i}, v3, s[30:31]\nv_add_u32 v2, 8192, v2")

def ln_issue(a):
    a(f"""
    s_lshl_b32 s22, s19, 4
    s_lshl_b32 s23, s3, 2
    s_add_u32 s22, s22, s23
    v_lshrrev_b32 v2, 4, v1
    v_add_u32 v10, s22, v2
    v_and_b32 v11, 15, v1
    v_lshlrev_b32 v4, 4, v11
    v_mul_u32_u24 v5, 1280, v10
    v_add_u32 v5, v5, v4
    s_waitcnt lgkmcnt(0)
    """)
    srd(a, 4, 4, H_SZ); srd(a, 8, 8, 1280)
    for i in range(5): a(f"buffer_load_dwordx4 {v(16+4*i,4)}, v5, s[4:7], 0 offen offset:{256*i}")
    for i in range(5): a(f"buffer_load_dwordx4 {v(36+4*i,4)}, v4, s[8:11], 0 offen offset:{256*i}")
def ln_finish(a):
    X, GW, U = 16, 36, 56
    srd(a, 4, 20, H_SZ, H_OFF); srd(a, 8, 20, G_SZ, G_OFF)
    a("s_mov_b32 s30, 0x3f803f80\ns_mov_b32 s31, 0xffff0000"); estamp(a, 1); a("s_waitcnt vmcnt(5)"); estamp(a, 2)
    a(f"v_dot2_f32_bf16 v6, v{X}, s30, 0\nv_dot2_f32_bf16 v8, v{X+1}, s30, 0")
    for i in range(2, 20): a(f"v_dot2_f32_bf16 v{6+2*(i&1)}, v{X+i}, s30, v{6+2*(i&1)}")
    for i in range(20): a(f"v_lshlrev_b32 v{U+2*i}, 16, v{X+i}\nv_and_b32 v{U+1+2*i}, s31, v{X+i}")
    def red(*rs):
        for sh in (8, 4, 2, 1):
            for r in rs: a(f"v_add_f32_dpp v{r}, v{r}, v{r} row_ror:{sh} row_mask:0xf bank_mask:0xf")
    a("v_add_f32 v6, v6, v8"); red(6)
    a(f"v_mul_f32 v6, {f2u(1/640)}, v6")
    for i in range(20): a(f"v_pk_add_f32 {v(U+2*i,2)}, {v(U+2*i,2)}, v[6:7] op_sel_hi:[1,0] neg_lo:[0,1] neg_hi:[0,1]")
    a(f"v_pk_mul_f32 v[12:13], {v(U,2)}, {v(U,2)}\nv_pk_mul_f32 v[14:15], {v(U+2,2)}, {v(U+2,2)}")
    for i in range(2, 20): a(f"v_pk_fma_f32 {v(12+2*(i&1),2)}, {v(U+2*i,2)}, {v(U+2*i,2)}, {v(12+2*(i&1),2)}")
    a("v_pk_add_f32 v[12:13], v[12:13], v[14:15]\nv_add_f32 v12, v12, v13")
    red(12)
    a(f"v_mov_b32 v8, {f2u(1e-5)}\nv_fmac_f32 v8, {f2u(1/640)}, v12\nv_rsq_f32 v12, v8")
    for j in range(5):
        for i in range(4*j, 4*j+4): a(f"v_pk_mul_f32 {v(U+2*i,2)}, {v(U+2*i,2)}, v[12:13] op_sel_hi:[1,0]")
        for i in range(4*j, 4*j+4): a(f"v_cvt_pk_bf16_f32 v{96+i}, v{U+2*i}, v{U+1+2*i}")
        a(f"buffer_store_dwordx4 {v(96+4*j,4)}, v5, s[4:7], 0 offen offset:{256*j} {SC}")
    estamp(a, 3)
    a("s_barrier")
    a(f"s_waitcnt vmcnt(5)\nv_dot2_f32_bf16 v9, v{X}, v{GW}, 0\nv_dot2_f32_bf16 v8, v{X+1}, v{GW+1}, 0")
    for i in range(2, 20): a(f"v_dot2_f32_bf16 v{9-(i&1)}, v{X+i}, v{GW+i}, v{9-(i&1)}")
    a("v_add_f32 v9, v9, v8"); red(9)
    a(f"""
    v_mul_f32 v9, {f2u(-LOG2E)}, v9
    v_exp_f32 v9, v9
    v_add_f32 v9, 1.0, v9
    v_rcp_f32 v8, v9
    v_lshlrev_b32 v10, 3, v10
    """)
    tag_ready(a)
    a(f"""
    v_mov_b32 v9, s48
    s_mov_b32 exec_lo, 0x00010001
    s_mov_b32 exec_hi, 0x00010001
    buffer_store_dwordx2 v[8:9], v10, s[8:11], 0 offen {SC}
    s_mov_b64 exec, -1
    s_lshl_b32 s22, s19, 7
    v_lshl_add_u32 v10, v1, {14 if opt("mixed") else 15}, s22
    """)
    if opt("early"): a("s_waitcnt vmcnt(1)"); estamp(a, 4)
    publish(a, 0, 4, 10, 4, keep=1)
    if opt("early"): estamp(a, 5); a("s_waitcnt vmcnt(0)"); estamp(a, 6)

G1_S, G1_SLOT = 6, 24576
def w1_sweep(a):
    a(f"s_lshl_b32 s23, s53, {2 if opt('mixed') else 1}\ns_add_u32 s23, s23, s3\ns_lshl_b32 s23, s23, 6\nv_add_u32 v2, s23, v1\ns_lshr_b32 s23, s52, 1\ns_mul_i32 s23, s23, 768\ns_mov_b32 s26, 43691")
    for n in range(3):
        a(f"v_add_u32 v3, {4096*n}, v2\nv_mul_u32_u24 v4, s26, v3\nv_lshrrev_b32 v4, 18, v4\nv_mul_u32_u24 v5, {3072-768}, v4\nv_lshl_add_u32 v5, v3, 7, v5\nv_add_u32 v{16+n}, s23, v5")
        if not opt("noslowcol"):
            a(f"v_and_b32 v5, 0x380, v{16+n}\nv_cmp_le_u32 vcc, {opt('sc0', 1024)}, v4\nv_cndmask_b32_e64 v5, 0, v5, vcc\nv_cmp_eq_u32 vcc, 0x180, v5\nv_cndmask_b32_e64 v{16+n}, v{16+n}, -16, vcc")
    srd(a, 4, 4, S_ * 3072)
    a("s_barrier"); estamp(a, 1)
    pre = opt("pre", 2)
    for n in range(3):
        if n == pre: tag_ready(a); a("s_barrier")
        if not opt("nopfw1"): a(f"buffer_load_dword v{20+n}, v{16+n}, s[4:7], 0 offen")
    if pre == 3: tag_ready(a); a("s_barrier")
    estamp(a, 2)
    if opt("pfwait"): a("s_waitcnt vmcnt(0)")
    estamp(a, 3)
def g1_loader_w(a):
    a(f"""
    v_lshrrev_b32 v2, 4, v1
    s_lshl_b32 s23, s3, 2
    v_add_u32 v2, s23, v2
    v_lshlrev_b32 v4, 1, v2
    v_and_b32 v3, 15, v1
    v_xor_b32 v3, v3, v4
    v_lshlrev_b32 v3, 4, v3
    v_mul_u32_u24 v2, 3072, v2
    s_lshl_b32 s26, s16, 8
    v_add3_u32 v8, v2, v3, s26
    """)
    for i in range(1, 8): a(f"v_add_u32 v{8+i}, {8*3072*i}, v8")
    a(f"""
    s_mov_b32 s34, s18
    s_lshl_b32 s37, s3, 10
    s_add_u32 s38, s37, {G1_SLOT*G1_S}
    s_mov_b32 s33, 0
    """)
    def issue():
        a(f"s_mul_i32 s40, s34, {64*3072}" if not opt("wwrap") else f"s_and_b32 s40, s34, 3\ns_mul_i32 s40, s40, {64*3072}")
        for i in range(8): a(f"s_add_u32 m0, s37, {2048*i}\n{thr('w', 11)}buffer_load_dwordx4 v{8+i}, s[4:7], s40 offen lds")
        a(f"s_add_u32 s37, s37, {G1_SLOT}\ns_cmp_ge_u32 s37, s38\ns_cselect_b32 s42, {G1_SLOT*G1_S}, 0\ns_sub_u32 s37, s37, s42\ns_add_u32 s34, s34, 1\ns_and_b32 s34, s34, 31")
    if opt("sweep"):
        w1_sweep(a); issue_n(a, G1_S - 2, issue)
    else:
        pp = opt("ppre", 1)
        srd(a, 4, 4, S_ * 3072); a("s_barrier")
        if pp: issue_n(a, pp, issue)
        tag_ready(a); a("s_barrier")
        if opt("s15"): a("s_barrier")
        m = opt("g1in", G1_S)
        if pp < m: issue_n(a, m - pp, issue)
        for j in range(m - (G1_S - 2)): a(f"s_waitcnt vmcnt({8*(m-1-j)})\ns_barrier")
        if m < G1_S - 2: a(f"s_waitcnt vmcnt({8*(m-1)})\ns_barrier"); issue_n(a, G1_S - 1 - m, issue)
    if opt("early"): estamp(a, 4); a("s_waitcnt vmcnt(0)"); estamp(a, 5)
    stamp(a, 1)
    steady(a, 32, 8, G1_S - 2, issue)
    if (not opt("earlyp")): drain(a, 8, G1_S - 2); stamp(a, 2); a("s_branch Lp2_s0")
    else: P2(0).setup_s(a); P2(0).early(a, 8, 12, "s")
def g1_loader_h(a):
    a(f"""
    v_lshrrev_b32 v2, 3, v1
    v_and_b32 v3, 7, v1
    v_and_b32 v4, 6, v2
    v_xor_b32 v3, v3, v4
    v_lshlrev_b32 v3, 4, v3
    s_sub_u32 s22, s3, 2
    s_lshl_b32 s23, s22, 3
    v_add_u32 v2, s23, v2
    v_mul_u32_u24 v2, 1280, v2
    s_lshl_b32 s26, s17, 7
    v_add3_u32 v8, v2, v3, s26
    """)
    for i in range(1, 4): a(f"v_add_u32 v{8+i}, {16*1280*i}, v8")
    a(f"""
    s_lshl_b32 s23, s52, 14
    v_lshl_add_u32 v12, v1, 7, s23
    s_mov_b32 s34, s18
    s_lshl_b32 s37, s22, 10
    s_add_u32 s37, s37, 16384
    s_add_u32 s38, s37, {G1_SLOT*G1_S}
    s_mov_b32 s33, 0
    """)
    srd(a, 4, 20, H_SZ, H_OFF)
    def issue():
        a(f"s_mul_i32 s40, s34, {64*1280}" if not opt("hwrap") else f"s_and_b32 s40, s34, 3\ns_mul_i32 s40, s40, {64*1280}")
        for i in range(4): a(f"s_add_u32 m0, s37, {2048*i}\n{thr('h', 5)}buffer_load_dwordx4 v{8+i}, s[4:7], s40 offen {'' if opt('hplain') else SC} lds")
        a(f"s_add_u32 s37, s37, {G1_SLOT}\ns_cmp_ge_u32 s37, s38\ns_cselect_b32 s42, {G1_SLOT*G1_S}, 0\ns_sub_u32 s37, s37, s42\ns_add_u32 s34, s34, 1\ns_and_b32 s34, s34, 31")
    tag_ready(a); a("s_barrier")
    if opt("s15"): a("s_barrier")
    if opt("own"): lds_wait(a, 0, 4)
    estamp(a, 1)
    if opt("nosplit"): gate(a, 12, (1 << 64) - 1, two=8192)
    else:
        L = uid("Lm")
        a("s_sub_u32 s22, s3, 2\ns_lshl_b32 s22, s22, 13\nv_add_u32 v12, s22, v12"); gate(a, 12, (1 << 64) - 1)
        a(f"v_mov_b32 v2, {CTR + 12}\nv_mov_b32 v3, 1\ns_mov_b64 exec, 1\nds_add_u32 v2, v3\ns_mov_b32 s49, 0\n{L}:\nds_read_b32 v3, v2\ns_add_u32 s49, s49, 1\ns_waitcnt lgkmcnt(0)\nv_readfirstlane_b32 s22, v3")
        a(f"s_cmp_ge_u32 s22, 2\ns_cbranch_scc1 {L}d\ns_cmp_lt_u32 s49, 0x400000\ns_cbranch_scc1 {L}\n{L}d:\ns_mov_b64 exec, -1")
    stamp(a, 1); estamp(a, 3)
    if opt("early"): a("s_add_u32 s78, s70, s49\ns_mov_b32 s79, 0")
    if not (not opt("s2")): a("s_barrier")
    issue_n(a, G1_S - 2, issue)
    steady(a, 32, 4, G1_S - 2, issue)
    if (not opt("earlyp")): drain(a, 4, G1_S - 2); stamp(a, 2); a("s_branch Lp2_d0")
    else: P2(0).setup_d(a); P2(0).early(a, 4, 16, "d")
def g1_consumer(a):
    L = "Lg1"
    if opt("s15"): a("s_barrier")
    ACC, T = 16, 48
    a(f"""
    s_load_dwordx2 s[24:25], s[0:1], {KA['b1']}
    s_and_b32 s22, s3, 1
    s_lshr_b32 s23, s3, 1
    s_lshl_b32 s26, s16, 8
    s_lshl_b32 s27, s22, 7
    s_add_u32 s26, s26, s27
    v_lshrrev_b32 v2, 4, v1
    v_lshl_add_u32 v3, v2, 3, s26
    s_waitcnt lgkmcnt(0)
    """)
    srd(a, 24, 24, 3072); srd(a, 8, 20, UW_SZ, UW_OFF)
    for ft in range(4): a(f"buffer_load_dwordx2 {v(T+2*ft,2)}, v3, s[24:27], 0 offen offset:{32*ft}")
    a(f"""
    s_setprio 0
    v_lshrrev_b32 v5, 2, v1
    v_and_b32 v6, 3, v1
    v_lshlrev_b32 v6, 3, v6
    v_and_b32 v7, 7, v5
    v_lshl_add_u32 v4, v5, 8, v6
    s_lshl_b32 s27, s22, 2
    """)
    for ft in range(4): a(f"s_add_u32 s28, s27, {ft}\nv_xor_b32 v2, s28, v7\nv_lshl_add_u32 v{8+ft}, v2, 5, v4")
    a(f"v_lshrrev_b32 v7, 1, v5\nv_and_b32 v7, 3, v7\nv_lshl_add_u32 v4, v5, 7, v6\nv_add_u32 v4, 16384, v4\ns_lshl_b32 s27, s23, 1")
    for dt in range(2): a(f"s_add_u32 s28, s27, {dt}\nv_xor_b32 v2, s28, v7\nv_lshl_add_u32 v{12+dt}, v2, 5, v4")
    a(f"""
    s_lshl_b32 s28, s17, 2
    s_add_u32 s28, s28, s27
    s_mul_i32 s28, s28, 68
    s_lshl_b32 s29, s16, 2
    s_add_u32 s28, s28, s29
    s_lshl_b32 s29, s22, 1
    s_add_u32 s28, s28, s29
    s_lshl_b32 s28, s28, 10
    v_lshl_add_u32 v14, v1, 4, s28
    s_lshl_b32 s28, s17, 4
    s_add_u32 s28, s28, s16
    s_lshl_b32 s28, s28, 7
    s_add_u32 s28, s28, {F4}
    v_mul_u32_u24 v15, {160*128}, v1
    v_add_u32 v15, s28, v15
    s_mov_b32 s31, 0xffff0000
    s_waitcnt vmcnt(0)
    """)
    for ft in range(4):
        for dt in range(2):
            b = ACC + 8 * ft + 4 * dt
            a(f"v_lshlrev_b32 v{b}, 16, v{T+2*ft}\nv_and_b32 v{b+1}, s31, v{T+2*ft}\nv_lshlrev_b32 v{b+2}, 16, v{T+2*ft+1}\nv_and_b32 v{b+3}, s31, v{T+2*ft+1}")
    SETS = (48, 96)
    def reads(st):
        r = []
        for kk in range(2):
            b = SETS[st] + 24 * kk
            for dt in range(2): r += [(f"ds_read_b64_tr_b16 {v(b+4*dt+2*h,2)}, v{12+dt} offset:{kk*4096+2048*h}", (kk, "b", dt, h)) for h in range(2)]
            for ft in range(4): r += [(f"ds_read_b64_tr_b16 {v(b+8+4*ft+2*h,2)}, v{8+ft} offset:{kk*8192+4096*h}", (kk, "a", ft, h)) for h in range(2)]
        return r
    def mf(st):
        return [(f"v_mfma_f32_16x16x32_bf16 {v(ACC+8*ft+4*dt,4)}, {v(SETS[st]+24*kk+8+4*ft,4)}, {v(SETS[st]+24*kk+4*dt,4)}, {v(ACC+8*ft+4*dt,4)}", {(kk, "a", ft, 1)})
                for kk in range(2) for ft, dt in ([(f, d) for d in range(2) for f in range(4)] if opt("g1ord") else [(f, d) for f in range(4) for d in range(2)])]
    ids = [x[1] for x in reads(0)]
    adv = slot_adv(G1_SLOT, G1_S) + [f"v_add_u32 v{8+i}, s40, v{8+i}" for i in range(6)]
    if not (not opt("s2")): a("s_barrier")
    a("s_mov_b32 s33, 0\ns_mov_b32 s37, 0\ns_barrier"); stamp(a, 2, True)
    emit_step(a, [], [], reads(0), adv)

    a.label(f"{L}_c", 3)
    a("s_barrier")
    emit_step(a, mf(0), ids, reads(1), adv + ["s_add_u32 s33, s33, 2", "s_cmp_ge_u32 s33, 32"])
    a(f"s_cbranch_scc1 {L}_clast\ns_barrier")
    emit_step(a, mf(1), ids, reads(0), adv)
    a(f"s_branch {L}_c")
    a.label(f"{L}_clast")
    a("s_waitcnt lgkmcnt(0)" + ("\ns_barrier" if opt("noe2") else "")); stamp(a, 3, True); lstamp(a, 1)
    last = [t for t, _ in mf(1)]
    grp = lambda p, dt: [last[8 * kk + 2 * (2 * p + h) + dt] for kk in range(2) for h in range(2)]
    G = [(p, dt) for p in range(2) for dt in range(2)]
    for t in grp(*G[0]) + grp(*G[1]): a(t)
    rest = grp(*G[2]) + grp(*G[3])
    c0 = -2 * 0.7978845608028654 * LOG2E; c1 = c0 * 0.044715
    a(f"v_mov_b32 v2, {f2u(c0)}\nv_mov_b32 v4, {f2u(c1)}\nv_mov_b32 v6, 1.0\ns_setprio 2")
    lstamp(a, 2)
    T = 48
    for n, (p, dt) in enumerate(G):
        o = 72 + 4 * n
        prs = [ACC + 8 * (2 * p + h) + 4 * dt + 2 * q for h in range(2) for q in range(2)]
        def ops(l):
            for x in l:
                a(x)
                if rest and not x.startswith(("v_exp", "v_rcp")): a(rest.pop(0))
        ops([f"v_pk_mul_f32 {v(T+2*i,2)}, {v(b,2)}, {v(b,2)}" for i, b in enumerate(prs)])
        ops([f"v_pk_fma_f32 {v(T+2*i,2)}, {v(T+2*i,2)}, v[4:5], v[2:3] op_sel_hi:[1,0,0]" for i, b in enumerate(prs)])
        ops([f"v_pk_mul_f32 {v(T+2*i,2)}, {v(T+2*i,2)}, {v(b,2)}" for i, b in enumerate(prs)])
        ops([f"v_exp_f32 v{T+i}, v{T+i}" for i in range(8)])
        ops([f"v_pk_add_f32 {v(T+2*i,2)}, {v(T+2*i,2)}, v[6:7] op_sel_hi:[1,0]" for i, b in enumerate(prs)])
        ops([f"v_rcp_f32 v{T+i}, v{T+i}" for i in range(8)])
        ops([f"v_pk_mul_f32 {v(T+2*i,2)}, {v(T+2*i,2)}, {v(b,2)}" for i, b in enumerate(prs)])
        ops([f"v_cvt_pk_bf16_f32 v{o+i}, v{T+2*i}, v{T+2*i+1}" for i in range(4)])
        a(f"s_mov_b32 s29, {dt*68*1024}\nbuffer_store_dwordx4 {v(o,4)}, v14, s[8:11], s29 offen offset:{1024*p} {SC}")
    lstamp(a, 3)
    if not opt("noe2") and not opt("e3"): a("s_barrier")
    if opt("late"): a("s_waitcnt vmcnt(0)"); lstamp(a, 4)
    publish(a, 4, 4, 15, 4)
    if opt("e3"): a(("s_waitcnt vmcnt(0)\n" if opt("e3") == 2 else "") + "s_barrier")
    if opt("late"): lstamp(a, 5); a("s_waitcnt vmcnt(0)"); lstamp(a, 6)
    stamp(a, 4, True)

def spare_loader(a):
    if opt("wol", 2) == 3: lds_wait(a, 0, 4)
    elif opt("wol", 2):
        a(f"s_lshl_b32 s23, s52, 14\nv_lshl_add_u32 v12, v1, 7, s23"); gate(a, 12, (1 << 64) - 1 if opt("wol", 2) == 1 else 1, sl=opt("slpw", 16))
    a(f"""
    s_load_dwordx2 s[4:5], s[0:1], {KA['wo']}
    s_load_dwordx2 s[12:13], s[0:1], {KA['w2']}
    v_lshrrev_b32 v2, 3, v1
    v_and_b32 v3, 7, v1
    v_and_b32 v4, 6, v2
    v_xor_b32 v3, v3, v4
    v_lshlrev_b32 v14, 4, v3
    v_mul_u32_u24 v15, 1280, v2
    v_add_u32 v15, v15, v14
    v_lshrrev_b32 v3, 2, v2
    v_lshl_add_u32 v3, v3, 4, v2
    v_add_u32 v3, 16, v3
    v_mul_u32_u24 v3, 1280, v3
    v_add_u32 v14, v14, v3
    s_mul_i32 s23, s3, {7*4096}
    v_lshrrev_b32 v5, 2, v1
    v_lshrrev_b32 v6, 1, v5
    v_and_b32 v6, 3, v6
    v_lshlrev_b32 v5, 7, v5
    v_and_b32 v7, 3, v1
    v_lshlrev_b32 v7, 3, v7
    v_add3_u32 v5, v5, v7, s23
    """)
    for t in range(4): a(f"v_xor_b32 v7, {t}, v6\nv_lshl_add_u32 v{8+t}, v7, 5, v5")
    a(f"v_lshlrev_b32 v12, 4, v1\ns_lshl_b32 s26, s16, 7\ns_add_u32 s26, s26, {F3}\nv_lshl_add_u32 v13, v1, 10, s26\ns_waitcnt lgkmcnt(0)")
    srd(a, 4, 4, 640 * 1280); srd(a, 8, 20, UW_SZ, UW_OFF); srd(a, 12, 12, F_ * 4096)
    def task():
        a("s_lshl_b32 s26, s33, 2\ns_add_u32 s26, s26, s3\ns_min_u32 s26, s26, 24\ns_mul_i32 s27, s16, 25\ns_add_u32 s27, s27, s26\ns_mul_i32 s26, s27, 6554\ns_lshr_b32 s26, s26, 16\ns_mul_i32 s28, s26, 10\ns_sub_u32 s27, s27, s28")
    L = uid("Lwo")
    a("s_mov_b32 s33, 0"); a.label(L); task()
    for half in range(2):
        a(f"""
        s_lshl_b32 s28, s26, 1
        s_add_u32 s28, s28, {half}
        s_mul_i32 s29, s28, 52
        s_lshr_b32 s29, s29, 8
        s_mul_i32 s30, s29, 5
        s_sub_u32 s28, s28, s30
        s_mul_i32 s29, s29, 80
        s_mul_i32 s30, s28, 20
        s_cmp_eq_u32 s28, 4
        s_cselect_b64 vcc, -1, 0
        s_cselect_b32 s30, 0, s30
        s_cselect_b32 s31, 40, 8
        s_mul_i32 s31, s31, 1280
        s_add_u32 s29, s29, s30
        s_mul_i32 s28, s29, 1280
        s_lshl_b32 s29, s27, 7
        s_add_u32 s28, s28, s29
        v_cndmask_b32 v2, v15, v14, vcc
        """)
        for i in range(2): a(f"s_add_u32 m0, s23, {2048*half+1024*i}\nbuffer_load_dwordx4 v2, s[4:7], s28 offen lds\ns_add_u32 s28, s28, s31")
    a(f"s_add_u32 s23, s23, 4096\ns_add_u32 s33, s33, 1\ns_cmp_lt_u32 s33, 7\ns_cbranch_scc1 {L}\ns_waitcnt vmcnt(0)\ns_mov_b32 s33, 0")
    L = uid("Lwo"); a.label(L); task()
    for t in range(4): a(f"ds_read_b64_tr_b16 {v(16+4*t,2)}, v{8+t}\nds_read_b64_tr_b16 {v(18+4*t,2)}, v{8+t} offset:2048\nv_add_u32 v{8+t}, 4096, v{8+t}")
    a(f"s_lshl_b32 s28, s27, 2\ns_mul_i32 s28, s28, 68\ns_add_u32 s28, s28, s26\ns_add_u32 s28, s28, 48\ns_lshl_b32 s28, s28, 10")
    for t in range(4): a(f"s_waitcnt lgkmcnt({6-2*t})\nbuffer_store_dwordx4 {v(16+4*t,4)}, v12, s[8:11], s28 offen {SC}\ns_add_u32 s28, s28, {68*1024}")
    a(f"s_add_u32 s33, s33, 1\ns_cmp_lt_u32 s33, 7\ns_cbranch_scc1 {L}")
    publish(a, 8, 4, 13, 8)
    stamp(a, 1)
    if opt("spw2"):
        L = uid("Lw2")
        a(f"""
        s_and_b32 s22, s16, 1
        s_lshl_b32 s22, s22, 2
        s_add_u32 s22, s22, s3
        s_lshl_b32 s22, s22, 3
        v_lshrrev_b32 v2, 3, v1
        v_add_u32 v2, s22, v2
        v_lshlrev_b32 v2, 12, v2
        v_and_b32 v3, 7, v1
        v_lshl_add_u32 v2, v3, 7, v2
        s_lshr_b32 s22, s52, 1
        s_lshl_b32 s22, s22, 10
        s_mov_b32 s33, 0
        {L}:
        buffer_load_dword v30, v2, s[12:15], s22 offen
        s_add_u32 s22, s22, {64*4096}
        s_add_u32 s33, s33, 1
        s_cmp_lt_u32 s33, 24
        s_cbranch_scc1 {L}
        """)
    h0 = opt("sph", 0)
    if h0:
        L = uid("Lsh"); n = ((32 - h0 + 1) // 2 * 10 + 7) // 8
        srd(a, 4, 20, H_SZ, H_OFF)
        a(f"s_lshl_b32 s23, s52, 14\nv_lshl_add_u32 v12, v1, 7, s23")
        gate(a, 12, (1 << 64) - 1, two=8192)
        a(f"""
        s_and_b32 s22, s16, 1
        s_lshl_b32 s22, s22, 2
        s_add_u32 s22, s22, s3
        v_lshlrev_b32 v2, 7, v1
        s_mov_b32 s33, 0
        {L}:
        s_mul_i32 s23, s22, 6554
        s_lshr_b32 s23, s23, 16
        s_mul_i32 s23, s23, {64*1280}
        s_lshl_b32 s26, s22, 13
        s_add_u32 s23, s23, s26
        s_add_u32 s23, s23, {h0*64*1280}
        buffer_load_dword v30, v2, s[4:7], s23 offen {SC}
        s_add_u32 s22, s22, 8
        s_add_u32 s33, s33, 1
        s_cmp_lt_u32 s33, {n}
        s_cbranch_scc1 {L}
        """)
    nw = opt("c3", 0)
    if nw:
        L = uid("Lc3")
        a(f"""
        s_cmp_ge_u32 s3, {nw}
        s_cbranch_scc1 {L}d
        s_and_b32 s22, s16, 1
        s_mul_i32 s22, s22, {nw}
        s_add_u32 s22, s22, s3
        s_lshl_b32 s22, s22, 6
        v_add_u32 v2, s22, v1
        v_lshlrev_b32 v2, 12, v2
        s_lshr_b32 s22, s52, 1
        s_lshl_b32 s22, s22, 10
        s_add_u32 s22, s22, 384
        s_mov_b32 s33, 0
        {L}:
        buffer_load_dword v30, v2, s[12:15], s22 offen
        s_add_u32 s22, s22, {128*nw*4096}
        s_add_u32 s33, s33, 1
        s_cmp_lt_u32 s33, {12//nw}
        s_waitcnt vmcnt(0)
        s_cbranch_scc1 {L}
        {L}d:
        """)
    stamp(a, 2)

QA_S, QA_SLOT, QA_W = 3, 49152, 18432
def qa_w1_sweep(a):
    if not opt("qsw"): return
    a(f"""
    s_load_dwordx2 s[12:13], s[0:1], {KA['w1']}
    s_lshr_b32 s22, s2, 1
    s_lshl_b32 s22, s22, 2
    s_add_u32 s22, s22, s3
    s_lshl_b32 s23, s22, 12
    s_lshl_b32 s22, s22, 13
    s_add_u32 s23, s23, {512*8192}
    v_lshlrev_b32 v2, 7, v1
    s_waitcnt lgkmcnt(0)
    """)
    srd(a, 12, 12, S_ * 3072)
    a("buffer_load_dword v32, v2, s[12:15], s22 offen\ns_mov_b32 exec_hi, 0\nbuffer_load_dword v33, v2, s[12:15], s23 offen\ns_mov_b32 exec_hi, -1")
def w2_setup(a):
    a(f"""
    s_load_dwordx2 s[24:25], s[0:1], {KA['w2']}
    v_lshrrev_b32 v2, 3, v1
    s_lshl_b32 s22, s53, 3
    v_add_u32 v2, s22, v2
    v_lshlrev_b32 v2, 12, v2
    v_and_b32 v3, 7, v1
    v_lshl_add_u32 v2, v3, 7, v2
    s_lshr_b32 s22, s52, 1
    s_lshl_b32 s22, s22, 10
    v_add_u32 v29, s22, v2
    s_waitcnt lgkmcnt(0)
    """)
    srd(a, 24, 24, F_ * 4096)
def w2_load(a):
    if opt("sc3"): a("s_mov_b32 exec_lo, 0xf7f7f7f7\ns_mov_b32 exec_hi, 0xf7f7f7f7\nbuffer_load_dword v30, v29, s[24:27], s22 offen\ns_mov_b64 exec, -1")
    else: a("buffer_load_dword v30, v29, s[24:27], s22 offen")
def w2_last(a):
    if not opt("nopfw2"): a("s_lshl_b32 s22, s3, 20"); w2_load(a)
def w2_slow(a):
    n = opt("sc3")
    if not n or n > 2: return
    a(f"s_lshl_b32 s22, s53, 2\ns_add_u32 s22, s22, s3\ns_lshl_b32 s22, s22, 12\ns_lshr_b32 s23, s52, 1\ns_lshl_b32 s23, s23, 10\ns_add_u32 s22, s22, s23\ns_add_u32 s22, s22, 384\ns_add_u32 s26, s24, s22\ns_addc_u32 s27, s25, 0")
    for k in range(12):
        for h in range(n): a(f"s_load_dword s98, s[26:27], {64*h}")
        a(f"s_add_u32 s26, s26, {128*4096}\ns_addc_u32 s27, s27, 0")
def qa_loader(a):
    a(f"v_lshrrev_b32 v2, 3, v1\ns_lshl_b32 s23, s3, 3\nv_add_u32 v2, s23, v2\ns_lshl_b32 s26, s16, 7\ns_sub_u32 s26, s26, 16\nv_and_b32 v3, 7, v1")
    for i in range(6):
        a(f"v_add_u32 v4, {24*i}, v2\nv_lshrrev_b32 v5, 1, v4\nv_and_b32 v5, 7, v5\nv_xor_b32 v5, v5, v3\nv_add_u32 v4, s26, v4\nv_max_i32 v4, 0, v4\nv_mul_u32_u24 v4, 1280, v4\nv_lshl_add_u32 v{8+i}, v5, 4, v4")
    a(f"s_mul_i32 s23, s3, 320\ns_mul_i32 s26, s17, 160\nv_add_u32 v2, s23, v1")
    for i in range(5):
        a(f"""
        v_add_u32 v3, {64*i}, v2
        v_mul_u32_u24 v4, 2185, v3
        v_lshrrev_b32 v4, 16, v4
        v_mul_u32_u24 v5, 30, v4
        v_sub_u32 v3, v3, v5
        v_mul_u32_u24 v5, 26, v3
        v_lshrrev_b32 v5, 8, v5
        v_mul_u32_u24 v5, {1280-160}, v5
        v_lshl_add_u32 v3, v3, 4, v5
        v_and_b32 v5, 12, v4
        v_lshlrev_b32 v5, 1, v5
        v_lshrrev_b32 v6, 4, v4
        v_lshl_add_u32 v5, v6, 2, v5
        v_and_b32 v4, 3, v4
        v_add_u32 v4, v4, v5
        v_mul_u32_u24 v4, 3840, v4
        v_add3_u32 v{16+i}, v4, v3, s26
        """)
    a(f"s_mov_b32 s34, s18\ns_mov_b32 s37, 0\ns_lshl_b32 s38, s3, 10\ns_mul_i32 s39, s3, 5120\ns_add_u32 s39, s39, {QA_W}\ns_mov_b32 s33, 0")
    srd(a, 4, 4, H_SZ); srd(a, 8, 8, 640 * 3840)
    def issue(half=None):
        if half != 1: a(f"s_lshl_b32 s40, s34, 7\ns_mul_i32 s41, s34, {64*3840}\ns_add_u32 s42, s37, s38\ns_add_u32 s43, s37, s39\ns_add_u32 s36, s41, {32*3840}")
        if half != 1:
            for i in range(3): a(f"s_add_u32 m0, s42, {3072*i}\nbuffer_load_dwordx4 v{8+i}, s[4:7], s40 offen lds")
            for i in range(5): a(f"s_add_u32 m0, s43, {1024*i}\nbuffer_load_dwordx4 v{16+i}, s[8:11], s41 offen lds")
        if half != 0:
            for i in range(3, 6): a(f"s_add_u32 m0, s42, {3072*i}\nbuffer_load_dwordx4 v{8+i}, s[4:7], s40 offen lds")
            for i in range(5): a(f"s_add_u32 m0, s43, {15360+1024*i}\nbuffer_load_dwordx4 v{16+i}, s[8:11], s36 offen lds")
            a(f"s_add_u32 s37, s37, {QA_SLOT}\ns_cmp_ge_u32 s37, {QA_SLOT*QA_S}\ns_cselect_b32 s37, 0, s37\ns_add_u32 s34, s34, 1\ns_cmp_ge_u32 s34, 10\ns_cselect_b32 s34, 0, s34")
    if opt("lateb0"):
        issue_n(a, 2, issue); tag_ready(a); w2_setup(a); stamp(a, 1)
    else:
        issue(); issue(0); tag_ready(a); a("s_waitcnt vmcnt(8)\ns_barrier"); issue(1); issue(); a("s_mov_b32 s33, 3")
        w2_setup(a); stamp(a, 1)
    steady(a, 10, 16, QA_S - 1, issue); drain(a, 16, QA_S - 1)
    stamp(a, 2); w2_last(a); a("s_barrier")
def qa_idle(a):
    code_prefetch(a)
    if opt("wsq", 1) == 1:
        a("s_lshr_b32 s22, s52, 1\ns_lshl_b32 s22, s22, 5\ns_add_u32 s22, s22, s53\ns_mul_i32 s26, s22, 22\ns_add_u32 s26, s26, 16384\ns_lshl_b32 s26, s26, 7\ns_lshl_b32 s22, s22, 13\ns_add_u32 s23, s22, 0x100000\nv_lshlrev_b32 v2, 7, v1")
        srd(a, 8, 8, 640 * 3840)
        a("buffer_load_dword v40, v2, s[8:11], s22 offen\nbuffer_load_dword v41, v2, s[8:11], s23 offen\ns_mov_b64 exec, 0x3fffff\nbuffer_load_dword v42, v2, s[8:11], s26 offen\ns_mov_b64 exec, -1")
    if opt("wsq") == 2:
        a(f"s_mul_i32 s22, s53, 60\nv_add_u32 v2, s22, v1\nv_mul_u32_u24 v3, 4370, v2\nv_lshrrev_b32 v3, 16, v3\nv_mul_u32_u24 v4, 15, v3\nv_sub_u32 v2, v2, v4\nv_mul_u32_u24 v4, 52, v2\nv_lshrrev_b32 v4, 8, v4\nv_mul_u32_u24 v4, {1280-640}, v4\nv_lshl_add_u32 v2, v2, 7, v4\nv_mul_u32_u24 v3, 3840, v3\ns_lshr_b32 s22, s52, 2\ns_mul_i32 s22, s22, 640\nv_add3_u32 v2, v2, v3, s22")
        srd(a, 8, 8, 640 * 3840)
        a("s_mov_b32 exec_hi, 0x0fffffff")
        for n in range(5): a(f"s_mov_b32 s22, {128*3840*n}\nbuffer_load_dword v{40+n}, v2, s[8:11], s22 offen")
        a("s_mov_b32 exec_hi, -1")
    if opt("w49"):
        a(f"""
        s_mul_i32 s22, s53, 60
        v_add_u32 v2, s22, v1
        v_mul_u32_u24 v3, 4370, v2
        v_lshrrev_b32 v3, 16, v3
        v_mul_u32_u24 v4, 15, v3
        v_sub_u32 v2, v2, v4
        v_mul_u32_u24 v4, 52, v2
        v_lshrrev_b32 v4, 8, v4
        v_mul_u32_u24 v4, {1280-640}, v4
        v_lshl_add_u32 v2, v2, 7, v4
        v_lshrrev_b32 v4, 6, v3
        v_lshl_add_u32 v3, v4, 8, v3
        v_add_u32 v3, 256, v3
        v_mul_u32_u24 v3, 3840, v3
        s_lshr_b32 s22, s52, 2
        s_mul_i32 s22, s22, 640
        v_add3_u32 v2, v2, v3, s22
        """)
        srd(a, 8, 8, 640 * 3840)
        a("s_mov_b32 exec_hi, 0x0fffffff\nbuffer_load_dword v31, v2, s[8:11], 0 offen\ns_mov_b32 exec_hi, -1")
    if opt("x49"):
        a(f"""
        s_lshr_b32 s22, s53, 3
        s_mul_i32 s22, s22, 36
        s_lshl_b32 s23, s16, 7
        s_add_u32 s22, s22, s23
        s_sub_u32 s22, s22, 16
        v_add_u32 v2, s22, v1
        v_max_i32 v2, 0, v2
        v_mul_u32_u24 v2, 1280, v2
        s_bitcmp1_b32 s53, 0
        s_cselect_b32 s22, 5, 4
        s_cselect_b32 s23, 0, 9
        s_lshl_b32 s22, s22, 7
        s_lshl_b32 s23, s23, 7
        """)
        srd(a, 4, 4, H_SZ)
        a("s_mov_b32 exec_hi, 0xf\nbuffer_load_dword v32, v2, s[4:7], s22 offen\nbuffer_load_dword v33, v2, s[4:7], s23 offen\ns_mov_b32 exec_hi, -1")
    tag_ready(a); w2_setup(a)
    at = (opt("w2a", 9), opt("w2b", 9))
    for i in range(10):
        a("s_barrier")
        for k in range(2):
            if at[k] == i and not opt("nopfw2"): a(f"s_mov_b32 s22, {(4+k) << 20}"); w2_load(a)
    w2_last(a); a("s_barrier")
def qa_consumer(a):
    L = "Lqa"
    AQ, AK, AR, AV, AW = 16, 48, 88, 108, 148
    XF, WB = 168, 208
    M0, M1, MF, PM, TM = 224, 228, 232, 236, 240
    NB, DD = 4, opt("dd", 3)
    a(f"""
    s_lshr_b32 s28, s3, 1
    s_and_b32 s29, s3, 1
    v_and_b32 v2, 15, v1
    v_lshrrev_b32 v3, 4, v1
    v_lshrrev_b32 v4, 1, v2
    v_xor_b32 v4, v4, v3
    v_lshlrev_b32 v4, 4, v4
    v_lshl_add_u32 v4, v2, 7, v4
    v_mov_b32 v8, v4
    v_xor_b32 v9, 64, v4
    v_lshrrev_b32 v5, 2, v1
    v_mul_u32_u24 v5, 480, v5
    s_mul_i32 s23, s29, 80
    s_add_u32 s23, s23, {QA_W}
    v_add_u32 v5, s23, v5
    v_and_b32 v4, 3, v1
    v_lshl_add_u32 v10, v4, 3, v5
    v_and_b32 v6, 1, v1
    v_mul_u32_u24 v6, 40, v6
    v_add3_u32 v13, v6, v5, 32
    v_lshrrev_b32 v4, 1, v4
    v_mul_u32_u24 v4, 160, v4
    v_add_u32 v11, v4, v13
    """)
    if opt("zv"):
        a(f"v_lshrrev_b32 v4, 3, v2\nv_cmp_eq_u32 vcc, s29, v4\nv_cndmask_b32_e64 v7, 0, -1, vcc")
    for i in range(AQ, XF): a(f"v_mov_b32 v{i}, 0")
    a(f"v_lshlrev_b32 v4, 2, v3\nv_sub_u32 v4, v2, v4\nv_mov_b32 v5, {f2u(-1e30)}")
    for r in range(4):
        a(f"""
        v_subrev_u32 v15, {r}, v4
        v_and_b32 v15, 0x80000001, v15
        v_cmp_eq_u32 vcc, 0, v15
        v_cndmask_b32_e64 v{M1+r}, v5, 0, vcc
        v_cndmask_b32_e64 v{TM+4+r}, 0, -1, vcc
        v_cmp_eq_u32 vcc, 0x80000000, v15
        v_cndmask_b32_e64 v{M0+r}, v5, 0, vcc
        v_cndmask_b32_e64 v{TM+r}, 0, -1, vcc
        """)
    a("s_mov_b32 s30, 0xffff\ns_mov_b32 s22, 0x0c0c0c0c\ns_mov_b32 s26, 0x01000100\ns_mov_b32 s27, 0x03020302")
    for i in range(4): a(f"v_bfi_b32 v{PM+i}, s30, v{TM+2*i}, v{TM+2*i+1}\nv_mov_b32 v15, s22\nv_bfi_b32 v{PM+i}, v{PM+i}, s{26+(i&1)}, v15")
    a(f"s_or_b32 s23, s16, s28\ns_cmp_eq_u32 s23, 0\ns_cselect_b64 vcc, -1, 0")
    for r in range(4): a(f"v_cndmask_b32 v{MF+r}, v{M0+r}, v5, vcc")
    GM = 90
    for j in range(2): a(f"v_cmp_eq_u32 s[{GM+2*j}:{GM+1+2*j}], {j}, v3")
    a(f"""
    v_and_b32 v4, 1, v3
    v_cmp_eq_u32 s[94:95], 1, v4
    s_cmp_eq_u32 s29, 0
    s_cselect_b32 s96, -1, 0
    s_cselect_b32 s97, 0, -1
    s_lshl_b32 s23, s16, 3
    s_lshl_b32 s26, s28, 2
    s_add_u32 s23, s23, s26
    s_mul_i32 s23, s23, 40
    s_mul_i32 s26, s17, 5
    s_add_u32 s23, s23, s26
    s_lshl_b32 s23, s23, 9
    v_lshl_add_u32 v15, v1, 3, s23
    s_lshl_b32 s26, s29, 10
    v_add_u32 v12, s26, v15
    s_lshl_b32 s23, s16, 4
    s_add_u32 s23, s23, s17
    s_lshl_b32 s23, s23, 7
    s_add_u32 s23, s23, {F2}
    v_lshl_add_u32 v14, v1, 10, s23
    s_mov_b32 s31, {f2u(20 ** -0.5 * LOG2E)}
    v_mov_b32 v6, s31
    s_mov_b32 s33, 0
    s_mov_b32 s37, 0
    s_waitcnt lgkmcnt(0)
    """)
    srd(a, 4, 20, OT_SZ, OT_OFF); tag_ready(a)
    U = [("q", 0), ("q", 1), ("k", 0), ("k", 1), ("r", 0), ("v", 0), ("v", 1), ("w", 0)]
    NU = len(U); UU = 2 * NU
    def wread(u):
        kk, c = divmod(u, NU); p, j = U[c]; b = WB + 4 * (u % NB)
        ad, off = {"q": (10, 40 * j), "k": (10, 160 + 40 * j), "v": (10, 320 + 40 * j), "r": (11, 0), "w": (13, 320)}[p]
        off += kk * 15360
        return [f"ds_read_b64_tr_b16 {v(b,2)}, v{ad} offset:{off}", f"ds_read_b64_tr_b16 {v(b+2,2)}, v{ad} offset:{off+7680}"]
    def acc(p, j, t): return {"q": AQ + 8 * (t - 1) + 4 * j, "k": AK + 8 * t + 4 * j, "r": AR + 4 * t, "v": AV + 20 * j + 4 * t, "w": AW + 4 * t}[p]
    cvt = lambda d, s0: f"v_cvt_pk_bf16_f32 v{d}, v{s0}, v{s0+1}"
    cv = lambda d, s0: a(cvt(d, s0))
    VCH = (AV, AV + 20, AW)
    stamp(a, 1, True); a("s_barrier"); stamp(a, 2, True)
    a(f"s_cmp_lg_u32 s28, 0\ns_cbranch_scc1 {L}_h1")
    for rh in range(2):
        a.label(f"{L}_h{rh}")
        def xread(kk): return [f"ds_read_b128 {v(XF+20*kk+4*t,4)}, v{8+kk} offset:{2048*(4*rh+t) if t else 0}" for t in (1, 2, 3, 4, 0)]
        def mf(u):
            kk, c = divmod(u, NU); p, j = U[c]; w = v(WB + 4 * (u % NB), 4); r = []
            for t in ((1, 2, 3, 4, 0) if p in ("kr", "vw")[rh] else (1, 2, 3, 4)):
                x = v(XF + 20 * kk + 4 * t, 4); d = v(acc(p, j, t), 4)
                r.append(f"v_mfma_f32_16x16x32_bf16 {d}, {w}, {x}, {d}" if p in "qkr" else f"v_mfma_f32_16x16x32_bf16 {d}, {x}, {w}, {d}")
            return r
        for t in xread(0): a(t)
        for u in range(DD):
            for t in wread(u): a(t)
        a(f"s_waitcnt lgkmcnt({2*DD-2})")
        a.label(f"{L}_c{rh}", 3)
        q = []
        for u in range(1, DD): q += [u, u]
        misc = slot_adv(QA_SLOT, QA_S) + ["s_add_u32 s33, s33, 1", "s_cmp_ge_u32 s33, 10"]
        x1 = xread(1)
        for u in range(UU):
            nx = u + DD; fill = []
            if nx == UU: fill += [(t, UU) for t in xread(0)]
            fill += [(t, nx) for t in wread(nx % UU)]
            if 1 <= u < NU - 1 and x1: fill.append((x1.pop(0), NU))
            ms = mf(u)
            if nx == UU:
                a(f"s_waitcnt lgkmcnt(0)\ns_cbranch_scc1 {L}_clast{rh}\ns_barrier"); q = []
            per = -(-len(fill) // len(ms))
            for i, m in enumerate(ms):
                a(m)
                for t, tag in fill[i*per:(i+1)*per]: a(t); q.append(tag)
                if opt("zv") and u % NU == NU - 2 and i < 4: a(f"v_and_b32 v{WB+4*((u+1)%NB)+i}, v7, v{WB+4*((u+1)%NB)+i}")
                if i == len(ms) - 2 and misc and u >= 2: a(misc.pop(0))
                if 1 <= i <= 3 and nx == UU - 1:
                    for r in ((), (8, 9, 10), (11, 13))[i - 1]: a(f"v_add_u32 v{r}, s40, v{r}")
            up = u + 2 if opt("zv") and u % NU == NU - 3 else u + 1
            if opt("zv") and u == UU - 2: pass
            if any(t <= up for t in q) and nx != UU - 1:
                last = max(i for i, t in enumerate(q) if t <= up)
                q = q[last + 1:]
                a(f"s_waitcnt lgkmcnt({len(q)})")
        assert not misc and not x1 and len(q) == 2 * DD - 2, (misc, x1, q)
        a(f"s_branch {L}_c{rh}")
        a.label(f"{L}_clast{rh}"); stamp(a, 3, True); lstamp(a, 1)
        TK = (4, 3, 2, 1) if rh else (4, 3, 2, 1, 0); prep = []
        for t in TK:
            r = AR + 4 * t; k = AK + 8 * t
            prep += [cvt(k, k), cvt(k + 1, k + 2), cvt(k + 4, k + 4), cvt(k + 5, k + 6), cvt(k + 2, r), cvt(k + 3, r + 2), cvt(r, r), cvt(r + 1, r + 2)]
        for t in TK:
            r = AR + 4 * t; k = AK + 8 * t
            prep += [f"v_permlane32_swap_b32 v{r}, v{k+2}", f"v_permlane32_swap_b32 v{r+1}, v{k+3}"]
        assert DD == 3
        for u in range(UU - DD, UU):
            for i, m in enumerate(mf(u)):
                a(m); a(prep.pop(0)); a(prep.pop(0))
                if opt("zv") and u == UU - 2 and i < 4: a(f"v_and_b32 v{WB+4*((u+1)%NB)+i}, v7, v{WB+4*((u+1)%NB)+i}")
        a(f"v_lshlrev_b32 v8, 3, v1\ns_mul_i32 s23, s29, 20480\ns_add_u32 s23, s23, 61440\nv_add_u32 v8, s23, v8")
        for x in prep: a(x)
        if rh == 0:
            for i in range(3): a(f"ds_write_b64 v8, {v(AK+32+2*i,2)} offset:{512*i}")
        for n, b in enumerate(VCH):
            for i in range(0 if rh else 2, 10): cv(b + i, b + 2 * i)
            a(f"ds_write_b64 v8, {v(b + (0 if rh else 8),2)} offset:{(3072 if rh else 1536) + 512*n}")
        a("s_waitcnt lgkmcnt(0)\ns_barrier")
        if rh:
            for i in range(3): a(f"ds_read_b64 {v(AK+2*i,2)}, v8 offset:{512*i}")
        for n, b in enumerate(VCH): a(f"ds_read_b64 {v(b,2)}, v8 offset:{(1536 if rh else 3072) + 512*n}")
        if rh == 0: a(f"s_branch {L}_j")
    a.label(f"{L}_j")
    lstamp(a, 2)
    UN = [(t, j) for t in (4, 3, 2, 1) for j in range(2)]
    SRS = [XF + 8 * n for n in range(7)] + [TM + 8]
    def qprep(t):
        r = AR + 4 * t; qa, qb = acc("q", 0, t), acc("q", 1, t)
        return [cvt(qa, qa), cvt(qa + 1, qa + 2), cvt(qb + 3, qb + 2), cvt(qb + 2, qb)] + \
               [f"v_cndmask_b32 v{qa+2+i}, 0, v{r+i}, s[{GM}:{GM+1}]" for i in range(2)] + [f"v_cndmask_b32 v{qb+i}, 0, v{r+i}, s[{GM+2}:{GM+3}]" for i in range(2)]
    for x in qprep(4): a(x)
    for n, (t, j) in enumerate(UN):
        qf = v(acc("q", j, t), 4)
        if j == 0: nxt = qprep(t - 1) if t > 1 else []
        if n == 6: a("s_waitcnt lgkmcnt(0)")
        a(f"v_mfma_f32_16x16x32_bf16 {v(SRS[n],4)}, {v(AK+8*(t-1)+2*j,4)}, {qf}, {v(MF if t == 1 else M0,4)}")
        for x in nxt[4*j:4*j+2]: a(x)
        a(f"v_mfma_f32_16x16x32_bf16 {v(SRS[n]+4,4)}, {v(AK+8*t+2*j,4)}, {qf}, {v(M1,4)}")
        for x in nxt[4*j+2:4*j+4]: a(x)
    V2, X = AQ, AQ + 16
    P = [AK + 4 * n for n in range(8)]
    for n in range(8): s_ = SRS[n]; a(f"v_max3_f32 v{V2+2*n}, v{s_}, v{s_+1}, v{s_+4}\nv_max3_f32 v{V2+2*n+1}, v{s_+2}, v{s_+3}, v{s_+6}")
    for n in range(8): s_ = SRS[n]; a(f"v_max_f32 v{V2+2*n}, v{V2+2*n}, v{s_+5}\nv_max_f32 v{V2+2*n+1}, v{V2+2*n+1}, v{s_+7}")
    def seq(*steps):
        for st in steps:
            for x in (X, X + 4): a(st(x))
    def xred(op):
        seq(lambda x: f"v_permlane32_swap_b32 v{x}, v{x+1}\nv_permlane32_swap_b32 v{x+2}, v{x+3}",
            lambda x: f"{op} v{x}, v{x}, v{x+1}\n{op} v{x+2}, v{x+2}, v{x+3}",
            lambda x: f"v_permlane16_swap_b32 v{x}, v{x+2}", lambda x: f"{op} v{x}, v{x}, v{x+2}")
    def xbc():
        seq(lambda x: f"v_mov_b32 v{x+2}, v{x}", lambda x: f"v_permlane16_swap_b32 v{x}, v{x+2}",
            lambda x: f"v_mov_b32 v{x+1}, v{x}\nv_mov_b32 v{x+3}, v{x+2}",
            lambda x: f"v_permlane32_swap_b32 v{x}, v{x+1}\nv_permlane32_swap_b32 v{x+2}, v{x+3}")
    sel = lambda n: f"op_sel:[0,{n&1},{n&1}] op_sel_hi:[1,{n&1},{n&1}]"
    for n in range(8): a(f"v_max_f32 v{X+n}, v{V2+2*n}, v{V2+2*n+1}")
    xred("v_max_f32"); seq(lambda x: f"v_mul_f32 v{x}, s31, v{x}"); xbc()
    for n in range(8): a(f"v_pk_fma_f32 {v(V2+2*n,2)}, {v(V2+2*n,2)}, v[6:7], {v(X+(n&6),2)} op_sel:[0,0,{n&1}] op_sel_hi:[1,0,{n&1}] neg_lo:[0,0,1] neg_hi:[0,0,1]")
    for n in range(16): a(f"v_exp_f32 v{V2+n}, v{V2+n}")
    for n in range(8): a(f"v_add_f32 v{X+n}, v{V2+2*n}, v{V2+2*n+1}")
    xred("v_add_f32"); seq(lambda x: f"v_rcp_f32 v{x}, v{x}"); xbc()
    for n in range(8): a(f"v_pk_mul_f32 {v(V2+2*n,2)}, {v(V2+2*n,2)}, {v(X+(n&6),2)} op_sel:[0,{n&1}] op_sel_hi:[1,{n&1}]")
    for n in range(8): cv(X + n, V2 + 2 * n)
    a("s_setprio 2")
    def pv(n):
        t, j = UN[n]
        return [f"v_mfma_f32_16x16x32_bf16 {v(SRS[n],4)}, {v(AV+20*j+2*(t-1),4)}, {v(P[n],4)}, 0", f"v_mfma_f32_16x16x32_bf16 {v(SRS[n]+4,4)}, {v(AW+2*(t-1),4)}, {v(P[n],4)}, 0"]
    for n in range(8):
        pm = [f"v_perm_b32 v{P[n]+i}, v{X+n}, v{X+n}, v{PM+i}" for i in range(4)]
        m = pv(n - 1) if n else ["", ""]
        a(pm[0]); a(pm[1]); a(m[0]); a(pm[2]); a(pm[3]); a(m[1])
    for m in pv(7): a(m)
    O = AQ
    for t in (4, 3, 2, 1):
        n = 2 * (4 - t); o = O + 6 * (4 - t)
        a(f"s_mov_b32 s29, {40*512*(t-1)}")
        for j in range(2):
            cv(o + 2 * j, SRS[n + j]); cv(o + 2 * j + 1, SRS[n + j] + 2)
            a(f"buffer_store_dwordx2 {v(o+2*j,2)}, v12, s[4:7], s29 offen offset:{512*j} {SC}")
        for r in range(4): a(f"v_cndmask_b32 v{SRS[n]+4+r}, v{SRS[n]+4+r}, v{SRS[n+1]+4+r}, s[94:95]")
        cv(o + 4, SRS[n] + 4); cv(o + 5, SRS[n] + 6)
        a(f"s_mov_b64 exec, s[96:97]\nbuffer_store_dwordx2 {v(o+4,2)}, v15, s[4:7], s29 offen offset:2048 {SC}\ns_mov_b64 exec, -1")
    lstamp(a, 3)
    a("s_waitcnt vmcnt(0)"); lstamp(a, 4)
    a(f"s_barrier\ns_cmp_lg_u32 s3, 0\ns_cbranch_scc1 {L}_np\ns_mov_b64 exec, 3\nv_mov_b32 v3, s48\nbuffer_store_dword v3, v14, s[44:47], 0 offen {SC}\ns_mov_b64 exec, -1")
    a.label(f"{L}_np")
    if opt("late"): lstamp(a, 5); a("s_waitcnt vmcnt(0)"); lstamp(a, 6)
    stamp(a, 4, True)

class P2:
    def __init__(s, par, ND=None):
        s.par = par; s.ND = ND or (opt("nd0", 4), 10 - opt("nd0", 4))[par]; s.tag = f"{par}{s.ND}"
        s.SLOT = 8192 + 2048 * s.ND; s.S = min(RING // s.SLOT, opt("p2s%d" % par, 8)); s.AH = s.S - 2
        s.st = opt("stb%d" % par, 0); s.stm = opt("stm", 7)
        s.IN = opt("in%d" % par, 0)
        s.AA = min(opt("aha", 6), s.AH); s.GB = max(opt("gb%d" % par, (7, 5)[par]), 11 - s.AH, 10 - s.AA)
    def adv(s): return f"s_add_u32 s37, s37, {s.SLOT}\ns_cmp_ge_u32 s37, s38\ns_cselect_b32 s42, {s.SLOT*s.S}, 0\ns_sub_u32 s37, s37, s42\ns_add_u32 s34, s34, 1" + ("\ns_cmp_ge_u32 s34, 24\ns_cselect_b32 s34, 0, s34" if s.st else "")
    def phase_b(s): return f"s_and_b32 s34, s50, {s.stm}\ns_mul_i32 s34, s34, {s.st}" if s.st else "s_mov_b32 s34, 0"
    def first(s, a, n, issue, IN=None):
        m = max(s.IN if IN is None else IN, s.AA)
        issue_n(a, m, issue)
        return lambda: [a(f"s_waitcnt vmcnt({n*(m-1-j)})\ns_barrier") for j in range(m - s.AA)]
    def setup_s(s, a):
        a(f"""
        s_load_dwordx2 s[12:13], s[0:1], {KA['w2']}
        v_lshrrev_b32 v2, 3, v1
        v_and_b32 v3, 7, v1
        v_and_b32 v4, 6, v2
        v_xor_b32 v3, v3, v4
        v_lshlrev_b32 v3, 4, v3
        {"v_mul_u32_u24 v2, 4224, v2" + chr(10) + "v_add_u32 v2, v2, v3" if opt("w2pad") else "v_lshl_add_u32 v2, v2, 12, v3"}
        s_lshl_b32 s23, s3, 17
        s_lshl_b32 s26, s50, 7
        s_add_u32 s23, s23, s26
        v_add_u32 v8, s23, v2
        """)
        for i in range(1, 4): a(f"v_add_u32 v{8+i}, {8*(4224 if opt('w2pad') else 4096)*i}, v8")
        a(f"s_lshl_b32 s23, s50, 2\ns_mul_i32 s23, s23, 40\ns_lshl_b32 s26, s3, 1\ns_add_u32 s23, s23, s26\ns_lshl_b32 s23, s23, 9\nv_lshl_add_u32 v16, v1, 4, s23")
        for i in range(1, 4): a(f"v_add_u32 v{16+i}, {40*512*i}, v16")
        a(f"s_and_b32 s23, s50, -2\ns_add_u32 s23, s23, {s.par}\ns_lshl_b32 s23, s23, 10\ns_add_u32 s23, s23, {F2}\nv_lshl_add_u32 v12, v1, 7, s23")
        a(f"s_mov_b32 s34, 0\ns_lshl_b32 s37, s3, 12\ns_add_u32 s38, s37, {s.SLOT*s.S}\ns_mov_b32 s33, 0\ns_waitcnt lgkmcnt(0)")
        srd(a, 4, 20, OT_SZ, OT_OFF)
    def early(s, a, n, vflag, tag):
        a(f"""
        s_waitcnt vmcnt({3*n})
        s_barrier
        s_waitcnt vmcnt({2*n})
        s_barrier
        s_mov_b64 exec, 0xff
        buffer_load_dword v2, v{vflag}, s[44:47], 0 offen {SC}
        s_waitcnt vmcnt({n+1})
        s_barrier
        s_waitcnt vmcnt(1)
        s_barrier
        """)
        stamp(a, 2)
        a(f"s_waitcnt vmcnt(0)\nv_cmp_ne_u32 vcc, s48, v2\ns_mov_b64 exec, -1\ns_cmp_eq_u64 vcc, 0\ns_cbranch_scc0 Lp2_{tag}{s.tag}e\ns_barrier\ns_branch Lp2_{tag}{s.tag}k")
    def loader_s(s, a):
        AH, AA = s.AH, s.AA
        s.setup_s(a)
        a.label(f"Lp2_s{s.tag}e")
        a("s_barrier")
        if s.par: w2_slow(a)
        gate(a, 12, 0xff, sl=opt("slp2", 2))
        a.label(f"Lp2_s{s.tag}k")
        stamp(a, 3)
        def issue(sc):
            a(f"s_lshl_b32 s40, s34, {11 if sc else 18}" if not opt("w2wrap") else f"s_and_b32 s40, s34, 1\ns_lshl_b32 s40, s40, {11 if sc else 18}")
            for i in range(4): a(f"s_add_u32 m0, s37, {1024*i}\nbuffer_load_dwordx4 v{(16 if sc else 8)+i}, s[4:7], s40 offen {sc} lds")
            a(s.adv())
        s.first(a, 4, lambda: issue(SC), opt("ins", 0))()
        steady(a, 10, 4, AA, lambda: issue(SC))
        srd(a, 4, 12, F_ * 4096); a(s.phase_b())
        if AA < AH: a(f"s_waitcnt vmcnt({4*(AA-1)})\ns_barrier"); issue_n(a, AH - AA + 1, lambda: issue(""))
        steady(a, 34, 4, AH, lambda: issue(""))
        stamp(a, 5)
        drain(a, 4, AH)
        endp(a)
    def setup_d(s, a):
        ND = s.ND
        a(f"s_sub_u32 s22, s3, 2\ns_mul_i32 s23, s51, 68\ns_add_u32 s23, s23, s22\ns_lshl_b32 s23, s23, 10\nv_lshl_add_u32 v8, v1, 4, s23")
        for i in range(1, ND): a(f"v_add_u32 v{8+i}, {68*1024*i}, v8")
        a(f"""
        s_mul_i32 s37, s22, {1024*ND}
        s_add_u32 s37, s37, 8192
        s_add_u32 s38, s37, {s.SLOT*s.S}
        s_lshl_b32 s23, s52, 10
        s_add_u32 s23, s23, {F3}
        v_lshl_add_u32 v16, v1, 7, s23
        s_lshr_b32 s23, s51, 2
        s_lshl_b32 s23, s23, 11
        s_lshr_b32 s26, s52, 1
        s_mul_i32 s26, s26, {160*128}
        s_add_u32 s23, s23, s26
        s_add_u32 s23, s23, {F4}
        v_lshl_add_u32 v17, v1, 7, s23
        s_mov_b32 s34, 0
        s_mov_b32 s36, 48
        s_mov_b32 s33, 0
        """)
        srd(a, 8, 20, UW_SZ, UW_OFF)
    def loader_d(s, a):
        AH, AA, GB, ND = s.AH, s.AA, s.GB, s.ND
        s.setup_d(a)
        a.label(f"Lp2_d{s.tag}e")
        if s.par: gate(a, 16, 0xff); a("" if opt("wearly") else "s_barrier")
        else: a("s_barrier"); gate(a, 16, 0xff)
        a.label(f"Lp2_d{s.tag}k")
        stamp(a, 3)
        def issue():
            a(("s_and_b32 s41, s34, 1\ns_lshl_b32 s41, s41, 1" if opt("uwrap") else "s_lshl_b32 s41, s34, 1") + "\ns_add_u32 s41, s41, s36\ns_lshl_b32 s41, s41, 10")
            for i in range(ND): a(f"s_add_u32 m0, s37, {1024*i}\nbuffer_load_dwordx4 v{8+i}, s[8:11], s41 offen {'' if opt('uplain') else SC} lds")
            a(s.adv())
        f = s.first(a, ND, issue)
        if s.par and opt("wearly"): a("s_barrier")
        f()
        steady(a, 10, ND, AA, issue)
        for j in range(10 - AA, GB): a(f"s_waitcnt vmcnt({ND*(9-j)})\ns_barrier")
        a("s_mov_b32 s36, 0\n" + s.phase_b())
        gate(a, 17, 0x0fff if ND == 4 else 0x0fff0fff, sl=opt("slp4", 2))
        stamp(a, 4)
        issue_n(a, GB + AH - 10, issue)
        steady(a, 34, ND, AH, issue)
        stamp(a, 5)
        drain(a, ND, AH)
        endp(a)
    def consumer1(s, a):
        ND = s.ND; L = f"Lp2{s.tag}"
        ACB = 16; ACA = ACB + 4 * ND; KS = 4 + 4 * ND; SETS = (ACA + 4 * ND, ACA + 4 * ND + 2 * KS)
        a(f"""
        s_load_dwordx2 s[24:25], s[0:1], {KA['b2']}
        s_load_dwordx2 s[28:29], s[0:1], {KA['out']}
        s_lshl_b32 s23, s50, 6
        s_lshl_b32 s26, s3, 4
        s_add_u32 s23, s23, s26
        v_and_b32 v2, 15, v1
        v_add_u32 v2, s23, v2
        v_lshlrev_b32 v3, 1, v2
        v_lshlrev_b32 v4, 3, v2
        s_waitcnt lgkmcnt(0)
        """)
        srd(a, 24, 24, 4096); srd(a, 8, 20, G_SZ, G_OFF); srd(a, 28, 28, S_ * 1280)
        a(f"""
        buffer_load_ushort v10, v3, s[24:27], 0 offen
        s_setprio 0
        v_lshrrev_b32 v5, 2, v1
        v_lshrrev_b32 v6, 1, v5
        v_and_b32 v6, 3, v6
        v_xor_b32 v6, s3, v6
        v_lshlrev_b32 v6, 5, v6
        v_lshl_add_u32 v5, v5, 7, v6
        v_and_b32 v6, 3, v1
        v_lshl_add_u32 v8, v6, 3, v5
        v_lshlrev_b32 v9, 4, v1
        v_add_u32 v9, 8192, v9
        v_mul_u32_u24 v12, 1280, v2
        v_lshrrev_b32 v6, 4, v1
        v_lshl_add_u32 v12, v6, 3, v12
        s_lshl_b32 s26, s51, 5
        v_add_u32 v12, s26, v12
        s_lshl_b32 s26, s3, 10
        v_lshl_add_u32 v13, v1, 3, s26
        v_and_b32 v14, 1, v6
        v_mul_u32_u24 v14, 24, v14
        v_add_u32 v14, v14, v12
        """)
        for i in range(4 * ND): a(f"v_mov_b32 v{ACA+i}, 0")
        def reads(st, ph="b"):
            r = []
            for kk in range(2):
                b = SETS[st] + KS * kk
                if ph == "a": r += [(f"ds_read_b64 {v(b,2)}, v13 offset:{kk*4096}", (kk, "b0")), (f"ds_read_b64 {v(b+2,2)}, v13 offset:{kk*4096+512}", (kk, "b1"))]
                else: r += [(f"ds_read_b64_tr_b16 {v(b,2)}, v8 offset:{kk*4096}", (kk, "b0")), (f"ds_read_b64_tr_b16 {v(b+2,2)}, v8 offset:{kk*4096+2048}", (kk, "b1"))]
                r += [(f"ds_read_b128 {v(b+4+4*dt,4)}, v9 offset:{(kk*ND+dt)*1024}", (kk, dt)) for dt in range(ND)]
            return r
        def mf(acc, st):
            return [(f"v_mfma_f32_16x16x32_bf16 {v(acc+4*dt,4)}, {v(SETS[st]+KS*kk+4+4*dt,4)}, {v(SETS[st]+KS*kk,4)}, {v(acc+4*dt,4)}", {(kk, "b1"), (kk, dt)}) for kk in range(2) for dt in range(ND)]
        ids = [x[1] for x in reads(0)]
        adv = slot_adv(s.SLOT, s.S) + ["v_add_u32 v8, s40, v8", "v_add_u32 v9, s40, v9"]
        a("s_mov_b32 s33, 0\ns_mov_b32 s37, 0\ns_barrier"); stamp(a, 5, True)
        adva = adv + ["v_add_u32 v13, s40, v13"]
        emit_step(a, [], [], reads(0, "a"), adva)
        a.label(f"{L}_ca", 3)
        a("s_barrier")
        emit_step(a, mf(ACA, 0), ids, reads(1, "a"), adva + ["s_add_u32 s33, s33, 2", "s_cmp_ge_u32 s33, 10"])
        a(f"s_barrier\ns_cbranch_scc1 {L}_cax")
        emit_step(a, mf(ACA, 1), ids, reads(0, "a"), adva)
        a(f"s_branch {L}_ca")
        a.label(f"{L}_cax")
        emit_step(a, mf(ACA, 1), ids, reads(0, "b"), adv)
        a(f"s_waitcnt vmcnt(0)\nbuffer_load_dwordx2 v[6:7], v4, s[8:11], 0 offen {SC}\nv_lshlrev_b32 v10, 16, v10")
        for i in range(4 * ND): a(f"v_mov_b32 v{ACB+i}, v10")
        a.label(f"{L}_cb", 3)
        a("s_barrier")
        emit_step(a, mf(ACB, 0), ids, reads(1), adv + ["s_add_u32 s33, s33, 2", "s_cmp_ge_u32 s33, 34"])
        a(f"s_cbranch_scc1 {L}_clast\ns_barrier")
        emit_step(a, mf(ACB, 1), ids, reads(0), adv)
        a(f"s_branch {L}_cb")
        a.label(f"{L}_clast")
        emit_step(a, mf(ACB, 1), ids, [], [])
        stamp(a, 6)
        a(f"""
        s_mov_b32 s49, 0
        {L}_g:
        s_waitcnt vmcnt(0)
        v_cmp_ne_u32 vcc, s48, v7
        s_add_u32 s49, s49, 1
        s_cmp_eq_u64 vcc, 0
        s_cbranch_scc1 {L}_gk
        buffer_load_dwordx2 v[6:7], v4, s[8:11], 0 offen {SC}
        s_cmp_lt_u32 s49, 20000
        s_cbranch_scc1 {L}_g
        s_waitcnt vmcnt(0)
        {L}_gk:
        """)
        aux = 'sc1' if opt('osc1') else ''; O = SETS[0]
        for dt in range(ND):
            for r in range(0, 4, 2): a(f"v_pk_add_f32 {v(ACA+4*dt+r,2)}, {v(ACA+4*dt+r,2)}, {v(ACB+4*dt+r,2)} neg_lo:[0,1] neg_hi:[0,1]")
            for r in range(0, 4, 2): a(f"v_pk_fma_f32 {v(ACB+4*dt+r,2)}, {v(ACA+4*dt+r,2)}, v[6:7], {v(ACB+4*dt+r,2)} op_sel_hi:[1,0,1]")
            a(f"v_cvt_pk_bf16_f32 v{O+2*dt}, v{ACB+4*dt}, v{ACB+4*dt+1}\nv_cvt_pk_bf16_f32 v{O+1+2*dt}, v{ACB+4*dt+2}, v{ACB+4*dt+3}")
            if dt & 1:
                b = O + 2 * (dt - 1)
                a(f"v_permlane16_swap_b32 v{b}, v{b+2}\nv_permlane16_swap_b32 v{b+1}, v{b+3}\nbuffer_store_dwordx4 {v(b,4)}, v14, s[28:31], 0 offen offset:{32*(dt-1)} {aux}")
            elif dt == ND - 1: a(f"buffer_store_dwordx2 {v(O+2*dt,2)}, v12, s[28:31], 0 offen offset:{32*dt} {aux}")
        endp(a)
    def consumer(s, a):
        if s.ND % 2: return s.consumer1(a)
        ND = s.ND; NH = ND // 2; L = f"Lp2{s.tag}"
        ACB = 20; ACA = ACB + 8 * NH; KS = 8 + 4 * NH; SETS = (ACA + 8 * NH, ACA + 8 * NH + 2 * KS)
        a(f"""
        s_load_dwordx2 s[24:25], s[0:1], {KA['b2']}
        s_load_dwordx2 s[28:29], s[0:1], {KA['out']}
        s_and_b32 s27, s3, 2
        s_lshl_b32 s23, s50, 6
        s_lshl_b32 s26, s27, 4
        s_add_u32 s23, s23, s26
        v_and_b32 v2, 15, v1
        v_add_u32 v2, s23, v2
        v_lshlrev_b32 v3, 1, v2
        v_lshlrev_b32 v4, 3, v2
        s_and_b32 s22, s3, 1
        s_mul_i32 s22, s22, {NH}
        v_lshrrev_b32 v5, 2, v1
        v_lshrrev_b32 v6, 1, v5
        v_and_b32 v6, 3, v6
        v_xor_b32 v6, s27, v6
        v_lshlrev_b32 v6, 5, v6
        v_lshl_add_u32 v5, v5, 7, v6
        v_and_b32 v6, 3, v1
        v_lshl_add_u32 v8, v6, 3, v5
        v_xor_b32 v15, 32, v8
        s_lshl_b32 s23, s22, 10
        s_add_u32 s23, s23, 8192
        v_lshl_add_u32 v9, v1, 4, s23
        s_lshl_b32 s23, s27, 10
        v_lshl_add_u32 v13, v1, 3, s23
        v_mul_u32_u24 v12, 1280, v2
        v_lshrrev_b32 v6, 4, v1
        v_lshl_add_u32 v12, v6, 3, v12
        s_add_u32 s23, s22, s51
        s_lshl_b32 s23, s23, 5
        v_add_u32 v12, s23, v12
        v_and_b32 v14, 1, v6
        v_mul_u32_u24 v14, 24, v14
        v_add_u32 v14, v14, v12
        s_waitcnt lgkmcnt(0)
        """)
        srd(a, 24, 24, 4096); srd(a, 8, 20, G_SZ, G_OFF); srd(a, 28, 28, S_ * 1280)
        a("buffer_load_ushort v10, v3, s[24:27], 0 offen\nbuffer_load_ushort v11, v3, s[24:27], 0 offen offset:32\ns_setprio 0")
        for i in range(8 * NH): a(f"v_mov_b32 v{ACA+i}, 0")
        def reads(st, ph="b"):
            r = []
            for kk in range(2):
                b = SETS[st] + KS * kk
                def bread(t):
                    if ph == "a": return [(f"ds_read_b64 {v(b+4*t+2*h,2)}, v13 offset:{kk*4096+1024*t+512*h}", (kk, "b", t, h)) for h in range(2)]
                    return [(f"ds_read_b64_tr_b16 {v(b+4*t+2*h,2)}, v{(8, 15)[t]} offset:{kk*4096+2048*h}", (kk, "b", t, h)) for h in range(2)]
                r += bread(0) + [(f"ds_read_b128 {v(b+8+4*dt,4)}, v9 offset:{(kk*ND+dt)*1024}", (kk, dt)) for dt in range(NH)] + bread(1)
            return r
        def mf(acc, st):
            return [(f"v_mfma_f32_16x16x32_bf16 {v(acc+4*(NH*t+dt),4)}, {v(SETS[st]+KS*kk+8+4*dt,4)}, {v(SETS[st]+KS*kk+4*t,4)}, {v(acc+4*(NH*t+dt),4)}", {(kk, "b", t, 1), (kk, dt)})
                    for kk in range(2) for t in range(2) for dt in range(NH)]
        ids = [x[1] for x in reads(0)]
        adv = slot_adv(s.SLOT, s.S) + ["v_add_u32 v8, s40, v8", "v_add_u32 v15, s40, v15", "v_add_u32 v9, s40, v9"]
        a("s_mov_b32 s33, 0\ns_mov_b32 s37, 0\ns_barrier"); stamp(a, 5, True)
        adva = adv + ["v_add_u32 v13, s40, v13"]
        emit_step(a, [], [], reads(0, "a"), adva)
        a.label(f"{L}_ca", 3)
        a("s_barrier")
        emit_step(a, mf(ACA, 0), ids, reads(1, "a"), adva + ["s_add_u32 s33, s33, 2", "s_cmp_ge_u32 s33, 10"])
        a(f"s_barrier\ns_cbranch_scc1 {L}_cax")
        emit_step(a, mf(ACA, 1), ids, reads(0, "a"), adva)
        a(f"s_branch {L}_ca")
        a.label(f"{L}_cax")
        emit_step(a, mf(ACA, 1), ids, reads(0, "b"), adv)
        gl = f"buffer_load_dwordx2 v[16:17], v4, s[8:11], 0 offen {SC}\nbuffer_load_dwordx2 v[18:19], v4, s[8:11], 0 offen offset:128 {SC}"
        a(f"s_waitcnt vmcnt(0)\n{gl}\nv_lshlrev_b32 v10, 16, v10\nv_lshlrev_b32 v11, 16, v11")
        for i in range(8 * NH): a(f"v_mov_b32 v{ACB+i}, v{10 + i // (4 * NH)}")
        if opt("smooth"):
            alt = lambda R: [(t.replace(", v8 ", ", v2 ").replace(", v15 ", ", v3 ").replace(", v9 ", ", v5 "), k) for t, k in R]
            sa = slot_adv(s.SLOT, s.S)
            a.label(f"{L}_cb", 3)
            a("s_barrier")
            emit_smooth(a, mf(ACB, 0), ids, reads(1), sa + ["v_add_u32 v2, s40, v8", "v_add_u32 v3, s40, v15", "v_add_u32 v5, s40, v9", "s_add_u32 s33, s33, 2", "s_cmp_ge_u32 s33, 34"])
            a(f"s_cbranch_scc1 {L}_clast\ns_barrier")
            emit_smooth(a, mf(ACB, 1), ids, alt(reads(0)), sa + ["v_add_u32 v8, s40, v2", "v_add_u32 v15, s40, v3", "v_add_u32 v9, s40, v5"])
            a(f"s_branch {L}_cb")
        else:
            a.label(f"{L}_cb", 3)
            a("s_barrier")
            emit_step(a, mf(ACB, 0), ids, reads(1), adv + ["s_add_u32 s33, s33, 2", "s_cmp_ge_u32 s33, 34"])
            a(f"s_cbranch_scc1 {L}_clast\ns_barrier")
            emit_step(a, mf(ACB, 1), ids, reads(0), adv)
            a(f"s_branch {L}_cb")
        a.label(f"{L}_clast")
        emit_step(a, mf(ACB, 1), ids, [], [])
        stamp(a, 6)
        a(f"""
        s_mov_b32 s49, 0
        s_mov_b32 s22, {16*1280}
        {L}_g:
        s_waitcnt vmcnt(0)
        v_cmp_ne_u32 vcc, s48, v17
        v_cmp_ne_u32 s[26:27], s48, v19
        s_add_u32 s49, s49, 1
        s_or_b64 vcc, vcc, s[26:27]
        s_cbranch_scc0 {L}_gk
        {gl}
        s_cmp_lt_u32 s49, 20000
        s_cbranch_scc1 {L}_g
        s_waitcnt vmcnt(0)
        {L}_gk:
        """)
        O = SETS[0]
        for t in range(2):
            so = "s22" if t else "0"
            for dt in range(NH):
                x = 4 * (NH * t + dt); o = O + 8 * t + 2 * dt
                for r in (0, 2): a(f"v_pk_add_f32 {v(ACA+x+r,2)}, {v(ACA+x+r,2)}, {v(ACB+x+r,2)} neg_lo:[0,1] neg_hi:[0,1]")
                for r in (0, 2): a(f"v_pk_fma_f32 {v(ACB+x+r,2)}, {v(ACA+x+r,2)}, {v(16+2*t,2)}, {v(ACB+x+r,2)} op_sel_hi:[1,0,1]")
                a(f"v_cvt_pk_bf16_f32 v{o}, v{ACB+x}, v{ACB+x+1}\nv_cvt_pk_bf16_f32 v{o+1}, v{ACB+x+2}, v{ACB+x+3}")
                if dt == 1:
                    b = o - 2
                    a(f"v_permlane16_swap_b32 v{b}, v{b+2}\nv_permlane16_swap_b32 v{b+1}, v{b+3}\nbuffer_store_dwordx4 {v(b,4)}, v14, s[28:31], {so} offen {'nt' if opt('ont') else ''}")
                elif dt == 2: a(f"buffer_store_dwordx2 {v(o,2)}, v12, s[28:31], {so} offen offset:64 {'nt' if opt('ont') else ''}")
        endp(a)

def gen_main(a, name):
    kernel_head(a, name)
    if PROF:
        for i in range(1, 8): a(f"s_mov_b64 s[{70+2*i}:{71+2*i}], 0")
        stamp(a, 0); a("s_memtime s[66:67]")
    a(f"""
    s_cmp_ge_u32 s2, 256
    s_cbranch_scc1 Lend
    {"s_and_b32 s22, s2, 7" + chr(10) + "s_lshl_b32 s22, s22, 5" + chr(10) + "s_lshr_b32 s2, s2, 3" + chr(10) + "s_or_b32 s2, s2, s22" if opt("perm") else ""}
    s_load_dwordx2 s[20:21], s[0:1], {KA['ws']}
    v_lshrrev_b32 v1, 6, v0
    v_readfirstlane_b32 s3, v1
    v_and_b32 v1, 63, v0
    {"s_and_b32 s52, s2, 3" + chr(10) + "s_lshl_b32 s52, s52, 1" + chr(10) + "s_bfe_u32 s53, s2, 0x10002" + chr(10) + "s_or_b32 s52, s52, s53" if opt("lo") else "s_and_b32 s52, s2, 7"}
    s_lshr_b32 s53, s2, 3
    s_lshr_b32 s22, s52, 1
    s_lshl_b32 s50, s22, 3
    s_and_b32 s23, s53, 7
    s_add_u32 s50, s50, s23
    s_lshr_b32 s26, s53, 3
    """)
    if PROF: a("s_mov_b32 s69, s3")
    NG = 15 if opt("mixed") else 30
    a("s_cmp_ge_u32 s53, 16\ns_cbranch_scc1 Lrole_qa" if opt("mixed") else "s_bitcmp1_b32 s52, 0\ns_cbranch_scc1 Lrole_qa")
    PE, PO = P2(0), P2(1)
    MX = opt("mix", 0)
    a(f"s_and_b32 s54, s23, {MX}\ns_cselect_b32 s51, 5, {PE.ND}\ns_mul_i32 s51, s51, s26")
    a(f"""
    {"s_lshl_b32 s19, s52, 4" if opt("mixed") else "s_lshl_b32 s19, s22, 5"}
    s_add_u32 s19, s19, s53
    s_mul_i32 s17, s53, 86
    s_lshr_b32 s17, s17, 8
    s_mul_i32 s23, s17, 3
    s_sub_u32 s23, s53, s23
    s_mul_i32 s16, s22, 3
    s_add_u32 s16, s16, s23
    """)
    if opt("mixed"): a("s_and_b32 s26, s52, 1\ns_mul_i32 s26, s26, 5\ns_add_u32 s17, s17, s26")
    if opt("sweep"): a("s_mov_b32 s18, 0")
    else: a("s_mul_i32 s18, s17, 205\ns_lshr_b32 s18, s18, 6")
    a("s_cmp_ge_u32 s3, 4\ns_cbranch_scc1 Lg_cons\ns_setprio 1\ns_cmp_ge_u32 s3, 2\ns_cbranch_scc1 Lg_h")
    def flags():
        a(f"s_waitcnt lgkmcnt(0)"); srd(a, 44, 20, FL_SZ, FL_OFF); a(f"s_load_dword s48, s[44:45], {FZ}")
    a(f"s_load_dwordx2 s[4:5], s[0:1], {KA['w1']}"); flags()
    a(f"s_cmp_ge_u32 s53, {NG}\ns_cbranch_scc1 Lsp_w")
    a("; ---- even slots, waves 0-1: w1 tiles"); g1_loader_w(a)
    a.label("Lsp_w"); a("; ---- spare workgroups, waves 0-3: wo -> fragments")
    if opt("sweep"): w1_sweep(a)
    else: a("s_barrier"); tag_ready(a); a("s_barrier")
    a.label("Lsp_l"); a("s_mov_b32 s16, s52" if opt("mixed") else "s_lshr_b32 s16, s52, 1\ns_lshl_b32 s16, s16, 1\ns_add_u32 s16, s16, s53\ns_sub_u32 s16, s16, 30"); spare_loader(a)
    a("s_cmp_ge_u32 s3, 2\ns_cbranch_scc1 Lp2_d0\ns_branch Lp2_s0")
    a.label("Lg_h"); code_prefetch(a)
    if opt("mixed"):
        a(f"s_load_dwordx2 s[4:5], s[0:1], {KA['w1']}"); flags(); w1_sweep(a)
        a("s_cmp_ge_u32 s53, 15\ns_cbranch_scc1 Lsp_l")
    else:
        if opt("wsw"):
            a(f"s_load_dwordx2 s[8:9], s[0:1], {KA['wqkv']}")
        flags()
        if opt("wsw"):
            a("s_lshl_b32 s22, s19, 1\ns_add_u32 s22, s22, s3\ns_sub_u32 s22, s22, 2\ns_mul_i32 s23, s22, 11\ns_add_u32 s23, s23, 16384\ns_lshl_b32 s23, s23, 7\ns_lshl_b32 s22, s22, 13\nv_lshlrev_b32 v2, 7, v1")
            srd(a, 8, 8, 640 * 3840)
        if opt("wsw") == 2: a("s_barrier")
        if opt("wsw"): a("buffer_load_dword v40, v2, s[8:11], s22 offen\ns_mov_b64 exec, 0x7ff\nbuffer_load_dword v41, v2, s[8:11], s23 offen\ns_mov_b64 exec, -1")
        if opt("wsw") != 2: a("s_barrier")
        a("s_cmp_lt_u32 s53, 30\ns_cbranch_scc1 Lg_h2"); tag_ready(a); a("s_barrier\ns_branch Lsp_l")
    a.label("Lg_h2"); a("; ---- even slots, waves 2-3: h tiles"); g1_loader_h(a)
    a.label("Lg_cons"); a("; ---- even slots, waves 4-7: layernorm, then the first MLP GEMM")
    a(f"s_setprio 2\ns_load_dwordx2 s[4:5], s[0:1], {KA['x']}\ns_load_dwordx2 s[8:9], s[0:1], {KA['gw']}\ns_sub_u32 s3, s3, 4")
    ln_issue(a)
    srd(a, 44, 20, FL_SZ, FL_OFF)
    a(f"v_mov_b32 v2, {CTR}\nv_mov_b32 v6, 0\nv_mov_b32 v7, 0\nv_mov_b32 v8, 0\nv_mov_b32 v9, 0\nds_write_b128 v2, v[6:9]\ns_waitcnt lgkmcnt(0)\ns_barrier\ns_load_dword s48, s[44:45], {FZ}")
    ln_finish(a); stamp(a, 1, True)
    a(f"s_cmp_ge_u32 s53, {NG}\ns_cbranch_scc1 Lsp_cons")
    g1_consumer(a); a("s_branch Lp2_c0")
    a.label("Lsp_cons")
    if (opt("sweep") and not opt("noslowcol")):
        R0, SW = opt("sc0", 1024), opt("scw", 1)
        a(f"""
        s_load_dwordx2 s[4:5], s[0:1], {KA['w1']}
        s_lshr_b32 s22, s52, 1
        s_cmp_eq_u32 s22, 2
        s_cselect_b32 s23, 4, s3
        s_cmp_ge_u32 s23, {SW}
        s_cbranch_scc1 Lsc_done
        s_min_u32 s22, s22, 2
        s_lshl_b32 s22, s22, 10
        s_add_u32 s22, s22, {384 + R0 * 3072}
        s_and_b32 s23, s53, 1
        s_mul_i32 s23, s23, {SW}
        s_add_u32 s23, s23, s3
        s_lshl_b32 s23, s23, 6
        v_add_u32 v2, s23, v1
        v_mul_u32_u24 v2, 3072, v2
        s_mov_b32 s33, 0
        s_waitcnt lgkmcnt(0)
        """)
        srd(a, 4, 4, S_ * 3072)
        a(f"Lsc_l:\nbuffer_load_dword v3, v2, s[4:7], s22 offen\ns_add_u32 s22, s22, {128*SW*3072}\ns_add_u32 s33, s33, 1\ns_cmp_lt_u32 s33, {-(-(2048-R0)//(128*SW))}\ns_waitcnt vmcnt(0)\ns_cbranch_scc1 Lsc_l\nLsc_done:\ns_waitcnt lgkmcnt(0)")
    a("s_barrier")
    nw, r0, nr = opt("cw", 2), opt("cr0", 384), opt("cnr", 768)
    if nw:
        a(f"""
        s_cmp_ge_u32 s3, {nw}
        s_cbranch_scc1 Lc3_d
        s_load_dwordx2 s[12:13], s[0:1], {KA['w2']}
        s_lshr_b32 s22, s50, 1
        s_lshl_b32 s22, s22, 11
        s_add_u32 s22, s22, {F2}
        v_mov_b32 v12, s22
        """)
        gate(a, 12, 1)
        a(f"""
        s_and_b32 s22, s53, 1
        s_mul_i32 s22, s22, {nw}
        s_add_u32 s22, s22, s3
        s_lshl_b32 s22, s22, 6
        v_add_u32 v2, s22, v1
        v_lshlrev_b32 v2, 12, v2
        s_lshr_b32 s22, s52, 1
        s_lshl_b32 s22, s22, 10
        s_add_u32 s22, s22, {384 + r0 * 4096}
        s_mov_b32 s33, 0
        s_waitcnt lgkmcnt(0)
        """)
        srd(a, 12, 12, F_ * 4096)
        a(f"Lc3_l:\nbuffer_load_dword v30, v2, s[12:15], s22 offen\ns_add_u32 s22, s22, {128*nw*4096}\ns_add_u32 s33, s33, 1\ns_cmp_lt_u32 s33, {nr//(128*nw)}\ns_waitcnt vmcnt(0)\ns_cbranch_scc1 Lc3_l\nLc3_d:")
    a("s_lshl_b32 s22, s3, 8\ns_add_u32 s22, s22, s2\ns_cmp_lg_u32 s22, 240\ns_cbranch_scc1 Lp2_c0"); step_tag(a); a("s_branch Lp2_c0")
    a.label("Lrole_qa"); a("; ---- odd slots: qkv projection + attention")
    a(f"s_and_b32 s54, s23, {MX}\ns_cselect_b32 s51, 5, {PO.ND}\ns_cselect_b32 s27, 20, {4*PE.ND}\ns_mul_i32 s51, s51, s26\ns_add_u32 s51, s51, s27")
    if opt("mixed"): a("s_and_b32 s23, s53, 3\ns_lshl_b32 s16, s22, 2\ns_add_u32 s16, s16, s23\ns_lshr_b32 s26, s53, 2\ns_and_b32 s26, s26, 3\ns_and_b32 s17, s52, 1\ns_lshl_b32 s17, s17, 2\ns_add_u32 s17, s17, s26")
    else: a(f"""
    s_and_b32 s16, s22, 1
    s_lshl_b32 s16, s16, 3
    s_add_u32 s16, s16, s23
    s_lshr_b32 s17, s22, 1
    s_lshl_b32 s17, s17, 2
    s_add_u32 s17, s17, s26
    """)
    if opt("nsq"): a("s_mov_b32 s18, 0")
    elif not opt("q8") and not opt("q4"): a("s_xor_b32 s18, s26, s23\ns_and_b32 s18, s18, 1\ns_mul_i32 s18, s18, 5")
    elif opt("q4"): a("s_add_u32 s18, s26, s23\ns_and_b32 s18, s18, 3\ns_mul_i32 s18, s18, 5\ns_lshr_b32 s18, s18, 1")
    elif opt("mixed"): a("s_add_u32 s18, s26, s23\ns_and_b32 s18, s18, 3\ns_mul_i32 s18, s18, 10\ns_lshr_b32 s18, s18, 2")
    else: a("s_lshl_b32 s18, s26, 1\ns_add_u32 s18, s18, s23\ns_and_b32 s18, s18, 7\ns_mul_i32 s18, s18, 10\ns_lshr_b32 s18, s18, 3")
    a(f"s_cmp_ge_u32 s3, 4\ns_cbranch_scc1 Lq_cons\ns_setprio 1\ns_cmp_eq_u32 s3, 3\ns_cbranch_scc1 Lq_idle")
    a(f"s_load_dwordx2 s[4:5], s[0:1], {KA['x']}\ns_load_dwordx2 s[8:9], s[0:1], {KA['wqkv']}"); qa_w1_sweep(a); flags(); qa_loader(a)
    a("s_cmp_ge_u32 s3, 2\ns_cbranch_scc1 Lp2_d1\ns_branch Lp2_s1")
    a.label("Lq_idle"); a(f"s_load_dwordx2 s[4:5], s[0:1], {KA['x']}\ns_load_dwordx2 s[8:9], s[0:1], {KA['wqkv']}"); flags(); qa_idle(a); a("s_branch Lp2_d1")
    a.label("Lq_cons"); a("s_sub_u32 s3, s3, 4"); flags()
    qa_consumer(a)
    for p in (PO, PE):
        for k, f in (("c", P2.consumer), ("s", P2.loader_s), ("d", P2.loader_d)):
            a.label(f"Lp2_{k}{p.par}"); a(f"; ---- output tile 64 x {16*p.ND}: " + dict(c="MFMA waves", s="loader of o / w2", d="loader of wo / u")[k])
            if MX: a(f"s_cmp_lg_u32 s54, 0\ns_cbranch_scc1 Lp2_{k}{p.par}x")
            f(p, a)
            if MX: a.label(f"Lp2_{k}{p.par}x"); f(P2(p.par, 5), a)
    a.label("Lend"); a("s_endpgm")
    a.raw("Lcode_end:")
    return kernel_desc(name, 256, 102)

def gen_osc(a, name):
    kernel_head(a, name)
    o = next(o for o in OPTS if o.startswith("osc"))[3:].split("_")
    a(f"s_cmp_ge_u32 s2, 1\ns_cbranch_scc1 Losc_end\ns_load_dwordx2 s[4:5], s[0:1], {KA['ws']}\ns_waitcnt lgkmcnt(0)")
    srd(a, 4, 4, 0x100000, TL_OFF + (0x80000 if opt("pthr") else 0x40000))
    def red(dst, base, stride, count, wave, slot, op):
        n = -(-count // 64)
        for i in range(n):
            a(f"v_add_u32 v1, {64*i}, v0\nv_min_u32 v1, {count-1}, v1\nv_mul_u32_u24 v1, {stride}, v1\nv_add_u32 v1, {base}, v1\nv_lshlrev_b32 v1, 9, v1\ns_mov_b32 s8, {wave*64 + slot*4}")
            a(f"buffer_load_dword v{4+i}, v1, s[4:7], s8 offen")
        a("s_waitcnt vmcnt(0)")
        if op == "add":
            for i in range(n): a(f"v_subrev_u32 v{4+i}, s20, v{4+i}")
        for i in range(1, n): a(f"v_{op}_u32 v4, v4, v{4+i}")
        a(f"v_readlane_b32 s{dst}, v4, 0")
        for i in range(1, 64): a(f"v_readlane_b32 s9, v4, {i}\ns_nop 0\ns_{op}_u32 s{dst}, s{dst}, s9")
        if op == "add": a(f"s_lshr_b32 s{dst}, s{dst}, {(64*n).bit_length()-1}\ns_add_u32 s{dst}, s{dst}, s20")
    red(20, 0, 1, 256, 0, 0, "min")
    if len(o) > 1:
        red(21, int(o[0]), int(o[1]), int(o[2]), int(o[3]), int(o[4]), dict(n="min", x="max", a="add")[o[5]])
        a("s_sub_u32 s21, s21, s20\ns_min_u32 s21, s21, 20000\ns_lshl_b32 s21, s21, 2")
    else: a("s_mov_b32 s21, 0")
    a("s_add_u32 s21, s21, 10000\nLosc_spin:\ns_memrealtime s[10:11]\ns_waitcnt lgkmcnt(0)\ns_sub_u32 s10, s10, s20\ns_cmp_lt_u32 s10, s21\ns_cbranch_scc1 Losc_spin")
    a.label("Losc_end"); a("s_endpgm")
    return kernel_desc(name, 16, 32)

def gen_probe(a, name, vg):
    kernel_head(a, name)
    a(f"s_memrealtime s[70:71]\ns_cmp_ge_u32 s2, 256\ns_cbranch_scc1 Lpr_end\ns_load_dwordx2 s[4:5], s[0:1], {KA['ws']}\ns_waitcnt lgkmcnt(0)")
    srd(a, 4, 4, 0x100000, TL_OFF + 0x80000)
    a("s_lshl_b32 s8, s2, 9\nv_mov_b32 v1, s8\nv_mov_b32 v2, s70\nv_cmp_eq_u32 vcc, 0, v0\ns_and_saveexec_b64 s[10:11], vcc\ns_cbranch_execz Lpr_end\nbuffer_store_dword v2, v1, s[4:7], 0 offen")
    a.label("Lpr_end"); a("s_endpgm")
    return kernel_desc(name, vg, 102)

DOC = """;
; waves 4-7 read fragments and run v_mfma_f32_16x16x32_bf16; one s_barrier per K step).  id&7 picks the role; that
; Hand-offs through d_ws: write-through (sc1) stores, s_waitcnt vmcnt(0) in every storing wave, then one flag per
;"""

def build(spec=""):
    global PROF
    OPTS[:] = [o for o in spec.split("+") if o]; PROF = bool(opt("prof")); UID[0] = 0
    ref = open(f"cdna_kernels/{NAME}.s.ref").read().split("\n")
    head = ref[:ref.index(next(x for x in ref if x.startswith("; Override")))]
    a = Asm(); a.raw("\n".join(head))
    if opt("lo"): a.raw("; lo")
    osc = any(o.startswith("osc") and o != "osc1" for o in OPTS)
    if opt("pthr"): a.raw(f"; @launch kernel=probe_kernel grid=(256,1,1) block=({opt('pthr')},1,1) lds={opt('plds', 0)}")
    if osc: a.raw(f"; @launch kernel={NAME}_kernel grid=(256,1,1) block=(512,1,1) lds={LDS_SZ}\n; @launch kernel=osc_kernel grid=(1,1,1) block=(64,1,1) lds=0")
    else: a.raw(f"; @launch grid=(256,1,1) block=(512,1,1) lds={LDS_SZ}")
    a.raw(DOC)
    a.raw('.amdgcn_target "amdgcn-amd-amdhsa--gfx950"')
    d = gen_main(a, NAME + "_kernel")
    if osc: d += gen_osc(a, "osc_kernel")
    if opt("pthr"): d += gen_probe(a, "probe_kernel", opt("pvg"))
    if opt("nocomp"): a.lines = [(t, c) for t, c in a.lines if not (c is not None and (c.kind == "mfma" or c.op.startswith("ds_read_b") and c.op != "ds_read_b32"))]
    if opt("noload"): a.lines = [(t, c) for t, c in a.lines if not (c is not None and c.kind == "vmem" and c.lds)]
    if opt("nomfma"): a.lines = [(t, c) for t, c in a.lines if not (c is not None and c.kind == "mfma")]
    if opt("nods"): a.lines = [(t, c) for t, c in a.lines if not (c is not None and c.op.startswith("ds_read_b") and c.op != "ds_read_b32")]
    if opt("nowait"): a.lines = [(t, c) for t, c in a.lines if not (c is not None and c.op == "s_waitcnt" and "lgkm" in t and "(0)" not in t)]
    if opt("al"): a.align_hot([("Lg1_c", "Lg1_clast"), ("Lp2_ca", "Lp2_cax"), ("Lp2_cb", "Lp2_clast")])
    if opt("lp") is not None: a.lines = [((t.replace("s_setprio 1", f"s_setprio {opt('lp')}"), c) if c is not None and c.op == "s_setprio" else (t, c)) for t, c in a.lines]
    bad = a.check_branches()
    for b in bad: print("HAZARD across branch:", b, file=sys.stderr)
    assert not bad
    a.raw(d)
    return a.text()

if __name__ == "__main__":
    open(sys.argv[2] if len(sys.argv) > 2 else f"cdna_kernels/{NAME}.s", "w").write(build(sys.argv[1] if len(sys.argv) > 1 else ""))
```
